```python
import torch

def _softmax(x, axis=-1):
    return torch.softmax(x, dim=axis)
def _gelu(x):
    return torch.nn.functional.gelu(x, approximate="tanh")
def _silu(x):
    return torch.nn.functional.silu(x)
def _sigmoid(x):
    return torch.sigmoid(x)
def _layernorm(x, axis=-1, eps=1e-5):
    m = x.mean(dim=axis, keepdim=True)
    v = x.var(dim=axis, keepdim=True, unbiased=False)
    return (x - m) / torch.sqrt(v + eps)
def _scatter_add(tgt, idx, src, axis=0):
    return tgt.clone().index_add_(axis, idx, src)
def _segment_sum(src, seg, n):
    out = torch.zeros((n,) + src.shape[1:], dtype=src.dtype)
    return out.index_add_(0, seg, src)
def _pad(x, pw):
    flat = tuple(v for pair in reversed(pw) for v in pair)
    return torch.nn.functional.pad(x, flat)

kernel_name = 'parallel_sum__linear_attn_block__geglu_ffn__prompt'

def setup_inputs():

    _w = (lambda a: (lambda t: t.to(torch.bfloat16) if t.is_floating_point() else t)(torch.as_tensor(a)))
    def _A_setup():
        B, S, D = 1, 2048, 640
        return {
            "x": _w((lambda *s: torch.randn(*s, dtype=torch.bfloat16) * 0.05)(B, S, D)),
            "wqkv": _w((lambda *s: torch.randn(*s, dtype=torch.bfloat16) * 0.2)(D, 3 * D)),
            "wo": _w((lambda *s: torch.randn(*s, dtype=torch.bfloat16) * 0.2)(D, D)),
        }
    _A_in = _A_setup()

    def _B_setup():
        B, S, D, F = 1, 2048, 640, 1728
        return {
            "x": _w((lambda *s: torch.randn(*s, dtype=torch.bfloat16) * 0.05)(B, S, D)),
            "w_gate": _w((lambda *s: torch.randn(*s, dtype=torch.bfloat16) * 0.05)(D, F)),
            "w_up": _w((lambda *s: torch.randn(*s, dtype=torch.bfloat16) * 0.05)(D, F)),
            "w_down": _w((lambda *s: torch.randn(*s, dtype=torch.bfloat16) * 0.05)(F, D)),
        }
    _B_in = _B_setup()

    return {
        "A_x": _A_in["x"],
        "A_wqkv": _A_in["wqkv"],
        "A_wo": _A_in["wo"],
        "B_x": _B_in["x"],
        "B_w_gate": _B_in["w_gate"],
        "B_w_up": _B_in["w_up"],
        "B_w_down": _B_in["w_down"],
    }

def reference(A_x, A_wqkv, A_wo, B_x, B_w_gate, B_w_up, B_w_down):
    def _A_ref(x, wqkv, wo):
        B, S, D = x.shape
        H = 32; Dh = D // H
        qkv = (lambda x, *d: x.permute(*d))((x @ wqkv).reshape(B, S, 3, H, Dh), 2, 0, 3, 1, 4)
        q, k, v = qkv[0], qkv[1], qkv[2]
        phi = lambda t: torch.where(t > 0, t + 1, torch.exp(t)) + 1e-6
        pq, pk = phi(q), phi(k)
        kv = torch.einsum("bhsd,bhse->bhde", pk, v)
        z = torch.einsum("bhsd->bhd", pk)
        num = torch.einsum("bhqd,bhde->bhqe", pq, kv)
        den = torch.einsum("bhqd,bhd->bhq", pq, z)[..., None] + 1e-6
        o = num / den
        return (lambda x, *d: x.permute(*d))(o, 0, 2, 1, 3).reshape(B, S, D) @ wo

    def _B_ref(x, w_gate, w_up, w_down):
        return (_gelu(x @ w_gate) * (x @ w_up)) @ w_down

    x = A_x
    xn = _layernorm(x, axis=-1)
    return x + _A_ref(xn, A_wqkv, A_wo) + _B_ref(xn, B_w_gate, B_w_up, B_w_down)
```

```python
import re

TRANS = ("v_exp_f32", "v_log_f32", "v_rcp_f32", "v_rsq_f32", "v_sqrt_f32", "v_sin_f32", "v_cos_f32")

_reg_re = re.compile(r"\b([vsa])\[(\d+):(\d+)\]|\b([vsa])(\d+)\b|\b(vcc|exec|m0|scc)\b")


def regs_of(tok):
    out = set()
    for m in _reg_re.finditer(tok):
        if m.group(1):
            for i in range(int(m.group(2)), int(m.group(3)) + 1):
                out.add(m.group(1) + str(i))
        elif m.group(4):
            out.add(m.group(4) + m.group(5))
        else:
            out.add(m.group(6))
    return out


def split_ops(rest):
    ops, cur, depth = [], "", 0
    for ch in rest:
        if ch == "[":
            depth += 1
        if ch == "]":
            depth -= 1
        if ch == "," and depth == 0:
            ops.append(cur.strip())
            cur = ""
        else:
            cur += ch
    if cur.strip():
        ops.append(cur.strip())
    return ops


class Ins:
    __slots__ = ("text", "op", "kind", "wr", "rd", "passes", "srcc", "ab", "dpp", "states", "store_data")

    def __init__(self, text):
        self.text = text
        t = text.split(";")[0].strip()
        parts = t.split(None, 1)
        op = parts[0]
        rest = parts[1] if len(parts) > 1 else ""
        self.op = op
        ops = split_ops(rest)
        core = []
        for i, o in enumerate(ops):
            core.append(o.split(" ")[0] if i == len(ops) - 1 or " " in o else o)
        self.wr, self.rd = set(), set()
        self.passes = 0
        self.srcc = set()
        self.ab = set()
        self.store_data = set()
        self.dpp = ("quad_perm" in rest or "row_" in rest or "wave_" in rest or op.endswith("_dpp"))
        self.states = 1
        R = [regs_of(c) for c in core]
        if op == "s_nop":
            self.kind = "nop"
            self.states = int(core[0], 0) + 1
        elif op.startswith("v_mfma"):
            self.kind = "mfma"
            self.passes = 8 if "32x32x16" in op else 4
            self.wr = R[0]
            self.ab = R[1] | R[2]
            self.srcc = R[3]
            self.rd = self.ab | self.srcc
        elif op.startswith("v_"):
            self.kind = "trans" if op.replace("_e32", "").replace("_e64", "") in TRANS else "valu"
            if op.startswith("v_cmp"):
                self.wr = R[0]
                self.rd = set().union(*R[1:])
                if op.startswith("v_cmpx"):
                    self.wr |= {"exec"}
            elif op.startswith("v_permlane") and "swap" in op:
                self.wr = R[0] | R[1]
                self.rd = R[0] | R[1]
            elif op.startswith(("v_add_co", "v_sub_co", "v_addc_co", "v_subb_co")):
                self.wr = R[0] | R[1]
                self.rd = set().union(*R[2:])
            else:
                self.wr = R[0]
                self.rd = set().union(*R[1:]) if len(R) > 1 else set()
                if op.startswith(("v_fmac", "v_dot2c", "v_writelane")) or self.dpp:
                    self.rd |= R[0]
                if op.startswith("v_cndmask") and len(R) == 3:
                    self.rd |= {"vcc"}
        elif op.startswith(("buffer_", "global_", "flat_")):
            self.kind = "vmem"
            is_lds = (" lds" in rest) or ("load_lds" in op)
            if "load" in op and not is_lds:
                self.wr = R[0]
                self.rd = set().union(*R[1:])
            elif "atomic" in op and " sc0" in rest:
                if op.startswith("buffer_"):
                    self.wr = R[0]
                    self.rd = set().union(*R)
                else:
                    self.wr = R[0]
                    self.rd = set().union(*R[1:])
            else:
                self.rd = set().union(*R) if R else set()
                if "store" in op and ("x3" in op or "x4" in op):
                    self.store_data = R[0] if op.startswith("buffer_") else R[1]
            if is_lds:
                self.rd |= {"m0"}
        elif op.startswith("ds_"):
            self.kind = "ds"
            if op.startswith(("ds_read", "ds_bpermute", "ds_permute", "ds_swizzle")):
                self.wr = R[0]
                self.rd = set().union(*R[1:])
            else:
                self.rd = set().union(*R)
        elif op.startswith("s_"):
            self.kind = "salu"
            if op.startswith(("s_cmp", "s_cbranch", "s_branch", "s_waitcnt", "s_barrier", "s_endpgm", "s_sleep", "s_setprio")):
                self.rd = set().union(*R) if R else set()
            else:
                self.wr = R[0] if R else set()
                self.rd = set().union(*R[1:]) if len(R) > 1 else set()
                if "saveexec" in op:
                    self.wr |= {"exec"}
        else:
            raise ValueError("unknown instruction: " + text)


def need_states(p, c):
    n = 0
    pv = p.kind in ("valu", "trans")
    cv = c.kind in ("valu", "trans")
    vw = {r for r in p.wr if r[0] in "va" and r not in ("vcc",)}
    sw = {r for r in p.wr if r[0] == "s" or r == "vcc"}
    if pv:
        if c.kind == "mfma" and vw & c.rd:
            n = max(n, 2)
        if cv and c.dpp and vw & c.rd:
            n = max(n, 2)
        if cv and c.op.startswith("v_permlane") and vw & c.rd:
            n = max(n, 2)
        if cv and c.op.startswith(("v_readlane", "v_readfirstlane")) and vw & c.rd:
            n = max(n, 1)
        if p.kind == "trans" and (cv or c.kind in ("vmem", "ds", "mfma")) and vw & c.rd:
            n = max(n, 1)
        if sw:
            if c.kind == "vmem" and sw & c.rd:
                n = max(n, 5)
            if cv and sw & c.rd:
                n = max(n, 4 if c.op.startswith(("v_readlane", "v_writelane")) else 2)
            if c.kind == "salu" and sw & c.rd:
                n = max(n, 1)
        if "exec" in p.wr:
            if c.kind == "mfma" or (cv and (c.dpp or c.op.startswith(("v_readlane", "v_readfirstlane", "v_writelane", "v_permlane")))):
                n = max(n, 5)
    if p.kind == "mfma":
        big = {4: 8, 8: 12}[p.passes]
        if c.kind == "mfma":
            if p.wr & c.ab:
                n = max(n, big)
            if p.wr & c.srcc and not (p.wr == c.srcc and p.passes == c.passes):
                n = max(n, {4: 6, 8: 10}[p.passes])
            if p.wr & c.wr and not (p.wr == c.srcc and p.passes == c.passes):
                n = max(n, big)
        elif cv or c.kind in ("vmem", "ds"):
            if p.wr & (c.rd | c.wr):
                n = max(n, big)
        if cv and (p.srcc & c.wr):
            n = max(n, {4: 3, 8: 7}[p.passes])
    if p.kind == "salu" and "m0" in p.wr and "m0" in c.rd and c.kind in ("vmem", "ds"):
        n = max(n, 1)
    if p.kind == "vmem" and p.store_data and (p.store_data & c.wr):
        n = max(n, 2)
    return n


class Asm:
    def __init__(self):
        self.lines = []

    def __call__(self, text):
        for ln in text.split("\n"):
            s = ln.strip()
            if not s:
                continue
            if s.startswith((";", ".")) or s.endswith(":"):
                self.lines.append((False, s))
            else:
                self.lines.append((True, s))

    def label(self, name):
        self.lines.append((False, name + ":"))

    def render(self):
        out = []
        win = []
        for is_i, text in self.lines:
            if not is_i:
                out.append(text)
                continue
            c = Ins(text)
            need = 0
            for p, dist in win:
                k = need_states(p, c)
                if k > dist:
                    need = max(need, k - dist)
            while need > 0:
                k = min(need, 16)
                out.append(f"    s_nop {k-1}")
                win = [(p, d + k) for p, d in win]
                need -= k
            out.append("    " + text)
            win = [(p, d + c.states) for p, d in win if d + c.states < 24]
            win.append((c, 0))
        return "\n".join(out) + "\n"

    def fence(self):
        self("s_nop 11")


def interleave(main, *fills, window=None):
    n = len(main)
    slots = [[] for _ in range(n)]
    for f in fills:
        lo, hi = 0.0, 1.0
        if isinstance(f, tuple):
            f, lo, hi = f
        if not f:
            continue
        a, b = int(round(lo * n)), max(int(round(hi * n)), int(round(lo * n)) + 1)
        m = b - a
        for k, x in enumerate(f):
            slots[min(n - 1, a + (k * m) // len(f))].append(x)
    out = []
    for i in range(n):
        out.append(main[i])
        out.extend(slots[i])
    return out
```

```python
import sys, struct, math
from asmlib import Asm, interleave

NAME = "parallel_sum__linear_attn_block__geglu_ffn__prompt"

OPT = dict(ROTQ=1, STAMP=0)
for a in sys.argv[2:]:
    k, v = a.split("=")
    OPT[k] = int(v)

WS_H = 0x000000
WS_PQ = 0x700000
WS_W2 = 0xA00000
WS_ST = 0xD00000
WS_CS = 0xD10000
WS_KVP = 0xD80000
WS_KVB = 0xE80000
WS_STAMP = 0xF00000
WS_SIZE = 0x1000000
OOB = 0x40000000
DC_ROW = 0
DC_COL = 16
DC_KV = 32


def f32(x):
    return "0x%08x" % struct.unpack("<I", struct.pack("<f", x))[0]


LOG2E = 1.4426950408889634
GC1 = -2.0 * math.sqrt(2.0 / math.pi) * LOG2E
GC2 = GC1 * 0.044715

P_X, P_WQKV, P_WO, P_BX, P_G, P_U, P_D, P_OUT, P_DBG, P_WS = 16, 18, 20, 22, 24, 26, 28, 30, 32, 34
S_X, S_W, S_WS, S_DBG, S_T = 36, 40, 44, 48, 52


def srd(b):
    return f"s[{b}:{b+3}]"


def vr(b, n=4):
    return f"v[{b}:{b+n-1}]"


def mk_srd(A, s, p, nbytes):
    A(f"s_mov_b32 s{s}, s{p}")
    A(f"s_and_b32 s{s+1}, s{p+1}, 0xffff")
    A(f"s_mov_b32 s{s+2}, {nbytes}")
    A(f"s_mov_b32 s{s+3}, 0x20000")


def load_ptrs(A):
    A("s_load_dwordx16 s[16:31], s[0:1], 0")
    A("s_load_dwordx4 s[32:35], s[0:1], 64")


def wave_allreduce_add(A, v, t, s0):
    A(f"v_add_f32_dpp v{v}, v{v}, v{v} quad_perm:[1,0,3,2] row_mask:0xf bank_mask:0xf")
    A(f"v_add_f32_dpp v{v}, v{v}, v{v} quad_perm:[2,3,0,1] row_mask:0xf bank_mask:0xf")
    A(f"v_add_f32_dpp v{v}, v{v}, v{v} row_half_mirror row_mask:0xf bank_mask:0xf")
    A(f"v_add_f32_dpp v{v}, v{v}, v{v} row_mirror row_mask:0xf bank_mask:0xf")
    for i in range(4):
        A(f"v_readlane_b32 s{s0+i}, v{v}, {16*i}")
    A(f"v_mov_b32 v{v}, s{s0}")
    A(f"v_mov_b32 v{t}, s{s0+2}")
    A(f"v_add_f32 v{v}, s{s0+1}, v{v}")
    A(f"v_add_f32 v{t}, s{s0+3}, v{t}")
    A(f"v_add_f32 v{v}, v{v}, v{t}")


def stamp(A, idx, kern):
    if not OPT["STAMP"]:
        return
    lab = f"L_st_{kern}_{idx}_{len(A.lines)}"
    A(f"s_cmp_lg_u32 s{sWave}, 0")
    A(f"s_cbranch_scc1 {lab}")
    A("s_memrealtime s[96:97]")
    A("s_waitcnt lgkmcnt(0)")
    A(f"s_lshl_b32 s98, s2, 6")
    A(f"s_add_u32 s98, s98, {WS_STAMP + kern*0x8000 + idx*4}")
    A("v_mov_b32 v254, s96")
    A("v_mov_b32 v255, 0")
    A(f"buffer_store_dword v254, v255, {srd(S_WS)}, s98 offen")
    A.label(lab)


sWave, sRB, sCG, sIt, sKW, sKWn, sKX, sKXn, sWslot, sRslot, sXslot, sStepW, sCSit, sSpec, sTmp, sTmp2, sMW, sNW, sWrapW, sTmp3, sC0, sRow = range(56, 78)
X_LDS = 0
W_LDS = 32768
W_SLOT = 24576
MISC_LDS = W_LDS + 5 * W_SLOT
LDS_TOTAL = 163840

vLane, vT0, vT1, vT2, vT3 = 1, 2, 3, 4, 5
vXo = 6
vWo = 8
vXa = 11
vWb = 15
vWa = 20
vSel = 26
vPoll = 30
vCSA = 32
vCSP = 32
vSt = 44
vBUF = 56
vACC = 152


def k1_gemm(A, typ):
    G = typ == "G"
    MT = 2 if G else 1
    NT = 3 if G else 5
    pitch = 3456 if G else 3840
    XB = lambda P, mt, kk: vBUF + 48 * P + 4 * (mt * 2 + kk)
    WBf = lambda P, a, kk: vBUF + 48 * P + 4 * MT * 2 + 4 * (a * 2 + kk)
    acc = lambda mt, a: vACC + 16 * (mt * NT + a)
    L = lambda s: f"L_{typ}_{s}"

    if G:
        A(f"s_lshr_b32 s{sMW}, s{sWave}, 2")
        A(f"s_and_b32 s{sNW}, s{sWave}, 3")
    else:
        A(f"s_and_b32 s{sMW}, s{sWave}, 3")
        A(f"s_lshr_b32 s{sNW}, s{sWave}, 2")
    A(f"s_lshr_b32 s{sTmp}, s{sWave}, 2")
    A(f"s_and_b32 s{sTmp2}, s{sWave}, 3")
    if G:
        A(f"s_cmp_eq_u32 s{sTmp}, 0")
        A(f"s_cselect_b32 s{S_W}, s{P_G}, s{P_U}")
        A(f"s_cselect_b32 s{S_W+1}, s{P_G+1}, s{P_U+1}")
        A(f"s_and_b32 s{S_W+1}, s{S_W+1}, 0xffff")
        A(f"s_mov_b32 s{S_W+2}, {640*3456}")
        A(f"s_mov_b32 s{S_W+3}, 0x20000")
    else:
        mk_srd(A, S_W, P_WQKV, 640 * 3840)
    A(f"v_lshrrev_b32 v{vT0}, 3, v{vLane}")
    A(f"s_lshl_b32 s{sTmp3}, s{sTmp2}, 3")
    A(f"v_add_u32 v{vT0}, s{sTmp3}, v{vT0}")
    A(f"s_mov_b32 s{sTmp3}, {pitch}")
    A(f"v_mul_lo_u32 v{vT0}, v{vT0}, s{sTmp3}")
    A(f"v_and_b32 v{vT1}, 7, v{vLane}")
    A(f"v_lshrrev_b32 v{vT2}, 2, v{vLane}")
    A(f"v_and_b32 v{vT2}, 4, v{vT2}")
    A(f"v_xor_b32 v{vT1}, v{vT1}, v{vT2}")
    if G:
        A(f"s_lshl_b32 s{sTmp3}, s{sTmp}, 1")
        A(f"v_xor_b32 v{vT1}, s{sTmp3}, v{vT1}")
    if G:
        A(f"v_lshl_add_u32 v{vT0}, v{vT1}, 4, v{vT0}")
        A(f"s_mul_i32 s{sTmp3}, s{sCG}, 384")
        A(f"v_add_u32 v{vWo}, s{sTmp3}, v{vT0}")
        A(f"v_add_u32 v{vWo+1}, 128, v{vWo}")
        A(f"v_add_u32 v{vWo+2}, 256, v{vWo}")
    elif typ == "Q":
        A(f"v_lshl_add_u32 v{vT0}, v{vT1}, 4, v{vT0}")
        A(f"s_sub_u32 s{sTmp3}, s{sCG}, 13")
        A(f"s_mul_i32 s{sTmp3}, s{sTmp3}, 640")
        A(f"s_mul_i32 s3, s{sTmp}, 384")
        A(f"s_add_u32 s{sTmp3}, s{sTmp3}, s3")
        A(f"v_add_u32 v{vWo}, s{sTmp3}, v{vT0}")
        A(f"v_add_u32 v{vWo+1}, 128, v{vWo}")
        A(f"s_cmp_eq_u32 s{sTmp}, 0")
        A(f"s_movk_i32 s3, 256")
        A(f"s_cselect_b32 s3, s3, {OOB}")
        A(f"v_add_u32 v{vWo+2}, s3, v{vWo}")
    else:
        A(f"s_sub_u32 s4, s{sCG}, 9")
        A(f"s_and_b32 s5, s4, 1")
        A(f"s_mul_i32 s6, s4, 320")
        A(f"s_add_u32 s6, s6, 1280")
        A(f"s_lshl_b32 s7, s5, 6")
        A(f"s_add_u32 s7, s7, s6")
        A(f"s_cmp_eq_u32 s5, 0")
        A(f"s_cselect_b32 s8, 256, 0")
        A(f"s_add_u32 s8, s8, s6")
        A(f"v_lshl_add_u32 v{vT2}, v{vT1}, 4, v{vT0}")
        A(f"v_and_b32 v{vT3}, 3, v{vT1}")
        A(f"v_lshl_add_u32 v{vT3}, v{vT3}, 4, v{vT0}")
        A(f"v_lshrrev_b32 v{vT1}, 2, v{vT1}")
        A(f"v_mul_u32_u24 v{vT1}, 1280, v{vT1}")
        A(f"v_add3_u32 v{vT3}, v{vT3}, v{vT1}, s8")
        A(f"s_cmp_eq_u32 s{sTmp}, 0")
        A(f"s_cbranch_scc0 {L('wo1')}")
        A(f"v_add_u32 v{vWo}, s7, v{vT2}")
        A(f"v_add_u32 v{vWo+1}, 128, v{vWo}")
        A(f"v_add_u32 v{vWo+2}, 1280, v{vWo}")
        A(f"s_branch {L('wo2')}")
        A.label(L("wo1"))
        A(f"s_add_u32 s7, s7, {1280+128}")
        A(f"v_add_u32 v{vWo}, s7, v{vT2}")
        A(f"v_mov_b32 v{vWo+1}, v{vT3}")
        A(f"v_mov_b32 v{vWo+2}, {OOB}")
        A.label(L("wo2"))
    A(f"s_mul_i32 s{sTmp}, s{sTmp}, 12")
    A(f"s_add_u32 s{sTmp}, s{sTmp}, s{sTmp2}")
    A(f"s_lshl_b32 s{sTmp}, s{sTmp}, 10")
    A(f"s_add_u32 s{sWslot}, s{sTmp}, {W_LDS}")
    A(f"s_add_u32 s{sWrapW}, s{sWslot}, {5*W_SLOT}")
    A(f"s_mov_b32 s{sStepW}, {32*pitch}")
    A(f"s_mul_i32 s{sKW}, s{sC0}, {64*pitch}")
    A(f"s_mov_b32 s{sKWn}, 0")

    def dmaW():
        out = []
        for i in range(3):
            out.append(f"s_add_u32 m0, s{sWslot}, {i*4096}\n" +
                       (f"s_add_u32 s{sKWn}, s{sKWn}, 1\n" if i == 0 else "s_nop 0\n") +
                       f"buffer_load_dwordx4 v{vWo+i}, {srd(S_W)}, s{sKW} offen lds")
        adv = (f"s_add_u32 s{sWslot}, s{sWslot}, {W_SLOT}\n"
               f"s_cmp_eq_u32 s{sWslot}, s{sWrapW}\n"
               f"s_cselect_b32 s{sTmp}, {5*W_SLOT}, 0\n"
               f"s_sub_u32 s{sWslot}, s{sWslot}, s{sTmp}")
        adv2 = (f"s_add_u32 s{sKW}, s{sKW}, s{sStepW}\n"
                f"s_cmp_eq_u32 s{sKW}, {640*pitch}\n"
                f"s_cselect_b32 s{sKW}, 0, s{sKW}\n"
                f"s_cmp_ge_u32 s{sKWn}, 20\n"
                f"s_cselect_b32 s{sKW}, {OOB}, s{sKW}")
        return out + [adv, adv2]

    def dmaX():
        out = []
        for i in range(2):
            out.append(f"s_add_u32 m0, s{sXslot}, {i*1024}\n" +
                       (f"s_add_u32 s{sKXn}, s{sKXn}, 1\n" if i == 0 else "s_nop 0\n") +
                       f"buffer_load_dwordx4 v{vXo+i}, {srd(S_X)}, s{sKX} offen lds")
        adv = (f"s_xor_b32 s{sXslot}, s{sXslot}, 16384\n"
               f"s_add_u32 s{sKX}, s{sKX}, 128\n"
               f"s_cmp_eq_u32 s{sKX}, 1280\n"
               f"s_cselect_b32 s{sKX}, 0, s{sKX}\n"
               f"s_cmp_ge_u32 s{sKXn}, 10\n"
               f"s_cselect_b32 s{sKX}, {OOB}, s{sKX}")
        return out + [adv]

    for g in dmaX() + dmaW() + dmaW() + dmaW() + dmaX() + dmaW():
        A(g)

    k1_stats(A, typ)

    A(f"v_and_b32 v{vT0}, 31, v{vLane}")
    A(f"v_lshrrev_b32 v{vT1}, 5, v{vLane}")
    A(f"v_bfe_u32 v{vT2}, v{vLane}, 1, 3")
    A(f"v_xor_b32 v{vT1}, v{vT1}, v{vT2}")
    A(f"s_lshl_b32 s{sTmp}, s{sMW}, {13 if G else 12}")
    A(f"v_lshl_add_u32 v{vT0}, v{vT0}, 7, s{sTmp}")
    for kap in range(2):
        for kk in range(2):
            A(f"v_xor_b32 v{vT2}, {4*kap+2*kk}, v{vT1}")
            A(f"v_lshl_add_u32 v{vXa+2*kap+kk}, v{vT2}, 4, v{vT0}")
    A(f"v_lshrrev_b32 v{vT0}, 5, v{vLane}")
    A(f"v_lshlrev_b32 v{vT0}, 10, v{vT0}")
    A(f"v_bfe_u32 v{vT1}, v{vLane}, 2, 2")
    A(f"v_lshl_add_u32 v{vT0}, v{vT1}, 7, v{vT0}")
    A(f"v_and_b32 v{vT2}, 3, v{vLane}")
    if typ != "K":
        A(f"v_lshlrev_b32 v{vT3}, 1, v{vT2}")
        A(f"v_lshrrev_b32 v{vT2}, 1, v{vT2}")
        A(f"v_and_b32 v{vT3}, 2, v{vT3}")
        A(f"v_or_b32 v{vT2}, v{vT2}, v{vT3}")
    A(f"v_lshl_add_u32 v{vT0}, v{vT2}, 3, v{vT0}")
    A(f"v_and_b32 v{vT1}, 2, v{vT1}")
    A(f"v_bfe_u32 v{vT2}, v{vLane}, 4, 1")
    A(f"v_xor_b32 v{vT1}, v{vT1}, v{vT2}")
    if G:
        A(f"v_mul_u32_u24 v{vT2}, {3*4096}, v{vT2}")
        A(f"v_add_u32 v{vT0}, v{vT0}, v{vT2}")
        for a in range(3):
            A(f"s_mul_i32 s{sTmp}, s{sNW}, 3")
            A(f"s_add_u32 s{sTmp}, s{sTmp}, {a}")
            A(f"s_lshr_b32 s{sTmp2}, s{sTmp}, 2")
            A(f"s_lshl_b32 s{sTmp2}, s{sTmp2}, 12")
            A(f"s_and_b32 s{sTmp}, s{sTmp}, 3")
            A(f"v_xor_b32 v{vT2}, s{sTmp}, v{vT1}")
            A(f"v_lshl_add_u32 v{vT2}, v{vT2}, 5, v{vT0}")
            A(f"v_add_u32 v{vWb+a}, s{sTmp2}, v{vT2}")
    else:
        for a in range(5):
            if typ == "Q":
                A(f"s_mul_i32 s{sTmp}, s{sNW}, 5")
                A(f"s_add_u32 s{sTmp}, s{sTmp}, {a}")
            else:
                A(f"s_lshl_b32 s{sTmp}, s{sNW}, 2")
                A(f"s_add_u32 s{sTmp2}, s{sNW}, 8")
                A(f"s_cmp_eq_u32 s5, 0")
                if a == 0:
                    A(f"s_cselect_b32 s{sTmp}, s{sTmp}, s{sTmp2}")
                elif a == 4:
                    A(f"s_add_u32 s{sTmp}, s{sTmp}, 3")
                    A(f"s_cmp_eq_u32 s5, 0")
                    A(f"s_cselect_b32 s{sTmp}, s{sTmp2}, s{sTmp}")
                else:
                    A(f"s_add_u32 s{sTmp}, s{sTmp}, {a}")
                    A(f"s_sub_u32 s{sTmp}, s{sTmp}, s5")
            A(f"s_lshr_b32 s{sTmp2}, s{sTmp}, 1")
            A(f"s_lshl_b32 s{sTmp2}, s{sTmp2}, 12")
            A(f"s_and_b32 s{sTmp}, s{sTmp}, 1")
            A(f"s_lshl_b32 s{sTmp}, s{sTmp}, 1")
            A(f"v_xor_b32 v{vT2}, s{sTmp}, v{vT1}")
            A(f"v_lshl_add_u32 v{vT2}, v{vT2}, 5, v{vT0}")
            A(f"v_add_u32 v{vWb+a}, s{sTmp2}, v{vT2}")
    A(f"s_mov_b32 s{sRslot}, {W_LDS}")
    A(f"v_and_b32 v{vT0}, 15, v{vLane}")
    A(f"v_bfe_u32 v{vT1}, v{vLane}, 4, 1")
    A(f"v_cmp_eq_u32 vcc, v{vT0}, v{vT1}")
    A(f"v_mov_b32 v{vT2}, 0x3f803f80")
    A(f"v_cndmask_b32 v{vSel}, 0, v{vT2}, vcc")
    for i in range(1, 4):
        A(f"v_mov_b32 v{vSel+i}, v{vSel}")
    for i in range(4 * NT):
        A(f"v_mov_b32 v{vCSA+i}, 0")
    for i in range(16 * MT * NT):
        A(f"v_mov_b32 v{vACC+i}, 0")
    A(f"s_sub_u32 s{sCSit}, s{sRB}, s{sC0}")
    A(f"s_add_u32 s{sTmp}, s{sCSit}, 1")
    A(f"s_cmp_lt_u32 s{sRB}, 10")
    A(f"s_cselect_b32 s{sTmp}, s{sTmp}, 1")
    A(f"s_lshl_b32 s{sSpec}, 1, s{sTmp}")
    A(f"s_or_b32 s{sSpec}, s{sSpec}, 0x300")
    A(f"s_cmp_lt_u32 s{sRB}, 10")
    A(f"s_cselect_b32 s{sCSit}, s{sCSit}, 99")
    A(f"s_cmp_eq_u32 s{sMW}, 0")
    A(f"s_cselect_b32 s{sCSit}, s{sCSit}, 99")
    A(f"s_mov_b32 s{sIt}, 0")

    def reads(P, kap):
        pre = [f"v_add_u32 v{vWa+a}, s{sRslot}, v{vWb+a}" for a in range(NT)]
        pre.append(f"s_add_u32 s{sRslot}, s{sRslot}, {W_SLOT}\n"
                   f"s_cmp_eq_u32 s{sRslot}, {W_LDS+5*W_SLOT}\n"
                   f"s_cselect_b32 s{sRslot}, {W_LDS}, s{sRslot}")
        out = []
        for kk in range(2):
            for mt in range(MT):
                out.append(f"ds_read_b128 {vr(XB(P, mt, kk))}, v{vXa+2*kap+kk} offset:{mt*4096}")
            for a in range(NT):
                for rho in range(2):
                    out.append(f"ds_read_b64_tr_b16 {vr(WBf(P, a, kk)+2*rho, 2)}, v{vWa+a} offset:{kk*2048+rho*512}")
        return pre, out

    def mfmas(P):
        out = []
        for kk in range(2):
            for a in range(NT):
                for mt in range(MT):
                    x, w, d = vr(XB(P, mt, kk)), vr(WBf(P, a, kk)), vr(acc(mt, a), 16)
                    if typ == "K":
                        out.append(f"v_mfma_f32_32x32x16_bf16 {d}, {x}, {w}, {d}")
                    else:
                        out.append(f"v_mfma_f32_32x32x16_bf16 {d}, {w}, {x}, {d}")
        return out

    def cs_mfmas(P):
        return [f"v_mfma_f32_16x16x32_bf16 {vr(vCSA+4*a)}, {vr(WBf(P, a, kk))}, {vr(vSel)}, {vr(vCSA+4*a)}"
                for kk in range(2) for a in range(NT)]

    A("s_waitcnt vmcnt(9)")
    A("s_barrier")
    pre, rd = reads(0, 0)
    for g in pre + rd:
        A(g)
    A("s_waitcnt lgkmcnt(0)")
    stamp(A, 1, 0)
    A(".p2align 6")
    A.label(L("loop"))
    pre, rd = reads(1, 1)
    for g in pre:
        A(g)
    for g in interleave(mfmas(0), (rd, 0.0, 0.7), (dmaW(), 0.1, 1.0)):
        A(g)
    A(f"s_cmp_eq_u32 s{sCSit}, s{sIt}")
    A(f"s_cbranch_scc1 {L('cs0')}")
    A.label(L("cs0r"))
    A("s_waitcnt vmcnt(3) lgkmcnt(0)")
    A("s_barrier")
    A(f"s_bitcmp1_b32 s{sSpec}, s{sIt}")
    A(f"s_cbranch_scc1 {L('spec')}")
    A.label(L("specr"))
    for i in range(4):
        A(f"v_xor_b32 v{vXa+i}, 16384, v{vXa+i}")
    pre, rd = reads(0, 0)
    for g in pre:
        A(g)
    for g in interleave(mfmas(1), (rd, 0.0, 0.7), (dmaW() + dmaX(), 0.05, 1.0)):
        A(g)
    A(f"s_cmp_eq_u32 s{sCSit}, s{sIt}")
    A(f"s_cbranch_scc1 {L('cs1')}")
    A.label(L("cs1r"))
    A(f"s_add_u32 s{sIt}, s{sIt}, 1")
    A(f"s_cmp_lt_u32 s{sIt}, 10")
    A("s_waitcnt lgkmcnt(0)")
    A(f"s_cbranch_scc1 {L('loop')}")
    A(f"s_branch {L('epi')}")

    A.label(L("cs0"))
    for g in cs_mfmas(0):
        A(g)
    A(f"s_branch {L('cs0r')}")
    A.label(L("cs1"))
    for g in cs_mfmas(1):
        A(g)
    A(f"v_and_b32 v{vT0}, 15, v{vLane}")
    A(f"v_lshrrev_b32 v{vT1}, 4, v{vLane}")
    A(f"v_lshlrev_b32 v{vT1}, 4, v{vT1}")
    A(f"v_lshl_add_u32 v{vT1}, v{vT0}, 6, v{vT1}")
    A(f"v_cmp_gt_u32 vcc, 2, v{vT0}")
    A(f"v_mov_b32 v{vT2}, {OOB}")
    A(f"v_cndmask_b32 v{vT1}, v{vT2}, v{vT1}, vcc")
    A(f"s_mul_i32 s{sTmp}, s{sCG}, 10")
    A(f"s_add_u32 s{sTmp}, s{sTmp}, s{sRB}")
    A(f"s_mul_i32 s{sTmp}, s{sTmp}, 1536")
    A(f"s_mul_i32 s{sTmp2}, s{sNW}, {NT*128}")
    A(f"s_add_u32 s{sTmp}, s{sTmp}, s{sTmp2}")
    A(f"s_add_u32 s{sTmp}, s{sTmp}, {WS_CS}")
    A.fence()
    for a in range(NT):
        A(f"buffer_store_dwordx4 {vr(vCSA+4*a)}, v{vT1}, {srd(S_WS)}, s{sTmp} offen offset:{a*128} sc1")
    A(f"s_branch {L('cs1r')}")

    A.label(L("spec"))
    A(f"s_cmp_ge_u32 s{sIt}, 8")
    A(f"s_cbranch_scc1 {L('spec8')}")
    A(f"s_cmp_lg_u32 s{sWave}, 0")
    A(f"s_cbranch_scc1 {L('specr')}")
    k1_publish(A, True)
    A(f"s_branch {L('specr')}")
    A.label(L("spec8"))
    A(f"s_cmp_eq_u32 s{sIt}, 9")
    A(f"s_cbranch_scc1 {L('spec9')}")
    A.label(L("poll"))
    A(f"v_mov_b32 v{vT0}, 0")
    A(f"s_lshl_b32 s{sTmp}, s{sRB}, 2")
    A(f"s_lshl_b32 s{sTmp2}, s{sCG}, 2")
    A(f"buffer_load_dword v{vPoll}, v{vT0}, {srd(S_DBG)}, s{sTmp} offen offset:{DC_ROW*4} sc1")
    A(f"buffer_load_dword v{vPoll+1}, v{vT0}, {srd(S_DBG)}, s{sTmp2} offen offset:{DC_COL*4} sc1")
    A(f"s_cmp_eq_u32 s{sIt}, 8")
    A(f"s_cbranch_scc1 {L('specr')}")
    A("s_waitcnt vmcnt(0)")
    A.label(L("spec9"))
    A(f"v_readfirstlane_b32 s{sTmp}, v{vPoll}")
    A(f"v_readfirstlane_b32 s{sTmp2}, v{vPoll+1}")
    A(f"s_add_u32 s{sKXn}, s{sKXn}, 16")
    A(f"s_cmp_gt_u32 s{sKXn}, 0x4000000")
    A(f"s_cbranch_scc1 {L('go9')}")
    A(f"s_cmp_lt_u32 s{sTmp}, 16")
    A(f"s_cbranch_scc1 {L('poll')}")
    A(f"s_cmp_lt_u32 s{sTmp2}, 10")
    A(f"s_cbranch_scc1 {L('poll')}")
    A.label(L("go9"))
    A(f"v_lshlrev_b32 v{vT0}, 2, v0")
    A(f"v_cmp_gt_u32 vcc, {NT*(4 if G else 2)*32}, v0")
    A(f"v_mov_b32 v{vT2}, {OOB}")
    A(f"v_cndmask_b32 v{vT0}, v{vT2}, v{vT0}, vcc")
    A(f"s_mul_i32 s{sTmp}, s{sCG}, 15360")
    A(f"s_add_u32 s{sTmp}, s{sTmp}, {WS_CS}")
    for ch in range(10):
        if ch % 2 == 0 and ch:
            A(f"s_add_u32 s{sTmp}, s{sTmp}, 3072")
        A(f"buffer_load_dword v{vCSP+ch}, v{vT0}, {srd(S_WS)}, s{sTmp} offen offset:{(ch%2)*1536} sc1")
    if typ != "K":
        A(f"v_and_b32 v{vT1}, 31, v{vLane}")
        A(f"v_lshlrev_b32 v{vT1}, 3, v{vT1}")
        A(f"s_lshl_b32 s{sTmp}, s{sRB}, 10")
        A(f"s_lshl_b32 s{sTmp2}, s{sMW}, {9 if G else 8}")
        A(f"s_add_u32 s{sTmp}, s{sTmp}, s{sTmp2}")
        A(f"s_add_u32 s{sTmp}, s{sTmp}, {WS_ST}")
        for mt in range(MT):
            A(f"buffer_load_dwordx2 {vr(vSt+2*mt, 2)}, v{vT1}, {srd(S_WS)}, s{sTmp} offen offset:{mt*256} sc1")
    A(f"s_branch {L('specr')}")

    A.label(L("epi"))
    stamp(A, 2, 0)
    if typ == "K":
        A(f"v_lshrrev_b32 v{vT1}, 5, v{vLane}")
        A(f"v_lshlrev_b32 v{vT1}, 5, v{vT1}")
        A(f"s_lshl_b32 s{sTmp}, s{sRB}, 10")
        A(f"s_lshl_b32 s{sTmp2}, s{sMW}, 8")
        A(f"s_add_u32 s{sTmp}, s{sTmp}, s{sTmp2}")
        A(f"s_add_u32 s{sTmp}, s{sTmp}, {WS_ST}")
        for q in range(4):
            for h in range(2):
                A(f"buffer_load_dwordx4 {vr(vBUF+8*q+4*h)}, v{vT1}, {srd(S_WS)}, s{sTmp} offen offset:{q*64+h*16} sc1")
    A("s_waitcnt vmcnt(0)")
    for ch in range(1, 10):
        A(f"v_add_f32 v{vCSP}, v{vCSP}, v{vCSP+ch}")
    A(f"v_lshlrev_b32 v{vT0}, 2, v0")
    A(f"ds_write_b32 v{vT0}, v{vCSP} offset:{MISC_LDS - 0 if MISC_LDS < 65536 else 0}" if False else "")
    A(f"v_add_u32 v{vT0}, {MISC_LDS}, v{vT0}")
    A(f"ds_write_b32 v{vT0}, v{vCSP}")
    A("s_waitcnt lgkmcnt(0)")
    A("s_barrier")
    {"G": k1_epi_g, "Q": k1_epi_q, "K": k1_epi_kv}[typ](A, acc)
    stamp(A, 3, 0)
    A("s_endpgm")


def k1_stats_issue(A):
    b = vBUF
    A(f"s_lshl_b32 s{sRow}, s{sRB}, 7")
    A(f"s_lshl_b32 s{sTmp2}, s{sCG}, 3")
    A(f"s_add_u32 s{sRow}, s{sRow}, s{sTmp2}")
    A(f"s_add_u32 s{sRow}, s{sRow}, s{sWave}")
    A(f"s_mul_i32 s{sTmp2}, s{sRow}, 1280")
    A(f"v_lshlrev_b32 v{vT0}, 3, v{vLane}")
    A(f"v_lshlrev_b32 v{vT1}, 2, v{vLane}")
    A(f"buffer_load_dwordx2 {vr(b, 2)}, v{vT0}, {srd(S_X)}, s{sTmp2} offen")
    A(f"buffer_load_dwordx2 {vr(b+2, 2)}, v{vT0}, {srd(S_X)}, s{sTmp2} offen offset:512")
    A(f"buffer_load_dword v{b+4}, v{vT1}, {srd(S_X)}, s{sTmp2} offen offset:1024")


def k1_stats(A, typ):
    b = vBUF
    A(f"s_waitcnt vmcnt({0 if typ == 'A' else 16})")
    for i in range(5):
        A(f"v_lshlrev_b32 v{b+8+2*i}, 16, v{b+i}")
        A(f"v_and_b32 v{b+9+2*i}, 0xffff0000, v{b+i}")
    s = b + 20
    A(f"v_add_f32 v{s}, v{b+8}, v{b+9}")
    for i in range(2, 10):
        A(f"v_add_f32 v{s}, v{s}, v{b+8+i}")
    wave_allreduce_add(A, s, s + 1, 4 if typ != "K" else 10)
    A(f"v_mul_f32 v{s}, {f32(1.0/640)}, v{s}")
    for i in range(10):
        A(f"v_sub_f32 v{b+8+i}, v{b+8+i}, v{s}")
    A(f"v_mul_f32 v{s+1}, v{b+8}, v{b+8}")
    for i in range(1, 10):
        A(f"v_fmac_f32 v{s+1}, v{b+8+i}, v{b+8+i}")
    wave_allreduce_add(A, s + 1, s + 2, 4 if typ != "K" else 10)
    A(f"v_mov_b32 v{s+2}, {f32(1e-5)}")
    A(f"v_fmac_f32 v{s+2}, {f32(1.0/640)}, v{s+1}")
    A(f"v_mov_b32 v{s+1}, v{s+2}")
    A(f"v_cmp_eq_u32 vcc, 0, v{vLane}")
    A(f"v_mov_b32 v{vT2}, {OOB}")
    A(f"v_cndmask_b32 v{vT0}, v{vT2}, v{vLane}, vcc")
    A(f"s_lshl_b32 s{sTmp}, s{sRow}, 3")
    A(f"s_add_u32 s{sTmp}, s{sTmp}, {WS_ST}")
    A(f"buffer_store_dwordx2 {vr(s, 2)}, v{vT0}, {srd(S_WS)}, s{sTmp} offen sc1")


def k1_publish(A, col):
    A(f"s_lshl_b32 s{sTmp}, s{sRB}, 2")
    A(f"s_add_u32 s{sTmp}, s{sTmp}, {DC_ROW*4}")
    A(f"s_lshl_b32 s{sTmp2}, s{sCG}, 2")
    A(f"s_add_u32 s{sTmp2}, s{sTmp2}, {DC_COL*4}")
    if col:
        A(f"s_cmp_lt_u32 s{sRB}, 10")
        A(f"s_cselect_b32 s{sTmp2}, s{sTmp2}, {OOB}")
    else:
        A(f"s_mov_b32 s{sTmp2}, {OOB}")
    A(f"v_mov_b32 v{vT0}, {OOB}")
    A(f"v_writelane_b32 v{vT0}, s{sTmp}, 0")
    A(f"v_writelane_b32 v{vT0}, s{sTmp2}, 1")
    A(f"v_mov_b32 v{vT1}, 1")
    A(f"buffer_atomic_add v{vT1}, v{vT0}, {srd(S_DBG)}, 0 offen sc1")


def k1_epi_g(A, acc):
    c = vBUF
    cs = vBUF + 8
    t = vBUF + 40
    o = vBUF + 72
    A(f"v_lshrrev_b32 v{vT0}, 5, v{vLane}")
    A(f"v_lshlrev_b32 v{vT0}, 4, v{vT0}")
    A(f"s_mul_i32 s{sTmp}, s{sNW}, 384")
    A(f"s_add_u32 s{sTmp}, s{sTmp}, {MISC_LDS}")
    A(f"v_add_u32 v{vT0}, s{sTmp}, v{vT0}")
    for q in range(4):
        A(f"ds_read_b128 {vr(cs+4*q)}, v{vT0} offset:{q*32}")
    for mt in range(2):
        mu, v, k1, k3 = c + 4 * mt, c + 4 * mt + 1, c + 4 * mt + 2, c + 4 * mt + 3
        A(f"v_mov_b32 v{mu}, v{vSt+2*mt}")
        A(f"v_mov_b32 v{v}, v{vSt+2*mt+1}")
        A(f"v_rsq_f32 v{t}, v{v}")
        A(f"v_mul_f32 v{k1}, {f32(GC1)}, v{t}")
        A(f"v_mul_f32 v{t+1}, v{t}, v{t}")
        A(f"v_mul_f32 v{t+1}, v{t+1}, v{t}")
        A(f"v_mul_f32 v{k3}, {f32(GC2)}, v{t+1}")
    A(f"v_bfe_u32 v{vT1}, v{vLane}, 4, 1")
    A(f"v_lshlrev_b32 v{vT1}, 10, v{vT1}")
    A(f"v_lshrrev_b32 v{vT2}, 5, v{vLane}")
    A(f"v_lshl_add_u32 v{vT1}, v{vT2}, 8, v{vT1}")
    A(f"v_and_b32 v{vT2}, 15, v{vLane}")
    A(f"v_lshl_add_u32 v{vT1}, v{vT2}, 4, v{vT1}")
    n = 0
    for a in range(3):
        csa = cs + 16 * (a % 2)
        if a < 2:
            for q in range(4):
                A(f"ds_read_b128 {vr(cs+16*((a+1)%2)+4*q)}, v{vT0} offset:{(a+1)*128+q*32}")
            A("s_waitcnt lgkmcnt(4)")
        else:
            A("s_waitcnt lgkmcnt(0)")
        A(f"s_mul_i32 s{sTmp}, s{sCG}, 12")
        A(f"s_mul_i32 s{sTmp2}, s{sNW}, 3")
        A(f"s_add_u32 s{sTmp}, s{sTmp}, s{sTmp2}")
        A(f"s_add_u32 s{sTmp}, s{sTmp}, {a}")
        A(f"s_lshl_b32 s{sTmp2}, s{sRB}, 1")
        A(f"s_add_u32 s{sTmp2}, s{sTmp2}, s{sMW}")
        A(f"s_mul_i32 s{sTmp2}, s{sTmp2}, 54")
        A(f"s_lshr_b32 s{sTmp3}, s{sTmp}, 1")
        A(f"s_add_u32 s{sTmp2}, s{sTmp2}, s{sTmp3}")
        A(f"s_lshl_b32 s{sTmp2}, s{sTmp2}, 12")
        A(f"s_and_b32 s{sTmp}, s{sTmp}, 1")
        A(f"s_lshl_b32 s{sTmp}, s{sTmp}, 9")
        A(f"s_add_u32 s{sTmp}, s{sTmp}, s{sTmp2}")
        for mt in range(2):
            mu, v, k1, k3 = c + 4 * mt, c + 4 * mt + 1, c + 4 * mt + 2, c + 4 * mt + 3
            d = acc(mt, a)
            ob = o + 4 * (n % 2)
            n += 1
            R = range(8)
            for i in R:
                A(f"v_fma_f32 v{d+i}, -v{mu}, v{csa+i}, v{d+i}")
            for i in R:
                A(f"v_mul_f32 v{t+i}, v{d+i}, v{d+i}")
            for i in R:
                A(f"v_fma_f32 v{t+i}, v{t+i}, v{k3}, v{k1}")
            for i in R:
                A(f"v_mul_f32 v{t+i}, v{t+i}, v{d+i}")
            for i in R:
                A(f"v_exp_f32 v{t+i}, v{t+i}")
                A(f"v_fma_f32 v{d+8+i}, -v{mu}, v{csa+8+i}, v{d+8+i}")
            for i in R:
                A(f"v_fma_f32 v{t+i}, v{t+i}, v{v}, v{v}")
            for i in R:
                A(f"v_rcp_f32 v{t+i}, v{t+i}")
                A(f"v_mul_f32 v{d+i}, v{d+i}, v{d+8+i}")
            for i in R:
                A(f"v_mul_f32 v{d+i}, v{d+i}, v{t+i}")
            for i in range(4):
                A(f"v_cvt_pk_bf16_f32 v{ob+i}, v{d+2*i}, v{d+2*i+1}")
            A(f"buffer_store_dwordx4 {vr(ob)}, v{vT1}, {srd(S_WS)}, s{sTmp} offen offset:{mt*2048}")


def phi_block(A, d, n, t, mu, cs, r, rl, eps):
    R = range(n)
    for i in R:
        A(f"v_fma_f32 v{d+i}, -v{mu(i)}, v{cs(i)}, v{d+i}")
    for i in R:
        A(f"v_mul_f32 v{t+i}, v{d+i}, v{rl(i)}")
    for i in R:
        A(f"v_min_f32 v{t+i}, 0, v{t+i}")
    for i in R:
        A(f"v_exp_f32 v{t+i}, v{t+i}")
        A(f"v_fma_f32 v{d+i}, v{d+i}, v{r(i)}, v{eps}")
    for i in R:
        A(f"v_max_f32 v{d+i}, v{d+i}, v{eps}")
    for i in R:
        A(f"v_add_f32 v{d+i}, v{d+i}, v{t+i}")


def k1_epi_q(A, acc):
    c = vBUF
    cs = vBUF + 8
    t = vBUF + 40
    o = vBUF + 72
    mu, r, rl, eps = c, c + 1, c + 2, c + 3
    A(f"v_lshrrev_b32 v{vT0}, 5, v{vLane}")
    A(f"v_lshlrev_b32 v{vT0}, 4, v{vT0}")
    A(f"s_mul_i32 s{sTmp}, s{sNW}, 640")
    A(f"s_add_u32 s{sTmp}, s{sTmp}, {MISC_LDS}")
    A(f"v_add_u32 v{vT0}, s{sTmp}, v{vT0}")
    for q in range(4):
        A(f"ds_read_b128 {vr(cs+4*q)}, v{vT0} offset:{q*32}")
    A(f"v_mov_b32 v{mu}, v{vSt}")
    A(f"v_rsq_f32 v{r}, v{vSt+1}")
    A(f"v_mov_b32 v{eps}, {f32(1e-6)}")
    A(f"v_mul_f32 v{rl}, {f32(LOG2E)}, v{r}")
    A(f"v_bfe_u32 v{vT1}, v{vLane}, 4, 1")
    A(f"v_lshlrev_b32 v{vT1}, 10, v{vT1}")
    A(f"v_lshrrev_b32 v{vT2}, 5, v{vLane}")
    A(f"v_lshl_add_u32 v{vT1}, v{vT2}, 8, v{vT1}")
    A(f"v_and_b32 v{vT2}, 15, v{vLane}")
    A(f"v_lshl_add_u32 v{vT1}, v{vT2}, 4, v{vT1}")
    A(f"s_lshl_b32 s{sTmp}, s{sRB}, 1")
    A(f"s_lshr_b32 s{sTmp2}, s{sMW}, 1")
    A(f"s_add_u32 s{sTmp}, s{sTmp}, s{sTmp2}")
    A(f"s_mul_i32 s{sTmp}, s{sTmp}, 20")
    A(f"s_sub_u32 s{sTmp2}, s{sCG}, 13")
    A(f"s_mul_i32 s{sTmp2}, s{sTmp2}, 10")
    A(f"s_add_u32 s{sTmp}, s{sTmp}, s{sTmp2}")
    A(f"s_mul_i32 s{sTmp2}, s{sNW}, 5")
    A(f"s_add_u32 s{sTmp}, s{sTmp}, s{sTmp2}")
    A(f"s_lshl_b32 s{sTmp}, s{sTmp}, 12")
    A(f"s_and_b32 s{sTmp2}, s{sMW}, 1")
    A(f"s_lshl_b32 s{sTmp2}, s{sTmp2}, 11")
    A(f"s_add_u32 s{sTmp}, s{sTmp}, s{sTmp2}")
    A(f"s_add_u32 s{sTmp}, s{sTmp}, {WS_PQ}")
    for a in range(5):
        csa = cs + 16 * (a % 2)
        if a < 4:
            for q in range(4):
                A(f"ds_read_b128 {vr(cs+16*((a+1)%2)+4*q)}, v{vT0} offset:{(a+1)*128+q*32}")
            A("s_waitcnt lgkmcnt(4)")
        else:
            A("s_waitcnt lgkmcnt(0)")
        d = acc(0, a)
        phi_block(A, d, 16, t, lambda i: mu, lambda i: csa + i, lambda i: r, lambda i: rl, eps)
        ob = o + 8 * (a % 2)
        for i in range(8):
            A(f"v_cvt_pk_bf16_f32 v{ob+i}, v{d+2*i}, v{d+2*i+1}")
        A(f"buffer_store_dwordx4 {vr(ob)}, v{vT1}, {srd(S_WS)}, s{sTmp} offen")
        A(f"buffer_store_dwordx4 {vr(ob+4)}, v{vT1}, {srd(S_WS)}, s{sTmp} offen offset:512")
        A(f"s_add_u32 s{sTmp}, s{sTmp}, 4096")


def k1_epi_kv(A, acc):
    st = vBUF
    rl = vBUF + 32
    t = vBUF + 48
    cs = vBUF + 64
    eps = vBUF + 69
    z = vBUF + 70
    o = vBUF + 76
    ZL = MISC_LDS + 2048
    A(f"v_and_b32 v{vT0}, 31, v{vLane}")
    A(f"v_lshlrev_b32 v{vT0}, 2, v{vT0}")
    A(f"s_mul_i32 s{sTmp}, s{sNW}, 640")
    A(f"s_add_u32 s{sTmp}, s{sTmp}, {MISC_LDS}")
    A(f"v_add_u32 v{vT1}, s{sTmp}, v{vT0}")
    for a in range(5):
        A(f"ds_read_b32 v{cs+a}, v{vT1} offset:{a*128}")
    for i in range(16):
        A(f"v_rsq_f32 v{st+2*i+1}, v{st+2*i+1}")
    for i in range(16):
        A(f"v_mul_f32 v{rl+i}, {f32(LOG2E)}, v{st+2*i+1}")
    A(f"v_mov_b32 v{eps}, {f32(1e-6)}")
    A(f"s_mul_i32 s{sTmp}, s{sNW}, 20")
    A(f"s_add_u32 s{sTmp}, s{sTmp}, s{sMW}")
    A(f"s_lshl_b32 s{sTmp}, s{sTmp}, 11")
    A(f"v_lshl_add_u32 v{vT2}, v{vLane}, 4, s{sTmp}")
    A("s_waitcnt lgkmcnt(0)")
    A(f"s_cmp_eq_u32 s{sNW}, 0")
    A("s_cbranch_scc0 L_K_ev")
    for a in range(5):
        d = acc(0, a)
        phi_block(A, d, 16, t, lambda i: st + 2 * i, lambda i: cs + a, lambda i: st + 2 * i + 1, lambda i: rl + i, eps)
        ob = o + 8 * (a % 2)
        for i in range(8):
            A(f"v_cvt_pk_bf16_f32 v{ob+i}, v{d+2*i}, v{d+2*i+1}")
        A(f"ds_write_b128 v{vT2}, {vr(ob)} offset:{a*8192}")
        A(f"ds_write_b128 v{vT2}, {vr(ob+4)} offset:{a*8192+1024}")
        for i in range(8):
            A(f"v_lshlrev_b32 v{t+2*i}, 16, v{ob+i}")
            A(f"v_and_b32 v{t+2*i+1}, 0xffff0000, v{ob+i}")
        for s in (8, 4, 2):
            for i in range(s):
                A(f"v_add_f32 v{t+i}, v{t+i}, v{t+s+i}")
        A(f"v_add_f32 v{z+a}, v{t}, v{t+1}")
    A(f"v_lshrrev_b32 v{vT1}, 5, v{vLane}")
    A(f"v_mul_u32_u24 v{vT1}, 640, v{vT1}")
    A(f"s_mul_i32 s{sTmp}, s{sMW}, 1280")
    A(f"s_add_u32 s{sTmp}, s{sTmp}, {ZL}")
    A(f"v_add3_u32 v{vT1}, v{vT1}, v{vT0}, s{sTmp}")
    for a in range(5):
        A(f"ds_write_b32 v{vT1}, v{z+a} offset:{a*128}")
    A("s_branch L_K_ej")
    A.label("L_K_ev")
    for a in range(5):
        d = acc(0, a)
        for i in range(16):
            A(f"v_fma_f32 v{d+i}, -v{st+2*i}, v{cs+a}, v{d+i}")
        for i in range(16):
            A(f"v_mul_f32 v{d+i}, v{d+i}, v{st+2*i+1}")
        ob = o + 8 * (a % 2)
        for i in range(8):
            A(f"v_cvt_pk_bf16_f32 v{ob+i}, v{d+2*i}, v{d+2*i+1}")
        A(f"ds_write_b128 v{vT2}, {vr(ob)} offset:{a*8192}")
        A(f"ds_write_b128 v{vT2}, {vr(ob+4)} offset:{a*8192+1024}")
    A.label("L_K_ej")
    A("s_waitcnt lgkmcnt(0)")
    A("s_barrier")
    sSlab, sJob, sA, sB = 4, 5, 6, 7
    A(f"s_sub_u32 s{sSlab}, s{sCG}, 9")
    A(f"s_lshl_b32 s{sSlab}, s{sSlab}, 4")
    A(f"s_add_u32 s{sSlab}, s{sSlab}, s{sRB}")
    A(f"s_mul_i32 s{sSlab}, s{sSlab}, 13440")
    A(f"s_add_u32 s{sSlab}, s{sSlab}, {WS_KVP}")
    A(f"s_mov_b32 s{sJob}, s{sWave}")
    A.label("L_K_job")
    A(f"s_mov_b32 s{sA}, s{sJob}")
    A(f"s_mov_b32 s{sB}, s{sJob}")
    A(f"s_cmp_lt_u32 s{sJob}, 5")
    A("s_cbranch_scc1 L_K_jgo")
    A(f"s_sub_u32 s{sA}, s{sJob}, 5")
    A(f"s_sub_u32 s{sB}, s{sJob}, 4")
    A(f"s_cmp_lt_u32 s{sJob}, 9")
    A("s_cbranch_scc1 L_K_jgo")
    A(f"s_sub_u32 s{sA}, s{sJob}, 8")
    A(f"s_sub_u32 s{sB}, s{sJob}, 9")
    A.label("L_K_jgo")
    A(f"s_lshl_b32 s{sTmp}, s{sA}, 13")
    A(f"s_lshl_b32 s{sTmp2}, s{sB}, 13")
    A(f"s_add_u32 s{sTmp2}, s{sTmp2}, {5*8192}")
    A(f"v_lshl_add_u32 v{vT1}, v{vLane}, 4, s{sTmp}")
    A(f"v_lshl_add_u32 v{vT2}, v{vLane}, 4, s{sTmp2}")
    fa, fb, d = vBUF, vBUF + 32, vACC
    for j in range(8):
        A(f"ds_read_b128 {vr(fa+4*j)}, v{vT1} offset:{j*1024}")
        A(f"ds_read_b128 {vr(fb+4*j)}, v{vT2} offset:{j*1024}")
    for j in range(8):
        A(f"s_waitcnt lgkmcnt({14-2*j})")
        A(f"v_mfma_f32_32x32x16_bf16 {vr(d,16)}, {vr(fa+4*j)}, {vr(fb+4*j)}, {vr(d,16) if j else 0}")
    e, he, d0 = vBUF + 64, vBUF + 65, vBUF + 66
    A(f"v_and_b32 v{e}, 31, v{vLane}")
    A(f"s_lshl_b32 s{sTmp}, s{sB}, 5")
    A(f"v_add_u32 v{e}, s{sTmp}, v{e}")
    A(f"v_mul_u32_u24 v{he}, 205, v{e}")
    A(f"v_lshrrev_b32 v{he}, 12, v{he}")
    A(f"v_mul_u32_u24 v{e}, 80, v{e}")
    A(f"v_lshrrev_b32 v{d0}, 5, v{vLane}")
    A(f"s_lshl_b32 s{sTmp}, s{sA}, 5")
    A(f"v_lshl_add_u32 v{d0}, v{d0}, 2, s{sTmp}")
    A(f"v_mov_b32 v{vT3}, {OOB}")
    for q in range(4):
        a0 = vBUF + 68 + 2 * q
        A(f"v_add_u32 v{a0}, {8*q}, v{d0}")
        A(f"v_mul_u32_u24 v{a0+1}, 205, v{a0}")
        A(f"v_lshrrev_b32 v{a0+1}, 12, v{a0+1}")
        A(f"v_cmp_eq_u32 vcc, v{a0+1}, v{he}")
        A(f"v_lshl_add_u32 v{a0}, v{a0}, 2, v{e}")
        A(f"v_cndmask_b32 v{a0}, v{vT3}, v{a0}, vcc")
    for q in range(4):
        A(f"buffer_store_dwordx4 {vr(d+4*q)}, v{vBUF+68+2*q}, {srd(S_WS)}, s{sSlab} offen sc1")
    A(f"s_add_u32 s{sJob}, s{sJob}, 8")
    A(f"s_cmp_lt_u32 s{sJob}, 13")
    A.fence()
    A("s_cbranch_scc1 L_K_job")
    A(f"v_subrev_u32 v{vT0}, 320, v0")
    A(f"v_cmp_gt_u32 vcc, 160, v{vT0}")
    A(f"v_cndmask_b32 v{vT1}, 0, v{vT0}, vcc")
    A(f"v_lshlrev_b32 v{vT1}, 2, v{vT1}")
    A(f"v_add_u32 v{vT1}, {ZL}, v{vT1}")
    for j in range(8):
        A(f"ds_read_b32 v{vBUF+j}, v{vT1} offset:{j*640}")
    A(f"v_mul_u32_u24 v{vT2}, 205, v{vT0}")
    A(f"v_lshrrev_b32 v{vT2}, 12, v{vT2}")
    A(f"v_mul_u32_u24 v{vT2}, 1600, v{vT2}")
    A(f"v_lshl_add_u32 v{vT2}, v{vT0}, 2, v{vT2}")
    A(f"v_add_u32 v{vT2}, 1600, v{vT2}")
    A(f"v_cndmask_b32 v{vT2}, v{vT3}, v{vT2}, vcc")
    A("s_waitcnt lgkmcnt(0)")
    for j in range(1, 8):
        A(f"v_add_f32 v{vBUF}, v{vBUF}, v{vBUF+j}")
    A(f"buffer_store_dword v{vBUF}, v{vT2}, {srd(S_WS)}, s{sSlab} offen sc1")
    A("s_waitcnt vmcnt(0)")
    A("s_barrier")
    A(f"s_cmp_lg_u32 s{sWave}, 0")
    A("s_cbranch_scc1 L_K_done")
    A(f"s_sub_u32 s{sTmp}, s{sCG}, 9")
    A(f"s_lshl_b32 s{sTmp}, s{sTmp}, 2")
    A(f"s_add_u32 s{sTmp}, s{sTmp}, {DC_KV*4}")
    A(f"v_mov_b32 v{vT0}, {OOB}")
    A(f"v_writelane_b32 v{vT0}, s{sTmp}, 0")
    A(f"v_mov_b32 v{vT1}, 1")
    A(f"buffer_atomic_add v{vT1}, v{vT0}, {srd(S_DBG)}, 0 offen sc1")
    A.label("L_K_done")


def k1_aux(A):
    k1_stats(A, "A")
    A("s_waitcnt vmcnt(0)")
    A("s_barrier")
    A(f"s_cmp_lg_u32 s{sWave}, 0")
    A("s_cbranch_scc1 L_A_np")
    k1_publish(A, False)
    A.label("L_A_np")
    vo = vBUF
    A(f"v_lshrrev_b32 v{vT0}, 3, v{vLane}")
    A(f"v_mul_u32_u24 v{vT0}, 1280, v{vT0}")
    A(f"v_and_b32 v{vT1}, 7, v{vLane}")
    A(f"v_lshl_add_u32 v{vT0}, v{vT1}, 4, v{vT0}")
    for i in range(5):
        A(f"s_mul_i32 s{sTmp}, s{sWave}, 5")
        A(f"s_add_u32 s{sTmp}, s{sTmp}, {i}")
        A(f"s_lshr_b32 s{sTmp2}, s{sTmp}, 2")
        A(f"s_lshl_b32 s{sTmp2}, s{sTmp2}, 7")
        A(f"s_and_b32 s{sTmp}, s{sTmp}, 3")
        A(f"s_mul_i32 s{sTmp}, s{sTmp}, {8*1280}")
        A(f"s_add_u32 s{sTmp}, s{sTmp}, s{sTmp2}")
        A(f"v_add_u32 v{vo+i}, s{sTmp}, v{vT0}")
    rn, rp = vBUF + 8, vBUF + 9
    A(f"v_bfe_u32 v{vT0}, v{vLane}, 2, 2")
    A(f"v_lshlrev_b32 v{vT0}, 7, v{vT0}")
    A(f"v_and_b32 v{vT1}, 3, v{vLane}")
    A(f"v_lshl_add_u32 v{vT0}, v{vT1}, 3, v{vT0}")
    A(f"v_lshrrev_b32 v{vT1}, 4, v{vLane}")
    A(f"v_lshl_add_u32 v{rn}, v{vT1}, 10, v{vT0}")
    A(f"v_lshl_add_u32 v{rp}, v{vT1}, 9, v{vT0}")
    A(f"v_lshlrev_b32 v{vT3}, 4, v{vLane}")
    mk_srd(A, S_W, P_D, 1728 * 1280)
    mk_srd(A, S_T, P_WO, 640 * 1280)
    sU = 4
    for rnd, nun in ((0, 3), (1, 2)):
        for u in range(nun):
            A(f"s_add_u32 s{sU}, s{sRB}, {16*(3*rnd+u)}")
            A(f"s_mul_i32 s5, s{sU}, {32*1280}")
            A(f"s_sub_u32 s6, s5, {54*32*1280}")
            lab = f"L_A_d{rnd}{u}"
            A(f"s_cmp_ge_u32 s{sU}, 54")
            A(f"s_cbranch_scc1 {lab}a")
            for i in range(5):
                A(f"s_mul_i32 s7, s{sWave}, 5120")
                A(f"s_add_u32 m0, s7, {u*40960+i*1024}")
                A(f"buffer_load_dwordx4 v{vo+i}, {srd(S_W)}, s5 offen lds")
            A(f"s_branch {lab}b")
            A.label(lab + "a")
            for i in range(5):
                A(f"s_mul_i32 s7, s{sWave}, 5120")
                A(f"s_add_u32 m0, s7, {u*40960+i*1024}")
                A(f"buffer_load_dwordx4 v{vo+i}, {srd(S_T)}, s6 offen lds")
            A.label(lab + "b")
        A("s_waitcnt vmcnt(0)")
        A("s_barrier")
        for u in range(nun):
            lab = f"L_A_s{rnd}{u}"
            A(f"s_add_u32 s{sU}, s{sRB}, {16*(3*rnd+u)}")
            A(f"s_cmp_ge_u32 s{sU}, 74")
            A(f"s_cbranch_scc1 {lab}")
            A(f"s_cmp_ge_u32 s{sU}, 54")
            A(f"s_movk_i32 s5, 512")
            A(f"s_cselect_b32 s5, 2048, s5")
            A(f"s_cselect_b64 vcc, -1, 0")
            A(f"v_cndmask_b32 v{vT0}, v{rn}, v{rp}, vcc")
            f = vACC + 20 * u
            for nt in range(5):
                A(f"s_mul_i32 s6, s{sWave}, 5")
                A(f"s_add_u32 s6, s6, {nt}")
                A(f"s_lshr_b32 s7, s6, 2")
                A(f"s_lshl_b32 s7, s7, 12")
                A(f"s_and_b32 s6, s6, 3")
                A(f"s_lshl_b32 s6, s6, 5")
                A(f"s_add_u32 s6, s6, s7")
                A(f"s_add_u32 s6, s6, {u*40960}")
                A(f"v_add_u32 v{vT1}, s6, v{vT0}")
                A(f"v_add_u32 v{vT2}, s5, v{vT1}")
                A(f"ds_read_b64_tr_b16 {vr(f+4*nt, 2)}, v{vT1}")
                A(f"ds_read_b64_tr_b16 {vr(f+4*nt+2, 2)}, v{vT2}")
            A(f"s_mul_i32 s6, s{sWave}, 74")
            A(f"s_add_u32 s6, s6, s{sU}")
            A(f"s_mul_i32 s6, s6, 5120")
            A(f"s_add_u32 s6, s6, {WS_W2}")
            A("s_waitcnt lgkmcnt(0)")
            for nt in range(5):
                if nt == 4:
                    A("s_add_u32 s6, s6, 4096")
                A(f"buffer_store_dwordx4 {vr(f+4*nt)}, v{vT3}, {srd(S_WS)}, s6 offen offset:{(nt%4)*1024}")
            A.label(lab)
        A("s_barrier")
    A(f"s_lshr_b32 s4, s{sRB}, 2")
    A(f"s_lshl_b32 s5, s4, 2")
    A("s_mov_b32 s8, 0")
    A(f"v_mov_b32 v{vT0}, 0")
    A.label("L_A_poll")
    A(f"buffer_load_dword v{vPoll}, v{vT0}, {srd(S_DBG)}, s5 offen offset:{DC_KV*4} sc1")
    A("s_waitcnt vmcnt(0)")
    A(f"v_readfirstlane_b32 s6, v{vPoll}")
    A("s_add_u32 s8, s8, 1")
    A("s_cmp_gt_u32 s8, 0x400000")
    A("s_cbranch_scc1 L_A_go")
    A("s_cmp_ge_u32 s6, 16")
    A("s_cbranch_scc1 L_A_go")
    A("s_sleep 4")
    A("s_branch L_A_poll")
    A.label("L_A_go")
    A(f"v_lshlrev_b32 v{vT0}, 3, v0")
    A(f"v_cmp_gt_u32 vcc, 420, v0")
    A(f"v_mov_b32 v{vT2}, {OOB}")
    A(f"v_cndmask_b32 v{vT0}, v{vT2}, v{vT0}, vcc")
    A(f"s_mul_i32 s5, s4, {16*13440}")
    A(f"s_and_b32 s6, s{sRB}, 3")
    A(f"s_mul_i32 s6, s6, 3360")
    A(f"s_add_u32 s5, s5, s6")
    A(f"s_add_u32 s5, s5, {WS_KVP}")
    for j in range(16):
        A(f"buffer_load_dwordx2 {vr(vBUF+2*j, 2)}, v{vT0}, {srd(S_WS)}, s5 offen sc1")
        A(f"s_add_u32 s5, s5, 13440")
    A("s_waitcnt vmcnt(0)")
    for j in range(1, 16):
        A(f"v_add_f32 v{vBUF}, v{vBUF}, v{vBUF+2*j}")
        A(f"v_add_f32 v{vBUF+1}, v{vBUF+1}, v{vBUF+2*j+1}")
    A(f"v_cvt_pk_bf16_f32 v{vBUF}, v{vBUF}, v{vBUF+1}")
    A(f"v_lshlrev_b32 v{vT0}, 2, v0")
    A(f"v_cndmask_b32 v{vT0}, v{vT2}, v{vT0}, vcc")
    A(f"s_mul_i32 s5, s{sRB}, 1680")
    A(f"s_add_u32 s5, s5, {WS_KVB}")
    A(f"buffer_store_dword v{vBUF}, v{vT0}, {srd(S_WS)}, s5 offen")
    stamp(A, 3, 0)
    A("s_endpgm")


def kernel1(A):
    A(".p2align 8")
    A.label("k1_kernel")
    A("s_cmp_ge_u32 s2, 256")
    A("s_cbranch_scc1 L_k1_exit")
    load_ptrs(A)
    A(f"v_and_b32 v{vLane}, 63, v0")
    A(f"v_lshrrev_b32 v{vT0}, 6, v0")
    A(f"v_readfirstlane_b32 s{sWave}, v{vT0}")
    A("s_and_b32 s3, s2, 7")
    A("s_lshr_b32 s4, s2, 3")
    A("s_lshr_b32 s5, s3, 2")
    A("s_and_b32 s6, s3, 3")
    A("s_mul_i32 s7, s6, 30")
    A("s_add_u32 s7, s7, s4")
    A(f"s_lshr_b32 s{sCG}, s7, 3")
    A(f"s_and_b32 s{sRB}, s7, 7")
    A("s_lshl_b32 s8, s6, 1")
    A("s_add_u32 s8, s8, s4")
    A("s_sub_u32 s8, s8, 30")
    A("s_cmp_lt_u32 s4, 30")
    A(f"s_cselect_b32 s{sCG}, s{sCG}, 15")
    A(f"s_cselect_b32 s{sRB}, s{sRB}, s8")
    A("s_lshl_b32 s5, s5, 3")
    A(f"s_add_u32 s{sRB}, s{sRB}, s5")
    A(f"s_sub_u32 s3, s{sRB}, 10")
    A(f"s_cmp_lt_u32 s{sRB}, 10")
    A(f"s_cselect_b32 s{sC0}, s{sRB}, s3")
    Q = OPT["ROTQ"]
    if Q == 2:
        A(f"s_and_b32 s{sC0}, s{sC0}, 0xfe")
    elif Q == 5:
        A(f"s_cmp_lt_u32 s{sC0}, 5")
        A(f"s_cselect_b32 s{sC0}, 0, 5")
    A("s_waitcnt lgkmcnt(0)")
    mk_srd(A, S_X, P_X, 2048 * 1280)
    mk_srd(A, S_WS, P_WS, WS_SIZE)
    mk_srd(A, S_DBG, P_DBG, 256)
    stamp(A, 0, 0)
    k1_stats_issue(A)
    A(f"s_cmp_eq_u32 s{sCG}, 15")
    A("s_cbranch_scc1 L_aux")
    A(f"v_lshrrev_b32 v{vT0}, 3, v{vLane}")
    A(f"v_lshrrev_b32 v{vT1}, 4, v{vLane}")
    A(f"v_and_b32 v{vT2}, 7, v{vLane}")
    A(f"v_xor_b32 v{vT1}, v{vT1}, v{vT2}")
    A(f"s_lshl_b32 s3, s{sRB}, 7")
    A(f"s_lshl_b32 s4, s{sWave}, 4")
    A("s_add_u32 s3, s3, s4")
    A(f"v_add_u32 v{vT0}, s3, v{vT0}")
    A(f"v_mul_u32_u24 v{vT0}, 1280, v{vT0}")
    A(f"v_lshl_add_u32 v{vXo}, v{vT1}, 4, v{vT0}")
    A(f"v_xor_b32 v{vT1}, 4, v{vT1}")
    A(f"v_lshl_add_u32 v{vXo+1}, v{vT1}, 4, v{vT0}")
    A(f"v_add_u32 v{vXo+1}, {8*1280}, v{vXo+1}")
    A(f"s_lshl_b32 s{sXslot}, s{sWave}, 11")
    A(f"s_lshl_b32 s{sKX}, s{sC0}, 7")
    A(f"s_mov_b32 s{sKXn}, 0")
    A(f"s_cmp_ge_u32 s{sCG}, 13")
    A("s_cbranch_scc1 L_typeQ")
    A(f"s_cmp_ge_u32 s{sCG}, 9")
    A("s_cbranch_scc1 L_typeK")
    k1_gemm(A, "G")
    A.label("L_typeQ")
    k1_gemm(A, "Q")
    A.label("L_typeK")
    k1_gemm(A, "K")
    A.label("L_aux")
    k1_aux(A)
    A.label("L_k1_exit")
    A("s_endpgm")


def kernel2(A):
    sRB64, sC, sK, sKend, sHo, sWo, sCnt = range(57, 64)
    S_OUT = S_T
    vL16 = 6
    ACC = 8
    FB = 88
    A(".p2align 8")
    A.label("k2_kernel")
    A("s_cmp_ge_u32 s2, 256")
    A("s_cbranch_scc1 L_k2_exit")
    load_ptrs(A)
    A(f"v_and_b32 v{vLane}, 63, v0")
    A(f"v_lshrrev_b32 v{vT0}, 6, v0")
    A(f"v_readfirstlane_b32 s{sWave}, v{vT0}")
    A("s_and_b32 s3, s2, 7")
    A("s_lshr_b32 s4, s2, 3")
    A(f"s_and_b32 s{sC}, s4, 7")
    A("s_lshr_b32 s4, s4, 3")
    A("s_lshl_b32 s3, s3, 2")
    A(f"s_add_u32 s{sRB64}, s3, s4")
    A(f"v_lshlrev_b32 v{vL16}, 4, v{vLane}")
    A("s_waitcnt lgkmcnt(0)")
    mk_srd(A, S_X, P_X, 2048 * 1280)
    mk_srd(A, S_WS, P_WS, WS_SIZE)
    mk_srd(A, S_OUT, P_OUT, 2048 * 1280)
    stamp(A, 0, 1)
    acc = lambda nt, mt: ACC + 4 * (nt * 4 + mt)
    A(f"s_cmp_ge_u32 s{sWave}, 4")
    A("s_cbranch_scc1 L2_ffn_setup")

    KVF = 8
    PQ = 104
    O = 144
    T = 224
    kvl = lambda: None
    A(f"s_mul_i32 s3, s{sWave}, 6720")
    A(f"s_add_u32 s3, s3, {WS_KVB}")
    A(f"s_lshl_b32 s4, s{sWave}, 13")
    for i in range(7):
        A(f"s_add_u32 m0, s4, {i*1024}")
        A(f"s_add_u32 s5, s3, {i*1024}")
        A(f"buffer_load_dwordx4 v{vL16}, {srd(S_WS)}, s5 offen lds")
    A(f"s_mul_i32 s6, s{sRB64}, 20")
    A(f"s_mul_i32 s7, s{sWave}, 5")
    A("s_add_u32 s6, s6, s7")
    A("s_lshl_b32 s6, s6, 12")
    A(f"s_add_u32 s6, s6, {WS_PQ}")

    def load_pq(mt):
        for blk in range(5):
            A(f"s_add_u32 s7, s6, {blk*4096}")
            A(f"buffer_load_dwordx4 {vr(PQ+20*(mt%2)+4*blk)}, v{vL16}, {srd(S_WS)}, s7 offen offset:{mt*1024}")
    load_pq(0)
    load_pq(1)
    A(f"v_mov_b32 v{T}, 0")
    A(f"v_mov_b32 v{T+1}, 0")
    A(f"s_add_u32 s8, s4, 7168")
    A(f"v_mov_b32 v{vT3}, s8")
    A(f"ds_write_b64 v{vT3}, {vr(T,2)}")
    iL, gL = T + 2, T + 3
    he = O
    hd = O + 10
    ab = O + 20
    zb = O + 21
    hz = O + 22
    A(f"v_and_b32 v{iL}, 15, v{vLane}")
    A(f"v_lshrrev_b32 v{gL}, 4, v{vLane}")
    for Tt in range(10):
        A(f"v_add_u32 v{he+Tt}, {16*Tt}, v{iL}")
        A(f"v_mul_u32_u24 v{he+Tt}, 205, v{he+Tt}")
        A(f"v_lshrrev_b32 v{he+Tt}, 12, v{he+Tt}")
    for blk in range(5):
        for h in range(2):
            r = hd + 2 * blk + h
            A(f"v_lshlrev_b32 v{r}, 3, v{gL}")
            A(f"v_add_u32 v{r}, {32*blk+4*h}, v{r}")
            A(f"v_mul_u32_u24 v{r}, 205, v{r}")
            A(f"v_lshrrev_b32 v{r}, 12, v{r}")
    A(f"v_mul_u32_u24 v{ab}, 40, v{iL}")
    A(f"v_lshl_add_u32 v{ab}, v{gL}, 4, v{ab}")
    A(f"v_add_u32 v{ab}, s4, v{ab}")
    A(f"v_and_b32 v{hz}, 3, v{iL}")
    A(f"v_mul_u32_u24 v{zb}, 800, v{hz}")
    A(f"v_lshl_add_u32 v{zb}, v{gL}, 4, v{zb}")
    A(f"v_add_u32 v{zb}, s4, v{zb}")
    A("s_waitcnt vmcnt(10) lgkmcnt(0)")
    NUM = {0: [0], 1: [0, 1], 2: [0, 1], 3: [1, 2], 4: [1, 2], 5: [2, 3], 6: [2, 3], 7: [3, 4], 8: [3, 4], 9: [4]}
    fidx = {}
    n = 0
    for Tt in range(10):
        for blk in NUM[Tt]:
            fidx[(Tt, blk)] = KVF + 4 * n
            for h in range(2):
                a = T + 4 + (2 * n + h) % 8
                A(f"v_cmp_eq_u32 vcc, v{he+Tt}, v{hd+2*blk+h}")
                A(f"v_add_u32 v{a}, {640*Tt+64*blk+8*h}, v{ab}")
                A(f"v_cndmask_b32 v{a}, v{vT3}, v{a}, vcc")
                A(f"ds_read_b64 {vr(KVF+4*n+2*h, 2)}, v{a}")
            n += 1
    for ch in range(2):
        for blk in ([0, 1, 2] if ch == 0 else [2, 3, 4]):
            fidx[("z", ch, blk)] = KVF + 4 * n
            for h in range(2):
                a = T + 4 + (2 * n + h) % 8
                A(f"v_add_u32 v{T+12}, {4*ch}, v{hz}")
                A(f"v_cmp_eq_u32 vcc, v{T+12}, v{hd+2*blk+h}")
                A(f"v_add_u32 v{a}, {3200*ch+800+64*blk+8*h}, v{zb}")
                A(f"v_cndmask_b32 v{a}, v{vT3}, v{a}, vcc")
                A(f"ds_read_b64 {vr(KVF+4*n+2*h, 2)}, v{a}")
            n += 1
    assert n == 24
    sM = 64
    for k in range(3):
        A(f"v_cmp_lt_u32 s[{sM+2*k}:{sM+2*k+1}], {k}, v{gL}")
    A("s_waitcnt lgkmcnt(0)")
    den = T + 4
    nm = T + 12
    for mt in range(4):
        pq = lambda blk: vr(PQ + 20 * (mt % 2) + 4 * blk)
        A(f"s_waitcnt vmcnt({5 if mt < 3 else 0})")
        for ch in range(2):
            for j, blk in enumerate([0, 1, 2] if ch == 0 else [2, 3, 4]):
                d = vr(den + 4 * ch)
                A(f"v_mfma_f32_16x16x32_bf16 {d}, {vr(fidx[('z', ch, blk)])}, {pq(blk)}, {d if j else 0}")

        def num_mf(Tt):
            d = vr(nm + 4 * (Tt % 4))
            for j, blk in enumerate(NUM[Tt]):
                A(f"v_mfma_f32_16x16x32_bf16 {d}, {vr(fidx[(Tt, blk)])}, {pq(blk)}, {d if j else 0}")
        num_mf(0)
        num_mf(1)
        num_mf(2)
        for i in range(8):
            A(f"v_add_f32 v{den+i}, {f32(1e-6)}, v{den+i}")
        for i in range(8):
            A(f"v_rcp_f32 v{den+i}, v{den+i}")
        for Tt in range(10):
            if Tt + 3 < 10:
                num_mf(Tt + 3)
            lo, hi = (4 * Tt) // 5, (4 * Tt + 3) // 5
            if lo == hi:
                sel = den + lo
            else:
                thr = 5 * hi - 4 * Tt
                sel = T + 28
                A(f"v_cndmask_b32 v{sel}, v{den+lo}, v{den+hi}, s[{sM+2*(thr-1)}:{sM+2*(thr-1)+1}]")
            d = nm + 4 * (Tt % 4)
            for i in range(4):
                A(f"v_mul_f32 v{d+i}, v{d+i}, v{sel}")
            ob = O + 20 * mt + 4 * (Tt // 2) + 2 * (Tt % 2)
            A(f"v_cvt_pk_bf16_f32 v{ob}, v{d}, v{d+1}")
            A(f"v_cvt_pk_bf16_f32 v{ob+1}, v{d+2}, v{d+3}")
        if mt + 2 < 4:
            A.fence()
            load_pq(mt + 2)
    WF = 88
    A(f"s_mul_i32 s6, s{sC}, 74")
    A(f"s_mul_i32 s7, s{sWave}, 5")
    A("s_add_u32 s6, s6, s7")
    A("s_add_u32 s6, s6, 54")
    A("s_mul_i32 s6, s6, 5120")
    A(f"s_add_u32 s6, s6, {WS_W2}")
    A.fence()

    def load_wo(u):
        for nt in range(5):
            A(f"s_add_u32 s7, s6, {u*5120+nt*1024}")
            A(f"buffer_load_dwordx4 {vr(WF+20*(u%2)+4*nt)}, v{vL16}, {srd(S_WS)}, s7 offen")
    load_wo(0)
    load_wo(1)
    for u in range(5):
        A(f"s_waitcnt vmcnt({5 if u < 4 else 0})")
        for nt in range(5):
            for mt in range(4):
                d = vr(acc(nt, mt))
                A(f"v_mfma_f32_16x16x32_bf16 {d}, {vr(WF+20*(u%2)+4*nt)}, {vr(O+20*mt+4*u)}, {d if u else 0}")
        if u + 2 < 5:
            load_wo(u + 2)
    A(f"s_cmp_ge_u32 s{sWave}, 2")
    A("s_cbranch_scc1 L2_reduce")
    A(f"s_mul_i32 s{sK}, s{sWave}, 3")
    A(f"s_add_u32 s{sK}, s{sK}, 48")
    A(f"s_mov_b32 s{sCnt}, 1")
    A("s_branch L2_ffn")

    A.label("L2_ffn_setup")
    for i in range(80):
        A(f"v_mov_b32 v{ACC+i}, 0")
    A(f"s_sub_u32 s{sK}, s{sWave}, 4")
    A(f"s_mul_i32 s{sK}, s{sK}, 12")
    A(f"s_mov_b32 s{sCnt}, 4")
    A.label("L2_ffn")
    A(f"s_mul_i32 s{sHo}, s{sRB64}, 54")
    A(f"s_add_u32 s{sHo}, s{sHo}, s{sK}")
    A(f"s_lshl_b32 s{sHo}, s{sHo}, 12")
    A(f"s_mul_i32 s{sWo}, s{sC}, 74")
    A(f"s_add_u32 s{sWo}, s{sWo}, s{sK}")
    A(f"s_mul_i32 s{sWo}, s{sWo}, 5120")
    A(f"s_add_u32 s{sWo}, s{sWo}, {WS_W2}")
    A(f"s_mul_i32 s{sKend}, s{sCnt}, 3")

    def load_stage(st):
        b = FB + 36 * st
        out = []
        for mt in range(4):
            out.append(f"buffer_load_dwordx4 {vr(b+4*mt)}, v{vL16}, {srd(S_WS)}, s{sHo} offen offset:{mt*1024}")
        for nt in range(4):
            out.append(f"buffer_load_dwordx4 {vr(b+16+4*nt)}, v{vL16}, {srd(S_WS)}, s{sWo} offen offset:{nt*1024}")
        out.append(f"s_add_u32 s3, s{sWo}, 4096\nbuffer_load_dwordx4 {vr(b+32)}, v{vL16}, {srd(S_WS)}, s3 offen")
        out.append(f"s_add_u32 s{sHo}, s{sHo}, 4096\ns_add_u32 s{sWo}, s{sWo}, 5120\n"
                   f"s_sub_u32 s{sKend}, s{sKend}, 1\ns_cmp_gt_i32 s{sKend}, 0\n"
                   f"s_cselect_b32 s{sHo}, s{sHo}, {OOB}\ns_cselect_b32 s{sWo}, s{sWo}, {OOB}")
        return out
    A.fence()
    for st in range(2):
        for g in load_stage(st):
            A(g)
    A.label("L2_loop")
    for st in range(3):
        b = FB + 36 * st
        for g in load_stage((st + 2) % 3):
            A(g)
        A("s_waitcnt vmcnt(18)")
        for nt in range(5):
            for mt in range(4):
                d = vr(acc(nt, mt))
                A(f"v_mfma_f32_16x16x32_bf16 {d}, {vr(b+16+4*nt)}, {vr(b+4*mt)}, {d}")
    A(f"s_sub_u32 s{sCnt}, s{sCnt}, 1")
    A(f"s_cmp_lg_u32 s{sCnt}, 0")
    A("s_cbranch_scc1 L2_loop")

    A.label("L2_reduce")
    stamp(A, 1, 1)
    A("s_waitcnt vmcnt(0) lgkmcnt(0)")
    A("s_barrier")
    A(f"s_mul_i32 s3, s{sWave}, 20480")
    A(f"v_add_u32 v{vT0}, s3, v{vL16}")
    A.fence()
    for t in range(20):
        A(f"ds_write_b128 v{vT0}, {vr(ACC+4*t)} offset:{t*1024}")
    XR = 88
    OA = 96
    for j in range(3):
        A(f"s_add_u32 s3, s{sWave}, {8*j}")
        A(f"s_lshr_b32 s4, s3, 2")
        A(f"s_and_b32 s5, s3, 3")
        A(f"s_lshl_b32 s6, s{sRB64}, 6")
        A(f"s_lshl_b32 s5, s5, 4")
        A("s_add_u32 s6, s6, s5")
        A("s_mul_i32 s6, s6, 1280")
        A(f"s_mul_i32 s7, s{sC}, 160")
        A("s_add_u32 s6, s6, s7")
        A("s_lshl_b32 s4, s4, 5")
        A("s_add_u32 s6, s6, s4")
        A("s_cmp_lt_u32 s3, 20")
        A(f"s_cselect_b32 s6, s6, {OOB}")
        A(f"v_and_b32 v{vT1}, 15, v{vLane}")
        A(f"v_mul_u32_u24 v{vT1}, 1280, v{vT1}")
        A(f"v_lshrrev_b32 v{vT2}, 4, v{vLane}")
        A(f"v_lshl_add_u32 v{vT1}, v{vT2}, 3, v{vT1}")
        A(f"v_add_u32 v{OA+j}, s6, v{vT1}")
        A(f"buffer_load_dwordx2 {vr(XR+2*j, 2)}, v{OA+j}, {srd(S_X)}, 0 offen")
    A("s_waitcnt lgkmcnt(0)")
    A("s_barrier")
    R = 100
    for j in range(3):
        if j == 2:
            A(f"s_cmp_ge_u32 s{sWave}, 4")
            A("s_cbranch_scc1 L2_done")
        A(f"s_lshl_b32 s3, s{sWave}, 10")
        A(f"s_add_u32 s3, s3, {j*8192}")
        A(f"v_add_u32 v{vT0}, s3, v{vL16}")
        A(f"v_add_u32 v{vT1}, {4*20480}, v{vT0}")
        for w in range(8):
            A(f"ds_read_b128 {vr(R+4*w)}, v{vT0 if w < 4 else vT1} offset:{(w%4)*20480}")
        A("s_waitcnt lgkmcnt(0)")
        for w in range(1, 8):
            for i in range(4):
                A(f"v_add_f32 v{R+i}, v{R+i}, v{R+4*w+i}")
        A(f"s_waitcnt vmcnt({2 if j < 2 else 2})" if j == 0 else "s_waitcnt vmcnt(2)" if j == 1 else "s_waitcnt vmcnt(2)")
        x0, x1 = XR + 2 * j, XR + 2 * j + 1
        A(f"v_lshlrev_b32 v{R+4}, 16, v{x0}")
        A(f"v_and_b32 v{R+5}, 0xffff0000, v{x0}")
        A(f"v_lshlrev_b32 v{R+6}, 16, v{x1}")
        A(f"v_and_b32 v{R+7}, 0xffff0000, v{x1}")
        for i in range(4):
            A(f"v_add_f32 v{R+i}, v{R+i}, v{R+4+i}")
        A(f"v_cvt_pk_bf16_f32 v{x0}, v{R}, v{R+1}")
        A(f"v_cvt_pk_bf16_f32 v{x1}, v{R+2}, v{R+3}")
        A(f"buffer_store_dwordx2 {vr(x0, 2)}, v{OA+j}, {srd(S_OUT)}, 0 offen")
    A.label("L2_done")
    stamp(A, 2, 1)
    A.label("L_k2_exit")
    A("s_endpgm")


def descriptor(name, vgpr=256):
    return f""".amdhsa_kernel {name}
  .amdhsa_next_free_vgpr {vgpr}
  .amdhsa_next_free_sgpr 102
  .amdhsa_accum_offset {vgpr}
  .amdhsa_group_segment_fixed_size 0
  .amdhsa_kernarg_size 80
  .amdhsa_user_sgpr_count 2
  .amdhsa_user_sgpr_kernarg_segment_ptr 1
  .amdhsa_system_sgpr_workgroup_id_x 1
.end_amdhsa_kernel
"""


def main():
    A = Asm()
    kernel1(A)
    kernel2(A)
    head = f"""; LN + linear attention + GEGLU FFN, two launches (generated by dev/gen.py)
; @launch kernel=k1_kernel grid=(256,1,1) block=(512,1,1) lds={LDS_TOTAL}
; @launch kernel=k2_kernel grid=(256,1,1) block=(512,1,1) lds={LDS_TOTAL}
.amdgcn_target "amdgcn-amd-amdhsa--gfx950"
.text
.globl k1_kernel
.type k1_kernel,@function
.globl k2_kernel
.type k2_kernel,@function
"""
    tail = '.section .rodata,"a"\n.p2align 6\n' + descriptor("k1_kernel") + ".p2align 6\n" + descriptor("k2_kernel")
    open(sys.argv[1], "w").write(head + A.render() + tail)


main()
```

```python
import sys, struct, math
from asmlib import Asm, interleave

NAME = "parallel_sum__linear_attn_block__geglu_ffn__prompt"

OPT = dict(ROTQ=1, STAMP=0, NODMA=0, SAME=0, NOSWZ=0, NORD=0, P2ROT=1)
for a in sys.argv[2:]:
    k, v = a.split("=")
    OPT[k] = int(v)

WS_H = 0x000000
WS_PQ = 0x700000
WS_W2 = 0xA00000
WS_ST = 0xD00000
WS_CS = 0xD10000
WS_KVA = 0xD80000
WS_FL = 0xD90000
FL_HC = 0
FL_KV = 16 * 256
WS_STAMP = 0xF00000
WS_SIZE = 0x1000000
OOB = 0x40000000
DC_ROW = 0
DC_COL = 16
DC_AUX = 32
DC_W2 = 33


def f32(x):
    return "0x%08x" % struct.unpack("<I", struct.pack("<f", x))[0]


LOG2E = 1.4426950408889634
GC1 = -2.0 * math.sqrt(2.0 / math.pi) * LOG2E
GC2 = GC1 * 0.044715

P_X, P_WQKV, P_WO, P_BX, P_G, P_U, P_D, P_OUT, P_DBG, P_WS = 16, 18, 20, 22, 24, 26, 28, 30, 32, 34
S_X, S_W, S_WS, S_DBG, S_T = 36, 40, 44, 48, 52


def srd(b):
    return f"s[{b}:{b+3}]"


def vr(b, n=4):
    return f"v[{b}:{b+n-1}]"


def mk_srd(A, s, p, nbytes):
    A(f"s_mov_b32 s{s}, s{p}")
    A(f"s_and_b32 s{s+1}, s{p+1}, 0xffff")
    A(f"s_mov_b32 s{s+2}, {nbytes}")
    A(f"s_mov_b32 s{s+3}, 0x20000")


def load_ptrs(A):
    A("s_load_dwordx16 s[16:31], s[0:1], 0")
    A("s_load_dwordx4 s[32:35], s[0:1], 64")


def wave_allreduce_add(A, v, t, s0):
    A(f"v_add_f32_dpp v{v}, v{v}, v{v} quad_perm:[1,0,3,2] row_mask:0xf bank_mask:0xf")
    A(f"v_add_f32_dpp v{v}, v{v}, v{v} quad_perm:[2,3,0,1] row_mask:0xf bank_mask:0xf")
    A(f"v_add_f32_dpp v{v}, v{v}, v{v} row_half_mirror row_mask:0xf bank_mask:0xf")
    A(f"v_add_f32_dpp v{v}, v{v}, v{v} row_mirror row_mask:0xf bank_mask:0xf")
    for i in range(4):
        A(f"v_readlane_b32 s{s0+i}, v{v}, {16*i}")
    A(f"v_mov_b32 v{v}, s{s0}")
    A(f"v_mov_b32 v{t}, s{s0+2}")
    A(f"v_add_f32 v{v}, s{s0+1}, v{v}")
    A(f"v_add_f32 v{t}, s{s0+3}, v{t}")
    A(f"v_add_f32 v{v}, v{v}, v{t}")


def stamp(A, idx, kern, dyn=None, clk=False, wave=0, vt=254):
    if not OPT["STAMP"]:
        return
    lab = f"L_st_{kern}_{idx}_{len(A.lines)}"
    A(f"s_cmp_lg_u32 s{sWave}, {wave}")
    A(f"s_cbranch_scc1 {lab}")
    A("s_memtime s[96:97]" if clk else "s_memrealtime s[96:97]")
    A("s_waitcnt lgkmcnt(0)")
    A(f"s_lshl_b32 s98, s2, 6")
    A(f"s_add_u32 s98, s98, {WS_STAMP + kern*0x8000 + idx*4}")
    if dyn is not None:
        A(f"s_lshl_b32 s99, s{dyn}, 2")
        A("s_add_u32 s98, s98, s99")
    A(f"v_mov_b32 v{vt}, s96")
    A(f"v_mov_b32 v{vt+1}, 0")
    A(f"buffer_store_dword v{vt}, v{vt+1}, {srd(S_WS)}, s98 offen")
    A.label(lab)


sWave, sRB, sCG, sIt, sKW, sKWn, sKX, sKXn, sWslot, sRslot, sXslot, sStepW, sCSit, sSpec, sTmp, sTmp2, sMW, sNW, sWrapW, sTmp3, sC0, sRow, sSpin, sOdd, sPub = range(56, 81)
X_LDS = 0
W_LDS = 32768
W_SLOT = 24576
MISC_LDS = W_LDS + 5 * W_SLOT
LDS_TOTAL = 163840

vLane, vT0, vT1, vT2, vT3 = 1, 2, 3, 4, 5
vSigA, vSigV = 6, 7
vXo = 6
vWo = 8
vXa = 11
vWb = 15
vWa = 20
vPa = 25
SPIN_MAX = 0x100000
vSel = 26
vPoll = 30
vCSA = 32
vCSP = 32
vSt = 52
KST = lambda j: (44 + 4 * j) if j < 3 else (232 + 4 * (j - 3))
vBUF = 56
vACC = 152


KVT = [[(0, 0), (0, 1), (0, 2), (1, 0), (1, 1)], [(0, 3), (0, 4), (1, 2), (1, 3), (1, 4)]]


def k1_gemm(A, typ):
    G = typ == "G"
    MT = 2 if G else 1
    NT = 3 if G else 5
    NW_ = 6 if G else 5
    pitch = 3456 if G else 3840
    XB = lambda P, mt, kk: vBUF + 48 * P + 4 * (mt * 2 + kk)
    WBf = lambda P, a, kk: vBUF + 48 * P + 4 * MT * 2 + 4 * (a * 2 + kk)
    acc = lambda mt, a: vACC + 16 * (mt * NT + a)
    L = lambda s: f"L_{typ}_{s}"

    if G:
        A(f"s_lshr_b32 s{sMW}, s{sWave}, 2")
        A(f"s_and_b32 s{sNW}, s{sWave}, 3")
        mk_srd(A, S_W, P_G, 640 * 3456)
        mk_srd(A, S_T, P_U, 640 * 3456)
    else:
        A(f"s_lshr_b32 s{sMW}, s{sWave}, 1")
        A(f"s_and_b32 s{sNW}, s{sWave}, 1")
        mk_srd(A, S_W, P_WQKV, 640 * 3840)
    A(f"s_and_b32 s{sTmp2}, s{sWave}, 3")
    A(f"v_lshrrev_b32 v{vT0}, 3, v{vLane}")
    A(f"s_lshl_b32 s{sTmp3}, s{sTmp2}, 3")
    A(f"v_add_u32 v{vT0}, s{sTmp3}, v{vT0}")
    A(f"v_mul_u32_u24 v{vT0}, {pitch}, v{vT0}")
    A(f"v_and_b32 v{vT1}, 7, v{vLane}")
    A(f"v_lshrrev_b32 v{vT2}, 2, v{vLane}")
    A(f"v_and_b32 v{vT2}, 4, v{vT2}")
    A(f"v_xor_b32 v{vT1}, v{vT1}, v{vT2}")
    if G:
        A(f"s_mul_i32 s{sTmp3}, s{sCG}, {0 if OPT['SAME'] else 384}")
        A(f"v_add_u32 v{vT0}, s{sTmp3}, v{vT0}")
        A(f"v_lshl_add_u32 v{vWo}, v{vT1}, 4, v{vT0}")
        A(f"v_xor_b32 v{vT1}, 2, v{vT1}")
        A(f"v_lshl_add_u32 v{vWo+1}, v{vT1}, 4, v{vT0}")
        chunks = [(S_W, vWo, 0), (S_W, vWo, 128), (S_W, vWo, 256), (S_T, vWo + 1, 0), (S_T, vWo + 1, 128), (S_T, vWo + 1, 256)]
    elif typ == "Q":
        A(f"s_sub_u32 s{sTmp3}, s{sCG}, 13")
        A(f"s_mul_i32 s{sTmp3}, s{sTmp3}, 640")
        A(f"v_add_u32 v{vT0}, s{sTmp3}, v{vT0}")
        A(f"v_lshl_add_u32 v{vWo}, v{vT1}, 4, v{vT0}")
        chunks = [(S_W, vWo, 128 * i) for i in range(5)]
    else:
        A(f"s_sub_u32 s4, s{sCG}, 9")
        A(f"s_and_b32 s{sOdd}, s4, 1")
        A(f"s_mul_i32 s6, s4, 320")
        A(f"s_add_u32 s6, s6, 1280")
        A(f"s_lshl_b32 s7, s{sOdd}, 6")
        A(f"s_add_u32 s7, s7, s6")
        A(f"s_cmp_eq_u32 s{sOdd}, 0")
        A(f"s_cselect_b32 s8, 256, 0")
        A(f"s_add_u32 s8, s8, s6")
        A(f"v_lshl_add_u32 v{vT2}, v{vT1}, 4, v{vT0}")
        A(f"v_add_u32 v{vWo}, s7, v{vT2}")
        A(f"v_and_b32 v{vT3}, 3, v{vT1}")
        A(f"v_lshl_add_u32 v{vT3}, v{vT3}, 4, v{vT0}")
        A(f"v_lshrrev_b32 v{vT1}, 2, v{vT1}")
        A(f"v_mul_u32_u24 v{vT1}, 1280, v{vT1}")
        A(f"v_add3_u32 v{vWo+1}, v{vT3}, v{vT1}, s8")
        chunks = [(S_W, vWo, 0), (S_W, vWo, 128), (S_W, vWo, 1280), (S_W, vWo, 1408), (S_W, vWo + 1, 0)]
    A(f"s_lshr_b32 s{sTmp}, s{sWave}, 2")
    A(f"s_lshl_b32 s{sTmp2}, s{sTmp2}, 10")
    A(f"s_add_u32 s{sWrapW}, s{sTmp2}, {W_LDS + 5*W_SLOT}")
    A(f"s_mul_i32 s{sWslot}, s{sTmp}, {W_SLOT}")
    A(f"s_add_u32 s{sWslot}, s{sWslot}, s{sTmp2}")
    A(f"s_add_u32 s{sWslot}, s{sWslot}, {W_LDS}")
    A(f"s_mul_i32 s{sKW}, s{sC0}, {64*pitch}")
    A(f"s_mul_i32 s{sTmp}, s{sTmp}, {32*pitch}")
    A(f"s_add_u32 s{sKW}, s{sKW}, s{sTmp}")
    A(f"s_mov_b32 s{sKWn}, 0")

    def dmaW():
        out = []
        for i, (sr, vo, imm) in enumerate(chunks):
            out.append(f"s_add_u32 m0, s{sWslot}, {i*4096 - imm}\n" +
                       "s_nop 0\n" +
                       f"buffer_load_dwordx4 v{vo}, {srd(sr)}, s{sKW} offen offset:{imm} lds")
        out.append(f"s_add_u32 s{sWslot}, s{sWslot}, {2*W_SLOT}\n"
                   f"s_cmp_ge_u32 s{sWslot}, s{sWrapW}\n"
                   f"s_cselect_b32 s{sTmp}, {5*W_SLOT}, 0\n"
                   f"s_sub_u32 s{sWslot}, s{sWslot}, s{sTmp}\n"
                   f"s_add_u32 s{sKW}, s{sKW}, {64*pitch}\n"
                   f"s_cmp_ge_u32 s{sKW}, {640*pitch}\n"
                   f"s_cselect_b32 s{sTmp}, {640*pitch}, 0\n"
                   f"s_sub_u32 s{sKW}, s{sKW}, s{sTmp}")
        return out

    def dmaX():
        out = []
        for i in range(4):
            out.append(f"s_add_u32 m0, s{sXslot}, {i*1024}\n" +
                       f"s_add_u32 s{sTmp}, s{sKX}, {16*1280}\n" +
                       f"buffer_load_dwordx4 v{vXo+i%2}, {srd(S_X)}, s{sKX if i < 2 else sTmp} offen lds")
        out.append(f"s_xor_b32 s{sXslot}, s{sXslot}, 16384\n"
                   f"s_add_u32 s{sKX}, s{sKX}, 128\n"
                   f"s_cmp_eq_u32 s{sKX}, 1280\n"
                   f"s_cselect_b32 s{sKX}, 0, s{sKX}")
        return out

    A(f"s_cmp_lt_u32 s{sWave}, 4")
    A(f"s_cbranch_scc1 {L('p1')}")
    for g in dmaX():
        A(g)
    A.label(L("p1"))
    for g in dmaW():
        A(g)

    A(f"v_and_b32 v{vT0}, 31, v{vLane}")
    A(f"v_lshrrev_b32 v{vT1}, 5, v{vLane}")
    A(f"v_bfe_u32 v{vT2}, v{vLane}, 1, 3")
    A(f"v_xor_b32 v{vT1}, v{vT1}, v{vT2}")
    A(f"s_lshl_b32 s{sTmp}, s{sMW}, {13 if G else 12}")
    A(f"v_lshl_add_u32 v{vT0}, v{vT0}, 7, s{sTmp}")
    for kap in range(2):
        for kk in range(2):
            A(f"v_xor_b32 v{vT2}, {4*kap+2*kk}, v{vT1}")
            A(f"v_lshl_add_u32 v{vXa+2*kap+kk}, v{vT2}, 4, v{vT0}")
    A(f"v_lshrrev_b32 v{vT0}, 5, v{vLane}")
    A(f"v_lshlrev_b32 v{vT0}, 10, v{vT0}")
    A(f"v_bfe_u32 v{vT1}, v{vLane}, 2, 2")
    A(f"v_lshl_add_u32 v{vT0}, v{vT1}, 7, v{vT0}")
    A(f"v_and_b32 v{vT2}, 3, v{vLane}")
    if typ != "K":
        A(f"v_lshlrev_b32 v{vT3}, 1, v{vT2}")
        A(f"v_lshrrev_b32 v{vT2}, 1, v{vT2}")
        A(f"v_and_b32 v{vT3}, 2, v{vT3}")
        A(f"v_or_b32 v{vT2}, v{vT2}, v{vT3}")
    A(f"v_lshl_add_u32 v{vT0}, v{vT2}, 3, v{vT0}")
    A(f"v_and_b32 v{vT1}, 2, v{vT1}")
    A(f"v_bfe_u32 v{vT2}, v{vLane}, 4, 1")
    A(f"v_xor_b32 v{vT1}, v{vT1}, v{vT2}")
    if G:
        A(f"v_mul_u32_u24 v{vT2}, {3*4096}, v{vT2}")
        A(f"v_add_u32 v{vT0}, v{vT0}, v{vT2}")
        for a in range(3):
            A(f"s_mul_i32 s{sTmp}, s{sNW}, 3")
            A(f"s_add_u32 s{sTmp}, s{sTmp}, {a}")
            A(f"s_lshr_b32 s{sTmp2}, s{sTmp}, 2")
            A(f"s_lshl_b32 s{sTmp2}, s{sTmp2}, 12")
            A(f"s_and_b32 s{sTmp}, s{sTmp}, 3")
            A(f"v_xor_b32 v{vT2}, s{sTmp}, v{vT1}")
            A(f"v_lshl_add_u32 v{vT2}, v{vT2}, 5, v{vT0}")
            A(f"v_add_u32 v{vWb+a}, s{sTmp2}, v{vT2}")
    else:
        for a in range(5):
            if typ == "Q":
                A(f"s_mul_i32 s{sTmp}, s{sNW}, 5")
                A(f"s_add_u32 s{sTmp}, s{sTmp}, {a}")
            else:
                def hs(m, t, odd):
                    if odd:
                        return 8 + m if t == 0 else 4 * m + t - 1
                    return 8 + m if t == 4 else 4 * m + t
                tab = 0
                for nw in range(2):
                    m, t = KVT[nw][a]
                    for odd in range(2):
                        tab |= hs(m, t, odd) << (4 * (2 * nw + odd))
                A(f"s_lshl_b32 s{sTmp}, s{sNW}, 1")
                A(f"s_add_u32 s{sTmp}, s{sTmp}, s{sOdd}")
                A(f"s_lshl_b32 s{sTmp}, s{sTmp}, 2")
                A(f"s_lshr_b32 s{sTmp}, {tab}, s{sTmp}")
                A(f"s_and_b32 s{sTmp}, s{sTmp}, 15")
            A(f"s_lshr_b32 s{sTmp2}, s{sTmp}, 1")
            A(f"s_lshl_b32 s{sTmp2}, s{sTmp2}, 12")
            A(f"s_and_b32 s{sTmp}, s{sTmp}, 1")
            A(f"s_lshl_b32 s{sTmp}, s{sTmp}, 1")
            A(f"v_xor_b32 v{vT2}, s{sTmp}, v{vT1}")
            A(f"v_lshl_add_u32 v{vT2}, v{vT2}, 5, v{vT0}")
            A(f"v_add_u32 v{vWb+a}, s{sTmp2}, v{vT2}")
    A(f"s_mov_b32 s{sRslot}, {W_LDS}")
    A(f"v_mov_b32 v{vPa}, 0")
    A(f"v_and_b32 v{vT0}, 15, v{vLane}")
    A(f"v_bfe_u32 v{vT1}, v{vLane}, 4, 1")
    A(f"v_cmp_eq_u32 vcc, v{vT0}, v{vT1}")
    A(f"v_mov_b32 v{vT2}, 0x3f803f80")
    A(f"v_cndmask_b32 v{vSel}, 0, v{vT2}, vcc")
    for i in range(1, 4):
        A(f"v_mov_b32 v{vSel+i}, v{vSel}")
    for i in range(4 * NT):
        A(f"v_mov_b32 v{vCSA+i}, 0")
    for i in range(16 * MT * NT):
        A(f"v_mov_b32 v{vACC+i}, 0")
    A(f"s_sub_u32 s{sCSit}, s{sRB}, s{sC0}")
    A(f"s_add_u32 s{sTmp}, s{sCSit}, 2")
    A(f"s_cmp_lt_u32 s{sRB}, 10")
    A(f"s_cselect_b32 s{sPub}, s{sTmp}, 2")
    A(f"s_cselect_b32 s{sCSit}, s{sCSit}, 99")
    A(f"s_cmp_eq_u32 s{sMW}, 0")
    A(f"s_cselect_b32 s{sCSit}, s{sCSit}, 99")
    A(f"s_cmp_eq_u32 s{sWave}, 0")
    A(f"s_cselect_b32 s{sPub}, s{sPub}, 99")
    A(f"s_mov_b32 s{sIt}, 0")
    A(f"s_mov_b32 s{sSpin}, 0")

    def reads(P, kap):
        pre = [f"v_add_u32 v{vWa+a}, s{sRslot}, v{vWb+a}" for a in range(NT)]
        post = [f"s_add_u32 s{sRslot}, s{sRslot}, {W_SLOT}\n"
                f"s_cmp_eq_u32 s{sRslot}, {W_LDS+5*W_SLOT}\n"
                f"s_cselect_b32 s{sRslot}, {W_LDS}, s{sRslot}"]
        out = []
        for kk in range(2):
            for mt in range(MT):
                out.append(f"ds_read_b128 {vr(XB(P, mt, kk))}, v{vXa+2*kap+kk} offset:{mt*4096}")
            for a in range(NT):
                for rho in range(2):
                    out.append(f"ds_read_b64_tr_b16 {vr(WBf(P, a, kk)+2*rho, 2)}, v{vWa+a} offset:{kk*2048+rho*512}")
        if OPT["NORD"]:
            out = []
        return pre, out, post

    def mfmas(P):
        out = []
        for kk in range(2):
            for a in range(NT):
                for mt in range(MT):
                    x, w, d = vr(XB(P, mt, kk)), vr(WBf(P, a, kk)), vr(acc(mt, a), 16)
                    if typ == "K":
                        out.append(f"v_mfma_f32_32x32x16_bf16 {d}, {x}, {w}, {d}")
                    else:
                        out.append(f"v_mfma_f32_32x32x16_bf16 {d}, {w}, {x}, {d}")
        return out

    def cs_mfmas(P):
        return [f"v_mfma_f32_16x16x32_bf16 {vr(vCSA+4*a)}, {vr(WBf(P, a, kk))}, {vr(vSel)}, {vr(vCSA+4*a)}"
                for kk in range(2) for a in range(NT)]

    A(f"s_waitcnt vmcnt({NW_})")
    k1_stats(A, typ)
    n = len(mfmas(0))
    f = lambda k: k / n
    nod = OPT["NODMA"]

    def loop(R):
        LL = lambda s: f"L_{typ}{R}_{s}"
        if R == "B":
            for g in dmaX():
                A(g)
        for g in dmaW():
            A(g)
        A(f"s_waitcnt vmcnt({1 + NW_ + (4 if R == 'B' else 0)})")
        A("s_barrier")
        pre, rd, post = reads(0, 0)
        for g in pre + rd + post:
            A(g)
        A("s_waitcnt lgkmcnt(0)")
        if R == "A":
            A("s_setprio 1")
            stamp(A, 1, 0)
            stamp(A, 14, 0, clk=True)
        A(".p2align 6")
        A.label(LL("loop"))
        pre, rd, post = reads(1, 1)
        for g in interleave(mfmas(0), (pre, 0.0, f(1)), (rd, f(1), 0.7), (post, 0.75, 0.85)):
            A(g)
        if R == "A":
            A(f"s_cmp_eq_u32 s{sCSit}, s{sIt}")
            A(f"s_cbranch_scc1 {LL('cs0')}")
            A.label(LL("cs0r"))
            A(f"s_cmp_eq_u32 s{sPub}, s{sIt}")
            A(f"s_cbranch_scc1 {LL('pub')}")
            A.label(LL("pubr"))
            A(f"s_cmp_ge_u32 s{sIt}, 8")
            A(f"s_cbranch_scc1 {LL('spec')}")
            A.label(LL("specr"))
            for g in ([] if nod else dmaW()):
                A(g)
            A.label(LL("nodma"))
            A(f"s_waitcnt vmcnt({0 if nod else NW_}) lgkmcnt(0)")
        else:
            A("s_waitcnt vmcnt(0) lgkmcnt(0)")
        A("s_barrier")
        pre, rd, post = reads(0, 0)
        pre = [f"v_xor_b32 v{vXa+i}, 16384, v{vXa+i}" for i in range(2)] + pre
        post = post + [f"v_xor_b32 v{vXa+i}, 16384, v{vXa+i}" for i in range(2, 4)]
        if R == "B":
            A(f"s_cmp_ge_u32 s{sIt}, 8")
            A(f"s_cbranch_scc1 {LL('spec')}")
            for g in ([] if nod else dmaW() + dmaX()):
                A(g)
            A(f"s_cmp_ge_u32 s{sIt}, 5")
            A(f"s_cbranch_scc1 {LL('spec')}")
            A.label(LL("specr"))
            for g in pre + rd + post:
                A(g)
            ms = mfmas(1)
            ms[-1] = f"s_add_u32 s{sIt}, s{sIt}, 1\ns_cmp_lt_u32 s{sIt}, 10\n" + ms[-1]
            for g in ms:
                A(g)
        else:
            chk1 = [f"s_cmp_eq_u32 s{sCSit}, s{sIt}\ns_cbranch_scc1 {LL('cs1')}\n{LL('cs1r')}:\n"
                    f"s_add_u32 s{sIt}, s{sIt}, 1\ns_cmp_lt_u32 s{sIt}, 10"]
            for g in interleave(mfmas(1), (pre, 0.0, f(1)), (rd, f(1), 0.7), (post, 0.7, 0.8), (chk1, f(n-2), f(n-1))):
                A(g)
        A("s_waitcnt lgkmcnt(0)")
        A(f"s_cbranch_scc1 {LL('loop')}")
        A(f"s_branch {L('epi')}")

        if R == "A":
            A.label(LL("cs0"))
            for g in cs_mfmas(0):
                A(g)
            A(f"s_branch {LL('cs0r')}")
            A.label(LL("cs1"))
            for g in cs_mfmas(1):
                A(g)
            A(f"v_and_b32 v{vT0}, 15, v{vLane}")
            A(f"v_lshrrev_b32 v{vT1}, 4, v{vLane}")
            A(f"v_lshlrev_b32 v{vT1}, 4, v{vT1}")
            A(f"v_lshl_add_u32 v{vT1}, v{vT0}, 6, v{vT1}")
            A(f"v_cmp_gt_u32 vcc, 2, v{vT0}")
            A(f"v_mov_b32 v{vT2}, {OOB}")
            A(f"v_cndmask_b32 v{vT1}, v{vT2}, v{vT1}, vcc")
            A(f"s_mul_i32 s{sTmp}, s{sCG}, 10")
            A(f"s_add_u32 s{sTmp}, s{sTmp}, s{sRB}")
            A(f"s_mul_i32 s{sTmp}, s{sTmp}, 1536")
            A(f"s_mul_i32 s{sTmp2}, s{sNW}, {NT*128}")
            A(f"s_add_u32 s{sTmp}, s{sTmp}, s{sTmp2}")
            A(f"s_add_u32 s{sTmp}, s{sTmp}, {WS_CS}")
            for a in range(NT):
                A(f"buffer_store_dwordx4 {vr(vCSA+4*a)}, v{vT1}, {srd(S_WS)}, s{sTmp} offen offset:{a*128} sc1")
            A(f"s_branch {LL('cs1r')}")
            A.label(LL("pub"))
            k1_publish(A, True)
            A(f"s_branch {LL('pubr')}")

        i0 = 8 if R == "A" else 7
        ret = LL("specr") if R == "B" else LL("ret")
        A.label(LL("spec"))
        if R == "B":
            A(f"s_cmp_lg_u32 s{sWave}, 7")
            A(f"s_cbranch_scc1 {LL('sp2')}")
            A(f"s_cmp_gt_u32 s{sIt}, 8")
            A(f"s_cbranch_scc1 {ret}")
            A(f"s_bitcmp0_b32 s{sIt}, 0")
            A(f"s_cbranch_scc1 {LL('chk')}")
            A(f"s_lshl_b32 s{sTmp}, s{sRB}, 2")
            A(f"s_lshl_b32 s{sTmp2}, s{sCG}, 2")
            A(f"s_add_u32 s{sTmp2}, s{sTmp2}, {DC_COL*4}")
            A(f"s_cmp_eq_u32 s{sIt}, 5")
            A(f"s_movk_i32 s{sTmp3}, {DC_AUX*4}")
            A(f"s_cselect_b32 s{sTmp3}, s{sTmp3}, {DC_W2*4}")
            A(f"v_mov_b32 v{vPa}, s{sTmp3}")
            A(f"v_writelane_b32 v{vPa}, s{sTmp}, 0")
            A(f"v_writelane_b32 v{vPa}, s{sTmp2}, 1")
            A(f"v_mov_b32 v{vPoll+1}, 16")
            A(f"v_writelane_b32 v{vPoll+1}, 10, 1")
            A.label(LL("poll"))
            A(f"buffer_load_dword v{vPoll}, v{vPa}, {srd(S_DBG)}, 0 offen sc1")
            A(f"s_bitcmp1_b32 s{sIt}, 0")
            A(f"s_cbranch_scc1 {LL('sp2')}")
            A("s_waitcnt vmcnt(0)")
            A.label(LL("chk"))
            A(f"v_cmp_lt_u32 vcc, v{vPoll}, v{vPoll+1}")
            A(f"s_add_u32 s{sSpin}, s{sSpin}, 1")
            A(f"s_cmp_gt_u32 s{sSpin}, {SPIN_MAX}")
            A(f"s_cbranch_scc1 {LL('sp2')}")
            A(f"s_cmp_eq_u64 vcc, 0")
            A(f"s_cbranch_scc1 {LL('sp2')}")
            A("s_sleep 16")
            A(f"s_branch {LL('poll')}")
            A.label(LL("sp2"))
        A(f"s_cmp_eq_u32 s{sIt}, {i0}")
        A(f"s_cbranch_scc1 {LL('go')}")
        A(f"s_cmp_eq_u32 s{sIt}, {i0+1}")
        A(f"s_cbranch_scc1 {LL('sum')}")
        A(f"s_branch {ret}")
        if R == "A":
            A.label(ret)
            A("s_waitcnt vmcnt(0)")
            A(f"s_branch {LL('nodma')}")
        A.label(LL("go"))
        A(f"v_lshlrev_b32 v{vT0}, 2, v0")
        A(f"v_cmp_gt_u32 vcc, {NT*(4 if G else 2)*32}, v0")
        A(f"v_mov_b32 v{vT2}, {OOB}")
        A(f"v_cndmask_b32 v{vT0}, v{vT2}, v{vT0}, vcc")
        A(f"s_mul_i32 s{sTmp}, s{sCG}, 15360")
        A(f"s_add_u32 s{sTmp}, s{sTmp}, {WS_CS}")
        for ch in range(10):
            if ch % 2 == 0 and ch:
                A(f"s_add_u32 s{sTmp}, s{sTmp}, 3072")
            A(f"buffer_load_dword v{vCSP+ch}, v{vT0}, {srd(S_WS)}, s{sTmp} offen offset:{(ch%2)*1536} sc1")
        A(f"s_lshl_b32 s{sTmp}, s{sRB}, 10")
        A(f"s_lshl_b32 s{sTmp2}, s{sMW}, {9 if G else 8}")
        A(f"s_add_u32 s{sTmp}, s{sTmp}, s{sTmp2}")
        A(f"s_add_u32 s{sTmp}, s{sTmp}, {WS_ST}")
        if typ != "K":
            A(f"v_and_b32 v{vT1}, 31, v{vLane}")
            A(f"v_lshlrev_b32 v{vT1}, 3, v{vT1}")
            for mt in range(MT):
                A(f"buffer_load_dwordx2 {vr(vSt+2*mt, 2)}, v{vT1}, {srd(S_WS)}, s{sTmp} offen offset:{mt*256} sc1")
        else:
            A(f"v_lshrrev_b32 v{vT1}, 5, v{vLane}")
            A(f"v_lshlrev_b32 v{vT1}, 5, v{vT1}")
            for q in range(4):
                for h in range(2):
                    A(f"buffer_load_dwordx4 {vr(KST(2*q+h))}, v{vT1}, {srd(S_WS)}, s{sTmp} offen offset:{q*64+h*16} sc1")
        A(f"s_branch {ret}")
        A.label(LL("sum"))
        for ch in range(1, 10):
            A(f"v_add_f32 v{vCSP}, v{vCSP}, v{vCSP+ch}")
        A(f"v_lshlrev_b32 v{vT0}, 2, v0")
        A(f"v_add_u32 v{vT0}, {MISC_LDS}, v{vT0}")
        A(f"ds_write_b32 v{vT0}, v{vCSP}")
        A(f"s_branch {ret}")

    A(f"s_cmp_ge_u32 s{sWave}, 4")
    A(f"s_cbranch_scc1 {L('roleB')}")
    loop("A")
    A.label(L("roleB"))
    loop("B")

    A.label(L("epi"))
    A("s_setprio 0")
    stamp(A, 2, 0)
    stamp(A, 15, 0, clk=True)
    p2_ids(A)
    A.fence()
    if typ == "K":
        k1_epi_kv(A, acc)
        A(f"s_mov_b32 s{sWoDone}, 0")
    else:
        epi = {"G": k1_epi_g, "Q": k1_epi_q}[typ]
        A(f"s_mov_b32 s{sWoDone}, 1")
        A(f"s_cmp_ge_u32 s{sWave}, 4")
        A(f"s_cbranch_scc1 {L('epiB')}")
        wo_setup(A)
        E = Asm()
        epi(E, acc)
        body = [t for _, t in E.lines]
        for g in interleave(body, (wo_dmas(), 0.0, 0.85)):
            A(g)
        A(f"s_branch {L('epiJ')}")
        A.label(L("epiB"))
        epi(A, acc)
        A.label(L("epiJ"))
    stamp(A, 3, 0)
    A(f"v_mov_b32 v{vSigA}, {OOB}")
    if typ == "K":
        A(f"s_sub_u32 s{sTmp}, s{sCG}, 9")
        A(f"s_lshl_b32 s{sTmp}, s{sTmp}, 11")
        A(f"s_add_u32 s{sTmp}, s{sTmp}, {WS_FL + FL_KV}")
        A(f"v_lshl_add_u32 v{vT0}, v{vLane}, 8, s{sTmp}")
        A(f"v_cmp_gt_u32 vcc, 8, v{vLane}")
        A(f"v_cndmask_b32 v{vSigA}, v{vSigA}, v{vT0}, vcc")
        A(f"v_mov_b32 v{vSigV}, 1")
    else:
        A(f"s_lshl_b32 s{sTmp}, s{sRB}, 8")
        A(f"s_add_u32 s{sTmp}, s{sTmp}, {WS_FL + FL_HC}")
        A(f"v_writelane_b32 v{vSigA}, s{sTmp}, 0")
        A(f"v_mov_b32 v{vSigV}, {1 if G else 0x100}")
    A("s_branch L_p2")


def k1_stats_issue(A):
    b = vBUF
    A(f"s_lshl_b32 s{sRow}, s{sRB}, 7")
    A(f"s_lshl_b32 s{sTmp2}, s{sCG}, 3")
    A(f"s_add_u32 s{sRow}, s{sRow}, s{sTmp2}")
    A(f"s_add_u32 s{sRow}, s{sRow}, s{sWave}")
    A(f"s_mul_i32 s{sTmp2}, s{sRow}, 1280")
    A(f"v_lshlrev_b32 v{vT0}, 3, v{vLane}")
    A(f"v_lshlrev_b32 v{vT1}, 2, v{vLane}")
    A(f"buffer_load_dwordx2 {vr(b, 2)}, v{vT0}, {srd(S_X)}, s{sTmp2} offen")
    A(f"buffer_load_dwordx2 {vr(b+2, 2)}, v{vT0}, {srd(S_X)}, s{sTmp2} offen offset:512")
    A(f"buffer_load_dword v{b+4}, v{vT1}, {srd(S_X)}, s{sTmp2} offen offset:1024")


def k1_stats(A, typ):
    b = vBUF
    if typ == "A":
        A("s_waitcnt vmcnt(0)")
    for i in range(5):
        A(f"v_lshlrev_b32 v{b+8+2*i}, 16, v{b+i}")
        A(f"v_and_b32 v{b+9+2*i}, 0xffff0000, v{b+i}")
    s = b + 20
    A(f"v_add_f32 v{s}, v{b+8}, v{b+9}")
    for i in range(2, 10):
        A(f"v_add_f32 v{s}, v{s}, v{b+8+i}")
    wave_allreduce_add(A, s, s + 1, 4)
    A(f"v_mul_f32 v{s}, {f32(1.0/640)}, v{s}")
    for i in range(10):
        A(f"v_sub_f32 v{b+8+i}, v{b+8+i}, v{s}")
    A(f"v_mul_f32 v{s+1}, v{b+8}, v{b+8}")
    for i in range(1, 10):
        A(f"v_fmac_f32 v{s+1}, v{b+8+i}, v{b+8+i}")
    wave_allreduce_add(A, s + 1, s + 2, 4)
    A(f"v_mov_b32 v{s+2}, {f32(1e-5)}")
    A(f"v_fmac_f32 v{s+2}, {f32(1.0/640)}, v{s+1}")
    A(f"v_mov_b32 v{s+1}, v{s+2}")
    A(f"v_cmp_eq_u32 vcc, 0, v{vLane}")
    A(f"v_mov_b32 v{vT2}, {OOB}")
    A(f"v_cndmask_b32 v{vT0}, v{vT2}, v{vLane}, vcc")
    A(f"s_lshl_b32 s{sTmp}, s{sRow}, 3")
    A(f"s_add_u32 s{sTmp}, s{sTmp}, {WS_ST}")
    A(f"buffer_store_dwordx2 {vr(s, 2)}, v{vT0}, {srd(S_WS)}, s{sTmp} offen sc1")


def k1_publish(A, col):
    A(f"s_lshl_b32 s{sTmp}, s{sRB}, 2")
    A(f"s_add_u32 s{sTmp}, s{sTmp}, {DC_ROW*4}")
    A(f"s_lshl_b32 s{sTmp2}, s{sCG}, 2")
    A(f"s_add_u32 s{sTmp2}, s{sTmp2}, {DC_COL*4}")
    if col:
        A(f"s_cmp_lt_u32 s{sRB}, 10")
        A(f"s_cselect_b32 s{sTmp2}, s{sTmp2}, {OOB}")
    else:
        A(f"s_mov_b32 s{sTmp2}, {DC_AUX*4}")
    A(f"v_mov_b32 v{vT0}, {OOB}")
    A(f"v_writelane_b32 v{vT0}, s{sTmp}, 0")
    A(f"v_writelane_b32 v{vT0}, s{sTmp2}, 1")
    A(f"v_mov_b32 v{vT1}, 1")
    A(f"buffer_atomic_add v{vT1}, v{vT0}, {srd(S_DBG)}, 0 offen sc1")


def k1_epi_g(A, acc):
    c = vBUF
    cs = vBUF + 8
    t = vBUF + 40
    o = vBUF + 72
    A(f"v_lshrrev_b32 v{vT0}, 5, v{vLane}")
    A(f"v_lshlrev_b32 v{vT0}, 4, v{vT0}")
    A(f"s_mul_i32 s{sTmp}, s{sNW}, 384")
    A(f"s_add_u32 s{sTmp}, s{sTmp}, {MISC_LDS}")
    A(f"v_add_u32 v{vT0}, s{sTmp}, v{vT0}")
    for q in range(4):
        A(f"ds_read_b128 {vr(cs+4*q)}, v{vT0} offset:{q*32}")
    for mt in range(2):
        mu, v, k1, k3 = c + 4 * mt, c + 4 * mt + 1, c + 4 * mt + 2, c + 4 * mt + 3
        A(f"v_mov_b32 v{mu}, v{vSt+2*mt}")
        A(f"v_mov_b32 v{v}, v{vSt+2*mt+1}")
        A(f"v_rsq_f32 v{t}, v{v}")
        A(f"v_mul_f32 v{k1}, {f32(GC1)}, v{t}")
        A(f"v_mul_f32 v{t+1}, v{t}, v{t}")
        A(f"v_mul_f32 v{t+1}, v{t+1}, v{t}")
        A(f"v_mul_f32 v{k3}, {f32(GC2)}, v{t+1}")
    A(f"v_bfe_u32 v{vT1}, v{vLane}, 4, 1")
    A(f"v_lshlrev_b32 v{vT1}, 10, v{vT1}")
    A(f"v_lshrrev_b32 v{vT2}, 5, v{vLane}")
    A(f"v_lshl_add_u32 v{vT1}, v{vT2}, 8, v{vT1}")
    A(f"v_and_b32 v{vT2}, 15, v{vLane}")
    A(f"v_lshl_add_u32 v{vT1}, v{vT2}, 4, v{vT1}")
    n = 0
    for a in range(3):
        csa = cs + 16 * (a % 2)
        if a < 2:
            for q in range(4):
                A(f"ds_read_b128 {vr(cs+16*((a+1)%2)+4*q)}, v{vT0} offset:{(a+1)*128+q*32}")
            A("s_waitcnt lgkmcnt(4)")
        else:
            A("s_waitcnt lgkmcnt(0)")
        A(f"s_mul_i32 s{sTmp}, s{sCG}, 12")
        A(f"s_mul_i32 s{sTmp2}, s{sNW}, 3")
        A(f"s_add_u32 s{sTmp}, s{sTmp}, s{sTmp2}")
        A(f"s_add_u32 s{sTmp}, s{sTmp}, {a}")
        A(f"s_lshl_b32 s{sTmp2}, s{sRB}, 1")
        A(f"s_add_u32 s{sTmp2}, s{sTmp2}, s{sMW}")
        A(f"s_mul_i32 s{sTmp2}, s{sTmp2}, 54")
        A(f"s_lshr_b32 s{sTmp3}, s{sTmp}, 1")
        A(f"s_add_u32 s{sTmp2}, s{sTmp2}, s{sTmp3}")
        A(f"s_lshl_b32 s{sTmp2}, s{sTmp2}, 12")
        A(f"s_and_b32 s{sTmp}, s{sTmp}, 1")
        A(f"s_lshl_b32 s{sTmp}, s{sTmp}, 9")
        A(f"s_add_u32 s{sTmp}, s{sTmp}, s{sTmp2}")
        for mt in range(2):
            mu, v, k1, k3 = c + 4 * mt, c + 4 * mt + 1, c + 4 * mt + 2, c + 4 * mt + 3
            d = acc(mt, a)
            ob = o + 4 * (n % 2)
            n += 1
            R = range(8)
            for i in R:
                A(f"v_fma_f32 v{d+i}, -v{mu}, v{csa+i}, v{d+i}")
            for i in R:
                A(f"v_mul_f32 v{t+i}, v{d+i}, v{d+i}")
            for i in R:
                A(f"v_fma_f32 v{t+i}, v{t+i}, v{k3}, v{k1}")
            for i in R:
                A(f"v_mul_f32 v{t+i}, v{t+i}, v{d+i}")
            for i in R:
                A(f"v_exp_f32 v{t+i}, v{t+i}")
                A(f"v_fma_f32 v{d+8+i}, -v{mu}, v{csa+8+i}, v{d+8+i}")
            for i in R:
                A(f"v_fma_f32 v{t+i}, v{t+i}, v{v}, v{v}")
            for i in R:
                A(f"v_rcp_f32 v{t+i}, v{t+i}")
                A(f"v_mul_f32 v{d+i}, v{d+i}, v{d+8+i}")
            for i in R:
                A(f"v_mul_f32 v{d+i}, v{d+i}, v{t+i}")
            for i in range(4):
                A(f"v_cvt_pk_bf16_f32 v{ob+i}, v{d+2*i}, v{d+2*i+1}")
            A(f"buffer_store_dwordx4 {vr(ob)}, v{vT1}, {srd(S_WS)}, s{sTmp} offen offset:{mt*2048} sc1")


def phi_block(A, d, n, t, mu, cs, r, rl, eps):
    R = range(n)
    for i in R:
        A(f"v_fma_f32 v{d+i}, -v{mu(i)}, v{cs(i)}, v{d+i}")
    for i in R:
        A(f"v_mul_f32 v{t+i}, v{d+i}, v{rl(i)}")
    for i in R:
        A(f"v_min_f32 v{t+i}, 0, v{t+i}")
    for i in R:
        A(f"v_exp_f32 v{t+i}, v{t+i}")
        A(f"v_fma_f32 v{d+i}, v{d+i}, v{r(i)}, v{eps}")
    for i in R:
        A(f"v_max_f32 v{d+i}, v{d+i}, v{eps}")
    for i in R:
        A(f"v_add_f32 v{d+i}, v{d+i}, v{t+i}")


def k1_epi_q(A, acc):
    c = vBUF
    cs = vBUF + 8
    t = vBUF + 40
    o = vBUF + 72
    mu, r, rl, eps = c, c + 1, c + 2, c + 3
    A(f"v_lshrrev_b32 v{vT0}, 5, v{vLane}")
    A(f"v_lshlrev_b32 v{vT0}, 4, v{vT0}")
    A(f"s_mul_i32 s{sTmp}, s{sNW}, 640")
    A(f"s_add_u32 s{sTmp}, s{sTmp}, {MISC_LDS}")
    A(f"v_add_u32 v{vT0}, s{sTmp}, v{vT0}")
    for q in range(4):
        A(f"ds_read_b128 {vr(cs+4*q)}, v{vT0} offset:{q*32}")
    A(f"v_mov_b32 v{mu}, v{vSt}")
    A(f"v_rsq_f32 v{r}, v{vSt+1}")
    A(f"v_mov_b32 v{eps}, {f32(1e-6)}")
    A(f"v_mul_f32 v{rl}, {f32(LOG2E)}, v{r}")
    A(f"v_bfe_u32 v{vT1}, v{vLane}, 4, 1")
    A(f"v_lshlrev_b32 v{vT1}, 10, v{vT1}")
    A(f"v_lshrrev_b32 v{vT2}, 5, v{vLane}")
    A(f"v_lshl_add_u32 v{vT1}, v{vT2}, 8, v{vT1}")
    A(f"v_and_b32 v{vT2}, 15, v{vLane}")
    A(f"v_lshl_add_u32 v{vT1}, v{vT2}, 4, v{vT1}")
    A(f"s_lshl_b32 s{sTmp}, s{sRB}, 1")
    A(f"s_lshr_b32 s{sTmp2}, s{sMW}, 1")
    A(f"s_add_u32 s{sTmp}, s{sTmp}, s{sTmp2}")
    A(f"s_mul_i32 s{sTmp}, s{sTmp}, 20")
    A(f"s_sub_u32 s{sTmp2}, s{sCG}, 13")
    A(f"s_mul_i32 s{sTmp2}, s{sTmp2}, 10")
    A(f"s_add_u32 s{sTmp}, s{sTmp}, s{sTmp2}")
    A(f"s_mul_i32 s{sTmp2}, s{sNW}, 5")
    A(f"s_add_u32 s{sTmp}, s{sTmp}, s{sTmp2}")
    A(f"s_lshl_b32 s{sTmp}, s{sTmp}, 12")
    A(f"s_and_b32 s{sTmp2}, s{sMW}, 1")
    A(f"s_lshl_b32 s{sTmp2}, s{sTmp2}, 11")
    A(f"s_add_u32 s{sTmp}, s{sTmp}, s{sTmp2}")
    A(f"s_add_u32 s{sTmp}, s{sTmp}, {WS_PQ}")
    for a in range(5):
        csa = cs + 16 * (a % 2)
        if a < 4:
            for q in range(4):
                A(f"ds_read_b128 {vr(cs+16*((a+1)%2)+4*q)}, v{vT0} offset:{(a+1)*128+q*32}")
            A("s_waitcnt lgkmcnt(4)")
        else:
            A("s_waitcnt lgkmcnt(0)")
        d = acc(0, a)
        phi_block(A, d, 16, t, lambda i: mu, lambda i: csa + i, lambda i: r, lambda i: rl, eps)
        ob = o + 8 * (a % 2)
        for i in range(8):
            A(f"v_cvt_pk_bf16_f32 v{ob+i}, v{d+2*i}, v{d+2*i+1}")
        A(f"buffer_store_dwordx4 {vr(ob)}, v{vT1}, {srd(S_WS)}, s{sTmp} offen sc1")
        A(f"buffer_store_dwordx4 {vr(ob+4)}, v{vT1}, {srd(S_WS)}, s{sTmp} offen offset:512 sc1")
        A(f"s_add_u32 s{sTmp}, s{sTmp}, 4096")


def k1_epi_kv(A, acc):
    mu = lambda i: KST(i // 2) + 2 * (i % 2)
    rr = lambda i: mu(i) + 1
    rl = vBUF
    t = vBUF + 16
    cs = vBUF + 32
    eps = vBUF + 37
    o = vBUF + 40
    SLAB = 81920
    A(f"v_and_b32 v{vT0}, 31, v{vLane}")
    A(f"v_lshlrev_b32 v{vT0}, 2, v{vT0}")
    A(f"s_mul_i32 s{sTmp}, s{sNW}, 640")
    A(f"s_add_u32 s{sTmp}, s{sTmp}, {MISC_LDS}")
    A(f"v_add_u32 v{vT1}, s{sTmp}, v{vT0}")
    for a in range(5):
        A(f"ds_read_b32 v{cs+a}, v{vT1} offset:{a*128}")
    for i in range(16):
        A(f"v_rsq_f32 v{rr(i)}, v{rr(i)}")
    for i in range(16):
        A(f"v_mul_f32 v{rl+i}, {f32(LOG2E)}, v{rr(i)}")
    A(f"v_mov_b32 v{eps}, {f32(1e-6)}")
    A(f"s_lshl_b32 s{sTmp}, s{sMW}, 11")
    A(f"v_lshl_add_u32 v{vT2}, v{vLane}, 4, s{sTmp}")
    A("s_waitcnt vmcnt(0) lgkmcnt(0)")
    A("s_barrier")

    def tile(a, is_k):
        d = acc(0, a)
        if is_k:
            phi_block(A, d, 16, t, mu, lambda i: cs + a, rr, lambda i: rl + i, eps)
        else:
            for i in range(16):
                A(f"v_fma_f32 v{d+i}, -v{mu(i)}, v{cs+a}, v{d+i}")
            for i in range(16):
                A(f"v_mul_f32 v{d+i}, v{d+i}, v{rr(i)}")

    def put(a):
        d = acc(0, a)
        ob = o + 8 * (a % 2)
        o0, o1 = [(m * 5 + tt) * 8192 for m, tt in (KVT[0][a], KVT[1][a])]
        A(f"s_cmp_eq_u32 s{sNW}, 0")
        A(f"s_mov_b32 s{sTmp}, {o0}")
        A(f"s_cselect_b32 s{sTmp}, s{sTmp}, {o1}")
        A(f"v_add_u32 v{vT3}, s{sTmp}, v{vT2}")
        for i in range(8):
            A(f"v_cvt_pk_bf16_f32 v{ob+i}, v{d+2*i}, v{d+2*i+1}")
        A(f"ds_write_b128 v{vT3}, {vr(ob)}")
        A(f"ds_write_b128 v{vT3}, {vr(ob+4)} offset:1024")
    for a in (0, 1):
        tile(a, True)
        put(a)
    A(f"s_cmp_eq_u32 s{sNW}, 0")
    A("s_cbranch_scc0 L_K_t2v")
    tile(2, True)
    A("s_branch L_K_t2j")
    A.label("L_K_t2v")
    tile(2, False)
    A.label("L_K_t2j")
    put(2)
    for a in (3, 4):
        tile(a, False)
        put(a)
    A("s_waitcnt lgkmcnt(0)")
    A("s_barrier")
    sSlab, sJob, sA, sB = 4, 5, 6, 7
    A(f"s_mov_b32 s{sJob}, s{sWave}")
    A.label("L_K_job")
    A(f"s_mov_b32 s{sA}, s{sJob}")
    A(f"s_mov_b32 s{sB}, s{sJob}")
    A(f"s_cmp_lt_u32 s{sJob}, 5")
    A("s_cbranch_scc1 L_K_jgo")
    A(f"s_sub_u32 s{sA}, s{sJob}, 5")
    A(f"s_sub_u32 s{sB}, s{sJob}, 4")
    A(f"s_cmp_lt_u32 s{sJob}, 9")
    A("s_cbranch_scc1 L_K_jgo")
    A(f"s_sub_u32 s{sA}, s{sJob}, 8")
    A(f"s_sub_u32 s{sB}, s{sJob}, 9")
    A.label("L_K_jgo")
    A(f"s_lshl_b32 s{sTmp}, s{sA}, 13")
    A(f"s_lshl_b32 s{sTmp2}, s{sB}, 13")
    A(f"s_add_u32 s{sTmp2}, s{sTmp2}, {5*8192}")
    A(f"v_lshl_add_u32 v{vT1}, v{vLane}, 4, s{sTmp}")
    A(f"v_lshl_add_u32 v{vT2}, v{vLane}, 4, s{sTmp2}")
    fa, fb, d, dz = vBUF, vBUF + 32, vACC, vACC + 16
    for j in range(8):
        A(f"ds_read_b128 {vr(fa+4*j)}, v{vT1} offset:{j*1024}")
        A(f"ds_read_b128 {vr(fb+4*j)}, v{vT2} offset:{j*1024}")
    e, he, d0 = vBUF + 64, vBUF + 65, vBUF + 66
    A(f"v_and_b32 v{e}, 31, v{vLane}")
    A(f"s_lshl_b32 s{sTmp}, s{sB}, 5")
    A(f"v_add_u32 v{e}, s{sTmp}, v{e}")
    A(f"v_mul_u32_u24 v{he}, 205, v{e}")
    A(f"v_lshrrev_b32 v{he}, 12, v{he}")
    A(f"v_mul_u32_u24 v{e}, 80, v{e}")
    A(f"v_add_u32 v{e}, {SLAB}, v{e}")
    A(f"v_lshrrev_b32 v{d0}, 5, v{vLane}")
    A(f"s_lshl_b32 s{sTmp}, s{sA}, 5")
    A(f"v_lshl_add_u32 v{d0}, v{d0}, 2, s{sTmp}")
    A(f"v_lshlrev_b32 v{vT3}, 4, v{vLane}")
    A(f"v_add_u32 v{vT3}, {SLAB+16384}, v{vT3}")
    for q in range(4):
        a0 = vBUF + 68 + 2 * q
        A(f"v_add_u32 v{a0}, {8*q}, v{d0}")
        A(f"v_mul_u32_u24 v{a0+1}, 205, v{a0}")
        A(f"v_lshrrev_b32 v{a0+1}, 12, v{a0+1}")
        A(f"v_cmp_eq_u32 vcc, v{a0+1}, v{he}")
        A(f"v_lshl_add_u32 v{a0}, v{a0}, 2, v{e}")
        A(f"v_cndmask_b32 v{a0}, v{vT3}, v{a0}, vcc")
    az = vBUF + 76
    A(f"v_and_b32 v{az+1}, 15, v{vLane}")
    A(f"v_lshrrev_b32 v{az}, 4, v{vLane}")
    A(f"v_lshlrev_b32 v{az}, 2, v{az}")
    A(f"v_lshl_add_u32 v{az}, v{az+1}, 4, v{az}")
    A(f"v_add_u32 v{az}, s{sTmp}, v{az}")
    A(f"v_mul_u32_u24 v{az+2}, 205, v{az}")
    A(f"v_lshrrev_b32 v{az+2}, 12, v{az+2}")
    A(f"v_mul_u32_u24 v{az+2}, 1600, v{az+2}")
    A(f"v_lshl_add_u32 v{az}, v{az}, 2, v{az+2}")
    A(f"v_add_u32 v{az}, {SLAB+1600}, v{az}")
    A(f"s_cmp_lt_u32 s{sJob}, 5")
    A(f"s_cselect_b32 s{sTmp}, 2, 0")
    A(f"v_cmp_gt_u32 vcc, s{sTmp}, v{az+1}")
    A(f"v_cndmask_b32 v{az}, v{vT3}, v{az}, vcc")
    for j in range(8):
        A(f"s_waitcnt lgkmcnt({14-2*j})")
        A(f"v_mfma_f32_32x32x16_bf16 {vr(d,16)}, {vr(fa+4*j)}, {vr(fb+4*j)}, {vr(d,16) if j else 0}")
        A(f"v_mfma_f32_16x16x32_bf16 {vr(dz)}, {vr(fa+4*j)}, {vr(vSel)}, {vr(dz) if j else 0}")
    for q in range(4):
        A(f"ds_write_b128 v{vBUF+68+2*q}, {vr(d+4*q)}")
    A(f"ds_write_b128 v{az}, {vr(dz)}")
    A(f"s_add_u32 s{sJob}, s{sJob}, 8")
    A(f"s_cmp_lt_u32 s{sJob}, 13")
    A("s_waitcnt lgkmcnt(0)")
    A("s_cbranch_scc1 L_K_job")
    A("s_barrier")
    A(f"s_sub_u32 s{sSlab}, s{sCG}, 9")
    A(f"s_mul_i32 s{sSlab}, s{sSlab}, 13440")
    A(f"s_add_u32 s{sSlab}, s{sSlab}, {WS_KVA}")
    A(f"v_lshlrev_b32 v{vT0}, 2, v0")
    A(f"v_add_u32 v{vT1}, {SLAB}, v{vT0}")
    for j in range(7):
        A(f"ds_read_b32 v{vBUF+j}, v{vT1} offset:{j*2048}")
    A(f"v_cmp_gt_u32 vcc, {3360-6*512}, v0")
    A(f"v_mov_b32 v{vT3}, {OOB}")
    A(f"v_cndmask_b32 v{vT2}, v{vT3}, v{vT0}, vcc")
    for j in range(7):
        A(f"s_waitcnt lgkmcnt({6-j})")
        A(f"buffer_atomic_add_f32 v{vBUF+j}, v{vT0 if j < 6 else vT2}, {srd(S_WS)}, s{sSlab} offen offset:{(j%2)*2048}")
        if j % 2 == 1:
            A(f"s_add_u32 s{sSlab}, s{sSlab}, 4096")


def k1_aux(A):
    vo = vACC + 8
    rn, rp = vACC + 14, vACC + 15
    l16 = vACC + 16
    F = vBUF + 24
    A(f"v_lshrrev_b32 v{vT0}, 3, v{vLane}")
    A(f"v_mul_u32_u24 v{vT0}, 1280, v{vT0}")
    A(f"v_and_b32 v{vT1}, 7, v{vLane}")
    A(f"v_lshl_add_u32 v{vT0}, v{vT1}, 4, v{vT0}")
    for i in range(5):
        A(f"s_mul_i32 s{sTmp}, s{sWave}, 5")
        A(f"s_add_u32 s{sTmp}, s{sTmp}, {i}")
        A(f"s_lshr_b32 s{sTmp2}, s{sTmp}, 2")
        A(f"s_lshl_b32 s{sTmp2}, s{sTmp2}, 7")
        A(f"s_and_b32 s{sTmp}, s{sTmp}, 3")
        A(f"s_mul_i32 s{sTmp}, s{sTmp}, {8*1280}")
        A(f"s_add_u32 s{sTmp}, s{sTmp}, s{sTmp2}")
        A(f"v_add_u32 v{vo+i}, s{sTmp}, v{vT0}")
    mk_srd(A, S_W, P_D, 1728 * 1280)
    mk_srd(A, S_T, P_WO, 640 * 1280)
    sU = 10

    def dma(u):
        slot = u % 4
        A(f"s_add_u32 s{sU}, s{sRB}, {16*u}")
        A(f"s_mul_i32 s11, s{sU}, {32*1280}")
        A(f"s_sub_u32 s12, s11, {54*32*1280}")
        A(f"s_mul_i32 s13, s{sWave}, 5120")
        lab = f"L_A_d{u}"
        if u >= 3:
            A(f"s_cmp_ge_u32 s{sU}, 54")
            A(f"s_cbranch_scc1 {lab}a")
        if u < 4:
            for i in range(5):
                A(f"s_add_u32 m0, s13, {slot*40960+i*1024}")
                A(f"buffer_load_dwordx4 v{vo+i}, {srd(S_W)}, s11 offen lds")
        if u >= 3:
            A(f"s_branch {lab}b")
            A.label(lab + "a")
            for i in range(5):
                A(f"s_add_u32 m0, s13, {slot*40960+i*1024}")
                A(f"buffer_load_dwordx4 v{vo+i}, {srd(S_T)}, s12 offen lds")
            A.label(lab + "b")
    dma(0)
    for i in range(4):
        A(f"v_mov_b32 v{vACC+i}, 0")
    A(f"v_lshlrev_b32 v{vT0}, 4, v0")
    A(f"s_mul_i32 s{sTmp}, s{sRB}, 3360")
    A(f"s_add_u32 s{sTmp}, s{sTmp}, {WS_KVA}")
    A(f"v_add_u32 v{vT0}, s{sTmp}, v{vT0}")
    A(f"v_mov_b32 v{vT2}, {OOB}")
    A(f"v_cmp_gt_u32 vcc, 210, v0")
    A(f"v_cndmask_b32 v{vT0}, v{vT2}, v{vT0}, vcc")
    A(f"s_cmp_lg_u32 s{sWave}, 7")
    A("s_cbranch_scc1 L_A_z")
    A(f"s_lshl_b32 s{sTmp}, s{sRB}, 8")
    A(f"s_add_u32 s{sTmp}, s{sTmp}, {WS_FL}")
    A(f"v_writelane_b32 v{vT0}, s{sTmp}, 0")
    A(f"s_lshl_b32 s{sTmp}, s{sRB}, 9")
    A(f"s_add_u32 s{sTmp}, s{sTmp}, {WS_FL + FL_KV}")
    A(f"v_writelane_b32 v{vT0}, s{sTmp}, 1")
    A(f"s_add_u32 s{sTmp}, s{sTmp}, 256")
    A(f"v_writelane_b32 v{vT0}, s{sTmp}, 2")
    A.label("L_A_z")
    A(f"buffer_store_dwordx4 {vr(vACC)}, v{vT0}, {srd(S_WS)}, 0 offen sc1")
    A("s_waitcnt vmcnt(6)")
    k1_stats(A, "X")
    dma(1)
    dma(2)
    dma(3)
    A(f"v_bfe_u32 v{vT0}, v{vLane}, 2, 2")
    A(f"v_lshlrev_b32 v{vT0}, 7, v{vT0}")
    A(f"v_and_b32 v{vT1}, 3, v{vLane}")
    A(f"v_lshl_add_u32 v{vT0}, v{vT1}, 3, v{vT0}")
    A(f"v_lshrrev_b32 v{vT1}, 4, v{vLane}")
    A(f"v_lshl_add_u32 v{rn}, v{vT1}, 10, v{vT0}")
    A(f"v_lshl_add_u32 v{rp}, v{vT1}, 9, v{vT0}")
    A(f"v_lshlrev_b32 v{l16}, 4, v{vLane}")
    log = ["D0"] * 5 + ["z", "s"] + ["D1"] * 5 + ["D2"] * 5 + ["D3"] * 5
    for u in range(5):
        need = max(i for i, e in enumerate(log) if e == f"D{u}" or (u == 0 and e in "zs"))
        A(f"s_waitcnt vmcnt({len(log)-1-need})")
        A("s_barrier")
        stamp(A, 4 + u, 0)
        if u == 0:
            A(f"s_cmp_lg_u32 s{sWave}, 0")
            A("s_cbranch_scc1 L_A_np")
            k1_publish(A, False)
            A.label("L_A_np")
        if u == 1:
            dma(4)
            log += ["D4"] * 5
        A(f"s_add_u32 s{sU}, s{sRB}, {16*u}")
        A(f"s_cmp_ge_u32 s{sU}, 54")
        A(f"s_movk_i32 s5, 512")
        A(f"s_cselect_b32 s5, 2048, s5")
        A(f"s_cselect_b64 vcc, -1, 0")
        A(f"v_cndmask_b32 v{vT0}, v{rn}, v{rp}, vcc")
        f = F + 20 * (u % 3)
        for nt in range(5):
            A(f"s_mul_i32 s6, s{sWave}, 5")
            A(f"s_add_u32 s6, s6, {nt}")
            A(f"s_lshr_b32 s7, s6, 2")
            A(f"s_lshl_b32 s7, s7, 12")
            A(f"s_and_b32 s6, s6, 3")
            A(f"s_lshl_b32 s6, s6, 5")
            A(f"s_add_u32 s6, s6, s7")
            A(f"s_add_u32 s6, s6, {(u%4)*40960}")
            A(f"v_add_u32 v{vT1}, s6, v{vT0}")
            A(f"v_add_u32 v{vT2}, s5, v{vT1}")
            A(f"ds_read_b64_tr_b16 {vr(f+4*nt, 2)}, v{vT1}")
            A(f"ds_read_b64_tr_b16 {vr(f+4*nt+2, 2)}, v{vT2}")
        A(f"s_mul_i32 s6, s{sWave}, 74")
        A(f"s_add_u32 s6, s6, s{sU}")
        A(f"s_mul_i32 s6, s6, 5120")
        A(f"s_add_u32 s6, s6, {WS_W2}")
        A(f"s_cmp_ge_u32 s{sU}, 74")
        A(f"s_cselect_b32 s6, {OOB}, s6")
        A("s_waitcnt lgkmcnt(0)")
        for nt in range(5):
            if nt == 4:
                A("s_add_u32 s6, s6, 4096")
            A(f"buffer_store_dwordx4 {vr(f+4*nt)}, v{l16}, {srd(S_WS)}, s6 offen offset:{(nt%4)*1024} sc1")
        log += ["S"] * 5
    A("s_waitcnt vmcnt(0)")
    A("s_barrier")
    A(f"s_cmp_lg_u32 s{sWave}, 0")
    A("s_cbranch_scc1 L_A_w")
    stamp(A, 9, 0)
    A(f"v_mov_b32 v{vT0}, {OOB}")
    A(f"s_movk_i32 s{sTmp}, {DC_W2*4}")
    A(f"v_writelane_b32 v{vT0}, s{sTmp}, 0")
    A(f"v_mov_b32 v{vT1}, 1")
    A(f"buffer_atomic_add v{vT1}, v{vT0}, {srd(S_DBG)}, 0 offen sc1")
    A(f"s_mov_b32 s{sSpin}, 0")
    A(f"v_mov_b32 v{vT0}, {DC_AUX*4}")
    A.label("L_A_poll")
    A(f"buffer_load_dwordx2 {vr(vPoll, 2)}, v{vT0}, {srd(S_DBG)}, 0 offen sc1")
    A("s_waitcnt vmcnt(0)")
    A(f"v_min_u32 v{vPoll}, v{vPoll}, v{vPoll+1}")
    A(f"v_readfirstlane_b32 s6, v{vPoll}")
    A(f"s_add_u32 s{sSpin}, s{sSpin}, 1")
    A(f"s_cmp_gt_u32 s{sSpin}, {SPIN_MAX}")
    A("s_cbranch_scc1 L_A_w")
    A("s_cmp_ge_u32 s6, 16")
    A("s_cbranch_scc1 L_A_w")
    A("s_sleep 16")
    A("s_branch L_A_poll")
    A.label("L_A_w")
    A("s_barrier")
    stamp(A, 3, 0)
    p2_ids(A)
    A(f"s_mov_b32 s{sWoDone}, 0")
    A(f"v_mov_b32 v{vSigA}, {OOB}")
    A(f"v_mov_b32 v{vSigV}, 0")
    A("s_branch L_p2")


def kernel1(A):
    A(".p2align 8")
    A.label(NAME + "_kernel")
    A("s_cmp_ge_u32 s2, 256")
    A("s_cbranch_scc1 L_k1_exit")
    load_ptrs(A)
    A(f"v_and_b32 v{vLane}, 63, v0")
    A(f"v_lshrrev_b32 v{vT0}, 6, v0")
    A(f"v_readfirstlane_b32 s{sWave}, v{vT0}")
    A("s_and_b32 s3, s2, 7")
    A("s_lshr_b32 s4, s2, 3")
    A("s_lshr_b32 s5, s3, 2")
    A("s_and_b32 s6, s3, 3")
    A("s_mul_i32 s7, s6, 30")
    A("s_add_u32 s7, s7, s4")
    A(f"s_lshr_b32 s{sCG}, s7, 3")
    A(f"s_and_b32 s{sRB}, s7, 7")
    A("s_lshl_b32 s8, s6, 1")
    A("s_add_u32 s8, s8, s4")
    A("s_sub_u32 s8, s8, 30")
    A("s_cmp_lt_u32 s4, 30")
    A(f"s_cselect_b32 s{sCG}, s{sCG}, 15")
    A(f"s_cselect_b32 s{sRB}, s{sRB}, s8")
    A("s_lshl_b32 s5, s5, 3")
    A(f"s_add_u32 s{sRB}, s{sRB}, s5")
    A(f"s_sub_u32 s3, s{sRB}, 10")
    A(f"s_cmp_lt_u32 s{sRB}, 10")
    A(f"s_cselect_b32 s{sC0}, s{sRB}, s3")
    Q = OPT["ROTQ"]
    if Q == 2:
        A(f"s_and_b32 s{sC0}, s{sC0}, 0xfe")
    elif Q == 5:
        A(f"s_cmp_lt_u32 s{sC0}, 5")
        A(f"s_cselect_b32 s{sC0}, 0, 5")
    A("s_waitcnt lgkmcnt(0)")
    mk_srd(A, S_X, P_X, 2048 * 1280)
    mk_srd(A, S_WS, P_WS, WS_SIZE)
    mk_srd(A, S_DBG, P_DBG, 256)
    stamp(A, 0, 0)
    k1_stats_issue(A)
    A(f"s_cmp_eq_u32 s{sCG}, 15")
    A("s_cbranch_scc1 L_aux")
    A(f"v_lshrrev_b32 v{vT0}, 3, v{vLane}")
    A(f"v_lshrrev_b32 v{vT1}, 4, v{vLane}")
    A(f"v_and_b32 v{vT2}, 7, v{vLane}")
    A(f"v_xor_b32 v{vT1}, v{vT1}, v{vT2}")
    if OPT["NOSWZ"]: A(f"v_and_b32 v{vT1}, 7, v{vLane}")
    A(f"s_lshl_b32 s3, s{sRB}, 7")
    if OPT["SAME"]: A("s_mov_b32 s3, 0")
    A(f"s_and_b32 s4, s{sWave}, 3")
    A(f"s_lshl_b32 s{sXslot}, s4, 12")
    A(f"s_lshl_b32 s4, s4, 5")
    A("s_add_u32 s3, s3, s4")
    A(f"v_add_u32 v{vT0}, s3, v{vT0}")
    A(f"v_mul_u32_u24 v{vT0}, 1280, v{vT0}")
    A(f"v_lshl_add_u32 v{vXo}, v{vT1}, 4, v{vT0}")
    A(f"v_xor_b32 v{vT1}, 4, v{vT1}")
    A(f"v_lshl_add_u32 v{vXo+1}, v{vT1}, 4, v{vT0}")
    A(f"v_add_u32 v{vXo+1}, {8*1280}, v{vXo+1}")
    A(f"s_lshl_b32 s{sKX}, s{sC0}, 7")
    A(f"s_mov_b32 s{sKXn}, 0")
    A(f"s_cmp_ge_u32 s{sCG}, 13")
    A("s_cbranch_scc1 L_typeQ")
    A(f"s_cmp_ge_u32 s{sCG}, 9")
    A("s_cbranch_scc1 L_typeK")
    k1_gemm(A, "G")
    A.label("L_typeQ")
    k1_gemm(A, "Q")
    A.label("L_typeK")
    k1_gemm(A, "K")
    A.label("L_aux")
    k1_aux(A)
    phase2(A)
    A.label("L_k1_exit")
    A("s_endpgm")


sRB64, sC, sHo, sWo, sFl, sWoDone, sWoL, sWoG, sWoI, sHb, sHe, sWb, sWe = sKW, sKWn, sKX, sKXn, sWslot, sRslot, sXslot, sStepW, sCSit, sSpec, sWrapW, sC0, sRow
vL16 = 25


def p2_ids(A):
    A("s_and_b32 s3, s2, 7")
    A("s_lshr_b32 s4, s2, 3")
    A(f"s_and_b32 s{sC}, s4, 7")
    A("s_lshr_b32 s4, s4, 3")
    A("s_lshl_b32 s3, s3, 2")
    A(f"s_add_u32 s{sRB64}, s3, s4")
    A(f"v_lshlrev_b32 v{vL16}, 4, v{vLane}")


def wo_setup(A):
    A(f"s_mul_i32 s{sWoL}, s{sWave}, 40960")
    A(f"s_mul_i32 s6, s{sC}, 74")
    A(f"s_mul_i32 s7, s{sWave}, 5")
    A("s_add_u32 s6, s6, s7")
    A("s_add_u32 s6, s6, 54")
    A("s_mul_i32 s6, s6, 5120")
    A(f"s_add_u32 s{sWoG}, s6, {WS_W2}")
    A(f"s_and_b32 s{sWoI}, s{sRB64}, 3")
    A(f"s_mul_i32 s{sWoI}, s{sWoI}, {6*1024}")


def wo_dmas():
    return [f"s_add_u32 m0, s{sWoL}, s{sWoI}\n"
            f"s_add_u32 s9, s{sWoG}, s{sWoI}\n"
            f"buffer_load_dwordx4 v{vL16}, {srd(S_WS)}, s9 offen sc1 lds\n"
            f"s_add_u32 s{sWoI}, s{sWoI}, 1024\n"
            f"s_cmp_eq_u32 s{sWoI}, {25*1024}\n"
            f"s_cselect_b32 s{sWoI}, 0, s{sWoI}" for _ in range(25)]


def poll_flag(A, lab, addr_s, mask, target, vtmp):
    A(f"s_mov_b32 s{sSpin}, 0")
    A(f"v_mov_b32 v{vtmp+1}, 0")
    A.label(lab)
    A(f"buffer_load_dword v{vtmp}, v{vtmp+1}, {srd(S_WS)}, s{addr_s} offen sc1")
    A("s_waitcnt vmcnt(0)")
    A(f"v_readfirstlane_b32 s{sTmp3}, v{vtmp}")
    A(f"s_add_u32 s{sSpin}, s{sSpin}, 1")
    A(f"s_and_b32 s{sTmp3}, s{sTmp3}, {mask}")
    A(f"s_cmp_ge_u32 s{sTmp3}, {target}")
    A(f"s_cbranch_scc1 {lab}_ok")
    A(f"s_cmp_gt_u32 s{sSpin}, {SPIN_MAX}")
    A(f"s_cbranch_scc1 {lab}_ok")
    A("s_sleep 6")
    A(f"s_branch {lab}")
    A.label(lab + "_ok")


def phase2(A):
    global vL16
    S_OUT = S_T
    ACC = 8
    acc = lambda nt, mt: ACC + 4 * (nt * 4 + mt)
    A.label("L_p2")
    A(f"v_mov_b32 v5, v{vL16}")
    vL16 = 5
    mk_srd(A, S_OUT, P_OUT, 2048 * 1280)
    A(f"s_lshr_b32 s{sFl}, s{sRB64}, 1")
    A(f"s_lshl_b32 s{sFl}, s{sFl}, 8")
    A(f"s_add_u32 s{sFl}, s{sFl}, {WS_FL + FL_HC}")
    A.fence()
    A(f"s_cmp_ge_u32 s{sWave}, 4")
    A("s_cbranch_scc1 L2_ffn")

    def signal(n_younger):
        A(f"s_waitcnt vmcnt({n_younger}) lgkmcnt(0)")
        A("s_barrier")

    KVF = 8
    PQ = 124
    O = 104
    T = 204
    signal(0)
    A(f"s_cmp_lg_u32 s{sWave}, 0")
    A("s_cbranch_scc1 L2_nosig")
    A(f"buffer_atomic_add v{vSigV}, v{vSigA}, {srd(S_WS)}, 0 offen sc1")
    A.label("L2_nosig")
    stamp(A, 0, 1)
    A(f"s_cmp_eq_u32 s{sWoDone}, 1")
    A("s_cbranch_scc1 L2_wodone")
    wo_setup(A)
    for g in wo_dmas():
        A(g)
    A.label("L2_wodone")
    A(f"s_mul_i32 s4, s{sWave}, 40960")
    for i in range(4):
        A(f"v_mov_b32 v{T+i}, 0")
    A(f"s_add_u32 s8, s4, 39936")
    A(f"v_mov_b32 v{vT2}, s8")
    A(f"ds_write_b128 v{vT2}, {vr(T)}")
    iL, gL = T + 4, T + 5
    he = O
    hd = O + 10
    ab, zb, hz = T + 6, T + 7, T + 8
    A(f"v_and_b32 v{iL}, 15, v{vLane}")
    A(f"v_lshrrev_b32 v{gL}, 4, v{vLane}")
    for Tt in range(10):
        A(f"v_add_u32 v{he+Tt}, {16*Tt}, v{iL}")
        A(f"v_mul_u32_u24 v{he+Tt}, 205, v{he+Tt}")
        A(f"v_lshrrev_b32 v{he+Tt}, 12, v{he+Tt}")
    for blk in range(5):
        for h in range(2):
            r = hd + 2 * blk + h
            A(f"v_lshlrev_b32 v{r}, 3, v{gL}")
            A(f"v_add_u32 v{r}, {32*blk+4*h}, v{r}")
            A(f"v_mul_u32_u24 v{r}, 205, v{r}")
            A(f"v_lshrrev_b32 v{r}, 12, v{r}")
    A(f"s_add_u32 s8, s4, 25600")
    A(f"v_mul_u32_u24 v{ab}, 80, v{iL}")
    A(f"v_lshl_add_u32 v{ab}, v{gL}, 5, v{ab}")
    A(f"v_add_u32 v{ab}, s8, v{ab}")
    A(f"v_and_b32 v{hz}, 3, v{iL}")
    A(f"v_mul_u32_u24 v{zb}, 1600, v{hz}")
    A(f"v_lshl_add_u32 v{zb}, v{gL}, 5, v{zb}")
    A(f"v_add_u32 v{zb}, s8, v{zb}")
    NUM = {0: [0], 1: [0, 1], 2: [0, 1], 3: [1, 2], 4: [1, 2], 5: [2, 3], 6: [2, 3], 7: [3, 4], 8: [3, 4], 9: [4]}
    fidx = {}
    n = 0
    for ch in range(2):
        A(f"v_add_u32 v{T+9}, {4*ch}, v{hz}")
        for blk in ([0, 1, 2] if ch == 0 else [2, 3, 4]):
            fidx[("z", ch, blk)] = KVF + 4 * n
            for h in range(2):
                a = KVF + 4 * n + 2 * h
                A(f"v_cmp_eq_u32 vcc, v{T+9}, v{hd+2*blk+h}")
                A(f"v_add_u32 v{a}, {6400*ch+1600+128*blk+16*h}, v{zb}")
                A(f"v_cndmask_b32 v{a}, v{vT2}, v{a}, vcc")
            n += 1
    for Tt in range(10):
        for blk in NUM[Tt]:
            fidx[(Tt, blk)] = KVF + 4 * n
            for h in range(2):
                a = KVF + 4 * n + 2 * h
                A(f"v_cmp_eq_u32 vcc, v{he+Tt}, v{hd+2*blk+h}")
                A(f"v_add_u32 v{a}, {1280*Tt+128*blk+16*h}, v{ab}")
                A(f"v_cndmask_b32 v{a}, v{vT2}, v{a}, vcc")
            n += 1
    assert n == 24
    sM = 84
    for k in range(3):
        A(f"v_cmp_lt_u32 s[{sM+2*k}:{sM+2*k+1}], {k}, v{gL}")
    stamp(A, 7, 1)
    poll_flag(A, "L2_pq", sFl, 0xff00, 0x200, vT0)
    stamp(A, 8, 1)
    A(f"s_mul_i32 s6, s{sRB64}, 20")
    A(f"s_mul_i32 s7, s{sWave}, 5")
    A("s_add_u32 s6, s6, s7")
    A("s_lshl_b32 s6, s6, 12")
    A(f"s_add_u32 s6, s6, {WS_PQ}")
    for blk in range(5):
        for mt in range(4):
            A(f"buffer_load_dwordx4 {vr(PQ+20*mt+4*blk)}, v{vL16}, {srd(S_WS)}, s6 offen offset:{mt*1024} sc1")
        A(f"s_add_u32 s6, s6, 4096")
    A(f"s_lshl_b32 s6, s{sWave}, 3")
    A("s_and_b32 s7, s2, 7")
    A("s_add_u32 s6, s6, s7")
    A("s_lshl_b32 s6, s6, 8")
    A(f"s_add_u32 s6, s6, {WS_FL + FL_KV}")
    poll_flag(A, "L2_kv", 6, 0xff, 16, vT0)
    stamp(A, 3, 1)
    A(f"s_mul_i32 s3, s{sWave}, 13440")
    A(f"s_add_u32 s3, s3, {WS_KVA}")
    for i in range(14):
        if i % 4 == 0:
            A(f"s_add_u32 m0, s8, {i*1024}")
            A(f"s_add_u32 s5, s3, {i*1024}")
        A(f"buffer_load_dwordx4 v{vL16}, {srd(S_WS)}, s5 offen offset:{(i%4)*1024} sc1 lds")
    A("s_waitcnt vmcnt(0) lgkmcnt(0)")
    stamp(A, 9, 1)
    NB = 8
    tb = lambda k: T + 12 + 4 * (k % NB)
    for k in range(48 + NB - 1):
        if k < 48:
            A(f"ds_read_b128 {vr(tb(k))}, v{KVF+2*k}")
        j = k - (NB - 1)
        if j >= 0:
            A(f"s_waitcnt lgkmcnt({min(NB-1, 47-j)})")
            A(f"v_cvt_pk_bf16_f32 v{KVF+2*j}, v{tb(j)}, v{tb(j)+1}")
            A(f"v_cvt_pk_bf16_f32 v{KVF+2*j+1}, v{tb(j)+2}, v{tb(j)+3}")
    stamp(A, 10, 1)
    den = T
    nm = T + 8
    sel = T + 24
    for mt in range(4):
        pq = lambda blk: vr(PQ + 20 * mt + 4 * blk)
        for ch in range(2):
            for j, blk in enumerate([0, 1, 2] if ch == 0 else [2, 3, 4]):
                d = vr(den + 4 * ch)
                A(f"v_mfma_f32_16x16x32_bf16 {d}, {vr(fidx[('z', ch, blk)])}, {pq(blk)}, {d if j else 0}")

        def num_mf(Tt):
            d = vr(nm + 4 * (Tt % 4))
            for j, blk in enumerate(NUM[Tt]):
                A(f"v_mfma_f32_16x16x32_bf16 {d}, {vr(fidx[(Tt, blk)])}, {pq(blk)}, {d if j else 0}")
        num_mf(0)
        num_mf(1)
        num_mf(2)
        for i in range(8):
            A(f"v_add_f32 v{den+i}, {f32(1e-6)}, v{den+i}")
        for i in range(8):
            A(f"v_rcp_f32 v{den+i}, v{den+i}")
        for Tt in range(10):
            if Tt + 3 < 10:
                num_mf(Tt + 3)
            lo, hi = (4 * Tt) // 5, (4 * Tt + 3) // 5
            if lo == hi:
                sl = den + lo
            else:
                thr = 5 * hi - 4 * Tt
                sl = sel
                A(f"v_cndmask_b32 v{sl}, v{den+lo}, v{den+hi}, s[{sM+2*(thr-1)}:{sM+2*(thr-1)+1}]")
            d = nm + 4 * (Tt % 4)
            for i in range(4):
                A(f"v_mul_f32 v{d+i}, v{d+i}, v{sl}")
            ob = O + 20 * mt + 4 * (Tt // 2) + 2 * (Tt % 2)
            A(f"v_cvt_pk_bf16_f32 v{ob}, v{d}, v{d+1}")
            A(f"v_cvt_pk_bf16_f32 v{ob+1}, v{d+2}, v{d+3}")
    stamp(A, 11, 1)
    WF = 184
    A(f"v_add_u32 v{vT0}, s4, v{vL16}")
    A.fence()

    def rd_wo(u):
        for nt in range(5):
            A(f"ds_read_b128 {vr(WF+20*(u%2)+4*nt)}, v{vT0} offset:{(u*5+nt)*1024}")
    rd_wo(0)
    for u in range(5):
        if u + 1 < 5:
            rd_wo(u + 1)
        A(f"s_waitcnt lgkmcnt({5 if u < 4 else 0})")
        for nt in range(5):
            for mt in range(4):
                d = vr(acc(nt, mt))
                A(f"v_mfma_f32_16x16x32_bf16 {d}, {vr(WF+20*(u%2)+4*nt)}, {vr(O+20*mt+4*u)}, {d if u else 0}")
    A("s_branch L2_reduce")

    A.label("L2_ffn")
    NK, WD, HD = 14, 6, 3
    WP = 88
    HP = 208
    A(f"s_sub_u32 s3, s{sWave}, 4")
    A("s_mul_i32 s4, s3, 14")
    A("s_cmp_eq_u32 s3, 3")
    A("s_cselect_b32 s5, 1, 0")
    A("s_sub_u32 s4, s4, s5")
    A("s_cmp_ge_u32 s3, 2")
    A("s_cselect_b32 s5, 13, 14")
    A(f"s_cselect_b32 s9, {OOB}, 0")
    A(f"s_and_b32 s6, s{sRB64}, 3")
    A("s_lshl_b32 s6, s6, 1")
    A(f"s_add_u32 s6, s6, s{sC}")
    A("s_mul_i32 s6, s6, 7")
    A("s_lshr_b32 s6, s6, 2")
    A("s_sub_u32 s7, s6, s5")
    A("s_cmp_ge_u32 s6, s5")
    A("s_cselect_b32 s6, s7, s6")
    if not OPT["P2ROT"]:
        A("s_mov_b32 s6, 0")
    A(f"s_mul_i32 s{sHb}, s{sRB64}, 54")
    A(f"s_add_u32 s{sHb}, s{sHb}, s4")
    A(f"s_lshl_b32 s{sHb}, s{sHb}, 12")
    A("s_lshl_b32 s7, s5, 12")
    A(f"s_add_u32 s{sHe}, s{sHb}, s7")
    A("s_lshl_b32 s7, s6, 12")
    A(f"s_add_u32 s{sHo}, s{sHb}, s7")
    A(f"s_mul_i32 s{sWb}, s{sC}, 74")
    A(f"s_add_u32 s{sWb}, s{sWb}, s4")
    A(f"s_mul_i32 s{sWb}, s{sWb}, 5120")
    A(f"s_add_u32 s{sWb}, s{sWb}, {WS_W2}")
    A("s_mul_i32 s7, s5, 5120")
    A(f"s_add_u32 s{sWe}, s{sWb}, s7")
    A("s_mul_i32 s7, s6, 5120")
    A(f"s_add_u32 s{sWo}, s{sWb}, s7")
    q = []

    def ldW(j):
        b = WP + 20 * (j % WD)
        if j == NK - 1:
            A(f"s_add_u32 s{sWo}, s{sWo}, s9")
        A(f"s_add_u32 s3, s{sWo}, 4096")
        for nt in range(4):
            A(f"buffer_load_dwordx4 {vr(b+4*nt)}, v{vL16}, {srd(S_WS)}, s{sWo} offen offset:{nt*1024} sc1")
        A(f"buffer_load_dwordx4 {vr(b+16)}, v{vL16}, {srd(S_WS)}, s3 offen sc1")
        A(f"s_add_u32 s{sWo}, s{sWo}, 5120")
        A(f"s_cmp_eq_u32 s{sWo}, s{sWe}")
        A(f"s_cselect_b32 s{sWo}, s{sWb}, s{sWo}")
        q.extend([("W", j)] * 5)

    def ldH(j):
        b = HP + 16 * (j % HD)
        if j == NK - 1:
            A(f"s_add_u32 s{sHo}, s{sHo}, s9")
        for mt in range(4):
            A(f"buffer_load_dwordx4 {vr(b+4*mt)}, v{vL16}, {srd(S_WS)}, s{sHo} offen offset:{mt*1024} sc1")
        A(f"s_add_u32 s{sHo}, s{sHo}, 4096")
        A(f"s_cmp_eq_u32 s{sHo}, s{sHe}")
        A(f"s_cselect_b32 s{sHo}, s{sHb}, s{sHo}")
        q.extend([("H", j)] * 4)
    ldW(0)
    signal(len(q))
    for j in range(1, WD):
        ldW(j)
    stamp(A, 4, 1, wave=4, vt=vT0)
    poll_flag(A, "L2_h", sFl, 0xff, 9, vT0)
    stamp(A, 5, 1, wave=4, vt=vT0)
    q.clear()
    for j in range(HD):
        ldH(j)
    for j in range(NK):
        last = max(i for i, e in enumerate(q) if e[1] == j)
        A(f"s_waitcnt vmcnt({len(q)-1-last})")
        bw, bh = WP + 20 * (j % WD), HP + 16 * (j % HD)
        for nt in range(5):
            for mt in range(4):
                d = vr(acc(nt, mt))
                A(f"v_mfma_f32_16x16x32_bf16 {d}, {vr(bw+4*nt)}, {vr(bh+4*mt)}, {d if j else 0}")
        if j + HD < NK:
            ldH(j + HD)
        if j + WD < NK:
            ldW(j + WD)

    A.label("L2_reduce")
    stamp(A, 1, 1)
    stamp(A, 6, 1, wave=4, vt=vT0)
    XR = 88
    OA = 96
    A.fence()
    for j in range(3):
        A(f"s_add_u32 s3, s{sWave}, {8*j}")
        A(f"s_lshr_b32 s4, s3, 2")
        A(f"s_and_b32 s5, s3, 3")
        A(f"s_lshl_b32 s6, s{sRB64}, 6")
        A(f"s_lshl_b32 s5, s5, 4")
        A("s_add_u32 s6, s6, s5")
        A("s_mul_i32 s6, s6, 1280")
        A(f"s_mul_i32 s7, s{sC}, 160")
        A("s_add_u32 s6, s6, s7")
        A("s_lshl_b32 s4, s4, 5")
        A("s_add_u32 s6, s6, s4")
        A("s_cmp_lt_u32 s3, 20")
        A(f"s_cselect_b32 s6, s6, {OOB}")
        A(f"v_and_b32 v{vT1}, 15, v{vLane}")
        A(f"v_mul_u32_u24 v{vT1}, 1280, v{vT1}")
        A(f"v_lshrrev_b32 v{vT2}, 4, v{vLane}")
        A(f"v_lshl_add_u32 v{vT1}, v{vT2}, 3, v{vT1}")
        A(f"v_add_u32 v{OA+j}, s6, v{vT1}")
        A(f"buffer_load_dwordx2 {vr(XR+2*j, 2)}, v{OA+j}, {srd(S_X)}, 0 offen")
    A("s_waitcnt lgkmcnt(0)")
    A("s_barrier")
    stamp(A, 12, 1)
    A(f"s_mul_i32 s3, s{sWave}, 20480")
    A(f"v_add_u32 v{vT0}, s3, v{vL16}")
    for t in range(20):
        A(f"ds_write_b128 v{vT0}, {vr(ACC+4*t)} offset:{t*1024}")
    A("s_waitcnt lgkmcnt(0)")
    A("s_barrier")
    stamp(A, 13, 1)
    R = 100
    for j in range(3):
        if j == 2:
            A(f"s_cmp_ge_u32 s{sWave}, 4")
            A("s_cbranch_scc1 L2_done")
        A(f"s_lshl_b32 s3, s{sWave}, 10")
        A(f"s_add_u32 s3, s3, {j*8192}")
        A(f"v_add_u32 v{vT0}, s3, v{vL16}")
        A(f"v_add_u32 v{vT1}, {4*20480}, v{vT0}")
        for w in range(8):
            A(f"ds_read_b128 {vr(R+4*w)}, v{vT0 if w < 4 else vT1} offset:{(w%4)*20480}")
        A("s_waitcnt lgkmcnt(0)")
        for w in range(1, 8):
            for i in range(4):
                A(f"v_add_f32 v{R+i}, v{R+i}, v{R+4*w+i}")
        A("s_waitcnt vmcnt(2)")
        x0, x1 = XR + 2 * j, XR + 2 * j + 1
        A(f"v_lshlrev_b32 v{R+4}, 16, v{x0}")
        A(f"v_and_b32 v{R+5}, 0xffff0000, v{x0}")
        A(f"v_lshlrev_b32 v{R+6}, 16, v{x1}")
        A(f"v_and_b32 v{R+7}, 0xffff0000, v{x1}")
        for i in range(4):
            A(f"v_add_f32 v{R+i}, v{R+i}, v{R+4+i}")
        A(f"v_cvt_pk_bf16_f32 v{x0}, v{R}, v{R+1}")
        A(f"v_cvt_pk_bf16_f32 v{x1}, v{R+2}, v{R+3}")
        A(f"buffer_store_dwordx2 {vr(x0, 2)}, v{OA+j}, {srd(S_OUT)}, 0 offen")
    A.label("L2_done")
    stamp(A, 2, 1)


def descriptor(name, vgpr=256):
    return f""".amdhsa_kernel {name}
  .amdhsa_next_free_vgpr {vgpr}
  .amdhsa_next_free_sgpr 102
  .amdhsa_accum_offset {vgpr}
  .amdhsa_group_segment_fixed_size 0
  .amdhsa_kernarg_size 80
  .amdhsa_user_sgpr_count 2
  .amdhsa_user_sgpr_kernarg_segment_ptr 1
  .amdhsa_system_sgpr_workgroup_id_x 1
.end_amdhsa_kernel
"""


def main():
    A = Asm()
    kernel1(A)
    K = NAME + "_kernel"
    head = f"""; LN + linear attention + GEGLU FFN, one persistent launch (generated by dev/gen.py)
; @launch grid=(256,1,1) block=(512,1,1) lds={LDS_TOTAL}
.amdgcn_target "amdgcn-amd-amdhsa--gfx950"
.text
.globl {K}
.type {K},@function
"""
    tail = '.section .rodata,"a"\n.p2align 6\n' + descriptor(K)
    open(sys.argv[1], "w").write(head + A.render() + tail)


main()
```

```python
import sys, struct, math
from asmlib import Asm, interleave

NAME = "parallel_sum__linear_attn_block__geglu_ffn__prompt"

OPT = dict(ROTQ=1, STAMP=0, NODMA=0, SAME=0, NOSWZ=0, NORD=0, P2ROT=1, WARM=1, PLAIN=0, BYTEFLAG=0, NBUP=6, SW=0, P2ONLY=0, P2SAME=0, NOATT=0, NOMF=0, FPRIO=2, NPRE=2, CGPERM=1, OUTSC=0)
for a in sys.argv[2:]:
    k, v = a.split("=")
    OPT[k] = int(v)

HSC = '' if OPT['PLAIN'] else ' sc1'
WS_H = 0x000000
WS_PQ = 0x700000
WS_W2 = 0xA00000
WS_ST = 0xD00000
WS_CS = 0xD10000
WS_KVA = 0xD80000
WS_FL = 0xD90000
FL_HC = 0
FL_KV = 16 * 256
WS_STAMP = 0xF00000
WS_SIZE = 0x1000000
OOB = 0x40000000


def f32(x):
    return "0x%08x" % struct.unpack("<I", struct.pack("<f", x))[0]


LOG2E = 1.4426950408889634
GC1 = -2.0 * math.sqrt(2.0 / math.pi) * LOG2E
GC2 = GC1 * 0.044715

P_X, P_WQKV, P_WO, P_BX, P_G, P_U, P_D, P_OUT, P_DBG, P_WS = 16, 18, 20, 22, 24, 26, 28, 30, 32, 34
S_X, S_W, S_WS, S_DBG, S_T = 36, 40, 44, 48, 52


def srd(b):
    return f"s[{b}:{b+3}]"


def vr(b, n=4):
    return f"v[{b}:{b+n-1}]"


def mk_srd(A, s, p, nbytes):
    A(f"s_mov_b32 s{s}, s{p}")
    A(f"s_and_b32 s{s+1}, s{p+1}, 0xffff")
    A(f"s_mov_b32 s{s+2}, {nbytes}")
    A(f"s_mov_b32 s{s+3}, 0x20000")


def load_ptrs(A):
    A("s_load_dwordx16 s[16:31], s[0:1], 0")
    A("s_load_dwordx4 s[32:35], s[0:1], 64")


def wave_allreduce_add(A, v, t, s0):
    A(f"v_add_f32_dpp v{v}, v{v}, v{v} quad_perm:[1,0,3,2] row_mask:0xf bank_mask:0xf")
    A(f"v_add_f32_dpp v{v}, v{v}, v{v} quad_perm:[2,3,0,1] row_mask:0xf bank_mask:0xf")
    A(f"v_add_f32_dpp v{v}, v{v}, v{v} row_half_mirror row_mask:0xf bank_mask:0xf")
    A(f"v_add_f32_dpp v{v}, v{v}, v{v} row_mirror row_mask:0xf bank_mask:0xf")
    for i in range(4):
        A(f"v_readlane_b32 s{s0+i}, v{v}, {16*i}")
    A(f"v_mov_b32 v{v}, s{s0}")
    A(f"v_mov_b32 v{t}, s{s0+2}")
    A(f"v_add_f32 v{v}, s{s0+1}, v{v}")
    A(f"v_add_f32 v{t}, s{s0+3}, v{t}")
    A(f"v_add_f32 v{v}, v{v}, v{t}")


def stamp(A, idx, kern, dyn=None, clk=False, wave=0, vt=254):
    if not OPT["STAMP"]:
        return
    lab = f"L_st_{kern}_{idx}_{len(A.lines)}"
    A(f"s_cmp_lg_u32 s{sWave}, {wave}")
    A(f"s_cbranch_scc1 {lab}")
    A("s_memtime s[96:97]" if clk else "s_memrealtime s[96:97]")
    A("s_waitcnt lgkmcnt(0)")
    A(f"s_lshl_b32 s98, s2, 6")
    A(f"s_add_u32 s98, s98, {WS_STAMP + kern*0x8000 + idx*4}")
    if dyn is not None:
        A(f"s_lshl_b32 s99, s{dyn}, 2")
        A("s_add_u32 s98, s98, s99")
    A(f"v_mov_b32 v{vt}, s96")
    A(f"v_mov_b32 v{vt+1}, 0")
    A(f"buffer_store_dword v{vt}, v{vt+1}, {srd(S_WS)}, s98 offen")
    A.label(lab)


sWave, sRB, sCG, sIt, sKW, sKWn, sKX, sKXn, sWslot, sRslot, sXslot, sStepW, sCSit, sSpec, sTmp, sTmp2, sMW, sNW, sWrapW, sTmp3, sC0, sRow, sSpin, sOdd, sPub, sUw, sUl = range(56, 83)
X_LDS = 0
W_LDS = 32768
W_SLOT = 24576
MISC_LDS = W_LDS + 5 * W_SLOT
LDS_TOTAL = 163840

vLane, vT0, vT1, vT2, vT3 = 1, 2, 3, 4, 5
vSigA, vSigV = 6, 7
vXo = 6
vWo = 8
vXa = 11
vWb = 15
vWa = 20
vPa = 25
SPIN_MAX = 0x100000
vSel = 26
vPoll = 30
vCSA = 32
vCSP = 32
vSt = 52
KST = lambda j: (44 + 4 * j) if j < 3 else (232 + 4 * (j - 3))
vBUF = 56
vACC = 152


KVT = [[(0, 0), (0, 1), (0, 2), (1, 0), (1, 1)], [(0, 3), (0, 4), (1, 2), (1, 3), (1, 4)]]


def k1_gemm(A, typ):
    G = typ == "G"
    MT = 2 if G else 1
    NT = 3 if G else 5
    NW_ = 6 if G else 5
    pitch = 3456 if G else 3840
    XB = lambda P, mt, kk: vBUF + 48 * P + 4 * (mt * 2 + kk)
    WBf = lambda P, a, kk: vBUF + 48 * P + 4 * MT * 2 + 4 * (a * 2 + kk)
    acc = lambda mt, a: vACC + 16 * (mt * NT + a)
    L = lambda s: f"L_{typ}_{s}"

    if G:
        A(f"s_lshr_b32 s{sMW}, s{sWave}, 2")
        A(f"s_and_b32 s{sNW}, s{sWave}, 3")
        mk_srd(A, S_W, P_G, 640 * 3456)
        mk_srd(A, S_T, P_U, 640 * 3456)
    else:
        A(f"s_lshr_b32 s{sMW}, s{sWave}, 1")
        A(f"s_and_b32 s{sNW}, s{sWave}, 1")
        mk_srd(A, S_W, P_WQKV, 640 * 3840)
    A(f"s_and_b32 s{sTmp2}, s{sWave}, 3")
    A(f"v_lshrrev_b32 v{vT0}, 3, v{vLane}")
    A(f"s_lshl_b32 s{sTmp3}, s{sTmp2}, 3")
    A(f"v_add_u32 v{vT0}, s{sTmp3}, v{vT0}")
    A(f"v_mul_u32_u24 v{vT0}, {pitch}, v{vT0}")
    A(f"v_and_b32 v{vT1}, 7, v{vLane}")
    A(f"v_lshrrev_b32 v{vT2}, 2, v{vLane}")
    A(f"v_and_b32 v{vT2}, 4, v{vT2}")
    A(f"v_xor_b32 v{vT1}, v{vT1}, v{vT2}")
    if G:
        A(f"s_mul_i32 s{sTmp3}, s{sCG}, {0 if OPT['SAME'] else 384}")
        A(f"v_add_u32 v{vT0}, s{sTmp3}, v{vT0}")
        A(f"v_lshl_add_u32 v{vWo}, v{vT1}, 4, v{vT0}")
        A(f"v_xor_b32 v{vT1}, 2, v{vT1}")
        A(f"v_lshl_add_u32 v{vWo+1}, v{vT1}, 4, v{vT0}")
        chunks = [(S_W, vWo, 0), (S_W, vWo, 128), (S_W, vWo, 256), (S_T, vWo + 1, 0), (S_T, vWo + 1, 128), (S_T, vWo + 1, 256)]
    elif typ == "Q":
        A(f"s_sub_u32 s{sTmp3}, s{sCG}, 13")
        A(f"s_mul_i32 s{sTmp3}, s{sTmp3}, 640")
        A(f"v_add_u32 v{vT0}, s{sTmp3}, v{vT0}")
        A(f"v_lshl_add_u32 v{vWo}, v{vT1}, 4, v{vT0}")
        chunks = [(S_W, vWo, 128 * i) for i in range(5)]
    else:
        A(f"s_sub_u32 s4, s{sCG}, 9")
        A(f"s_and_b32 s{sOdd}, s4, 1")
        A(f"s_mul_i32 s6, s4, 320")
        A(f"s_add_u32 s6, s6, 1280")
        A(f"s_lshl_b32 s7, s{sOdd}, 6")
        A(f"s_add_u32 s7, s7, s6")
        A(f"s_cmp_eq_u32 s{sOdd}, 0")
        A(f"s_cselect_b32 s8, 256, 0")
        A(f"s_add_u32 s8, s8, s6")
        A(f"v_lshl_add_u32 v{vT2}, v{vT1}, 4, v{vT0}")
        A(f"v_add_u32 v{vWo}, s7, v{vT2}")
        A(f"v_and_b32 v{vT3}, 3, v{vT1}")
        A(f"v_lshl_add_u32 v{vT3}, v{vT3}, 4, v{vT0}")
        A(f"v_lshrrev_b32 v{vT1}, 2, v{vT1}")
        A(f"v_mul_u32_u24 v{vT1}, 1280, v{vT1}")
        A(f"v_add3_u32 v{vWo+1}, v{vT3}, v{vT1}, s8")
        chunks = [(S_W, vWo, 0), (S_W, vWo, 128), (S_W, vWo, 1280), (S_W, vWo, 1408), (S_W, vWo + 1, 0)]
    A(f"s_lshr_b32 s{sTmp}, s{sWave}, 2")
    A(f"s_lshl_b32 s{sTmp2}, s{sTmp2}, 10")
    A(f"s_add_u32 s{sWrapW}, s{sTmp2}, {W_LDS + 5*W_SLOT}")
    A(f"s_mul_i32 s{sWslot}, s{sTmp}, {W_SLOT}")
    A(f"s_add_u32 s{sWslot}, s{sWslot}, s{sTmp2}")
    A(f"s_add_u32 s{sWslot}, s{sWslot}, {W_LDS}")
    A(f"s_mul_i32 s{sKW}, s{sC0}, {64*pitch}")
    A(f"s_mul_i32 s{sTmp}, s{sTmp}, {32*pitch}")
    A(f"s_add_u32 s{sKW}, s{sKW}, s{sTmp}")
    A(f"s_mov_b32 s{sKWn}, 0")

    def dmaW():
        out = []
        for i, (sr, vo, imm) in enumerate(chunks):
            out.append(f"s_add_u32 m0, s{sWslot}, {i*4096 - imm}\n" +
                       "s_nop 0\n" +
                       f"buffer_load_dwordx4 v{vo}, {srd(sr)}, s{sKW} offen offset:{imm} lds")
        out.append(f"s_add_u32 s{sWslot}, s{sWslot}, {2*W_SLOT}\n"
                   f"s_cmp_ge_u32 s{sWslot}, s{sWrapW}\n"
                   f"s_cselect_b32 s{sTmp}, {5*W_SLOT}, 0\n"
                   f"s_sub_u32 s{sWslot}, s{sWslot}, s{sTmp}\n"
                   f"s_add_u32 s{sKW}, s{sKW}, {64*pitch}\n"
                   f"s_cmp_ge_u32 s{sKW}, {640*pitch}\n"
                   f"s_cselect_b32 s{sTmp}, {640*pitch}, 0\n"
                   f"s_sub_u32 s{sKW}, s{sKW}, s{sTmp}")
        return out

    def dmaX():
        out = []
        for i in range(4):
            out.append(f"s_add_u32 m0, s{sXslot}, {i*1024}\n" +
                       f"s_add_u32 s{sTmp}, s{sKX}, {16*1280}\n" +
                       f"buffer_load_dwordx4 v{vXo+i%2}, {srd(S_X)}, s{sKX if i < 2 else sTmp} offen lds")
        out.append(f"s_xor_b32 s{sXslot}, s{sXslot}, 16384\n"
                   f"s_add_u32 s{sKX}, s{sKX}, 128\n"
                   f"s_cmp_eq_u32 s{sKX}, 1280\n"
                   f"s_cselect_b32 s{sKX}, 0, s{sKX}")
        return out

    A(f"s_cmp_lt_u32 s{sWave}, 4")
    A(f"s_cbranch_scc1 {L('p1')}")
    for g in dmaX():
        A(g)
    A(f"s_branch {L('p2')}")
    A.label(L("p1"))
    for g in dmaW():
        A(g)
    A.label(L("p2"))

    if OPT["STAMP"] == 3:
        stamp(A, 4, 0, wave=OPT["SW"])
    A(f"v_and_b32 v{vT0}, 31, v{vLane}")
    A(f"v_lshrrev_b32 v{vT1}, 5, v{vLane}")
    A(f"v_bfe_u32 v{vT2}, v{vLane}, 1, 3")
    A(f"v_xor_b32 v{vT1}, v{vT1}, v{vT2}")
    A(f"s_lshl_b32 s{sTmp}, s{sMW}, {13 if G else 12}")
    A(f"v_lshl_add_u32 v{vT0}, v{vT0}, 7, s{sTmp}")
    for kap in range(2):
        for kk in range(2):
            A(f"v_xor_b32 v{vT2}, {4*kap+2*kk}, v{vT1}")
            A(f"v_lshl_add_u32 v{vXa+2*kap+kk}, v{vT2}, 4, v{vT0}")
    A(f"v_lshrrev_b32 v{vT0}, 5, v{vLane}")
    A(f"v_lshlrev_b32 v{vT0}, 10, v{vT0}")
    A(f"v_bfe_u32 v{vT1}, v{vLane}, 2, 2")
    A(f"v_lshl_add_u32 v{vT0}, v{vT1}, 7, v{vT0}")
    A(f"v_and_b32 v{vT2}, 3, v{vLane}")
    if typ != "K":
        A(f"v_lshlrev_b32 v{vT3}, 1, v{vT2}")
        A(f"v_lshrrev_b32 v{vT2}, 1, v{vT2}")
        A(f"v_and_b32 v{vT3}, 2, v{vT3}")
        A(f"v_or_b32 v{vT2}, v{vT2}, v{vT3}")
    A(f"v_lshl_add_u32 v{vT0}, v{vT2}, 3, v{vT0}")
    A(f"v_and_b32 v{vT1}, 2, v{vT1}")
    A(f"v_bfe_u32 v{vT2}, v{vLane}, 4, 1")
    A(f"v_xor_b32 v{vT1}, v{vT1}, v{vT2}")
    if G:
        A(f"v_mul_u32_u24 v{vT2}, {3*4096}, v{vT2}")
        A(f"v_add_u32 v{vT0}, v{vT0}, v{vT2}")
        for a in range(3):
            A(f"s_mul_i32 s{sTmp}, s{sNW}, 3")
            A(f"s_add_u32 s{sTmp}, s{sTmp}, {a}")
            A(f"s_lshr_b32 s{sTmp2}, s{sTmp}, 2")
            A(f"s_lshl_b32 s{sTmp2}, s{sTmp2}, 12")
            A(f"s_and_b32 s{sTmp}, s{sTmp}, 3")
            A(f"v_xor_b32 v{vT2}, s{sTmp}, v{vT1}")
            A(f"v_lshl_add_u32 v{vT2}, v{vT2}, 5, v{vT0}")
            A(f"v_add_u32 v{vWb+a}, s{sTmp2}, v{vT2}")
    else:
        for a in range(5):
            if typ == "Q":
                A(f"s_mul_i32 s{sTmp}, s{sNW}, 5")
                A(f"s_add_u32 s{sTmp}, s{sTmp}, {a}")
            else:
                def hs(m, t, odd):
                    if odd:
                        return 8 + m if t == 0 else 4 * m + t - 1
                    return 8 + m if t == 4 else 4 * m + t
                tab = 0
                for nw in range(2):
                    m, t = KVT[nw][a]
                    for odd in range(2):
                        tab |= hs(m, t, odd) << (4 * (2 * nw + odd))
                A(f"s_lshl_b32 s{sTmp}, s{sNW}, 1")
                A(f"s_add_u32 s{sTmp}, s{sTmp}, s{sOdd}")
                A(f"s_lshl_b32 s{sTmp}, s{sTmp}, 2")
                A(f"s_lshr_b32 s{sTmp}, {tab}, s{sTmp}")
                A(f"s_and_b32 s{sTmp}, s{sTmp}, 15")
            A(f"s_lshr_b32 s{sTmp2}, s{sTmp}, 1")
            A(f"s_lshl_b32 s{sTmp2}, s{sTmp2}, 12")
            A(f"s_and_b32 s{sTmp}, s{sTmp}, 1")
            A(f"s_lshl_b32 s{sTmp}, s{sTmp}, 1")
            A(f"v_xor_b32 v{vT2}, s{sTmp}, v{vT1}")
            A(f"v_lshl_add_u32 v{vT2}, v{vT2}, 5, v{vT0}")
            A(f"v_add_u32 v{vWb+a}, s{sTmp2}, v{vT2}")
    A(f"s_mov_b32 s{sRslot}, {W_LDS}")
    poll_addr(A)
    A(f"v_and_b32 v{vT0}, 15, v{vLane}")
    A(f"v_bfe_u32 v{vT1}, v{vLane}, 4, 1")
    A(f"v_cmp_eq_u32 vcc, v{vT0}, v{vT1}")
    A(f"v_mov_b32 v{vT2}, 0x3f803f80")
    A(f"v_cndmask_b32 v{vSel}, 0, v{vT2}, vcc")
    for i in range(1, 4):
        A(f"v_mov_b32 v{vSel+i}, v{vSel}")
    for i in range(4 * NT):
        A(f"v_mov_b32 v{vCSA+i}, 0")
    for i in range(16 * MT * NT):
        A(f"v_mov_b32 v{vACC+i}, 0")
    A(f"s_sub_u32 s{sCSit}, s{sRB}, s{sC0}")
    A(f"s_add_u32 s{sTmp}, s{sCSit}, 2")
    A(f"s_cmp_lt_u32 s{sRB}, 10")
    A(f"s_cselect_b32 s{sPub}, s{sTmp}, 2")
    A(f"s_cselect_b32 s{sCSit}, s{sCSit}, 99")
    A(f"s_cmp_eq_u32 s{sMW}, 0")
    A(f"s_cselect_b32 s{sCSit}, s{sCSit}, 99")
    A(f"s_lshl_b32 s{sTmp}, 3, s{sPub}")
    A(f"s_cmp_eq_u32 s{sWave}, 0")
    A(f"s_cselect_b32 s{sSpec}, s{sTmp}, 0")
    A(f"s_cmp_eq_u32 s{sWave}, 3")
    A(f"s_cselect_b32 s{sTmp}, 0x60, 0")
    A(f"s_or_b32 s{sSpec}, s{sSpec}, s{sTmp}")
    A(f"s_or_b32 s{sSpec}, s{sSpec}, 0x380")
    A(f"s_mov_b32 s{sIt}, 0")
    A(f"s_mov_b32 s{sSpin}, 0")

    def reads(P, kap):
        pre = [f"v_add_u32 v{vWa+a}, s{sRslot}, v{vWb+a}" for a in range(NT)]
        post = [f"s_add_u32 s{sRslot}, s{sRslot}, {W_SLOT}\n"
                f"s_cmp_eq_u32 s{sRslot}, {W_LDS+5*W_SLOT}\n"
                f"s_cselect_b32 s{sRslot}, {W_LDS}, s{sRslot}"]
        out = []
        for kk in range(2):
            for mt in range(MT):
                out.append(f"ds_read_b128 {vr(XB(P, mt, kk))}, v{vXa+2*kap+kk} offset:{mt*4096}")
            for a in range(NT):
                for rho in range(2):
                    out.append(f"ds_read_b64_tr_b16 {vr(WBf(P, a, kk)+2*rho, 2)}, v{vWa+a} offset:{kk*2048+rho*512}")
        if OPT["NORD"]:
            out = []
        return pre, out, post

    def mfmas(P):
        out = []
        for kk in range(2):
            for a in range(NT):
                for mt in range(MT):
                    x, w, d = vr(XB(P, mt, kk)), vr(WBf(P, a, kk)), vr(acc(mt, a), 16)
                    if typ == "K":
                        out.append(f"v_mfma_f32_32x32x16_bf16 {d}, {x}, {w}, {d}")
                    else:
                        out.append(f"v_mfma_f32_32x32x16_bf16 {d}, {w}, {x}, {d}")
        return out

    def cs_mfmas(P):
        return [f"v_mfma_f32_16x16x32_bf16 {vr(vCSA+4*a)}, {vr(WBf(P, a, kk))}, {vr(vSel)}, {vr(vCSA+4*a)}"
                for kk in range(2) for a in range(NT)]

    if OPT["STAMP"] == 3:
        stamp(A, 5, 0, wave=OPT["SW"])
    n = len(mfmas(0))
    f = lambda k: k / n
    nod = OPT["NODMA"]

    def loop(R):
        LL = lambda s: f"L_{typ}{R}_{s}"
        if R == "B":
            for g in dmaW():
                A(g)
        A(f"s_waitcnt vmcnt({NW_ + (4 if R == 'B' else 0)})")
        k1_stats(A, typ)
        if R == "A":
            for g in dmaW():
                A(g)
        if R == "A":
            A(f"s_sub_u32 s{sUw}, s{sWave}, 1")
            A(f"s_cmp_gt_u32 s{sUw}, 1")
            A(f"s_cbranch_scc1 {LL('nou')}")
            A(f"s_or_b32 s{sSpec}, s{sSpec}, 1")
            A(f"s_lshl_b32 s{sU}, s{sCG}, 4")
            A(f"s_add_u32 s{sU}, s{sU}, s{sRB}")
            A(f"s_lshl_b32 s{sU}, s{sU}, 1")
            A(f"s_add_u32 s{sU}, s{sU}, s{sUw}")
            A(f"s_lshl_b32 s{sUl}, s{sUw}, 12")
            A(f"s_add_u32 s{sUl}, s{sUl}, {MISC_LDS}")
            w2_unit_dma(A, f"s{sUl}")
            A(f"s_waitcnt vmcnt({1 + NW_ + 4})")
            A(f"s_branch {LL('nou2')}")
            A.label(LL("nou"))
        if OPT["STAMP"] == 3:
            stamp(A, 8, 0, wave=OPT["SW"])
        A(f"s_waitcnt vmcnt({1 + NW_ if R == 'A' else 1})")
        if R == "A":
            A.label(LL("nou2"))
        if OPT["STAMP"] == 3:
            stamp(A, 9, 0, wave=OPT["SW"])
        A("s_barrier")
        if OPT["STAMP"] == 3:
            stamp(A, 10, 0, wave=OPT["SW"])
        pre, rd, post = reads(0, 0)
        for g in pre + rd + post:
            A(g)
        if R == "B":
            for g in dmaX() + dmaW():
                A(g)
        A("s_waitcnt lgkmcnt(0)")
        if R == "A":
            A("s_setprio 1")
            stamp(A, 1, 0)
            stamp(A, 14, 0, clk=True)
        A(".p2align 6")
        A.label(LL("loop"))
        pre, rd, post = reads(1, 1)
        for g in interleave(mfmas(0), (pre, 0.0, f(1)), (rd, f(1), 0.7), (post, 0.75, 0.85)):
            A(g)
        if R == "A":
            A(f"s_cmp_eq_u32 s{sCSit}, s{sIt}")
            A(f"s_cbranch_scc1 {LL('cs0')}")
            A.label(LL("cs0r"))
            A(f"s_bitcmp1_b32 s{sSpec}, s{sIt}")
            A(f"s_cbranch_scc1 {LL('spec')}")
            A.label(LL("specr"))
            for g in dmaW():
                A(g)
            A(f"s_waitcnt vmcnt({NW_}) lgkmcnt(0)")
            A.label(LL("bar"))
        else:
            A("s_waitcnt vmcnt(0) lgkmcnt(0)")
        A("s_barrier")
        pre, rd, post = reads(0, 0)
        pre = [f"v_xor_b32 v{vXa+i}, 16384, v{vXa+i}" for i in range(2)] + pre
        post = post + [f"v_xor_b32 v{vXa+i}, 16384, v{vXa+i}" for i in range(2, 4)]
        tail = [f"s_add_u32 s{sIt}, s{sIt}, 1\ns_cmp_lt_u32 s{sIt}, 10"]
        if R == "B":
            dw = dmaW()
            nb = OPT["NBUP"]
            A(f"s_cmp_ge_u32 s{sIt}, 8")
            A(f"s_cbranch_scc1 {LL('nod')}")
            for g in dmaX() + dw[:nb]:
                A(g)
            for g in interleave(mfmas(1), (pre, 0.0, f(1)), (dw[nb:], 0.0, 0.4), (rd, f(1), 0.7), (post, 0.7, 0.8), (tail, f(n-2), f(n-1))):
                A(g)
            A.label(LL("end"))
        else:
            chk1 = [f"s_cmp_eq_u32 s{sCSit}, s{sIt}\ns_cbranch_scc1 {LL('cs1')}\n{LL('cs1r')}:\n" + tail[0]]
            for g in interleave(mfmas(1), (pre, 0.0, f(1)), (rd, f(1), 0.7), (post, 0.7, 0.8), (chk1, f(n-2), f(n-1))):
                A(g)
        if OPT["STAMP"] == 4:
            A("s_memrealtime s[96:97]")
            A(f"s_mov_b32 m0, s{sIt}")
        A("s_waitcnt lgkmcnt(0)")
        if OPT["STAMP"] == 4:
            A("v_writelane_b32 v253, s96, m0")
        A(f"s_cbranch_scc1 {LL('loop')}")
        A(f"s_branch {L('epi')}")

        if R == "B":
            A.label(LL("nod"))
            if typ != "K":
                A(f"s_cmp_eq_u32 s{sIt}, 9")
                A(f"s_cbranch_scc1 {LL('nod9')}")
                wo_early(A, 24, 7)
                A(f"s_branch {LL('nod2')}")
                A.label(LL("nod9"))
                wo_early(A, 72, 7)
                A.label(LL("nod2"))
            for g in interleave(mfmas(1), (pre, 0.0, f(1)), (rd, f(1), 0.7), (post, 0.7, 0.8), (tail, f(n-2), f(n-1))):
                A(g)
            A(f"s_branch {LL('end')}")
            return
        A.label(LL("cs0"))
        for g in cs_mfmas(0):
            A(g)
        A(f"s_branch {LL('cs0r')}")
        A.label(LL("cs1"))
        for g in cs_mfmas(1):
            A(g)
        A(f"v_and_b32 v{vT0}, 15, v{vLane}")
        A(f"v_lshrrev_b32 v{vT1}, 4, v{vLane}")
        A(f"v_lshlrev_b32 v{vT1}, 4, v{vT1}")
        A(f"v_lshl_add_u32 v{vT1}, v{vT0}, 6, v{vT1}")
        A(f"v_cmp_gt_u32 vcc, 2, v{vT0}")
        A(f"v_mov_b32 v{vT2}, {OOB}")
        A(f"v_cndmask_b32 v{vT1}, v{vT2}, v{vT1}, vcc")
        A(f"s_mul_i32 s{sTmp}, s{sCG}, 10")
        A(f"s_add_u32 s{sTmp}, s{sTmp}, s{sRB}")
        A(f"s_mul_i32 s{sTmp}, s{sTmp}, 1536")
        A(f"s_mul_i32 s{sTmp2}, s{sNW}, {NT*128}")
        A(f"s_add_u32 s{sTmp}, s{sTmp}, s{sTmp2}")
        A(f"s_add_u32 s{sTmp}, s{sTmp}, {WS_CS}")
        for a in range(NT):
            A(f"buffer_store_dwordx4 {vr(vCSA+4*a)}, v{vT1}, {srd(S_WS)}, s{sTmp} offen offset:{a*128} sc1")
        A(f"s_branch {LL('cs1r')}")

        def with_dma(nops, body):
            for g in dmaW():
                A(g)
            body()
            A(f"s_waitcnt vmcnt({NW_+nops}) lgkmcnt(0)")
            A(f"s_branch {LL('bar')}")
        A.label(LL("spec"))
        A(f"s_cmp_ge_u32 s{sIt}, 8")
        A(f"s_cbranch_scc1 {LL('sum')}")
        A(f"s_cmp_eq_u32 s{sIt}, 7")
        A(f"s_cbranch_scc1 {LL('go')}")
        A(f"s_cmp_eq_u32 s{sIt}, 6")
        A(f"s_cbranch_scc1 {LL('chk')}")
        A(f"s_cmp_eq_u32 s{sIt}, 5")
        A(f"s_cbranch_scc1 {LL('poll0')}")
        A(f"s_cmp_lg_u32 s{sIt}, 0")
        A(f"s_cbranch_scc1 {LL('pub')}")
        A("s_waitcnt vmcnt(0)")
        with_dma(4, lambda: w2_unit_out(A, f"s{sUl}", (lambda t: (96, 100, 144, 148)[t]) if G else (lambda t: 232 + 4 * t)))
        A.label(LL("pub"))

        def pub():
            A(f"s_cmp_lg_u32 s{sPub}, s{sIt}")
            A(f"s_cbranch_scc1 {LL('pub2')}")
            k1_publish(A)
            A.label(LL("pub2"))
        with_dma(1, pub)
        A.label(LL("poll0"))
        with_dma(1, lambda: A(f"buffer_load_dword v{vPoll}, v{vPa}, {srd(S_DBG)}, 0 offen sc1"))
        A.label(LL("poll"))
        A("s_sleep 8")
        A(f"buffer_load_dword v{vPoll}, v{vPa}, {srd(S_DBG)}, 0 offen sc1")
        A.label(LL("chk"))
        A("s_waitcnt vmcnt(0)")
        poll_cmp(A)
        A(f"s_add_u32 s{sSpin}, s{sSpin}, 1")
        A(f"s_cmp_gt_u32 s{sSpin}, {SPIN_MAX}")
        A(f"s_cbranch_scc1 {LL('specr')}")
        A(f"s_cmp_lg_u64 vcc, 0")
        A(f"s_cbranch_scc1 {LL('poll')}")
        A(f"s_branch {LL('specr')}")
        A.label(LL("go"))

        def go():
            A(f"v_lshlrev_b32 v{vT0}, 3, v0")
            A(f"v_cmp_gt_u32 vcc, {NT*(4 if G else 2)*16}, v0")
            A(f"v_mov_b32 v{vT2}, {OOB}")
            A(f"v_cndmask_b32 v{vT0}, v{vT2}, v{vT0}, vcc")
            A(f"s_mul_i32 s{sTmp}, s{sCG}, 15360")
            A(f"s_add_u32 s{sTmp}, s{sTmp}, {WS_CS}")
            for ch in range(10):
                if ch % 2 == 0 and ch:
                    A(f"s_add_u32 s{sTmp}, s{sTmp}, 3072")
                A(f"buffer_load_dwordx2 {vr(vCSP+2*ch, 2)}, v{vT0}, {srd(S_WS)}, s{sTmp} offen offset:{(ch%2)*1536} sc1")
            A(f"s_lshl_b32 s{sTmp}, s{sRB}, 10")
            A(f"s_add_u32 s{sTmp}, s{sTmp}, {WS_ST}")
            A(f"v_lshlrev_b32 v{vT1}, 2, v0")
            A(f"buffer_load_dword v{vSt}, v{vT1}, {srd(S_WS)}, s{sTmp} offen sc1")
        with_dma(11, go)
        A.label(LL("sum"))
        A(f"s_cmp_eq_u32 s{sIt}, 9")
        A(f"s_cbranch_scc1 {LL('sum9')}")
        A("s_waitcnt vmcnt(0)")
        for ch in range(1, 10):
            A(f"v_add_f32 v{vCSP}, v{vCSP}, v{vCSP+2*ch}")
            A(f"v_add_f32 v{vCSP+1}, v{vCSP+1}, v{vCSP+2*ch+1}")
        A(f"v_lshlrev_b32 v{vT0}, 3, v0")
        A(f"v_add_u32 v{vT0}, {MISC_LDS}, v{vT0}")
        A(f"ds_write_b64 v{vT0}, {vr(vCSP, 2)}")
        A(f"v_lshlrev_b32 v{vT1}, 2, v0")
        A(f"v_add_u32 v{vT1}, {MISC_LDS+2048}, v{vT1}")
        A(f"ds_write_b32 v{vT1}, v{vSt}")
        if typ != "K":
            wo_early(A, 0, 6)
        A("s_waitcnt lgkmcnt(0)")
        A(f"s_branch {LL('bar')}")
        A.label(LL("sum9"))
        if typ != "K":
            wo_early(A, 52, 5)
        A("s_waitcnt lgkmcnt(0)")
        A(f"s_branch {LL('bar')}")

    A(f"s_cmp_ge_u32 s{sWave}, 4")
    A(f"s_cbranch_scc1 {L('roleB')}")
    loop("A")
    A.label(L("roleB"))
    loop("B")

    A.label(L("epi"))
    A("s_setprio 0")
    stamp(A, 2, 0)
    stamp(A, 15, 0, clk=True)
    if OPT["STAMP"] == 4:
        A(f"v_lshlrev_b32 v252, 2, v0")
        A(f"s_lshl_b32 s98, s2, 11")
        A(f"s_add_u32 s98, s98, {WS_STAMP + 0x10000}")
        A(f"buffer_store_dword v253, v252, {srd(S_WS)}, s98 offen")
    p2_ids(A)
    A.fence()
    if typ == "K":
        k1_epi_kv(A, acc)
        A(f"v_lshlrev_b32 v{vL16}, 4, v{vLane}")
        A(f"s_mov_b32 s{sWoDone}, 0")
    else:
        epi = {"G": k1_epi_g, "Q": k1_epi_q}[typ]
        A(f"s_cmp_lt_u32 s{sWave}, 4")
        A(f"s_cbranch_scc1 {L('epiA')}")
        ffn_setup(A)
        E = Asm()
        epi(E, acc)
        body = [t for _, t in E.lines]
        npre = min(OPT["NPRE"], 6 if G else 4)
        early = [g for j in range(min(4, npre)) for g in ldW_groups(j)]
        late = [g for j in range(4, npre) for g in ldW_groups(j)]
        for g in interleave(body, (early, 0.02, 0.5 if npre > 4 else 0.7), (late, 0.5, 0.8)):
            A(g)
        A(f"s_mov_b32 s{sWoDone}, {npre + 1}")
        A(f"s_branch {L('epiJ')}")
        A.label(L("epiA"))
        A(f"s_mov_b32 s{sWoDone}, 1")
        epi(A, acc)
        A.label(L("epiJ"))
    stamp(A, 3, 0)
    A(f"v_mov_b32 v{vSigA}, {OOB}")
    if typ == "K":
        A(f"s_sub_u32 s{sTmp}, s{sCG}, 9")
        A(f"s_lshl_b32 s{sTmp}, s{sTmp}, 11")
        A(f"s_add_u32 s{sTmp}, s{sTmp}, {WS_FL + FL_KV}")
        A(f"v_lshl_add_u32 v{vT0}, v{vLane}, 8, s{sTmp}")
        A(f"v_cmp_gt_u32 vcc, 8, v{vLane}")
        A(f"v_cndmask_b32 v{vSigA}, v{vSigA}, v{vT0}, vcc")
        A(f"v_mov_b32 v{vSigV}, 1")
    else:
        A(f"s_lshl_b32 s{sTmp}, s{sRB}, 8")
        A(f"s_add_u32 s{sTmp}, s{sTmp}, {WS_FL + FL_HC}")
        A(f"v_writelane_b32 v{vSigA}, s{sTmp}, 0")
        A(f"v_mov_b32 v{vSigV}, {1 if G else 0x100}")
    A("s_branch L_p2")


def k1_stats_issue(A):
    b = vBUF
    A(f"s_lshl_b32 s{sRow}, s{sRB}, 7")
    A(f"s_lshl_b32 s{sTmp2}, s{sCG}, 3")
    A(f"s_add_u32 s{sRow}, s{sRow}, s{sTmp2}")
    A(f"s_add_u32 s{sRow}, s{sRow}, s{sWave}")
    A(f"s_mul_i32 s{sTmp2}, s{sRow}, 1280")
    A(f"v_lshlrev_b32 v{vT0}, 3, v{vLane}")
    A(f"v_lshlrev_b32 v{vT1}, 2, v{vLane}")
    A(f"buffer_load_dwordx2 {vr(b, 2)}, v{vT0}, {srd(S_X)}, s{sTmp2} offen")
    A(f"buffer_load_dwordx2 {vr(b+2, 2)}, v{vT0}, {srd(S_X)}, s{sTmp2} offen offset:512")
    A(f"buffer_load_dword v{b+4}, v{vT1}, {srd(S_X)}, s{sTmp2} offen offset:1024")


def k1_stats(A, typ):
    b = vBUF
    if typ == "A":
        A("s_waitcnt vmcnt(0)")
    for i in range(5):
        A(f"v_lshlrev_b32 v{b+8+2*i}, 16, v{b+i}")
        A(f"v_and_b32 v{b+9+2*i}, 0xffff0000, v{b+i}")
    s = b + 20
    A(f"v_add_f32 v{s}, v{b+8}, v{b+9}")
    for i in range(2, 10):
        A(f"v_add_f32 v{s}, v{s}, v{b+8+i}")
    wave_allreduce_add(A, s, s + 1, 4)
    A(f"v_mul_f32 v{s}, {f32(1.0/640)}, v{s}")
    for i in range(10):
        A(f"v_sub_f32 v{b+8+i}, v{b+8+i}, v{s}")
    A(f"v_mul_f32 v{s+1}, v{b+8}, v{b+8}")
    for i in range(1, 10):
        A(f"v_fmac_f32 v{s+1}, v{b+8+i}, v{b+8+i}")
    wave_allreduce_add(A, s + 1, s + 2, 4)
    A(f"v_mov_b32 v{s+2}, {f32(1e-5)}")
    A(f"v_fmac_f32 v{s+2}, {f32(1.0/640)}, v{s+1}")
    A(f"v_mov_b32 v{s+1}, v{s+2}")
    A(f"v_cmp_eq_u32 vcc, 0, v{vLane}")
    A(f"v_mov_b32 v{vT2}, {OOB}")
    A(f"v_cndmask_b32 v{vT0}, v{vT2}, v{vLane}, vcc")
    A(f"s_lshl_b32 s{sTmp}, s{sRow}, 3")
    A(f"s_add_u32 s{sTmp}, s{sTmp}, {WS_ST}")
    A(f"buffer_store_dwordx2 {vr(s, 2)}, v{vT0}, {srd(S_WS)}, s{sTmp} offen sc1")


def k1_publish(A):
    if OPT["BYTEFLAG"]:
        A(f"v_mov_b32 v{vT0}, {OOB}")
        A(f"v_writelane_b32 v{vT0}, s2, 0")
        A(f"v_mov_b32 v{vT1}, 1")
        A(f"buffer_store_byte v{vT1}, v{vT0}, {srd(S_DBG)}, 0 offen sc1")
        return
    A(f"s_lshl_b32 s{sTmp}, s{sRB}, 4")
    A(f"v_mov_b32 v{vT0}, {OOB}")
    A(f"v_writelane_b32 v{vT0}, s{sTmp}, 0")
    A(f"v_mov_b32 v{vT1}, 1")
    A(f"buffer_atomic_add v{vT1}, v{vT0}, {srd(S_DBG)}, 0 offen sc1")


def poll_addr(A):
    if OPT["BYTEFLAG"]:
        A(f"v_lshlrev_b32 v{vPa}, 2, v{vLane}")
    else:
        A(f"v_and_b32 v{vPa}, 15, v{vLane}")
        A(f"v_lshlrev_b32 v{vPa}, 4, v{vPa}")


def poll_cmp(A):
    if OPT["BYTEFLAG"]:
        A(f"v_cmp_ne_u32 vcc, 0x01010101, v{vPoll}")
    else:
        A(f"v_cmp_gt_u32 vcc, 16, v{vPoll}")


S_R = 88
sU, sUks, sUL = 92, 93, 94


def w2_unit_decode(A):
    A(f"s_mul_i32 s{sUks}, s{sU}, 205")
    A(f"s_lshr_b32 s{sUks}, s{sUks}, 11")
    A(f"s_mul_i32 s{sUL}, s{sUks}, 10")
    A(f"s_sub_u32 s{sUL}, s{sU}, s{sUL}")


def w2_unit_dma(A, lds):
    w2_unit_decode(A)
    A(f"s_cmp_lt_u32 s{sUks}, 54")
    A(f"s_cselect_b32 s{S_R}, s{P_D}, s{P_WO}")
    A(f"s_cselect_b32 s{S_R+1}, s{P_D+1}, s{P_WO+1}")
    A(f"s_mov_b32 s{S_R+2}, {640*1280}")
    A(f"s_cselect_b32 s{S_R+2}, {1728*1280}, s{S_R+2}")
    A(f"s_cselect_b32 s{sTmp}, 0, 54")
    A(f"s_and_b32 s{S_R+1}, s{S_R+1}, 0xffff")
    A(f"s_mov_b32 s{S_R+3}, 0x20000")
    A(f"s_sub_u32 s{sTmp}, s{sUks}, s{sTmp}")
    A(f"s_mul_i32 s{sTmp}, s{sTmp}, {32*1280}")
    A(f"s_lshl_b32 s{sTmp2}, s{sUL}, 7")
    A(f"s_add_u32 s{sTmp}, s{sTmp}, s{sTmp2}")
    A(f"v_lshrrev_b32 v{vT0}, 3, v{vLane}")
    A(f"v_mul_u32_u24 v{vT0}, 1280, v{vT0}")
    A(f"v_and_b32 v{vT1}, 7, v{vLane}")
    A(f"v_lshl_add_u32 v{vT0}, v{vT1}, 4, v{vT0}")
    for i in range(4):
        A(f"s_add_u32 m0, {lds}, {i*1024}")
        A("s_nop 0")
        A(f"buffer_load_dwordx4 v{vT0}, {srd(S_R)}, s{sTmp} offen lds")
        A(f"s_add_u32 s{sTmp}, s{sTmp}, {8*1280}")


def w2_unit_out(A, lds, F):
    w2_unit_decode(A)
    A(f"v_bfe_u32 v{vT0}, v{vLane}, 2, 2")
    A(f"v_lshlrev_b32 v{vT0}, 7, v{vT0}")
    A(f"v_and_b32 v{vT1}, 3, v{vLane}")
    A(f"v_lshl_add_u32 v{vT0}, v{vT1}, 3, v{vT0}")
    A(f"v_lshrrev_b32 v{vT1}, 4, v{vLane}")
    A(f"s_cmp_lt_u32 s{sUks}, 54")
    A(f"s_cselect_b32 s{sTmp}, 10, 9")
    A(f"s_movk_i32 s{sTmp2}, 512")
    A(f"s_cselect_b32 s{sTmp2}, s{sTmp2}, 2048")
    A(f"v_lshlrev_b32 v{vT1}, s{sTmp}, v{vT1}")
    A(f"v_add3_u32 v{vT0}, v{vT0}, v{vT1}, {lds}")
    A(f"v_add_u32 v{vT1}, s{sTmp2}, v{vT0}")
    for tau in range(4):
        A(f"ds_read_b64_tr_b16 {vr(F(tau), 2)}, v{vT0} offset:{tau*32}")
        A(f"ds_read_b64_tr_b16 {vr(F(tau)+2, 2)}, v{vT1} offset:{tau*32}")
    A(f"v_lshlrev_b32 v{vT2}, 4, v{vLane}")
    A("s_waitcnt lgkmcnt(0)")
    for tau in range(4):
        A(f"s_lshl_b32 s{sTmp}, s{sUL}, 2")
        A(f"s_add_u32 s{sTmp}, s{sTmp}, {tau}")
        A(f"s_mul_i32 s{sTmp2}, s{sTmp}, 205")
        A(f"s_lshr_b32 s{sTmp2}, s{sTmp2}, 10")
        A(f"s_mul_i32 s{sTmp3}, s{sTmp2}, {74*5-5}")
        A(f"s_add_u32 s{sTmp}, s{sTmp}, s{sTmp3}")
        A(f"s_mul_i32 s{sTmp3}, s{sUks}, 5")
        A(f"s_add_u32 s{sTmp}, s{sTmp}, s{sTmp3}")
        A(f"s_lshl_b32 s{sTmp}, s{sTmp}, 10")
        A(f"s_add_u32 s{sTmp}, s{sTmp}, {WS_W2}")
        A(f"s_cmp_lt_u32 s{sU}, 740")
        A(f"s_cselect_b32 s{sTmp}, s{sTmp}, {OOB}")
        A(f"buffer_store_dwordx4 {vr(F(tau))}, v{vT2}, {srd(S_WS)}, s{sTmp} offen sc1")


def k1_epi_g(A, acc):
    c = vBUF
    cs = vBUF + 8
    t = vBUF + 40
    o = vBUF + 48
    A(f"v_lshrrev_b32 v{vT0}, 5, v{vLane}")
    A(f"v_lshlrev_b32 v{vT0}, 4, v{vT0}")
    A(f"s_mul_i32 s{sTmp}, s{sNW}, 384")
    A(f"s_add_u32 s{sTmp}, s{sTmp}, {MISC_LDS}")
    A(f"v_add_u32 v{vT0}, s{sTmp}, v{vT0}")
    A(f"v_and_b32 v{vT1}, 31, v{vLane}")
    A(f"s_lshl_b32 s{sTmp}, s{sMW}, 9")
    A(f"s_add_u32 s{sTmp}, s{sTmp}, {MISC_LDS+2048}")
    A(f"v_lshl_add_u32 v{vT1}, v{vT1}, 3, s{sTmp}")
    for mt in range(2):
        A(f"ds_read_b64 {vr(c+4*mt, 2)}, v{vT1} offset:{mt*256}")
    for q in range(4):
        A(f"ds_read_b128 {vr(cs+4*q)}, v{vT0} offset:{q*32}")
    A("s_waitcnt lgkmcnt(4)")
    for mt in range(2):
        mu, v, k1, k3 = c + 4 * mt, c + 4 * mt + 1, c + 4 * mt + 2, c + 4 * mt + 3
        A(f"v_rsq_f32 v{t}, v{v}")
        A(f"v_mul_f32 v{k1}, {f32(GC1)}, v{t}")
        A(f"v_mul_f32 v{t+1}, v{t}, v{t}")
        A(f"v_mul_f32 v{t+1}, v{t+1}, v{t}")
        A(f"v_mul_f32 v{k3}, {f32(GC2)}, v{t+1}")
    A(f"v_bfe_u32 v{vT1}, v{vLane}, 4, 1")
    A(f"v_lshlrev_b32 v{vT1}, 10, v{vT1}")
    A(f"v_lshrrev_b32 v{vT2}, 5, v{vLane}")
    A(f"v_lshl_add_u32 v{vT1}, v{vT2}, 8, v{vT1}")
    A(f"v_and_b32 v{vT2}, 15, v{vLane}")
    A(f"v_lshl_add_u32 v{vT1}, v{vT2}, 4, v{vT1}")
    n = 0
    for a in range(3):
        csa = cs + 16 * (a % 2)
        if a < 2:
            for q in range(4):
                A(f"ds_read_b128 {vr(cs+16*((a+1)%2)+4*q)}, v{vT0} offset:{(a+1)*128+q*32}")
            A("s_waitcnt lgkmcnt(4)")
        else:
            A("s_waitcnt lgkmcnt(0)")
        A(f"s_mul_i32 s{sTmp}, s{sCG}, 12")
        A(f"s_mul_i32 s{sTmp2}, s{sNW}, 3")
        A(f"s_add_u32 s{sTmp}, s{sTmp}, s{sTmp2}")
        A(f"s_add_u32 s{sTmp}, s{sTmp}, {a}")
        A(f"s_lshl_b32 s{sTmp2}, s{sRB}, 1")
        A(f"s_add_u32 s{sTmp2}, s{sTmp2}, s{sMW}")
        A(f"s_mul_i32 s{sTmp2}, s{sTmp2}, 54")
        A(f"s_lshr_b32 s{sTmp3}, s{sTmp}, 1")
        A(f"s_add_u32 s{sTmp2}, s{sTmp2}, s{sTmp3}")
        A(f"s_lshl_b32 s{sTmp2}, s{sTmp2}, 12")
        A(f"s_and_b32 s{sTmp}, s{sTmp}, 1")
        A(f"s_lshl_b32 s{sTmp}, s{sTmp}, 9")
        A(f"s_add_u32 s{sTmp}, s{sTmp}, s{sTmp2}")
        for mt in range(2):
            mu, v, k1, k3 = c + 4 * mt, c + 4 * mt + 1, c + 4 * mt + 2, c + 4 * mt + 3
            d = acc(mt, a)
            ob = o + 4 * (n % 2)
            n += 1
            R = range(8)
            for i in R:
                A(f"v_fma_f32 v{d+i}, -v{mu}, v{csa+i}, v{d+i}")
            for i in R:
                A(f"v_mul_f32 v{t+i}, v{d+i}, v{d+i}")
            for i in R:
                A(f"v_fma_f32 v{t+i}, v{t+i}, v{k3}, v{k1}")
            for i in R:
                A(f"v_mul_f32 v{t+i}, v{t+i}, v{d+i}")
            for i in R:
                A(f"v_exp_f32 v{t+i}, v{t+i}")
                A(f"v_fma_f32 v{d+8+i}, -v{mu}, v{csa+8+i}, v{d+8+i}")
            for i in R:
                A(f"v_fma_f32 v{t+i}, v{t+i}, v{v}, v{v}")
            for i in R:
                A(f"v_rcp_f32 v{t+i}, v{t+i}")
                A(f"v_mul_f32 v{d+i}, v{d+i}, v{d+8+i}")
            for i in R:
                A(f"v_mul_f32 v{d+i}, v{d+i}, v{t+i}")
            for i in range(4):
                A(f"v_cvt_pk_bf16_f32 v{ob+i}, v{d+2*i}, v{d+2*i+1}")
            A(f"buffer_store_dwordx4 {vr(ob)}, v{vT1}, {srd(S_WS)}, s{sTmp} offen offset:{mt*2048} sc1")


def pk(r, bc=False):
    return f"v[{r}:{r+1}]"


def pko(*bc):
    lo = ",".join("1" if b == 1 else "0" for b in bc)
    hi = ",".join("0" if b == 0 else "1" for b in bc)
    return f"op_sel:[{lo}] op_sel_hi:[{hi}]"


def opnd(x):
    k, r = x
    if k == "p":
        return pk(r), None
    return pk(r & ~1), r & 1


def pk_fma(A, d, a, b, c, neg_a=False):
    (ta, fa), (tb_, fb), (tc, fc) = opnd(a), opnd(b), opnd(c)
    n = " neg_lo:[1,0,0] neg_hi:[1,0,0]" if neg_a else ""
    A(f"v_pk_fma_f32 {pk(d)}, {ta}, {tb_}, {tc} {pko(fa, fb, fc)}{n}")


def pk_mul(A, d, a, b, op="mul"):
    (ta, fa), (tb_, fb) = opnd(a), opnd(b)
    A(f"v_pk_{op}_f32 {pk(d)}, {ta}, {tb_} {pko(fa, fb)}")


def phi_block(A, d, n, t, mu, cs, r, rl, eps):
    P = range(0, n, 2)
    for i in P:
        pk_fma(A, d + i, mu(i), cs(i), ("p", d + i), neg_a=True)
    for i in P:
        pk_mul(A, t + i, ("p", d + i), rl(i))
    for i in P:
        A(f"v_exp_f32 v{t+i}, v{t+i} clamp")
        A(f"v_exp_f32 v{t+i+1}, v{t+i+1} clamp")
        pk_fma(A, d + i, ("p", d + i), r(i), ("b", eps))
    for i in range(n):
        A(f"v_max_f32 v{d+i}, v{d+i}, v{eps}")
    for i in P:
        pk_mul(A, d + i, ("p", d + i), ("p", t + i), op="add")


def k1_epi_q(A, acc):
    c = vBUF
    cs = vBUF + 8
    t = vBUF + 40
    o = vBUF + 56
    mu, r, rl, eps = c, c + 1, c + 2, c + 3
    A(f"v_lshrrev_b32 v{vT0}, 5, v{vLane}")
    A(f"v_lshlrev_b32 v{vT0}, 4, v{vT0}")
    A(f"s_mul_i32 s{sTmp}, s{sNW}, 640")
    A(f"s_add_u32 s{sTmp}, s{sTmp}, {MISC_LDS}")
    A(f"v_add_u32 v{vT0}, s{sTmp}, v{vT0}")
    A(f"v_and_b32 v{vT1}, 31, v{vLane}")
    A(f"s_lshl_b32 s{sTmp}, s{sMW}, 8")
    A(f"s_add_u32 s{sTmp}, s{sTmp}, {MISC_LDS+2048}")
    A(f"v_lshl_add_u32 v{vT1}, v{vT1}, 3, s{sTmp}")
    A(f"ds_read_b64 {vr(mu, 2)}, v{vT1}")
    for q in range(4):
        A(f"ds_read_b128 {vr(cs+4*q)}, v{vT0} offset:{q*32}")
    A("s_waitcnt lgkmcnt(4)")
    A(f"v_rsq_f32 v{r}, v{r}")
    A(f"v_mov_b32 v{eps}, {f32(1e-6)}")
    A(f"v_mul_f32 v{rl}, {f32(LOG2E)}, v{r}")
    A(f"v_bfe_u32 v{vT1}, v{vLane}, 4, 1")
    A(f"v_lshlrev_b32 v{vT1}, 10, v{vT1}")
    A(f"v_lshrrev_b32 v{vT2}, 5, v{vLane}")
    A(f"v_lshl_add_u32 v{vT1}, v{vT2}, 8, v{vT1}")
    A(f"v_and_b32 v{vT2}, 15, v{vLane}")
    A(f"v_lshl_add_u32 v{vT1}, v{vT2}, 4, v{vT1}")
    A(f"s_lshl_b32 s{sTmp}, s{sRB}, 1")
    A(f"s_lshr_b32 s{sTmp2}, s{sMW}, 1")
    A(f"s_add_u32 s{sTmp}, s{sTmp}, s{sTmp2}")
    A(f"s_mul_i32 s{sTmp}, s{sTmp}, 20")
    A(f"s_sub_u32 s{sTmp2}, s{sCG}, 13")
    A(f"s_mul_i32 s{sTmp2}, s{sTmp2}, 10")
    A(f"s_add_u32 s{sTmp}, s{sTmp}, s{sTmp2}")
    A(f"s_mul_i32 s{sTmp2}, s{sNW}, 5")
    A(f"s_add_u32 s{sTmp}, s{sTmp}, s{sTmp2}")
    A(f"s_lshl_b32 s{sTmp}, s{sTmp}, 12")
    A(f"s_and_b32 s{sTmp2}, s{sMW}, 1")
    A(f"s_lshl_b32 s{sTmp2}, s{sTmp2}, 11")
    A(f"s_add_u32 s{sTmp}, s{sTmp}, s{sTmp2}")
    A(f"s_add_u32 s{sTmp}, s{sTmp}, {WS_PQ}")
    for a in range(5):
        csa = cs + 16 * (a % 2)
        if a < 4:
            for q in range(4):
                A(f"ds_read_b128 {vr(cs+16*((a+1)%2)+4*q)}, v{vT0} offset:{(a+1)*128+q*32}")
            A("s_waitcnt lgkmcnt(4)")
        else:
            A("s_waitcnt lgkmcnt(0)")
        d = acc(0, a)
        phi_block(A, d, 16, t, lambda i: ("b", mu), lambda i: ("p", csa + i), lambda i: ("b", r), lambda i: ("b", rl), eps)
        ob = o + 8 * (a % 2)
        for i in range(8):
            A(f"v_cvt_pk_bf16_f32 v{ob+i}, v{d+2*i}, v{d+2*i+1}")
        A(f"buffer_store_dwordx4 {vr(ob)}, v{vT1}, {srd(S_WS)}, s{sTmp} offen sc1")
        A(f"buffer_store_dwordx4 {vr(ob+4)}, v{vT1}, {srd(S_WS)}, s{sTmp} offen offset:512 sc1")
        A(f"s_add_u32 s{sTmp}, s{sTmp}, 4096")


def k1_epi_kv(A, acc):
    raw = lambda i: KST(i // 2) + 2 * (i % 2)
    mu = vBUF
    rr = vBUF + 16
    rl = vBUF + 32
    t = vBUF + 48
    cs = vBUF + 64
    eps = vBUF + 70
    o = vBUF + 72
    SLAB = 107520
    DUMMY = 148480
    A(f"v_and_b32 v{vT0}, 31, v{vLane}")
    A(f"v_lshlrev_b32 v{vT0}, 2, v{vT0}")
    A(f"s_mul_i32 s{sTmp}, s{sNW}, 640")
    A(f"s_add_u32 s{sTmp}, s{sTmp}, {MISC_LDS}")
    A(f"v_add_u32 v{vT1}, s{sTmp}, v{vT0}")
    A(f"v_lshrrev_b32 v{vT2}, 5, v{vLane}")
    A(f"s_lshl_b32 s{sTmp}, s{sMW}, 8")
    A(f"s_add_u32 s{sTmp}, s{sTmp}, {MISC_LDS+2048}")
    A(f"v_lshl_add_u32 v{vT2}, v{vT2}, 5, s{sTmp}")
    for q in range(4):
        for h in range(2):
            A(f"ds_read_b128 {vr(KST(2*q+h))}, v{vT2} offset:{q*64+h*16}")
    for a in range(5):
        A(f"ds_read_b32 v{cs+a}, v{vT1} offset:{a*128}")
    A("s_waitcnt lgkmcnt(5)")
    for i in range(16):
        A(f"v_rsq_f32 v{rr+i}, v{raw(i)+1}")
        A(f"v_mov_b32 v{mu+i}, v{raw(i)}")
    for i in range(16):
        A(f"v_mul_f32 v{rl+i}, {f32(LOG2E)}, v{rr+i}")
    A(f"v_mov_b32 v{eps}, {f32(1e-6)}")
    A(f"s_lshl_b32 s{sTmp}, s{sMW}, 11")
    A(f"v_lshl_add_u32 v{vT2}, v{vLane}, 4, s{sTmp}")
    A("s_waitcnt lgkmcnt(0)")
    if OPT["STAMP"] == 6:
        stamp(A, 5, 0, wave=OPT["SW"])

    def tile(a, is_k):
        d = acc(0, a)
        if is_k:
            phi_block(A, d, 16, t, lambda i: ("p", mu + i), lambda i: ("b", cs + a), lambda i: ("p", rr + i), lambda i: ("p", rl + i), eps)
        else:
            for i in range(0, 16, 2):
                pk_fma(A, d + i, ("p", mu + i), ("b", cs + a), ("p", d + i), neg_a=True)
            for i in range(0, 16, 2):
                pk_mul(A, d + i, ("p", d + i), ("p", rr + i))

    def put(a):
        d = acc(0, a)
        ob = o + 8 * (a % 2)
        o0, o1 = [(m * 5 + tt) * 8192 for m, tt in (KVT[0][a], KVT[1][a])]
        A(f"s_cmp_eq_u32 s{sNW}, 0")
        A(f"s_mov_b32 s{sTmp}, {o0}")
        A(f"s_cselect_b32 s{sTmp}, s{sTmp}, {o1}")
        A(f"v_add_u32 v{vT3}, s{sTmp}, v{vT2}")
        for i in range(8):
            A(f"v_cvt_pk_bf16_f32 v{ob+i}, v{d+2*i}, v{d+2*i+1}")
        A(f"ds_write_b128 v{vT3}, {vr(ob)}")
        A(f"ds_write_b128 v{vT3}, {vr(ob+4)} offset:1024")
    for a in (0, 1):
        tile(a, True)
        put(a)
    A(f"s_cmp_eq_u32 s{sNW}, 0")
    A("s_cbranch_scc0 L_K_t2v")
    tile(2, True)
    A("s_branch L_K_t2j")
    A.label("L_K_t2v")
    tile(2, False)
    A.label("L_K_t2j")
    put(2)
    for a in (3, 4):
        tile(a, False)
        put(a)
    sSlab = 4
    jA, jB = (5, 6), (7, 8)
    A(f"s_sub_u32 s5, s{sWave}, 5")
    A(f"s_sub_u32 s6, s{sWave}, 4")
    A(f"s_cmp_lt_u32 s{sWave}, 5")
    A(f"s_cselect_b32 s5, s{sWave}, s5")
    A(f"s_cselect_b32 s6, s{sWave}, s6")
    A(f"s_sub_u32 s8, s{sWave}, 1")
    A(f"s_cmp_eq_u32 s{sWave}, 0")
    A(f"s_cselect_b32 s7, 3, s{sWave}")
    A(f"s_cselect_b32 s8, 4, s8")
    ad = vACC + 48
    dm = vACC + 64
    A(f"v_lshlrev_b32 v{dm}, 4, v{vLane}")
    A(f"v_add_u32 v{dm}, {DUMMY}, v{dm}")

    def job_addr(j, sa, sb):
        e, he, d0 = vACC + 66, vACC + 67, vACC + 68
        A(f"s_lshl_b32 s{sTmp}, s{sa}, 13")
        A(f"s_lshl_b32 s{sTmp2}, s{sb}, 13")
        A(f"s_add_u32 s{sTmp2}, s{sTmp2}, {5*8192}")
        A(f"v_lshl_add_u32 v{ad+8*j+4}, v{vLane}, 4, s{sTmp}")
        A(f"v_lshl_add_u32 v{ad+8*j+5}, v{vLane}, 4, s{sTmp2}")
        A(f"v_and_b32 v{e}, 31, v{vLane}")
        A(f"s_lshl_b32 s{sTmp}, s{sb}, 5")
        A(f"v_add_u32 v{e}, s{sTmp}, v{e}")
        A(f"v_mul_u32_u24 v{he}, 205, v{e}")
        A(f"v_lshrrev_b32 v{he}, 12, v{he}")
        A(f"v_mul_u32_u24 v{e}, 80, v{e}")
        A(f"v_add_u32 v{e}, {SLAB}, v{e}")
        A(f"v_lshrrev_b32 v{d0}, 5, v{vLane}")
        A(f"s_lshl_b32 s{sTmp}, s{sa}, 5")
        A(f"v_lshl_add_u32 v{d0}, v{d0}, 2, s{sTmp}")
        for q in range(4):
            a0 = ad + 8 * j + q
            A(f"v_add_u32 v{a0}, {8*q}, v{d0}")
            A(f"v_mul_u32_u24 v{d0+1}, 205, v{a0}")
            A(f"v_lshrrev_b32 v{d0+1}, 12, v{d0+1}")
            A(f"v_cmp_eq_u32 vcc, v{d0+1}, v{he}")
            A(f"v_lshl_add_u32 v{a0}, v{a0}, 2, v{e}")
            A(f"v_cndmask_b32 v{a0}, v{dm}, v{a0}, vcc")
    A.fence()
    job_addr(0, *jA)
    job_addr(1, *jB)
    az = ad + 6
    zt = vACC + 66
    A(f"s_lshl_b32 s{sTmp}, s5, 5")
    A(f"v_and_b32 v{zt}, 15, v{vLane}")
    A(f"v_lshrrev_b32 v{az}, 4, v{vLane}")
    A(f"v_lshlrev_b32 v{az}, 2, v{az}")
    A(f"v_lshl_add_u32 v{az}, v{zt}, 4, v{az}")
    A(f"v_add_u32 v{az}, s{sTmp}, v{az}")
    A(f"v_mul_u32_u24 v{zt+1}, 205, v{az}")
    A(f"v_lshrrev_b32 v{zt+1}, 12, v{zt+1}")
    A(f"v_mul_u32_u24 v{zt+1}, 1600, v{zt+1}")
    A(f"v_lshl_add_u32 v{az}, v{az}, 2, v{zt+1}")
    A(f"v_add_u32 v{az}, {SLAB+1600}, v{az}")
    A(f"s_cmp_lt_u32 s{sWave}, 5")
    A(f"s_cselect_b32 s{sTmp}, 2, 0")
    A(f"v_cmp_gt_u32 vcc, s{sTmp}, v{zt}")
    A(f"v_cndmask_b32 v{az}, v{dm}, v{az}, vcc")
    A("s_waitcnt lgkmcnt(0)")
    if OPT["STAMP"] == 6:
        stamp(A, 6, 0, wave=OPT["SW"])
    A("s_barrier")
    if OPT["STAMP"] == 6:
        stamp(A, 7, 0, wave=OPT["SW"])
    NR = 6
    fa = lambda k: vBUF + 8 * (k % NR)
    d = lambda j: vACC + 16 * j
    dz = vACC + 32

    def steps(ks):
        for k in range(len(ks) + NR - 1):
            if k < len(ks):
                jb, j = ks[k]
                A(f"ds_read_b128 {vr(fa(k))}, v{ad+8*jb+4} offset:{j*1024}")
                A(f"ds_read_b128 {vr(fa(k)+4)}, v{ad+8*jb+5} offset:{j*1024}")
            c = k - (NR - 1)
            if c >= 0:
                jb, j = ks[c]
                A(f"s_waitcnt lgkmcnt({2*min(NR-1, len(ks)-1-c)})")
                A(f"v_mfma_f32_32x32x16_bf16 {vr(d(jb),16)}, {vr(fa(c))}, {vr(fa(c)+4)}, {vr(d(jb),16) if j else 0}")
                if jb == 0:
                    A(f"v_mfma_f32_16x16x32_bf16 {vr(dz)}, {vr(fa(c))}, {vr(vSel)}, {vr(dz) if j else 0}")
    A(f"s_cmp_lt_u32 s{sWave}, 5")
    A("s_cbranch_scc1 L_K_two")
    steps([(0, j) for j in range(8)])
    A("s_branch L_K_wr")
    A.label("L_K_two")
    steps([(1, j) for j in range(8)] + [(0, j) for j in range(8)])
    for q in range(4):
        A(f"ds_write_b128 v{ad+8+q}, {vr(d(1)+4*q)}")
    A.label("L_K_wr")
    A.fence()
    for q in range(4):
        A(f"ds_write_b128 v{ad+q}, {vr(d(0)+4*q)}")
    A(f"ds_write_b128 v{az}, {vr(dz)}")
    A("s_waitcnt lgkmcnt(0)")
    if OPT["STAMP"] == 6:
        stamp(A, 8, 0, wave=OPT["SW"])
    A("s_barrier")
    if OPT["STAMP"] == 6:
        stamp(A, 9, 0, wave=OPT["SW"])
    A(f"s_sub_u32 s{sSlab}, s{sCG}, 9")
    A(f"s_mul_i32 s{sSlab}, s{sSlab}, 13440")
    A(f"s_add_u32 s{sSlab}, s{sSlab}, {WS_KVA}")
    A(f"v_lshlrev_b32 v{vT0}, 2, v0")
    A(f"v_add_u32 v{vT1}, {SLAB}, v{vT0}")
    for j in range(7):
        A(f"ds_read_b32 v{vBUF+j}, v{vT1} offset:{j*2048}")
    A(f"v_cmp_gt_u32 vcc, {3360-6*512}, v0")
    A(f"v_mov_b32 v{vT3}, {OOB}")
    A(f"v_cndmask_b32 v{vT2}, v{vT3}, v{vT0}, vcc")
    for j in range(7):
        A(f"s_waitcnt lgkmcnt({6-j})")
        A(f"buffer_atomic_add_f32 v{vBUF+j}, v{vT0 if j < 6 else vT2}, {srd(S_WS)}, s{sSlab} offen offset:{(j%2)*2048}")
        if j % 2 == 1:
            A(f"s_add_u32 s{sSlab}, s{sSlab}, 4096")


def k1_aux(A):
    A(f"s_lshl_b32 s{sUw}, s{sRB}, 3")
    A(f"s_add_u32 s{sUw}, s{sUw}, s{sWave}")
    A(f"s_add_u32 s{sUw}, s{sUw}, 480")
    A(f"s_mul_i32 s{sUl}, s{sWave}, 12288")
    for i in range(3):
        A(f"s_add_u32 s{sU}, s{sUw}, {128*i}")
        A(f"s_add_u32 s9, s{sUl}, {4096*i}")
        w2_unit_dma(A, "s9")
    for i in range(4):
        A(f"v_mov_b32 v{vACC+i}, 0")
    A(f"v_lshlrev_b32 v{vT0}, 4, v0")
    A(f"s_mul_i32 s{sTmp}, s{sRB}, 3360")
    A(f"s_add_u32 s{sTmp}, s{sTmp}, {WS_KVA}")
    A(f"v_add_u32 v{vT0}, s{sTmp}, v{vT0}")
    A(f"v_mov_b32 v{vT2}, {OOB}")
    A(f"v_cmp_gt_u32 vcc, 210, v0")
    A(f"v_cndmask_b32 v{vT0}, v{vT2}, v{vT0}, vcc")
    A(f"s_cmp_lg_u32 s{sWave}, 7")
    A("s_cbranch_scc1 L_A_z")
    A(f"s_lshl_b32 s{sTmp}, s{sRB}, 8")
    A(f"s_add_u32 s{sTmp}, s{sTmp}, {WS_FL}")
    A(f"v_writelane_b32 v{vT0}, s{sTmp}, 0")
    A(f"s_lshl_b32 s{sTmp}, s{sRB}, 9")
    A(f"s_add_u32 s{sTmp}, s{sTmp}, {WS_FL + FL_KV}")
    A(f"v_writelane_b32 v{vT0}, s{sTmp}, 1")
    A(f"s_add_u32 s{sTmp}, s{sTmp}, 256")
    A(f"v_writelane_b32 v{vT0}, s{sTmp}, 2")
    A.label("L_A_z")
    A(f"buffer_store_dwordx4 {vr(vACC)}, v{vT0}, {srd(S_WS)}, 0 offen sc1")
    A("s_waitcnt vmcnt(13)")
    k1_stats(A, "X")
    for i in range(3):
        A(f"s_waitcnt vmcnt({10 - 4*i + 4*i})" if False else f"s_waitcnt vmcnt({(8 - 4*i) + 2 + 4*i})")
        A(f"s_add_u32 s{sU}, s{sUw}, {128*i}")
        A(f"s_add_u32 s9, s{sUl}, {4096*i}")
        w2_unit_out(A, "s9", lambda t: vACC + 16 + 16 * i + 4 * t)
    A("s_waitcnt vmcnt(0)")
    A("s_barrier")
    stamp(A, 9, 0)
    A(f"s_cmp_lg_u32 s{sWave}, 0")
    A("s_cbranch_scc1 L_A_w")
    k1_publish(A)
    A(f"s_mov_b32 s{sSpin}, 0")
    poll_addr(A)
    A.label("L_A_poll")
    A("s_sleep 32")
    A(f"buffer_load_dword v{vPoll}, v{vPa}, {srd(S_DBG)}, 0 offen sc1")
    A("s_waitcnt vmcnt(0)")
    poll_cmp(A)
    A(f"s_add_u32 s{sSpin}, s{sSpin}, 1")
    A(f"s_cmp_gt_u32 s{sSpin}, {SPIN_MAX}")
    A("s_cbranch_scc1 L_A_w")
    A(f"s_cmp_lg_u64 vcc, 0")
    A("s_cbranch_scc1 L_A_poll")
    A.label("L_A_w")
    A("s_barrier")
    stamp(A, 3, 0)
    p2_ids(A)
    A(f"s_mov_b32 s{sWoDone}, 0")
    A(f"v_mov_b32 v{vSigA}, {OOB}")
    A(f"v_mov_b32 v{vSigV}, 0")
    A("s_branch L_p2")


def kernel1(A):
    A(".p2align 8")
    A.label(NAME + "_kernel")
    A("s_cmp_ge_u32 s2, 256")
    A("s_cbranch_scc1 L_k1_exit")
    load_ptrs(A)
    A(f"v_and_b32 v{vLane}, 63, v0")
    A(f"v_lshrrev_b32 v{vT0}, 6, v0")
    A(f"v_readfirstlane_b32 s{sWave}, v{vT0}")
    A("s_and_b32 s3, s2, 7")
    A("s_lshr_b32 s4, s2, 3")
    A("s_lshr_b32 s5, s3, 2")
    A("s_and_b32 s6, s3, 3")
    A("s_mul_i32 s7, s6, 30")
    A("s_add_u32 s7, s7, s4")
    A(f"s_lshr_b32 s{sCG}, s7, 3")
    if OPT["CGPERM"]:
        perm = [0, 9, 1, 13, 2, 10, 3, 4, 5, 11, 6, 14, 7, 12, 8, 15]
        tab = sum(p << (4 * i) for i, p in enumerate(perm))
        A(f"s_mov_b32 s10, {tab & 0xffffffff}")
        A(f"s_mov_b32 s11, {tab >> 32}")
        A(f"s_lshl_b32 s{sCG}, s{sCG}, 2")
        A(f"s_lshr_b64 s[10:11], s[10:11], s{sCG}")
        A(f"s_and_b32 s{sCG}, s10, 15")
    A(f"s_and_b32 s{sRB}, s7, 7")
    A("s_lshl_b32 s8, s6, 1")
    A("s_add_u32 s8, s8, s4")
    A("s_sub_u32 s8, s8, 30")
    A("s_cmp_lt_u32 s4, 30")
    A(f"s_cselect_b32 s{sCG}, s{sCG}, 15")
    A(f"s_cselect_b32 s{sRB}, s{sRB}, s8")
    A("s_lshl_b32 s5, s5, 3")
    A(f"s_add_u32 s{sRB}, s{sRB}, s5")
    A(f"s_sub_u32 s3, s{sRB}, 10")
    A(f"s_cmp_lt_u32 s{sRB}, 10")
    A(f"s_cselect_b32 s{sC0}, s{sRB}, s3")
    Q = OPT["ROTQ"]
    if Q == 2:
        A(f"s_and_b32 s{sC0}, s{sC0}, 0xfe")
    elif Q == 5:
        A(f"s_cmp_lt_u32 s{sC0}, 5")
        A(f"s_cselect_b32 s{sC0}, 0, 5")
    A("s_waitcnt lgkmcnt(0)")
    mk_srd(A, S_X, P_X, 2048 * 1280)
    mk_srd(A, S_WS, P_WS, WS_SIZE)
    mk_srd(A, S_DBG, P_DBG, 256)
    stamp(A, 0, 0)
    if OPT["P2ONLY"]:
        p2_ids(A)
        A(f"s_mov_b32 s{sWoDone}, 0")
        A(f"v_mov_b32 v{vSigA}, {OOB}")
        A(f"v_mov_b32 v{vSigV}, 0")
        A("s_branch L_p2")
    k1_stats_issue(A)
    A(f"s_cmp_eq_u32 s{sCG}, 15")
    A("s_cbranch_scc1 L_aux")
    A(f"v_lshrrev_b32 v{vT0}, 3, v{vLane}")
    A(f"v_lshrrev_b32 v{vT1}, 4, v{vLane}")
    A(f"v_and_b32 v{vT2}, 7, v{vLane}")
    A(f"v_xor_b32 v{vT1}, v{vT1}, v{vT2}")
    if OPT["NOSWZ"]: A(f"v_and_b32 v{vT1}, 7, v{vLane}")
    A(f"s_lshl_b32 s3, s{sRB}, 7")
    if OPT["SAME"]: A("s_mov_b32 s3, 0")
    A(f"s_and_b32 s4, s{sWave}, 3")
    A(f"s_lshl_b32 s{sXslot}, s4, 12")
    A(f"s_lshl_b32 s4, s4, 5")
    A("s_add_u32 s3, s3, s4")
    A(f"v_add_u32 v{vT0}, s3, v{vT0}")
    A(f"v_mul_u32_u24 v{vT0}, 1280, v{vT0}")
    A(f"v_lshl_add_u32 v{vXo}, v{vT1}, 4, v{vT0}")
    A(f"v_xor_b32 v{vT1}, 4, v{vT1}")
    A(f"v_lshl_add_u32 v{vXo+1}, v{vT1}, 4, v{vT0}")
    A(f"v_add_u32 v{vXo+1}, {8*1280}, v{vXo+1}")
    A(f"s_lshl_b32 s{sKX}, s{sC0}, 7")
    A(f"s_mov_b32 s{sKXn}, 0")
    A(f"s_cmp_ge_u32 s{sCG}, 13")
    A("s_cbranch_scc1 L_typeQ")
    A(f"s_cmp_ge_u32 s{sCG}, 9")
    A("s_cbranch_scc1 L_typeK")
    k1_gemm(A, "G")
    A.label("L_typeQ")
    k1_gemm(A, "Q")
    A.label("L_typeK")
    k1_gemm(A, "K")
    A.label("L_aux")
    k1_aux(A)
    phase2(A)
    A.label("L_k1_exit")
    A("s_endpgm")


sRB64, sC, sHo, sWo, sFl, sWoDone, sWoL, sWoG, sWoI, sHb, sHe, sWb, sWe = sKW, sKWn, sKX, sKXn, sWslot, sRslot, sXslot, sStepW, sCSit, sSpec, sWrapW, sC0, sRow
vL16 = 5


def p2_ids(A):
    A("s_and_b32 s3, s2, 7")
    A("s_lshr_b32 s4, s2, 3")
    A(f"s_and_b32 s{sC}, s4, 7")
    A("s_lshr_b32 s4, s4, 3")
    A("s_lshl_b32 s3, s3, 2")
    A(f"s_add_u32 s{sRB64}, s3, s4")
    if OPT["P2SAME"] == 1:
        A(f"s_and_b32 s{sRB64}, s{sRB64}, 1")
        A(f"s_and_b32 s{sC}, s{sC}, 1")
    if OPT["P2SAME"] == 2:
        A(f"s_and_b32 s{sC}, s{sC}, 3")
    A(f"v_lshlrev_b32 v{vL16}, 4, v{vLane}")


WO_LDS = 32768


def wo_early(A, first, per_wave):
    A("s_lshr_b32 s4, s2, 3")
    A("s_and_b32 s4, s4, 7")
    A(f"s_mul_i32 s4, s4, {74*5120}")
    A(f"s_and_b32 s5, s{sWave}, 3")
    A(f"s_mul_i32 s5, s5, {per_wave*1024}")
    A("s_add_u32 s4, s4, s5")
    A(f"s_add_u32 s4, s4, {WS_W2 + 54*5120 + first*1024}")
    A(f"s_add_u32 s5, s5, {WO_LDS + first*1024}")
    A(f"v_lshlrev_b32 v{vT0}, 4, v{vLane}")
    for i in range(per_wave):
        if i % 4 == 0:
            A(f"s_add_u32 m0, s5, {i*1024}")
            A(f"s_add_u32 s6, s4, {i*1024}")
        A(f"buffer_load_dwordx4 v{vT0}, {srd(S_WS)}, s6 offen offset:{(i%4)*1024} sc1 lds")


def wo_setup(A):
    A(f"s_mul_i32 s{sWoL}, s{sWave}, 25600")
    A(f"s_add_u32 s{sWoL}, s{sWoL}, {WO_LDS}")
    A(f"s_mul_i32 s6, s{sC}, 74")
    A(f"s_mul_i32 s7, s{sWave}, 5")
    A("s_add_u32 s6, s6, s7")
    A("s_add_u32 s6, s6, 54")
    A("s_mul_i32 s6, s6, 5120")
    A(f"s_add_u32 s{sWoG}, s6, {WS_W2}")
    A(f"s_and_b32 s{sWoI}, s{sRB64}, 3")
    A(f"s_mul_i32 s{sWoI}, s{sWoI}, {6*1024}")


def wo_dmas():
    return [f"s_add_u32 m0, s{sWoL}, s{sWoI}\n"
            f"s_add_u32 s9, s{sWoG}, s{sWoI}\n"
            f"buffer_load_dwordx4 v{vL16}, {srd(S_WS)}, s9 offen sc1 lds\n"
            f"s_add_u32 s{sWoI}, s{sWoI}, 1024\n"
            f"s_cmp_eq_u32 s{sWoI}, {25*1024}\n"
            f"s_cselect_b32 s{sWoI}, 0, s{sWoI}" for _ in range(25)]


NK, WD, HD = 14, 6, 3
q4 = lambda a, b: list(range(a, b, 4))
WQ = q4(8, 56) + q4(128, 152) + q4(248, 256) + q4(112, 128) + q4(152, 168) + q4(200, 208)
AQ = q4(88, 112) + q4(168, 192) + q4(56, 88)
HQ = q4(192, 200) + q4(208, 248)
assert len(WQ) == 30 and len(AQ) == 20 and len(HQ) == 12 and len(set(WQ + AQ + HQ)) == 62
sLast = sOdd


def ffn_setup(A):
    A(f"s_sub_u32 s3, s{sWave}, 4")
    A("s_mul_i32 s4, s3, 14")
    A("s_cmp_eq_u32 s3, 3")
    A("s_cselect_b32 s5, 1, 0")
    A("s_sub_u32 s4, s4, s5")
    A("s_cmp_ge_u32 s3, 2")
    A("s_cselect_b32 s5, 13, 14")
    A(f"s_cselect_b32 s{sLast}, {OOB}, 0")
    A(f"s_and_b32 s6, s{sRB64}, 3")
    A("s_lshl_b32 s6, s6, 1")
    A(f"s_add_u32 s6, s6, s{sC}")
    A("s_mul_i32 s6, s6, 7")
    A("s_lshr_b32 s6, s6, 2")
    A("s_sub_u32 s7, s6, s5")
    A("s_cmp_ge_u32 s6, s5")
    A("s_cselect_b32 s6, s7, s6")
    if not OPT["P2ROT"]:
        A("s_mov_b32 s6, 0")
    A(f"s_mul_i32 s{sHb}, s{sRB64}, 54")
    A(f"s_add_u32 s{sHb}, s{sHb}, s4")
    A(f"s_lshl_b32 s{sHb}, s{sHb}, 12")
    A("s_lshl_b32 s7, s5, 12")
    A(f"s_add_u32 s{sHe}, s{sHb}, s7")
    A("s_lshl_b32 s7, s6, 12")
    A(f"s_add_u32 s{sHo}, s{sHb}, s7")
    A(f"s_mul_i32 s{sWb}, s{sC}, 74")
    A(f"s_add_u32 s{sWb}, s{sWb}, s4")
    A(f"s_mul_i32 s{sWb}, s{sWb}, 5120")
    A(f"s_add_u32 s{sWb}, s{sWb}, {WS_W2}")
    A("s_mul_i32 s7, s5, 5120")
    A(f"s_add_u32 s{sWe}, s{sWb}, s7")
    A("s_mul_i32 s7, s6, 5120")
    A(f"s_add_u32 s{sWo}, s{sWb}, s7")


def ldW_groups(j):
    out = []
    pre = f"s_add_u32 s{sWo}, s{sWo}, s{sLast}\n" if j == NK - 1 else ""
    for nt in range(4):
        out.append((pre if nt == 0 else "") +
                   f"buffer_load_dwordx4 {vr(WQ[5*(j%WD)+nt])}, v{vL16}, {srd(S_WS)}, s{sWo} offen offset:{nt*1024}{HSC}")
    out.append(f"s_add_u32 s3, s{sWo}, 4096\n"
               f"buffer_load_dwordx4 {vr(WQ[5*(j%WD)+4])}, v{vL16}, {srd(S_WS)}, s3 offen{HSC}\n"
               f"s_add_u32 s{sWo}, s{sWo}, 5120\n"
               f"s_cmp_eq_u32 s{sWo}, s{sWe}\n"
               f"s_cselect_b32 s{sWo}, s{sWb}, s{sWo}")
    return out


def poll_flag(A, lab, addr_s, mask, target, vtmp):
    A(f"s_mov_b32 s{sSpin}, 0")
    A(f"v_mov_b32 v{vtmp+1}, 0")
    A.label(lab)
    A(f"buffer_load_dword v{vtmp}, v{vtmp+1}, {srd(S_WS)}, s{addr_s} offen sc1")
    A("s_waitcnt vmcnt(0)")
    A(f"v_readfirstlane_b32 s{sTmp3}, v{vtmp}")
    A(f"s_add_u32 s{sSpin}, s{sSpin}, 1")
    A(f"s_and_b32 s{sTmp3}, s{sTmp3}, {mask}")
    A(f"s_cmp_ge_u32 s{sTmp3}, {0 if OPT['P2ONLY'] else target}")
    A(f"s_cbranch_scc1 {lab}_ok")
    A(f"s_cmp_gt_u32 s{sSpin}, {SPIN_MAX}")
    A(f"s_cbranch_scc1 {lab}_ok")
    A("s_sleep 6")
    A(f"s_branch {lab}")
    A.label(lab + "_ok")


def phase2(A):
    S_OUT = S_T
    ACC = 8
    acc = lambda nt, mt: ACC + 4 * (nt * 4 + mt)
    A.label("L_p2")
    mk_srd(A, S_OUT, P_OUT, 2048 * 1280)
    A(f"s_lshr_b32 s{sFl}, s{sRB64}, 1")
    A(f"s_lshl_b32 s{sFl}, s{sFl}, 8")
    A(f"s_add_u32 s{sFl}, s{sFl}, {WS_FL + FL_HC}")
    A.fence()
    A(f"s_cmp_ge_u32 s{sWave}, 4")
    A("s_cbranch_scc1 L2_ffn")

    def signal(n_younger):
        A(f"s_waitcnt vmcnt({n_younger}) lgkmcnt(0)")
        A("s_barrier")

    AD = 8
    RAW, NRAW = 56, 6
    FR = 80
    OSP = 96
    PQ = lambda mt, blk: 112 + 16 * blk + 4 * mt
    O = lambda u, mt: (OSP + 4 * mt) if u == 0 else PQ(mt, u - 1)
    DEN = 192
    NM = 224
    T = 192
    signal(0)
    A(f"s_cmp_lg_u32 s{sWave}, 0")
    A("s_cbranch_scc1 L2_nosig")
    A(f"buffer_atomic_add v{vSigV}, v{vSigA}, {srd(S_WS)}, 0 offen sc1")
    A.label("L2_nosig")
    stamp(A, 0, 1)
    if OPT["NOATT"]:
        A("s_branch L2_reduce")
    A(f"s_cmp_eq_u32 s{sWoDone}, 1")
    A("s_cbranch_scc1 L2_wodone")
    wo_setup(A)
    for g in wo_dmas():
        A(g)
    A.label("L2_wodone")
    A(f"s_mul_i32 s4, s{sWave}, 25600")
    A(f"s_add_u32 s4, s4, {WO_LDS}")
    for i in range(4):
        A(f"v_mov_b32 v{T+i}, 0")
    A(f"v_mov_b32 v{vT2}, 28672")
    A(f"ds_write_b128 v{vT2}, {vr(T)}")
    iL, gL = T + 4, T + 5
    he = T + 12
    hd = T + 22
    ab, zb, hz = T + 6, T + 7, T + 8
    A(f"v_and_b32 v{iL}, 15, v{vLane}")
    A(f"v_lshrrev_b32 v{gL}, 4, v{vLane}")
    for Tt in range(10):
        A(f"v_add_u32 v{he+Tt}, {16*Tt}, v{iL}")
        A(f"v_mul_u32_u24 v{he+Tt}, 205, v{he+Tt}")
        A(f"v_lshrrev_b32 v{he+Tt}, 12, v{he+Tt}")
    for blk in range(5):
        for h in range(2):
            r = hd + 2 * blk + h
            A(f"v_lshlrev_b32 v{r}, 3, v{gL}")
            A(f"v_add_u32 v{r}, {32*blk+4*h}, v{r}")
            A(f"v_mul_u32_u24 v{r}, 205, v{r}")
            A(f"v_lshrrev_b32 v{r}, 12, v{r}")
    A(f"s_mul_i32 s8, s{sWave}, 14336")
    A(f"s_cmp_ge_u32 s{sWave}, 2")
    A(f"s_cselect_b32 s9, {135168 - 2*14336}, 0")
    A("s_add_u32 s8, s8, s9")
    A(f"v_mul_u32_u24 v{ab}, 80, v{iL}")
    A(f"v_lshl_add_u32 v{ab}, v{gL}, 5, v{ab}")
    A(f"v_add_u32 v{ab}, s8, v{ab}")
    A(f"v_and_b32 v{hz}, 3, v{iL}")
    A(f"v_mul_u32_u24 v{zb}, 1600, v{hz}")
    A(f"v_lshl_add_u32 v{zb}, v{gL}, 5, v{zb}")
    A(f"v_add_u32 v{zb}, s8, v{zb}")
    NUM = {0: [0], 1: [0, 1], 2: [0, 1], 3: [1, 2], 4: [1, 2], 5: [2, 3], 6: [2, 3], 7: [3, 4], 8: [3, 4], 9: [4]}
    frs = []
    for ch in range(2):
        A(f"v_add_u32 v{T+9}, {4*ch}, v{hz}")
        bl = [0, 1, 2] if ch == 0 else [2, 3, 4]
        for blk in bl:
            n = len(frs)
            frs.append(("z", ch, blk, blk == bl[0], blk == bl[-1]))
            for h in range(2):
                a = AD + 2 * n + h
                A(f"v_cmp_eq_u32 vcc, v{T+9}, v{hd+2*blk+h}")
                A(f"v_add_u32 v{a}, {6400*ch+1600+128*blk+16*h}, v{zb}")
                A(f"v_cndmask_b32 v{a}, v{vT2}, v{a}, vcc")
    for Tt in range(10):
        for blk in NUM[Tt]:
            n = len(frs)
            frs.append(("n", Tt, blk, blk == NUM[Tt][0], blk == NUM[Tt][-1]))
            for h in range(2):
                a = AD + 2 * n + h
                A(f"v_cmp_eq_u32 vcc, v{he+Tt}, v{hd+2*blk+h}")
                A(f"v_add_u32 v{a}, {1280*Tt+128*blk+16*h}, v{ab}")
                A(f"v_cndmask_b32 v{a}, v{vT2}, v{a}, vcc")
    assert len(frs) == 24
    sM = 84
    for k in range(3):
        A(f"v_cmp_lt_u32 s[{sM+2*k}:{sM+2*k+1}], {k}, v{gL}")
    stamp(A, 7, 1, vt=vT0)
    poll_flag(A, "L2_pq", sFl, 0xff00, 0x200, vT0)
    stamp(A, 8, 1, vt=vT0)
    A(f"s_mul_i32 s6, s{sRB64}, 20")
    A(f"s_mul_i32 s7, s{sWave}, 5")
    A("s_add_u32 s6, s6, s7")
    A("s_lshl_b32 s6, s6, 12")
    A(f"s_add_u32 s6, s6, {WS_PQ}")
    for blk in range(5):
        for mt in range(4):
            A(f"buffer_load_dwordx4 {vr(PQ(mt, blk))}, v{vL16}, {srd(S_WS)}, s6 offen offset:{mt*1024} sc1")
        A(f"s_add_u32 s6, s6, 4096")
    A(f"s_lshl_b32 s6, s{sWave}, 3")
    A("s_and_b32 s7, s2, 7")
    A("s_add_u32 s6, s6, s7")
    A("s_lshl_b32 s6, s6, 8")
    A(f"s_add_u32 s6, s6, {WS_FL + FL_KV}")
    poll_flag(A, "L2_kv", 6, 0xff, 16, vT0)
    stamp(A, 3, 1, vt=vT0)
    A(f"s_mul_i32 s3, s{sWave}, 13440")
    A(f"s_add_u32 s3, s3, {WS_KVA}")
    for i in range(14):
        if i % 4 == 0:
            A(f"s_add_u32 m0, s8, {i*1024}")
            A(f"s_add_u32 s5, s3, {i*1024}")
        A(f"buffer_load_dwordx4 v{vL16}, {srd(S_WS)}, s5 offen offset:{(i%4)*1024} sc1 lds")
    A("s_waitcnt vmcnt(0) lgkmcnt(0)")
    stamp(A, 9, 1, vt=vT0)
    raw = lambda k: RAW + 4 * (k % NRAW)
    fr = lambda n: FR + 4 * (n % 4)
    dst = lambda f, mt: (DEN + 8 * mt + 4 * f[1]) if f[0] == "z" else (NM + 16 * (f[1] % 2) + 4 * mt)

    def rd(n):
        for h in range(2):
            A(f"ds_read_b128 {vr(raw(2*n+h))}, v{AD+2*n+h}")

    def post(f):
        out = []
        if f[0] == "z":
            for mt in range(4):
                for i in range(4):
                    r = DEN + 8 * mt + 4 * f[1] + i
                    out.append(f"v_add_f32 v{r}, {f32(1e-6)}, v{r}")
            for mt in range(4):
                for i in range(4):
                    r = DEN + 8 * mt + 4 * f[1] + i
                    out.append(f"v_rcp_f32 v{r}, v{r}")
            return out
        Tt = f[1]
        lo, hi = (4 * Tt) // 5, (4 * Tt + 3) // 5
        sl = {}
        for mt in range(4):
            if lo == hi:
                sl[mt] = DEN + 8 * mt + lo
            else:
                thr = 5 * hi - 4 * Tt
                sl[mt] = AD + mt
                out.append(f"v_cndmask_b32 v{sl[mt]}, v{DEN+8*mt+lo}, v{DEN+8*mt+hi}, s[{sM+2*(thr-1)}:{sM+2*(thr-1)+1}]")
        for mt in range(4):
            d = dst(f, mt)
            for i in range(4):
                out.append(f"v_mul_f32 v{d+i}, v{d+i}, v{sl[mt]}")
        for mt in range(4):
            d = dst(f, mt)
            ob = O(Tt // 2, mt) + 2 * (Tt % 2)
            out.append(f"v_cvt_pk_bf16_f32 v{ob}, v{d}, v{d+1}")
            out.append(f"v_cvt_pk_bf16_f32 v{ob+1}, v{d+2}, v{d+3}")
        return out
    rd(0)
    rd(1)
    pend = []
    nxt = []
    for n in range(26):
        if n + 2 < 24:
            rd(n + 2)
        cv = []
        if n < 24:
            A(f"s_waitcnt lgkmcnt({2*min(2, 23-n)})")
            for h in range(2):
                cv.append(f"v_cvt_pk_bf16_f32 v{fr(n)+2*h}, v{raw(2*n+h)}, v{raw(2*n+h)+1}")
                cv.append(f"v_cvt_pk_bf16_f32 v{fr(n)+2*h+1}, v{raw(2*n+h)+2}, v{raw(2*n+h)+3}")
        mf = []
        if 1 <= n <= 24:
            f = frs[n - 1]
            if f[3] and f[0] == "n":
                need = [x for x in pend if x[0] <= f[1] - 2]
                for x in need:
                    A(x[1])
                pend = [x for x in pend if x[0] > f[1] - 2]
            for mt in range(4):
                d = vr(dst(f, mt))
                mf.append(f"v_mfma_f32_16x16x32_bf16 {d}, {vr(fr(n-1))}, {vr(PQ(mt, f[2]))}, {0 if f[3] else d}")
        take = pend[:14]
        pend = pend[14:]
        work = cv + [x[1] for x in take]
        for g in (interleave(mf, work) if mf else work):
            A(g)
        pend += nxt
        nxt = []
        if 1 <= n <= 24 and frs[n - 1][4]:
            f = frs[n - 1]
            nxt = [((f[1] if f[0] == "n" else -9), x) for x in post(f)]
    for x in pend + nxt:
        A(x[1])
    stamp(A, 11, 1, vt=vT0)
    WF = 192
    A(f"v_add_u32 v{vT0}, s4, v{vL16}")
    A.fence()

    def rd_wo(u):
        for nt in range(5):
            A(f"ds_read_b128 {vr(WF+20*(u%2)+4*nt)}, v{vT0} offset:{(u*5+nt)*1024}")
    rd_wo(0)
    for u in range(5):
        if u + 1 < 5:
            rd_wo(u + 1)
        A(f"s_waitcnt lgkmcnt({5 if u < 4 else 0})")
        for nt in range(5):
            for mt in range(4):
                d = vr(acc(nt, mt))
                A(f"v_mfma_f32_16x16x32_bf16 {d}, {vr(WF+20*(u%2)+4*nt)}, {vr(O(u, mt))}, {d if u else 0}")
    A("s_branch L2_reduce")

    A.label("L2_ffn")
    q = []

    def ldW(j):
        for g in ldW_groups(j):
            A(g)
        q.extend([("W", j)] * 5)

    def ldH1(j, mt):
        if j == NK - 1 and mt == 0:
            A(f"s_add_u32 s{sHo}, s{sHo}, s{sLast}")
        A(f"buffer_load_dwordx4 {vr(HQ[4*(j%HD)+mt])}, v{vL16}, {srd(S_WS)}, s{sHo} offen offset:{mt*1024}{HSC}")
        if mt == 3:
            A(f"s_add_u32 s{sHo}, s{sHo}, 4096")
            A(f"s_cmp_eq_u32 s{sHo}, s{sHe}")
            A(f"s_cselect_b32 s{sHo}, s{sHb}, s{sHo}")
        q.append(("H", j, mt))

    def ldH(j):
        for mt in range(4):
            ldH1(j, mt)
    signal(0)
    A(f"s_cmp_lg_u32 s{sWoDone}, 0")
    A("s_cbranch_scc1 L2_ws")
    ffn_setup(A)
    A.label("L2_ws")
    for j in range(0, WD, 2):
        A(f"s_cmp_gt_u32 s{sWoDone}, {j+1}")
        A(f"s_cbranch_scc1 L2_w{j}")
        ldW(j)
        ldW(j + 1)
        A.label(f"L2_w{j}")
    stamp(A, 4, 1, wave=4, vt=vT0)
    poll_flag(A, "L2_h", sFl, 0xff, 9, vT0)
    stamp(A, 5, 1, wave=4, vt=vT0)
    stamp(A, 14, 1, wave=4, vt=vT0, clk=True)
    q.clear()
    for j in range(HD):
        ldH(j)
    A(f"s_setprio {OPT['FPRIO']}")
    for j in range(NK):
        for mt in range(4):
            last = max(i for i, e in enumerate(q) if e[1] == j and (e[0] == "W" or e[2] <= mt))
            A(f"s_waitcnt vmcnt({len(q)-1-last})")
            for nt in range(5):
                d = vr(AQ[nt*4+mt])
                if not OPT["NOMF"]: A(f"v_mfma_f32_16x16x32_bf16 {d}, {vr(WQ[5*(j%WD)+nt])}, {vr(HQ[4*(j%HD)+mt])}, {d if j else 0}")
            if j + HD < NK:
                ldH1(j + HD, mt)
        if j + WD < NK:
            ldW(j + WD)
    A("s_setprio 0")
    A.fence()
    A("s_waitcnt vmcnt(0)")
    mv = [(ACC + 4 * t + i, AQ[t] + i) for t in range(20) for i in range(4)]
    for d_, s_ in mv:
        if d_ != s_:
            A(f"v_mov_b32 v{d_}, v{s_}")

    A.label("L2_reduce")
    stamp(A, 1, 1)
    stamp(A, 6, 1, wave=4, vt=vT0)
    stamp(A, 15, 1, wave=4, vt=vT0, clk=True)
    XR = 88
    OA = 96
    A.fence()
    for j in range(3):
        A(f"s_add_u32 s3, s{sWave}, {8*j}")
        A(f"s_lshr_b32 s4, s3, 2")
        A(f"s_and_b32 s5, s3, 3")
        A(f"s_lshl_b32 s6, s{sRB64}, 6")
        A(f"s_lshl_b32 s5, s5, 4")
        A("s_add_u32 s6, s6, s5")
        A("s_mul_i32 s6, s6, 1280")
        A(f"s_mul_i32 s7, s{sC}, 160")
        A("s_add_u32 s6, s6, s7")
        A("s_lshl_b32 s4, s4, 5")
        A("s_add_u32 s6, s6, s4")
        A("s_cmp_lt_u32 s3, 20")
        A(f"s_cselect_b32 s6, s6, {OOB}")
        A(f"v_and_b32 v{vT1}, 15, v{vLane}")
        A(f"v_mul_u32_u24 v{vT1}, 1280, v{vT1}")
        A(f"v_lshrrev_b32 v{vT2}, 4, v{vLane}")
        A(f"v_lshl_add_u32 v{vT1}, v{vT2}, 3, v{vT1}")
        A(f"v_add_u32 v{OA+j}, s6, v{vT1}")
        A(f"buffer_load_dwordx2 {vr(XR+2*j, 2)}, v{OA+j}, {srd(S_X)}, 0 offen")
    A("s_waitcnt lgkmcnt(0)")
    A("s_barrier")
    stamp(A, 12, 1)
    A(f"s_mul_i32 s3, s{sWave}, 20480")
    A(f"v_add_u32 v{vT0}, s3, v{vL16}")
    for t in range(20):
        A(f"ds_write_b128 v{vT0}, {vr(ACC+4*t)} offset:{t*1024}")
    A("s_waitcnt lgkmcnt(0)")
    A("s_barrier")
    stamp(A, 13, 1)
    R = 100
    for j in range(3):
        if j == 2:
            A(f"s_cmp_ge_u32 s{sWave}, 4")
            A("s_cbranch_scc1 L2_done")
        A(f"s_lshl_b32 s3, s{sWave}, 10")
        A(f"s_add_u32 s3, s3, {j*8192}")
        A(f"v_add_u32 v{vT0}, s3, v{vL16}")
        A(f"v_add_u32 v{vT1}, {4*20480}, v{vT0}")
        for w in range(8):
            A(f"ds_read_b128 {vr(R+4*w)}, v{vT0 if w < 4 else vT1} offset:{(w%4)*20480}")
        A("s_waitcnt lgkmcnt(0)")
        for w in range(1, 8):
            for i in range(4):
                A(f"v_add_f32 v{R+i}, v{R+i}, v{R+4*w+i}")
        A("s_waitcnt vmcnt(2)")
        x0, x1 = XR + 2 * j, XR + 2 * j + 1
        A(f"v_lshlrev_b32 v{R+4}, 16, v{x0}")
        A(f"v_and_b32 v{R+5}, 0xffff0000, v{x0}")
        A(f"v_lshlrev_b32 v{R+6}, 16, v{x1}")
        A(f"v_and_b32 v{R+7}, 0xffff0000, v{x1}")
        for i in range(4):
            A(f"v_add_f32 v{R+i}, v{R+i}, v{R+4+i}")
        A(f"v_cvt_pk_bf16_f32 v{x0}, v{R}, v{R+1}")
        A(f"v_cvt_pk_bf16_f32 v{x1}, v{R+2}, v{R+3}")
        A(f"buffer_store_dwordx2 {vr(x0, 2)}, v{OA+j}, {srd(S_OUT)}, 0 offen" + ["", " sc1", " nt"][OPT["OUTSC"]])
    A.label("L2_done")
    stamp(A, 2, 1)


def descriptor(name, vgpr=256):
    return f""".amdhsa_kernel {name}
  .amdhsa_next_free_vgpr {vgpr}
  .amdhsa_next_free_sgpr 102
  .amdhsa_accum_offset {vgpr}
  .amdhsa_group_segment_fixed_size 0
  .amdhsa_kernarg_size 80
  .amdhsa_user_sgpr_count 2
  .amdhsa_user_sgpr_kernarg_segment_ptr 1
  .amdhsa_system_sgpr_workgroup_id_x 1
.end_amdhsa_kernel
"""


def main():
    A = Asm()
    kernel1(A)
    K = NAME + "_kernel"
    head = f"""; LN + linear attention + GEGLU FFN, one persistent launch (generated by dev/gen.py)
; @launch grid=(256,1,1) block=(512,1,1) lds={LDS_TOTAL}
.amdgcn_target "amdgcn-amd-amdhsa--gfx950"
.text
.globl {K}
.type {K},@function
"""
    tail = '.section .rodata,"a"\n.p2align 6\n' + descriptor(K)
    open(sys.argv[1], "w").write(head + A.render() + tail)


main()
```

```python
import sys, struct, math
from asmlib import Asm, interleave

NAME = "parallel_sum__linear_attn_block__geglu_ffn__prompt"

OPT = dict(ROTQ=1, STAMP=0, NODMA=0, SAME=0, NOSWZ=0, NORD=0, P2ROT=1, WARM=1, PLAIN=0, BYTEFLAG=0, NBUP=6, SW=0, P2ONLY=0, P2SAME=0, NOATT=0, NOMF=0, FPRIO=1, NPRE=2, CGPERM=0, OUTSC=0, CODEWARM=1, TLBWARM=0, PUBST=0, GPK=1, APRIO=2, APRIO2=0, FINEH=1)
for a in sys.argv[2:]:
    k, v = a.split("=")
    OPT[k] = int(v)

HSC = '' if OPT['PLAIN'] else ' sc1'
WS_H = 0x000000
WS_PQ = 0x700000
WS_W2 = 0xA00000
WS_ST = 0xD00000
WS_CS = 0xD10000
WS_KVA = 0xD80000
WS_FL = 0xD90000
FL_HC = 0
FL_KV = 16 * 256
WS_STAMP = 0xF00000
WS_SIZE = 0x1000000
OOB = 0x40000000


def f32(x):
    return "0x%08x" % struct.unpack("<I", struct.pack("<f", x))[0]


LOG2E = 1.4426950408889634
GC1 = -2.0 * math.sqrt(2.0 / math.pi) * LOG2E
GC2 = GC1 * 0.044715

P_X, P_WQKV, P_WO, P_BX, P_G, P_U, P_D, P_OUT, P_DBG, P_WS = 16, 18, 20, 22, 24, 26, 28, 30, 32, 34
S_X, S_W, S_WS, S_DBG, S_T = 36, 40, 44, 48, 52


def srd(b):
    return f"s[{b}:{b+3}]"


def vr(b, n=4):
    return f"v[{b}:{b+n-1}]"


def mk_srd(A, s, p, nbytes):
    A(f"s_mov_b32 s{s}, s{p}")
    A(f"s_and_b32 s{s+1}, s{p+1}, 0xffff")
    A(f"s_mov_b32 s{s+2}, {nbytes}")
    A(f"s_mov_b32 s{s+3}, 0x20000")


def load_ptrs(A):
    A("s_load_dwordx16 s[16:31], s[0:1], 0")
    A("s_load_dwordx4 s[32:35], s[0:1], 64")


def wave_allreduce_add(A, v, t, s0):
    A(f"v_add_f32_dpp v{v}, v{v}, v{v} quad_perm:[1,0,3,2] row_mask:0xf bank_mask:0xf")
    A(f"v_add_f32_dpp v{v}, v{v}, v{v} quad_perm:[2,3,0,1] row_mask:0xf bank_mask:0xf")
    A(f"v_add_f32_dpp v{v}, v{v}, v{v} row_half_mirror row_mask:0xf bank_mask:0xf")
    A(f"v_add_f32_dpp v{v}, v{v}, v{v} row_mirror row_mask:0xf bank_mask:0xf")
    for i in range(4):
        A(f"v_readlane_b32 s{s0+i}, v{v}, {16*i}")
    A(f"v_mov_b32 v{v}, s{s0}")
    A(f"v_mov_b32 v{t}, s{s0+2}")
    A(f"v_add_f32 v{v}, s{s0+1}, v{v}")
    A(f"v_add_f32 v{t}, s{s0+3}, v{t}")
    A(f"v_add_f32 v{v}, v{v}, v{t}")


def lstamp(A, k):
    if OPT["STAMP"] != 4:
        return
    A("s_memrealtime s[96:97]")
    A("s_waitcnt lgkmcnt(0)")
    A(f"v_writelane_b32 v253, s96, {k}")


def stamp(A, idx, kern, dyn=None, clk=False, wave=0, vt=None):
    if vt is None:
        vt = (26 if idx != 3 else 50) if kern == 0 else 254
    if not OPT["STAMP"]:
        return
    if OPT["STAMP"] == 9:
        slot = {(0, 0): (1, True), (0, 1): (2, False), (0, 2): (3, False), (0, 3): (5, False), (1, 0): (6, False), (1, 5): (7, False),
                (1, 3): (9, False), (1, 1): (10, False), (1, 2): (11, False), (1, 6): (13, False)}.get((kern, idx))
        if slot is None or clk:
            return
        lab = f"L_st_{kern}_{idx}_{len(A.lines)}"
        A(f"s_cmp_lg_u32 s{sWave}, {wave}")
        A(f"s_cbranch_scc1 {lab}")
        A("s_memrealtime s[96:97]")
        A("s_waitcnt lgkmcnt(0)")
        if slot[1]:
            A("s_not_b32 s96, s96")
        A(f"v_mov_b32 v{vt}, s96")
        A(f"v_mov_b32 v{vt+1}, {OOB}")
        A(f"v_writelane_b32 v{vt+1}, {slot[0]*4}, 0")
        A(f"buffer_atomic_umax v{vt}, v{vt+1}, {srd(S_DBG)}, 0 offen sc1")
        A.label(lab)
        return
    lab = f"L_st_{kern}_{idx}_{len(A.lines)}"
    A(f"s_cmp_lg_u32 s{sWave}, {wave}")
    A(f"s_cbranch_scc1 {lab}")
    A("s_memtime s[96:97]" if clk else "s_memrealtime s[96:97]")
    A("s_waitcnt lgkmcnt(0)")
    A(f"s_lshl_b32 s98, s2, 6")
    A(f"s_add_u32 s98, s98, {WS_STAMP + kern*0x8000 + idx*4}")
    if dyn is not None:
        A(f"s_lshl_b32 s99, s{dyn}, 2")
        A("s_add_u32 s98, s98, s99")
    A(f"v_mov_b32 v{vt}, s96")
    A(f"v_mov_b32 v{vt+1}, 0")
    A(f"buffer_store_dword v{vt}, v{vt+1}, {srd(S_WS)}, s98 offen")
    A.label(lab)


sWave, sRB, sCG, sIt, sKW, sKWn, sKX, sKXn, sWslot, sRslot, sXslot, sStepW, sCSit, sSpec, sTmp, sTmp2, sMW, sNW, sWrapW, sTmp3, sC0, sRow, sSpin, sOdd, sPub, sUw, sUl = range(56, 83)
X_LDS = 0
W_LDS = 32768
W_SLOT = 24576
MISC_LDS = W_LDS + 5 * W_SLOT
LDS_TOTAL = 163840

vLane, vT0, vT1, vT2, vT3 = 1, 2, 3, 4, 5
vSigA, vSigV = 6, 7
vXo = 6
vWo = 8
vXa = 11
vWb = 15
vWa = 20
vPa = 25
SPIN_MAX = 0x100000
vSel = 52
vPoll = 30
vCSA = 32
vCSP = 32
vSt = 31
KST = lambda j: (44 + 4 * j) if j < 3 else (232 + 4 * (j - 3))
vBUF = 56
vACC = 152


KVT = [[(0, 0), (0, 1), (0, 2), (1, 0), (1, 1)], [(0, 3), (0, 4), (1, 2), (1, 3), (1, 4)]]


def k1_gemm(A, typ):
    G = typ == "G"
    MT = 2 if G else 1
    NT = 3 if G else 5
    NW_ = 6 if G else 5
    pitch = 3456 if G else 3840
    XB = lambda P, mt, kk: vBUF + 48 * P + 4 * (mt * 2 + kk)
    WBf = lambda P, a, kk: vBUF + 48 * P + 4 * MT * 2 + 4 * (a * 2 + kk)
    acc = lambda mt, a: vACC + 16 * (mt * NT + a)
    L = lambda s: f"L_{typ}_{s}"

    if G:
        A(f"s_lshr_b32 s{sMW}, s{sWave}, 2")
        A(f"s_and_b32 s{sNW}, s{sWave}, 3")
        mk_srd(A, S_W, P_G, 640 * 3456)
        mk_srd(A, S_T, P_U, 640 * 3456)
    else:
        A(f"s_lshr_b32 s{sMW}, s{sWave}, 1")
        A(f"s_and_b32 s{sNW}, s{sWave}, 1")
        mk_srd(A, S_W, P_WQKV, 640 * 3840)
    A(f"s_and_b32 s{sTmp2}, s{sWave}, 3")
    A(f"v_lshrrev_b32 v{vT0}, 3, v{vLane}")
    A(f"s_lshl_b32 s{sTmp3}, s{sTmp2}, 3")
    A(f"v_add_u32 v{vT0}, s{sTmp3}, v{vT0}")
    A(f"v_mul_u32_u24 v{vT0}, {pitch}, v{vT0}")
    A(f"v_and_b32 v{vT1}, 7, v{vLane}")
    A(f"v_lshrrev_b32 v{vT2}, 2, v{vLane}")
    A(f"v_and_b32 v{vT2}, 4, v{vT2}")
    A(f"v_xor_b32 v{vT1}, v{vT1}, v{vT2}")
    if G:
        A(f"s_mul_i32 s{sTmp3}, s{sCG}, {0 if OPT['SAME'] else 384}")
        A(f"v_add_u32 v{vT0}, s{sTmp3}, v{vT0}")
        A(f"v_lshl_add_u32 v{vWo}, v{vT1}, 4, v{vT0}")
        A(f"v_xor_b32 v{vT1}, 2, v{vT1}")
        A(f"v_lshl_add_u32 v{vWo+1}, v{vT1}, 4, v{vT0}")
        chunks = [(S_W, vWo, 0), (S_W, vWo, 128), (S_W, vWo, 256), (S_T, vWo + 1, 0), (S_T, vWo + 1, 128), (S_T, vWo + 1, 256)]
    elif typ == "Q":
        A(f"s_sub_u32 s{sTmp3}, s{sCG}, 13")
        A(f"s_mul_i32 s{sTmp3}, s{sTmp3}, 640")
        A(f"v_add_u32 v{vT0}, s{sTmp3}, v{vT0}")
        A(f"v_lshl_add_u32 v{vWo}, v{vT1}, 4, v{vT0}")
        chunks = [(S_W, vWo, 128 * i) for i in range(5)]
    else:
        A(f"s_sub_u32 s4, s{sCG}, 9")
        A(f"s_and_b32 s{sOdd}, s4, 1")
        A(f"s_mul_i32 s6, s4, 320")
        A(f"s_add_u32 s6, s6, 1280")
        A(f"s_lshl_b32 s7, s{sOdd}, 6")
        A(f"s_add_u32 s7, s7, s6")
        A(f"s_cmp_eq_u32 s{sOdd}, 0")
        A(f"s_cselect_b32 s8, 256, 0")
        A(f"s_add_u32 s8, s8, s6")
        A(f"v_lshl_add_u32 v{vT2}, v{vT1}, 4, v{vT0}")
        A(f"v_add_u32 v{vWo}, s7, v{vT2}")
        A(f"v_xor_b32 v{vT3}, 2, v{vT1}")
        A(f"v_lshl_add_u32 v{vT2}, v{vT3}, 4, v{vT0}")
        A(f"v_add_u32 v{vWo+2}, s7, v{vT2}")
        A(f"v_lshrrev_b32 v{vT2}, 2, v{vT1}")
        A(f"v_lshlrev_b32 v{vT3}, 1, v{vT2}")
        A(f"v_xor_b32 v{vT3}, v{vT3}, v{vT1}")
        A(f"v_and_b32 v{vT3}, 3, v{vT3}")
        A(f"v_lshl_add_u32 v{vT3}, v{vT3}, 4, v{vT0}")
        A(f"v_mul_u32_u24 v{vT2}, 1280, v{vT2}")
        A(f"v_add3_u32 v{vWo+1}, v{vT3}, v{vT2}, s8")
        chunks = [(S_W, vWo, 0), (S_W, vWo, 128), (S_W, vWo + 2, 1280), (S_W, vWo + 2, 1408), (S_W, vWo + 1, 0)]
    A(f"s_lshr_b32 s{sTmp}, s{sWave}, 2")
    A(f"s_lshl_b32 s{sTmp2}, s{sTmp2}, 10")
    A(f"s_add_u32 s{sWrapW}, s{sTmp2}, {W_LDS + 5*W_SLOT}")
    A(f"s_mul_i32 s{sWslot}, s{sTmp}, {W_SLOT}")
    A(f"s_add_u32 s{sWslot}, s{sWslot}, s{sTmp2}")
    A(f"s_add_u32 s{sWslot}, s{sWslot}, {W_LDS}")
    A(f"s_mul_i32 s{sKW}, s{sC0}, {64*pitch}")
    A(f"s_mul_i32 s{sTmp}, s{sTmp}, {32*pitch}")
    A(f"s_add_u32 s{sKW}, s{sKW}, s{sTmp}")
    A(f"s_mov_b32 s{sKWn}, 0")

    def dmaW():
        out = []
        for i, (sr, vo, imm) in enumerate(chunks):
            out.append(f"s_add_u32 m0, s{sWslot}, {i*4096 - imm}\n" +
                       "s_nop 0\n" +
                       f"buffer_load_dwordx4 v{vo}, {srd(sr)}, s{sKW} offen offset:{imm} lds")
        out.append(f"s_add_u32 s{sWslot}, s{sWslot}, {2*W_SLOT}\n"
                   f"s_cmp_ge_u32 s{sWslot}, s{sWrapW}\n"
                   f"s_cselect_b32 s{sTmp}, {5*W_SLOT}, 0\n"
                   f"s_sub_u32 s{sWslot}, s{sWslot}, s{sTmp}\n"
                   f"s_add_u32 s{sKW}, s{sKW}, {64*pitch}\n"
                   f"s_cmp_ge_u32 s{sKW}, {640*pitch}\n"
                   f"s_cselect_b32 s{sTmp}, {640*pitch}, 0\n"
                   f"s_sub_u32 s{sKW}, s{sKW}, s{sTmp}")
        return out

    def dmaX():
        out = []
        for i in range(4):
            out.append(f"s_add_u32 m0, s{sXslot}, {i*1024}\n" +
                       f"s_add_u32 s{sTmp}, s{sKX}, {16*1280}\n" +
                       f"buffer_load_dwordx4 v{vXo+i%2}, {srd(S_X)}, s{sKX if i < 2 else sTmp} offen lds")
        out.append(f"s_xor_b32 s{sXslot}, s{sXslot}, 16384\n"
                   f"s_add_u32 s{sKX}, s{sKX}, 128\n"
                   f"s_cmp_eq_u32 s{sKX}, 1280\n"
                   f"s_cselect_b32 s{sKX}, 0, s{sKX}")
        return out

    A(f"s_cmp_lt_u32 s{sWave}, 4")
    A(f"s_cbranch_scc1 {L('p1')}")
    for g in dmaX():
        A(g)
    A(f"s_branch {L('p2')}")
    A.label(L("p1"))
    for g in dmaW():
        A(g)
    A.label(L("p2"))
    lstamp(A, 16)

    if OPT["STAMP"] == 3:
        stamp(A, 4, 0, wave=OPT["SW"])
    A(f"v_and_b32 v{vT0}, 31, v{vLane}")
    A(f"v_lshrrev_b32 v{vT1}, 5, v{vLane}")
    A(f"v_bfe_u32 v{vT2}, v{vLane}, 1, 3")
    A(f"v_xor_b32 v{vT1}, v{vT1}, v{vT2}")
    A(f"s_lshl_b32 s{sTmp}, s{sMW}, {13 if G else 12}")
    A(f"v_lshl_add_u32 v{vT0}, v{vT0}, 7, s{sTmp}")
    for kap in range(2):
        for kk in range(2):
            A(f"v_xor_b32 v{vT2}, {4*kap+2*kk}, v{vT1}")
            A(f"v_lshl_add_u32 v{vXa+2*kap+kk}, v{vT2}, 4, v{vT0}")
    A(f"v_lshrrev_b32 v{vT0}, 5, v{vLane}")
    A(f"v_lshlrev_b32 v{vT0}, 10, v{vT0}")
    A(f"v_bfe_u32 v{vT1}, v{vLane}, 2, 2")
    A(f"v_lshl_add_u32 v{vT0}, v{vT1}, 7, v{vT0}")
    A(f"v_and_b32 v{vT2}, 3, v{vLane}")
    if typ != "K":
        A(f"v_lshlrev_b32 v{vT3}, 1, v{vT2}")
        A(f"v_lshrrev_b32 v{vT2}, 1, v{vT2}")
        A(f"v_and_b32 v{vT3}, 2, v{vT3}")
        A(f"v_or_b32 v{vT2}, v{vT2}, v{vT3}")
    A(f"v_lshl_add_u32 v{vT0}, v{vT2}, 3, v{vT0}")
    A(f"v_and_b32 v{vT1}, 2, v{vT1}")
    A(f"v_bfe_u32 v{vT2}, v{vLane}, 4, 1")
    A(f"v_xor_b32 v{vT1}, v{vT1}, v{vT2}")
    if G:
        A(f"v_mul_u32_u24 v{vT2}, {3*4096}, v{vT2}")
        A(f"v_add_u32 v{vT0}, v{vT0}, v{vT2}")
        for a in range(3):
            A(f"s_mul_i32 s{sTmp}, s{sNW}, 3")
            A(f"s_add_u32 s{sTmp}, s{sTmp}, {a}")
            A(f"s_lshr_b32 s{sTmp2}, s{sTmp}, 2")
            A(f"s_lshl_b32 s{sTmp2}, s{sTmp2}, 12")
            A(f"s_and_b32 s{sTmp}, s{sTmp}, 3")
            A(f"v_xor_b32 v{vT2}, s{sTmp}, v{vT1}")
            A(f"v_lshl_add_u32 v{vT2}, v{vT2}, 5, v{vT0}")
            A(f"v_add_u32 v{vWb+a}, s{sTmp2}, v{vT2}")
    else:
        for a in range(5):
            if typ == "Q":
                A(f"s_mul_i32 s{sTmp}, s{sNW}, 5")
                A(f"s_add_u32 s{sTmp}, s{sTmp}, {a}")
                A(f"s_lshr_b32 s{sTmp2}, s{sTmp}, 1")
                A(f"s_lshl_b32 s{sTmp2}, s{sTmp2}, 12")
                A(f"s_and_b32 s{sTmp}, s{sTmp}, 1")
                A(f"s_lshl_b32 s{sTmp}, s{sTmp}, 1")
                A(f"v_xor_b32 v{vT2}, s{sTmp}, v{vT1}")
                A(f"v_lshl_add_u32 v{vT2}, v{vT2}, 5, v{vT0}")
                A(f"v_add_u32 v{vWb+a}, s{sTmp2}, v{vT2}")
            else:
                def loc(pi, nw, odd):
                    m, p = pi // 5, 5 * nw + pi % 5
                    if odd:
                        L_, tau = (4, p + 2 * m) if p < 2 else (2 * m + ((p - 2) >> 2), (p - 2) & 3)
                    else:
                        L_, tau = (4, p - 8 + 2 * m) if p >= 8 else (2 * m + (p >> 2), p & 3)
                    return L_ * 4 + (tau ^ m)
                if a == 0:
                    A(f"s_lshl_b32 s9, s{sNW}, 1")
                    A(f"s_add_u32 s9, s9, s{sOdd}")
                    A("s_lshl_b32 s9, s9, 3")
                    A(f"v_bfe_u32 v{vT2}, v{vLane}, 4, 1")
                    A(f"v_cmp_eq_u32 vcc, 1, v{vT2}")
                    A(f"v_and_b32 v{vT1}, 2, v{vT1}")
                for sub, sr in ((0, sTmp), (1, sTmp2)):
                    tab = sum(loc(2 * a + sub, nw, odd) << (8 * (2 * nw + odd)) for nw in range(2) for odd in range(2))
                    A(f"s_lshr_b32 s{sr}, {tab}, s9")
                    A(f"s_and_b32 s{sr}, s{sr}, 0xff")
                A(f"v_mov_b32 v{vT2}, s{sTmp}")
                A(f"v_mov_b32 v{vT3}, s{sTmp2}")
                A(f"v_cndmask_b32 v{vT2}, v{vT2}, v{vT3}, vcc")
                A(f"v_lshrrev_b32 v{vT3}, 2, v{vT2}")
                A(f"v_lshl_add_u32 v{vT3}, v{vT3}, 12, v{vT0}")
                A(f"v_and_b32 v{vT2}, 3, v{vT2}")
                A(f"v_xor_b32 v{vT2}, v{vT2}, v{vT1}")
                A(f"v_lshl_add_u32 v{vWb+a}, v{vT2}, 5, v{vT3}")
        if typ == "K":
            kv_addr_setup(A)
    A(f"s_mov_b32 s{sRslot}, {W_LDS}")
    poll_addr(A)
    A(f"v_and_b32 v{vT0}, 15, v{vLane}")
    A(f"v_bfe_u32 v{vT1}, v{vLane}, 4, 1")
    A(f"v_cmp_eq_u32 vcc, v{vT0}, v{vT1}")
    A(f"v_mov_b32 v{vT2}, 0x3f803f80")
    A(f"v_cndmask_b32 v{vSel}, 0, v{vT2}, vcc")
    for i in range(1, 4):
        A(f"v_mov_b32 v{vSel+i}, v{vSel}")
    for i in range(4 * NT):
        A(f"v_mov_b32 v{vCSA+i}, 0")
    for i in range(16 * MT * NT):
        A(f"v_mov_b32 v{vACC+i}, 0")
    A(f"s_sub_u32 s{sCSit}, s{sRB}, s{sC0}")
    A(f"s_add_u32 s{sTmp}, s{sCSit}, 2")
    A(f"s_cmp_lt_u32 s{sRB}, 10")
    A(f"s_mov_b32 s{sPub}, 2")
    if OPT["PUBST"]:
        A(f"s_bfe_u32 s{sPub}, s2, 0x10003")
        A(f"s_add_u32 s{sPub}, s{sPub}, 2")
        A(f"s_cmp_lt_u32 s{sRB}, 10")
    A(f"s_cselect_b32 s{sCSit}, s{sCSit}, 99")
    A(f"s_cmp_eq_u32 s{sMW}, 0")
    A(f"s_cselect_b32 s{sCSit}, s{sCSit}, 99")
    A(f"s_lshl_b32 s{sTmp}, 3, s{sPub}")
    A(f"s_cmp_eq_u32 s{sWave}, 0")
    A(f"s_cselect_b32 s{sSpec}, s{sTmp}, 0")
    A(f"s_cmp_eq_u32 s{sWave}, 3")
    A(f"s_cselect_b32 s{sTmp}, 0x60, 0")
    A(f"s_or_b32 s{sSpec}, s{sSpec}, s{sTmp}")
    A(f"s_or_b32 s{sSpec}, s{sSpec}, 0x380")
    A(f"s_mov_b32 s{sIt}, 0")
    A(f"s_mov_b32 s{sSpin}, 0")

    def reads(P, kap):
        pre = [f"v_add_u32 v{vWa+a}, s{sRslot}, v{vWb+a}" for a in range(NT)]
        post = [f"s_add_u32 s{sRslot}, s{sRslot}, {W_SLOT}\n"
                f"s_cmp_eq_u32 s{sRslot}, {W_LDS+5*W_SLOT}\n"
                f"s_cselect_b32 s{sRslot}, {W_LDS}, s{sRslot}"]
        out = []
        for kk in range(2):
            for mt in range(MT):
                out.append(f"ds_read_b128 {vr(XB(P, mt, kk))}, v{vXa+2*kap+kk} offset:{mt*4096}")
            for a in range(NT):
                for rho in range(2):
                    out.append(f"ds_read_b64_tr_b16 {vr(WBf(P, a, kk)+2*rho, 2)}, v{vWa+a} offset:{kk*2048+rho*512}")
        if OPT["NORD"]:
            out = []
        return pre, out, post

    def mfmas(P):
        out = []
        for kk in range(2):
            for a in range(NT):
                for mt in range(MT):
                    x, w, d = vr(XB(P, mt, kk)), vr(WBf(P, a, kk)), vr(acc(mt, a), 16)
                    if typ == "K":
                        out.append(f"v_mfma_f32_32x32x16_bf16 {d}, {x}, {w}, {d}")
                    else:
                        out.append(f"v_mfma_f32_32x32x16_bf16 {d}, {w}, {x}, {d}")
        return out

    def cs_mfmas(P):
        return [f"v_mfma_f32_16x16x32_bf16 {vr(vCSA+4*a)}, {vr(WBf(P, a, kk))}, {vr(vSel)}, {vr(vCSA+4*a)}"
                for kk in range(2) for a in range(NT)]

    if OPT["STAMP"] == 3:
        stamp(A, 5, 0, wave=OPT["SW"])
    n = len(mfmas(0))
    f = lambda k: k / n
    nod = OPT["NODMA"]

    def loop(R):
        LL = lambda s: f"L_{typ}{R}_{s}"
        lstamp(A, 17)
        if R == "B":
            for g in dmaW():
                A(g)
        A(f"s_waitcnt vmcnt({NW_ + (4 if R == 'B' else 0)})")
        k1_stats(A, typ)
        lstamp(A, 18)
        A(f"s_waitcnt vmcnt({1 if R == 'A' else NW_ + 1})")
        lstamp(A, 19)
        A("s_barrier")
        pre, rd, post = reads(0, 0)
        for g in pre + rd + post:
            A(g)
        if R == "A":
            A("s_setprio 1")
            stamp(A, 1, 0)
            stamp(A, 14, 0, clk=True)
        else:
            for g in dmaX():
                A(g)
        A("s_waitcnt lgkmcnt(0)")
        lstamp(A, 20)
        for g in mfmas(0):
            A(g)
        if R == "A":
            A(f"s_cmp_lg_u32 s{sCSit}, 0")
            A(f"s_cbranch_scc1 {LL('pc0')}")
            for g in cs_mfmas(0):
                A(g)
            A.label(LL("pc0"))
            for g in dmaW():
                A(g)
            A(f"s_sub_u32 s{sUw}, s{sWave}, 1")
            A(f"s_cmp_gt_u32 s{sUw}, 1")
            A(f"s_cbranch_scc1 {LL('nou')}")
            A(f"s_lshl_b32 s{sU}, s{sCG}, 4")
            A(f"s_add_u32 s{sU}, s{sU}, s{sRB}")
            A(f"s_lshl_b32 s{sU}, s{sU}, 1")
            A(f"s_add_u32 s{sU}, s{sU}, s{sUw}")
            A(f"s_lshl_b32 s{sUl}, s{sUw}, 12")
            A(f"s_add_u32 s{sUl}, s{sUl}, {MISC_LDS}")
            w2_unit_dma(A, f"s{sUl}")
            A.label(LL("nou"))
        else:
            A("s_waitcnt vmcnt(5)")
        lstamp(A, 21)
        A("s_barrier")
        pre, rd, post = reads(1, 1)
        for g in pre + rd + post:
            A(g)
        if R == "B":
            for g in dmaW():
                A(g)
        A("s_waitcnt lgkmcnt(0)")
        lstamp(A, 22)
        for g in mfmas(1):
            A(g)
        if R == "A":
            for g in dmaW():
                A(g)
            A(f"s_cmp_eq_u32 s{sCSit}, 0")
            A(f"s_cbranch_scc1 {LL('cs1')}")
            A(f"s_waitcnt vmcnt({NW_})")
            A.label(LL("pc1"))
            A(f"s_cmp_gt_u32 s{sUw}, 1")
            A(f"s_cbranch_scc1 {LL('pc2')}")
            w2_unit_out(A, f"s{sUl}", (lambda t: (96, 100, 144, 148)[t]) if G else (lambda t: 232 + 4 * t) if typ == 'Q' else (lambda t: vBUF + 4 * t))
            A.label(LL("pc2"))
        else:
            A("s_waitcnt vmcnt(0)")
        lstamp(A, 23)
        A("s_barrier")
        if R == "B":
            for g in dmaX() + dmaW():
                A(g)
        for i in range(4):
            A(f"v_xor_b32 v{vXa+i}, 16384, v{vXa+i}")
        pre, rd, post = reads(0, 0)
        for g in pre + rd + post:
            A(g)
        A(f"s_mov_b32 s{sIt}, 1")
        A("s_waitcnt lgkmcnt(0)")
        lstamp(A, 0)
        A(".p2align 6")
        A.label(LL("loop"))
        pre, rd, post = reads(1, 1)
        for g in interleave(mfmas(0), (pre, 0.0, f(1)), (rd, f(1), 0.7), (post, 0.75, 0.85)):
            A(g)
        if R == "A":
            A(f"s_bitcmp1_b32 s{sSpec}, s{sIt}")
            A(f"s_cbranch_scc1 {LL('spec')}")
            A.label(LL("specr"))
            for g in dmaW():
                A(g)
            A(f"s_waitcnt vmcnt({NW_}) lgkmcnt(0)")
            A.label(LL("bar"))
        else:
            A("s_waitcnt vmcnt(0) lgkmcnt(0)")
        A("s_barrier")
        pre, rd, post = reads(0, 0)
        pre = [f"v_xor_b32 v{vXa+i}, 16384, v{vXa+i}" for i in range(2)] + pre
        post = post + [f"v_xor_b32 v{vXa+i}, 16384, v{vXa+i}" for i in range(2, 4)]
        tail = [f"s_add_u32 s{sIt}, s{sIt}, 1\ns_cmp_lt_u32 s{sIt}, 10"]
        if R == "B":
            dw = dmaW()
            nb = OPT["NBUP"]
            A(f"s_cmp_ge_u32 s{sIt}, 8")
            A(f"s_cbranch_scc1 {LL('nod')}")
            for g in dmaX() + dw[:nb]:
                A(g)
            for g in interleave(mfmas(1), (pre, 0.0, f(1)), (dw[nb:], 0.0, 0.4), (rd, f(1), 0.7), (post, 0.7, 0.8), (tail, f(n-2), f(n-1))):
                A(g)
            A.label(LL("end"))
        else:
            chk1 = tail
            for g in interleave(mfmas(1), (pre, 0.0, f(1)), (rd, f(1), 0.7), (post, 0.7, 0.8), (chk1, f(n-2), f(n-1))):
                A(g)
        if OPT["STAMP"] == 4:
            A("s_memrealtime s[96:97]")
            A(f"s_mov_b32 m0, s{sIt}")
        A("s_waitcnt lgkmcnt(0)")
        if OPT["STAMP"] == 4:
            A("v_writelane_b32 v253, s96, m0")
        A(f"s_cbranch_scc1 {LL('loop')}")
        A(f"s_branch {L('epi')}")

        if R == "B":
            A.label(LL("nod"))
            if True:
                A(f"s_cmp_eq_u32 s{sIt}, 9")
                A(f"s_cbranch_scc1 {LL('nod9')}")
                wo_early(A, 24, 7)
                A(f"s_branch {LL('nod2')}")
                A.label(LL("nod9"))
                wo_early(A, 72, 7)
                A.label(LL("nod2"))
            for g in interleave(mfmas(1), (pre, 0.0, f(1)), (rd, f(1), 0.7), (post, 0.7, 0.8), (tail, f(n-2), f(n-1))):
                A(g)
            A(f"s_branch {LL('end')}")
            return
        A.label(LL("cs1"))
        for g in cs_mfmas(1):
            A(g)
        A(f"v_and_b32 v{vT0}, 15, v{vLane}")
        A(f"v_lshrrev_b32 v{vT1}, 4, v{vLane}")
        A(f"v_lshlrev_b32 v{vT1}, 4, v{vT1}")
        A(f"v_lshl_add_u32 v{vT1}, v{vT0}, 6, v{vT1}")
        A(f"v_cmp_gt_u32 vcc, 2, v{vT0}")
        A(f"v_mov_b32 v{vT2}, {OOB}")
        A(f"v_cndmask_b32 v{vT1}, v{vT2}, v{vT1}, vcc")
        A(f"s_mul_i32 s{sTmp}, s{sCG}, 10")
        A(f"s_add_u32 s{sTmp}, s{sTmp}, s{sRB}")
        A(f"s_mul_i32 s{sTmp}, s{sTmp}, 1536")
        A(f"s_mul_i32 s{sTmp2}, s{sNW}, {NT*128}")
        A(f"s_add_u32 s{sTmp}, s{sTmp}, s{sTmp2}")
        A(f"s_add_u32 s{sTmp}, s{sTmp}, {WS_CS}")
        for a in range(NT):
            A(f"buffer_store_dwordx4 {vr(vCSA+4*a)}, v{vT1}, {srd(S_WS)}, s{sTmp} offen offset:{a*128} sc1")
        A(f"s_waitcnt vmcnt({NW_+NT})")
        A(f"s_branch {LL('pc1')}")

        def with_dma(nops, body):
            for g in dmaW():
                A(g)
            body()
            A(f"s_waitcnt vmcnt({NW_+nops}) lgkmcnt(0)")
            A(f"s_branch {LL('bar')}")
        A.label(LL("spec"))
        A(f"s_cmp_ge_u32 s{sIt}, 8")
        A(f"s_cbranch_scc1 {LL('sum')}")
        A(f"s_cmp_eq_u32 s{sIt}, 7")
        A(f"s_cbranch_scc1 {LL('go')}")
        A(f"s_cmp_eq_u32 s{sIt}, 6")
        A(f"s_cbranch_scc1 {LL('chk')}")
        A(f"s_cmp_eq_u32 s{sIt}, 5")
        A(f"s_cbranch_scc1 {LL('poll0')}")
        A.label(LL("pub"))

        def pub():
            A(f"s_cmp_lg_u32 s{sPub}, s{sIt}")
            A(f"s_cbranch_scc1 {LL('pub2')}")
            k1_publish(A)
            A.label(LL("pub2"))
        with_dma(1, pub)
        A.label(LL("poll0"))
        with_dma(1, lambda: A(f"buffer_load_dword v{vPoll}, v{vPa}, {srd(S_DBG)}, 0 offen sc1"))
        A.label(LL("poll"))
        A("s_sleep 8")
        A(f"buffer_load_dword v{vPoll}, v{vPa}, {srd(S_DBG)}, 0 offen sc1")
        A.label(LL("chk"))
        A("s_waitcnt vmcnt(0)")
        poll_cmp(A)
        A(f"s_add_u32 s{sSpin}, s{sSpin}, 1")
        A(f"s_cmp_gt_u32 s{sSpin}, {SPIN_MAX}")
        A(f"s_cbranch_scc1 {LL('specr')}")
        A(f"s_cmp_lg_u64 vcc, 0")
        A(f"s_cbranch_scc1 {LL('poll')}")
        A(f"s_branch {LL('specr')}")
        A.label(LL("go"))

        def go():
            A(f"v_lshlrev_b32 v{vT0}, 3, v0")
            A(f"v_cmp_gt_u32 vcc, {NT*(4 if G else 2)*16}, v0")
            A(f"v_mov_b32 v{vT2}, {OOB}")
            A(f"v_cndmask_b32 v{vT0}, v{vT2}, v{vT0}, vcc")
            A(f"s_mul_i32 s{sTmp}, s{sCG}, 15360")
            A(f"s_add_u32 s{sTmp}, s{sTmp}, {WS_CS}")
            for ch in range(10):
                if ch % 2 == 0 and ch:
                    A(f"s_add_u32 s{sTmp}, s{sTmp}, 3072")
                A(f"buffer_load_dwordx2 {vr(vCSP+2*ch, 2)}, v{vT0}, {srd(S_WS)}, s{sTmp} offen offset:{(ch%2)*1536} sc1")
            A(f"s_lshl_b32 s{sTmp}, s{sRB}, 10")
            A(f"s_add_u32 s{sTmp}, s{sTmp}, {WS_ST}")
            A(f"v_lshlrev_b32 v{vT1}, 2, v0")
            A(f"buffer_load_dword v{vSt}, v{vT1}, {srd(S_WS)}, s{sTmp} offen sc1")
        with_dma(11, go)
        A.label(LL("sum"))
        A(f"s_cmp_eq_u32 s{sIt}, 9")
        A(f"s_cbranch_scc1 {LL('sum9')}")
        A("s_waitcnt vmcnt(0)")
        for ch in range(1, 10):
            A(f"v_add_f32 v{vCSP}, v{vCSP}, v{vCSP+2*ch}")
            A(f"v_add_f32 v{vCSP+1}, v{vCSP+1}, v{vCSP+2*ch+1}")
        A(f"v_lshlrev_b32 v{vT0}, 3, v0")
        A(f"v_add_u32 v{vT0}, {MISC_LDS}, v{vT0}")
        A(f"ds_write_b64 v{vT0}, {vr(vCSP, 2)}")
        A(f"v_lshlrev_b32 v{vT1}, 2, v0")
        A(f"v_add_u32 v{vT1}, {MISC_LDS+2048}, v{vT1}")
        A(f"ds_write_b32 v{vT1}, v{vSt}")
        wo_early(A, 0, 6)
        A("s_waitcnt lgkmcnt(0)")
        A(f"s_branch {LL('bar')}")
        A.label(LL("sum9"))
        wo_early(A, 52, 5)
        A("s_waitcnt lgkmcnt(0)")
        A(f"s_branch {LL('bar')}")

    A(f"s_cmp_ge_u32 s{sWave}, 4")
    A(f"s_cbranch_scc1 {L('roleB')}")
    loop("A")
    A.label(L("roleB"))
    loop("B")

    A.label(L("epi"))
    A("s_setprio 0")
    stamp(A, 2, 0)
    stamp(A, 15, 0, clk=True)
    if OPT["STAMP"] == 4:
        A(f"v_lshlrev_b32 v252, 2, v0")
        A(f"s_lshl_b32 s98, s2, 11")
        A(f"s_add_u32 s98, s98, {WS_STAMP + 0x10000}")
        A(f"buffer_store_dword v253, v252, {srd(S_WS)}, s98 offen")
    p2_ids(A)
    A.fence()
    if True:
        epi = {"G": k1_epi_g, "Q": k1_epi_q, "K": k1_epi_kv}[typ]
        ffn_setup(A)
        A(f"s_cmp_lt_u32 s{sWave}, 4")
        A(f"s_cselect_b32 s{sWo}, {OOB}, s{sWo}")
        E = Asm()
        epi(E, acc)
        body = [t for _, t in E.lines]
        npre = min(OPT["NPRE"], {"G": 6, "Q": 4, "K": 2}[typ])
        early = [g for j in range(min(4, npre)) for g in ldW_groups(j)]
        late = [g for j in range(4, npre) for g in ldW_groups(j)]
        for g in interleave(body, (early, 0.02, 0.5 if npre > 4 else 0.7), (late, 0.5, 0.8)):
            A(g)
        A(f"s_mov_b32 s{sWoDone}, {npre + 1}")
    stamp(A, 3, 0)
    A(f"v_mov_b32 v{vSigA}, {OOB}")
    if typ == "K":
        A(f"s_sub_u32 s{sTmp}, s{sCG}, 9")
        A(f"s_lshl_b32 s{sTmp}, s{sTmp}, 11")
        A(f"s_add_u32 s{sTmp}, s{sTmp}, {WS_FL + FL_KV}")
        A(f"v_lshl_add_u32 v{vT0}, v{vLane}, 8, s{sTmp}")
        A(f"v_cmp_gt_u32 vcc, 8, v{vLane}")
        A(f"v_cndmask_b32 v{vSigA}, v{vSigA}, v{vT0}, vcc")
        A(f"v_mov_b32 v{vSigV}, 1")
    else:
        A(f"s_lshl_b32 s{sTmp}, s{sRB}, 8")
        A(f"s_add_u32 s{sTmp}, s{sTmp}, {WS_FL + FL_HC}")
        A(f"v_writelane_b32 v{vSigA}, s{sTmp}, 0")
        A(f"s_lshl_b32 s{sTmp}, 1, s{sCG}")
        A(f"v_mov_b32 v{vSigV}, s{sTmp}")
    A("s_branch L_p2")


def k1_stats_issue(A):
    b = vBUF
    A(f"s_lshl_b32 s{sRow}, s{sRB}, 7")
    A(f"s_lshl_b32 s{sTmp2}, s{sCG}, 3")
    A(f"s_add_u32 s{sRow}, s{sRow}, s{sTmp2}")
    A(f"s_add_u32 s{sRow}, s{sRow}, s{sWave}")
    A(f"s_mul_i32 s{sTmp2}, s{sRow}, 1280")
    A(f"v_lshlrev_b32 v{vT0}, 3, v{vLane}")
    A(f"v_lshlrev_b32 v{vT1}, 2, v{vLane}")
    A(f"buffer_load_dwordx2 {vr(b, 2)}, v{vT0}, {srd(S_X)}, s{sTmp2} offen")
    A(f"buffer_load_dwordx2 {vr(b+2, 2)}, v{vT0}, {srd(S_X)}, s{sTmp2} offen offset:512")
    A(f"buffer_load_dword v{b+4}, v{vT1}, {srd(S_X)}, s{sTmp2} offen offset:1024")


def k1_stats(A, typ):
    b = vBUF
    if typ == "A":
        A("s_waitcnt vmcnt(0)")
    for i in range(5):
        A(f"v_lshlrev_b32 v{b+8+2*i}, 16, v{b+i}")
        A(f"v_and_b32 v{b+9+2*i}, 0xffff0000, v{b+i}")
    s = b + 20
    A(f"v_add_f32 v{s}, v{b+8}, v{b+9}")
    for i in range(2, 10):
        A(f"v_add_f32 v{s}, v{s}, v{b+8+i}")
    wave_allreduce_add(A, s, s + 1, 4)
    A(f"v_mul_f32 v{s}, {f32(1.0/640)}, v{s}")
    for i in range(10):
        A(f"v_sub_f32 v{b+8+i}, v{b+8+i}, v{s}")
    A(f"v_mul_f32 v{s+1}, v{b+8}, v{b+8}")
    for i in range(1, 10):
        A(f"v_fmac_f32 v{s+1}, v{b+8+i}, v{b+8+i}")
    wave_allreduce_add(A, s + 1, s + 2, 4)
    A(f"v_mov_b32 v{s+2}, {f32(1e-5)}")
    A(f"v_fmac_f32 v{s+2}, {f32(1.0/640)}, v{s+1}")
    A(f"v_mov_b32 v{s+1}, v{s+2}")
    A(f"v_cmp_eq_u32 vcc, 0, v{vLane}")
    A(f"v_mov_b32 v{vT2}, {OOB}")
    A(f"v_cndmask_b32 v{vT0}, v{vT2}, v{vLane}, vcc")
    A(f"s_lshl_b32 s{sTmp}, s{sRow}, 3")
    A(f"s_add_u32 s{sTmp}, s{sTmp}, {WS_ST}")
    A(f"buffer_store_dwordx2 {vr(s, 2)}, v{vT0}, {srd(S_WS)}, s{sTmp} offen sc1")


def k1_publish(A):
    if OPT["BYTEFLAG"]:
        A(f"v_mov_b32 v{vT0}, {OOB}")
        A(f"v_writelane_b32 v{vT0}, s2, 0")
        A(f"v_mov_b32 v{vT1}, 1")
        A(f"buffer_store_byte v{vT1}, v{vT0}, {srd(S_DBG)}, 0 offen sc1")
        return
    A(f"s_lshl_b32 s{sTmp}, s{sRB}, 4")
    A(f"v_mov_b32 v{vT0}, {OOB}")
    A(f"v_writelane_b32 v{vT0}, s{sTmp}, 0")
    A(f"v_mov_b32 v{vT1}, 1")
    A(f"buffer_atomic_add v{vT1}, v{vT0}, {srd(S_DBG)}, 0 offen sc1")


def poll_addr(A):
    if OPT["BYTEFLAG"]:
        A(f"v_lshlrev_b32 v{vPa}, 2, v{vLane}")
    else:
        A(f"v_and_b32 v{vPa}, 15, v{vLane}")
        A(f"v_lshlrev_b32 v{vPa}, 4, v{vPa}")


def poll_cmp(A):
    if OPT["BYTEFLAG"]:
        A(f"v_cmp_ne_u32 vcc, 0x01010101, v{vPoll}")
    else:
        A(f"v_cmp_gt_u32 vcc, 16, v{vPoll}")


S_R = 88
sU, sUks, sUL = 92, 93, 94


def w2_unit_decode(A):
    A(f"s_mul_i32 s{sUks}, s{sU}, 205")
    A(f"s_lshr_b32 s{sUks}, s{sUks}, 11")
    A(f"s_mul_i32 s{sUL}, s{sUks}, 10")
    A(f"s_sub_u32 s{sUL}, s{sU}, s{sUL}")


def w2_unit_dma(A, lds):
    w2_unit_decode(A)
    A(f"s_cmp_lt_u32 s{sUks}, 54")
    A(f"s_cselect_b32 s{S_R}, s{P_D}, s{P_WO}")
    A(f"s_cselect_b32 s{S_R+1}, s{P_D+1}, s{P_WO+1}")
    A(f"s_mov_b32 s{S_R+2}, {640*1280}")
    A(f"s_cselect_b32 s{S_R+2}, {1728*1280}, s{S_R+2}")
    A(f"s_cselect_b32 s{sTmp}, 0, 54")
    A(f"s_and_b32 s{S_R+1}, s{S_R+1}, 0xffff")
    A(f"s_mov_b32 s{S_R+3}, 0x20000")
    A(f"s_sub_u32 s{sTmp}, s{sUks}, s{sTmp}")
    A(f"s_mul_i32 s{sTmp}, s{sTmp}, {32*1280}")
    A(f"s_lshl_b32 s{sTmp2}, s{sUL}, 7")
    A(f"s_add_u32 s{sTmp}, s{sTmp}, s{sTmp2}")
    A(f"v_lshrrev_b32 v{vT0}, 3, v{vLane}")
    A(f"v_mul_u32_u24 v{vT0}, 1280, v{vT0}")
    A(f"v_and_b32 v{vT1}, 7, v{vLane}")
    A(f"v_lshl_add_u32 v{vT0}, v{vT1}, 4, v{vT0}")
    for i in range(4):
        A(f"s_add_u32 m0, {lds}, {i*1024}")
        A("s_nop 0")
        A(f"buffer_load_dwordx4 v{vT0}, {srd(S_R)}, s{sTmp} offen lds")
        A(f"s_add_u32 s{sTmp}, s{sTmp}, {8*1280}")


def w2_unit_out(A, lds, F):
    w2_unit_decode(A)
    A(f"v_bfe_u32 v{vT0}, v{vLane}, 2, 2")
    A(f"v_lshlrev_b32 v{vT0}, 7, v{vT0}")
    A(f"v_and_b32 v{vT1}, 3, v{vLane}")
    A(f"v_lshl_add_u32 v{vT0}, v{vT1}, 3, v{vT0}")
    A(f"v_lshrrev_b32 v{vT1}, 4, v{vLane}")
    A(f"s_cmp_lt_u32 s{sUks}, 54")
    A(f"s_cselect_b32 s{sTmp}, 10, 9")
    A(f"s_movk_i32 s{sTmp2}, 512")
    A(f"s_cselect_b32 s{sTmp2}, s{sTmp2}, 2048")
    A(f"v_lshlrev_b32 v{vT1}, s{sTmp}, v{vT1}")
    A(f"v_add3_u32 v{vT0}, v{vT0}, v{vT1}, {lds}")
    A(f"v_add_u32 v{vT1}, s{sTmp2}, v{vT0}")
    for tau in range(4):
        A(f"ds_read_b64_tr_b16 {vr(F(tau), 2)}, v{vT0} offset:{tau*32}")
        A(f"ds_read_b64_tr_b16 {vr(F(tau)+2, 2)}, v{vT1} offset:{tau*32}")
    A(f"v_lshlrev_b32 v{vT2}, 4, v{vLane}")
    A("s_waitcnt lgkmcnt(0)")
    for tau in range(4):
        A(f"s_lshl_b32 s{sTmp}, s{sUL}, 2")
        A(f"s_add_u32 s{sTmp}, s{sTmp}, {tau}")
        A(f"s_mul_i32 s{sTmp2}, s{sTmp}, 205")
        A(f"s_lshr_b32 s{sTmp2}, s{sTmp2}, 10")
        A(f"s_mul_i32 s{sTmp3}, s{sTmp2}, {74*5-5}")
        A(f"s_add_u32 s{sTmp}, s{sTmp}, s{sTmp3}")
        A(f"s_mul_i32 s{sTmp3}, s{sUks}, 5")
        A(f"s_add_u32 s{sTmp}, s{sTmp}, s{sTmp3}")
        A(f"s_lshl_b32 s{sTmp}, s{sTmp}, 10")
        A(f"s_add_u32 s{sTmp}, s{sTmp}, {WS_W2}")
        A(f"s_cmp_lt_u32 s{sU}, 740")
        A(f"s_cselect_b32 s{sTmp}, s{sTmp}, {OOB}")
        A(f"buffer_store_dwordx4 {vr(F(tau))}, v{vT2}, {srd(S_WS)}, s{sTmp} offen sc1")


def k1_epi_g(A, acc):
    c = vBUF
    cs = vBUF + 8
    t = vBUF + 40
    o = vBUF + 48
    A(f"v_lshrrev_b32 v{vT0}, 5, v{vLane}")
    A(f"v_lshlrev_b32 v{vT0}, 4, v{vT0}")
    A(f"s_mul_i32 s{sTmp}, s{sNW}, 384")
    A(f"s_add_u32 s{sTmp}, s{sTmp}, {MISC_LDS}")
    A(f"v_add_u32 v{vT0}, s{sTmp}, v{vT0}")
    A(f"v_and_b32 v{vT1}, 31, v{vLane}")
    A(f"s_lshl_b32 s{sTmp}, s{sMW}, 9")
    A(f"s_add_u32 s{sTmp}, s{sTmp}, {MISC_LDS+2048}")
    A(f"v_lshl_add_u32 v{vT1}, v{vT1}, 3, s{sTmp}")
    for mt in range(2):
        A(f"ds_read_b64 {vr(c+4*mt, 2)}, v{vT1} offset:{mt*256}")
    for q in range(4):
        A(f"ds_read_b128 {vr(cs+4*q)}, v{vT0} offset:{q*32}")
    A("s_waitcnt lgkmcnt(4)")
    for mt in range(2):
        mu, v, k1, k3 = c + 4 * mt, c + 4 * mt + 1, c + 4 * mt + 2, c + 4 * mt + 3
        A(f"v_rsq_f32 v{t}, v{v}")
        A(f"v_mul_f32 v{k1}, {f32(GC1)}, v{t}")
        A(f"v_mul_f32 v{t+1}, v{t}, v{t}")
        A(f"v_mul_f32 v{t+1}, v{t+1}, v{t}")
        A(f"v_mul_f32 v{k3}, {f32(GC2)}, v{t+1}")
    A(f"v_bfe_u32 v{vT1}, v{vLane}, 4, 1")
    A(f"v_lshlrev_b32 v{vT1}, 10, v{vT1}")
    A(f"v_lshrrev_b32 v{vT2}, 5, v{vLane}")
    A(f"v_lshl_add_u32 v{vT1}, v{vT2}, 8, v{vT1}")
    A(f"v_and_b32 v{vT2}, 15, v{vLane}")
    A(f"v_lshl_add_u32 v{vT1}, v{vT2}, 4, v{vT1}")
    n = 0
    for a in range(3):
        csa = cs + 16 * (a % 2)
        if a < 2:
            for q in range(4):
                A(f"ds_read_b128 {vr(cs+16*((a+1)%2)+4*q)}, v{vT0} offset:{(a+1)*128+q*32}")
            A("s_waitcnt lgkmcnt(4)")
        else:
            A("s_waitcnt lgkmcnt(0)")
        A(f"s_mul_i32 s{sTmp}, s{sCG}, 12")
        A(f"s_mul_i32 s{sTmp2}, s{sNW}, 3")
        A(f"s_add_u32 s{sTmp}, s{sTmp}, s{sTmp2}")
        A(f"s_add_u32 s{sTmp}, s{sTmp}, {a}")
        A(f"s_lshl_b32 s{sTmp2}, s{sRB}, 1")
        A(f"s_add_u32 s{sTmp2}, s{sTmp2}, s{sMW}")
        A(f"s_mul_i32 s{sTmp2}, s{sTmp2}, 54")
        A(f"s_lshr_b32 s{sTmp3}, s{sTmp}, 1")
        A(f"s_add_u32 s{sTmp2}, s{sTmp2}, s{sTmp3}")
        A(f"s_lshl_b32 s{sTmp2}, s{sTmp2}, 12")
        A(f"s_and_b32 s{sTmp}, s{sTmp}, 1")
        A(f"s_lshl_b32 s{sTmp}, s{sTmp}, 9")
        A(f"s_add_u32 s{sTmp}, s{sTmp}, s{sTmp2}")
        for mt in range(2):
            mu, v, k1, k3 = c + 4 * mt, c + 4 * mt + 1, c + 4 * mt + 2, c + 4 * mt + 3
            d = acc(mt, a)
            ob = o + 4 * (n % 2)
            n += 1
            if OPT["GPK"]:
                P = range(0, 8, 2)
                for i in P:
                    pk_fma(A, d + i, ("b", mu), ("p", csa + i), ("p", d + i), neg_a=True)
                for i in P:
                    pk_mul(A, t + i, ("p", d + i), ("p", d + i))
                for i in P:
                    pk_fma(A, t + i, ("p", t + i), ("b", k3), ("b", k1))
                for i in P:
                    pk_mul(A, t + i, ("p", t + i), ("p", d + i))
                for i in P:
                    A(f"v_exp_f32 v{t+i}, v{t+i}")
                    A(f"v_exp_f32 v{t+i+1}, v{t+i+1}")
                    pk_fma(A, d + 8 + i, ("b", mu), ("p", csa + 8 + i), ("p", d + 8 + i), neg_a=True)
                for i in P:
                    pk_fma(A, t + i, ("p", t + i), ("b", v), ("b", v))
                for i in P:
                    A(f"v_rcp_f32 v{t+i}, v{t+i}")
                    A(f"v_rcp_f32 v{t+i+1}, v{t+i+1}")
                    pk_mul(A, d + i, ("p", d + i), ("p", d + 8 + i))
                for i in P:
                    pk_mul(A, d + i, ("p", d + i), ("p", t + i))
            else:
                R = range(8)
                for i in R:
                    A(f"v_fma_f32 v{d+i}, -v{mu}, v{csa+i}, v{d+i}")
                for i in R:
                    A(f"v_mul_f32 v{t+i}, v{d+i}, v{d+i}")
                for i in R:
                    A(f"v_fma_f32 v{t+i}, v{t+i}, v{k3}, v{k1}")
                for i in R:
                    A(f"v_mul_f32 v{t+i}, v{t+i}, v{d+i}")
                for i in R:
                    A(f"v_exp_f32 v{t+i}, v{t+i}")
                    A(f"v_fma_f32 v{d+8+i}, -v{mu}, v{csa+8+i}, v{d+8+i}")
                for i in R:
                    A(f"v_fma_f32 v{t+i}, v{t+i}, v{v}, v{v}")
                for i in R:
                    A(f"v_rcp_f32 v{t+i}, v{t+i}")
                    A(f"v_mul_f32 v{d+i}, v{d+i}, v{d+8+i}")
                for i in R:
                    A(f"v_mul_f32 v{d+i}, v{d+i}, v{t+i}")
            for i in range(4):
                A(f"v_cvt_pk_bf16_f32 v{ob+i}, v{d+2*i}, v{d+2*i+1}")
            A(f"buffer_store_dwordx4 {vr(ob)}, v{vT1}, {srd(S_WS)}, s{sTmp} offen offset:{mt*2048} sc1")


def pk(r, bc=False):
    return f"v[{r}:{r+1}]"


def pko(*bc):
    lo = ",".join("1" if b == 1 else "0" for b in bc)
    hi = ",".join("0" if b == 0 else "1" for b in bc)
    return f"op_sel:[{lo}] op_sel_hi:[{hi}]"


def opnd(x):
    k, r = x
    if k == "p":
        return pk(r), None
    return pk(r & ~1), r & 1


def pk_fma(A, d, a, b, c, neg_a=False):
    (ta, fa), (tb_, fb), (tc, fc) = opnd(a), opnd(b), opnd(c)
    n = " neg_lo:[1,0,0] neg_hi:[1,0,0]" if neg_a else ""
    A(f"v_pk_fma_f32 {pk(d)}, {ta}, {tb_}, {tc} {pko(fa, fb, fc)}{n}")


def pk_mul(A, d, a, b, op="mul"):
    (ta, fa), (tb_, fb) = opnd(a), opnd(b)
    A(f"v_pk_{op}_f32 {pk(d)}, {ta}, {tb_} {pko(fa, fb)}")


def phi_block(A, d, n, t, mu, cs, r, rl, eps):
    P = range(0, n, 2)
    for i in P:
        pk_fma(A, d + i, mu(i), cs(i), ("p", d + i), neg_a=True)
    for i in P:
        pk_mul(A, t + i, ("p", d + i), rl(i))
    for i in P:
        A(f"v_exp_f32 v{t+i}, v{t+i} clamp")
        A(f"v_exp_f32 v{t+i+1}, v{t+i+1} clamp")
        pk_fma(A, d + i, ("p", d + i), r(i), ("b", eps))
    for i in range(n):
        A(f"v_max_f32 v{d+i}, v{d+i}, v{eps}")
    for i in P:
        pk_mul(A, d + i, ("p", d + i), ("p", t + i), op="add")


def k1_epi_q(A, acc):
    c = vBUF
    cs = vBUF + 8
    t = vBUF + 40
    o = vBUF + 56
    mu, r, rl, eps = c, c + 1, c + 2, c + 3
    A(f"v_lshrrev_b32 v{vT0}, 5, v{vLane}")
    A(f"v_lshlrev_b32 v{vT0}, 4, v{vT0}")
    A(f"s_mul_i32 s{sTmp}, s{sNW}, 640")
    A(f"s_add_u32 s{sTmp}, s{sTmp}, {MISC_LDS}")
    A(f"v_add_u32 v{vT0}, s{sTmp}, v{vT0}")
    A(f"v_and_b32 v{vT1}, 31, v{vLane}")
    A(f"s_lshl_b32 s{sTmp}, s{sMW}, 8")
    A(f"s_add_u32 s{sTmp}, s{sTmp}, {MISC_LDS+2048}")
    A(f"v_lshl_add_u32 v{vT1}, v{vT1}, 3, s{sTmp}")
    A(f"ds_read_b64 {vr(mu, 2)}, v{vT1}")
    for q in range(4):
        A(f"ds_read_b128 {vr(cs+4*q)}, v{vT0} offset:{q*32}")
    A("s_waitcnt lgkmcnt(4)")
    A(f"v_rsq_f32 v{r}, v{r}")
    A(f"v_mov_b32 v{eps}, {f32(1e-6)}")
    A(f"v_mul_f32 v{rl}, {f32(LOG2E)}, v{r}")
    A(f"v_bfe_u32 v{vT1}, v{vLane}, 4, 1")
    A(f"v_lshlrev_b32 v{vT1}, 10, v{vT1}")
    A(f"v_lshrrev_b32 v{vT2}, 5, v{vLane}")
    A(f"v_lshl_add_u32 v{vT1}, v{vT2}, 8, v{vT1}")
    A(f"v_and_b32 v{vT2}, 15, v{vLane}")
    A(f"v_lshl_add_u32 v{vT1}, v{vT2}, 4, v{vT1}")
    A(f"s_lshl_b32 s{sTmp}, s{sRB}, 1")
    A(f"s_lshr_b32 s{sTmp2}, s{sMW}, 1")
    A(f"s_add_u32 s{sTmp}, s{sTmp}, s{sTmp2}")
    A(f"s_mul_i32 s{sTmp}, s{sTmp}, 20")
    A(f"s_sub_u32 s{sTmp2}, s{sCG}, 13")
    A(f"s_mul_i32 s{sTmp2}, s{sTmp2}, 10")
    A(f"s_add_u32 s{sTmp}, s{sTmp}, s{sTmp2}")
    A(f"s_mul_i32 s{sTmp2}, s{sNW}, 5")
    A(f"s_add_u32 s{sTmp}, s{sTmp}, s{sTmp2}")
    A(f"s_lshl_b32 s{sTmp}, s{sTmp}, 12")
    A(f"s_and_b32 s{sTmp2}, s{sMW}, 1")
    A(f"s_lshl_b32 s{sTmp2}, s{sTmp2}, 11")
    A(f"s_add_u32 s{sTmp}, s{sTmp}, s{sTmp2}")
    A(f"s_add_u32 s{sTmp}, s{sTmp}, {WS_PQ}")
    for a in range(5):
        csa = cs + 16 * (a % 2)
        if a < 4:
            for q in range(4):
                A(f"ds_read_b128 {vr(cs+16*((a+1)%2)+4*q)}, v{vT0} offset:{(a+1)*128+q*32}")
            A("s_waitcnt lgkmcnt(4)")
        else:
            A("s_waitcnt lgkmcnt(0)")
        d = acc(0, a)
        phi_block(A, d, 16, t, lambda i: ("b", mu), lambda i: ("p", csa + i), lambda i: ("b", r), lambda i: ("b", rl), eps)
        ob = o + 8 * (a % 2)
        for i in range(8):
            A(f"v_cvt_pk_bf16_f32 v{ob+i}, v{d+2*i}, v{d+2*i+1}")
        A(f"buffer_store_dwordx4 {vr(ob)}, v{vT1}, {srd(S_WS)}, s{sTmp} offen sc1")
        A(f"buffer_store_dwordx4 {vr(ob+4)}, v{vT1}, {srd(S_WS)}, s{sTmp} offen offset:512 sc1")
        A(f"s_add_u32 s{sTmp}, s{sTmp}, 4096")


KV_PAIRS = [(0, 2), (0, 3), (1, 3), (1, 4), (2, 4)]
KV_Q = [[0, 1, 2], [0, 1, 2, 3], [0, 1, 2, 3], [1, 2, 3], [0, 1]]
KV_AD = 232
KV_SLAB = [0, 14336, 135168, 149504]
KV_DUMMY = 28688


def kv_addr_setup(A):
    e, he, d0, dm = vT0, vT1, vT2, vT3
    t = vBUF + 24
    A(f"s_mul_i32 s{sTmp3}, s{sMW}, 14336")
    A(f"s_cmp_ge_u32 s{sMW}, 2")
    A(f"s_cselect_b32 s{sTmp}, {135168 - 2*14336}, 0")
    A(f"s_add_u32 s{sTmp3}, s{sTmp3}, s{sTmp}")
    A(f"s_mul_i32 s{sTmp}, s{sNW}, 6720")
    A(f"s_add_u32 s{sTmp3}, s{sTmp3}, s{sTmp}")
    A(f"v_lshlrev_b32 v{dm}, 4, v{vLane}")
    A(f"v_add_u32 v{dm}, {KV_DUMMY}, v{dm}")
    A(f"v_lshrrev_b32 v{d0}, 5, v{vLane}")
    A(f"v_lshlrev_b32 v{d0}, 2, v{d0}")
    for n, (a, b) in enumerate(KV_PAIRS):
        A(f"v_and_b32 v{e}, 31, v{vLane}")
        A(f"v_add_u32 v{e}, {32*b - 80 + 100}, v{e}")
        A(f"v_mul_u32_u24 v{he}, 205, v{e}")
        A(f"v_lshrrev_b32 v{he}, 12, v{he}")
        A(f"v_mul_u32_u24 v{e}, 80, v{e}")
        A(f"v_add_u32 v{e}, s{sTmp3}, v{e}")
        for q in KV_Q[n]:
            a0 = KV_AD + 4 * n + q
            A(f"v_add_u32 v{a0}, {32*a + 8*q + 100}, v{d0}")
            A(f"v_mul_u32_u24 v{t}, 205, v{a0}")
            A(f"v_lshrrev_b32 v{t}, 12, v{t}")
            A(f"v_cmp_eq_u32 vcc, v{t}, v{he}")
            A(f"v_lshl_add_u32 v{a0}, v{a0}, 2, v{e}")
            A(f"v_subrev_u32 v{a0}, {80*100 + 4*100}, v{a0}")
            A(f"v_cndmask_b32 v{a0}, v{dm}, v{a0}, vcc")
    A(f"v_and_b32 v{e}, 15, v{vLane}")
    A(f"v_lshrrev_b32 v{d0}, 4, v{vLane}")
    A(f"v_lshlrev_b32 v{d0}, 2, v{d0}")
    A(f"v_lshl_add_u32 v{d0}, v{e}, 4, v{d0}")
    for a in range(3):
        az = KV_AD + 20 + a
        A(f"v_add_u32 v{az}, {32*a}, v{d0}")
        A(f"v_mul_u32_u24 v{t}, 205, v{az}")
        A(f"v_lshrrev_b32 v{t}, 12, v{t}")
        A(f"v_mul_u32_u24 v{t}, 1600, v{t}")
        A(f"v_lshl_add_u32 v{az}, v{az}, 2, v{t}")
        A(f"v_add_u32 v{az}, s{sTmp3}, v{az}")
        A(f"v_add_u32 v{az}, 1600, v{az}")
        A(f"v_cmp_gt_u32 vcc, {2 if a < 2 else 1}, v{e}")
        A(f"v_cndmask_b32 v{az}, v{dm}, v{az}, vcc")


def k1_epi_kv(A, acc):
    mu = vBUF
    rr = vBUF + 16
    rl = vBUF + 32
    t = vBUF + 48
    raw = vBUF + 48
    cs = vBUF + 80
    eps = vBUF + 86
    sv = vBUF + 64
    A(f"v_and_b32 v{vT0}, 31, v{vLane}")
    A(f"v_cmp_gt_u32 vcc, 16, v{vT0}")
    A(f"v_lshlrev_b32 v{vT0}, 2, v{vT0}")
    A(f"s_mul_i32 s{sTmp}, s{sNW}, 640")
    A(f"s_add_u32 s{sTmp}, s{sTmp}, {MISC_LDS}")
    A(f"v_add_u32 v{vT1}, s{sTmp}, v{vT0}")
    A(f"v_lshrrev_b32 v{vT2}, 5, v{vLane}")
    A(f"s_lshl_b32 s{sTmp}, s{sMW}, 8")
    A(f"s_add_u32 s{sTmp}, s{sTmp}, {MISC_LDS+2048}")
    A(f"v_lshl_add_u32 v{vT2}, v{vT2}, 5, s{sTmp}")
    for q in range(4):
        for h in range(2):
            A(f"ds_read_b128 {vr(raw+8*q+4*h)}, v{vT2} offset:{q*64+h*16}")
    for a in range(5):
        A(f"ds_read_b32 v{cs+a}, v{vT1} offset:{a*128}")
    A("s_waitcnt lgkmcnt(5)")
    for i in range(16):
        A(f"v_rsq_f32 v{rr+i}, v{raw+2*i+1}")
        A(f"v_mov_b32 v{mu+i}, v{raw+2*i}")
    for i in range(16):
        A(f"v_mul_f32 v{rl+i}, {f32(LOG2E)}, v{rr+i}")
    A(f"v_mov_b32 v{eps}, {f32(1e-6)}")
    A("s_waitcnt lgkmcnt(0)")
    op = lambda a, h: acc(0, a) + 4 * h

    def pack(a):
        d = acc(0, a)
        for i in range(8):
            A(f"v_cvt_pk_bf16_f32 v{d+i}, v{d+2*i}, v{d+2*i+1}")

    def plain(a, dst):
        d = acc(0, a)
        for i in range(0, 16, 2):
            pk_fma(A, dst + i, ("p", mu + i), ("b", cs + a), ("p", d + i), neg_a=True)
        for i in range(0, 16, 2):
            pk_mul(A, dst + i, ("p", dst + i), ("p", rr + i))

    def phi(a):
        phi_block(A, acc(0, a), 16, t, lambda i: ("p", mu + i), lambda i: ("b", cs + a), lambda i: ("p", rr + i), lambda i: ("p", rl + i), eps)
    for a in (3, 4):
        plain(a, acc(0, a))
        pack(a)
    plain(2, sv)
    phi(2)
    for i in range(16):
        A(f"v_cndmask_b32 v{acc(0,2)+i}, v{sv+i}, v{acc(0,2)+i}, vcc")
    pack(2)
    for a in (0, 1):
        phi(a)
        pack(a)
    D = lambda n: vBUF + 16 * n
    Z = lambda a: vBUF + 80 + 4 * a
    for h in range(2):
        for n, (a, b) in enumerate(KV_PAIRS):
            A(f"v_mfma_f32_32x32x16_bf16 {vr(D(n),16)}, {vr(op(a,h))}, {vr(op(b,h))}, {vr(D(n),16) if h else 0}")
        for a in range(3):
            A(f"v_mfma_f32_16x16x32_bf16 {vr(Z(a))}, {vr(op(a,h))}, {vr(vSel)}, {vr(Z(a)) if h else 0}")
    A("s_barrier")
    for n in range(5):
        for q in KV_Q[n]:
            A(f"ds_write_b128 v{KV_AD+4*n+q}, {vr(D(n)+4*q)}")
    for a in range(3):
        A(f"ds_write_b128 v{KV_AD+20+a}, {vr(Z(a))}")
    sSlab = 4
    A(f"s_sub_u32 s{sSlab}, s{sCG}, 9")
    A(f"s_mul_i32 s{sSlab}, s{sSlab}, 13440")
    A(f"s_add_u32 s{sSlab}, s{sSlab}, {WS_KVA}")
    A(f"v_lshlrev_b32 v{vT0}, 2, v0")
    A(f"v_add_u32 v{vT1}, {KV_SLAB[2]}, v{vT0}")
    A(f"v_cmp_gt_u32 vcc, {3360-6*512}, v0")
    A(f"v_mov_b32 v{vT2}, {OOB}")
    A(f"v_cndmask_b32 v{vT2}, v{vT2}, v{vT0}, vcc")
    A("s_waitcnt lgkmcnt(0)")
    A("s_barrier")
    R = vACC
    for j in range(7):
        for m in range(4):
            A(f"ds_read_b32 v{R+4*j+m}, v{vT0 if m < 2 else vT1} offset:{j*2048 + (m%2)*14336}")
        if j >= 2:
            k = j - 2
            A("s_waitcnt lgkmcnt(8)")
            kv_atomic(A, R, k, sSlab)
    for k in (5, 6):
        A(f"s_waitcnt lgkmcnt({4*(6-k)})")
        kv_atomic(A, R, k, sSlab)


def kv_atomic(A, R, k, sSlab):
    A(f"v_add_f32 v{R+4*k}, v{R+4*k}, v{R+4*k+1}")
    A(f"v_add_f32 v{R+4*k+2}, v{R+4*k+2}, v{R+4*k+3}")
    A(f"v_add_f32 v{R+4*k}, v{R+4*k}, v{R+4*k+2}")
    A(f"buffer_atomic_add_f32 v{R+4*k}, v{vT0 if k < 6 else vT2}, {srd(S_WS)}, s{sSlab} offen offset:{(k%2)*2048}")
    if k % 2 == 1:
        A(f"s_add_u32 s{sSlab}, s{sSlab}, 4096")


def k1_aux(A):
    if OPT["CODEWARM"] == 1:
        A("s_getpc_b64 s[10:11]")
        A.label("L_pc")
        A(f"s_sub_u32 s10, s10, L_pc-{NAME}_kernel")
        A("s_subb_u32 s11, s11, 0")
        A(f"v_lshlrev_b32 v{vT0}, 7, v0")
        A(f"v_min_u32 v{vT0}, L_code_end-{NAME}_kernel-4, v{vT0}")
        A(f"global_load_dword v{vACC+8}, v{vT0}, s[10:11]")
    if OPT["TLBWARM"]:
        g = OPT["TLBWARM"]
        mk_srd(A, S_T, P_OUT, 2048 * 1280)
        A(f"v_lshlrev_b32 v{vT0}, {g}, v0")
        A(f"buffer_load_dword v{vACC+9}, v{vT0}, {srd(S_WS)}, 0 offen sc1")
        A(f"buffer_load_dword v{vACC+10}, v{vT0}, {srd(S_T)}, 0 offen sc1")
    A(f"s_lshl_b32 s{sUw}, s{sRB}, 3")
    A(f"s_add_u32 s{sUw}, s{sUw}, s{sWave}")
    A(f"s_add_u32 s{sUw}, s{sUw}, 480")
    A(f"s_mul_i32 s{sUl}, s{sWave}, 12288")
    for i in range(3):
        A(f"s_add_u32 s{sU}, s{sUw}, {128*i}")
        A(f"s_add_u32 s9, s{sUl}, {4096*i}")
        w2_unit_dma(A, "s9")
    for i in range(4):
        A(f"v_mov_b32 v{vACC+i}, 0")
    A(f"v_lshlrev_b32 v{vT0}, 4, v0")
    A(f"s_mul_i32 s{sTmp}, s{sRB}, 3360")
    A(f"s_add_u32 s{sTmp}, s{sTmp}, {WS_KVA}")
    A(f"v_add_u32 v{vT0}, s{sTmp}, v{vT0}")
    A(f"v_mov_b32 v{vT2}, {OOB}")
    A(f"v_cmp_gt_u32 vcc, 210, v0")
    A(f"v_cndmask_b32 v{vT0}, v{vT2}, v{vT0}, vcc")
    A(f"s_cmp_lg_u32 s{sWave}, 7")
    A("s_cbranch_scc1 L_A_z")
    A(f"s_lshl_b32 s{sTmp}, s{sRB}, 8")
    A(f"s_add_u32 s{sTmp}, s{sTmp}, {WS_FL}")
    A(f"v_writelane_b32 v{vT0}, s{sTmp}, 0")
    A(f"s_lshl_b32 s{sTmp}, s{sRB}, 9")
    A(f"s_add_u32 s{sTmp}, s{sTmp}, {WS_FL + FL_KV}")
    A(f"v_writelane_b32 v{vT0}, s{sTmp}, 1")
    A(f"s_add_u32 s{sTmp}, s{sTmp}, 256")
    A(f"v_writelane_b32 v{vT0}, s{sTmp}, 2")
    A.label("L_A_z")
    A(f"buffer_store_dwordx4 {vr(vACC)}, v{vT0}, {srd(S_WS)}, 0 offen sc1")
    A("s_waitcnt vmcnt(13)")
    k1_stats(A, "X")
    for i in range(3):
        A(f"s_waitcnt vmcnt({10 - 4*i + 4*i})" if False else f"s_waitcnt vmcnt({(8 - 4*i) + 2 + 4*i})")
        A(f"s_add_u32 s{sU}, s{sUw}, {128*i}")
        A(f"s_add_u32 s9, s{sUl}, {4096*i}")
        w2_unit_out(A, "s9", lambda t: vACC + 16 + 16 * i + 4 * t)
    A("s_waitcnt vmcnt(0)")
    A("s_barrier")
    stamp(A, 9, 0)
    A(f"s_cmp_lg_u32 s{sWave}, 0")
    A("s_cbranch_scc1 L_A_w")
    k1_publish(A)
    A(f"s_mov_b32 s{sSpin}, 0")
    poll_addr(A)
    A.label("L_A_poll")
    A("s_sleep 32")
    A(f"buffer_load_dword v{vPoll}, v{vPa}, {srd(S_DBG)}, 0 offen sc1")
    A("s_waitcnt vmcnt(0)")
    poll_cmp(A)
    A(f"s_add_u32 s{sSpin}, s{sSpin}, 1")
    A(f"s_cmp_gt_u32 s{sSpin}, {SPIN_MAX}")
    A("s_cbranch_scc1 L_A_w")
    A(f"s_cmp_lg_u64 vcc, 0")
    A("s_cbranch_scc1 L_A_poll")
    A.label("L_A_w")
    A("s_barrier")
    stamp(A, 3, 0)
    p2_ids(A)
    A(f"s_mov_b32 s{sWoDone}, 0")
    A(f"v_mov_b32 v{vSigA}, {OOB}")
    A(f"v_mov_b32 v{vSigV}, 0")
    A("s_branch L_p2")


def kernel1(A):
    A(".p2align 8")
    A.label(NAME + "_kernel")
    A("s_cmp_ge_u32 s2, 256")
    A("s_cbranch_scc1 L_k1_exit")
    load_ptrs(A)
    if OPT["CODEWARM"] == 2:
        A("s_getpc_b64 s[10:11]")
        A.label("L_pc")
        A(f"s_sub_u32 s10, s10, L_pc-{NAME}_kernel")
        A("s_subb_u32 s11, s11, 0")
        A("s_lshr_b32 s4, s2, 3")
        A("s_lshl_b32 s4, s4, 7")
        A(f"v_lshl_add_u32 v{vT0}, v0, 12, s4")
        A(f"v_min_u32 v{vT0}, L_code_end-{NAME}_kernel-4, v{vT0}")
        A("v_cmp_gt_u32 vcc, 16, v0")
        A("s_and_saveexec_b64 s[12:13], vcc")
        A("s_cbranch_execz L_nocw")
        A(f"global_load_dword v251, v{vT0}, s[10:11]")
        A.label("L_nocw")
        A("s_mov_b64 exec, s[12:13]")
    A(f"v_and_b32 v{vLane}, 63, v0")
    A(f"v_lshrrev_b32 v{vT0}, 6, v0")
    A(f"v_readfirstlane_b32 s{sWave}, v{vT0}")
    A("s_and_b32 s3, s2, 7")
    A("s_lshr_b32 s4, s2, 3")
    A("s_lshr_b32 s5, s3, 2")
    A("s_and_b32 s6, s3, 3")
    A("s_mul_i32 s7, s6, 30")
    A("s_add_u32 s7, s7, s4")
    A(f"s_lshr_b32 s{sCG}, s7, 3")
    if OPT["CGPERM"]:
        perm = [0, 9, 1, 13, 2, 10, 3, 4, 5, 11, 6, 14, 7, 12, 8, 15]
        tab = sum(p << (4 * i) for i, p in enumerate(perm))
        A(f"s_mov_b32 s10, {tab & 0xffffffff}")
        A(f"s_mov_b32 s11, {tab >> 32}")
        A(f"s_lshl_b32 s{sCG}, s{sCG}, 2")
        A(f"s_lshr_b64 s[10:11], s[10:11], s{sCG}")
        A(f"s_and_b32 s{sCG}, s10, 15")
    A(f"s_and_b32 s{sRB}, s7, 7")
    A("s_lshl_b32 s8, s6, 1")
    A("s_add_u32 s8, s8, s4")
    A("s_sub_u32 s8, s8, 30")
    A("s_cmp_lt_u32 s4, 30")
    A(f"s_cselect_b32 s{sCG}, s{sCG}, 15")
    A(f"s_cselect_b32 s{sRB}, s{sRB}, s8")
    A("s_lshl_b32 s5, s5, 3")
    A(f"s_add_u32 s{sRB}, s{sRB}, s5")
    A(f"s_sub_u32 s3, s{sRB}, 10")
    A(f"s_cmp_lt_u32 s{sRB}, 10")
    A(f"s_cselect_b32 s{sC0}, s{sRB}, s3")
    Q = OPT["ROTQ"]
    if Q == 2:
        A(f"s_and_b32 s{sC0}, s{sC0}, 0xfe")
    elif Q == 5:
        A(f"s_cmp_lt_u32 s{sC0}, 5")
        A(f"s_cselect_b32 s{sC0}, 0, 5")
    A("s_waitcnt lgkmcnt(0)")
    mk_srd(A, S_X, P_X, 2048 * 1280)
    mk_srd(A, S_WS, P_WS, WS_SIZE)
    mk_srd(A, S_DBG, P_DBG, 256)
    stamp(A, 0, 0)
    if OPT["P2ONLY"]:
        p2_ids(A)
        A(f"s_mov_b32 s{sWoDone}, 0")
        A(f"v_mov_b32 v{vSigA}, {OOB}")
        A(f"v_mov_b32 v{vSigV}, 0")
        A("s_branch L_p2")
    k1_stats_issue(A)
    A(f"s_cmp_eq_u32 s{sCG}, 15")
    A("s_cbranch_scc1 L_aux")
    A(f"v_lshrrev_b32 v{vT0}, 3, v{vLane}")
    A(f"v_lshrrev_b32 v{vT1}, 4, v{vLane}")
    A(f"v_and_b32 v{vT2}, 7, v{vLane}")
    A(f"v_xor_b32 v{vT1}, v{vT1}, v{vT2}")
    if OPT["NOSWZ"]: A(f"v_and_b32 v{vT1}, 7, v{vLane}")
    A(f"s_lshl_b32 s3, s{sRB}, 7")
    if OPT["SAME"]: A("s_mov_b32 s3, 0")
    A(f"s_and_b32 s4, s{sWave}, 3")
    A(f"s_lshl_b32 s{sXslot}, s4, 12")
    A(f"s_lshl_b32 s4, s4, 5")
    A("s_add_u32 s3, s3, s4")
    A(f"v_add_u32 v{vT0}, s3, v{vT0}")
    A(f"v_mul_u32_u24 v{vT0}, 1280, v{vT0}")
    A(f"v_lshl_add_u32 v{vXo}, v{vT1}, 4, v{vT0}")
    A(f"v_xor_b32 v{vT1}, 4, v{vT1}")
    A(f"v_lshl_add_u32 v{vXo+1}, v{vT1}, 4, v{vT0}")
    A(f"v_add_u32 v{vXo+1}, {8*1280}, v{vXo+1}")
    A(f"s_lshl_b32 s{sKX}, s{sC0}, 7")
    A(f"s_mov_b32 s{sKXn}, 0")
    A(f"s_cmp_ge_u32 s{sCG}, 13")
    A("s_cbranch_scc1 L_typeQ")
    A(f"s_cmp_ge_u32 s{sCG}, 9")
    A("s_cbranch_scc1 L_typeK")
    k1_gemm(A, "G")
    A.label("L_typeQ")
    k1_gemm(A, "Q")
    A.label("L_typeK")
    k1_gemm(A, "K")
    A.label("L_aux")
    k1_aux(A)
    phase2(A)
    A.label("L_k1_exit")
    A("s_endpgm")
    A.label("L_code_end")


sRB64, sC, sHo, sWo, sFl, sWoDone, sWoL, sWoG, sWoI, sHb, sHe, sWb, sWe = sKW, sKWn, sKX, sKXn, sWslot, sRslot, sXslot, sStepW, sCSit, sSpec, sWrapW, sC0, sRow
vL16 = 5


def p2_ids(A):
    A("s_and_b32 s3, s2, 7")
    A("s_lshr_b32 s4, s2, 3")
    A(f"s_and_b32 s{sC}, s4, 7")
    A("s_lshr_b32 s4, s4, 3")
    A("s_lshl_b32 s3, s3, 2")
    A(f"s_add_u32 s{sRB64}, s3, s4")
    if OPT["P2SAME"] == 1:
        A(f"s_and_b32 s{sRB64}, s{sRB64}, 1")
        A(f"s_and_b32 s{sC}, s{sC}, 1")
    if OPT["P2SAME"] == 2:
        A(f"s_and_b32 s{sC}, s{sC}, 3")
    A(f"v_lshlrev_b32 v{vL16}, 4, v{vLane}")


WO_LDS = 32768


def wo_early(A, first, per_wave):
    A("s_lshr_b32 s4, s2, 3")
    A("s_and_b32 s4, s4, 7")
    A(f"s_mul_i32 s4, s4, {74*5120}")
    A(f"s_and_b32 s5, s{sWave}, 3")
    A(f"s_mul_i32 s5, s5, {per_wave*1024}")
    A("s_add_u32 s4, s4, s5")
    A(f"s_add_u32 s4, s4, {WS_W2 + 54*5120 + first*1024}")
    A(f"s_add_u32 s5, s5, {WO_LDS + first*1024}")
    A(f"v_lshlrev_b32 v{vT0}, 4, v{vLane}")
    for i in range(per_wave):
        if i % 4 == 0:
            A(f"s_add_u32 m0, s5, {i*1024}")
            A(f"s_add_u32 s6, s4, {i*1024}")
        A(f"buffer_load_dwordx4 v{vT0}, {srd(S_WS)}, s6 offen offset:{(i%4)*1024} sc1 lds")


def wo_setup(A):
    A(f"s_mul_i32 s{sWoL}, s{sWave}, 25600")
    A(f"s_add_u32 s{sWoL}, s{sWoL}, {WO_LDS}")
    A(f"s_mul_i32 s6, s{sC}, 74")
    A(f"s_mul_i32 s7, s{sWave}, 5")
    A("s_add_u32 s6, s6, s7")
    A("s_add_u32 s6, s6, 54")
    A("s_mul_i32 s6, s6, 5120")
    A(f"s_add_u32 s{sWoG}, s6, {WS_W2}")
    A(f"s_and_b32 s{sWoI}, s{sRB64}, 3")
    A(f"s_mul_i32 s{sWoI}, s{sWoI}, {6*1024}")


def wo_dmas():
    return [f"s_add_u32 m0, s{sWoL}, s{sWoI}\n"
            f"s_add_u32 s9, s{sWoG}, s{sWoI}\n"
            f"buffer_load_dwordx4 v{vL16}, {srd(S_WS)}, s9 offen sc1 lds\n"
            f"s_add_u32 s{sWoI}, s{sWoI}, 1024\n"
            f"s_cmp_eq_u32 s{sWoI}, {25*1024}\n"
            f"s_cselect_b32 s{sWoI}, 0, s{sWoI}" for _ in range(25)]


NK, WD, HD = 14, 6, 3
q4 = lambda a, b: list(range(a, b, 4))
WQ = q4(8, 56) + q4(128, 152) + q4(248, 256) + q4(112, 128) + q4(152, 168) + q4(200, 208)
AQ = q4(88, 112) + q4(168, 192) + q4(56, 88)
HQ = q4(192, 200) + q4(208, 248)
assert len(WQ) == 30 and len(AQ) == 20 and len(HQ) == 12 and len(set(WQ + AQ + HQ)) == 62
sLast = sOdd


def ffn_setup(A):
    A(f"s_sub_u32 s3, s{sWave}, 4")
    A("s_mul_i32 s4, s3, 14")
    A("s_cmp_eq_u32 s3, 3")
    A("s_cselect_b32 s5, 1, 0")
    A("s_sub_u32 s4, s4, s5")
    A("s_cmp_ge_u32 s3, 2")
    A("s_cselect_b32 s5, 13, 14")
    A(f"s_cselect_b32 s{sLast}, {OOB}, 0")
    A(f"s_and_b32 s6, s{sRB64}, 3")
    A("s_lshl_b32 s6, s6, 1")
    A(f"s_add_u32 s6, s6, s{sC}")
    A("s_mul_i32 s6, s6, 7")
    A("s_lshr_b32 s6, s6, 2")
    A("s_sub_u32 s7, s6, s5")
    A("s_cmp_ge_u32 s6, s5")
    A("s_cselect_b32 s6, s7, s6")
    if not OPT["P2ROT"]:
        A("s_mov_b32 s6, 0")
    A(f"s_mul_i32 s{sHb}, s{sRB64}, 54")
    A(f"s_add_u32 s{sHb}, s{sHb}, s4")
    A(f"s_lshl_b32 s{sHb}, s{sHb}, 12")
    A("s_lshl_b32 s7, s5, 12")
    A(f"s_add_u32 s{sHe}, s{sHb}, s7")
    A("s_lshl_b32 s7, s6, 12")
    A(f"s_add_u32 s{sHo}, s{sHb}, s7")
    A(f"s_mul_i32 s{sWb}, s{sC}, 74")
    A(f"s_add_u32 s{sWb}, s{sWb}, s4")
    A(f"s_mul_i32 s{sWb}, s{sWb}, 5120")
    A(f"s_add_u32 s{sWb}, s{sWb}, {WS_W2}")
    A("s_mul_i32 s7, s5, 5120")
    A(f"s_add_u32 s{sWe}, s{sWb}, s7")
    A("s_mul_i32 s7, s6, 5120")
    A(f"s_add_u32 s{sWo}, s{sWb}, s7")


def ldW_groups(j):
    out = []
    pre = f"s_add_u32 s{sWo}, s{sWo}, s{sLast}\n" if j == NK - 1 else ""
    for nt in range(4):
        out.append((pre if nt == 0 else "") +
                   f"buffer_load_dwordx4 {vr(WQ[5*(j%WD)+nt])}, v{vL16}, {srd(S_WS)}, s{sWo} offen offset:{nt*1024}{HSC}")
    out.append(f"s_add_u32 s3, s{sWo}, 4096\n"
               f"buffer_load_dwordx4 {vr(WQ[5*(j%WD)+4])}, v{vL16}, {srd(S_WS)}, s3 offen{HSC}\n"
               f"s_add_u32 s{sWo}, s{sWo}, 5120\n"
               f"s_cmp_eq_u32 s{sWo}, s{sWe}\n"
               f"s_cselect_b32 s{sWo}, s{sWb}, s{sWo}")
    return out


def poll_flag(A, lab, addr_s, mask, target, vtmp):
    A(f"s_mov_b32 s{sSpin}, 0")
    A(f"v_mov_b32 v{vtmp+1}, 0")
    A.label(lab)
    A(f"buffer_load_dword v{vtmp}, v{vtmp+1}, {srd(S_WS)}, s{addr_s} offen sc1")
    A("s_waitcnt vmcnt(0)")
    A(f"v_readfirstlane_b32 s{sTmp3}, v{vtmp}")
    A(f"s_add_u32 s{sSpin}, s{sSpin}, 1")
    A(f"s_and_b32 s{sTmp3}, s{sTmp3}, {mask}")
    A(f"s_cmp_ge_u32 s{sTmp3}, {0 if OPT['P2ONLY'] else target}")
    A(f"s_cbranch_scc1 {lab}_ok")
    A(f"s_cmp_gt_u32 s{sSpin}, {SPIN_MAX}")
    A(f"s_cbranch_scc1 {lab}_ok")
    A("s_sleep 6")
    A(f"s_branch {lab}")
    A.label(lab + "_ok")


def phase2(A):
    S_OUT = S_T
    ACC = 8
    acc = lambda nt, mt: ACC + 4 * (nt * 4 + mt)
    A.label("L_p2")
    mk_srd(A, S_OUT, P_OUT, 2048 * 1280)
    A(f"s_lshr_b32 s{sFl}, s{sRB64}, 1")
    A(f"s_lshl_b32 s{sFl}, s{sFl}, 8")
    A(f"s_add_u32 s{sFl}, s{sFl}, {WS_FL + FL_HC}")
    A.fence()
    A(f"s_cmp_ge_u32 s{sWave}, 4")
    A("s_cbranch_scc1 L2_ffn")

    def signal(n_younger):
        A(f"s_waitcnt vmcnt({n_younger}) lgkmcnt(0)")
        A("s_barrier")

    XR, OA, RA = 232, 238, 241

    def red_setup(A, ta, tb):
        for j in range(3):
            A(f"s_add_u32 s11, s{sWave}, {8*j}")
            A(f"s_lshr_b32 s12, s11, 2")
            A(f"s_and_b32 s13, s11, 3")
            A(f"s_lshl_b32 s14, s{sRB64}, 6")
            A(f"s_lshl_b32 s13, s13, 4")
            A("s_add_u32 s14, s14, s13")
            A("s_mul_i32 s14, s14, 1280")
            A(f"s_mul_i32 s15, s{sC}, 160")
            A("s_add_u32 s14, s14, s15")
            A("s_lshl_b32 s12, s12, 5")
            A("s_add_u32 s14, s14, s12")
            A("s_cmp_lt_u32 s11, 20")
            A(f"s_cselect_b32 s14, s14, {OOB}")
            A(f"v_and_b32 v{ta}, 15, v{vLane}")
            A(f"v_mul_u32_u24 v{ta}, 1280, v{ta}")
            A(f"v_lshrrev_b32 v{tb}, 4, v{vLane}")
            A(f"v_lshl_add_u32 v{ta}, v{tb}, 3, v{ta}")
            A(f"v_add_u32 v{OA+j}, s14, v{ta}")
            A(f"buffer_load_dwordx2 {vr(XR+2*j, 2)}, v{OA+j}, {srd(S_X)}, 0 offen")
            A("s_lshl_b32 s12, s11, 10")
            A(f"s_add_u32 s13, s12, {WO_LDS+5120}")
            A(f"v_add_u32 v{RA+5*j}, s13, v{vL16}")
            for f in range(4):
                A(f"s_add_u32 s13, s12, {KV_SLAB[f]}")
                A(f"s_add_u32 s14, s12, {WO_LDS + f*25600 - 14*1024}")
                A("s_cmp_lt_u32 s11, 14")
                A("s_cselect_b32 s13, s13, s14")
                A("s_cmp_lt_u32 s11, 19")
                A(f"s_cselect_b32 s13, s13, {28672 + f*1024}")
                A(f"v_add_u32 v{RA+5*j+1+f}, s13, v{vL16}")

    AD = 8
    RAW, NRAW = 56, 6
    FR = 80
    OSP = 96
    PQ = lambda mt, blk: 112 + 16 * blk + 4 * mt
    O = lambda u, mt: (OSP + 4 * mt) if u == 0 else PQ(mt, u - 1)
    DEN = 192
    NM = 224
    T = 192
    A(f"s_mul_i32 s8, s{sWave}, 14336")
    A(f"s_cmp_ge_u32 s{sWave}, 2")
    A(f"s_cselect_b32 s9, {135168 - 2*14336}, 0")
    A("s_add_u32 s8, s8, s9")
    for i in range(4):
        A(f"v_mov_b32 v{T+i}, 0")
    A(f"s_add_u32 s9, s8, 13440")
    A(f"v_mov_b32 v{vT2}, s9")
    A(f"ds_write_b128 v{vT2}, {vr(T)}")
    A(f"ds_write_b32 v{vT2}, v{T} offset:16")
    signal(0)
    A(f"s_cmp_lg_u32 s{sWave}, 0")
    A("s_cbranch_scc1 L2_nosig")
    A(f"buffer_atomic_add v{vSigV}, v{vSigA}, {srd(S_WS)}, 0 offen sc1")
    A.label("L2_nosig")
    stamp(A, 0, 1)
    if OPT["NOATT"]:
        A("s_branch L2_reduce")
    A(f"s_cmp_lg_u32 s{sWoDone}, 0")
    A("s_cbranch_scc1 L2_wodone")
    wo_setup(A)
    for g in wo_dmas():
        A(g)
    A.label("L2_wodone")
    A(f"s_mul_i32 s4, s{sWave}, 25600")
    A(f"s_add_u32 s4, s4, {WO_LDS}")
    iL, gL = T + 4, T + 5
    he = T + 12
    hd = T + 22
    ab, zb, hz = T + 6, T + 7, T + 8
    A(f"v_and_b32 v{iL}, 15, v{vLane}")
    A(f"v_lshrrev_b32 v{gL}, 4, v{vLane}")
    for Tt in range(10):
        A(f"v_add_u32 v{he+Tt}, {16*Tt}, v{iL}")
        A(f"v_mul_u32_u24 v{he+Tt}, 205, v{he+Tt}")
        A(f"v_lshrrev_b32 v{he+Tt}, 12, v{he+Tt}")
    for blk in range(5):
        for h in range(2):
            r = hd + 2 * blk + h
            A(f"v_lshlrev_b32 v{r}, 3, v{gL}")
            A(f"v_add_u32 v{r}, {32*blk+4*h}, v{r}")
            A(f"v_mul_u32_u24 v{r}, 205, v{r}")
            A(f"v_lshrrev_b32 v{r}, 12, v{r}")
    A(f"v_mul_u32_u24 v{ab}, 80, v{iL}")
    A(f"v_lshl_add_u32 v{ab}, v{gL}, 5, v{ab}")
    A(f"v_add_u32 v{ab}, s8, v{ab}")
    A(f"v_and_b32 v{hz}, 3, v{iL}")
    A(f"v_mul_u32_u24 v{zb}, 1600, v{hz}")
    A(f"v_lshl_add_u32 v{zb}, v{gL}, 5, v{zb}")
    A(f"v_add_u32 v{zb}, s8, v{zb}")
    NUM = {0: [0], 1: [0, 1], 2: [0, 1], 3: [1, 2], 4: [1, 2], 5: [2, 3], 6: [2, 3], 7: [3, 4], 8: [3, 4], 9: [4]}
    frs = []
    for ch in range(2):
        A(f"v_add_u32 v{T+9}, {4*ch}, v{hz}")
        bl = [0, 1, 2] if ch == 0 else [2, 3, 4]
        for blk in bl:
            n = len(frs)
            frs.append(("z", ch, blk, blk == bl[0], blk == bl[-1]))
            for h in range(2):
                a = AD + 2 * n + h
                A(f"v_cmp_eq_u32 vcc, v{T+9}, v{hd+2*blk+h}")
                A(f"v_add_u32 v{a}, {6400*ch+1600+128*blk+16*h}, v{zb}")
                A(f"v_cndmask_b32 v{a}, v{vT2}, v{a}, vcc")
    for Tt in range(10):
        for blk in NUM[Tt]:
            n = len(frs)
            frs.append(("n", Tt, blk, blk == NUM[Tt][0], blk == NUM[Tt][-1]))
            for h in range(2):
                a = AD + 2 * n + h
                A(f"v_cmp_eq_u32 vcc, v{he+Tt}, v{hd+2*blk+h}")
                A(f"v_add_u32 v{a}, {1280*Tt+128*blk+16*h}, v{ab}")
                A(f"v_cndmask_b32 v{a}, v{vT2}, v{a}, vcc")
    assert len(frs) == 24
    sM = 84
    for k in range(3):
        A(f"v_cmp_lt_u32 s[{sM+2*k}:{sM+2*k+1}], {k}, v{gL}")
    stamp(A, 7, 1, vt=vT0)
    A("s_setprio 3")
    A(f"s_lshr_b32 s10, s{sWave}, 1")
    A("s_lshl_b32 s10, 0x2000, s10")
    poll_flag(A, "L2_pq", sFl, "s10", "s10", vT0)
    stamp(A, 8, 1, vt=vT0)
    A(f"s_mul_i32 s6, s{sRB64}, 20")
    A(f"s_mul_i32 s7, s{sWave}, 5")
    A("s_add_u32 s6, s6, s7")
    A("s_lshl_b32 s6, s6, 12")
    A(f"s_add_u32 s6, s6, {WS_PQ}")
    for blk in range(5):
        for mt in range(4):
            A(f"buffer_load_dwordx4 {vr(PQ(mt, blk))}, v{vL16}, {srd(S_WS)}, s6 offen offset:{mt*1024} sc1")
        A(f"s_add_u32 s6, s6, 4096")
    A(f"s_lshl_b32 s6, s{sWave}, 3")
    A("s_and_b32 s7, s2, 7")
    A("s_add_u32 s6, s6, s7")
    A("s_lshl_b32 s6, s6, 8")
    A(f"s_add_u32 s6, s6, {WS_FL + FL_KV}")
    poll_flag(A, "L2_kv", 6, 0xff, 16, vT0)
    stamp(A, 3, 1, vt=vT0)
    A(f"s_mul_i32 s3, s{sWave}, 13440")
    A(f"s_add_u32 s3, s3, {WS_KVA}")
    for i in range(14):
        if i % 4 == 0:
            A(f"s_add_u32 m0, s8, {i*1024}")
            A(f"s_add_u32 s5, s3, {i*1024}")
        if i == 13:
            A("s_mov_b64 exec, 0xff")
        A(f"buffer_load_dwordx4 v{vL16}, {srd(S_WS)}, s5 offen offset:{(i%4)*1024} sc1 lds")
    A("s_mov_b64 exec, -1")
    A(f"s_setprio {OPT['APRIO']}")
    A("s_waitcnt vmcnt(0) lgkmcnt(0)")
    stamp(A, 9, 1, vt=vT0)
    raw = lambda k: RAW + 4 * (k % NRAW)
    fr = lambda n: FR + 4 * (n % 4)
    dst = lambda f, mt: (DEN + 8 * mt + 4 * f[1]) if f[0] == "z" else (NM + 16 * (f[1] % 2) + 4 * mt)

    def rd(n):
        for h in range(2):
            A(f"ds_read_b128 {vr(raw(2*n+h))}, v{AD+2*n+h}")

    def post(f):
        out = []
        if f[0] == "z":
            for mt in range(4):
                for i in range(4):
                    r = DEN + 8 * mt + 4 * f[1] + i
                    out.append(f"v_add_f32 v{r}, {f32(1e-6)}, v{r}")
            for mt in range(4):
                for i in range(4):
                    r = DEN + 8 * mt + 4 * f[1] + i
                    out.append(f"v_rcp_f32 v{r}, v{r}")
            return out
        Tt = f[1]
        lo, hi = (4 * Tt) // 5, (4 * Tt + 3) // 5
        sl = {}
        for mt in range(4):
            if lo == hi:
                sl[mt] = DEN + 8 * mt + lo
            else:
                thr = 5 * hi - 4 * Tt
                sl[mt] = AD + mt
                out.append(f"v_cndmask_b32 v{sl[mt]}, v{DEN+8*mt+lo}, v{DEN+8*mt+hi}, s[{sM+2*(thr-1)}:{sM+2*(thr-1)+1}]")
        for mt in range(4):
            d = dst(f, mt)
            for i in range(4):
                out.append(f"v_mul_f32 v{d+i}, v{d+i}, v{sl[mt]}")
        for mt in range(4):
            d = dst(f, mt)
            ob = O(Tt // 2, mt) + 2 * (Tt % 2)
            out.append(f"v_cvt_pk_bf16_f32 v{ob}, v{d}, v{d+1}")
            out.append(f"v_cvt_pk_bf16_f32 v{ob+1}, v{d+2}, v{d+3}")
        return out
    rd(0)
    rd(1)
    pend = []
    nxt = []
    for n in range(26):
        if n + 2 < 24:
            rd(n + 2)
        cv = []
        if n < 24:
            A(f"s_waitcnt lgkmcnt({2*min(2, 23-n)})")
            for h in range(2):
                cv.append(f"v_cvt_pk_bf16_f32 v{fr(n)+2*h}, v{raw(2*n+h)}, v{raw(2*n+h)+1}")
                cv.append(f"v_cvt_pk_bf16_f32 v{fr(n)+2*h+1}, v{raw(2*n+h)+2}, v{raw(2*n+h)+3}")
        mf = []
        if 1 <= n <= 24:
            f = frs[n - 1]
            if f[3] and f[0] == "n":
                need = [x for x in pend if x[0] <= f[1] - 2]
                for x in need:
                    A(x[1])
                pend = [x for x in pend if x[0] > f[1] - 2]
            for mt in range(4):
                d = vr(dst(f, mt))
                mf.append(f"v_mfma_f32_16x16x32_bf16 {d}, {vr(fr(n-1))}, {vr(PQ(mt, f[2]))}, {0 if f[3] else d}")
        take = pend[:14]
        pend = pend[14:]
        work = cv + [x[1] for x in take]
        for g in (interleave(mf, work) if mf else work):
            A(g)
        pend += nxt
        nxt = []
        if 1 <= n <= 24 and frs[n - 1][4]:
            f = frs[n - 1]
            nxt = [((f[1] if f[0] == "n" else -9), x) for x in post(f)]
    for x in pend + nxt:
        A(x[1])
    stamp(A, 11, 1, vt=vT0)
    A(f"s_setprio {OPT['APRIO2']}")
    WF = 192
    A(f"v_add_u32 v{vT0}, s4, v{vL16}")
    A.fence()

    def rd_wo(u):
        for nt in range(5):
            A(f"ds_read_b128 {vr(WF+20*(u%2)+4*nt)}, v{vT0} offset:{(u*5+nt)*1024}")
    E = Asm()
    red_setup(E, vSigA, vSigV)
    rs = [t for _, t in E.lines]
    rd_wo(0)
    for u in range(5):
        if u + 1 < 5:
            rd_wo(u + 1)
        A(f"s_waitcnt lgkmcnt({5 if u < 4 else 0})")
        if u == 0:
            A(f"v_mov_b32 v{vT1}, 1")
            A(f"ds_write_b32 v{vT2}, v{vT1} offset:16")
        mf = []
        for nt in range(5):
            for mt in range(4):
                d = vr(acc(nt, mt))
                mf.append(f"v_mfma_f32_16x16x32_bf16 {d}, {vr(WF+20*(u%2)+4*nt)}, {vr(O(u, mt))}, {d if u else 0}")
        k = (len(rs) + 3) // 4
        for g in interleave(mf, rs[u*k:(u+1)*k]):
            A(g)
    stamp(A, 1, 1, vt=vSigA)
    A.fence()
    for t in range(20):
        A(f"ds_write_b128 v{vT0}, {vr(ACC+4*t)} offset:{5120+t*1024}")
    A("s_branch L2_reduce")

    A.label("L2_ffn")
    q = []

    def ldW(j):
        for g in ldW_groups(j):
            A(g)
        q.extend([("W", j)] * 5)

    def ldH1(j, mt):
        if j == NK - 1 and mt == 0:
            A(f"s_add_u32 s{sHo}, s{sHo}, s{sLast}")
        A(f"buffer_load_dwordx4 {vr(HQ[4*(j%HD)+mt])}, v{vL16}, {srd(S_WS)}, s{sHo} offen offset:{mt*1024}{HSC}")
        if mt == 3:
            A(f"s_add_u32 s{sHo}, s{sHo}, 4096")
            A(f"s_cmp_eq_u32 s{sHo}, s{sHe}")
            A(f"s_cselect_b32 s{sHo}, s{sHb}, s{sHo}")
        q.append(("H", j, mt))

    def ldH(j):
        for mt in range(4):
            ldH1(j, mt)
    signal(0)
    A(f"s_cmp_lg_u32 s{sWoDone}, 0")
    A("s_cbranch_scc1 L2_ws")
    ffn_setup(A)
    A.label("L2_ws")
    for j in range(0, WD, 2):
        A(f"s_cmp_gt_u32 s{sWoDone}, {j+1}")
        A(f"s_cbranch_scc1 L2_w{j}")
        ldW(j)
        ldW(j + 1)
        A.label(f"L2_w{j}")
    stamp(A, 4, 1, wave=4, vt=vT0)
    A(f"s_sub_u32 s10, s{sWave}, 4")
    A("s_lshl_b32 s10, s10, 1")
    A("s_lshl_b32 s10, 7, s10")
    if not OPT["FINEH"]:
        A("s_movk_i32 s10, 0x1ff")
    poll_flag(A, "L2_h", sFl, "s10", "s10", vT0)
    stamp(A, 5, 1, wave=4, vt=vT0)
    stamp(A, 14, 1, wave=4, vt=vT0, clk=True)
    q.clear()
    for j in range(HD):
        ldH(j)
    A(f"s_setprio {OPT['FPRIO']}")
    for j in range(NK):
        for mt in range(4):
            last = max(i for i, e in enumerate(q) if e[1] == j and (e[0] == "W" or e[2] <= mt))
            A(f"s_waitcnt vmcnt({len(q)-1-last})")
            for nt in range(5):
                d = vr(AQ[nt*4+mt])
                if not OPT["NOMF"]: A(f"v_mfma_f32_16x16x32_bf16 {d}, {vr(WQ[5*(j%WD)+nt])}, {vr(HQ[4*(j%HD)+mt])}, {d if j else 0}")
            if j + HD < NK:
                ldH1(j + HD, mt)
        if j + WD < NK:
            ldW(j + WD)
    A("s_setprio 0")
    stamp(A, 6, 1, wave=4, vt=vT0)
    stamp(A, 15, 1, wave=4, vt=vT0, clk=True)
    A("s_waitcnt vmcnt(0)")
    red_setup(A, vSigA, vSigV)
    A(f"s_sub_u32 s3, s{sWave}, 4")
    A("s_mul_i32 s8, s3, 14336")
    A("s_cmp_ge_u32 s3, 2")
    A(f"s_cselect_b32 s9, {135168 - 2*14336}, 0")
    A("s_add_u32 s8, s8, s9")
    A(f"v_add_u32 v{vT0}, s8, v{vL16}")
    A("s_add_u32 s9, s8, 13456")
    A(f"v_mov_b32 v{vT2}, s9")
    A(f"s_mov_b32 s{sSpin}, 0")
    A.label("L2_wfree")
    A(f"ds_read_b32 v{vT1}, v{vT2}")
    A("s_waitcnt lgkmcnt(0)")
    A(f"v_readfirstlane_b32 s9, v{vT1}")
    A(f"s_add_u32 s{sSpin}, s{sSpin}, 1")
    A("s_cmp_eq_u32 s9, 1")
    A("s_cbranch_scc1 L2_wfree_ok")
    A(f"s_cmp_gt_u32 s{sSpin}, {SPIN_MAX*16}")
    A("s_cbranch_scc1 L2_wfree_ok")
    A("s_sleep 2")
    A("s_branch L2_wfree")
    A.label("L2_wfree_ok")
    A("s_mul_i32 s8, s3, 25600")
    A(f"s_add_u32 s8, s8, {WO_LDS}")
    A(f"v_add_u32 v{vT1}, s8, v{vL16}")
    A("s_lshl_b32 s8, s3, 10")
    A(f"v_add_u32 v{vT2}, s8, v{vL16}")
    for t in range(20):
        if t < 14:
            A(f"ds_write_b128 v{vT0}, {vr(AQ[t])} offset:{t*1024}")
        elif t < 19:
            A(f"ds_write_b128 v{vT1}, {vr(AQ[t])} offset:{(t-14)*1024}")
        else:
            A(f"ds_write_b128 v{vT2}, {vr(AQ[t])} offset:28672")

    A.label("L2_reduce")
    A("s_setprio 0")
    A("s_waitcnt lgkmcnt(0)")
    stamp(A, 12, 1, vt=vSigA)
    A("s_barrier")
    stamp(A, 13, 1, vt=vSigA)
    R = lambda j: 8 + 32 * j

    def rds(j):
        A(f"v_add_u32 v{vT0}, {2*25600}, v{RA+5*j}")
        for w in range(4):
            A(f"ds_read_b128 {vr(R(j)+4*w)}, v{RA+5*j if w < 2 else vT0} offset:{(w%2)*25600}")
        for f in range(4):
            A(f"ds_read_b128 {vr(R(j)+16+4*f)}, v{RA+5*j+1+f}")

    def fin(j):
        r = R(j)
        for st in (16, 8, 4):
            for i in range(0, st, 2):
                pk_mul(A, r + i, ("p", r + i), ("p", r + st + i), op="add")
        x0, x1 = XR + 2 * j, XR + 2 * j + 1
        A(f"v_lshlrev_b32 v{r+4}, 16, v{x0}")
        A(f"v_and_b32 v{r+5}, 0xffff0000, v{x0}")
        A(f"v_lshlrev_b32 v{r+6}, 16, v{x1}")
        A(f"v_and_b32 v{r+7}, 0xffff0000, v{x1}")
        for i in range(0, 4, 2):
            pk_mul(A, r + i, ("p", r + i), ("p", r + 4 + i), op="add")
        A(f"v_cvt_pk_bf16_f32 v{x0}, v{r}, v{r+1}")
        A(f"v_cvt_pk_bf16_f32 v{x1}, v{r+2}, v{r+3}")
        A(f"buffer_store_dwordx2 {vr(x0, 2)}, v{OA+j}, {srd(S_OUT)}, 0 offen" + ["", " sc1", " nt"][OPT["OUTSC"]])
    rds(0)
    rds(1)
    A("s_waitcnt vmcnt(0) lgkmcnt(8)")
    fin(0)
    A(f"s_cmp_ge_u32 s{sWave}, 4")
    A("s_cbranch_scc1 L2_last")
    rds(2)
    A("s_waitcnt lgkmcnt(0)")
    fin(2)
    A.label("L2_last")
    A("s_waitcnt lgkmcnt(0)")
    fin(1)
    A.label("L2_done")
    stamp(A, 2, 1, vt=vSigA)


def descriptor(name, vgpr=256):
    return f""".amdhsa_kernel {name}
  .amdhsa_next_free_vgpr {vgpr}
  .amdhsa_next_free_sgpr 102
  .amdhsa_accum_offset {vgpr}
  .amdhsa_group_segment_fixed_size 0
  .amdhsa_kernarg_size 80
  .amdhsa_user_sgpr_count 2
  .amdhsa_user_sgpr_kernarg_segment_ptr 1
  .amdhsa_system_sgpr_workgroup_id_x 1
.end_amdhsa_kernel
"""


def main():
    A = Asm()
    kernel1(A)
    K = NAME + "_kernel"
    head = f"""; LN + linear attention + GEGLU FFN, one persistent launch (generated by dev/gen.py)
; @launch grid=(256,1,1) block=(512,1,1) lds={LDS_TOTAL}
.amdgcn_target "amdgcn-amd-amdhsa--gfx950"
.text
.globl {K}
.type {K},@function
"""
    tail = '.section .rodata,"a"\n.p2align 6\n' + descriptor(K)
    open(sys.argv[1], "w").write(head + A.render() + tail)


main()
```

```python
import sys, struct, math
from asmlib import Asm, interleave

NAME = "parallel_sum__linear_attn_block__geglu_ffn__prompt"

OPT = dict(ROTQ=1, STAMP=0, NODMA=0, SAME=0, NOSWZ=0, NORD=0, P2ROT=1, WARM=1, PLAIN=0, BYTEFLAG=0, NBUP=6, SW=0, P2ONLY=0, P2SAME=0, NOATT=0, NOMF=0, FPRIO=1, NPRE=2, CGPERM=0, OUTSC=0, CODEWARM=2, TLBWARM=0, PUBST=0, GPK=1, APRIO=2, APRIO2=0, FINEH=1, XMAP=0, FAKE16=0, PSLEEP=2, EPOLL=0)
for a in sys.argv[2:]:
    k, v = a.split("=")
    OPT[k] = int(v)

HSC = '' if OPT['PLAIN'] else ' sc1'
WS_H = 0x000000
WS_PQ = 0x700000
WS_W2 = 0xA00000
WS_ST = 0xD00000
WS_CS = 0xD10000
WS_KVA = 0xD80000
WS_FL = 0xD90000
FL_HC = 0
FL_KV = 16 * 256
WS_STAMP = 0xF00000
WS_SIZE = 0x1000000
OOB = 0x40000000


def f32(x):
    return "0x%08x" % struct.unpack("<I", struct.pack("<f", x))[0]


LOG2E = 1.4426950408889634
GC1 = -2.0 * math.sqrt(2.0 / math.pi) * LOG2E
GC2 = GC1 * 0.044715

P_X, P_WQKV, P_WO, P_BX, P_G, P_U, P_D, P_OUT, P_DBG, P_WS = 16, 18, 20, 22, 24, 26, 28, 30, 32, 34
S_X, S_W, S_WS, S_DBG, S_T = 36, 40, 44, 48, 52


def srd(b):
    return f"s[{b}:{b+3}]"


def vr(b, n=4):
    return f"v[{b}:{b+n-1}]"


def mk_srd(A, s, p, nbytes):
    A(f"s_mov_b32 s{s}, s{p}")
    A(f"s_and_b32 s{s+1}, s{p+1}, 0xffff")
    A(f"s_mov_b32 s{s+2}, {nbytes}")
    A(f"s_mov_b32 s{s+3}, 0x20000")


def load_ptrs(A):
    A("s_load_dwordx16 s[16:31], s[0:1], 0")
    A("s_load_dwordx4 s[32:35], s[0:1], 64")


def wave_allreduce_add(A, v, t, s0):
    A(f"v_add_f32_dpp v{v}, v{v}, v{v} quad_perm:[1,0,3,2] row_mask:0xf bank_mask:0xf")
    A(f"v_add_f32_dpp v{v}, v{v}, v{v} quad_perm:[2,3,0,1] row_mask:0xf bank_mask:0xf")
    A(f"v_add_f32_dpp v{v}, v{v}, v{v} row_half_mirror row_mask:0xf bank_mask:0xf")
    A(f"v_add_f32_dpp v{v}, v{v}, v{v} row_mirror row_mask:0xf bank_mask:0xf")
    for i in range(4):
        A(f"v_readlane_b32 s{s0+i}, v{v}, {16*i}")
    A(f"v_mov_b32 v{v}, s{s0}")
    A(f"v_mov_b32 v{t}, s{s0+2}")
    A(f"v_add_f32 v{v}, s{s0+1}, v{v}")
    A(f"v_add_f32 v{t}, s{s0+3}, v{t}")
    A(f"v_add_f32 v{v}, v{v}, v{t}")


def lstamp(A, k):
    if OPT["STAMP"] != 4:
        return
    A("s_memrealtime s[96:97]")
    A("s_waitcnt lgkmcnt(0)")
    A(f"v_writelane_b32 v28, s96, {k}")


def stamp(A, idx, kern, dyn=None, clk=False, wave=0, vt=None):
    if vt is None:
        vt = (26 if idx != 3 else 50) if kern == 0 else 254
    if not OPT["STAMP"]:
        return
    if OPT["STAMP"] == 9:
        slot = {(0, 0): (1, True), (0, 1): (2, False), (0, 2): (3, False), (0, 3): (5, False), (1, 0): (6, False), (1, 5): (7, False),
                (1, 3): (9, False), (1, 1): (10, False), (1, 2): (11, False), (1, 6): (13, False)}.get((kern, idx))
        if slot is None or clk:
            return
        lab = f"L_st_{kern}_{idx}_{len(A.lines)}"
        A(f"s_cmp_lg_u32 s{sWave}, {wave}")
        A(f"s_cbranch_scc1 {lab}")
        A("s_memrealtime s[96:97]")
        A("s_waitcnt lgkmcnt(0)")
        if slot[1]:
            A("s_not_b32 s96, s96")
        A(f"v_mov_b32 v{vt}, s96")
        A(f"v_mov_b32 v{vt+1}, {OOB}")
        A(f"v_writelane_b32 v{vt+1}, {slot[0]*4}, 0")
        A(f"buffer_atomic_umax v{vt}, v{vt+1}, {srd(S_DBG)}, 0 offen sc1")
        A.label(lab)
        return
    lab = f"L_st_{kern}_{idx}_{len(A.lines)}"
    A(f"s_cmp_lg_u32 s{sWave}, {wave}")
    A(f"s_cbranch_scc1 {lab}")
    A("s_memtime s[96:97]" if clk else "s_memrealtime s[96:97]")
    A("s_waitcnt lgkmcnt(0)")
    A(f"s_lshl_b32 s98, s2, 6")
    A(f"s_add_u32 s98, s98, {WS_STAMP + kern*0x8000 + idx*4}")
    if dyn is not None:
        A(f"s_lshl_b32 s99, s{dyn}, 2")
        A("s_add_u32 s98, s98, s99")
    A(f"v_mov_b32 v{vt}, s96")
    A(f"v_mov_b32 v{vt+1}, 0")
    A(f"buffer_store_dword v{vt}, v{vt+1}, {srd(S_WS)}, s98 offen")
    A.label(lab)


sWave, sRB, sCG, sIt, sKW, sKWn, sKX, sKXn, sWslot, sRslot, sXslot, sStepW, sCSit, sSpec, sTmp, sTmp2, sMW, sNW, sWrapW, sTmp3, sC0, sRow, sSpin, sOdd, sPub, sUw, sUl = range(56, 83)
X_LDS = 0
W_LDS = 32768
W_SLOT = 24576
MISC_LDS = W_LDS + 5 * W_SLOT
LDS_TOTAL = 163840

vLane, vT0, vT1, vT2, vT3 = 1, 2, 3, 4, 5
vSigA, vSigV = 6, 7
vXo = 6
vWo = 8
vXa = 11
vWb = 15
vWa = 20
vPa = 25
SPIN_MAX = 0x100000
vSel = 52
vPoll = 30
vCSA = 32
vCSP = 32
vSt = 31
KST = lambda j: (44 + 4 * j) if j < 3 else (232 + 4 * (j - 3))
vBUF = 56
vACC = 152


KVT = [[(0, 0), (0, 1), (0, 2), (1, 0), (1, 1)], [(0, 3), (0, 4), (1, 2), (1, 3), (1, 4)]]


def k1_gemm(A, typ):
    G = typ == "G"
    MT = 2 if G else 1
    NT = 3 if G else 5
    NW_ = 6 if G else 5
    pitch = 3456 if G else 3840
    XB = lambda P, mt, kk: vBUF + 48 * P + 4 * (mt * 2 + kk)
    WBf = lambda P, a, kk: vBUF + 48 * P + 4 * MT * 2 + 4 * (a * 2 + kk)
    acc = lambda mt, a: vACC + 16 * (mt * NT + a)
    L = lambda s: f"L_{typ}_{s}"

    if G:
        A(f"s_lshr_b32 s{sMW}, s{sWave}, 2")
        A(f"s_and_b32 s{sNW}, s{sWave}, 3")
        mk_srd(A, S_W, P_G, 640 * 3456)
        mk_srd(A, S_T, P_U, 640 * 3456)
    else:
        A(f"s_lshr_b32 s{sMW}, s{sWave}, 1")
        A(f"s_and_b32 s{sNW}, s{sWave}, 1")
        mk_srd(A, S_W, P_WQKV, 640 * 3840)
    A(f"s_and_b32 s{sTmp2}, s{sWave}, 3")
    A(f"v_lshrrev_b32 v{vT0}, 3, v{vLane}")
    A(f"s_lshl_b32 s{sTmp3}, s{sTmp2}, 3")
    A(f"v_add_u32 v{vT0}, s{sTmp3}, v{vT0}")
    A(f"v_mul_u32_u24 v{vT0}, {pitch}, v{vT0}")
    A(f"v_and_b32 v{vT1}, 7, v{vLane}")
    A(f"v_lshrrev_b32 v{vT2}, 2, v{vLane}")
    A(f"v_and_b32 v{vT2}, 4, v{vT2}")
    A(f"v_xor_b32 v{vT1}, v{vT1}, v{vT2}")
    if G:
        A(f"s_mul_i32 s{sTmp3}, s{sCG}, {0 if OPT['SAME'] else 384}")
        A(f"v_add_u32 v{vT0}, s{sTmp3}, v{vT0}")
        A(f"v_lshl_add_u32 v{vWo}, v{vT1}, 4, v{vT0}")
        A(f"v_xor_b32 v{vT1}, 2, v{vT1}")
        A(f"v_lshl_add_u32 v{vWo+1}, v{vT1}, 4, v{vT0}")
        chunks = [(S_W, vWo, 0), (S_W, vWo, 128), (S_W, vWo, 256), (S_T, vWo + 1, 0), (S_T, vWo + 1, 128), (S_T, vWo + 1, 256)]
    elif typ == "Q":
        A(f"s_sub_u32 s{sTmp3}, s{sCG}, 13")
        A(f"s_mul_i32 s{sTmp3}, s{sTmp3}, 640")
        A(f"v_add_u32 v{vT0}, s{sTmp3}, v{vT0}")
        A(f"v_lshl_add_u32 v{vWo}, v{vT1}, 4, v{vT0}")
        chunks = [(S_W, vWo, 128 * i) for i in range(5)]
    else:
        A(f"s_sub_u32 s4, s{sCG}, 9")
        A(f"s_and_b32 s{sOdd}, s4, 1")
        A(f"s_mul_i32 s6, s4, 320")
        A(f"s_add_u32 s6, s6, 1280")
        A(f"s_lshl_b32 s7, s{sOdd}, 6")
        A(f"s_add_u32 s7, s7, s6")
        A(f"s_cmp_eq_u32 s{sOdd}, 0")
        A(f"s_cselect_b32 s8, 256, 0")
        A(f"s_add_u32 s8, s8, s6")
        A(f"v_lshl_add_u32 v{vT2}, v{vT1}, 4, v{vT0}")
        A(f"v_add_u32 v{vWo}, s7, v{vT2}")
        A(f"v_xor_b32 v{vT3}, 2, v{vT1}")
        A(f"v_lshl_add_u32 v{vT2}, v{vT3}, 4, v{vT0}")
        A(f"v_add_u32 v{vWo+2}, s7, v{vT2}")
        A(f"v_lshrrev_b32 v{vT2}, 2, v{vT1}")
        A(f"v_lshlrev_b32 v{vT3}, 1, v{vT2}")
        A(f"v_xor_b32 v{vT3}, v{vT3}, v{vT1}")
        A(f"v_and_b32 v{vT3}, 3, v{vT3}")
        A(f"v_lshl_add_u32 v{vT3}, v{vT3}, 4, v{vT0}")
        A(f"v_mul_u32_u24 v{vT2}, 1280, v{vT2}")
        A(f"v_add3_u32 v{vWo+1}, v{vT3}, v{vT2}, s8")
        chunks = [(S_W, vWo, 0), (S_W, vWo, 128), (S_W, vWo + 2, 1280), (S_W, vWo + 2, 1408), (S_W, vWo + 1, 0)]
    A(f"s_lshr_b32 s{sTmp}, s{sWave}, 2")
    A(f"s_lshl_b32 s{sTmp2}, s{sTmp2}, 10")
    A(f"s_add_u32 s{sWrapW}, s{sTmp2}, {W_LDS + 5*W_SLOT}")
    A(f"s_mul_i32 s{sWslot}, s{sTmp}, {W_SLOT}")
    A(f"s_add_u32 s{sWslot}, s{sWslot}, s{sTmp2}")
    A(f"s_add_u32 s{sWslot}, s{sWslot}, {W_LDS}")
    A(f"s_mul_i32 s{sKW}, s{sC0}, {64*pitch}")
    A(f"s_mul_i32 s{sTmp}, s{sTmp}, {32*pitch}")
    A(f"s_add_u32 s{sKW}, s{sKW}, s{sTmp}")
    A(f"s_mov_b32 s{sKWn}, 0")

    def dmaW():
        out = []
        for i, (sr, vo, imm) in enumerate(chunks):
            out.append(f"s_add_u32 m0, s{sWslot}, {i*4096 - imm}\n" +
                       "s_nop 0\n" +
                       f"buffer_load_dwordx4 v{vo}, {srd(sr)}, s{sKW} offen offset:{imm} lds")
        out.append(f"s_add_u32 s{sWslot}, s{sWslot}, {2*W_SLOT}\n"
                   f"s_cmp_ge_u32 s{sWslot}, s{sWrapW}\n"
                   f"s_cselect_b32 s{sTmp}, {5*W_SLOT}, 0\n"
                   f"s_sub_u32 s{sWslot}, s{sWslot}, s{sTmp}\n"
                   f"s_add_u32 s{sKW}, s{sKW}, {64*pitch}\n"
                   f"s_cmp_ge_u32 s{sKW}, {640*pitch}\n"
                   f"s_cselect_b32 s{sTmp}, {640*pitch}, 0\n"
                   f"s_sub_u32 s{sKW}, s{sKW}, s{sTmp}")
        return out

    def dmaX():
        out = []
        for i in range(4):
            out.append(f"s_add_u32 m0, s{sXslot}, {i*1024}\n" +
                       f"s_add_u32 s{sTmp}, s{sKX}, {16*1280}\n" +
                       f"buffer_load_dwordx4 v{vXo+i%2}, {srd(S_X)}, s{sKX if i < 2 else sTmp} offen lds")
        out.append(f"s_xor_b32 s{sXslot}, s{sXslot}, 16384\n"
                   f"s_add_u32 s{sKX}, s{sKX}, 128\n"
                   f"s_cmp_eq_u32 s{sKX}, 1280\n"
                   f"s_cselect_b32 s{sKX}, 0, s{sKX}")
        return out

    A(f"s_cmp_lt_u32 s{sWave}, 4")
    A(f"s_cbranch_scc1 {L('p1')}")
    for g in dmaX():
        A(g)
    A(f"s_branch {L('p2')}")
    A.label(L("p1"))
    for g in dmaW():
        A(g)
    A.label(L("p2"))
    lstamp(A, 16)

    if OPT["STAMP"] == 3:
        stamp(A, 4, 0, wave=OPT["SW"])
    A(f"v_and_b32 v{vT0}, 31, v{vLane}")
    A(f"v_lshrrev_b32 v{vT1}, 5, v{vLane}")
    A(f"v_bfe_u32 v{vT2}, v{vLane}, 1, 3")
    A(f"v_xor_b32 v{vT1}, v{vT1}, v{vT2}")
    A(f"s_lshl_b32 s{sTmp}, s{sMW}, {13 if G else 12}")
    A(f"v_lshl_add_u32 v{vT0}, v{vT0}, 7, s{sTmp}")
    for kap in range(2):
        for kk in range(2):
            A(f"v_xor_b32 v{vT2}, {4*kap+2*kk}, v{vT1}")
            A(f"v_lshl_add_u32 v{vXa+2*kap+kk}, v{vT2}, 4, v{vT0}")
    A(f"v_lshrrev_b32 v{vT0}, 5, v{vLane}")
    A(f"v_lshlrev_b32 v{vT0}, 10, v{vT0}")
    A(f"v_bfe_u32 v{vT1}, v{vLane}, 2, 2")
    A(f"v_lshl_add_u32 v{vT0}, v{vT1}, 7, v{vT0}")
    A(f"v_and_b32 v{vT2}, 3, v{vLane}")
    if typ != "K":
        A(f"v_lshlrev_b32 v{vT3}, 1, v{vT2}")
        A(f"v_lshrrev_b32 v{vT2}, 1, v{vT2}")
        A(f"v_and_b32 v{vT3}, 2, v{vT3}")
        A(f"v_or_b32 v{vT2}, v{vT2}, v{vT3}")
    A(f"v_lshl_add_u32 v{vT0}, v{vT2}, 3, v{vT0}")
    A(f"v_and_b32 v{vT1}, 2, v{vT1}")
    A(f"v_bfe_u32 v{vT2}, v{vLane}, 4, 1")
    A(f"v_xor_b32 v{vT1}, v{vT1}, v{vT2}")
    if G:
        A(f"v_mul_u32_u24 v{vT2}, {3*4096}, v{vT2}")
        A(f"v_add_u32 v{vT0}, v{vT0}, v{vT2}")
        for a in range(3):
            A(f"s_mul_i32 s{sTmp}, s{sNW}, 3")
            A(f"s_add_u32 s{sTmp}, s{sTmp}, {a}")
            A(f"s_lshr_b32 s{sTmp2}, s{sTmp}, 2")
            A(f"s_lshl_b32 s{sTmp2}, s{sTmp2}, 12")
            A(f"s_and_b32 s{sTmp}, s{sTmp}, 3")
            A(f"v_xor_b32 v{vT2}, s{sTmp}, v{vT1}")
            A(f"v_lshl_add_u32 v{vT2}, v{vT2}, 5, v{vT0}")
            A(f"v_add_u32 v{vWb+a}, s{sTmp2}, v{vT2}")
    else:
        for a in range(5):
            if typ == "Q":
                A(f"s_mul_i32 s{sTmp}, s{sNW}, 5")
                A(f"s_add_u32 s{sTmp}, s{sTmp}, {a}")
                A(f"s_lshr_b32 s{sTmp2}, s{sTmp}, 1")
                A(f"s_lshl_b32 s{sTmp2}, s{sTmp2}, 12")
                A(f"s_and_b32 s{sTmp}, s{sTmp}, 1")
                A(f"s_lshl_b32 s{sTmp}, s{sTmp}, 1")
                A(f"v_xor_b32 v{vT2}, s{sTmp}, v{vT1}")
                A(f"v_lshl_add_u32 v{vT2}, v{vT2}, 5, v{vT0}")
                A(f"v_add_u32 v{vWb+a}, s{sTmp2}, v{vT2}")
            else:
                def loc(pi, nw, odd):
                    m, p = pi // 5, 5 * nw + pi % 5
                    if odd:
                        L_, tau = (4, p + 2 * m) if p < 2 else (2 * m + ((p - 2) >> 2), (p - 2) & 3)
                    else:
                        L_, tau = (4, p - 8 + 2 * m) if p >= 8 else (2 * m + (p >> 2), p & 3)
                    return L_ * 4 + (tau ^ m)
                if a == 0:
                    A(f"s_lshl_b32 s9, s{sNW}, 1")
                    A(f"s_add_u32 s9, s9, s{sOdd}")
                    A("s_lshl_b32 s9, s9, 3")
                    A(f"v_bfe_u32 v{vT2}, v{vLane}, 4, 1")
                    A(f"v_cmp_eq_u32 vcc, 1, v{vT2}")
                    A(f"v_and_b32 v{vT1}, 2, v{vT1}")
                for sub, sr in ((0, sTmp), (1, sTmp2)):
                    tab = sum(loc(2 * a + sub, nw, odd) << (8 * (2 * nw + odd)) for nw in range(2) for odd in range(2))
                    A(f"s_lshr_b32 s{sr}, {tab}, s9")
                    A(f"s_and_b32 s{sr}, s{sr}, 0xff")
                A(f"v_mov_b32 v{vT2}, s{sTmp}")
                A(f"v_mov_b32 v{vT3}, s{sTmp2}")
                A(f"v_cndmask_b32 v{vT2}, v{vT2}, v{vT3}, vcc")
                A(f"v_lshrrev_b32 v{vT3}, 2, v{vT2}")
                A(f"v_lshl_add_u32 v{vT3}, v{vT3}, 12, v{vT0}")
                A(f"v_and_b32 v{vT2}, 3, v{vT2}")
                A(f"v_xor_b32 v{vT2}, v{vT2}, v{vT1}")
                A(f"v_lshl_add_u32 v{vWb+a}, v{vT2}, 5, v{vT3}")
        if typ == "K":
            kv_addr_setup(A)
    A(f"s_mov_b32 s{sRslot}, {W_LDS}")
    poll_addr(A)
    A(f"v_and_b32 v{vT0}, 15, v{vLane}")
    A(f"v_bfe_u32 v{vT1}, v{vLane}, 4, 1")
    A(f"v_cmp_eq_u32 vcc, v{vT0}, v{vT1}")
    A(f"v_mov_b32 v{vT2}, 0x3f803f80")
    A(f"v_cndmask_b32 v{vSel}, 0, v{vT2}, vcc")
    for i in range(1, 4):
        A(f"v_mov_b32 v{vSel+i}, v{vSel}")
    for i in range(4 * NT):
        A(f"v_mov_b32 v{vCSA+i}, 0")
    for i in range(16 * MT * NT):
        A(f"v_mov_b32 v{vACC+i}, 0")
    A(f"s_sub_u32 s{sCSit}, s{sRB}, s{sC0}")
    A(f"s_add_u32 s{sTmp}, s{sCSit}, 2")
    A(f"s_cmp_lt_u32 s{sRB}, 10")
    A(f"s_mov_b32 s{sPub}, 2")
    if OPT["PUBST"]:
        A(f"s_bfe_u32 s{sPub}, s2, 0x10003")
        A(f"s_add_u32 s{sPub}, s{sPub}, 2")
        A(f"s_cmp_lt_u32 s{sRB}, 10")
    A(f"s_cselect_b32 s{sCSit}, s{sCSit}, 99")
    A(f"s_cmp_eq_u32 s{sMW}, 0")
    A(f"s_cselect_b32 s{sCSit}, s{sCSit}, 99")
    A(f"s_lshl_b32 s{sTmp}, 3, s{sPub}")
    A(f"s_cmp_eq_u32 s{sWave}, 0")
    A(f"s_cselect_b32 s{sSpec}, s{sTmp}, 0")
    A(f"s_cmp_eq_u32 s{sWave}, 3")
    A(f"s_cselect_b32 s{sTmp}, 0xc0, 0")
    A(f"s_or_b32 s{sSpec}, s{sSpec}, s{sTmp}")
    A(f"s_or_b32 s{sSpec}, s{sSpec}, 0x300")
    A(f"s_mov_b32 s{sIt}, 0")
    A(f"s_mov_b32 s{sSpin}, 0")

    def reads(P, kap):
        pre = [f"v_add_u32 v{vWa+a}, s{sRslot}, v{vWb+a}" for a in range(NT)]
        post = [f"s_add_u32 s{sRslot}, s{sRslot}, {W_SLOT}\n"
                f"s_cmp_eq_u32 s{sRslot}, {W_LDS+5*W_SLOT}\n"
                f"s_cselect_b32 s{sRslot}, {W_LDS}, s{sRslot}"]
        out = []
        for kk in range(2):
            for mt in range(MT):
                out.append(f"ds_read_b128 {vr(XB(P, mt, kk))}, v{vXa+2*kap+kk} offset:{mt*4096}")
            for a in range(NT):
                for rho in range(2):
                    out.append(f"ds_read_b64_tr_b16 {vr(WBf(P, a, kk)+2*rho, 2)}, v{vWa+a} offset:{kk*2048+rho*512}")
        if OPT["NORD"]:
            out = []
        return pre, out, post

    def mfmas(P):
        out = []
        for kk in range(2):
            for a in range(NT):
                for mt in range(MT):
                    x, w, d = vr(XB(P, mt, kk)), vr(WBf(P, a, kk)), vr(acc(mt, a), 16)
                    if OPT["FAKE16"]:
                        for h in range(2):
                            dq = vr(acc(mt, a) + 8 * kk + 4 * h)
                            x2 = vr(XB(P, mt, h))
                            out.append(f"v_mfma_f32_16x16x32_bf16 {dq}, {w}, {x2}, {dq}")
                    elif typ == "K":
                        out.append(f"v_mfma_f32_32x32x16_bf16 {d}, {x}, {w}, {d}")
                    else:
                        out.append(f"v_mfma_f32_32x32x16_bf16 {d}, {w}, {x}, {d}")
        return out

    def cs_mfmas(P):
        return [f"v_mfma_f32_16x16x32_bf16 {vr(vCSA+4*a)}, {vr(WBf(P, a, kk))}, {vr(vSel)}, {vr(vCSA+4*a)}"
                for kk in range(2) for a in range(NT)]

    if OPT["STAMP"] == 3:
        stamp(A, 5, 0, wave=OPT["SW"])
    n = len(mfmas(0))
    f = lambda k: k / n
    nod = OPT["NODMA"]

    def loop(R):
        LL = lambda s: f"L_{typ}{R}_{s}"
        lstamp(A, 17)
        if R == "B":
            for g in dmaW():
                A(g)
        A(f"s_waitcnt vmcnt({NW_ + (4 if R == 'B' else 0)})")
        k1_stats(A, typ)
        lstamp(A, 18)
        A(f"s_waitcnt vmcnt({1 if R == 'A' else NW_ + 1})")
        lstamp(A, 19)
        A("s_barrier")
        pre, rd, post = reads(0, 0)
        for g in pre + rd + post:
            A(g)
        if R == "A":
            A("s_setprio 1")
            stamp(A, 1, 0)
            stamp(A, 14, 0, clk=True)
        else:
            for g in dmaX():
                A(g)
        A("s_waitcnt lgkmcnt(0)")
        lstamp(A, 20)
        for g in mfmas(0):
            A(g)
        if R == "A":
            A(f"s_cmp_lg_u32 s{sCSit}, 0")
            A(f"s_cbranch_scc1 {LL('pc0')}")
            for g in cs_mfmas(0):
                A(g)
            A.label(LL("pc0"))
            for g in dmaW():
                A(g)
            A(f"s_sub_u32 s{sUw}, s{sWave}, 1")
            A(f"s_cmp_gt_u32 s{sUw}, 1")
            A(f"s_cbranch_scc1 {LL('nou')}")
            A(f"s_lshl_b32 s{sU}, s{sCG}, 4")
            A(f"s_add_u32 s{sU}, s{sU}, s{sRB}")
            A(f"s_lshl_b32 s{sU}, s{sU}, 1")
            A(f"s_add_u32 s{sU}, s{sU}, s{sUw}")
            A(f"s_lshl_b32 s{sUl}, s{sUw}, 12")
            A(f"s_add_u32 s{sUl}, s{sUl}, {MISC_LDS}")
            w2_unit_dma(A, f"s{sUl}")
            A.label(LL("nou"))
        else:
            A("s_waitcnt vmcnt(5)")
        lstamp(A, 21)
        A("s_barrier")
        pre, rd, post = reads(1, 1)
        for g in pre + rd + post:
            A(g)
        if R == "B":
            for g in dmaW():
                A(g)
        A("s_waitcnt lgkmcnt(0)")
        lstamp(A, 22)
        for g in mfmas(1):
            A(g)
        if R == "A":
            for g in dmaW():
                A(g)
            A(f"s_cmp_eq_u32 s{sCSit}, 0")
            A(f"s_cbranch_scc1 {LL('cs1')}")
            A(f"s_waitcnt vmcnt({NW_})")
            A.label(LL("pc1"))
            A(f"s_cmp_gt_u32 s{sUw}, 1")
            A(f"s_cbranch_scc1 {LL('pc2')}")
            w2_unit_out(A, f"s{sUl}", (lambda t: (96, 100, 144, 148)[t]) if G else (lambda t: 232 + 4 * t) if typ == 'Q' else (lambda t: vBUF + 4 * t))
            A.label(LL("pc2"))
        else:
            A("s_waitcnt vmcnt(0)")
        lstamp(A, 23)
        A("s_barrier")
        if R == "B":
            for g in dmaX() + dmaW():
                A(g)
        for i in range(4):
            A(f"v_xor_b32 v{vXa+i}, 16384, v{vXa+i}")
        pre, rd, post = reads(0, 0)
        for g in pre + rd + post:
            A(g)
        A(f"s_mov_b32 s{sIt}, 1")
        A("s_waitcnt lgkmcnt(0)")
        lstamp(A, 0)
        A(".p2align 6")
        A.label(LL("loop"))
        pre, rd, post = reads(1, 1)
        for g in interleave(mfmas(0), (pre, 0.0, f(1)), (rd, f(1), 0.7), (post, 0.75, 0.85)):
            A(g)
        if R == "A":
            A(f"s_bitcmp1_b32 s{sSpec}, s{sIt}")
            A(f"s_cbranch_scc1 {LL('spec')}")
            A.label(LL("specr"))
            for g in dmaW():
                A(g)
            A(f"s_waitcnt vmcnt({NW_}) lgkmcnt(0)")
            A.label(LL("bar"))
        else:
            A("s_waitcnt vmcnt(0) lgkmcnt(0)")
        A("s_barrier")
        pre, rd, post = reads(0, 0)
        pre = [f"v_xor_b32 v{vXa+i}, 16384, v{vXa+i}" for i in range(2)] + pre
        post = post + [f"v_xor_b32 v{vXa+i}, 16384, v{vXa+i}" for i in range(2, 4)]
        tail = [f"s_add_u32 s{sIt}, s{sIt}, 1\ns_cmp_lt_u32 s{sIt}, 10"]
        if R == "B":
            dw = dmaW()
            nb = OPT["NBUP"]
            A(f"s_cmp_ge_u32 s{sIt}, 8")
            A(f"s_cbranch_scc1 {LL('nod')}")
            for g in dmaX() + dw[:nb]:
                A(g)
            for g in interleave(mfmas(1), (pre, 0.0, f(1)), (dw[nb:], 0.0, 0.4), (rd, f(1), 0.7), (post, 0.7, 0.8), (tail, f(n-2), f(n-1))):
                A(g)
            A.label(LL("end"))
        else:
            chk1 = tail
            for g in interleave(mfmas(1), (pre, 0.0, f(1)), (rd, f(1), 0.7), (post, 0.7, 0.8), (chk1, f(n-2), f(n-1))):
                A(g)
        if OPT["STAMP"] == 4:
            A("s_memrealtime s[96:97]")
            A(f"s_mov_b32 m0, s{sIt}")
        A("s_waitcnt lgkmcnt(0)")
        if OPT["STAMP"] == 4:
            A("v_writelane_b32 v28, s96, m0")
        A(f"s_cbranch_scc1 {LL('loop')}")
        A(f"s_branch {L('epi')}")

        if R == "B":
            A.label(LL("nod"))
            if True:
                A(f"s_cmp_eq_u32 s{sIt}, 9")
                A(f"s_cbranch_scc1 {LL('nod9')}")
                wo_early(A, 24, 7)
                A(f"s_branch {LL('nod2')}")
                A.label(LL("nod9"))
                wo_early(A, 72, 7)
                A.label(LL("nod2"))
            for g in interleave(mfmas(1), (pre, 0.0, f(1)), (rd, f(1), 0.7), (post, 0.7, 0.8), (tail, f(n-2), f(n-1))):
                A(g)
            A(f"s_branch {LL('end')}")
            return
        A.label(LL("cs1"))
        for g in cs_mfmas(1):
            A(g)
        A(f"v_and_b32 v{vT0}, 15, v{vLane}")
        A(f"v_lshrrev_b32 v{vT1}, 4, v{vLane}")
        A(f"v_lshlrev_b32 v{vT1}, 4, v{vT1}")
        A(f"v_lshl_add_u32 v{vT1}, v{vT0}, 6, v{vT1}")
        A(f"v_cmp_gt_u32 vcc, 2, v{vT0}")
        A(f"v_mov_b32 v{vT2}, {OOB}")
        A(f"v_cndmask_b32 v{vT1}, v{vT2}, v{vT1}, vcc")
        A(f"s_mul_i32 s{sTmp}, s{sCG}, 10")
        A(f"s_add_u32 s{sTmp}, s{sTmp}, s{sRB}")
        A(f"s_mul_i32 s{sTmp}, s{sTmp}, 1536")
        A(f"s_mul_i32 s{sTmp2}, s{sNW}, {NT*128}")
        A(f"s_add_u32 s{sTmp}, s{sTmp}, s{sTmp2}")
        A(f"s_add_u32 s{sTmp}, s{sTmp}, {WS_CS}")
        for a in range(NT):
            A(f"buffer_store_dwordx4 {vr(vCSA+4*a)}, v{vT1}, {srd(S_WS)}, s{sTmp} offen offset:{a*128} sc1")
        A(f"s_waitcnt vmcnt({NW_+NT})")
        A(f"s_branch {LL('pc1')}")

        def with_dma(nops, body):
            for g in dmaW():
                A(g)
            body()
            A(f"s_waitcnt vmcnt({NW_+nops}) lgkmcnt(0)")
            A(f"s_branch {LL('bar')}")
        A.label(LL("spec"))
        A(f"s_cmp_eq_u32 s{sIt}, 9")
        A(f"s_cbranch_scc1 {LL('sum')}")
        A(f"s_cmp_eq_u32 s{sIt}, 8")
        A(f"s_cbranch_scc1 {LL('go')}")
        A(f"s_cmp_eq_u32 s{sIt}, 7")
        A(f"s_cbranch_scc1 {LL('chk')}")
        A(f"s_cmp_eq_u32 s{sIt}, 6")
        A(f"s_cbranch_scc1 {LL('poll0')}")
        A.label(LL("pub"))

        def pub():
            A(f"s_cmp_lg_u32 s{sPub}, s{sIt}")
            A(f"s_cbranch_scc1 {LL('pub2')}")
            k1_publish(A)
            A.label(LL("pub2"))
        with_dma(1, pub)
        A.label(LL("poll0"))
        with_dma(1, lambda: A(f"buffer_load_dword v{vPoll}, v{vPa}, {srd(S_DBG)}, 0 offen sc1"))
        A.label(LL("poll"))
        A("s_sleep 8")
        A(f"buffer_load_dword v{vPoll}, v{vPa}, {srd(S_DBG)}, 0 offen sc1")
        A.label(LL("chk"))
        A("s_waitcnt vmcnt(0)")
        poll_cmp(A)
        A(f"s_add_u32 s{sSpin}, s{sSpin}, 1")
        A(f"s_cmp_gt_u32 s{sSpin}, {SPIN_MAX}")
        A(f"s_cbranch_scc1 {LL('specr')}")
        A(f"s_cmp_lg_u64 vcc, 0")
        A(f"s_cbranch_scc1 {LL('poll')}")
        A(f"s_branch {LL('specr')}")
        A.label(LL("go"))

        def go():
            A(f"v_lshlrev_b32 v{vT0}, 3, v0")
            A(f"v_cmp_gt_u32 vcc, {NT*(4 if G else 2)*16}, v0")
            A(f"v_mov_b32 v{vT2}, {OOB}")
            A(f"v_cndmask_b32 v{vT0}, v{vT2}, v{vT0}, vcc")
            A(f"s_mul_i32 s{sTmp}, s{sCG}, 15360")
            A(f"s_add_u32 s{sTmp}, s{sTmp}, {WS_CS}")
            for ch in range(10):
                if ch % 2 == 0 and ch:
                    A(f"s_add_u32 s{sTmp}, s{sTmp}, 3072")
                A(f"buffer_load_dwordx2 {vr(vCSP+2*ch, 2)}, v{vT0}, {srd(S_WS)}, s{sTmp} offen offset:{(ch%2)*1536} sc1")
            A(f"s_lshl_b32 s{sTmp}, s{sRB}, 10")
            A(f"s_add_u32 s{sTmp}, s{sTmp}, {WS_ST}")
            A(f"v_lshlrev_b32 v{vT1}, 2, v0")
            A(f"buffer_load_dword v{vSt}, v{vT1}, {srd(S_WS)}, s{sTmp} offen sc1")
        go()
        wo_early(A, 0, 6)
        A("s_waitcnt vmcnt(17) lgkmcnt(0)")
        A(f"s_branch {LL('bar')}")
        A.label(LL("sum"))
        A("s_waitcnt vmcnt(6)")
        for ch in range(1, 10):
            A(f"v_add_f32 v{vCSP}, v{vCSP}, v{vCSP+2*ch}")
            A(f"v_add_f32 v{vCSP+1}, v{vCSP+1}, v{vCSP+2*ch+1}")
        A(f"v_lshlrev_b32 v{vT0}, 3, v0")
        A(f"v_add_u32 v{vT0}, {MISC_LDS}, v{vT0}")
        A(f"ds_write_b64 v{vT0}, {vr(vCSP, 2)}")
        A(f"v_lshlrev_b32 v{vT1}, 2, v0")
        A(f"v_add_u32 v{vT1}, {MISC_LDS+2048}, v{vT1}")
        A(f"ds_write_b32 v{vT1}, v{vSt}")
        wo_early(A, 52, 5)
        A("s_waitcnt lgkmcnt(0)")
        A(f"s_branch {LL('bar')}")

    A(f"s_cmp_ge_u32 s{sWave}, 4")
    A(f"s_cbranch_scc1 {L('roleB')}")
    loop("A")
    A.label(L("roleB"))
    loop("B")

    A.label(L("epi"))
    A("s_setprio 0")
    stamp(A, 2, 0)
    stamp(A, 4, 0, wave=4, vt=50)
    stamp(A, 7, 0, wave=4, vt=50, clk=True)
    stamp(A, 15, 0, clk=True)
    if OPT["STAMP"] == 4:
        A(f"v_lshlrev_b32 v29, 2, v0")
        A(f"s_lshl_b32 s98, s2, 11")
        A(f"s_add_u32 s98, s98, {WS_STAMP + 0x10000}")
        A(f"buffer_store_dword v28, v29, {srd(S_WS)}, s98 offen")
    p2_ids(A)
    A.fence()
    if True:
        epi = {"G": k1_epi_g, "Q": k1_epi_q, "K": k1_epi_kv}[typ]
        ffn_setup(A)
        A(f"s_cmp_lt_u32 s{sWave}, 4")
        A(f"s_cselect_b32 s{sWo}, {OOB}, s{sWo}")
        E = Asm()
        epi(E, acc)
        body = [t for _, t in E.lines]
        npre = min(OPT["NPRE"], {"G": 6, "Q": 4, "K": 2}[typ])
        early = [g for j in range(min(4, npre)) for g in ldW_groups(j)]
        late = [g for j in range(4, npre) for g in ldW_groups(j)]
        for g in interleave(body, (early, 0.02, 0.5 if npre > 4 else 0.7), (late, 0.5, 0.8)):
            A(g)
        A(f"s_mov_b32 s{sWoDone}, {npre + 1}")
    stamp(A, 3, 0)
    stamp(A, 5, 0, wave=4, vt=50)
    stamp(A, 8, 0, wave=4, vt=50, clk=True)
    A(f"v_mov_b32 v{vSigA}, {OOB}")
    if typ == "K":
        A(f"s_sub_u32 s{sTmp}, s{sCG}, 9")
        A(f"s_lshl_b32 s{sTmp}, s{sTmp}, 11")
        A(f"s_add_u32 s{sTmp}, s{sTmp}, {WS_FL + FL_KV}")
        A(f"v_lshl_add_u32 v{vT0}, v{vLane}, 8, s{sTmp}")
        A(f"v_cmp_gt_u32 vcc, 8, v{vLane}")
        A(f"v_cndmask_b32 v{vSigA}, v{vSigA}, v{vT0}, vcc")
        A(f"v_mov_b32 v{vSigV}, 1")
    else:
        A(f"s_lshl_b32 s{sTmp}, s{sRB}, 8")
        A(f"s_add_u32 s{sTmp}, s{sTmp}, {WS_FL + FL_HC}")
        A(f"v_writelane_b32 v{vSigA}, s{sTmp}, 0")
        A(f"s_lshl_b32 s{sTmp}, 1, s{sCG}")
        A(f"v_mov_b32 v{vSigV}, s{sTmp}")
    A("s_branch L_p2")


def k1_stats_issue(A):
    b = vBUF
    A(f"s_lshl_b32 s{sRow}, s{sRB}, 7")
    A(f"s_lshl_b32 s{sTmp2}, s{sCG}, 3")
    A(f"s_add_u32 s{sRow}, s{sRow}, s{sTmp2}")
    A(f"s_add_u32 s{sRow}, s{sRow}, s{sWave}")
    A(f"s_mul_i32 s{sTmp2}, s{sRow}, 1280")
    A(f"v_lshlrev_b32 v{vT0}, 3, v{vLane}")
    A(f"v_lshlrev_b32 v{vT1}, 2, v{vLane}")
    A(f"buffer_load_dwordx2 {vr(b, 2)}, v{vT0}, {srd(S_X)}, s{sTmp2} offen")
    A(f"buffer_load_dwordx2 {vr(b+2, 2)}, v{vT0}, {srd(S_X)}, s{sTmp2} offen offset:512")
    A(f"buffer_load_dword v{b+4}, v{vT1}, {srd(S_X)}, s{sTmp2} offen offset:1024")


def k1_stats(A, typ):
    b = vBUF
    if typ == "A":
        A("s_waitcnt vmcnt(0)")
    for i in range(5):
        A(f"v_lshlrev_b32 v{b+8+2*i}, 16, v{b+i}")
        A(f"v_and_b32 v{b+9+2*i}, 0xffff0000, v{b+i}")
    s = b + 20
    A(f"v_add_f32 v{s}, v{b+8}, v{b+9}")
    for i in range(2, 10):
        A(f"v_add_f32 v{s}, v{s}, v{b+8+i}")
    wave_allreduce_add(A, s, s + 1, 4)
    A(f"v_mul_f32 v{s}, {f32(1.0/640)}, v{s}")
    for i in range(10):
        A(f"v_sub_f32 v{b+8+i}, v{b+8+i}, v{s}")
    A(f"v_mul_f32 v{s+1}, v{b+8}, v{b+8}")
    for i in range(1, 10):
        A(f"v_fmac_f32 v{s+1}, v{b+8+i}, v{b+8+i}")
    wave_allreduce_add(A, s + 1, s + 2, 4)
    A(f"v_mov_b32 v{s+2}, {f32(1e-5)}")
    A(f"v_fmac_f32 v{s+2}, {f32(1.0/640)}, v{s+1}")
    A(f"v_mov_b32 v{s+1}, v{s+2}")
    A(f"v_cmp_eq_u32 vcc, 0, v{vLane}")
    A(f"v_mov_b32 v{vT2}, {OOB}")
    A(f"v_cndmask_b32 v{vT0}, v{vT2}, v{vLane}, vcc")
    A(f"s_lshl_b32 s{sTmp}, s{sRow}, 3")
    A(f"s_add_u32 s{sTmp}, s{sTmp}, {WS_ST}")
    A(f"buffer_store_dwordx2 {vr(s, 2)}, v{vT0}, {srd(S_WS)}, s{sTmp} offen sc1")


def k1_publish(A):
    if OPT["BYTEFLAG"]:
        A(f"v_mov_b32 v{vT0}, {OOB}")
        A(f"v_writelane_b32 v{vT0}, s2, 0")
        A(f"v_mov_b32 v{vT1}, 1")
        A(f"buffer_store_byte v{vT1}, v{vT0}, {srd(S_DBG)}, 0 offen sc1")
        return
    A(f"s_lshl_b32 s{sTmp}, s{sRB}, 4")
    A(f"v_mov_b32 v{vT0}, {OOB}")
    A(f"v_writelane_b32 v{vT0}, s{sTmp}, 0")
    A(f"v_mov_b32 v{vT1}, 1")
    A(f"buffer_atomic_add v{vT1}, v{vT0}, {srd(S_DBG)}, 0 offen sc1")


def poll_addr(A):
    if OPT["BYTEFLAG"]:
        A(f"v_lshlrev_b32 v{vPa}, 2, v{vLane}")
    else:
        A(f"v_and_b32 v{vPa}, 15, v{vLane}")
        A(f"v_lshlrev_b32 v{vPa}, 4, v{vPa}")


def poll_cmp(A):
    if OPT["BYTEFLAG"]:
        A(f"v_cmp_ne_u32 vcc, 0x01010101, v{vPoll}")
    else:
        A(f"v_cmp_gt_u32 vcc, 16, v{vPoll}")


S_R = 88
sU, sUks, sUL = 92, 93, 94


def w2_unit_decode(A):
    A(f"s_mul_i32 s{sUks}, s{sU}, 205")
    A(f"s_lshr_b32 s{sUks}, s{sUks}, 11")
    A(f"s_mul_i32 s{sUL}, s{sUks}, 10")
    A(f"s_sub_u32 s{sUL}, s{sU}, s{sUL}")


def w2_unit_dma(A, lds):
    w2_unit_decode(A)
    A(f"s_cmp_lt_u32 s{sUks}, 54")
    A(f"s_cselect_b32 s{S_R}, s{P_D}, s{P_WO}")
    A(f"s_cselect_b32 s{S_R+1}, s{P_D+1}, s{P_WO+1}")
    A(f"s_mov_b32 s{S_R+2}, {640*1280}")
    A(f"s_cselect_b32 s{S_R+2}, {1728*1280}, s{S_R+2}")
    A(f"s_cselect_b32 s{sTmp}, 0, 54")
    A(f"s_and_b32 s{S_R+1}, s{S_R+1}, 0xffff")
    A(f"s_mov_b32 s{S_R+3}, 0x20000")
    A(f"s_sub_u32 s{sTmp}, s{sUks}, s{sTmp}")
    A(f"s_mul_i32 s{sTmp}, s{sTmp}, {32*1280}")
    A(f"s_lshl_b32 s{sTmp2}, s{sUL}, 7")
    A(f"s_add_u32 s{sTmp}, s{sTmp}, s{sTmp2}")
    A(f"v_lshrrev_b32 v{vT0}, 3, v{vLane}")
    A(f"v_mul_u32_u24 v{vT0}, 1280, v{vT0}")
    A(f"v_and_b32 v{vT1}, 7, v{vLane}")
    A(f"v_lshl_add_u32 v{vT0}, v{vT1}, 4, v{vT0}")
    for i in range(4):
        A(f"s_add_u32 m0, {lds}, {i*1024}")
        A("s_nop 0")
        A(f"buffer_load_dwordx4 v{vT0}, {srd(S_R)}, s{sTmp} offen lds")
        A(f"s_add_u32 s{sTmp}, s{sTmp}, {8*1280}")


def w2_unit_out(A, lds, F):
    w2_unit_decode(A)
    A(f"v_bfe_u32 v{vT0}, v{vLane}, 2, 2")
    A(f"v_lshlrev_b32 v{vT0}, 7, v{vT0}")
    A(f"v_and_b32 v{vT1}, 3, v{vLane}")
    A(f"v_lshl_add_u32 v{vT0}, v{vT1}, 3, v{vT0}")
    A(f"v_lshrrev_b32 v{vT1}, 4, v{vLane}")
    A(f"s_cmp_lt_u32 s{sUks}, 54")
    A(f"s_cselect_b32 s{sTmp}, 10, 9")
    A(f"s_movk_i32 s{sTmp2}, 512")
    A(f"s_cselect_b32 s{sTmp2}, s{sTmp2}, 2048")
    A(f"v_lshlrev_b32 v{vT1}, s{sTmp}, v{vT1}")
    A(f"v_add3_u32 v{vT0}, v{vT0}, v{vT1}, {lds}")
    A(f"v_add_u32 v{vT1}, s{sTmp2}, v{vT0}")
    for tau in range(4):
        A(f"ds_read_b64_tr_b16 {vr(F(tau), 2)}, v{vT0} offset:{tau*32}")
        A(f"ds_read_b64_tr_b16 {vr(F(tau)+2, 2)}, v{vT1} offset:{tau*32}")
    A(f"v_lshlrev_b32 v{vT2}, 4, v{vLane}")
    A("s_waitcnt lgkmcnt(0)")
    for tau in range(4):
        A(f"s_lshl_b32 s{sTmp}, s{sUL}, 2")
        A(f"s_add_u32 s{sTmp}, s{sTmp}, {tau}")
        A(f"s_mul_i32 s{sTmp2}, s{sTmp}, 205")
        A(f"s_lshr_b32 s{sTmp2}, s{sTmp2}, 10")
        A(f"s_mul_i32 s{sTmp3}, s{sTmp2}, {74*5-5}")
        A(f"s_add_u32 s{sTmp}, s{sTmp}, s{sTmp3}")
        A(f"s_mul_i32 s{sTmp3}, s{sUks}, 5")
        A(f"s_add_u32 s{sTmp}, s{sTmp}, s{sTmp3}")
        A(f"s_lshl_b32 s{sTmp}, s{sTmp}, 10")
        A(f"s_add_u32 s{sTmp}, s{sTmp}, {WS_W2}")
        A(f"s_cmp_lt_u32 s{sU}, 740")
        A(f"s_cselect_b32 s{sTmp}, s{sTmp}, {OOB}")
        A(f"buffer_store_dwordx4 {vr(F(tau))}, v{vT2}, {srd(S_WS)}, s{sTmp} offen sc1")


def k1_epi_g(A, acc):
    c = vBUF
    cs = vBUF + 8
    t = vBUF + 40
    o = vBUF + 48
    A(f"v_lshrrev_b32 v{vT0}, 5, v{vLane}")
    A(f"v_lshlrev_b32 v{vT0}, 4, v{vT0}")
    A(f"s_mul_i32 s{sTmp}, s{sNW}, 384")
    A(f"s_add_u32 s{sTmp}, s{sTmp}, {MISC_LDS}")
    A(f"v_add_u32 v{vT0}, s{sTmp}, v{vT0}")
    A(f"v_and_b32 v{vT1}, 31, v{vLane}")
    A(f"s_lshl_b32 s{sTmp}, s{sMW}, 9")
    A(f"s_add_u32 s{sTmp}, s{sTmp}, {MISC_LDS+2048}")
    A(f"v_lshl_add_u32 v{vT1}, v{vT1}, 3, s{sTmp}")
    for mt in range(2):
        A(f"ds_read_b64 {vr(c+4*mt, 2)}, v{vT1} offset:{mt*256}")
    for q in range(4):
        A(f"ds_read_b128 {vr(cs+4*q)}, v{vT0} offset:{q*32}")
    A("s_waitcnt lgkmcnt(4)")
    for mt in range(2):
        mu, v, k1, k3 = c + 4 * mt, c + 4 * mt + 1, c + 4 * mt + 2, c + 4 * mt + 3
        A(f"v_rsq_f32 v{t}, v{v}")
        A(f"v_mul_f32 v{k1}, {f32(GC1)}, v{t}")
        A(f"v_mul_f32 v{t+1}, v{t}, v{t}")
        A(f"v_mul_f32 v{t+1}, v{t+1}, v{t}")
        A(f"v_mul_f32 v{k3}, {f32(GC2)}, v{t+1}")
    A(f"v_bfe_u32 v{vT1}, v{vLane}, 4, 1")
    A(f"v_lshlrev_b32 v{vT1}, 10, v{vT1}")
    A(f"v_lshrrev_b32 v{vT2}, 5, v{vLane}")
    A(f"v_lshl_add_u32 v{vT1}, v{vT2}, 8, v{vT1}")
    A(f"v_and_b32 v{vT2}, 15, v{vLane}")
    A(f"v_lshl_add_u32 v{vT1}, v{vT2}, 4, v{vT1}")
    n = 0
    for a in range(3):
        csa = cs + 16 * (a % 2)
        if a < 2:
            for q in range(4):
                A(f"ds_read_b128 {vr(cs+16*((a+1)%2)+4*q)}, v{vT0} offset:{(a+1)*128+q*32}")
            A("s_waitcnt lgkmcnt(4)")
        else:
            A("s_waitcnt lgkmcnt(0)")
        A(f"s_mul_i32 s{sTmp}, s{sCG}, 12")
        A(f"s_mul_i32 s{sTmp2}, s{sNW}, 3")
        A(f"s_add_u32 s{sTmp}, s{sTmp}, s{sTmp2}")
        A(f"s_add_u32 s{sTmp}, s{sTmp}, {a}")
        A(f"s_lshl_b32 s{sTmp2}, s{sRB}, 1")
        A(f"s_add_u32 s{sTmp2}, s{sTmp2}, s{sMW}")
        A(f"s_mul_i32 s{sTmp2}, s{sTmp2}, 54")
        A(f"s_lshr_b32 s{sTmp3}, s{sTmp}, 1")
        A(f"s_add_u32 s{sTmp2}, s{sTmp2}, s{sTmp3}")
        A(f"s_lshl_b32 s{sTmp2}, s{sTmp2}, 12")
        A(f"s_and_b32 s{sTmp}, s{sTmp}, 1")
        A(f"s_lshl_b32 s{sTmp}, s{sTmp}, 9")
        A(f"s_add_u32 s{sTmp}, s{sTmp}, s{sTmp2}")
        C = lambda mt, k: c + 4 * mt + k
        MP = [(mt, i) for mt in range(2) for i in range(0, 8, 2)]
        D = lambda mt: acc(mt, a)
        Tm = lambda mt: t + 8 * mt
        for mt, i in MP:
            pk_fma(A, D(mt) + i, ("b", C(mt, 0)), ("p", csa + i), ("p", D(mt) + i), neg_a=True)
        for mt, i in MP:
            pk_mul(A, Tm(mt) + i, ("p", D(mt) + i), ("p", D(mt) + i))
        for mt, i in MP:
            pk_fma(A, Tm(mt) + i, ("p", Tm(mt) + i), ("b", C(mt, 3)), ("b", C(mt, 2)))
        for mt, i in MP:
            pk_mul(A, Tm(mt) + i, ("p", Tm(mt) + i), ("p", D(mt) + i))
        for mt, i in MP:
            A(f"v_exp_f32 v{Tm(mt)+i}, v{Tm(mt)+i}")
            A(f"v_exp_f32 v{Tm(mt)+i+1}, v{Tm(mt)+i+1}")
            pk_fma(A, D(mt) + 8 + i, ("b", C(mt, 0)), ("p", csa + 8 + i), ("p", D(mt) + 8 + i), neg_a=True)
        for mt, i in MP:
            pk_fma(A, Tm(mt) + i, ("p", Tm(mt) + i), ("b", C(mt, 1)), ("b", C(mt, 1)))
        for mt, i in MP:
            A(f"v_rcp_f32 v{Tm(mt)+i}, v{Tm(mt)+i}")
            A(f"v_rcp_f32 v{Tm(mt)+i+1}, v{Tm(mt)+i+1}")
            pk_mul(A, D(mt) + i, ("p", D(mt) + i), ("p", D(mt) + 8 + i))
        for mt, i in MP:
            pk_mul(A, D(mt) + i, ("p", D(mt) + i), ("p", Tm(mt) + i))
        for mt in range(2):
            ob = D(mt) + 8
            for i in range(4):
                A(f"v_cvt_pk_bf16_f32 v{ob+i}, v{D(mt)+2*i}, v{D(mt)+2*i+1}")
            A(f"buffer_store_dwordx4 {vr(ob)}, v{vT1}, {srd(S_WS)}, s{sTmp} offen offset:{mt*2048} sc1")


def pk(r, bc=False):
    return f"v[{r}:{r+1}]"


def pko(*bc):
    lo = ",".join("1" if b == 1 else "0" for b in bc)
    hi = ",".join("0" if b == 0 else "1" for b in bc)
    return f"op_sel:[{lo}] op_sel_hi:[{hi}]"


def opnd(x):
    k, r = x
    if k == "p":
        return pk(r), None
    return pk(r & ~1), r & 1


def pk_fma(A, d, a, b, c, neg_a=False):
    (ta, fa), (tb_, fb), (tc, fc) = opnd(a), opnd(b), opnd(c)
    n = " neg_lo:[1,0,0] neg_hi:[1,0,0]" if neg_a else ""
    A(f"v_pk_fma_f32 {pk(d)}, {ta}, {tb_}, {tc} {pko(fa, fb, fc)}{n}")


def pk_mul(A, d, a, b, op="mul"):
    (ta, fa), (tb_, fb) = opnd(a), opnd(b)
    A(f"v_pk_{op}_f32 {pk(d)}, {ta}, {tb_} {pko(fa, fb)}")


def phi_block(A, d, n, t, mu, cs, r, rl, eps):
    P = range(0, n, 2)
    for i in P:
        pk_fma(A, d + i, mu(i), cs(i), ("p", d + i), neg_a=True)
    for i in P:
        pk_mul(A, t + i, ("p", d + i), rl(i))
    for i in P:
        A(f"v_exp_f32 v{t+i}, v{t+i} clamp")
        A(f"v_exp_f32 v{t+i+1}, v{t+i+1} clamp")
        pk_fma(A, d + i, ("p", d + i), r(i), ("b", eps))
    for i in range(n):
        A(f"v_max_f32 v{d+i}, v{d+i}, v{eps}")
    for i in P:
        pk_mul(A, d + i, ("p", d + i), ("p", t + i), op="add")


def k1_epi_q(A, acc):
    c = vBUF
    cs = vBUF + 8
    t = vBUF + 40
    o = vBUF + 56
    mu, r, rl, eps = c, c + 1, c + 2, c + 3
    A(f"v_lshrrev_b32 v{vT0}, 5, v{vLane}")
    A(f"v_lshlrev_b32 v{vT0}, 4, v{vT0}")
    A(f"s_mul_i32 s{sTmp}, s{sNW}, 640")
    A(f"s_add_u32 s{sTmp}, s{sTmp}, {MISC_LDS}")
    A(f"v_add_u32 v{vT0}, s{sTmp}, v{vT0}")
    A(f"v_and_b32 v{vT1}, 31, v{vLane}")
    A(f"s_lshl_b32 s{sTmp}, s{sMW}, 8")
    A(f"s_add_u32 s{sTmp}, s{sTmp}, {MISC_LDS+2048}")
    A(f"v_lshl_add_u32 v{vT1}, v{vT1}, 3, s{sTmp}")
    A(f"ds_read_b64 {vr(mu, 2)}, v{vT1}")
    for q in range(4):
        A(f"ds_read_b128 {vr(cs+4*q)}, v{vT0} offset:{q*32}")
    A("s_waitcnt lgkmcnt(4)")
    A(f"v_rsq_f32 v{r}, v{r}")
    A(f"v_mov_b32 v{eps}, {f32(1e-6)}")
    A(f"v_mul_f32 v{rl}, {f32(LOG2E)}, v{r}")
    A(f"v_bfe_u32 v{vT1}, v{vLane}, 4, 1")
    A(f"v_lshlrev_b32 v{vT1}, 10, v{vT1}")
    A(f"v_lshrrev_b32 v{vT2}, 5, v{vLane}")
    A(f"v_lshl_add_u32 v{vT1}, v{vT2}, 8, v{vT1}")
    A(f"v_and_b32 v{vT2}, 15, v{vLane}")
    A(f"v_lshl_add_u32 v{vT1}, v{vT2}, 4, v{vT1}")
    A(f"s_lshl_b32 s{sTmp}, s{sRB}, 1")
    A(f"s_lshr_b32 s{sTmp2}, s{sMW}, 1")
    A(f"s_add_u32 s{sTmp}, s{sTmp}, s{sTmp2}")
    A(f"s_mul_i32 s{sTmp}, s{sTmp}, 20")
    A(f"s_sub_u32 s{sTmp2}, s{sCG}, 13")
    A(f"s_mul_i32 s{sTmp2}, s{sTmp2}, 10")
    A(f"s_add_u32 s{sTmp}, s{sTmp}, s{sTmp2}")
    A(f"s_mul_i32 s{sTmp2}, s{sNW}, 5")
    A(f"s_add_u32 s{sTmp}, s{sTmp}, s{sTmp2}")
    A(f"s_lshl_b32 s{sTmp}, s{sTmp}, 12")
    A(f"s_and_b32 s{sTmp2}, s{sMW}, 1")
    A(f"s_lshl_b32 s{sTmp2}, s{sTmp2}, 11")
    A(f"s_add_u32 s{sTmp}, s{sTmp}, s{sTmp2}")
    A(f"s_add_u32 s{sTmp}, s{sTmp}, {WS_PQ}")
    for a in range(5):
        csa = cs + 16 * (a % 2)
        if a < 4:
            for q in range(4):
                A(f"ds_read_b128 {vr(cs+16*((a+1)%2)+4*q)}, v{vT0} offset:{(a+1)*128+q*32}")
            A("s_waitcnt lgkmcnt(4)")
        else:
            A("s_waitcnt lgkmcnt(0)")
        d = acc(0, a)
        phi_block(A, d, 16, t, lambda i: ("b", mu), lambda i: ("p", csa + i), lambda i: ("b", r), lambda i: ("b", rl), eps)
        ob = o + 8 * (a % 2)
        for i in range(8):
            A(f"v_cvt_pk_bf16_f32 v{ob+i}, v{d+2*i}, v{d+2*i+1}")
        A(f"buffer_store_dwordx4 {vr(ob)}, v{vT1}, {srd(S_WS)}, s{sTmp} offen sc1")
        A(f"buffer_store_dwordx4 {vr(ob+4)}, v{vT1}, {srd(S_WS)}, s{sTmp} offen offset:512 sc1")
        A(f"s_add_u32 s{sTmp}, s{sTmp}, 4096")


KV_PAIRS = [(0, 2), (0, 3), (1, 3), (1, 4), (2, 4)]
KV_Q = [[0, 1, 2], [0, 1, 2, 3], [0, 1, 2, 3], [1, 2, 3], [0, 1]]
KV_AD = 232
KV_SLAB = [0, 14336, 135168, 149504]
KV_DUMMY = 28688


def kv_addr_setup(A):
    e, he, d0, dm = vT0, vT1, vT2, vT3
    t = vBUF + 24
    A(f"s_mul_i32 s{sTmp3}, s{sMW}, 14336")
    A(f"s_cmp_ge_u32 s{sMW}, 2")
    A(f"s_cselect_b32 s{sTmp}, {135168 - 2*14336}, 0")
    A(f"s_add_u32 s{sTmp3}, s{sTmp3}, s{sTmp}")
    A(f"s_mul_i32 s{sTmp}, s{sNW}, 6720")
    A(f"s_add_u32 s{sTmp3}, s{sTmp3}, s{sTmp}")
    A(f"v_lshlrev_b32 v{dm}, 4, v{vLane}")
    A(f"v_add_u32 v{dm}, {KV_DUMMY}, v{dm}")
    A(f"v_lshrrev_b32 v{d0}, 5, v{vLane}")
    A(f"v_lshlrev_b32 v{d0}, 2, v{d0}")
    for n, (a, b) in enumerate(KV_PAIRS):
        A(f"v_and_b32 v{e}, 31, v{vLane}")
        A(f"v_add_u32 v{e}, {32*b - 80 + 100}, v{e}")
        A(f"v_mul_u32_u24 v{he}, 205, v{e}")
        A(f"v_lshrrev_b32 v{he}, 12, v{he}")
        A(f"v_mul_u32_u24 v{e}, 80, v{e}")
        A(f"v_add_u32 v{e}, s{sTmp3}, v{e}")
        for q in KV_Q[n]:
            a0 = KV_AD + 4 * n + q
            A(f"v_add_u32 v{a0}, {32*a + 8*q + 100}, v{d0}")
            A(f"v_mul_u32_u24 v{t}, 205, v{a0}")
            A(f"v_lshrrev_b32 v{t}, 12, v{t}")
            A(f"v_cmp_eq_u32 vcc, v{t}, v{he}")
            A(f"v_lshl_add_u32 v{a0}, v{a0}, 2, v{e}")
            A(f"v_subrev_u32 v{a0}, {80*100 + 4*100}, v{a0}")
            A(f"v_cndmask_b32 v{a0}, v{dm}, v{a0}, vcc")
    A(f"v_and_b32 v{e}, 15, v{vLane}")
    A(f"v_lshrrev_b32 v{d0}, 4, v{vLane}")
    A(f"v_lshlrev_b32 v{d0}, 2, v{d0}")
    A(f"v_lshl_add_u32 v{d0}, v{e}, 4, v{d0}")
    for a in range(3):
        az = KV_AD + 20 + a
        A(f"v_add_u32 v{az}, {32*a}, v{d0}")
        A(f"v_mul_u32_u24 v{t}, 205, v{az}")
        A(f"v_lshrrev_b32 v{t}, 12, v{t}")
        A(f"v_mul_u32_u24 v{t}, 1600, v{t}")
        A(f"v_lshl_add_u32 v{az}, v{az}, 2, v{t}")
        A(f"v_add_u32 v{az}, s{sTmp3}, v{az}")
        A(f"v_add_u32 v{az}, 1600, v{az}")
        A(f"v_cmp_gt_u32 vcc, {2 if a < 2 else 1}, v{e}")
        A(f"v_cndmask_b32 v{az}, v{dm}, v{az}, vcc")


def k1_epi_kv(A, acc):
    mu = vBUF
    rr = vBUF + 16
    rl = vBUF + 32
    t = vBUF + 48
    raw = vBUF + 48
    cs = vBUF + 80
    eps = vBUF + 86
    sv = vBUF + 64
    A(f"v_and_b32 v{vT0}, 31, v{vLane}")
    A(f"v_cmp_gt_u32 vcc, 16, v{vT0}")
    A(f"v_lshlrev_b32 v{vT0}, 2, v{vT0}")
    A(f"s_mul_i32 s{sTmp}, s{sNW}, 640")
    A(f"s_add_u32 s{sTmp}, s{sTmp}, {MISC_LDS}")
    A(f"v_add_u32 v{vT1}, s{sTmp}, v{vT0}")
    A(f"v_lshrrev_b32 v{vT2}, 5, v{vLane}")
    A(f"s_lshl_b32 s{sTmp}, s{sMW}, 8")
    A(f"s_add_u32 s{sTmp}, s{sTmp}, {MISC_LDS+2048}")
    A(f"v_lshl_add_u32 v{vT2}, v{vT2}, 5, s{sTmp}")
    for q in range(4):
        for h in range(2):
            A(f"ds_read_b128 {vr(raw+8*q+4*h)}, v{vT2} offset:{q*64+h*16}")
    for a in range(5):
        A(f"ds_read_b32 v{cs+a}, v{vT1} offset:{a*128}")
    A("s_waitcnt lgkmcnt(5)")
    for i in range(16):
        A(f"v_rsq_f32 v{rr+i}, v{raw+2*i+1}")
        A(f"v_mov_b32 v{mu+i}, v{raw+2*i}")
    for i in range(16):
        A(f"v_mul_f32 v{rl+i}, {f32(LOG2E)}, v{rr+i}")
    A(f"v_mov_b32 v{eps}, {f32(1e-6)}")
    A("s_waitcnt lgkmcnt(0)")
    op = lambda a, h: acc(0, a) + 4 * h

    def pack(a):
        d = acc(0, a)
        for i in range(8):
            A(f"v_cvt_pk_bf16_f32 v{d+i}, v{d+2*i}, v{d+2*i+1}")

    def plain(a, dst):
        d = acc(0, a)
        for i in range(0, 16, 2):
            pk_fma(A, dst + i, ("p", mu + i), ("b", cs + a), ("p", d + i), neg_a=True)
        for i in range(0, 16, 2):
            pk_mul(A, dst + i, ("p", dst + i), ("p", rr + i))

    def phi(a):
        phi_block(A, acc(0, a), 16, t, lambda i: ("p", mu + i), lambda i: ("b", cs + a), lambda i: ("p", rr + i), lambda i: ("p", rl + i), eps)
    for a in (3, 4):
        plain(a, acc(0, a))
        pack(a)
    plain(2, sv)
    phi(2)
    for i in range(16):
        A(f"v_cndmask_b32 v{acc(0,2)+i}, v{sv+i}, v{acc(0,2)+i}, vcc")
    pack(2)
    for a in (0, 1):
        phi(a)
        pack(a)
    D = lambda n: vBUF + 16 * n
    Z = lambda a: vBUF + 80 + 4 * a
    for h in range(2):
        for n, (a, b) in enumerate(KV_PAIRS):
            A(f"v_mfma_f32_32x32x16_bf16 {vr(D(n),16)}, {vr(op(a,h))}, {vr(op(b,h))}, {vr(D(n),16) if h else 0}")
        for a in range(3):
            A(f"v_mfma_f32_16x16x32_bf16 {vr(Z(a))}, {vr(op(a,h))}, {vr(vSel)}, {vr(Z(a)) if h else 0}")
    A("s_barrier")
    for n in range(5):
        for q in KV_Q[n]:
            A(f"ds_write_b128 v{KV_AD+4*n+q}, {vr(D(n)+4*q)}")
    for a in range(3):
        A(f"ds_write_b128 v{KV_AD+20+a}, {vr(Z(a))}")
    sSlab = 4
    A(f"s_sub_u32 s{sSlab}, s{sCG}, 9")
    A(f"s_mul_i32 s{sSlab}, s{sSlab}, 13440")
    A(f"s_add_u32 s{sSlab}, s{sSlab}, {WS_KVA}")
    A(f"v_lshlrev_b32 v{vT0}, 2, v0")
    A(f"v_add_u32 v{vT1}, {KV_SLAB[2]}, v{vT0}")
    A(f"v_cmp_gt_u32 vcc, {3360-6*512}, v0")
    A(f"v_mov_b32 v{vT2}, {OOB}")
    A(f"v_cndmask_b32 v{vT2}, v{vT2}, v{vT0}, vcc")
    A("s_waitcnt lgkmcnt(0)")
    A("s_barrier")
    R = vACC
    for j in range(7):
        for m in range(4):
            A(f"ds_read_b32 v{R+4*j+m}, v{vT0 if m < 2 else vT1} offset:{j*2048 + (m%2)*14336}")
        if j >= 2:
            k = j - 2
            A("s_waitcnt lgkmcnt(8)")
            kv_atomic(A, R, k, sSlab)
    for k in (5, 6):
        A(f"s_waitcnt lgkmcnt({4*(6-k)})")
        kv_atomic(A, R, k, sSlab)


def kv_atomic(A, R, k, sSlab):
    A(f"v_add_f32 v{R+4*k}, v{R+4*k}, v{R+4*k+1}")
    A(f"v_add_f32 v{R+4*k+2}, v{R+4*k+2}, v{R+4*k+3}")
    A(f"v_add_f32 v{R+4*k}, v{R+4*k}, v{R+4*k+2}")
    A(f"buffer_atomic_add_f32 v{R+4*k}, v{vT0 if k < 6 else vT2}, {srd(S_WS)}, s{sSlab} offen offset:{(k%2)*2048}")
    if k % 2 == 1:
        A(f"s_add_u32 s{sSlab}, s{sSlab}, 4096")


def k1_aux(A):
    if OPT["CODEWARM"] == 1:
        A("s_getpc_b64 s[10:11]")
        A.label("L_pc")
        A(f"s_sub_u32 s10, s10, L_pc-{NAME}_kernel")
        A("s_subb_u32 s11, s11, 0")
        A(f"v_lshlrev_b32 v{vT0}, 7, v0")
        A(f"v_min_u32 v{vT0}, L_code_end-{NAME}_kernel-4, v{vT0}")
        A(f"global_load_dword v{vACC+8}, v{vT0}, s[10:11]")
    if OPT["TLBWARM"]:
        g = OPT["TLBWARM"]
        mk_srd(A, S_T, P_OUT, 2048 * 1280)
        A(f"v_lshlrev_b32 v{vT0}, {g}, v0")
        A(f"buffer_load_dword v{vACC+9}, v{vT0}, {srd(S_WS)}, 0 offen sc1")
        A(f"buffer_load_dword v{vACC+10}, v{vT0}, {srd(S_T)}, 0 offen sc1")
    A(f"s_lshl_b32 s{sUw}, s{sRB}, 3")
    A(f"s_add_u32 s{sUw}, s{sUw}, s{sWave}")
    A(f"s_add_u32 s{sUw}, s{sUw}, 480")
    A(f"s_mul_i32 s{sUl}, s{sWave}, 12288")
    for i in range(3):
        A(f"s_add_u32 s{sU}, s{sUw}, {128*i}")
        A(f"s_add_u32 s9, s{sUl}, {4096*i}")
        w2_unit_dma(A, "s9")
    for i in range(4):
        A(f"v_mov_b32 v{vACC+i}, 0")
    A(f"v_lshlrev_b32 v{vT0}, 4, v0")
    A(f"s_mul_i32 s{sTmp}, s{sRB}, 3360")
    A(f"s_add_u32 s{sTmp}, s{sTmp}, {WS_KVA}")
    A(f"v_add_u32 v{vT0}, s{sTmp}, v{vT0}")
    A(f"v_mov_b32 v{vT2}, {OOB}")
    A(f"v_cmp_gt_u32 vcc, 210, v0")
    A(f"v_cndmask_b32 v{vT0}, v{vT2}, v{vT0}, vcc")
    A(f"s_cmp_lg_u32 s{sWave}, 7")
    A("s_cbranch_scc1 L_A_z")
    A(f"s_lshl_b32 s{sTmp}, s{sRB}, 8")
    A(f"s_add_u32 s{sTmp}, s{sTmp}, {WS_FL}")
    A(f"v_writelane_b32 v{vT0}, s{sTmp}, 0")
    A(f"s_lshl_b32 s{sTmp}, s{sRB}, 9")
    A(f"s_add_u32 s{sTmp}, s{sTmp}, {WS_FL + FL_KV}")
    A(f"v_writelane_b32 v{vT0}, s{sTmp}, 1")
    A(f"s_add_u32 s{sTmp}, s{sTmp}, 256")
    A(f"v_writelane_b32 v{vT0}, s{sTmp}, 2")
    A.label("L_A_z")
    A(f"buffer_store_dwordx4 {vr(vACC)}, v{vT0}, {srd(S_WS)}, 0 offen sc1")
    A("s_waitcnt vmcnt(13)")
    k1_stats(A, "X")
    for i in range(3):
        A(f"s_waitcnt vmcnt({10 - 4*i + 4*i})" if False else f"s_waitcnt vmcnt({(8 - 4*i) + 2 + 4*i})")
        A(f"s_add_u32 s{sU}, s{sUw}, {128*i}")
        A(f"s_add_u32 s9, s{sUl}, {4096*i}")
        w2_unit_out(A, "s9", lambda t: vACC + 16 + 16 * i + 4 * t)
    A("s_waitcnt vmcnt(0)")
    A("s_barrier")
    stamp(A, 9, 0)
    A(f"s_cmp_lg_u32 s{sWave}, 0")
    A("s_cbranch_scc1 L_A_w")
    k1_publish(A)
    A(f"s_mov_b32 s{sSpin}, 0")
    poll_addr(A)
    A.label("L_A_poll")
    A("s_sleep 32")
    A(f"buffer_load_dword v{vPoll}, v{vPa}, {srd(S_DBG)}, 0 offen sc1")
    A("s_waitcnt vmcnt(0)")
    poll_cmp(A)
    A(f"s_add_u32 s{sSpin}, s{sSpin}, 1")
    A(f"s_cmp_gt_u32 s{sSpin}, {SPIN_MAX}")
    A("s_cbranch_scc1 L_A_w")
    A(f"s_cmp_lg_u64 vcc, 0")
    A("s_cbranch_scc1 L_A_poll")
    A.label("L_A_w")
    A("s_barrier")
    stamp(A, 3, 0)
    p2_ids(A)
    A(f"s_mov_b32 s{sWoDone}, 0")
    A(f"v_mov_b32 v{vSigA}, {OOB}")
    A(f"v_mov_b32 v{vSigV}, 0")
    A("s_branch L_p2")


def kernel1(A):
    A(".p2align 8")
    A.label(NAME + "_kernel")
    A("s_cmp_ge_u32 s2, 256")
    A("s_cbranch_scc1 L_k1_exit")
    if OPT["XMAP"]:
        A("s_lshr_b32 s3, s2, 5")
        A("s_and_b32 s2, s2, 31")
        A("s_lshl_b32 s2, s2, 3")
        A("s_or_b32 s2, s2, s3")
    load_ptrs(A)
    if OPT["CODEWARM"] == 2:
        A("s_getpc_b64 s[10:11]")
        A.label("L_pc")
        A(f"s_sub_u32 s10, s10, L_pc-{NAME}_kernel")
        A("s_subb_u32 s11, s11, 0")
        A("s_lshr_b32 s4, s2, 3")
        A("s_lshl_b32 s4, s4, 7")
        A(f"v_lshl_add_u32 v{vT0}, v0, 12, s4")
        A(f"v_min_u32 v{vT0}, L_code_end-{NAME}_kernel-4, v{vT0}")
        A("v_cmp_gt_u32 vcc, 16, v0")
        A("s_and_saveexec_b64 s[12:13], vcc")
        A("s_cbranch_execz L_nocw")
        A(f"global_load_dword v251, v{vT0}, s[10:11]")
        A.label("L_nocw")
        A("s_mov_b64 exec, s[12:13]")
    A(f"v_and_b32 v{vLane}, 63, v0")
    A(f"v_lshrrev_b32 v{vT0}, 6, v0")
    A(f"v_readfirstlane_b32 s{sWave}, v{vT0}")
    A("s_and_b32 s3, s2, 7")
    A("s_lshr_b32 s4, s2, 3")
    A("s_lshr_b32 s5, s3, 2")
    A("s_and_b32 s6, s3, 3")
    A("s_mul_i32 s7, s6, 30")
    A("s_add_u32 s7, s7, s4")
    A(f"s_lshr_b32 s{sCG}, s7, 3")
    if OPT["CGPERM"]:
        perm = [0, 9, 1, 13, 2, 10, 3, 4, 5, 11, 6, 14, 7, 12, 8, 15]
        tab = sum(p << (4 * i) for i, p in enumerate(perm))
        A(f"s_mov_b32 s10, {tab & 0xffffffff}")
        A(f"s_mov_b32 s11, {tab >> 32}")
        A(f"s_lshl_b32 s{sCG}, s{sCG}, 2")
        A(f"s_lshr_b64 s[10:11], s[10:11], s{sCG}")
        A(f"s_and_b32 s{sCG}, s10, 15")
    A(f"s_and_b32 s{sRB}, s7, 7")
    A("s_lshl_b32 s8, s6, 1")
    A("s_add_u32 s8, s8, s4")
    A("s_sub_u32 s8, s8, 30")
    A("s_cmp_lt_u32 s4, 30")
    A(f"s_cselect_b32 s{sCG}, s{sCG}, 15")
    A(f"s_cselect_b32 s{sRB}, s{sRB}, s8")
    A("s_lshl_b32 s5, s5, 3")
    A(f"s_add_u32 s{sRB}, s{sRB}, s5")
    A(f"s_sub_u32 s3, s{sRB}, 10")
    A(f"s_cmp_lt_u32 s{sRB}, 10")
    A(f"s_cselect_b32 s{sC0}, s{sRB}, s3")
    Q = OPT["ROTQ"]
    if Q == 2:
        A(f"s_and_b32 s{sC0}, s{sC0}, 0xfe")
    elif Q == 5:
        A(f"s_cmp_lt_u32 s{sC0}, 5")
        A(f"s_cselect_b32 s{sC0}, 0, 5")
    A("s_waitcnt lgkmcnt(0)")
    mk_srd(A, S_X, P_X, 2048 * 1280)
    mk_srd(A, S_WS, P_WS, WS_SIZE)
    mk_srd(A, S_DBG, P_DBG, 256)
    stamp(A, 0, 0)
    if OPT["P2ONLY"]:
        p2_ids(A)
        A(f"s_mov_b32 s{sWoDone}, 0")
        A(f"v_mov_b32 v{vSigA}, {OOB}")
        A(f"v_mov_b32 v{vSigV}, 0")
        A("s_branch L_p2")
    k1_stats_issue(A)
    A(f"s_cmp_eq_u32 s{sCG}, 15")
    A("s_cbranch_scc1 L_aux")
    A(f"v_lshrrev_b32 v{vT0}, 3, v{vLane}")
    A(f"v_lshrrev_b32 v{vT1}, 4, v{vLane}")
    A(f"v_and_b32 v{vT2}, 7, v{vLane}")
    A(f"v_xor_b32 v{vT1}, v{vT1}, v{vT2}")
    if OPT["NOSWZ"]: A(f"v_and_b32 v{vT1}, 7, v{vLane}")
    A(f"s_lshl_b32 s3, s{sRB}, 7")
    if OPT["SAME"]: A("s_mov_b32 s3, 0")
    A(f"s_and_b32 s4, s{sWave}, 3")
    A(f"s_lshl_b32 s{sXslot}, s4, 12")
    A(f"s_lshl_b32 s4, s4, 5")
    A("s_add_u32 s3, s3, s4")
    A(f"v_add_u32 v{vT0}, s3, v{vT0}")
    A(f"v_mul_u32_u24 v{vT0}, 1280, v{vT0}")
    A(f"v_lshl_add_u32 v{vXo}, v{vT1}, 4, v{vT0}")
    A(f"v_xor_b32 v{vT1}, 4, v{vT1}")
    A(f"v_lshl_add_u32 v{vXo+1}, v{vT1}, 4, v{vT0}")
    A(f"v_add_u32 v{vXo+1}, {8*1280}, v{vXo+1}")
    A(f"s_lshl_b32 s{sKX}, s{sC0}, 7")
    A(f"s_mov_b32 s{sKXn}, 0")
    A(f"s_cmp_ge_u32 s{sCG}, 13")
    A("s_cbranch_scc1 L_typeQ")
    A(f"s_cmp_ge_u32 s{sCG}, 9")
    A("s_cbranch_scc1 L_typeK")
    k1_gemm(A, "G")
    A.label("L_typeQ")
    k1_gemm(A, "Q")
    A.label("L_typeK")
    k1_gemm(A, "K")
    A.label("L_aux")
    k1_aux(A)
    phase2(A)
    A.label("L_k1_exit")
    A("s_endpgm")
    A.label("L_code_end")


sRB64, sC, sHo, sWo, sFl, sWoDone, sWoL, sWoG, sWoI, sHb, sHe, sWb, sWe = sKW, sKWn, sKX, sKXn, sWslot, sRslot, sXslot, sStepW, sCSit, sSpec, sWrapW, sC0, sRow
vL16 = 5


def p2_ids(A):
    A("s_and_b32 s3, s2, 7")
    A("s_lshr_b32 s4, s2, 3")
    A(f"s_and_b32 s{sC}, s4, 7")
    A("s_lshr_b32 s4, s4, 3")
    A("s_lshl_b32 s3, s3, 2")
    A(f"s_add_u32 s{sRB64}, s3, s4")
    if OPT["P2SAME"] == 1:
        A(f"s_and_b32 s{sRB64}, s{sRB64}, 1")
        A(f"s_and_b32 s{sC}, s{sC}, 1")
    if OPT["P2SAME"] == 2:
        A(f"s_and_b32 s{sC}, s{sC}, 3")
    A(f"v_lshlrev_b32 v{vL16}, 4, v{vLane}")


WO_LDS = 32768


def wo_early(A, first, per_wave):
    A("s_lshr_b32 s4, s2, 3")
    A("s_and_b32 s4, s4, 7")
    A(f"s_mul_i32 s4, s4, {74*5120}")
    A(f"s_and_b32 s5, s{sWave}, 3")
    A(f"s_mul_i32 s5, s5, {per_wave*1024}")
    A("s_add_u32 s4, s4, s5")
    A(f"s_add_u32 s4, s4, {WS_W2 + 54*5120 + first*1024}")
    A(f"s_add_u32 s5, s5, {WO_LDS + first*1024}")
    A(f"v_lshlrev_b32 v{vT0}, 4, v{vLane}")
    for i in range(per_wave):
        if i % 4 == 0:
            A(f"s_add_u32 m0, s5, {i*1024}")
            A(f"s_add_u32 s6, s4, {i*1024}")
        A(f"buffer_load_dwordx4 v{vT0}, {srd(S_WS)}, s6 offen offset:{(i%4)*1024} sc1 lds")


def wo_setup(A):
    A(f"s_mul_i32 s{sWoL}, s{sWave}, 25600")
    A(f"s_add_u32 s{sWoL}, s{sWoL}, {WO_LDS}")
    A(f"s_mul_i32 s6, s{sC}, 74")
    A(f"s_mul_i32 s7, s{sWave}, 5")
    A("s_add_u32 s6, s6, s7")
    A("s_add_u32 s6, s6, 54")
    A("s_mul_i32 s6, s6, 5120")
    A(f"s_add_u32 s{sWoG}, s6, {WS_W2}")
    A(f"s_and_b32 s{sWoI}, s{sRB64}, 3")
    A(f"s_mul_i32 s{sWoI}, s{sWoI}, {6*1024}")


def wo_dmas():
    return [f"s_add_u32 m0, s{sWoL}, s{sWoI}\n"
            f"s_add_u32 s9, s{sWoG}, s{sWoI}\n"
            f"buffer_load_dwordx4 v{vL16}, {srd(S_WS)}, s9 offen sc1 lds\n"
            f"s_add_u32 s{sWoI}, s{sWoI}, 1024\n"
            f"s_cmp_eq_u32 s{sWoI}, {25*1024}\n"
            f"s_cselect_b32 s{sWoI}, 0, s{sWoI}" for _ in range(25)]


NK, WD, HD = 14, 6, 3
q4 = lambda a, b: list(range(a, b, 4))
WQ = q4(8, 56) + q4(128, 152) + q4(248, 256) + q4(112, 128) + q4(152, 168) + q4(200, 208)
AQ = q4(88, 112) + q4(168, 192) + q4(56, 88)
HQ = q4(192, 200) + q4(208, 248)
assert len(WQ) == 30 and len(AQ) == 20 and len(HQ) == 12 and len(set(WQ + AQ + HQ)) == 62
sLast = sOdd


def ffn_setup(A):
    A(f"s_sub_u32 s3, s{sWave}, 4")
    A("s_mul_i32 s4, s3, 14")
    A("s_cmp_eq_u32 s3, 3")
    A("s_cselect_b32 s5, 1, 0")
    A("s_sub_u32 s4, s4, s5")
    A("s_cmp_ge_u32 s3, 2")
    A("s_cselect_b32 s5, 13, 14")
    A(f"s_cselect_b32 s{sLast}, {OOB}, 0")
    A(f"s_and_b32 s6, s{sRB64}, 3")
    A("s_lshl_b32 s6, s6, 1")
    A(f"s_add_u32 s6, s6, s{sC}")
    A("s_mul_i32 s6, s6, 7")
    A("s_lshr_b32 s6, s6, 2")
    A("s_sub_u32 s7, s6, s5")
    A("s_cmp_ge_u32 s6, s5")
    A("s_cselect_b32 s6, s7, s6")
    if not OPT["P2ROT"]:
        A("s_mov_b32 s6, 0")
    A(f"s_mul_i32 s{sHb}, s{sRB64}, 54")
    A(f"s_add_u32 s{sHb}, s{sHb}, s4")
    A(f"s_lshl_b32 s{sHb}, s{sHb}, 12")
    A("s_lshl_b32 s7, s5, 12")
    A(f"s_add_u32 s{sHe}, s{sHb}, s7")
    A("s_lshl_b32 s7, s6, 12")
    A(f"s_add_u32 s{sHo}, s{sHb}, s7")
    A(f"s_mul_i32 s{sWb}, s{sC}, 74")
    A(f"s_add_u32 s{sWb}, s{sWb}, s4")
    A(f"s_mul_i32 s{sWb}, s{sWb}, 5120")
    A(f"s_add_u32 s{sWb}, s{sWb}, {WS_W2}")
    A("s_mul_i32 s7, s5, 5120")
    A(f"s_add_u32 s{sWe}, s{sWb}, s7")
    A("s_mul_i32 s7, s6, 5120")
    A(f"s_add_u32 s{sWo}, s{sWb}, s7")


def ldW_groups(j):
    out = []
    pre = f"s_add_u32 s{sWo}, s{sWo}, s{sLast}\n" if j == NK - 1 else ""
    for nt in range(4):
        out.append((pre if nt == 0 else "") +
                   f"buffer_load_dwordx4 {vr(WQ[5*(j%WD)+nt])}, v{vL16}, {srd(S_WS)}, s{sWo} offen offset:{nt*1024}{HSC}")
    out.append(f"s_add_u32 s3, s{sWo}, 4096\n"
               f"buffer_load_dwordx4 {vr(WQ[5*(j%WD)+4])}, v{vL16}, {srd(S_WS)}, s3 offen{HSC}\n"
               f"s_add_u32 s{sWo}, s{sWo}, 5120\n"
               f"s_cmp_eq_u32 s{sWo}, s{sWe}\n"
               f"s_cselect_b32 s{sWo}, s{sWb}, s{sWo}")
    return out


def poll_flag(A, lab, addr_s, mask, target, vtmp):
    A(f"s_mov_b32 s{sSpin}, 0")
    A(f"v_mov_b32 v{vtmp+1}, 0")
    A.label(lab)
    A(f"buffer_load_dword v{vtmp}, v{vtmp+1}, {srd(S_WS)}, s{addr_s} offen sc1")
    A("s_waitcnt vmcnt(0)")
    A(f"v_readfirstlane_b32 s{sTmp3}, v{vtmp}")
    A(f"s_add_u32 s{sSpin}, s{sSpin}, 1")
    A(f"s_and_b32 s{sTmp3}, s{sTmp3}, {mask}")
    A(f"s_cmp_ge_u32 s{sTmp3}, {0 if OPT['P2ONLY'] else target}")
    A(f"s_cbranch_scc1 {lab}_ok")
    A(f"s_cmp_gt_u32 s{sSpin}, {SPIN_MAX}")
    A(f"s_cbranch_scc1 {lab}_ok")
    A(f"s_sleep {OPT['PSLEEP']}")
    A(f"s_branch {lab}")
    A.label(lab + "_ok")


def phase2(A):
    S_OUT = S_T
    ACC = 8
    acc = lambda nt, mt: ACC + 4 * (nt * 4 + mt)
    A.label("L_p2")
    mk_srd(A, S_OUT, P_OUT, 2048 * 1280)
    A(f"s_lshr_b32 s{sFl}, s{sRB64}, 1")
    A(f"s_lshl_b32 s{sFl}, s{sFl}, 8")
    A(f"s_add_u32 s{sFl}, s{sFl}, {WS_FL + FL_HC}")
    A.fence()
    A(f"s_cmp_ge_u32 s{sWave}, 4")
    A("s_cbranch_scc1 L2_ffn")

    def signal(n_younger):
        A(f"s_waitcnt vmcnt({n_younger}) lgkmcnt(0)")
        A("s_barrier")

    XR, OA, RA = 232, 238, 241

    def red_setup(A, ta, tb):
        for j in range(3):
            A(f"s_add_u32 s11, s{sWave}, {8*j}")
            A(f"s_lshr_b32 s12, s11, 2")
            A(f"s_and_b32 s13, s11, 3")
            A(f"s_lshl_b32 s14, s{sRB64}, 6")
            A(f"s_lshl_b32 s13, s13, 4")
            A("s_add_u32 s14, s14, s13")
            A("s_mul_i32 s14, s14, 1280")
            A(f"s_mul_i32 s15, s{sC}, 160")
            A("s_add_u32 s14, s14, s15")
            A("s_lshl_b32 s12, s12, 5")
            A("s_add_u32 s14, s14, s12")
            A("s_cmp_lt_u32 s11, 20")
            A(f"s_cselect_b32 s14, s14, {OOB}")
            A(f"v_and_b32 v{ta}, 15, v{vLane}")
            A(f"v_mul_u32_u24 v{ta}, 1280, v{ta}")
            A(f"v_lshrrev_b32 v{tb}, 4, v{vLane}")
            A(f"v_lshl_add_u32 v{ta}, v{tb}, 3, v{ta}")
            A(f"v_add_u32 v{OA+j}, s14, v{ta}")
            A(f"buffer_load_dwordx2 {vr(XR+2*j, 2)}, v{OA+j}, {srd(S_X)}, 0 offen")
            A("s_lshl_b32 s12, s11, 10")
            A(f"s_add_u32 s13, s12, {WO_LDS+5120}")
            A(f"v_add_u32 v{RA+5*j}, s13, v{vL16}")
            for f in range(4):
                A(f"s_add_u32 s13, s12, {KV_SLAB[f]}")
                A(f"s_add_u32 s14, s12, {WO_LDS + f*25600 - 14*1024}")
                A("s_cmp_lt_u32 s11, 14")
                A("s_cselect_b32 s13, s13, s14")
                A("s_cmp_lt_u32 s11, 19")
                A(f"s_cselect_b32 s13, s13, {28672 + f*1024}")
                A(f"v_add_u32 v{RA+5*j+1+f}, s13, v{vL16}")

    AD = 8
    RAW, NRAW = 56, 6
    FR = 80
    OSP = 96
    PQ = lambda mt, blk: 112 + 16 * blk + 4 * mt
    O = lambda u, mt: (OSP + 4 * mt) if u == 0 else PQ(mt, u - 1)
    DEN = 192
    NM = 224
    T = 192
    A(f"s_mul_i32 s8, s{sWave}, 14336")
    A(f"s_cmp_ge_u32 s{sWave}, 2")
    A(f"s_cselect_b32 s9, {135168 - 2*14336}, 0")
    A("s_add_u32 s8, s8, s9")
    for i in range(4):
        A(f"v_mov_b32 v{T+i}, 0")
    A(f"s_add_u32 s9, s8, 13440")
    A(f"v_mov_b32 v{vT2}, s9")
    A(f"ds_write_b128 v{vT2}, {vr(T)}")
    A(f"ds_write_b32 v{vT2}, v{T} offset:16")
    signal(0)
    A(f"s_cmp_lg_u32 s{sWave}, 0")
    A("s_cbranch_scc1 L2_nosig")
    A(f"buffer_atomic_add v{vSigV}, v{vSigA}, {srd(S_WS)}, 0 offen sc1")
    A.label("L2_nosig")
    stamp(A, 0, 1)
    if OPT["NOATT"]:
        A("s_branch L2_reduce")
    A(f"s_cmp_lg_u32 s{sWoDone}, 0")
    A("s_cbranch_scc1 L2_wodone")
    wo_setup(A)
    for g in wo_dmas():
        A(g)
    A.label("L2_wodone")
    A(f"s_mul_i32 s4, s{sWave}, 25600")
    A(f"s_add_u32 s4, s4, {WO_LDS}")
    iL, gL = T + 4, T + 5
    he = T + 12
    hd = T + 22
    ab, zb, hz = T + 6, T + 7, T + 8
    A(f"v_and_b32 v{iL}, 15, v{vLane}")
    A(f"v_lshrrev_b32 v{gL}, 4, v{vLane}")
    for Tt in range(10):
        A(f"v_add_u32 v{he+Tt}, {16*Tt}, v{iL}")
        A(f"v_mul_u32_u24 v{he+Tt}, 205, v{he+Tt}")
        A(f"v_lshrrev_b32 v{he+Tt}, 12, v{he+Tt}")
    for blk in range(5):
        for h in range(2):
            r = hd + 2 * blk + h
            A(f"v_lshlrev_b32 v{r}, 3, v{gL}")
            A(f"v_add_u32 v{r}, {32*blk+4*h}, v{r}")
            A(f"v_mul_u32_u24 v{r}, 205, v{r}")
            A(f"v_lshrrev_b32 v{r}, 12, v{r}")
    A(f"v_mul_u32_u24 v{ab}, 80, v{iL}")
    A(f"v_lshl_add_u32 v{ab}, v{gL}, 5, v{ab}")
    A(f"v_add_u32 v{ab}, s8, v{ab}")
    A(f"v_and_b32 v{hz}, 3, v{iL}")
    A(f"v_mul_u32_u24 v{zb}, 1600, v{hz}")
    A(f"v_lshl_add_u32 v{zb}, v{gL}, 5, v{zb}")
    A(f"v_add_u32 v{zb}, s8, v{zb}")
    NUM = {0: [0], 1: [0, 1], 2: [0, 1], 3: [1, 2], 4: [1, 2], 5: [2, 3], 6: [2, 3], 7: [3, 4], 8: [3, 4], 9: [4]}
    frs = []
    for ch in range(2):
        A(f"v_add_u32 v{T+9}, {4*ch}, v{hz}")
        bl = [0, 1, 2] if ch == 0 else [2, 3, 4]
        for blk in bl:
            n = len(frs)
            frs.append(("z", ch, blk, blk == bl[0], blk == bl[-1]))
            for h in range(2):
                a = AD + 2 * n + h
                A(f"v_cmp_eq_u32 vcc, v{T+9}, v{hd+2*blk+h}")
                A(f"v_add_u32 v{a}, {6400*ch+1600+128*blk+16*h}, v{zb}")
                A(f"v_cndmask_b32 v{a}, v{vT2}, v{a}, vcc")
        for Tt in range(5 * ch, 5 * ch + 5):
            for blk in NUM[Tt]:
                n = len(frs)
                frs.append(("n", Tt, blk, blk == NUM[Tt][0], blk == NUM[Tt][-1]))
                for h in range(2):
                    a = AD + 2 * n + h
                    A(f"v_cmp_eq_u32 vcc, v{he+Tt}, v{hd+2*blk+h}")
                    A(f"v_add_u32 v{a}, {1280*Tt+128*blk+16*h}, v{ab}")
                    A(f"v_cndmask_b32 v{a}, v{vT2}, v{a}, vcc")
    assert len(frs) == 24
    sM = 84
    for k in range(3):
        A(f"v_cmp_lt_u32 s[{sM+2*k}:{sM+2*k+1}], {k}, v{gL}")
    stamp(A, 7, 1, vt=vT0)
    A("s_setprio 3")
    A(f"s_lshr_b32 s10, s{sWave}, 1")
    A("s_lshl_b32 s10, 0x2000, s10")
    poll_flag(A, "L2_pq", sFl, "s10", "s10", vT0)
    stamp(A, 8, 1, vt=vT0)
    A(f"s_mul_i32 s6, s{sRB64}, 20")
    A(f"s_mul_i32 s7, s{sWave}, 5")
    A("s_add_u32 s6, s6, s7")
    A("s_lshl_b32 s6, s6, 12")
    A(f"s_add_u32 s6, s6, {WS_PQ}")
    for blk in range(5):
        for mt in range(4):
            A(f"buffer_load_dwordx4 {vr(PQ(mt, blk))}, v{vL16}, {srd(S_WS)}, s6 offen offset:{mt*1024} sc1")
        A(f"s_add_u32 s6, s6, 4096")
    A(f"s_lshl_b32 s6, s{sWave}, 3")
    A("s_and_b32 s7, s2, 7")
    A("s_add_u32 s6, s6, s7")
    A("s_lshl_b32 s6, s6, 8")
    A(f"s_add_u32 s6, s6, {WS_FL + FL_KV}")
    poll_flag(A, "L2_kv", 6, 0xff, 16, vT0)
    stamp(A, 3, 1, vt=vT0)
    A(f"s_mul_i32 s3, s{sWave}, 13440")
    A(f"s_add_u32 s3, s3, {WS_KVA}")
    for i in range(14):
        if i % 4 == 0:
            A(f"s_add_u32 m0, s8, {i*1024}")
            A(f"s_add_u32 s5, s3, {i*1024}")
        if i == 13:
            A("s_mov_b64 exec, 0xff")
        A(f"buffer_load_dwordx4 v{vL16}, {srd(S_WS)}, s5 offen offset:{(i%4)*1024} sc1 lds")
    A("s_mov_b64 exec, -1")
    A(f"s_setprio {OPT['APRIO']}")
    A("s_waitcnt vmcnt(7) lgkmcnt(0)")
    stamp(A, 9, 1, vt=vT0)
    raw = lambda k: RAW + 4 * (k % NRAW)
    fr = lambda n: FR + 4 * (n % 4)
    dst = lambda f, mt: (DEN + 8 * mt + 4 * f[1]) if f[0] == "z" else (NM + 16 * (f[1] % 2) + 4 * mt)

    def rd(n):
        if n == 12:
            A("s_waitcnt vmcnt(0)")
        for h in range(2):
            A(f"ds_read_b128 {vr(raw(2*n+h))}, v{AD+2*n+h}")

    def post(f):
        out = []
        if f[0] == "z":
            for mt in range(4):
                for i in range(4):
                    r = DEN + 8 * mt + 4 * f[1] + i
                    out.append(f"v_add_f32 v{r}, {f32(1e-6)}, v{r}")
            for mt in range(4):
                for i in range(4):
                    r = DEN + 8 * mt + 4 * f[1] + i
                    out.append(f"v_rcp_f32 v{r}, v{r}")
            return out
        Tt = f[1]
        lo, hi = (4 * Tt) // 5, (4 * Tt + 3) // 5
        sl = {}
        for mt in range(4):
            if lo == hi:
                sl[mt] = DEN + 8 * mt + lo
            else:
                thr = 5 * hi - 4 * Tt
                sl[mt] = AD + mt
                out.append(f"v_cndmask_b32 v{sl[mt]}, v{DEN+8*mt+lo}, v{DEN+8*mt+hi}, s[{sM+2*(thr-1)}:{sM+2*(thr-1)+1}]")
        for mt in range(4):
            d = dst(f, mt)
            for i in range(4):
                out.append(f"v_mul_f32 v{d+i}, v{d+i}, v{sl[mt]}")
        for mt in range(4):
            d = dst(f, mt)
            ob = O(Tt // 2, mt) + 2 * (Tt % 2)
            out.append(f"v_cvt_pk_bf16_f32 v{ob}, v{d}, v{d+1}")
            out.append(f"v_cvt_pk_bf16_f32 v{ob+1}, v{d+2}, v{d+3}")
        return out
    rd(0)
    rd(1)
    pend = []
    nxt = []
    for n in range(26):
        if n + 2 < 24:
            rd(n + 2)
        cv = []
        if n < 24:
            A(f"s_waitcnt lgkmcnt({2*min(2, 23-n)})")
            for h in range(2):
                cv.append(f"v_cvt_pk_bf16_f32 v{fr(n)+2*h}, v{raw(2*n+h)}, v{raw(2*n+h)+1}")
                cv.append(f"v_cvt_pk_bf16_f32 v{fr(n)+2*h+1}, v{raw(2*n+h)+2}, v{raw(2*n+h)+3}")
        mf = []
        if 1 <= n <= 24:
            f = frs[n - 1]
            if f[3] and f[0] == "n":
                need = [x for x in pend if x[0] <= f[1] - 2]
                for x in need:
                    A(x[1])
                pend = [x for x in pend if x[0] > f[1] - 2]
            for mt in range(4):
                d = vr(dst(f, mt))
                mf.append(f"v_mfma_f32_16x16x32_bf16 {d}, {vr(fr(n-1))}, {vr(PQ(mt, f[2]))}, {0 if f[3] else d}")
        take = pend[:14]
        pend = pend[14:]
        work = cv + [x[1] for x in take]
        for g in (interleave(mf, work) if mf else work):
            A(g)
        pend += nxt
        nxt = []
        if 1 <= n <= 24 and frs[n - 1][4]:
            f = frs[n - 1]
            nxt = [((f[1] if f[0] == "n" else 5 * f[1] - 0.5), x) for x in post(f)]
    for x in pend + nxt:
        A(x[1])
    stamp(A, 11, 1, vt=vT0)
    A(f"s_setprio {OPT['APRIO2']}")
    WF = 192
    A(f"v_add_u32 v{vT0}, s4, v{vL16}")
    A.fence()

    def rd_wo(u):
        for nt in range(5):
            A(f"ds_read_b128 {vr(WF+20*(u%2)+4*nt)}, v{vT0} offset:{(u*5+nt)*1024}")
    E = Asm()
    red_setup(E, vSigA, vSigV)
    rs = [t for _, t in E.lines]
    rd_wo(0)
    for u in range(5):
        if u + 1 < 5:
            rd_wo(u + 1)
        A(f"s_waitcnt lgkmcnt({5 if u < 4 else 0})")
        if u == 0:
            A(f"v_mov_b32 v{vT1}, 1")
            A(f"ds_write_b32 v{vT2}, v{vT1} offset:16")
        mf = []
        for nt in range(5):
            for mt in range(4):
                d = vr(acc(nt, mt))
                mf.append(f"v_mfma_f32_16x16x32_bf16 {d}, {vr(WF+20*(u%2)+4*nt)}, {vr(O(u, mt))}, {d if u else 0}")
        k = (len(rs) + 3) // 4
        for g in interleave(mf, rs[u*k:(u+1)*k]):
            A(g)
    stamp(A, 1, 1, vt=vSigA)
    A.fence()
    for t in range(20):
        A(f"ds_write_b128 v{vT0}, {vr(ACC+4*t)} offset:{5120+t*1024}")
    A("s_branch L2_reduce")

    A.label("L2_ffn")
    q = []

    def ldW(j):
        for g in ldW_groups(j):
            A(g)
        q.extend([("W", j)] * 5)

    def ldH1(j, mt):
        if j == NK - 1 and mt == 0:
            A(f"s_add_u32 s{sHo}, s{sHo}, s{sLast}")
        A(f"buffer_load_dwordx4 {vr(HQ[4*(j%HD)+mt])}, v{vL16}, {srd(S_WS)}, s{sHo} offen offset:{mt*1024}{HSC}")
        if mt == 3:
            A(f"s_add_u32 s{sHo}, s{sHo}, 4096")
            A(f"s_cmp_eq_u32 s{sHo}, s{sHe}")
            A(f"s_cselect_b32 s{sHo}, s{sHb}, s{sHo}")
        q.append(("H", j, mt))

    def ldH(j):
        for mt in range(4):
            ldH1(j, mt)
    signal(0)
    A(f"s_cmp_lg_u32 s{sWoDone}, 0")
    A("s_cbranch_scc1 L2_ws")
    ffn_setup(A)
    A.label("L2_ws")
    A(f"s_sub_u32 s10, s{sWave}, 4")
    A("s_lshl_b32 s10, s10, 1")
    A("s_lshl_b32 s10, 7, s10")
    A(f"v_mov_b32 v{vT1}, 0")
    A(f"s_cmp_gt_u32 s{sWoDone}, 1")
    A("s_cbranch_scc1 L2_w0")
    ldW(0)
    ldW(1)
    A.label("L2_w0")
    assert OPT["NPRE"] == 2
    for j in range(2, WD):
        if j == OPT["EPOLL"]:
            A(f"buffer_load_dword v{vT2}, v{vT1}, {srd(S_WS)}, s{sFl} offen sc1")
        ldW(j)
    if OPT["EPOLL"]:
        A(f"s_waitcnt vmcnt({5*(WD-OPT['EPOLL'])})")
        A(f"v_readfirstlane_b32 s{sTmp3}, v{vT2}")
        A(f"s_and_b32 s{sTmp3}, s{sTmp3}, s10")
        A(f"s_cmp_eq_u32 s{sTmp3}, s10")
        A(f"s_cbranch_scc1 L2_h_ok")
    stamp(A, 4, 1, wave=4, vt=vT0)
    poll_flag(A, "L2_h", sFl, "s10", "s10", vT0)
    stamp(A, 5, 1, wave=4, vt=vT0)
    stamp(A, 14, 1, wave=4, vt=vT0, clk=True)
    q.clear()
    for j in range(HD):
        ldH(j)
    A(f"s_setprio {OPT['FPRIO']}")
    for j in range(NK):
        for mt in range(4):
            last = max(i for i, e in enumerate(q) if e[1] == j and (e[0] == "W" or e[2] <= mt))
            A(f"s_waitcnt vmcnt({len(q)-1-last})")
            for nt in range(5):
                d = vr(AQ[nt*4+mt])
                if not OPT["NOMF"]: A(f"v_mfma_f32_16x16x32_bf16 {d}, {vr(WQ[5*(j%WD)+nt])}, {vr(HQ[4*(j%HD)+mt])}, {d if j else 0}")
            if j + HD < NK:
                ldH1(j + HD, mt)
        if j + WD < NK:
            ldW(j + WD)
    A("s_setprio 0")
    stamp(A, 6, 1, wave=4, vt=vT0)
    stamp(A, 15, 1, wave=4, vt=vT0, clk=True)
    A("s_waitcnt vmcnt(0)")
    red_setup(A, vSigA, vSigV)
    A(f"s_sub_u32 s3, s{sWave}, 4")
    A("s_mul_i32 s8, s3, 14336")
    A("s_cmp_ge_u32 s3, 2")
    A(f"s_cselect_b32 s9, {135168 - 2*14336}, 0")
    A("s_add_u32 s8, s8, s9")
    A(f"v_add_u32 v{vT0}, s8, v{vL16}")
    A("s_add_u32 s9, s8, 13456")
    A(f"v_mov_b32 v{vT2}, s9")
    A(f"s_mov_b32 s{sSpin}, 0")
    A.label("L2_wfree")
    A(f"ds_read_b32 v{vT1}, v{vT2}")
    A("s_waitcnt lgkmcnt(0)")
    A(f"v_readfirstlane_b32 s9, v{vT1}")
    A(f"s_add_u32 s{sSpin}, s{sSpin}, 1")
    A("s_cmp_eq_u32 s9, 1")
    A("s_cbranch_scc1 L2_wfree_ok")
    A(f"s_cmp_gt_u32 s{sSpin}, {SPIN_MAX*16}")
    A("s_cbranch_scc1 L2_wfree_ok")
    A("s_sleep 2")
    A("s_branch L2_wfree")
    A.label("L2_wfree_ok")
    A("s_mul_i32 s8, s3, 25600")
    A(f"s_add_u32 s8, s8, {WO_LDS}")
    A(f"v_add_u32 v{vT1}, s8, v{vL16}")
    A("s_lshl_b32 s8, s3, 10")
    A(f"v_add_u32 v{vT2}, s8, v{vL16}")
    for t in range(20):
        if t < 14:
            A(f"ds_write_b128 v{vT0}, {vr(AQ[t])} offset:{t*1024}")
        elif t < 19:
            A(f"ds_write_b128 v{vT1}, {vr(AQ[t])} offset:{(t-14)*1024}")
        else:
            A(f"ds_write_b128 v{vT2}, {vr(AQ[t])} offset:28672")

    A.label("L2_reduce")
    A("s_setprio 0")
    A("s_waitcnt lgkmcnt(0)")
    stamp(A, 12, 1, vt=vSigA)
    A("s_barrier")
    stamp(A, 13, 1, vt=vSigA)
    R = lambda j: 8 + 32 * j

    def rds(j):
        A(f"v_add_u32 v{vT0}, {2*25600}, v{RA+5*j}")
        for w in range(4):
            A(f"ds_read_b128 {vr(R(j)+4*w)}, v{RA+5*j if w < 2 else vT0} offset:{(w%2)*25600}")
        for f in range(4):
            A(f"ds_read_b128 {vr(R(j)+16+4*f)}, v{RA+5*j+1+f}")

    def fin(j):
        r = R(j)
        for st in (16, 8, 4):
            for i in range(0, st, 2):
                pk_mul(A, r + i, ("p", r + i), ("p", r + st + i), op="add")
        x0, x1 = XR + 2 * j, XR + 2 * j + 1
        A(f"v_lshlrev_b32 v{r+4}, 16, v{x0}")
        A(f"v_and_b32 v{r+5}, 0xffff0000, v{x0}")
        A(f"v_lshlrev_b32 v{r+6}, 16, v{x1}")
        A(f"v_and_b32 v{r+7}, 0xffff0000, v{x1}")
        for i in range(0, 4, 2):
            pk_mul(A, r + i, ("p", r + i), ("p", r + 4 + i), op="add")
        A(f"v_cvt_pk_bf16_f32 v{x0}, v{r}, v{r+1}")
        A(f"v_cvt_pk_bf16_f32 v{x1}, v{r+2}, v{r+3}")
        A(f"buffer_store_dwordx2 {vr(x0, 2)}, v{OA+j}, {srd(S_OUT)}, 0 offen" + ["", " sc1", " nt"][OPT["OUTSC"]])
    rds(0)
    rds(1)
    A("s_waitcnt vmcnt(0) lgkmcnt(8)")
    fin(0)
    A(f"s_cmp_ge_u32 s{sWave}, 4")
    A("s_cbranch_scc1 L2_last")
    rds(2)
    A("s_waitcnt lgkmcnt(0)")
    fin(2)
    A.label("L2_last")
    A("s_waitcnt lgkmcnt(0)")
    fin(1)
    A.label("L2_done")
    stamp(A, 2, 1, vt=vSigA)


def descriptor(name, vgpr=256):
    return f""".amdhsa_kernel {name}
  .amdhsa_next_free_vgpr {vgpr}
  .amdhsa_next_free_sgpr 102
  .amdhsa_accum_offset {vgpr}
  .amdhsa_group_segment_fixed_size 0
  .amdhsa_kernarg_size 80
  .amdhsa_user_sgpr_count 2
  .amdhsa_user_sgpr_kernarg_segment_ptr 1
  .amdhsa_system_sgpr_workgroup_id_x 1
.end_amdhsa_kernel
"""


def main():
    A = Asm()
    kernel1(A)
    K = NAME + "_kernel"
    head = f"""; LN + linear attention + GEGLU FFN, one persistent launch (generated by dev/gen.py)
; @launch grid=(256,1,1) block=(512,1,1) lds={LDS_TOTAL}
.amdgcn_target "amdgcn-amd-amdhsa--gfx950"
.text
.globl {K}
.type {K},@function
"""
    tail = '.section .rodata,"a"\n.p2align 6\n' + descriptor(K)
    open(sys.argv[1], "w").write(head + A.render() + tail)


main()
```

```python
import sys, struct, math
from asmlib import Asm, interleave

NAME = "parallel_sum__linear_attn_block__geglu_ffn__prompt"

OPT = dict(ROTQ=1, STAMP=0, NODMA=0, SAME=0, NOSWZ=0, NORD=0, P2ROT=1, WARM=1, PLAIN=0, BYTEFLAG=0, NBUP=6, SW=0, P2ONLY=0, P2SAME=0, NOATT=0, NOMF=0, FPRIO=1, NPRE=2, CGPERM=1, OUTSC=0, CODEWARM=2, TLBWARM=0, PUBST=0, GPK=1, APRIO=2, APRIO2=0, FINEH=1, XMAP=0, FAKE16=0, PSLEEP=2, EPOLL=0, PROBE=0)
for a in sys.argv[2:]:
    k, v = a.split("=")
    OPT[k] = int(v)

HSC = '' if OPT['PLAIN'] else ' sc1'
WS_H = 0x000000
WS_PQ = 0x700000
WS_W2 = 0xA00000
WS_ST = 0xD00000
WS_CS = 0xD10000
WS_KVA = 0xD80000
WS_FL = 0xD90000
FL_HC = 0
FL_KV = 16 * 256
WS_STAMP = 0xF00000
WS_SIZE = 0x1000000
OOB = 0x40000000


def f32(x):
    return "0x%08x" % struct.unpack("<I", struct.pack("<f", x))[0]


LOG2E = 1.4426950408889634
GC1 = -2.0 * math.sqrt(2.0 / math.pi) * LOG2E
GC2 = GC1 * 0.044715

P_X, P_WQKV, P_WO, P_BX, P_G, P_U, P_D, P_OUT, P_DBG, P_WS = 16, 18, 20, 22, 24, 26, 28, 30, 32, 34
S_X, S_W, S_WS, S_DBG, S_T = 36, 40, 44, 48, 52


def srd(b):
    return f"s[{b}:{b+3}]"


def vr(b, n=4):
    return f"v[{b}:{b+n-1}]"


def mk_srd(A, s, p, nbytes):
    A(f"s_mov_b32 s{s}, s{p}")
    A(f"s_and_b32 s{s+1}, s{p+1}, 0xffff")
    A(f"s_mov_b32 s{s+2}, {nbytes}")
    A(f"s_mov_b32 s{s+3}, 0x20000")


def load_ptrs(A):
    A("s_load_dwordx16 s[16:31], s[0:1], 0")
    A("s_load_dwordx4 s[32:35], s[0:1], 64")


def wave_allreduce_add(A, v, t, s0):
    A(f"v_add_f32_dpp v{v}, v{v}, v{v} quad_perm:[1,0,3,2] row_mask:0xf bank_mask:0xf")
    A(f"v_add_f32_dpp v{v}, v{v}, v{v} quad_perm:[2,3,0,1] row_mask:0xf bank_mask:0xf")
    A(f"v_add_f32_dpp v{v}, v{v}, v{v} row_half_mirror row_mask:0xf bank_mask:0xf")
    A(f"v_add_f32_dpp v{v}, v{v}, v{v} row_mirror row_mask:0xf bank_mask:0xf")
    for i in range(4):
        A(f"v_readlane_b32 s{s0+i}, v{v}, {16*i}")
    A(f"v_mov_b32 v{v}, s{s0}")
    A(f"v_mov_b32 v{t}, s{s0+2}")
    A(f"v_add_f32 v{v}, s{s0+1}, v{v}")
    A(f"v_add_f32 v{t}, s{s0+3}, v{t}")
    A(f"v_add_f32 v{v}, v{v}, v{t}")


def lstamp(A, k):
    if OPT["STAMP"] != 4:
        return
    A("s_memrealtime s[96:97]")
    A("s_waitcnt lgkmcnt(0)")
    A(f"v_writelane_b32 v28, s96, {k}")


def stamp(A, idx, kern, dyn=None, clk=False, wave=0, vt=None):
    if vt is None:
        vt = (26 if idx != 3 else 50) if kern == 0 else 254
    if not OPT["STAMP"]:
        return
    if OPT["STAMP"] == 9:
        slot = {(0, 0): (1, True), (0, 1): (2, False), (0, 2): (3, False), (0, 3): (5, False), (1, 0): (6, False), (1, 5): (7, False),
                (1, 3): (9, False), (1, 1): (10, False), (1, 2): (11, False), (1, 6): (13, False)}.get((kern, idx))
        if slot is None or clk:
            return
        lab = f"L_st_{kern}_{idx}_{len(A.lines)}"
        A(f"s_cmp_lg_u32 s{sWave}, {wave}")
        A(f"s_cbranch_scc1 {lab}")
        A("s_memrealtime s[96:97]")
        A("s_waitcnt lgkmcnt(0)")
        if slot[1]:
            A("s_not_b32 s96, s96")
        A(f"v_mov_b32 v{vt}, s96")
        A(f"v_mov_b32 v{vt+1}, {OOB}")
        A(f"v_writelane_b32 v{vt+1}, {slot[0]*4}, 0")
        A(f"buffer_atomic_umax v{vt}, v{vt+1}, {srd(S_DBG)}, 0 offen sc1")
        A.label(lab)
        return
    lab = f"L_st_{kern}_{idx}_{len(A.lines)}"
    A(f"s_cmp_lg_u32 s{sWave}, {wave}")
    A(f"s_cbranch_scc1 {lab}")
    A("s_memtime s[96:97]" if clk else "s_memrealtime s[96:97]")
    A("s_waitcnt lgkmcnt(0)")
    A(f"s_lshl_b32 s98, s2, 6")
    A(f"s_add_u32 s98, s98, {WS_STAMP + kern*0x8000 + idx*4}")
    if dyn is not None:
        A(f"s_lshl_b32 s99, s{dyn}, 2")
        A("s_add_u32 s98, s98, s99")
    A(f"v_mov_b32 v{vt}, s96")
    A(f"v_mov_b32 v{vt+1}, 0")
    A(f"buffer_store_dword v{vt}, v{vt+1}, {srd(S_WS)}, s98 offen")
    A.label(lab)


sWave, sRB, sCG, sIt, sKW, sKWn, sKX, sKXn, sWslot, sRslot, sXslot, sStepW, sCSit, sSpec, sTmp, sTmp2, sMW, sNW, sWrapW, sTmp3, sC0, sRow, sSpin, sOdd, sPub, sUw, sUl = range(56, 83)
X_LDS = 0
W_LDS = 32768
W_SLOT = 24576
MISC_LDS = W_LDS + 5 * W_SLOT
LDS_TOTAL = 163840

vLane, vT0, vT1, vT2, vT3 = 1, 2, 3, 4, 5
vSigA, vSigV = 6, 7
vXo = 6
vWo = 8
vXa = 11
vWb = 15
vWa = 20
vPa = 25
SPIN_MAX = 0x100000
vSel = 52
vPoll = 30
vCSA = 32
vCSP = 32
vSt = 31
KST = lambda j: (44 + 4 * j) if j < 3 else (232 + 4 * (j - 3))
vBUF = 56
vACC = 152


KVT = [[(0, 0), (0, 1), (0, 2), (1, 0), (1, 1)], [(0, 3), (0, 4), (1, 2), (1, 3), (1, 4)]]


def k1_gemm(A, typ):
    G = typ == "G"
    MT = 2 if G else 1
    NT = 3 if G else 5
    NW_ = 6 if G else 5
    pitch = 3456 if G else 3840
    XB = lambda P, mt, kk: vBUF + 48 * P + 4 * (mt * 2 + kk)
    WBf = lambda P, a, kk: vBUF + 48 * P + 4 * MT * 2 + 4 * (a * 2 + kk)
    acc = lambda mt, a: vACC + 16 * (mt * NT + a)
    L = lambda s: f"L_{typ}_{s}"

    if G:
        A(f"s_lshr_b32 s{sMW}, s{sWave}, 2")
        A(f"s_and_b32 s{sNW}, s{sWave}, 3")
        mk_srd(A, S_W, P_G, 640 * 3456)
        mk_srd(A, S_T, P_U, 640 * 3456)
    else:
        A(f"s_lshr_b32 s{sMW}, s{sWave}, 1")
        A(f"s_and_b32 s{sNW}, s{sWave}, 1")
        mk_srd(A, S_W, P_WQKV, 640 * 3840)
    A(f"s_and_b32 s{sTmp2}, s{sWave}, 3")
    A(f"v_lshrrev_b32 v{vT0}, 3, v{vLane}")
    A(f"s_lshl_b32 s{sTmp3}, s{sTmp2}, 3")
    A(f"v_add_u32 v{vT0}, s{sTmp3}, v{vT0}")
    A(f"v_mul_u32_u24 v{vT0}, {pitch}, v{vT0}")
    A(f"v_and_b32 v{vT1}, 7, v{vLane}")
    A(f"v_lshrrev_b32 v{vT2}, 2, v{vLane}")
    A(f"v_and_b32 v{vT2}, 4, v{vT2}")
    A(f"v_xor_b32 v{vT1}, v{vT1}, v{vT2}")
    if G:
        A(f"s_mul_i32 s{sTmp3}, s{sCG}, {0 if OPT['SAME'] else 384}")
        A(f"v_add_u32 v{vT0}, s{sTmp3}, v{vT0}")
        A(f"v_lshl_add_u32 v{vWo}, v{vT1}, 4, v{vT0}")
        A(f"v_xor_b32 v{vT1}, 2, v{vT1}")
        A(f"v_lshl_add_u32 v{vWo+1}, v{vT1}, 4, v{vT0}")
        chunks = [(S_W, vWo, 0), (S_W, vWo, 128), (S_W, vWo, 256), (S_T, vWo + 1, 0), (S_T, vWo + 1, 128), (S_T, vWo + 1, 256)]
    elif typ == "Q":
        A(f"s_sub_u32 s{sTmp3}, s{sCG}, 13")
        A(f"s_mul_i32 s{sTmp3}, s{sTmp3}, 640")
        A(f"v_add_u32 v{vT0}, s{sTmp3}, v{vT0}")
        A(f"v_lshl_add_u32 v{vWo}, v{vT1}, 4, v{vT0}")
        chunks = [(S_W, vWo, 128 * i) for i in range(5)]
    else:
        A(f"s_sub_u32 s4, s{sCG}, 9")
        A(f"s_and_b32 s{sOdd}, s4, 1")
        A(f"s_mul_i32 s6, s4, 320")
        A(f"s_add_u32 s6, s6, 1280")
        A(f"s_lshl_b32 s7, s{sOdd}, 6")
        A(f"s_add_u32 s7, s7, s6")
        A(f"s_cmp_eq_u32 s{sOdd}, 0")
        A(f"s_cselect_b32 s8, 256, 0")
        A(f"s_add_u32 s8, s8, s6")
        A(f"v_lshl_add_u32 v{vT2}, v{vT1}, 4, v{vT0}")
        A(f"v_add_u32 v{vWo}, s7, v{vT2}")
        A(f"v_xor_b32 v{vT3}, 2, v{vT1}")
        A(f"v_lshl_add_u32 v{vT2}, v{vT3}, 4, v{vT0}")
        A(f"v_add_u32 v{vWo+2}, s7, v{vT2}")
        A(f"v_lshrrev_b32 v{vT2}, 2, v{vT1}")
        A(f"v_lshlrev_b32 v{vT3}, 1, v{vT2}")
        A(f"v_xor_b32 v{vT3}, v{vT3}, v{vT1}")
        A(f"v_and_b32 v{vT3}, 3, v{vT3}")
        A(f"v_lshl_add_u32 v{vT3}, v{vT3}, 4, v{vT0}")
        A(f"v_mul_u32_u24 v{vT2}, 1280, v{vT2}")
        A(f"v_add3_u32 v{vWo+1}, v{vT3}, v{vT2}, s8")
        chunks = [(S_W, vWo, 0), (S_W, vWo, 128), (S_W, vWo + 2, 1280), (S_W, vWo + 2, 1408), (S_W, vWo + 1, 0)]
    A(f"s_lshr_b32 s{sTmp}, s{sWave}, 2")
    A(f"s_lshl_b32 s{sTmp2}, s{sTmp2}, 10")
    A(f"s_add_u32 s{sWrapW}, s{sTmp2}, {W_LDS + 5*W_SLOT}")
    A(f"s_mul_i32 s{sWslot}, s{sTmp}, {W_SLOT}")
    A(f"s_add_u32 s{sWslot}, s{sWslot}, s{sTmp2}")
    A(f"s_add_u32 s{sWslot}, s{sWslot}, {W_LDS}")
    A(f"s_mul_i32 s{sKW}, s{sC0}, {64*pitch}")
    A(f"s_mul_i32 s{sTmp}, s{sTmp}, {32*pitch}")
    A(f"s_add_u32 s{sKW}, s{sKW}, s{sTmp}")
    A(f"s_mov_b32 s{sKWn}, 0")

    def dmaW():
        out = []
        for i, (sr, vo, imm) in enumerate(chunks):
            out.append(f"s_add_u32 m0, s{sWslot}, {i*4096 - imm}\n" +
                       "s_nop 0\n" +
                       f"buffer_load_dwordx4 v{vo}, {srd(sr)}, s{sKW} offen offset:{imm} lds")
        out.append(f"s_add_u32 s{sWslot}, s{sWslot}, {2*W_SLOT}\n"
                   f"s_cmp_ge_u32 s{sWslot}, s{sWrapW}\n"
                   f"s_cselect_b32 s{sTmp}, {5*W_SLOT}, 0\n"
                   f"s_sub_u32 s{sWslot}, s{sWslot}, s{sTmp}\n"
                   f"s_add_u32 s{sKW}, s{sKW}, {64*pitch}\n"
                   f"s_cmp_ge_u32 s{sKW}, {640*pitch}\n"
                   f"s_cselect_b32 s{sTmp}, {640*pitch}, 0\n"
                   f"s_sub_u32 s{sKW}, s{sKW}, s{sTmp}")
        return out

    def dmaX():
        out = []
        for i in range(4):
            out.append(f"s_add_u32 m0, s{sXslot}, {i*1024}\n" +
                       f"s_add_u32 s{sTmp}, s{sKX}, {16*1280}\n" +
                       f"buffer_load_dwordx4 v{vXo+i%2}, {srd(S_X)}, s{sKX if i < 2 else sTmp} offen lds")
        out.append(f"s_xor_b32 s{sXslot}, s{sXslot}, 16384\n"
                   f"s_add_u32 s{sKX}, s{sKX}, 128\n"
                   f"s_cmp_eq_u32 s{sKX}, 1280\n"
                   f"s_cselect_b32 s{sKX}, 0, s{sKX}")
        return out

    A(f"s_cmp_lt_u32 s{sWave}, 4")
    A(f"s_cbranch_scc1 {L('p1')}")
    for g in dmaX():
        A(g)
    A(f"s_branch {L('p2')}")
    A.label(L("p1"))
    for g in dmaW():
        A(g)
    A.label(L("p2"))
    lstamp(A, 16)

    if OPT["STAMP"] == 3:
        stamp(A, 4, 0, wave=OPT["SW"])
    A(f"v_and_b32 v{vT0}, 31, v{vLane}")
    A(f"v_lshrrev_b32 v{vT1}, 5, v{vLane}")
    A(f"v_bfe_u32 v{vT2}, v{vLane}, 1, 3")
    A(f"v_xor_b32 v{vT1}, v{vT1}, v{vT2}")
    A(f"s_lshl_b32 s{sTmp}, s{sMW}, {13 if G else 12}")
    A(f"v_lshl_add_u32 v{vT0}, v{vT0}, 7, s{sTmp}")
    for kap in range(2):
        for kk in range(2):
            A(f"v_xor_b32 v{vT2}, {4*kap+2*kk}, v{vT1}")
            A(f"v_lshl_add_u32 v{vXa+2*kap+kk}, v{vT2}, 4, v{vT0}")
    A(f"v_lshrrev_b32 v{vT0}, 5, v{vLane}")
    A(f"v_lshlrev_b32 v{vT0}, 10, v{vT0}")
    A(f"v_bfe_u32 v{vT1}, v{vLane}, 2, 2")
    A(f"v_lshl_add_u32 v{vT0}, v{vT1}, 7, v{vT0}")
    A(f"v_and_b32 v{vT2}, 3, v{vLane}")
    if typ != "K":
        A(f"v_lshlrev_b32 v{vT3}, 1, v{vT2}")
        A(f"v_lshrrev_b32 v{vT2}, 1, v{vT2}")
        A(f"v_and_b32 v{vT3}, 2, v{vT3}")
        A(f"v_or_b32 v{vT2}, v{vT2}, v{vT3}")
    A(f"v_lshl_add_u32 v{vT0}, v{vT2}, 3, v{vT0}")
    A(f"v_and_b32 v{vT1}, 2, v{vT1}")
    A(f"v_bfe_u32 v{vT2}, v{vLane}, 4, 1")
    A(f"v_xor_b32 v{vT1}, v{vT1}, v{vT2}")
    if G:
        A(f"v_mul_u32_u24 v{vT2}, {3*4096}, v{vT2}")
        A(f"v_add_u32 v{vT0}, v{vT0}, v{vT2}")
        for a in range(3):
            A(f"s_mul_i32 s{sTmp}, s{sNW}, 3")
            A(f"s_add_u32 s{sTmp}, s{sTmp}, {a}")
            A(f"s_lshr_b32 s{sTmp2}, s{sTmp}, 2")
            A(f"s_lshl_b32 s{sTmp2}, s{sTmp2}, 12")
            A(f"s_and_b32 s{sTmp}, s{sTmp}, 3")
            A(f"v_xor_b32 v{vT2}, s{sTmp}, v{vT1}")
            A(f"v_lshl_add_u32 v{vT2}, v{vT2}, 5, v{vT0}")
            A(f"v_add_u32 v{vWb+a}, s{sTmp2}, v{vT2}")
    else:
        for a in range(5):
            if typ == "Q":
                A(f"s_mul_i32 s{sTmp}, s{sNW}, 5")
                A(f"s_add_u32 s{sTmp}, s{sTmp}, {a}")
                A(f"s_lshr_b32 s{sTmp2}, s{sTmp}, 1")
                A(f"s_lshl_b32 s{sTmp2}, s{sTmp2}, 12")
                A(f"s_and_b32 s{sTmp}, s{sTmp}, 1")
                A(f"s_lshl_b32 s{sTmp}, s{sTmp}, 1")
                A(f"v_xor_b32 v{vT2}, s{sTmp}, v{vT1}")
                A(f"v_lshl_add_u32 v{vT2}, v{vT2}, 5, v{vT0}")
                A(f"v_add_u32 v{vWb+a}, s{sTmp2}, v{vT2}")
            else:
                def loc(pi, nw, odd):
                    m, p = pi // 5, 5 * nw + pi % 5
                    if odd:
                        L_, tau = (4, p + 2 * m) if p < 2 else (2 * m + ((p - 2) >> 2), (p - 2) & 3)
                    else:
                        L_, tau = (4, p - 8 + 2 * m) if p >= 8 else (2 * m + (p >> 2), p & 3)
                    return L_ * 4 + (tau ^ m)
                if a == 0:
                    A(f"s_lshl_b32 s9, s{sNW}, 1")
                    A(f"s_add_u32 s9, s9, s{sOdd}")
                    A("s_lshl_b32 s9, s9, 3")
                    A(f"v_bfe_u32 v{vT2}, v{vLane}, 4, 1")
                    A(f"v_cmp_eq_u32 vcc, 1, v{vT2}")
                    A(f"v_and_b32 v{vT1}, 2, v{vT1}")
                for sub, sr in ((0, sTmp), (1, sTmp2)):
                    tab = sum(loc(2 * a + sub, nw, odd) << (8 * (2 * nw + odd)) for nw in range(2) for odd in range(2))
                    A(f"s_lshr_b32 s{sr}, {tab}, s9")
                    A(f"s_and_b32 s{sr}, s{sr}, 0xff")
                A(f"v_mov_b32 v{vT2}, s{sTmp}")
                A(f"v_mov_b32 v{vT3}, s{sTmp2}")
                A(f"v_cndmask_b32 v{vT2}, v{vT2}, v{vT3}, vcc")
                A(f"v_lshrrev_b32 v{vT3}, 2, v{vT2}")
                A(f"v_lshl_add_u32 v{vT3}, v{vT3}, 12, v{vT0}")
                A(f"v_and_b32 v{vT2}, 3, v{vT2}")
                A(f"v_xor_b32 v{vT2}, v{vT2}, v{vT1}")
                A(f"v_lshl_add_u32 v{vWb+a}, v{vT2}, 5, v{vT3}")
        if typ == "K":
            kv_addr_setup(A)
    A(f"s_mov_b32 s{sRslot}, {W_LDS}")
    poll_addr(A)
    A(f"v_and_b32 v{vT0}, 15, v{vLane}")
    A(f"v_bfe_u32 v{vT1}, v{vLane}, 4, 1")
    A(f"v_cmp_eq_u32 vcc, v{vT0}, v{vT1}")
    A(f"v_mov_b32 v{vT2}, 0x3f803f80")
    A(f"v_cndmask_b32 v{vSel}, 0, v{vT2}, vcc")
    for i in range(1, 4):
        A(f"v_mov_b32 v{vSel+i}, v{vSel}")
    for i in range(4 * NT):
        A(f"v_mov_b32 v{vCSA+i}, 0")
    for i in range(16 * MT * NT):
        A(f"v_mov_b32 v{vACC+i}, 0")
    A(f"s_sub_u32 s{sCSit}, s{sRB}, s{sC0}")
    A(f"s_add_u32 s{sTmp}, s{sCSit}, 2")
    A(f"s_cmp_lt_u32 s{sRB}, 10")
    A(f"s_mov_b32 s{sPub}, 2")
    if OPT["PUBST"]:
        A(f"s_bfe_u32 s{sPub}, s2, 0x10003")
        A(f"s_add_u32 s{sPub}, s{sPub}, 2")
        A(f"s_cmp_lt_u32 s{sRB}, 10")
    A(f"s_cselect_b32 s{sCSit}, s{sCSit}, 99")
    A(f"s_cmp_eq_u32 s{sMW}, 0")
    A(f"s_cselect_b32 s{sCSit}, s{sCSit}, 99")
    A(f"s_lshl_b32 s{sTmp}, 3, s{sPub}")
    A(f"s_cmp_eq_u32 s{sWave}, 0")
    A(f"s_cselect_b32 s{sSpec}, s{sTmp}, 0")
    A(f"s_cmp_eq_u32 s{sWave}, 3")
    A(f"s_cselect_b32 s{sTmp}, 0xc0, 0")
    A(f"s_or_b32 s{sSpec}, s{sSpec}, s{sTmp}")
    A(f"s_or_b32 s{sSpec}, s{sSpec}, 0x300")
    A(f"s_mov_b32 s{sIt}, 0")
    A(f"s_mov_b32 s{sSpin}, 0")

    def reads(P, kap):
        pre = [f"v_add_u32 v{vWa+a}, s{sRslot}, v{vWb+a}" for a in range(NT)]
        post = [f"s_add_u32 s{sRslot}, s{sRslot}, {W_SLOT}\n"
                f"s_cmp_eq_u32 s{sRslot}, {W_LDS+5*W_SLOT}\n"
                f"s_cselect_b32 s{sRslot}, {W_LDS}, s{sRslot}"]
        out = []
        for kk in range(2):
            for mt in range(MT):
                out.append(f"ds_read_b128 {vr(XB(P, mt, kk))}, v{vXa+2*kap+kk} offset:{mt*4096}")
            for a in range(NT):
                for rho in range(2):
                    out.append(f"ds_read_b64_tr_b16 {vr(WBf(P, a, kk)+2*rho, 2)}, v{vWa+a} offset:{kk*2048+rho*512}")
        if OPT["NORD"]:
            out = []
        return pre, out, post

    def mfmas(P):
        out = []
        for kk in range(2):
            for a in range(NT):
                for mt in range(MT):
                    x, w, d = vr(XB(P, mt, kk)), vr(WBf(P, a, kk)), vr(acc(mt, a), 16)
                    if OPT["FAKE16"]:
                        for h in range(2):
                            dq = vr(acc(mt, a) + 8 * kk + 4 * h)
                            x2 = vr(XB(P, mt, h))
                            out.append(f"v_mfma_f32_16x16x32_bf16 {dq}, {w}, {x2}, {dq}")
                    elif typ == "K":
                        out.append(f"v_mfma_f32_32x32x16_bf16 {d}, {x}, {w}, {d}")
                    else:
                        out.append(f"v_mfma_f32_32x32x16_bf16 {d}, {w}, {x}, {d}")
        return out

    def cs_mfmas(P):
        return [f"v_mfma_f32_16x16x32_bf16 {vr(vCSA+4*a)}, {vr(WBf(P, a, kk))}, {vr(vSel)}, {vr(vCSA+4*a)}"
                for kk in range(2) for a in range(NT)]

    if OPT["STAMP"] == 3:
        stamp(A, 5, 0, wave=OPT["SW"])
    n = len(mfmas(0))
    f = lambda k: k / n
    nod = OPT["NODMA"]

    def loop(R):
        LL = lambda s: f"L_{typ}{R}_{s}"
        lstamp(A, 17)
        if R == "B":
            for g in dmaW():
                A(g)
        A(f"s_waitcnt vmcnt({NW_ + (4 if R == 'B' else 0)})")
        k1_stats(A, typ)
        lstamp(A, 18)
        A(f"s_waitcnt vmcnt({1 if R == 'A' else NW_ + 1})")
        lstamp(A, 19)
        A("s_barrier")
        pre, rd, post = reads(0, 0)
        for g in pre + rd + post:
            A(g)
        if R == "A":
            A("s_setprio 1")
            stamp(A, 1, 0)
            stamp(A, 14, 0, clk=True)
        else:
            for g in dmaX():
                A(g)
        A("s_waitcnt lgkmcnt(0)")
        lstamp(A, 20)
        for g in mfmas(0):
            A(g)
        if R == "A":
            A(f"s_cmp_lg_u32 s{sCSit}, 0")
            A(f"s_cbranch_scc1 {LL('pc0')}")
            for g in cs_mfmas(0):
                A(g)
            A.label(LL("pc0"))
            for g in dmaW():
                A(g)
            A(f"s_sub_u32 s{sUw}, s{sWave}, 1")
            A(f"s_cmp_gt_u32 s{sUw}, 1")
            A(f"s_cbranch_scc1 {LL('nou')}")
            A(f"s_lshl_b32 s{sU}, s{sCG}, 4")
            A(f"s_add_u32 s{sU}, s{sU}, s{sRB}")
            A(f"s_lshl_b32 s{sU}, s{sU}, 1")
            A(f"s_add_u32 s{sU}, s{sU}, s{sUw}")
            A(f"s_lshl_b32 s{sUl}, s{sUw}, 12")
            A(f"s_add_u32 s{sUl}, s{sUl}, {MISC_LDS}")
            w2_unit_dma(A, f"s{sUl}")
            A.label(LL("nou"))
        else:
            A("s_waitcnt vmcnt(5)")
        lstamp(A, 21)
        A("s_barrier")
        pre, rd, post = reads(1, 1)
        for g in pre + rd + post:
            A(g)
        if R == "B":
            for g in dmaW():
                A(g)
        A("s_waitcnt lgkmcnt(0)")
        lstamp(A, 22)
        for g in mfmas(1):
            A(g)
        if R == "A":
            for g in dmaW():
                A(g)
            A(f"s_cmp_eq_u32 s{sCSit}, 0")
            A(f"s_cbranch_scc1 {LL('cs1')}")
            A(f"s_waitcnt vmcnt({NW_})")
            A.label(LL("pc1"))
            A(f"s_cmp_gt_u32 s{sUw}, 1")
            A(f"s_cbranch_scc1 {LL('pc2')}")
            w2_unit_out(A, f"s{sUl}", (lambda t: (96, 100, 144, 148)[t]) if G else (lambda t: 232 + 4 * t) if typ == 'Q' else (lambda t: vBUF + 4 * t))
            A.label(LL("pc2"))
        else:
            A("s_waitcnt vmcnt(0)")
        lstamp(A, 23)
        A("s_barrier")
        if R == "B":
            for g in dmaX() + dmaW():
                A(g)
        for i in range(4):
            A(f"v_xor_b32 v{vXa+i}, 16384, v{vXa+i}")
        pre, rd, post = reads(0, 0)
        for g in pre + rd + post:
            A(g)
        A(f"s_mov_b32 s{sIt}, 1")
        A("s_waitcnt lgkmcnt(0)")
        lstamp(A, 0)
        A(".p2align 6")
        A.label(LL("loop"))
        pre, rd, post = reads(1, 1)
        for g in interleave(mfmas(0), (pre, 0.0, f(1)), (rd, f(1), 0.7), (post, 0.75, 0.85)):
            A(g)
        if R == "A":
            A(f"s_bitcmp1_b32 s{sSpec}, s{sIt}")
            A(f"s_cbranch_scc1 {LL('spec')}")
            A.label(LL("specr"))
            for g in dmaW():
                A(g)
            A(f"s_waitcnt vmcnt({NW_}) lgkmcnt(0)")
            A.label(LL("bar"))
        else:
            A("s_waitcnt vmcnt(0) lgkmcnt(0)")
        A("s_barrier")
        pre, rd, post = reads(0, 0)
        pre = [f"v_xor_b32 v{vXa+i}, 16384, v{vXa+i}" for i in range(2)] + pre
        post = post + [f"v_xor_b32 v{vXa+i}, 16384, v{vXa+i}" for i in range(2, 4)]
        tail = [f"s_add_u32 s{sIt}, s{sIt}, 1\ns_cmp_lt_u32 s{sIt}, 10"]
        if R == "B":
            dw = dmaW()
            nb = OPT["NBUP"]
            A(f"s_cmp_ge_u32 s{sIt}, 8")
            A(f"s_cbranch_scc1 {LL('nod')}")
            for g in dmaX() + dw[:nb]:
                A(g)
            for g in interleave(mfmas(1), (pre, 0.0, f(1)), (dw[nb:], 0.0, 0.4), (rd, f(1), 0.7), (post, 0.7, 0.8), (tail, f(n-2), f(n-1))):
                A(g)
            A.label(LL("end"))
        else:
            chk1 = tail
            for g in interleave(mfmas(1), (pre, 0.0, f(1)), (rd, f(1), 0.7), (post, 0.7, 0.8), (chk1, f(n-2), f(n-1))):
                A(g)
        if OPT["STAMP"] == 4:
            A("s_memrealtime s[96:97]")
            A(f"s_mov_b32 m0, s{sIt}")
        A("s_waitcnt lgkmcnt(0)")
        if OPT["STAMP"] == 4:
            A("v_writelane_b32 v28, s96, m0")
        A(f"s_cbranch_scc1 {LL('loop')}")
        A(f"s_branch {L('epi')}")

        if R == "B":
            A.label(LL("nod"))
            if True:
                A(f"s_cmp_eq_u32 s{sIt}, 9")
                A(f"s_cbranch_scc1 {LL('nod9')}")
                wo_early(A, 24, 7)
                A(f"s_branch {LL('nod2')}")
                A.label(LL("nod9"))
                wo_early(A, 72, 7)
                A.label(LL("nod2"))
            for g in interleave(mfmas(1), (pre, 0.0, f(1)), (rd, f(1), 0.7), (post, 0.7, 0.8), (tail, f(n-2), f(n-1))):
                A(g)
            A(f"s_branch {LL('end')}")
            return
        A.label(LL("cs1"))
        for g in cs_mfmas(1):
            A(g)
        A(f"v_and_b32 v{vT0}, 15, v{vLane}")
        A(f"v_lshrrev_b32 v{vT1}, 4, v{vLane}")
        A(f"v_lshlrev_b32 v{vT1}, 4, v{vT1}")
        A(f"v_lshl_add_u32 v{vT1}, v{vT0}, 6, v{vT1}")
        A(f"v_cmp_gt_u32 vcc, 2, v{vT0}")
        A(f"v_mov_b32 v{vT2}, {OOB}")
        A(f"v_cndmask_b32 v{vT1}, v{vT2}, v{vT1}, vcc")
        A(f"s_mul_i32 s{sTmp}, s{sCG}, 10")
        A(f"s_add_u32 s{sTmp}, s{sTmp}, s{sRB}")
        A(f"s_mul_i32 s{sTmp}, s{sTmp}, 1536")
        A(f"s_mul_i32 s{sTmp2}, s{sNW}, {NT*128}")
        A(f"s_add_u32 s{sTmp}, s{sTmp}, s{sTmp2}")
        A(f"s_add_u32 s{sTmp}, s{sTmp}, {WS_CS}")
        for a in range(NT):
            A(f"buffer_store_dwordx4 {vr(vCSA+4*a)}, v{vT1}, {srd(S_WS)}, s{sTmp} offen offset:{a*128} sc1")
        A(f"s_waitcnt vmcnt({NW_+NT})")
        A(f"s_branch {LL('pc1')}")

        def with_dma(nops, body):
            for g in dmaW():
                A(g)
            body()
            A(f"s_waitcnt vmcnt({NW_+nops}) lgkmcnt(0)")
            A(f"s_branch {LL('bar')}")
        A.label(LL("spec"))
        A(f"s_cmp_eq_u32 s{sIt}, 9")
        A(f"s_cbranch_scc1 {LL('sum')}")
        A(f"s_cmp_eq_u32 s{sIt}, 8")
        A(f"s_cbranch_scc1 {LL('go')}")
        A(f"s_cmp_eq_u32 s{sIt}, 7")
        A(f"s_cbranch_scc1 {LL('chk')}")
        A(f"s_cmp_eq_u32 s{sIt}, 6")
        A(f"s_cbranch_scc1 {LL('poll0')}")
        A.label(LL("pub"))

        def pub():
            A(f"s_cmp_lg_u32 s{sPub}, s{sIt}")
            A(f"s_cbranch_scc1 {LL('pub2')}")
            k1_publish(A)
            A.label(LL("pub2"))
        with_dma(1, pub)
        A.label(LL("poll0"))
        with_dma(1, lambda: A(f"buffer_load_dword v{vPoll}, v{vPa}, {srd(S_DBG)}, 0 offen sc1"))
        A.label(LL("poll"))
        A("s_sleep 8")
        A(f"buffer_load_dword v{vPoll}, v{vPa}, {srd(S_DBG)}, 0 offen sc1")
        A.label(LL("chk"))
        A("s_waitcnt vmcnt(0)")
        poll_cmp(A)
        A(f"s_add_u32 s{sSpin}, s{sSpin}, 1")
        A(f"s_cmp_gt_u32 s{sSpin}, {SPIN_MAX}")
        A(f"s_cbranch_scc1 {LL('specr')}")
        A(f"s_cmp_lg_u64 vcc, 0")
        A(f"s_cbranch_scc1 {LL('poll')}")
        A(f"s_branch {LL('specr')}")
        A.label(LL("go"))

        def go():
            A(f"v_lshlrev_b32 v{vT0}, 3, v0")
            A(f"v_cmp_gt_u32 vcc, {NT*(4 if G else 2)*16}, v0")
            A(f"v_mov_b32 v{vT2}, {OOB}")
            A(f"v_cndmask_b32 v{vT0}, v{vT2}, v{vT0}, vcc")
            A(f"s_mul_i32 s{sTmp}, s{sCG}, 15360")
            A(f"s_add_u32 s{sTmp}, s{sTmp}, {WS_CS}")
            for ch in range(10):
                if ch % 2 == 0 and ch:
                    A(f"s_add_u32 s{sTmp}, s{sTmp}, 3072")
                A(f"buffer_load_dwordx2 {vr(vCSP+2*ch, 2)}, v{vT0}, {srd(S_WS)}, s{sTmp} offen offset:{(ch%2)*1536} sc1")
            A(f"s_lshl_b32 s{sTmp}, s{sRB}, 10")
            A(f"s_add_u32 s{sTmp}, s{sTmp}, {WS_ST}")
            A(f"v_lshlrev_b32 v{vT1}, 2, v0")
            A(f"buffer_load_dword v{vSt}, v{vT1}, {srd(S_WS)}, s{sTmp} offen sc1")
        go()
        wo_early(A, 0, 6)
        A("s_waitcnt vmcnt(17) lgkmcnt(0)")
        A(f"s_branch {LL('bar')}")
        A.label(LL("sum"))
        A("s_waitcnt vmcnt(6)")
        for ch in range(1, 10):
            A(f"v_add_f32 v{vCSP}, v{vCSP}, v{vCSP+2*ch}")
            A(f"v_add_f32 v{vCSP+1}, v{vCSP+1}, v{vCSP+2*ch+1}")
        A(f"v_lshlrev_b32 v{vT0}, 3, v0")
        A(f"v_add_u32 v{vT0}, {MISC_LDS}, v{vT0}")
        A(f"ds_write_b64 v{vT0}, {vr(vCSP, 2)}")
        A(f"v_lshlrev_b32 v{vT1}, 2, v0")
        A(f"v_add_u32 v{vT1}, {MISC_LDS+2048}, v{vT1}")
        A(f"ds_write_b32 v{vT1}, v{vSt}")
        wo_early(A, 52, 5)
        A("s_waitcnt lgkmcnt(0)")
        A(f"s_branch {LL('bar')}")

    A(f"s_cmp_ge_u32 s{sWave}, 4")
    A(f"s_cbranch_scc1 {L('roleB')}")
    loop("A")
    A.label(L("roleB"))
    loop("B")

    A.label(L("epi"))
    A("s_setprio 0")
    stamp(A, 2, 0)
    stamp(A, 4, 0, wave=4, vt=50)
    stamp(A, 7, 0, wave=4, vt=50, clk=True)
    stamp(A, 15, 0, clk=True)
    if OPT["STAMP"] == 4:
        A(f"v_lshlrev_b32 v29, 2, v0")
        A(f"s_lshl_b32 s98, s2, 11")
        A(f"s_add_u32 s98, s98, {WS_STAMP + 0x10000}")
        A(f"buffer_store_dword v28, v29, {srd(S_WS)}, s98 offen")
    p2_ids(A)
    A.fence()
    if True:
        epi = {"G": k1_epi_g, "Q": k1_epi_q, "K": k1_epi_kv}[typ]
        ffn_setup(A)
        A(f"s_cmp_lt_u32 s{sWave}, 4")
        A(f"s_cselect_b32 s{sWo}, {OOB}, s{sWo}")
        E = Asm()
        epi(E, acc)
        body = [t for _, t in E.lines]
        npre = min(OPT["NPRE"], {"G": 6, "Q": 4, "K": 2}[typ])
        early = [g for j in range(min(4, npre)) for g in ldW_groups(j)]
        late = [g for j in range(4, npre) for g in ldW_groups(j)]
        for g in interleave(body, (early, 0.02, 0.5 if npre > 4 else 0.7), (late, 0.5, 0.8)):
            A(g)
        A(f"s_mov_b32 s{sWoDone}, {npre + 1}")
    stamp(A, 3, 0)
    stamp(A, 5, 0, wave=4, vt=50)
    stamp(A, 8, 0, wave=4, vt=50, clk=True)
    A(f"v_mov_b32 v{vSigA}, {OOB}")
    if typ == "K":
        A(f"s_sub_u32 s{sTmp}, s{sCG}, 9")
        A(f"s_lshl_b32 s{sTmp}, s{sTmp}, 11")
        A(f"s_add_u32 s{sTmp}, s{sTmp}, {WS_FL + FL_KV}")
        A(f"v_lshl_add_u32 v{vT0}, v{vLane}, 8, s{sTmp}")
        A(f"v_cmp_gt_u32 vcc, 8, v{vLane}")
        A(f"v_cndmask_b32 v{vSigA}, v{vSigA}, v{vT0}, vcc")
        A(f"v_mov_b32 v{vSigV}, 1")
    else:
        A(f"s_lshl_b32 s{sTmp}, s{sRB}, 8")
        A(f"s_add_u32 s{sTmp}, s{sTmp}, {WS_FL + FL_HC}")
        A(f"v_writelane_b32 v{vSigA}, s{sTmp}, 0")
        A(f"s_lshl_b32 s{sTmp}, 1, s{sCG}")
        A(f"v_mov_b32 v{vSigV}, s{sTmp}")
    A("s_branch L_p2")


def k1_stats_issue(A):
    b = vBUF
    A(f"s_lshl_b32 s{sRow}, s{sRB}, 7")
    A(f"s_lshl_b32 s{sTmp2}, s{sCG}, 3")
    A(f"s_add_u32 s{sRow}, s{sRow}, s{sTmp2}")
    A(f"s_add_u32 s{sRow}, s{sRow}, s{sWave}")
    A(f"s_mul_i32 s{sTmp2}, s{sRow}, 1280")
    A(f"v_lshlrev_b32 v{vT0}, 3, v{vLane}")
    A(f"v_lshlrev_b32 v{vT1}, 2, v{vLane}")
    A(f"buffer_load_dwordx2 {vr(b, 2)}, v{vT0}, {srd(S_X)}, s{sTmp2} offen")
    A(f"buffer_load_dwordx2 {vr(b+2, 2)}, v{vT0}, {srd(S_X)}, s{sTmp2} offen offset:512")
    A(f"buffer_load_dword v{b+4}, v{vT1}, {srd(S_X)}, s{sTmp2} offen offset:1024")


def k1_stats(A, typ):
    b = vBUF
    if typ == "A":
        A("s_waitcnt vmcnt(0)")
    for i in range(5):
        A(f"v_lshlrev_b32 v{b+8+2*i}, 16, v{b+i}")
        A(f"v_and_b32 v{b+9+2*i}, 0xffff0000, v{b+i}")
    s = b + 20
    A(f"v_add_f32 v{s}, v{b+8}, v{b+9}")
    for i in range(2, 10):
        A(f"v_add_f32 v{s}, v{s}, v{b+8+i}")
    wave_allreduce_add(A, s, s + 1, 4)
    A(f"v_mul_f32 v{s}, {f32(1.0/640)}, v{s}")
    for i in range(10):
        A(f"v_sub_f32 v{b+8+i}, v{b+8+i}, v{s}")
    A(f"v_mul_f32 v{s+1}, v{b+8}, v{b+8}")
    for i in range(1, 10):
        A(f"v_fmac_f32 v{s+1}, v{b+8+i}, v{b+8+i}")
    wave_allreduce_add(A, s + 1, s + 2, 4)
    A(f"v_mov_b32 v{s+2}, {f32(1e-5)}")
    A(f"v_fmac_f32 v{s+2}, {f32(1.0/640)}, v{s+1}")
    A(f"v_mov_b32 v{s+1}, v{s+2}")
    A(f"v_cmp_eq_u32 vcc, 0, v{vLane}")
    A(f"v_mov_b32 v{vT2}, {OOB}")
    A(f"v_cndmask_b32 v{vT0}, v{vT2}, v{vLane}, vcc")
    A(f"s_lshl_b32 s{sTmp}, s{sRow}, 3")
    A(f"s_add_u32 s{sTmp}, s{sTmp}, {WS_ST}")
    A(f"buffer_store_dwordx2 {vr(s, 2)}, v{vT0}, {srd(S_WS)}, s{sTmp} offen sc1")


def k1_publish(A):
    if OPT["BYTEFLAG"]:
        A(f"v_mov_b32 v{vT0}, {OOB}")
        A(f"v_writelane_b32 v{vT0}, s2, 0")
        A(f"v_mov_b32 v{vT1}, 1")
        A(f"buffer_store_byte v{vT1}, v{vT0}, {srd(S_DBG)}, 0 offen sc1")
        return
    A(f"s_lshl_b32 s{sTmp}, s{sRB}, 4")
    A(f"v_mov_b32 v{vT0}, {OOB}")
    A(f"v_writelane_b32 v{vT0}, s{sTmp}, 0")
    A(f"v_mov_b32 v{vT1}, 1")
    A(f"buffer_atomic_add v{vT1}, v{vT0}, {srd(S_DBG)}, 0 offen sc1")


def poll_addr(A):
    if OPT["BYTEFLAG"]:
        A(f"v_lshlrev_b32 v{vPa}, 2, v{vLane}")
    else:
        A(f"v_and_b32 v{vPa}, 15, v{vLane}")
        A(f"v_lshlrev_b32 v{vPa}, 4, v{vPa}")


def poll_cmp(A):
    if OPT["BYTEFLAG"]:
        A(f"v_cmp_ne_u32 vcc, 0x01010101, v{vPoll}")
    else:
        A(f"v_cmp_gt_u32 vcc, 16, v{vPoll}")


S_R = 88
sU, sUks, sUL = 92, 93, 94


def w2_unit_decode(A):
    A(f"s_mul_i32 s{sUks}, s{sU}, 205")
    A(f"s_lshr_b32 s{sUks}, s{sUks}, 11")
    A(f"s_mul_i32 s{sUL}, s{sUks}, 10")
    A(f"s_sub_u32 s{sUL}, s{sU}, s{sUL}")


def w2_unit_dma(A, lds):
    w2_unit_decode(A)
    A(f"s_cmp_lt_u32 s{sUks}, 54")
    A(f"s_cselect_b32 s{S_R}, s{P_D}, s{P_WO}")
    A(f"s_cselect_b32 s{S_R+1}, s{P_D+1}, s{P_WO+1}")
    A(f"s_mov_b32 s{S_R+2}, {640*1280}")
    A(f"s_cselect_b32 s{S_R+2}, {1728*1280}, s{S_R+2}")
    A(f"s_cselect_b32 s{sTmp}, 0, 54")
    A(f"s_and_b32 s{S_R+1}, s{S_R+1}, 0xffff")
    A(f"s_mov_b32 s{S_R+3}, 0x20000")
    A(f"s_sub_u32 s{sTmp}, s{sUks}, s{sTmp}")
    A(f"s_mul_i32 s{sTmp}, s{sTmp}, {32*1280}")
    A(f"s_lshl_b32 s{sTmp2}, s{sUL}, 7")
    A(f"s_add_u32 s{sTmp}, s{sTmp}, s{sTmp2}")
    A(f"v_lshrrev_b32 v{vT0}, 3, v{vLane}")
    A(f"v_mul_u32_u24 v{vT0}, 1280, v{vT0}")
    A(f"v_and_b32 v{vT1}, 7, v{vLane}")
    A(f"v_lshl_add_u32 v{vT0}, v{vT1}, 4, v{vT0}")
    for i in range(4):
        A(f"s_add_u32 m0, {lds}, {i*1024}")
        A("s_nop 0")
        A(f"buffer_load_dwordx4 v{vT0}, {srd(S_R)}, s{sTmp} offen lds")
        A(f"s_add_u32 s{sTmp}, s{sTmp}, {8*1280}")


def w2_unit_out(A, lds, F):
    w2_unit_decode(A)
    A(f"v_bfe_u32 v{vT0}, v{vLane}, 2, 2")
    A(f"v_lshlrev_b32 v{vT0}, 7, v{vT0}")
    A(f"v_and_b32 v{vT1}, 3, v{vLane}")
    A(f"v_lshl_add_u32 v{vT0}, v{vT1}, 3, v{vT0}")
    A(f"v_lshrrev_b32 v{vT1}, 4, v{vLane}")
    A(f"s_cmp_lt_u32 s{sUks}, 54")
    A(f"s_cselect_b32 s{sTmp}, 10, 9")
    A(f"s_movk_i32 s{sTmp2}, 512")
    A(f"s_cselect_b32 s{sTmp2}, s{sTmp2}, 2048")
    A(f"v_lshlrev_b32 v{vT1}, s{sTmp}, v{vT1}")
    A(f"v_add3_u32 v{vT0}, v{vT0}, v{vT1}, {lds}")
    A(f"v_add_u32 v{vT1}, s{sTmp2}, v{vT0}")
    for tau in range(4):
        A(f"ds_read_b64_tr_b16 {vr(F(tau), 2)}, v{vT0} offset:{tau*32}")
        A(f"ds_read_b64_tr_b16 {vr(F(tau)+2, 2)}, v{vT1} offset:{tau*32}")
    A(f"v_lshlrev_b32 v{vT2}, 4, v{vLane}")
    A("s_waitcnt lgkmcnt(0)")
    for tau in range(4):
        A(f"s_lshl_b32 s{sTmp}, s{sUL}, 2")
        A(f"s_add_u32 s{sTmp}, s{sTmp}, {tau}")
        A(f"s_mul_i32 s{sTmp2}, s{sTmp}, 205")
        A(f"s_lshr_b32 s{sTmp2}, s{sTmp2}, 10")
        A(f"s_mul_i32 s{sTmp3}, s{sTmp2}, {74*5-5}")
        A(f"s_add_u32 s{sTmp}, s{sTmp}, s{sTmp3}")
        A(f"s_mul_i32 s{sTmp3}, s{sUks}, 5")
        A(f"s_add_u32 s{sTmp}, s{sTmp}, s{sTmp3}")
        A(f"s_lshl_b32 s{sTmp}, s{sTmp}, 10")
        A(f"s_add_u32 s{sTmp}, s{sTmp}, {WS_W2}")
        A(f"s_cmp_lt_u32 s{sU}, 740")
        A(f"s_cselect_b32 s{sTmp}, s{sTmp}, {OOB}")
        A(f"buffer_store_dwordx4 {vr(F(tau))}, v{vT2}, {srd(S_WS)}, s{sTmp} offen sc1")


def k1_epi_g(A, acc):
    c = vBUF
    cs = vBUF + 8
    t = vBUF + 40
    o = vBUF + 48
    A(f"v_lshrrev_b32 v{vT0}, 5, v{vLane}")
    A(f"v_lshlrev_b32 v{vT0}, 4, v{vT0}")
    A(f"s_mul_i32 s{sTmp}, s{sNW}, 384")
    A(f"s_add_u32 s{sTmp}, s{sTmp}, {MISC_LDS}")
    A(f"v_add_u32 v{vT0}, s{sTmp}, v{vT0}")
    A(f"v_and_b32 v{vT1}, 31, v{vLane}")
    A(f"s_lshl_b32 s{sTmp}, s{sMW}, 9")
    A(f"s_add_u32 s{sTmp}, s{sTmp}, {MISC_LDS+2048}")
    A(f"v_lshl_add_u32 v{vT1}, v{vT1}, 3, s{sTmp}")
    for mt in range(2):
        A(f"ds_read_b64 {vr(c+4*mt, 2)}, v{vT1} offset:{mt*256}")
    for q in range(4):
        A(f"ds_read_b128 {vr(cs+4*q)}, v{vT0} offset:{q*32}")
    A("s_waitcnt lgkmcnt(4)")
    for mt in range(2):
        mu, v, k1, k3 = c + 4 * mt, c + 4 * mt + 1, c + 4 * mt + 2, c + 4 * mt + 3
        A(f"v_rsq_f32 v{t}, v{v}")
        A(f"v_mul_f32 v{k1}, {f32(GC1)}, v{t}")
        A(f"v_mul_f32 v{t+1}, v{t}, v{t}")
        A(f"v_mul_f32 v{t+1}, v{t+1}, v{t}")
        A(f"v_mul_f32 v{k3}, {f32(GC2)}, v{t+1}")
    A(f"v_bfe_u32 v{vT1}, v{vLane}, 4, 1")
    A(f"v_lshlrev_b32 v{vT1}, 10, v{vT1}")
    A(f"v_lshrrev_b32 v{vT2}, 5, v{vLane}")
    A(f"v_lshl_add_u32 v{vT1}, v{vT2}, 8, v{vT1}")
    A(f"v_and_b32 v{vT2}, 15, v{vLane}")
    A(f"v_lshl_add_u32 v{vT1}, v{vT2}, 4, v{vT1}")
    n = 0
    for a in range(3):
        csa = cs + 16 * (a % 2)
        if a < 2:
            for q in range(4):
                A(f"ds_read_b128 {vr(cs+16*((a+1)%2)+4*q)}, v{vT0} offset:{(a+1)*128+q*32}")
            A("s_waitcnt lgkmcnt(4)")
        else:
            A("s_waitcnt lgkmcnt(0)")
        A(f"s_mul_i32 s{sTmp}, s{sCG}, 12")
        A(f"s_mul_i32 s{sTmp2}, s{sNW}, 3")
        A(f"s_add_u32 s{sTmp}, s{sTmp}, s{sTmp2}")
        A(f"s_add_u32 s{sTmp}, s{sTmp}, {a}")
        A(f"s_lshl_b32 s{sTmp2}, s{sRB}, 1")
        A(f"s_add_u32 s{sTmp2}, s{sTmp2}, s{sMW}")
        A(f"s_mul_i32 s{sTmp2}, s{sTmp2}, 54")
        A(f"s_lshr_b32 s{sTmp3}, s{sTmp}, 1")
        A(f"s_add_u32 s{sTmp2}, s{sTmp2}, s{sTmp3}")
        A(f"s_lshl_b32 s{sTmp2}, s{sTmp2}, 12")
        A(f"s_and_b32 s{sTmp}, s{sTmp}, 1")
        A(f"s_lshl_b32 s{sTmp}, s{sTmp}, 9")
        A(f"s_add_u32 s{sTmp}, s{sTmp}, s{sTmp2}")
        C = lambda mt, k: c + 4 * mt + k
        MP = [(mt, i) for mt in range(2) for i in range(0, 8, 2)]
        D = lambda mt: acc(mt, a)
        Tm = lambda mt: t + 8 * mt
        for mt, i in MP:
            pk_fma(A, D(mt) + i, ("b", C(mt, 0)), ("p", csa + i), ("p", D(mt) + i), neg_a=True)
        for mt, i in MP:
            pk_mul(A, Tm(mt) + i, ("p", D(mt) + i), ("p", D(mt) + i))
        for mt, i in MP:
            pk_fma(A, Tm(mt) + i, ("p", Tm(mt) + i), ("b", C(mt, 3)), ("b", C(mt, 2)))
        for mt, i in MP:
            pk_mul(A, Tm(mt) + i, ("p", Tm(mt) + i), ("p", D(mt) + i))
        for mt, i in MP:
            A(f"v_exp_f32 v{Tm(mt)+i}, v{Tm(mt)+i}")
            A(f"v_exp_f32 v{Tm(mt)+i+1}, v{Tm(mt)+i+1}")
            pk_fma(A, D(mt) + 8 + i, ("b", C(mt, 0)), ("p", csa + 8 + i), ("p", D(mt) + 8 + i), neg_a=True)
        for mt, i in MP:
            pk_fma(A, Tm(mt) + i, ("p", Tm(mt) + i), ("b", C(mt, 1)), ("b", C(mt, 1)))
        for mt, i in MP:
            A(f"v_rcp_f32 v{Tm(mt)+i}, v{Tm(mt)+i}")
            A(f"v_rcp_f32 v{Tm(mt)+i+1}, v{Tm(mt)+i+1}")
            pk_mul(A, D(mt) + i, ("p", D(mt) + i), ("p", D(mt) + 8 + i))
        for mt, i in MP:
            pk_mul(A, D(mt) + i, ("p", D(mt) + i), ("p", Tm(mt) + i))
        for mt in range(2):
            ob = D(mt) + 8
            for i in range(4):
                A(f"v_cvt_pk_bf16_f32 v{ob+i}, v{D(mt)+2*i}, v{D(mt)+2*i+1}")
            A(f"buffer_store_dwordx4 {vr(ob)}, v{vT1}, {srd(S_WS)}, s{sTmp} offen offset:{mt*2048} sc1")


def pk(r, bc=False):
    return f"v[{r}:{r+1}]"


def pko(*bc):
    lo = ",".join("1" if b == 1 else "0" for b in bc)
    hi = ",".join("0" if b == 0 else "1" for b in bc)
    return f"op_sel:[{lo}] op_sel_hi:[{hi}]"


def opnd(x):
    k, r = x
    if k == "p":
        return pk(r), None
    return pk(r & ~1), r & 1


def pk_fma(A, d, a, b, c, neg_a=False):
    (ta, fa), (tb_, fb), (tc, fc) = opnd(a), opnd(b), opnd(c)
    n = " neg_lo:[1,0,0] neg_hi:[1,0,0]" if neg_a else ""
    A(f"v_pk_fma_f32 {pk(d)}, {ta}, {tb_}, {tc} {pko(fa, fb, fc)}{n}")


def pk_mul(A, d, a, b, op="mul"):
    (ta, fa), (tb_, fb) = opnd(a), opnd(b)
    A(f"v_pk_{op}_f32 {pk(d)}, {ta}, {tb_} {pko(fa, fb)}")


def phi_block(A, d, n, t, mu, cs, r, rl, eps):
    P = range(0, n, 2)
    for i in P:
        pk_fma(A, d + i, mu(i), cs(i), ("p", d + i), neg_a=True)
    for i in P:
        pk_mul(A, t + i, ("p", d + i), rl(i))
    for i in P:
        A(f"v_exp_f32 v{t+i}, v{t+i} clamp")
        A(f"v_exp_f32 v{t+i+1}, v{t+i+1} clamp")
        pk_fma(A, d + i, ("p", d + i), r(i), ("b", eps))
    for i in range(n):
        A(f"v_max_f32 v{d+i}, v{d+i}, v{eps}")
    for i in P:
        pk_mul(A, d + i, ("p", d + i), ("p", t + i), op="add")


def k1_epi_q(A, acc):
    c = vBUF
    cs = vBUF + 8
    t = vBUF + 40
    o = vBUF + 56
    mu, r, rl, eps = c, c + 1, c + 2, c + 3
    A(f"v_lshrrev_b32 v{vT0}, 5, v{vLane}")
    A(f"v_lshlrev_b32 v{vT0}, 4, v{vT0}")
    A(f"s_mul_i32 s{sTmp}, s{sNW}, 640")
    A(f"s_add_u32 s{sTmp}, s{sTmp}, {MISC_LDS}")
    A(f"v_add_u32 v{vT0}, s{sTmp}, v{vT0}")
    A(f"v_and_b32 v{vT1}, 31, v{vLane}")
    A(f"s_lshl_b32 s{sTmp}, s{sMW}, 8")
    A(f"s_add_u32 s{sTmp}, s{sTmp}, {MISC_LDS+2048}")
    A(f"v_lshl_add_u32 v{vT1}, v{vT1}, 3, s{sTmp}")
    A(f"ds_read_b64 {vr(mu, 2)}, v{vT1}")
    for q in range(4):
        A(f"ds_read_b128 {vr(cs+4*q)}, v{vT0} offset:{q*32}")
    A("s_waitcnt lgkmcnt(4)")
    A(f"v_rsq_f32 v{r}, v{r}")
    A(f"v_mov_b32 v{eps}, {f32(1e-6)}")
    A(f"v_mul_f32 v{rl}, {f32(LOG2E)}, v{r}")
    A(f"v_bfe_u32 v{vT1}, v{vLane}, 4, 1")
    A(f"v_lshlrev_b32 v{vT1}, 10, v{vT1}")
    A(f"v_lshrrev_b32 v{vT2}, 5, v{vLane}")
    A(f"v_lshl_add_u32 v{vT1}, v{vT2}, 8, v{vT1}")
    A(f"v_and_b32 v{vT2}, 15, v{vLane}")
    A(f"v_lshl_add_u32 v{vT1}, v{vT2}, 4, v{vT1}")
    A(f"s_lshl_b32 s{sTmp}, s{sRB}, 1")
    A(f"s_lshr_b32 s{sTmp2}, s{sMW}, 1")
    A(f"s_add_u32 s{sTmp}, s{sTmp}, s{sTmp2}")
    A(f"s_mul_i32 s{sTmp}, s{sTmp}, 20")
    A(f"s_sub_u32 s{sTmp2}, s{sCG}, 13")
    A(f"s_mul_i32 s{sTmp2}, s{sTmp2}, 10")
    A(f"s_add_u32 s{sTmp}, s{sTmp}, s{sTmp2}")
    A(f"s_mul_i32 s{sTmp2}, s{sNW}, 5")
    A(f"s_add_u32 s{sTmp}, s{sTmp}, s{sTmp2}")
    A(f"s_lshl_b32 s{sTmp}, s{sTmp}, 12")
    A(f"s_and_b32 s{sTmp2}, s{sMW}, 1")
    A(f"s_lshl_b32 s{sTmp2}, s{sTmp2}, 11")
    A(f"s_add_u32 s{sTmp}, s{sTmp}, s{sTmp2}")
    A(f"s_add_u32 s{sTmp}, s{sTmp}, {WS_PQ}")
    for a in range(5):
        csa = cs + 16 * (a % 2)
        if a < 4:
            for q in range(4):
                A(f"ds_read_b128 {vr(cs+16*((a+1)%2)+4*q)}, v{vT0} offset:{(a+1)*128+q*32}")
            A("s_waitcnt lgkmcnt(4)")
        else:
            A("s_waitcnt lgkmcnt(0)")
        d = acc(0, a)
        phi_block(A, d, 16, t, lambda i: ("b", mu), lambda i: ("p", csa + i), lambda i: ("b", r), lambda i: ("b", rl), eps)
        ob = o + 8 * (a % 2)
        for i in range(8):
            A(f"v_cvt_pk_bf16_f32 v{ob+i}, v{d+2*i}, v{d+2*i+1}")
        A(f"buffer_store_dwordx4 {vr(ob)}, v{vT1}, {srd(S_WS)}, s{sTmp} offen sc1")
        A(f"buffer_store_dwordx4 {vr(ob+4)}, v{vT1}, {srd(S_WS)}, s{sTmp} offen offset:512 sc1")
        A(f"s_add_u32 s{sTmp}, s{sTmp}, 4096")


KV_PAIRS = [(0, 2), (0, 3), (1, 3), (1, 4), (2, 4)]
KV_Q = [[0, 1, 2], [0, 1, 2, 3], [0, 1, 2, 3], [1, 2, 3], [0, 1]]
KV_AD = 232
KV_SLAB = [0, 14336, 135168, 149504]
KV_DUMMY = 28688


def kv_addr_setup(A):
    e, he, d0, dm = vT0, vT1, vT2, vT3
    t = vBUF + 24
    A(f"s_mul_i32 s{sTmp3}, s{sMW}, 14336")
    A(f"s_cmp_ge_u32 s{sMW}, 2")
    A(f"s_cselect_b32 s{sTmp}, {135168 - 2*14336}, 0")
    A(f"s_add_u32 s{sTmp3}, s{sTmp3}, s{sTmp}")
    A(f"s_mul_i32 s{sTmp}, s{sNW}, 6720")
    A(f"s_add_u32 s{sTmp3}, s{sTmp3}, s{sTmp}")
    A(f"v_lshlrev_b32 v{dm}, 4, v{vLane}")
    A(f"v_add_u32 v{dm}, {KV_DUMMY}, v{dm}")
    A(f"v_lshrrev_b32 v{d0}, 5, v{vLane}")
    A(f"v_lshlrev_b32 v{d0}, 2, v{d0}")
    for n, (a, b) in enumerate(KV_PAIRS):
        A(f"v_and_b32 v{e}, 31, v{vLane}")
        A(f"v_add_u32 v{e}, {32*b - 80 + 100}, v{e}")
        A(f"v_mul_u32_u24 v{he}, 205, v{e}")
        A(f"v_lshrrev_b32 v{he}, 12, v{he}")
        A(f"v_mul_u32_u24 v{e}, 80, v{e}")
        A(f"v_add_u32 v{e}, s{sTmp3}, v{e}")
        for q in KV_Q[n]:
            a0 = KV_AD + 4 * n + q
            A(f"v_add_u32 v{a0}, {32*a + 8*q + 100}, v{d0}")
            A(f"v_mul_u32_u24 v{t}, 205, v{a0}")
            A(f"v_lshrrev_b32 v{t}, 12, v{t}")
            A(f"v_cmp_eq_u32 vcc, v{t}, v{he}")
            A(f"v_lshl_add_u32 v{a0}, v{a0}, 2, v{e}")
            A(f"v_subrev_u32 v{a0}, {80*100 + 4*100}, v{a0}")
            A(f"v_cndmask_b32 v{a0}, v{dm}, v{a0}, vcc")
    A(f"v_and_b32 v{e}, 15, v{vLane}")
    A(f"v_lshrrev_b32 v{d0}, 4, v{vLane}")
    A(f"v_lshlrev_b32 v{d0}, 2, v{d0}")
    A(f"v_lshl_add_u32 v{d0}, v{e}, 4, v{d0}")
    for a in range(3):
        az = KV_AD + 20 + a
        A(f"v_add_u32 v{az}, {32*a}, v{d0}")
        A(f"v_mul_u32_u24 v{t}, 205, v{az}")
        A(f"v_lshrrev_b32 v{t}, 12, v{t}")
        A(f"v_mul_u32_u24 v{t}, 1600, v{t}")
        A(f"v_lshl_add_u32 v{az}, v{az}, 2, v{t}")
        A(f"v_add_u32 v{az}, s{sTmp3}, v{az}")
        A(f"v_add_u32 v{az}, 1600, v{az}")
        A(f"v_cmp_gt_u32 vcc, {2 if a < 2 else 1}, v{e}")
        A(f"v_cndmask_b32 v{az}, v{dm}, v{az}, vcc")


def k1_epi_kv(A, acc):
    mu = vBUF
    rr = vBUF + 16
    rl = vBUF + 32
    t = vBUF + 48
    raw = vBUF + 48
    cs = vBUF + 80
    eps = vBUF + 86
    sv = vBUF + 64
    A(f"v_and_b32 v{vT0}, 31, v{vLane}")
    A(f"v_cmp_gt_u32 vcc, 16, v{vT0}")
    A(f"v_lshlrev_b32 v{vT0}, 2, v{vT0}")
    A(f"s_mul_i32 s{sTmp}, s{sNW}, 640")
    A(f"s_add_u32 s{sTmp}, s{sTmp}, {MISC_LDS}")
    A(f"v_add_u32 v{vT1}, s{sTmp}, v{vT0}")
    A(f"v_lshrrev_b32 v{vT2}, 5, v{vLane}")
    A(f"s_lshl_b32 s{sTmp}, s{sMW}, 8")
    A(f"s_add_u32 s{sTmp}, s{sTmp}, {MISC_LDS+2048}")
    A(f"v_lshl_add_u32 v{vT2}, v{vT2}, 5, s{sTmp}")
    for q in range(4):
        for h in range(2):
            A(f"ds_read_b128 {vr(raw+8*q+4*h)}, v{vT2} offset:{q*64+h*16}")
    for a in range(5):
        A(f"ds_read_b32 v{cs+a}, v{vT1} offset:{a*128}")
    A("s_waitcnt lgkmcnt(5)")
    for i in range(16):
        A(f"v_rsq_f32 v{rr+i}, v{raw+2*i+1}")
        A(f"v_mov_b32 v{mu+i}, v{raw+2*i}")
    for i in range(16):
        A(f"v_mul_f32 v{rl+i}, {f32(LOG2E)}, v{rr+i}")
    A(f"v_mov_b32 v{eps}, {f32(1e-6)}")
    A("s_waitcnt lgkmcnt(0)")
    op = lambda a, h: acc(0, a) + 4 * h

    def pack(a):
        d = acc(0, a)
        for i in range(8):
            A(f"v_cvt_pk_bf16_f32 v{d+i}, v{d+2*i}, v{d+2*i+1}")

    def plain(a, dst):
        d = acc(0, a)
        for i in range(0, 16, 2):
            pk_fma(A, dst + i, ("p", mu + i), ("b", cs + a), ("p", d + i), neg_a=True)
        for i in range(0, 16, 2):
            pk_mul(A, dst + i, ("p", dst + i), ("p", rr + i))

    def phi(a):
        phi_block(A, acc(0, a), 16, t, lambda i: ("p", mu + i), lambda i: ("b", cs + a), lambda i: ("p", rr + i), lambda i: ("p", rl + i), eps)
    for a in (3, 4):
        plain(a, acc(0, a))
        pack(a)
    plain(2, sv)
    phi(2)
    for i in range(16):
        A(f"v_cndmask_b32 v{acc(0,2)+i}, v{sv+i}, v{acc(0,2)+i}, vcc")
    pack(2)
    for a in (0, 1):
        phi(a)
        pack(a)
    D = lambda n: vBUF + 16 * n
    Z = lambda a: vBUF + 80 + 4 * a
    for h in range(2):
        for n, (a, b) in enumerate(KV_PAIRS):
            A(f"v_mfma_f32_32x32x16_bf16 {vr(D(n),16)}, {vr(op(a,h))}, {vr(op(b,h))}, {vr(D(n),16) if h else 0}")
        for a in range(3):
            A(f"v_mfma_f32_16x16x32_bf16 {vr(Z(a))}, {vr(op(a,h))}, {vr(vSel)}, {vr(Z(a)) if h else 0}")
    A("s_barrier")
    for n in range(5):
        for q in KV_Q[n]:
            A(f"ds_write_b128 v{KV_AD+4*n+q}, {vr(D(n)+4*q)}")
    for a in range(3):
        A(f"ds_write_b128 v{KV_AD+20+a}, {vr(Z(a))}")
    sSlab = 4
    A(f"s_sub_u32 s{sSlab}, s{sCG}, 9")
    A(f"s_mul_i32 s{sSlab}, s{sSlab}, 13440")
    A(f"s_add_u32 s{sSlab}, s{sSlab}, {WS_KVA}")
    A(f"v_lshlrev_b32 v{vT0}, 2, v0")
    A(f"v_add_u32 v{vT1}, {KV_SLAB[2]}, v{vT0}")
    A(f"v_cmp_gt_u32 vcc, {3360-6*512}, v0")
    A(f"v_mov_b32 v{vT2}, {OOB}")
    A(f"v_cndmask_b32 v{vT2}, v{vT2}, v{vT0}, vcc")
    A("s_waitcnt lgkmcnt(0)")
    A("s_barrier")
    R = vACC
    for j in range(7):
        for m in range(4):
            A(f"ds_read_b32 v{R+4*j+m}, v{vT0 if m < 2 else vT1} offset:{j*2048 + (m%2)*14336}")
        if j >= 2:
            k = j - 2
            A("s_waitcnt lgkmcnt(8)")
            kv_atomic(A, R, k, sSlab)
    for k in (5, 6):
        A(f"s_waitcnt lgkmcnt({4*(6-k)})")
        kv_atomic(A, R, k, sSlab)


def kv_atomic(A, R, k, sSlab):
    A(f"v_add_f32 v{R+4*k}, v{R+4*k}, v{R+4*k+1}")
    A(f"v_add_f32 v{R+4*k+2}, v{R+4*k+2}, v{R+4*k+3}")
    A(f"v_add_f32 v{R+4*k}, v{R+4*k}, v{R+4*k+2}")
    A(f"buffer_atomic_add_f32 v{R+4*k}, v{vT0 if k < 6 else vT2}, {srd(S_WS)}, s{sSlab} offen offset:{(k%2)*2048}")
    if k % 2 == 1:
        A(f"s_add_u32 s{sSlab}, s{sSlab}, 4096")


def k1_aux(A):
    if OPT["CODEWARM"] == 1:
        A("s_getpc_b64 s[10:11]")
        A.label("L_pc")
        A(f"s_sub_u32 s10, s10, L_pc-{NAME}_kernel")
        A("s_subb_u32 s11, s11, 0")
        A(f"v_lshlrev_b32 v{vT0}, 7, v0")
        A(f"v_min_u32 v{vT0}, L_code_end-{NAME}_kernel-4, v{vT0}")
        A(f"global_load_dword v{vACC+8}, v{vT0}, s[10:11]")
    if OPT["TLBWARM"]:
        g = OPT["TLBWARM"]
        mk_srd(A, S_T, P_OUT, 2048 * 1280)
        A(f"v_lshlrev_b32 v{vT0}, {g}, v0")
        A(f"buffer_load_dword v{vACC+9}, v{vT0}, {srd(S_WS)}, 0 offen sc1")
        A(f"buffer_load_dword v{vACC+10}, v{vT0}, {srd(S_T)}, 0 offen sc1")
    A(f"s_lshl_b32 s{sUw}, s{sRB}, 3")
    A(f"s_add_u32 s{sUw}, s{sUw}, s{sWave}")
    A(f"s_add_u32 s{sUw}, s{sUw}, 480")
    A(f"s_mul_i32 s{sUl}, s{sWave}, 12288")
    for i in range(3):
        A(f"s_add_u32 s{sU}, s{sUw}, {128*i}")
        A(f"s_add_u32 s9, s{sUl}, {4096*i}")
        w2_unit_dma(A, "s9")
    for i in range(4):
        A(f"v_mov_b32 v{vACC+i}, 0")
    A(f"v_lshlrev_b32 v{vT0}, 4, v0")
    A(f"s_mul_i32 s{sTmp}, s{sRB}, 3360")
    A(f"s_add_u32 s{sTmp}, s{sTmp}, {WS_KVA}")
    A(f"v_add_u32 v{vT0}, s{sTmp}, v{vT0}")
    A(f"v_mov_b32 v{vT2}, {OOB}")
    A(f"v_cmp_gt_u32 vcc, 210, v0")
    A(f"v_cndmask_b32 v{vT0}, v{vT2}, v{vT0}, vcc")
    A(f"s_cmp_lg_u32 s{sWave}, 7")
    A("s_cbranch_scc1 L_A_z")
    A(f"s_lshl_b32 s{sTmp}, s{sRB}, 8")
    A(f"s_add_u32 s{sTmp}, s{sTmp}, {WS_FL}")
    A(f"v_writelane_b32 v{vT0}, s{sTmp}, 0")
    A(f"s_lshl_b32 s{sTmp}, s{sRB}, 9")
    A(f"s_add_u32 s{sTmp}, s{sTmp}, {WS_FL + FL_KV}")
    A(f"v_writelane_b32 v{vT0}, s{sTmp}, 1")
    A(f"s_add_u32 s{sTmp}, s{sTmp}, 256")
    A(f"v_writelane_b32 v{vT0}, s{sTmp}, 2")
    A.label("L_A_z")
    A(f"buffer_store_dwordx4 {vr(vACC)}, v{vT0}, {srd(S_WS)}, 0 offen sc1")
    A("s_waitcnt vmcnt(13)")
    k1_stats(A, "X")
    for i in range(3):
        A(f"s_waitcnt vmcnt({10 - 4*i + 4*i})" if False else f"s_waitcnt vmcnt({(8 - 4*i) + 2 + 4*i})")
        A(f"s_add_u32 s{sU}, s{sUw}, {128*i}")
        A(f"s_add_u32 s9, s{sUl}, {4096*i}")
        w2_unit_out(A, "s9", lambda t: vACC + 16 + 16 * i + 4 * t)
    A("s_waitcnt vmcnt(0)")
    A("s_barrier")
    stamp(A, 9, 0)
    A(f"s_cmp_lg_u32 s{sWave}, 0")
    A("s_cbranch_scc1 L_A_w")
    k1_publish(A)
    A(f"s_mov_b32 s{sSpin}, 0")
    poll_addr(A)
    A.label("L_A_poll")
    A("s_sleep 32")
    A(f"buffer_load_dword v{vPoll}, v{vPa}, {srd(S_DBG)}, 0 offen sc1")
    A("s_waitcnt vmcnt(0)")
    poll_cmp(A)
    A(f"s_add_u32 s{sSpin}, s{sSpin}, 1")
    A(f"s_cmp_gt_u32 s{sSpin}, {SPIN_MAX}")
    A("s_cbranch_scc1 L_A_w")
    A(f"s_cmp_lg_u64 vcc, 0")
    A("s_cbranch_scc1 L_A_poll")
    A.label("L_A_w")
    A("s_barrier")
    stamp(A, 3, 0)
    p2_ids(A)
    A(f"s_mov_b32 s{sWoDone}, 0")
    A(f"v_mov_b32 v{vSigA}, {OOB}")
    A(f"v_mov_b32 v{vSigV}, 0")
    A("s_branch L_p2")


def kernel1(A):
    A(".p2align 8")
    A.label(NAME + "_kernel")
    A("s_cmp_ge_u32 s2, 256")
    A("s_cbranch_scc1 L_k1_exit")
    if OPT["XMAP"]:
        A("s_lshr_b32 s3, s2, 5")
        A("s_and_b32 s2, s2, 31")
        A("s_lshl_b32 s2, s2, 3")
        A("s_or_b32 s2, s2, s3")
    load_ptrs(A)
    if OPT["CODEWARM"] == 2:
        A("s_getpc_b64 s[10:11]")
        A.label("L_pc")
        A(f"s_sub_u32 s10, s10, L_pc-{NAME}_kernel")
        A("s_subb_u32 s11, s11, 0")
        A("s_lshr_b32 s4, s2, 3")
        A("s_lshl_b32 s4, s4, 7")
        A(f"v_lshl_add_u32 v{vT0}, v0, 12, s4")
        A(f"v_min_u32 v{vT0}, L_code_end-{NAME}_kernel-4, v{vT0}")
        A("v_cmp_gt_u32 vcc, 16, v0")
        A("s_and_saveexec_b64 s[12:13], vcc")
        A("s_cbranch_execz L_nocw")
        A(f"global_load_dword v251, v{vT0}, s[10:11]")
        A.label("L_nocw")
        A("s_mov_b64 exec, s[12:13]")
    A(f"v_and_b32 v{vLane}, 63, v0")
    A(f"v_lshrrev_b32 v{vT0}, 6, v0")
    A(f"v_readfirstlane_b32 s{sWave}, v{vT0}")
    A("s_and_b32 s3, s2, 7")
    A("s_lshr_b32 s4, s2, 3")
    A("s_lshr_b32 s5, s3, 2")
    A("s_and_b32 s6, s3, 3")
    A("s_mul_i32 s7, s6, 30")
    A("s_add_u32 s7, s7, s4")
    A(f"s_lshr_b32 s{sCG}, s7, 3")
    if OPT["CGPERM"]:
        perm = [0, 9, 1, 13, 2, 10, 3, 4, 5, 11, 6, 14, 7, 12, 8, 15]
        tab = sum(p << (4 * i) for i, p in enumerate(perm))
        A(f"s_mov_b32 s10, {tab & 0xffffffff}")
        A(f"s_mov_b32 s11, {tab >> 32}")
        A(f"s_lshl_b32 s{sCG}, s{sCG}, 2")
        A(f"s_lshr_b64 s[10:11], s[10:11], s{sCG}")
        A(f"s_and_b32 s{sCG}, s10, 15")
    A(f"s_and_b32 s{sRB}, s7, 7")
    A("s_lshl_b32 s8, s6, 1")
    A("s_add_u32 s8, s8, s4")
    A("s_sub_u32 s8, s8, 30")
    A("s_cmp_lt_u32 s4, 30")
    A(f"s_cselect_b32 s{sCG}, s{sCG}, 15")
    A(f"s_cselect_b32 s{sRB}, s{sRB}, s8")
    A("s_lshl_b32 s5, s5, 3")
    A(f"s_add_u32 s{sRB}, s{sRB}, s5")
    A(f"s_sub_u32 s3, s{sRB}, 10")
    A(f"s_cmp_lt_u32 s{sRB}, 10")
    A(f"s_cselect_b32 s{sC0}, s{sRB}, s3")
    Q = OPT["ROTQ"]
    if Q == 2:
        A(f"s_and_b32 s{sC0}, s{sC0}, 0xfe")
    elif Q == 5:
        A(f"s_cmp_lt_u32 s{sC0}, 5")
        A(f"s_cselect_b32 s{sC0}, 0, 5")
    A("s_waitcnt lgkmcnt(0)")
    mk_srd(A, S_X, P_X, 2048 * 1280)
    mk_srd(A, S_WS, P_WS, WS_SIZE)
    mk_srd(A, S_DBG, P_DBG, 256)
    stamp(A, 0, 0)
    if OPT["P2ONLY"]:
        p2_ids(A)
        A(f"s_mov_b32 s{sWoDone}, 0")
        A(f"v_mov_b32 v{vSigA}, {OOB}")
        A(f"v_mov_b32 v{vSigV}, 0")
        A("s_branch L_p2")
    k1_stats_issue(A)
    A(f"s_cmp_eq_u32 s{sCG}, 15")
    A("s_cbranch_scc1 L_aux")
    A(f"v_lshrrev_b32 v{vT0}, 3, v{vLane}")
    A(f"v_lshrrev_b32 v{vT1}, 4, v{vLane}")
    A(f"v_and_b32 v{vT2}, 7, v{vLane}")
    A(f"v_xor_b32 v{vT1}, v{vT1}, v{vT2}")
    if OPT["NOSWZ"]: A(f"v_and_b32 v{vT1}, 7, v{vLane}")
    A(f"s_lshl_b32 s3, s{sRB}, 7")
    if OPT["SAME"]: A("s_mov_b32 s3, 0")
    A(f"s_and_b32 s4, s{sWave}, 3")
    A(f"s_lshl_b32 s{sXslot}, s4, 12")
    A(f"s_lshl_b32 s4, s4, 5")
    A("s_add_u32 s3, s3, s4")
    A(f"v_add_u32 v{vT0}, s3, v{vT0}")
    A(f"v_mul_u32_u24 v{vT0}, 1280, v{vT0}")
    A(f"v_lshl_add_u32 v{vXo}, v{vT1}, 4, v{vT0}")
    A(f"v_xor_b32 v{vT1}, 4, v{vT1}")
    A(f"v_lshl_add_u32 v{vXo+1}, v{vT1}, 4, v{vT0}")
    A(f"v_add_u32 v{vXo+1}, {8*1280}, v{vXo+1}")
    A(f"s_lshl_b32 s{sKX}, s{sC0}, 7")
    A(f"s_mov_b32 s{sKXn}, 0")
    A(f"s_cmp_ge_u32 s{sCG}, 13")
    A("s_cbranch_scc1 L_typeQ")
    A(f"s_cmp_ge_u32 s{sCG}, 9")
    A("s_cbranch_scc1 L_typeK")
    k1_gemm(A, "G")
    A.label("L_typeQ")
    k1_gemm(A, "Q")
    A.label("L_typeK")
    k1_gemm(A, "K")
    A.label("L_aux")
    k1_aux(A)
    phase2(A)
    A.label("L_k1_exit")
    A("s_endpgm")
    A.label("L_code_end")


sRB64, sC, sHo, sWo, sFl, sWoDone, sWoL, sWoG, sWoI, sHb, sHe, sWb, sWe = sKW, sKWn, sKX, sKXn, sWslot, sRslot, sXslot, sStepW, sCSit, sSpec, sWrapW, sC0, sRow
vL16 = 5


def p2_ids(A):
    A("s_and_b32 s3, s2, 7")
    A("s_lshr_b32 s4, s2, 3")
    A(f"s_and_b32 s{sC}, s4, 7")
    A("s_lshr_b32 s4, s4, 3")
    A("s_lshl_b32 s3, s3, 2")
    A(f"s_add_u32 s{sRB64}, s3, s4")
    if OPT["P2SAME"] == 1:
        A(f"s_and_b32 s{sRB64}, s{sRB64}, 1")
        A(f"s_and_b32 s{sC}, s{sC}, 1")
    if OPT["P2SAME"] == 2:
        A(f"s_and_b32 s{sC}, s{sC}, 3")
    A(f"v_lshlrev_b32 v{vL16}, 4, v{vLane}")


WO_LDS = 32768


def wo_early(A, first, per_wave):
    A("s_lshr_b32 s4, s2, 3")
    A("s_and_b32 s4, s4, 7")
    A(f"s_mul_i32 s4, s4, {74*5120}")
    A(f"s_and_b32 s5, s{sWave}, 3")
    A(f"s_mul_i32 s5, s5, {per_wave*1024}")
    A("s_add_u32 s4, s4, s5")
    A(f"s_add_u32 s4, s4, {WS_W2 + 54*5120 + first*1024}")
    A(f"s_add_u32 s5, s5, {WO_LDS + first*1024}")
    A(f"v_lshlrev_b32 v{vT0}, 4, v{vLane}")
    for i in range(per_wave):
        if i % 4 == 0:
            A(f"s_add_u32 m0, s5, {i*1024}")
            A(f"s_add_u32 s6, s4, {i*1024}")
        A(f"buffer_load_dwordx4 v{vT0}, {srd(S_WS)}, s6 offen offset:{(i%4)*1024} sc1 lds")


def wo_setup(A):
    A(f"s_mul_i32 s{sWoL}, s{sWave}, 25600")
    A(f"s_add_u32 s{sWoL}, s{sWoL}, {WO_LDS}")
    A(f"s_mul_i32 s6, s{sC}, 74")
    A(f"s_mul_i32 s7, s{sWave}, 5")
    A("s_add_u32 s6, s6, s7")
    A("s_add_u32 s6, s6, 54")
    A("s_mul_i32 s6, s6, 5120")
    A(f"s_add_u32 s{sWoG}, s6, {WS_W2}")
    A(f"s_and_b32 s{sWoI}, s{sRB64}, 3")
    A(f"s_mul_i32 s{sWoI}, s{sWoI}, {6*1024}")


def wo_dmas():
    return [f"s_add_u32 m0, s{sWoL}, s{sWoI}\n"
            f"s_add_u32 s9, s{sWoG}, s{sWoI}\n"
            f"buffer_load_dwordx4 v{vL16}, {srd(S_WS)}, s9 offen sc1 lds\n"
            f"s_add_u32 s{sWoI}, s{sWoI}, 1024\n"
            f"s_cmp_eq_u32 s{sWoI}, {25*1024}\n"
            f"s_cselect_b32 s{sWoI}, 0, s{sWoI}" for _ in range(25)]


NK, WD, HD = 14, 6, 3
q4 = lambda a, b: list(range(a, b, 4))
WQ = q4(8, 56) + q4(128, 152) + q4(248, 256) + q4(112, 128) + q4(152, 168) + q4(200, 208)
AQ = q4(88, 112) + q4(168, 192) + q4(56, 88)
HQ = q4(192, 200) + q4(208, 248)
assert len(WQ) == 30 and len(AQ) == 20 and len(HQ) == 12 and len(set(WQ + AQ + HQ)) == 62
sLast = sOdd


def ffn_setup(A):
    A(f"s_sub_u32 s3, s{sWave}, 4")
    A("s_mul_i32 s4, s3, 14")
    A("s_cmp_eq_u32 s3, 3")
    A("s_cselect_b32 s5, 1, 0")
    A("s_sub_u32 s4, s4, s5")
    A("s_cmp_ge_u32 s3, 2")
    A("s_cselect_b32 s5, 13, 14")
    A(f"s_cselect_b32 s{sLast}, {OOB}, 0")
    A(f"s_and_b32 s6, s{sRB64}, 3")
    A("s_lshl_b32 s6, s6, 1")
    A(f"s_add_u32 s6, s6, s{sC}")
    A("s_mul_i32 s6, s6, 7")
    A("s_lshr_b32 s6, s6, 2")
    A("s_sub_u32 s7, s6, s5")
    A("s_cmp_ge_u32 s6, s5")
    A("s_cselect_b32 s6, s7, s6")
    if not OPT["P2ROT"]:
        A("s_mov_b32 s6, 0")
    A(f"s_mul_i32 s{sHb}, s{sRB64}, 54")
    A(f"s_add_u32 s{sHb}, s{sHb}, s4")
    A(f"s_lshl_b32 s{sHb}, s{sHb}, 12")
    A("s_lshl_b32 s7, s5, 12")
    A(f"s_add_u32 s{sHe}, s{sHb}, s7")
    A("s_lshl_b32 s7, s6, 12")
    A(f"s_add_u32 s{sHo}, s{sHb}, s7")
    A(f"s_mul_i32 s{sWb}, s{sC}, 74")
    A(f"s_add_u32 s{sWb}, s{sWb}, s4")
    A(f"s_mul_i32 s{sWb}, s{sWb}, 5120")
    A(f"s_add_u32 s{sWb}, s{sWb}, {WS_W2}")
    A("s_mul_i32 s7, s5, 5120")
    A(f"s_add_u32 s{sWe}, s{sWb}, s7")
    A("s_mul_i32 s7, s6, 5120")
    A(f"s_add_u32 s{sWo}, s{sWb}, s7")


def ldW_groups(j):
    out = []
    pre = f"s_add_u32 s{sWo}, s{sWo}, s{sLast}\n" if j == NK - 1 else ""
    for nt in range(4):
        out.append((pre if nt == 0 else "") +
                   f"buffer_load_dwordx4 {vr(WQ[5*(j%WD)+nt])}, v{vL16}, {srd(S_WS)}, s{sWo} offen offset:{nt*1024}{HSC}")
    out.append(f"s_add_u32 s3, s{sWo}, 4096\n"
               f"buffer_load_dwordx4 {vr(WQ[5*(j%WD)+4])}, v{vL16}, {srd(S_WS)}, s3 offen{HSC}\n"
               f"s_add_u32 s{sWo}, s{sWo}, 5120\n"
               f"s_cmp_eq_u32 s{sWo}, s{sWe}\n"
               f"s_cselect_b32 s{sWo}, s{sWb}, s{sWo}")
    return out


def poll_flag(A, lab, addr_s, mask, target, vtmp):
    A(f"s_mov_b32 s{sSpin}, 0")
    A(f"v_mov_b32 v{vtmp+1}, 0")
    A.label(lab)
    A(f"buffer_load_dword v{vtmp}, v{vtmp+1}, {srd(S_WS)}, s{addr_s} offen sc1")
    A("s_waitcnt vmcnt(0)")
    A(f"v_readfirstlane_b32 s{sTmp3}, v{vtmp}")
    A(f"s_add_u32 s{sSpin}, s{sSpin}, 1")
    A(f"s_and_b32 s{sTmp3}, s{sTmp3}, {mask}")
    A(f"s_cmp_ge_u32 s{sTmp3}, {0 if OPT['P2ONLY'] else target}")
    A(f"s_cbranch_scc1 {lab}_ok")
    A(f"s_cmp_gt_u32 s{sSpin}, {SPIN_MAX}")
    A(f"s_cbranch_scc1 {lab}_ok")
    A(f"s_sleep {OPT['PSLEEP']}")
    A(f"s_branch {lab}")
    A.label(lab + "_ok")


def phase2(A):
    S_OUT = S_T
    ACC = 8
    acc = lambda nt, mt: ACC + 4 * (nt * 4 + mt)
    A.label("L_p2")
    mk_srd(A, S_OUT, P_OUT, 2048 * 1280)
    A(f"s_lshr_b32 s{sFl}, s{sRB64}, 1")
    A(f"s_lshl_b32 s{sFl}, s{sFl}, 8")
    A(f"s_add_u32 s{sFl}, s{sFl}, {WS_FL + FL_HC}")
    A.fence()
    A(f"s_cmp_ge_u32 s{sWave}, 4")
    A("s_cbranch_scc1 L2_ffn")

    def signal(n_younger):
        A(f"s_waitcnt vmcnt({n_younger}) lgkmcnt(0)")
        A("s_barrier")

    XR, OA, RA = 232, 238, 241

    def red_setup(A, ta, tb):
        for j in range(3):
            A(f"s_add_u32 s11, s{sWave}, {8*j}")
            A(f"s_lshr_b32 s12, s11, 2")
            A(f"s_and_b32 s13, s11, 3")
            A(f"s_lshl_b32 s14, s{sRB64}, 6")
            A(f"s_lshl_b32 s13, s13, 4")
            A("s_add_u32 s14, s14, s13")
            A("s_mul_i32 s14, s14, 1280")
            A(f"s_mul_i32 s15, s{sC}, 160")
            A("s_add_u32 s14, s14, s15")
            A("s_lshl_b32 s12, s12, 5")
            A("s_add_u32 s14, s14, s12")
            A("s_cmp_lt_u32 s11, 20")
            A(f"s_cselect_b32 s14, s14, {OOB}")
            A(f"v_and_b32 v{ta}, 15, v{vLane}")
            A(f"v_mul_u32_u24 v{ta}, 1280, v{ta}")
            A(f"v_lshrrev_b32 v{tb}, 4, v{vLane}")
            A(f"v_lshl_add_u32 v{ta}, v{tb}, 3, v{ta}")
            A(f"v_add_u32 v{OA+j}, s14, v{ta}")
            A(f"buffer_load_dwordx2 {vr(XR+2*j, 2)}, v{OA+j}, {srd(S_X)}, 0 offen")
            A("s_lshl_b32 s12, s11, 10")
            A(f"s_add_u32 s13, s12, {WO_LDS+5120}")
            A(f"v_add_u32 v{RA+5*j}, s13, v{vL16}")
            for f in range(4):
                A(f"s_add_u32 s13, s12, {KV_SLAB[f]}")
                A(f"s_add_u32 s14, s12, {WO_LDS + f*25600 - 14*1024}")
                A("s_cmp_lt_u32 s11, 14")
                A("s_cselect_b32 s13, s13, s14")
                A("s_cmp_lt_u32 s11, 19")
                A(f"s_cselect_b32 s13, s13, {28672 + f*1024}")
                A(f"v_add_u32 v{RA+5*j+1+f}, s13, v{vL16}")

    AD = 8
    RAW, NRAW = 56, 6
    FR = 80
    OSP = 96
    PQ = lambda mt, blk: 112 + 16 * blk + 4 * mt
    O = lambda u, mt: (OSP + 4 * mt) if u == 0 else PQ(mt, u - 1)
    DEN = 192
    NM = 224
    T = 192
    A(f"s_mul_i32 s8, s{sWave}, 14336")
    A(f"s_cmp_ge_u32 s{sWave}, 2")
    A(f"s_cselect_b32 s9, {135168 - 2*14336}, 0")
    A("s_add_u32 s8, s8, s9")
    for i in range(4):
        A(f"v_mov_b32 v{T+i}, 0")
    A(f"s_add_u32 s9, s8, 13440")
    A(f"v_mov_b32 v{vT2}, s9")
    A(f"ds_write_b128 v{vT2}, {vr(T)}")
    A(f"ds_write_b32 v{vT2}, v{T} offset:16")
    signal(0)
    A(f"s_cmp_lg_u32 s{sWave}, 0")
    A("s_cbranch_scc1 L2_nosig")
    A(f"buffer_atomic_add v{vSigV}, v{vSigA}, {srd(S_WS)}, 0 offen sc1")
    A.label("L2_nosig")
    stamp(A, 0, 1)
    if OPT["NOATT"]:
        A("s_branch L2_reduce")
    A(f"s_cmp_lg_u32 s{sWoDone}, 0")
    A("s_cbranch_scc1 L2_wodone")
    wo_setup(A)
    for g in wo_dmas():
        A(g)
    A.label("L2_wodone")
    A(f"s_mul_i32 s4, s{sWave}, 25600")
    A(f"s_add_u32 s4, s4, {WO_LDS}")
    iL, gL = T + 4, T + 5
    he = T + 12
    hd = T + 22
    ab, zb, hz = T + 6, T + 7, T + 8
    A(f"v_and_b32 v{iL}, 15, v{vLane}")
    A(f"v_lshrrev_b32 v{gL}, 4, v{vLane}")
    for Tt in range(10):
        A(f"v_add_u32 v{he+Tt}, {16*Tt}, v{iL}")
        A(f"v_mul_u32_u24 v{he+Tt}, 205, v{he+Tt}")
        A(f"v_lshrrev_b32 v{he+Tt}, 12, v{he+Tt}")
    for blk in range(5):
        for h in range(2):
            r = hd + 2 * blk + h
            A(f"v_lshlrev_b32 v{r}, 3, v{gL}")
            A(f"v_add_u32 v{r}, {32*blk+4*h}, v{r}")
            A(f"v_mul_u32_u24 v{r}, 205, v{r}")
            A(f"v_lshrrev_b32 v{r}, 12, v{r}")
    A(f"v_mul_u32_u24 v{ab}, 80, v{iL}")
    A(f"v_lshl_add_u32 v{ab}, v{gL}, 5, v{ab}")
    A(f"v_add_u32 v{ab}, s8, v{ab}")
    A(f"v_and_b32 v{hz}, 3, v{iL}")
    A(f"v_mul_u32_u24 v{zb}, 1600, v{hz}")
    A(f"v_lshl_add_u32 v{zb}, v{gL}, 5, v{zb}")
    A(f"v_add_u32 v{zb}, s8, v{zb}")
    NUM = {0: [0], 1: [0, 1], 2: [0, 1], 3: [1, 2], 4: [1, 2], 5: [2, 3], 6: [2, 3], 7: [3, 4], 8: [3, 4], 9: [4]}
    frs = []
    for ch in range(2):
        A(f"v_add_u32 v{T+9}, {4*ch}, v{hz}")
        bl = [0, 1, 2] if ch == 0 else [2, 3, 4]
        for blk in bl:
            n = len(frs)
            frs.append(("z", ch, blk, blk == bl[0], blk == bl[-1]))
            for h in range(2):
                a = AD + 2 * n + h
                A(f"v_cmp_eq_u32 vcc, v{T+9}, v{hd+2*blk+h}")
                A(f"v_add_u32 v{a}, {6400*ch+1600+128*blk+16*h}, v{zb}")
                A(f"v_cndmask_b32 v{a}, v{vT2}, v{a}, vcc")
        for Tt in range(5 * ch, 5 * ch + 5):
            for blk in NUM[Tt]:
                n = len(frs)
                frs.append(("n", Tt, blk, blk == NUM[Tt][0], blk == NUM[Tt][-1]))
                for h in range(2):
                    a = AD + 2 * n + h
                    A(f"v_cmp_eq_u32 vcc, v{he+Tt}, v{hd+2*blk+h}")
                    A(f"v_add_u32 v{a}, {1280*Tt+128*blk+16*h}, v{ab}")
                    A(f"v_cndmask_b32 v{a}, v{vT2}, v{a}, vcc")
    assert len(frs) == 24
    sM = 84
    for k in range(3):
        A(f"v_cmp_lt_u32 s[{sM+2*k}:{sM+2*k+1}], {k}, v{gL}")
    stamp(A, 7, 1, vt=vT0)
    A("s_setprio 3")
    A(f"s_lshr_b32 s10, s{sWave}, 1")
    A("s_lshl_b32 s10, 0x2000, s10")
    poll_flag(A, "L2_pq", sFl, "s10", "s10", vT0)
    stamp(A, 8, 1, vt=vT0)
    A(f"s_mul_i32 s6, s{sRB64}, 20")
    A(f"s_mul_i32 s7, s{sWave}, 5")
    A("s_add_u32 s6, s6, s7")
    A("s_lshl_b32 s6, s6, 12")
    A(f"s_add_u32 s6, s6, {WS_PQ}")
    for blk in range(5):
        for mt in range(4):
            A(f"buffer_load_dwordx4 {vr(PQ(mt, blk))}, v{vL16}, {srd(S_WS)}, s6 offen offset:{mt*1024} sc1")
        A(f"s_add_u32 s6, s6, 4096")
    A(f"s_lshl_b32 s6, s{sWave}, 3")
    A("s_and_b32 s7, s2, 7")
    A("s_add_u32 s6, s6, s7")
    A("s_lshl_b32 s6, s6, 8")
    A(f"s_add_u32 s6, s6, {WS_FL + FL_KV}")
    poll_flag(A, "L2_kv", 6, 0xff, 16, vT0)
    stamp(A, 3, 1, vt=vT0)
    A(f"s_mul_i32 s3, s{sWave}, 13440")
    A(f"s_add_u32 s3, s3, {WS_KVA}")
    for i in range(14):
        if i % 4 == 0:
            A(f"s_add_u32 m0, s8, {i*1024}")
            A(f"s_add_u32 s5, s3, {i*1024}")
        if i == 13:
            A("s_mov_b64 exec, 0xff")
        A(f"buffer_load_dwordx4 v{vL16}, {srd(S_WS)}, s5 offen offset:{(i%4)*1024} sc1 lds")
    A("s_mov_b64 exec, -1")
    A(f"s_setprio {OPT['APRIO']}")
    A("s_waitcnt vmcnt(7) lgkmcnt(0)")
    stamp(A, 9, 1, vt=vT0)
    raw = lambda k: RAW + 4 * (k % NRAW)
    fr = lambda n: FR + 4 * (n % 4)
    dst = lambda f, mt: (DEN + 8 * mt + 4 * f[1]) if f[0] == "z" else (NM + 16 * (f[1] % 2) + 4 * mt)

    def rd(n):
        if n == 12:
            A("s_waitcnt vmcnt(0)")
        for h in range(2):
            A(f"ds_read_b128 {vr(raw(2*n+h))}, v{AD+2*n+h}")

    def post(f):
        out = []
        if f[0] == "z":
            for mt in range(4):
                for i in range(4):
                    r = DEN + 8 * mt + 4 * f[1] + i
                    out.append(f"v_add_f32 v{r}, {f32(1e-6)}, v{r}")
            for mt in range(4):
                for i in range(4):
                    r = DEN + 8 * mt + 4 * f[1] + i
                    out.append(f"v_rcp_f32 v{r}, v{r}")
            return out
        Tt = f[1]
        lo, hi = (4 * Tt) // 5, (4 * Tt + 3) // 5
        sl = {}
        for mt in range(4):
            if lo == hi:
                sl[mt] = DEN + 8 * mt + lo
            else:
                thr = 5 * hi - 4 * Tt
                sl[mt] = AD + mt
                out.append(f"v_cndmask_b32 v{sl[mt]}, v{DEN+8*mt+lo}, v{DEN+8*mt+hi}, s[{sM+2*(thr-1)}:{sM+2*(thr-1)+1}]")
        for mt in range(4):
            d = dst(f, mt)
            for i in range(4):
                out.append(f"v_mul_f32 v{d+i}, v{d+i}, v{sl[mt]}")
        for mt in range(4):
            d = dst(f, mt)
            ob = O(Tt // 2, mt) + 2 * (Tt % 2)
            out.append(f"v_cvt_pk_bf16_f32 v{ob}, v{d}, v{d+1}")
            out.append(f"v_cvt_pk_bf16_f32 v{ob+1}, v{d+2}, v{d+3}")
        return out
    rd(0)
    rd(1)
    pend = []
    nxt = []
    for n in range(26):
        if n + 2 < 24:
            rd(n + 2)
        cv = []
        if n < 24:
            A(f"s_waitcnt lgkmcnt({2*min(2, 23-n)})")
            for h in range(2):
                cv.append(f"v_cvt_pk_bf16_f32 v{fr(n)+2*h}, v{raw(2*n+h)}, v{raw(2*n+h)+1}")
                cv.append(f"v_cvt_pk_bf16_f32 v{fr(n)+2*h+1}, v{raw(2*n+h)+2}, v{raw(2*n+h)+3}")
        mf = []
        if 1 <= n <= 24:
            f = frs[n - 1]
            if f[3] and f[0] == "n":
                need = [x for x in pend if x[0] <= f[1] - 2]
                for x in need:
                    A(x[1])
                pend = [x for x in pend if x[0] > f[1] - 2]
            for mt in range(4):
                d = vr(dst(f, mt))
                mf.append(f"v_mfma_f32_16x16x32_bf16 {d}, {vr(fr(n-1))}, {vr(PQ(mt, f[2]))}, {0 if f[3] else d}")
        take = pend[:14]
        pend = pend[14:]
        work = cv + [x[1] for x in take]
        for g in (interleave(mf, work) if mf else work):
            A(g)
        pend += nxt
        nxt = []
        if 1 <= n <= 24 and frs[n - 1][4]:
            f = frs[n - 1]
            nxt = [((f[1] if f[0] == "n" else 5 * f[1] - 0.5), x) for x in post(f)]
    for x in pend + nxt:
        A(x[1])
    stamp(A, 11, 1, vt=vT0)
    A(f"s_setprio {OPT['APRIO2']}")
    WF = 192
    A(f"v_add_u32 v{vT0}, s4, v{vL16}")
    A.fence()

    def rd_wo(u):
        for nt in range(5):
            A(f"ds_read_b128 {vr(WF+20*(u%2)+4*nt)}, v{vT0} offset:{(u*5+nt)*1024}")
    E = Asm()
    red_setup(E, vSigA, vSigV)
    rs = [t for _, t in E.lines]
    rd_wo(0)
    for u in range(5):
        if u + 1 < 5:
            rd_wo(u + 1)
        A(f"s_waitcnt lgkmcnt({5 if u < 4 else 0})")
        if u == 0:
            A(f"v_mov_b32 v{vT1}, 1")
            A(f"ds_write_b32 v{vT2}, v{vT1} offset:16")
        mf = []
        for nt in range(5):
            for mt in range(4):
                d = vr(acc(nt, mt))
                mf.append(f"v_mfma_f32_16x16x32_bf16 {d}, {vr(WF+20*(u%2)+4*nt)}, {vr(O(u, mt))}, {d if u else 0}")
        k = (len(rs) + 3) // 4
        for g in interleave(mf, rs[u*k:(u+1)*k]):
            A(g)
    stamp(A, 1, 1, vt=vSigA)
    A.fence()
    for t in range(20):
        A(f"ds_write_b128 v{vT0}, {vr(ACC+4*t)} offset:{5120+t*1024}")
    A("s_branch L2_reduce")

    A.label("L2_ffn")
    q = []

    def ldW(j):
        for g in ldW_groups(j):
            A(g)
        q.extend([("W", j)] * 5)

    def ldH1(j, mt):
        if j == NK - 1 and mt == 0:
            A(f"s_add_u32 s{sHo}, s{sHo}, s{sLast}")
        A(f"buffer_load_dwordx4 {vr(HQ[4*(j%HD)+mt])}, v{vL16}, {srd(S_WS)}, s{sHo} offen offset:{mt*1024}{HSC}")
        if mt == 3:
            A(f"s_add_u32 s{sHo}, s{sHo}, 4096")
            A(f"s_cmp_eq_u32 s{sHo}, s{sHe}")
            A(f"s_cselect_b32 s{sHo}, s{sHb}, s{sHo}")
        q.append(("H", j, mt))

    def ldH(j):
        for mt in range(4):
            ldH1(j, mt)
    signal(0)
    A(f"s_cmp_lg_u32 s{sWoDone}, 0")
    A("s_cbranch_scc1 L2_ws")
    ffn_setup(A)
    A.label("L2_ws")
    A(f"s_sub_u32 s10, s{sWave}, 4")
    A("s_lshl_b32 s10, s10, 1")
    A("s_lshl_b32 s10, 7, s10")
    A(f"v_mov_b32 v{vT1}, 0")
    A(f"s_cmp_gt_u32 s{sWoDone}, 1")
    A("s_cbranch_scc1 L2_w0")
    ldW(0)
    ldW(1)
    A.label("L2_w0")
    assert OPT["NPRE"] == 2
    for j in range(2, WD):
        if j == OPT["EPOLL"]:
            A(f"buffer_load_dword v{vT2}, v{vT1}, {srd(S_WS)}, s{sFl} offen sc1")
        ldW(j)
    if OPT["EPOLL"]:
        A(f"s_waitcnt vmcnt({5*(WD-OPT['EPOLL'])})")
        A(f"v_readfirstlane_b32 s{sTmp3}, v{vT2}")
        A(f"s_and_b32 s{sTmp3}, s{sTmp3}, s10")
        A(f"s_cmp_eq_u32 s{sTmp3}, s10")
        A(f"s_cbranch_scc1 L2_h_ok")
    stamp(A, 4, 1, wave=4, vt=vT0)
    poll_flag(A, "L2_h", sFl, "s10", "s10", vT0)
    stamp(A, 5, 1, wave=4, vt=vT0)
    stamp(A, 14, 1, wave=4, vt=vT0, clk=True)
    q.clear()
    for j in range(HD):
        ldH(j)
    A(f"s_setprio {OPT['FPRIO']}")
    for j in range(NK):
        for mt in range(4):
            last = max(i for i, e in enumerate(q) if e[1] == j and (e[0] == "W" or e[2] <= mt))
            A(f"s_waitcnt vmcnt({len(q)-1-last})")
            for nt in range(5):
                d = vr(AQ[nt*4+mt])
                if not OPT["NOMF"]: A(f"v_mfma_f32_16x16x32_bf16 {d}, {vr(WQ[5*(j%WD)+nt])}, {vr(HQ[4*(j%HD)+mt])}, {d if j else 0}")
            if j + HD < NK:
                ldH1(j + HD, mt)
        if j + WD < NK:
            ldW(j + WD)
    A("s_setprio 0")
    stamp(A, 6, 1, wave=4, vt=vT0)
    stamp(A, 15, 1, wave=4, vt=vT0, clk=True)
    A("s_waitcnt vmcnt(0)")
    red_setup(A, vSigA, vSigV)
    A(f"s_sub_u32 s3, s{sWave}, 4")
    A("s_mul_i32 s8, s3, 14336")
    A("s_cmp_ge_u32 s3, 2")
    A(f"s_cselect_b32 s9, {135168 - 2*14336}, 0")
    A("s_add_u32 s8, s8, s9")
    A(f"v_add_u32 v{vT0}, s8, v{vL16}")
    A("s_add_u32 s9, s8, 13456")
    A(f"v_mov_b32 v{vT2}, s9")
    A(f"s_mov_b32 s{sSpin}, 0")
    A.label("L2_wfree")
    A(f"ds_read_b32 v{vT1}, v{vT2}")
    A("s_waitcnt lgkmcnt(0)")
    A(f"v_readfirstlane_b32 s9, v{vT1}")
    A(f"s_add_u32 s{sSpin}, s{sSpin}, 1")
    A("s_cmp_eq_u32 s9, 1")
    A("s_cbranch_scc1 L2_wfree_ok")
    A(f"s_cmp_gt_u32 s{sSpin}, {SPIN_MAX*16}")
    A("s_cbranch_scc1 L2_wfree_ok")
    A("s_sleep 2")
    A("s_branch L2_wfree")
    A.label("L2_wfree_ok")
    A("s_mul_i32 s8, s3, 25600")
    A(f"s_add_u32 s8, s8, {WO_LDS}")
    A(f"v_add_u32 v{vT1}, s8, v{vL16}")
    A("s_lshl_b32 s8, s3, 10")
    A(f"v_add_u32 v{vT2}, s8, v{vL16}")
    for t in range(20):
        if t < 14:
            A(f"ds_write_b128 v{vT0}, {vr(AQ[t])} offset:{t*1024}")
        elif t < 19:
            A(f"ds_write_b128 v{vT1}, {vr(AQ[t])} offset:{(t-14)*1024}")
        else:
            A(f"ds_write_b128 v{vT2}, {vr(AQ[t])} offset:28672")

    A.label("L2_reduce")
    A("s_setprio 0")
    A("s_waitcnt lgkmcnt(0)")
    stamp(A, 12, 1, vt=vSigA)
    A("s_barrier")
    stamp(A, 13, 1, vt=vSigA)
    R = lambda j: 8 + 32 * j

    def rds(j):
        A(f"v_add_u32 v{vT0}, {2*25600}, v{RA+5*j}")
        for w in range(4):
            A(f"ds_read_b128 {vr(R(j)+4*w)}, v{RA+5*j if w < 2 else vT0} offset:{(w%2)*25600}")
        for f in range(4):
            A(f"ds_read_b128 {vr(R(j)+16+4*f)}, v{RA+5*j+1+f}")

    def fin(j):
        r = R(j)
        for st in (16, 8, 4):
            for i in range(0, st, 2):
                pk_mul(A, r + i, ("p", r + i), ("p", r + st + i), op="add")
        x0, x1 = XR + 2 * j, XR + 2 * j + 1
        A(f"v_lshlrev_b32 v{r+4}, 16, v{x0}")
        A(f"v_and_b32 v{r+5}, 0xffff0000, v{x0}")
        A(f"v_lshlrev_b32 v{r+6}, 16, v{x1}")
        A(f"v_and_b32 v{r+7}, 0xffff0000, v{x1}")
        for i in range(0, 4, 2):
            pk_mul(A, r + i, ("p", r + i), ("p", r + 4 + i), op="add")
        A(f"v_cvt_pk_bf16_f32 v{x0}, v{r}, v{r+1}")
        A(f"v_cvt_pk_bf16_f32 v{x1}, v{r+2}, v{r+3}")
        A(f"buffer_store_dwordx2 {vr(x0, 2)}, v{OA+j}, {srd(S_OUT)}, 0 offen" + ["", " sc1", " nt"][OPT["OUTSC"]])
    rds(0)
    rds(1)
    A("s_waitcnt vmcnt(0) lgkmcnt(8)")
    fin(0)
    A(f"s_cmp_ge_u32 s{sWave}, 4")
    A("s_cbranch_scc1 L2_last")
    rds(2)
    A("s_waitcnt lgkmcnt(0)")
    fin(2)
    A.label("L2_last")
    A("s_waitcnt lgkmcnt(0)")
    fin(1)
    A.label("L2_done")
    stamp(A, 2, 1, vt=vSigA)


def descriptor(name, vgpr=256):
    return f""".amdhsa_kernel {name}
  .amdhsa_next_free_vgpr {vgpr}
  .amdhsa_next_free_sgpr 102
  .amdhsa_accum_offset {vgpr}
  .amdhsa_group_segment_fixed_size 0
  .amdhsa_kernarg_size 80
  .amdhsa_user_sgpr_count 2
  .amdhsa_user_sgpr_kernarg_segment_ptr 1
  .amdhsa_system_sgpr_workgroup_id_x 1
.end_amdhsa_kernel
"""


def probe(A):
    A(".p2align 8")
    A.label("pre_kernel")
    if OPT["PROBE"] == 2:
        A("s_cmp_ge_u32 s2, 256")
        A("s_cbranch_scc1 L_pre_exit")
        load_ptrs(A)
        A("s_lshl_b32 s3, s2, 9")
        A("v_add_u32 v1, s3, v0")
        A("v_lshlrev_b32 v1, 5, v1")
        A("s_waitcnt lgkmcnt(0)")
        for k, (p, n) in enumerate(((P_X, 2048*1280), (P_WQKV, 640*3840), (P_WO, 640*1280), (P_G, 640*3456), (P_U, 640*3456), (P_D, 1728*1280))):
            mk_srd(A, 36 + 4*k, p, n)
            A(f"buffer_load_dword v{2+k}, v1, {srd(36+4*k)}, 0 offen")
        A("s_waitcnt vmcnt(0)")
        A.label("L_pre_exit")
    A("s_endpgm")


def main():
    A = Asm()
    kernel1(A)
    K = NAME + "_kernel"
    launch = f"; @launch grid=(256,1,1) block=(512,1,1) lds={LDS_TOTAL}"
    extra = ""
    if OPT["PROBE"]:
        probe(A)
        launch = f"; @launch kernel=pre_kernel grid=(256,1,1) block=(512,1,1) lds=0\n; @launch kernel={K} grid=(256,1,1) block=(512,1,1) lds={LDS_TOTAL}"
        if OPT["PROBE"] == 3:
            launch = f"; @launch kernel={K} grid=(256,1,1) block=(512,1,1) lds={LDS_TOTAL}\n; @launch kernel={K} grid=(256,1,1) block=(512,1,1) lds={LDS_TOTAL}"
        extra = ".p2align 6\n" + descriptor("pre_kernel", 16)
    head = f"""; LN + linear attention + GEGLU FFN, one persistent launch (generated by dev/gen.py)
{launch}
.amdgcn_target "amdgcn-amd-amdhsa--gfx950"
.text
.globl {K}
.type {K},@function
"""
    tail = '.section .rodata,"a"\n.p2align 6\n' + descriptor(K) + extra
    open(sys.argv[1], "w").write(head + A.render() + tail)


main()
```

```python
import sys, struct, math
from asmlib import Asm, interleave

NAME = "parallel_sum__linear_attn_block__geglu_ffn__prompt"

OPT = dict(ROTQ=1, STAMP=0, NODMA=0, SAME=0, NOSWZ=0, NORD=0, P2ROT=1, WARM=1, PLAIN=0, BYTEFLAG=0, NBUP=6, SW=0, P2ONLY=0, P2SAME=0, NOATT=0, NOMF=0, FPRIO=1, NPRE=2, CGPERM=1, OUTSC=0, CODEWARM=2, TLBWARM=0, PUBST=0, GPK=1, APRIO=2, APRIO2=0, FINEH=1, XMAP=0, FAKE16=0, PSLEEP=2, EPOLL=0, PROBE=0, WOEPI=0)
for a in sys.argv[2:]:
    k, v = a.split("=")
    OPT[k] = int(v)

OPT_WOEPI = ['', 'K', 'KQ', 'KQG'][OPT['WOEPI']]
HSC = '' if OPT['PLAIN'] else ' sc1'
WS_H = 0x000000
WS_PQ = 0x700000
WS_W2 = 0xA00000
WS_ST = 0xD00000
WS_CS = 0xD10000
WS_KVA = 0xD80000
WS_FL = 0xD90000
FL_HC = 0
FL_KV = 16 * 256
FL_ROW = 128
WS_STAMP = 0xF00000
WS_SIZE = 0x1000000
OOB = 0x40000000


def f32(x):
    return "0x%08x" % struct.unpack("<I", struct.pack("<f", x))[0]


LOG2E = 1.4426950408889634
GC1 = -2.0 * math.sqrt(2.0 / math.pi) * LOG2E
GC2 = GC1 * 0.044715

P_X, P_WQKV, P_WO, P_BX, P_G, P_U, P_D, P_OUT, P_DBG, P_WS = 16, 18, 20, 22, 24, 26, 28, 30, 32, 34
S_X, S_W, S_WS, S_DBG, S_T = 36, 40, 44, 48, 52


def srd(b):
    return f"s[{b}:{b+3}]"


def vr(b, n=4):
    return f"v[{b}:{b+n-1}]"


def mk_srd(A, s, p, nbytes):
    A(f"s_mov_b32 s{s}, s{p}")
    A(f"s_and_b32 s{s+1}, s{p+1}, 0xffff")
    A(f"s_mov_b32 s{s+2}, {nbytes}")
    A(f"s_mov_b32 s{s+3}, 0x20000")


def load_ptrs(A):
    A("s_load_dwordx16 s[16:31], s[0:1], 0")
    A("s_load_dwordx4 s[32:35], s[0:1], 64")


def wave_allreduce_add(A, v, t, s0):
    A(f"v_add_f32_dpp v{v}, v{v}, v{v} quad_perm:[1,0,3,2] row_mask:0xf bank_mask:0xf")
    A(f"v_add_f32_dpp v{v}, v{v}, v{v} quad_perm:[2,3,0,1] row_mask:0xf bank_mask:0xf")
    A(f"v_add_f32_dpp v{v}, v{v}, v{v} row_half_mirror row_mask:0xf bank_mask:0xf")
    A(f"v_add_f32_dpp v{v}, v{v}, v{v} row_mirror row_mask:0xf bank_mask:0xf")
    for i in range(4):
        A(f"v_readlane_b32 s{s0+i}, v{v}, {16*i}")
    A(f"v_mov_b32 v{v}, s{s0}")
    A(f"v_mov_b32 v{t}, s{s0+2}")
    A(f"v_add_f32 v{v}, s{s0+1}, v{v}")
    A(f"v_add_f32 v{t}, s{s0+3}, v{t}")
    A(f"v_add_f32 v{v}, v{v}, v{t}")


def lstamp(A, k):
    if OPT["STAMP"] != 4:
        return
    A("s_memrealtime s[96:97]")
    A("s_waitcnt lgkmcnt(0)")
    A(f"v_writelane_b32 v28, s96, {k}")


def stamp(A, idx, kern, dyn=None, clk=False, wave=0, vt=None):
    if vt is None:
        vt = (26 if idx != 3 else 50) if kern == 0 else 254
    if not OPT["STAMP"]:
        return
    if OPT["STAMP"] == 9:
        slot = {(0, 0): (1, True), (0, 1): (2, False), (0, 2): (3, False), (0, 3): (5, False), (1, 0): (6, False), (1, 5): (7, False),
                (1, 3): (9, False), (1, 1): (10, False), (1, 2): (11, False), (1, 6): (13, False)}.get((kern, idx))
        if slot is None or clk:
            return
        lab = f"L_st_{kern}_{idx}_{len(A.lines)}"
        A(f"s_cmp_lg_u32 s{sWave}, {wave}")
        A(f"s_cbranch_scc1 {lab}")
        A("s_memrealtime s[96:97]")
        A("s_waitcnt lgkmcnt(0)")
        if slot[1]:
            A("s_not_b32 s96, s96")
        A(f"v_mov_b32 v{vt}, s96")
        A(f"v_mov_b32 v{vt+1}, {OOB}")
        A(f"v_writelane_b32 v{vt+1}, {slot[0]*4}, 0")
        A(f"buffer_atomic_umax v{vt}, v{vt+1}, {srd(S_DBG)}, 0 offen sc1")
        A.label(lab)
        return
    lab = f"L_st_{kern}_{idx}_{len(A.lines)}"
    A(f"s_cmp_lg_u32 s{sWave}, {wave}")
    A(f"s_cbranch_scc1 {lab}")
    A("s_memtime s[96:97]" if clk else "s_memrealtime s[96:97]")
    A("s_waitcnt lgkmcnt(0)")
    A(f"s_lshl_b32 s98, s2, 6")
    A(f"s_add_u32 s98, s98, {WS_STAMP + kern*0x8000 + idx*4}")
    if dyn is not None:
        A(f"s_lshl_b32 s99, s{dyn}, 2")
        A("s_add_u32 s98, s98, s99")
    A(f"v_mov_b32 v{vt}, s96")
    A(f"v_mov_b32 v{vt+1}, 0")
    A(f"buffer_store_dword v{vt}, v{vt+1}, {srd(S_WS)}, s98 offen")
    A.label(lab)


sWave, sRB, sCG, sIt, sKW, sKWn, sKX, sKXn, sWslot, sRslot, sXslot, sStepW, sCSit, sSpec, sTmp, sTmp2, sMW, sNW, sWrapW, sTmp3, sC0, sRow, sSpin, sOdd, sPub, sUw, sUl = range(56, 83)
X_LDS = 0
W_LDS = 32768
W_SLOT = 24576
MISC_LDS = W_LDS + 5 * W_SLOT
LDS_TOTAL = 163840

vLane, vT0, vT1, vT2, vT3 = 1, 2, 3, 4, 5
vSigA, vSigV = 6, 7
vXo = 6
vWo = 8
vXa = 11
vWb = 15
vWa = 20
vPa = 25
SPIN_MAX = 0x100000
vSel = 52
vPoll = 30
vCSA = 32
vCSP = 32
vSt = 31
KST = lambda j: (44 + 4 * j) if j < 3 else (232 + 4 * (j - 3))
vBUF = 56
vACC = 152


KVT = [[(0, 0), (0, 1), (0, 2), (1, 0), (1, 1)], [(0, 3), (0, 4), (1, 2), (1, 3), (1, 4)]]


def k1_gemm(A, typ):
    G = typ == "G"
    MT = 2 if G else 1
    NT = 3 if G else 5
    NW_ = 6 if G else 5
    pitch = 3456 if G else 3840
    XB = lambda P, mt, kk: vBUF + 48 * P + 4 * (mt * 2 + kk)
    WBf = lambda P, a, kk: vBUF + 48 * P + 4 * MT * 2 + 4 * (a * 2 + kk)
    acc = lambda mt, a: vACC + 16 * (mt * NT + a)
    L = lambda s: f"L_{typ}_{s}"

    if G:
        A(f"s_lshr_b32 s{sMW}, s{sWave}, 2")
        A(f"s_and_b32 s{sNW}, s{sWave}, 3")
        mk_srd(A, S_W, P_G, 640 * 3456)
        mk_srd(A, S_T, P_U, 640 * 3456)
    else:
        A(f"s_lshr_b32 s{sMW}, s{sWave}, 1")
        A(f"s_and_b32 s{sNW}, s{sWave}, 1")
        mk_srd(A, S_W, P_WQKV, 640 * 3840)
    A(f"s_and_b32 s{sTmp2}, s{sWave}, 3")
    A(f"v_lshrrev_b32 v{vT0}, 3, v{vLane}")
    A(f"s_lshl_b32 s{sTmp3}, s{sTmp2}, 3")
    A(f"v_add_u32 v{vT0}, s{sTmp3}, v{vT0}")
    A(f"v_mul_u32_u24 v{vT0}, {pitch}, v{vT0}")
    A(f"v_and_b32 v{vT1}, 7, v{vLane}")
    A(f"v_lshrrev_b32 v{vT2}, 2, v{vLane}")
    A(f"v_and_b32 v{vT2}, 4, v{vT2}")
    A(f"v_xor_b32 v{vT1}, v{vT1}, v{vT2}")
    if G:
        A(f"s_mul_i32 s{sTmp3}, s{sCG}, {0 if OPT['SAME'] else 384}")
        A(f"v_add_u32 v{vT0}, s{sTmp3}, v{vT0}")
        A(f"v_lshl_add_u32 v{vWo}, v{vT1}, 4, v{vT0}")
        A(f"v_xor_b32 v{vT1}, 2, v{vT1}")
        A(f"v_lshl_add_u32 v{vWo+1}, v{vT1}, 4, v{vT0}")
        chunks = [(S_W, vWo, 0), (S_W, vWo, 128), (S_W, vWo, 256), (S_T, vWo + 1, 0), (S_T, vWo + 1, 128), (S_T, vWo + 1, 256)]
    elif typ == "Q":
        A(f"s_sub_u32 s{sTmp3}, s{sCG}, 13")
        A(f"s_mul_i32 s{sTmp3}, s{sTmp3}, 640")
        A(f"v_add_u32 v{vT0}, s{sTmp3}, v{vT0}")
        A(f"v_lshl_add_u32 v{vWo}, v{vT1}, 4, v{vT0}")
        chunks = [(S_W, vWo, 128 * i) for i in range(5)]
    else:
        A(f"s_sub_u32 s4, s{sCG}, 9")
        A(f"s_and_b32 s{sOdd}, s4, 1")
        A(f"s_mul_i32 s6, s4, 320")
        A(f"s_add_u32 s6, s6, 1280")
        A(f"s_lshl_b32 s7, s{sOdd}, 6")
        A(f"s_add_u32 s7, s7, s6")
        A(f"s_cmp_eq_u32 s{sOdd}, 0")
        A(f"s_cselect_b32 s8, 256, 0")
        A(f"s_add_u32 s8, s8, s6")
        A(f"v_lshl_add_u32 v{vT2}, v{vT1}, 4, v{vT0}")
        A(f"v_add_u32 v{vWo}, s7, v{vT2}")
        A(f"v_xor_b32 v{vT3}, 2, v{vT1}")
        A(f"v_lshl_add_u32 v{vT2}, v{vT3}, 4, v{vT0}")
        A(f"v_add_u32 v{vWo+2}, s7, v{vT2}")
        A(f"v_lshrrev_b32 v{vT2}, 2, v{vT1}")
        A(f"v_lshlrev_b32 v{vT3}, 1, v{vT2}")
        A(f"v_xor_b32 v{vT3}, v{vT3}, v{vT1}")
        A(f"v_and_b32 v{vT3}, 3, v{vT3}")
        A(f"v_lshl_add_u32 v{vT3}, v{vT3}, 4, v{vT0}")
        A(f"v_mul_u32_u24 v{vT2}, 1280, v{vT2}")
        A(f"v_add3_u32 v{vWo+1}, v{vT3}, v{vT2}, s8")
        chunks = [(S_W, vWo, 0), (S_W, vWo, 128), (S_W, vWo + 2, 1280), (S_W, vWo + 2, 1408), (S_W, vWo + 1, 0)]
    A(f"s_lshr_b32 s{sTmp}, s{sWave}, 2")
    A(f"s_lshl_b32 s{sTmp2}, s{sTmp2}, 10")
    A(f"s_add_u32 s{sWrapW}, s{sTmp2}, {W_LDS + 5*W_SLOT}")
    A(f"s_mul_i32 s{sWslot}, s{sTmp}, {W_SLOT}")
    A(f"s_add_u32 s{sWslot}, s{sWslot}, s{sTmp2}")
    A(f"s_add_u32 s{sWslot}, s{sWslot}, {W_LDS}")
    A(f"s_mul_i32 s{sKW}, s{sC0}, {64*pitch}")
    A(f"s_mul_i32 s{sTmp}, s{sTmp}, {32*pitch}")
    A(f"s_add_u32 s{sKW}, s{sKW}, s{sTmp}")
    A(f"s_mov_b32 s{sKWn}, 0")

    def dmaW():
        out = []
        for i, (sr, vo, imm) in enumerate(chunks):
            out.append(f"s_add_u32 m0, s{sWslot}, {i*4096 - imm}\n" +
                       "s_nop 0\n" +
                       f"buffer_load_dwordx4 v{vo}, {srd(sr)}, s{sKW} offen offset:{imm} lds")
        out.append(f"s_add_u32 s{sWslot}, s{sWslot}, {2*W_SLOT}\n"
                   f"s_cmp_ge_u32 s{sWslot}, s{sWrapW}\n"
                   f"s_cselect_b32 s{sTmp}, {5*W_SLOT}, 0\n"
                   f"s_sub_u32 s{sWslot}, s{sWslot}, s{sTmp}\n"
                   f"s_add_u32 s{sKW}, s{sKW}, {64*pitch}\n"
                   f"s_cmp_ge_u32 s{sKW}, {640*pitch}\n"
                   f"s_cselect_b32 s{sTmp}, {640*pitch}, 0\n"
                   f"s_sub_u32 s{sKW}, s{sKW}, s{sTmp}")
        return out

    def dmaX():
        out = []
        for i in range(4):
            out.append(f"s_add_u32 m0, s{sXslot}, {i*1024}\n" +
                       f"s_add_u32 s{sTmp}, s{sKX}, {16*1280}\n" +
                       f"buffer_load_dwordx4 v{vXo+i%2}, {srd(S_X)}, s{sKX if i < 2 else sTmp} offen lds")
        out.append(f"s_xor_b32 s{sXslot}, s{sXslot}, 16384\n"
                   f"s_add_u32 s{sKX}, s{sKX}, 128\n"
                   f"s_cmp_eq_u32 s{sKX}, 1280\n"
                   f"s_cselect_b32 s{sKX}, 0, s{sKX}")
        return out

    A(f"s_cmp_lt_u32 s{sWave}, 4")
    A(f"s_cbranch_scc1 {L('p1')}")
    for g in dmaX():
        A(g)
    A(f"s_branch {L('p2')}")
    A.label(L("p1"))
    for g in dmaW():
        A(g)
    A.label(L("p2"))
    lstamp(A, 16)

    if OPT["STAMP"] == 3:
        stamp(A, 4, 0, wave=OPT["SW"])
    A(f"v_and_b32 v{vT0}, 31, v{vLane}")
    A(f"v_lshrrev_b32 v{vT1}, 5, v{vLane}")
    A(f"v_bfe_u32 v{vT2}, v{vLane}, 1, 3")
    A(f"v_xor_b32 v{vT1}, v{vT1}, v{vT2}")
    A(f"s_lshl_b32 s{sTmp}, s{sMW}, {13 if G else 12}")
    A(f"v_lshl_add_u32 v{vT0}, v{vT0}, 7, s{sTmp}")
    for kap in range(2):
        for kk in range(2):
            A(f"v_xor_b32 v{vT2}, {4*kap+2*kk}, v{vT1}")
            A(f"v_lshl_add_u32 v{vXa+2*kap+kk}, v{vT2}, 4, v{vT0}")
    A(f"v_lshrrev_b32 v{vT0}, 5, v{vLane}")
    A(f"v_lshlrev_b32 v{vT0}, 10, v{vT0}")
    A(f"v_bfe_u32 v{vT1}, v{vLane}, 2, 2")
    A(f"v_lshl_add_u32 v{vT0}, v{vT1}, 7, v{vT0}")
    A(f"v_and_b32 v{vT2}, 3, v{vLane}")
    if typ != "K":
        A(f"v_lshlrev_b32 v{vT3}, 1, v{vT2}")
        A(f"v_lshrrev_b32 v{vT2}, 1, v{vT2}")
        A(f"v_and_b32 v{vT3}, 2, v{vT3}")
        A(f"v_or_b32 v{vT2}, v{vT2}, v{vT3}")
    A(f"v_lshl_add_u32 v{vT0}, v{vT2}, 3, v{vT0}")
    A(f"v_and_b32 v{vT1}, 2, v{vT1}")
    A(f"v_bfe_u32 v{vT2}, v{vLane}, 4, 1")
    A(f"v_xor_b32 v{vT1}, v{vT1}, v{vT2}")
    if G:
        A(f"v_mul_u32_u24 v{vT2}, {3*4096}, v{vT2}")
        A(f"v_add_u32 v{vT0}, v{vT0}, v{vT2}")
        for a in range(3):
            A(f"s_mul_i32 s{sTmp}, s{sNW}, 3")
            A(f"s_add_u32 s{sTmp}, s{sTmp}, {a}")
            A(f"s_lshr_b32 s{sTmp2}, s{sTmp}, 2")
            A(f"s_lshl_b32 s{sTmp2}, s{sTmp2}, 12")
            A(f"s_and_b32 s{sTmp}, s{sTmp}, 3")
            A(f"v_xor_b32 v{vT2}, s{sTmp}, v{vT1}")
            A(f"v_lshl_add_u32 v{vT2}, v{vT2}, 5, v{vT0}")
            A(f"v_add_u32 v{vWb+a}, s{sTmp2}, v{vT2}")
    else:
        for a in range(5):
            if typ == "Q":
                A(f"s_mul_i32 s{sTmp}, s{sNW}, 5")
                A(f"s_add_u32 s{sTmp}, s{sTmp}, {a}")
                A(f"s_lshr_b32 s{sTmp2}, s{sTmp}, 1")
                A(f"s_lshl_b32 s{sTmp2}, s{sTmp2}, 12")
                A(f"s_and_b32 s{sTmp}, s{sTmp}, 1")
                A(f"s_lshl_b32 s{sTmp}, s{sTmp}, 1")
                A(f"v_xor_b32 v{vT2}, s{sTmp}, v{vT1}")
                A(f"v_lshl_add_u32 v{vT2}, v{vT2}, 5, v{vT0}")
                A(f"v_add_u32 v{vWb+a}, s{sTmp2}, v{vT2}")
            else:
                def loc(pi, nw, odd):
                    m, p = pi // 5, 5 * nw + pi % 5
                    if odd:
                        L_, tau = (4, p + 2 * m) if p < 2 else (2 * m + ((p - 2) >> 2), (p - 2) & 3)
                    else:
                        L_, tau = (4, p - 8 + 2 * m) if p >= 8 else (2 * m + (p >> 2), p & 3)
                    return L_ * 4 + (tau ^ m)
                if a == 0:
                    A(f"s_lshl_b32 s9, s{sNW}, 1")
                    A(f"s_add_u32 s9, s9, s{sOdd}")
                    A("s_lshl_b32 s9, s9, 3")
                    A(f"v_bfe_u32 v{vT2}, v{vLane}, 4, 1")
                    A(f"v_cmp_eq_u32 vcc, 1, v{vT2}")
                    A(f"v_and_b32 v{vT1}, 2, v{vT1}")
                for sub, sr in ((0, sTmp), (1, sTmp2)):
                    tab = sum(loc(2 * a + sub, nw, odd) << (8 * (2 * nw + odd)) for nw in range(2) for odd in range(2))
                    A(f"s_lshr_b32 s{sr}, {tab}, s9")
                    A(f"s_and_b32 s{sr}, s{sr}, 0xff")
                A(f"v_mov_b32 v{vT2}, s{sTmp}")
                A(f"v_mov_b32 v{vT3}, s{sTmp2}")
                A(f"v_cndmask_b32 v{vT2}, v{vT2}, v{vT3}, vcc")
                A(f"v_lshrrev_b32 v{vT3}, 2, v{vT2}")
                A(f"v_lshl_add_u32 v{vT3}, v{vT3}, 12, v{vT0}")
                A(f"v_and_b32 v{vT2}, 3, v{vT2}")
                A(f"v_xor_b32 v{vT2}, v{vT2}, v{vT1}")
                A(f"v_lshl_add_u32 v{vWb+a}, v{vT2}, 5, v{vT3}")
        if typ == "K":
            kv_addr_setup(A)
    A(f"s_mov_b32 s{sRslot}, {W_LDS}")
    poll_addr(A)
    A(f"v_and_b32 v{vT0}, 15, v{vLane}")
    A(f"v_bfe_u32 v{vT1}, v{vLane}, 4, 1")
    A(f"v_cmp_eq_u32 vcc, v{vT0}, v{vT1}")
    A(f"v_mov_b32 v{vT2}, 0x3f803f80")
    A(f"v_cndmask_b32 v{vSel}, 0, v{vT2}, vcc")
    for i in range(1, 4):
        A(f"v_mov_b32 v{vSel+i}, v{vSel}")
    for i in range(4 * NT):
        A(f"v_mov_b32 v{vCSA+i}, 0")
    for i in range(16 * MT * NT):
        A(f"v_mov_b32 v{vACC+i}, 0")
    A(f"s_mov_b32 s{sPub}, 2")
    A(f"s_bitcmp1_b32 0x88ff, s{sRB}")
    A(f"s_cselect_b32 s{sCSit}, 0, 99")
    A(f"s_cmp_eq_u32 s{sMW}, 0")
    A(f"s_cselect_b32 s{sCSit}, s{sCSit}, 99")
    A(f"s_mov_b32 s{sTmp}, 0xe")
    A(f"s_cmp_eq_u32 s{sWave}, 0")
    A(f"s_cselect_b32 s{sSpec}, s{sTmp}, 0")
    A(f"s_cmp_eq_u32 s{sWave}, 3")
    A(f"s_cselect_b32 s{sTmp}, 0xc0, 0")
    A(f"s_or_b32 s{sSpec}, s{sSpec}, s{sTmp}")
    A(f"s_or_b32 s{sSpec}, s{sSpec}, 0x300")
    A(f"s_mov_b32 s{sIt}, 0")
    A(f"s_mov_b32 s{sSpin}, 0")

    def reads(P, kap):
        pre = [f"v_add_u32 v{vWa+a}, s{sRslot}, v{vWb+a}" for a in range(NT)]
        post = [f"s_add_u32 s{sRslot}, s{sRslot}, {W_SLOT}\n"
                f"s_cmp_eq_u32 s{sRslot}, {W_LDS+5*W_SLOT}\n"
                f"s_cselect_b32 s{sRslot}, {W_LDS}, s{sRslot}"]
        out = []
        for kk in range(2):
            for mt in range(MT):
                out.append(f"ds_read_b128 {vr(XB(P, mt, kk))}, v{vXa+2*kap+kk} offset:{mt*4096}")
            for a in range(NT):
                for rho in range(2):
                    out.append(f"ds_read_b64_tr_b16 {vr(WBf(P, a, kk)+2*rho, 2)}, v{vWa+a} offset:{kk*2048+rho*512}")
        if OPT["NORD"]:
            out = []
        return pre, out, post

    def mfmas(P):
        out = []
        for kk in range(2):
            for a in range(NT):
                for mt in range(MT):
                    x, w, d = vr(XB(P, mt, kk)), vr(WBf(P, a, kk)), vr(acc(mt, a), 16)
                    if OPT["FAKE16"]:
                        for h in range(2):
                            dq = vr(acc(mt, a) + 8 * kk + 4 * h)
                            x2 = vr(XB(P, mt, h))
                            out.append(f"v_mfma_f32_16x16x32_bf16 {dq}, {w}, {x2}, {dq}")
                    elif typ == "K":
                        out.append(f"v_mfma_f32_32x32x16_bf16 {d}, {x}, {w}, {d}")
                    else:
                        out.append(f"v_mfma_f32_32x32x16_bf16 {d}, {w}, {x}, {d}")
        return out

    def cs_mfmas(P):
        return [f"v_mfma_f32_16x16x32_bf16 {vr(vCSA+4*a)}, {vr(WBf(P, a, kk))}, {vr(vSel)}, {vr(vCSA+4*a)}"
                for kk in range(2) for a in range(NT)]

    if OPT["STAMP"] == 3:
        stamp(A, 5, 0, wave=OPT["SW"])
    n = len(mfmas(0))
    f = lambda k: k / n
    nod = OPT["NODMA"]

    def loop(R):
        LL = lambda s: f"L_{typ}{R}_{s}"
        lstamp(A, 17)
        if R == "B":
            for g in dmaW():
                A(g)
        A(f"s_waitcnt vmcnt({NW_ + (4 if R == 'B' else 0)})")
        k1_stats(A, typ)
        lstamp(A, 18)
        A(f"s_waitcnt vmcnt({1 if R == 'A' else NW_ + 1})")
        lstamp(A, 19)
        A("s_barrier")
        pre, rd, post = reads(0, 0)
        for g in pre + rd + post:
            A(g)
        if R == "A":
            A("s_setprio 1")
            stamp(A, 1, 0)
            stamp(A, 14, 0, clk=True)
        else:
            for g in dmaX():
                A(g)
        A("s_waitcnt lgkmcnt(0)")
        lstamp(A, 20)
        for g in mfmas(0):
            A(g)
        if R == "A":
            A(f"s_cmp_lg_u32 s{sCSit}, 0")
            A(f"s_cbranch_scc1 {LL('pc0')}")
            for g in cs_mfmas(0):
                A(g)
            A.label(LL("pc0"))
            for g in dmaW():
                A(g)
            A(f"s_sub_u32 s{sUw}, s{sWave}, 1")
            A(f"s_cmp_gt_u32 s{sUw}, 1")
            A(f"s_cbranch_scc1 {LL('nou')}")
            A(f"s_lshl_b32 s{sU}, s{sCG}, 4")
            A(f"s_add_u32 s{sU}, s{sU}, s{sRB}")
            A(f"s_lshl_b32 s{sU}, s{sU}, 1")
            A(f"s_add_u32 s{sU}, s{sU}, s{sUw}")
            A(f"s_lshl_b32 s{sUl}, s{sUw}, 12")
            A(f"s_add_u32 s{sUl}, s{sUl}, {MISC_LDS}")
            w2_unit_dma(A, f"s{sUl}")
            A.label(LL("nou"))
        else:
            A("s_waitcnt vmcnt(5)")
        lstamp(A, 21)
        A("s_barrier")
        pre, rd, post = reads(1, 1)
        for g in pre + rd + post:
            A(g)
        if R == "B":
            for g in dmaW():
                A(g)
        A("s_waitcnt lgkmcnt(0)")
        lstamp(A, 22)
        for g in mfmas(1):
            A(g)
        if R == "A":
            for g in dmaW():
                A(g)
            A(f"s_cmp_eq_u32 s{sCSit}, 0")
            A(f"s_cbranch_scc1 {LL('cs1')}")
            A(f"s_waitcnt vmcnt({NW_})")
            A.label(LL("pc1"))
            A(f"s_cmp_gt_u32 s{sUw}, 1")
            A(f"s_cbranch_scc1 {LL('pc2')}")
            w2_unit_out(A, f"s{sUl}", (lambda t: (96, 100, 144, 148)[t]) if G else (lambda t: 232 + 4 * t) if typ == 'Q' else (lambda t: vBUF + 4 * t))
            A.label(LL("pc2"))
        else:
            A("s_waitcnt vmcnt(0)")
        lstamp(A, 23)
        A("s_barrier")
        if R == "B":
            for g in dmaX() + dmaW():
                A(g)
        for i in range(4):
            A(f"v_xor_b32 v{vXa+i}, 16384, v{vXa+i}")
        pre, rd, post = reads(0, 0)
        for g in pre + rd + post:
            A(g)
        A(f"s_mov_b32 s{sIt}, 1")
        A("s_waitcnt lgkmcnt(0)")
        lstamp(A, 0)
        A(".p2align 6")
        A.label(LL("loop"))
        pre, rd, post = reads(1, 1)
        for g in interleave(mfmas(0), (pre, 0.0, f(1)), (rd, f(1), 0.7), (post, 0.75, 0.85)):
            A(g)
        if R == "A":
            A(f"s_bitcmp1_b32 s{sSpec}, s{sIt}")
            A(f"s_cbranch_scc1 {LL('spec')}")
            A.label(LL("specr"))
            for g in dmaW():
                A(g)
            A(f"s_waitcnt vmcnt({NW_}) lgkmcnt(0)")
            A.label(LL("bar"))
        else:
            A("s_waitcnt vmcnt(0) lgkmcnt(0)")
        A("s_barrier")
        pre, rd, post = reads(0, 0)
        pre = [f"v_xor_b32 v{vXa+i}, 16384, v{vXa+i}" for i in range(2)] + pre
        post = post + [f"v_xor_b32 v{vXa+i}, 16384, v{vXa+i}" for i in range(2, 4)]
        tail = [f"s_add_u32 s{sIt}, s{sIt}, 1\ns_cmp_lt_u32 s{sIt}, 10"]
        if R == "B":
            dw = dmaW()
            nb = OPT["NBUP"]
            A(f"s_cmp_ge_u32 s{sIt}, 8")
            A(f"s_cbranch_scc1 {LL('nod')}")
            for g in dmaX() + dw[:nb]:
                A(g)
            for g in interleave(mfmas(1), (pre, 0.0, f(1)), (dw[nb:], 0.0, 0.4), (rd, f(1), 0.7), (post, 0.7, 0.8), (tail, f(n-2), f(n-1))):
                A(g)
            A.label(LL("end"))
        else:
            chk1 = tail
            for g in interleave(mfmas(1), (pre, 0.0, f(1)), (rd, f(1), 0.7), (post, 0.7, 0.8), (chk1, f(n-2), f(n-1))):
                A(g)
        if OPT["STAMP"] == 4:
            A("s_memrealtime s[96:97]")
            A(f"s_mov_b32 m0, s{sIt}")
        A("s_waitcnt lgkmcnt(0)")
        if OPT["STAMP"] == 4:
            A("v_writelane_b32 v28, s96, m0")
        A(f"s_cbranch_scc1 {LL('loop')}")
        A(f"s_branch {L('epi')}")

        if R == "B":
            A.label(LL("nod"))
            if typ not in OPT_WOEPI:
                A(f"s_cmp_eq_u32 s{sIt}, 9")
                A(f"s_cbranch_scc1 {LL('nod9')}")
                wo_early(A, 24, 7)
                A(f"s_branch {LL('nod2')}")
                A.label(LL("nod9"))
                wo_early(A, 72, 7)
                A.label(LL("nod2"))
            for g in interleave(mfmas(1), (pre, 0.0, f(1)), (rd, f(1), 0.7), (post, 0.7, 0.8), (tail, f(n-2), f(n-1))):
                A(g)
            A(f"s_branch {LL('end')}")
            return
        A.label(LL("cs1"))
        for g in cs_mfmas(1):
            A(g)
        A(f"v_and_b32 v{vT0}, 15, v{vLane}")
        A(f"v_lshrrev_b32 v{vT1}, 4, v{vLane}")
        A(f"v_lshlrev_b32 v{vT1}, 4, v{vT1}")
        A(f"v_lshl_add_u32 v{vT1}, v{vT0}, 6, v{vT1}")
        A(f"v_cmp_gt_u32 vcc, 2, v{vT0}")
        A(f"v_mov_b32 v{vT2}, {OOB}")
        A(f"v_cndmask_b32 v{vT1}, v{vT2}, v{vT1}, vcc")
        A(f"s_mul_i32 s{sTmp}, s{sCG}, 10")
        A(f"s_add_u32 s{sTmp}, s{sTmp}, s{sC0}")
        A(f"s_mul_i32 s{sTmp}, s{sTmp}, 1536")
        A(f"s_mul_i32 s{sTmp2}, s{sNW}, {NT*128}")
        A(f"s_add_u32 s{sTmp}, s{sTmp}, s{sTmp2}")
        A(f"s_add_u32 s{sTmp}, s{sTmp}, {WS_CS}")
        for a in range(NT):
            A(f"buffer_store_dwordx4 {vr(vCSA+4*a)}, v{vT1}, {srd(S_WS)}, s{sTmp} offen offset:{a*128} sc1")
        A(f"s_waitcnt vmcnt({NW_+NT})")
        A(f"s_branch {LL('pc1')}")

        def with_dma(nops, body):
            for g in dmaW():
                A(g)
            body()
            A(f"s_waitcnt vmcnt({NW_+nops}) lgkmcnt(0)")
            A(f"s_branch {LL('bar')}")
        A.label(LL("spec"))
        A(f"s_cmp_eq_u32 s{sIt}, 9")
        A(f"s_cbranch_scc1 {LL('sum')}")
        A(f"s_cmp_eq_u32 s{sIt}, 8")
        A(f"s_cbranch_scc1 {LL('go')}")
        A(f"s_cmp_eq_u32 s{sIt}, 7")
        A(f"s_cbranch_scc1 {LL('chk')}")
        A(f"s_cmp_eq_u32 s{sIt}, 6")
        A(f"s_cbranch_scc1 {LL('poll0')}")
        A.label(LL("pub"))

        A(f"s_cmp_lg_u32 s{sIt}, 2")
        A(f"s_cbranch_scc1 {LL('pub1')}")
        wait_zeroed(A, LL("wz"), True)
        A.label(LL("pub1"))

        def pub():
            A(f"s_cmp_eq_u32 s{sIt}, 3")
            A(f"s_cbranch_scc1 {LL('pub3')}")
            A(f"s_cmp_eq_u32 s{sIt}, 2")
            A(f"s_cbranch_scc1 {LL('pub2')}")
            A(f"buffer_load_dword v{vPoll}, off, {srd(S_DBG)}, 0 sc1")
            A(f"s_branch {LL('pub3')}")
            A.label(LL("pub2"))
            k1_publish(A)
            A.label(LL("pub3"))
        with_dma(1, pub)
        A.label(LL("poll0"))
        with_dma(1, lambda: A(f"buffer_load_dword v{vPoll}, v{vPa}, {srd(S_WS)}, 0 offen sc1"))
        A.label(LL("poll"))
        A("s_sleep 8")
        A(f"buffer_load_dword v{vPoll}, v{vPa}, {srd(S_WS)}, 0 offen sc1")
        A.label(LL("chk"))
        A("s_waitcnt vmcnt(0)")
        poll_cmp(A)
        A(f"s_add_u32 s{sSpin}, s{sSpin}, 1")
        A(f"s_cmp_gt_u32 s{sSpin}, {SPIN_MAX}")
        A(f"s_cbranch_scc1 {LL('specr')}")
        A(f"s_cmp_lg_u64 vcc, 0")
        A(f"s_cbranch_scc1 {LL('poll')}")
        A(f"s_branch {LL('specr')}")
        A.label(LL("go"))

        def go():
            A(f"v_lshlrev_b32 v{vT0}, 3, v0")
            A(f"v_cmp_gt_u32 vcc, {NT*(4 if G else 2)*16}, v0")
            A(f"v_mov_b32 v{vT2}, {OOB}")
            A(f"v_cndmask_b32 v{vT0}, v{vT2}, v{vT0}, vcc")
            A(f"s_mul_i32 s{sTmp}, s{sCG}, 15360")
            A(f"s_add_u32 s{sTmp}, s{sTmp}, {WS_CS}")
            for ch in range(10):
                if ch % 2 == 0 and ch:
                    A(f"s_add_u32 s{sTmp}, s{sTmp}, 3072")
                A(f"buffer_load_dwordx2 {vr(vCSP+2*ch, 2)}, v{vT0}, {srd(S_WS)}, s{sTmp} offen offset:{(ch%2)*1536} sc1")
            A(f"s_lshl_b32 s{sTmp}, s{sRB}, 10")
            A(f"s_add_u32 s{sTmp}, s{sTmp}, {WS_ST}")
            A(f"v_lshlrev_b32 v{vT1}, 2, v0")
            A(f"buffer_load_dword v{vSt}, v{vT1}, {srd(S_WS)}, s{sTmp} offen sc1")
        go()
        if typ not in OPT_WOEPI:
            wo_early(A, 0, 6)
        A(f"s_waitcnt vmcnt({11 if typ in OPT_WOEPI else 17}) lgkmcnt(0)")
        A(f"s_branch {LL('bar')}")
        A.label(LL("sum"))
        A(f"s_waitcnt vmcnt({0 if typ in OPT_WOEPI else 6})")
        for ch in range(1, 10):
            A(f"v_add_f32 v{vCSP}, v{vCSP}, v{vCSP+2*ch}")
            A(f"v_add_f32 v{vCSP+1}, v{vCSP+1}, v{vCSP+2*ch+1}")
        A(f"v_lshlrev_b32 v{vT0}, 3, v0")
        A(f"v_add_u32 v{vT0}, {MISC_LDS}, v{vT0}")
        A(f"ds_write_b64 v{vT0}, {vr(vCSP, 2)}")
        A(f"v_lshlrev_b32 v{vT1}, 2, v0")
        A(f"v_add_u32 v{vT1}, {MISC_LDS+2048}, v{vT1}")
        A(f"ds_write_b32 v{vT1}, v{vSt}")
        if typ not in OPT_WOEPI:
            wo_early(A, 52, 5)
        A("s_waitcnt lgkmcnt(0)")
        A(f"s_branch {LL('bar')}")

    A(f"s_cmp_ge_u32 s{sWave}, 4")
    A(f"s_cbranch_scc1 {L('roleB')}")
    loop("A")
    A.label(L("roleB"))
    loop("B")

    A.label(L("epi"))
    A("s_setprio 0")
    stamp(A, 2, 0)
    stamp(A, 4, 0, wave=4, vt=50)
    stamp(A, 7, 0, wave=4, vt=50, clk=True)
    stamp(A, 15, 0, clk=True)
    if OPT["STAMP"] == 4:
        A(f"v_lshlrev_b32 v29, 2, v0")
        A(f"s_lshl_b32 s98, s2, 11")
        A(f"s_add_u32 s98, s98, {WS_STAMP + 0x10000}")
        A(f"buffer_store_dword v28, v29, {srd(S_WS)}, s98 offen")
    p2_ids(A)
    A.fence()
    if True:
        epi = {"G": k1_epi_g, "Q": k1_epi_q, "K": k1_epi_kv}[typ]
        ffn_setup(A)
        A(f"s_cmp_lt_u32 s{sWave}, 4")
        A(f"s_cselect_b32 s{sWo}, {OOB}, s{sWo}")
        E = Asm()
        epi(E, acc)
        body = [t for _, t in E.lines]
        npre = min(OPT["NPRE"], {"G": 6, "Q": 4, "K": 2}[typ])
        early = [g for j in range(min(4, npre)) for g in ldW_groups(j)]
        late = [g for j in range(4, npre) for g in ldW_groups(j)]
        wod = []
        if typ in OPT_WOEPI:
            A(f"s_mul_i32 s12, s{sWave}, 13")
            A("s_min_u32 s12, s12, 87")
            A("s_lshl_b32 s12, s12, 10")
            A(f"s_mul_i32 s13, s{sC}, {74*5120}")
            A("s_add_u32 s13, s13, s12")
            A(f"s_add_u32 s13, s13, {WS_W2 + 54*5120}")
            A(f"s_add_u32 s12, s12, {WO_LDS}")
            wod = [f"s_add_u32 m0, s12, {i*1024}\ns_add_u32 s14, s13, {i*1024}\n"
                   f"buffer_load_dwordx4 v{vL16}, {srd(S_WS)}, s14 offen sc1 lds" for i in range(13)]
        for g in interleave(body, (wod, 0.02, 0.6), (early, 0.02, 0.5 if npre > 4 else 0.7), (late, 0.5, 0.8)):
            A(g)
        A(f"s_mov_b32 s{sWoDone}, {npre + 1}")
    stamp(A, 3, 0)
    stamp(A, 5, 0, wave=4, vt=50)
    stamp(A, 8, 0, wave=4, vt=50, clk=True)
    A(f"v_mov_b32 v{vSigA}, {OOB}")
    if typ == "K":
        A(f"s_sub_u32 s{sTmp}, s{sCG}, 9")
        A(f"s_lshl_b32 s{sTmp}, s{sTmp}, 11")
        A(f"s_add_u32 s{sTmp}, s{sTmp}, {WS_FL + FL_KV}")
        A(f"v_lshl_add_u32 v{vT0}, v{vLane}, 8, s{sTmp}")
        A(f"v_cmp_gt_u32 vcc, 8, v{vLane}")
        A(f"v_cndmask_b32 v{vSigA}, v{vSigA}, v{vT0}, vcc")
        A(f"v_mov_b32 v{vSigV}, 1")
    else:
        A(f"s_lshl_b32 s{sTmp}, s{sRB}, 8")
        A(f"s_add_u32 s{sTmp}, s{sTmp}, {WS_FL + FL_HC}")
        A(f"v_writelane_b32 v{vSigA}, s{sTmp}, 0")
        A(f"s_lshl_b32 s{sTmp}, 1, s{sCG}")
        A(f"v_mov_b32 v{vSigV}, s{sTmp}")
    A("s_branch L_p2")


def k1_stats_issue(A):
    b = vBUF
    A(f"s_lshl_b32 s{sRow}, s{sRB}, 7")
    A(f"s_lshl_b32 s{sTmp2}, s{sCG}, 3")
    A(f"s_add_u32 s{sRow}, s{sRow}, s{sTmp2}")
    A(f"s_add_u32 s{sRow}, s{sRow}, s{sWave}")
    A(f"s_mul_i32 s{sTmp2}, s{sRow}, 1280")
    A(f"v_lshlrev_b32 v{vT0}, 3, v{vLane}")
    A(f"v_lshlrev_b32 v{vT1}, 2, v{vLane}")
    A(f"buffer_load_dwordx2 {vr(b, 2)}, v{vT0}, {srd(S_X)}, s{sTmp2} offen")
    A(f"buffer_load_dwordx2 {vr(b+2, 2)}, v{vT0}, {srd(S_X)}, s{sTmp2} offen offset:512")
    A(f"buffer_load_dword v{b+4}, v{vT1}, {srd(S_X)}, s{sTmp2} offen offset:1024")


def k1_stats(A, typ):
    b = vBUF
    if typ == "A":
        A("s_waitcnt vmcnt(0)")
    for i in range(5):
        A(f"v_lshlrev_b32 v{b+8+2*i}, 16, v{b+i}")
        A(f"v_and_b32 v{b+9+2*i}, 0xffff0000, v{b+i}")
    s = b + 20
    A(f"v_add_f32 v{s}, v{b+8}, v{b+9}")
    for i in range(2, 10):
        A(f"v_add_f32 v{s}, v{s}, v{b+8+i}")
    wave_allreduce_add(A, s, s + 1, 4)
    A(f"v_mul_f32 v{s}, {f32(1.0/640)}, v{s}")
    for i in range(10):
        A(f"v_sub_f32 v{b+8+i}, v{b+8+i}, v{s}")
    A(f"v_mul_f32 v{s+1}, v{b+8}, v{b+8}")
    for i in range(1, 10):
        A(f"v_fmac_f32 v{s+1}, v{b+8+i}, v{b+8+i}")
    wave_allreduce_add(A, s + 1, s + 2, 4)
    A(f"v_mov_b32 v{s+2}, {f32(1e-5)}")
    A(f"v_fmac_f32 v{s+2}, {f32(1.0/640)}, v{s+1}")
    A(f"v_mov_b32 v{s+1}, v{s+2}")
    A(f"v_cmp_eq_u32 vcc, 0, v{vLane}")
    A(f"v_mov_b32 v{vT2}, {OOB}")
    A(f"v_cndmask_b32 v{vT0}, v{vT2}, v{vLane}, vcc")
    A(f"s_lshl_b32 s{sTmp}, s{sRow}, 3")
    A(f"s_add_u32 s{sTmp}, s{sTmp}, {WS_ST}")
    A(f"buffer_store_dwordx2 {vr(s, 2)}, v{vT0}, {srd(S_WS)}, s{sTmp} offen sc1")


def k1_publish(A):
    A(f"s_lshl_b32 s{sTmp}, s{sRB}, 8")
    A(f"s_add_u32 s{sTmp}, s{sTmp}, {WS_FL + FL_ROW}")
    A(f"v_mov_b32 v{vT0}, {OOB}")
    A(f"v_writelane_b32 v{vT0}, s{sTmp}, 0")
    A(f"v_mov_b32 v{vT1}, 1")
    A(f"buffer_atomic_add v{vT1}, v{vT0}, {srd(S_WS)}, 0 offen sc1")


def poll_addr(A):
    A(f"v_and_b32 v{vPa}, 15, v{vLane}")
    A(f"v_lshlrev_b32 v{vPa}, 8, v{vPa}")
    A(f"v_add_u32 v{vPa}, {WS_FL + FL_ROW}, v{vPa}")


def poll_cmp(A):
    A(f"v_cmp_gt_u32 vcc, 16, v{vPoll}")


def wait_zeroed(A, lab, first_issued):
    if first_issued:
        A(f"s_branch {lab}_c")
    A.label(lab)
    A("s_sleep 4")
    A(f"buffer_load_dword v{vPoll}, off, {srd(S_DBG)}, 0 sc1")
    A.label(lab + "_c")
    A("s_waitcnt vmcnt(0)")
    A(f"v_readfirstlane_b32 s{sTmp}, v{vPoll}")
    A(f"s_add_u32 s{sSpin}, s{sSpin}, 1")
    A(f"s_cmp_gt_u32 s{sSpin}, {SPIN_MAX}")
    A(f"s_cbranch_scc1 {lab}_ok")
    A(f"s_cmp_lt_u32 s{sTmp}, 16")
    A(f"s_cbranch_scc1 {lab}")
    A.label(lab + "_ok")


S_R = 88
sU, sUks, sUL = 92, 93, 94


def w2_unit_decode(A):
    A(f"s_mul_i32 s{sUks}, s{sU}, 205")
    A(f"s_lshr_b32 s{sUks}, s{sUks}, 11")
    A(f"s_mul_i32 s{sUL}, s{sUks}, 10")
    A(f"s_sub_u32 s{sUL}, s{sU}, s{sUL}")


def w2_unit_dma(A, lds):
    w2_unit_decode(A)
    A(f"s_cmp_lt_u32 s{sUks}, 54")
    A(f"s_cselect_b32 s{S_R}, s{P_D}, s{P_WO}")
    A(f"s_cselect_b32 s{S_R+1}, s{P_D+1}, s{P_WO+1}")
    A(f"s_mov_b32 s{S_R+2}, {640*1280}")
    A(f"s_cselect_b32 s{S_R+2}, {1728*1280}, s{S_R+2}")
    A(f"s_cselect_b32 s{sTmp}, 0, 54")
    A(f"s_and_b32 s{S_R+1}, s{S_R+1}, 0xffff")
    A(f"s_mov_b32 s{S_R+3}, 0x20000")
    A(f"s_sub_u32 s{sTmp}, s{sUks}, s{sTmp}")
    A(f"s_mul_i32 s{sTmp}, s{sTmp}, {32*1280}")
    A(f"s_lshl_b32 s{sTmp2}, s{sUL}, 7")
    A(f"s_add_u32 s{sTmp}, s{sTmp}, s{sTmp2}")
    A(f"v_lshrrev_b32 v{vT0}, 3, v{vLane}")
    A(f"v_mul_u32_u24 v{vT0}, 1280, v{vT0}")
    A(f"v_and_b32 v{vT1}, 7, v{vLane}")
    A(f"v_lshl_add_u32 v{vT0}, v{vT1}, 4, v{vT0}")
    for i in range(4):
        A(f"s_add_u32 m0, {lds}, {i*1024}")
        A("s_nop 0")
        A(f"buffer_load_dwordx4 v{vT0}, {srd(S_R)}, s{sTmp} offen lds")
        A(f"s_add_u32 s{sTmp}, s{sTmp}, {8*1280}")


def w2_unit_out(A, lds, F):
    w2_unit_decode(A)
    A(f"v_bfe_u32 v{vT0}, v{vLane}, 2, 2")
    A(f"v_lshlrev_b32 v{vT0}, 7, v{vT0}")
    A(f"v_and_b32 v{vT1}, 3, v{vLane}")
    A(f"v_lshl_add_u32 v{vT0}, v{vT1}, 3, v{vT0}")
    A(f"v_lshrrev_b32 v{vT1}, 4, v{vLane}")
    A(f"s_cmp_lt_u32 s{sUks}, 54")
    A(f"s_cselect_b32 s{sTmp}, 10, 9")
    A(f"s_movk_i32 s{sTmp2}, 512")
    A(f"s_cselect_b32 s{sTmp2}, s{sTmp2}, 2048")
    A(f"v_lshlrev_b32 v{vT1}, s{sTmp}, v{vT1}")
    A(f"v_add3_u32 v{vT0}, v{vT0}, v{vT1}, {lds}")
    A(f"v_add_u32 v{vT1}, s{sTmp2}, v{vT0}")
    for tau in range(4):
        A(f"ds_read_b64_tr_b16 {vr(F(tau), 2)}, v{vT0} offset:{tau*32}")
        A(f"ds_read_b64_tr_b16 {vr(F(tau)+2, 2)}, v{vT1} offset:{tau*32}")
    A(f"v_lshlrev_b32 v{vT2}, 4, v{vLane}")
    A("s_waitcnt lgkmcnt(0)")
    for tau in range(4):
        A(f"s_lshl_b32 s{sTmp}, s{sUL}, 2")
        A(f"s_add_u32 s{sTmp}, s{sTmp}, {tau}")
        A(f"s_mul_i32 s{sTmp2}, s{sTmp}, 205")
        A(f"s_lshr_b32 s{sTmp2}, s{sTmp2}, 10")
        A(f"s_mul_i32 s{sTmp3}, s{sTmp2}, {74*5-5}")
        A(f"s_add_u32 s{sTmp}, s{sTmp}, s{sTmp3}")
        A(f"s_mul_i32 s{sTmp3}, s{sUks}, 5")
        A(f"s_add_u32 s{sTmp}, s{sTmp}, s{sTmp3}")
        A(f"s_lshl_b32 s{sTmp}, s{sTmp}, 10")
        A(f"s_add_u32 s{sTmp}, s{sTmp}, {WS_W2}")
        A(f"s_cmp_lt_u32 s{sU}, 740")
        A(f"s_cselect_b32 s{sTmp}, s{sTmp}, {OOB}")
        A(f"buffer_store_dwordx4 {vr(F(tau))}, v{vT2}, {srd(S_WS)}, s{sTmp} offen sc1")


def k1_epi_g(A, acc):
    c = vBUF
    cs = vBUF + 8
    t = vBUF + 40
    o = vBUF + 48
    A(f"v_lshrrev_b32 v{vT0}, 5, v{vLane}")
    A(f"v_lshlrev_b32 v{vT0}, 4, v{vT0}")
    A(f"s_mul_i32 s{sTmp}, s{sNW}, 384")
    A(f"s_add_u32 s{sTmp}, s{sTmp}, {MISC_LDS}")
    A(f"v_add_u32 v{vT0}, s{sTmp}, v{vT0}")
    A(f"v_and_b32 v{vT1}, 31, v{vLane}")
    A(f"s_lshl_b32 s{sTmp}, s{sMW}, 9")
    A(f"s_add_u32 s{sTmp}, s{sTmp}, {MISC_LDS+2048}")
    A(f"v_lshl_add_u32 v{vT1}, v{vT1}, 3, s{sTmp}")
    for mt in range(2):
        A(f"ds_read_b64 {vr(c+4*mt, 2)}, v{vT1} offset:{mt*256}")
    for q in range(4):
        A(f"ds_read_b128 {vr(cs+4*q)}, v{vT0} offset:{q*32}")
    A("s_waitcnt lgkmcnt(4)")
    for mt in range(2):
        mu, v, k1, k3 = c + 4 * mt, c + 4 * mt + 1, c + 4 * mt + 2, c + 4 * mt + 3
        A(f"v_rsq_f32 v{t}, v{v}")
        A(f"v_mul_f32 v{k1}, {f32(GC1)}, v{t}")
        A(f"v_mul_f32 v{t+1}, v{t}, v{t}")
        A(f"v_mul_f32 v{t+1}, v{t+1}, v{t}")
        A(f"v_mul_f32 v{k3}, {f32(GC2)}, v{t+1}")
    A(f"v_bfe_u32 v{vT1}, v{vLane}, 4, 1")
    A(f"v_lshlrev_b32 v{vT1}, 10, v{vT1}")
    A(f"v_lshrrev_b32 v{vT2}, 5, v{vLane}")
    A(f"v_lshl_add_u32 v{vT1}, v{vT2}, 8, v{vT1}")
    A(f"v_and_b32 v{vT2}, 15, v{vLane}")
    A(f"v_lshl_add_u32 v{vT1}, v{vT2}, 4, v{vT1}")
    n = 0
    for a in range(3):
        csa = cs + 16 * (a % 2)
        if a < 2:
            for q in range(4):
                A(f"ds_read_b128 {vr(cs+16*((a+1)%2)+4*q)}, v{vT0} offset:{(a+1)*128+q*32}")
            A("s_waitcnt lgkmcnt(4)")
        else:
            A("s_waitcnt lgkmcnt(0)")
        A(f"s_mul_i32 s{sTmp}, s{sCG}, 12")
        A(f"s_mul_i32 s{sTmp2}, s{sNW}, 3")
        A(f"s_add_u32 s{sTmp}, s{sTmp}, s{sTmp2}")
        A(f"s_add_u32 s{sTmp}, s{sTmp}, {a}")
        A(f"s_lshl_b32 s{sTmp2}, s{sRB}, 1")
        A(f"s_add_u32 s{sTmp2}, s{sTmp2}, s{sMW}")
        A(f"s_mul_i32 s{sTmp2}, s{sTmp2}, 54")
        A(f"s_lshr_b32 s{sTmp3}, s{sTmp}, 1")
        A(f"s_add_u32 s{sTmp2}, s{sTmp2}, s{sTmp3}")
        A(f"s_lshl_b32 s{sTmp2}, s{sTmp2}, 12")
        A(f"s_and_b32 s{sTmp}, s{sTmp}, 1")
        A(f"s_lshl_b32 s{sTmp}, s{sTmp}, 9")
        A(f"s_add_u32 s{sTmp}, s{sTmp}, s{sTmp2}")
        C = lambda mt, k: c + 4 * mt + k
        MP = [(mt, i) for mt in range(2) for i in range(0, 8, 2)]
        D = lambda mt: acc(mt, a)
        Tm = lambda mt: t + 8 * mt
        for mt, i in MP:
            pk_fma(A, D(mt) + i, ("b", C(mt, 0)), ("p", csa + i), ("p", D(mt) + i), neg_a=True)
        for mt, i in MP:
            pk_mul(A, Tm(mt) + i, ("p", D(mt) + i), ("p", D(mt) + i))
        for mt, i in MP:
            pk_fma(A, Tm(mt) + i, ("p", Tm(mt) + i), ("b", C(mt, 3)), ("b", C(mt, 2)))
        for mt, i in MP:
            pk_mul(A, Tm(mt) + i, ("p", Tm(mt) + i), ("p", D(mt) + i))
        for mt, i in MP:
            A(f"v_exp_f32 v{Tm(mt)+i}, v{Tm(mt)+i}")
            A(f"v_exp_f32 v{Tm(mt)+i+1}, v{Tm(mt)+i+1}")
            pk_fma(A, D(mt) + 8 + i, ("b", C(mt, 0)), ("p", csa + 8 + i), ("p", D(mt) + 8 + i), neg_a=True)
        for mt, i in MP:
            pk_fma(A, Tm(mt) + i, ("p", Tm(mt) + i), ("b", C(mt, 1)), ("b", C(mt, 1)))
        for mt, i in MP:
            A(f"v_rcp_f32 v{Tm(mt)+i}, v{Tm(mt)+i}")
            A(f"v_rcp_f32 v{Tm(mt)+i+1}, v{Tm(mt)+i+1}")
            pk_mul(A, D(mt) + i, ("p", D(mt) + i), ("p", D(mt) + 8 + i))
        for mt, i in MP:
            pk_mul(A, D(mt) + i, ("p", D(mt) + i), ("p", Tm(mt) + i))
        for mt in range(2):
            ob = D(mt) + 8
            for i in range(4):
                A(f"v_cvt_pk_bf16_f32 v{ob+i}, v{D(mt)+2*i}, v{D(mt)+2*i+1}")
            A(f"buffer_store_dwordx4 {vr(ob)}, v{vT1}, {srd(S_WS)}, s{sTmp} offen offset:{mt*2048} sc1")


def pk(r, bc=False):
    return f"v[{r}:{r+1}]"


def pko(*bc):
    lo = ",".join("1" if b == 1 else "0" for b in bc)
    hi = ",".join("0" if b == 0 else "1" for b in bc)
    return f"op_sel:[{lo}] op_sel_hi:[{hi}]"


def opnd(x):
    k, r = x
    if k == "p":
        return pk(r), None
    return pk(r & ~1), r & 1


def pk_fma(A, d, a, b, c, neg_a=False):
    (ta, fa), (tb_, fb), (tc, fc) = opnd(a), opnd(b), opnd(c)
    n = " neg_lo:[1,0,0] neg_hi:[1,0,0]" if neg_a else ""
    A(f"v_pk_fma_f32 {pk(d)}, {ta}, {tb_}, {tc} {pko(fa, fb, fc)}{n}")


def pk_mul(A, d, a, b, op="mul"):
    (ta, fa), (tb_, fb) = opnd(a), opnd(b)
    A(f"v_pk_{op}_f32 {pk(d)}, {ta}, {tb_} {pko(fa, fb)}")


def phi_block(A, d, n, t, mu, cs, r, rl, eps):
    P = range(0, n, 2)
    for i in P:
        pk_fma(A, d + i, mu(i), cs(i), ("p", d + i), neg_a=True)
    for i in P:
        pk_mul(A, t + i, ("p", d + i), rl(i))
    for i in P:
        A(f"v_exp_f32 v{t+i}, v{t+i} clamp")
        A(f"v_exp_f32 v{t+i+1}, v{t+i+1} clamp")
        pk_fma(A, d + i, ("p", d + i), r(i), ("b", eps))
    for i in range(n):
        A(f"v_max_f32 v{d+i}, v{d+i}, v{eps}")
    for i in P:
        pk_mul(A, d + i, ("p", d + i), ("p", t + i), op="add")


def k1_epi_q(A, acc):
    c = vBUF
    cs = vBUF + 8
    t = vBUF + 40
    o = vBUF + 56
    mu, r, rl, eps = c, c + 1, c + 2, c + 3
    A(f"v_lshrrev_b32 v{vT0}, 5, v{vLane}")
    A(f"v_lshlrev_b32 v{vT0}, 4, v{vT0}")
    A(f"s_mul_i32 s{sTmp}, s{sNW}, 640")
    A(f"s_add_u32 s{sTmp}, s{sTmp}, {MISC_LDS}")
    A(f"v_add_u32 v{vT0}, s{sTmp}, v{vT0}")
    A(f"v_and_b32 v{vT1}, 31, v{vLane}")
    A(f"s_lshl_b32 s{sTmp}, s{sMW}, 8")
    A(f"s_add_u32 s{sTmp}, s{sTmp}, {MISC_LDS+2048}")
    A(f"v_lshl_add_u32 v{vT1}, v{vT1}, 3, s{sTmp}")
    A(f"ds_read_b64 {vr(mu, 2)}, v{vT1}")
    for q in range(4):
        A(f"ds_read_b128 {vr(cs+4*q)}, v{vT0} offset:{q*32}")
    A("s_waitcnt lgkmcnt(4)")
    A(f"v_rsq_f32 v{r}, v{r}")
    A(f"v_mov_b32 v{eps}, {f32(1e-6)}")
    A(f"v_mul_f32 v{rl}, {f32(LOG2E)}, v{r}")
    A(f"v_bfe_u32 v{vT1}, v{vLane}, 4, 1")
    A(f"v_lshlrev_b32 v{vT1}, 10, v{vT1}")
    A(f"v_lshrrev_b32 v{vT2}, 5, v{vLane}")
    A(f"v_lshl_add_u32 v{vT1}, v{vT2}, 8, v{vT1}")
    A(f"v_and_b32 v{vT2}, 15, v{vLane}")
    A(f"v_lshl_add_u32 v{vT1}, v{vT2}, 4, v{vT1}")
    A(f"s_lshl_b32 s{sTmp}, s{sRB}, 1")
    A(f"s_lshr_b32 s{sTmp2}, s{sMW}, 1")
    A(f"s_add_u32 s{sTmp}, s{sTmp}, s{sTmp2}")
    A(f"s_mul_i32 s{sTmp}, s{sTmp}, 20")
    A(f"s_sub_u32 s{sTmp2}, s{sCG}, 13")
    A(f"s_mul_i32 s{sTmp2}, s{sTmp2}, 10")
    A(f"s_add_u32 s{sTmp}, s{sTmp}, s{sTmp2}")
    A(f"s_mul_i32 s{sTmp2}, s{sNW}, 5")
    A(f"s_add_u32 s{sTmp}, s{sTmp}, s{sTmp2}")
    A(f"s_lshl_b32 s{sTmp}, s{sTmp}, 12")
    A(f"s_and_b32 s{sTmp2}, s{sMW}, 1")
    A(f"s_lshl_b32 s{sTmp2}, s{sTmp2}, 11")
    A(f"s_add_u32 s{sTmp}, s{sTmp}, s{sTmp2}")
    A(f"s_add_u32 s{sTmp}, s{sTmp}, {WS_PQ}")
    for a in range(5):
        csa = cs + 16 * (a % 2)
        if a < 4:
            for q in range(4):
                A(f"ds_read_b128 {vr(cs+16*((a+1)%2)+4*q)}, v{vT0} offset:{(a+1)*128+q*32}")
            A("s_waitcnt lgkmcnt(4)")
        else:
            A("s_waitcnt lgkmcnt(0)")
        d = acc(0, a)
        phi_block(A, d, 16, t, lambda i: ("b", mu), lambda i: ("p", csa + i), lambda i: ("b", r), lambda i: ("b", rl), eps)
        ob = o + 8 * (a % 2)
        for i in range(8):
            A(f"v_cvt_pk_bf16_f32 v{ob+i}, v{d+2*i}, v{d+2*i+1}")
        A(f"buffer_store_dwordx4 {vr(ob)}, v{vT1}, {srd(S_WS)}, s{sTmp} offen sc1")
        A(f"buffer_store_dwordx4 {vr(ob+4)}, v{vT1}, {srd(S_WS)}, s{sTmp} offen offset:512 sc1")
        A(f"s_add_u32 s{sTmp}, s{sTmp}, 4096")


KV_PAIRS = [(0, 2), (0, 3), (1, 3), (1, 4), (2, 4)]
KV_Q = [[0, 1, 2], [0, 1, 2, 3], [0, 1, 2, 3], [1, 2, 3], [0, 1]]
KV_AD = 232
KV_SLAB = [0, 14336, 135168, 149504]
KV_DUMMY = 28688


def kv_addr_setup(A):
    e, he, d0, dm = vT0, vT1, vT2, vT3
    t = vBUF + 24
    A(f"s_mul_i32 s{sTmp3}, s{sMW}, 14336")
    A(f"s_cmp_ge_u32 s{sMW}, 2")
    A(f"s_cselect_b32 s{sTmp}, {135168 - 2*14336}, 0")
    A(f"s_add_u32 s{sTmp3}, s{sTmp3}, s{sTmp}")
    A(f"s_mul_i32 s{sTmp}, s{sNW}, 6720")
    A(f"s_add_u32 s{sTmp3}, s{sTmp3}, s{sTmp}")
    A(f"v_lshlrev_b32 v{dm}, 4, v{vLane}")
    A(f"v_add_u32 v{dm}, {KV_DUMMY}, v{dm}")
    A(f"v_lshrrev_b32 v{d0}, 5, v{vLane}")
    A(f"v_lshlrev_b32 v{d0}, 2, v{d0}")
    for n, (a, b) in enumerate(KV_PAIRS):
        A(f"v_and_b32 v{e}, 31, v{vLane}")
        A(f"v_add_u32 v{e}, {32*b - 80 + 100}, v{e}")
        A(f"v_mul_u32_u24 v{he}, 205, v{e}")
        A(f"v_lshrrev_b32 v{he}, 12, v{he}")
        A(f"v_mul_u32_u24 v{e}, 80, v{e}")
        A(f"v_add_u32 v{e}, s{sTmp3}, v{e}")
        for q in KV_Q[n]:
            a0 = KV_AD + 4 * n + q
            A(f"v_add_u32 v{a0}, {32*a + 8*q + 100}, v{d0}")
            A(f"v_mul_u32_u24 v{t}, 205, v{a0}")
            A(f"v_lshrrev_b32 v{t}, 12, v{t}")
            A(f"v_cmp_eq_u32 vcc, v{t}, v{he}")
            A(f"v_lshl_add_u32 v{a0}, v{a0}, 2, v{e}")
            A(f"v_subrev_u32 v{a0}, {80*100 + 4*100}, v{a0}")
            A(f"v_cndmask_b32 v{a0}, v{dm}, v{a0}, vcc")
    A(f"v_and_b32 v{e}, 15, v{vLane}")
    A(f"v_lshrrev_b32 v{d0}, 4, v{vLane}")
    A(f"v_lshlrev_b32 v{d0}, 2, v{d0}")
    A(f"v_lshl_add_u32 v{d0}, v{e}, 4, v{d0}")
    for a in range(3):
        az = KV_AD + 20 + a
        A(f"v_add_u32 v{az}, {32*a}, v{d0}")
        A(f"v_mul_u32_u24 v{t}, 205, v{az}")
        A(f"v_lshrrev_b32 v{t}, 12, v{t}")
        A(f"v_mul_u32_u24 v{t}, 1600, v{t}")
        A(f"v_lshl_add_u32 v{az}, v{az}, 2, v{t}")
        A(f"v_add_u32 v{az}, s{sTmp3}, v{az}")
        A(f"v_add_u32 v{az}, 1600, v{az}")
        A(f"v_cmp_gt_u32 vcc, {2 if a < 2 else 1}, v{e}")
        A(f"v_cndmask_b32 v{az}, v{dm}, v{az}, vcc")


def k1_epi_kv(A, acc):
    mu = vBUF
    rr = vBUF + 16
    rl = vBUF + 32
    t = vBUF + 48
    raw = vBUF + 48
    cs = vBUF + 80
    eps = vBUF + 86
    sv = vBUF + 64
    A(f"v_and_b32 v{vT0}, 31, v{vLane}")
    A(f"v_cmp_gt_u32 vcc, 16, v{vT0}")
    A(f"v_lshlrev_b32 v{vT0}, 2, v{vT0}")
    A(f"s_mul_i32 s{sTmp}, s{sNW}, 640")
    A(f"s_add_u32 s{sTmp}, s{sTmp}, {MISC_LDS}")
    A(f"v_add_u32 v{vT1}, s{sTmp}, v{vT0}")
    A(f"v_lshrrev_b32 v{vT2}, 5, v{vLane}")
    A(f"s_lshl_b32 s{sTmp}, s{sMW}, 8")
    A(f"s_add_u32 s{sTmp}, s{sTmp}, {MISC_LDS+2048}")
    A(f"v_lshl_add_u32 v{vT2}, v{vT2}, 5, s{sTmp}")
    for q in range(4):
        for h in range(2):
            A(f"ds_read_b128 {vr(raw+8*q+4*h)}, v{vT2} offset:{q*64+h*16}")
    for a in range(5):
        A(f"ds_read_b32 v{cs+a}, v{vT1} offset:{a*128}")
    A("s_waitcnt lgkmcnt(5)")
    for i in range(16):
        A(f"v_rsq_f32 v{rr+i}, v{raw+2*i+1}")
        A(f"v_mov_b32 v{mu+i}, v{raw+2*i}")
    for i in range(16):
        A(f"v_mul_f32 v{rl+i}, {f32(LOG2E)}, v{rr+i}")
    A(f"v_mov_b32 v{eps}, {f32(1e-6)}")
    A("s_waitcnt lgkmcnt(0)")
    op = lambda a, h: acc(0, a) + 4 * h

    def pack(a):
        d = acc(0, a)
        for i in range(8):
            A(f"v_cvt_pk_bf16_f32 v{d+i}, v{d+2*i}, v{d+2*i+1}")

    def plain(a, dst):
        d = acc(0, a)
        for i in range(0, 16, 2):
            pk_fma(A, dst + i, ("p", mu + i), ("b", cs + a), ("p", d + i), neg_a=True)
        for i in range(0, 16, 2):
            pk_mul(A, dst + i, ("p", dst + i), ("p", rr + i))

    def phi(a):
        phi_block(A, acc(0, a), 16, t, lambda i: ("p", mu + i), lambda i: ("b", cs + a), lambda i: ("p", rr + i), lambda i: ("p", rl + i), eps)
    for a in (3, 4):
        plain(a, acc(0, a))
        pack(a)
    plain(2, sv)
    phi(2)
    for i in range(16):
        A(f"v_cndmask_b32 v{acc(0,2)+i}, v{sv+i}, v{acc(0,2)+i}, vcc")
    pack(2)
    for a in (0, 1):
        phi(a)
        pack(a)
    D = lambda n: vBUF + 16 * n
    Z = lambda a: vBUF + 80 + 4 * a
    for h in range(2):
        for n, (a, b) in enumerate(KV_PAIRS):
            A(f"v_mfma_f32_32x32x16_bf16 {vr(D(n),16)}, {vr(op(a,h))}, {vr(op(b,h))}, {vr(D(n),16) if h else 0}")
        for a in range(3):
            A(f"v_mfma_f32_16x16x32_bf16 {vr(Z(a))}, {vr(op(a,h))}, {vr(vSel)}, {vr(Z(a)) if h else 0}")
    A("s_barrier")
    for n in range(5):
        for q in KV_Q[n]:
            A(f"ds_write_b128 v{KV_AD+4*n+q}, {vr(D(n)+4*q)}")
    for a in range(3):
        A(f"ds_write_b128 v{KV_AD+20+a}, {vr(Z(a))}")
    sSlab = 4
    A(f"s_sub_u32 s{sSlab}, s{sCG}, 9")
    A(f"s_mul_i32 s{sSlab}, s{sSlab}, 13440")
    A(f"s_add_u32 s{sSlab}, s{sSlab}, {WS_KVA}")
    A(f"v_lshlrev_b32 v{vT0}, 2, v0")
    A(f"v_add_u32 v{vT1}, {KV_SLAB[2]}, v{vT0}")
    A(f"v_cmp_gt_u32 vcc, {3360-6*512}, v0")
    A(f"v_mov_b32 v{vT2}, {OOB}")
    A(f"v_cndmask_b32 v{vT2}, v{vT2}, v{vT0}, vcc")
    A("s_waitcnt lgkmcnt(0)")
    A("s_barrier")
    R = vACC
    for j in range(7):
        for m in range(4):
            A(f"ds_read_b32 v{R+4*j+m}, v{vT0 if m < 2 else vT1} offset:{j*2048 + (m%2)*14336}")
        if j >= 2:
            k = j - 2
            A("s_waitcnt lgkmcnt(8)")
            kv_atomic(A, R, k, sSlab)
    for k in (5, 6):
        A(f"s_waitcnt lgkmcnt({4*(6-k)})")
        kv_atomic(A, R, k, sSlab)


def kv_atomic(A, R, k, sSlab):
    A(f"v_add_f32 v{R+4*k}, v{R+4*k}, v{R+4*k+1}")
    A(f"v_add_f32 v{R+4*k+2}, v{R+4*k+2}, v{R+4*k+3}")
    A(f"v_add_f32 v{R+4*k}, v{R+4*k}, v{R+4*k+2}")
    A(f"buffer_atomic_add_f32 v{R+4*k}, v{vT0 if k < 6 else vT2}, {srd(S_WS)}, s{sSlab} offen offset:{(k%2)*2048}")
    if k % 2 == 1:
        A(f"s_add_u32 s{sSlab}, s{sSlab}, 4096")


def k1_aux(A):
    if OPT["CODEWARM"] == 1:
        A("s_getpc_b64 s[10:11]")
        A.label("L_pc")
        A(f"s_sub_u32 s10, s10, L_pc-{NAME}_kernel")
        A("s_subb_u32 s11, s11, 0")
        A(f"v_lshlrev_b32 v{vT0}, 7, v0")
        A(f"v_min_u32 v{vT0}, L_code_end-{NAME}_kernel-4, v{vT0}")
        A(f"global_load_dword v{vACC+8}, v{vT0}, s[10:11]")
    if OPT["TLBWARM"]:
        g = OPT["TLBWARM"]
        mk_srd(A, S_T, P_OUT, 2048 * 1280)
        A(f"v_lshlrev_b32 v{vT0}, {g}, v0")
        A(f"buffer_load_dword v{vACC+9}, v{vT0}, {srd(S_WS)}, 0 offen sc1")
        A(f"buffer_load_dword v{vACC+10}, v{vT0}, {srd(S_T)}, 0 offen sc1")
    for i in range(4):
        A(f"v_mov_b32 v{vACC+i}, 0")
    A(f"v_lshlrev_b32 v{vT0}, 4, v0")
    A(f"s_mul_i32 s{sTmp}, s{sRB}, 3360")
    A(f"s_add_u32 s{sTmp}, s{sTmp}, {WS_KVA}")
    A(f"v_add_u32 v{vT0}, s{sTmp}, v{vT0}")
    A(f"v_mov_b32 v{vT2}, {OOB}")
    A(f"v_cmp_gt_u32 vcc, 210, v0")
    A(f"v_cndmask_b32 v{vT0}, v{vT2}, v{vT0}, vcc")
    A(f"s_cmp_lg_u32 s{sWave}, 7")
    A("s_cbranch_scc1 L_A_z")
    A(f"s_lshl_b32 s{sTmp}, s{sRB}, 8")
    A(f"s_add_u32 s{sTmp}, s{sTmp}, {WS_FL}")
    A(f"v_writelane_b32 v{vT0}, s{sTmp}, 0")
    A(f"s_add_u32 s{sTmp}, s{sTmp}, {FL_ROW}")
    A(f"v_writelane_b32 v{vT0}, s{sTmp}, 3")
    A(f"s_lshl_b32 s{sTmp}, s{sRB}, 9")
    A(f"s_add_u32 s{sTmp}, s{sTmp}, {WS_FL + FL_KV}")
    A(f"v_writelane_b32 v{vT0}, s{sTmp}, 1")
    A(f"s_add_u32 s{sTmp}, s{sTmp}, 256")
    A(f"v_writelane_b32 v{vT0}, s{sTmp}, 2")
    A.label("L_A_z")
    A(f"buffer_store_dwordx4 {vr(vACC)}, v{vT0}, {srd(S_WS)}, 0 offen sc1")
    A(f"s_cmp_lg_u32 s{sWave}, 7")
    A("s_cbranch_scc1 L_A_z2")
    A("s_waitcnt vmcnt(0)")
    A(f"v_mov_b32 v{vT0}, {OOB}")
    A(f"v_writelane_b32 v{vT0}, 0, 0")
    A(f"v_mov_b32 v{vT1}, 1")
    A(f"buffer_atomic_add v{vT1}, v{vT0}, {srd(S_DBG)}, 0 offen sc1")
    A.label("L_A_z2")
    A(f"s_lshl_b32 s{sUw}, s{sRB}, 3")
    A(f"s_add_u32 s{sUw}, s{sUw}, s{sWave}")
    A(f"s_add_u32 s{sUw}, s{sUw}, 480")
    A(f"s_mul_i32 s{sUl}, s{sWave}, 12288")
    for i in range(3):
        A(f"s_add_u32 s{sU}, s{sUw}, {128*i}")
        A(f"s_add_u32 s9, s{sUl}, {4096*i}")
        w2_unit_dma(A, "s9")
    A("s_waitcnt vmcnt(12)")
    k1_stats(A, "X")
    for i in range(3):
        A("s_waitcnt vmcnt(9)")
        A(f"s_add_u32 s{sU}, s{sUw}, {128*i}")
        A(f"s_add_u32 s9, s{sUl}, {4096*i}")
        w2_unit_out(A, "s9", lambda t: vACC + 16 + 16 * i + 4 * t)
    A("s_waitcnt vmcnt(0)")
    A("s_barrier")
    stamp(A, 9, 0)
    A(f"s_cmp_lg_u32 s{sWave}, 0")
    A("s_cbranch_scc1 L_A_w")
    k1_publish(A)
    A(f"s_mov_b32 s{sSpin}, 0")
    wait_zeroed(A, "L_A_wz", False)
    poll_addr(A)
    A.label("L_A_poll")
    A("s_sleep 32")
    A(f"buffer_load_dword v{vPoll}, v{vPa}, {srd(S_WS)}, 0 offen sc1")
    A("s_waitcnt vmcnt(0)")
    poll_cmp(A)
    A(f"s_add_u32 s{sSpin}, s{sSpin}, 1")
    A(f"s_cmp_gt_u32 s{sSpin}, {SPIN_MAX}")
    A("s_cbranch_scc1 L_A_w")
    A(f"s_cmp_lg_u64 vcc, 0")
    A("s_cbranch_scc1 L_A_poll")
    A.label("L_A_w")
    A("s_barrier")
    stamp(A, 3, 0)
    p2_ids(A)
    A(f"s_mov_b32 s{sWoDone}, 0")
    A(f"v_mov_b32 v{vSigA}, {OOB}")
    A(f"v_mov_b32 v{vSigV}, 0")
    A("s_branch L_p2")


def kernel1(A):
    A(".p2align 8")
    A.label(NAME + "_kernel")
    A("s_cmp_ge_u32 s2, 256")
    A("s_cbranch_scc1 L_k1_exit")
    if OPT["XMAP"]:
        A("s_lshr_b32 s3, s2, 5")
        A("s_and_b32 s2, s2, 31")
        A("s_lshl_b32 s2, s2, 3")
        A("s_or_b32 s2, s2, s3")
    load_ptrs(A)
    if OPT["CODEWARM"] == 2:
        A("s_getpc_b64 s[10:11]")
        A.label("L_pc")
        A(f"s_sub_u32 s10, s10, L_pc-{NAME}_kernel")
        A("s_subb_u32 s11, s11, 0")
        A("s_lshr_b32 s4, s2, 3")
        A("s_lshl_b32 s4, s4, 7")
        A(f"v_lshl_add_u32 v{vT0}, v0, 12, s4")
        A(f"v_min_u32 v{vT0}, L_code_end-{NAME}_kernel-4, v{vT0}")
        A("v_cmp_gt_u32 vcc, 16, v0")
        A("s_and_saveexec_b64 s[12:13], vcc")
        A("s_cbranch_execz L_nocw")
        A(f"global_load_dword v251, v{vT0}, s[10:11]")
        A.label("L_nocw")
        A("s_mov_b64 exec, s[12:13]")
    A(f"v_and_b32 v{vLane}, 63, v0")
    A(f"v_lshrrev_b32 v{vT0}, 6, v0")
    A(f"v_readfirstlane_b32 s{sWave}, v{vT0}")
    A("s_and_b32 s3, s2, 7")
    A("s_lshr_b32 s4, s2, 3")
    A("s_lshr_b32 s5, s3, 2")
    A("s_and_b32 s6, s3, 3")
    A("s_mul_i32 s7, s6, 30")
    A("s_add_u32 s7, s7, s4")
    A(f"s_lshr_b32 s{sCG}, s7, 3")
    if OPT["CGPERM"]:
        perm = [0, 9, 1, 13, 2, 10, 3, 4, 5, 11, 6, 14, 7, 12, 8, 15]
        tab = sum(p << (4 * i) for i, p in enumerate(perm))
        A(f"s_mov_b32 s10, {tab & 0xffffffff}")
        A(f"s_mov_b32 s11, {tab >> 32}")
        A(f"s_lshl_b32 s{sCG}, s{sCG}, 2")
        A(f"s_lshr_b64 s[10:11], s[10:11], s{sCG}")
        A(f"s_and_b32 s{sCG}, s10, 15")
    A(f"s_and_b32 s{sRB}, s7, 7")
    A("s_lshl_b32 s8, s6, 1")
    A("s_add_u32 s8, s8, s4")
    A("s_sub_u32 s8, s8, 30")
    A("s_cmp_lt_u32 s4, 30")
    A(f"s_cselect_b32 s{sCG}, s{sCG}, 15")
    A(f"s_cselect_b32 s{sRB}, s{sRB}, s8")
    A("s_lshl_b32 s5, s5, 3")
    A(f"s_add_u32 s{sRB}, s{sRB}, s5")
    A(f"s_and_b32 s3, s{sRB}, 7")
    A("s_lshr_b32 s4, s3, 2")
    A(f"s_add_u32 s{sC0}, s3, s4")
    A(f"s_lshr_b32 s4, s{sRB}, 3")
    A(f"s_add_u32 s{sC0}, s{sC0}, s4")
    A("s_waitcnt lgkmcnt(0)")
    mk_srd(A, S_X, P_X, 2048 * 1280)
    mk_srd(A, S_WS, P_WS, WS_SIZE)
    mk_srd(A, S_DBG, P_DBG, 256)
    stamp(A, 0, 0)
    if OPT["P2ONLY"]:
        p2_ids(A)
        A(f"s_mov_b32 s{sWoDone}, 0")
        A(f"v_mov_b32 v{vSigA}, {OOB}")
        A(f"v_mov_b32 v{vSigV}, 0")
        A("s_branch L_p2")
    k1_stats_issue(A)
    A(f"s_cmp_eq_u32 s{sCG}, 15")
    A("s_cbranch_scc1 L_aux")
    A(f"v_lshrrev_b32 v{vT0}, 3, v{vLane}")
    A(f"v_lshrrev_b32 v{vT1}, 4, v{vLane}")
    A(f"v_and_b32 v{vT2}, 7, v{vLane}")
    A(f"v_xor_b32 v{vT1}, v{vT1}, v{vT2}")
    if OPT["NOSWZ"]: A(f"v_and_b32 v{vT1}, 7, v{vLane}")
    A(f"s_lshl_b32 s3, s{sRB}, 7")
    if OPT["SAME"]: A("s_mov_b32 s3, 0")
    A(f"s_and_b32 s4, s{sWave}, 3")
    A(f"s_lshl_b32 s{sXslot}, s4, 12")
    A(f"s_lshl_b32 s4, s4, 5")
    A("s_add_u32 s3, s3, s4")
    A(f"v_add_u32 v{vT0}, s3, v{vT0}")
    A(f"v_mul_u32_u24 v{vT0}, 1280, v{vT0}")
    A(f"v_lshl_add_u32 v{vXo}, v{vT1}, 4, v{vT0}")
    A(f"v_xor_b32 v{vT1}, 4, v{vT1}")
    A(f"v_lshl_add_u32 v{vXo+1}, v{vT1}, 4, v{vT0}")
    A(f"v_add_u32 v{vXo+1}, {8*1280}, v{vXo+1}")
    A(f"s_lshl_b32 s{sKX}, s{sC0}, 7")
    A(f"s_mov_b32 s{sKXn}, 0")
    A(f"s_cmp_ge_u32 s{sCG}, 13")
    A("s_cbranch_scc1 L_typeQ")
    A(f"s_cmp_ge_u32 s{sCG}, 9")
    A("s_cbranch_scc1 L_typeK")
    k1_gemm(A, "G")
    A.label("L_typeQ")
    k1_gemm(A, "Q")
    A.label("L_typeK")
    k1_gemm(A, "K")
    A.label("L_aux")
    k1_aux(A)
    phase2(A)
    A.label("L_k1_exit")
    A("s_endpgm")
    A.label("L_code_end")


sRB64, sC, sHo, sWo, sFl, sWoDone, sWoL, sWoG, sWoI, sHb, sHe, sWb, sWe = sKW, sKWn, sKX, sKXn, sWslot, sRslot, sXslot, sStepW, sCSit, sSpec, sWrapW, sC0, sRow
vL16 = 5


def p2_ids(A):
    A("s_and_b32 s3, s2, 7")
    A("s_lshr_b32 s4, s2, 3")
    A(f"s_and_b32 s{sC}, s4, 7")
    A("s_lshr_b32 s4, s4, 3")
    A("s_lshl_b32 s3, s3, 2")
    A(f"s_add_u32 s{sRB64}, s3, s4")
    if OPT["P2SAME"] == 1:
        A(f"s_and_b32 s{sRB64}, s{sRB64}, 1")
        A(f"s_and_b32 s{sC}, s{sC}, 1")
    if OPT["P2SAME"] == 2:
        A(f"s_and_b32 s{sC}, s{sC}, 3")
    A(f"v_lshlrev_b32 v{vL16}, 4, v{vLane}")


WO_LDS = 32768


def wo_early(A, first, per_wave):
    A("s_lshr_b32 s4, s2, 3")
    A("s_and_b32 s4, s4, 7")
    A(f"s_mul_i32 s4, s4, {74*5120}")
    A(f"s_and_b32 s5, s{sWave}, 3")
    A(f"s_mul_i32 s5, s5, {per_wave*1024}")
    A("s_add_u32 s4, s4, s5")
    A(f"s_add_u32 s4, s4, {WS_W2 + 54*5120 + first*1024}")
    A(f"s_add_u32 s5, s5, {WO_LDS + first*1024}")
    A(f"v_lshlrev_b32 v{vT0}, 4, v{vLane}")
    for i in range(per_wave):
        if i % 4 == 0:
            A(f"s_add_u32 m0, s5, {i*1024}")
            A(f"s_add_u32 s6, s4, {i*1024}")
        A(f"buffer_load_dwordx4 v{vT0}, {srd(S_WS)}, s6 offen offset:{(i%4)*1024} sc1 lds")


def wo_setup(A):
    A(f"s_mul_i32 s{sWoL}, s{sWave}, 25600")
    A(f"s_add_u32 s{sWoL}, s{sWoL}, {WO_LDS}")
    A(f"s_mul_i32 s6, s{sC}, 74")
    A(f"s_mul_i32 s7, s{sWave}, 5")
    A("s_add_u32 s6, s6, s7")
    A("s_add_u32 s6, s6, 54")
    A("s_mul_i32 s6, s6, 5120")
    A(f"s_add_u32 s{sWoG}, s6, {WS_W2}")
    A(f"s_and_b32 s{sWoI}, s{sRB64}, 3")
    A(f"s_mul_i32 s{sWoI}, s{sWoI}, {6*1024}")


def wo_dmas():
    return [f"s_add_u32 m0, s{sWoL}, s{sWoI}\n"
            f"s_add_u32 s9, s{sWoG}, s{sWoI}\n"
            f"buffer_load_dwordx4 v{vL16}, {srd(S_WS)}, s9 offen sc1 lds\n"
            f"s_add_u32 s{sWoI}, s{sWoI}, 1024\n"
            f"s_cmp_eq_u32 s{sWoI}, {25*1024}\n"
            f"s_cselect_b32 s{sWoI}, 0, s{sWoI}" for _ in range(25)]


NK, WD, HD = 14, 6, 3
q4 = lambda a, b: list(range(a, b, 4))
WQ = q4(8, 56) + q4(128, 152) + q4(248, 256) + q4(112, 128) + q4(152, 168) + q4(200, 208)
AQ = q4(88, 112) + q4(168, 192) + q4(56, 88)
HQ = q4(192, 200) + q4(208, 248)
assert len(WQ) == 30 and len(AQ) == 20 and len(HQ) == 12 and len(set(WQ + AQ + HQ)) == 62
sLast = sOdd


def ffn_setup(A):
    A(f"s_sub_u32 s3, s{sWave}, 4")
    A("s_mul_i32 s4, s3, 14")
    A("s_cmp_eq_u32 s3, 3")
    A("s_cselect_b32 s5, 1, 0")
    A("s_sub_u32 s4, s4, s5")
    A("s_cmp_ge_u32 s3, 2")
    A("s_cselect_b32 s5, 13, 14")
    A(f"s_cselect_b32 s{sLast}, {OOB}, 0")
    A(f"s_and_b32 s6, s{sRB64}, 3")
    A("s_lshl_b32 s6, s6, 1")
    A(f"s_add_u32 s6, s6, s{sC}")
    A("s_mul_i32 s6, s6, 7")
    A("s_lshr_b32 s6, s6, 2")
    A("s_sub_u32 s7, s6, s5")
    A("s_cmp_ge_u32 s6, s5")
    A("s_cselect_b32 s6, s7, s6")
    if not OPT["P2ROT"]:
        A("s_mov_b32 s6, 0")
    A(f"s_mul_i32 s{sHb}, s{sRB64}, 54")
    A(f"s_add_u32 s{sHb}, s{sHb}, s4")
    A(f"s_lshl_b32 s{sHb}, s{sHb}, 12")
    A("s_lshl_b32 s7, s5, 12")
    A(f"s_add_u32 s{sHe}, s{sHb}, s7")
    A("s_lshl_b32 s7, s6, 12")
    A(f"s_add_u32 s{sHo}, s{sHb}, s7")
    A(f"s_mul_i32 s{sWb}, s{sC}, 74")
    A(f"s_add_u32 s{sWb}, s{sWb}, s4")
    A(f"s_mul_i32 s{sWb}, s{sWb}, 5120")
    A(f"s_add_u32 s{sWb}, s{sWb}, {WS_W2}")
    A("s_mul_i32 s7, s5, 5120")
    A(f"s_add_u32 s{sWe}, s{sWb}, s7")
    A("s_mul_i32 s7, s6, 5120")
    A(f"s_add_u32 s{sWo}, s{sWb}, s7")


def ldW_groups(j):
    out = []
    pre = f"s_add_u32 s{sWo}, s{sWo}, s{sLast}\n" if j == NK - 1 else ""
    for nt in range(4):
        out.append((pre if nt == 0 else "") +
                   f"buffer_load_dwordx4 {vr(WQ[5*(j%WD)+nt])}, v{vL16}, {srd(S_WS)}, s{sWo} offen offset:{nt*1024}{HSC}")
    out.append(f"s_add_u32 s3, s{sWo}, 4096\n"
               f"buffer_load_dwordx4 {vr(WQ[5*(j%WD)+4])}, v{vL16}, {srd(S_WS)}, s3 offen{HSC}\n"
               f"s_add_u32 s{sWo}, s{sWo}, 5120\n"
               f"s_cmp_eq_u32 s{sWo}, s{sWe}\n"
               f"s_cselect_b32 s{sWo}, s{sWb}, s{sWo}")
    return out


def poll_flag(A, lab, addr_s, mask, target, vtmp):
    A(f"s_mov_b32 s{sSpin}, 0")
    A(f"v_mov_b32 v{vtmp+1}, 0")
    A.label(lab)
    A(f"buffer_load_dword v{vtmp}, v{vtmp+1}, {srd(S_WS)}, s{addr_s} offen sc1")
    A("s_waitcnt vmcnt(0)")
    A(f"v_readfirstlane_b32 s{sTmp3}, v{vtmp}")
    A(f"s_add_u32 s{sSpin}, s{sSpin}, 1")
    A(f"s_and_b32 s{sTmp3}, s{sTmp3}, {mask}")
    A(f"s_cmp_ge_u32 s{sTmp3}, {0 if OPT['P2ONLY'] else target}")
    A(f"s_cbranch_scc1 {lab}_ok")
    A(f"s_cmp_gt_u32 s{sSpin}, {SPIN_MAX}")
    A(f"s_cbranch_scc1 {lab}_ok")
    A(f"s_sleep {OPT['PSLEEP']}")
    A(f"s_branch {lab}")
    A.label(lab + "_ok")


def phase2(A):
    S_OUT = S_T
    ACC = 8
    acc = lambda nt, mt: ACC + 4 * (nt * 4 + mt)
    A.label("L_p2")
    mk_srd(A, S_OUT, P_OUT, 2048 * 1280)
    A(f"s_lshr_b32 s{sFl}, s{sRB64}, 1")
    A(f"s_lshl_b32 s{sFl}, s{sFl}, 8")
    A(f"s_add_u32 s{sFl}, s{sFl}, {WS_FL + FL_HC}")
    A.fence()
    A(f"s_cmp_ge_u32 s{sWave}, 4")
    A("s_cbranch_scc1 L2_ffn")

    def signal(n_younger):
        A(f"s_waitcnt vmcnt({n_younger}) lgkmcnt(0)")
        A("s_barrier")

    XR, OA, RA = 232, 238, 241

    def red_setup(A, ta, tb):
        for j in range(3):
            A(f"s_add_u32 s11, s{sWave}, {8*j}")
            A(f"s_lshr_b32 s12, s11, 2")
            A(f"s_and_b32 s13, s11, 3")
            A(f"s_lshl_b32 s14, s{sRB64}, 6")
            A(f"s_lshl_b32 s13, s13, 4")
            A("s_add_u32 s14, s14, s13")
            A("s_mul_i32 s14, s14, 1280")
            A(f"s_mul_i32 s15, s{sC}, 160")
            A("s_add_u32 s14, s14, s15")
            A("s_lshl_b32 s12, s12, 5")
            A("s_add_u32 s14, s14, s12")
            A("s_cmp_lt_u32 s11, 20")
            A(f"s_cselect_b32 s14, s14, {OOB}")
            A(f"v_and_b32 v{ta}, 15, v{vLane}")
            A(f"v_mul_u32_u24 v{ta}, 1280, v{ta}")
            A(f"v_lshrrev_b32 v{tb}, 4, v{vLane}")
            A(f"v_lshl_add_u32 v{ta}, v{tb}, 3, v{ta}")
            A(f"v_add_u32 v{OA+j}, s14, v{ta}")
            A(f"buffer_load_dwordx2 {vr(XR+2*j, 2)}, v{OA+j}, {srd(S_X)}, 0 offen")
            A("s_lshl_b32 s12, s11, 10")
            A(f"s_add_u32 s13, s12, {WO_LDS+5120}")
            A(f"v_add_u32 v{RA+5*j}, s13, v{vL16}")
            for f in range(4):
                A(f"s_add_u32 s13, s12, {KV_SLAB[f]}")
                A(f"s_add_u32 s14, s12, {WO_LDS + f*25600 - 14*1024}")
                A("s_cmp_lt_u32 s11, 14")
                A("s_cselect_b32 s13, s13, s14")
                A("s_cmp_lt_u32 s11, 19")
                A(f"s_cselect_b32 s13, s13, {28672 + f*1024}")
                A(f"v_add_u32 v{RA+5*j+1+f}, s13, v{vL16}")

    AD = 8
    RAW, NRAW = 56, 6
    FR = 80
    OSP = 96
    PQ = lambda mt, blk: 112 + 16 * blk + 4 * mt
    O = lambda u, mt: (OSP + 4 * mt) if u == 0 else PQ(mt, u - 1)
    DEN = 192
    NM = 224
    T = 192
    A(f"s_mul_i32 s8, s{sWave}, 14336")
    A(f"s_cmp_ge_u32 s{sWave}, 2")
    A(f"s_cselect_b32 s9, {135168 - 2*14336}, 0")
    A("s_add_u32 s8, s8, s9")
    for i in range(4):
        A(f"v_mov_b32 v{T+i}, 0")
    A(f"s_add_u32 s9, s8, 13440")
    A(f"v_mov_b32 v{vT2}, s9")
    A(f"ds_write_b128 v{vT2}, {vr(T)}")
    A(f"ds_write_b32 v{vT2}, v{T} offset:16")
    signal(0)
    A(f"s_cmp_lg_u32 s{sWave}, 0")
    A("s_cbranch_scc1 L2_nosig")
    A(f"buffer_atomic_add v{vSigV}, v{vSigA}, {srd(S_WS)}, 0 offen sc1")
    A.label("L2_nosig")
    stamp(A, 0, 1)
    if OPT["NOATT"]:
        A("s_branch L2_reduce")
    A(f"s_cmp_lg_u32 s{sWoDone}, 0")
    A("s_cbranch_scc1 L2_wodone")
    wo_setup(A)
    for g in wo_dmas():
        A(g)
    A.label("L2_wodone")
    A(f"s_mul_i32 s4, s{sWave}, 25600")
    A(f"s_add_u32 s4, s4, {WO_LDS}")
    iL, gL = T + 4, T + 5
    he = T + 12
    hd = T + 22
    ab, zb, hz = T + 6, T + 7, T + 8
    A(f"v_and_b32 v{iL}, 15, v{vLane}")
    A(f"v_lshrrev_b32 v{gL}, 4, v{vLane}")
    for Tt in range(10):
        A(f"v_add_u32 v{he+Tt}, {16*Tt}, v{iL}")
        A(f"v_mul_u32_u24 v{he+Tt}, 205, v{he+Tt}")
        A(f"v_lshrrev_b32 v{he+Tt}, 12, v{he+Tt}")
    for blk in range(5):
        for h in range(2):
            r = hd + 2 * blk + h
            A(f"v_lshlrev_b32 v{r}, 3, v{gL}")
            A(f"v_add_u32 v{r}, {32*blk+4*h}, v{r}")
            A(f"v_mul_u32_u24 v{r}, 205, v{r}")
            A(f"v_lshrrev_b32 v{r}, 12, v{r}")
    A(f"v_mul_u32_u24 v{ab}, 80, v{iL}")
    A(f"v_lshl_add_u32 v{ab}, v{gL}, 5, v{ab}")
    A(f"v_add_u32 v{ab}, s8, v{ab}")
    A(f"v_and_b32 v{hz}, 3, v{iL}")
    A(f"v_mul_u32_u24 v{zb}, 1600, v{hz}")
    A(f"v_lshl_add_u32 v{zb}, v{gL}, 5, v{zb}")
    A(f"v_add_u32 v{zb}, s8, v{zb}")
    NUM = {0: [0], 1: [0, 1], 2: [0, 1], 3: [1, 2], 4: [1, 2], 5: [2, 3], 6: [2, 3], 7: [3, 4], 8: [3, 4], 9: [4]}
    frs = []
    for ch in range(2):
        A(f"v_add_u32 v{T+9}, {4*ch}, v{hz}")
        bl = [0, 1, 2] if ch == 0 else [2, 3, 4]
        for blk in bl:
            n = len(frs)
            frs.append(("z", ch, blk, blk == bl[0], blk == bl[-1]))
            for h in range(2):
                a = AD + 2 * n + h
                A(f"v_cmp_eq_u32 vcc, v{T+9}, v{hd+2*blk+h}")
                A(f"v_add_u32 v{a}, {6400*ch+1600+128*blk+16*h}, v{zb}")
                A(f"v_cndmask_b32 v{a}, v{vT2}, v{a}, vcc")
        for Tt in range(5 * ch, 5 * ch + 5):
            for blk in NUM[Tt]:
                n = len(frs)
                frs.append(("n", Tt, blk, blk == NUM[Tt][0], blk == NUM[Tt][-1]))
                for h in range(2):
                    a = AD + 2 * n + h
                    A(f"v_cmp_eq_u32 vcc, v{he+Tt}, v{hd+2*blk+h}")
                    A(f"v_add_u32 v{a}, {1280*Tt+128*blk+16*h}, v{ab}")
                    A(f"v_cndmask_b32 v{a}, v{vT2}, v{a}, vcc")
    assert len(frs) == 24
    sM = 84
    for k in range(3):
        A(f"v_cmp_lt_u32 s[{sM+2*k}:{sM+2*k+1}], {k}, v{gL}")
    stamp(A, 7, 1, vt=vT0)
    A("s_setprio 3")
    A(f"s_lshr_b32 s10, s{sWave}, 1")
    A("s_lshl_b32 s10, 0x2000, s10")
    poll_flag(A, "L2_pq", sFl, "s10", "s10", vT0)
    stamp(A, 8, 1, vt=vT0)
    A(f"s_mul_i32 s6, s{sRB64}, 20")
    A(f"s_mul_i32 s7, s{sWave}, 5")
    A("s_add_u32 s6, s6, s7")
    A("s_lshl_b32 s6, s6, 12")
    A(f"s_add_u32 s6, s6, {WS_PQ}")
    for blk in range(5):
        for mt in range(4):
            A(f"buffer_load_dwordx4 {vr(PQ(mt, blk))}, v{vL16}, {srd(S_WS)}, s6 offen offset:{mt*1024} sc1")
        A(f"s_add_u32 s6, s6, 4096")
    A(f"s_lshl_b32 s6, s{sWave}, 3")
    A("s_and_b32 s7, s2, 7")
    A("s_add_u32 s6, s6, s7")
    A("s_lshl_b32 s6, s6, 8")
    A(f"s_add_u32 s6, s6, {WS_FL + FL_KV}")
    poll_flag(A, "L2_kv", 6, 0xff, 16, vT0)
    stamp(A, 3, 1, vt=vT0)
    A(f"s_mul_i32 s3, s{sWave}, 13440")
    A(f"s_add_u32 s3, s3, {WS_KVA}")
    for i in range(14):
        if i % 4 == 0:
            A(f"s_add_u32 m0, s8, {i*1024}")
            A(f"s_add_u32 s5, s3, {i*1024}")
        if i == 13:
            A("s_mov_b64 exec, 0xff")
        A(f"buffer_load_dwordx4 v{vL16}, {srd(S_WS)}, s5 offen offset:{(i%4)*1024} sc1 lds")
    A("s_mov_b64 exec, -1")
    A(f"s_setprio {OPT['APRIO']}")
    A("s_waitcnt vmcnt(7) lgkmcnt(0)")
    stamp(A, 9, 1, vt=vT0)
    raw = lambda k: RAW + 4 * (k % NRAW)
    fr = lambda n: FR + 4 * (n % 4)
    dst = lambda f, mt: (DEN + 8 * mt + 4 * f[1]) if f[0] == "z" else (NM + 16 * (f[1] % 2) + 4 * mt)

    def rd(n):
        if n == 12:
            A("s_waitcnt vmcnt(0)")
        for h in range(2):
            A(f"ds_read_b128 {vr(raw(2*n+h))}, v{AD+2*n+h}")

    def post(f):
        out = []
        if f[0] == "z":
            for mt in range(4):
                for i in range(4):
                    r = DEN + 8 * mt + 4 * f[1] + i
                    out.append(f"v_add_f32 v{r}, {f32(1e-6)}, v{r}")
            for mt in range(4):
                for i in range(4):
                    r = DEN + 8 * mt + 4 * f[1] + i
                    out.append(f"v_rcp_f32 v{r}, v{r}")
            return out
        Tt = f[1]
        lo, hi = (4 * Tt) // 5, (4 * Tt + 3) // 5
        sl = {}
        for mt in range(4):
            if lo == hi:
                sl[mt] = DEN + 8 * mt + lo
            else:
                thr = 5 * hi - 4 * Tt
                sl[mt] = AD + mt
                out.append(f"v_cndmask_b32 v{sl[mt]}, v{DEN+8*mt+lo}, v{DEN+8*mt+hi}, s[{sM+2*(thr-1)}:{sM+2*(thr-1)+1}]")
        for mt in range(4):
            d = dst(f, mt)
            for i in range(4):
                out.append(f"v_mul_f32 v{d+i}, v{d+i}, v{sl[mt]}")
        for mt in range(4):
            d = dst(f, mt)
            ob = O(Tt // 2, mt) + 2 * (Tt % 2)
            out.append(f"v_cvt_pk_bf16_f32 v{ob}, v{d}, v{d+1}")
            out.append(f"v_cvt_pk_bf16_f32 v{ob+1}, v{d+2}, v{d+3}")
        return out
    rd(0)
    rd(1)
    pend = []
    nxt = []
    for n in range(26):
        if n + 2 < 24:
            rd(n + 2)
        cv = []
        if n < 24:
            A(f"s_waitcnt lgkmcnt({2*min(2, 23-n)})")
            for h in range(2):
                cv.append(f"v_cvt_pk_bf16_f32 v{fr(n)+2*h}, v{raw(2*n+h)}, v{raw(2*n+h)+1}")
                cv.append(f"v_cvt_pk_bf16_f32 v{fr(n)+2*h+1}, v{raw(2*n+h)+2}, v{raw(2*n+h)+3}")
        mf = []
        if 1 <= n <= 24:
            f = frs[n - 1]
            if f[3] and f[0] == "n":
                need = [x for x in pend if x[0] <= f[1] - 2]
                for x in need:
                    A(x[1])
                pend = [x for x in pend if x[0] > f[1] - 2]
            for mt in range(4):
                d = vr(dst(f, mt))
                mf.append(f"v_mfma_f32_16x16x32_bf16 {d}, {vr(fr(n-1))}, {vr(PQ(mt, f[2]))}, {0 if f[3] else d}")
        take = pend[:14]
        pend = pend[14:]
        work = cv + [x[1] for x in take]
        for g in (interleave(mf, work) if mf else work):
            A(g)
        pend += nxt
        nxt = []
        if 1 <= n <= 24 and frs[n - 1][4]:
            f = frs[n - 1]
            nxt = [((f[1] if f[0] == "n" else 5 * f[1] - 0.5), x) for x in post(f)]
    for x in pend + nxt:
        A(x[1])
    stamp(A, 11, 1, vt=vT0)
    A(f"s_setprio {OPT['APRIO2']}")
    WF = 192
    A(f"v_add_u32 v{vT0}, s4, v{vL16}")
    A.fence()

    def rd_wo(u):
        for nt in range(5):
            A(f"ds_read_b128 {vr(WF+20*(u%2)+4*nt)}, v{vT0} offset:{(u*5+nt)*1024}")
    E = Asm()
    red_setup(E, vSigA, vSigV)
    rs = [t for _, t in E.lines]
    rd_wo(0)
    for u in range(5):
        if u + 1 < 5:
            rd_wo(u + 1)
        A(f"s_waitcnt lgkmcnt({5 if u < 4 else 0})")
        if u == 0:
            A(f"v_mov_b32 v{vT1}, 1")
            A(f"ds_write_b32 v{vT2}, v{vT1} offset:16")
        mf = []
        for nt in range(5):
            for mt in range(4):
                d = vr(acc(nt, mt))
                mf.append(f"v_mfma_f32_16x16x32_bf16 {d}, {vr(WF+20*(u%2)+4*nt)}, {vr(O(u, mt))}, {d if u else 0}")
        k = (len(rs) + 3) // 4
        for g in interleave(mf, rs[u*k:(u+1)*k]):
            A(g)
    stamp(A, 1, 1, vt=vSigA)
    A.fence()
    for t in range(20):
        A(f"ds_write_b128 v{vT0}, {vr(ACC+4*t)} offset:{5120+t*1024}")
    A("s_branch L2_reduce")

    A.label("L2_ffn")
    q = []

    def ldW(j):
        for g in ldW_groups(j):
            A(g)
        q.extend([("W", j)] * 5)

    def ldH1(j, mt):
        if j == NK - 1 and mt == 0:
            A(f"s_add_u32 s{sHo}, s{sHo}, s{sLast}")
        A(f"buffer_load_dwordx4 {vr(HQ[4*(j%HD)+mt])}, v{vL16}, {srd(S_WS)}, s{sHo} offen offset:{mt*1024}{HSC}")
        if mt == 3:
            A(f"s_add_u32 s{sHo}, s{sHo}, 4096")
            A(f"s_cmp_eq_u32 s{sHo}, s{sHe}")
            A(f"s_cselect_b32 s{sHo}, s{sHb}, s{sHo}")
        q.append(("H", j, mt))

    def ldH(j):
        for mt in range(4):
            ldH1(j, mt)
    signal(0)
    A(f"s_cmp_lg_u32 s{sWoDone}, 0")
    A("s_cbranch_scc1 L2_ws")
    ffn_setup(A)
    A.label("L2_ws")
    A(f"s_sub_u32 s10, s{sWave}, 4")
    A("s_lshl_b32 s10, s10, 1")
    A("s_lshl_b32 s10, 7, s10")
    A(f"v_mov_b32 v{vT1}, 0")
    A(f"s_cmp_gt_u32 s{sWoDone}, 1")
    A("s_cbranch_scc1 L2_w0")
    ldW(0)
    ldW(1)
    A.label("L2_w0")
    assert OPT["NPRE"] == 2
    for j in range(2, WD):
        if j == OPT["EPOLL"]:
            A(f"buffer_load_dword v{vT2}, v{vT1}, {srd(S_WS)}, s{sFl} offen sc1")
        ldW(j)
    if OPT["EPOLL"]:
        A(f"s_waitcnt vmcnt({5*(WD-OPT['EPOLL'])})")
        A(f"v_readfirstlane_b32 s{sTmp3}, v{vT2}")
        A(f"s_and_b32 s{sTmp3}, s{sTmp3}, s10")
        A(f"s_cmp_eq_u32 s{sTmp3}, s10")
        A(f"s_cbranch_scc1 L2_h_ok")
    stamp(A, 4, 1, wave=4, vt=vT0)
    poll_flag(A, "L2_h", sFl, "s10", "s10", vT0)
    stamp(A, 5, 1, wave=4, vt=vT0)
    stamp(A, 14, 1, wave=4, vt=vT0, clk=True)
    q.clear()
    for j in range(HD):
        ldH(j)
    A(f"s_setprio {OPT['FPRIO']}")
    for j in range(NK):
        for mt in range(4):
            last = max(i for i, e in enumerate(q) if e[1] == j and (e[0] == "W" or e[2] <= mt))
            A(f"s_waitcnt vmcnt({len(q)-1-last})")
            for nt in range(5):
                d = vr(AQ[nt*4+mt])
                if not OPT["NOMF"]: A(f"v_mfma_f32_16x16x32_bf16 {d}, {vr(WQ[5*(j%WD)+nt])}, {vr(HQ[4*(j%HD)+mt])}, {d if j else 0}")
            if j + HD < NK:
                ldH1(j + HD, mt)
        if j + WD < NK:
            ldW(j + WD)
    A("s_setprio 0")
    stamp(A, 6, 1, wave=4, vt=vT0)
    stamp(A, 15, 1, wave=4, vt=vT0, clk=True)
    A("s_waitcnt vmcnt(0)")
    red_setup(A, vSigA, vSigV)
    A(f"s_sub_u32 s3, s{sWave}, 4")
    A("s_mul_i32 s8, s3, 14336")
    A("s_cmp_ge_u32 s3, 2")
    A(f"s_cselect_b32 s9, {135168 - 2*14336}, 0")
    A("s_add_u32 s8, s8, s9")
    A(f"v_add_u32 v{vT0}, s8, v{vL16}")
    A("s_add_u32 s9, s8, 13456")
    A(f"v_mov_b32 v{vT2}, s9")
    A(f"s_mov_b32 s{sSpin}, 0")
    A.label("L2_wfree")
    A(f"ds_read_b32 v{vT1}, v{vT2}")
    A("s_waitcnt lgkmcnt(0)")
    A(f"v_readfirstlane_b32 s9, v{vT1}")
    A(f"s_add_u32 s{sSpin}, s{sSpin}, 1")
    A("s_cmp_eq_u32 s9, 1")
    A("s_cbranch_scc1 L2_wfree_ok")
    A(f"s_cmp_gt_u32 s{sSpin}, {SPIN_MAX*16}")
    A("s_cbranch_scc1 L2_wfree_ok")
    A("s_sleep 2")
    A("s_branch L2_wfree")
    A.label("L2_wfree_ok")
    A("s_mul_i32 s8, s3, 25600")
    A(f"s_add_u32 s8, s8, {WO_LDS}")
    A(f"v_add_u32 v{vT1}, s8, v{vL16}")
    A("s_lshl_b32 s8, s3, 10")
    A(f"v_add_u32 v{vT2}, s8, v{vL16}")
    for t in range(20):
        if t < 14:
            A(f"ds_write_b128 v{vT0}, {vr(AQ[t])} offset:{t*1024}")
        elif t < 19:
            A(f"ds_write_b128 v{vT1}, {vr(AQ[t])} offset:{(t-14)*1024}")
        else:
            A(f"ds_write_b128 v{vT2}, {vr(AQ[t])} offset:28672")

    A.label("L2_reduce")
    A("s_setprio 0")
    A("s_waitcnt lgkmcnt(0)")
    stamp(A, 12, 1, vt=vSigA)
    A("s_barrier")
    stamp(A, 13, 1, vt=vSigA)
    R = lambda j: 8 + 32 * j

    def rds(j):
        A(f"v_add_u32 v{vT0}, {2*25600}, v{RA+5*j}")
        for w in range(4):
            A(f"ds_read_b128 {vr(R(j)+4*w)}, v{RA+5*j if w < 2 else vT0} offset:{(w%2)*25600}")
        for f in range(4):
            A(f"ds_read_b128 {vr(R(j)+16+4*f)}, v{RA+5*j+1+f}")

    def fin(j):
        r = R(j)
        for st in (16, 8, 4):
            for i in range(0, st, 2):
                pk_mul(A, r + i, ("p", r + i), ("p", r + st + i), op="add")
        x0, x1 = XR + 2 * j, XR + 2 * j + 1
        A(f"v_lshlrev_b32 v{r+4}, 16, v{x0}")
        A(f"v_and_b32 v{r+5}, 0xffff0000, v{x0}")
        A(f"v_lshlrev_b32 v{r+6}, 16, v{x1}")
        A(f"v_and_b32 v{r+7}, 0xffff0000, v{x1}")
        for i in range(0, 4, 2):
            pk_mul(A, r + i, ("p", r + i), ("p", r + 4 + i), op="add")
        A(f"v_cvt_pk_bf16_f32 v{x0}, v{r}, v{r+1}")
        A(f"v_cvt_pk_bf16_f32 v{x1}, v{r+2}, v{r+3}")
        A(f"buffer_store_dwordx2 {vr(x0, 2)}, v{OA+j}, {srd(S_OUT)}, 0 offen" + ["", " sc1", " nt"][OPT["OUTSC"]])
    rds(0)
    rds(1)
    A("s_waitcnt vmcnt(0) lgkmcnt(8)")
    fin(0)
    A(f"s_cmp_ge_u32 s{sWave}, 4")
    A("s_cbranch_scc1 L2_last")
    rds(2)
    A("s_waitcnt lgkmcnt(0)")
    fin(2)
    A.label("L2_last")
    A("s_waitcnt lgkmcnt(0)")
    fin(1)
    A.label("L2_done")
    stamp(A, 2, 1, vt=vSigA)


def descriptor(name, vgpr=256):
    return f""".amdhsa_kernel {name}
  .amdhsa_next_free_vgpr {vgpr}
  .amdhsa_next_free_sgpr 102
  .amdhsa_accum_offset {vgpr}
  .amdhsa_group_segment_fixed_size 0
  .amdhsa_kernarg_size 80
  .amdhsa_user_sgpr_count 2
  .amdhsa_user_sgpr_kernarg_segment_ptr 1
  .amdhsa_system_sgpr_workgroup_id_x 1
.end_amdhsa_kernel
"""


def probe(A):
    A(".p2align 8")
    A.label("pre_kernel")
    if OPT["PROBE"] == 2:
        A("s_cmp_ge_u32 s2, 256")
        A("s_cbranch_scc1 L_pre_exit")
        load_ptrs(A)
        A("s_lshl_b32 s3, s2, 9")
        A("v_add_u32 v1, s3, v0")
        A("v_lshlrev_b32 v1, 5, v1")
        A("s_waitcnt lgkmcnt(0)")
        for k, (p, n) in enumerate(((P_X, 2048*1280), (P_WQKV, 640*3840), (P_WO, 640*1280), (P_G, 640*3456), (P_U, 640*3456), (P_D, 1728*1280))):
            mk_srd(A, 36 + 4*k, p, n)
            A(f"buffer_load_dword v{2+k}, v1, {srd(36+4*k)}, 0 offen")
        A("s_waitcnt vmcnt(0)")
        A.label("L_pre_exit")
    A("s_endpgm")


def main():
    A = Asm()
    kernel1(A)
    K = NAME + "_kernel"
    launch = f"; @launch grid=(256,1,1) block=(512,1,1) lds={LDS_TOTAL}"
    extra = ""
    if OPT["PROBE"]:
        probe(A)
        launch = f"; @launch kernel=pre_kernel grid=(256,1,1) block=(512,1,1) lds=0\n; @launch kernel={K} grid=(256,1,1) block=(512,1,1) lds={LDS_TOTAL}"
        if OPT["PROBE"] == 3:
            launch = f"; @launch kernel={K} grid=(256,1,1) block=(512,1,1) lds={LDS_TOTAL}\n; @launch kernel={K} grid=(256,1,1) block=(512,1,1) lds={LDS_TOTAL}"
        extra = ".p2align 6\n" + descriptor("pre_kernel", 16)
    head = f"""; LN + linear attention + GEGLU FFN, one persistent launch (generated by dev/gen.py)
{launch}
.amdgcn_target "amdgcn-amd-amdhsa--gfx950"
.text
.globl {K}
.type {K},@function
"""
    tail = '.section .rodata,"a"\n.p2align 6\n' + descriptor(K) + extra
    open(sys.argv[1], "w").write(head + A.render() + tail)


main()
```

```python
import sys, struct, math
from asmlib import Asm, interleave

NAME = "parallel_sum__linear_attn_block__geglu_ffn__prompt"

OPT = dict(ROTQ=1, STAMP=0, NODMA=0, SAME=0, NOSWZ=0, NORD=0, P2ROT=1, WARM=1, PLAIN=0, BYTEFLAG=0, NBUP=6, SW=0, P2ONLY=0, P2SAME=0, NOATT=0, NOMF=0, FPRIO=1, NPRE=2, CGPERM=0, OUTSC=0, CODEWARM=2, TLBWARM=0, PUBST=0, GPK=1, APRIO=2, APRIO2=0, FINEH=1, XMAP=0, FAKE16=0, PSLEEP=2, EPOLL=0, PROBE=0, WOEPI=0)
for a in sys.argv[2:]:
    k, v = a.split("=")
    OPT[k] = int(v)

OPT_WOEPI = ['', 'K', 'KQ', 'KQG'][OPT['WOEPI']]
HSC = '' if OPT['PLAIN'] else ' sc1'
WS_H = 0x000000
WS_PQ = 0x700000
WS_W2 = 0xA00000
WS_ST = 0xD00000
WS_CS = 0xD10000
WS_KVA = 0xD80000
WS_FL = 0xD90000
FL_HC = 0
FL_KV = 16 * 256
FL_ROW = 128
WS_STAMP = 0xF00000
WS_SIZE = 0x1000000
OOB = 0x40000000


def f32(x):
    return "0x%08x" % struct.unpack("<I", struct.pack("<f", x))[0]


LOG2E = 1.4426950408889634
GC1 = -2.0 * math.sqrt(2.0 / math.pi) * LOG2E
GC2 = GC1 * 0.044715

P_X, P_WQKV, P_WO, P_BX, P_G, P_U, P_D, P_OUT, P_DBG, P_WS = 16, 18, 20, 22, 24, 26, 28, 30, 32, 34
S_X, S_W, S_WS, S_DBG, S_T = 36, 40, 44, 48, 52


def srd(b):
    return f"s[{b}:{b+3}]"


def vr(b, n=4):
    return f"v[{b}:{b+n-1}]"


def mk_srd(A, s, p, nbytes):
    A(f"s_mov_b32 s{s}, s{p}")
    A(f"s_and_b32 s{s+1}, s{p+1}, 0xffff")
    A(f"s_mov_b32 s{s+2}, {nbytes}")
    A(f"s_mov_b32 s{s+3}, 0x20000")


def load_ptrs(A):
    A("s_load_dwordx16 s[16:31], s[0:1], 0")
    A("s_load_dwordx4 s[32:35], s[0:1], 64")


def wave_allreduce_add(A, v, t, s0):
    A(f"v_add_f32_dpp v{v}, v{v}, v{v} quad_perm:[1,0,3,2] row_mask:0xf bank_mask:0xf")
    A(f"v_add_f32_dpp v{v}, v{v}, v{v} quad_perm:[2,3,0,1] row_mask:0xf bank_mask:0xf")
    A(f"v_add_f32_dpp v{v}, v{v}, v{v} row_half_mirror row_mask:0xf bank_mask:0xf")
    A(f"v_add_f32_dpp v{v}, v{v}, v{v} row_mirror row_mask:0xf bank_mask:0xf")
    for i in range(4):
        A(f"v_readlane_b32 s{s0+i}, v{v}, {16*i}")
    A(f"v_mov_b32 v{v}, s{s0}")
    A(f"v_mov_b32 v{t}, s{s0+2}")
    A(f"v_add_f32 v{v}, s{s0+1}, v{v}")
    A(f"v_add_f32 v{t}, s{s0+3}, v{t}")
    A(f"v_add_f32 v{v}, v{v}, v{t}")


def lstamp(A, k):
    if OPT["STAMP"] != 4:
        return
    A("s_memrealtime s[96:97]")
    A("s_waitcnt lgkmcnt(0)")
    A(f"v_writelane_b32 v28, s96, {k}")


def stamp(A, idx, kern, dyn=None, clk=False, wave=0, vt=None):
    if vt is None:
        vt = (26 if idx != 3 else 50) if kern == 0 else 254
    if not OPT["STAMP"]:
        return
    if OPT["STAMP"] == 9:
        slot = {(0, 0): (1, True), (0, 1): (2, False), (0, 2): (3, False), (0, 3): (5, False), (1, 0): (6, False), (1, 5): (7, False),
                (1, 3): (9, False), (1, 1): (10, False), (1, 2): (11, False), (1, 6): (13, False)}.get((kern, idx))
        if slot is None or clk:
            return
        lab = f"L_st_{kern}_{idx}_{len(A.lines)}"
        A(f"s_cmp_lg_u32 s{sWave}, {wave}")
        A(f"s_cbranch_scc1 {lab}")
        A("s_memrealtime s[96:97]")
        A("s_waitcnt lgkmcnt(0)")
        if slot[1]:
            A("s_not_b32 s96, s96")
        A(f"v_mov_b32 v{vt}, s96")
        A(f"v_mov_b32 v{vt+1}, {OOB}")
        A(f"v_writelane_b32 v{vt+1}, {slot[0]*4}, 0")
        A(f"buffer_atomic_umax v{vt}, v{vt+1}, {srd(S_DBG)}, 0 offen sc1")
        A.label(lab)
        return
    lab = f"L_st_{kern}_{idx}_{len(A.lines)}"
    A(f"s_cmp_lg_u32 s{sWave}, {wave}")
    A(f"s_cbranch_scc1 {lab}")
    A("s_memtime s[96:97]" if clk else "s_memrealtime s[96:97]")
    A("s_waitcnt lgkmcnt(0)")
    A(f"s_lshl_b32 s98, s2, 6")
    A(f"s_add_u32 s98, s98, {WS_STAMP + kern*0x8000 + idx*4}")
    if dyn is not None:
        A(f"s_lshl_b32 s99, s{dyn}, 2")
        A("s_add_u32 s98, s98, s99")
    A(f"v_mov_b32 v{vt}, s96")
    A(f"v_mov_b32 v{vt+1}, 0")
    A(f"buffer_store_dword v{vt}, v{vt+1}, {srd(S_WS)}, s98 offen")
    A.label(lab)


sWave, sRB, sCG, sIt, sKW, sKWn, sKX, sKXn, sWslot, sRslot, sXslot, sStepW, sCSit, sSpec, sTmp, sTmp2, sMW, sNW, sWrapW, sTmp3, sC0, sRow, sSpin, sOdd, sPub, sUw, sUl = range(56, 83)
X_LDS = 0
W_LDS = 32768
W_SLOT = 24576
MISC_LDS = W_LDS + 5 * W_SLOT
LDS_TOTAL = 163840

vLane, vT0, vT1, vT2, vT3 = 1, 2, 3, 4, 5
vSigA, vSigV = 6, 7
vXo = 6
vWo = 8
vXa = 11
vWb = 15
vWa = 20
vPa = 25
SPIN_MAX = 0x100000
vSel = 52
vPoll = 30
vCSA = 32
vCSP = 32
vSt = 31
KST = lambda j: (44 + 4 * j) if j < 3 else (232 + 4 * (j - 3))
vBUF = 56
vACC = 152


KVT = [[(0, 0), (0, 1), (0, 2), (1, 0), (1, 1)], [(0, 3), (0, 4), (1, 2), (1, 3), (1, 4)]]


def k1_gemm(A, typ):
    G = typ == "G"
    MT = 2 if G else 1
    NT = 3 if G else 5
    NW_ = 6 if G else 5
    pitch = 3456 if G else 3840
    XB = lambda P, mt, kk: vBUF + 48 * P + 4 * (mt * 2 + kk)
    WBf = lambda P, a, kk: vBUF + 48 * P + 4 * MT * 2 + 4 * (a * 2 + kk)
    acc = lambda mt, a: vACC + 16 * (mt * NT + a)
    L = lambda s: f"L_{typ}_{s}"

    if G:
        A(f"s_lshr_b32 s{sMW}, s{sWave}, 2")
        A(f"s_and_b32 s{sNW}, s{sWave}, 3")
        mk_srd(A, S_W, P_G, 640 * 3456)
        mk_srd(A, S_T, P_U, 640 * 3456)
    else:
        A(f"s_lshr_b32 s{sMW}, s{sWave}, 1")
        A(f"s_and_b32 s{sNW}, s{sWave}, 1")
        mk_srd(A, S_W, P_WQKV, 640 * 3840)
    A(f"s_and_b32 s{sTmp2}, s{sWave}, 3")
    A(f"v_lshrrev_b32 v{vT0}, 3, v{vLane}")
    A(f"s_lshl_b32 s{sTmp3}, s{sTmp2}, 3")
    A(f"v_add_u32 v{vT0}, s{sTmp3}, v{vT0}")
    A(f"v_mul_u32_u24 v{vT0}, {pitch}, v{vT0}")
    A(f"v_and_b32 v{vT1}, 7, v{vLane}")
    A(f"v_lshrrev_b32 v{vT2}, 2, v{vLane}")
    A(f"v_and_b32 v{vT2}, 4, v{vT2}")
    A(f"v_xor_b32 v{vT1}, v{vT1}, v{vT2}")
    if G:
        A(f"s_mul_i32 s{sTmp3}, s{sCG}, {0 if OPT['SAME'] else 384}")
        A(f"v_add_u32 v{vT0}, s{sTmp3}, v{vT0}")
        A(f"v_lshl_add_u32 v{vWo}, v{vT1}, 4, v{vT0}")
        A(f"v_xor_b32 v{vT1}, 2, v{vT1}")
        A(f"v_lshl_add_u32 v{vWo+1}, v{vT1}, 4, v{vT0}")
        chunks = [(S_W, vWo, 0), (S_W, vWo, 128), (S_W, vWo, 256), (S_T, vWo + 1, 0), (S_T, vWo + 1, 128), (S_T, vWo + 1, 256)]
    elif typ == "Q":
        A(f"s_sub_u32 s{sTmp3}, s{sCG}, 13")
        A(f"s_mul_i32 s{sTmp3}, s{sTmp3}, 640")
        A(f"v_add_u32 v{vT0}, s{sTmp3}, v{vT0}")
        A(f"v_lshl_add_u32 v{vWo}, v{vT1}, 4, v{vT0}")
        chunks = [(S_W, vWo, 128 * i) for i in range(5)]
    else:
        A(f"s_sub_u32 s4, s{sCG}, 9")
        A(f"s_and_b32 s{sOdd}, s4, 1")
        A(f"s_mul_i32 s6, s4, 320")
        A(f"s_add_u32 s6, s6, 1280")
        A(f"s_lshl_b32 s7, s{sOdd}, 6")
        A(f"s_add_u32 s7, s7, s6")
        A(f"s_cmp_eq_u32 s{sOdd}, 0")
        A(f"s_cselect_b32 s8, 256, 0")
        A(f"s_add_u32 s8, s8, s6")
        A(f"v_lshl_add_u32 v{vT2}, v{vT1}, 4, v{vT0}")
        A(f"v_add_u32 v{vWo}, s7, v{vT2}")
        A(f"v_xor_b32 v{vT3}, 2, v{vT1}")
        A(f"v_lshl_add_u32 v{vT2}, v{vT3}, 4, v{vT0}")
        A(f"v_add_u32 v{vWo+2}, s7, v{vT2}")
        A(f"v_lshrrev_b32 v{vT2}, 2, v{vT1}")
        A(f"v_lshlrev_b32 v{vT3}, 1, v{vT2}")
        A(f"v_xor_b32 v{vT3}, v{vT3}, v{vT1}")
        A(f"v_and_b32 v{vT3}, 3, v{vT3}")
        A(f"v_lshl_add_u32 v{vT3}, v{vT3}, 4, v{vT0}")
        A(f"v_mul_u32_u24 v{vT2}, 1280, v{vT2}")
        A(f"v_add3_u32 v{vWo+1}, v{vT3}, v{vT2}, s8")
        chunks = [(S_W, vWo, 0), (S_W, vWo, 128), (S_W, vWo + 2, 1280), (S_W, vWo + 2, 1408), (S_W, vWo + 1, 0)]
    A(f"s_lshr_b32 s{sTmp}, s{sWave}, 2")
    A(f"s_lshl_b32 s{sTmp2}, s{sTmp2}, 10")
    A(f"s_add_u32 s{sWrapW}, s{sTmp2}, {W_LDS + 5*W_SLOT}")
    A(f"s_mul_i32 s{sWslot}, s{sTmp}, {W_SLOT}")
    A(f"s_add_u32 s{sWslot}, s{sWslot}, s{sTmp2}")
    A(f"s_add_u32 s{sWslot}, s{sWslot}, {W_LDS}")
    A(f"s_mul_i32 s{sKW}, s{sC0}, {64*pitch}")
    A(f"s_mul_i32 s{sTmp}, s{sTmp}, {32*pitch}")
    A(f"s_add_u32 s{sKW}, s{sKW}, s{sTmp}")
    A(f"s_mov_b32 s{sKWn}, 0")

    def dmaW():
        out = []
        for i, (sr, vo, imm) in enumerate(chunks):
            out.append(f"s_add_u32 m0, s{sWslot}, {i*4096 - imm}\n" +
                       "s_nop 0\n" +
                       f"buffer_load_dwordx4 v{vo}, {srd(sr)}, s{sKW} offen offset:{imm} lds")
        out.append(f"s_add_u32 s{sWslot}, s{sWslot}, {2*W_SLOT}\n"
                   f"s_cmp_ge_u32 s{sWslot}, s{sWrapW}\n"
                   f"s_cselect_b32 s{sTmp}, {5*W_SLOT}, 0\n"
                   f"s_sub_u32 s{sWslot}, s{sWslot}, s{sTmp}\n"
                   f"s_add_u32 s{sKW}, s{sKW}, {64*pitch}\n"
                   f"s_cmp_ge_u32 s{sKW}, {640*pitch}\n"
                   f"s_cselect_b32 s{sTmp}, {640*pitch}, 0\n"
                   f"s_sub_u32 s{sKW}, s{sKW}, s{sTmp}")
        return out

    def dmaX():
        out = []
        for i in range(4):
            out.append(f"s_add_u32 m0, s{sXslot}, {i*1024}\n" +
                       f"s_add_u32 s{sTmp}, s{sKX}, {16*1280}\n" +
                       f"buffer_load_dwordx4 v{vXo+i%2}, {srd(S_X)}, s{sKX if i < 2 else sTmp} offen lds")
        out.append(f"s_xor_b32 s{sXslot}, s{sXslot}, 16384\n"
                   f"s_add_u32 s{sKX}, s{sKX}, 128\n"
                   f"s_cmp_eq_u32 s{sKX}, 1280\n"
                   f"s_cselect_b32 s{sKX}, 0, s{sKX}")
        return out

    A(f"s_cmp_lt_u32 s{sWave}, 4")
    A(f"s_cbranch_scc1 {L('p1')}")
    for g in dmaX():
        A(g)
    A(f"s_branch {L('p2')}")
    A.label(L("p1"))
    for g in dmaW():
        A(g)
    A.label(L("p2"))
    lstamp(A, 16)

    if OPT["STAMP"] == 3:
        stamp(A, 4, 0, wave=OPT["SW"])
    A(f"v_and_b32 v{vT0}, 31, v{vLane}")
    A(f"v_lshrrev_b32 v{vT1}, 5, v{vLane}")
    A(f"v_bfe_u32 v{vT2}, v{vLane}, 1, 3")
    A(f"v_xor_b32 v{vT1}, v{vT1}, v{vT2}")
    A(f"s_lshl_b32 s{sTmp}, s{sMW}, {13 if G else 12}")
    A(f"v_lshl_add_u32 v{vT0}, v{vT0}, 7, s{sTmp}")
    for kap in range(2):
        for kk in range(2):
            A(f"v_xor_b32 v{vT2}, {4*kap+2*kk}, v{vT1}")
            A(f"v_lshl_add_u32 v{vXa+2*kap+kk}, v{vT2}, 4, v{vT0}")
    A(f"v_lshrrev_b32 v{vT0}, 5, v{vLane}")
    A(f"v_lshlrev_b32 v{vT0}, 10, v{vT0}")
    A(f"v_bfe_u32 v{vT1}, v{vLane}, 2, 2")
    A(f"v_lshl_add_u32 v{vT0}, v{vT1}, 7, v{vT0}")
    A(f"v_and_b32 v{vT2}, 3, v{vLane}")
    if typ != "K":
        A(f"v_lshlrev_b32 v{vT3}, 1, v{vT2}")
        A(f"v_lshrrev_b32 v{vT2}, 1, v{vT2}")
        A(f"v_and_b32 v{vT3}, 2, v{vT3}")
        A(f"v_or_b32 v{vT2}, v{vT2}, v{vT3}")
    A(f"v_lshl_add_u32 v{vT0}, v{vT2}, 3, v{vT0}")
    A(f"v_and_b32 v{vT1}, 2, v{vT1}")
    A(f"v_bfe_u32 v{vT2}, v{vLane}, 4, 1")
    A(f"v_xor_b32 v{vT1}, v{vT1}, v{vT2}")
    if G:
        A(f"v_mul_u32_u24 v{vT2}, {3*4096}, v{vT2}")
        A(f"v_add_u32 v{vT0}, v{vT0}, v{vT2}")
        for a in range(3):
            A(f"s_mul_i32 s{sTmp}, s{sNW}, 3")
            A(f"s_add_u32 s{sTmp}, s{sTmp}, {a}")
            A(f"s_lshr_b32 s{sTmp2}, s{sTmp}, 2")
            A(f"s_lshl_b32 s{sTmp2}, s{sTmp2}, 12")
            A(f"s_and_b32 s{sTmp}, s{sTmp}, 3")
            A(f"v_xor_b32 v{vT2}, s{sTmp}, v{vT1}")
            A(f"v_lshl_add_u32 v{vT2}, v{vT2}, 5, v{vT0}")
            A(f"v_add_u32 v{vWb+a}, s{sTmp2}, v{vT2}")
    else:
        for a in range(5):
            if typ == "Q":
                A(f"s_mul_i32 s{sTmp}, s{sNW}, 5")
                A(f"s_add_u32 s{sTmp}, s{sTmp}, {a}")
                A(f"s_lshr_b32 s{sTmp2}, s{sTmp}, 1")
                A(f"s_lshl_b32 s{sTmp2}, s{sTmp2}, 12")
                A(f"s_and_b32 s{sTmp}, s{sTmp}, 1")
                A(f"s_lshl_b32 s{sTmp}, s{sTmp}, 1")
                A(f"v_xor_b32 v{vT2}, s{sTmp}, v{vT1}")
                A(f"v_lshl_add_u32 v{vT2}, v{vT2}, 5, v{vT0}")
                A(f"v_add_u32 v{vWb+a}, s{sTmp2}, v{vT2}")
            else:
                def loc(pi, nw, odd):
                    m, p = pi // 5, 5 * nw + pi % 5
                    if odd:
                        L_, tau = (4, p + 2 * m) if p < 2 else (2 * m + ((p - 2) >> 2), (p - 2) & 3)
                    else:
                        L_, tau = (4, p - 8 + 2 * m) if p >= 8 else (2 * m + (p >> 2), p & 3)
                    return L_ * 4 + (tau ^ m)
                if a == 0:
                    A(f"s_lshl_b32 s9, s{sNW}, 1")
                    A(f"s_add_u32 s9, s9, s{sOdd}")
                    A("s_lshl_b32 s9, s9, 3")
                    A(f"v_bfe_u32 v{vT2}, v{vLane}, 4, 1")
                    A(f"v_cmp_eq_u32 vcc, 1, v{vT2}")
                    A(f"v_and_b32 v{vT1}, 2, v{vT1}")
                for sub, sr in ((0, sTmp), (1, sTmp2)):
                    tab = sum(loc(2 * a + sub, nw, odd) << (8 * (2 * nw + odd)) for nw in range(2) for odd in range(2))
                    A(f"s_lshr_b32 s{sr}, {tab}, s9")
                    A(f"s_and_b32 s{sr}, s{sr}, 0xff")
                A(f"v_mov_b32 v{vT2}, s{sTmp}")
                A(f"v_mov_b32 v{vT3}, s{sTmp2}")
                A(f"v_cndmask_b32 v{vT2}, v{vT2}, v{vT3}, vcc")
                A(f"v_lshrrev_b32 v{vT3}, 2, v{vT2}")
                A(f"v_lshl_add_u32 v{vT3}, v{vT3}, 12, v{vT0}")
                A(f"v_and_b32 v{vT2}, 3, v{vT2}")
                A(f"v_xor_b32 v{vT2}, v{vT2}, v{vT1}")
                A(f"v_lshl_add_u32 v{vWb+a}, v{vT2}, 5, v{vT3}")
        if typ == "K":
            kv_addr_setup(A)
    A(f"s_mov_b32 s{sRslot}, {W_LDS}")
    poll_addr(A)
    A(f"v_and_b32 v{vT0}, 15, v{vLane}")
    A(f"v_bfe_u32 v{vT1}, v{vLane}, 4, 1")
    A(f"v_cmp_eq_u32 vcc, v{vT0}, v{vT1}")
    A(f"v_mov_b32 v{vT2}, 0x3f803f80")
    A(f"v_cndmask_b32 v{vSel}, 0, v{vT2}, vcc")
    for i in range(1, 4):
        A(f"v_mov_b32 v{vSel+i}, v{vSel}")
    for i in range(4 * NT):
        A(f"v_mov_b32 v{vCSA+i}, 0")
    for i in range(16 * MT * NT):
        A(f"v_mov_b32 v{vACC+i}, 0")
    A(f"s_mov_b32 s{sPub}, 2")
    A(f"s_bitcmp1_b32 0x88ff, s{sRB}")
    A(f"s_cselect_b32 s{sCSit}, 0, 99")
    A(f"s_cmp_eq_u32 s{sMW}, 0")
    A(f"s_cselect_b32 s{sCSit}, s{sCSit}, 99")
    A(f"s_mov_b32 s{sTmp}, 0xe")
    A(f"s_cmp_eq_u32 s{sWave}, 0")
    A(f"s_cselect_b32 s{sSpec}, s{sTmp}, 0")
    A(f"s_cmp_eq_u32 s{sWave}, 3")
    A(f"s_cselect_b32 s{sTmp}, 0xc0, 0")
    A(f"s_or_b32 s{sSpec}, s{sSpec}, s{sTmp}")
    A(f"s_or_b32 s{sSpec}, s{sSpec}, 0x300")
    A(f"s_mov_b32 s{sIt}, 0")
    A(f"s_mov_b32 s{sSpin}, 0")

    def reads(P, kap):
        pre = [f"v_add_u32 v{vWa+a}, s{sRslot}, v{vWb+a}" for a in range(NT)]
        post = [f"s_add_u32 s{sRslot}, s{sRslot}, {W_SLOT}\n"
                f"s_cmp_eq_u32 s{sRslot}, {W_LDS+5*W_SLOT}\n"
                f"s_cselect_b32 s{sRslot}, {W_LDS}, s{sRslot}"]
        out = []
        for kk in range(2):
            for mt in range(MT):
                out.append(f"ds_read_b128 {vr(XB(P, mt, kk))}, v{vXa+2*kap+kk} offset:{mt*4096}")
            for a in range(NT):
                for rho in range(2):
                    out.append(f"ds_read_b64_tr_b16 {vr(WBf(P, a, kk)+2*rho, 2)}, v{vWa+a} offset:{kk*2048+rho*512}")
        if OPT["NORD"]:
            out = []
        return pre, out, post

    def mfmas(P):
        out = []
        for kk in range(2):
            for a in range(NT):
                for mt in range(MT):
                    x, w, d = vr(XB(P, mt, kk)), vr(WBf(P, a, kk)), vr(acc(mt, a), 16)
                    if OPT["FAKE16"]:
                        for h in range(2):
                            dq = vr(acc(mt, a) + 8 * kk + 4 * h)
                            x2 = vr(XB(P, mt, h))
                            out.append(f"v_mfma_f32_16x16x32_bf16 {dq}, {w}, {x2}, {dq}")
                    elif typ == "K":
                        out.append(f"v_mfma_f32_32x32x16_bf16 {d}, {x}, {w}, {d}")
                    else:
                        out.append(f"v_mfma_f32_32x32x16_bf16 {d}, {w}, {x}, {d}")
        return out

    def cs_mfmas(P):
        return [f"v_mfma_f32_16x16x32_bf16 {vr(vCSA+4*a)}, {vr(WBf(P, a, kk))}, {vr(vSel)}, {vr(vCSA+4*a)}"
                for kk in range(2) for a in range(NT)]

    if OPT["STAMP"] == 3:
        stamp(A, 5, 0, wave=OPT["SW"])
    n = len(mfmas(0))
    f = lambda k: k / n
    nod = OPT["NODMA"]

    def loop(R):
        LL = lambda s: f"L_{typ}{R}_{s}"
        lstamp(A, 17)
        if R == "B":
            for g in dmaW():
                A(g)
        A(f"s_waitcnt vmcnt({NW_ + (4 if R == 'B' else 0)})")
        k1_stats(A, typ)
        lstamp(A, 18)
        A(f"s_waitcnt vmcnt({1 if R == 'A' else NW_ + 1})")
        lstamp(A, 19)
        A("s_barrier")
        pre, rd, post = reads(0, 0)
        for g in pre + rd + post:
            A(g)
        if R == "A":
            A("s_setprio 1")
            stamp(A, 1, 0)
            stamp(A, 14, 0, clk=True)
        else:
            for g in dmaX():
                A(g)
        A("s_waitcnt lgkmcnt(0)")
        lstamp(A, 20)
        for g in mfmas(0):
            A(g)
        if R == "A":
            A(f"s_cmp_lg_u32 s{sCSit}, 0")
            A(f"s_cbranch_scc1 {LL('pc0')}")
            for g in cs_mfmas(0):
                A(g)
            A.label(LL("pc0"))
            for g in dmaW():
                A(g)
            A(f"s_sub_u32 s{sUw}, s{sWave}, 1")
            A(f"s_cmp_gt_u32 s{sUw}, 1")
            A(f"s_cbranch_scc1 {LL('nou')}")
            A(f"s_lshl_b32 s{sU}, s{sCG}, 4")
            A(f"s_add_u32 s{sU}, s{sU}, s{sRB}")
            A(f"s_lshl_b32 s{sU}, s{sU}, 1")
            A(f"s_add_u32 s{sU}, s{sU}, s{sUw}")
            A(f"s_lshl_b32 s{sUl}, s{sUw}, 12")
            A(f"s_add_u32 s{sUl}, s{sUl}, {MISC_LDS}")
            w2_unit_dma(A, f"s{sUl}")
            A.label(LL("nou"))
        else:
            A("s_waitcnt vmcnt(5)")
        lstamp(A, 21)
        A("s_barrier")
        pre, rd, post = reads(1, 1)
        for g in pre + rd + post:
            A(g)
        if R == "B":
            for g in dmaW():
                A(g)
        A("s_waitcnt lgkmcnt(0)")
        lstamp(A, 22)
        for g in mfmas(1):
            A(g)
        if R == "A":
            for g in dmaW():
                A(g)
            A(f"s_cmp_eq_u32 s{sCSit}, 0")
            A(f"s_cbranch_scc1 {LL('cs1')}")
            A(f"s_waitcnt vmcnt({NW_})")
            A.label(LL("pc1"))
            A(f"s_cmp_gt_u32 s{sUw}, 1")
            A(f"s_cbranch_scc1 {LL('pc2')}")
            w2_unit_out(A, f"s{sUl}", (lambda t: (96, 100, 144, 148)[t]) if G else (lambda t: 232 + 4 * t) if typ == 'Q' else (lambda t: vBUF + 4 * t))
            A.label(LL("pc2"))
        else:
            A("s_waitcnt vmcnt(0)")
        lstamp(A, 23)
        A("s_barrier")
        if R == "B":
            for g in dmaX() + dmaW():
                A(g)
        for i in range(4):
            A(f"v_xor_b32 v{vXa+i}, 16384, v{vXa+i}")
        pre, rd, post = reads(0, 0)
        for g in pre + rd + post:
            A(g)
        A(f"s_mov_b32 s{sIt}, 1")
        A("s_waitcnt lgkmcnt(0)")
        lstamp(A, 0)
        A(".p2align 6")
        A.label(LL("loop"))
        pre, rd, post = reads(1, 1)
        for g in interleave(mfmas(0), (pre, 0.0, f(1)), (rd, f(1), 0.7), (post, 0.75, 0.85)):
            A(g)
        if R == "A":
            A(f"s_bitcmp1_b32 s{sSpec}, s{sIt}")
            A(f"s_cbranch_scc1 {LL('spec')}")
            A.label(LL("specr"))
            for g in dmaW():
                A(g)
            A(f"s_waitcnt vmcnt({NW_}) lgkmcnt(0)")
            A.label(LL("bar"))
        else:
            A("s_waitcnt vmcnt(0) lgkmcnt(0)")
        A("s_barrier")
        pre, rd, post = reads(0, 0)
        pre = [f"v_xor_b32 v{vXa+i}, 16384, v{vXa+i}" for i in range(2)] + pre
        post = post + [f"v_xor_b32 v{vXa+i}, 16384, v{vXa+i}" for i in range(2, 4)]
        tail = [f"s_add_u32 s{sIt}, s{sIt}, 1\ns_cmp_lt_u32 s{sIt}, 10"]
        if R == "B":
            dw = dmaW()
            nb = OPT["NBUP"]
            A(f"s_cmp_ge_u32 s{sIt}, 8")
            A(f"s_cbranch_scc1 {LL('nod')}")
            for g in dmaX() + dw[:nb]:
                A(g)
            for g in interleave(mfmas(1), (pre, 0.0, f(1)), (dw[nb:], 0.0, 0.4), (rd, f(1), 0.7), (post, 0.7, 0.8), (tail, f(n-2), f(n-1))):
                A(g)
            A.label(LL("end"))
        else:
            chk1 = tail
            for g in interleave(mfmas(1), (pre, 0.0, f(1)), (rd, f(1), 0.7), (post, 0.7, 0.8), (chk1, f(n-2), f(n-1))):
                A(g)
        if OPT["STAMP"] == 4:
            A("s_memrealtime s[96:97]")
            A(f"s_mov_b32 m0, s{sIt}")
        A("s_waitcnt lgkmcnt(0)")
        if OPT["STAMP"] == 4:
            A("v_writelane_b32 v28, s96, m0")
        A(f"s_cbranch_scc1 {LL('loop')}")
        A(f"s_branch {L('epi')}")

        if R == "B":
            A.label(LL("nod"))
            if typ not in OPT_WOEPI:
                A(f"s_cmp_eq_u32 s{sIt}, 9")
                A(f"s_cbranch_scc1 {LL('nod9')}")
                wo_early(A, 24, 7)
                A(f"s_branch {LL('nod2')}")
                A.label(LL("nod9"))
                wo_early(A, 72, 7)
                A.label(LL("nod2"))
            for g in interleave(mfmas(1), (pre, 0.0, f(1)), (rd, f(1), 0.7), (post, 0.7, 0.8), (tail, f(n-2), f(n-1))):
                A(g)
            A(f"s_branch {LL('end')}")
            return
        A.label(LL("cs1"))
        for g in cs_mfmas(1):
            A(g)
        A(f"v_and_b32 v{vT0}, 15, v{vLane}")
        A(f"v_lshrrev_b32 v{vT1}, 4, v{vLane}")
        A(f"v_lshlrev_b32 v{vT1}, 4, v{vT1}")
        A(f"v_lshl_add_u32 v{vT1}, v{vT0}, 6, v{vT1}")
        A(f"v_cmp_gt_u32 vcc, 2, v{vT0}")
        A(f"v_mov_b32 v{vT2}, {OOB}")
        A(f"v_cndmask_b32 v{vT1}, v{vT2}, v{vT1}, vcc")
        A(f"s_mul_i32 s{sTmp}, s{sCG}, 10")
        A(f"s_add_u32 s{sTmp}, s{sTmp}, s{sC0}")
        A(f"s_mul_i32 s{sTmp}, s{sTmp}, 1536")
        A(f"s_mul_i32 s{sTmp2}, s{sNW}, {NT*128}")
        A(f"s_add_u32 s{sTmp}, s{sTmp}, s{sTmp2}")
        A(f"s_add_u32 s{sTmp}, s{sTmp}, {WS_CS}")
        for a in range(NT):
            A(f"buffer_store_dwordx4 {vr(vCSA+4*a)}, v{vT1}, {srd(S_WS)}, s{sTmp} offen offset:{a*128} sc1")
        A(f"s_waitcnt vmcnt({NW_+NT})")
        A(f"s_branch {LL('pc1')}")

        def with_dma(nops, body):
            for g in dmaW():
                A(g)
            body()
            A(f"s_waitcnt vmcnt({NW_+nops}) lgkmcnt(0)")
            A(f"s_branch {LL('bar')}")
        A.label(LL("spec"))
        A(f"s_cmp_eq_u32 s{sIt}, 9")
        A(f"s_cbranch_scc1 {LL('sum')}")
        A(f"s_cmp_eq_u32 s{sIt}, 8")
        A(f"s_cbranch_scc1 {LL('go')}")
        A(f"s_cmp_eq_u32 s{sIt}, 7")
        A(f"s_cbranch_scc1 {LL('chk')}")
        A(f"s_cmp_eq_u32 s{sIt}, 6")
        A(f"s_cbranch_scc1 {LL('poll0')}")
        A.label(LL("pub"))

        A(f"s_cmp_lg_u32 s{sIt}, 2")
        A(f"s_cbranch_scc1 {LL('pub1')}")
        wait_zeroed(A, LL("wz"), True)
        A.label(LL("pub1"))

        def pub():
            A(f"s_cmp_eq_u32 s{sIt}, 3")
            A(f"s_cbranch_scc1 {LL('pub3')}")
            A(f"s_cmp_eq_u32 s{sIt}, 2")
            A(f"s_cbranch_scc1 {LL('pub2')}")
            A(f"buffer_load_dword v{vPoll}, off, {srd(S_DBG)}, 0 sc1")
            A(f"s_branch {LL('pub3')}")
            A.label(LL("pub2"))
            k1_publish(A)
            A.label(LL("pub3"))
        with_dma(1, pub)
        A.label(LL("poll0"))
        with_dma(1, lambda: A(f"buffer_load_dword v{vPoll}, v{vPa}, {srd(S_WS)}, 0 offen sc1"))
        A.label(LL("poll"))
        A("s_sleep 8")
        A(f"buffer_load_dword v{vPoll}, v{vPa}, {srd(S_WS)}, 0 offen sc1")
        A.label(LL("chk"))
        A("s_waitcnt vmcnt(0)")
        poll_cmp(A)
        A(f"s_add_u32 s{sSpin}, s{sSpin}, 1")
        A(f"s_cmp_gt_u32 s{sSpin}, {SPIN_MAX}")
        A(f"s_cbranch_scc1 {LL('specr')}")
        A(f"s_cmp_lg_u64 vcc, 0")
        A(f"s_cbranch_scc1 {LL('poll')}")
        A(f"s_branch {LL('specr')}")
        A.label(LL("go"))

        def go():
            A(f"v_lshlrev_b32 v{vT0}, 3, v0")
            A(f"v_cmp_gt_u32 vcc, {NT*(4 if G else 2)*16}, v0")
            A(f"v_mov_b32 v{vT2}, {OOB}")
            A(f"v_cndmask_b32 v{vT0}, v{vT2}, v{vT0}, vcc")
            A(f"s_mul_i32 s{sTmp}, s{sCG}, 15360")
            A(f"s_add_u32 s{sTmp}, s{sTmp}, {WS_CS}")
            for ch in range(10):
                if ch % 2 == 0 and ch:
                    A(f"s_add_u32 s{sTmp}, s{sTmp}, 3072")
                A(f"buffer_load_dwordx2 {vr(vCSP+2*ch, 2)}, v{vT0}, {srd(S_WS)}, s{sTmp} offen offset:{(ch%2)*1536} sc1")
            A(f"s_lshl_b32 s{sTmp}, s{sRB}, 10")
            A(f"s_add_u32 s{sTmp}, s{sTmp}, {WS_ST}")
            A(f"v_lshlrev_b32 v{vT1}, 2, v0")
            A(f"buffer_load_dword v{vSt}, v{vT1}, {srd(S_WS)}, s{sTmp} offen sc1")
        go()
        if typ not in OPT_WOEPI:
            wo_early(A, 0, 6)
        A(f"s_waitcnt vmcnt({11 if typ in OPT_WOEPI else 17}) lgkmcnt(0)")
        A(f"s_branch {LL('bar')}")
        A.label(LL("sum"))
        A(f"s_waitcnt vmcnt({0 if typ in OPT_WOEPI else 6})")
        for ch in range(1, 10):
            A(f"v_add_f32 v{vCSP}, v{vCSP}, v{vCSP+2*ch}")
            A(f"v_add_f32 v{vCSP+1}, v{vCSP+1}, v{vCSP+2*ch+1}")
        A(f"v_lshlrev_b32 v{vT0}, 3, v0")
        A(f"v_add_u32 v{vT0}, {MISC_LDS}, v{vT0}")
        A(f"ds_write_b64 v{vT0}, {vr(vCSP, 2)}")
        A(f"v_lshlrev_b32 v{vT1}, 2, v0")
        A(f"v_add_u32 v{vT1}, {MISC_LDS+2048}, v{vT1}")
        A(f"ds_write_b32 v{vT1}, v{vSt}")
        if typ not in OPT_WOEPI:
            wo_early(A, 52, 5)
        A("s_waitcnt lgkmcnt(0)")
        A(f"s_branch {LL('bar')}")

    A(f"s_cmp_ge_u32 s{sWave}, 4")
    A(f"s_cbranch_scc1 {L('roleB')}")
    loop("A")
    A.label(L("roleB"))
    loop("B")

    A.label(L("epi"))
    A("s_setprio 0")
    stamp(A, 2, 0)
    stamp(A, 4, 0, wave=4, vt=50)
    stamp(A, 7, 0, wave=4, vt=50, clk=True)
    stamp(A, 15, 0, clk=True)
    if OPT["STAMP"] == 4:
        A(f"v_lshlrev_b32 v29, 2, v0")
        A(f"s_lshl_b32 s98, s2, 11")
        A(f"s_add_u32 s98, s98, {WS_STAMP + 0x10000}")
        A(f"buffer_store_dword v28, v29, {srd(S_WS)}, s98 offen")
    p2_ids(A)
    A.fence()
    if True:
        epi = {"G": k1_epi_g, "Q": k1_epi_q, "K": k1_epi_kv}[typ]
        ffn_setup(A)
        A(f"s_cmp_lt_u32 s{sWave}, 4")
        A(f"s_cselect_b32 s{sWo}, {OOB}, s{sWo}")
        E = Asm()
        epi(E, acc)
        body = [t for _, t in E.lines]
        npre = min(OPT["NPRE"], {"G": 6, "Q": 4, "K": 2}[typ])
        early = [g for j in range(min(4, npre)) for g in ldW_groups(j)]
        late = [g for j in range(4, npre) for g in ldW_groups(j)]
        wod = []
        if typ in OPT_WOEPI:
            A(f"s_mul_i32 s12, s{sWave}, 13")
            A("s_min_u32 s12, s12, 87")
            A("s_lshl_b32 s12, s12, 10")
            A(f"s_mul_i32 s13, s{sC}, {74*5120}")
            A("s_add_u32 s13, s13, s12")
            A(f"s_add_u32 s13, s13, {WS_W2 + 54*5120}")
            A(f"s_add_u32 s12, s12, {WO_LDS}")
            wod = [f"s_add_u32 m0, s12, {i*1024}\ns_add_u32 s14, s13, {i*1024}\n"
                   f"buffer_load_dwordx4 v{vL16}, {srd(S_WS)}, s14 offen sc1 lds" for i in range(13)]
        for g in interleave(body, (wod, 0.02, 0.6), (early, 0.02, 0.5 if npre > 4 else 0.7), (late, 0.5, 0.8)):
            A(g)
        A(f"s_mov_b32 s{sWoDone}, {npre + 1}")
    stamp(A, 3, 0)
    stamp(A, 5, 0, wave=4, vt=50)
    stamp(A, 8, 0, wave=4, vt=50, clk=True)
    A(f"v_mov_b32 v{vSigA}, {OOB}")
    if typ == "K":
        A(f"s_sub_u32 s{sTmp}, s{sCG}, 9")
        A(f"s_lshl_b32 s{sTmp}, s{sTmp}, 11")
        A(f"s_add_u32 s{sTmp}, s{sTmp}, {WS_FL + FL_KV}")
        A(f"v_lshl_add_u32 v{vT0}, v{vLane}, 8, s{sTmp}")
        A(f"v_cmp_gt_u32 vcc, 8, v{vLane}")
        A(f"v_cndmask_b32 v{vSigA}, v{vSigA}, v{vT0}, vcc")
        A(f"v_mov_b32 v{vSigV}, 1")
    else:
        A(f"s_lshl_b32 s{sTmp}, s{sRB}, 8")
        A(f"s_add_u32 s{sTmp}, s{sTmp}, {WS_FL + FL_HC}")
        A(f"v_writelane_b32 v{vSigA}, s{sTmp}, 0")
        A(f"s_lshl_b32 s{sTmp}, 1, s{sCG}")
        A(f"v_mov_b32 v{vSigV}, s{sTmp}")
    A("s_branch L_p2")


def k1_stats_issue(A):
    b = vBUF
    A(f"s_lshl_b32 s{sRow}, s{sRB}, 7")
    A(f"s_lshl_b32 s{sTmp2}, s{sCG}, 3")
    A(f"s_add_u32 s{sRow}, s{sRow}, s{sTmp2}")
    A(f"s_add_u32 s{sRow}, s{sRow}, s{sWave}")
    A(f"s_mul_i32 s{sTmp2}, s{sRow}, 1280")
    A(f"v_lshlrev_b32 v{vT0}, 3, v{vLane}")
    A(f"v_lshlrev_b32 v{vT1}, 2, v{vLane}")
    A(f"buffer_load_dwordx2 {vr(b, 2)}, v{vT0}, {srd(S_X)}, s{sTmp2} offen")
    A(f"buffer_load_dwordx2 {vr(b+2, 2)}, v{vT0}, {srd(S_X)}, s{sTmp2} offen offset:512")
    A(f"buffer_load_dword v{b+4}, v{vT1}, {srd(S_X)}, s{sTmp2} offen offset:1024")


def k1_stats(A, typ):
    b = vBUF
    if typ == "A":
        A("s_waitcnt vmcnt(0)")
    for i in range(5):
        A(f"v_lshlrev_b32 v{b+8+2*i}, 16, v{b+i}")
        A(f"v_and_b32 v{b+9+2*i}, 0xffff0000, v{b+i}")
    s = b + 20
    A(f"v_add_f32 v{s}, v{b+8}, v{b+9}")
    for i in range(2, 10):
        A(f"v_add_f32 v{s}, v{s}, v{b+8+i}")
    wave_allreduce_add(A, s, s + 1, 4)
    A(f"v_mul_f32 v{s}, {f32(1.0/640)}, v{s}")
    for i in range(10):
        A(f"v_sub_f32 v{b+8+i}, v{b+8+i}, v{s}")
    A(f"v_mul_f32 v{s+1}, v{b+8}, v{b+8}")
    for i in range(1, 10):
        A(f"v_fmac_f32 v{s+1}, v{b+8+i}, v{b+8+i}")
    wave_allreduce_add(A, s + 1, s + 2, 4)
    A(f"v_mov_b32 v{s+2}, {f32(1e-5)}")
    A(f"v_fmac_f32 v{s+2}, {f32(1.0/640)}, v{s+1}")
    A(f"v_mov_b32 v{s+1}, v{s+2}")
    A(f"v_cmp_eq_u32 vcc, 0, v{vLane}")
    A(f"v_mov_b32 v{vT2}, {OOB}")
    A(f"v_cndmask_b32 v{vT0}, v{vT2}, v{vLane}, vcc")
    A(f"s_lshl_b32 s{sTmp}, s{sRow}, 3")
    A(f"s_add_u32 s{sTmp}, s{sTmp}, {WS_ST}")
    A(f"buffer_store_dwordx2 {vr(s, 2)}, v{vT0}, {srd(S_WS)}, s{sTmp} offen sc1")


def k1_publish(A):
    A(f"s_lshl_b32 s{sTmp}, s{sRB}, 8")
    A(f"s_add_u32 s{sTmp}, s{sTmp}, {WS_FL + FL_ROW}")
    A(f"v_mov_b32 v{vT0}, {OOB}")
    A(f"v_writelane_b32 v{vT0}, s{sTmp}, 0")
    A(f"v_mov_b32 v{vT1}, 1")
    A(f"buffer_atomic_add v{vT1}, v{vT0}, {srd(S_WS)}, 0 offen sc1")


def poll_addr(A):
    A(f"v_and_b32 v{vPa}, 15, v{vLane}")
    A(f"v_lshlrev_b32 v{vPa}, 8, v{vPa}")
    A(f"v_add_u32 v{vPa}, {WS_FL + FL_ROW}, v{vPa}")


def poll_cmp(A):
    A(f"v_cmp_gt_u32 vcc, 16, v{vPoll}")


def wait_zeroed(A, lab, first_issued):
    if first_issued:
        A(f"s_branch {lab}_c")
    A.label(lab)
    A("s_sleep 4")
    A(f"buffer_load_dword v{vPoll}, off, {srd(S_DBG)}, 0 sc1")
    A.label(lab + "_c")
    A("s_waitcnt vmcnt(0)")
    A(f"v_readfirstlane_b32 s{sTmp}, v{vPoll}")
    A(f"s_add_u32 s{sSpin}, s{sSpin}, 1")
    A(f"s_cmp_gt_u32 s{sSpin}, {SPIN_MAX}")
    A(f"s_cbranch_scc1 {lab}_ok")
    A(f"s_cmp_lt_u32 s{sTmp}, 16")
    A(f"s_cbranch_scc1 {lab}")
    A.label(lab + "_ok")


S_R = 88
sU, sUks, sUL = 92, 93, 94


def w2_unit_decode(A):
    A(f"s_mul_i32 s{sUks}, s{sU}, 205")
    A(f"s_lshr_b32 s{sUks}, s{sUks}, 11")
    A(f"s_mul_i32 s{sUL}, s{sUks}, 10")
    A(f"s_sub_u32 s{sUL}, s{sU}, s{sUL}")


def w2_unit_dma(A, lds):
    w2_unit_decode(A)
    A(f"s_cmp_lt_u32 s{sUks}, 54")
    A(f"s_cselect_b32 s{S_R}, s{P_D}, s{P_WO}")
    A(f"s_cselect_b32 s{S_R+1}, s{P_D+1}, s{P_WO+1}")
    A(f"s_mov_b32 s{S_R+2}, {640*1280}")
    A(f"s_cselect_b32 s{S_R+2}, {1728*1280}, s{S_R+2}")
    A(f"s_cselect_b32 s{sTmp}, 0, 54")
    A(f"s_and_b32 s{S_R+1}, s{S_R+1}, 0xffff")
    A(f"s_mov_b32 s{S_R+3}, 0x20000")
    A(f"s_sub_u32 s{sTmp}, s{sUks}, s{sTmp}")
    A(f"s_mul_i32 s{sTmp}, s{sTmp}, {32*1280}")
    A(f"s_lshl_b32 s{sTmp2}, s{sUL}, 7")
    A(f"s_add_u32 s{sTmp}, s{sTmp}, s{sTmp2}")
    A(f"v_lshrrev_b32 v{vT0}, 3, v{vLane}")
    A(f"v_mul_u32_u24 v{vT0}, 1280, v{vT0}")
    A(f"v_and_b32 v{vT1}, 7, v{vLane}")
    A(f"v_lshl_add_u32 v{vT0}, v{vT1}, 4, v{vT0}")
    for i in range(4):
        A(f"s_add_u32 m0, {lds}, {i*1024}")
        A("s_nop 0")
        A(f"buffer_load_dwordx4 v{vT0}, {srd(S_R)}, s{sTmp} offen lds")
        A(f"s_add_u32 s{sTmp}, s{sTmp}, {8*1280}")


def w2_unit_out(A, lds, F):
    w2_unit_decode(A)
    A(f"v_bfe_u32 v{vT0}, v{vLane}, 2, 2")
    A(f"v_lshlrev_b32 v{vT0}, 7, v{vT0}")
    A(f"v_and_b32 v{vT1}, 3, v{vLane}")
    A(f"v_lshl_add_u32 v{vT0}, v{vT1}, 3, v{vT0}")
    A(f"v_lshrrev_b32 v{vT1}, 4, v{vLane}")
    A(f"s_cmp_lt_u32 s{sUks}, 54")
    A(f"s_cselect_b32 s{sTmp}, 10, 9")
    A(f"s_movk_i32 s{sTmp2}, 512")
    A(f"s_cselect_b32 s{sTmp2}, s{sTmp2}, 2048")
    A(f"v_lshlrev_b32 v{vT1}, s{sTmp}, v{vT1}")
    A(f"v_add3_u32 v{vT0}, v{vT0}, v{vT1}, {lds}")
    A(f"v_add_u32 v{vT1}, s{sTmp2}, v{vT0}")
    for tau in range(4):
        A(f"ds_read_b64_tr_b16 {vr(F(tau), 2)}, v{vT0} offset:{tau*32}")
        A(f"ds_read_b64_tr_b16 {vr(F(tau)+2, 2)}, v{vT1} offset:{tau*32}")
    A(f"v_lshlrev_b32 v{vT2}, 4, v{vLane}")
    A("s_waitcnt lgkmcnt(0)")
    for tau in range(4):
        A(f"s_lshl_b32 s{sTmp}, s{sUL}, 2")
        A(f"s_add_u32 s{sTmp}, s{sTmp}, {tau}")
        A(f"s_mul_i32 s{sTmp2}, s{sTmp}, 205")
        A(f"s_lshr_b32 s{sTmp2}, s{sTmp2}, 10")
        A(f"s_mul_i32 s{sTmp3}, s{sTmp2}, {74*5-5}")
        A(f"s_add_u32 s{sTmp}, s{sTmp}, s{sTmp3}")
        A(f"s_mul_i32 s{sTmp3}, s{sUks}, 5")
        A(f"s_add_u32 s{sTmp}, s{sTmp}, s{sTmp3}")
        A(f"s_lshl_b32 s{sTmp}, s{sTmp}, 10")
        A(f"s_add_u32 s{sTmp}, s{sTmp}, {WS_W2}")
        A(f"s_cmp_lt_u32 s{sU}, 740")
        A(f"s_cselect_b32 s{sTmp}, s{sTmp}, {OOB}")
        A(f"buffer_store_dwordx4 {vr(F(tau))}, v{vT2}, {srd(S_WS)}, s{sTmp} offen sc1")


def k1_epi_g(A, acc):
    c = vBUF
    cs = vBUF + 8
    t = vBUF + 40
    o = vBUF + 48
    A(f"v_lshrrev_b32 v{vT0}, 5, v{vLane}")
    A(f"v_lshlrev_b32 v{vT0}, 4, v{vT0}")
    A(f"s_mul_i32 s{sTmp}, s{sNW}, 384")
    A(f"s_add_u32 s{sTmp}, s{sTmp}, {MISC_LDS}")
    A(f"v_add_u32 v{vT0}, s{sTmp}, v{vT0}")
    A(f"v_and_b32 v{vT1}, 31, v{vLane}")
    A(f"s_lshl_b32 s{sTmp}, s{sMW}, 9")
    A(f"s_add_u32 s{sTmp}, s{sTmp}, {MISC_LDS+2048}")
    A(f"v_lshl_add_u32 v{vT1}, v{vT1}, 3, s{sTmp}")
    for mt in range(2):
        A(f"ds_read_b64 {vr(c+4*mt, 2)}, v{vT1} offset:{mt*256}")
    for q in range(4):
        A(f"ds_read_b128 {vr(cs+4*q)}, v{vT0} offset:{q*32}")
    A("s_waitcnt lgkmcnt(4)")
    for mt in range(2):
        mu, v, k1, k3 = c + 4 * mt, c + 4 * mt + 1, c + 4 * mt + 2, c + 4 * mt + 3
        A(f"v_rsq_f32 v{t}, v{v}")
        A(f"v_mul_f32 v{k1}, {f32(GC1)}, v{t}")
        A(f"v_mul_f32 v{t+1}, v{t}, v{t}")
        A(f"v_mul_f32 v{t+1}, v{t+1}, v{t}")
        A(f"v_mul_f32 v{k3}, {f32(GC2)}, v{t+1}")
    A(f"v_bfe_u32 v{vT1}, v{vLane}, 4, 1")
    A(f"v_lshlrev_b32 v{vT1}, 10, v{vT1}")
    A(f"v_lshrrev_b32 v{vT2}, 5, v{vLane}")
    A(f"v_lshl_add_u32 v{vT1}, v{vT2}, 8, v{vT1}")
    A(f"v_and_b32 v{vT2}, 15, v{vLane}")
    A(f"v_lshl_add_u32 v{vT1}, v{vT2}, 4, v{vT1}")
    n = 0
    for a in range(3):
        csa = cs + 16 * (a % 2)
        if a < 2:
            for q in range(4):
                A(f"ds_read_b128 {vr(cs+16*((a+1)%2)+4*q)}, v{vT0} offset:{(a+1)*128+q*32}")
            A("s_waitcnt lgkmcnt(4)")
        else:
            A("s_waitcnt lgkmcnt(0)")
        A(f"s_mul_i32 s{sTmp}, s{sCG}, 12")
        A(f"s_mul_i32 s{sTmp2}, s{sNW}, 3")
        A(f"s_add_u32 s{sTmp}, s{sTmp}, s{sTmp2}")
        A(f"s_add_u32 s{sTmp}, s{sTmp}, {a}")
        A(f"s_lshl_b32 s{sTmp2}, s{sRB}, 1")
        A(f"s_add_u32 s{sTmp2}, s{sTmp2}, s{sMW}")
        A(f"s_mul_i32 s{sTmp2}, s{sTmp2}, 54")
        A(f"s_lshr_b32 s{sTmp3}, s{sTmp}, 1")
        A(f"s_add_u32 s{sTmp2}, s{sTmp2}, s{sTmp3}")
        A(f"s_lshl_b32 s{sTmp2}, s{sTmp2}, 12")
        A(f"s_and_b32 s{sTmp}, s{sTmp}, 1")
        A(f"s_lshl_b32 s{sTmp}, s{sTmp}, 9")
        A(f"s_add_u32 s{sTmp}, s{sTmp}, s{sTmp2}")
        C = lambda mt, k: c + 4 * mt + k
        MP = [(mt, i) for mt in range(2) for i in range(0, 8, 2)]
        D = lambda mt: acc(mt, a)
        Tm = lambda mt: t + 8 * mt
        for mt, i in MP:
            pk_fma(A, D(mt) + i, ("b", C(mt, 0)), ("p", csa + i), ("p", D(mt) + i), neg_a=True)
        for mt, i in MP:
            pk_mul(A, Tm(mt) + i, ("p", D(mt) + i), ("p", D(mt) + i))
        for mt, i in MP:
            pk_fma(A, Tm(mt) + i, ("p", Tm(mt) + i), ("b", C(mt, 3)), ("b", C(mt, 2)))
        for mt, i in MP:
            pk_mul(A, Tm(mt) + i, ("p", Tm(mt) + i), ("p", D(mt) + i))
        for mt, i in MP:
            A(f"v_exp_f32 v{Tm(mt)+i}, v{Tm(mt)+i}")
            A(f"v_exp_f32 v{Tm(mt)+i+1}, v{Tm(mt)+i+1}")
            pk_fma(A, D(mt) + 8 + i, ("b", C(mt, 0)), ("p", csa + 8 + i), ("p", D(mt) + 8 + i), neg_a=True)
        for mt, i in MP:
            pk_fma(A, Tm(mt) + i, ("p", Tm(mt) + i), ("b", C(mt, 1)), ("b", C(mt, 1)))
        for mt, i in MP:
            A(f"v_rcp_f32 v{Tm(mt)+i}, v{Tm(mt)+i}")
            A(f"v_rcp_f32 v{Tm(mt)+i+1}, v{Tm(mt)+i+1}")
            pk_mul(A, D(mt) + i, ("p", D(mt) + i), ("p", D(mt) + 8 + i))
        for mt, i in MP:
            pk_mul(A, D(mt) + i, ("p", D(mt) + i), ("p", Tm(mt) + i))
        for mt in range(2):
            ob = D(mt) + 8
            for i in range(4):
                A(f"v_cvt_pk_bf16_f32 v{ob+i}, v{D(mt)+2*i}, v{D(mt)+2*i+1}")
            A(f"buffer_store_dwordx4 {vr(ob)}, v{vT1}, {srd(S_WS)}, s{sTmp} offen offset:{mt*2048} sc1")


def pk(r, bc=False):
    return f"v[{r}:{r+1}]"


def pko(*bc):
    lo = ",".join("1" if b == 1 else "0" for b in bc)
    hi = ",".join("0" if b == 0 else "1" for b in bc)
    return f"op_sel:[{lo}] op_sel_hi:[{hi}]"


def opnd(x):
    k, r = x
    if k == "p":
        return pk(r), None
    return pk(r & ~1), r & 1


def pk_fma(A, d, a, b, c, neg_a=False):
    (ta, fa), (tb_, fb), (tc, fc) = opnd(a), opnd(b), opnd(c)
    n = " neg_lo:[1,0,0] neg_hi:[1,0,0]" if neg_a else ""
    A(f"v_pk_fma_f32 {pk(d)}, {ta}, {tb_}, {tc} {pko(fa, fb, fc)}{n}")


def pk_mul(A, d, a, b, op="mul"):
    (ta, fa), (tb_, fb) = opnd(a), opnd(b)
    A(f"v_pk_{op}_f32 {pk(d)}, {ta}, {tb_} {pko(fa, fb)}")


def phi_block(A, d, n, t, mu, cs, r, rl, eps):
    P = range(0, n, 2)
    for i in P:
        pk_fma(A, d + i, mu(i), cs(i), ("p", d + i), neg_a=True)
    for i in P:
        pk_mul(A, t + i, ("p", d + i), rl(i))
    for i in P:
        A(f"v_exp_f32 v{t+i}, v{t+i} clamp")
        A(f"v_exp_f32 v{t+i+1}, v{t+i+1} clamp")
        pk_fma(A, d + i, ("p", d + i), r(i), ("b", eps))
    for i in range(n):
        A(f"v_max_f32 v{d+i}, v{d+i}, v{eps}")
    for i in P:
        pk_mul(A, d + i, ("p", d + i), ("p", t + i), op="add")


def k1_epi_q(A, acc):
    c = vBUF
    cs = vBUF + 8
    t = vBUF + 40
    o = vBUF + 56
    mu, r, rl, eps = c, c + 1, c + 2, c + 3
    A(f"v_lshrrev_b32 v{vT0}, 5, v{vLane}")
    A(f"v_lshlrev_b32 v{vT0}, 4, v{vT0}")
    A(f"s_mul_i32 s{sTmp}, s{sNW}, 640")
    A(f"s_add_u32 s{sTmp}, s{sTmp}, {MISC_LDS}")
    A(f"v_add_u32 v{vT0}, s{sTmp}, v{vT0}")
    A(f"v_and_b32 v{vT1}, 31, v{vLane}")
    A(f"s_lshl_b32 s{sTmp}, s{sMW}, 8")
    A(f"s_add_u32 s{sTmp}, s{sTmp}, {MISC_LDS+2048}")
    A(f"v_lshl_add_u32 v{vT1}, v{vT1}, 3, s{sTmp}")
    A(f"ds_read_b64 {vr(mu, 2)}, v{vT1}")
    for q in range(4):
        A(f"ds_read_b128 {vr(cs+4*q)}, v{vT0} offset:{q*32}")
    A("s_waitcnt lgkmcnt(4)")
    A(f"v_rsq_f32 v{r}, v{r}")
    A(f"v_mov_b32 v{eps}, {f32(1e-6)}")
    A(f"v_mul_f32 v{rl}, {f32(LOG2E)}, v{r}")
    A(f"v_bfe_u32 v{vT1}, v{vLane}, 4, 1")
    A(f"v_lshlrev_b32 v{vT1}, 10, v{vT1}")
    A(f"v_lshrrev_b32 v{vT2}, 5, v{vLane}")
    A(f"v_lshl_add_u32 v{vT1}, v{vT2}, 8, v{vT1}")
    A(f"v_and_b32 v{vT2}, 15, v{vLane}")
    A(f"v_lshl_add_u32 v{vT1}, v{vT2}, 4, v{vT1}")
    A(f"s_lshl_b32 s{sTmp}, s{sRB}, 1")
    A(f"s_lshr_b32 s{sTmp2}, s{sMW}, 1")
    A(f"s_add_u32 s{sTmp}, s{sTmp}, s{sTmp2}")
    A(f"s_mul_i32 s{sTmp}, s{sTmp}, 20")
    A(f"s_sub_u32 s{sTmp2}, s{sCG}, 13")
    A(f"s_mul_i32 s{sTmp2}, s{sTmp2}, 10")
    A(f"s_add_u32 s{sTmp}, s{sTmp}, s{sTmp2}")
    A(f"s_mul_i32 s{sTmp2}, s{sNW}, 5")
    A(f"s_add_u32 s{sTmp}, s{sTmp}, s{sTmp2}")
    A(f"s_lshl_b32 s{sTmp}, s{sTmp}, 12")
    A(f"s_and_b32 s{sTmp2}, s{sMW}, 1")
    A(f"s_lshl_b32 s{sTmp2}, s{sTmp2}, 11")
    A(f"s_add_u32 s{sTmp}, s{sTmp}, s{sTmp2}")
    A(f"s_add_u32 s{sTmp}, s{sTmp}, {WS_PQ}")
    for a in range(5):
        csa = cs + 16 * (a % 2)
        if a < 4:
            for q in range(4):
                A(f"ds_read_b128 {vr(cs+16*((a+1)%2)+4*q)}, v{vT0} offset:{(a+1)*128+q*32}")
            A("s_waitcnt lgkmcnt(4)")
        else:
            A("s_waitcnt lgkmcnt(0)")
        d = acc(0, a)
        phi_block(A, d, 16, t, lambda i: ("b", mu), lambda i: ("p", csa + i), lambda i: ("b", r), lambda i: ("b", rl), eps)
        ob = o + 8 * (a % 2)
        for i in range(8):
            A(f"v_cvt_pk_bf16_f32 v{ob+i}, v{d+2*i}, v{d+2*i+1}")
        A(f"buffer_store_dwordx4 {vr(ob)}, v{vT1}, {srd(S_WS)}, s{sTmp} offen sc1")
        A(f"buffer_store_dwordx4 {vr(ob+4)}, v{vT1}, {srd(S_WS)}, s{sTmp} offen offset:512 sc1")
        A(f"s_add_u32 s{sTmp}, s{sTmp}, 4096")


KV_PAIRS = [(0, 2), (0, 3), (1, 3), (1, 4), (2, 4)]
KV_Q = [[0, 1, 2], [0, 1, 2, 3], [0, 1, 2, 3], [1, 2, 3], [0, 1]]
KV_AD = 232
KV_SLAB = [0, 14336, 135168, 149504]
KV_DUMMY = 28688


def kv_addr_setup(A):
    e, he, d0, dm = vT0, vT1, vT2, vT3
    t = vBUF + 24
    A(f"s_mul_i32 s{sTmp3}, s{sMW}, 14336")
    A(f"s_cmp_ge_u32 s{sMW}, 2")
    A(f"s_cselect_b32 s{sTmp}, {135168 - 2*14336}, 0")
    A(f"s_add_u32 s{sTmp3}, s{sTmp3}, s{sTmp}")
    A(f"s_mul_i32 s{sTmp}, s{sNW}, 6720")
    A(f"s_add_u32 s{sTmp3}, s{sTmp3}, s{sTmp}")
    A(f"v_lshlrev_b32 v{dm}, 4, v{vLane}")
    A(f"v_add_u32 v{dm}, {KV_DUMMY}, v{dm}")
    A(f"v_lshrrev_b32 v{d0}, 5, v{vLane}")
    A(f"v_lshlrev_b32 v{d0}, 2, v{d0}")
    for n, (a, b) in enumerate(KV_PAIRS):
        A(f"v_and_b32 v{e}, 31, v{vLane}")
        A(f"v_add_u32 v{e}, {32*b - 80 + 100}, v{e}")
        A(f"v_mul_u32_u24 v{he}, 205, v{e}")
        A(f"v_lshrrev_b32 v{he}, 12, v{he}")
        A(f"v_mul_u32_u24 v{e}, 80, v{e}")
        A(f"v_add_u32 v{e}, s{sTmp3}, v{e}")
        for q in KV_Q[n]:
            a0 = KV_AD + 4 * n + q
            A(f"v_add_u32 v{a0}, {32*a + 8*q + 100}, v{d0}")
            A(f"v_mul_u32_u24 v{t}, 205, v{a0}")
            A(f"v_lshrrev_b32 v{t}, 12, v{t}")
            A(f"v_cmp_eq_u32 vcc, v{t}, v{he}")
            A(f"v_lshl_add_u32 v{a0}, v{a0}, 2, v{e}")
            A(f"v_subrev_u32 v{a0}, {80*100 + 4*100}, v{a0}")
            A(f"v_cndmask_b32 v{a0}, v{dm}, v{a0}, vcc")
    A(f"v_and_b32 v{e}, 15, v{vLane}")
    A(f"v_lshrrev_b32 v{d0}, 4, v{vLane}")
    A(f"v_lshlrev_b32 v{d0}, 2, v{d0}")
    A(f"v_lshl_add_u32 v{d0}, v{e}, 4, v{d0}")
    for a in range(3):
        az = KV_AD + 20 + a
        A(f"v_add_u32 v{az}, {32*a}, v{d0}")
        A(f"v_mul_u32_u24 v{t}, 205, v{az}")
        A(f"v_lshrrev_b32 v{t}, 12, v{t}")
        A(f"v_mul_u32_u24 v{t}, 1600, v{t}")
        A(f"v_lshl_add_u32 v{az}, v{az}, 2, v{t}")
        A(f"v_add_u32 v{az}, s{sTmp3}, v{az}")
        A(f"v_add_u32 v{az}, 1600, v{az}")
        A(f"v_cmp_gt_u32 vcc, {2 if a < 2 else 1}, v{e}")
        A(f"v_cndmask_b32 v{az}, v{dm}, v{az}, vcc")


def k1_epi_kv(A, acc):
    mu = vBUF
    rr = vBUF + 16
    rl = vBUF + 32
    t = vBUF + 48
    raw = vBUF + 48
    cs = vBUF + 80
    eps = vBUF + 86
    sv = vBUF + 64
    A(f"v_and_b32 v{vT0}, 31, v{vLane}")
    A(f"v_cmp_gt_u32 vcc, 16, v{vT0}")
    A(f"v_lshlrev_b32 v{vT0}, 2, v{vT0}")
    A(f"s_mul_i32 s{sTmp}, s{sNW}, 640")
    A(f"s_add_u32 s{sTmp}, s{sTmp}, {MISC_LDS}")
    A(f"v_add_u32 v{vT1}, s{sTmp}, v{vT0}")
    A(f"v_lshrrev_b32 v{vT2}, 5, v{vLane}")
    A(f"s_lshl_b32 s{sTmp}, s{sMW}, 8")
    A(f"s_add_u32 s{sTmp}, s{sTmp}, {MISC_LDS+2048}")
    A(f"v_lshl_add_u32 v{vT2}, v{vT2}, 5, s{sTmp}")
    for q in range(4):
        for h in range(2):
            A(f"ds_read_b128 {vr(raw+8*q+4*h)}, v{vT2} offset:{q*64+h*16}")
    for a in range(5):
        A(f"ds_read_b32 v{cs+a}, v{vT1} offset:{a*128}")
    A("s_waitcnt lgkmcnt(5)")
    for i in range(16):
        A(f"v_rsq_f32 v{rr+i}, v{raw+2*i+1}")
        A(f"v_mov_b32 v{mu+i}, v{raw+2*i}")
    for i in range(16):
        A(f"v_mul_f32 v{rl+i}, {f32(LOG2E)}, v{rr+i}")
    A(f"v_mov_b32 v{eps}, {f32(1e-6)}")
    A("s_waitcnt lgkmcnt(0)")
    op = lambda a, h: acc(0, a) + 4 * h

    def pack(a):
        d = acc(0, a)
        for i in range(8):
            A(f"v_cvt_pk_bf16_f32 v{d+i}, v{d+2*i}, v{d+2*i+1}")

    def plain(a, dst):
        d = acc(0, a)
        for i in range(0, 16, 2):
            pk_fma(A, dst + i, ("p", mu + i), ("b", cs + a), ("p", d + i), neg_a=True)
        for i in range(0, 16, 2):
            pk_mul(A, dst + i, ("p", dst + i), ("p", rr + i))

    def phi(a):
        phi_block(A, acc(0, a), 16, t, lambda i: ("p", mu + i), lambda i: ("b", cs + a), lambda i: ("p", rr + i), lambda i: ("p", rl + i), eps)
    for a in (3, 4):
        plain(a, acc(0, a))
        pack(a)
    plain(2, sv)
    phi(2)
    for i in range(16):
        A(f"v_cndmask_b32 v{acc(0,2)+i}, v{sv+i}, v{acc(0,2)+i}, vcc")
    pack(2)
    for a in (0, 1):
        phi(a)
        pack(a)
    D = lambda n: vBUF + 16 * n
    Z = lambda a: vBUF + 80 + 4 * a
    for h in range(2):
        for n, (a, b) in enumerate(KV_PAIRS):
            A(f"v_mfma_f32_32x32x16_bf16 {vr(D(n),16)}, {vr(op(a,h))}, {vr(op(b,h))}, {vr(D(n),16) if h else 0}")
        for a in range(3):
            A(f"v_mfma_f32_16x16x32_bf16 {vr(Z(a))}, {vr(op(a,h))}, {vr(vSel)}, {vr(Z(a)) if h else 0}")
    A("s_barrier")
    for n in range(5):
        for q in KV_Q[n]:
            A(f"ds_write_b128 v{KV_AD+4*n+q}, {vr(D(n)+4*q)}")
    for a in range(3):
        A(f"ds_write_b128 v{KV_AD+20+a}, {vr(Z(a))}")
    sSlab = 4
    A(f"s_sub_u32 s{sSlab}, s{sCG}, 9")
    A(f"s_mul_i32 s{sSlab}, s{sSlab}, 13440")
    A(f"s_add_u32 s{sSlab}, s{sSlab}, {WS_KVA}")
    A(f"v_lshlrev_b32 v{vT0}, 2, v0")
    A(f"v_add_u32 v{vT1}, {KV_SLAB[2]}, v{vT0}")
    A(f"v_cmp_gt_u32 vcc, {3360-6*512}, v0")
    A(f"v_mov_b32 v{vT2}, {OOB}")
    A(f"v_cndmask_b32 v{vT2}, v{vT2}, v{vT0}, vcc")
    A("s_waitcnt lgkmcnt(0)")
    A("s_barrier")
    R = vACC
    for j in range(7):
        for m in range(4):
            A(f"ds_read_b32 v{R+4*j+m}, v{vT0 if m < 2 else vT1} offset:{j*2048 + (m%2)*14336}")
        if j >= 2:
            k = j - 2
            A("s_waitcnt lgkmcnt(8)")
            kv_atomic(A, R, k, sSlab)
    for k in (5, 6):
        A(f"s_waitcnt lgkmcnt({4*(6-k)})")
        kv_atomic(A, R, k, sSlab)


def kv_atomic(A, R, k, sSlab):
    A(f"v_add_f32 v{R+4*k}, v{R+4*k}, v{R+4*k+1}")
    A(f"v_add_f32 v{R+4*k+2}, v{R+4*k+2}, v{R+4*k+3}")
    A(f"v_add_f32 v{R+4*k}, v{R+4*k}, v{R+4*k+2}")
    A(f"buffer_atomic_add_f32 v{R+4*k}, v{vT0 if k < 6 else vT2}, {srd(S_WS)}, s{sSlab} offen offset:{(k%2)*2048}")
    if k % 2 == 1:
        A(f"s_add_u32 s{sSlab}, s{sSlab}, 4096")


def k1_aux(A):
    if OPT["CODEWARM"] == 1:
        A("s_getpc_b64 s[10:11]")
        A.label("L_pc")
        A(f"s_sub_u32 s10, s10, L_pc-{NAME}_kernel")
        A("s_subb_u32 s11, s11, 0")
        A(f"v_lshlrev_b32 v{vT0}, 7, v0")
        A(f"v_min_u32 v{vT0}, L_code_end-{NAME}_kernel-4, v{vT0}")
        A(f"global_load_dword v{vACC+8}, v{vT0}, s[10:11]")
    if OPT["TLBWARM"]:
        g = OPT["TLBWARM"]
        mk_srd(A, S_T, P_OUT, 2048 * 1280)
        A(f"v_lshlrev_b32 v{vT0}, {g}, v0")
        A(f"buffer_load_dword v{vACC+9}, v{vT0}, {srd(S_WS)}, 0 offen sc1")
        A(f"buffer_load_dword v{vACC+10}, v{vT0}, {srd(S_T)}, 0 offen sc1")
    for i in range(4):
        A(f"v_mov_b32 v{vACC+i}, 0")
    A(f"v_lshlrev_b32 v{vT0}, 4, v0")
    A(f"s_mul_i32 s{sTmp}, s{sRB}, 3360")
    A(f"s_add_u32 s{sTmp}, s{sTmp}, {WS_KVA}")
    A(f"v_add_u32 v{vT0}, s{sTmp}, v{vT0}")
    A(f"v_mov_b32 v{vT2}, {OOB}")
    A(f"v_cmp_gt_u32 vcc, 210, v0")
    A(f"v_cndmask_b32 v{vT0}, v{vT2}, v{vT0}, vcc")
    A(f"s_cmp_lg_u32 s{sWave}, 7")
    A("s_cbranch_scc1 L_A_z")
    A(f"s_lshl_b32 s{sTmp}, s{sRB}, 8")
    A(f"s_add_u32 s{sTmp}, s{sTmp}, {WS_FL}")
    A(f"v_writelane_b32 v{vT0}, s{sTmp}, 0")
    A(f"s_add_u32 s{sTmp}, s{sTmp}, {FL_ROW}")
    A(f"v_writelane_b32 v{vT0}, s{sTmp}, 3")
    A(f"s_lshl_b32 s{sTmp}, s{sRB}, 9")
    A(f"s_add_u32 s{sTmp}, s{sTmp}, {WS_FL + FL_KV}")
    A(f"v_writelane_b32 v{vT0}, s{sTmp}, 1")
    A(f"s_add_u32 s{sTmp}, s{sTmp}, 256")
    A(f"v_writelane_b32 v{vT0}, s{sTmp}, 2")
    A.label("L_A_z")
    A(f"buffer_store_dwordx4 {vr(vACC)}, v{vT0}, {srd(S_WS)}, 0 offen sc1")
    A(f"s_cmp_lg_u32 s{sWave}, 7")
    A("s_cbranch_scc1 L_A_z2")
    A("s_waitcnt vmcnt(0)")
    A(f"v_mov_b32 v{vT0}, {OOB}")
    A(f"v_writelane_b32 v{vT0}, 0, 0")
    A(f"v_mov_b32 v{vT1}, 1")
    A(f"buffer_atomic_add v{vT1}, v{vT0}, {srd(S_DBG)}, 0 offen sc1")
    A.label("L_A_z2")
    A(f"s_lshl_b32 s{sUw}, s{sRB}, 3")
    A(f"s_add_u32 s{sUw}, s{sUw}, s{sWave}")
    A(f"s_add_u32 s{sUw}, s{sUw}, 480")
    A(f"s_mul_i32 s{sUl}, s{sWave}, 12288")
    for i in range(3):
        A(f"s_add_u32 s{sU}, s{sUw}, {128*i}")
        A(f"s_add_u32 s9, s{sUl}, {4096*i}")
        w2_unit_dma(A, "s9")
    A("s_waitcnt vmcnt(12)")
    k1_stats(A, "X")
    for i in range(3):
        A("s_waitcnt vmcnt(9)")
        A(f"s_add_u32 s{sU}, s{sUw}, {128*i}")
        A(f"s_add_u32 s9, s{sUl}, {4096*i}")
        w2_unit_out(A, "s9", lambda t: vACC + 16 + 16 * i + 4 * t)
    A("s_waitcnt vmcnt(0)")
    A("s_barrier")
    stamp(A, 9, 0)
    A(f"s_cmp_lg_u32 s{sWave}, 0")
    A("s_cbranch_scc1 L_A_w")
    k1_publish(A)
    A(f"s_mov_b32 s{sSpin}, 0")
    wait_zeroed(A, "L_A_wz", False)
    poll_addr(A)
    A.label("L_A_poll")
    A("s_sleep 32")
    A(f"buffer_load_dword v{vPoll}, v{vPa}, {srd(S_WS)}, 0 offen sc1")
    A("s_waitcnt vmcnt(0)")
    poll_cmp(A)
    A(f"s_add_u32 s{sSpin}, s{sSpin}, 1")
    A(f"s_cmp_gt_u32 s{sSpin}, {SPIN_MAX}")
    A("s_cbranch_scc1 L_A_w")
    A(f"s_cmp_lg_u64 vcc, 0")
    A("s_cbranch_scc1 L_A_poll")
    A.label("L_A_w")
    A("s_barrier")
    stamp(A, 3, 0)
    p2_ids(A)
    A(f"s_mov_b32 s{sWoDone}, 0")
    A(f"v_mov_b32 v{vSigA}, {OOB}")
    A(f"v_mov_b32 v{vSigV}, 0")
    A("s_branch L_p2")


def kernel1(A):
    A(".p2align 8")
    A.label(NAME + "_kernel")
    A("s_cmp_ge_u32 s2, 256")
    A("s_cbranch_scc1 L_k1_exit")
    if OPT["XMAP"]:
        A("s_lshr_b32 s3, s2, 5")
        A("s_and_b32 s2, s2, 31")
        A("s_lshl_b32 s2, s2, 3")
        A("s_or_b32 s2, s2, s3")
    load_ptrs(A)
    if OPT["CODEWARM"] == 2:
        A("s_getpc_b64 s[10:11]")
        A.label("L_pc")
        A(f"s_sub_u32 s10, s10, L_pc-{NAME}_kernel")
        A("s_subb_u32 s11, s11, 0")
        A("s_lshr_b32 s4, s2, 3")
        A("s_lshl_b32 s4, s4, 7")
        A(f"v_lshl_add_u32 v{vT0}, v0, 12, s4")
        A(f"v_min_u32 v{vT0}, L_code_end-{NAME}_kernel-4, v{vT0}")
        A("v_cmp_gt_u32 vcc, 16, v0")
        A("s_and_saveexec_b64 s[12:13], vcc")
        A("s_cbranch_execz L_nocw")
        A(f"global_load_dword v251, v{vT0}, s[10:11]")
        A.label("L_nocw")
        A("s_mov_b64 exec, s[12:13]")
    A(f"v_and_b32 v{vLane}, 63, v0")
    A(f"v_lshrrev_b32 v{vT0}, 6, v0")
    A(f"v_readfirstlane_b32 s{sWave}, v{vT0}")
    A("s_and_b32 s3, s2, 7")
    A("s_lshr_b32 s4, s2, 3")
    A("s_lshr_b32 s5, s3, 2")
    A("s_and_b32 s6, s3, 3")
    A("s_mul_i32 s7, s6, 30")
    A("s_add_u32 s7, s7, s4")
    A(f"s_lshr_b32 s{sCG}, s7, 3")
    if OPT["CGPERM"]:
        perm = [0, 9, 1, 13, 2, 10, 3, 4, 5, 11, 6, 14, 7, 12, 8, 15]
        tab = sum(p << (4 * i) for i, p in enumerate(perm))
        A(f"s_mov_b32 s10, {tab & 0xffffffff}")
        A(f"s_mov_b32 s11, {tab >> 32}")
        A(f"s_lshl_b32 s{sCG}, s{sCG}, 2")
        A(f"s_lshr_b64 s[10:11], s[10:11], s{sCG}")
        A(f"s_and_b32 s{sCG}, s10, 15")
    A(f"s_and_b32 s{sRB}, s7, 7")
    A("s_lshl_b32 s8, s6, 1")
    A("s_add_u32 s8, s8, s4")
    A("s_sub_u32 s8, s8, 30")
    A("s_cmp_lt_u32 s4, 30")
    A(f"s_cselect_b32 s{sCG}, s{sCG}, 15")
    A(f"s_cselect_b32 s{sRB}, s{sRB}, s8")
    A("s_lshl_b32 s5, s5, 3")
    A(f"s_add_u32 s{sRB}, s{sRB}, s5")
    A(f"s_and_b32 s3, s{sRB}, 7")
    A("s_lshr_b32 s4, s3, 2")
    A(f"s_add_u32 s{sC0}, s3, s4")
    A(f"s_lshr_b32 s4, s{sRB}, 3")
    A(f"s_add_u32 s{sC0}, s{sC0}, s4")
    A("s_waitcnt lgkmcnt(0)")
    mk_srd(A, S_X, P_X, 2048 * 1280)
    mk_srd(A, S_WS, P_WS, WS_SIZE)
    mk_srd(A, S_DBG, P_DBG, 256)
    stamp(A, 0, 0)
    if OPT["P2ONLY"]:
        p2_ids(A)
        A(f"s_mov_b32 s{sWoDone}, 0")
        A(f"v_mov_b32 v{vSigA}, {OOB}")
        A(f"v_mov_b32 v{vSigV}, 0")
        A("s_branch L_p2")
    k1_stats_issue(A)
    A(f"s_cmp_eq_u32 s{sCG}, 15")
    A("s_cbranch_scc1 L_aux")
    A(f"v_lshrrev_b32 v{vT0}, 3, v{vLane}")
    A(f"v_lshrrev_b32 v{vT1}, 4, v{vLane}")
    A(f"v_and_b32 v{vT2}, 7, v{vLane}")
    A(f"v_xor_b32 v{vT1}, v{vT1}, v{vT2}")
    if OPT["NOSWZ"]: A(f"v_and_b32 v{vT1}, 7, v{vLane}")
    A(f"s_lshl_b32 s3, s{sRB}, 7")
    if OPT["SAME"]: A("s_mov_b32 s3, 0")
    A(f"s_and_b32 s4, s{sWave}, 3")
    A(f"s_lshl_b32 s{sXslot}, s4, 12")
    A(f"s_lshl_b32 s4, s4, 5")
    A("s_add_u32 s3, s3, s4")
    A(f"v_add_u32 v{vT0}, s3, v{vT0}")
    A(f"v_mul_u32_u24 v{vT0}, 1280, v{vT0}")
    A(f"v_lshl_add_u32 v{vXo}, v{vT1}, 4, v{vT0}")
    A(f"v_xor_b32 v{vT1}, 4, v{vT1}")
    A(f"v_lshl_add_u32 v{vXo+1}, v{vT1}, 4, v{vT0}")
    A(f"v_add_u32 v{vXo+1}, {8*1280}, v{vXo+1}")
    A(f"s_lshl_b32 s{sKX}, s{sC0}, 7")
    A(f"s_mov_b32 s{sKXn}, 0")
    A(f"s_cmp_ge_u32 s{sCG}, 13")
    A("s_cbranch_scc1 L_typeQ")
    A(f"s_cmp_ge_u32 s{sCG}, 9")
    A("s_cbranch_scc1 L_typeK")
    k1_gemm(A, "G")
    A.label("L_typeQ")
    k1_gemm(A, "Q")
    A.label("L_typeK")
    k1_gemm(A, "K")
    A.label("L_aux")
    k1_aux(A)
    phase2(A)
    A.label("L_k1_exit")
    A("s_endpgm")
    A.label("L_code_end")


sRB64, sC, sHo, sWo, sFl, sWoDone, sWoL, sWoG, sWoI, sHb, sHe, sWb, sWe = sKW, sKWn, sKX, sKXn, sWslot, sRslot, sXslot, sStepW, sCSit, sSpec, sWrapW, sC0, sRow
vL16 = 5


def p2_ids(A):
    A("s_and_b32 s3, s2, 7")
    A("s_lshr_b32 s4, s2, 3")
    A(f"s_and_b32 s{sC}, s4, 7")
    A("s_lshr_b32 s4, s4, 3")
    A("s_lshl_b32 s3, s3, 2")
    A(f"s_add_u32 s{sRB64}, s3, s4")
    if OPT["P2SAME"] == 1:
        A(f"s_and_b32 s{sRB64}, s{sRB64}, 1")
        A(f"s_and_b32 s{sC}, s{sC}, 1")
    if OPT["P2SAME"] == 2:
        A(f"s_and_b32 s{sC}, s{sC}, 3")
    A(f"v_lshlrev_b32 v{vL16}, 4, v{vLane}")


WO_LDS = 32768


def wo_early(A, first, per_wave):
    A("s_lshr_b32 s4, s2, 3")
    A("s_and_b32 s4, s4, 7")
    A(f"s_mul_i32 s4, s4, {74*5120}")
    A(f"s_and_b32 s5, s{sWave}, 3")
    A(f"s_mul_i32 s5, s5, {per_wave*1024}")
    A("s_add_u32 s4, s4, s5")
    A(f"s_add_u32 s4, s4, {WS_W2 + 54*5120 + first*1024}")
    A(f"s_add_u32 s5, s5, {WO_LDS + first*1024}")
    A(f"v_lshlrev_b32 v{vT0}, 4, v{vLane}")
    for i in range(per_wave):
        if i % 4 == 0:
            A(f"s_add_u32 m0, s5, {i*1024}")
            A(f"s_add_u32 s6, s4, {i*1024}")
        A(f"buffer_load_dwordx4 v{vT0}, {srd(S_WS)}, s6 offen offset:{(i%4)*1024} sc1 lds")


def wo_setup(A):
    A(f"s_mul_i32 s{sWoL}, s{sWave}, 25600")
    A(f"s_add_u32 s{sWoL}, s{sWoL}, {WO_LDS}")
    A(f"s_mul_i32 s6, s{sC}, 74")
    A(f"s_mul_i32 s7, s{sWave}, 5")
    A("s_add_u32 s6, s6, s7")
    A("s_add_u32 s6, s6, 54")
    A("s_mul_i32 s6, s6, 5120")
    A(f"s_add_u32 s{sWoG}, s6, {WS_W2}")
    A(f"s_and_b32 s{sWoI}, s{sRB64}, 3")
    A(f"s_mul_i32 s{sWoI}, s{sWoI}, {6*1024}")


def wo_dmas():
    return [f"s_add_u32 m0, s{sWoL}, s{sWoI}\n"
            f"s_add_u32 s9, s{sWoG}, s{sWoI}\n"
            f"buffer_load_dwordx4 v{vL16}, {srd(S_WS)}, s9 offen sc1 lds\n"
            f"s_add_u32 s{sWoI}, s{sWoI}, 1024\n"
            f"s_cmp_eq_u32 s{sWoI}, {25*1024}\n"
            f"s_cselect_b32 s{sWoI}, 0, s{sWoI}" for _ in range(25)]


NK, WD, HD = 14, 6, 3
q4 = lambda a, b: list(range(a, b, 4))
WQ = q4(8, 56) + q4(128, 152) + q4(248, 256) + q4(112, 128) + q4(152, 168) + q4(200, 208)
AQ = q4(88, 112) + q4(168, 192) + q4(56, 88)
HQ = q4(192, 200) + q4(208, 248)
assert len(WQ) == 30 and len(AQ) == 20 and len(HQ) == 12 and len(set(WQ + AQ + HQ)) == 62
sLast = sOdd


def ffn_setup(A):
    A(f"s_sub_u32 s3, s{sWave}, 4")
    A("s_mul_i32 s4, s3, 14")
    A("s_cmp_eq_u32 s3, 3")
    A("s_cselect_b32 s5, 1, 0")
    A("s_sub_u32 s4, s4, s5")
    A("s_cmp_ge_u32 s3, 2")
    A("s_cselect_b32 s5, 13, 14")
    A(f"s_cselect_b32 s{sLast}, {OOB}, 0")
    A(f"s_and_b32 s6, s{sRB64}, 3")
    A("s_lshl_b32 s6, s6, 1")
    A(f"s_add_u32 s6, s6, s{sC}")
    A("s_mul_i32 s6, s6, 7")
    A("s_lshr_b32 s6, s6, 2")
    A("s_sub_u32 s7, s6, s5")
    A("s_cmp_ge_u32 s6, s5")
    A("s_cselect_b32 s6, s7, s6")
    if not OPT["P2ROT"]:
        A("s_mov_b32 s6, 0")
    A(f"s_mul_i32 s{sHb}, s{sRB64}, 54")
    A(f"s_add_u32 s{sHb}, s{sHb}, s4")
    A(f"s_lshl_b32 s{sHb}, s{sHb}, 12")
    A("s_lshl_b32 s7, s5, 12")
    A(f"s_add_u32 s{sHe}, s{sHb}, s7")
    A("s_lshl_b32 s7, s6, 12")
    A(f"s_add_u32 s{sHo}, s{sHb}, s7")
    A(f"s_mul_i32 s{sWb}, s{sC}, 74")
    A(f"s_add_u32 s{sWb}, s{sWb}, s4")
    A(f"s_mul_i32 s{sWb}, s{sWb}, 5120")
    A(f"s_add_u32 s{sWb}, s{sWb}, {WS_W2}")
    A("s_mul_i32 s7, s5, 5120")
    A(f"s_add_u32 s{sWe}, s{sWb}, s7")
    A("s_mul_i32 s7, s6, 5120")
    A(f"s_add_u32 s{sWo}, s{sWb}, s7")


def ldW_groups(j):
    out = []
    pre = f"s_add_u32 s{sWo}, s{sWo}, s{sLast}\n" if j == NK - 1 else ""
    for nt in range(4):
        out.append((pre if nt == 0 else "") +
                   f"buffer_load_dwordx4 {vr(WQ[5*(j%WD)+nt])}, v{vL16}, {srd(S_WS)}, s{sWo} offen offset:{nt*1024}{HSC}")
    out.append(f"s_add_u32 s3, s{sWo}, 4096\n"
               f"buffer_load_dwordx4 {vr(WQ[5*(j%WD)+4])}, v{vL16}, {srd(S_WS)}, s3 offen{HSC}\n"
               f"s_add_u32 s{sWo}, s{sWo}, 5120\n"
               f"s_cmp_eq_u32 s{sWo}, s{sWe}\n"
               f"s_cselect_b32 s{sWo}, s{sWb}, s{sWo}")
    return out


def poll_flag(A, lab, addr_s, mask, target, vtmp):
    A(f"s_mov_b32 s{sSpin}, 0")
    A(f"v_mov_b32 v{vtmp+1}, 0")
    A.label(lab)
    A(f"buffer_load_dword v{vtmp}, v{vtmp+1}, {srd(S_WS)}, s{addr_s} offen sc1")
    A("s_waitcnt vmcnt(0)")
    A(f"v_readfirstlane_b32 s{sTmp3}, v{vtmp}")
    A(f"s_add_u32 s{sSpin}, s{sSpin}, 1")
    A(f"s_and_b32 s{sTmp3}, s{sTmp3}, {mask}")
    A(f"s_cmp_ge_u32 s{sTmp3}, {0 if OPT['P2ONLY'] else target}")
    A(f"s_cbranch_scc1 {lab}_ok")
    A(f"s_cmp_gt_u32 s{sSpin}, {SPIN_MAX}")
    A(f"s_cbranch_scc1 {lab}_ok")
    A(f"s_sleep {OPT['PSLEEP']}")
    A(f"s_branch {lab}")
    A.label(lab + "_ok")


def phase2(A):
    S_OUT = S_T
    ACC = 8
    acc = lambda nt, mt: ACC + 4 * (nt * 4 + mt)
    A.label("L_p2")
    mk_srd(A, S_OUT, P_OUT, 2048 * 1280)
    A(f"s_lshr_b32 s{sFl}, s{sRB64}, 1")
    A(f"s_lshl_b32 s{sFl}, s{sFl}, 8")
    A(f"s_add_u32 s{sFl}, s{sFl}, {WS_FL + FL_HC}")
    A.fence()
    A(f"s_cmp_ge_u32 s{sWave}, 4")
    A("s_cbranch_scc1 L2_ffn")

    def signal(n_younger):
        A(f"s_waitcnt vmcnt({n_younger}) lgkmcnt(0)")
        A("s_barrier")

    XR, OA, RA = 232, 238, 241

    def red_setup(A, ta, tb):
        for j in range(3):
            A(f"s_add_u32 s11, s{sWave}, {8*j}")
            A(f"s_lshr_b32 s12, s11, 2")
            A(f"s_and_b32 s13, s11, 3")
            A(f"s_lshl_b32 s14, s{sRB64}, 6")
            A(f"s_lshl_b32 s13, s13, 4")
            A("s_add_u32 s14, s14, s13")
            A("s_mul_i32 s14, s14, 1280")
            A(f"s_mul_i32 s15, s{sC}, 160")
            A("s_add_u32 s14, s14, s15")
            A("s_lshl_b32 s12, s12, 5")
            A("s_add_u32 s14, s14, s12")
            A("s_cmp_lt_u32 s11, 20")
            A(f"s_cselect_b32 s14, s14, {OOB}")
            A(f"v_and_b32 v{ta}, 15, v{vLane}")
            A(f"v_mul_u32_u24 v{ta}, 1280, v{ta}")
            A(f"v_lshrrev_b32 v{tb}, 4, v{vLane}")
            A(f"v_lshl_add_u32 v{ta}, v{tb}, 3, v{ta}")
            A(f"v_add_u32 v{OA+j}, s14, v{ta}")
            A(f"buffer_load_dwordx2 {vr(XR+2*j, 2)}, v{OA+j}, {srd(S_X)}, 0 offen")
            A("s_lshl_b32 s12, s11, 10")
            A(f"s_add_u32 s13, s12, {WO_LDS+5120}")
            A(f"v_add_u32 v{RA+5*j}, s13, v{vL16}")
            for f in range(4):
                A(f"s_add_u32 s13, s12, {KV_SLAB[f]}")
                A(f"s_add_u32 s14, s12, {WO_LDS + f*25600 - 14*1024}")
                A("s_cmp_lt_u32 s11, 14")
                A("s_cselect_b32 s13, s13, s14")
                A("s_cmp_lt_u32 s11, 19")
                A(f"s_cselect_b32 s13, s13, {28672 + f*1024}")
                A(f"v_add_u32 v{RA+5*j+1+f}, s13, v{vL16}")

    AD = 8
    RAW, NRAW = 56, 6
    FR = 80
    OSP = 96
    PQ = lambda mt, blk: 112 + 16 * blk + 4 * mt
    O = lambda u, mt: (OSP + 4 * mt) if u == 0 else PQ(mt, u - 1)
    DEN = 192
    NM = 224
    T = 192
    A(f"s_mul_i32 s8, s{sWave}, 14336")
    A(f"s_cmp_ge_u32 s{sWave}, 2")
    A(f"s_cselect_b32 s9, {135168 - 2*14336}, 0")
    A("s_add_u32 s8, s8, s9")
    for i in range(4):
        A(f"v_mov_b32 v{T+i}, 0")
    A(f"s_add_u32 s9, s8, 13440")
    A(f"v_mov_b32 v{vT2}, s9")
    A(f"ds_write_b128 v{vT2}, {vr(T)}")
    A(f"ds_write_b32 v{vT2}, v{T} offset:16")
    signal(0)
    A(f"s_cmp_lg_u32 s{sWave}, 0")
    A("s_cbranch_scc1 L2_nosig")
    A(f"buffer_atomic_add v{vSigV}, v{vSigA}, {srd(S_WS)}, 0 offen sc1")
    A.label("L2_nosig")
    stamp(A, 0, 1)
    if OPT["NOATT"]:
        A("s_branch L2_reduce")
    A(f"s_cmp_lg_u32 s{sWoDone}, 0")
    A("s_cbranch_scc1 L2_wodone")
    wo_setup(A)
    for g in wo_dmas():
        A(g)
    A.label("L2_wodone")
    A(f"s_mul_i32 s4, s{sWave}, 25600")
    A(f"s_add_u32 s4, s4, {WO_LDS}")
    iL, gL = T + 4, T + 5
    he = T + 12
    hd = T + 22
    ab, zb, hz = T + 6, T + 7, T + 8
    A(f"v_and_b32 v{iL}, 15, v{vLane}")
    A(f"v_lshrrev_b32 v{gL}, 4, v{vLane}")
    for Tt in range(10):
        A(f"v_add_u32 v{he+Tt}, {16*Tt}, v{iL}")
        A(f"v_mul_u32_u24 v{he+Tt}, 205, v{he+Tt}")
        A(f"v_lshrrev_b32 v{he+Tt}, 12, v{he+Tt}")
    for blk in range(5):
        for h in range(2):
            r = hd + 2 * blk + h
            A(f"v_lshlrev_b32 v{r}, 3, v{gL}")
            A(f"v_add_u32 v{r}, {32*blk+4*h}, v{r}")
            A(f"v_mul_u32_u24 v{r}, 205, v{r}")
            A(f"v_lshrrev_b32 v{r}, 12, v{r}")
    A(f"v_mul_u32_u24 v{ab}, 80, v{iL}")
    A(f"v_lshl_add_u32 v{ab}, v{gL}, 5, v{ab}")
    A(f"v_add_u32 v{ab}, s8, v{ab}")
    A(f"v_and_b32 v{hz}, 3, v{iL}")
    A(f"v_mul_u32_u24 v{zb}, 1600, v{hz}")
    A(f"v_lshl_add_u32 v{zb}, v{gL}, 5, v{zb}")
    A(f"v_add_u32 v{zb}, s8, v{zb}")
    NUM = {0: [0], 1: [0, 1], 2: [0, 1], 3: [1, 2], 4: [1, 2], 5: [2, 3], 6: [2, 3], 7: [3, 4], 8: [3, 4], 9: [4]}
    frs = []
    for ch in range(2):
        A(f"v_add_u32 v{T+9}, {4*ch}, v{hz}")
        bl = [0, 1, 2] if ch == 0 else [2, 3, 4]
        for blk in bl:
            n = len(frs)
            frs.append(("z", ch, blk, blk == bl[0], blk == bl[-1]))
            for h in range(2):
                a = AD + 2 * n + h
                A(f"v_cmp_eq_u32 vcc, v{T+9}, v{hd+2*blk+h}")
                A(f"v_add_u32 v{a}, {6400*ch+1600+128*blk+16*h}, v{zb}")
                A(f"v_cndmask_b32 v{a}, v{vT2}, v{a}, vcc")
        for Tt in range(5 * ch, 5 * ch + 5):
            for blk in NUM[Tt]:
                n = len(frs)
                frs.append(("n", Tt, blk, blk == NUM[Tt][0], blk == NUM[Tt][-1]))
                for h in range(2):
                    a = AD + 2 * n + h
                    A(f"v_cmp_eq_u32 vcc, v{he+Tt}, v{hd+2*blk+h}")
                    A(f"v_add_u32 v{a}, {1280*Tt+128*blk+16*h}, v{ab}")
                    A(f"v_cndmask_b32 v{a}, v{vT2}, v{a}, vcc")
    assert len(frs) == 24
    sM = 84
    for k in range(3):
        A(f"v_cmp_lt_u32 s[{sM+2*k}:{sM+2*k+1}], {k}, v{gL}")
    stamp(A, 7, 1, vt=vT0)
    A("s_setprio 3")
    A(f"s_lshr_b32 s10, s{sWave}, 1")
    A("s_lshl_b32 s10, 0x2000, s10")
    poll_flag(A, "L2_pq", sFl, "s10", "s10", vT0)
    stamp(A, 8, 1, vt=vT0)
    A(f"s_mul_i32 s6, s{sRB64}, 20")
    A(f"s_mul_i32 s7, s{sWave}, 5")
    A("s_add_u32 s6, s6, s7")
    A("s_lshl_b32 s6, s6, 12")
    A(f"s_add_u32 s6, s6, {WS_PQ}")
    for blk in range(5):
        for mt in range(4):
            A(f"buffer_load_dwordx4 {vr(PQ(mt, blk))}, v{vL16}, {srd(S_WS)}, s6 offen offset:{mt*1024} sc1")
        A(f"s_add_u32 s6, s6, 4096")
    A(f"s_lshl_b32 s6, s{sWave}, 3")
    A("s_and_b32 s7, s2, 7")
    A("s_add_u32 s6, s6, s7")
    A("s_lshl_b32 s6, s6, 8")
    A(f"s_add_u32 s6, s6, {WS_FL + FL_KV}")
    poll_flag(A, "L2_kv", 6, 0xff, 16, vT0)
    stamp(A, 3, 1, vt=vT0)
    A(f"s_mul_i32 s3, s{sWave}, 13440")
    A(f"s_add_u32 s3, s3, {WS_KVA}")
    for i in range(14):
        if i % 4 == 0:
            A(f"s_add_u32 m0, s8, {i*1024}")
            A(f"s_add_u32 s5, s3, {i*1024}")
        if i == 13:
            A("s_mov_b64 exec, 0xff")
        A(f"buffer_load_dwordx4 v{vL16}, {srd(S_WS)}, s5 offen offset:{(i%4)*1024} sc1 lds")
    A("s_mov_b64 exec, -1")
    A(f"s_setprio {OPT['APRIO']}")
    A("s_waitcnt vmcnt(7) lgkmcnt(0)")
    stamp(A, 9, 1, vt=vT0)
    raw = lambda k: RAW + 4 * (k % NRAW)
    fr = lambda n: FR + 4 * (n % 4)
    dst = lambda f, mt: (DEN + 8 * mt + 4 * f[1]) if f[0] == "z" else (NM + 16 * (f[1] % 2) + 4 * mt)

    def rd(n):
        if n == 12:
            A("s_waitcnt vmcnt(0)")
        for h in range(2):
            A(f"ds_read_b128 {vr(raw(2*n+h))}, v{AD+2*n+h}")

    def post(f):
        out = []
        if f[0] == "z":
            for mt in range(4):
                for i in range(4):
                    r = DEN + 8 * mt + 4 * f[1] + i
                    out.append(f"v_add_f32 v{r}, {f32(1e-6)}, v{r}")
            for mt in range(4):
                for i in range(4):
                    r = DEN + 8 * mt + 4 * f[1] + i
                    out.append(f"v_rcp_f32 v{r}, v{r}")
            return out
        Tt = f[1]
        lo, hi = (4 * Tt) // 5, (4 * Tt + 3) // 5
        sl = {}
        for mt in range(4):
            if lo == hi:
                sl[mt] = DEN + 8 * mt + lo
            else:
                thr = 5 * hi - 4 * Tt
                sl[mt] = AD + mt
                out.append(f"v_cndmask_b32 v{sl[mt]}, v{DEN+8*mt+lo}, v{DEN+8*mt+hi}, s[{sM+2*(thr-1)}:{sM+2*(thr-1)+1}]")
        for mt in range(4):
            d = dst(f, mt)
            for i in range(4):
                out.append(f"v_mul_f32 v{d+i}, v{d+i}, v{sl[mt]}")
        for mt in range(4):
            d = dst(f, mt)
            ob = O(Tt // 2, mt) + 2 * (Tt % 2)
            out.append(f"v_cvt_pk_bf16_f32 v{ob}, v{d}, v{d+1}")
            out.append(f"v_cvt_pk_bf16_f32 v{ob+1}, v{d+2}, v{d+3}")
        return out
    rd(0)
    rd(1)
    pend = []
    nxt = []
    for n in range(26):
        if n + 2 < 24:
            rd(n + 2)
        cv = []
        if n < 24:
            A(f"s_waitcnt lgkmcnt({2*min(2, 23-n)})")
            for h in range(2):
                cv.append(f"v_cvt_pk_bf16_f32 v{fr(n)+2*h}, v{raw(2*n+h)}, v{raw(2*n+h)+1}")
                cv.append(f"v_cvt_pk_bf16_f32 v{fr(n)+2*h+1}, v{raw(2*n+h)+2}, v{raw(2*n+h)+3}")
        mf = []
        if 1 <= n <= 24:
            f = frs[n - 1]
            if f[3] and f[0] == "n":
                need = [x for x in pend if x[0] <= f[1] - 2]
                for x in need:
                    A(x[1])
                pend = [x for x in pend if x[0] > f[1] - 2]
            for mt in range(4):
                d = vr(dst(f, mt))
                mf.append(f"v_mfma_f32_16x16x32_bf16 {d}, {vr(fr(n-1))}, {vr(PQ(mt, f[2]))}, {0 if f[3] else d}")
        take = pend[:14]
        pend = pend[14:]
        work = cv + [x[1] for x in take]
        for g in (interleave(mf, work) if mf else work):
            A(g)
        pend += nxt
        nxt = []
        if 1 <= n <= 24 and frs[n - 1][4]:
            f = frs[n - 1]
            nxt = [((f[1] if f[0] == "n" else 5 * f[1] - 0.5), x) for x in post(f)]
    for x in pend + nxt:
        A(x[1])
    stamp(A, 11, 1, vt=vT0)
    A(f"s_setprio {OPT['APRIO2']}")
    WF = 192
    A(f"v_add_u32 v{vT0}, s4, v{vL16}")
    A.fence()

    def rd_wo(u):
        for nt in range(5):
            A(f"ds_read_b128 {vr(WF+20*(u%2)+4*nt)}, v{vT0} offset:{(u*5+nt)*1024}")
    E = Asm()
    red_setup(E, vSigA, vSigV)
    rs = [t for _, t in E.lines]
    rd_wo(0)
    for u in range(5):
        if u + 1 < 5:
            rd_wo(u + 1)
        A(f"s_waitcnt lgkmcnt({5 if u < 4 else 0})")
        if u == 0:
            A(f"v_mov_b32 v{vT1}, 1")
            A(f"ds_write_b32 v{vT2}, v{vT1} offset:16")
        mf = []
        for nt in range(5):
            for mt in range(4):
                d = vr(acc(nt, mt))
                mf.append(f"v_mfma_f32_16x16x32_bf16 {d}, {vr(WF+20*(u%2)+4*nt)}, {vr(O(u, mt))}, {d if u else 0}")
        k = (len(rs) + 3) // 4
        for g in interleave(mf, rs[u*k:(u+1)*k]):
            A(g)
    stamp(A, 1, 1, vt=vSigA)
    A.fence()
    for t in range(20):
        A(f"ds_write_b128 v{vT0}, {vr(ACC+4*t)} offset:{5120+t*1024}")
    A("s_branch L2_reduce")

    A.label("L2_ffn")
    q = []

    def ldW(j):
        for g in ldW_groups(j):
            A(g)
        q.extend([("W", j)] * 5)

    def ldH1(j, mt):
        if j == NK - 1 and mt == 0:
            A(f"s_add_u32 s{sHo}, s{sHo}, s{sLast}")
        A(f"buffer_load_dwordx4 {vr(HQ[4*(j%HD)+mt])}, v{vL16}, {srd(S_WS)}, s{sHo} offen offset:{mt*1024}{HSC}")
        if mt == 3:
            A(f"s_add_u32 s{sHo}, s{sHo}, 4096")
            A(f"s_cmp_eq_u32 s{sHo}, s{sHe}")
            A(f"s_cselect_b32 s{sHo}, s{sHb}, s{sHo}")
        q.append(("H", j, mt))

    def ldH(j):
        for mt in range(4):
            ldH1(j, mt)
    signal(0)
    A(f"s_cmp_lg_u32 s{sWoDone}, 0")
    A("s_cbranch_scc1 L2_ws")
    ffn_setup(A)
    A.label("L2_ws")
    A(f"s_sub_u32 s10, s{sWave}, 4")
    A("s_lshl_b32 s10, s10, 1")
    A("s_lshl_b32 s10, 7, s10")
    A(f"v_mov_b32 v{vT1}, 0")
    A(f"s_cmp_gt_u32 s{sWoDone}, 1")
    A("s_cbranch_scc1 L2_w0")
    ldW(0)
    ldW(1)
    A.label("L2_w0")
    assert OPT["NPRE"] == 2
    for j in range(2, WD):
        if j == OPT["EPOLL"]:
            A(f"buffer_load_dword v{vT2}, v{vT1}, {srd(S_WS)}, s{sFl} offen sc1")
        ldW(j)
    if OPT["EPOLL"]:
        A(f"s_waitcnt vmcnt({5*(WD-OPT['EPOLL'])})")
        A(f"v_readfirstlane_b32 s{sTmp3}, v{vT2}")
        A(f"s_and_b32 s{sTmp3}, s{sTmp3}, s10")
        A(f"s_cmp_eq_u32 s{sTmp3}, s10")
        A(f"s_cbranch_scc1 L2_h_ok")
    stamp(A, 4, 1, wave=4, vt=vT0)
    poll_flag(A, "L2_h", sFl, "s10", "s10", vT0)
    stamp(A, 5, 1, wave=4, vt=vT0)
    stamp(A, 14, 1, wave=4, vt=vT0, clk=True)
    q.clear()
    for j in range(HD):
        ldH(j)
    A(f"s_setprio {OPT['FPRIO']}")
    for j in range(NK):
        for mt in range(4):
            last = max(i for i, e in enumerate(q) if e[1] == j and (e[0] == "W" or e[2] <= mt))
            A(f"s_waitcnt vmcnt({len(q)-1-last})")
            for nt in range(5):
                d = vr(AQ[nt*4+mt])
                if not OPT["NOMF"]: A(f"v_mfma_f32_16x16x32_bf16 {d}, {vr(WQ[5*(j%WD)+nt])}, {vr(HQ[4*(j%HD)+mt])}, {d if j else 0}")
            if j + HD < NK:
                ldH1(j + HD, mt)
        if j + WD < NK:
            ldW(j + WD)
    A("s_setprio 0")
    stamp(A, 6, 1, wave=4, vt=vT0)
    stamp(A, 15, 1, wave=4, vt=vT0, clk=True)
    A("s_waitcnt vmcnt(0)")
    red_setup(A, vSigA, vSigV)
    A(f"s_sub_u32 s3, s{sWave}, 4")
    A("s_mul_i32 s8, s3, 14336")
    A("s_cmp_ge_u32 s3, 2")
    A(f"s_cselect_b32 s9, {135168 - 2*14336}, 0")
    A("s_add_u32 s8, s8, s9")
    A(f"v_add_u32 v{vT0}, s8, v{vL16}")
    A("s_add_u32 s9, s8, 13456")
    A(f"v_mov_b32 v{vT2}, s9")
    A(f"s_mov_b32 s{sSpin}, 0")
    A.label("L2_wfree")
    A(f"ds_read_b32 v{vT1}, v{vT2}")
    A("s_waitcnt lgkmcnt(0)")
    A(f"v_readfirstlane_b32 s9, v{vT1}")
    A(f"s_add_u32 s{sSpin}, s{sSpin}, 1")
    A("s_cmp_eq_u32 s9, 1")
    A("s_cbranch_scc1 L2_wfree_ok")
    A(f"s_cmp_gt_u32 s{sSpin}, {SPIN_MAX*16}")
    A("s_cbranch_scc1 L2_wfree_ok")
    A("s_sleep 2")
    A("s_branch L2_wfree")
    A.label("L2_wfree_ok")
    A("s_mul_i32 s8, s3, 25600")
    A(f"s_add_u32 s8, s8, {WO_LDS}")
    A(f"v_add_u32 v{vT1}, s8, v{vL16}")
    A("s_lshl_b32 s8, s3, 10")
    A(f"v_add_u32 v{vT2}, s8, v{vL16}")
    for t in range(20):
        if t < 14:
            A(f"ds_write_b128 v{vT0}, {vr(AQ[t])} offset:{t*1024}")
        elif t < 19:
            A(f"ds_write_b128 v{vT1}, {vr(AQ[t])} offset:{(t-14)*1024}")
        else:
            A(f"ds_write_b128 v{vT2}, {vr(AQ[t])} offset:28672")

    A.label("L2_reduce")
    A("s_setprio 0")
    A("s_waitcnt lgkmcnt(0)")
    stamp(A, 12, 1, vt=vSigA)
    A("s_barrier")
    stamp(A, 13, 1, vt=vSigA)
    R = lambda j: 8 + 32 * j

    def rds(j):
        A(f"v_add_u32 v{vT0}, {2*25600}, v{RA+5*j}")
        for w in range(4):
            A(f"ds_read_b128 {vr(R(j)+4*w)}, v{RA+5*j if w < 2 else vT0} offset:{(w%2)*25600}")
        for f in range(4):
            A(f"ds_read_b128 {vr(R(j)+16+4*f)}, v{RA+5*j+1+f}")

    def fin(j):
        r = R(j)
        for st in (16, 8, 4):
            for i in range(0, st, 2):
                pk_mul(A, r + i, ("p", r + i), ("p", r + st + i), op="add")
        x0, x1 = XR + 2 * j, XR + 2 * j + 1
        A(f"v_lshlrev_b32 v{r+4}, 16, v{x0}")
        A(f"v_and_b32 v{r+5}, 0xffff0000, v{x0}")
        A(f"v_lshlrev_b32 v{r+6}, 16, v{x1}")
        A(f"v_and_b32 v{r+7}, 0xffff0000, v{x1}")
        for i in range(0, 4, 2):
            pk_mul(A, r + i, ("p", r + i), ("p", r + 4 + i), op="add")
        A(f"v_cvt_pk_bf16_f32 v{x0}, v{r}, v{r+1}")
        A(f"v_cvt_pk_bf16_f32 v{x1}, v{r+2}, v{r+3}")
        A(f"buffer_store_dwordx2 {vr(x0, 2)}, v{OA+j}, {srd(S_OUT)}, 0 offen" + ["", " sc1", " nt"][OPT["OUTSC"]])
    rds(0)
    rds(1)
    A("s_waitcnt vmcnt(0) lgkmcnt(8)")
    fin(0)
    A(f"s_cmp_ge_u32 s{sWave}, 4")
    A("s_cbranch_scc1 L2_last")
    rds(2)
    A("s_waitcnt lgkmcnt(0)")
    fin(2)
    A.label("L2_last")
    A("s_waitcnt lgkmcnt(0)")
    fin(1)
    A.label("L2_done")
    stamp(A, 2, 1, vt=vSigA)


def descriptor(name, vgpr=256):
    return f""".amdhsa_kernel {name}
  .amdhsa_next_free_vgpr {vgpr}
  .amdhsa_next_free_sgpr 102
  .amdhsa_accum_offset {vgpr}
  .amdhsa_group_segment_fixed_size 0
  .amdhsa_kernarg_size 80
  .amdhsa_user_sgpr_count 2
  .amdhsa_user_sgpr_kernarg_segment_ptr 1
  .amdhsa_system_sgpr_workgroup_id_x 1
.end_amdhsa_kernel
"""


def probe(A):
    A(".p2align 8")
    A.label("pre_kernel")
    if OPT["PROBE"] in (4, 5):
        A("s_cmp_ge_u32 s2, 64")
        A("s_cbranch_scc1 L_pre_exit")
        load_ptrs(A)
        A("s_lshr_b32 s3, s2, 3")
        A("s_lshl_b32 s3, s3, 9")
        A("v_add_u32 v1, s3, v0")
        A("v_lshlrev_b32 v1, 12, v1")
        A("s_waitcnt lgkmcnt(0)")
        lst = ((P_WS, WS_SIZE), (P_OUT, 2048*1280))
        if OPT["PROBE"] == 5:
            lst += ((P_X, 2048*1280), (P_WQKV, 640*3840), (P_WO, 640*1280), (P_G, 640*3456), (P_U, 640*3456), (P_D, 1728*1280))
        for k, (p, n) in enumerate(lst):
            mk_srd(A, 36 + 4*k, p, n)
            A(f"buffer_load_dword v{2+k}, v1, {srd(36+4*k)}, 0 offen")
        A("s_waitcnt vmcnt(0)")
        A.label("L_pre_exit")
    if OPT["PROBE"] == 2:
        A("s_cmp_ge_u32 s2, 256")
        A("s_cbranch_scc1 L_pre_exit")
        load_ptrs(A)
        A("s_lshl_b32 s3, s2, 9")
        A("v_add_u32 v1, s3, v0")
        A("v_lshlrev_b32 v1, 5, v1")
        A("s_waitcnt lgkmcnt(0)")
        for k, (p, n) in enumerate(((P_X, 2048*1280), (P_WQKV, 640*3840), (P_WO, 640*1280), (P_G, 640*3456), (P_U, 640*3456), (P_D, 1728*1280))):
            mk_srd(A, 36 + 4*k, p, n)
            A(f"buffer_load_dword v{2+k}, v1, {srd(36+4*k)}, 0 offen")
        A("s_waitcnt vmcnt(0)")
        A.label("L_pre_exit")
    A("s_endpgm")


def main():
    A = Asm()
    kernel1(A)
    K = NAME + "_kernel"
    launch = f"; @launch grid=(256,1,1) block=(512,1,1) lds={LDS_TOTAL}"
    extra = ""
    if OPT["PROBE"]:
        probe(A)
        launch = f"; @launch kernel=pre_kernel grid=(256,1,1) block=(512,1,1) lds=0\n; @launch kernel={K} grid=(256,1,1) block=(512,1,1) lds={LDS_TOTAL}"
        if OPT["PROBE"] == 3:
            launch = f"; @launch kernel={K} grid=(256,1,1) block=(512,1,1) lds={LDS_TOTAL}\n; @launch kernel={K} grid=(256,1,1) block=(512,1,1) lds={LDS_TOTAL}"
        extra = ".p2align 6\n" + descriptor("pre_kernel", 16)
    head = f"""; LN + linear attention + GEGLU FFN, one persistent launch (generated by dev/gen.py)
{launch}
.amdgcn_target "amdgcn-amd-amdhsa--gfx950"
.text
.globl {K}
.type {K},@function
"""
    tail = '.section .rodata,"a"\n.p2align 6\n' + descriptor(K) + extra
    open(sys.argv[1], "w").write(head + A.render() + tail)


main()
```

```python
import sys, struct, math
from asmlib import Asm, interleave

NAME = "parallel_sum__linear_attn_block__geglu_ffn__prompt"

OPT = dict(ROTQ=1, STAMP=0, NODMA=0, SAME=0, NOSWZ=0, NORD=0, P2ROT=1, WARM=1, PLAIN=0, BYTEFLAG=0, NBUP=6, SW=0, P2ONLY=0, P2SAME=0, NOATT=0, NOMF=0, FPRIO=1, NPRE=2, CGPERM=0, OUTSC=0, CODEWARM=2, TLBWARM=0, PUBST=0, GPK=1, APRIO=2, APRIO2=0, FINEH=1, XMAP=0, FAKE16=0, PSLEEP=2, EPOLL=0, PROBE=0, WOEPI=0, NXA=0, XPOS=1, G16=1)
for a in sys.argv[2:]:
    k, v = a.split("=")
    OPT[k] = int(v)

OPT_WOEPI = ['', 'K', 'KQ', 'KQG'][OPT['WOEPI']]
HSC = '' if OPT['PLAIN'] else ' sc1'
WS_H = 0x000000
WS_PQ = 0x700000
WS_W2 = 0xA00000
WS_ST = 0xD00000
WS_CS = 0xD10000
WS_KVA = 0xD80000
WS_FL = 0xD90000
FL_HC = 0
FL_KV = 16 * 256
FL_ROW = 128
WS_STAMP = 0xF00000
WS_SIZE = 0x1000000
OOB = 0x40000000


def f32(x):
    return "0x%08x" % struct.unpack("<I", struct.pack("<f", x))[0]


LOG2E = 1.4426950408889634
GC1 = -2.0 * math.sqrt(2.0 / math.pi) * LOG2E
GC2 = GC1 * 0.044715

P_X, P_WQKV, P_WO, P_BX, P_G, P_U, P_D, P_OUT, P_DBG, P_WS = 16, 18, 20, 22, 24, 26, 28, 30, 32, 34
S_X, S_W, S_WS, S_DBG, S_T = 36, 40, 44, 48, 52


def srd(b):
    return f"s[{b}:{b+3}]"


def vr(b, n=4):
    return f"v[{b}:{b+n-1}]"


def mk_srd(A, s, p, nbytes):
    A(f"s_mov_b32 s{s}, s{p}")
    A(f"s_and_b32 s{s+1}, s{p+1}, 0xffff")
    A(f"s_mov_b32 s{s+2}, {nbytes}")
    A(f"s_mov_b32 s{s+3}, 0x20000")


def load_ptrs(A):
    A("s_load_dwordx16 s[16:31], s[0:1], 0")
    A("s_load_dwordx4 s[32:35], s[0:1], 64")


def wave_allreduce_add(A, v, t, s0):
    A(f"v_add_f32_dpp v{v}, v{v}, v{v} quad_perm:[1,0,3,2] row_mask:0xf bank_mask:0xf")
    A(f"v_add_f32_dpp v{v}, v{v}, v{v} quad_perm:[2,3,0,1] row_mask:0xf bank_mask:0xf")
    A(f"v_add_f32_dpp v{v}, v{v}, v{v} row_half_mirror row_mask:0xf bank_mask:0xf")
    A(f"v_add_f32_dpp v{v}, v{v}, v{v} row_mirror row_mask:0xf bank_mask:0xf")
    for i in range(4):
        A(f"v_readlane_b32 s{s0+i}, v{v}, {16*i}")
    A(f"v_mov_b32 v{v}, s{s0}")
    A(f"v_mov_b32 v{t}, s{s0+2}")
    A(f"v_add_f32 v{v}, s{s0+1}, v{v}")
    A(f"v_add_f32 v{t}, s{s0+3}, v{t}")
    A(f"v_add_f32 v{v}, v{v}, v{t}")


def lstamp(A, k):
    if OPT["STAMP"] != 4:
        return
    A("s_memrealtime s[96:97]")
    A("s_waitcnt lgkmcnt(0)")
    A(f"v_writelane_b32 v28, s96, {k}")


def stamp(A, idx, kern, dyn=None, clk=False, wave=0, vt=None):
    if vt is None:
        vt = (26 if idx != 3 else 50) if kern == 0 else 254
    if not OPT["STAMP"]:
        return
    if OPT["STAMP"] == 9:
        slot = {(0, 0): (1, True), (0, 1): (2, False), (0, 2): (3, False), (0, 3): (5, False), (1, 0): (6, False), (1, 5): (7, False),
                (1, 3): (9, False), (1, 1): (10, False), (1, 2): (11, False), (1, 6): (13, False)}.get((kern, idx))
        if slot is None or clk:
            return
        lab = f"L_st_{kern}_{idx}_{len(A.lines)}"
        A(f"s_cmp_lg_u32 s{sWave}, {wave}")
        A(f"s_cbranch_scc1 {lab}")
        A("s_memrealtime s[96:97]")
        A("s_waitcnt lgkmcnt(0)")
        if slot[1]:
            A("s_not_b32 s96, s96")
        A(f"v_mov_b32 v{vt}, s96")
        A(f"v_mov_b32 v{vt+1}, {OOB}")
        A(f"v_writelane_b32 v{vt+1}, {slot[0]*4}, 0")
        A(f"buffer_atomic_umax v{vt}, v{vt+1}, {srd(S_DBG)}, 0 offen sc1")
        A.label(lab)
        return
    lab = f"L_st_{kern}_{idx}_{len(A.lines)}"
    A(f"s_cmp_lg_u32 s{sWave}, {wave}")
    A(f"s_cbranch_scc1 {lab}")
    A("s_memtime s[96:97]" if clk else "s_memrealtime s[96:97]")
    A("s_waitcnt lgkmcnt(0)")
    A(f"s_lshl_b32 s98, s2, 6")
    A(f"s_add_u32 s98, s98, {WS_STAMP + kern*0x8000 + idx*4}")
    if dyn is not None:
        A(f"s_lshl_b32 s99, s{dyn}, 2")
        A("s_add_u32 s98, s98, s99")
    A(f"v_mov_b32 v{vt}, s96")
    A(f"v_mov_b32 v{vt+1}, 0")
    A(f"buffer_store_dword v{vt}, v{vt+1}, {srd(S_WS)}, s98 offen")
    A.label(lab)


sWave, sRB, sCG, sIt, sKW, sKWn, sKX, sKXn, sWslot, sRslot, sXslot, sStepW, sCSit, sSpec, sTmp, sTmp2, sMW, sNW, sWrapW, sTmp3, sC0, sRow, sSpin, sOdd, sPub, sUw, sUl = range(56, 83)
X_LDS = 0
W_LDS = 32768
W_SLOT = 24576
MISC_LDS = W_LDS + 5 * W_SLOT
LDS_TOTAL = 163840

vLane, vT0, vT1, vT2, vT3 = 1, 2, 3, 4, 5
vSigA, vSigV = 6, 7
vXo = 6
vWo = 8
vXa = 11
vWb = 15
vWa = 20
vPa = 25
SPIN_MAX = 0x100000
vSel = 52
vPoll = 30
vCSA = 32
vCSP = 32
vSt = 31
KST = lambda j: (44 + 4 * j) if j < 3 else (232 + 4 * (j - 3))
vBUF = 56
vACC = 152


KVT = [[(0, 0), (0, 1), (0, 2), (1, 0), (1, 1)], [(0, 3), (0, 4), (1, 2), (1, 3), (1, 4)]]


def k1_gemm(A, typ):
    G = typ == "G"
    MT = 2 if G else 1
    NT = 3 if G else 5
    NW_ = 6 if G else 5
    pitch = 3456 if G else 3840
    XB = lambda P, mt, kk: vBUF + 48 * P + 4 * (mt * 2 + kk)
    WBf = lambda P, a, kk: vBUF + 48 * P + 4 * MT * 2 + 4 * (a * 2 + kk)
    acc = lambda mt, a: vACC + 16 * (mt * NT + a)
    L = lambda s: f"L_{typ}_{s}"
    S16 = G and OPT["G16"]
    sel = 248 if S16 else vSel
    NCS = 6 if S16 else NT

    if G:
        A(f"s_lshr_b32 s{sMW}, s{sWave}, 2")
        A(f"s_and_b32 s{sNW}, s{sWave}, 3")
        mk_srd(A, S_W, P_G, 640 * 3456)
        mk_srd(A, S_T, P_U, 640 * 3456)
    else:
        A(f"s_lshr_b32 s{sMW}, s{sWave}, 1")
        A(f"s_and_b32 s{sNW}, s{sWave}, 1")
        mk_srd(A, S_W, P_WQKV, 640 * 3840)
    A(f"s_and_b32 s{sTmp2}, s{sWave}, 3")
    A(f"v_lshrrev_b32 v{vT0}, 3, v{vLane}")
    A(f"s_lshl_b32 s{sTmp3}, s{sTmp2}, 3")
    A(f"v_add_u32 v{vT0}, s{sTmp3}, v{vT0}")
    A(f"v_mul_u32_u24 v{vT0}, {pitch}, v{vT0}")
    A(f"v_and_b32 v{vT1}, 7, v{vLane}")
    A(f"v_lshrrev_b32 v{vT2}, 2, v{vLane}")
    A(f"v_and_b32 v{vT2}, 4, v{vT2}")
    A(f"v_xor_b32 v{vT1}, v{vT1}, v{vT2}")
    if G:
        A(f"s_mul_i32 s{sTmp3}, s{sCG}, {0 if OPT['SAME'] else 384}")
        A(f"v_add_u32 v{vT0}, s{sTmp3}, v{vT0}")
        if S16:
            A(f"s_and_b32 s{sTmp3}, s{sWave}, 1")
            A(f"s_lshl_b32 s{sTmp3}, s{sTmp3}, 1")
            A(f"v_xor_b32 v{vT1}, s{sTmp3}, v{vT1}")
        A(f"v_lshl_add_u32 v{vWo}, v{vT1}, 4, v{vT0}")
        if not S16:
            A(f"v_xor_b32 v{vT1}, 2, v{vT1}")
        A(f"v_lshl_add_u32 v{vWo+1}, v{vT1}, 4, v{vT0}")
        chunks = [(S_W, vWo, 0), (S_W, vWo, 128), (S_W, vWo, 256), (S_T, vWo + 1, 0), (S_T, vWo + 1, 128), (S_T, vWo + 1, 256)]
    elif typ == "Q":
        A(f"s_sub_u32 s{sTmp3}, s{sCG}, 13")
        A(f"s_mul_i32 s{sTmp3}, s{sTmp3}, 640")
        A(f"v_add_u32 v{vT0}, s{sTmp3}, v{vT0}")
        A(f"v_lshl_add_u32 v{vWo}, v{vT1}, 4, v{vT0}")
        chunks = [(S_W, vWo, 128 * i) for i in range(5)]
    else:
        A(f"s_sub_u32 s4, s{sCG}, 9")
        A(f"s_and_b32 s{sOdd}, s4, 1")
        A(f"s_mul_i32 s6, s4, 320")
        A(f"s_add_u32 s6, s6, 1280")
        A(f"s_lshl_b32 s7, s{sOdd}, 6")
        A(f"s_add_u32 s7, s7, s6")
        A(f"s_cmp_eq_u32 s{sOdd}, 0")
        A(f"s_cselect_b32 s8, 256, 0")
        A(f"s_add_u32 s8, s8, s6")
        A(f"v_lshl_add_u32 v{vT2}, v{vT1}, 4, v{vT0}")
        A(f"v_add_u32 v{vWo}, s7, v{vT2}")
        A(f"v_xor_b32 v{vT3}, 2, v{vT1}")
        A(f"v_lshl_add_u32 v{vT2}, v{vT3}, 4, v{vT0}")
        A(f"v_add_u32 v{vWo+2}, s7, v{vT2}")
        A(f"v_lshrrev_b32 v{vT2}, 2, v{vT1}")
        A(f"v_lshlrev_b32 v{vT3}, 1, v{vT2}")
        A(f"v_xor_b32 v{vT3}, v{vT3}, v{vT1}")
        A(f"v_and_b32 v{vT3}, 3, v{vT3}")
        A(f"v_lshl_add_u32 v{vT3}, v{vT3}, 4, v{vT0}")
        A(f"v_mul_u32_u24 v{vT2}, 1280, v{vT2}")
        A(f"v_add3_u32 v{vWo+1}, v{vT3}, v{vT2}, s8")
        chunks = [(S_W, vWo, 0), (S_W, vWo, 128), (S_W, vWo + 2, 1280), (S_W, vWo + 2, 1408), (S_W, vWo + 1, 0)]
    A(f"s_lshr_b32 s{sTmp}, s{sWave}, 2")
    A(f"s_lshl_b32 s{sTmp2}, s{sTmp2}, 10")
    A(f"s_add_u32 s{sWrapW}, s{sTmp2}, {W_LDS + 5*W_SLOT}")
    A(f"s_mul_i32 s{sWslot}, s{sTmp}, {W_SLOT}")
    A(f"s_add_u32 s{sWslot}, s{sWslot}, s{sTmp2}")
    A(f"s_add_u32 s{sWslot}, s{sWslot}, {W_LDS}")
    A(f"s_mul_i32 s{sKW}, s{sC0}, {64*pitch}")
    A(f"s_mul_i32 s{sTmp}, s{sTmp}, {32*pitch}")
    A(f"s_add_u32 s{sKW}, s{sKW}, s{sTmp}")
    A(f"s_mov_b32 s{sKWn}, 0")

    def dmaW():
        out = []
        for i, (sr, vo, imm) in enumerate(chunks):
            out.append(f"s_add_u32 m0, s{sWslot}, {i*4096 - imm}\n" +
                       "s_nop 0\n" +
                       f"buffer_load_dwordx4 v{vo}, {srd(sr)}, s{sKW} offen offset:{imm} lds")
        out.append(f"s_add_u32 s{sWslot}, s{sWslot}, {2*W_SLOT}\n"
                   f"s_cmp_ge_u32 s{sWslot}, s{sWrapW}\n"
                   f"s_cselect_b32 s{sTmp}, {5*W_SLOT}, 0\n"
                   f"s_sub_u32 s{sWslot}, s{sWslot}, s{sTmp}\n"
                   f"s_add_u32 s{sKW}, s{sKW}, {64*pitch}\n"
                   f"s_cmp_ge_u32 s{sKW}, {640*pitch}\n"
                   f"s_cselect_b32 s{sTmp}, {640*pitch}, 0\n"
                   f"s_sub_u32 s{sKW}, s{sKW}, s{sTmp}")
        return out

    def dmaX():
        out = []
        for i in range(4):
            out.append(f"s_add_u32 m0, s{sXslot}, {i*1024}\n" +
                       f"s_add_u32 s{sTmp}, s{sKX}, {16*1280}\n" +
                       f"buffer_load_dwordx4 v{vXo+i%2}, {srd(S_X)}, s{sKX if i < 2 else sTmp} offen lds")
        out.append(f"s_xor_b32 s{sXslot}, s{sXslot}, 16384\n"
                   f"s_add_u32 s{sKX}, s{sKX}, 128\n"
                   f"s_cmp_eq_u32 s{sKX}, 1280\n"
                   f"s_cselect_b32 s{sKX}, 0, s{sKX}")
        return out

    A(f"s_cmp_lt_u32 s{sWave}, 4")
    A(f"s_cbranch_scc1 {L('p1')}")
    for g in dmaX():
        A(g)
    A(f"s_branch {L('p2')}")
    A.label(L("p1"))
    for g in dmaW():
        A(g)
    A.label(L("p2"))
    lstamp(A, 16)

    if OPT["STAMP"] == 3:
        stamp(A, 4, 0, wave=OPT["SW"])
    if S16:
        A(f"v_and_b32 v{vT0}, 15, v{vLane}")
        A(f"v_lshrrev_b32 v{vT1}, 4, v{vLane}")
        A(f"v_bfe_u32 v{vT2}, v{vLane}, 1, 3")
        A(f"v_xor_b32 v{vT1}, v{vT1}, v{vT2}")
        A(f"s_lshl_b32 s{sTmp}, s{sMW}, 13")
        A(f"v_lshl_add_u32 v{vT0}, v{vT0}, 7, s{sTmp}")
        for kap in range(2):
            A(f"v_xor_b32 v{vT2}, {4*kap}, v{vT1}")
            A(f"v_lshl_add_u32 v{vXa+2*kap}, v{vT2}, 4, v{vT0}")
            A(f"v_add_u32 v{vXa+2*kap+1}, 2048, v{vXa+2*kap}")
    else:
        A(f"v_and_b32 v{vT0}, 31, v{vLane}")
        A(f"v_lshrrev_b32 v{vT1}, 5, v{vLane}")
        A(f"v_bfe_u32 v{vT2}, v{vLane}, 1, 3")
        A(f"v_xor_b32 v{vT1}, v{vT1}, v{vT2}")
        A(f"s_lshl_b32 s{sTmp}, s{sMW}, {13 if G else 12}")
        A(f"v_lshl_add_u32 v{vT0}, v{vT0}, 7, s{sTmp}")
        for kap in range(2):
            for kk in range(2):
                A(f"v_xor_b32 v{vT2}, {4*kap+2*kk}, v{vT1}")
                A(f"v_lshl_add_u32 v{vXa+2*kap+kk}, v{vT2}, 4, v{vT0}")
    A(f"v_lshrrev_b32 v{vT0}, {4 if S16 else 5}, v{vLane}")
    A(f"v_lshlrev_b32 v{vT0}, 10, v{vT0}")
    A(f"v_bfe_u32 v{vT1}, v{vLane}, 2, 2")
    A(f"v_lshl_add_u32 v{vT0}, v{vT1}, 7, v{vT0}")
    A(f"v_and_b32 v{vT2}, 3, v{vLane}")
    if typ != "K" and not S16:
        A(f"v_lshlrev_b32 v{vT3}, 1, v{vT2}")
        A(f"v_lshrrev_b32 v{vT2}, 1, v{vT2}")
        A(f"v_and_b32 v{vT3}, 2, v{vT3}")
        A(f"v_or_b32 v{vT2}, v{vT2}, v{vT3}")
    A(f"v_lshl_add_u32 v{vT0}, v{vT2}, 3, v{vT0}")
    A(f"v_and_b32 v{vT1}, 2, v{vT1}")
    A(f"v_bfe_u32 v{vT2}, v{vLane}, 4, 1")
    A(f"v_xor_b32 v{vT1}, v{vT1}, v{vT2}")
    if G:
        if not S16:
            A(f"v_mul_u32_u24 v{vT2}, {3*4096}, v{vT2}")
            A(f"v_add_u32 v{vT0}, v{vT0}, v{vT2}")
        for a in range(3):
            A(f"s_mul_i32 s{sTmp}, s{sNW}, 3")
            A(f"s_add_u32 s{sTmp}, s{sTmp}, {a}")
            A(f"s_lshr_b32 s{sTmp2}, s{sTmp}, 2")
            A(f"s_lshl_b32 s{sTmp2}, s{sTmp2}, 12")
            A(f"s_and_b32 s{sTmp}, s{sTmp}, 3")
            A(f"v_xor_b32 v{vT2}, s{sTmp}, v{vT1}")
            A(f"v_lshl_add_u32 v{vT2}, v{vT2}, 5, v{vT0}")
            A(f"v_add_u32 v{vWb+a}, s{sTmp2}, v{vT2}")
    else:
        for a in range(5):
            if typ == "Q":
                A(f"s_mul_i32 s{sTmp}, s{sNW}, 5")
                A(f"s_add_u32 s{sTmp}, s{sTmp}, {a}")
                A(f"s_lshr_b32 s{sTmp2}, s{sTmp}, 1")
                A(f"s_lshl_b32 s{sTmp2}, s{sTmp2}, 12")
                A(f"s_and_b32 s{sTmp}, s{sTmp}, 1")
                A(f"s_lshl_b32 s{sTmp}, s{sTmp}, 1")
                A(f"v_xor_b32 v{vT2}, s{sTmp}, v{vT1}")
                A(f"v_lshl_add_u32 v{vT2}, v{vT2}, 5, v{vT0}")
                A(f"v_add_u32 v{vWb+a}, s{sTmp2}, v{vT2}")
            else:
                def loc(pi, nw, odd):
                    m, p = pi // 5, 5 * nw + pi % 5
                    if odd:
                        L_, tau = (4, p + 2 * m) if p < 2 else (2 * m + ((p - 2) >> 2), (p - 2) & 3)
                    else:
                        L_, tau = (4, p - 8 + 2 * m) if p >= 8 else (2 * m + (p >> 2), p & 3)
                    return L_ * 4 + (tau ^ m)
                if a == 0:
                    A(f"s_lshl_b32 s9, s{sNW}, 1")
                    A(f"s_add_u32 s9, s9, s{sOdd}")
                    A("s_lshl_b32 s9, s9, 3")
                    A(f"v_bfe_u32 v{vT2}, v{vLane}, 4, 1")
                    A(f"v_cmp_eq_u32 vcc, 1, v{vT2}")
                    A(f"v_and_b32 v{vT1}, 2, v{vT1}")
                for sub, sr in ((0, sTmp), (1, sTmp2)):
                    tab = sum(loc(2 * a + sub, nw, odd) << (8 * (2 * nw + odd)) for nw in range(2) for odd in range(2))
                    A(f"s_lshr_b32 s{sr}, {tab}, s9")
                    A(f"s_and_b32 s{sr}, s{sr}, 0xff")
                A(f"v_mov_b32 v{vT2}, s{sTmp}")
                A(f"v_mov_b32 v{vT3}, s{sTmp2}")
                A(f"v_cndmask_b32 v{vT2}, v{vT2}, v{vT3}, vcc")
                A(f"v_lshrrev_b32 v{vT3}, 2, v{vT2}")
                A(f"v_lshl_add_u32 v{vT3}, v{vT3}, 12, v{vT0}")
                A(f"v_and_b32 v{vT2}, 3, v{vT2}")
                A(f"v_xor_b32 v{vT2}, v{vT2}, v{vT1}")
                A(f"v_lshl_add_u32 v{vWb+a}, v{vT2}, 5, v{vT3}")
        if typ == "K":
            kv_addr_setup(A)
    A(f"s_mov_b32 s{sRslot}, {W_LDS}")
    poll_addr(A)
    A(f"v_and_b32 v{vT0}, 15, v{vLane}")
    A(f"v_bfe_u32 v{vT1}, v{vLane}, 4, 1")
    A(f"v_cmp_eq_u32 vcc, v{vT0}, v{vT1}")
    A(f"v_mov_b32 v{vT2}, 0x3f803f80")
    A(f"v_cndmask_b32 v{vSel}, 0, v{vT2}, vcc")
    for i in range(1, 4):
        A(f"v_mov_b32 v{vSel+i}, v{vSel}")
    if S16:
        for i in range(4):
            A(f"v_mov_b32 v{sel+i}, 0x3f803f80")
    for i in range(4 * NCS):
        A(f"v_mov_b32 v{vCSA+i}, 0")
    for i in range(16 * MT * NT):
        A(f"v_mov_b32 v{vACC+i}, 0")
    A(f"s_mov_b32 s{sPub}, 2")
    A(f"s_bitcmp1_b32 0x88ff, s{sRB}")
    A(f"s_cselect_b32 s{sCSit}, 0, 99")
    A(f"s_cmp_eq_u32 s{sMW}, 0")
    A(f"s_cselect_b32 s{sCSit}, s{sCSit}, 99")
    A(f"s_mov_b32 s{sTmp}, 0xe")
    A(f"s_cmp_eq_u32 s{sWave}, 0")
    A(f"s_cselect_b32 s{sSpec}, s{sTmp}, 0")
    A(f"s_cmp_eq_u32 s{sWave}, 3")
    A(f"s_cselect_b32 s{sTmp}, 0xc0, 0")
    A(f"s_or_b32 s{sSpec}, s{sSpec}, s{sTmp}")
    A(f"s_or_b32 s{sSpec}, s{sSpec}, 0x300")
    A(f"s_mov_b32 s{sIt}, 0")
    A(f"s_mov_b32 s{sSpin}, 0")

    def reads(P, kap):
        pre = [f"v_add_u32 v{vWa+a}, s{sRslot}, v{vWb+a}" for a in range(NT)]
        post = [f"s_add_u32 s{sRslot}, s{sRslot}, {W_SLOT}\n"
                f"s_cmp_eq_u32 s{sRslot}, {W_LDS+5*W_SLOT}\n"
                f"s_cselect_b32 s{sRslot}, {W_LDS}, s{sRslot}"]
        out = []
        for kk in range(2):
            for mt in range(MT):
                out.append(f"ds_read_b128 {vr(XB(P, mt, kk))}, v{vXa+2*kap+kk} offset:{mt*4096}")
            for a in range(NT):
                for rho in range(2):
                    out.append(f"ds_read_b64_tr_b16 {vr(WBf(P, a, kk)+2*rho, 2)}, v{vWa+a} offset:{kk*(12288 if S16 else 2048)+rho*512}")
        if OPT["NORD"]:
            out = []
        return pre, out, post

    def mfmas(P):
        out = []
        if S16:
            for kw in range(2):
                for a in range(3):
                    for t in (0, 2, 1, 3):
                        d = vr(acc16(t, a, kw))
                        out.append(f"v_mfma_f32_16x16x32_bf16 {d}, {vr(WBf(P, a, kw))}, {vr(XB(P, t // 2, t % 2))}, {d}")
            return out
        for kk in range(2):
            for a in range(NT):
                for mt in range(MT):
                    x, w, d = vr(XB(P, mt, kk)), vr(WBf(P, a, kk)), vr(acc(mt, a), 16)
                    if OPT["FAKE16"]:
                        for h in range(2):
                            dq = vr(acc(mt, a) + 8 * kk + 4 * h)
                            x2 = vr(XB(P, mt, h))
                            out.append(f"v_mfma_f32_16x16x32_bf16 {dq}, {w}, {x2}, {dq}")
                    elif typ == "K":
                        out.append(f"v_mfma_f32_32x32x16_bf16 {d}, {x}, {w}, {d}")
                    else:
                        out.append(f"v_mfma_f32_32x32x16_bf16 {d}, {w}, {x}, {d}")
        return out

    def cs_mfmas(P):
        if S16:
            return [f"v_mfma_f32_16x16x32_bf16 {vr(vCSA+4*(2*a+kk))}, {vr(WBf(P, a, kk))}, {vr(sel)}, {vr(vCSA+4*(2*a+kk))}"
                    for kk in range(2) for a in range(3)]
        return [f"v_mfma_f32_16x16x32_bf16 {vr(vCSA+4*a)}, {vr(WBf(P, a, kk))}, {vr(vSel)}, {vr(vCSA+4*a)}"
                for kk in range(2) for a in range(NT)]

    if OPT["STAMP"] == 3:
        stamp(A, 5, 0, wave=OPT["SW"])
    n = len(mfmas(0))
    f = lambda k: k / n
    nod = OPT["NODMA"]

    def loop(R):
        LL = lambda s: f"L_{typ}{R}_{s}"
        lstamp(A, 17)
        if R == "B":
            for g in dmaW():
                A(g)
        A(f"s_waitcnt vmcnt({NW_ + (4 if R == 'B' else 0)})")
        k1_stats(A, typ)
        lstamp(A, 18)
        A(f"s_waitcnt vmcnt({1 if R == 'A' else NW_ + 1})")
        lstamp(A, 19)
        A("s_barrier")
        pre, rd, post = reads(0, 0)
        for g in pre + rd + post:
            A(g)
        if R == "A":
            A("s_setprio 1")
            stamp(A, 1, 0)
            stamp(A, 14, 0, clk=True)
        else:
            for g in dmaX():
                A(g)
        A("s_waitcnt lgkmcnt(0)")
        lstamp(A, 20)
        for g in mfmas(0):
            A(g)
        if R == "A":
            A(f"s_cmp_lg_u32 s{sCSit}, 0")
            A(f"s_cbranch_scc1 {LL('pc0')}")
            for g in cs_mfmas(0):
                A(g)
            A.label(LL("pc0"))
            for g in dmaW():
                A(g)
            A(f"s_sub_u32 s{sUw}, s{sWave}, 1")
            A(f"s_cmp_gt_u32 s{sUw}, 1")
            A(f"s_cbranch_scc1 {LL('nou')}")
            A(f"s_lshl_b32 s{sU}, s{sCG}, 4")
            A(f"s_add_u32 s{sU}, s{sU}, s{sRB}")
            A(f"s_lshl_b32 s{sU}, s{sU}, 1")
            A(f"s_add_u32 s{sU}, s{sU}, s{sUw}")
            A(f"s_lshl_b32 s{sUl}, s{sUw}, 12")
            A(f"s_add_u32 s{sUl}, s{sUl}, {MISC_LDS}")
            w2_unit_dma(A, f"s{sUl}")
            A.label(LL("nou"))
        else:
            A("s_waitcnt vmcnt(5)")
        lstamp(A, 21)
        A("s_barrier")
        pre, rd, post = reads(1, 1)
        for g in pre + rd + post:
            A(g)
        if R == "B":
            for g in dmaW():
                A(g)
        A("s_waitcnt lgkmcnt(0)")
        lstamp(A, 22)
        for g in mfmas(1):
            A(g)
        if R == "A":
            for g in dmaW():
                A(g)
            A(f"s_cmp_eq_u32 s{sCSit}, 0")
            A(f"s_cbranch_scc1 {LL('cs1')}")
            A(f"s_waitcnt vmcnt({NW_})")
            A.label(LL("pc1"))
            A(f"s_cmp_gt_u32 s{sUw}, 1")
            A(f"s_cbranch_scc1 {LL('pc2')}")
            w2_unit_out(A, f"s{sUl}", (lambda t: (96, 100, 144, 148)[t]) if G else (lambda t: 232 + 4 * t) if typ == 'Q' else (lambda t: vBUF + 4 * t))
            A.label(LL("pc2"))
        else:
            A("s_waitcnt vmcnt(0)")
        lstamp(A, 23)
        A("s_barrier")
        if R == "B":
            for g in dmaX() + dmaW():
                A(g)
        for i in range(4):
            A(f"v_xor_b32 v{vXa+i}, 16384, v{vXa+i}")
        pre, rd, post = reads(0, 0)
        for g in pre + rd + post:
            A(g)
        A(f"s_mov_b32 s{sIt}, 1")
        if R == "A" and OPT["NXA"]:
            for _ in range(3):
                A(dmaX()[4])
        A("s_waitcnt lgkmcnt(0)")
        lstamp(A, 0)
        A(".p2align 6")
        A.label(LL("loop"))
        pre, rd, post = reads(1, 1)
        for g in interleave(mfmas(0), (pre, 0.0, f(1)), (rd, f(1), 0.7), (post, 0.75, 0.85)):
            A(g)
        if R == "A":
            A(f"s_bitcmp1_b32 s{sSpec}, s{sIt}")
            A(f"s_cbranch_scc1 {LL('spec')}")
            A.label(LL("specr"))
            for g in dmaW():
                A(g)
            A(f"s_waitcnt vmcnt({NW_}) lgkmcnt(0)")
            A.label(LL("bar"))
        else:
            A("s_waitcnt vmcnt(0) lgkmcnt(0)")
        A("s_barrier")
        pre, rd, post = reads(0, 0)
        pre = [f"v_xor_b32 v{vXa+i}, 16384, v{vXa+i}" for i in range(2)] + pre
        post = post + [f"v_xor_b32 v{vXa+i}, 16384, v{vXa+i}" for i in range(2, 4)]
        tail = [f"s_add_u32 s{sIt}, s{sIt}, 1\ns_cmp_lt_u32 s{sIt}, 10"]
        nxa = OPT["NXA"]
        if R == "B":
            dw = dmaW()
            nb = OPT["NBUP"]
            A(f"s_cmp_ge_u32 s{sIt}, 8")
            A(f"s_cbranch_scc1 {LL('nod')}")
            for g in dmaX()[nxa:] + dw[:nb]:
                A(g)
            for g in interleave(mfmas(1), (pre, 0.0, f(1)), (dw[nb:], 0.0, 0.4), (rd, f(1), 0.7), (post, 0.7, 0.8), (tail, f(n-2), f(n-1))):
                A(g)
            A.label(LL("end"))
        else:
            chk1 = tail
            xa = []
            if nxa:
                dx = dmaX()
                xa = [f"s_cmp_ge_u32 s{sIt}, 8\ns_cbranch_scc1 {LL('nox')}\n" + "\n".join(dx[:nxa] + dx[4:]) + f"\n{LL('nox')}:"]
            for g in interleave(mfmas(1), (pre, 0.0, f(1)), (xa, f(OPT["XPOS"]), f(OPT["XPOS"]+1)), (rd, f(1), 0.7), (post, 0.7, 0.8), (chk1, f(n-2), f(n-1))):
                A(g)
        if OPT["STAMP"] == 4:
            A("s_memrealtime s[96:97]")
            A(f"s_mov_b32 m0, s{sIt}")
        A("s_waitcnt lgkmcnt(0)")
        if OPT["STAMP"] == 4:
            A("v_writelane_b32 v28, s96, m0")
        A(f"s_cbranch_scc1 {LL('loop')}")
        A(f"s_branch {L('epi')}")

        if R == "B":
            A.label(LL("nod"))
            if typ not in OPT_WOEPI:
                A(f"s_cmp_eq_u32 s{sIt}, 9")
                A(f"s_cbranch_scc1 {LL('nod9')}")
                wo_early(A, 24, 7)
                A(f"s_branch {LL('nod2')}")
                A.label(LL("nod9"))
                wo_early(A, 72, 7)
                A.label(LL("nod2"))
            for g in interleave(mfmas(1), (pre, 0.0, f(1)), (rd, f(1), 0.7), (post, 0.7, 0.8), (tail, f(n-2), f(n-1))):
                A(g)
            A(f"s_branch {LL('end')}")
            return
        A.label(LL("cs1"))
        for g in cs_mfmas(1):
            A(g)
        A(f"v_and_b32 v{vT0}, 15, v{vLane}")
        A(f"v_lshrrev_b32 v{vT1}, 4, v{vLane}")
        A(f"v_lshlrev_b32 v{vT1}, 4, v{vT1}")
        A(f"v_lshl_add_u32 v{vT1}, v{vT0}, 6, v{vT1}")
        A(f"v_cmp_gt_u32 vcc, {1 if S16 else 2}, v{vT0}")
        A(f"v_mov_b32 v{vT2}, {OOB}")
        A(f"v_cndmask_b32 v{vT1}, v{vT2}, v{vT1}, vcc")
        A(f"s_mul_i32 s{sTmp}, s{sCG}, 10")
        A(f"s_add_u32 s{sTmp}, s{sTmp}, s{sC0}")
        A(f"s_mul_i32 s{sTmp}, s{sTmp}, 1536")
        A(f"s_mul_i32 s{sTmp2}, s{sNW}, {NT*128}")
        A(f"s_add_u32 s{sTmp}, s{sTmp}, s{sTmp2}")
        A(f"s_add_u32 s{sTmp}, s{sTmp}, {WS_CS}")
        for a in range(NCS):
            A(f"buffer_store_dwordx4 {vr(vCSA+4*a)}, v{vT1}, {srd(S_WS)}, s{sTmp} offen offset:{a*(64 if S16 else 128)} sc1")
        A(f"s_waitcnt vmcnt({NW_+NCS})")
        A(f"s_branch {LL('pc1')}")

        def with_dma(nops, body):
            for g in dmaW():
                A(g)
            body()
            A(f"s_waitcnt vmcnt({NW_+nops}) lgkmcnt(0)")
            A(f"s_branch {LL('bar')}")
        A.label(LL("spec"))
        A(f"s_cmp_eq_u32 s{sIt}, 9")
        A(f"s_cbranch_scc1 {LL('sum')}")
        A(f"s_cmp_eq_u32 s{sIt}, 8")
        A(f"s_cbranch_scc1 {LL('go')}")
        A(f"s_cmp_eq_u32 s{sIt}, 7")
        A(f"s_cbranch_scc1 {LL('chk')}")
        A(f"s_cmp_eq_u32 s{sIt}, 6")
        A(f"s_cbranch_scc1 {LL('poll0')}")
        A.label(LL("pub"))

        A(f"s_cmp_lg_u32 s{sIt}, 2")
        A(f"s_cbranch_scc1 {LL('pub1')}")
        wait_zeroed(A, LL("wz"), True)
        A.label(LL("pub1"))

        def pub():
            A(f"s_cmp_eq_u32 s{sIt}, 3")
            A(f"s_cbranch_scc1 {LL('pub3')}")
            A(f"s_cmp_eq_u32 s{sIt}, 2")
            A(f"s_cbranch_scc1 {LL('pub2')}")
            A(f"buffer_load_dword v{vPoll}, off, {srd(S_DBG)}, 0 sc1")
            A(f"s_branch {LL('pub3')}")
            A.label(LL("pub2"))
            k1_publish(A)
            A.label(LL("pub3"))
        with_dma(1, pub)
        A.label(LL("poll0"))
        with_dma(1, lambda: A(f"buffer_load_dword v{vPoll}, v{vPa}, {srd(S_WS)}, 0 offen sc1"))
        A.label(LL("poll"))
        A("s_sleep 8")
        A(f"buffer_load_dword v{vPoll}, v{vPa}, {srd(S_WS)}, 0 offen sc1")
        A.label(LL("chk"))
        A("s_waitcnt vmcnt(0)")
        poll_cmp(A)
        A(f"s_add_u32 s{sSpin}, s{sSpin}, 1")
        A(f"s_cmp_gt_u32 s{sSpin}, {SPIN_MAX}")
        A(f"s_cbranch_scc1 {LL('specr')}")
        A(f"s_cmp_lg_u64 vcc, 0")
        A(f"s_cbranch_scc1 {LL('poll')}")
        A(f"s_branch {LL('specr')}")
        A.label(LL("go"))

        def go():
            A(f"v_lshlrev_b32 v{vT0}, 3, v0")
            A(f"v_cmp_gt_u32 vcc, {NT*(4 if G else 2)*16}, v0")
            A(f"v_mov_b32 v{vT2}, {OOB}")
            A(f"v_cndmask_b32 v{vT0}, v{vT2}, v{vT0}, vcc")
            A(f"s_mul_i32 s{sTmp}, s{sCG}, 15360")
            A(f"s_add_u32 s{sTmp}, s{sTmp}, {WS_CS}")
            for ch in range(10):
                if ch % 2 == 0 and ch:
                    A(f"s_add_u32 s{sTmp}, s{sTmp}, 3072")
                A(f"buffer_load_dwordx2 {vr(vCSP+2*ch, 2)}, v{vT0}, {srd(S_WS)}, s{sTmp} offen offset:{(ch%2)*1536} sc1")
            A(f"s_lshl_b32 s{sTmp}, s{sRB}, 10")
            A(f"s_add_u32 s{sTmp}, s{sTmp}, {WS_ST}")
            A(f"v_lshlrev_b32 v{vT1}, 2, v0")
            A(f"buffer_load_dword v{vSt}, v{vT1}, {srd(S_WS)}, s{sTmp} offen sc1")
        go()
        if typ not in OPT_WOEPI:
            wo_early(A, 0, 6)
        A(f"s_waitcnt vmcnt({11 if typ in OPT_WOEPI else 17}) lgkmcnt(0)")
        A(f"s_branch {LL('bar')}")
        A.label(LL("sum"))
        A(f"s_waitcnt vmcnt({0 if typ in OPT_WOEPI else 6})")
        for ch in range(1, 10):
            A(f"v_add_f32 v{vCSP}, v{vCSP}, v{vCSP+2*ch}")
            A(f"v_add_f32 v{vCSP+1}, v{vCSP+1}, v{vCSP+2*ch+1}")
        A(f"v_lshlrev_b32 v{vT0}, 3, v0")
        A(f"v_add_u32 v{vT0}, {MISC_LDS}, v{vT0}")
        A(f"ds_write_b64 v{vT0}, {vr(vCSP, 2)}")
        A(f"v_lshlrev_b32 v{vT1}, 2, v0")
        A(f"v_add_u32 v{vT1}, {MISC_LDS+2048}, v{vT1}")
        A(f"ds_write_b32 v{vT1}, v{vSt}")
        if typ not in OPT_WOEPI:
            wo_early(A, 52, 5)
        A("s_waitcnt lgkmcnt(0)")
        A(f"s_branch {LL('bar')}")

    A(f"s_cmp_ge_u32 s{sWave}, 4")
    A(f"s_cbranch_scc1 {L('roleB')}")
    loop("A")
    A.label(L("roleB"))
    loop("B")

    A.label(L("epi"))
    A("s_setprio 0")
    stamp(A, 2, 0)
    stamp(A, 4, 0, wave=4, vt=50)
    stamp(A, 7, 0, wave=4, vt=50, clk=True)
    stamp(A, 15, 0, clk=True)
    if OPT["STAMP"] == 4:
        A(f"v_lshlrev_b32 v29, 2, v0")
        A(f"s_lshl_b32 s98, s2, 11")
        A(f"s_add_u32 s98, s98, {WS_STAMP + 0x10000}")
        A(f"buffer_store_dword v28, v29, {srd(S_WS)}, s98 offen")
    p2_ids(A)
    A.fence()
    if True:
        epi = {"G": k1_epi_g16 if S16 else k1_epi_g, "Q": k1_epi_q, "K": k1_epi_kv}[typ]
        ffn_setup(A)
        A(f"s_cmp_lt_u32 s{sWave}, 4")
        A(f"s_cselect_b32 s{sWo}, {OOB}, s{sWo}")
        E = Asm()
        epi(E, acc)
        body = [t for _, t in E.lines]
        npre = min(OPT["NPRE"], {"G": 6, "Q": 4, "K": 2}[typ])
        early = [g for j in range(min(4, npre)) for g in ldW_groups(j)]
        late = [g for j in range(4, npre) for g in ldW_groups(j)]
        wod = []
        if typ in OPT_WOEPI:
            A(f"s_mul_i32 s12, s{sWave}, 13")
            A("s_min_u32 s12, s12, 87")
            A("s_lshl_b32 s12, s12, 10")
            A(f"s_mul_i32 s13, s{sC}, {74*5120}")
            A("s_add_u32 s13, s13, s12")
            A(f"s_add_u32 s13, s13, {WS_W2 + 54*5120}")
            A(f"s_add_u32 s12, s12, {WO_LDS}")
            wod = [f"s_add_u32 m0, s12, {i*1024}\ns_add_u32 s14, s13, {i*1024}\n"
                   f"buffer_load_dwordx4 v{vL16}, {srd(S_WS)}, s14 offen sc1 lds" for i in range(13)]
        for g in interleave(body, (wod, 0.02, 0.6), (early, 0.02, 0.5 if npre > 4 else 0.7), (late, 0.5, 0.8)):
            A(g)
        A(f"s_mov_b32 s{sWoDone}, {npre + 1}")
    stamp(A, 3, 0)
    stamp(A, 5, 0, wave=4, vt=50)
    stamp(A, 8, 0, wave=4, vt=50, clk=True)
    A(f"v_mov_b32 v{vSigA}, {OOB}")
    if typ == "K":
        A(f"s_sub_u32 s{sTmp}, s{sCG}, 9")
        A(f"s_lshl_b32 s{sTmp}, s{sTmp}, 11")
        A(f"s_add_u32 s{sTmp}, s{sTmp}, {WS_FL + FL_KV}")
        A(f"v_lshl_add_u32 v{vT0}, v{vLane}, 8, s{sTmp}")
        A(f"v_cmp_gt_u32 vcc, 8, v{vLane}")
        A(f"v_cndmask_b32 v{vSigA}, v{vSigA}, v{vT0}, vcc")
        A(f"v_mov_b32 v{vSigV}, 1")
    else:
        A(f"s_lshl_b32 s{sTmp}, s{sRB}, 8")
        A(f"s_add_u32 s{sTmp}, s{sTmp}, {WS_FL + FL_HC}")
        A(f"v_writelane_b32 v{vSigA}, s{sTmp}, 0")
        A(f"s_lshl_b32 s{sTmp}, 1, s{sCG}")
        A(f"v_mov_b32 v{vSigV}, s{sTmp}")
    A("s_branch L_p2")


def k1_stats_issue(A):
    b = vBUF
    A(f"s_lshl_b32 s{sRow}, s{sRB}, 7")
    A(f"s_lshl_b32 s{sTmp2}, s{sCG}, 3")
    A(f"s_add_u32 s{sRow}, s{sRow}, s{sTmp2}")
    A(f"s_add_u32 s{sRow}, s{sRow}, s{sWave}")
    A(f"s_mul_i32 s{sTmp2}, s{sRow}, 1280")
    A(f"v_lshlrev_b32 v{vT0}, 3, v{vLane}")
    A(f"v_lshlrev_b32 v{vT1}, 2, v{vLane}")
    A(f"buffer_load_dwordx2 {vr(b, 2)}, v{vT0}, {srd(S_X)}, s{sTmp2} offen")
    A(f"buffer_load_dwordx2 {vr(b+2, 2)}, v{vT0}, {srd(S_X)}, s{sTmp2} offen offset:512")
    A(f"buffer_load_dword v{b+4}, v{vT1}, {srd(S_X)}, s{sTmp2} offen offset:1024")


def k1_stats(A, typ):
    b = vBUF
    if typ == "A":
        A("s_waitcnt vmcnt(0)")
    for i in range(5):
        A(f"v_lshlrev_b32 v{b+8+2*i}, 16, v{b+i}")
        A(f"v_and_b32 v{b+9+2*i}, 0xffff0000, v{b+i}")
    s = b + 20
    A(f"v_add_f32 v{s}, v{b+8}, v{b+9}")
    for i in range(2, 10):
        A(f"v_add_f32 v{s}, v{s}, v{b+8+i}")
    wave_allreduce_add(A, s, s + 1, 4)
    A(f"v_mul_f32 v{s}, {f32(1.0/640)}, v{s}")
    for i in range(10):
        A(f"v_sub_f32 v{b+8+i}, v{b+8+i}, v{s}")
    A(f"v_mul_f32 v{s+1}, v{b+8}, v{b+8}")
    for i in range(1, 10):
        A(f"v_fmac_f32 v{s+1}, v{b+8+i}, v{b+8+i}")
    wave_allreduce_add(A, s + 1, s + 2, 4)
    A(f"v_mov_b32 v{s+2}, {f32(1e-5)}")
    A(f"v_fmac_f32 v{s+2}, {f32(1.0/640)}, v{s+1}")
    A(f"v_mov_b32 v{s+1}, v{s+2}")
    A(f"v_cmp_eq_u32 vcc, 0, v{vLane}")
    A(f"v_mov_b32 v{vT2}, {OOB}")
    A(f"v_cndmask_b32 v{vT0}, v{vT2}, v{vLane}, vcc")
    A(f"s_lshl_b32 s{sTmp}, s{sRow}, 3")
    A(f"s_add_u32 s{sTmp}, s{sTmp}, {WS_ST}")
    A(f"buffer_store_dwordx2 {vr(s, 2)}, v{vT0}, {srd(S_WS)}, s{sTmp} offen sc1")


def k1_publish(A):
    A(f"s_lshl_b32 s{sTmp}, s{sRB}, 8")
    A(f"s_add_u32 s{sTmp}, s{sTmp}, {WS_FL + FL_ROW}")
    A(f"v_mov_b32 v{vT0}, {OOB}")
    A(f"v_writelane_b32 v{vT0}, s{sTmp}, 0")
    A(f"v_mov_b32 v{vT1}, 1")
    A(f"buffer_atomic_add v{vT1}, v{vT0}, {srd(S_WS)}, 0 offen sc1")


def poll_addr(A):
    A(f"v_and_b32 v{vPa}, 15, v{vLane}")
    A(f"v_lshlrev_b32 v{vPa}, 8, v{vPa}")
    A(f"v_add_u32 v{vPa}, {WS_FL + FL_ROW}, v{vPa}")


def poll_cmp(A):
    A(f"v_cmp_gt_u32 vcc, 16, v{vPoll}")


def wait_zeroed(A, lab, first_issued):
    if first_issued:
        A(f"s_branch {lab}_c")
    A.label(lab)
    A("s_sleep 4")
    A(f"buffer_load_dword v{vPoll}, off, {srd(S_DBG)}, 0 sc1")
    A.label(lab + "_c")
    A("s_waitcnt vmcnt(0)")
    A(f"v_readfirstlane_b32 s{sTmp}, v{vPoll}")
    A(f"s_add_u32 s{sSpin}, s{sSpin}, 1")
    A(f"s_cmp_gt_u32 s{sSpin}, {SPIN_MAX}")
    A(f"s_cbranch_scc1 {lab}_ok")
    A(f"s_cmp_lt_u32 s{sTmp}, 16")
    A(f"s_cbranch_scc1 {lab}")
    A.label(lab + "_ok")


S_R = 88
sU, sUks, sUL = 92, 93, 94


def w2_unit_decode(A):
    A(f"s_mul_i32 s{sUks}, s{sU}, 205")
    A(f"s_lshr_b32 s{sUks}, s{sUks}, 11")
    A(f"s_mul_i32 s{sUL}, s{sUks}, 10")
    A(f"s_sub_u32 s{sUL}, s{sU}, s{sUL}")


def w2_unit_dma(A, lds):
    w2_unit_decode(A)
    A(f"s_cmp_lt_u32 s{sUks}, 54")
    A(f"s_cselect_b32 s{S_R}, s{P_D}, s{P_WO}")
    A(f"s_cselect_b32 s{S_R+1}, s{P_D+1}, s{P_WO+1}")
    A(f"s_mov_b32 s{S_R+2}, {640*1280}")
    A(f"s_cselect_b32 s{S_R+2}, {1728*1280}, s{S_R+2}")
    A(f"s_cselect_b32 s{sTmp}, 0, 54")
    A(f"s_and_b32 s{S_R+1}, s{S_R+1}, 0xffff")
    A(f"s_mov_b32 s{S_R+3}, 0x20000")
    A(f"s_sub_u32 s{sTmp}, s{sUks}, s{sTmp}")
    A(f"s_mul_i32 s{sTmp}, s{sTmp}, {32*1280}")
    A(f"s_lshl_b32 s{sTmp2}, s{sUL}, 7")
    A(f"s_add_u32 s{sTmp}, s{sTmp}, s{sTmp2}")
    A(f"v_lshrrev_b32 v{vT0}, 3, v{vLane}")
    A(f"v_mul_u32_u24 v{vT0}, 1280, v{vT0}")
    A(f"v_and_b32 v{vT1}, 7, v{vLane}")
    A(f"v_lshl_add_u32 v{vT0}, v{vT1}, 4, v{vT0}")
    for i in range(4):
        A(f"s_add_u32 m0, {lds}, {i*1024}")
        A("s_nop 0")
        A(f"buffer_load_dwordx4 v{vT0}, {srd(S_R)}, s{sTmp} offen lds")
        A(f"s_add_u32 s{sTmp}, s{sTmp}, {8*1280}")


def w2_unit_out(A, lds, F):
    w2_unit_decode(A)
    A(f"v_bfe_u32 v{vT0}, v{vLane}, 2, 2")
    A(f"v_lshlrev_b32 v{vT0}, 7, v{vT0}")
    A(f"v_and_b32 v{vT1}, 3, v{vLane}")
    A(f"v_lshl_add_u32 v{vT0}, v{vT1}, 3, v{vT0}")
    A(f"v_lshrrev_b32 v{vT1}, 4, v{vLane}")
    A(f"s_cmp_lt_u32 s{sUks}, 54")
    A(f"s_cselect_b32 s{sTmp}, 10, 9")
    A(f"s_movk_i32 s{sTmp2}, 512")
    A(f"s_cselect_b32 s{sTmp2}, s{sTmp2}, 2048")
    A(f"v_lshlrev_b32 v{vT1}, s{sTmp}, v{vT1}")
    A(f"v_add3_u32 v{vT0}, v{vT0}, v{vT1}, {lds}")
    A(f"v_add_u32 v{vT1}, s{sTmp2}, v{vT0}")
    for tau in range(4):
        A(f"ds_read_b64_tr_b16 {vr(F(tau), 2)}, v{vT0} offset:{tau*32}")
        A(f"ds_read_b64_tr_b16 {vr(F(tau)+2, 2)}, v{vT1} offset:{tau*32}")
    A(f"v_lshlrev_b32 v{vT2}, 4, v{vLane}")
    A("s_waitcnt lgkmcnt(0)")
    for tau in range(4):
        A(f"s_lshl_b32 s{sTmp}, s{sUL}, 2")
        A(f"s_add_u32 s{sTmp}, s{sTmp}, {tau}")
        A(f"s_mul_i32 s{sTmp2}, s{sTmp}, 205")
        A(f"s_lshr_b32 s{sTmp2}, s{sTmp2}, 10")
        A(f"s_mul_i32 s{sTmp3}, s{sTmp2}, {74*5-5}")
        A(f"s_add_u32 s{sTmp}, s{sTmp}, s{sTmp3}")
        A(f"s_mul_i32 s{sTmp3}, s{sUks}, 5")
        A(f"s_add_u32 s{sTmp}, s{sTmp}, s{sTmp3}")
        A(f"s_lshl_b32 s{sTmp}, s{sTmp}, 10")
        A(f"s_add_u32 s{sTmp}, s{sTmp}, {WS_W2}")
        A(f"s_cmp_lt_u32 s{sU}, 740")
        A(f"s_cselect_b32 s{sTmp}, s{sTmp}, {OOB}")
        A(f"buffer_store_dwordx4 {vr(F(tau))}, v{vT2}, {srd(S_WS)}, s{sTmp} offen sc1")


def k1_epi_g(A, acc):
    c = vBUF
    cs = vBUF + 8
    t = vBUF + 40
    o = vBUF + 48
    A(f"v_lshrrev_b32 v{vT0}, 5, v{vLane}")
    A(f"v_lshlrev_b32 v{vT0}, 4, v{vT0}")
    A(f"s_mul_i32 s{sTmp}, s{sNW}, 384")
    A(f"s_add_u32 s{sTmp}, s{sTmp}, {MISC_LDS}")
    A(f"v_add_u32 v{vT0}, s{sTmp}, v{vT0}")
    A(f"v_and_b32 v{vT1}, 31, v{vLane}")
    A(f"s_lshl_b32 s{sTmp}, s{sMW}, 9")
    A(f"s_add_u32 s{sTmp}, s{sTmp}, {MISC_LDS+2048}")
    A(f"v_lshl_add_u32 v{vT1}, v{vT1}, 3, s{sTmp}")
    for mt in range(2):
        A(f"ds_read_b64 {vr(c+4*mt, 2)}, v{vT1} offset:{mt*256}")
    for q in range(4):
        A(f"ds_read_b128 {vr(cs+4*q)}, v{vT0} offset:{q*32}")
    A("s_waitcnt lgkmcnt(4)")
    for mt in range(2):
        mu, v, k1, k3 = c + 4 * mt, c + 4 * mt + 1, c + 4 * mt + 2, c + 4 * mt + 3
        A(f"v_rsq_f32 v{t}, v{v}")
        A(f"v_mul_f32 v{k1}, {f32(GC1)}, v{t}")
        A(f"v_mul_f32 v{t+1}, v{t}, v{t}")
        A(f"v_mul_f32 v{t+1}, v{t+1}, v{t}")
        A(f"v_mul_f32 v{k3}, {f32(GC2)}, v{t+1}")
    A(f"v_bfe_u32 v{vT1}, v{vLane}, 4, 1")
    A(f"v_lshlrev_b32 v{vT1}, 10, v{vT1}")
    A(f"v_lshrrev_b32 v{vT2}, 5, v{vLane}")
    A(f"v_lshl_add_u32 v{vT1}, v{vT2}, 8, v{vT1}")
    A(f"v_and_b32 v{vT2}, 15, v{vLane}")
    A(f"v_lshl_add_u32 v{vT1}, v{vT2}, 4, v{vT1}")
    n = 0
    for a in range(3):
        csa = cs + 16 * (a % 2)
        if a < 2:
            for q in range(4):
                A(f"ds_read_b128 {vr(cs+16*((a+1)%2)+4*q)}, v{vT0} offset:{(a+1)*128+q*32}")
            A("s_waitcnt lgkmcnt(4)")
        else:
            A("s_waitcnt lgkmcnt(0)")
        A(f"s_mul_i32 s{sTmp}, s{sCG}, 12")
        A(f"s_mul_i32 s{sTmp2}, s{sNW}, 3")
        A(f"s_add_u32 s{sTmp}, s{sTmp}, s{sTmp2}")
        A(f"s_add_u32 s{sTmp}, s{sTmp}, {a}")
        A(f"s_lshl_b32 s{sTmp2}, s{sRB}, 1")
        A(f"s_add_u32 s{sTmp2}, s{sTmp2}, s{sMW}")
        A(f"s_mul_i32 s{sTmp2}, s{sTmp2}, 54")
        A(f"s_lshr_b32 s{sTmp3}, s{sTmp}, 1")
        A(f"s_add_u32 s{sTmp2}, s{sTmp2}, s{sTmp3}")
        A(f"s_lshl_b32 s{sTmp2}, s{sTmp2}, 12")
        A(f"s_and_b32 s{sTmp}, s{sTmp}, 1")
        A(f"s_lshl_b32 s{sTmp}, s{sTmp}, 9")
        A(f"s_add_u32 s{sTmp}, s{sTmp}, s{sTmp2}")
        C = lambda mt, k: c + 4 * mt + k
        MP = [(mt, i) for mt in range(2) for i in range(0, 8, 2)]
        D = lambda mt: acc(mt, a)
        Tm = lambda mt: t + 8 * mt
        for mt, i in MP:
            pk_fma(A, D(mt) + i, ("b", C(mt, 0)), ("p", csa + i), ("p", D(mt) + i), neg_a=True)
        for mt, i in MP:
            pk_mul(A, Tm(mt) + i, ("p", D(mt) + i), ("p", D(mt) + i))
        for mt, i in MP:
            pk_fma(A, Tm(mt) + i, ("p", Tm(mt) + i), ("b", C(mt, 3)), ("b", C(mt, 2)))
        for mt, i in MP:
            pk_mul(A, Tm(mt) + i, ("p", Tm(mt) + i), ("p", D(mt) + i))
        for mt, i in MP:
            A(f"v_exp_f32 v{Tm(mt)+i}, v{Tm(mt)+i}")
            A(f"v_exp_f32 v{Tm(mt)+i+1}, v{Tm(mt)+i+1}")
            pk_fma(A, D(mt) + 8 + i, ("b", C(mt, 0)), ("p", csa + 8 + i), ("p", D(mt) + 8 + i), neg_a=True)
        for mt, i in MP:
            pk_fma(A, Tm(mt) + i, ("p", Tm(mt) + i), ("b", C(mt, 1)), ("b", C(mt, 1)))
        for mt, i in MP:
            A(f"v_rcp_f32 v{Tm(mt)+i}, v{Tm(mt)+i}")
            A(f"v_rcp_f32 v{Tm(mt)+i+1}, v{Tm(mt)+i+1}")
            pk_mul(A, D(mt) + i, ("p", D(mt) + i), ("p", D(mt) + 8 + i))
        for mt, i in MP:
            pk_mul(A, D(mt) + i, ("p", D(mt) + i), ("p", Tm(mt) + i))
        for mt in range(2):
            ob = D(mt) + 8
            for i in range(4):
                A(f"v_cvt_pk_bf16_f32 v{ob+i}, v{D(mt)+2*i}, v{D(mt)+2*i+1}")
            A(f"buffer_store_dwordx4 {vr(ob)}, v{vT1}, {srd(S_WS)}, s{sTmp} offen offset:{mt*2048} sc1")


acc16 = lambda t, a, kw: vACC + 32 * a + 16 * kw + 4 * t


def k1_epi_g16(A, acc):
    c = vBUF
    cs = vBUF + 16
    t = vBUF + 40
    A(f"v_lshrrev_b32 v{vT0}, 4, v{vLane}")
    A(f"v_lshlrev_b32 v{vT0}, 4, v{vT0}")
    A(f"s_mul_i32 s{sTmp}, s{sNW}, 384")
    A(f"s_add_u32 s{sTmp}, s{sTmp}, {MISC_LDS}")
    A(f"v_add_u32 v{vT0}, s{sTmp}, v{vT0}")
    A(f"v_and_b32 v{vT1}, 15, v{vLane}")
    A(f"s_lshl_b32 s{sTmp}, s{sMW}, 9")
    A(f"s_add_u32 s{sTmp}, s{sTmp}, {MISC_LDS+2048}")
    A(f"v_lshl_add_u32 v{vT1}, v{vT1}, 3, s{sTmp}")
    for m in range(4):
        A(f"ds_read_b64 {vr(c+4*m, 2)}, v{vT1} offset:{m*128}")
    for p in range(6):
        A(f"ds_read_b128 {vr(cs+4*p)}, v{vT0} offset:{p*64}")
    A("s_waitcnt lgkmcnt(6)")
    for m in range(4):
        A(f"v_rsq_f32 v{t+m}, v{c+4*m+1}")
    for m in range(4):
        A(f"v_mul_f32 v{c+4*m+2}, {f32(GC1)}, v{t+m}")
        A(f"v_mul_f32 v{t+4+m}, v{t+m}, v{t+m}")
    for m in range(4):
        A(f"v_mul_f32 v{t+4+m}, v{t+4+m}, v{t+m}")
    for m in range(4):
        A(f"v_mul_f32 v{c+4*m+3}, {f32(GC2)}, v{t+4+m}")
    A(f"v_bfe_u32 v{vT1}, v{vLane}, 4, 1")
    A(f"v_lshlrev_b32 v{vT1}, 10, v{vT1}")
    A(f"v_lshrrev_b32 v{vT2}, 5, v{vLane}")
    A(f"v_lshl_add_u32 v{vT1}, v{vT2}, 8, v{vT1}")
    A(f"v_and_b32 v{vT2}, 15, v{vLane}")
    A(f"v_lshl_add_u32 v{vT1}, v{vT2}, 4, v{vT1}")
    A("s_waitcnt lgkmcnt(0)")
    for a in range(3):
        A(f"s_mul_i32 s{sTmp}, s{sCG}, 12")
        A(f"s_mul_i32 s{sTmp2}, s{sNW}, 3")
        A(f"s_add_u32 s{sTmp}, s{sTmp}, s{sTmp2}")
        A(f"s_add_u32 s{sTmp}, s{sTmp}, {a}")
        A(f"s_lshl_b32 s{sTmp2}, s{sRB}, 1")
        A(f"s_add_u32 s{sTmp2}, s{sTmp2}, s{sMW}")
        A(f"s_mul_i32 s{sTmp2}, s{sTmp2}, 54")
        A(f"s_lshr_b32 s{sTmp3}, s{sTmp}, 1")
        A(f"s_add_u32 s{sTmp2}, s{sTmp2}, s{sTmp3}")
        A(f"s_lshl_b32 s{sTmp2}, s{sTmp2}, 12")
        A(f"s_and_b32 s{sTmp}, s{sTmp}, 1")
        A(f"s_lshl_b32 s{sTmp}, s{sTmp}, 9")
        A(f"s_add_u32 s{sTmp}, s{sTmp}, s{sTmp2}")
        C = lambda m, k: c + 4 * m + k
        MP = [(m, i) for m in range(4) for i in (0, 2)]
        Gt = lambda m: acc16(m, a, 0)
        Up = lambda m: acc16(m, a, 1)
        Tm = lambda m: t + 4 * m
        cg_, cu_ = cs + 8 * a, cs + 8 * a + 4
        for m, i in MP:
            pk_fma(A, Gt(m) + i, ("b", C(m, 0)), ("p", cg_ + i), ("p", Gt(m) + i), neg_a=True)
        for m, i in MP:
            pk_mul(A, Tm(m) + i, ("p", Gt(m) + i), ("p", Gt(m) + i))
        for m, i in MP:
            pk_fma(A, Tm(m) + i, ("p", Tm(m) + i), ("b", C(m, 3)), ("b", C(m, 2)))
        for m, i in MP:
            pk_mul(A, Tm(m) + i, ("p", Tm(m) + i), ("p", Gt(m) + i))
        for m, i in MP:
            A(f"v_exp_f32 v{Tm(m)+i}, v{Tm(m)+i}")
            A(f"v_exp_f32 v{Tm(m)+i+1}, v{Tm(m)+i+1}")
            pk_fma(A, Up(m) + i, ("b", C(m, 0)), ("p", cu_ + i), ("p", Up(m) + i), neg_a=True)
        for m, i in MP:
            pk_fma(A, Tm(m) + i, ("p", Tm(m) + i), ("b", C(m, 1)), ("b", C(m, 1)))
        for m, i in MP:
            A(f"v_rcp_f32 v{Tm(m)+i}, v{Tm(m)+i}")
            A(f"v_rcp_f32 v{Tm(m)+i+1}, v{Tm(m)+i+1}")
            pk_mul(A, Gt(m) + i, ("p", Gt(m) + i), ("p", Up(m) + i))
        for m, i in MP:
            pk_mul(A, Gt(m) + i, ("p", Gt(m) + i), ("p", Tm(m) + i))
        for pr in range(2):
            ob = Up(2 * pr)
            for h in range(2):
                A(f"v_cvt_pk_bf16_f32 v{ob+2*h}, v{Gt(2*pr+h)}, v{Gt(2*pr+h)+1}")
                A(f"v_cvt_pk_bf16_f32 v{ob+2*h+1}, v{Gt(2*pr+h)+2}, v{Gt(2*pr+h)+3}")
        for pr in range(2):
            ob = Up(2 * pr)
            A(f"v_permlane16_swap_b32 v{ob}, v{ob+2}")
            A(f"v_permlane16_swap_b32 v{ob+1}, v{ob+3}")
        for pr in range(2):
            A(f"buffer_store_dwordx4 {vr(Up(2*pr))}, v{vT1}, {srd(S_WS)}, s{sTmp} offen offset:{pr*2048} sc1")


def pk(r, bc=False):
    return f"v[{r}:{r+1}]"


def pko(*bc):
    lo = ",".join("1" if b == 1 else "0" for b in bc)
    hi = ",".join("0" if b == 0 else "1" for b in bc)
    return f"op_sel:[{lo}] op_sel_hi:[{hi}]"


def opnd(x):
    k, r = x
    if k == "p":
        return pk(r), None
    return pk(r & ~1), r & 1


def pk_fma(A, d, a, b, c, neg_a=False):
    (ta, fa), (tb_, fb), (tc, fc) = opnd(a), opnd(b), opnd(c)
    n = " neg_lo:[1,0,0] neg_hi:[1,0,0]" if neg_a else ""
    A(f"v_pk_fma_f32 {pk(d)}, {ta}, {tb_}, {tc} {pko(fa, fb, fc)}{n}")


def pk_mul(A, d, a, b, op="mul"):
    (ta, fa), (tb_, fb) = opnd(a), opnd(b)
    A(f"v_pk_{op}_f32 {pk(d)}, {ta}, {tb_} {pko(fa, fb)}")


def phi_block(A, d, n, t, mu, cs, r, rl, eps):
    P = range(0, n, 2)
    for i in P:
        pk_fma(A, d + i, mu(i), cs(i), ("p", d + i), neg_a=True)
    for i in P:
        pk_mul(A, t + i, ("p", d + i), rl(i))
    for i in P:
        A(f"v_exp_f32 v{t+i}, v{t+i} clamp")
        A(f"v_exp_f32 v{t+i+1}, v{t+i+1} clamp")
        pk_fma(A, d + i, ("p", d + i), r(i), ("b", eps))
    for i in range(n):
        A(f"v_max_f32 v{d+i}, v{d+i}, v{eps}")
    for i in P:
        pk_mul(A, d + i, ("p", d + i), ("p", t + i), op="add")


def k1_epi_q(A, acc):
    c = vBUF
    cs = vBUF + 8
    t = vBUF + 40
    o = vBUF + 56
    mu, r, rl, eps = c, c + 1, c + 2, c + 3
    A(f"v_lshrrev_b32 v{vT0}, 5, v{vLane}")
    A(f"v_lshlrev_b32 v{vT0}, 4, v{vT0}")
    A(f"s_mul_i32 s{sTmp}, s{sNW}, 640")
    A(f"s_add_u32 s{sTmp}, s{sTmp}, {MISC_LDS}")
    A(f"v_add_u32 v{vT0}, s{sTmp}, v{vT0}")
    A(f"v_and_b32 v{vT1}, 31, v{vLane}")
    A(f"s_lshl_b32 s{sTmp}, s{sMW}, 8")
    A(f"s_add_u32 s{sTmp}, s{sTmp}, {MISC_LDS+2048}")
    A(f"v_lshl_add_u32 v{vT1}, v{vT1}, 3, s{sTmp}")
    A(f"ds_read_b64 {vr(mu, 2)}, v{vT1}")
    for q in range(4):
        A(f"ds_read_b128 {vr(cs+4*q)}, v{vT0} offset:{q*32}")
    A("s_waitcnt lgkmcnt(4)")
    A(f"v_rsq_f32 v{r}, v{r}")
    A(f"v_mov_b32 v{eps}, {f32(1e-6)}")
    A(f"v_mul_f32 v{rl}, {f32(LOG2E)}, v{r}")
    A(f"v_bfe_u32 v{vT1}, v{vLane}, 4, 1")
    A(f"v_lshlrev_b32 v{vT1}, 10, v{vT1}")
    A(f"v_lshrrev_b32 v{vT2}, 5, v{vLane}")
    A(f"v_lshl_add_u32 v{vT1}, v{vT2}, 8, v{vT1}")
    A(f"v_and_b32 v{vT2}, 15, v{vLane}")
    A(f"v_lshl_add_u32 v{vT1}, v{vT2}, 4, v{vT1}")
    A(f"s_lshl_b32 s{sTmp}, s{sRB}, 1")
    A(f"s_lshr_b32 s{sTmp2}, s{sMW}, 1")
    A(f"s_add_u32 s{sTmp}, s{sTmp}, s{sTmp2}")
    A(f"s_mul_i32 s{sTmp}, s{sTmp}, 20")
    A(f"s_sub_u32 s{sTmp2}, s{sCG}, 13")
    A(f"s_mul_i32 s{sTmp2}, s{sTmp2}, 10")
    A(f"s_add_u32 s{sTmp}, s{sTmp}, s{sTmp2}")
    A(f"s_mul_i32 s{sTmp2}, s{sNW}, 5")
    A(f"s_add_u32 s{sTmp}, s{sTmp}, s{sTmp2}")
    A(f"s_lshl_b32 s{sTmp}, s{sTmp}, 12")
    A(f"s_and_b32 s{sTmp2}, s{sMW}, 1")
    A(f"s_lshl_b32 s{sTmp2}, s{sTmp2}, 11")
    A(f"s_add_u32 s{sTmp}, s{sTmp}, s{sTmp2}")
    A(f"s_add_u32 s{sTmp}, s{sTmp}, {WS_PQ}")
    for a in range(5):
        csa = cs + 16 * (a % 2)
        if a < 4:
            for q in range(4):
                A(f"ds_read_b128 {vr(cs+16*((a+1)%2)+4*q)}, v{vT0} offset:{(a+1)*128+q*32}")
            A("s_waitcnt lgkmcnt(4)")
        else:
            A("s_waitcnt lgkmcnt(0)")
        d = acc(0, a)
        phi_block(A, d, 16, t, lambda i: ("b", mu), lambda i: ("p", csa + i), lambda i: ("b", r), lambda i: ("b", rl), eps)
        ob = o + 8 * (a % 2)
        for i in range(8):
            A(f"v_cvt_pk_bf16_f32 v{ob+i}, v{d+2*i}, v{d+2*i+1}")
        A(f"buffer_store_dwordx4 {vr(ob)}, v{vT1}, {srd(S_WS)}, s{sTmp} offen sc1")
        A(f"buffer_store_dwordx4 {vr(ob+4)}, v{vT1}, {srd(S_WS)}, s{sTmp} offen offset:512 sc1")
        A(f"s_add_u32 s{sTmp}, s{sTmp}, 4096")


KV_PAIRS = [(0, 2), (0, 3), (1, 3), (1, 4), (2, 4)]
KV_Q = [[0, 1, 2], [0, 1, 2, 3], [0, 1, 2, 3], [1, 2, 3], [0, 1]]
KV_AD = 232
KV_SLAB = [0, 14336, 135168, 149504]
KV_DUMMY = 28688


def kv_addr_setup(A):
    e, he, d0, dm = vT0, vT1, vT2, vT3
    t = vBUF + 24
    A(f"s_mul_i32 s{sTmp3}, s{sMW}, 14336")
    A(f"s_cmp_ge_u32 s{sMW}, 2")
    A(f"s_cselect_b32 s{sTmp}, {135168 - 2*14336}, 0")
    A(f"s_add_u32 s{sTmp3}, s{sTmp3}, s{sTmp}")
    A(f"s_mul_i32 s{sTmp}, s{sNW}, 6720")
    A(f"s_add_u32 s{sTmp3}, s{sTmp3}, s{sTmp}")
    A(f"v_lshlrev_b32 v{dm}, 4, v{vLane}")
    A(f"v_add_u32 v{dm}, {KV_DUMMY}, v{dm}")
    A(f"v_lshrrev_b32 v{d0}, 5, v{vLane}")
    A(f"v_lshlrev_b32 v{d0}, 2, v{d0}")
    for n, (a, b) in enumerate(KV_PAIRS):
        A(f"v_and_b32 v{e}, 31, v{vLane}")
        A(f"v_add_u32 v{e}, {32*b - 80 + 100}, v{e}")
        A(f"v_mul_u32_u24 v{he}, 205, v{e}")
        A(f"v_lshrrev_b32 v{he}, 12, v{he}")
        A(f"v_mul_u32_u24 v{e}, 80, v{e}")
        A(f"v_add_u32 v{e}, s{sTmp3}, v{e}")
        for q in KV_Q[n]:
            a0 = KV_AD + 4 * n + q
            A(f"v_add_u32 v{a0}, {32*a + 8*q + 100}, v{d0}")
            A(f"v_mul_u32_u24 v{t}, 205, v{a0}")
            A(f"v_lshrrev_b32 v{t}, 12, v{t}")
            A(f"v_cmp_eq_u32 vcc, v{t}, v{he}")
            A(f"v_lshl_add_u32 v{a0}, v{a0}, 2, v{e}")
            A(f"v_subrev_u32 v{a0}, {80*100 + 4*100}, v{a0}")
            A(f"v_cndmask_b32 v{a0}, v{dm}, v{a0}, vcc")
    A(f"v_and_b32 v{e}, 15, v{vLane}")
    A(f"v_lshrrev_b32 v{d0}, 4, v{vLane}")
    A(f"v_lshlrev_b32 v{d0}, 2, v{d0}")
    A(f"v_lshl_add_u32 v{d0}, v{e}, 4, v{d0}")
    for a in range(3):
        az = KV_AD + 20 + a
        A(f"v_add_u32 v{az}, {32*a}, v{d0}")
        A(f"v_mul_u32_u24 v{t}, 205, v{az}")
        A(f"v_lshrrev_b32 v{t}, 12, v{t}")
        A(f"v_mul_u32_u24 v{t}, 1600, v{t}")
        A(f"v_lshl_add_u32 v{az}, v{az}, 2, v{t}")
        A(f"v_add_u32 v{az}, s{sTmp3}, v{az}")
        A(f"v_add_u32 v{az}, 1600, v{az}")
        A(f"v_cmp_gt_u32 vcc, {2 if a < 2 else 1}, v{e}")
        A(f"v_cndmask_b32 v{az}, v{dm}, v{az}, vcc")


def k1_epi_kv(A, acc):
    mu = vBUF
    rr = vBUF + 16
    rl = vBUF + 32
    t = vBUF + 48
    raw = vBUF + 48
    cs = vBUF + 80
    eps = vBUF + 86
    sv = vBUF + 64
    A(f"v_and_b32 v{vT0}, 31, v{vLane}")
    A(f"v_cmp_gt_u32 vcc, 16, v{vT0}")
    A(f"v_lshlrev_b32 v{vT0}, 2, v{vT0}")
    A(f"s_mul_i32 s{sTmp}, s{sNW}, 640")
    A(f"s_add_u32 s{sTmp}, s{sTmp}, {MISC_LDS}")
    A(f"v_add_u32 v{vT1}, s{sTmp}, v{vT0}")
    A(f"v_lshrrev_b32 v{vT2}, 5, v{vLane}")
    A(f"s_lshl_b32 s{sTmp}, s{sMW}, 8")
    A(f"s_add_u32 s{sTmp}, s{sTmp}, {MISC_LDS+2048}")
    A(f"v_lshl_add_u32 v{vT2}, v{vT2}, 5, s{sTmp}")
    for q in range(4):
        for h in range(2):
            A(f"ds_read_b128 {vr(raw+8*q+4*h)}, v{vT2} offset:{q*64+h*16}")
    for a in range(5):
        A(f"ds_read_b32 v{cs+a}, v{vT1} offset:{a*128}")
    A("s_waitcnt lgkmcnt(5)")
    for i in range(16):
        A(f"v_rsq_f32 v{rr+i}, v{raw+2*i+1}")
        A(f"v_mov_b32 v{mu+i}, v{raw+2*i}")
    for i in range(16):
        A(f"v_mul_f32 v{rl+i}, {f32(LOG2E)}, v{rr+i}")
    A(f"v_mov_b32 v{eps}, {f32(1e-6)}")
    A("s_waitcnt lgkmcnt(0)")
    op = lambda a, h: acc(0, a) + 4 * h

    def pack(a):
        d = acc(0, a)
        for i in range(8):
            A(f"v_cvt_pk_bf16_f32 v{d+i}, v{d+2*i}, v{d+2*i+1}")

    def plain(a, dst):
        d = acc(0, a)
        for i in range(0, 16, 2):
            pk_fma(A, dst + i, ("p", mu + i), ("b", cs + a), ("p", d + i), neg_a=True)
        for i in range(0, 16, 2):
            pk_mul(A, dst + i, ("p", dst + i), ("p", rr + i))

    def phi(a):
        phi_block(A, acc(0, a), 16, t, lambda i: ("p", mu + i), lambda i: ("b", cs + a), lambda i: ("p", rr + i), lambda i: ("p", rl + i), eps)
    for a in (3, 4):
        plain(a, acc(0, a))
        pack(a)
    plain(2, sv)
    phi(2)
    for i in range(16):
        A(f"v_cndmask_b32 v{acc(0,2)+i}, v{sv+i}, v{acc(0,2)+i}, vcc")
    pack(2)
    for a in (0, 1):
        phi(a)
        pack(a)
    D = lambda n: vBUF + 16 * n
    Z = lambda a: vBUF + 80 + 4 * a
    for h in range(2):
        for n, (a, b) in enumerate(KV_PAIRS):
            A(f"v_mfma_f32_32x32x16_bf16 {vr(D(n),16)}, {vr(op(a,h))}, {vr(op(b,h))}, {vr(D(n),16) if h else 0}")
        for a in range(3):
            A(f"v_mfma_f32_16x16x32_bf16 {vr(Z(a))}, {vr(op(a,h))}, {vr(vSel)}, {vr(Z(a)) if h else 0}")
    A("s_barrier")
    for n in range(5):
        for q in KV_Q[n]:
            A(f"ds_write_b128 v{KV_AD+4*n+q}, {vr(D(n)+4*q)}")
    for a in range(3):
        A(f"ds_write_b128 v{KV_AD+20+a}, {vr(Z(a))}")
    sSlab = 4
    A(f"s_sub_u32 s{sSlab}, s{sCG}, 9")
    A(f"s_mul_i32 s{sSlab}, s{sSlab}, 13440")
    A(f"s_add_u32 s{sSlab}, s{sSlab}, {WS_KVA}")
    A(f"v_lshlrev_b32 v{vT0}, 2, v0")
    A(f"v_add_u32 v{vT1}, {KV_SLAB[2]}, v{vT0}")
    A(f"v_cmp_gt_u32 vcc, {3360-6*512}, v0")
    A(f"v_mov_b32 v{vT2}, {OOB}")
    A(f"v_cndmask_b32 v{vT2}, v{vT2}, v{vT0}, vcc")
    A("s_waitcnt lgkmcnt(0)")
    A("s_barrier")
    R = vACC
    for j in range(7):
        for m in range(4):
            A(f"ds_read_b32 v{R+4*j+m}, v{vT0 if m < 2 else vT1} offset:{j*2048 + (m%2)*14336}")
        if j >= 2:
            k = j - 2
            A("s_waitcnt lgkmcnt(8)")
            kv_atomic(A, R, k, sSlab)
    for k in (5, 6):
        A(f"s_waitcnt lgkmcnt({4*(6-k)})")
        kv_atomic(A, R, k, sSlab)


def kv_atomic(A, R, k, sSlab):
    A(f"v_add_f32 v{R+4*k}, v{R+4*k}, v{R+4*k+1}")
    A(f"v_add_f32 v{R+4*k+2}, v{R+4*k+2}, v{R+4*k+3}")
    A(f"v_add_f32 v{R+4*k}, v{R+4*k}, v{R+4*k+2}")
    A(f"buffer_atomic_add_f32 v{R+4*k}, v{vT0 if k < 6 else vT2}, {srd(S_WS)}, s{sSlab} offen offset:{(k%2)*2048}")
    if k % 2 == 1:
        A(f"s_add_u32 s{sSlab}, s{sSlab}, 4096")


def k1_aux(A):
    if OPT["CODEWARM"] == 1:
        A("s_getpc_b64 s[10:11]")
        A.label("L_pc")
        A(f"s_sub_u32 s10, s10, L_pc-{NAME}_kernel")
        A("s_subb_u32 s11, s11, 0")
        A(f"v_lshlrev_b32 v{vT0}, 7, v0")
        A(f"v_min_u32 v{vT0}, L_code_end-{NAME}_kernel-4, v{vT0}")
        A(f"global_load_dword v{vACC+8}, v{vT0}, s[10:11]")
    if OPT["TLBWARM"]:
        g = OPT["TLBWARM"]
        mk_srd(A, S_T, P_OUT, 2048 * 1280)
        A(f"v_lshlrev_b32 v{vT0}, {g}, v0")
        A(f"buffer_load_dword v{vACC+9}, v{vT0}, {srd(S_WS)}, 0 offen sc1")
        A(f"buffer_load_dword v{vACC+10}, v{vT0}, {srd(S_T)}, 0 offen sc1")
    for i in range(4):
        A(f"v_mov_b32 v{vACC+i}, 0")
    A(f"v_lshlrev_b32 v{vT0}, 4, v0")
    A(f"s_mul_i32 s{sTmp}, s{sRB}, 3360")
    A(f"s_add_u32 s{sTmp}, s{sTmp}, {WS_KVA}")
    A(f"v_add_u32 v{vT0}, s{sTmp}, v{vT0}")
    A(f"v_mov_b32 v{vT2}, {OOB}")
    A(f"v_cmp_gt_u32 vcc, 210, v0")
    A(f"v_cndmask_b32 v{vT0}, v{vT2}, v{vT0}, vcc")
    A(f"s_cmp_lg_u32 s{sWave}, 7")
    A("s_cbranch_scc1 L_A_z")
    A(f"s_lshl_b32 s{sTmp}, s{sRB}, 8")
    A(f"s_add_u32 s{sTmp}, s{sTmp}, {WS_FL}")
    A(f"v_writelane_b32 v{vT0}, s{sTmp}, 0")
    A(f"s_add_u32 s{sTmp}, s{sTmp}, {FL_ROW}")
    A(f"v_writelane_b32 v{vT0}, s{sTmp}, 3")
    A(f"s_lshl_b32 s{sTmp}, s{sRB}, 9")
    A(f"s_add_u32 s{sTmp}, s{sTmp}, {WS_FL + FL_KV}")
    A(f"v_writelane_b32 v{vT0}, s{sTmp}, 1")
    A(f"s_add_u32 s{sTmp}, s{sTmp}, 256")
    A(f"v_writelane_b32 v{vT0}, s{sTmp}, 2")
    A.label("L_A_z")
    A(f"buffer_store_dwordx4 {vr(vACC)}, v{vT0}, {srd(S_WS)}, 0 offen sc1")
    A(f"s_cmp_lg_u32 s{sWave}, 7")
    A("s_cbranch_scc1 L_A_z2")
    A("s_waitcnt vmcnt(0)")
    A(f"v_mov_b32 v{vT0}, {OOB}")
    A(f"v_writelane_b32 v{vT0}, 0, 0")
    A(f"v_mov_b32 v{vT1}, 1")
    A(f"buffer_atomic_add v{vT1}, v{vT0}, {srd(S_DBG)}, 0 offen sc1")
    A.label("L_A_z2")
    A(f"s_lshl_b32 s{sUw}, s{sRB}, 3")
    A(f"s_add_u32 s{sUw}, s{sUw}, s{sWave}")
    A(f"s_add_u32 s{sUw}, s{sUw}, 480")
    A(f"s_mul_i32 s{sUl}, s{sWave}, 12288")
    for i in range(3):
        A(f"s_add_u32 s{sU}, s{sUw}, {128*i}")
        A(f"s_add_u32 s9, s{sUl}, {4096*i}")
        w2_unit_dma(A, "s9")
    A("s_waitcnt vmcnt(12)")
    k1_stats(A, "X")
    for i in range(3):
        A("s_waitcnt vmcnt(9)")
        A(f"s_add_u32 s{sU}, s{sUw}, {128*i}")
        A(f"s_add_u32 s9, s{sUl}, {4096*i}")
        w2_unit_out(A, "s9", lambda t: vACC + 16 + 16 * i + 4 * t)
    A("s_waitcnt vmcnt(0)")
    A("s_barrier")
    stamp(A, 9, 0)
    A(f"s_cmp_lg_u32 s{sWave}, 0")
    A("s_cbranch_scc1 L_A_w")
    k1_publish(A)
    A(f"s_mov_b32 s{sSpin}, 0")
    wait_zeroed(A, "L_A_wz", False)
    poll_addr(A)
    A.label("L_A_poll")
    A("s_sleep 32")
    A(f"buffer_load_dword v{vPoll}, v{vPa}, {srd(S_WS)}, 0 offen sc1")
    A("s_waitcnt vmcnt(0)")
    poll_cmp(A)
    A(f"s_add_u32 s{sSpin}, s{sSpin}, 1")
    A(f"s_cmp_gt_u32 s{sSpin}, {SPIN_MAX}")
    A("s_cbranch_scc1 L_A_w")
    A(f"s_cmp_lg_u64 vcc, 0")
    A("s_cbranch_scc1 L_A_poll")
    A.label("L_A_w")
    A("s_barrier")
    stamp(A, 3, 0)
    p2_ids(A)
    A(f"s_mov_b32 s{sWoDone}, 0")
    A(f"v_mov_b32 v{vSigA}, {OOB}")
    A(f"v_mov_b32 v{vSigV}, 0")
    A("s_branch L_p2")


def kernel1(A):
    A(".p2align 8")
    A.label(NAME + "_kernel")
    A("s_cmp_ge_u32 s2, 256")
    A("s_cbranch_scc1 L_k1_exit")
    if OPT["XMAP"]:
        A("s_lshr_b32 s3, s2, 5")
        A("s_and_b32 s2, s2, 31")
        A("s_lshl_b32 s2, s2, 3")
        A("s_or_b32 s2, s2, s3")
    load_ptrs(A)
    if OPT["CODEWARM"] == 2:
        A("s_getpc_b64 s[10:11]")
        A.label("L_pc")
        A(f"s_sub_u32 s10, s10, L_pc-{NAME}_kernel")
        A("s_subb_u32 s11, s11, 0")
        A("s_lshr_b32 s4, s2, 3")
        A("s_lshl_b32 s4, s4, 7")
        A(f"v_lshl_add_u32 v{vT0}, v0, 12, s4")
        A(f"v_min_u32 v{vT0}, L_code_end-{NAME}_kernel-4, v{vT0}")
        A("v_cmp_gt_u32 vcc, 16, v0")
        A("s_and_saveexec_b64 s[12:13], vcc")
        A("s_cbranch_execz L_nocw")
        A(f"global_load_dword v255, v{vT0}, s[10:11]")
        A.label("L_nocw")
        A("s_mov_b64 exec, s[12:13]")
    A(f"v_and_b32 v{vLane}, 63, v0")
    A(f"v_lshrrev_b32 v{vT0}, 6, v0")
    A(f"v_readfirstlane_b32 s{sWave}, v{vT0}")
    A("s_and_b32 s3, s2, 7")
    A("s_lshr_b32 s4, s2, 3")
    A("s_lshr_b32 s5, s3, 2")
    A("s_and_b32 s6, s3, 3")
    A("s_mul_i32 s7, s6, 30")
    A("s_add_u32 s7, s7, s4")
    A(f"s_lshr_b32 s{sCG}, s7, 3")
    if OPT["CGPERM"]:
        perm = [0, 9, 1, 13, 2, 10, 3, 4, 5, 11, 6, 14, 7, 12, 8, 15]
        tab = sum(p << (4 * i) for i, p in enumerate(perm))
        A(f"s_mov_b32 s10, {tab & 0xffffffff}")
        A(f"s_mov_b32 s11, {tab >> 32}")
        A(f"s_lshl_b32 s{sCG}, s{sCG}, 2")
        A(f"s_lshr_b64 s[10:11], s[10:11], s{sCG}")
        A(f"s_and_b32 s{sCG}, s10, 15")
    A(f"s_and_b32 s{sRB}, s7, 7")
    A("s_lshl_b32 s8, s6, 1")
    A("s_add_u32 s8, s8, s4")
    A("s_sub_u32 s8, s8, 30")
    A("s_cmp_lt_u32 s4, 30")
    A(f"s_cselect_b32 s{sCG}, s{sCG}, 15")
    A(f"s_cselect_b32 s{sRB}, s{sRB}, s8")
    A("s_lshl_b32 s5, s5, 3")
    A(f"s_add_u32 s{sRB}, s{sRB}, s5")
    A(f"s_and_b32 s3, s{sRB}, 7")
    A("s_lshr_b32 s4, s3, 2")
    A(f"s_add_u32 s{sC0}, s3, s4")
    A(f"s_lshr_b32 s4, s{sRB}, 3")
    A(f"s_add_u32 s{sC0}, s{sC0}, s4")
    A("s_waitcnt lgkmcnt(0)")
    mk_srd(A, S_X, P_X, 2048 * 1280)
    mk_srd(A, S_WS, P_WS, WS_SIZE)
    mk_srd(A, S_DBG, P_DBG, 256)
    stamp(A, 0, 0)
    if OPT["P2ONLY"]:
        p2_ids(A)
        A(f"s_mov_b32 s{sWoDone}, 0")
        A(f"v_mov_b32 v{vSigA}, {OOB}")
        A(f"v_mov_b32 v{vSigV}, 0")
        A("s_branch L_p2")
    k1_stats_issue(A)
    A(f"s_cmp_eq_u32 s{sCG}, 15")
    A("s_cbranch_scc1 L_aux")
    A(f"v_lshrrev_b32 v{vT0}, 3, v{vLane}")
    A(f"v_lshrrev_b32 v{vT1}, 4, v{vLane}")
    A(f"v_and_b32 v{vT2}, 7, v{vLane}")
    A(f"v_xor_b32 v{vT1}, v{vT1}, v{vT2}")
    if OPT["NOSWZ"]: A(f"v_and_b32 v{vT1}, 7, v{vLane}")
    A(f"s_lshl_b32 s3, s{sRB}, 7")
    if OPT["SAME"]: A("s_mov_b32 s3, 0")
    A(f"s_and_b32 s4, s{sWave}, 3")
    A(f"s_lshl_b32 s{sXslot}, s4, 12")
    A(f"s_lshl_b32 s4, s4, 5")
    A("s_add_u32 s3, s3, s4")
    A(f"v_add_u32 v{vT0}, s3, v{vT0}")
    A(f"v_mul_u32_u24 v{vT0}, 1280, v{vT0}")
    A(f"v_lshl_add_u32 v{vXo}, v{vT1}, 4, v{vT0}")
    A(f"v_xor_b32 v{vT1}, 4, v{vT1}")
    A(f"v_lshl_add_u32 v{vXo+1}, v{vT1}, 4, v{vT0}")
    A(f"v_add_u32 v{vXo+1}, {8*1280}, v{vXo+1}")
    A(f"s_lshl_b32 s{sKX}, s{sC0}, 7")
    A(f"s_mov_b32 s{sKXn}, 0")
    A(f"s_cmp_ge_u32 s{sCG}, 13")
    A("s_cbranch_scc1 L_typeQ")
    A(f"s_cmp_ge_u32 s{sCG}, 9")
    A("s_cbranch_scc1 L_typeK")
    k1_gemm(A, "G")
    A.label("L_typeQ")
    k1_gemm(A, "Q")
    A.label("L_typeK")
    k1_gemm(A, "K")
    A.label("L_aux")
    k1_aux(A)
    phase2(A)
    A.label("L_k1_exit")
    A("s_endpgm")
    A.label("L_code_end")


sRB64, sC, sHo, sWo, sFl, sWoDone, sWoL, sWoG, sWoI, sHb, sHe, sWb, sWe = sKW, sKWn, sKX, sKXn, sWslot, sRslot, sXslot, sStepW, sCSit, sSpec, sWrapW, sC0, sRow
vL16 = 5


def p2_ids(A):
    A("s_and_b32 s3, s2, 7")
    A("s_lshr_b32 s4, s2, 3")
    A(f"s_and_b32 s{sC}, s4, 7")
    A("s_lshr_b32 s4, s4, 3")
    A("s_lshl_b32 s3, s3, 2")
    A(f"s_add_u32 s{sRB64}, s3, s4")
    if OPT["P2SAME"] == 1:
        A(f"s_and_b32 s{sRB64}, s{sRB64}, 1")
        A(f"s_and_b32 s{sC}, s{sC}, 1")
    if OPT["P2SAME"] == 2:
        A(f"s_and_b32 s{sC}, s{sC}, 3")
    A(f"v_lshlrev_b32 v{vL16}, 4, v{vLane}")


WO_LDS = 32768


def wo_early(A, first, per_wave):
    A("s_lshr_b32 s4, s2, 3")
    A("s_and_b32 s4, s4, 7")
    A(f"s_mul_i32 s4, s4, {74*5120}")
    A(f"s_and_b32 s5, s{sWave}, 3")
    A(f"s_mul_i32 s5, s5, {per_wave*1024}")
    A("s_add_u32 s4, s4, s5")
    A(f"s_add_u32 s4, s4, {WS_W2 + 54*5120 + first*1024}")
    A(f"s_add_u32 s5, s5, {WO_LDS + first*1024}")
    A(f"v_lshlrev_b32 v{vT0}, 4, v{vLane}")
    for i in range(per_wave):
        if i % 4 == 0:
            A(f"s_add_u32 m0, s5, {i*1024}")
            A(f"s_add_u32 s6, s4, {i*1024}")
        A(f"buffer_load_dwordx4 v{vT0}, {srd(S_WS)}, s6 offen offset:{(i%4)*1024} sc1 lds")


def wo_setup(A):
    A(f"s_mul_i32 s{sWoL}, s{sWave}, 25600")
    A(f"s_add_u32 s{sWoL}, s{sWoL}, {WO_LDS}")
    A(f"s_mul_i32 s6, s{sC}, 74")
    A(f"s_mul_i32 s7, s{sWave}, 5")
    A("s_add_u32 s6, s6, s7")
    A("s_add_u32 s6, s6, 54")
    A("s_mul_i32 s6, s6, 5120")
    A(f"s_add_u32 s{sWoG}, s6, {WS_W2}")
    A(f"s_and_b32 s{sWoI}, s{sRB64}, 3")
    A(f"s_mul_i32 s{sWoI}, s{sWoI}, {6*1024}")


def wo_dmas():
    return [f"s_add_u32 m0, s{sWoL}, s{sWoI}\n"
            f"s_add_u32 s9, s{sWoG}, s{sWoI}\n"
            f"buffer_load_dwordx4 v{vL16}, {srd(S_WS)}, s9 offen sc1 lds\n"
            f"s_add_u32 s{sWoI}, s{sWoI}, 1024\n"
            f"s_cmp_eq_u32 s{sWoI}, {25*1024}\n"
            f"s_cselect_b32 s{sWoI}, 0, s{sWoI}" for _ in range(25)]


NK, WD, HD = 14, 6, 3
q4 = lambda a, b: list(range(a, b, 4))
WQ = q4(8, 56) + q4(128, 152) + q4(248, 256) + q4(112, 128) + q4(152, 168) + q4(200, 208)
AQ = q4(88, 112) + q4(168, 192) + q4(56, 88)
HQ = q4(192, 200) + q4(208, 248)
assert len(WQ) == 30 and len(AQ) == 20 and len(HQ) == 12 and len(set(WQ + AQ + HQ)) == 62
sLast = sOdd


def ffn_setup(A):
    A(f"s_sub_u32 s3, s{sWave}, 4")
    A("s_mul_i32 s4, s3, 14")
    A("s_cmp_eq_u32 s3, 3")
    A("s_cselect_b32 s5, 1, 0")
    A("s_sub_u32 s4, s4, s5")
    A("s_cmp_ge_u32 s3, 2")
    A("s_cselect_b32 s5, 13, 14")
    A(f"s_cselect_b32 s{sLast}, {OOB}, 0")
    A(f"s_and_b32 s6, s{sRB64}, 3")
    A("s_lshl_b32 s6, s6, 1")
    A(f"s_add_u32 s6, s6, s{sC}")
    A("s_mul_i32 s6, s6, 7")
    A("s_lshr_b32 s6, s6, 2")
    A("s_sub_u32 s7, s6, s5")
    A("s_cmp_ge_u32 s6, s5")
    A("s_cselect_b32 s6, s7, s6")
    if not OPT["P2ROT"]:
        A("s_mov_b32 s6, 0")
    A(f"s_mul_i32 s{sHb}, s{sRB64}, 54")
    A(f"s_add_u32 s{sHb}, s{sHb}, s4")
    A(f"s_lshl_b32 s{sHb}, s{sHb}, 12")
    A("s_lshl_b32 s7, s5, 12")
    A(f"s_add_u32 s{sHe}, s{sHb}, s7")
    A("s_lshl_b32 s7, s6, 12")
    A(f"s_add_u32 s{sHo}, s{sHb}, s7")
    A(f"s_mul_i32 s{sWb}, s{sC}, 74")
    A(f"s_add_u32 s{sWb}, s{sWb}, s4")
    A(f"s_mul_i32 s{sWb}, s{sWb}, 5120")
    A(f"s_add_u32 s{sWb}, s{sWb}, {WS_W2}")
    A("s_mul_i32 s7, s5, 5120")
    A(f"s_add_u32 s{sWe}, s{sWb}, s7")
    A("s_mul_i32 s7, s6, 5120")
    A(f"s_add_u32 s{sWo}, s{sWb}, s7")


def ldW_groups(j):
    out = []
    pre = f"s_add_u32 s{sWo}, s{sWo}, s{sLast}\n" if j == NK - 1 else ""
    for nt in range(4):
        out.append((pre if nt == 0 else "") +
                   f"buffer_load_dwordx4 {vr(WQ[5*(j%WD)+nt])}, v{vL16}, {srd(S_WS)}, s{sWo} offen offset:{nt*1024}{HSC}")
    out.append(f"s_add_u32 s3, s{sWo}, 4096\n"
               f"buffer_load_dwordx4 {vr(WQ[5*(j%WD)+4])}, v{vL16}, {srd(S_WS)}, s3 offen{HSC}\n"
               f"s_add_u32 s{sWo}, s{sWo}, 5120\n"
               f"s_cmp_eq_u32 s{sWo}, s{sWe}\n"
               f"s_cselect_b32 s{sWo}, s{sWb}, s{sWo}")
    return out


def poll_flag(A, lab, addr_s, mask, target, vtmp):
    A(f"s_mov_b32 s{sSpin}, 0")
    A(f"v_mov_b32 v{vtmp+1}, 0")
    A.label(lab)
    A(f"buffer_load_dword v{vtmp}, v{vtmp+1}, {srd(S_WS)}, s{addr_s} offen sc1")
    A("s_waitcnt vmcnt(0)")
    A(f"v_readfirstlane_b32 s{sTmp3}, v{vtmp}")
    A(f"s_add_u32 s{sSpin}, s{sSpin}, 1")
    A(f"s_and_b32 s{sTmp3}, s{sTmp3}, {mask}")
    A(f"s_cmp_ge_u32 s{sTmp3}, {0 if OPT['P2ONLY'] else target}")
    A(f"s_cbranch_scc1 {lab}_ok")
    A(f"s_cmp_gt_u32 s{sSpin}, {SPIN_MAX}")
    A(f"s_cbranch_scc1 {lab}_ok")
    A(f"s_sleep {OPT['PSLEEP']}")
    A(f"s_branch {lab}")
    A.label(lab + "_ok")


def phase2(A):
    S_OUT = S_T
    ACC = 8
    acc = lambda nt, mt: ACC + 4 * (nt * 4 + mt)
    A.label("L_p2")
    mk_srd(A, S_OUT, P_OUT, 2048 * 1280)
    A(f"s_lshr_b32 s{sFl}, s{sRB64}, 1")
    A(f"s_lshl_b32 s{sFl}, s{sFl}, 8")
    A(f"s_add_u32 s{sFl}, s{sFl}, {WS_FL + FL_HC}")
    A.fence()
    A(f"s_cmp_ge_u32 s{sWave}, 4")
    A("s_cbranch_scc1 L2_ffn")

    def signal(n_younger):
        A(f"s_waitcnt vmcnt({n_younger}) lgkmcnt(0)")
        A("s_barrier")

    XR, OA, RA = 232, 238, 241

    def red_setup(A, ta, tb):
        for j in range(3):
            A(f"s_add_u32 s11, s{sWave}, {8*j}")
            A(f"s_lshr_b32 s12, s11, 2")
            A(f"s_and_b32 s13, s11, 3")
            A(f"s_lshl_b32 s14, s{sRB64}, 6")
            A(f"s_lshl_b32 s13, s13, 4")
            A("s_add_u32 s14, s14, s13")
            A("s_mul_i32 s14, s14, 1280")
            A(f"s_mul_i32 s15, s{sC}, 160")
            A("s_add_u32 s14, s14, s15")
            A("s_lshl_b32 s12, s12, 5")
            A("s_add_u32 s14, s14, s12")
            A("s_cmp_lt_u32 s11, 20")
            A(f"s_cselect_b32 s14, s14, {OOB}")
            A(f"v_and_b32 v{ta}, 15, v{vLane}")
            A(f"v_mul_u32_u24 v{ta}, 1280, v{ta}")
            A(f"v_lshrrev_b32 v{tb}, 4, v{vLane}")
            A(f"v_lshl_add_u32 v{ta}, v{tb}, 3, v{ta}")
            A(f"v_add_u32 v{OA+j}, s14, v{ta}")
            A(f"buffer_load_dwordx2 {vr(XR+2*j, 2)}, v{OA+j}, {srd(S_X)}, 0 offen")
            A("s_lshl_b32 s12, s11, 10")
            A(f"s_add_u32 s13, s12, {WO_LDS+5120}")
            A(f"v_add_u32 v{RA+5*j}, s13, v{vL16}")
            for f in range(4):
                A(f"s_add_u32 s13, s12, {KV_SLAB[f]}")
                A(f"s_add_u32 s14, s12, {WO_LDS + f*25600 - 14*1024}")
                A("s_cmp_lt_u32 s11, 14")
                A("s_cselect_b32 s13, s13, s14")
                A("s_cmp_lt_u32 s11, 19")
                A(f"s_cselect_b32 s13, s13, {28672 + f*1024}")
                A(f"v_add_u32 v{RA+5*j+1+f}, s13, v{vL16}")

    AD = 8
    RAW, NRAW = 56, 6
    FR = 80
    OSP = 96
    PQ = lambda mt, blk: 112 + 16 * blk + 4 * mt
    O = lambda u, mt: (OSP + 4 * mt) if u == 0 else PQ(mt, u - 1)
    DEN = 192
    NM = 224
    T = 192
    A(f"s_mul_i32 s8, s{sWave}, 14336")
    A(f"s_cmp_ge_u32 s{sWave}, 2")
    A(f"s_cselect_b32 s9, {135168 - 2*14336}, 0")
    A("s_add_u32 s8, s8, s9")
    for i in range(4):
        A(f"v_mov_b32 v{T+i}, 0")
    A(f"s_add_u32 s9, s8, 13440")
    A(f"v_mov_b32 v{vT2}, s9")
    A(f"ds_write_b128 v{vT2}, {vr(T)}")
    A(f"ds_write_b32 v{vT2}, v{T} offset:16")
    signal(0)
    A(f"s_cmp_lg_u32 s{sWave}, 0")
    A("s_cbranch_scc1 L2_nosig")
    A(f"buffer_atomic_add v{vSigV}, v{vSigA}, {srd(S_WS)}, 0 offen sc1")
    A.label("L2_nosig")
    stamp(A, 0, 1)
    if OPT["NOATT"]:
        A("s_branch L2_reduce")
    A(f"s_cmp_lg_u32 s{sWoDone}, 0")
    A("s_cbranch_scc1 L2_wodone")
    wo_setup(A)
    for g in wo_dmas():
        A(g)
    A.label("L2_wodone")
    A(f"s_mul_i32 s4, s{sWave}, 25600")
    A(f"s_add_u32 s4, s4, {WO_LDS}")
    iL, gL = T + 4, T + 5
    he = T + 12
    hd = T + 22
    ab, zb, hz = T + 6, T + 7, T + 8
    A(f"v_and_b32 v{iL}, 15, v{vLane}")
    A(f"v_lshrrev_b32 v{gL}, 4, v{vLane}")
    for Tt in range(10):
        A(f"v_add_u32 v{he+Tt}, {16*Tt}, v{iL}")
        A(f"v_mul_u32_u24 v{he+Tt}, 205, v{he+Tt}")
        A(f"v_lshrrev_b32 v{he+Tt}, 12, v{he+Tt}")
    for blk in range(5):
        for h in range(2):
            r = hd + 2 * blk + h
            A(f"v_lshlrev_b32 v{r}, 3, v{gL}")
            A(f"v_add_u32 v{r}, {32*blk+4*h}, v{r}")
            A(f"v_mul_u32_u24 v{r}, 205, v{r}")
            A(f"v_lshrrev_b32 v{r}, 12, v{r}")
    A(f"v_mul_u32_u24 v{ab}, 80, v{iL}")
    A(f"v_lshl_add_u32 v{ab}, v{gL}, 5, v{ab}")
    A(f"v_add_u32 v{ab}, s8, v{ab}")
    A(f"v_and_b32 v{hz}, 3, v{iL}")
    A(f"v_mul_u32_u24 v{zb}, 1600, v{hz}")
    A(f"v_lshl_add_u32 v{zb}, v{gL}, 5, v{zb}")
    A(f"v_add_u32 v{zb}, s8, v{zb}")
    NUM = {0: [0], 1: [0, 1], 2: [0, 1], 3: [1, 2], 4: [1, 2], 5: [2, 3], 6: [2, 3], 7: [3, 4], 8: [3, 4], 9: [4]}
    frs = []
    for ch in range(2):
        A(f"v_add_u32 v{T+9}, {4*ch}, v{hz}")
        bl = [0, 1, 2] if ch == 0 else [2, 3, 4]
        for blk in bl:
            n = len(frs)
            frs.append(("z", ch, blk, blk == bl[0], blk == bl[-1]))
            for h in range(2):
                a = AD + 2 * n + h
                A(f"v_cmp_eq_u32 vcc, v{T+9}, v{hd+2*blk+h}")
                A(f"v_add_u32 v{a}, {6400*ch+1600+128*blk+16*h}, v{zb}")
                A(f"v_cndmask_b32 v{a}, v{vT2}, v{a}, vcc")
        for Tt in range(5 * ch, 5 * ch + 5):
            for blk in NUM[Tt]:
                n = len(frs)
                frs.append(("n", Tt, blk, blk == NUM[Tt][0], blk == NUM[Tt][-1]))
                for h in range(2):
                    a = AD + 2 * n + h
                    A(f"v_cmp_eq_u32 vcc, v{he+Tt}, v{hd+2*blk+h}")
                    A(f"v_add_u32 v{a}, {1280*Tt+128*blk+16*h}, v{ab}")
                    A(f"v_cndmask_b32 v{a}, v{vT2}, v{a}, vcc")
    assert len(frs) == 24
    sM = 84
    for k in range(3):
        A(f"v_cmp_lt_u32 s[{sM+2*k}:{sM+2*k+1}], {k}, v{gL}")
    stamp(A, 7, 1, vt=vT0)
    A("s_setprio 3")
    A(f"s_lshr_b32 s10, s{sWave}, 1")
    A("s_lshl_b32 s10, 0x2000, s10")
    poll_flag(A, "L2_pq", sFl, "s10", "s10", vT0)
    stamp(A, 8, 1, vt=vT0)
    A(f"s_mul_i32 s6, s{sRB64}, 20")
    A(f"s_mul_i32 s7, s{sWave}, 5")
    A("s_add_u32 s6, s6, s7")
    A("s_lshl_b32 s6, s6, 12")
    A(f"s_add_u32 s6, s6, {WS_PQ}")
    for blk in range(5):
        for mt in range(4):
            A(f"buffer_load_dwordx4 {vr(PQ(mt, blk))}, v{vL16}, {srd(S_WS)}, s6 offen offset:{mt*1024} sc1")
        A(f"s_add_u32 s6, s6, 4096")
    A(f"s_lshl_b32 s6, s{sWave}, 3")
    A("s_and_b32 s7, s2, 7")
    A("s_add_u32 s6, s6, s7")
    A("s_lshl_b32 s6, s6, 8")
    A(f"s_add_u32 s6, s6, {WS_FL + FL_KV}")
    poll_flag(A, "L2_kv", 6, 0xff, 16, vT0)
    stamp(A, 3, 1, vt=vT0)
    A(f"s_mul_i32 s3, s{sWave}, 13440")
    A(f"s_add_u32 s3, s3, {WS_KVA}")
    for i in range(14):
        if i % 4 == 0:
            A(f"s_add_u32 m0, s8, {i*1024}")
            A(f"s_add_u32 s5, s3, {i*1024}")
        if i == 13:
            A("s_mov_b64 exec, 0xff")
        A(f"buffer_load_dwordx4 v{vL16}, {srd(S_WS)}, s5 offen offset:{(i%4)*1024} sc1 lds")
    A("s_mov_b64 exec, -1")
    A(f"s_setprio {OPT['APRIO']}")
    A("s_waitcnt vmcnt(7) lgkmcnt(0)")
    stamp(A, 9, 1, vt=vT0)
    raw = lambda k: RAW + 4 * (k % NRAW)
    fr = lambda n: FR + 4 * (n % 4)
    dst = lambda f, mt: (DEN + 8 * mt + 4 * f[1]) if f[0] == "z" else (NM + 16 * (f[1] % 2) + 4 * mt)

    def rd(n):
        if n == 12:
            A("s_waitcnt vmcnt(0)")
        for h in range(2):
            A(f"ds_read_b128 {vr(raw(2*n+h))}, v{AD+2*n+h}")

    def post(f):
        out = []
        if f[0] == "z":
            for mt in range(4):
                for i in range(4):
                    r = DEN + 8 * mt + 4 * f[1] + i
                    out.append(f"v_add_f32 v{r}, {f32(1e-6)}, v{r}")
            for mt in range(4):
                for i in range(4):
                    r = DEN + 8 * mt + 4 * f[1] + i
                    out.append(f"v_rcp_f32 v{r}, v{r}")
            return out
        Tt = f[1]
        lo, hi = (4 * Tt) // 5, (4 * Tt + 3) // 5
        sl = {}
        for mt in range(4):
            if lo == hi:
                sl[mt] = DEN + 8 * mt + lo
            else:
                thr = 5 * hi - 4 * Tt
                sl[mt] = AD + mt
                out.append(f"v_cndmask_b32 v{sl[mt]}, v{DEN+8*mt+lo}, v{DEN+8*mt+hi}, s[{sM+2*(thr-1)}:{sM+2*(thr-1)+1}]")
        for mt in range(4):
            d = dst(f, mt)
            for i in range(4):
                out.append(f"v_mul_f32 v{d+i}, v{d+i}, v{sl[mt]}")
        for mt in range(4):
            d = dst(f, mt)
            ob = O(Tt // 2, mt) + 2 * (Tt % 2)
            out.append(f"v_cvt_pk_bf16_f32 v{ob}, v{d}, v{d+1}")
            out.append(f"v_cvt_pk_bf16_f32 v{ob+1}, v{d+2}, v{d+3}")
        return out
    rd(0)
    rd(1)
    pend = []
    nxt = []
    for n in range(26):
        if n + 2 < 24:
            rd(n + 2)
        cv = []
        if n < 24:
            A(f"s_waitcnt lgkmcnt({2*min(2, 23-n)})")
            for h in range(2):
                cv.append(f"v_cvt_pk_bf16_f32 v{fr(n)+2*h}, v{raw(2*n+h)}, v{raw(2*n+h)+1}")
                cv.append(f"v_cvt_pk_bf16_f32 v{fr(n)+2*h+1}, v{raw(2*n+h)+2}, v{raw(2*n+h)+3}")
        mf = []
        if 1 <= n <= 24:
            f = frs[n - 1]
            if f[3] and f[0] == "n":
                need = [x for x in pend if x[0] <= f[1] - 2]
                for x in need:
                    A(x[1])
                pend = [x for x in pend if x[0] > f[1] - 2]
            for mt in range(4):
                d = vr(dst(f, mt))
                mf.append(f"v_mfma_f32_16x16x32_bf16 {d}, {vr(fr(n-1))}, {vr(PQ(mt, f[2]))}, {0 if f[3] else d}")
        take = pend[:14]
        pend = pend[14:]
        work = cv + [x[1] for x in take]
        for g in (interleave(mf, work) if mf else work):
            A(g)
        pend += nxt
        nxt = []
        if 1 <= n <= 24 and frs[n - 1][4]:
            f = frs[n - 1]
            nxt = [((f[1] if f[0] == "n" else 5 * f[1] - 0.5), x) for x in post(f)]
    for x in pend + nxt:
        A(x[1])
    stamp(A, 11, 1, vt=vT0)
    A(f"s_setprio {OPT['APRIO2']}")
    WF = 192
    A(f"v_add_u32 v{vT0}, s4, v{vL16}")
    A.fence()

    def rd_wo(u):
        for nt in range(5):
            A(f"ds_read_b128 {vr(WF+20*(u%2)+4*nt)}, v{vT0} offset:{(u*5+nt)*1024}")
    E = Asm()
    red_setup(E, vSigA, vSigV)
    rs = [t for _, t in E.lines]
    rd_wo(0)
    for u in range(5):
        if u + 1 < 5:
            rd_wo(u + 1)
        A(f"s_waitcnt lgkmcnt({5 if u < 4 else 0})")
        if u == 0:
            A(f"v_mov_b32 v{vT1}, 1")
            A(f"ds_write_b32 v{vT2}, v{vT1} offset:16")
        mf = []
        for nt in range(5):
            for mt in range(4):
                d = vr(acc(nt, mt))
                mf.append(f"v_mfma_f32_16x16x32_bf16 {d}, {vr(WF+20*(u%2)+4*nt)}, {vr(O(u, mt))}, {d if u else 0}")
        k = (len(rs) + 3) // 4
        for g in interleave(mf, rs[u*k:(u+1)*k]):
            A(g)
    stamp(A, 1, 1, vt=vSigA)
    A.fence()
    for t in range(20):
        A(f"ds_write_b128 v{vT0}, {vr(ACC+4*t)} offset:{5120+t*1024}")
    A("s_branch L2_reduce")

    A.label("L2_ffn")
    q = []

    def ldW(j):
        for g in ldW_groups(j):
            A(g)
        q.extend([("W", j)] * 5)

    def ldH1(j, mt):
        if j == NK - 1 and mt == 0:
            A(f"s_add_u32 s{sHo}, s{sHo}, s{sLast}")
        A(f"buffer_load_dwordx4 {vr(HQ[4*(j%HD)+mt])}, v{vL16}, {srd(S_WS)}, s{sHo} offen offset:{mt*1024}{HSC}")
        if mt == 3:
            A(f"s_add_u32 s{sHo}, s{sHo}, 4096")
            A(f"s_cmp_eq_u32 s{sHo}, s{sHe}")
            A(f"s_cselect_b32 s{sHo}, s{sHb}, s{sHo}")
        q.append(("H", j, mt))

    def ldH(j):
        for mt in range(4):
            ldH1(j, mt)
    signal(0)
    A(f"s_cmp_lg_u32 s{sWoDone}, 0")
    A("s_cbranch_scc1 L2_ws")
    ffn_setup(A)
    A.label("L2_ws")
    A(f"s_sub_u32 s10, s{sWave}, 4")
    A("s_lshl_b32 s10, s10, 1")
    A("s_lshl_b32 s10, 7, s10")
    A(f"v_mov_b32 v{vT1}, 0")
    A(f"s_cmp_gt_u32 s{sWoDone}, 1")
    A("s_cbranch_scc1 L2_w0")
    ldW(0)
    ldW(1)
    A.label("L2_w0")
    assert OPT["NPRE"] == 2
    for j in range(2, WD):
        if j == OPT["EPOLL"]:
            A(f"buffer_load_dword v{vT2}, v{vT1}, {srd(S_WS)}, s{sFl} offen sc1")
        ldW(j)
    if OPT["EPOLL"]:
        A(f"s_waitcnt vmcnt({5*(WD-OPT['EPOLL'])})")
        A(f"v_readfirstlane_b32 s{sTmp3}, v{vT2}")
        A(f"s_and_b32 s{sTmp3}, s{sTmp3}, s10")
        A(f"s_cmp_eq_u32 s{sTmp3}, s10")
        A(f"s_cbranch_scc1 L2_h_ok")
    stamp(A, 4, 1, wave=4, vt=vT0)
    poll_flag(A, "L2_h", sFl, "s10", "s10", vT0)
    stamp(A, 5, 1, wave=4, vt=vT0)
    stamp(A, 14, 1, wave=4, vt=vT0, clk=True)
    q.clear()
    for j in range(HD):
        ldH(j)
    A(f"s_setprio {OPT['FPRIO']}")
    for j in range(NK):
        for mt in range(4):
            last = max(i for i, e in enumerate(q) if e[1] == j and (e[0] == "W" or e[2] <= mt))
            A(f"s_waitcnt vmcnt({len(q)-1-last})")
            for nt in range(5):
                d = vr(AQ[nt*4+mt])
                if not OPT["NOMF"]: A(f"v_mfma_f32_16x16x32_bf16 {d}, {vr(WQ[5*(j%WD)+nt])}, {vr(HQ[4*(j%HD)+mt])}, {d if j else 0}")
            if j + HD < NK:
                ldH1(j + HD, mt)
        if j + WD < NK:
            ldW(j + WD)
    A("s_setprio 0")
    stamp(A, 6, 1, wave=4, vt=vT0)
    stamp(A, 15, 1, wave=4, vt=vT0, clk=True)
    A("s_waitcnt vmcnt(0)")
    red_setup(A, vSigA, vSigV)
    A(f"s_sub_u32 s3, s{sWave}, 4")
    A("s_mul_i32 s8, s3, 14336")
    A("s_cmp_ge_u32 s3, 2")
    A(f"s_cselect_b32 s9, {135168 - 2*14336}, 0")
    A("s_add_u32 s8, s8, s9")
    A(f"v_add_u32 v{vT0}, s8, v{vL16}")
    A("s_add_u32 s9, s8, 13456")
    A(f"v_mov_b32 v{vT2}, s9")
    A(f"s_mov_b32 s{sSpin}, 0")
    A.label("L2_wfree")
    A(f"ds_read_b32 v{vT1}, v{vT2}")
    A("s_waitcnt lgkmcnt(0)")
    A(f"v_readfirstlane_b32 s9, v{vT1}")
    A(f"s_add_u32 s{sSpin}, s{sSpin}, 1")
    A("s_cmp_eq_u32 s9, 1")
    A("s_cbranch_scc1 L2_wfree_ok")
    A(f"s_cmp_gt_u32 s{sSpin}, {SPIN_MAX*16}")
    A("s_cbranch_scc1 L2_wfree_ok")
    A("s_sleep 2")
    A("s_branch L2_wfree")
    A.label("L2_wfree_ok")
    A("s_mul_i32 s8, s3, 25600")
    A(f"s_add_u32 s8, s8, {WO_LDS}")
    A(f"v_add_u32 v{vT1}, s8, v{vL16}")
    A("s_lshl_b32 s8, s3, 10")
    A(f"v_add_u32 v{vT2}, s8, v{vL16}")
    for t in range(20):
        if t < 14:
            A(f"ds_write_b128 v{vT0}, {vr(AQ[t])} offset:{t*1024}")
        elif t < 19:
            A(f"ds_write_b128 v{vT1}, {vr(AQ[t])} offset:{(t-14)*1024}")
        else:
            A(f"ds_write_b128 v{vT2}, {vr(AQ[t])} offset:28672")

    A.label("L2_reduce")
    A("s_setprio 0")
    A("s_waitcnt lgkmcnt(0)")
    stamp(A, 12, 1, vt=vSigA)
    A("s_barrier")
    stamp(A, 13, 1, vt=vSigA)
    R = lambda j: 8 + 32 * j

    def rds(j):
        A(f"v_add_u32 v{vT0}, {2*25600}, v{RA+5*j}")
        for w in range(4):
            A(f"ds_read_b128 {vr(R(j)+4*w)}, v{RA+5*j if w < 2 else vT0} offset:{(w%2)*25600}")
        for f in range(4):
            A(f"ds_read_b128 {vr(R(j)+16+4*f)}, v{RA+5*j+1+f}")

    def fin(j):
        r = R(j)
        for st in (16, 8, 4):
            for i in range(0, st, 2):
                pk_mul(A, r + i, ("p", r + i), ("p", r + st + i), op="add")
        x0, x1 = XR + 2 * j, XR + 2 * j + 1
        A(f"v_lshlrev_b32 v{r+4}, 16, v{x0}")
        A(f"v_and_b32 v{r+5}, 0xffff0000, v{x0}")
        A(f"v_lshlrev_b32 v{r+6}, 16, v{x1}")
        A(f"v_and_b32 v{r+7}, 0xffff0000, v{x1}")
        for i in range(0, 4, 2):
            pk_mul(A, r + i, ("p", r + i), ("p", r + 4 + i), op="add")
        A(f"v_cvt_pk_bf16_f32 v{x0}, v{r}, v{r+1}")
        A(f"v_cvt_pk_bf16_f32 v{x1}, v{r+2}, v{r+3}")
        A(f"buffer_store_dwordx2 {vr(x0, 2)}, v{OA+j}, {srd(S_OUT)}, 0 offen" + ["", " sc1", " nt"][OPT["OUTSC"]])
    rds(0)
    rds(1)
    A("s_waitcnt vmcnt(0) lgkmcnt(8)")
    fin(0)
    A(f"s_cmp_ge_u32 s{sWave}, 4")
    A("s_cbranch_scc1 L2_last")
    rds(2)
    A("s_waitcnt lgkmcnt(0)")
    fin(2)
    A.label("L2_last")
    A("s_waitcnt lgkmcnt(0)")
    fin(1)
    A.label("L2_done")
    stamp(A, 2, 1, vt=vSigA)


def descriptor(name, vgpr=256):
    return f""".amdhsa_kernel {name}
  .amdhsa_next_free_vgpr {vgpr}
  .amdhsa_next_free_sgpr 102
  .amdhsa_accum_offset {vgpr}
  .amdhsa_group_segment_fixed_size 0
  .amdhsa_kernarg_size 80
  .amdhsa_user_sgpr_count 2
  .amdhsa_user_sgpr_kernarg_segment_ptr 1
  .amdhsa_system_sgpr_workgroup_id_x 1
.end_amdhsa_kernel
"""


def probe(A):
    A(".p2align 8")
    A.label("pre_kernel")
    if OPT["PROBE"] in (4, 5):
        A("s_cmp_ge_u32 s2, 64")
        A("s_cbranch_scc1 L_pre_exit")
        load_ptrs(A)
        A("s_lshr_b32 s3, s2, 3")
        A("s_lshl_b32 s3, s3, 9")
        A("v_add_u32 v1, s3, v0")
        A("v_lshlrev_b32 v1, 12, v1")
        A("s_waitcnt lgkmcnt(0)")
        lst = ((P_WS, WS_SIZE), (P_OUT, 2048*1280))
        if OPT["PROBE"] == 5:
            lst += ((P_X, 2048*1280), (P_WQKV, 640*3840), (P_WO, 640*1280), (P_G, 640*3456), (P_U, 640*3456), (P_D, 1728*1280))
        for k, (p, n) in enumerate(lst):
            mk_srd(A, 36 + 4*k, p, n)
            A(f"buffer_load_dword v{2+k}, v1, {srd(36+4*k)}, 0 offen")
        A("s_waitcnt vmcnt(0)")
        A.label("L_pre_exit")
    if OPT["PROBE"] == 2:
        A("s_cmp_ge_u32 s2, 256")
        A("s_cbranch_scc1 L_pre_exit")
        load_ptrs(A)
        A("s_lshl_b32 s3, s2, 9")
        A("v_add_u32 v1, s3, v0")
        A("v_lshlrev_b32 v1, 5, v1")
        A("s_waitcnt lgkmcnt(0)")
        for k, (p, n) in enumerate(((P_X, 2048*1280), (P_WQKV, 640*3840), (P_WO, 640*1280), (P_G, 640*3456), (P_U, 640*3456), (P_D, 1728*1280))):
            mk_srd(A, 36 + 4*k, p, n)
            A(f"buffer_load_dword v{2+k}, v1, {srd(36+4*k)}, 0 offen")
        A("s_waitcnt vmcnt(0)")
        A.label("L_pre_exit")
    A("s_endpgm")


def main():
    A = Asm()
    kernel1(A)
    K = NAME + "_kernel"
    launch = f"; @launch grid=(256,1,1) block=(512,1,1) lds={LDS_TOTAL}"
    extra = ""
    if OPT["PROBE"]:
        probe(A)
        launch = f"; @launch kernel=pre_kernel grid=(256,1,1) block=(512,1,1) lds=0\n; @launch kernel={K} grid=(256,1,1) block=(512,1,1) lds={LDS_TOTAL}"
        if OPT["PROBE"] == 3:
            launch = f"; @launch kernel={K} grid=(256,1,1) block=(512,1,1) lds={LDS_TOTAL}\n; @launch kernel={K} grid=(256,1,1) block=(512,1,1) lds={LDS_TOTAL}"
        extra = ".p2align 6\n" + descriptor("pre_kernel", 16)
    head = f"""; LN + linear attention + GEGLU FFN, one persistent launch (generated by dev/gen.py)
{launch}
.amdgcn_target "amdgcn-amd-amdhsa--gfx950"
.text
.globl {K}
.type {K},@function
"""
    tail = '.section .rodata,"a"\n.p2align 6\n' + descriptor(K) + extra
    open(sys.argv[1], "w").write(head + A.render() + tail)


main()
```

```python
import sys, struct, math
from asmlib import Asm, interleave

NAME = "parallel_sum__linear_attn_block__geglu_ffn__prompt"

OPT = dict(ROTQ=1, STAMP=0, NODMA=0, SAME=0, NOSWZ=0, NORD=0, P2ROT=1, WARM=1, PLAIN=0, BYTEFLAG=0, NBUP=6, SW=0, P2ONLY=0, P2SAME=0, NOATT=0, NOMF=0, FPRIO=1, NPRE=2, CGPERM=0, OUTSC=0, CODEWARM=2, TLBWARM=0, PUBST=0, GPK=1, APRIO=2, APRIO2=0, FINEH=1, XMAP=0, FAKE16=0, PSLEEP=2, EPOLL=0, PROBE=0, WOEPI=0, NXA=0, XPOS=1, G16=1, DLY=0)
for a in sys.argv[2:]:
    k, v = a.split("=")
    OPT[k] = int(v)

OPT_WOEPI = ['', 'K', 'KQ', 'KQG'][OPT['WOEPI']]
HSC = '' if OPT['PLAIN'] else ' sc1'
WS_H = 0x000000
WS_PQ = 0x700000
WS_W2 = 0xA00000
WS_ST = 0xD00000
WS_CS = 0xD10000
WS_KVA = 0xD80000
WS_FL = 0xD90000
FL_HC = 0
FL_KV = 16 * 256
FL_ROW = 128
WS_STAMP = 0xF00000
WS_SIZE = 0x1000000
OOB = 0x40000000


def f32(x):
    return "0x%08x" % struct.unpack("<I", struct.pack("<f", x))[0]


LOG2E = 1.4426950408889634
GC1 = -2.0 * math.sqrt(2.0 / math.pi) * LOG2E
GC2 = GC1 * 0.044715

P_X, P_WQKV, P_WO, P_BX, P_G, P_U, P_D, P_OUT, P_DBG, P_WS = 16, 18, 20, 22, 24, 26, 28, 30, 32, 34
S_X, S_W, S_WS, S_DBG, S_T = 36, 40, 44, 48, 52


def srd(b):
    return f"s[{b}:{b+3}]"


def vr(b, n=4):
    return f"v[{b}:{b+n-1}]"


def mk_srd(A, s, p, nbytes):
    A(f"s_mov_b32 s{s}, s{p}")
    A(f"s_and_b32 s{s+1}, s{p+1}, 0xffff")
    A(f"s_mov_b32 s{s+2}, {nbytes}")
    A(f"s_mov_b32 s{s+3}, 0x20000")


def load_ptrs(A):
    A("s_load_dwordx16 s[16:31], s[0:1], 0")
    A("s_load_dwordx4 s[32:35], s[0:1], 64")


def wave_allreduce_add(A, v, t, s0):
    A(f"v_add_f32_dpp v{v}, v{v}, v{v} quad_perm:[1,0,3,2] row_mask:0xf bank_mask:0xf")
    A(f"v_add_f32_dpp v{v}, v{v}, v{v} quad_perm:[2,3,0,1] row_mask:0xf bank_mask:0xf")
    A(f"v_add_f32_dpp v{v}, v{v}, v{v} row_half_mirror row_mask:0xf bank_mask:0xf")
    A(f"v_add_f32_dpp v{v}, v{v}, v{v} row_mirror row_mask:0xf bank_mask:0xf")
    for i in range(4):
        A(f"v_readlane_b32 s{s0+i}, v{v}, {16*i}")
    A(f"v_mov_b32 v{v}, s{s0}")
    A(f"v_mov_b32 v{t}, s{s0+2}")
    A(f"v_add_f32 v{v}, s{s0+1}, v{v}")
    A(f"v_add_f32 v{t}, s{s0+3}, v{t}")
    A(f"v_add_f32 v{v}, v{v}, v{t}")


def lstamp(A, k):
    if OPT["STAMP"] != 4:
        return
    A("s_memrealtime s[96:97]")
    A("s_waitcnt lgkmcnt(0)")
    A(f"v_writelane_b32 v28, s96, {k}")


def stamp(A, idx, kern, dyn=None, clk=False, wave=0, vt=None):
    if vt is None:
        vt = (26 if idx != 3 else 50) if kern == 0 else 254
    if not OPT["STAMP"]:
        return
    if OPT["STAMP"] == 9:
        slot = {(0, 0): (1, True), (0, 1): (2, False), (0, 2): (3, False), (0, 3): (5, False), (1, 0): (6, False), (1, 5): (7, False),
                (1, 3): (9, False), (1, 1): (10, False), (1, 2): (11, False), (1, 6): (13, False)}.get((kern, idx))
        if slot is None or clk:
            return
        lab = f"L_st_{kern}_{idx}_{len(A.lines)}"
        A(f"s_cmp_lg_u32 s{sWave}, {wave}")
        A(f"s_cbranch_scc1 {lab}")
        A("s_memrealtime s[96:97]")
        A("s_waitcnt lgkmcnt(0)")
        if slot[1]:
            A("s_not_b32 s96, s96")
        A(f"v_mov_b32 v{vt}, s96")
        A(f"v_mov_b32 v{vt+1}, {OOB}")
        A(f"v_writelane_b32 v{vt+1}, {slot[0]*4}, 0")
        A(f"buffer_atomic_umax v{vt}, v{vt+1}, {srd(S_DBG)}, 0 offen sc1")
        A.label(lab)
        return
    lab = f"L_st_{kern}_{idx}_{len(A.lines)}"
    A(f"s_cmp_lg_u32 s{sWave}, {wave}")
    A(f"s_cbranch_scc1 {lab}")
    A("s_memtime s[96:97]" if clk else "s_memrealtime s[96:97]")
    A("s_waitcnt lgkmcnt(0)")
    A(f"s_lshl_b32 s98, s2, 6")
    A(f"s_add_u32 s98, s98, {WS_STAMP + kern*0x8000 + idx*4}")
    if dyn is not None:
        A(f"s_lshl_b32 s99, s{dyn}, 2")
        A("s_add_u32 s98, s98, s99")
    A(f"v_mov_b32 v{vt}, s96")
    A(f"v_mov_b32 v{vt+1}, 0")
    A(f"buffer_store_dword v{vt}, v{vt+1}, {srd(S_WS)}, s98 offen")
    A.label(lab)


sWave, sRB, sCG, sIt, sKW, sKWn, sKX, sKXn, sWslot, sRslot, sXslot, sStepW, sCSit, sSpec, sTmp, sTmp2, sMW, sNW, sWrapW, sTmp3, sC0, sRow, sSpin, sOdd, sPub, sUw, sUl = range(56, 83)
X_LDS = 0
W_LDS = 32768
W_SLOT = 24576
MISC_LDS = W_LDS + 5 * W_SLOT
LDS_TOTAL = 163840

vLane, vT0, vT1, vT2, vT3 = 1, 2, 3, 4, 5
vSigA, vSigV = 6, 7
vXo = 6
vWo = 8
vXa = 11
vWb = 15
vWa = 20
vPa = 25
SPIN_MAX = 0x100000
vSel = 52
vPoll = 30
vCSA = 32
vCSP = 32
vSt = 31
KST = lambda j: (44 + 4 * j) if j < 3 else (232 + 4 * (j - 3))
vBUF = 56
vACC = 152


KVT = [[(0, 0), (0, 1), (0, 2), (1, 0), (1, 1)], [(0, 3), (0, 4), (1, 2), (1, 3), (1, 4)]]


def k1_gemm(A, typ):
    G = typ == "G"
    MT = 2 if G else 1
    NT = 3 if G else 5
    NW_ = 6 if G else 5
    pitch = 3456 if G else 3840
    XB = lambda P, mt, kk: vBUF + 48 * P + 4 * (mt * 2 + kk)
    WBf = lambda P, a, kk: vBUF + 48 * P + 4 * MT * 2 + 4 * (a * 2 + kk)
    acc = lambda mt, a: vACC + 16 * (mt * NT + a)
    L = lambda s: f"L_{typ}_{s}"
    S16 = G and OPT["G16"]
    sel = 248 if S16 else vSel
    NCS = 6 if S16 else NT

    if G:
        A(f"s_lshr_b32 s{sMW}, s{sWave}, 2")
        A(f"s_and_b32 s{sNW}, s{sWave}, 3")
        mk_srd(A, S_W, P_G, 640 * 3456)
        mk_srd(A, S_T, P_U, 640 * 3456)
    else:
        A(f"s_lshr_b32 s{sMW}, s{sWave}, 1")
        A(f"s_and_b32 s{sNW}, s{sWave}, 1")
        mk_srd(A, S_W, P_WQKV, 640 * 3840)
    A(f"s_and_b32 s{sTmp2}, s{sWave}, 3")
    A(f"v_lshrrev_b32 v{vT0}, 3, v{vLane}")
    A(f"s_lshl_b32 s{sTmp3}, s{sTmp2}, 3")
    A(f"v_add_u32 v{vT0}, s{sTmp3}, v{vT0}")
    A(f"v_mul_u32_u24 v{vT0}, {pitch}, v{vT0}")
    A(f"v_and_b32 v{vT1}, 7, v{vLane}")
    A(f"v_lshrrev_b32 v{vT2}, 2, v{vLane}")
    A(f"v_and_b32 v{vT2}, 4, v{vT2}")
    A(f"v_xor_b32 v{vT1}, v{vT1}, v{vT2}")
    if G:
        A(f"s_mul_i32 s{sTmp3}, s{sCG}, {0 if OPT['SAME'] else 384}")
        A(f"v_add_u32 v{vT0}, s{sTmp3}, v{vT0}")
        if S16:
            A(f"s_and_b32 s{sTmp3}, s{sWave}, 1")
            A(f"s_lshl_b32 s{sTmp3}, s{sTmp3}, 1")
            A(f"v_xor_b32 v{vT1}, s{sTmp3}, v{vT1}")
        A(f"v_lshl_add_u32 v{vWo}, v{vT1}, 4, v{vT0}")
        if not S16:
            A(f"v_xor_b32 v{vT1}, 2, v{vT1}")
        A(f"v_lshl_add_u32 v{vWo+1}, v{vT1}, 4, v{vT0}")
        chunks = [(S_W, vWo, 0), (S_W, vWo, 128), (S_W, vWo, 256), (S_T, vWo + 1, 0), (S_T, vWo + 1, 128), (S_T, vWo + 1, 256)]
    elif typ == "Q":
        A(f"s_sub_u32 s{sTmp3}, s{sCG}, 13")
        A(f"s_mul_i32 s{sTmp3}, s{sTmp3}, 640")
        A(f"v_add_u32 v{vT0}, s{sTmp3}, v{vT0}")
        A(f"v_lshl_add_u32 v{vWo}, v{vT1}, 4, v{vT0}")
        chunks = [(S_W, vWo, 128 * i) for i in range(5)]
    else:
        A(f"s_sub_u32 s4, s{sCG}, 9")
        A(f"s_and_b32 s{sOdd}, s4, 1")
        A(f"s_mul_i32 s6, s4, 320")
        A(f"s_add_u32 s6, s6, 1280")
        A(f"s_lshl_b32 s7, s{sOdd}, 6")
        A(f"s_add_u32 s7, s7, s6")
        A(f"s_cmp_eq_u32 s{sOdd}, 0")
        A(f"s_cselect_b32 s8, 256, 0")
        A(f"s_add_u32 s8, s8, s6")
        A(f"v_lshl_add_u32 v{vT2}, v{vT1}, 4, v{vT0}")
        A(f"v_add_u32 v{vWo}, s7, v{vT2}")
        A(f"v_xor_b32 v{vT3}, 2, v{vT1}")
        A(f"v_lshl_add_u32 v{vT2}, v{vT3}, 4, v{vT0}")
        A(f"v_add_u32 v{vWo+2}, s7, v{vT2}")
        A(f"v_lshrrev_b32 v{vT2}, 2, v{vT1}")
        A(f"v_lshlrev_b32 v{vT3}, 1, v{vT2}")
        A(f"v_xor_b32 v{vT3}, v{vT3}, v{vT1}")
        A(f"v_and_b32 v{vT3}, 3, v{vT3}")
        A(f"v_lshl_add_u32 v{vT3}, v{vT3}, 4, v{vT0}")
        A(f"v_mul_u32_u24 v{vT2}, 1280, v{vT2}")
        A(f"v_add3_u32 v{vWo+1}, v{vT3}, v{vT2}, s8")
        chunks = [(S_W, vWo, 0), (S_W, vWo, 128), (S_W, vWo + 2, 1280), (S_W, vWo + 2, 1408), (S_W, vWo + 1, 0)]
    A(f"s_lshr_b32 s{sTmp}, s{sWave}, 2")
    A(f"s_lshl_b32 s{sTmp2}, s{sTmp2}, 10")
    A(f"s_add_u32 s{sWrapW}, s{sTmp2}, {W_LDS + 5*W_SLOT}")
    A(f"s_mul_i32 s{sWslot}, s{sTmp}, {W_SLOT}")
    A(f"s_add_u32 s{sWslot}, s{sWslot}, s{sTmp2}")
    A(f"s_add_u32 s{sWslot}, s{sWslot}, {W_LDS}")
    A(f"s_mul_i32 s{sKW}, s{sC0}, {64*pitch}")
    A(f"s_mul_i32 s{sTmp}, s{sTmp}, {32*pitch}")
    A(f"s_add_u32 s{sKW}, s{sKW}, s{sTmp}")
    A(f"s_mov_b32 s{sKWn}, 0")

    def dmaW():
        out = []
        for i, (sr, vo, imm) in enumerate(chunks):
            out.append(f"s_add_u32 m0, s{sWslot}, {i*4096 - imm}\n" +
                       "s_nop 0\n" +
                       f"buffer_load_dwordx4 v{vo}, {srd(sr)}, s{sKW} offen offset:{imm} lds")
        out.append(f"s_add_u32 s{sWslot}, s{sWslot}, {2*W_SLOT}\n"
                   f"s_cmp_ge_u32 s{sWslot}, s{sWrapW}\n"
                   f"s_cselect_b32 s{sTmp}, {5*W_SLOT}, 0\n"
                   f"s_sub_u32 s{sWslot}, s{sWslot}, s{sTmp}\n"
                   f"s_add_u32 s{sKW}, s{sKW}, {64*pitch}\n"
                   f"s_cmp_ge_u32 s{sKW}, {640*pitch}\n"
                   f"s_cselect_b32 s{sTmp}, {640*pitch}, 0\n"
                   f"s_sub_u32 s{sKW}, s{sKW}, s{sTmp}")
        return out

    def dmaX():
        out = []
        for i in range(4):
            out.append(f"s_add_u32 m0, s{sXslot}, {i*1024}\n" +
                       f"s_add_u32 s{sTmp}, s{sKX}, {16*1280}\n" +
                       f"buffer_load_dwordx4 v{vXo+i%2}, {srd(S_X)}, s{sKX if i < 2 else sTmp} offen lds")
        out.append(f"s_xor_b32 s{sXslot}, s{sXslot}, 16384\n"
                   f"s_add_u32 s{sKX}, s{sKX}, 128\n"
                   f"s_cmp_eq_u32 s{sKX}, 1280\n"
                   f"s_cselect_b32 s{sKX}, 0, s{sKX}")
        return out

    A(f"s_cmp_lt_u32 s{sWave}, 4")
    A(f"s_cbranch_scc1 {L('p1')}")
    for g in dmaX():
        A(g)
    A(f"s_branch {L('p2')}")
    A.label(L("p1"))
    for g in dmaW():
        A(g)
    A.label(L("p2"))
    lstamp(A, 16)

    if OPT["STAMP"] == 3:
        stamp(A, 4, 0, wave=OPT["SW"])
    if S16:
        A(f"v_and_b32 v{vT0}, 15, v{vLane}")
        A(f"v_lshrrev_b32 v{vT1}, 4, v{vLane}")
        A(f"v_bfe_u32 v{vT2}, v{vLane}, 1, 3")
        A(f"v_xor_b32 v{vT1}, v{vT1}, v{vT2}")
        A(f"s_lshl_b32 s{sTmp}, s{sMW}, 13")
        A(f"v_lshl_add_u32 v{vT0}, v{vT0}, 7, s{sTmp}")
        for kap in range(2):
            A(f"v_xor_b32 v{vT2}, {4*kap}, v{vT1}")
            A(f"v_lshl_add_u32 v{vXa+2*kap}, v{vT2}, 4, v{vT0}")
            A(f"v_add_u32 v{vXa+2*kap+1}, 2048, v{vXa+2*kap}")
    else:
        A(f"v_and_b32 v{vT0}, 31, v{vLane}")
        A(f"v_lshrrev_b32 v{vT1}, 5, v{vLane}")
        A(f"v_bfe_u32 v{vT2}, v{vLane}, 1, 3")
        A(f"v_xor_b32 v{vT1}, v{vT1}, v{vT2}")
        A(f"s_lshl_b32 s{sTmp}, s{sMW}, {13 if G else 12}")
        A(f"v_lshl_add_u32 v{vT0}, v{vT0}, 7, s{sTmp}")
        for kap in range(2):
            for kk in range(2):
                A(f"v_xor_b32 v{vT2}, {4*kap+2*kk}, v{vT1}")
                A(f"v_lshl_add_u32 v{vXa+2*kap+kk}, v{vT2}, 4, v{vT0}")
    A(f"v_lshrrev_b32 v{vT0}, {4 if S16 else 5}, v{vLane}")
    A(f"v_lshlrev_b32 v{vT0}, 10, v{vT0}")
    A(f"v_bfe_u32 v{vT1}, v{vLane}, 2, 2")
    A(f"v_lshl_add_u32 v{vT0}, v{vT1}, 7, v{vT0}")
    A(f"v_and_b32 v{vT2}, 3, v{vLane}")
    if typ != "K" and not S16:
        A(f"v_lshlrev_b32 v{vT3}, 1, v{vT2}")
        A(f"v_lshrrev_b32 v{vT2}, 1, v{vT2}")
        A(f"v_and_b32 v{vT3}, 2, v{vT3}")
        A(f"v_or_b32 v{vT2}, v{vT2}, v{vT3}")
    A(f"v_lshl_add_u32 v{vT0}, v{vT2}, 3, v{vT0}")
    A(f"v_and_b32 v{vT1}, 2, v{vT1}")
    A(f"v_bfe_u32 v{vT2}, v{vLane}, 4, 1")
    A(f"v_xor_b32 v{vT1}, v{vT1}, v{vT2}")
    if G:
        if not S16:
            A(f"v_mul_u32_u24 v{vT2}, {3*4096}, v{vT2}")
            A(f"v_add_u32 v{vT0}, v{vT0}, v{vT2}")
        for a in range(3):
            A(f"s_mul_i32 s{sTmp}, s{sNW}, 3")
            A(f"s_add_u32 s{sTmp}, s{sTmp}, {a}")
            A(f"s_lshr_b32 s{sTmp2}, s{sTmp}, 2")
            A(f"s_lshl_b32 s{sTmp2}, s{sTmp2}, 12")
            A(f"s_and_b32 s{sTmp}, s{sTmp}, 3")
            A(f"v_xor_b32 v{vT2}, s{sTmp}, v{vT1}")
            A(f"v_lshl_add_u32 v{vT2}, v{vT2}, 5, v{vT0}")
            A(f"v_add_u32 v{vWb+a}, s{sTmp2}, v{vT2}")
    else:
        for a in range(5):
            if typ == "Q":
                A(f"s_mul_i32 s{sTmp}, s{sNW}, 5")
                A(f"s_add_u32 s{sTmp}, s{sTmp}, {a}")
                A(f"s_lshr_b32 s{sTmp2}, s{sTmp}, 1")
                A(f"s_lshl_b32 s{sTmp2}, s{sTmp2}, 12")
                A(f"s_and_b32 s{sTmp}, s{sTmp}, 1")
                A(f"s_lshl_b32 s{sTmp}, s{sTmp}, 1")
                A(f"v_xor_b32 v{vT2}, s{sTmp}, v{vT1}")
                A(f"v_lshl_add_u32 v{vT2}, v{vT2}, 5, v{vT0}")
                A(f"v_add_u32 v{vWb+a}, s{sTmp2}, v{vT2}")
            else:
                def loc(pi, nw, odd):
                    m, p = pi // 5, 5 * nw + pi % 5
                    if odd:
                        L_, tau = (4, p + 2 * m) if p < 2 else (2 * m + ((p - 2) >> 2), (p - 2) & 3)
                    else:
                        L_, tau = (4, p - 8 + 2 * m) if p >= 8 else (2 * m + (p >> 2), p & 3)
                    return L_ * 4 + (tau ^ m)
                if a == 0:
                    A(f"s_lshl_b32 s9, s{sNW}, 1")
                    A(f"s_add_u32 s9, s9, s{sOdd}")
                    A("s_lshl_b32 s9, s9, 3")
                    A(f"v_bfe_u32 v{vT2}, v{vLane}, 4, 1")
                    A(f"v_cmp_eq_u32 vcc, 1, v{vT2}")
                    A(f"v_and_b32 v{vT1}, 2, v{vT1}")
                for sub, sr in ((0, sTmp), (1, sTmp2)):
                    tab = sum(loc(2 * a + sub, nw, odd) << (8 * (2 * nw + odd)) for nw in range(2) for odd in range(2))
                    A(f"s_lshr_b32 s{sr}, {tab}, s9")
                    A(f"s_and_b32 s{sr}, s{sr}, 0xff")
                A(f"v_mov_b32 v{vT2}, s{sTmp}")
                A(f"v_mov_b32 v{vT3}, s{sTmp2}")
                A(f"v_cndmask_b32 v{vT2}, v{vT2}, v{vT3}, vcc")
                A(f"v_lshrrev_b32 v{vT3}, 2, v{vT2}")
                A(f"v_lshl_add_u32 v{vT3}, v{vT3}, 12, v{vT0}")
                A(f"v_and_b32 v{vT2}, 3, v{vT2}")
                A(f"v_xor_b32 v{vT2}, v{vT2}, v{vT1}")
                A(f"v_lshl_add_u32 v{vWb+a}, v{vT2}, 5, v{vT3}")
        if typ == "K":
            kv_addr_setup(A)
    A(f"s_mov_b32 s{sRslot}, {W_LDS}")
    poll_addr(A)
    A(f"v_and_b32 v{vT0}, 15, v{vLane}")
    A(f"v_bfe_u32 v{vT1}, v{vLane}, 4, 1")
    A(f"v_cmp_eq_u32 vcc, v{vT0}, v{vT1}")
    A(f"v_mov_b32 v{vT2}, 0x3f803f80")
    A(f"v_cndmask_b32 v{vSel}, 0, v{vT2}, vcc")
    for i in range(1, 4):
        A(f"v_mov_b32 v{vSel+i}, v{vSel}")
    if S16:
        for i in range(4):
            A(f"v_mov_b32 v{sel+i}, 0x3f803f80")
    for i in range(4 * NCS):
        A(f"v_mov_b32 v{vCSA+i}, 0")
    for i in range(16 * MT * NT):
        A(f"v_mov_b32 v{vACC+i}, 0")
    A(f"s_mov_b32 s{sPub}, 2")
    A(f"s_bitcmp1_b32 0x88ff, s{sRB}")
    A(f"s_cselect_b32 s{sCSit}, 0, 99")
    A(f"s_cmp_eq_u32 s{sMW}, 0")
    A(f"s_cselect_b32 s{sCSit}, s{sCSit}, 99")
    A(f"s_mov_b32 s{sTmp}, 0xe")
    A(f"s_cmp_eq_u32 s{sWave}, 0")
    A(f"s_cselect_b32 s{sSpec}, s{sTmp}, 0")
    A(f"s_cmp_eq_u32 s{sWave}, 3")
    A(f"s_cselect_b32 s{sTmp}, 0xc0, 0")
    A(f"s_or_b32 s{sSpec}, s{sSpec}, s{sTmp}")
    A(f"s_or_b32 s{sSpec}, s{sSpec}, 0x300")
    A(f"s_mov_b32 s{sIt}, 0")
    A(f"s_mov_b32 s{sSpin}, 0")

    def reads(P, kap):
        pre = [f"v_add_u32 v{vWa+a}, s{sRslot}, v{vWb+a}" for a in range(NT)]
        post = [f"s_add_u32 s{sRslot}, s{sRslot}, {W_SLOT}\n"
                f"s_cmp_eq_u32 s{sRslot}, {W_LDS+5*W_SLOT}\n"
                f"s_cselect_b32 s{sRslot}, {W_LDS}, s{sRslot}"]
        out = []
        for kk in range(2):
            for mt in range(MT):
                out.append(f"ds_read_b128 {vr(XB(P, mt, kk))}, v{vXa+2*kap+kk} offset:{mt*4096}")
            for a in range(NT):
                for rho in range(2):
                    out.append(f"ds_read_b64_tr_b16 {vr(WBf(P, a, kk)+2*rho, 2)}, v{vWa+a} offset:{kk*(12288 if S16 else 2048)+rho*512}")
        if OPT["NORD"]:
            out = []
        return pre, out, post

    def mfmas(P):
        out = []
        if S16:
            for kw in range(2):
                for a in range(3):
                    for t in (0, 2, 1, 3):
                        d = vr(acc16(t, a, kw))
                        out.append(f"v_mfma_f32_16x16x32_bf16 {d}, {vr(WBf(P, a, kw))}, {vr(XB(P, t // 2, t % 2))}, {d}")
            return out
        for kk in range(2):
            for a in range(NT):
                for mt in range(MT):
                    x, w, d = vr(XB(P, mt, kk)), vr(WBf(P, a, kk)), vr(acc(mt, a), 16)
                    if OPT["FAKE16"]:
                        for h in range(2):
                            dq = vr(acc(mt, a) + 8 * kk + 4 * h)
                            x2 = vr(XB(P, mt, h))
                            out.append(f"v_mfma_f32_16x16x32_bf16 {dq}, {w}, {x2}, {dq}")
                    elif typ == "K":
                        out.append(f"v_mfma_f32_32x32x16_bf16 {d}, {x}, {w}, {d}")
                    else:
                        out.append(f"v_mfma_f32_32x32x16_bf16 {d}, {w}, {x}, {d}")
        return out

    def cs_mfmas(P):
        if S16:
            return [f"v_mfma_f32_16x16x32_bf16 {vr(vCSA+4*(2*a+kk))}, {vr(WBf(P, a, kk))}, {vr(sel)}, {vr(vCSA+4*(2*a+kk))}"
                    for kk in range(2) for a in range(3)]
        return [f"v_mfma_f32_16x16x32_bf16 {vr(vCSA+4*a)}, {vr(WBf(P, a, kk))}, {vr(vSel)}, {vr(vCSA+4*a)}"
                for kk in range(2) for a in range(NT)]

    if OPT["STAMP"] == 3:
        stamp(A, 5, 0, wave=OPT["SW"])
    n = len(mfmas(0))
    f = lambda k: k / n
    nod = OPT["NODMA"]

    def loop(R):
        LL = lambda s: f"L_{typ}{R}_{s}"
        lstamp(A, 17)
        if R == "B":
            for g in dmaW():
                A(g)
        A(f"s_waitcnt vmcnt({NW_ + (4 if R == 'B' else 0)})")
        k1_stats(A, typ)
        lstamp(A, 18)
        A(f"s_waitcnt vmcnt({1 if R == 'A' else NW_ + 1})")
        lstamp(A, 19)
        A("s_barrier")
        pre, rd, post = reads(0, 0)
        for g in pre + rd + post:
            A(g)
        if R == "A":
            A("s_setprio 1")
            stamp(A, 1, 0)
            stamp(A, 14, 0, clk=True)
        else:
            for g in dmaX():
                A(g)
        A("s_waitcnt lgkmcnt(0)")
        lstamp(A, 20)
        for g in mfmas(0):
            A(g)
        if R == "A":
            A(f"s_cmp_lg_u32 s{sCSit}, 0")
            A(f"s_cbranch_scc1 {LL('pc0')}")
            for g in cs_mfmas(0):
                A(g)
            A.label(LL("pc0"))
            for g in dmaW():
                A(g)
            A(f"s_sub_u32 s{sUw}, s{sWave}, 1")
            A(f"s_cmp_gt_u32 s{sUw}, 1")
            A(f"s_cbranch_scc1 {LL('nou')}")
            A(f"s_lshl_b32 s{sU}, s{sCG}, 4")
            A(f"s_add_u32 s{sU}, s{sU}, s{sRB}")
            A(f"s_lshl_b32 s{sU}, s{sU}, 1")
            A(f"s_add_u32 s{sU}, s{sU}, s{sUw}")
            A(f"s_lshl_b32 s{sUl}, s{sUw}, 12")
            A(f"s_add_u32 s{sUl}, s{sUl}, {MISC_LDS}")
            w2_unit_dma(A, f"s{sUl}")
            A.label(LL("nou"))
        else:
            A("s_waitcnt vmcnt(5)")
        lstamp(A, 21)
        A("s_barrier")
        pre, rd, post = reads(1, 1)
        for g in pre + rd + post:
            A(g)
        if R == "B":
            for g in dmaW():
                A(g)
        A("s_waitcnt lgkmcnt(0)")
        lstamp(A, 22)
        for g in mfmas(1):
            A(g)
        if R == "A":
            for g in dmaW():
                A(g)
            A(f"s_cmp_eq_u32 s{sCSit}, 0")
            A(f"s_cbranch_scc1 {LL('cs1')}")
            A(f"s_waitcnt vmcnt({NW_})")
            A.label(LL("pc1"))
            A(f"s_cmp_gt_u32 s{sUw}, 1")
            A(f"s_cbranch_scc1 {LL('pc2')}")
            w2_unit_out(A, f"s{sUl}", (lambda t: (96, 100, 144, 148)[t]) if G else (lambda t: 232 + 4 * t) if typ == 'Q' else (lambda t: vBUF + 4 * t))
            A.label(LL("pc2"))
        else:
            A("s_waitcnt vmcnt(0)")
        lstamp(A, 23)
        A("s_barrier")
        if R == "B":
            for g in dmaX() + dmaW():
                A(g)
        for i in range(4):
            A(f"v_xor_b32 v{vXa+i}, 16384, v{vXa+i}")
        pre, rd, post = reads(0, 0)
        for g in pre + rd + post:
            A(g)
        A(f"s_mov_b32 s{sIt}, 1")
        if R == "A" and OPT["NXA"]:
            for _ in range(3):
                A(dmaX()[4])
        A("s_waitcnt lgkmcnt(0)")
        lstamp(A, 0)
        A(".p2align 6")
        A.label(LL("loop"))
        pre, rd, post = reads(1, 1)
        for g in interleave(mfmas(0), (pre, 0.0, f(1)), (rd, f(1), 0.7), (post, 0.75, 0.85)):
            A(g)
        if R == "A":
            A(f"s_bitcmp1_b32 s{sSpec}, s{sIt}")
            A(f"s_cbranch_scc1 {LL('spec')}")
            A.label(LL("specr"))
            for g in dmaW():
                A(g)
            A(f"s_waitcnt vmcnt({NW_}) lgkmcnt(0)")
            A.label(LL("bar"))
        else:
            A("s_waitcnt vmcnt(0) lgkmcnt(0)")
        A("s_barrier")
        if OPT["DLY"] == 1 and G:
            A("s_sleep 3")
        pre, rd, post = reads(0, 0)
        pre = [f"v_xor_b32 v{vXa+i}, 16384, v{vXa+i}" for i in range(2)] + pre
        post = post + [f"v_xor_b32 v{vXa+i}, 16384, v{vXa+i}" for i in range(2, 4)]
        tail = [f"s_add_u32 s{sIt}, s{sIt}, 1\ns_cmp_lt_u32 s{sIt}, 10"]
        nxa = OPT["NXA"]
        if R == "B":
            dw = dmaW()
            nb = OPT["NBUP"]
            A(f"s_cmp_ge_u32 s{sIt}, 8")
            A(f"s_cbranch_scc1 {LL('nod')}")
            for g in dmaX()[nxa:] + dw[:nb]:
                A(g)
            for g in interleave(mfmas(1), (pre, 0.0, f(1)), (dw[nb:], 0.0, 0.4), (rd, f(1), 0.7), (post, 0.7, 0.8), (tail, f(n-2), f(n-1))):
                A(g)
            A.label(LL("end"))
        else:
            chk1 = tail
            xa = []
            if nxa:
                dx = dmaX()
                xa = [f"s_cmp_ge_u32 s{sIt}, 8\ns_cbranch_scc1 {LL('nox')}\n" + "\n".join(dx[:nxa] + dx[4:]) + f"\n{LL('nox')}:"]
            for g in interleave(mfmas(1), (pre, 0.0, f(1)), (xa, f(OPT["XPOS"]), f(OPT["XPOS"]+1)), (rd, f(1), 0.7), (post, 0.7, 0.8), (chk1, f(n-2), f(n-1))):
                A(g)
        if OPT["STAMP"] == 4:
            A("s_memrealtime s[96:97]")
            A(f"s_mov_b32 m0, s{sIt}")
        A("s_waitcnt lgkmcnt(0)")
        if OPT["STAMP"] == 4:
            A("v_writelane_b32 v28, s96, m0")
        A(f"s_cbranch_scc1 {LL('loop')}")
        A(f"s_branch {L('epi')}")

        if R == "B":
            A.label(LL("nod"))
            if typ not in OPT_WOEPI:
                A(f"s_cmp_eq_u32 s{sIt}, 9")
                A(f"s_cbranch_scc1 {LL('nod9')}")
                wo_early(A, 24, 7)
                A(f"s_branch {LL('nod2')}")
                A.label(LL("nod9"))
                wo_early(A, 72, 7)
                A.label(LL("nod2"))
            for g in interleave(mfmas(1), (pre, 0.0, f(1)), (rd, f(1), 0.7), (post, 0.7, 0.8), (tail, f(n-2), f(n-1))):
                A(g)
            A(f"s_branch {LL('end')}")
            return
        A.label(LL("cs1"))
        for g in cs_mfmas(1):
            A(g)
        A(f"v_and_b32 v{vT0}, 15, v{vLane}")
        A(f"v_lshrrev_b32 v{vT1}, 4, v{vLane}")
        A(f"v_lshlrev_b32 v{vT1}, 4, v{vT1}")
        A(f"v_lshl_add_u32 v{vT1}, v{vT0}, 6, v{vT1}")
        A(f"v_cmp_gt_u32 vcc, {1 if S16 else 2}, v{vT0}")
        A(f"v_mov_b32 v{vT2}, {OOB}")
        A(f"v_cndmask_b32 v{vT1}, v{vT2}, v{vT1}, vcc")
        A(f"s_mul_i32 s{sTmp}, s{sCG}, 10")
        A(f"s_add_u32 s{sTmp}, s{sTmp}, s{sC0}")
        A(f"s_mul_i32 s{sTmp}, s{sTmp}, 1536")
        A(f"s_mul_i32 s{sTmp2}, s{sNW}, {NT*128}")
        A(f"s_add_u32 s{sTmp}, s{sTmp}, s{sTmp2}")
        A(f"s_add_u32 s{sTmp}, s{sTmp}, {WS_CS}")
        for a in range(NCS):
            A(f"buffer_store_dwordx4 {vr(vCSA+4*a)}, v{vT1}, {srd(S_WS)}, s{sTmp} offen offset:{a*(64 if S16 else 128)} sc1")
        A(f"s_waitcnt vmcnt({NW_+NCS})")
        A(f"s_branch {LL('pc1')}")

        def with_dma(nops, body):
            for g in dmaW():
                A(g)
            body()
            A(f"s_waitcnt vmcnt({NW_+nops}) lgkmcnt(0)")
            A(f"s_branch {LL('bar')}")
        A.label(LL("spec"))
        A(f"s_cmp_eq_u32 s{sIt}, 9")
        A(f"s_cbranch_scc1 {LL('sum')}")
        A(f"s_cmp_eq_u32 s{sIt}, 8")
        A(f"s_cbranch_scc1 {LL('go')}")
        A(f"s_cmp_eq_u32 s{sIt}, 7")
        A(f"s_cbranch_scc1 {LL('chk')}")
        A(f"s_cmp_eq_u32 s{sIt}, 6")
        A(f"s_cbranch_scc1 {LL('poll0')}")
        A.label(LL("pub"))

        A(f"s_cmp_lg_u32 s{sIt}, 2")
        A(f"s_cbranch_scc1 {LL('pub1')}")
        wait_zeroed(A, LL("wz"), True)
        A.label(LL("pub1"))

        def pub():
            A(f"s_cmp_eq_u32 s{sIt}, 3")
            A(f"s_cbranch_scc1 {LL('pub3')}")
            A(f"s_cmp_eq_u32 s{sIt}, 2")
            A(f"s_cbranch_scc1 {LL('pub2')}")
            A(f"buffer_load_dword v{vPoll}, off, {srd(S_DBG)}, 0 sc1")
            A(f"s_branch {LL('pub3')}")
            A.label(LL("pub2"))
            k1_publish(A)
            A.label(LL("pub3"))
        with_dma(1, pub)
        A.label(LL("poll0"))
        with_dma(1, lambda: A(f"buffer_load_dword v{vPoll}, v{vPa}, {srd(S_WS)}, 0 offen sc1"))
        A.label(LL("poll"))
        A("s_sleep 8")
        A(f"buffer_load_dword v{vPoll}, v{vPa}, {srd(S_WS)}, 0 offen sc1")
        A.label(LL("chk"))
        A("s_waitcnt vmcnt(0)")
        poll_cmp(A)
        A(f"s_add_u32 s{sSpin}, s{sSpin}, 1")
        A(f"s_cmp_gt_u32 s{sSpin}, {SPIN_MAX}")
        A(f"s_cbranch_scc1 {LL('specr')}")
        A(f"s_cmp_lg_u64 vcc, 0")
        A(f"s_cbranch_scc1 {LL('poll')}")
        A(f"s_branch {LL('specr')}")
        A.label(LL("go"))

        def go():
            A(f"v_lshlrev_b32 v{vT0}, 3, v0")
            A(f"v_cmp_gt_u32 vcc, {NT*(4 if G else 2)*16}, v0")
            A(f"v_mov_b32 v{vT2}, {OOB}")
            A(f"v_cndmask_b32 v{vT0}, v{vT2}, v{vT0}, vcc")
            A(f"s_mul_i32 s{sTmp}, s{sCG}, 15360")
            A(f"s_add_u32 s{sTmp}, s{sTmp}, {WS_CS}")
            for ch in range(10):
                if ch % 2 == 0 and ch:
                    A(f"s_add_u32 s{sTmp}, s{sTmp}, 3072")
                A(f"buffer_load_dwordx2 {vr(vCSP+2*ch, 2)}, v{vT0}, {srd(S_WS)}, s{sTmp} offen offset:{(ch%2)*1536} sc1")
            A(f"s_lshl_b32 s{sTmp}, s{sRB}, 10")
            A(f"s_add_u32 s{sTmp}, s{sTmp}, {WS_ST}")
            A(f"v_lshlrev_b32 v{vT1}, 2, v0")
            A(f"buffer_load_dword v{vSt}, v{vT1}, {srd(S_WS)}, s{sTmp} offen sc1")
        go()
        if typ not in OPT_WOEPI:
            wo_early(A, 0, 6)
        A(f"s_waitcnt vmcnt({11 if typ in OPT_WOEPI else 17}) lgkmcnt(0)")
        A(f"s_branch {LL('bar')}")
        A.label(LL("sum"))
        A(f"s_waitcnt vmcnt({0 if typ in OPT_WOEPI else 6})")
        for ch in range(1, 10):
            A(f"v_add_f32 v{vCSP}, v{vCSP}, v{vCSP+2*ch}")
            A(f"v_add_f32 v{vCSP+1}, v{vCSP+1}, v{vCSP+2*ch+1}")
        A(f"v_lshlrev_b32 v{vT0}, 3, v0")
        A(f"v_add_u32 v{vT0}, {MISC_LDS}, v{vT0}")
        A(f"ds_write_b64 v{vT0}, {vr(vCSP, 2)}")
        A(f"v_lshlrev_b32 v{vT1}, 2, v0")
        A(f"v_add_u32 v{vT1}, {MISC_LDS+2048}, v{vT1}")
        A(f"ds_write_b32 v{vT1}, v{vSt}")
        if typ not in OPT_WOEPI:
            wo_early(A, 52, 5)
        A("s_waitcnt lgkmcnt(0)")
        A(f"s_branch {LL('bar')}")

    A(f"s_cmp_ge_u32 s{sWave}, 4")
    A(f"s_cbranch_scc1 {L('roleB')}")
    loop("A")
    A.label(L("roleB"))
    loop("B")

    A.label(L("epi"))
    if (OPT["DLY"] == 2 and typ == "G") or (OPT["DLY"] == 3 and typ == "K"):
        A("s_sleep 30")
    A("s_setprio 0")
    stamp(A, 2, 0)
    stamp(A, 4, 0, wave=4, vt=50)
    stamp(A, 7, 0, wave=4, vt=50, clk=True)
    stamp(A, 15, 0, clk=True)
    if OPT["STAMP"] == 4:
        A(f"v_lshlrev_b32 v29, 2, v0")
        A(f"s_lshl_b32 s98, s2, 11")
        A(f"s_add_u32 s98, s98, {WS_STAMP + 0x10000}")
        A(f"buffer_store_dword v28, v29, {srd(S_WS)}, s98 offen")
    p2_ids(A)
    A.fence()
    if True:
        epi = {"G": k1_epi_g16 if S16 else k1_epi_g, "Q": k1_epi_q, "K": k1_epi_kv}[typ]
        ffn_setup(A)
        A(f"s_cmp_lt_u32 s{sWave}, 4")
        A(f"s_cselect_b32 s{sWo}, {OOB}, s{sWo}")
        E = Asm()
        epi(E, acc)
        body = [t for _, t in E.lines]
        npre = min(OPT["NPRE"], {"G": 6, "Q": 4, "K": 2}[typ])
        early = [g for j in range(min(4, npre)) for g in ldW_groups(j)]
        late = [g for j in range(4, npre) for g in ldW_groups(j)]
        wod = []
        if typ in OPT_WOEPI:
            A(f"s_mul_i32 s12, s{sWave}, 13")
            A("s_min_u32 s12, s12, 87")
            A("s_lshl_b32 s12, s12, 10")
            A(f"s_mul_i32 s13, s{sC}, {74*5120}")
            A("s_add_u32 s13, s13, s12")
            A(f"s_add_u32 s13, s13, {WS_W2 + 54*5120}")
            A(f"s_add_u32 s12, s12, {WO_LDS}")
            wod = [f"s_add_u32 m0, s12, {i*1024}\ns_add_u32 s14, s13, {i*1024}\n"
                   f"buffer_load_dwordx4 v{vL16}, {srd(S_WS)}, s14 offen sc1 lds" for i in range(13)]
        for g in interleave(body, (wod, 0.02, 0.6), (early, 0.02, 0.5 if npre > 4 else 0.7), (late, 0.5, 0.8)):
            A(g)
        A(f"s_mov_b32 s{sWoDone}, {npre + 1}")
    stamp(A, 3, 0)
    stamp(A, 5, 0, wave=4, vt=50)
    stamp(A, 8, 0, wave=4, vt=50, clk=True)
    A(f"v_mov_b32 v{vSigA}, {OOB}")
    if typ == "K":
        A(f"s_sub_u32 s{sTmp}, s{sCG}, 9")
        A(f"s_lshl_b32 s{sTmp}, s{sTmp}, 11")
        A(f"s_add_u32 s{sTmp}, s{sTmp}, {WS_FL + FL_KV}")
        A(f"v_lshl_add_u32 v{vT0}, v{vLane}, 8, s{sTmp}")
        A(f"v_cmp_gt_u32 vcc, 8, v{vLane}")
        A(f"v_cndmask_b32 v{vSigA}, v{vSigA}, v{vT0}, vcc")
        A(f"v_mov_b32 v{vSigV}, 1")
    else:
        A(f"s_lshl_b32 s{sTmp}, s{sRB}, 8")
        A(f"s_add_u32 s{sTmp}, s{sTmp}, {WS_FL + FL_HC}")
        A(f"v_writelane_b32 v{vSigA}, s{sTmp}, 0")
        A(f"s_lshl_b32 s{sTmp}, 1, s{sCG}")
        A(f"v_mov_b32 v{vSigV}, s{sTmp}")
    A("s_branch L_p2")


def k1_stats_issue(A):
    b = vBUF
    A(f"s_lshl_b32 s{sRow}, s{sRB}, 7")
    A(f"s_lshl_b32 s{sTmp2}, s{sCG}, 3")
    A(f"s_add_u32 s{sRow}, s{sRow}, s{sTmp2}")
    A(f"s_add_u32 s{sRow}, s{sRow}, s{sWave}")
    A(f"s_mul_i32 s{sTmp2}, s{sRow}, 1280")
    A(f"v_lshlrev_b32 v{vT0}, 3, v{vLane}")
    A(f"v_lshlrev_b32 v{vT1}, 2, v{vLane}")
    A(f"buffer_load_dwordx2 {vr(b, 2)}, v{vT0}, {srd(S_X)}, s{sTmp2} offen")
    A(f"buffer_load_dwordx2 {vr(b+2, 2)}, v{vT0}, {srd(S_X)}, s{sTmp2} offen offset:512")
    A(f"buffer_load_dword v{b+4}, v{vT1}, {srd(S_X)}, s{sTmp2} offen offset:1024")


def k1_stats(A, typ):
    b = vBUF
    if typ == "A":
        A("s_waitcnt vmcnt(0)")
    for i in range(5):
        A(f"v_lshlrev_b32 v{b+8+2*i}, 16, v{b+i}")
        A(f"v_and_b32 v{b+9+2*i}, 0xffff0000, v{b+i}")
    s = b + 20
    A(f"v_add_f32 v{s}, v{b+8}, v{b+9}")
    for i in range(2, 10):
        A(f"v_add_f32 v{s}, v{s}, v{b+8+i}")
    wave_allreduce_add(A, s, s + 1, 4)
    A(f"v_mul_f32 v{s}, {f32(1.0/640)}, v{s}")
    for i in range(10):
        A(f"v_sub_f32 v{b+8+i}, v{b+8+i}, v{s}")
    A(f"v_mul_f32 v{s+1}, v{b+8}, v{b+8}")
    for i in range(1, 10):
        A(f"v_fmac_f32 v{s+1}, v{b+8+i}, v{b+8+i}")
    wave_allreduce_add(A, s + 1, s + 2, 4)
    A(f"v_mov_b32 v{s+2}, {f32(1e-5)}")
    A(f"v_fmac_f32 v{s+2}, {f32(1.0/640)}, v{s+1}")
    A(f"v_mov_b32 v{s+1}, v{s+2}")
    A(f"v_cmp_eq_u32 vcc, 0, v{vLane}")
    A(f"v_mov_b32 v{vT2}, {OOB}")
    A(f"v_cndmask_b32 v{vT0}, v{vT2}, v{vLane}, vcc")
    A(f"s_lshl_b32 s{sTmp}, s{sRow}, 3")
    A(f"s_add_u32 s{sTmp}, s{sTmp}, {WS_ST}")
    A(f"buffer_store_dwordx2 {vr(s, 2)}, v{vT0}, {srd(S_WS)}, s{sTmp} offen sc1")


def k1_publish(A):
    A(f"s_lshl_b32 s{sTmp}, s{sRB}, 8")
    A(f"s_add_u32 s{sTmp}, s{sTmp}, {WS_FL + FL_ROW}")
    A(f"v_mov_b32 v{vT0}, {OOB}")
    A(f"v_writelane_b32 v{vT0}, s{sTmp}, 0")
    A(f"v_mov_b32 v{vT1}, 1")
    A(f"buffer_atomic_add v{vT1}, v{vT0}, {srd(S_WS)}, 0 offen sc1")


def poll_addr(A):
    A(f"v_and_b32 v{vPa}, 15, v{vLane}")
    A(f"v_lshlrev_b32 v{vPa}, 8, v{vPa}")
    A(f"v_add_u32 v{vPa}, {WS_FL + FL_ROW}, v{vPa}")


def poll_cmp(A):
    A(f"v_cmp_gt_u32 vcc, 16, v{vPoll}")


def wait_zeroed(A, lab, first_issued):
    if first_issued:
        A(f"s_branch {lab}_c")
    A.label(lab)
    A("s_sleep 4")
    A(f"buffer_load_dword v{vPoll}, off, {srd(S_DBG)}, 0 sc1")
    A.label(lab + "_c")
    A("s_waitcnt vmcnt(0)")
    A(f"v_readfirstlane_b32 s{sTmp}, v{vPoll}")
    A(f"s_add_u32 s{sSpin}, s{sSpin}, 1")
    A(f"s_cmp_gt_u32 s{sSpin}, {SPIN_MAX}")
    A(f"s_cbranch_scc1 {lab}_ok")
    A(f"s_cmp_lt_u32 s{sTmp}, 16")
    A(f"s_cbranch_scc1 {lab}")
    A.label(lab + "_ok")


S_R = 88
sU, sUks, sUL = 92, 93, 94


def w2_unit_decode(A):
    A(f"s_mul_i32 s{sUks}, s{sU}, 205")
    A(f"s_lshr_b32 s{sUks}, s{sUks}, 11")
    A(f"s_mul_i32 s{sUL}, s{sUks}, 10")
    A(f"s_sub_u32 s{sUL}, s{sU}, s{sUL}")


def w2_unit_dma(A, lds):
    w2_unit_decode(A)
    A(f"s_cmp_lt_u32 s{sUks}, 54")
    A(f"s_cselect_b32 s{S_R}, s{P_D}, s{P_WO}")
    A(f"s_cselect_b32 s{S_R+1}, s{P_D+1}, s{P_WO+1}")
    A(f"s_mov_b32 s{S_R+2}, {640*1280}")
    A(f"s_cselect_b32 s{S_R+2}, {1728*1280}, s{S_R+2}")
    A(f"s_cselect_b32 s{sTmp}, 0, 54")
    A(f"s_and_b32 s{S_R+1}, s{S_R+1}, 0xffff")
    A(f"s_mov_b32 s{S_R+3}, 0x20000")
    A(f"s_sub_u32 s{sTmp}, s{sUks}, s{sTmp}")
    A(f"s_mul_i32 s{sTmp}, s{sTmp}, {32*1280}")
    A(f"s_lshl_b32 s{sTmp2}, s{sUL}, 7")
    A(f"s_add_u32 s{sTmp}, s{sTmp}, s{sTmp2}")
    A(f"v_lshrrev_b32 v{vT0}, 3, v{vLane}")
    A(f"v_mul_u32_u24 v{vT0}, 1280, v{vT0}")
    A(f"v_and_b32 v{vT1}, 7, v{vLane}")
    A(f"v_lshl_add_u32 v{vT0}, v{vT1}, 4, v{vT0}")
    for i in range(4):
        A(f"s_add_u32 m0, {lds}, {i*1024}")
        A("s_nop 0")
        A(f"buffer_load_dwordx4 v{vT0}, {srd(S_R)}, s{sTmp} offen lds")
        A(f"s_add_u32 s{sTmp}, s{sTmp}, {8*1280}")


def w2_unit_out(A, lds, F):
    w2_unit_decode(A)
    A(f"v_bfe_u32 v{vT0}, v{vLane}, 2, 2")
    A(f"v_lshlrev_b32 v{vT0}, 7, v{vT0}")
    A(f"v_and_b32 v{vT1}, 3, v{vLane}")
    A(f"v_lshl_add_u32 v{vT0}, v{vT1}, 3, v{vT0}")
    A(f"v_lshrrev_b32 v{vT1}, 4, v{vLane}")
    A(f"s_cmp_lt_u32 s{sUks}, 54")
    A(f"s_cselect_b32 s{sTmp}, 10, 9")
    A(f"s_movk_i32 s{sTmp2}, 512")
    A(f"s_cselect_b32 s{sTmp2}, s{sTmp2}, 2048")
    A(f"v_lshlrev_b32 v{vT1}, s{sTmp}, v{vT1}")
    A(f"v_add3_u32 v{vT0}, v{vT0}, v{vT1}, {lds}")
    A(f"v_add_u32 v{vT1}, s{sTmp2}, v{vT0}")
    for tau in range(4):
        A(f"ds_read_b64_tr_b16 {vr(F(tau), 2)}, v{vT0} offset:{tau*32}")
        A(f"ds_read_b64_tr_b16 {vr(F(tau)+2, 2)}, v{vT1} offset:{tau*32}")
    A(f"v_lshlrev_b32 v{vT2}, 4, v{vLane}")
    A("s_waitcnt lgkmcnt(0)")
    for tau in range(4):
        A(f"s_lshl_b32 s{sTmp}, s{sUL}, 2")
        A(f"s_add_u32 s{sTmp}, s{sTmp}, {tau}")
        A(f"s_mul_i32 s{sTmp2}, s{sTmp}, 205")
        A(f"s_lshr_b32 s{sTmp2}, s{sTmp2}, 10")
        A(f"s_mul_i32 s{sTmp3}, s{sTmp2}, {74*5-5}")
        A(f"s_add_u32 s{sTmp}, s{sTmp}, s{sTmp3}")
        A(f"s_mul_i32 s{sTmp3}, s{sUks}, 5")
        A(f"s_add_u32 s{sTmp}, s{sTmp}, s{sTmp3}")
        A(f"s_lshl_b32 s{sTmp}, s{sTmp}, 10")
        A(f"s_add_u32 s{sTmp}, s{sTmp}, {WS_W2}")
        A(f"s_cmp_lt_u32 s{sU}, 740")
        A(f"s_cselect_b32 s{sTmp}, s{sTmp}, {OOB}")
        A(f"buffer_store_dwordx4 {vr(F(tau))}, v{vT2}, {srd(S_WS)}, s{sTmp} offen sc1")


def k1_epi_g(A, acc):
    c = vBUF
    cs = vBUF + 8
    t = vBUF + 40
    o = vBUF + 48
    A(f"v_lshrrev_b32 v{vT0}, 5, v{vLane}")
    A(f"v_lshlrev_b32 v{vT0}, 4, v{vT0}")
    A(f"s_mul_i32 s{sTmp}, s{sNW}, 384")
    A(f"s_add_u32 s{sTmp}, s{sTmp}, {MISC_LDS}")
    A(f"v_add_u32 v{vT0}, s{sTmp}, v{vT0}")
    A(f"v_and_b32 v{vT1}, 31, v{vLane}")
    A(f"s_lshl_b32 s{sTmp}, s{sMW}, 9")
    A(f"s_add_u32 s{sTmp}, s{sTmp}, {MISC_LDS+2048}")
    A(f"v_lshl_add_u32 v{vT1}, v{vT1}, 3, s{sTmp}")
    for mt in range(2):
        A(f"ds_read_b64 {vr(c+4*mt, 2)}, v{vT1} offset:{mt*256}")
    for q in range(4):
        A(f"ds_read_b128 {vr(cs+4*q)}, v{vT0} offset:{q*32}")
    A("s_waitcnt lgkmcnt(4)")
    for mt in range(2):
        mu, v, k1, k3 = c + 4 * mt, c + 4 * mt + 1, c + 4 * mt + 2, c + 4 * mt + 3
        A(f"v_rsq_f32 v{t}, v{v}")
        A(f"v_mul_f32 v{k1}, {f32(GC1)}, v{t}")
        A(f"v_mul_f32 v{t+1}, v{t}, v{t}")
        A(f"v_mul_f32 v{t+1}, v{t+1}, v{t}")
        A(f"v_mul_f32 v{k3}, {f32(GC2)}, v{t+1}")
    A(f"v_bfe_u32 v{vT1}, v{vLane}, 4, 1")
    A(f"v_lshlrev_b32 v{vT1}, 10, v{vT1}")
    A(f"v_lshrrev_b32 v{vT2}, 5, v{vLane}")
    A(f"v_lshl_add_u32 v{vT1}, v{vT2}, 8, v{vT1}")
    A(f"v_and_b32 v{vT2}, 15, v{vLane}")
    A(f"v_lshl_add_u32 v{vT1}, v{vT2}, 4, v{vT1}")
    n = 0
    for a in range(3):
        csa = cs + 16 * (a % 2)
        if a < 2:
            for q in range(4):
                A(f"ds_read_b128 {vr(cs+16*((a+1)%2)+4*q)}, v{vT0} offset:{(a+1)*128+q*32}")
            A("s_waitcnt lgkmcnt(4)")
        else:
            A("s_waitcnt lgkmcnt(0)")
        A(f"s_mul_i32 s{sTmp}, s{sCG}, 12")
        A(f"s_mul_i32 s{sTmp2}, s{sNW}, 3")
        A(f"s_add_u32 s{sTmp}, s{sTmp}, s{sTmp2}")
        A(f"s_add_u32 s{sTmp}, s{sTmp}, {a}")
        A(f"s_lshl_b32 s{sTmp2}, s{sRB}, 1")
        A(f"s_add_u32 s{sTmp2}, s{sTmp2}, s{sMW}")
        A(f"s_mul_i32 s{sTmp2}, s{sTmp2}, 54")
        A(f"s_lshr_b32 s{sTmp3}, s{sTmp}, 1")
        A(f"s_add_u32 s{sTmp2}, s{sTmp2}, s{sTmp3}")
        A(f"s_lshl_b32 s{sTmp2}, s{sTmp2}, 12")
        A(f"s_and_b32 s{sTmp}, s{sTmp}, 1")
        A(f"s_lshl_b32 s{sTmp}, s{sTmp}, 9")
        A(f"s_add_u32 s{sTmp}, s{sTmp}, s{sTmp2}")
        C = lambda mt, k: c + 4 * mt + k
        MP = [(mt, i) for mt in range(2) for i in range(0, 8, 2)]
        D = lambda mt: acc(mt, a)
        Tm = lambda mt: t + 8 * mt
        for mt, i in MP:
            pk_fma(A, D(mt) + i, ("b", C(mt, 0)), ("p", csa + i), ("p", D(mt) + i), neg_a=True)
        for mt, i in MP:
            pk_mul(A, Tm(mt) + i, ("p", D(mt) + i), ("p", D(mt) + i))
        for mt, i in MP:
            pk_fma(A, Tm(mt) + i, ("p", Tm(mt) + i), ("b", C(mt, 3)), ("b", C(mt, 2)))
        for mt, i in MP:
            pk_mul(A, Tm(mt) + i, ("p", Tm(mt) + i), ("p", D(mt) + i))
        for mt, i in MP:
            A(f"v_exp_f32 v{Tm(mt)+i}, v{Tm(mt)+i}")
            A(f"v_exp_f32 v{Tm(mt)+i+1}, v{Tm(mt)+i+1}")
            pk_fma(A, D(mt) + 8 + i, ("b", C(mt, 0)), ("p", csa + 8 + i), ("p", D(mt) + 8 + i), neg_a=True)
        for mt, i in MP:
            pk_fma(A, Tm(mt) + i, ("p", Tm(mt) + i), ("b", C(mt, 1)), ("b", C(mt, 1)))
        for mt, i in MP:
            A(f"v_rcp_f32 v{Tm(mt)+i}, v{Tm(mt)+i}")
            A(f"v_rcp_f32 v{Tm(mt)+i+1}, v{Tm(mt)+i+1}")
            pk_mul(A, D(mt) + i, ("p", D(mt) + i), ("p", D(mt) + 8 + i))
        for mt, i in MP:
            pk_mul(A, D(mt) + i, ("p", D(mt) + i), ("p", Tm(mt) + i))
        for mt in range(2):
            ob = D(mt) + 8
            for i in range(4):
                A(f"v_cvt_pk_bf16_f32 v{ob+i}, v{D(mt)+2*i}, v{D(mt)+2*i+1}")
            A(f"buffer_store_dwordx4 {vr(ob)}, v{vT1}, {srd(S_WS)}, s{sTmp} offen offset:{mt*2048} sc1")


acc16 = lambda t, a, kw: vACC + 32 * a + 16 * kw + 4 * t


def k1_epi_g16(A, acc):
    c = vBUF
    cs = vBUF + 16
    t = vBUF + 40
    A(f"v_lshrrev_b32 v{vT0}, 4, v{vLane}")
    A(f"v_lshlrev_b32 v{vT0}, 4, v{vT0}")
    A(f"s_mul_i32 s{sTmp}, s{sNW}, 384")
    A(f"s_add_u32 s{sTmp}, s{sTmp}, {MISC_LDS}")
    A(f"v_add_u32 v{vT0}, s{sTmp}, v{vT0}")
    A(f"v_and_b32 v{vT1}, 15, v{vLane}")
    A(f"s_lshl_b32 s{sTmp}, s{sMW}, 9")
    A(f"s_add_u32 s{sTmp}, s{sTmp}, {MISC_LDS+2048}")
    A(f"v_lshl_add_u32 v{vT1}, v{vT1}, 3, s{sTmp}")
    for m in range(4):
        A(f"ds_read_b64 {vr(c+4*m, 2)}, v{vT1} offset:{m*128}")
    for p in range(6):
        A(f"ds_read_b128 {vr(cs+4*p)}, v{vT0} offset:{p*64}")
    A("s_waitcnt lgkmcnt(6)")
    for m in range(4):
        A(f"v_rsq_f32 v{t+m}, v{c+4*m+1}")
    for m in range(4):
        A(f"v_mul_f32 v{c+4*m+2}, {f32(GC1)}, v{t+m}")
        A(f"v_mul_f32 v{t+4+m}, v{t+m}, v{t+m}")
    for m in range(4):
        A(f"v_mul_f32 v{t+4+m}, v{t+4+m}, v{t+m}")
    for m in range(4):
        A(f"v_mul_f32 v{c+4*m+3}, {f32(GC2)}, v{t+4+m}")
    A(f"v_bfe_u32 v{vT1}, v{vLane}, 4, 1")
    A(f"v_lshlrev_b32 v{vT1}, 10, v{vT1}")
    A(f"v_lshrrev_b32 v{vT2}, 5, v{vLane}")
    A(f"v_lshl_add_u32 v{vT1}, v{vT2}, 8, v{vT1}")
    A(f"v_and_b32 v{vT2}, 15, v{vLane}")
    A(f"v_lshl_add_u32 v{vT1}, v{vT2}, 4, v{vT1}")
    A("s_waitcnt lgkmcnt(0)")
    for a in range(3):
        A(f"s_mul_i32 s{sTmp}, s{sCG}, 12")
        A(f"s_mul_i32 s{sTmp2}, s{sNW}, 3")
        A(f"s_add_u32 s{sTmp}, s{sTmp}, s{sTmp2}")
        A(f"s_add_u32 s{sTmp}, s{sTmp}, {a}")
        A(f"s_lshl_b32 s{sTmp2}, s{sRB}, 1")
        A(f"s_add_u32 s{sTmp2}, s{sTmp2}, s{sMW}")
        A(f"s_mul_i32 s{sTmp2}, s{sTmp2}, 54")
        A(f"s_lshr_b32 s{sTmp3}, s{sTmp}, 1")
        A(f"s_add_u32 s{sTmp2}, s{sTmp2}, s{sTmp3}")
        A(f"s_lshl_b32 s{sTmp2}, s{sTmp2}, 12")
        A(f"s_and_b32 s{sTmp}, s{sTmp}, 1")
        A(f"s_lshl_b32 s{sTmp}, s{sTmp}, 9")
        A(f"s_add_u32 s{sTmp}, s{sTmp}, s{sTmp2}")
        C = lambda m, k: c + 4 * m + k
        MP = [(m, i) for m in range(4) for i in (0, 2)]
        Gt = lambda m: acc16(m, a, 0)
        Up = lambda m: acc16(m, a, 1)
        Tm = lambda m: t + 4 * m
        cg_, cu_ = cs + 8 * a, cs + 8 * a + 4
        for m, i in MP:
            pk_fma(A, Gt(m) + i, ("b", C(m, 0)), ("p", cg_ + i), ("p", Gt(m) + i), neg_a=True)
        for m, i in MP:
            pk_mul(A, Tm(m) + i, ("p", Gt(m) + i), ("p", Gt(m) + i))
        for m, i in MP:
            pk_fma(A, Tm(m) + i, ("p", Tm(m) + i), ("b", C(m, 3)), ("b", C(m, 2)))
        for m, i in MP:
            pk_mul(A, Tm(m) + i, ("p", Tm(m) + i), ("p", Gt(m) + i))
        for m, i in MP:
            A(f"v_exp_f32 v{Tm(m)+i}, v{Tm(m)+i}")
            A(f"v_exp_f32 v{Tm(m)+i+1}, v{Tm(m)+i+1}")
            pk_fma(A, Up(m) + i, ("b", C(m, 0)), ("p", cu_ + i), ("p", Up(m) + i), neg_a=True)
        for m, i in MP:
            pk_fma(A, Tm(m) + i, ("p", Tm(m) + i), ("b", C(m, 1)), ("b", C(m, 1)))
        for m, i in MP:
            A(f"v_rcp_f32 v{Tm(m)+i}, v{Tm(m)+i}")
            A(f"v_rcp_f32 v{Tm(m)+i+1}, v{Tm(m)+i+1}")
            pk_mul(A, Gt(m) + i, ("p", Gt(m) + i), ("p", Up(m) + i))
        for m, i in MP:
            pk_mul(A, Gt(m) + i, ("p", Gt(m) + i), ("p", Tm(m) + i))
        for pr in range(2):
            ob = Up(2 * pr)
            for h in range(2):
                A(f"v_cvt_pk_bf16_f32 v{ob+2*h}, v{Gt(2*pr+h)}, v{Gt(2*pr+h)+1}")
                A(f"v_cvt_pk_bf16_f32 v{ob+2*h+1}, v{Gt(2*pr+h)+2}, v{Gt(2*pr+h)+3}")
        for pr in range(2):
            ob = Up(2 * pr)
            A(f"v_permlane16_swap_b32 v{ob}, v{ob+2}")
            A(f"v_permlane16_swap_b32 v{ob+1}, v{ob+3}")
        for pr in range(2):
            A(f"buffer_store_dwordx4 {vr(Up(2*pr))}, v{vT1}, {srd(S_WS)}, s{sTmp} offen offset:{pr*2048} sc1")


def pk(r, bc=False):
    return f"v[{r}:{r+1}]"


def pko(*bc):
    lo = ",".join("1" if b == 1 else "0" for b in bc)
    hi = ",".join("0" if b == 0 else "1" for b in bc)
    return f"op_sel:[{lo}] op_sel_hi:[{hi}]"


def opnd(x):
    k, r = x
    if k == "p":
        return pk(r), None
    return pk(r & ~1), r & 1


def pk_fma(A, d, a, b, c, neg_a=False):
    (ta, fa), (tb_, fb), (tc, fc) = opnd(a), opnd(b), opnd(c)
    n = " neg_lo:[1,0,0] neg_hi:[1,0,0]" if neg_a else ""
    A(f"v_pk_fma_f32 {pk(d)}, {ta}, {tb_}, {tc} {pko(fa, fb, fc)}{n}")


def pk_mul(A, d, a, b, op="mul"):
    (ta, fa), (tb_, fb) = opnd(a), opnd(b)
    A(f"v_pk_{op}_f32 {pk(d)}, {ta}, {tb_} {pko(fa, fb)}")


def phi_block(A, d, n, t, mu, cs, r, rl, eps):
    P = range(0, n, 2)
    for i in P:
        pk_fma(A, d + i, mu(i), cs(i), ("p", d + i), neg_a=True)
    for i in P:
        pk_mul(A, t + i, ("p", d + i), rl(i))
    for i in P:
        A(f"v_exp_f32 v{t+i}, v{t+i} clamp")
        A(f"v_exp_f32 v{t+i+1}, v{t+i+1} clamp")
        pk_fma(A, d + i, ("p", d + i), r(i), ("b", eps))
    for i in range(n):
        A(f"v_max_f32 v{d+i}, v{d+i}, v{eps}")
    for i in P:
        pk_mul(A, d + i, ("p", d + i), ("p", t + i), op="add")


def k1_epi_q(A, acc):
    c = vBUF
    cs = vBUF + 8
    t = vBUF + 40
    o = vBUF + 56
    mu, r, rl, eps = c, c + 1, c + 2, c + 3
    A(f"v_lshrrev_b32 v{vT0}, 5, v{vLane}")
    A(f"v_lshlrev_b32 v{vT0}, 4, v{vT0}")
    A(f"s_mul_i32 s{sTmp}, s{sNW}, 640")
    A(f"s_add_u32 s{sTmp}, s{sTmp}, {MISC_LDS}")
    A(f"v_add_u32 v{vT0}, s{sTmp}, v{vT0}")
    A(f"v_and_b32 v{vT1}, 31, v{vLane}")
    A(f"s_lshl_b32 s{sTmp}, s{sMW}, 8")
    A(f"s_add_u32 s{sTmp}, s{sTmp}, {MISC_LDS+2048}")
    A(f"v_lshl_add_u32 v{vT1}, v{vT1}, 3, s{sTmp}")
    A(f"ds_read_b64 {vr(mu, 2)}, v{vT1}")
    for q in range(4):
        A(f"ds_read_b128 {vr(cs+4*q)}, v{vT0} offset:{q*32}")
    A("s_waitcnt lgkmcnt(4)")
    A(f"v_rsq_f32 v{r}, v{r}")
    A(f"v_mov_b32 v{eps}, {f32(1e-6)}")
    A(f"v_mul_f32 v{rl}, {f32(LOG2E)}, v{r}")
    A(f"v_bfe_u32 v{vT1}, v{vLane}, 4, 1")
    A(f"v_lshlrev_b32 v{vT1}, 10, v{vT1}")
    A(f"v_lshrrev_b32 v{vT2}, 5, v{vLane}")
    A(f"v_lshl_add_u32 v{vT1}, v{vT2}, 8, v{vT1}")
    A(f"v_and_b32 v{vT2}, 15, v{vLane}")
    A(f"v_lshl_add_u32 v{vT1}, v{vT2}, 4, v{vT1}")
    A(f"s_lshl_b32 s{sTmp}, s{sRB}, 1")
    A(f"s_lshr_b32 s{sTmp2}, s{sMW}, 1")
    A(f"s_add_u32 s{sTmp}, s{sTmp}, s{sTmp2}")
    A(f"s_mul_i32 s{sTmp}, s{sTmp}, 20")
    A(f"s_sub_u32 s{sTmp2}, s{sCG}, 13")
    A(f"s_mul_i32 s{sTmp2}, s{sTmp2}, 10")
    A(f"s_add_u32 s{sTmp}, s{sTmp}, s{sTmp2}")
    A(f"s_mul_i32 s{sTmp2}, s{sNW}, 5")
    A(f"s_add_u32 s{sTmp}, s{sTmp}, s{sTmp2}")
    A(f"s_lshl_b32 s{sTmp}, s{sTmp}, 12")
    A(f"s_and_b32 s{sTmp2}, s{sMW}, 1")
    A(f"s_lshl_b32 s{sTmp2}, s{sTmp2}, 11")
    A(f"s_add_u32 s{sTmp}, s{sTmp}, s{sTmp2}")
    A(f"s_add_u32 s{sTmp}, s{sTmp}, {WS_PQ}")
    for a in range(5):
        csa = cs + 16 * (a % 2)
        if a < 4:
            for q in range(4):
                A(f"ds_read_b128 {vr(cs+16*((a+1)%2)+4*q)}, v{vT0} offset:{(a+1)*128+q*32}")
            A("s_waitcnt lgkmcnt(4)")
        else:
            A("s_waitcnt lgkmcnt(0)")
        d = acc(0, a)
        phi_block(A, d, 16, t, lambda i: ("b", mu), lambda i: ("p", csa + i), lambda i: ("b", r), lambda i: ("b", rl), eps)
        ob = o + 8 * (a % 2)
        for i in range(8):
            A(f"v_cvt_pk_bf16_f32 v{ob+i}, v{d+2*i}, v{d+2*i+1}")
        A(f"buffer_store_dwordx4 {vr(ob)}, v{vT1}, {srd(S_WS)}, s{sTmp} offen sc1")
        A(f"buffer_store_dwordx4 {vr(ob+4)}, v{vT1}, {srd(S_WS)}, s{sTmp} offen offset:512 sc1")
        A(f"s_add_u32 s{sTmp}, s{sTmp}, 4096")


KV_PAIRS = [(0, 2), (0, 3), (1, 3), (1, 4), (2, 4)]
KV_Q = [[0, 1, 2], [0, 1, 2, 3], [0, 1, 2, 3], [1, 2, 3], [0, 1]]
KV_AD = 232
KV_SLAB = [0, 14336, 135168, 149504]
KV_DUMMY = 28688


def kv_addr_setup(A):
    e, he, d0, dm = vT0, vT1, vT2, vT3
    t = vBUF + 24
    A(f"s_mul_i32 s{sTmp3}, s{sMW}, 14336")
    A(f"s_cmp_ge_u32 s{sMW}, 2")
    A(f"s_cselect_b32 s{sTmp}, {135168 - 2*14336}, 0")
    A(f"s_add_u32 s{sTmp3}, s{sTmp3}, s{sTmp}")
    A(f"s_mul_i32 s{sTmp}, s{sNW}, 6720")
    A(f"s_add_u32 s{sTmp3}, s{sTmp3}, s{sTmp}")
    A(f"v_lshlrev_b32 v{dm}, 4, v{vLane}")
    A(f"v_add_u32 v{dm}, {KV_DUMMY}, v{dm}")
    A(f"v_lshrrev_b32 v{d0}, 5, v{vLane}")
    A(f"v_lshlrev_b32 v{d0}, 2, v{d0}")
    for n, (a, b) in enumerate(KV_PAIRS):
        A(f"v_and_b32 v{e}, 31, v{vLane}")
        A(f"v_add_u32 v{e}, {32*b - 80 + 100}, v{e}")
        A(f"v_mul_u32_u24 v{he}, 205, v{e}")
        A(f"v_lshrrev_b32 v{he}, 12, v{he}")
        A(f"v_mul_u32_u24 v{e}, 80, v{e}")
        A(f"v_add_u32 v{e}, s{sTmp3}, v{e}")
        for q in KV_Q[n]:
            a0 = KV_AD + 4 * n + q
            A(f"v_add_u32 v{a0}, {32*a + 8*q + 100}, v{d0}")
            A(f"v_mul_u32_u24 v{t}, 205, v{a0}")
            A(f"v_lshrrev_b32 v{t}, 12, v{t}")
            A(f"v_cmp_eq_u32 vcc, v{t}, v{he}")
            A(f"v_lshl_add_u32 v{a0}, v{a0}, 2, v{e}")
            A(f"v_subrev_u32 v{a0}, {80*100 + 4*100}, v{a0}")
            A(f"v_cndmask_b32 v{a0}, v{dm}, v{a0}, vcc")
    A(f"v_and_b32 v{e}, 15, v{vLane}")
    A(f"v_lshrrev_b32 v{d0}, 4, v{vLane}")
    A(f"v_lshlrev_b32 v{d0}, 2, v{d0}")
    A(f"v_lshl_add_u32 v{d0}, v{e}, 4, v{d0}")
    for a in range(3):
        az = KV_AD + 20 + a
        A(f"v_add_u32 v{az}, {32*a}, v{d0}")
        A(f"v_mul_u32_u24 v{t}, 205, v{az}")
        A(f"v_lshrrev_b32 v{t}, 12, v{t}")
        A(f"v_mul_u32_u24 v{t}, 1600, v{t}")
        A(f"v_lshl_add_u32 v{az}, v{az}, 2, v{t}")
        A(f"v_add_u32 v{az}, s{sTmp3}, v{az}")
        A(f"v_add_u32 v{az}, 1600, v{az}")
        A(f"v_cmp_gt_u32 vcc, {2 if a < 2 else 1}, v{e}")
        A(f"v_cndmask_b32 v{az}, v{dm}, v{az}, vcc")


def k1_epi_kv(A, acc):
    mu = vBUF
    rr = vBUF + 16
    rl = vBUF + 32
    t = vBUF + 48
    raw = vBUF + 48
    cs = vBUF + 80
    eps = vBUF + 86
    sv = vBUF + 64
    A(f"v_and_b32 v{vT0}, 31, v{vLane}")
    A(f"v_cmp_gt_u32 vcc, 16, v{vT0}")
    A(f"v_lshlrev_b32 v{vT0}, 2, v{vT0}")
    A(f"s_mul_i32 s{sTmp}, s{sNW}, 640")
    A(f"s_add_u32 s{sTmp}, s{sTmp}, {MISC_LDS}")
    A(f"v_add_u32 v{vT1}, s{sTmp}, v{vT0}")
    A(f"v_lshrrev_b32 v{vT2}, 5, v{vLane}")
    A(f"s_lshl_b32 s{sTmp}, s{sMW}, 8")
    A(f"s_add_u32 s{sTmp}, s{sTmp}, {MISC_LDS+2048}")
    A(f"v_lshl_add_u32 v{vT2}, v{vT2}, 5, s{sTmp}")
    for q in range(4):
        for h in range(2):
            A(f"ds_read_b128 {vr(raw+8*q+4*h)}, v{vT2} offset:{q*64+h*16}")
    for a in range(5):
        A(f"ds_read_b32 v{cs+a}, v{vT1} offset:{a*128}")
    A("s_waitcnt lgkmcnt(5)")
    for i in range(16):
        A(f"v_rsq_f32 v{rr+i}, v{raw+2*i+1}")
        A(f"v_mov_b32 v{mu+i}, v{raw+2*i}")
    for i in range(16):
        A(f"v_mul_f32 v{rl+i}, {f32(LOG2E)}, v{rr+i}")
    A(f"v_mov_b32 v{eps}, {f32(1e-6)}")
    A("s_waitcnt lgkmcnt(0)")
    op = lambda a, h: acc(0, a) + 4 * h

    def pack(a):
        d = acc(0, a)
        for i in range(8):
            A(f"v_cvt_pk_bf16_f32 v{d+i}, v{d+2*i}, v{d+2*i+1}")

    def plain(a, dst):
        d = acc(0, a)
        for i in range(0, 16, 2):
            pk_fma(A, dst + i, ("p", mu + i), ("b", cs + a), ("p", d + i), neg_a=True)
        for i in range(0, 16, 2):
            pk_mul(A, dst + i, ("p", dst + i), ("p", rr + i))

    def phi(a):
        phi_block(A, acc(0, a), 16, t, lambda i: ("p", mu + i), lambda i: ("b", cs + a), lambda i: ("p", rr + i), lambda i: ("p", rl + i), eps)
    for a in (3, 4):
        plain(a, acc(0, a))
        pack(a)
    plain(2, sv)
    phi(2)
    for i in range(16):
        A(f"v_cndmask_b32 v{acc(0,2)+i}, v{sv+i}, v{acc(0,2)+i}, vcc")
    pack(2)
    for a in (0, 1):
        phi(a)
        pack(a)
    D = lambda n: vBUF + 16 * n
    Z = lambda a: vBUF + 80 + 4 * a
    for h in range(2):
        for n, (a, b) in enumerate(KV_PAIRS):
            A(f"v_mfma_f32_32x32x16_bf16 {vr(D(n),16)}, {vr(op(a,h))}, {vr(op(b,h))}, {vr(D(n),16) if h else 0}")
        for a in range(3):
            A(f"v_mfma_f32_16x16x32_bf16 {vr(Z(a))}, {vr(op(a,h))}, {vr(vSel)}, {vr(Z(a)) if h else 0}")
    A("s_barrier")
    for n in range(5):
        for q in KV_Q[n]:
            A(f"ds_write_b128 v{KV_AD+4*n+q}, {vr(D(n)+4*q)}")
    for a in range(3):
        A(f"ds_write_b128 v{KV_AD+20+a}, {vr(Z(a))}")
    sSlab = 4
    A(f"s_sub_u32 s{sSlab}, s{sCG}, 9")
    A(f"s_mul_i32 s{sSlab}, s{sSlab}, 13440")
    A(f"s_add_u32 s{sSlab}, s{sSlab}, {WS_KVA}")
    A(f"v_lshlrev_b32 v{vT0}, 2, v0")
    A(f"v_add_u32 v{vT1}, {KV_SLAB[2]}, v{vT0}")
    A(f"v_cmp_gt_u32 vcc, {3360-6*512}, v0")
    A(f"v_mov_b32 v{vT2}, {OOB}")
    A(f"v_cndmask_b32 v{vT2}, v{vT2}, v{vT0}, vcc")
    A("s_waitcnt lgkmcnt(0)")
    A("s_barrier")
    R = vACC
    for j in range(7):
        for m in range(4):
            A(f"ds_read_b32 v{R+4*j+m}, v{vT0 if m < 2 else vT1} offset:{j*2048 + (m%2)*14336}")
        if j >= 2:
            k = j - 2
            A("s_waitcnt lgkmcnt(8)")
            kv_atomic(A, R, k, sSlab)
    for k in (5, 6):
        A(f"s_waitcnt lgkmcnt({4*(6-k)})")
        kv_atomic(A, R, k, sSlab)


def kv_atomic(A, R, k, sSlab):
    A(f"v_add_f32 v{R+4*k}, v{R+4*k}, v{R+4*k+1}")
    A(f"v_add_f32 v{R+4*k+2}, v{R+4*k+2}, v{R+4*k+3}")
    A(f"v_add_f32 v{R+4*k}, v{R+4*k}, v{R+4*k+2}")
    A(f"buffer_atomic_add_f32 v{R+4*k}, v{vT0 if k < 6 else vT2}, {srd(S_WS)}, s{sSlab} offen offset:{(k%2)*2048}")
    if k % 2 == 1:
        A(f"s_add_u32 s{sSlab}, s{sSlab}, 4096")


def k1_aux(A):
    if OPT["CODEWARM"] == 1:
        A("s_getpc_b64 s[10:11]")
        A.label("L_pc")
        A(f"s_sub_u32 s10, s10, L_pc-{NAME}_kernel")
        A("s_subb_u32 s11, s11, 0")
        A(f"v_lshlrev_b32 v{vT0}, 7, v0")
        A(f"v_min_u32 v{vT0}, L_code_end-{NAME}_kernel-4, v{vT0}")
        A(f"global_load_dword v{vACC+8}, v{vT0}, s[10:11]")
    if OPT["TLBWARM"]:
        g = OPT["TLBWARM"]
        mk_srd(A, S_T, P_OUT, 2048 * 1280)
        A(f"v_lshlrev_b32 v{vT0}, {g}, v0")
        A(f"buffer_load_dword v{vACC+9}, v{vT0}, {srd(S_WS)}, 0 offen sc1")
        A(f"buffer_load_dword v{vACC+10}, v{vT0}, {srd(S_T)}, 0 offen sc1")
    for i in range(4):
        A(f"v_mov_b32 v{vACC+i}, 0")
    A(f"v_lshlrev_b32 v{vT0}, 4, v0")
    A(f"s_mul_i32 s{sTmp}, s{sRB}, 3360")
    A(f"s_add_u32 s{sTmp}, s{sTmp}, {WS_KVA}")
    A(f"v_add_u32 v{vT0}, s{sTmp}, v{vT0}")
    A(f"v_mov_b32 v{vT2}, {OOB}")
    A(f"v_cmp_gt_u32 vcc, 210, v0")
    A(f"v_cndmask_b32 v{vT0}, v{vT2}, v{vT0}, vcc")
    A(f"s_cmp_lg_u32 s{sWave}, 7")
    A("s_cbranch_scc1 L_A_z")
    A(f"s_lshl_b32 s{sTmp}, s{sRB}, 8")
    A(f"s_add_u32 s{sTmp}, s{sTmp}, {WS_FL}")
    A(f"v_writelane_b32 v{vT0}, s{sTmp}, 0")
    A(f"s_add_u32 s{sTmp}, s{sTmp}, {FL_ROW}")
    A(f"v_writelane_b32 v{vT0}, s{sTmp}, 3")
    A(f"s_lshl_b32 s{sTmp}, s{sRB}, 9")
    A(f"s_add_u32 s{sTmp}, s{sTmp}, {WS_FL + FL_KV}")
    A(f"v_writelane_b32 v{vT0}, s{sTmp}, 1")
    A(f"s_add_u32 s{sTmp}, s{sTmp}, 256")
    A(f"v_writelane_b32 v{vT0}, s{sTmp}, 2")
    A.label("L_A_z")
    A(f"buffer_store_dwordx4 {vr(vACC)}, v{vT0}, {srd(S_WS)}, 0 offen sc1")
    A(f"s_cmp_lg_u32 s{sWave}, 7")
    A("s_cbranch_scc1 L_A_z2")
    A("s_waitcnt vmcnt(0)")
    A(f"v_mov_b32 v{vT0}, {OOB}")
    A(f"v_writelane_b32 v{vT0}, 0, 0")
    A(f"v_mov_b32 v{vT1}, 1")
    A(f"buffer_atomic_add v{vT1}, v{vT0}, {srd(S_DBG)}, 0 offen sc1")
    A.label("L_A_z2")
    A(f"s_lshl_b32 s{sUw}, s{sRB}, 3")
    A(f"s_add_u32 s{sUw}, s{sUw}, s{sWave}")
    A(f"s_add_u32 s{sUw}, s{sUw}, 480")
    A(f"s_mul_i32 s{sUl}, s{sWave}, 12288")
    for i in range(3):
        A(f"s_add_u32 s{sU}, s{sUw}, {128*i}")
        A(f"s_add_u32 s9, s{sUl}, {4096*i}")
        w2_unit_dma(A, "s9")
    A("s_waitcnt vmcnt(12)")
    k1_stats(A, "X")
    for i in range(3):
        A("s_waitcnt vmcnt(9)")
        A(f"s_add_u32 s{sU}, s{sUw}, {128*i}")
        A(f"s_add_u32 s9, s{sUl}, {4096*i}")
        w2_unit_out(A, "s9", lambda t: vACC + 16 + 16 * i + 4 * t)
    A("s_waitcnt vmcnt(0)")
    A("s_barrier")
    stamp(A, 9, 0)
    A(f"s_cmp_lg_u32 s{sWave}, 0")
    A("s_cbranch_scc1 L_A_w")
    k1_publish(A)
    A(f"s_mov_b32 s{sSpin}, 0")
    wait_zeroed(A, "L_A_wz", False)
    poll_addr(A)
    A.label("L_A_poll")
    A("s_sleep 32")
    A(f"buffer_load_dword v{vPoll}, v{vPa}, {srd(S_WS)}, 0 offen sc1")
    A("s_waitcnt vmcnt(0)")
    poll_cmp(A)
    A(f"s_add_u32 s{sSpin}, s{sSpin}, 1")
    A(f"s_cmp_gt_u32 s{sSpin}, {SPIN_MAX}")
    A("s_cbranch_scc1 L_A_w")
    A(f"s_cmp_lg_u64 vcc, 0")
    A("s_cbranch_scc1 L_A_poll")
    A.label("L_A_w")
    A("s_barrier")
    stamp(A, 3, 0)
    p2_ids(A)
    A(f"s_mov_b32 s{sWoDone}, 0")
    A(f"v_mov_b32 v{vSigA}, {OOB}")
    A(f"v_mov_b32 v{vSigV}, 0")
    A("s_branch L_p2")


def kernel1(A):
    A(".p2align 8")
    A.label(NAME + "_kernel")
    A("s_cmp_ge_u32 s2, 256")
    A("s_cbranch_scc1 L_k1_exit")
    if OPT["XMAP"]:
        A("s_lshr_b32 s3, s2, 5")
        A("s_and_b32 s2, s2, 31")
        A("s_lshl_b32 s2, s2, 3")
        A("s_or_b32 s2, s2, s3")
    load_ptrs(A)
    if OPT["CODEWARM"] == 2:
        A("s_getpc_b64 s[10:11]")
        A.label("L_pc")
        A(f"s_sub_u32 s10, s10, L_pc-{NAME}_kernel")
        A("s_subb_u32 s11, s11, 0")
        A("s_lshr_b32 s4, s2, 3")
        A("s_lshl_b32 s4, s4, 7")
        A(f"v_lshl_add_u32 v{vT0}, v0, 12, s4")
        A(f"v_min_u32 v{vT0}, L_code_end-{NAME}_kernel-4, v{vT0}")
        A("v_cmp_gt_u32 vcc, 16, v0")
        A("s_and_saveexec_b64 s[12:13], vcc")
        A("s_cbranch_execz L_nocw")
        A(f"global_load_dword v255, v{vT0}, s[10:11]")
        A.label("L_nocw")
        A("s_mov_b64 exec, s[12:13]")
    A(f"v_and_b32 v{vLane}, 63, v0")
    A(f"v_lshrrev_b32 v{vT0}, 6, v0")
    A(f"v_readfirstlane_b32 s{sWave}, v{vT0}")
    A("s_and_b32 s3, s2, 7")
    A("s_lshr_b32 s4, s2, 3")
    A("s_lshr_b32 s5, s3, 2")
    A("s_and_b32 s6, s3, 3")
    A("s_mul_i32 s7, s6, 30")
    A("s_add_u32 s7, s7, s4")
    A(f"s_lshr_b32 s{sCG}, s7, 3")
    if OPT["CGPERM"]:
        perm = [0, 9, 1, 13, 2, 10, 3, 4, 5, 11, 6, 14, 7, 12, 8, 15]
        tab = sum(p << (4 * i) for i, p in enumerate(perm))
        A(f"s_mov_b32 s10, {tab & 0xffffffff}")
        A(f"s_mov_b32 s11, {tab >> 32}")
        A(f"s_lshl_b32 s{sCG}, s{sCG}, 2")
        A(f"s_lshr_b64 s[10:11], s[10:11], s{sCG}")
        A(f"s_and_b32 s{sCG}, s10, 15")
    A(f"s_and_b32 s{sRB}, s7, 7")
    A("s_lshl_b32 s8, s6, 1")
    A("s_add_u32 s8, s8, s4")
    A("s_sub_u32 s8, s8, 30")
    A("s_cmp_lt_u32 s4, 30")
    A(f"s_cselect_b32 s{sCG}, s{sCG}, 15")
    A(f"s_cselect_b32 s{sRB}, s{sRB}, s8")
    A("s_lshl_b32 s5, s5, 3")
    A(f"s_add_u32 s{sRB}, s{sRB}, s5")
    A(f"s_and_b32 s3, s{sRB}, 7")
    A("s_lshr_b32 s4, s3, 2")
    A(f"s_add_u32 s{sC0}, s3, s4")
    A(f"s_lshr_b32 s4, s{sRB}, 3")
    A(f"s_add_u32 s{sC0}, s{sC0}, s4")
    A("s_waitcnt lgkmcnt(0)")
    mk_srd(A, S_X, P_X, 2048 * 1280)
    mk_srd(A, S_WS, P_WS, WS_SIZE)
    mk_srd(A, S_DBG, P_DBG, 256)
    stamp(A, 0, 0)
    if OPT["P2ONLY"]:
        p2_ids(A)
        A(f"s_mov_b32 s{sWoDone}, 0")
        A(f"v_mov_b32 v{vSigA}, {OOB}")
        A(f"v_mov_b32 v{vSigV}, 0")
        A("s_branch L_p2")
    if OPT["DLY"] == 4:
        A("s_sleep 34")
    k1_stats_issue(A)
    A(f"s_cmp_eq_u32 s{sCG}, 15")
    A("s_cbranch_scc1 L_aux")
    A(f"v_lshrrev_b32 v{vT0}, 3, v{vLane}")
    A(f"v_lshrrev_b32 v{vT1}, 4, v{vLane}")
    A(f"v_and_b32 v{vT2}, 7, v{vLane}")
    A(f"v_xor_b32 v{vT1}, v{vT1}, v{vT2}")
    if OPT["NOSWZ"]: A(f"v_and_b32 v{vT1}, 7, v{vLane}")
    A(f"s_lshl_b32 s3, s{sRB}, 7")
    if OPT["SAME"]: A("s_mov_b32 s3, 0")
    A(f"s_and_b32 s4, s{sWave}, 3")
    A(f"s_lshl_b32 s{sXslot}, s4, 12")
    A(f"s_lshl_b32 s4, s4, 5")
    A("s_add_u32 s3, s3, s4")
    A(f"v_add_u32 v{vT0}, s3, v{vT0}")
    A(f"v_mul_u32_u24 v{vT0}, 1280, v{vT0}")
    A(f"v_lshl_add_u32 v{vXo}, v{vT1}, 4, v{vT0}")
    A(f"v_xor_b32 v{vT1}, 4, v{vT1}")
    A(f"v_lshl_add_u32 v{vXo+1}, v{vT1}, 4, v{vT0}")
    A(f"v_add_u32 v{vXo+1}, {8*1280}, v{vXo+1}")
    A(f"s_lshl_b32 s{sKX}, s{sC0}, 7")
    A(f"s_mov_b32 s{sKXn}, 0")
    A(f"s_cmp_ge_u32 s{sCG}, 13")
    A("s_cbranch_scc1 L_typeQ")
    A(f"s_cmp_ge_u32 s{sCG}, 9")
    A("s_cbranch_scc1 L_typeK")
    k1_gemm(A, "G")
    A.label("L_typeQ")
    k1_gemm(A, "Q")
    A.label("L_typeK")
    k1_gemm(A, "K")
    A.label("L_aux")
    k1_aux(A)
    phase2(A)
    A.label("L_k1_exit")
    A("s_endpgm")
    A.label("L_code_end")


sRB64, sC, sHo, sWo, sFl, sWoDone, sWoL, sWoG, sWoI, sHb, sHe, sWb, sWe = sKW, sKWn, sKX, sKXn, sWslot, sRslot, sXslot, sStepW, sCSit, sSpec, sWrapW, sC0, sRow
vL16 = 5


def p2_ids(A):
    A("s_and_b32 s3, s2, 7")
    A("s_lshr_b32 s4, s2, 3")
    A(f"s_and_b32 s{sC}, s4, 7")
    A("s_lshr_b32 s4, s4, 3")
    A("s_lshl_b32 s3, s3, 2")
    A(f"s_add_u32 s{sRB64}, s3, s4")
    if OPT["P2SAME"] == 1:
        A(f"s_and_b32 s{sRB64}, s{sRB64}, 1")
        A(f"s_and_b32 s{sC}, s{sC}, 1")
    if OPT["P2SAME"] == 2:
        A(f"s_and_b32 s{sC}, s{sC}, 3")
    A(f"v_lshlrev_b32 v{vL16}, 4, v{vLane}")


WO_LDS = 32768


def wo_early(A, first, per_wave):
    A("s_lshr_b32 s4, s2, 3")
    A("s_and_b32 s4, s4, 7")
    A(f"s_mul_i32 s4, s4, {74*5120}")
    A(f"s_and_b32 s5, s{sWave}, 3")
    A(f"s_mul_i32 s5, s5, {per_wave*1024}")
    A("s_add_u32 s4, s4, s5")
    A(f"s_add_u32 s4, s4, {WS_W2 + 54*5120 + first*1024}")
    A(f"s_add_u32 s5, s5, {WO_LDS + first*1024}")
    A(f"v_lshlrev_b32 v{vT0}, 4, v{vLane}")
    for i in range(per_wave):
        if i % 4 == 0:
            A(f"s_add_u32 m0, s5, {i*1024}")
            A(f"s_add_u32 s6, s4, {i*1024}")
        A(f"buffer_load_dwordx4 v{vT0}, {srd(S_WS)}, s6 offen offset:{(i%4)*1024} sc1 lds")


def wo_setup(A):
    A(f"s_mul_i32 s{sWoL}, s{sWave}, 25600")
    A(f"s_add_u32 s{sWoL}, s{sWoL}, {WO_LDS}")
    A(f"s_mul_i32 s6, s{sC}, 74")
    A(f"s_mul_i32 s7, s{sWave}, 5")
    A("s_add_u32 s6, s6, s7")
    A("s_add_u32 s6, s6, 54")
    A("s_mul_i32 s6, s6, 5120")
    A(f"s_add_u32 s{sWoG}, s6, {WS_W2}")
    A(f"s_and_b32 s{sWoI}, s{sRB64}, 3")
    A(f"s_mul_i32 s{sWoI}, s{sWoI}, {6*1024}")


def wo_dmas():
    return [f"s_add_u32 m0, s{sWoL}, s{sWoI}\n"
            f"s_add_u32 s9, s{sWoG}, s{sWoI}\n"
            f"buffer_load_dwordx4 v{vL16}, {srd(S_WS)}, s9 offen sc1 lds\n"
            f"s_add_u32 s{sWoI}, s{sWoI}, 1024\n"
            f"s_cmp_eq_u32 s{sWoI}, {25*1024}\n"
            f"s_cselect_b32 s{sWoI}, 0, s{sWoI}" for _ in range(25)]


NK, WD, HD = 14, 6, 3
q4 = lambda a, b: list(range(a, b, 4))
WQ = q4(8, 56) + q4(128, 152) + q4(248, 256) + q4(112, 128) + q4(152, 168) + q4(200, 208)
AQ = q4(88, 112) + q4(168, 192) + q4(56, 88)
HQ = q4(192, 200) + q4(208, 248)
assert len(WQ) == 30 and len(AQ) == 20 and len(HQ) == 12 and len(set(WQ + AQ + HQ)) == 62
sLast = sOdd


def ffn_setup(A):
    A(f"s_sub_u32 s3, s{sWave}, 4")
    A("s_mul_i32 s4, s3, 14")
    A("s_cmp_eq_u32 s3, 3")
    A("s_cselect_b32 s5, 1, 0")
    A("s_sub_u32 s4, s4, s5")
    A("s_cmp_ge_u32 s3, 2")
    A("s_cselect_b32 s5, 13, 14")
    A(f"s_cselect_b32 s{sLast}, {OOB}, 0")
    A(f"s_and_b32 s6, s{sRB64}, 3")
    A("s_lshl_b32 s6, s6, 1")
    A(f"s_add_u32 s6, s6, s{sC}")
    A("s_mul_i32 s6, s6, 7")
    A("s_lshr_b32 s6, s6, 2")
    A("s_sub_u32 s7, s6, s5")
    A("s_cmp_ge_u32 s6, s5")
    A("s_cselect_b32 s6, s7, s6")
    if not OPT["P2ROT"]:
        A("s_mov_b32 s6, 0")
    A(f"s_mul_i32 s{sHb}, s{sRB64}, 54")
    A(f"s_add_u32 s{sHb}, s{sHb}, s4")
    A(f"s_lshl_b32 s{sHb}, s{sHb}, 12")
    A("s_lshl_b32 s7, s5, 12")
    A(f"s_add_u32 s{sHe}, s{sHb}, s7")
    A("s_lshl_b32 s7, s6, 12")
    A(f"s_add_u32 s{sHo}, s{sHb}, s7")
    A(f"s_mul_i32 s{sWb}, s{sC}, 74")
    A(f"s_add_u32 s{sWb}, s{sWb}, s4")
    A(f"s_mul_i32 s{sWb}, s{sWb}, 5120")
    A(f"s_add_u32 s{sWb}, s{sWb}, {WS_W2}")
    A("s_mul_i32 s7, s5, 5120")
    A(f"s_add_u32 s{sWe}, s{sWb}, s7")
    A("s_mul_i32 s7, s6, 5120")
    A(f"s_add_u32 s{sWo}, s{sWb}, s7")


def ldW_groups(j):
    out = []
    pre = f"s_add_u32 s{sWo}, s{sWo}, s{sLast}\n" if j == NK - 1 else ""
    for nt in range(4):
        out.append((pre if nt == 0 else "") +
                   f"buffer_load_dwordx4 {vr(WQ[5*(j%WD)+nt])}, v{vL16}, {srd(S_WS)}, s{sWo} offen offset:{nt*1024}{HSC}")
    out.append(f"s_add_u32 s3, s{sWo}, 4096\n"
               f"buffer_load_dwordx4 {vr(WQ[5*(j%WD)+4])}, v{vL16}, {srd(S_WS)}, s3 offen{HSC}\n"
               f"s_add_u32 s{sWo}, s{sWo}, 5120\n"
               f"s_cmp_eq_u32 s{sWo}, s{sWe}\n"
               f"s_cselect_b32 s{sWo}, s{sWb}, s{sWo}")
    return out


def poll_flag(A, lab, addr_s, mask, target, vtmp):
    A(f"s_mov_b32 s{sSpin}, 0")
    A(f"v_mov_b32 v{vtmp+1}, 0")
    A.label(lab)
    A(f"buffer_load_dword v{vtmp}, v{vtmp+1}, {srd(S_WS)}, s{addr_s} offen sc1")
    A("s_waitcnt vmcnt(0)")
    A(f"v_readfirstlane_b32 s{sTmp3}, v{vtmp}")
    A(f"s_add_u32 s{sSpin}, s{sSpin}, 1")
    A(f"s_and_b32 s{sTmp3}, s{sTmp3}, {mask}")
    A(f"s_cmp_ge_u32 s{sTmp3}, {0 if OPT['P2ONLY'] else target}")
    A(f"s_cbranch_scc1 {lab}_ok")
    A(f"s_cmp_gt_u32 s{sSpin}, {SPIN_MAX}")
    A(f"s_cbranch_scc1 {lab}_ok")
    A(f"s_sleep {OPT['PSLEEP']}")
    A(f"s_branch {lab}")
    A.label(lab + "_ok")


def phase2(A):
    S_OUT = S_T
    ACC = 8
    acc = lambda nt, mt: ACC + 4 * (nt * 4 + mt)
    A.label("L_p2")
    mk_srd(A, S_OUT, P_OUT, 2048 * 1280)
    A(f"s_lshr_b32 s{sFl}, s{sRB64}, 1")
    A(f"s_lshl_b32 s{sFl}, s{sFl}, 8")
    A(f"s_add_u32 s{sFl}, s{sFl}, {WS_FL + FL_HC}")
    A.fence()
    A(f"s_cmp_ge_u32 s{sWave}, 4")
    A("s_cbranch_scc1 L2_ffn")

    def signal(n_younger):
        A(f"s_waitcnt vmcnt({n_younger}) lgkmcnt(0)")
        A("s_barrier")

    XR, OA, RA = 232, 238, 241

    def red_setup(A, ta, tb):
        for j in range(3):
            A(f"s_add_u32 s11, s{sWave}, {8*j}")
            A(f"s_lshr_b32 s12, s11, 2")
            A(f"s_and_b32 s13, s11, 3")
            A(f"s_lshl_b32 s14, s{sRB64}, 6")
            A(f"s_lshl_b32 s13, s13, 4")
            A("s_add_u32 s14, s14, s13")
            A("s_mul_i32 s14, s14, 1280")
            A(f"s_mul_i32 s15, s{sC}, 160")
            A("s_add_u32 s14, s14, s15")
            A("s_lshl_b32 s12, s12, 5")
            A("s_add_u32 s14, s14, s12")
            A("s_cmp_lt_u32 s11, 20")
            A(f"s_cselect_b32 s14, s14, {OOB}")
            A(f"v_and_b32 v{ta}, 15, v{vLane}")
            A(f"v_mul_u32_u24 v{ta}, 1280, v{ta}")
            A(f"v_lshrrev_b32 v{tb}, 4, v{vLane}")
            A(f"v_lshl_add_u32 v{ta}, v{tb}, 3, v{ta}")
            A(f"v_add_u32 v{OA+j}, s14, v{ta}")
            A(f"buffer_load_dwordx2 {vr(XR+2*j, 2)}, v{OA+j}, {srd(S_X)}, 0 offen")
            A("s_lshl_b32 s12, s11, 10")
            A(f"s_add_u32 s13, s12, {WO_LDS+5120}")
            A(f"v_add_u32 v{RA+5*j}, s13, v{vL16}")
            for f in range(4):
                A(f"s_add_u32 s13, s12, {KV_SLAB[f]}")
                A(f"s_add_u32 s14, s12, {WO_LDS + f*25600 - 14*1024}")
                A("s_cmp_lt_u32 s11, 14")
                A("s_cselect_b32 s13, s13, s14")
                A("s_cmp_lt_u32 s11, 19")
                A(f"s_cselect_b32 s13, s13, {28672 + f*1024}")
                A(f"v_add_u32 v{RA+5*j+1+f}, s13, v{vL16}")

    AD = 8
    RAW, NRAW = 56, 6
    FR = 80
    OSP = 96
    PQ = lambda mt, blk: 112 + 16 * blk + 4 * mt
    O = lambda u, mt: (OSP + 4 * mt) if u == 0 else PQ(mt, u - 1)
    DEN = 192
    NM = 224
    T = 192
    A(f"s_mul_i32 s8, s{sWave}, 14336")
    A(f"s_cmp_ge_u32 s{sWave}, 2")
    A(f"s_cselect_b32 s9, {135168 - 2*14336}, 0")
    A("s_add_u32 s8, s8, s9")
    for i in range(4):
        A(f"v_mov_b32 v{T+i}, 0")
    A(f"s_add_u32 s9, s8, 13440")
    A(f"v_mov_b32 v{vT2}, s9")
    A(f"ds_write_b128 v{vT2}, {vr(T)}")
    A(f"ds_write_b32 v{vT2}, v{T} offset:16")
    signal(0)
    A(f"s_cmp_lg_u32 s{sWave}, 0")
    A("s_cbranch_scc1 L2_nosig")
    A(f"buffer_atomic_add v{vSigV}, v{vSigA}, {srd(S_WS)}, 0 offen sc1")
    A.label("L2_nosig")
    stamp(A, 0, 1)
    if OPT["NOATT"]:
        A("s_branch L2_reduce")
    A(f"s_cmp_lg_u32 s{sWoDone}, 0")
    A("s_cbranch_scc1 L2_wodone")
    wo_setup(A)
    for g in wo_dmas():
        A(g)
    A.label("L2_wodone")
    A(f"s_mul_i32 s4, s{sWave}, 25600")
    A(f"s_add_u32 s4, s4, {WO_LDS}")
    iL, gL = T + 4, T + 5
    he = T + 12
    hd = T + 22
    ab, zb, hz = T + 6, T + 7, T + 8
    A(f"v_and_b32 v{iL}, 15, v{vLane}")
    A(f"v_lshrrev_b32 v{gL}, 4, v{vLane}")
    for Tt in range(10):
        A(f"v_add_u32 v{he+Tt}, {16*Tt}, v{iL}")
        A(f"v_mul_u32_u24 v{he+Tt}, 205, v{he+Tt}")
        A(f"v_lshrrev_b32 v{he+Tt}, 12, v{he+Tt}")
    for blk in range(5):
        for h in range(2):
            r = hd + 2 * blk + h
            A(f"v_lshlrev_b32 v{r}, 3, v{gL}")
            A(f"v_add_u32 v{r}, {32*blk+4*h}, v{r}")
            A(f"v_mul_u32_u24 v{r}, 205, v{r}")
            A(f"v_lshrrev_b32 v{r}, 12, v{r}")
    A(f"v_mul_u32_u24 v{ab}, 80, v{iL}")
    A(f"v_lshl_add_u32 v{ab}, v{gL}, 5, v{ab}")
    A(f"v_add_u32 v{ab}, s8, v{ab}")
    A(f"v_and_b32 v{hz}, 3, v{iL}")
    A(f"v_mul_u32_u24 v{zb}, 1600, v{hz}")
    A(f"v_lshl_add_u32 v{zb}, v{gL}, 5, v{zb}")
    A(f"v_add_u32 v{zb}, s8, v{zb}")
    NUM = {0: [0], 1: [0, 1], 2: [0, 1], 3: [1, 2], 4: [1, 2], 5: [2, 3], 6: [2, 3], 7: [3, 4], 8: [3, 4], 9: [4]}
    frs = []
    for ch in range(2):
        A(f"v_add_u32 v{T+9}, {4*ch}, v{hz}")
        bl = [0, 1, 2] if ch == 0 else [2, 3, 4]
        for blk in bl:
            n = len(frs)
            frs.append(("z", ch, blk, blk == bl[0], blk == bl[-1]))
            for h in range(2):
                a = AD + 2 * n + h
                A(f"v_cmp_eq_u32 vcc, v{T+9}, v{hd+2*blk+h}")
                A(f"v_add_u32 v{a}, {6400*ch+1600+128*blk+16*h}, v{zb}")
                A(f"v_cndmask_b32 v{a}, v{vT2}, v{a}, vcc")
        for Tt in range(5 * ch, 5 * ch + 5):
            for blk in NUM[Tt]:
                n = len(frs)
                frs.append(("n", Tt, blk, blk == NUM[Tt][0], blk == NUM[Tt][-1]))
                for h in range(2):
                    a = AD + 2 * n + h
                    A(f"v_cmp_eq_u32 vcc, v{he+Tt}, v{hd+2*blk+h}")
                    A(f"v_add_u32 v{a}, {1280*Tt+128*blk+16*h}, v{ab}")
                    A(f"v_cndmask_b32 v{a}, v{vT2}, v{a}, vcc")
    assert len(frs) == 24
    sM = 84
    for k in range(3):
        A(f"v_cmp_lt_u32 s[{sM+2*k}:{sM+2*k+1}], {k}, v{gL}")
    stamp(A, 7, 1, vt=vT0)
    A("s_setprio 3")
    A(f"s_lshr_b32 s10, s{sWave}, 1")
    A("s_lshl_b32 s10, 0x2000, s10")
    poll_flag(A, "L2_pq", sFl, "s10", "s10", vT0)
    stamp(A, 8, 1, vt=vT0)
    A(f"s_mul_i32 s6, s{sRB64}, 20")
    A(f"s_mul_i32 s7, s{sWave}, 5")
    A("s_add_u32 s6, s6, s7")
    A("s_lshl_b32 s6, s6, 12")
    A(f"s_add_u32 s6, s6, {WS_PQ}")
    for blk in range(5):
        for mt in range(4):
            A(f"buffer_load_dwordx4 {vr(PQ(mt, blk))}, v{vL16}, {srd(S_WS)}, s6 offen offset:{mt*1024} sc1")
        A(f"s_add_u32 s6, s6, 4096")
    A(f"s_lshl_b32 s6, s{sWave}, 3")
    A("s_and_b32 s7, s2, 7")
    A("s_add_u32 s6, s6, s7")
    A("s_lshl_b32 s6, s6, 8")
    A(f"s_add_u32 s6, s6, {WS_FL + FL_KV}")
    poll_flag(A, "L2_kv", 6, 0xff, 16, vT0)
    stamp(A, 3, 1, vt=vT0)
    A(f"s_mul_i32 s3, s{sWave}, 13440")
    A(f"s_add_u32 s3, s3, {WS_KVA}")
    for i in range(14):
        if i % 4 == 0:
            A(f"s_add_u32 m0, s8, {i*1024}")
            A(f"s_add_u32 s5, s3, {i*1024}")
        if i == 13:
            A("s_mov_b64 exec, 0xff")
        A(f"buffer_load_dwordx4 v{vL16}, {srd(S_WS)}, s5 offen offset:{(i%4)*1024} sc1 lds")
    A("s_mov_b64 exec, -1")
    A(f"s_setprio {OPT['APRIO']}")
    A("s_waitcnt vmcnt(7) lgkmcnt(0)")
    stamp(A, 9, 1, vt=vT0)
    raw = lambda k: RAW + 4 * (k % NRAW)
    fr = lambda n: FR + 4 * (n % 4)
    dst = lambda f, mt: (DEN + 8 * mt + 4 * f[1]) if f[0] == "z" else (NM + 16 * (f[1] % 2) + 4 * mt)

    def rd(n):
        if n == 12:
            A("s_waitcnt vmcnt(0)")
        for h in range(2):
            A(f"ds_read_b128 {vr(raw(2*n+h))}, v{AD+2*n+h}")

    def post(f):
        out = []
        if f[0] == "z":
            for mt in range(4):
                for i in range(4):
                    r = DEN + 8 * mt + 4 * f[1] + i
                    out.append(f"v_add_f32 v{r}, {f32(1e-6)}, v{r}")
            for mt in range(4):
                for i in range(4):
                    r = DEN + 8 * mt + 4 * f[1] + i
                    out.append(f"v_rcp_f32 v{r}, v{r}")
            return out
        Tt = f[1]
        lo, hi = (4 * Tt) // 5, (4 * Tt + 3) // 5
        sl = {}
        for mt in range(4):
            if lo == hi:
                sl[mt] = DEN + 8 * mt + lo
            else:
                thr = 5 * hi - 4 * Tt
                sl[mt] = AD + mt
                out.append(f"v_cndmask_b32 v{sl[mt]}, v{DEN+8*mt+lo}, v{DEN+8*mt+hi}, s[{sM+2*(thr-1)}:{sM+2*(thr-1)+1}]")
        for mt in range(4):
            d = dst(f, mt)
            for i in range(4):
                out.append(f"v_mul_f32 v{d+i}, v{d+i}, v{sl[mt]}")
        for mt in range(4):
            d = dst(f, mt)
            ob = O(Tt // 2, mt) + 2 * (Tt % 2)
            out.append(f"v_cvt_pk_bf16_f32 v{ob}, v{d}, v{d+1}")
            out.append(f"v_cvt_pk_bf16_f32 v{ob+1}, v{d+2}, v{d+3}")
        return out
    rd(0)
    rd(1)
    pend = []
    nxt = []
    for n in range(26):
        if n + 2 < 24:
            rd(n + 2)
        cv = []
        if n < 24:
            A(f"s_waitcnt lgkmcnt({2*min(2, 23-n)})")
            for h in range(2):
                cv.append(f"v_cvt_pk_bf16_f32 v{fr(n)+2*h}, v{raw(2*n+h)}, v{raw(2*n+h)+1}")
                cv.append(f"v_cvt_pk_bf16_f32 v{fr(n)+2*h+1}, v{raw(2*n+h)+2}, v{raw(2*n+h)+3}")
        mf = []
        if 1 <= n <= 24:
            f = frs[n - 1]
            if f[3] and f[0] == "n":
                need = [x for x in pend if x[0] <= f[1] - 2]
                for x in need:
                    A(x[1])
                pend = [x for x in pend if x[0] > f[1] - 2]
            for mt in range(4):
                d = vr(dst(f, mt))
                mf.append(f"v_mfma_f32_16x16x32_bf16 {d}, {vr(fr(n-1))}, {vr(PQ(mt, f[2]))}, {0 if f[3] else d}")
        take = pend[:14]
        pend = pend[14:]
        work = cv + [x[1] for x in take]
        for g in (interleave(mf, work) if mf else work):
            A(g)
        pend += nxt
        nxt = []
        if 1 <= n <= 24 and frs[n - 1][4]:
            f = frs[n - 1]
            nxt = [((f[1] if f[0] == "n" else 5 * f[1] - 0.5), x) for x in post(f)]
    for x in pend + nxt:
        A(x[1])
    stamp(A, 11, 1, vt=vT0)
    A(f"s_setprio {OPT['APRIO2']}")
    WF = 192
    A(f"v_add_u32 v{vT0}, s4, v{vL16}")
    A.fence()

    def rd_wo(u):
        for nt in range(5):
            A(f"ds_read_b128 {vr(WF+20*(u%2)+4*nt)}, v{vT0} offset:{(u*5+nt)*1024}")
    E = Asm()
    red_setup(E, vSigA, vSigV)
    rs = [t for _, t in E.lines]
    rd_wo(0)
    for u in range(5):
        if u + 1 < 5:
            rd_wo(u + 1)
        A(f"s_waitcnt lgkmcnt({5 if u < 4 else 0})")
        if u == 0:
            A(f"v_mov_b32 v{vT1}, 1")
            A(f"ds_write_b32 v{vT2}, v{vT1} offset:16")
        mf = []
        for nt in range(5):
            for mt in range(4):
                d = vr(acc(nt, mt))
                mf.append(f"v_mfma_f32_16x16x32_bf16 {d}, {vr(WF+20*(u%2)+4*nt)}, {vr(O(u, mt))}, {d if u else 0}")
        k = (len(rs) + 3) // 4
        for g in interleave(mf, rs[u*k:(u+1)*k]):
            A(g)
    stamp(A, 1, 1, vt=vSigA)
    A.fence()
    for t in range(20):
        A(f"ds_write_b128 v{vT0}, {vr(ACC+4*t)} offset:{5120+t*1024}")
    A("s_branch L2_reduce")

    A.label("L2_ffn")
    q = []

    def ldW(j):
        for g in ldW_groups(j):
            A(g)
        q.extend([("W", j)] * 5)

    def ldH1(j, mt):
        if j == NK - 1 and mt == 0:
            A(f"s_add_u32 s{sHo}, s{sHo}, s{sLast}")
        A(f"buffer_load_dwordx4 {vr(HQ[4*(j%HD)+mt])}, v{vL16}, {srd(S_WS)}, s{sHo} offen offset:{mt*1024}{HSC}")
        if mt == 3:
            A(f"s_add_u32 s{sHo}, s{sHo}, 4096")
            A(f"s_cmp_eq_u32 s{sHo}, s{sHe}")
            A(f"s_cselect_b32 s{sHo}, s{sHb}, s{sHo}")
        q.append(("H", j, mt))

    def ldH(j):
        for mt in range(4):
            ldH1(j, mt)
    signal(0)
    A(f"s_cmp_lg_u32 s{sWoDone}, 0")
    A("s_cbranch_scc1 L2_ws")
    ffn_setup(A)
    A.label("L2_ws")
    A(f"s_sub_u32 s10, s{sWave}, 4")
    A("s_lshl_b32 s10, s10, 1")
    A("s_lshl_b32 s10, 7, s10")
    A(f"v_mov_b32 v{vT1}, 0")
    A(f"s_cmp_gt_u32 s{sWoDone}, 1")
    A("s_cbranch_scc1 L2_w0")
    ldW(0)
    ldW(1)
    A.label("L2_w0")
    assert OPT["NPRE"] == 2
    for j in range(2, WD):
        if j == OPT["EPOLL"]:
            A(f"buffer_load_dword v{vT2}, v{vT1}, {srd(S_WS)}, s{sFl} offen sc1")
        ldW(j)
    if OPT["EPOLL"]:
        A(f"s_waitcnt vmcnt({5*(WD-OPT['EPOLL'])})")
        A(f"v_readfirstlane_b32 s{sTmp3}, v{vT2}")
        A(f"s_and_b32 s{sTmp3}, s{sTmp3}, s10")
        A(f"s_cmp_eq_u32 s{sTmp3}, s10")
        A(f"s_cbranch_scc1 L2_h_ok")
    stamp(A, 4, 1, wave=4, vt=vT0)
    poll_flag(A, "L2_h", sFl, "s10", "s10", vT0)
    stamp(A, 5, 1, wave=4, vt=vT0)
    stamp(A, 14, 1, wave=4, vt=vT0, clk=True)
    q.clear()
    for j in range(HD):
        ldH(j)
    A(f"s_setprio {OPT['FPRIO']}")
    for j in range(NK):
        for mt in range(4):
            last = max(i for i, e in enumerate(q) if e[1] == j and (e[0] == "W" or e[2] <= mt))
            A(f"s_waitcnt vmcnt({len(q)-1-last})")
            for nt in range(5):
                d = vr(AQ[nt*4+mt])
                if not OPT["NOMF"]: A(f"v_mfma_f32_16x16x32_bf16 {d}, {vr(WQ[5*(j%WD)+nt])}, {vr(HQ[4*(j%HD)+mt])}, {d if j else 0}")
            if j + HD < NK:
                ldH1(j + HD, mt)
        if j + WD < NK:
            ldW(j + WD)
    A("s_setprio 0")
    stamp(A, 6, 1, wave=4, vt=vT0)
    stamp(A, 15, 1, wave=4, vt=vT0, clk=True)
    A("s_waitcnt vmcnt(0)")
    red_setup(A, vSigA, vSigV)
    A(f"s_sub_u32 s3, s{sWave}, 4")
    A("s_mul_i32 s8, s3, 14336")
    A("s_cmp_ge_u32 s3, 2")
    A(f"s_cselect_b32 s9, {135168 - 2*14336}, 0")
    A("s_add_u32 s8, s8, s9")
    A(f"v_add_u32 v{vT0}, s8, v{vL16}")
    A("s_add_u32 s9, s8, 13456")
    A(f"v_mov_b32 v{vT2}, s9")
    A(f"s_mov_b32 s{sSpin}, 0")
    A.label("L2_wfree")
    A(f"ds_read_b32 v{vT1}, v{vT2}")
    A("s_waitcnt lgkmcnt(0)")
    A(f"v_readfirstlane_b32 s9, v{vT1}")
    A(f"s_add_u32 s{sSpin}, s{sSpin}, 1")
    A("s_cmp_eq_u32 s9, 1")
    A("s_cbranch_scc1 L2_wfree_ok")
    A(f"s_cmp_gt_u32 s{sSpin}, {SPIN_MAX*16}")
    A("s_cbranch_scc1 L2_wfree_ok")
    A("s_sleep 2")
    A("s_branch L2_wfree")
    A.label("L2_wfree_ok")
    A("s_mul_i32 s8, s3, 25600")
    A(f"s_add_u32 s8, s8, {WO_LDS}")
    A(f"v_add_u32 v{vT1}, s8, v{vL16}")
    A("s_lshl_b32 s8, s3, 10")
    A(f"v_add_u32 v{vT2}, s8, v{vL16}")
    for t in range(20):
        if t < 14:
            A(f"ds_write_b128 v{vT0}, {vr(AQ[t])} offset:{t*1024}")
        elif t < 19:
            A(f"ds_write_b128 v{vT1}, {vr(AQ[t])} offset:{(t-14)*1024}")
        else:
            A(f"ds_write_b128 v{vT2}, {vr(AQ[t])} offset:28672")

    A.label("L2_reduce")
    if OPT["DLY"] == 5:
        A("s_sleep 30")
    A("s_setprio 0")
    A("s_waitcnt lgkmcnt(0)")
    stamp(A, 12, 1, vt=vSigA)
    A("s_barrier")
    stamp(A, 13, 1, vt=vSigA)
    R = lambda j: 8 + 32 * j

    def rds(j):
        A(f"v_add_u32 v{vT0}, {2*25600}, v{RA+5*j}")
        for w in range(4):
            A(f"ds_read_b128 {vr(R(j)+4*w)}, v{RA+5*j if w < 2 else vT0} offset:{(w%2)*25600}")
        for f in range(4):
            A(f"ds_read_b128 {vr(R(j)+16+4*f)}, v{RA+5*j+1+f}")

    def fin(j):
        r = R(j)
        for st in (16, 8, 4):
            for i in range(0, st, 2):
                pk_mul(A, r + i, ("p", r + i), ("p", r + st + i), op="add")
        x0, x1 = XR + 2 * j, XR + 2 * j + 1
        A(f"v_lshlrev_b32 v{r+4}, 16, v{x0}")
        A(f"v_and_b32 v{r+5}, 0xffff0000, v{x0}")
        A(f"v_lshlrev_b32 v{r+6}, 16, v{x1}")
        A(f"v_and_b32 v{r+7}, 0xffff0000, v{x1}")
        for i in range(0, 4, 2):
            pk_mul(A, r + i, ("p", r + i), ("p", r + 4 + i), op="add")
        A(f"v_cvt_pk_bf16_f32 v{x0}, v{r}, v{r+1}")
        A(f"v_cvt_pk_bf16_f32 v{x1}, v{r+2}, v{r+3}")
        A(f"buffer_store_dwordx2 {vr(x0, 2)}, v{OA+j}, {srd(S_OUT)}, 0 offen" + ["", " sc1", " nt"][OPT["OUTSC"]])
    rds(0)
    rds(1)
    A("s_waitcnt vmcnt(0) lgkmcnt(8)")
    fin(0)
    A(f"s_cmp_ge_u32 s{sWave}, 4")
    A("s_cbranch_scc1 L2_last")
    rds(2)
    A("s_waitcnt lgkmcnt(0)")
    fin(2)
    A.label("L2_last")
    A("s_waitcnt lgkmcnt(0)")
    fin(1)
    A.label("L2_done")
    stamp(A, 2, 1, vt=vSigA)


def descriptor(name, vgpr=256):
    return f""".amdhsa_kernel {name}
  .amdhsa_next_free_vgpr {vgpr}
  .amdhsa_next_free_sgpr 102
  .amdhsa_accum_offset {vgpr}
  .amdhsa_group_segment_fixed_size 0
  .amdhsa_kernarg_size 80
  .amdhsa_user_sgpr_count 2
  .amdhsa_user_sgpr_kernarg_segment_ptr 1
  .amdhsa_system_sgpr_workgroup_id_x 1
.end_amdhsa_kernel
"""


def probe(A):
    A(".p2align 8")
    A.label("pre_kernel")
    if OPT["PROBE"] in (4, 5):
        A("s_cmp_ge_u32 s2, 64")
        A("s_cbranch_scc1 L_pre_exit")
        load_ptrs(A)
        A("s_lshr_b32 s3, s2, 3")
        A("s_lshl_b32 s3, s3, 9")
        A("v_add_u32 v1, s3, v0")
        A("v_lshlrev_b32 v1, 12, v1")
        A("s_waitcnt lgkmcnt(0)")
        lst = ((P_WS, WS_SIZE), (P_OUT, 2048*1280))
        if OPT["PROBE"] == 5:
            lst += ((P_X, 2048*1280), (P_WQKV, 640*3840), (P_WO, 640*1280), (P_G, 640*3456), (P_U, 640*3456), (P_D, 1728*1280))
        for k, (p, n) in enumerate(lst):
            mk_srd(A, 36 + 4*k, p, n)
            A(f"buffer_load_dword v{2+k}, v1, {srd(36+4*k)}, 0 offen")
        A("s_waitcnt vmcnt(0)")
        A.label("L_pre_exit")
    if OPT["PROBE"] == 2:
        A("s_cmp_ge_u32 s2, 256")
        A("s_cbranch_scc1 L_pre_exit")
        load_ptrs(A)
        A("s_lshl_b32 s3, s2, 9")
        A("v_add_u32 v1, s3, v0")
        A("v_lshlrev_b32 v1, 5, v1")
        A("s_waitcnt lgkmcnt(0)")
        for k, (p, n) in enumerate(((P_X, 2048*1280), (P_WQKV, 640*3840), (P_WO, 640*1280), (P_G, 640*3456), (P_U, 640*3456), (P_D, 1728*1280))):
            mk_srd(A, 36 + 4*k, p, n)
            A(f"buffer_load_dword v{2+k}, v1, {srd(36+4*k)}, 0 offen")
        A("s_waitcnt vmcnt(0)")
        A.label("L_pre_exit")
    A("s_endpgm")


def main():
    A = Asm()
    kernel1(A)
    K = NAME + "_kernel"
    launch = f"; @launch grid=(256,1,1) block=(512,1,1) lds={LDS_TOTAL}"
    extra = ""
    if OPT["PROBE"]:
        probe(A)
        launch = f"; @launch kernel=pre_kernel grid=(256,1,1) block=(512,1,1) lds=0\n; @launch kernel={K} grid=(256,1,1) block=(512,1,1) lds={LDS_TOTAL}"
        if OPT["PROBE"] == 3:
            launch = f"; @launch kernel={K} grid=(256,1,1) block=(512,1,1) lds={LDS_TOTAL}\n; @launch kernel={K} grid=(256,1,1) block=(512,1,1) lds={LDS_TOTAL}"
        extra = ".p2align 6\n" + descriptor("pre_kernel", 16)
    head = f"""; LN + linear attention + GEGLU FFN, one persistent launch (generated by dev/gen.py)
{launch}
.amdgcn_target "amdgcn-amd-amdhsa--gfx950"
.text
.globl {K}
.type {K},@function
"""
    tail = '.section .rodata,"a"\n.p2align 6\n' + descriptor(K) + extra
    open(sys.argv[1], "w").write(head + A.render() + tail)


main()
```

```python
import sys, struct, math
from asmlib import Asm, interleave

NAME = "parallel_sum__linear_attn_block__geglu_ffn__prompt"

OPT = dict(ROTQ=1, STAMP=0, NODMA=0, SAME=0, NOSWZ=0, NORD=0, P2ROT=1, WARM=1, PLAIN=0, BYTEFLAG=0, NBUP=6, SW=0, P2ONLY=0, P2SAME=0, NOATT=0, NOMF=0, FPRIO=1, NPRE=2, CGPERM=0, OUTSC=0, CODEWARM=2, TLBWARM=0, PUBST=0, GPK=1, APRIO=2, APRIO2=0, FINEH=1, XMAP=0, FAKE16=0, PSLEEP=2, EPOLL=0, PROBE=0, WOEPI=0, NXA=0, XPOS=1, G16=1, DLY=0)
for a in sys.argv[2:]:
    k, v = a.split("=")
    OPT[k] = int(v)

OPT_WOEPI = ['', 'K', 'KQ', 'KQG'][OPT['WOEPI']]
HSC = '' if OPT['PLAIN'] else ' sc1'
WS_H = 0x000000
WS_PQ = 0x700000
WS_W2 = 0xA00000
WS_ST = 0xD00000
WS_CS = 0xD10000
WS_KVA = 0xD80000
WS_FL = 0xD90000
FL_HC = 0
FL_KV = 16 * 256
FL_ROW = 128
WS_STAMP = 0xF00000
WS_SIZE = 0x1000000
OOB = 0x40000000


def f32(x):
    return "0x%08x" % struct.unpack("<I", struct.pack("<f", x))[0]


LOG2E = 1.4426950408889634
GC1 = -2.0 * math.sqrt(2.0 / math.pi) * LOG2E
GC2 = GC1 * 0.044715

P_X, P_WQKV, P_WO, P_BX, P_G, P_U, P_D, P_OUT, P_DBG, P_WS = 16, 18, 20, 22, 24, 26, 28, 30, 32, 34
S_X, S_W, S_WS, S_DBG, S_T = 36, 40, 44, 48, 52


def srd(b):
    return f"s[{b}:{b+3}]"


def vr(b, n=4):
    return f"v[{b}:{b+n-1}]"


def mk_srd(A, s, p, nbytes):
    A(f"s_mov_b32 s{s}, s{p}")
    A(f"s_and_b32 s{s+1}, s{p+1}, 0xffff")
    A(f"s_mov_b32 s{s+2}, {nbytes}")
    A(f"s_mov_b32 s{s+3}, 0x20000")


def load_ptrs(A):
    A("s_load_dwordx16 s[16:31], s[0:1], 0")
    A("s_load_dwordx4 s[32:35], s[0:1], 64")


def wave_allreduce_add(A, v, t, s0):
    A(f"v_add_f32_dpp v{v}, v{v}, v{v} quad_perm:[1,0,3,2] row_mask:0xf bank_mask:0xf")
    A(f"v_add_f32_dpp v{v}, v{v}, v{v} quad_perm:[2,3,0,1] row_mask:0xf bank_mask:0xf")
    A(f"v_add_f32_dpp v{v}, v{v}, v{v} row_half_mirror row_mask:0xf bank_mask:0xf")
    A(f"v_add_f32_dpp v{v}, v{v}, v{v} row_mirror row_mask:0xf bank_mask:0xf")
    for i in range(4):
        A(f"v_readlane_b32 s{s0+i}, v{v}, {16*i}")
    A(f"v_mov_b32 v{v}, s{s0}")
    A(f"v_mov_b32 v{t}, s{s0+2}")
    A(f"v_add_f32 v{v}, s{s0+1}, v{v}")
    A(f"v_add_f32 v{t}, s{s0+3}, v{t}")
    A(f"v_add_f32 v{v}, v{v}, v{t}")


def lstamp(A, k):
    if OPT["STAMP"] != 4:
        return
    A("s_memrealtime s[96:97]")
    A("s_waitcnt lgkmcnt(0)")
    A(f"v_writelane_b32 v28, s96, {k}")


def stamp(A, idx, kern, dyn=None, clk=False, wave=0, vt=None):
    if vt is None:
        vt = (26 if idx != 3 else 50) if kern == 0 else 254
    if not OPT["STAMP"]:
        return
    if OPT["STAMP"] == 8:
        slot = {(0, 0): 2, (0, 1): 4, (0, 2): 6, (0, 3): 8, (1, 3): 10, (1, 1): 12, (1, 2): 14}.get((kern, idx))
        if slot is None or clk or wave != 0:
            return
        lab = f"L_st_{kern}_{idx}_{len(A.lines)}"
        A(f"s_or_b32 s98, s{sWave}, s2")
        A("s_cmp_lg_u32 s98, 0")
        A(f"s_cbranch_scc1 {lab}")
        A("s_memrealtime s[96:97]")
        A("s_memtime s[98:99]")
        A("s_waitcnt lgkmcnt(0)")
        A(f"v_mov_b32 v{vt}, s96")
        A(f"buffer_store_dword v{vt}, off, {srd(S_DBG)}, 0 offset:{slot*4}")
        A(f"v_mov_b32 v{vt+1}, s98")
        A(f"buffer_store_dword v{vt+1}, off, {srd(S_DBG)}, 0 offset:{slot*4+4}")
        A.label(lab)
        return
    if OPT["STAMP"] == 9:
        slot = {(0, 0): (1, True), (0, 1): (2, False), (0, 2): (3, False), (0, 3): (5, False), (1, 0): (6, False), (1, 5): (7, False),
                (1, 3): (9, False), (1, 1): (10, False), (1, 2): (11, False), (1, 6): (13, False)}.get((kern, idx))
        if slot is None or clk:
            return
        lab = f"L_st_{kern}_{idx}_{len(A.lines)}"
        A(f"s_cmp_lg_u32 s{sWave}, {wave}")
        A(f"s_cbranch_scc1 {lab}")
        A("s_memrealtime s[96:97]")
        A("s_waitcnt lgkmcnt(0)")
        if slot[1]:
            A("s_not_b32 s96, s96")
        A(f"v_mov_b32 v{vt}, s96")
        A(f"v_mov_b32 v{vt+1}, {OOB}")
        A(f"v_writelane_b32 v{vt+1}, {slot[0]*4}, 0")
        A(f"buffer_atomic_umax v{vt}, v{vt+1}, {srd(S_DBG)}, 0 offen sc1")
        A.label(lab)
        return
    lab = f"L_st_{kern}_{idx}_{len(A.lines)}"
    A(f"s_cmp_lg_u32 s{sWave}, {wave}")
    A(f"s_cbranch_scc1 {lab}")
    A("s_memtime s[96:97]" if clk else "s_memrealtime s[96:97]")
    A("s_waitcnt lgkmcnt(0)")
    A(f"s_lshl_b32 s98, s2, 6")
    A(f"s_add_u32 s98, s98, {WS_STAMP + kern*0x8000 + idx*4}")
    if dyn is not None:
        A(f"s_lshl_b32 s99, s{dyn}, 2")
        A("s_add_u32 s98, s98, s99")
    A(f"v_mov_b32 v{vt}, s96")
    A(f"v_mov_b32 v{vt+1}, 0")
    A(f"buffer_store_dword v{vt}, v{vt+1}, {srd(S_WS)}, s98 offen")
    A.label(lab)


sWave, sRB, sCG, sIt, sKW, sKWn, sKX, sKXn, sWslot, sRslot, sXslot, sStepW, sCSit, sSpec, sTmp, sTmp2, sMW, sNW, sWrapW, sTmp3, sC0, sRow, sSpin, sOdd, sPub, sUw, sUl = range(56, 83)
X_LDS = 0
W_LDS = 32768
W_SLOT = 24576
MISC_LDS = W_LDS + 5 * W_SLOT
LDS_TOTAL = 163840

vLane, vT0, vT1, vT2, vT3 = 1, 2, 3, 4, 5
vSigA, vSigV = 6, 7
vXo = 6
vWo = 8
vXa = 11
vWb = 15
vWa = 20
vPa = 25
SPIN_MAX = 0x100000
vSel = 52
vPoll = 30
vCSA = 32
vCSP = 32
vSt = 31
KST = lambda j: (44 + 4 * j) if j < 3 else (232 + 4 * (j - 3))
vBUF = 56
vACC = 152


KVT = [[(0, 0), (0, 1), (0, 2), (1, 0), (1, 1)], [(0, 3), (0, 4), (1, 2), (1, 3), (1, 4)]]


def k1_gemm(A, typ):
    G = typ == "G"
    MT = 2 if G else 1
    NT = 3 if G else 5
    NW_ = 6 if G else 5
    pitch = 3456 if G else 3840
    XB = lambda P, mt, kk: vBUF + 48 * P + 4 * (mt * 2 + kk)
    WBf = lambda P, a, kk: vBUF + 48 * P + 4 * MT * 2 + 4 * (a * 2 + kk)
    acc = lambda mt, a: vACC + 16 * (mt * NT + a)
    L = lambda s: f"L_{typ}_{s}"
    S16 = G and OPT["G16"]
    sel = 248 if S16 else vSel
    NCS = 6 if S16 else NT

    if G:
        A(f"s_lshr_b32 s{sMW}, s{sWave}, 2")
        A(f"s_and_b32 s{sNW}, s{sWave}, 3")
        mk_srd(A, S_W, P_G, 640 * 3456)
        mk_srd(A, S_T, P_U, 640 * 3456)
    else:
        A(f"s_lshr_b32 s{sMW}, s{sWave}, 1")
        A(f"s_and_b32 s{sNW}, s{sWave}, 1")
        mk_srd(A, S_W, P_WQKV, 640 * 3840)
    A(f"s_and_b32 s{sTmp2}, s{sWave}, 3")
    A(f"v_lshrrev_b32 v{vT0}, 3, v{vLane}")
    A(f"s_lshl_b32 s{sTmp3}, s{sTmp2}, 3")
    A(f"v_add_u32 v{vT0}, s{sTmp3}, v{vT0}")
    A(f"v_mul_u32_u24 v{vT0}, {pitch}, v{vT0}")
    A(f"v_and_b32 v{vT1}, 7, v{vLane}")
    A(f"v_lshrrev_b32 v{vT2}, 2, v{vLane}")
    A(f"v_and_b32 v{vT2}, 4, v{vT2}")
    A(f"v_xor_b32 v{vT1}, v{vT1}, v{vT2}")
    if G:
        A(f"s_mul_i32 s{sTmp3}, s{sCG}, {0 if OPT['SAME'] else 384}")
        A(f"v_add_u32 v{vT0}, s{sTmp3}, v{vT0}")
        if S16:
            A(f"s_and_b32 s{sTmp3}, s{sWave}, 1")
            A(f"s_lshl_b32 s{sTmp3}, s{sTmp3}, 1")
            A(f"v_xor_b32 v{vT1}, s{sTmp3}, v{vT1}")
        A(f"v_lshl_add_u32 v{vWo}, v{vT1}, 4, v{vT0}")
        if not S16:
            A(f"v_xor_b32 v{vT1}, 2, v{vT1}")
        A(f"v_lshl_add_u32 v{vWo+1}, v{vT1}, 4, v{vT0}")
        chunks = [(S_W, vWo, 0), (S_W, vWo, 128), (S_W, vWo, 256), (S_T, vWo + 1, 0), (S_T, vWo + 1, 128), (S_T, vWo + 1, 256)]
    elif typ == "Q":
        A(f"s_sub_u32 s{sTmp3}, s{sCG}, 13")
        A(f"s_mul_i32 s{sTmp3}, s{sTmp3}, 640")
        A(f"v_add_u32 v{vT0}, s{sTmp3}, v{vT0}")
        A(f"v_lshl_add_u32 v{vWo}, v{vT1}, 4, v{vT0}")
        chunks = [(S_W, vWo, 128 * i) for i in range(5)]
    else:
        A(f"s_sub_u32 s4, s{sCG}, 9")
        A(f"s_and_b32 s{sOdd}, s4, 1")
        A(f"s_mul_i32 s6, s4, 320")
        A(f"s_add_u32 s6, s6, 1280")
        A(f"s_lshl_b32 s7, s{sOdd}, 6")
        A(f"s_add_u32 s7, s7, s6")
        A(f"s_cmp_eq_u32 s{sOdd}, 0")
        A(f"s_cselect_b32 s8, 256, 0")
        A(f"s_add_u32 s8, s8, s6")
        A(f"v_lshl_add_u32 v{vT2}, v{vT1}, 4, v{vT0}")
        A(f"v_add_u32 v{vWo}, s7, v{vT2}")
        A(f"v_xor_b32 v{vT3}, 2, v{vT1}")
        A(f"v_lshl_add_u32 v{vT2}, v{vT3}, 4, v{vT0}")
        A(f"v_add_u32 v{vWo+2}, s7, v{vT2}")
        A(f"v_lshrrev_b32 v{vT2}, 2, v{vT1}")
        A(f"v_lshlrev_b32 v{vT3}, 1, v{vT2}")
        A(f"v_xor_b32 v{vT3}, v{vT3}, v{vT1}")
        A(f"v_and_b32 v{vT3}, 3, v{vT3}")
        A(f"v_lshl_add_u32 v{vT3}, v{vT3}, 4, v{vT0}")
        A(f"v_mul_u32_u24 v{vT2}, 1280, v{vT2}")
        A(f"v_add3_u32 v{vWo+1}, v{vT3}, v{vT2}, s8")
        chunks = [(S_W, vWo, 0), (S_W, vWo, 128), (S_W, vWo + 2, 1280), (S_W, vWo + 2, 1408), (S_W, vWo + 1, 0)]
    A(f"s_lshr_b32 s{sTmp}, s{sWave}, 2")
    A(f"s_lshl_b32 s{sTmp2}, s{sTmp2}, 10")
    A(f"s_add_u32 s{sWrapW}, s{sTmp2}, {W_LDS + 5*W_SLOT}")
    A(f"s_mul_i32 s{sWslot}, s{sTmp}, {W_SLOT}")
    A(f"s_add_u32 s{sWslot}, s{sWslot}, s{sTmp2}")
    A(f"s_add_u32 s{sWslot}, s{sWslot}, {W_LDS}")
    A(f"s_mul_i32 s{sKW}, s{sC0}, {64*pitch}")
    A(f"s_mul_i32 s{sTmp}, s{sTmp}, {32*pitch}")
    A(f"s_add_u32 s{sKW}, s{sKW}, s{sTmp}")
    A(f"s_mov_b32 s{sKWn}, 0")

    def dmaW():
        out = []
        for i, (sr, vo, imm) in enumerate(chunks):
            out.append(f"s_add_u32 m0, s{sWslot}, {i*4096 - imm}\n" +
                       "s_nop 0\n" +
                       f"buffer_load_dwordx4 v{vo}, {srd(sr)}, s{sKW} offen offset:{imm} lds")
        out.append(f"s_add_u32 s{sWslot}, s{sWslot}, {2*W_SLOT}\n"
                   f"s_cmp_ge_u32 s{sWslot}, s{sWrapW}\n"
                   f"s_cselect_b32 s{sTmp}, {5*W_SLOT}, 0\n"
                   f"s_sub_u32 s{sWslot}, s{sWslot}, s{sTmp}\n"
                   f"s_add_u32 s{sKW}, s{sKW}, {64*pitch}\n"
                   f"s_cmp_ge_u32 s{sKW}, {640*pitch}\n"
                   f"s_cselect_b32 s{sTmp}, {640*pitch}, 0\n"
                   f"s_sub_u32 s{sKW}, s{sKW}, s{sTmp}")
        return out

    def dmaX():
        out = []
        for i in range(4):
            out.append(f"s_add_u32 m0, s{sXslot}, {i*1024}\n" +
                       f"s_add_u32 s{sTmp}, s{sKX}, {16*1280}\n" +
                       f"buffer_load_dwordx4 v{vXo+i%2}, {srd(S_X)}, s{sKX if i < 2 else sTmp} offen lds")
        out.append(f"s_xor_b32 s{sXslot}, s{sXslot}, 16384\n"
                   f"s_add_u32 s{sKX}, s{sKX}, 128\n"
                   f"s_cmp_eq_u32 s{sKX}, 1280\n"
                   f"s_cselect_b32 s{sKX}, 0, s{sKX}")
        return out

    A(f"s_cmp_lt_u32 s{sWave}, 4")
    A(f"s_cbranch_scc1 {L('p1')}")
    for g in dmaX():
        A(g)
    A(f"s_branch {L('p2')}")
    A.label(L("p1"))
    for g in dmaW():
        A(g)
    A.label(L("p2"))
    lstamp(A, 16)

    if OPT["STAMP"] == 3:
        stamp(A, 4, 0, wave=OPT["SW"])
    if S16:
        A(f"v_and_b32 v{vT0}, 15, v{vLane}")
        A(f"v_lshrrev_b32 v{vT1}, 4, v{vLane}")
        A(f"v_bfe_u32 v{vT2}, v{vLane}, 1, 3")
        A(f"v_xor_b32 v{vT1}, v{vT1}, v{vT2}")
        A(f"s_lshl_b32 s{sTmp}, s{sMW}, 13")
        A(f"v_lshl_add_u32 v{vT0}, v{vT0}, 7, s{sTmp}")
        for kap in range(2):
            A(f"v_xor_b32 v{vT2}, {4*kap}, v{vT1}")
            A(f"v_lshl_add_u32 v{vXa+2*kap}, v{vT2}, 4, v{vT0}")
            A(f"v_add_u32 v{vXa+2*kap+1}, 2048, v{vXa+2*kap}")
    else:
        A(f"v_and_b32 v{vT0}, 31, v{vLane}")
        A(f"v_lshrrev_b32 v{vT1}, 5, v{vLane}")
        A(f"v_bfe_u32 v{vT2}, v{vLane}, 1, 3")
        A(f"v_xor_b32 v{vT1}, v{vT1}, v{vT2}")
        A(f"s_lshl_b32 s{sTmp}, s{sMW}, {13 if G else 12}")
        A(f"v_lshl_add_u32 v{vT0}, v{vT0}, 7, s{sTmp}")
        for kap in range(2):
            for kk in range(2):
                A(f"v_xor_b32 v{vT2}, {4*kap+2*kk}, v{vT1}")
                A(f"v_lshl_add_u32 v{vXa+2*kap+kk}, v{vT2}, 4, v{vT0}")
    A(f"v_lshrrev_b32 v{vT0}, {4 if S16 else 5}, v{vLane}")
    A(f"v_lshlrev_b32 v{vT0}, 10, v{vT0}")
    A(f"v_bfe_u32 v{vT1}, v{vLane}, 2, 2")
    A(f"v_lshl_add_u32 v{vT0}, v{vT1}, 7, v{vT0}")
    A(f"v_and_b32 v{vT2}, 3, v{vLane}")
    if typ != "K" and not S16:
        A(f"v_lshlrev_b32 v{vT3}, 1, v{vT2}")
        A(f"v_lshrrev_b32 v{vT2}, 1, v{vT2}")
        A(f"v_and_b32 v{vT3}, 2, v{vT3}")
        A(f"v_or_b32 v{vT2}, v{vT2}, v{vT3}")
    A(f"v_lshl_add_u32 v{vT0}, v{vT2}, 3, v{vT0}")
    A(f"v_and_b32 v{vT1}, 2, v{vT1}")
    A(f"v_bfe_u32 v{vT2}, v{vLane}, 4, 1")
    A(f"v_xor_b32 v{vT1}, v{vT1}, v{vT2}")
    if G:
        if not S16:
            A(f"v_mul_u32_u24 v{vT2}, {3*4096}, v{vT2}")
            A(f"v_add_u32 v{vT0}, v{vT0}, v{vT2}")
        for a in range(3):
            A(f"s_mul_i32 s{sTmp}, s{sNW}, 3")
            A(f"s_add_u32 s{sTmp}, s{sTmp}, {a}")
            A(f"s_lshr_b32 s{sTmp2}, s{sTmp}, 2")
            A(f"s_lshl_b32 s{sTmp2}, s{sTmp2}, 12")
            A(f"s_and_b32 s{sTmp}, s{sTmp}, 3")
            A(f"v_xor_b32 v{vT2}, s{sTmp}, v{vT1}")
            A(f"v_lshl_add_u32 v{vT2}, v{vT2}, 5, v{vT0}")
            A(f"v_add_u32 v{vWb+a}, s{sTmp2}, v{vT2}")
    else:
        for a in range(5):
            if typ == "Q":
                A(f"s_mul_i32 s{sTmp}, s{sNW}, 5")
                A(f"s_add_u32 s{sTmp}, s{sTmp}, {a}")
                A(f"s_lshr_b32 s{sTmp2}, s{sTmp}, 1")
                A(f"s_lshl_b32 s{sTmp2}, s{sTmp2}, 12")
                A(f"s_and_b32 s{sTmp}, s{sTmp}, 1")
                A(f"s_lshl_b32 s{sTmp}, s{sTmp}, 1")
                A(f"v_xor_b32 v{vT2}, s{sTmp}, v{vT1}")
                A(f"v_lshl_add_u32 v{vT2}, v{vT2}, 5, v{vT0}")
                A(f"v_add_u32 v{vWb+a}, s{sTmp2}, v{vT2}")
            else:
                def loc(pi, nw, odd):
                    m, p = pi // 5, 5 * nw + pi % 5
                    if odd:
                        L_, tau = (4, p + 2 * m) if p < 2 else (2 * m + ((p - 2) >> 2), (p - 2) & 3)
                    else:
                        L_, tau = (4, p - 8 + 2 * m) if p >= 8 else (2 * m + (p >> 2), p & 3)
                    return L_ * 4 + (tau ^ m)
                if a == 0:
                    A(f"s_lshl_b32 s9, s{sNW}, 1")
                    A(f"s_add_u32 s9, s9, s{sOdd}")
                    A("s_lshl_b32 s9, s9, 3")
                    A(f"v_bfe_u32 v{vT2}, v{vLane}, 4, 1")
                    A(f"v_cmp_eq_u32 vcc, 1, v{vT2}")
                    A(f"v_and_b32 v{vT1}, 2, v{vT1}")
                for sub, sr in ((0, sTmp), (1, sTmp2)):
                    tab = sum(loc(2 * a + sub, nw, odd) << (8 * (2 * nw + odd)) for nw in range(2) for odd in range(2))
                    A(f"s_lshr_b32 s{sr}, {tab}, s9")
                    A(f"s_and_b32 s{sr}, s{sr}, 0xff")
                A(f"v_mov_b32 v{vT2}, s{sTmp}")
                A(f"v_mov_b32 v{vT3}, s{sTmp2}")
                A(f"v_cndmask_b32 v{vT2}, v{vT2}, v{vT3}, vcc")
                A(f"v_lshrrev_b32 v{vT3}, 2, v{vT2}")
                A(f"v_lshl_add_u32 v{vT3}, v{vT3}, 12, v{vT0}")
                A(f"v_and_b32 v{vT2}, 3, v{vT2}")
                A(f"v_xor_b32 v{vT2}, v{vT2}, v{vT1}")
                A(f"v_lshl_add_u32 v{vWb+a}, v{vT2}, 5, v{vT3}")
        if typ == "K":
            kv_addr_setup(A)
    A(f"s_mov_b32 s{sRslot}, {W_LDS}")
    poll_addr(A)
    A(f"v_and_b32 v{vT0}, 15, v{vLane}")
    A(f"v_bfe_u32 v{vT1}, v{vLane}, 4, 1")
    A(f"v_cmp_eq_u32 vcc, v{vT0}, v{vT1}")
    A(f"v_mov_b32 v{vT2}, 0x3f803f80")
    A(f"v_cndmask_b32 v{vSel}, 0, v{vT2}, vcc")
    for i in range(1, 4):
        A(f"v_mov_b32 v{vSel+i}, v{vSel}")
    if S16:
        for i in range(4):
            A(f"v_mov_b32 v{sel+i}, 0x3f803f80")
    for i in range(4 * NCS):
        A(f"v_mov_b32 v{vCSA+i}, 0")
    for i in range(16 * MT * NT):
        A(f"v_mov_b32 v{vACC+i}, 0")
    A(f"s_mov_b32 s{sPub}, 2")
    A(f"s_bitcmp1_b32 0x88ff, s{sRB}")
    A(f"s_cselect_b32 s{sCSit}, 0, 99")
    A(f"s_cmp_eq_u32 s{sMW}, 0")
    A(f"s_cselect_b32 s{sCSit}, s{sCSit}, 99")
    A(f"s_mov_b32 s{sTmp}, 0xe")
    A(f"s_cmp_eq_u32 s{sWave}, 0")
    A(f"s_cselect_b32 s{sSpec}, s{sTmp}, 0")
    A(f"s_cmp_eq_u32 s{sWave}, 3")
    A(f"s_cselect_b32 s{sTmp}, 0xc0, 0")
    A(f"s_or_b32 s{sSpec}, s{sSpec}, s{sTmp}")
    A(f"s_or_b32 s{sSpec}, s{sSpec}, 0x300")
    A(f"s_mov_b32 s{sIt}, 0")
    A(f"s_mov_b32 s{sSpin}, 0")

    def reads(P, kap):
        pre = [f"v_add_u32 v{vWa+a}, s{sRslot}, v{vWb+a}" for a in range(NT)]
        post = [f"s_add_u32 s{sRslot}, s{sRslot}, {W_SLOT}\n"
                f"s_cmp_eq_u32 s{sRslot}, {W_LDS+5*W_SLOT}\n"
                f"s_cselect_b32 s{sRslot}, {W_LDS}, s{sRslot}"]
        out = []
        for kk in range(2):
            for mt in range(MT):
                out.append(f"ds_read_b128 {vr(XB(P, mt, kk))}, v{vXa+2*kap+kk} offset:{mt*4096}")
            for a in range(NT):
                for rho in range(2):
                    out.append(f"ds_read_b64_tr_b16 {vr(WBf(P, a, kk)+2*rho, 2)}, v{vWa+a} offset:{kk*(12288 if S16 else 2048)+rho*512}")
        if OPT["NORD"]:
            out = []
        return pre, out, post

    def mfmas(P):
        out = []
        if S16:
            for kw in range(2):
                for a in range(3):
                    for t in (0, 2, 1, 3):
                        d = vr(acc16(t, a, kw))
                        out.append(f"v_mfma_f32_16x16x32_bf16 {d}, {vr(WBf(P, a, kw))}, {vr(XB(P, t // 2, t % 2))}, {d}")
            return out
        for kk in range(2):
            for a in range(NT):
                for mt in range(MT):
                    x, w, d = vr(XB(P, mt, kk)), vr(WBf(P, a, kk)), vr(acc(mt, a), 16)
                    if OPT["FAKE16"]:
                        for h in range(2):
                            dq = vr(acc(mt, a) + 8 * kk + 4 * h)
                            x2 = vr(XB(P, mt, h))
                            out.append(f"v_mfma_f32_16x16x32_bf16 {dq}, {w}, {x2}, {dq}")
                    elif typ == "K":
                        out.append(f"v_mfma_f32_32x32x16_bf16 {d}, {x}, {w}, {d}")
                    else:
                        out.append(f"v_mfma_f32_32x32x16_bf16 {d}, {w}, {x}, {d}")
        return out

    def cs_mfmas(P):
        if S16:
            return [f"v_mfma_f32_16x16x32_bf16 {vr(vCSA+4*(2*a+kk))}, {vr(WBf(P, a, kk))}, {vr(sel)}, {vr(vCSA+4*(2*a+kk))}"
                    for kk in range(2) for a in range(3)]
        return [f"v_mfma_f32_16x16x32_bf16 {vr(vCSA+4*a)}, {vr(WBf(P, a, kk))}, {vr(vSel)}, {vr(vCSA+4*a)}"
                for kk in range(2) for a in range(NT)]

    if OPT["STAMP"] == 3:
        stamp(A, 5, 0, wave=OPT["SW"])
    n = len(mfmas(0))
    f = lambda k: k / n
    nod = OPT["NODMA"]

    def loop(R):
        LL = lambda s: f"L_{typ}{R}_{s}"
        lstamp(A, 17)
        if R == "B":
            for g in dmaW():
                A(g)
        A(f"s_waitcnt vmcnt({NW_ + (4 if R == 'B' else 0)})")
        k1_stats(A, typ)
        lstamp(A, 18)
        A(f"s_waitcnt vmcnt({1 if R == 'A' else NW_ + 1})")
        lstamp(A, 19)
        A("s_barrier")
        pre, rd, post = reads(0, 0)
        for g in pre + rd + post:
            A(g)
        if R == "A":
            A("s_setprio 1")
            stamp(A, 1, 0)
            stamp(A, 14, 0, clk=True)
        else:
            for g in dmaX():
                A(g)
        A("s_waitcnt lgkmcnt(0)")
        lstamp(A, 20)
        for g in mfmas(0):
            A(g)
        if R == "A":
            A(f"s_cmp_lg_u32 s{sCSit}, 0")
            A(f"s_cbranch_scc1 {LL('pc0')}")
            for g in cs_mfmas(0):
                A(g)
            A.label(LL("pc0"))
            for g in dmaW():
                A(g)
            A(f"s_sub_u32 s{sUw}, s{sWave}, 1")
            A(f"s_cmp_gt_u32 s{sUw}, 1")
            A(f"s_cbranch_scc1 {LL('nou')}")
            A(f"s_lshl_b32 s{sU}, s{sCG}, 4")
            A(f"s_add_u32 s{sU}, s{sU}, s{sRB}")
            A(f"s_lshl_b32 s{sU}, s{sU}, 1")
            A(f"s_add_u32 s{sU}, s{sU}, s{sUw}")
            A(f"s_lshl_b32 s{sUl}, s{sUw}, 12")
            A(f"s_add_u32 s{sUl}, s{sUl}, {MISC_LDS}")
            w2_unit_dma(A, f"s{sUl}")
            A.label(LL("nou"))
        else:
            A("s_waitcnt vmcnt(5)")
        lstamp(A, 21)
        A("s_barrier")
        pre, rd, post = reads(1, 1)
        for g in pre + rd + post:
            A(g)
        if R == "B":
            for g in dmaW():
                A(g)
        A("s_waitcnt lgkmcnt(0)")
        lstamp(A, 22)
        for g in mfmas(1):
            A(g)
        if R == "A":
            for g in dmaW():
                A(g)
            A(f"s_cmp_eq_u32 s{sCSit}, 0")
            A(f"s_cbranch_scc1 {LL('cs1')}")
            A(f"s_waitcnt vmcnt({NW_})")
            A.label(LL("pc1"))
            A(f"s_cmp_gt_u32 s{sUw}, 1")
            A(f"s_cbranch_scc1 {LL('pc2')}")
            w2_unit_out(A, f"s{sUl}", (lambda t: (96, 100, 144, 148)[t]) if G else (lambda t: 232 + 4 * t) if typ == 'Q' else (lambda t: vBUF + 4 * t))
            A.label(LL("pc2"))
        else:
            A("s_waitcnt vmcnt(0)")
        lstamp(A, 23)
        A("s_barrier")
        if R == "B":
            for g in dmaX() + dmaW():
                A(g)
        for i in range(4):
            A(f"v_xor_b32 v{vXa+i}, 16384, v{vXa+i}")
        pre, rd, post = reads(0, 0)
        for g in pre + rd + post:
            A(g)
        A(f"s_mov_b32 s{sIt}, 1")
        if R == "A" and OPT["NXA"]:
            for _ in range(3):
                A(dmaX()[4])
        A("s_waitcnt lgkmcnt(0)")
        lstamp(A, 0)
        A(".p2align 6")
        A.label(LL("loop"))
        pre, rd, post = reads(1, 1)
        for g in interleave(mfmas(0), (pre, 0.0, f(1)), (rd, f(1), 0.7), (post, 0.75, 0.85)):
            A(g)
        if R == "A":
            A(f"s_bitcmp1_b32 s{sSpec}, s{sIt}")
            A(f"s_cbranch_scc1 {LL('spec')}")
            A.label(LL("specr"))
            for g in dmaW():
                A(g)
            A(f"s_waitcnt vmcnt({NW_}) lgkmcnt(0)")
            A.label(LL("bar"))
        else:
            A("s_waitcnt vmcnt(0) lgkmcnt(0)")
        A("s_barrier")
        if OPT["DLY"] == 1 and G:
            A("s_sleep 3")
        pre, rd, post = reads(0, 0)
        pre = [f"v_xor_b32 v{vXa+i}, 16384, v{vXa+i}" for i in range(2)] + pre
        post = post + [f"v_xor_b32 v{vXa+i}, 16384, v{vXa+i}" for i in range(2, 4)]
        tail = [f"s_add_u32 s{sIt}, s{sIt}, 1\ns_cmp_lt_u32 s{sIt}, 10"]
        nxa = OPT["NXA"]
        if R == "B":
            dw = dmaW()
            nb = OPT["NBUP"]
            A(f"s_cmp_ge_u32 s{sIt}, 8")
            A(f"s_cbranch_scc1 {LL('nod')}")
            for g in dmaX()[nxa:] + dw[:nb]:
                A(g)
            for g in interleave(mfmas(1), (pre, 0.0, f(1)), (dw[nb:], 0.0, 0.4), (rd, f(1), 0.7), (post, 0.7, 0.8), (tail, f(n-2), f(n-1))):
                A(g)
            A.label(LL("end"))
        else:
            chk1 = tail
            xa = []
            if nxa:
                dx = dmaX()
                xa = [f"s_cmp_ge_u32 s{sIt}, 8\ns_cbranch_scc1 {LL('nox')}\n" + "\n".join(dx[:nxa] + dx[4:]) + f"\n{LL('nox')}:"]
            for g in interleave(mfmas(1), (pre, 0.0, f(1)), (xa, f(OPT["XPOS"]), f(OPT["XPOS"]+1)), (rd, f(1), 0.7), (post, 0.7, 0.8), (chk1, f(n-2), f(n-1))):
                A(g)
        if OPT["STAMP"] == 4:
            A("s_memrealtime s[96:97]")
            A(f"s_mov_b32 m0, s{sIt}")
        A("s_waitcnt lgkmcnt(0)")
        if OPT["STAMP"] == 4:
            A("v_writelane_b32 v28, s96, m0")
        A(f"s_cbranch_scc1 {LL('loop')}")
        A(f"s_branch {L('epi')}")

        if R == "B":
            A.label(LL("nod"))
            if typ not in OPT_WOEPI:
                A(f"s_cmp_eq_u32 s{sIt}, 9")
                A(f"s_cbranch_scc1 {LL('nod9')}")
                wo_early(A, 24, 7)
                A(f"s_branch {LL('nod2')}")
                A.label(LL("nod9"))
                wo_early(A, 72, 7)
                A.label(LL("nod2"))
            for g in interleave(mfmas(1), (pre, 0.0, f(1)), (rd, f(1), 0.7), (post, 0.7, 0.8), (tail, f(n-2), f(n-1))):
                A(g)
            A(f"s_branch {LL('end')}")
            return
        A.label(LL("cs1"))
        for g in cs_mfmas(1):
            A(g)
        A(f"v_and_b32 v{vT0}, 15, v{vLane}")
        A(f"v_lshrrev_b32 v{vT1}, 4, v{vLane}")
        A(f"v_lshlrev_b32 v{vT1}, 4, v{vT1}")
        A(f"v_lshl_add_u32 v{vT1}, v{vT0}, 6, v{vT1}")
        A(f"v_cmp_gt_u32 vcc, {1 if S16 else 2}, v{vT0}")
        A(f"v_mov_b32 v{vT2}, {OOB}")
        A(f"v_cndmask_b32 v{vT1}, v{vT2}, v{vT1}, vcc")
        A(f"s_mul_i32 s{sTmp}, s{sCG}, 10")
        A(f"s_add_u32 s{sTmp}, s{sTmp}, s{sC0}")
        A(f"s_mul_i32 s{sTmp}, s{sTmp}, 1536")
        A(f"s_mul_i32 s{sTmp2}, s{sNW}, {NT*128}")
        A(f"s_add_u32 s{sTmp}, s{sTmp}, s{sTmp2}")
        A(f"s_add_u32 s{sTmp}, s{sTmp}, {WS_CS}")
        for a in range(NCS):
            A(f"buffer_store_dwordx4 {vr(vCSA+4*a)}, v{vT1}, {srd(S_WS)}, s{sTmp} offen offset:{a*(64 if S16 else 128)} sc1")
        A(f"s_waitcnt vmcnt({NW_+NCS})")
        A(f"s_branch {LL('pc1')}")

        def with_dma(nops, body):
            for g in dmaW():
                A(g)
            body()
            A(f"s_waitcnt vmcnt({NW_+nops}) lgkmcnt(0)")
            A(f"s_branch {LL('bar')}")
        A.label(LL("spec"))
        A(f"s_cmp_eq_u32 s{sIt}, 9")
        A(f"s_cbranch_scc1 {LL('sum')}")
        A(f"s_cmp_eq_u32 s{sIt}, 8")
        A(f"s_cbranch_scc1 {LL('go')}")
        A(f"s_cmp_eq_u32 s{sIt}, 7")
        A(f"s_cbranch_scc1 {LL('chk')}")
        A(f"s_cmp_eq_u32 s{sIt}, 6")
        A(f"s_cbranch_scc1 {LL('poll0')}")
        A.label(LL("pub"))

        A(f"s_cmp_lg_u32 s{sIt}, 2")
        A(f"s_cbranch_scc1 {LL('pub1')}")
        wait_zeroed(A, LL("wz"), True)
        A.label(LL("pub1"))

        def pub():
            A(f"s_cmp_eq_u32 s{sIt}, 3")
            A(f"s_cbranch_scc1 {LL('pub3')}")
            A(f"s_cmp_eq_u32 s{sIt}, 2")
            A(f"s_cbranch_scc1 {LL('pub2')}")
            A(f"buffer_load_dword v{vPoll}, off, {srd(S_DBG)}, 0 sc1")
            A(f"s_branch {LL('pub3')}")
            A.label(LL("pub2"))
            k1_publish(A)
            A.label(LL("pub3"))
        with_dma(1, pub)
        A.label(LL("poll0"))
        with_dma(1, lambda: A(f"buffer_load_dword v{vPoll}, v{vPa}, {srd(S_WS)}, 0 offen sc1"))
        A.label(LL("poll"))
        A("s_sleep 8")
        A(f"buffer_load_dword v{vPoll}, v{vPa}, {srd(S_WS)}, 0 offen sc1")
        A.label(LL("chk"))
        A("s_waitcnt vmcnt(0)")
        poll_cmp(A)
        A(f"s_add_u32 s{sSpin}, s{sSpin}, 1")
        A(f"s_cmp_gt_u32 s{sSpin}, {SPIN_MAX}")
        A(f"s_cbranch_scc1 {LL('specr')}")
        A(f"s_cmp_lg_u64 vcc, 0")
        A(f"s_cbranch_scc1 {LL('poll')}")
        A(f"s_branch {LL('specr')}")
        A.label(LL("go"))

        def go():
            A(f"v_lshlrev_b32 v{vT0}, 3, v0")
            A(f"v_cmp_gt_u32 vcc, {NT*(4 if G else 2)*16}, v0")
            A(f"v_mov_b32 v{vT2}, {OOB}")
            A(f"v_cndmask_b32 v{vT0}, v{vT2}, v{vT0}, vcc")
            A(f"s_mul_i32 s{sTmp}, s{sCG}, 15360")
            A(f"s_add_u32 s{sTmp}, s{sTmp}, {WS_CS}")
            for ch in range(10):
                if ch % 2 == 0 and ch:
                    A(f"s_add_u32 s{sTmp}, s{sTmp}, 3072")
                A(f"buffer_load_dwordx2 {vr(vCSP+2*ch, 2)}, v{vT0}, {srd(S_WS)}, s{sTmp} offen offset:{(ch%2)*1536} sc1")
            A(f"s_lshl_b32 s{sTmp}, s{sRB}, 10")
            A(f"s_add_u32 s{sTmp}, s{sTmp}, {WS_ST}")
            A(f"v_lshlrev_b32 v{vT1}, 2, v0")
            A(f"buffer_load_dword v{vSt}, v{vT1}, {srd(S_WS)}, s{sTmp} offen sc1")
        go()
        if typ not in OPT_WOEPI:
            wo_early(A, 0, 6)
        A(f"s_waitcnt vmcnt({11 if typ in OPT_WOEPI else 17}) lgkmcnt(0)")
        A(f"s_branch {LL('bar')}")
        A.label(LL("sum"))
        A(f"s_waitcnt vmcnt({0 if typ in OPT_WOEPI else 6})")
        for ch in range(1, 10):
            A(f"v_add_f32 v{vCSP}, v{vCSP}, v{vCSP+2*ch}")
            A(f"v_add_f32 v{vCSP+1}, v{vCSP+1}, v{vCSP+2*ch+1}")
        A(f"v_lshlrev_b32 v{vT0}, 3, v0")
        A(f"v_add_u32 v{vT0}, {MISC_LDS}, v{vT0}")
        A(f"ds_write_b64 v{vT0}, {vr(vCSP, 2)}")
        A(f"v_lshlrev_b32 v{vT1}, 2, v0")
        A(f"v_add_u32 v{vT1}, {MISC_LDS+2048}, v{vT1}")
        A(f"ds_write_b32 v{vT1}, v{vSt}")
        if typ not in OPT_WOEPI:
            wo_early(A, 52, 5)
        A("s_waitcnt lgkmcnt(0)")
        A(f"s_branch {LL('bar')}")

    A(f"s_cmp_ge_u32 s{sWave}, 4")
    A(f"s_cbranch_scc1 {L('roleB')}")
    loop("A")
    A.label(L("roleB"))
    loop("B")

    A.label(L("epi"))
    if (OPT["DLY"] == 2 and typ == "G") or (OPT["DLY"] == 3 and typ == "K"):
        A("s_sleep 30")
    A("s_setprio 0")
    stamp(A, 2, 0)
    stamp(A, 4, 0, wave=4, vt=50)
    stamp(A, 7, 0, wave=4, vt=50, clk=True)
    stamp(A, 15, 0, clk=True)
    if OPT["STAMP"] == 4:
        A(f"v_lshlrev_b32 v29, 2, v0")
        A(f"s_lshl_b32 s98, s2, 11")
        A(f"s_add_u32 s98, s98, {WS_STAMP + 0x10000}")
        A(f"buffer_store_dword v28, v29, {srd(S_WS)}, s98 offen")
    p2_ids(A)
    A.fence()
    if True:
        epi = {"G": k1_epi_g16 if S16 else k1_epi_g, "Q": k1_epi_q, "K": k1_epi_kv}[typ]
        ffn_setup(A)
        A(f"s_cmp_lt_u32 s{sWave}, 4")
        A(f"s_cselect_b32 s{sWo}, {OOB}, s{sWo}")
        E = Asm()
        epi(E, acc)
        body = [t for _, t in E.lines]
        npre = min(OPT["NPRE"], {"G": 6, "Q": 4, "K": 2}[typ])
        early = [g for j in range(min(4, npre)) for g in ldW_groups(j)]
        late = [g for j in range(4, npre) for g in ldW_groups(j)]
        wod = []
        if typ in OPT_WOEPI:
            A(f"s_mul_i32 s12, s{sWave}, 13")
            A("s_min_u32 s12, s12, 87")
            A("s_lshl_b32 s12, s12, 10")
            A(f"s_mul_i32 s13, s{sC}, {74*5120}")
            A("s_add_u32 s13, s13, s12")
            A(f"s_add_u32 s13, s13, {WS_W2 + 54*5120}")
            A(f"s_add_u32 s12, s12, {WO_LDS}")
            wod = [f"s_add_u32 m0, s12, {i*1024}\ns_add_u32 s14, s13, {i*1024}\n"
                   f"buffer_load_dwordx4 v{vL16}, {srd(S_WS)}, s14 offen sc1 lds" for i in range(13)]
        for g in interleave(body, (wod, 0.02, 0.6), (early, 0.02, 0.5 if npre > 4 else 0.7), (late, 0.5, 0.8)):
            A(g)
        A(f"s_mov_b32 s{sWoDone}, {npre + 1}")
    stamp(A, 3, 0)
    stamp(A, 5, 0, wave=4, vt=50)
    stamp(A, 8, 0, wave=4, vt=50, clk=True)
    A(f"v_mov_b32 v{vSigA}, {OOB}")
    if typ == "K":
        A(f"s_sub_u32 s{sTmp}, s{sCG}, 9")
        A(f"s_lshl_b32 s{sTmp}, s{sTmp}, 11")
        A(f"s_add_u32 s{sTmp}, s{sTmp}, {WS_FL + FL_KV}")
        A(f"v_lshl_add_u32 v{vT0}, v{vLane}, 8, s{sTmp}")
        A(f"v_cmp_gt_u32 vcc, 8, v{vLane}")
        A(f"v_cndmask_b32 v{vSigA}, v{vSigA}, v{vT0}, vcc")
        A(f"v_mov_b32 v{vSigV}, 1")
    else:
        A(f"s_lshl_b32 s{sTmp}, s{sRB}, 8")
        A(f"s_add_u32 s{sTmp}, s{sTmp}, {WS_FL + FL_HC}")
        A(f"v_writelane_b32 v{vSigA}, s{sTmp}, 0")
        A(f"s_lshl_b32 s{sTmp}, 1, s{sCG}")
        A(f"v_mov_b32 v{vSigV}, s{sTmp}")
    A("s_branch L_p2")


def k1_stats_issue(A):
    b = vBUF
    A(f"s_lshl_b32 s{sRow}, s{sRB}, 7")
    A(f"s_lshl_b32 s{sTmp2}, s{sCG}, 3")
    A(f"s_add_u32 s{sRow}, s{sRow}, s{sTmp2}")
    A(f"s_add_u32 s{sRow}, s{sRow}, s{sWave}")
    A(f"s_mul_i32 s{sTmp2}, s{sRow}, 1280")
    A(f"v_lshlrev_b32 v{vT0}, 3, v{vLane}")
    A(f"v_lshlrev_b32 v{vT1}, 2, v{vLane}")
    A(f"buffer_load_dwordx2 {vr(b, 2)}, v{vT0}, {srd(S_X)}, s{sTmp2} offen")
    A(f"buffer_load_dwordx2 {vr(b+2, 2)}, v{vT0}, {srd(S_X)}, s{sTmp2} offen offset:512")
    A(f"buffer_load_dword v{b+4}, v{vT1}, {srd(S_X)}, s{sTmp2} offen offset:1024")


def k1_stats(A, typ):
    b = vBUF
    if typ == "A":
        A("s_waitcnt vmcnt(0)")
    for i in range(5):
        A(f"v_lshlrev_b32 v{b+8+2*i}, 16, v{b+i}")
        A(f"v_and_b32 v{b+9+2*i}, 0xffff0000, v{b+i}")
    s = b + 20
    A(f"v_add_f32 v{s}, v{b+8}, v{b+9}")
    for i in range(2, 10):
        A(f"v_add_f32 v{s}, v{s}, v{b+8+i}")
    wave_allreduce_add(A, s, s + 1, 4)
    A(f"v_mul_f32 v{s}, {f32(1.0/640)}, v{s}")
    for i in range(10):
        A(f"v_sub_f32 v{b+8+i}, v{b+8+i}, v{s}")
    A(f"v_mul_f32 v{s+1}, v{b+8}, v{b+8}")
    for i in range(1, 10):
        A(f"v_fmac_f32 v{s+1}, v{b+8+i}, v{b+8+i}")
    wave_allreduce_add(A, s + 1, s + 2, 4)
    A(f"v_mov_b32 v{s+2}, {f32(1e-5)}")
    A(f"v_fmac_f32 v{s+2}, {f32(1.0/640)}, v{s+1}")
    A(f"v_mov_b32 v{s+1}, v{s+2}")
    A(f"v_cmp_eq_u32 vcc, 0, v{vLane}")
    A(f"v_mov_b32 v{vT2}, {OOB}")
    A(f"v_cndmask_b32 v{vT0}, v{vT2}, v{vLane}, vcc")
    A(f"s_lshl_b32 s{sTmp}, s{sRow}, 3")
    A(f"s_add_u32 s{sTmp}, s{sTmp}, {WS_ST}")
    A(f"buffer_store_dwordx2 {vr(s, 2)}, v{vT0}, {srd(S_WS)}, s{sTmp} offen sc1")


def k1_publish(A):
    A(f"s_lshl_b32 s{sTmp}, s{sRB}, 8")
    A(f"s_add_u32 s{sTmp}, s{sTmp}, {WS_FL + FL_ROW}")
    A(f"v_mov_b32 v{vT0}, {OOB}")
    A(f"v_writelane_b32 v{vT0}, s{sTmp}, 0")
    A(f"v_mov_b32 v{vT1}, 1")
    A(f"buffer_atomic_add v{vT1}, v{vT0}, {srd(S_WS)}, 0 offen sc1")


def poll_addr(A):
    A(f"v_and_b32 v{vPa}, 15, v{vLane}")
    A(f"v_lshlrev_b32 v{vPa}, 8, v{vPa}")
    A(f"v_add_u32 v{vPa}, {WS_FL + FL_ROW}, v{vPa}")


def poll_cmp(A):
    A(f"v_cmp_gt_u32 vcc, 16, v{vPoll}")


def wait_zeroed(A, lab, first_issued):
    if first_issued:
        A(f"s_branch {lab}_c")
    A.label(lab)
    A("s_sleep 4")
    A(f"buffer_load_dword v{vPoll}, off, {srd(S_DBG)}, 0 sc1")
    A.label(lab + "_c")
    A("s_waitcnt vmcnt(0)")
    A(f"v_readfirstlane_b32 s{sTmp}, v{vPoll}")
    A(f"s_add_u32 s{sSpin}, s{sSpin}, 1")
    A(f"s_cmp_gt_u32 s{sSpin}, {SPIN_MAX}")
    A(f"s_cbranch_scc1 {lab}_ok")
    A(f"s_cmp_lt_u32 s{sTmp}, 16")
    A(f"s_cbranch_scc1 {lab}")
    A.label(lab + "_ok")


S_R = 88
sU, sUks, sUL = 92, 93, 94


def w2_unit_decode(A):
    A(f"s_mul_i32 s{sUks}, s{sU}, 205")
    A(f"s_lshr_b32 s{sUks}, s{sUks}, 11")
    A(f"s_mul_i32 s{sUL}, s{sUks}, 10")
    A(f"s_sub_u32 s{sUL}, s{sU}, s{sUL}")


def w2_unit_dma(A, lds):
    w2_unit_decode(A)
    A(f"s_cmp_lt_u32 s{sUks}, 54")
    A(f"s_cselect_b32 s{S_R}, s{P_D}, s{P_WO}")
    A(f"s_cselect_b32 s{S_R+1}, s{P_D+1}, s{P_WO+1}")
    A(f"s_mov_b32 s{S_R+2}, {640*1280}")
    A(f"s_cselect_b32 s{S_R+2}, {1728*1280}, s{S_R+2}")
    A(f"s_cselect_b32 s{sTmp}, 0, 54")
    A(f"s_and_b32 s{S_R+1}, s{S_R+1}, 0xffff")
    A(f"s_mov_b32 s{S_R+3}, 0x20000")
    A(f"s_sub_u32 s{sTmp}, s{sUks}, s{sTmp}")
    A(f"s_mul_i32 s{sTmp}, s{sTmp}, {32*1280}")
    A(f"s_lshl_b32 s{sTmp2}, s{sUL}, 7")
    A(f"s_add_u32 s{sTmp}, s{sTmp}, s{sTmp2}")
    A(f"v_lshrrev_b32 v{vT0}, 3, v{vLane}")
    A(f"v_mul_u32_u24 v{vT0}, 1280, v{vT0}")
    A(f"v_and_b32 v{vT1}, 7, v{vLane}")
    A(f"v_lshl_add_u32 v{vT0}, v{vT1}, 4, v{vT0}")
    for i in range(4):
        A(f"s_add_u32 m0, {lds}, {i*1024}")
        A("s_nop 0")
        A(f"buffer_load_dwordx4 v{vT0}, {srd(S_R)}, s{sTmp} offen lds")
        A(f"s_add_u32 s{sTmp}, s{sTmp}, {8*1280}")


def w2_unit_out(A, lds, F):
    w2_unit_decode(A)
    A(f"v_bfe_u32 v{vT0}, v{vLane}, 2, 2")
    A(f"v_lshlrev_b32 v{vT0}, 7, v{vT0}")
    A(f"v_and_b32 v{vT1}, 3, v{vLane}")
    A(f"v_lshl_add_u32 v{vT0}, v{vT1}, 3, v{vT0}")
    A(f"v_lshrrev_b32 v{vT1}, 4, v{vLane}")
    A(f"s_cmp_lt_u32 s{sUks}, 54")
    A(f"s_cselect_b32 s{sTmp}, 10, 9")
    A(f"s_movk_i32 s{sTmp2}, 512")
    A(f"s_cselect_b32 s{sTmp2}, s{sTmp2}, 2048")
    A(f"v_lshlrev_b32 v{vT1}, s{sTmp}, v{vT1}")
    A(f"v_add3_u32 v{vT0}, v{vT0}, v{vT1}, {lds}")
    A(f"v_add_u32 v{vT1}, s{sTmp2}, v{vT0}")
    for tau in range(4):
        A(f"ds_read_b64_tr_b16 {vr(F(tau), 2)}, v{vT0} offset:{tau*32}")
        A(f"ds_read_b64_tr_b16 {vr(F(tau)+2, 2)}, v{vT1} offset:{tau*32}")
    A(f"v_lshlrev_b32 v{vT2}, 4, v{vLane}")
    A("s_waitcnt lgkmcnt(0)")
    for tau in range(4):
        A(f"s_lshl_b32 s{sTmp}, s{sUL}, 2")
        A(f"s_add_u32 s{sTmp}, s{sTmp}, {tau}")
        A(f"s_mul_i32 s{sTmp2}, s{sTmp}, 205")
        A(f"s_lshr_b32 s{sTmp2}, s{sTmp2}, 10")
        A(f"s_mul_i32 s{sTmp3}, s{sTmp2}, {74*5-5}")
        A(f"s_add_u32 s{sTmp}, s{sTmp}, s{sTmp3}")
        A(f"s_mul_i32 s{sTmp3}, s{sUks}, 5")
        A(f"s_add_u32 s{sTmp}, s{sTmp}, s{sTmp3}")
        A(f"s_lshl_b32 s{sTmp}, s{sTmp}, 10")
        A(f"s_add_u32 s{sTmp}, s{sTmp}, {WS_W2}")
        A(f"s_cmp_lt_u32 s{sU}, 740")
        A(f"s_cselect_b32 s{sTmp}, s{sTmp}, {OOB}")
        A(f"buffer_store_dwordx4 {vr(F(tau))}, v{vT2}, {srd(S_WS)}, s{sTmp} offen sc1")


def k1_epi_g(A, acc):
    c = vBUF
    cs = vBUF + 8
    t = vBUF + 40
    o = vBUF + 48
    A(f"v_lshrrev_b32 v{vT0}, 5, v{vLane}")
    A(f"v_lshlrev_b32 v{vT0}, 4, v{vT0}")
    A(f"s_mul_i32 s{sTmp}, s{sNW}, 384")
    A(f"s_add_u32 s{sTmp}, s{sTmp}, {MISC_LDS}")
    A(f"v_add_u32 v{vT0}, s{sTmp}, v{vT0}")
    A(f"v_and_b32 v{vT1}, 31, v{vLane}")
    A(f"s_lshl_b32 s{sTmp}, s{sMW}, 9")
    A(f"s_add_u32 s{sTmp}, s{sTmp}, {MISC_LDS+2048}")
    A(f"v_lshl_add_u32 v{vT1}, v{vT1}, 3, s{sTmp}")
    for mt in range(2):
        A(f"ds_read_b64 {vr(c+4*mt, 2)}, v{vT1} offset:{mt*256}")
    for q in range(4):
        A(f"ds_read_b128 {vr(cs+4*q)}, v{vT0} offset:{q*32}")
    A("s_waitcnt lgkmcnt(4)")
    for mt in range(2):
        mu, v, k1, k3 = c + 4 * mt, c + 4 * mt + 1, c + 4 * mt + 2, c + 4 * mt + 3
        A(f"v_rsq_f32 v{t}, v{v}")
        A(f"v_mul_f32 v{k1}, {f32(GC1)}, v{t}")
        A(f"v_mul_f32 v{t+1}, v{t}, v{t}")
        A(f"v_mul_f32 v{t+1}, v{t+1}, v{t}")
        A(f"v_mul_f32 v{k3}, {f32(GC2)}, v{t+1}")
    A(f"v_bfe_u32 v{vT1}, v{vLane}, 4, 1")
    A(f"v_lshlrev_b32 v{vT1}, 10, v{vT1}")
    A(f"v_lshrrev_b32 v{vT2}, 5, v{vLane}")
    A(f"v_lshl_add_u32 v{vT1}, v{vT2}, 8, v{vT1}")
    A(f"v_and_b32 v{vT2}, 15, v{vLane}")
    A(f"v_lshl_add_u32 v{vT1}, v{vT2}, 4, v{vT1}")
    n = 0
    for a in range(3):
        csa = cs + 16 * (a % 2)
        if a < 2:
            for q in range(4):
                A(f"ds_read_b128 {vr(cs+16*((a+1)%2)+4*q)}, v{vT0} offset:{(a+1)*128+q*32}")
            A("s_waitcnt lgkmcnt(4)")
        else:
            A("s_waitcnt lgkmcnt(0)")
        A(f"s_mul_i32 s{sTmp}, s{sCG}, 12")
        A(f"s_mul_i32 s{sTmp2}, s{sNW}, 3")
        A(f"s_add_u32 s{sTmp}, s{sTmp}, s{sTmp2}")
        A(f"s_add_u32 s{sTmp}, s{sTmp}, {a}")
        A(f"s_lshl_b32 s{sTmp2}, s{sRB}, 1")
        A(f"s_add_u32 s{sTmp2}, s{sTmp2}, s{sMW}")
        A(f"s_mul_i32 s{sTmp2}, s{sTmp2}, 54")
        A(f"s_lshr_b32 s{sTmp3}, s{sTmp}, 1")
        A(f"s_add_u32 s{sTmp2}, s{sTmp2}, s{sTmp3}")
        A(f"s_lshl_b32 s{sTmp2}, s{sTmp2}, 12")
        A(f"s_and_b32 s{sTmp}, s{sTmp}, 1")
        A(f"s_lshl_b32 s{sTmp}, s{sTmp}, 9")
        A(f"s_add_u32 s{sTmp}, s{sTmp}, s{sTmp2}")
        C = lambda mt, k: c + 4 * mt + k
        MP = [(mt, i) for mt in range(2) for i in range(0, 8, 2)]
        D = lambda mt: acc(mt, a)
        Tm = lambda mt: t + 8 * mt
        for mt, i in MP:
            pk_fma(A, D(mt) + i, ("b", C(mt, 0)), ("p", csa + i), ("p", D(mt) + i), neg_a=True)
        for mt, i in MP:
            pk_mul(A, Tm(mt) + i, ("p", D(mt) + i), ("p", D(mt) + i))
        for mt, i in MP:
            pk_fma(A, Tm(mt) + i, ("p", Tm(mt) + i), ("b", C(mt, 3)), ("b", C(mt, 2)))
        for mt, i in MP:
            pk_mul(A, Tm(mt) + i, ("p", Tm(mt) + i), ("p", D(mt) + i))
        for mt, i in MP:
            A(f"v_exp_f32 v{Tm(mt)+i}, v{Tm(mt)+i}")
            A(f"v_exp_f32 v{Tm(mt)+i+1}, v{Tm(mt)+i+1}")
            pk_fma(A, D(mt) + 8 + i, ("b", C(mt, 0)), ("p", csa + 8 + i), ("p", D(mt) + 8 + i), neg_a=True)
        for mt, i in MP:
            pk_fma(A, Tm(mt) + i, ("p", Tm(mt) + i), ("b", C(mt, 1)), ("b", C(mt, 1)))
        for mt, i in MP:
            A(f"v_rcp_f32 v{Tm(mt)+i}, v{Tm(mt)+i}")
            A(f"v_rcp_f32 v{Tm(mt)+i+1}, v{Tm(mt)+i+1}")
            pk_mul(A, D(mt) + i, ("p", D(mt) + i), ("p", D(mt) + 8 + i))
        for mt, i in MP:
            pk_mul(A, D(mt) + i, ("p", D(mt) + i), ("p", Tm(mt) + i))
        for mt in range(2):
            ob = D(mt) + 8
            for i in range(4):
                A(f"v_cvt_pk_bf16_f32 v{ob+i}, v{D(mt)+2*i}, v{D(mt)+2*i+1}")
            A(f"buffer_store_dwordx4 {vr(ob)}, v{vT1}, {srd(S_WS)}, s{sTmp} offen offset:{mt*2048} sc1")


acc16 = lambda t, a, kw: vACC + 32 * a + 16 * kw + 4 * t


def k1_epi_g16(A, acc):
    c = vBUF
    cs = vBUF + 16
    t = vBUF + 40
    A(f"v_lshrrev_b32 v{vT0}, 4, v{vLane}")
    A(f"v_lshlrev_b32 v{vT0}, 4, v{vT0}")
    A(f"s_mul_i32 s{sTmp}, s{sNW}, 384")
    A(f"s_add_u32 s{sTmp}, s{sTmp}, {MISC_LDS}")
    A(f"v_add_u32 v{vT0}, s{sTmp}, v{vT0}")
    A(f"v_and_b32 v{vT1}, 15, v{vLane}")
    A(f"s_lshl_b32 s{sTmp}, s{sMW}, 9")
    A(f"s_add_u32 s{sTmp}, s{sTmp}, {MISC_LDS+2048}")
    A(f"v_lshl_add_u32 v{vT1}, v{vT1}, 3, s{sTmp}")
    for m in range(4):
        A(f"ds_read_b64 {vr(c+4*m, 2)}, v{vT1} offset:{m*128}")
    for p in range(6):
        A(f"ds_read_b128 {vr(cs+4*p)}, v{vT0} offset:{p*64}")
    A("s_waitcnt lgkmcnt(6)")
    for m in range(4):
        A(f"v_rsq_f32 v{t+m}, v{c+4*m+1}")
    for m in range(4):
        A(f"v_mul_f32 v{c+4*m+2}, {f32(GC1)}, v{t+m}")
        A(f"v_mul_f32 v{t+4+m}, v{t+m}, v{t+m}")
    for m in range(4):
        A(f"v_mul_f32 v{t+4+m}, v{t+4+m}, v{t+m}")
    for m in range(4):
        A(f"v_mul_f32 v{c+4*m+3}, {f32(GC2)}, v{t+4+m}")
    A(f"v_bfe_u32 v{vT1}, v{vLane}, 4, 1")
    A(f"v_lshlrev_b32 v{vT1}, 10, v{vT1}")
    A(f"v_lshrrev_b32 v{vT2}, 5, v{vLane}")
    A(f"v_lshl_add_u32 v{vT1}, v{vT2}, 8, v{vT1}")
    A(f"v_and_b32 v{vT2}, 15, v{vLane}")
    A(f"v_lshl_add_u32 v{vT1}, v{vT2}, 4, v{vT1}")
    A("s_waitcnt lgkmcnt(0)")
    for a in range(3):
        A(f"s_mul_i32 s{sTmp}, s{sCG}, 12")
        A(f"s_mul_i32 s{sTmp2}, s{sNW}, 3")
        A(f"s_add_u32 s{sTmp}, s{sTmp}, s{sTmp2}")
        A(f"s_add_u32 s{sTmp}, s{sTmp}, {a}")
        A(f"s_lshl_b32 s{sTmp2}, s{sRB}, 1")
        A(f"s_add_u32 s{sTmp2}, s{sTmp2}, s{sMW}")
        A(f"s_mul_i32 s{sTmp2}, s{sTmp2}, 54")
        A(f"s_lshr_b32 s{sTmp3}, s{sTmp}, 1")
        A(f"s_add_u32 s{sTmp2}, s{sTmp2}, s{sTmp3}")
        A(f"s_lshl_b32 s{sTmp2}, s{sTmp2}, 12")
        A(f"s_and_b32 s{sTmp}, s{sTmp}, 1")
        A(f"s_lshl_b32 s{sTmp}, s{sTmp}, 9")
        A(f"s_add_u32 s{sTmp}, s{sTmp}, s{sTmp2}")
        C = lambda m, k: c + 4 * m + k
        MP = [(m, i) for m in range(4) for i in (0, 2)]
        Gt = lambda m: acc16(m, a, 0)
        Up = lambda m: acc16(m, a, 1)
        Tm = lambda m: t + 4 * m
        cg_, cu_ = cs + 8 * a, cs + 8 * a + 4
        for m, i in MP:
            pk_fma(A, Gt(m) + i, ("b", C(m, 0)), ("p", cg_ + i), ("p", Gt(m) + i), neg_a=True)
        for m, i in MP:
            pk_mul(A, Tm(m) + i, ("p", Gt(m) + i), ("p", Gt(m) + i))
        for m, i in MP:
            pk_fma(A, Tm(m) + i, ("p", Tm(m) + i), ("b", C(m, 3)), ("b", C(m, 2)))
        for m, i in MP:
            pk_mul(A, Tm(m) + i, ("p", Tm(m) + i), ("p", Gt(m) + i))
        for m, i in MP:
            A(f"v_exp_f32 v{Tm(m)+i}, v{Tm(m)+i}")
            A(f"v_exp_f32 v{Tm(m)+i+1}, v{Tm(m)+i+1}")
            pk_fma(A, Up(m) + i, ("b", C(m, 0)), ("p", cu_ + i), ("p", Up(m) + i), neg_a=True)
        for m, i in MP:
            pk_fma(A, Tm(m) + i, ("p", Tm(m) + i), ("b", C(m, 1)), ("b", C(m, 1)))
        for m, i in MP:
            A(f"v_rcp_f32 v{Tm(m)+i}, v{Tm(m)+i}")
            A(f"v_rcp_f32 v{Tm(m)+i+1}, v{Tm(m)+i+1}")
            pk_mul(A, Gt(m) + i, ("p", Gt(m) + i), ("p", Up(m) + i))
        for m, i in MP:
            pk_mul(A, Gt(m) + i, ("p", Gt(m) + i), ("p", Tm(m) + i))
        for pr in range(2):
            ob = Up(2 * pr)
            for h in range(2):
                A(f"v_cvt_pk_bf16_f32 v{ob+2*h}, v{Gt(2*pr+h)}, v{Gt(2*pr+h)+1}")
                A(f"v_cvt_pk_bf16_f32 v{ob+2*h+1}, v{Gt(2*pr+h)+2}, v{Gt(2*pr+h)+3}")
        for pr in range(2):
            ob = Up(2 * pr)
            A(f"v_permlane16_swap_b32 v{ob}, v{ob+2}")
            A(f"v_permlane16_swap_b32 v{ob+1}, v{ob+3}")
        for pr in range(2):
            A(f"buffer_store_dwordx4 {vr(Up(2*pr))}, v{vT1}, {srd(S_WS)}, s{sTmp} offen offset:{pr*2048} sc1")


def pk(r, bc=False):
    return f"v[{r}:{r+1}]"


def pko(*bc):
    lo = ",".join("1" if b == 1 else "0" for b in bc)
    hi = ",".join("0" if b == 0 else "1" for b in bc)
    return f"op_sel:[{lo}] op_sel_hi:[{hi}]"


def opnd(x):
    k, r = x
    if k == "p":
        return pk(r), None
    return pk(r & ~1), r & 1


def pk_fma(A, d, a, b, c, neg_a=False):
    (ta, fa), (tb_, fb), (tc, fc) = opnd(a), opnd(b), opnd(c)
    n = " neg_lo:[1,0,0] neg_hi:[1,0,0]" if neg_a else ""
    A(f"v_pk_fma_f32 {pk(d)}, {ta}, {tb_}, {tc} {pko(fa, fb, fc)}{n}")


def pk_mul(A, d, a, b, op="mul"):
    (ta, fa), (tb_, fb) = opnd(a), opnd(b)
    A(f"v_pk_{op}_f32 {pk(d)}, {ta}, {tb_} {pko(fa, fb)}")


def phi_block(A, d, n, t, mu, cs, r, rl, eps):
    P = range(0, n, 2)
    for i in P:
        pk_fma(A, d + i, mu(i), cs(i), ("p", d + i), neg_a=True)
    for i in P:
        pk_mul(A, t + i, ("p", d + i), rl(i))
    for i in P:
        A(f"v_exp_f32 v{t+i}, v{t+i} clamp")
        A(f"v_exp_f32 v{t+i+1}, v{t+i+1} clamp")
        pk_fma(A, d + i, ("p", d + i), r(i), ("b", eps))
    for i in range(n):
        A(f"v_max_f32 v{d+i}, v{d+i}, v{eps}")
    for i in P:
        pk_mul(A, d + i, ("p", d + i), ("p", t + i), op="add")


def k1_epi_q(A, acc):
    c = vBUF
    cs = vBUF + 8
    t = vBUF + 40
    o = vBUF + 56
    mu, r, rl, eps = c, c + 1, c + 2, c + 3
    A(f"v_lshrrev_b32 v{vT0}, 5, v{vLane}")
    A(f"v_lshlrev_b32 v{vT0}, 4, v{vT0}")
    A(f"s_mul_i32 s{sTmp}, s{sNW}, 640")
    A(f"s_add_u32 s{sTmp}, s{sTmp}, {MISC_LDS}")
    A(f"v_add_u32 v{vT0}, s{sTmp}, v{vT0}")
    A(f"v_and_b32 v{vT1}, 31, v{vLane}")
    A(f"s_lshl_b32 s{sTmp}, s{sMW}, 8")
    A(f"s_add_u32 s{sTmp}, s{sTmp}, {MISC_LDS+2048}")
    A(f"v_lshl_add_u32 v{vT1}, v{vT1}, 3, s{sTmp}")
    A(f"ds_read_b64 {vr(mu, 2)}, v{vT1}")
    for q in range(4):
        A(f"ds_read_b128 {vr(cs+4*q)}, v{vT0} offset:{q*32}")
    A("s_waitcnt lgkmcnt(4)")
    A(f"v_rsq_f32 v{r}, v{r}")
    A(f"v_mov_b32 v{eps}, {f32(1e-6)}")
    A(f"v_mul_f32 v{rl}, {f32(LOG2E)}, v{r}")
    A(f"v_bfe_u32 v{vT1}, v{vLane}, 4, 1")
    A(f"v_lshlrev_b32 v{vT1}, 10, v{vT1}")
    A(f"v_lshrrev_b32 v{vT2}, 5, v{vLane}")
    A(f"v_lshl_add_u32 v{vT1}, v{vT2}, 8, v{vT1}")
    A(f"v_and_b32 v{vT2}, 15, v{vLane}")
    A(f"v_lshl_add_u32 v{vT1}, v{vT2}, 4, v{vT1}")
    A(f"s_lshl_b32 s{sTmp}, s{sRB}, 1")
    A(f"s_lshr_b32 s{sTmp2}, s{sMW}, 1")
    A(f"s_add_u32 s{sTmp}, s{sTmp}, s{sTmp2}")
    A(f"s_mul_i32 s{sTmp}, s{sTmp}, 20")
    A(f"s_sub_u32 s{sTmp2}, s{sCG}, 13")
    A(f"s_mul_i32 s{sTmp2}, s{sTmp2}, 10")
    A(f"s_add_u32 s{sTmp}, s{sTmp}, s{sTmp2}")
    A(f"s_mul_i32 s{sTmp2}, s{sNW}, 5")
    A(f"s_add_u32 s{sTmp}, s{sTmp}, s{sTmp2}")
    A(f"s_lshl_b32 s{sTmp}, s{sTmp}, 12")
    A(f"s_and_b32 s{sTmp2}, s{sMW}, 1")
    A(f"s_lshl_b32 s{sTmp2}, s{sTmp2}, 11")
    A(f"s_add_u32 s{sTmp}, s{sTmp}, s{sTmp2}")
    A(f"s_add_u32 s{sTmp}, s{sTmp}, {WS_PQ}")
    for a in range(5):
        csa = cs + 16 * (a % 2)
        if a < 4:
            for q in range(4):
                A(f"ds_read_b128 {vr(cs+16*((a+1)%2)+4*q)}, v{vT0} offset:{(a+1)*128+q*32}")
            A("s_waitcnt lgkmcnt(4)")
        else:
            A("s_waitcnt lgkmcnt(0)")
        d = acc(0, a)
        phi_block(A, d, 16, t, lambda i: ("b", mu), lambda i: ("p", csa + i), lambda i: ("b", r), lambda i: ("b", rl), eps)
        ob = o + 8 * (a % 2)
        for i in range(8):
            A(f"v_cvt_pk_bf16_f32 v{ob+i}, v{d+2*i}, v{d+2*i+1}")
        A(f"buffer_store_dwordx4 {vr(ob)}, v{vT1}, {srd(S_WS)}, s{sTmp} offen sc1")
        A(f"buffer_store_dwordx4 {vr(ob+4)}, v{vT1}, {srd(S_WS)}, s{sTmp} offen offset:512 sc1")
        A(f"s_add_u32 s{sTmp}, s{sTmp}, 4096")


KV_PAIRS = [(0, 2), (0, 3), (1, 3), (1, 4), (2, 4)]
KV_Q = [[0, 1, 2], [0, 1, 2, 3], [0, 1, 2, 3], [1, 2, 3], [0, 1]]
KV_AD = 232
KV_SLAB = [0, 14336, 135168, 149504]
KV_DUMMY = 28688


def kv_addr_setup(A):
    e, he, d0, dm = vT0, vT1, vT2, vT3
    t = vBUF + 24
    A(f"s_mul_i32 s{sTmp3}, s{sMW}, 14336")
    A(f"s_cmp_ge_u32 s{sMW}, 2")
    A(f"s_cselect_b32 s{sTmp}, {135168 - 2*14336}, 0")
    A(f"s_add_u32 s{sTmp3}, s{sTmp3}, s{sTmp}")
    A(f"s_mul_i32 s{sTmp}, s{sNW}, 6720")
    A(f"s_add_u32 s{sTmp3}, s{sTmp3}, s{sTmp}")
    A(f"v_lshlrev_b32 v{dm}, 4, v{vLane}")
    A(f"v_add_u32 v{dm}, {KV_DUMMY}, v{dm}")
    A(f"v_lshrrev_b32 v{d0}, 5, v{vLane}")
    A(f"v_lshlrev_b32 v{d0}, 2, v{d0}")
    for n, (a, b) in enumerate(KV_PAIRS):
        A(f"v_and_b32 v{e}, 31, v{vLane}")
        A(f"v_add_u32 v{e}, {32*b - 80 + 100}, v{e}")
        A(f"v_mul_u32_u24 v{he}, 205, v{e}")
        A(f"v_lshrrev_b32 v{he}, 12, v{he}")
        A(f"v_mul_u32_u24 v{e}, 80, v{e}")
        A(f"v_add_u32 v{e}, s{sTmp3}, v{e}")
        for q in KV_Q[n]:
            a0 = KV_AD + 4 * n + q
            A(f"v_add_u32 v{a0}, {32*a + 8*q + 100}, v{d0}")
            A(f"v_mul_u32_u24 v{t}, 205, v{a0}")
            A(f"v_lshrrev_b32 v{t}, 12, v{t}")
            A(f"v_cmp_eq_u32 vcc, v{t}, v{he}")
            A(f"v_lshl_add_u32 v{a0}, v{a0}, 2, v{e}")
            A(f"v_subrev_u32 v{a0}, {80*100 + 4*100}, v{a0}")
            A(f"v_cndmask_b32 v{a0}, v{dm}, v{a0}, vcc")
    A(f"v_and_b32 v{e}, 15, v{vLane}")
    A(f"v_lshrrev_b32 v{d0}, 4, v{vLane}")
    A(f"v_lshlrev_b32 v{d0}, 2, v{d0}")
    A(f"v_lshl_add_u32 v{d0}, v{e}, 4, v{d0}")
    for a in range(3):
        az = KV_AD + 20 + a
        A(f"v_add_u32 v{az}, {32*a}, v{d0}")
        A(f"v_mul_u32_u24 v{t}, 205, v{az}")
        A(f"v_lshrrev_b32 v{t}, 12, v{t}")
        A(f"v_mul_u32_u24 v{t}, 1600, v{t}")
        A(f"v_lshl_add_u32 v{az}, v{az}, 2, v{t}")
        A(f"v_add_u32 v{az}, s{sTmp3}, v{az}")
        A(f"v_add_u32 v{az}, 1600, v{az}")
        A(f"v_cmp_gt_u32 vcc, {2 if a < 2 else 1}, v{e}")
        A(f"v_cndmask_b32 v{az}, v{dm}, v{az}, vcc")


def k1_epi_kv(A, acc):
    mu = vBUF
    rr = vBUF + 16
    rl = vBUF + 32
    t = vBUF + 48
    raw = vBUF + 48
    cs = vBUF + 80
    eps = vBUF + 86
    sv = vBUF + 64
    A(f"v_and_b32 v{vT0}, 31, v{vLane}")
    A(f"v_cmp_gt_u32 vcc, 16, v{vT0}")
    A(f"v_lshlrev_b32 v{vT0}, 2, v{vT0}")
    A(f"s_mul_i32 s{sTmp}, s{sNW}, 640")
    A(f"s_add_u32 s{sTmp}, s{sTmp}, {MISC_LDS}")
    A(f"v_add_u32 v{vT1}, s{sTmp}, v{vT0}")
    A(f"v_lshrrev_b32 v{vT2}, 5, v{vLane}")
    A(f"s_lshl_b32 s{sTmp}, s{sMW}, 8")
    A(f"s_add_u32 s{sTmp}, s{sTmp}, {MISC_LDS+2048}")
    A(f"v_lshl_add_u32 v{vT2}, v{vT2}, 5, s{sTmp}")
    for q in range(4):
        for h in range(2):
            A(f"ds_read_b128 {vr(raw+8*q+4*h)}, v{vT2} offset:{q*64+h*16}")
    for a in range(5):
        A(f"ds_read_b32 v{cs+a}, v{vT1} offset:{a*128}")
    A("s_waitcnt lgkmcnt(5)")
    for i in range(16):
        A(f"v_rsq_f32 v{rr+i}, v{raw+2*i+1}")
        A(f"v_mov_b32 v{mu+i}, v{raw+2*i}")
    for i in range(16):
        A(f"v_mul_f32 v{rl+i}, {f32(LOG2E)}, v{rr+i}")
    A(f"v_mov_b32 v{eps}, {f32(1e-6)}")
    A("s_waitcnt lgkmcnt(0)")
    op = lambda a, h: acc(0, a) + 4 * h

    def pack(a):
        d = acc(0, a)
        for i in range(8):
            A(f"v_cvt_pk_bf16_f32 v{d+i}, v{d+2*i}, v{d+2*i+1}")

    def plain(a, dst):
        d = acc(0, a)
        for i in range(0, 16, 2):
            pk_fma(A, dst + i, ("p", mu + i), ("b", cs + a), ("p", d + i), neg_a=True)
        for i in range(0, 16, 2):
            pk_mul(A, dst + i, ("p", dst + i), ("p", rr + i))

    def phi(a):
        phi_block(A, acc(0, a), 16, t, lambda i: ("p", mu + i), lambda i: ("b", cs + a), lambda i: ("p", rr + i), lambda i: ("p", rl + i), eps)
    for a in (3, 4):
        plain(a, acc(0, a))
        pack(a)
    plain(2, sv)
    phi(2)
    for i in range(16):
        A(f"v_cndmask_b32 v{acc(0,2)+i}, v{sv+i}, v{acc(0,2)+i}, vcc")
    pack(2)
    for a in (0, 1):
        phi(a)
        pack(a)
    D = lambda n: vBUF + 16 * n
    Z = lambda a: vBUF + 80 + 4 * a
    for h in range(2):
        for n, (a, b) in enumerate(KV_PAIRS):
            A(f"v_mfma_f32_32x32x16_bf16 {vr(D(n),16)}, {vr(op(a,h))}, {vr(op(b,h))}, {vr(D(n),16) if h else 0}")
        for a in range(3):
            A(f"v_mfma_f32_16x16x32_bf16 {vr(Z(a))}, {vr(op(a,h))}, {vr(vSel)}, {vr(Z(a)) if h else 0}")
    A("s_barrier")
    for n in range(5):
        for q in KV_Q[n]:
            A(f"ds_write_b128 v{KV_AD+4*n+q}, {vr(D(n)+4*q)}")
    for a in range(3):
        A(f"ds_write_b128 v{KV_AD+20+a}, {vr(Z(a))}")
    sSlab = 4
    A(f"s_sub_u32 s{sSlab}, s{sCG}, 9")
    A(f"s_mul_i32 s{sSlab}, s{sSlab}, 13440")
    A(f"s_add_u32 s{sSlab}, s{sSlab}, {WS_KVA}")
    A(f"v_lshlrev_b32 v{vT0}, 2, v0")
    A(f"v_add_u32 v{vT1}, {KV_SLAB[2]}, v{vT0}")
    A(f"v_cmp_gt_u32 vcc, {3360-6*512}, v0")
    A(f"v_mov_b32 v{vT2}, {OOB}")
    A(f"v_cndmask_b32 v{vT2}, v{vT2}, v{vT0}, vcc")
    A("s_waitcnt lgkmcnt(0)")
    A("s_barrier")
    R = vACC
    for j in range(7):
        for m in range(4):
            A(f"ds_read_b32 v{R+4*j+m}, v{vT0 if m < 2 else vT1} offset:{j*2048 + (m%2)*14336}")
        if j >= 2:
            k = j - 2
            A("s_waitcnt lgkmcnt(8)")
            kv_atomic(A, R, k, sSlab)
    for k in (5, 6):
        A(f"s_waitcnt lgkmcnt({4*(6-k)})")
        kv_atomic(A, R, k, sSlab)


def kv_atomic(A, R, k, sSlab):
    A(f"v_add_f32 v{R+4*k}, v{R+4*k}, v{R+4*k+1}")
    A(f"v_add_f32 v{R+4*k+2}, v{R+4*k+2}, v{R+4*k+3}")
    A(f"v_add_f32 v{R+4*k}, v{R+4*k}, v{R+4*k+2}")
    A(f"buffer_atomic_add_f32 v{R+4*k}, v{vT0 if k < 6 else vT2}, {srd(S_WS)}, s{sSlab} offen offset:{(k%2)*2048}")
    if k % 2 == 1:
        A(f"s_add_u32 s{sSlab}, s{sSlab}, 4096")


def k1_aux(A):
    if OPT["CODEWARM"] == 1:
        A("s_getpc_b64 s[10:11]")
        A.label("L_pc")
        A(f"s_sub_u32 s10, s10, L_pc-{NAME}_kernel")
        A("s_subb_u32 s11, s11, 0")
        A(f"v_lshlrev_b32 v{vT0}, 7, v0")
        A(f"v_min_u32 v{vT0}, L_code_end-{NAME}_kernel-4, v{vT0}")
        A(f"global_load_dword v{vACC+8}, v{vT0}, s[10:11]")
    if OPT["TLBWARM"]:
        g = OPT["TLBWARM"]
        mk_srd(A, S_T, P_OUT, 2048 * 1280)
        A(f"v_lshlrev_b32 v{vT0}, {g}, v0")
        A(f"buffer_load_dword v{vACC+9}, v{vT0}, {srd(S_WS)}, 0 offen sc1")
        A(f"buffer_load_dword v{vACC+10}, v{vT0}, {srd(S_T)}, 0 offen sc1")
    for i in range(4):
        A(f"v_mov_b32 v{vACC+i}, 0")
    A(f"v_lshlrev_b32 v{vT0}, 4, v0")
    A(f"s_mul_i32 s{sTmp}, s{sRB}, 3360")
    A(f"s_add_u32 s{sTmp}, s{sTmp}, {WS_KVA}")
    A(f"v_add_u32 v{vT0}, s{sTmp}, v{vT0}")
    A(f"v_mov_b32 v{vT2}, {OOB}")
    A(f"v_cmp_gt_u32 vcc, 210, v0")
    A(f"v_cndmask_b32 v{vT0}, v{vT2}, v{vT0}, vcc")
    A(f"s_cmp_lg_u32 s{sWave}, 7")
    A("s_cbranch_scc1 L_A_z")
    A(f"s_lshl_b32 s{sTmp}, s{sRB}, 8")
    A(f"s_add_u32 s{sTmp}, s{sTmp}, {WS_FL}")
    A(f"v_writelane_b32 v{vT0}, s{sTmp}, 0")
    A(f"s_add_u32 s{sTmp}, s{sTmp}, {FL_ROW}")
    A(f"v_writelane_b32 v{vT0}, s{sTmp}, 3")
    A(f"s_lshl_b32 s{sTmp}, s{sRB}, 9")
    A(f"s_add_u32 s{sTmp}, s{sTmp}, {WS_FL + FL_KV}")
    A(f"v_writelane_b32 v{vT0}, s{sTmp}, 1")
    A(f"s_add_u32 s{sTmp}, s{sTmp}, 256")
    A(f"v_writelane_b32 v{vT0}, s{sTmp}, 2")
    A.label("L_A_z")
    A(f"buffer_store_dwordx4 {vr(vACC)}, v{vT0}, {srd(S_WS)}, 0 offen sc1")
    A(f"s_cmp_lg_u32 s{sWave}, 7")
    A("s_cbranch_scc1 L_A_z2")
    A("s_waitcnt vmcnt(0)")
    A(f"v_mov_b32 v{vT0}, {OOB}")
    A(f"v_writelane_b32 v{vT0}, 0, 0")
    A(f"v_mov_b32 v{vT1}, 1")
    A(f"buffer_atomic_add v{vT1}, v{vT0}, {srd(S_DBG)}, 0 offen sc1")
    A.label("L_A_z2")
    A(f"s_lshl_b32 s{sUw}, s{sRB}, 3")
    A(f"s_add_u32 s{sUw}, s{sUw}, s{sWave}")
    A(f"s_add_u32 s{sUw}, s{sUw}, 480")
    A(f"s_mul_i32 s{sUl}, s{sWave}, 12288")
    for i in range(3):
        A(f"s_add_u32 s{sU}, s{sUw}, {128*i}")
        A(f"s_add_u32 s9, s{sUl}, {4096*i}")
        w2_unit_dma(A, "s9")
    A("s_waitcnt vmcnt(12)")
    k1_stats(A, "X")
    for i in range(3):
        A("s_waitcnt vmcnt(9)")
        A(f"s_add_u32 s{sU}, s{sUw}, {128*i}")
        A(f"s_add_u32 s9, s{sUl}, {4096*i}")
        w2_unit_out(A, "s9", lambda t: vACC + 16 + 16 * i + 4 * t)
    A("s_waitcnt vmcnt(0)")
    A("s_barrier")
    stamp(A, 9, 0)
    A(f"s_cmp_lg_u32 s{sWave}, 0")
    A("s_cbranch_scc1 L_A_w")
    k1_publish(A)
    A(f"s_mov_b32 s{sSpin}, 0")
    wait_zeroed(A, "L_A_wz", False)
    poll_addr(A)
    A.label("L_A_poll")
    A("s_sleep 32")
    A(f"buffer_load_dword v{vPoll}, v{vPa}, {srd(S_WS)}, 0 offen sc1")
    A("s_waitcnt vmcnt(0)")
    poll_cmp(A)
    A(f"s_add_u32 s{sSpin}, s{sSpin}, 1")
    A(f"s_cmp_gt_u32 s{sSpin}, {SPIN_MAX}")
    A("s_cbranch_scc1 L_A_w")
    A(f"s_cmp_lg_u64 vcc, 0")
    A("s_cbranch_scc1 L_A_poll")
    A.label("L_A_w")
    A("s_barrier")
    stamp(A, 3, 0)
    p2_ids(A)
    A(f"s_mov_b32 s{sWoDone}, 0")
    A(f"v_mov_b32 v{vSigA}, {OOB}")
    A(f"v_mov_b32 v{vSigV}, 0")
    A("s_branch L_p2")


def kernel1(A):
    A(".p2align 8")
    A.label(NAME + "_kernel")
    A("s_cmp_ge_u32 s2, 256")
    A("s_cbranch_scc1 L_k1_exit")
    if OPT["XMAP"]:
        A("s_lshr_b32 s3, s2, 5")
        A("s_and_b32 s2, s2, 31")
        A("s_lshl_b32 s2, s2, 3")
        A("s_or_b32 s2, s2, s3")
    load_ptrs(A)
    if OPT["CODEWARM"] == 2:
        A("s_getpc_b64 s[10:11]")
        A.label("L_pc")
        A(f"s_sub_u32 s10, s10, L_pc-{NAME}_kernel")
        A("s_subb_u32 s11, s11, 0")
        A("s_lshr_b32 s4, s2, 3")
        A("s_lshl_b32 s4, s4, 7")
        A(f"v_lshl_add_u32 v{vT0}, v0, 12, s4")
        A(f"v_min_u32 v{vT0}, L_code_end-{NAME}_kernel-4, v{vT0}")
        A("v_cmp_gt_u32 vcc, 16, v0")
        A("s_and_saveexec_b64 s[12:13], vcc")
        A("s_cbranch_execz L_nocw")
        A(f"global_load_dword v255, v{vT0}, s[10:11]")
        A.label("L_nocw")
        A("s_mov_b64 exec, s[12:13]")
    A(f"v_and_b32 v{vLane}, 63, v0")
    A(f"v_lshrrev_b32 v{vT0}, 6, v0")
    A(f"v_readfirstlane_b32 s{sWave}, v{vT0}")
    A("s_and_b32 s3, s2, 7")
    A("s_lshr_b32 s4, s2, 3")
    A("s_lshr_b32 s5, s3, 2")
    A("s_and_b32 s6, s3, 3")
    A("s_mul_i32 s7, s6, 30")
    A("s_add_u32 s7, s7, s4")
    A(f"s_lshr_b32 s{sCG}, s7, 3")
    if OPT["CGPERM"]:
        perm = [0, 9, 1, 13, 2, 10, 3, 4, 5, 11, 6, 14, 7, 12, 8, 15]
        tab = sum(p << (4 * i) for i, p in enumerate(perm))
        A(f"s_mov_b32 s10, {tab & 0xffffffff}")
        A(f"s_mov_b32 s11, {tab >> 32}")
        A(f"s_lshl_b32 s{sCG}, s{sCG}, 2")
        A(f"s_lshr_b64 s[10:11], s[10:11], s{sCG}")
        A(f"s_and_b32 s{sCG}, s10, 15")
    A(f"s_and_b32 s{sRB}, s7, 7")
    A("s_lshl_b32 s8, s6, 1")
    A("s_add_u32 s8, s8, s4")
    A("s_sub_u32 s8, s8, 30")
    A("s_cmp_lt_u32 s4, 30")
    A(f"s_cselect_b32 s{sCG}, s{sCG}, 15")
    A(f"s_cselect_b32 s{sRB}, s{sRB}, s8")
    A("s_lshl_b32 s5, s5, 3")
    A(f"s_add_u32 s{sRB}, s{sRB}, s5")
    A(f"s_and_b32 s3, s{sRB}, 7")
    A("s_lshr_b32 s4, s3, 2")
    A(f"s_add_u32 s{sC0}, s3, s4")
    A(f"s_lshr_b32 s4, s{sRB}, 3")
    A(f"s_add_u32 s{sC0}, s{sC0}, s4")
    A("s_waitcnt lgkmcnt(0)")
    mk_srd(A, S_X, P_X, 2048 * 1280)
    mk_srd(A, S_WS, P_WS, WS_SIZE)
    mk_srd(A, S_DBG, P_DBG, 256)
    stamp(A, 0, 0)
    if OPT["P2ONLY"]:
        p2_ids(A)
        A(f"s_mov_b32 s{sWoDone}, 0")
        A(f"v_mov_b32 v{vSigA}, {OOB}")
        A(f"v_mov_b32 v{vSigV}, 0")
        A("s_branch L_p2")
    if OPT["DLY"] == 4:
        A("s_sleep 34")
    k1_stats_issue(A)
    A(f"s_cmp_eq_u32 s{sCG}, 15")
    A("s_cbranch_scc1 L_aux")
    A(f"v_lshrrev_b32 v{vT0}, 3, v{vLane}")
    A(f"v_lshrrev_b32 v{vT1}, 4, v{vLane}")
    A(f"v_and_b32 v{vT2}, 7, v{vLane}")
    A(f"v_xor_b32 v{vT1}, v{vT1}, v{vT2}")
    if OPT["NOSWZ"]: A(f"v_and_b32 v{vT1}, 7, v{vLane}")
    A(f"s_lshl_b32 s3, s{sRB}, 7")
    if OPT["SAME"]: A("s_mov_b32 s3, 0")
    A(f"s_and_b32 s4, s{sWave}, 3")
    A(f"s_lshl_b32 s{sXslot}, s4, 12")
    A(f"s_lshl_b32 s4, s4, 5")
    A("s_add_u32 s3, s3, s4")
    A(f"v_add_u32 v{vT0}, s3, v{vT0}")
    A(f"v_mul_u32_u24 v{vT0}, 1280, v{vT0}")
    A(f"v_lshl_add_u32 v{vXo}, v{vT1}, 4, v{vT0}")
    A(f"v_xor_b32 v{vT1}, 4, v{vT1}")
    A(f"v_lshl_add_u32 v{vXo+1}, v{vT1}, 4, v{vT0}")
    A(f"v_add_u32 v{vXo+1}, {8*1280}, v{vXo+1}")
    A(f"s_lshl_b32 s{sKX}, s{sC0}, 7")
    A(f"s_mov_b32 s{sKXn}, 0")
    A(f"s_cmp_ge_u32 s{sCG}, 13")
    A("s_cbranch_scc1 L_typeQ")
    A(f"s_cmp_ge_u32 s{sCG}, 9")
    A("s_cbranch_scc1 L_typeK")
    k1_gemm(A, "G")
    A.label("L_typeQ")
    k1_gemm(A, "Q")
    A.label("L_typeK")
    k1_gemm(A, "K")
    A.label("L_aux")
    k1_aux(A)
    phase2(A)
    A.label("L_k1_exit")
    A("s_endpgm")
    A.label("L_code_end")


sRB64, sC, sHo, sWo, sFl, sWoDone, sWoL, sWoG, sWoI, sHb, sHe, sWb, sWe = sKW, sKWn, sKX, sKXn, sWslot, sRslot, sXslot, sStepW, sCSit, sSpec, sWrapW, sC0, sRow
vL16 = 5


def p2_ids(A):
    A("s_and_b32 s3, s2, 7")
    A("s_lshr_b32 s4, s2, 3")
    A(f"s_and_b32 s{sC}, s4, 7")
    A("s_lshr_b32 s4, s4, 3")
    A("s_lshl_b32 s3, s3, 2")
    A(f"s_add_u32 s{sRB64}, s3, s4")
    if OPT["P2SAME"] == 1:
        A(f"s_and_b32 s{sRB64}, s{sRB64}, 1")
        A(f"s_and_b32 s{sC}, s{sC}, 1")
    if OPT["P2SAME"] == 2:
        A(f"s_and_b32 s{sC}, s{sC}, 3")
    A(f"v_lshlrev_b32 v{vL16}, 4, v{vLane}")


WO_LDS = 32768


def wo_early(A, first, per_wave):
    A("s_lshr_b32 s4, s2, 3")
    A("s_and_b32 s4, s4, 7")
    A(f"s_mul_i32 s4, s4, {74*5120}")
    A(f"s_and_b32 s5, s{sWave}, 3")
    A(f"s_mul_i32 s5, s5, {per_wave*1024}")
    A("s_add_u32 s4, s4, s5")
    A(f"s_add_u32 s4, s4, {WS_W2 + 54*5120 + first*1024}")
    A(f"s_add_u32 s5, s5, {WO_LDS + first*1024}")
    A(f"v_lshlrev_b32 v{vT0}, 4, v{vLane}")
    for i in range(per_wave):
        if i % 4 == 0:
            A(f"s_add_u32 m0, s5, {i*1024}")
            A(f"s_add_u32 s6, s4, {i*1024}")
        A(f"buffer_load_dwordx4 v{vT0}, {srd(S_WS)}, s6 offen offset:{(i%4)*1024} sc1 lds")


def wo_setup(A):
    A(f"s_mul_i32 s{sWoL}, s{sWave}, 25600")
    A(f"s_add_u32 s{sWoL}, s{sWoL}, {WO_LDS}")
    A(f"s_mul_i32 s6, s{sC}, 74")
    A(f"s_mul_i32 s7, s{sWave}, 5")
    A("s_add_u32 s6, s6, s7")
    A("s_add_u32 s6, s6, 54")
    A("s_mul_i32 s6, s6, 5120")
    A(f"s_add_u32 s{sWoG}, s6, {WS_W2}")
    A(f"s_and_b32 s{sWoI}, s{sRB64}, 3")
    A(f"s_mul_i32 s{sWoI}, s{sWoI}, {6*1024}")


def wo_dmas():
    return [f"s_add_u32 m0, s{sWoL}, s{sWoI}\n"
            f"s_add_u32 s9, s{sWoG}, s{sWoI}\n"
            f"buffer_load_dwordx4 v{vL16}, {srd(S_WS)}, s9 offen sc1 lds\n"
            f"s_add_u32 s{sWoI}, s{sWoI}, 1024\n"
            f"s_cmp_eq_u32 s{sWoI}, {25*1024}\n"
            f"s_cselect_b32 s{sWoI}, 0, s{sWoI}" for _ in range(25)]


NK, WD, HD = 14, 6, 3
q4 = lambda a, b: list(range(a, b, 4))
WQ = q4(8, 56) + q4(128, 152) + q4(248, 256) + q4(112, 128) + q4(152, 168) + q4(200, 208)
AQ = q4(88, 112) + q4(168, 192) + q4(56, 88)
HQ = q4(192, 200) + q4(208, 248)
assert len(WQ) == 30 and len(AQ) == 20 and len(HQ) == 12 and len(set(WQ + AQ + HQ)) == 62
sLast = sOdd


def ffn_setup(A):
    A(f"s_sub_u32 s3, s{sWave}, 4")
    A("s_mul_i32 s4, s3, 14")
    A("s_cmp_eq_u32 s3, 3")
    A("s_cselect_b32 s5, 1, 0")
    A("s_sub_u32 s4, s4, s5")
    A("s_cmp_ge_u32 s3, 2")
    A("s_cselect_b32 s5, 13, 14")
    A(f"s_cselect_b32 s{sLast}, {OOB}, 0")
    A(f"s_and_b32 s6, s{sRB64}, 3")
    A("s_lshl_b32 s6, s6, 1")
    A(f"s_add_u32 s6, s6, s{sC}")
    A("s_mul_i32 s6, s6, 7")
    A("s_lshr_b32 s6, s6, 2")
    A("s_sub_u32 s7, s6, s5")
    A("s_cmp_ge_u32 s6, s5")
    A("s_cselect_b32 s6, s7, s6")
    if not OPT["P2ROT"]:
        A("s_mov_b32 s6, 0")
    A(f"s_mul_i32 s{sHb}, s{sRB64}, 54")
    A(f"s_add_u32 s{sHb}, s{sHb}, s4")
    A(f"s_lshl_b32 s{sHb}, s{sHb}, 12")
    A("s_lshl_b32 s7, s5, 12")
    A(f"s_add_u32 s{sHe}, s{sHb}, s7")
    A("s_lshl_b32 s7, s6, 12")
    A(f"s_add_u32 s{sHo}, s{sHb}, s7")
    A(f"s_mul_i32 s{sWb}, s{sC}, 74")
    A(f"s_add_u32 s{sWb}, s{sWb}, s4")
    A(f"s_mul_i32 s{sWb}, s{sWb}, 5120")
    A(f"s_add_u32 s{sWb}, s{sWb}, {WS_W2}")
    A("s_mul_i32 s7, s5, 5120")
    A(f"s_add_u32 s{sWe}, s{sWb}, s7")
    A("s_mul_i32 s7, s6, 5120")
    A(f"s_add_u32 s{sWo}, s{sWb}, s7")


def ldW_groups(j):
    out = []
    pre = f"s_add_u32 s{sWo}, s{sWo}, s{sLast}\n" if j == NK - 1 else ""
    for nt in range(4):
        out.append((pre if nt == 0 else "") +
                   f"buffer_load_dwordx4 {vr(WQ[5*(j%WD)+nt])}, v{vL16}, {srd(S_WS)}, s{sWo} offen offset:{nt*1024}{HSC}")
    out.append(f"s_add_u32 s3, s{sWo}, 4096\n"
               f"buffer_load_dwordx4 {vr(WQ[5*(j%WD)+4])}, v{vL16}, {srd(S_WS)}, s3 offen{HSC}\n"
               f"s_add_u32 s{sWo}, s{sWo}, 5120\n"
               f"s_cmp_eq_u32 s{sWo}, s{sWe}\n"
               f"s_cselect_b32 s{sWo}, s{sWb}, s{sWo}")
    return out


def poll_flag(A, lab, addr_s, mask, target, vtmp):
    A(f"s_mov_b32 s{sSpin}, 0")
    A(f"v_mov_b32 v{vtmp+1}, 0")
    A.label(lab)
    A(f"buffer_load_dword v{vtmp}, v{vtmp+1}, {srd(S_WS)}, s{addr_s} offen sc1")
    A("s_waitcnt vmcnt(0)")
    A(f"v_readfirstlane_b32 s{sTmp3}, v{vtmp}")
    A(f"s_add_u32 s{sSpin}, s{sSpin}, 1")
    A(f"s_and_b32 s{sTmp3}, s{sTmp3}, {mask}")
    A(f"s_cmp_ge_u32 s{sTmp3}, {0 if OPT['P2ONLY'] else target}")
    A(f"s_cbranch_scc1 {lab}_ok")
    A(f"s_cmp_gt_u32 s{sSpin}, {SPIN_MAX}")
    A(f"s_cbranch_scc1 {lab}_ok")
    A(f"s_sleep {OPT['PSLEEP']}")
    A(f"s_branch {lab}")
    A.label(lab + "_ok")


def phase2(A):
    S_OUT = S_T
    ACC = 8
    acc = lambda nt, mt: ACC + 4 * (nt * 4 + mt)
    A.label("L_p2")
    mk_srd(A, S_OUT, P_OUT, 2048 * 1280)
    A(f"s_lshr_b32 s{sFl}, s{sRB64}, 1")
    A(f"s_lshl_b32 s{sFl}, s{sFl}, 8")
    A(f"s_add_u32 s{sFl}, s{sFl}, {WS_FL + FL_HC}")
    A.fence()
    A(f"s_cmp_ge_u32 s{sWave}, 4")
    A("s_cbranch_scc1 L2_ffn")

    def signal(n_younger):
        A(f"s_waitcnt vmcnt({n_younger}) lgkmcnt(0)")
        A("s_barrier")

    XR, OA, RA = 232, 238, 241

    def red_setup(A, ta, tb):
        for j in range(3):
            A(f"s_add_u32 s11, s{sWave}, {8*j}")
            A(f"s_lshr_b32 s12, s11, 2")
            A(f"s_and_b32 s13, s11, 3")
            A(f"s_lshl_b32 s14, s{sRB64}, 6")
            A(f"s_lshl_b32 s13, s13, 4")
            A("s_add_u32 s14, s14, s13")
            A("s_mul_i32 s14, s14, 1280")
            A(f"s_mul_i32 s15, s{sC}, 160")
            A("s_add_u32 s14, s14, s15")
            A("s_lshl_b32 s12, s12, 5")
            A("s_add_u32 s14, s14, s12")
            A("s_cmp_lt_u32 s11, 20")
            A(f"s_cselect_b32 s14, s14, {OOB}")
            A(f"v_and_b32 v{ta}, 15, v{vLane}")
            A(f"v_mul_u32_u24 v{ta}, 1280, v{ta}")
            A(f"v_lshrrev_b32 v{tb}, 4, v{vLane}")
            A(f"v_lshl_add_u32 v{ta}, v{tb}, 3, v{ta}")
            A(f"v_add_u32 v{OA+j}, s14, v{ta}")
            A(f"buffer_load_dwordx2 {vr(XR+2*j, 2)}, v{OA+j}, {srd(S_X)}, 0 offen")
            A("s_lshl_b32 s12, s11, 10")
            A(f"s_add_u32 s13, s12, {WO_LDS+5120}")
            A(f"v_add_u32 v{RA+5*j}, s13, v{vL16}")
            for f in range(4):
                A(f"s_add_u32 s13, s12, {KV_SLAB[f]}")
                A(f"s_add_u32 s14, s12, {WO_LDS + f*25600 - 14*1024}")
                A("s_cmp_lt_u32 s11, 14")
                A("s_cselect_b32 s13, s13, s14")
                A("s_cmp_lt_u32 s11, 19")
                A(f"s_cselect_b32 s13, s13, {28672 + f*1024}")
                A(f"v_add_u32 v{RA+5*j+1+f}, s13, v{vL16}")

    AD = 8
    RAW, NRAW = 56, 6
    FR = 80
    OSP = 96
    PQ = lambda mt, blk: 112 + 16 * blk + 4 * mt
    O = lambda u, mt: (OSP + 4 * mt) if u == 0 else PQ(mt, u - 1)
    DEN = 192
    NM = 224
    T = 192
    A(f"s_mul_i32 s8, s{sWave}, 14336")
    A(f"s_cmp_ge_u32 s{sWave}, 2")
    A(f"s_cselect_b32 s9, {135168 - 2*14336}, 0")
    A("s_add_u32 s8, s8, s9")
    for i in range(4):
        A(f"v_mov_b32 v{T+i}, 0")
    A(f"s_add_u32 s9, s8, 13440")
    A(f"v_mov_b32 v{vT2}, s9")
    A(f"ds_write_b128 v{vT2}, {vr(T)}")
    A(f"ds_write_b32 v{vT2}, v{T} offset:16")
    signal(0)
    A(f"s_cmp_lg_u32 s{sWave}, 0")
    A("s_cbranch_scc1 L2_nosig")
    A(f"buffer_atomic_add v{vSigV}, v{vSigA}, {srd(S_WS)}, 0 offen sc1")
    A.label("L2_nosig")
    stamp(A, 0, 1)
    if OPT["NOATT"]:
        A("s_branch L2_reduce")
    A(f"s_cmp_lg_u32 s{sWoDone}, 0")
    A("s_cbranch_scc1 L2_wodone")
    wo_setup(A)
    for g in wo_dmas():
        A(g)
    A.label("L2_wodone")
    A(f"s_mul_i32 s4, s{sWave}, 25600")
    A(f"s_add_u32 s4, s4, {WO_LDS}")
    iL, gL = T + 4, T + 5
    he = T + 12
    hd = T + 22
    ab, zb, hz = T + 6, T + 7, T + 8
    A(f"v_and_b32 v{iL}, 15, v{vLane}")
    A(f"v_lshrrev_b32 v{gL}, 4, v{vLane}")
    for Tt in range(10):
        A(f"v_add_u32 v{he+Tt}, {16*Tt}, v{iL}")
        A(f"v_mul_u32_u24 v{he+Tt}, 205, v{he+Tt}")
        A(f"v_lshrrev_b32 v{he+Tt}, 12, v{he+Tt}")
    for blk in range(5):
        for h in range(2):
            r = hd + 2 * blk + h
            A(f"v_lshlrev_b32 v{r}, 3, v{gL}")
            A(f"v_add_u32 v{r}, {32*blk+4*h}, v{r}")
            A(f"v_mul_u32_u24 v{r}, 205, v{r}")
            A(f"v_lshrrev_b32 v{r}, 12, v{r}")
    A(f"v_mul_u32_u24 v{ab}, 80, v{iL}")
    A(f"v_lshl_add_u32 v{ab}, v{gL}, 5, v{ab}")
    A(f"v_add_u32 v{ab}, s8, v{ab}")
    A(f"v_and_b32 v{hz}, 3, v{iL}")
    A(f"v_mul_u32_u24 v{zb}, 1600, v{hz}")
    A(f"v_lshl_add_u32 v{zb}, v{gL}, 5, v{zb}")
    A(f"v_add_u32 v{zb}, s8, v{zb}")
    NUM = {0: [0], 1: [0, 1], 2: [0, 1], 3: [1, 2], 4: [1, 2], 5: [2, 3], 6: [2, 3], 7: [3, 4], 8: [3, 4], 9: [4]}
    frs = []
    for ch in range(2):
        A(f"v_add_u32 v{T+9}, {4*ch}, v{hz}")
        bl = [0, 1, 2] if ch == 0 else [2, 3, 4]
        for blk in bl:
            n = len(frs)
            frs.append(("z", ch, blk, blk == bl[0], blk == bl[-1]))
            for h in range(2):
                a = AD + 2 * n + h
                A(f"v_cmp_eq_u32 vcc, v{T+9}, v{hd+2*blk+h}")
                A(f"v_add_u32 v{a}, {6400*ch+1600+128*blk+16*h}, v{zb}")
                A(f"v_cndmask_b32 v{a}, v{vT2}, v{a}, vcc")
        for Tt in range(5 * ch, 5 * ch + 5):
            for blk in NUM[Tt]:
                n = len(frs)
                frs.append(("n", Tt, blk, blk == NUM[Tt][0], blk == NUM[Tt][-1]))
                for h in range(2):
                    a = AD + 2 * n + h
                    A(f"v_cmp_eq_u32 vcc, v{he+Tt}, v{hd+2*blk+h}")
                    A(f"v_add_u32 v{a}, {1280*Tt+128*blk+16*h}, v{ab}")
                    A(f"v_cndmask_b32 v{a}, v{vT2}, v{a}, vcc")
    assert len(frs) == 24
    sM = 84
    for k in range(3):
        A(f"v_cmp_lt_u32 s[{sM+2*k}:{sM+2*k+1}], {k}, v{gL}")
    stamp(A, 7, 1, vt=vT0)
    A("s_setprio 3")
    A(f"s_lshr_b32 s10, s{sWave}, 1")
    A("s_lshl_b32 s10, 0x2000, s10")
    poll_flag(A, "L2_pq", sFl, "s10", "s10", vT0)
    stamp(A, 8, 1, vt=vT0)
    A(f"s_mul_i32 s6, s{sRB64}, 20")
    A(f"s_mul_i32 s7, s{sWave}, 5")
    A("s_add_u32 s6, s6, s7")
    A("s_lshl_b32 s6, s6, 12")
    A(f"s_add_u32 s6, s6, {WS_PQ}")
    for blk in range(5):
        for mt in range(4):
            A(f"buffer_load_dwordx4 {vr(PQ(mt, blk))}, v{vL16}, {srd(S_WS)}, s6 offen offset:{mt*1024} sc1")
        A(f"s_add_u32 s6, s6, 4096")
    A(f"s_lshl_b32 s6, s{sWave}, 3")
    A("s_and_b32 s7, s2, 7")
    A("s_add_u32 s6, s6, s7")
    A("s_lshl_b32 s6, s6, 8")
    A(f"s_add_u32 s6, s6, {WS_FL + FL_KV}")
    poll_flag(A, "L2_kv", 6, 0xff, 16, vT0)
    stamp(A, 3, 1, vt=vT0)
    A(f"s_mul_i32 s3, s{sWave}, 13440")
    A(f"s_add_u32 s3, s3, {WS_KVA}")
    for i in range(14):
        if i % 4 == 0:
            A(f"s_add_u32 m0, s8, {i*1024}")
            A(f"s_add_u32 s5, s3, {i*1024}")
        if i == 13:
            A("s_mov_b64 exec, 0xff")
        A(f"buffer_load_dwordx4 v{vL16}, {srd(S_WS)}, s5 offen offset:{(i%4)*1024} sc1 lds")
    A("s_mov_b64 exec, -1")
    A(f"s_setprio {OPT['APRIO']}")
    A("s_waitcnt vmcnt(7) lgkmcnt(0)")
    stamp(A, 9, 1, vt=vT0)
    raw = lambda k: RAW + 4 * (k % NRAW)
    fr = lambda n: FR + 4 * (n % 4)
    dst = lambda f, mt: (DEN + 8 * mt + 4 * f[1]) if f[0] == "z" else (NM + 16 * (f[1] % 2) + 4 * mt)

    def rd(n):
        if n == 12:
            A("s_waitcnt vmcnt(0)")
        for h in range(2):
            A(f"ds_read_b128 {vr(raw(2*n+h))}, v{AD+2*n+h}")

    def post(f):
        out = []
        if f[0] == "z":
            for mt in range(4):
                for i in range(4):
                    r = DEN + 8 * mt + 4 * f[1] + i
                    out.append(f"v_add_f32 v{r}, {f32(1e-6)}, v{r}")
            for mt in range(4):
                for i in range(4):
                    r = DEN + 8 * mt + 4 * f[1] + i
                    out.append(f"v_rcp_f32 v{r}, v{r}")
            return out
        Tt = f[1]
        lo, hi = (4 * Tt) // 5, (4 * Tt + 3) // 5
        sl = {}
        for mt in range(4):
            if lo == hi:
                sl[mt] = DEN + 8 * mt + lo
            else:
                thr = 5 * hi - 4 * Tt
                sl[mt] = AD + mt
                out.append(f"v_cndmask_b32 v{sl[mt]}, v{DEN+8*mt+lo}, v{DEN+8*mt+hi}, s[{sM+2*(thr-1)}:{sM+2*(thr-1)+1}]")
        for mt in range(4):
            d = dst(f, mt)
            for i in range(4):
                out.append(f"v_mul_f32 v{d+i}, v{d+i}, v{sl[mt]}")
        for mt in range(4):
            d = dst(f, mt)
            ob = O(Tt // 2, mt) + 2 * (Tt % 2)
            out.append(f"v_cvt_pk_bf16_f32 v{ob}, v{d}, v{d+1}")
            out.append(f"v_cvt_pk_bf16_f32 v{ob+1}, v{d+2}, v{d+3}")
        return out
    rd(0)
    rd(1)
    pend = []
    nxt = []
    for n in range(26):
        if n + 2 < 24:
            rd(n + 2)
        cv = []
        if n < 24:
            A(f"s_waitcnt lgkmcnt({2*min(2, 23-n)})")
            for h in range(2):
                cv.append(f"v_cvt_pk_bf16_f32 v{fr(n)+2*h}, v{raw(2*n+h)}, v{raw(2*n+h)+1}")
                cv.append(f"v_cvt_pk_bf16_f32 v{fr(n)+2*h+1}, v{raw(2*n+h)+2}, v{raw(2*n+h)+3}")
        mf = []
        if 1 <= n <= 24:
            f = frs[n - 1]
            if f[3] and f[0] == "n":
                need = [x for x in pend if x[0] <= f[1] - 2]
                for x in need:
                    A(x[1])
                pend = [x for x in pend if x[0] > f[1] - 2]
            for mt in range(4):
                d = vr(dst(f, mt))
                mf.append(f"v_mfma_f32_16x16x32_bf16 {d}, {vr(fr(n-1))}, {vr(PQ(mt, f[2]))}, {0 if f[3] else d}")
        take = pend[:14]
        pend = pend[14:]
        work = cv + [x[1] for x in take]
        for g in (interleave(mf, work) if mf else work):
            A(g)
        pend += nxt
        nxt = []
        if 1 <= n <= 24 and frs[n - 1][4]:
            f = frs[n - 1]
            nxt = [((f[1] if f[0] == "n" else 5 * f[1] - 0.5), x) for x in post(f)]
    for x in pend + nxt:
        A(x[1])
    stamp(A, 11, 1, vt=vT0)
    A(f"s_setprio {OPT['APRIO2']}")
    WF = 192
    A(f"v_add_u32 v{vT0}, s4, v{vL16}")
    A.fence()

    def rd_wo(u):
        for nt in range(5):
            A(f"ds_read_b128 {vr(WF+20*(u%2)+4*nt)}, v{vT0} offset:{(u*5+nt)*1024}")
    E = Asm()
    red_setup(E, vSigA, vSigV)
    rs = [t for _, t in E.lines]
    rd_wo(0)
    for u in range(5):
        if u + 1 < 5:
            rd_wo(u + 1)
        A(f"s_waitcnt lgkmcnt({5 if u < 4 else 0})")
        if u == 0:
            A(f"v_mov_b32 v{vT1}, 1")
            A(f"ds_write_b32 v{vT2}, v{vT1} offset:16")
        mf = []
        for nt in range(5):
            for mt in range(4):
                d = vr(acc(nt, mt))
                mf.append(f"v_mfma_f32_16x16x32_bf16 {d}, {vr(WF+20*(u%2)+4*nt)}, {vr(O(u, mt))}, {d if u else 0}")
        k = (len(rs) + 3) // 4
        for g in interleave(mf, rs[u*k:(u+1)*k]):
            A(g)
    stamp(A, 1, 1, vt=vSigA)
    A.fence()
    for t in range(20):
        A(f"ds_write_b128 v{vT0}, {vr(ACC+4*t)} offset:{5120+t*1024}")
    A("s_branch L2_reduce")

    A.label("L2_ffn")
    q = []

    def ldW(j):
        for g in ldW_groups(j):
            A(g)
        q.extend([("W", j)] * 5)

    def ldH1(j, mt):
        if j == NK - 1 and mt == 0:
            A(f"s_add_u32 s{sHo}, s{sHo}, s{sLast}")
        A(f"buffer_load_dwordx4 {vr(HQ[4*(j%HD)+mt])}, v{vL16}, {srd(S_WS)}, s{sHo} offen offset:{mt*1024}{HSC}")
        if mt == 3:
            A(f"s_add_u32 s{sHo}, s{sHo}, 4096")
            A(f"s_cmp_eq_u32 s{sHo}, s{sHe}")
            A(f"s_cselect_b32 s{sHo}, s{sHb}, s{sHo}")
        q.append(("H", j, mt))

    def ldH(j):
        for mt in range(4):
            ldH1(j, mt)
    signal(0)
    A(f"s_cmp_lg_u32 s{sWoDone}, 0")
    A("s_cbranch_scc1 L2_ws")
    ffn_setup(A)
    A.label("L2_ws")
    A(f"s_sub_u32 s10, s{sWave}, 4")
    A("s_lshl_b32 s10, s10, 1")
    A("s_lshl_b32 s10, 7, s10")
    A(f"v_mov_b32 v{vT1}, 0")
    A(f"s_cmp_gt_u32 s{sWoDone}, 1")
    A("s_cbranch_scc1 L2_w0")
    ldW(0)
    ldW(1)
    A.label("L2_w0")
    assert OPT["NPRE"] == 2
    for j in range(2, WD):
        if j == OPT["EPOLL"]:
            A(f"buffer_load_dword v{vT2}, v{vT1}, {srd(S_WS)}, s{sFl} offen sc1")
        ldW(j)
    if OPT["EPOLL"]:
        A(f"s_waitcnt vmcnt({5*(WD-OPT['EPOLL'])})")
        A(f"v_readfirstlane_b32 s{sTmp3}, v{vT2}")
        A(f"s_and_b32 s{sTmp3}, s{sTmp3}, s10")
        A(f"s_cmp_eq_u32 s{sTmp3}, s10")
        A(f"s_cbranch_scc1 L2_h_ok")
    stamp(A, 4, 1, wave=4, vt=vT0)
    poll_flag(A, "L2_h", sFl, "s10", "s10", vT0)
    stamp(A, 5, 1, wave=4, vt=vT0)
    stamp(A, 14, 1, wave=4, vt=vT0, clk=True)
    q.clear()
    for j in range(HD):
        ldH(j)
    A(f"s_setprio {OPT['FPRIO']}")
    for j in range(NK):
        for mt in range(4):
            last = max(i for i, e in enumerate(q) if e[1] == j and (e[0] == "W" or e[2] <= mt))
            A(f"s_waitcnt vmcnt({len(q)-1-last})")
            for nt in range(5):
                d = vr(AQ[nt*4+mt])
                if not OPT["NOMF"]: A(f"v_mfma_f32_16x16x32_bf16 {d}, {vr(WQ[5*(j%WD)+nt])}, {vr(HQ[4*(j%HD)+mt])}, {d if j else 0}")
            if j + HD < NK:
                ldH1(j + HD, mt)
        if j + WD < NK:
            ldW(j + WD)
    A("s_setprio 0")
    stamp(A, 6, 1, wave=4, vt=vT0)
    stamp(A, 15, 1, wave=4, vt=vT0, clk=True)
    A("s_waitcnt vmcnt(0)")
    red_setup(A, vSigA, vSigV)
    A(f"s_sub_u32 s3, s{sWave}, 4")
    A("s_mul_i32 s8, s3, 14336")
    A("s_cmp_ge_u32 s3, 2")
    A(f"s_cselect_b32 s9, {135168 - 2*14336}, 0")
    A("s_add_u32 s8, s8, s9")
    A(f"v_add_u32 v{vT0}, s8, v{vL16}")
    A("s_add_u32 s9, s8, 13456")
    A(f"v_mov_b32 v{vT2}, s9")
    A(f"s_mov_b32 s{sSpin}, 0")
    A.label("L2_wfree")
    A(f"ds_read_b32 v{vT1}, v{vT2}")
    A("s_waitcnt lgkmcnt(0)")
    A(f"v_readfirstlane_b32 s9, v{vT1}")
    A(f"s_add_u32 s{sSpin}, s{sSpin}, 1")
    A("s_cmp_eq_u32 s9, 1")
    A("s_cbranch_scc1 L2_wfree_ok")
    A(f"s_cmp_gt_u32 s{sSpin}, {SPIN_MAX*16}")
    A("s_cbranch_scc1 L2_wfree_ok")
    A("s_sleep 2")
    A("s_branch L2_wfree")
    A.label("L2_wfree_ok")
    A("s_mul_i32 s8, s3, 25600")
    A(f"s_add_u32 s8, s8, {WO_LDS}")
    A(f"v_add_u32 v{vT1}, s8, v{vL16}")
    A("s_lshl_b32 s8, s3, 10")
    A(f"v_add_u32 v{vT2}, s8, v{vL16}")
    for t in range(20):
        if t < 14:
            A(f"ds_write_b128 v{vT0}, {vr(AQ[t])} offset:{t*1024}")
        elif t < 19:
            A(f"ds_write_b128 v{vT1}, {vr(AQ[t])} offset:{(t-14)*1024}")
        else:
            A(f"ds_write_b128 v{vT2}, {vr(AQ[t])} offset:28672")

    A.label("L2_reduce")
    if OPT["DLY"] == 5:
        A("s_sleep 30")
    A("s_setprio 0")
    A("s_waitcnt lgkmcnt(0)")
    stamp(A, 12, 1, vt=vSigA)
    A("s_barrier")
    stamp(A, 13, 1, vt=vSigA)
    R = lambda j: 8 + 32 * j

    def rds(j):
        A(f"v_add_u32 v{vT0}, {2*25600}, v{RA+5*j}")
        for w in range(4):
            A(f"ds_read_b128 {vr(R(j)+4*w)}, v{RA+5*j if w < 2 else vT0} offset:{(w%2)*25600}")
        for f in range(4):
            A(f"ds_read_b128 {vr(R(j)+16+4*f)}, v{RA+5*j+1+f}")

    def fin(j):
        r = R(j)
        for st in (16, 8, 4):
            for i in range(0, st, 2):
                pk_mul(A, r + i, ("p", r + i), ("p", r + st + i), op="add")
        x0, x1 = XR + 2 * j, XR + 2 * j + 1
        A(f"v_lshlrev_b32 v{r+4}, 16, v{x0}")
        A(f"v_and_b32 v{r+5}, 0xffff0000, v{x0}")
        A(f"v_lshlrev_b32 v{r+6}, 16, v{x1}")
        A(f"v_and_b32 v{r+7}, 0xffff0000, v{x1}")
        for i in range(0, 4, 2):
            pk_mul(A, r + i, ("p", r + i), ("p", r + 4 + i), op="add")
        A(f"v_cvt_pk_bf16_f32 v{x0}, v{r}, v{r+1}")
        A(f"v_cvt_pk_bf16_f32 v{x1}, v{r+2}, v{r+3}")
        A(f"buffer_store_dwordx2 {vr(x0, 2)}, v{OA+j}, {srd(S_OUT)}, 0 offen" + ["", " sc1", " nt"][OPT["OUTSC"]])
    rds(0)
    rds(1)
    A("s_waitcnt vmcnt(0) lgkmcnt(8)")
    fin(0)
    A(f"s_cmp_ge_u32 s{sWave}, 4")
    A("s_cbranch_scc1 L2_last")
    rds(2)
    A("s_waitcnt lgkmcnt(0)")
    fin(2)
    A.label("L2_last")
    A("s_waitcnt lgkmcnt(0)")
    fin(1)
    A.label("L2_done")
    stamp(A, 2, 1, vt=vSigA)


def descriptor(name, vgpr=256):
    return f""".amdhsa_kernel {name}
  .amdhsa_next_free_vgpr {vgpr}
  .amdhsa_next_free_sgpr 102
  .amdhsa_accum_offset {vgpr}
  .amdhsa_group_segment_fixed_size 0
  .amdhsa_kernarg_size 80
  .amdhsa_user_sgpr_count 2
  .amdhsa_user_sgpr_kernarg_segment_ptr 1
  .amdhsa_system_sgpr_workgroup_id_x 1
.end_amdhsa_kernel
"""


def probe(A):
    A(".p2align 8")
    A.label("pre_kernel")
    if OPT["PROBE"] in (4, 5):
        A("s_cmp_ge_u32 s2, 64")
        A("s_cbranch_scc1 L_pre_exit")
        load_ptrs(A)
        A("s_lshr_b32 s3, s2, 3")
        A("s_lshl_b32 s3, s3, 9")
        A("v_add_u32 v1, s3, v0")
        A("v_lshlrev_b32 v1, 12, v1")
        A("s_waitcnt lgkmcnt(0)")
        lst = ((P_WS, WS_SIZE), (P_OUT, 2048*1280))
        if OPT["PROBE"] == 5:
            lst += ((P_X, 2048*1280), (P_WQKV, 640*3840), (P_WO, 640*1280), (P_G, 640*3456), (P_U, 640*3456), (P_D, 1728*1280))
        for k, (p, n) in enumerate(lst):
            mk_srd(A, 36 + 4*k, p, n)
            A(f"buffer_load_dword v{2+k}, v1, {srd(36+4*k)}, 0 offen")
        A("s_waitcnt vmcnt(0)")
        A.label("L_pre_exit")
    if OPT["PROBE"] == 2:
        A("s_cmp_ge_u32 s2, 256")
        A("s_cbranch_scc1 L_pre_exit")
        load_ptrs(A)
        A("s_lshl_b32 s3, s2, 9")
        A("v_add_u32 v1, s3, v0")
        A("v_lshlrev_b32 v1, 5, v1")
        A("s_waitcnt lgkmcnt(0)")
        for k, (p, n) in enumerate(((P_X, 2048*1280), (P_WQKV, 640*3840), (P_WO, 640*1280), (P_G, 640*3456), (P_U, 640*3456), (P_D, 1728*1280))):
            mk_srd(A, 36 + 4*k, p, n)
            A(f"buffer_load_dword v{2+k}, v1, {srd(36+4*k)}, 0 offen")
        A("s_waitcnt vmcnt(0)")
        A.label("L_pre_exit")
    A("s_endpgm")


def main():
    A = Asm()
    kernel1(A)
    K = NAME + "_kernel"
    launch = f"; @launch grid=(256,1,1) block=(512,1,1) lds={LDS_TOTAL}"
    extra = ""
    if OPT["PROBE"]:
        probe(A)
        launch = f"; @launch kernel=pre_kernel grid=(256,1,1) block=(512,1,1) lds=0\n; @launch kernel={K} grid=(256,1,1) block=(512,1,1) lds={LDS_TOTAL}"
        if OPT["PROBE"] == 3:
            launch = f"; @launch kernel={K} grid=(256,1,1) block=(512,1,1) lds={LDS_TOTAL}\n; @launch kernel={K} grid=(256,1,1) block=(512,1,1) lds={LDS_TOTAL}"
        extra = ".p2align 6\n" + descriptor("pre_kernel", 16)
    head = f"""; LN + linear attention + GEGLU FFN, one persistent launch (generated by dev/gen.py)
{launch}
.amdgcn_target "amdgcn-amd-amdhsa--gfx950"
.text
.globl {K}
.type {K},@function
"""
    tail = '.section .rodata,"a"\n.p2align 6\n' + descriptor(K) + extra
    open(sys.argv[1], "w").write(head + A.render() + tail)


main()
```

```python
import sys, struct, math
from asmlib import Asm, interleave

NAME = "parallel_sum__linear_attn_block__geglu_ffn__prompt"

OPT = dict(ROTQ=1, STAMP=0, NODMA=0, SAME=0, NOSWZ=0, NORD=0, P2ROT=1, WARM=1, PLAIN=0, BYTEFLAG=0, NBUP=6, SW=0, P2ONLY=0, P2SAME=0, NOATT=0, NOMF=0, FPRIO=1, NPRE=2, CGPERM=0, OUTSC=0, CODEWARM=2, TLBWARM=0, PUBST=0, GPK=1, APRIO=2, APRIO2=0, FINEH=1, XMAP=0, FAKE16=0, PSLEEP=2, EPOLL=0, PROBE=0, WOEPI=0, NXA=0, XPOS=1, G16=1, DLY=0)
for a in sys.argv[2:]:
    k, v = a.split("=")
    OPT[k] = int(v)

OPT_WOEPI = ['', 'K', 'KQ', 'KQG'][OPT['WOEPI']]
HSC = '' if OPT['PLAIN'] else ' sc1'
WS_H = 0x000000
WS_PQ = 0x700000
WS_W2 = 0xA00000
WS_ST = 0xD00000
WS_CS = 0xD10000
WS_KVA = 0xD80000
WS_FL = 0xD90000
FL_HC = 0
FL_KV = 16 * 256
FL_ROW = 128
WS_STAMP = 0xF00000
WS_SIZE = 0x1000000
OOB = 0x40000000


def f32(x):
    return "0x%08x" % struct.unpack("<I", struct.pack("<f", x))[0]


LOG2E = 1.4426950408889634
GC1 = -2.0 * math.sqrt(2.0 / math.pi) * LOG2E
GC2 = GC1 * 0.044715

P_X, P_WQKV, P_WO, P_BX, P_G, P_U, P_D, P_OUT, P_DBG, P_WS = 16, 18, 20, 22, 24, 26, 28, 30, 32, 34
S_X, S_W, S_WS, S_DBG, S_T = 36, 40, 44, 48, 52


def srd(b):
    return f"s[{b}:{b+3}]"


def vr(b, n=4):
    return f"v[{b}:{b+n-1}]"


def mk_srd(A, s, p, nbytes):
    A(f"s_mov_b32 s{s}, s{p}")
    A(f"s_and_b32 s{s+1}, s{p+1}, 0xffff")
    A(f"s_mov_b32 s{s+2}, {nbytes}")
    A(f"s_mov_b32 s{s+3}, 0x20000")


def load_ptrs(A):
    A("s_load_dwordx16 s[16:31], s[0:1], 0")
    A("s_load_dwordx4 s[32:35], s[0:1], 64")


def wave_allreduce_add(A, v, t, s0):
    A(f"v_add_f32_dpp v{v}, v{v}, v{v} quad_perm:[1,0,3,2] row_mask:0xf bank_mask:0xf")
    A(f"v_add_f32_dpp v{v}, v{v}, v{v} quad_perm:[2,3,0,1] row_mask:0xf bank_mask:0xf")
    A(f"v_add_f32_dpp v{v}, v{v}, v{v} row_half_mirror row_mask:0xf bank_mask:0xf")
    A(f"v_add_f32_dpp v{v}, v{v}, v{v} row_mirror row_mask:0xf bank_mask:0xf")
    for i in range(4):
        A(f"v_readlane_b32 s{s0+i}, v{v}, {16*i}")
    A(f"v_mov_b32 v{v}, s{s0}")
    A(f"v_mov_b32 v{t}, s{s0+2}")
    A(f"v_add_f32 v{v}, s{s0+1}, v{v}")
    A(f"v_add_f32 v{t}, s{s0+3}, v{t}")
    A(f"v_add_f32 v{v}, v{v}, v{t}")


def lstamp(A, k):
    if OPT["STAMP"] != 4:
        return
    A("s_memrealtime s[96:97]")
    A("s_waitcnt lgkmcnt(0)")
    A(f"v_writelane_b32 v28, s96, {k}")


def cstamp(A, k):
    if OPT["STAMP"] != 7:
        return
    A("s_memtime s[96:97]\ns_waitcnt lgkmcnt(0)\n" + f"v_writelane_b32 v48, s96, {k}")


def stamp(A, idx, kern, dyn=None, clk=False, wave=0, vt=None):
    if vt is None:
        vt = (26 if idx != 3 else 50) if kern == 0 else 254
    if not OPT["STAMP"]:
        return
    if OPT["STAMP"] == 8:
        slot = {(0, 0): 2, (0, 1): 4, (0, 2): 6, (0, 3): 8, (1, 3): 10, (1, 1): 12, (1, 2): 14}.get((kern, idx))
        if slot is None or clk or wave != 0:
            return
        lab = f"L_st_{kern}_{idx}_{len(A.lines)}"
        A(f"s_or_b32 s98, s{sWave}, s2")
        A("s_cmp_lg_u32 s98, 0")
        A(f"s_cbranch_scc1 {lab}")
        A("s_memrealtime s[96:97]")
        A("s_memtime s[98:99]")
        A("s_waitcnt lgkmcnt(0)")
        A(f"v_mov_b32 v{vt}, s96")
        A(f"buffer_store_dword v{vt}, off, {srd(S_DBG)}, 0 offset:{slot*4}")
        A(f"v_mov_b32 v{vt+1}, s98")
        A(f"buffer_store_dword v{vt+1}, off, {srd(S_DBG)}, 0 offset:{slot*4+4}")
        A.label(lab)
        return
    if OPT["STAMP"] == 9:
        slot = {(0, 0): (1, True), (0, 1): (2, False), (0, 2): (3, False), (0, 3): (5, False), (1, 0): (6, False), (1, 5): (7, False),
                (1, 3): (9, False), (1, 1): (10, False), (1, 2): (11, False), (1, 6): (13, False)}.get((kern, idx))
        if slot is None or clk:
            return
        lab = f"L_st_{kern}_{idx}_{len(A.lines)}"
        A(f"s_cmp_lg_u32 s{sWave}, {wave}")
        A(f"s_cbranch_scc1 {lab}")
        A("s_memrealtime s[96:97]")
        A("s_waitcnt lgkmcnt(0)")
        if slot[1]:
            A("s_not_b32 s96, s96")
        A(f"v_mov_b32 v{vt}, s96")
        A(f"v_mov_b32 v{vt+1}, {OOB}")
        A(f"v_writelane_b32 v{vt+1}, {slot[0]*4}, 0")
        A(f"buffer_atomic_umax v{vt}, v{vt+1}, {srd(S_DBG)}, 0 offen sc1")
        A.label(lab)
        return
    lab = f"L_st_{kern}_{idx}_{len(A.lines)}"
    A(f"s_cmp_lg_u32 s{sWave}, {wave}")
    A(f"s_cbranch_scc1 {lab}")
    A("s_memtime s[96:97]" if clk else "s_memrealtime s[96:97]")
    A("s_waitcnt lgkmcnt(0)")
    A(f"s_lshl_b32 s98, s2, 6")
    A(f"s_add_u32 s98, s98, {WS_STAMP + kern*0x8000 + idx*4}")
    if dyn is not None:
        A(f"s_lshl_b32 s99, s{dyn}, 2")
        A("s_add_u32 s98, s98, s99")
    A(f"v_mov_b32 v{vt}, s96")
    A(f"v_mov_b32 v{vt+1}, 0")
    A(f"buffer_store_dword v{vt}, v{vt+1}, {srd(S_WS)}, s98 offen")
    A.label(lab)


sWave, sRB, sCG, sIt, sKW, sKWn, sKX, sKXn, sWslot, sRslot, sXslot, sStepW, sCSit, sSpec, sTmp, sTmp2, sMW, sNW, sWrapW, sTmp3, sC0, sRow, sSpin, sOdd, sPub, sUw, sUl = range(56, 83)
X_LDS = 0
W_LDS = 32768
W_SLOT = 24576
MISC_LDS = W_LDS + 5 * W_SLOT
LDS_TOTAL = 163840
KV_CS = MISC_LDS
KV_ST = MISC_LDS + 2048

vLane, vT0, vT1, vT2, vT3 = 1, 2, 3, 4, 5
vSigA, vSigV = 6, 7
vXo = 6
vWo = 8
vXa = 11
vWb = 15
vWa = 20
vPa = 25
SPIN_MAX = 0x100000
vSel = 52
vPoll = 30
vCSA = 32
vCSP = 32
vSt = 31
KST = lambda j: (44 + 4 * j) if j < 3 else (232 + 4 * (j - 3))
vBUF = 56
vACC = 152


KVT = [[(0, 0), (0, 1), (0, 2), (1, 0), (1, 1)], [(0, 3), (0, 4), (1, 2), (1, 3), (1, 4)]]


def k1_gemm(A, typ):
    G = typ == "G"
    MT = 2 if G else 1
    NT = 3 if G else 5
    NW_ = 6 if G else 5
    pitch = 3456 if G else 3840
    XB = lambda P, mt, kk: vBUF + 48 * P + 4 * (mt * 2 + kk)
    WBf = lambda P, a, kk: vBUF + 48 * P + 4 * MT * 2 + 4 * (a * 2 + kk)
    acc = lambda mt, a: vACC + 16 * (mt * NT + a)
    L = lambda s: f"L_{typ}_{s}"
    S16 = G and OPT["G16"]
    sel = 248 if S16 else vSel
    NCS = 6 if S16 else NT

    if G:
        A(f"s_lshr_b32 s{sMW}, s{sWave}, 2")
        A(f"s_and_b32 s{sNW}, s{sWave}, 3")
        mk_srd(A, S_W, P_G, 640 * 3456)
        mk_srd(A, S_T, P_U, 640 * 3456)
    else:
        A(f"s_lshr_b32 s{sMW}, s{sWave}, 1")
        A(f"s_and_b32 s{sNW}, s{sWave}, 1")
        mk_srd(A, S_W, P_WQKV, 640 * 3840)
    A(f"s_and_b32 s{sTmp2}, s{sWave}, 3")
    A(f"v_lshrrev_b32 v{vT0}, 3, v{vLane}")
    A(f"s_lshl_b32 s{sTmp3}, s{sTmp2}, 3")
    A(f"v_add_u32 v{vT0}, s{sTmp3}, v{vT0}")
    A(f"v_mul_u32_u24 v{vT0}, {pitch}, v{vT0}")
    A(f"v_and_b32 v{vT1}, 7, v{vLane}")
    A(f"v_lshrrev_b32 v{vT2}, 2, v{vLane}")
    A(f"v_and_b32 v{vT2}, 4, v{vT2}")
    A(f"v_xor_b32 v{vT1}, v{vT1}, v{vT2}")
    if G:
        A(f"s_mul_i32 s{sTmp3}, s{sCG}, {0 if OPT['SAME'] else 384}")
        A(f"v_add_u32 v{vT0}, s{sTmp3}, v{vT0}")
        if S16:
            A(f"s_and_b32 s{sTmp3}, s{sWave}, 1")
            A(f"s_lshl_b32 s{sTmp3}, s{sTmp3}, 1")
            A(f"v_xor_b32 v{vT1}, s{sTmp3}, v{vT1}")
        A(f"v_lshl_add_u32 v{vWo}, v{vT1}, 4, v{vT0}")
        if not S16:
            A(f"v_xor_b32 v{vT1}, 2, v{vT1}")
        A(f"v_lshl_add_u32 v{vWo+1}, v{vT1}, 4, v{vT0}")
        chunks = [(S_W, vWo, 0), (S_W, vWo, 128), (S_W, vWo, 256), (S_T, vWo + 1, 0), (S_T, vWo + 1, 128), (S_T, vWo + 1, 256)]
    elif typ == "Q":
        A(f"s_sub_u32 s{sTmp3}, s{sCG}, 13")
        A(f"s_mul_i32 s{sTmp3}, s{sTmp3}, 640")
        A(f"v_add_u32 v{vT0}, s{sTmp3}, v{vT0}")
        A(f"v_lshl_add_u32 v{vWo}, v{vT1}, 4, v{vT0}")
        chunks = [(S_W, vWo, 128 * i) for i in range(5)]
    else:
        A(f"s_sub_u32 s4, s{sCG}, 9")
        A(f"s_and_b32 s{sOdd}, s4, 1")
        A(f"s_mul_i32 s6, s4, 320")
        A(f"s_add_u32 s6, s6, 1280")
        A(f"s_lshl_b32 s7, s{sOdd}, 6")
        A(f"s_add_u32 s7, s7, s6")
        A(f"s_cmp_eq_u32 s{sOdd}, 0")
        A(f"s_cselect_b32 s8, 256, 0")
        A(f"s_add_u32 s8, s8, s6")
        A(f"v_lshl_add_u32 v{vT2}, v{vT1}, 4, v{vT0}")
        A(f"v_add_u32 v{vWo}, s7, v{vT2}")
        A(f"v_xor_b32 v{vT3}, 2, v{vT1}")
        A(f"v_lshl_add_u32 v{vT2}, v{vT3}, 4, v{vT0}")
        A(f"v_add_u32 v{vWo+2}, s7, v{vT2}")
        A(f"v_lshrrev_b32 v{vT2}, 2, v{vT1}")
        A(f"v_lshlrev_b32 v{vT3}, 1, v{vT2}")
        A(f"v_xor_b32 v{vT3}, v{vT3}, v{vT1}")
        A(f"v_and_b32 v{vT3}, 3, v{vT3}")
        A(f"v_lshl_add_u32 v{vT3}, v{vT3}, 4, v{vT0}")
        A(f"v_mul_u32_u24 v{vT2}, 1280, v{vT2}")
        A(f"v_add3_u32 v{vWo+1}, v{vT3}, v{vT2}, s8")
        chunks = [(S_W, vWo, 0), (S_W, vWo, 128), (S_W, vWo + 2, 1280), (S_W, vWo + 2, 1408), (S_W, vWo + 1, 0)]
    A(f"s_lshr_b32 s{sTmp}, s{sWave}, 2")
    A(f"s_lshl_b32 s{sTmp2}, s{sTmp2}, 10")
    A(f"s_add_u32 s{sWrapW}, s{sTmp2}, {W_LDS + 5*W_SLOT}")
    A(f"s_mul_i32 s{sWslot}, s{sTmp}, {W_SLOT}")
    A(f"s_add_u32 s{sWslot}, s{sWslot}, s{sTmp2}")
    A(f"s_add_u32 s{sWslot}, s{sWslot}, {W_LDS}")
    A(f"s_mul_i32 s{sKW}, s{sC0}, {64*pitch}")
    A(f"s_mul_i32 s{sTmp}, s{sTmp}, {32*pitch}")
    A(f"s_add_u32 s{sKW}, s{sKW}, s{sTmp}")
    A(f"s_mov_b32 s{sKWn}, 0")

    def dmaW():
        out = []
        for i, (sr, vo, imm) in enumerate(chunks):
            out.append(f"s_add_u32 m0, s{sWslot}, {i*4096 - imm}\n" +
                       "s_nop 0\n" +
                       f"buffer_load_dwordx4 v{vo}, {srd(sr)}, s{sKW} offen offset:{imm} lds")
        out.append(f"s_add_u32 s{sWslot}, s{sWslot}, {2*W_SLOT}\n"
                   f"s_cmp_ge_u32 s{sWslot}, s{sWrapW}\n"
                   f"s_cselect_b32 s{sTmp}, {5*W_SLOT}, 0\n"
                   f"s_sub_u32 s{sWslot}, s{sWslot}, s{sTmp}\n"
                   f"s_add_u32 s{sKW}, s{sKW}, {64*pitch}\n"
                   f"s_cmp_ge_u32 s{sKW}, {640*pitch}\n"
                   f"s_cselect_b32 s{sTmp}, {640*pitch}, 0\n"
                   f"s_sub_u32 s{sKW}, s{sKW}, s{sTmp}")
        return out

    def dmaX():
        out = []
        for i in range(4):
            out.append(f"s_add_u32 m0, s{sXslot}, {i*1024}\n" +
                       f"s_add_u32 s{sTmp}, s{sKX}, {16*1280}\n" +
                       f"buffer_load_dwordx4 v{vXo+i%2}, {srd(S_X)}, s{sKX if i < 2 else sTmp} offen lds")
        out.append(f"s_xor_b32 s{sXslot}, s{sXslot}, 16384\n"
                   f"s_add_u32 s{sKX}, s{sKX}, 128\n"
                   f"s_cmp_eq_u32 s{sKX}, 1280\n"
                   f"s_cselect_b32 s{sKX}, 0, s{sKX}")
        return out

    A(f"s_cmp_lt_u32 s{sWave}, 4")
    A(f"s_cbranch_scc1 {L('p1')}")
    for g in dmaX():
        A(g)
    A(f"s_branch {L('p2')}")
    A.label(L("p1"))
    for g in dmaW():
        A(g)
    A.label(L("p2"))
    lstamp(A, 16)

    if OPT["STAMP"] == 3:
        stamp(A, 4, 0, wave=OPT["SW"])
    if S16:
        A(f"v_and_b32 v{vT0}, 15, v{vLane}")
        A(f"v_lshrrev_b32 v{vT1}, 4, v{vLane}")
        A(f"v_bfe_u32 v{vT2}, v{vLane}, 1, 3")
        A(f"v_xor_b32 v{vT1}, v{vT1}, v{vT2}")
        A(f"s_lshl_b32 s{sTmp}, s{sMW}, 13")
        A(f"v_lshl_add_u32 v{vT0}, v{vT0}, 7, s{sTmp}")
        for kap in range(2):
            A(f"v_xor_b32 v{vT2}, {4*kap}, v{vT1}")
            A(f"v_lshl_add_u32 v{vXa+2*kap}, v{vT2}, 4, v{vT0}")
            A(f"v_add_u32 v{vXa+2*kap+1}, 2048, v{vXa+2*kap}")
    else:
        A(f"v_and_b32 v{vT0}, 31, v{vLane}")
        A(f"v_lshrrev_b32 v{vT1}, 5, v{vLane}")
        A(f"v_bfe_u32 v{vT2}, v{vLane}, 1, 3")
        A(f"v_xor_b32 v{vT1}, v{vT1}, v{vT2}")
        A(f"s_lshl_b32 s{sTmp}, s{sMW}, {13 if G else 12}")
        A(f"v_lshl_add_u32 v{vT0}, v{vT0}, 7, s{sTmp}")
        for kap in range(2):
            for kk in range(2):
                A(f"v_xor_b32 v{vT2}, {4*kap+2*kk}, v{vT1}")
                A(f"v_lshl_add_u32 v{vXa+2*kap+kk}, v{vT2}, 4, v{vT0}")
    A(f"v_lshrrev_b32 v{vT0}, {4 if S16 else 5}, v{vLane}")
    A(f"v_lshlrev_b32 v{vT0}, 10, v{vT0}")
    A(f"v_bfe_u32 v{vT1}, v{vLane}, 2, 2")
    A(f"v_lshl_add_u32 v{vT0}, v{vT1}, 7, v{vT0}")
    A(f"v_and_b32 v{vT2}, 3, v{vLane}")
    if typ != "K" and not S16:
        A(f"v_lshlrev_b32 v{vT3}, 1, v{vT2}")
        A(f"v_lshrrev_b32 v{vT2}, 1, v{vT2}")
        A(f"v_and_b32 v{vT3}, 2, v{vT3}")
        A(f"v_or_b32 v{vT2}, v{vT2}, v{vT3}")
    A(f"v_lshl_add_u32 v{vT0}, v{vT2}, 3, v{vT0}")
    A(f"v_and_b32 v{vT1}, 2, v{vT1}")
    A(f"v_bfe_u32 v{vT2}, v{vLane}, 4, 1")
    A(f"v_xor_b32 v{vT1}, v{vT1}, v{vT2}")
    if G:
        if not S16:
            A(f"v_mul_u32_u24 v{vT2}, {3*4096}, v{vT2}")
            A(f"v_add_u32 v{vT0}, v{vT0}, v{vT2}")
        for a in range(3):
            A(f"s_mul_i32 s{sTmp}, s{sNW}, 3")
            A(f"s_add_u32 s{sTmp}, s{sTmp}, {a}")
            A(f"s_lshr_b32 s{sTmp2}, s{sTmp}, 2")
            A(f"s_lshl_b32 s{sTmp2}, s{sTmp2}, 12")
            A(f"s_and_b32 s{sTmp}, s{sTmp}, 3")
            A(f"v_xor_b32 v{vT2}, s{sTmp}, v{vT1}")
            A(f"v_lshl_add_u32 v{vT2}, v{vT2}, 5, v{vT0}")
            A(f"v_add_u32 v{vWb+a}, s{sTmp2}, v{vT2}")
    else:
        for a in range(5):
            if typ == "Q":
                A(f"s_mul_i32 s{sTmp}, s{sNW}, 5")
                A(f"s_add_u32 s{sTmp}, s{sTmp}, {a}")
                A(f"s_lshr_b32 s{sTmp2}, s{sTmp}, 1")
                A(f"s_lshl_b32 s{sTmp2}, s{sTmp2}, 12")
                A(f"s_and_b32 s{sTmp}, s{sTmp}, 1")
                A(f"s_lshl_b32 s{sTmp}, s{sTmp}, 1")
                A(f"v_xor_b32 v{vT2}, s{sTmp}, v{vT1}")
                A(f"v_lshl_add_u32 v{vT2}, v{vT2}, 5, v{vT0}")
                A(f"v_add_u32 v{vWb+a}, s{sTmp2}, v{vT2}")
            else:
                def loc(pi, nw, odd):
                    m, p = pi // 5, 5 * nw + pi % 5
                    if odd:
                        L_, tau = (4, p + 2 * m) if p < 2 else (2 * m + ((p - 2) >> 2), (p - 2) & 3)
                    else:
                        L_, tau = (4, p - 8 + 2 * m) if p >= 8 else (2 * m + (p >> 2), p & 3)
                    return L_ * 4 + (tau ^ m)
                if a == 0:
                    A(f"s_lshl_b32 s9, s{sNW}, 1")
                    A(f"s_add_u32 s9, s9, s{sOdd}")
                    A("s_lshl_b32 s9, s9, 3")
                    A(f"v_bfe_u32 v{vT2}, v{vLane}, 4, 1")
                    A(f"v_cmp_eq_u32 vcc, 1, v{vT2}")
                    A(f"v_and_b32 v{vT1}, 2, v{vT1}")
                for sub, sr in ((0, sTmp), (1, sTmp2)):
                    tab = sum(loc(2 * a + sub, nw, odd) << (8 * (2 * nw + odd)) for nw in range(2) for odd in range(2))
                    A(f"s_lshr_b32 s{sr}, {tab}, s9")
                    A(f"s_and_b32 s{sr}, s{sr}, 0xff")
                A(f"v_mov_b32 v{vT2}, s{sTmp}")
                A(f"v_mov_b32 v{vT3}, s{sTmp2}")
                A(f"v_cndmask_b32 v{vT2}, v{vT2}, v{vT3}, vcc")
                A(f"v_lshrrev_b32 v{vT3}, 2, v{vT2}")
                A(f"v_lshl_add_u32 v{vT3}, v{vT3}, 12, v{vT0}")
                A(f"v_and_b32 v{vT2}, 3, v{vT2}")
                A(f"v_xor_b32 v{vT2}, v{vT2}, v{vT1}")
                A(f"v_lshl_add_u32 v{vWb+a}, v{vT2}, 5, v{vT3}")
        if typ == "K":
            kv_addr_setup(A)
    A(f"s_mov_b32 s{sRslot}, {W_LDS}")
    poll_addr(A)
    A(f"v_and_b32 v{vT0}, 15, v{vLane}")
    A(f"v_bfe_u32 v{vT1}, v{vLane}, 4, 1")
    A(f"v_cmp_eq_u32 vcc, v{vT0}, v{vT1}")
    A(f"v_mov_b32 v{vT2}, 0x3f803f80")
    A(f"v_cndmask_b32 v{vSel}, 0, v{vT2}, vcc")
    for i in range(1, 4):
        A(f"v_mov_b32 v{vSel+i}, v{vSel}")
    if S16:
        for i in range(4):
            A(f"v_mov_b32 v{sel+i}, 0x3f803f80")
    for i in range(4 * NCS):
        A(f"v_mov_b32 v{vCSA+i}, 0")
    for i in range(16 * MT * NT):
        A(f"v_mov_b32 v{vACC+i}, 0")
    A(f"s_mov_b32 s{sPub}, 2")
    A(f"s_bitcmp1_b32 0x88ff, s{sRB}")
    A(f"s_cselect_b32 s{sCSit}, 0, 99")
    A(f"s_cmp_eq_u32 s{sMW}, 0")
    A(f"s_cselect_b32 s{sCSit}, s{sCSit}, 99")
    A(f"s_mov_b32 s{sTmp}, 0xe")
    A(f"s_cmp_eq_u32 s{sWave}, 0")
    A(f"s_cselect_b32 s{sSpec}, s{sTmp}, 0")
    A(f"s_cmp_eq_u32 s{sWave}, 3")
    A(f"s_cselect_b32 s{sTmp}, 0xc0, 0")
    A(f"s_or_b32 s{sSpec}, s{sSpec}, s{sTmp}")
    A(f"s_or_b32 s{sSpec}, s{sSpec}, 0x300")
    A(f"s_mov_b32 s{sIt}, 0")
    A(f"s_mov_b32 s{sSpin}, 0")
    p2_ids(A, vec=False)
    ffn_setup(A)
    A(f"s_cmp_lt_u32 s{sWave}, 4")
    A(f"s_cselect_b32 s{sWo}, {OOB}, s{sWo}")

    def reads(P, kap):
        pre = [f"v_add_u32 v{vWa+a}, s{sRslot}, v{vWb+a}" for a in range(NT)]
        post = [f"s_add_u32 s{sRslot}, s{sRslot}, {W_SLOT}\n"
                f"s_cmp_eq_u32 s{sRslot}, {W_LDS+5*W_SLOT}\n"
                f"s_cselect_b32 s{sRslot}, {W_LDS}, s{sRslot}"]
        out = []
        for kk in range(2):
            for mt in range(MT):
                out.append(f"ds_read_b128 {vr(XB(P, mt, kk))}, v{vXa+2*kap+kk} offset:{mt*4096}")
            for a in range(NT):
                for rho in range(2):
                    out.append(f"ds_read_b64_tr_b16 {vr(WBf(P, a, kk)+2*rho, 2)}, v{vWa+a} offset:{kk*(12288 if S16 else 2048)+rho*512}")
        if OPT["NORD"]:
            out = []
        return pre, out, post

    def mfmas(P):
        out = []
        if S16:
            for kw in range(2):
                for a in range(3):
                    for t in (0, 2, 1, 3):
                        d = vr(acc16(t, a, kw))
                        out.append(f"v_mfma_f32_16x16x32_bf16 {d}, {vr(WBf(P, a, kw))}, {vr(XB(P, t // 2, t % 2))}, {d}")
            return out
        for kk in range(2):
            for a in range(NT):
                for mt in range(MT):
                    x, w, d = vr(XB(P, mt, kk)), vr(WBf(P, a, kk)), vr(acc(mt, a), 16)
                    if OPT["FAKE16"]:
                        for h in range(2):
                            dq = vr(acc(mt, a) + 8 * kk + 4 * h)
                            x2 = vr(XB(P, mt, h))
                            out.append(f"v_mfma_f32_16x16x32_bf16 {dq}, {w}, {x2}, {dq}")
                    elif typ == "K":
                        out.append(f"v_mfma_f32_32x32x16_bf16 {d}, {x}, {w}, {d}")
                    else:
                        out.append(f"v_mfma_f32_32x32x16_bf16 {d}, {w}, {x}, {d}")
        return out

    def cs_mfmas(P):
        if S16:
            return [f"v_mfma_f32_16x16x32_bf16 {vr(vCSA+4*(2*a+kk))}, {vr(WBf(P, a, kk))}, {vr(sel)}, {vr(vCSA+4*(2*a+kk))}"
                    for kk in range(2) for a in range(3)]
        return [f"v_mfma_f32_16x16x32_bf16 {vr(vCSA+4*a)}, {vr(WBf(P, a, kk))}, {vr(vSel)}, {vr(vCSA+4*a)}"
                for kk in range(2) for a in range(NT)]

    if OPT["STAMP"] == 3:
        stamp(A, 5, 0, wave=OPT["SW"])
    n = len(mfmas(0))
    f = lambda k: k / n
    nod = OPT["NODMA"]

    def loop(R):
        LL = lambda s: f"L_{typ}{R}_{s}"
        lstamp(A, 17)
        if R == "B":
            for g in dmaW():
                A(g)
        A(f"s_waitcnt vmcnt({NW_ + (4 if R == 'B' else 0)})")
        k1_stats(A, typ)
        lstamp(A, 18)
        A(f"s_waitcnt vmcnt({1 if R == 'A' else NW_ + 1})")
        lstamp(A, 19)
        A("s_barrier")
        pre, rd, post = reads(0, 0)
        for g in pre + rd + post:
            A(g)
        if R == "A":
            A("s_setprio 1")
            stamp(A, 1, 0)
            stamp(A, 14, 0, clk=True)
        else:
            for g in dmaX():
                A(g)
        A("s_waitcnt lgkmcnt(0)")
        lstamp(A, 20)
        for g in mfmas(0):
            A(g)
        if R == "A":
            A(f"s_cmp_lg_u32 s{sCSit}, 0")
            A(f"s_cbranch_scc1 {LL('pc0')}")
            for g in cs_mfmas(0):
                A(g)
            A.label(LL("pc0"))
            for g in dmaW():
                A(g)
            A(f"s_sub_u32 s{sUw}, s{sWave}, 1")
            A(f"s_cmp_gt_u32 s{sUw}, 1")
            A(f"s_cbranch_scc1 {LL('nou')}")
            A(f"s_lshl_b32 s{sU}, s{sCG}, 4")
            A(f"s_add_u32 s{sU}, s{sU}, s{sRB}")
            A(f"s_lshl_b32 s{sU}, s{sU}, 1")
            A(f"s_add_u32 s{sU}, s{sU}, s{sUw}")
            A(f"s_lshl_b32 s{sUl}, s{sUw}, 12")
            A(f"s_add_u32 s{sUl}, s{sUl}, {MISC_LDS}")
            w2_unit_dma(A, f"s{sUl}")
            A.label(LL("nou"))
        else:
            A("s_waitcnt vmcnt(5)")
        lstamp(A, 21)
        A("s_barrier")
        pre, rd, post = reads(1, 1)
        for g in pre + rd + post:
            A(g)
        if R == "B":
            for g in dmaW():
                A(g)
        A("s_waitcnt lgkmcnt(0)")
        lstamp(A, 22)
        for g in mfmas(1):
            A(g)
        if R == "A":
            for g in dmaW():
                A(g)
            A(f"s_cmp_eq_u32 s{sCSit}, 0")
            A(f"s_cbranch_scc1 {LL('cs1')}")
            A(f"s_waitcnt vmcnt({NW_})")
            A.label(LL("pc1"))
            A(f"s_cmp_gt_u32 s{sUw}, 1")
            A(f"s_cbranch_scc1 {LL('pc2')}")
            w2_unit_out(A, f"s{sUl}", (lambda t: (96, 100, 144, 148)[t]) if G else (lambda t: 232 + 4 * t) if typ == 'Q' else (lambda t: vBUF + 4 * t))
            A.label(LL("pc2"))
        else:
            A("s_waitcnt vmcnt(0)")
        lstamp(A, 23)
        A("s_barrier")
        if R == "B":
            for g in dmaX() + dmaW():
                A(g)
        for i in range(4):
            A(f"v_xor_b32 v{vXa+i}, 16384, v{vXa+i}")
        pre, rd, post = reads(0, 0)
        for g in pre + rd + post:
            A(g)
        A(f"s_mov_b32 s{sIt}, 1")
        if R == "A" and OPT["NXA"]:
            for _ in range(3):
                A(dmaX()[4])
        A("s_waitcnt lgkmcnt(0)")
        lstamp(A, 0)
        A(".p2align 6")
        A.label(LL("loop"))
        pre, rd, post = reads(1, 1)
        for g in interleave(mfmas(0), (pre, 0.0, f(1)), (rd, f(1), 0.7), (post, 0.75, 0.85)):
            A(g)
        if R == "A":
            A(f"s_bitcmp1_b32 s{sSpec}, s{sIt}")
            A(f"s_cbranch_scc1 {LL('spec')}")
            A.label(LL("specr"))
            for g in dmaW():
                A(g)
            A(f"s_waitcnt vmcnt({NW_}) lgkmcnt(0)")
            A.label(LL("bar"))
        else:
            A("s_waitcnt vmcnt(0) lgkmcnt(0)")
        A("s_barrier")
        if OPT["DLY"] == 1 and G:
            A("s_sleep 3")
        pre, rd, post = reads(0, 0)
        pre = [f"v_xor_b32 v{vXa+i}, 16384, v{vXa+i}" for i in range(2)] + pre
        post = post + [f"v_xor_b32 v{vXa+i}, 16384, v{vXa+i}" for i in range(2, 4)]
        tail = [f"s_add_u32 s{sIt}, s{sIt}, 1\ns_cmp_lt_u32 s{sIt}, 10"]
        nxa = OPT["NXA"]
        if R == "B":
            dw = dmaW()
            nb = OPT["NBUP"]
            A(f"s_cmp_ge_u32 s{sIt}, 8")
            A(f"s_cbranch_scc1 {LL('nod')}")
            for g in dmaX()[nxa:] + dw[:nb]:
                A(g)
            for g in interleave(mfmas(1), (pre, 0.0, f(1)), (dw[nb:], 0.0, 0.4), (rd, f(1), 0.7), (post, 0.7, 0.8), (tail, f(n-2), f(n-1))):
                A(g)
            A.label(LL("end"))
        else:
            chk1 = tail
            xa = []
            if nxa:
                dx = dmaX()
                xa = [f"s_cmp_ge_u32 s{sIt}, 8\ns_cbranch_scc1 {LL('nox')}\n" + "\n".join(dx[:nxa] + dx[4:]) + f"\n{LL('nox')}:"]
            for g in interleave(mfmas(1), (pre, 0.0, f(1)), (xa, f(OPT["XPOS"]), f(OPT["XPOS"]+1)), (rd, f(1), 0.7), (post, 0.7, 0.8), (chk1, f(n-2), f(n-1))):
                A(g)
        if OPT["STAMP"] == 4:
            A("s_memrealtime s[96:97]")
            A(f"s_mov_b32 m0, s{sIt}")
        A("s_waitcnt lgkmcnt(0)")
        if OPT["STAMP"] == 4:
            A("v_writelane_b32 v28, s96, m0")
        A(f"s_cbranch_scc1 {LL('loop')}")
        A(f"s_branch {L('epi')}")

        if R == "B":
            A.label(LL("nod"))
            if typ not in OPT_WOEPI:
                A(f"s_cmp_eq_u32 s{sIt}, 9")
                A(f"s_cbranch_scc1 {LL('nod9')}")
                wo_early(A, 24, 7)
                A(f"s_branch {LL('nod2')}")
                A.label(LL("nod9"))
                wo_early(A, 72, 7)
                A.label(LL("nod2"))
            for g in interleave(mfmas(1), (pre, 0.0, f(1)), (rd, f(1), 0.7), (post, 0.7, 0.8), (tail, f(n-2), f(n-1))):
                A(g)
            A(f"s_branch {LL('end')}")
            return
        A.label(LL("cs1"))
        for g in cs_mfmas(1):
            A(g)
        A(f"v_and_b32 v{vT0}, 15, v{vLane}")
        A(f"v_lshrrev_b32 v{vT1}, 4, v{vLane}")
        A(f"v_lshlrev_b32 v{vT1}, 4, v{vT1}")
        A(f"v_lshl_add_u32 v{vT1}, v{vT0}, 6, v{vT1}")
        A(f"v_cmp_gt_u32 vcc, {1 if S16 else 2}, v{vT0}")
        A(f"v_mov_b32 v{vT2}, {OOB}")
        A(f"v_cndmask_b32 v{vT1}, v{vT2}, v{vT1}, vcc")
        A(f"s_mul_i32 s{sTmp}, s{sCG}, 10")
        A(f"s_add_u32 s{sTmp}, s{sTmp}, s{sC0}")
        A(f"s_mul_i32 s{sTmp}, s{sTmp}, 1536")
        A(f"s_mul_i32 s{sTmp2}, s{sNW}, {NT*128}")
        A(f"s_add_u32 s{sTmp}, s{sTmp}, s{sTmp2}")
        A(f"s_add_u32 s{sTmp}, s{sTmp}, {WS_CS}")
        for a in range(NCS):
            A(f"buffer_store_dwordx4 {vr(vCSA+4*a)}, v{vT1}, {srd(S_WS)}, s{sTmp} offen offset:{a*(64 if S16 else 128)} sc1")
        A(f"s_waitcnt vmcnt({NW_+NCS})")
        A(f"s_branch {LL('pc1')}")

        def with_dma(nops, body):
            for g in dmaW():
                A(g)
            body()
            A(f"s_waitcnt vmcnt({NW_+nops}) lgkmcnt(0)")
            A(f"s_branch {LL('bar')}")
        A.label(LL("spec"))
        A(f"s_cmp_eq_u32 s{sIt}, 9")
        A(f"s_cbranch_scc1 {LL('sum')}")
        A(f"s_cmp_eq_u32 s{sIt}, 8")
        A(f"s_cbranch_scc1 {LL('go')}")
        A(f"s_cmp_eq_u32 s{sIt}, 7")
        A(f"s_cbranch_scc1 {LL('chk')}")
        A(f"s_cmp_eq_u32 s{sIt}, 6")
        A(f"s_cbranch_scc1 {LL('poll0')}")
        A.label(LL("pub"))

        A(f"s_cmp_lg_u32 s{sIt}, 2")
        A(f"s_cbranch_scc1 {LL('pub1')}")
        wait_zeroed(A, LL("wz"), True)
        A.label(LL("pub1"))

        def pub():
            A(f"s_cmp_eq_u32 s{sIt}, 3")
            A(f"s_cbranch_scc1 {LL('pub3')}")
            A(f"s_cmp_eq_u32 s{sIt}, 2")
            A(f"s_cbranch_scc1 {LL('pub2')}")
            A(f"buffer_load_dword v{vPoll}, off, {srd(S_DBG)}, 0 sc1")
            A(f"s_branch {LL('pub3')}")
            A.label(LL("pub2"))
            k1_publish(A)
            A.label(LL("pub3"))
        with_dma(1, pub)
        A.label(LL("poll0"))
        with_dma(1, lambda: A(f"buffer_load_dword v{vPoll}, v{vPa}, {srd(S_WS)}, 0 offen sc1"))
        A.label(LL("poll"))
        A("s_sleep 8")
        A(f"buffer_load_dword v{vPoll}, v{vPa}, {srd(S_WS)}, 0 offen sc1")
        A.label(LL("chk"))
        A("s_waitcnt vmcnt(0)")
        poll_cmp(A)
        A(f"s_add_u32 s{sSpin}, s{sSpin}, 1")
        A(f"s_cmp_gt_u32 s{sSpin}, {SPIN_MAX}")
        A(f"s_cbranch_scc1 {LL('specr')}")
        A(f"s_cmp_lg_u64 vcc, 0")
        A(f"s_cbranch_scc1 {LL('poll')}")
        A(f"s_branch {LL('specr')}")
        A.label(LL("go"))

        def go():
            A(f"v_lshlrev_b32 v{vT0}, 3, v0")
            A(f"v_cmp_gt_u32 vcc, {NT*(4 if G else 2)*16}, v0")
            A(f"v_mov_b32 v{vT2}, {OOB}")
            A(f"v_cndmask_b32 v{vT0}, v{vT2}, v{vT0}, vcc")
            A(f"s_mul_i32 s{sTmp}, s{sCG}, 15360")
            A(f"s_add_u32 s{sTmp}, s{sTmp}, {WS_CS}")
            for ch in range(10):
                if ch % 2 == 0 and ch:
                    A(f"s_add_u32 s{sTmp}, s{sTmp}, 3072")
                A(f"buffer_load_dwordx2 {vr(vCSP+2*ch, 2)}, v{vT0}, {srd(S_WS)}, s{sTmp} offen offset:{(ch%2)*1536} sc1")
            A(f"s_lshl_b32 s{sTmp}, s{sRB}, 10")
            A(f"s_add_u32 s{sTmp}, s{sTmp}, {WS_ST}")
            A(f"v_lshlrev_b32 v{vT1}, 2, v0")
            A(f"buffer_load_dword v{vSt}, v{vT1}, {srd(S_WS)}, s{sTmp} offen sc1")
        go()
        if typ not in OPT_WOEPI:
            wo_early(A, 0, 6)
        A(f"s_waitcnt vmcnt({11 if typ in OPT_WOEPI else 17}) lgkmcnt(0)")
        A(f"s_branch {LL('bar')}")
        A.label(LL("sum"))
        A(f"s_waitcnt vmcnt({0 if typ in OPT_WOEPI else 6})")
        for ch in range(1, 10):
            A(f"v_add_f32 v{vCSP}, v{vCSP}, v{vCSP+2*ch}")
            A(f"v_add_f32 v{vCSP+1}, v{vCSP+1}, v{vCSP+2*ch+1}")
        A(f"v_lshlrev_b32 v{vT0}, 3, v0")
        A(f"v_add_u32 v{vT0}, {KV_CS if typ == 'K' else MISC_LDS}, v{vT0}")
        A(f"ds_write_b64 v{vT0}, {vr(vCSP, 2)}")
        if typ == "K":
            A(f"v_rsq_f32 v{vT2}, v{vSt}")
            A(f"v_and_b32 v{vT1}, 1, v0")
            A(f"v_cmp_eq_u32 vcc, 1, v{vT1}")
            A(f"v_lshlrev_b32 v{vT1}, 9, v{vT1}")
            A(f"v_lshrrev_b32 v{vT0}, 1, v0")
            A(f"v_lshl_add_u32 v{vT1}, v{vT0}, 2, v{vT1}")
            A(f"v_add_u32 v{vT1}, {KV_ST}, v{vT1}")
            A(f"v_cndmask_b32 v{vT0}, v{vSt}, v{vT2}, vcc")
            A(f"ds_write_b32 v{vT1}, v{vT0}")
            A(f"v_mul_f32 v{vT2}, {f32(LOG2E)}, v{vT2}")
            A(f"ds_write_b32 v{vT1}, v{vT2} offset:1024")
        else:
            A(f"v_lshlrev_b32 v{vT1}, 2, v0")
            A(f"v_add_u32 v{vT1}, {MISC_LDS+2048}, v{vT1}")
            A(f"ds_write_b32 v{vT1}, v{vSt}")
        if typ not in OPT_WOEPI:
            wo_early(A, 52, 5)
        A("s_waitcnt lgkmcnt(0)")
        A(f"s_branch {LL('bar')}")

    A(f"s_cmp_ge_u32 s{sWave}, 4")
    A(f"s_cbranch_scc1 {L('roleB')}")
    loop("A")
    A.label(L("roleB"))
    loop("B")

    A.label(L("epi"))
    if (OPT["DLY"] == 2 and typ == "G") or (OPT["DLY"] == 3 and typ == "K"):
        A("s_sleep 30")
    A("s_setprio 0")
    cstamp(A, 0)
    stamp(A, 2, 0)
    stamp(A, 4, 0, wave=4, vt=50)
    stamp(A, 7, 0, wave=4, vt=50, clk=True)
    stamp(A, 15, 0, clk=True)
    if OPT["STAMP"] == 4:
        A(f"v_lshlrev_b32 v29, 2, v0")
        A(f"s_lshl_b32 s98, s2, 11")
        A(f"s_add_u32 s98, s98, {WS_STAMP + 0x10000}")
        A(f"buffer_store_dword v28, v29, {srd(S_WS)}, s98 offen")
    A(f"v_lshlrev_b32 v{vL16}, 4, v{vLane}")
    if True:
        epi = {"G": k1_epi_g16 if S16 else k1_epi_g, "Q": k1_epi_q, "K": k1_epi_kv}[typ]
        body = []
        epi(body.append, acc)
        npre = min(OPT["NPRE"], {"G": 6, "Q": 4, "K": 2}[typ])
        early = [g for j in range(min(4, npre)) for g in ldW_groups(j)]
        late = [g for j in range(4, npre) for g in ldW_groups(j)]
        wod = []
        if typ in OPT_WOEPI:
            A(f"s_mul_i32 s12, s{sWave}, 13")
            A("s_min_u32 s12, s12, 87")
            A("s_lshl_b32 s12, s12, 10")
            A(f"s_mul_i32 s13, s{sC}, {74*5120}")
            A("s_add_u32 s13, s13, s12")
            A(f"s_add_u32 s13, s13, {WS_W2 + 54*5120}")
            A(f"s_add_u32 s12, s12, {WO_LDS}")
            wod = [f"s_add_u32 m0, s12, {i*1024}\ns_add_u32 s14, s13, {i*1024}\n"
                   f"buffer_load_dwordx4 v{vL16}, {srd(S_WS)}, s14 offen sc1 lds" for i in range(13)]
        for g in interleave(body, (wod, 0.02, 0.6), (early, 0.02, 0.5 if npre > 4 else 0.7), (late, 0.5, 0.8)):
            A(g)
        A(f"s_mov_b32 s{sWoDone}, {npre + 1}")
    cstamp(A, 7)
    if OPT["STAMP"] == 7:
        A(f"v_lshlrev_b32 v49, 2, v0")
        A(f"s_lshl_b32 s98, s2, 11")
        A(f"s_add_u32 s98, s98, {WS_STAMP + 0x10000}")
        A(f"buffer_store_dword v48, v49, {srd(S_WS)}, s98 offen")
    stamp(A, 3, 0)
    stamp(A, 5, 0, wave=4, vt=50)
    stamp(A, 8, 0, wave=4, vt=50, clk=True)
    A(f"v_mov_b32 v{vSigA}, {OOB}")
    if typ == "K":
        A(f"s_sub_u32 s{sTmp}, s{sCG}, 9")
        A(f"s_lshl_b32 s{sTmp}, s{sTmp}, 11")
        A(f"s_add_u32 s{sTmp}, s{sTmp}, {WS_FL + FL_KV}")
        A(f"v_lshl_add_u32 v{vT0}, v{vLane}, 8, s{sTmp}")
        A(f"v_cmp_gt_u32 vcc, 8, v{vLane}")
        A(f"v_cndmask_b32 v{vSigA}, v{vSigA}, v{vT0}, vcc")
        A(f"v_mov_b32 v{vSigV}, 1")
    else:
        A(f"s_lshl_b32 s{sTmp}, s{sRB}, 8")
        A(f"s_add_u32 s{sTmp}, s{sTmp}, {WS_FL + FL_HC}")
        A(f"v_writelane_b32 v{vSigA}, s{sTmp}, 0")
        A(f"s_lshl_b32 s{sTmp}, 1, s{sCG}")
        A(f"v_mov_b32 v{vSigV}, s{sTmp}")
    A("s_branch L_p2")


def k1_stats_issue(A):
    b = vBUF
    A(f"s_lshl_b32 s{sRow}, s{sRB}, 7")
    A(f"s_lshl_b32 s{sTmp2}, s{sCG}, 3")
    A(f"s_add_u32 s{sRow}, s{sRow}, s{sTmp2}")
    A(f"s_add_u32 s{sRow}, s{sRow}, s{sWave}")
    A(f"s_mul_i32 s{sTmp2}, s{sRow}, 1280")
    A(f"v_lshlrev_b32 v{vT0}, 3, v{vLane}")
    A(f"v_lshlrev_b32 v{vT1}, 2, v{vLane}")
    A(f"buffer_load_dwordx2 {vr(b, 2)}, v{vT0}, {srd(S_X)}, s{sTmp2} offen")
    A(f"buffer_load_dwordx2 {vr(b+2, 2)}, v{vT0}, {srd(S_X)}, s{sTmp2} offen offset:512")
    A(f"buffer_load_dword v{b+4}, v{vT1}, {srd(S_X)}, s{sTmp2} offen offset:1024")


def k1_stats(A, typ):
    b = vBUF
    if typ == "A":
        A("s_waitcnt vmcnt(0)")
    for i in range(5):
        A(f"v_lshlrev_b32 v{b+8+2*i}, 16, v{b+i}")
        A(f"v_and_b32 v{b+9+2*i}, 0xffff0000, v{b+i}")
    s = b + 20
    A(f"v_add_f32 v{s}, v{b+8}, v{b+9}")
    for i in range(2, 10):
        A(f"v_add_f32 v{s}, v{s}, v{b+8+i}")
    wave_allreduce_add(A, s, s + 1, 4)
    A(f"v_mul_f32 v{s}, {f32(1.0/640)}, v{s}")
    for i in range(10):
        A(f"v_sub_f32 v{b+8+i}, v{b+8+i}, v{s}")
    A(f"v_mul_f32 v{s+1}, v{b+8}, v{b+8}")
    for i in range(1, 10):
        A(f"v_fmac_f32 v{s+1}, v{b+8+i}, v{b+8+i}")
    wave_allreduce_add(A, s + 1, s + 2, 4)
    A(f"v_mov_b32 v{s+2}, {f32(1e-5)}")
    A(f"v_fmac_f32 v{s+2}, {f32(1.0/640)}, v{s+1}")
    A(f"v_mov_b32 v{s+1}, v{s+2}")
    A(f"v_cmp_eq_u32 vcc, 0, v{vLane}")
    A(f"v_mov_b32 v{vT2}, {OOB}")
    A(f"v_cndmask_b32 v{vT0}, v{vT2}, v{vLane}, vcc")
    A(f"s_lshl_b32 s{sTmp}, s{sRow}, 3")
    A(f"s_add_u32 s{sTmp}, s{sTmp}, {WS_ST}")
    A(f"buffer_store_dwordx2 {vr(s, 2)}, v{vT0}, {srd(S_WS)}, s{sTmp} offen sc1")


def k1_publish(A):
    A(f"s_lshl_b32 s{sTmp}, s{sRB}, 8")
    A(f"s_add_u32 s{sTmp}, s{sTmp}, {WS_FL + FL_ROW}")
    A(f"v_mov_b32 v{vT0}, {OOB}")
    A(f"v_writelane_b32 v{vT0}, s{sTmp}, 0")
    A(f"v_mov_b32 v{vT1}, 1")
    A(f"buffer_atomic_add v{vT1}, v{vT0}, {srd(S_WS)}, 0 offen sc1")


def poll_addr(A):
    A(f"v_and_b32 v{vPa}, 15, v{vLane}")
    A(f"v_lshlrev_b32 v{vPa}, 8, v{vPa}")
    A(f"v_add_u32 v{vPa}, {WS_FL + FL_ROW}, v{vPa}")


def poll_cmp(A):
    A(f"v_cmp_gt_u32 vcc, 16, v{vPoll}")


def wait_zeroed(A, lab, first_issued):
    if first_issued:
        A(f"s_branch {lab}_c")
    A.label(lab)
    A("s_sleep 4")
    A(f"buffer_load_dword v{vPoll}, off, {srd(S_DBG)}, 0 sc1")
    A.label(lab + "_c")
    A("s_waitcnt vmcnt(0)")
    A(f"v_readfirstlane_b32 s{sTmp}, v{vPoll}")
    A(f"s_add_u32 s{sSpin}, s{sSpin}, 1")
    A(f"s_cmp_gt_u32 s{sSpin}, {SPIN_MAX}")
    A(f"s_cbranch_scc1 {lab}_ok")
    A(f"s_cmp_lt_u32 s{sTmp}, 16")
    A(f"s_cbranch_scc1 {lab}")
    A.label(lab + "_ok")


S_R = 88
sU, sUks, sUL = 92, 93, 94


def w2_unit_decode(A):
    A(f"s_mul_i32 s{sUks}, s{sU}, 205")
    A(f"s_lshr_b32 s{sUks}, s{sUks}, 11")
    A(f"s_mul_i32 s{sUL}, s{sUks}, 10")
    A(f"s_sub_u32 s{sUL}, s{sU}, s{sUL}")


def w2_unit_dma(A, lds):
    w2_unit_decode(A)
    A(f"s_cmp_lt_u32 s{sUks}, 54")
    A(f"s_cselect_b32 s{S_R}, s{P_D}, s{P_WO}")
    A(f"s_cselect_b32 s{S_R+1}, s{P_D+1}, s{P_WO+1}")
    A(f"s_mov_b32 s{S_R+2}, {640*1280}")
    A(f"s_cselect_b32 s{S_R+2}, {1728*1280}, s{S_R+2}")
    A(f"s_cselect_b32 s{sTmp}, 0, 54")
    A(f"s_and_b32 s{S_R+1}, s{S_R+1}, 0xffff")
    A(f"s_mov_b32 s{S_R+3}, 0x20000")
    A(f"s_sub_u32 s{sTmp}, s{sUks}, s{sTmp}")
    A(f"s_mul_i32 s{sTmp}, s{sTmp}, {32*1280}")
    A(f"s_lshl_b32 s{sTmp2}, s{sUL}, 7")
    A(f"s_add_u32 s{sTmp}, s{sTmp}, s{sTmp2}")
    A(f"v_lshrrev_b32 v{vT0}, 3, v{vLane}")
    A(f"v_mul_u32_u24 v{vT0}, 1280, v{vT0}")
    A(f"v_and_b32 v{vT1}, 7, v{vLane}")
    A(f"v_lshl_add_u32 v{vT0}, v{vT1}, 4, v{vT0}")
    for i in range(4):
        A(f"s_add_u32 m0, {lds}, {i*1024}")
        A("s_nop 0")
        A(f"buffer_load_dwordx4 v{vT0}, {srd(S_R)}, s{sTmp} offen lds")
        A(f"s_add_u32 s{sTmp}, s{sTmp}, {8*1280}")


def w2_unit_out(A, lds, F):
    w2_unit_decode(A)
    A(f"v_bfe_u32 v{vT0}, v{vLane}, 2, 2")
    A(f"v_lshlrev_b32 v{vT0}, 7, v{vT0}")
    A(f"v_and_b32 v{vT1}, 3, v{vLane}")
    A(f"v_lshl_add_u32 v{vT0}, v{vT1}, 3, v{vT0}")
    A(f"v_lshrrev_b32 v{vT1}, 4, v{vLane}")
    A(f"s_cmp_lt_u32 s{sUks}, 54")
    A(f"s_cselect_b32 s{sTmp}, 10, 9")
    A(f"s_movk_i32 s{sTmp2}, 512")
    A(f"s_cselect_b32 s{sTmp2}, s{sTmp2}, 2048")
    A(f"v_lshlrev_b32 v{vT1}, s{sTmp}, v{vT1}")
    A(f"v_add3_u32 v{vT0}, v{vT0}, v{vT1}, {lds}")
    A(f"v_add_u32 v{vT1}, s{sTmp2}, v{vT0}")
    for tau in range(4):
        A(f"ds_read_b64_tr_b16 {vr(F(tau), 2)}, v{vT0} offset:{tau*32}")
        A(f"ds_read_b64_tr_b16 {vr(F(tau)+2, 2)}, v{vT1} offset:{tau*32}")
    A(f"v_lshlrev_b32 v{vT2}, 4, v{vLane}")
    A("s_waitcnt lgkmcnt(0)")
    for tau in range(4):
        A(f"s_lshl_b32 s{sTmp}, s{sUL}, 2")
        A(f"s_add_u32 s{sTmp}, s{sTmp}, {tau}")
        A(f"s_mul_i32 s{sTmp2}, s{sTmp}, 205")
        A(f"s_lshr_b32 s{sTmp2}, s{sTmp2}, 10")
        A(f"s_mul_i32 s{sTmp3}, s{sTmp2}, {74*5-5}")
        A(f"s_add_u32 s{sTmp}, s{sTmp}, s{sTmp3}")
        A(f"s_mul_i32 s{sTmp3}, s{sUks}, 5")
        A(f"s_add_u32 s{sTmp}, s{sTmp}, s{sTmp3}")
        A(f"s_lshl_b32 s{sTmp}, s{sTmp}, 10")
        A(f"s_add_u32 s{sTmp}, s{sTmp}, {WS_W2}")
        A(f"s_cmp_lt_u32 s{sU}, 740")
        A(f"s_cselect_b32 s{sTmp}, s{sTmp}, {OOB}")
        A(f"buffer_store_dwordx4 {vr(F(tau))}, v{vT2}, {srd(S_WS)}, s{sTmp} offen sc1")


def k1_epi_g(A, acc):
    c = vBUF
    cs = vBUF + 8
    t = vBUF + 40
    o = vBUF + 48
    A(f"v_lshrrev_b32 v{vT0}, 5, v{vLane}")
    A(f"v_lshlrev_b32 v{vT0}, 4, v{vT0}")
    A(f"s_mul_i32 s{sTmp}, s{sNW}, 384")
    A(f"s_add_u32 s{sTmp}, s{sTmp}, {MISC_LDS}")
    A(f"v_add_u32 v{vT0}, s{sTmp}, v{vT0}")
    A(f"v_and_b32 v{vT1}, 31, v{vLane}")
    A(f"s_lshl_b32 s{sTmp}, s{sMW}, 9")
    A(f"s_add_u32 s{sTmp}, s{sTmp}, {MISC_LDS+2048}")
    A(f"v_lshl_add_u32 v{vT1}, v{vT1}, 3, s{sTmp}")
    for mt in range(2):
        A(f"ds_read_b64 {vr(c+4*mt, 2)}, v{vT1} offset:{mt*256}")
    for q in range(4):
        A(f"ds_read_b128 {vr(cs+4*q)}, v{vT0} offset:{q*32}")
    A("s_waitcnt lgkmcnt(4)")
    for mt in range(2):
        mu, v, k1, k3 = c + 4 * mt, c + 4 * mt + 1, c + 4 * mt + 2, c + 4 * mt + 3
        A(f"v_rsq_f32 v{t}, v{v}")
        A(f"v_mul_f32 v{k1}, {f32(GC1)}, v{t}")
        A(f"v_mul_f32 v{t+1}, v{t}, v{t}")
        A(f"v_mul_f32 v{t+1}, v{t+1}, v{t}")
        A(f"v_mul_f32 v{k3}, {f32(GC2)}, v{t+1}")
    A(f"v_bfe_u32 v{vT1}, v{vLane}, 4, 1")
    A(f"v_lshlrev_b32 v{vT1}, 10, v{vT1}")
    A(f"v_lshrrev_b32 v{vT2}, 5, v{vLane}")
    A(f"v_lshl_add_u32 v{vT1}, v{vT2}, 8, v{vT1}")
    A(f"v_and_b32 v{vT2}, 15, v{vLane}")
    A(f"v_lshl_add_u32 v{vT1}, v{vT2}, 4, v{vT1}")
    n = 0
    for a in range(3):
        csa = cs + 16 * (a % 2)
        if a < 2:
            for q in range(4):
                A(f"ds_read_b128 {vr(cs+16*((a+1)%2)+4*q)}, v{vT0} offset:{(a+1)*128+q*32}")
            A("s_waitcnt lgkmcnt(4)")
        else:
            A("s_waitcnt lgkmcnt(0)")
        A(f"s_mul_i32 s{sTmp}, s{sCG}, 12")
        A(f"s_mul_i32 s{sTmp2}, s{sNW}, 3")
        A(f"s_add_u32 s{sTmp}, s{sTmp}, s{sTmp2}")
        A(f"s_add_u32 s{sTmp}, s{sTmp}, {a}")
        A(f"s_lshl_b32 s{sTmp2}, s{sRB}, 1")
        A(f"s_add_u32 s{sTmp2}, s{sTmp2}, s{sMW}")
        A(f"s_mul_i32 s{sTmp2}, s{sTmp2}, 54")
        A(f"s_lshr_b32 s{sTmp3}, s{sTmp}, 1")
        A(f"s_add_u32 s{sTmp2}, s{sTmp2}, s{sTmp3}")
        A(f"s_lshl_b32 s{sTmp2}, s{sTmp2}, 12")
        A(f"s_and_b32 s{sTmp}, s{sTmp}, 1")
        A(f"s_lshl_b32 s{sTmp}, s{sTmp}, 9")
        A(f"s_add_u32 s{sTmp}, s{sTmp}, s{sTmp2}")
        C = lambda mt, k: c + 4 * mt + k
        MP = [(mt, i) for mt in range(2) for i in range(0, 8, 2)]
        D = lambda mt: acc(mt, a)
        Tm = lambda mt: t + 8 * mt
        for mt, i in MP:
            pk_fma(A, D(mt) + i, ("b", C(mt, 0)), ("p", csa + i), ("p", D(mt) + i), neg_a=True)
        for mt, i in MP:
            pk_mul(A, Tm(mt) + i, ("p", D(mt) + i), ("p", D(mt) + i))
        for mt, i in MP:
            pk_fma(A, Tm(mt) + i, ("p", Tm(mt) + i), ("b", C(mt, 3)), ("b", C(mt, 2)))
        for mt, i in MP:
            pk_mul(A, Tm(mt) + i, ("p", Tm(mt) + i), ("p", D(mt) + i))
        for mt, i in MP:
            A(f"v_exp_f32 v{Tm(mt)+i}, v{Tm(mt)+i}")
            A(f"v_exp_f32 v{Tm(mt)+i+1}, v{Tm(mt)+i+1}")
            pk_fma(A, D(mt) + 8 + i, ("b", C(mt, 0)), ("p", csa + 8 + i), ("p", D(mt) + 8 + i), neg_a=True)
        for mt, i in MP:
            pk_fma(A, Tm(mt) + i, ("p", Tm(mt) + i), ("b", C(mt, 1)), ("b", C(mt, 1)))
        for mt, i in MP:
            A(f"v_rcp_f32 v{Tm(mt)+i}, v{Tm(mt)+i}")
            A(f"v_rcp_f32 v{Tm(mt)+i+1}, v{Tm(mt)+i+1}")
            pk_mul(A, D(mt) + i, ("p", D(mt) + i), ("p", D(mt) + 8 + i))
        for mt, i in MP:
            pk_mul(A, D(mt) + i, ("p", D(mt) + i), ("p", Tm(mt) + i))
        for mt in range(2):
            ob = D(mt) + 8
            for i in range(4):
                A(f"v_cvt_pk_bf16_f32 v{ob+i}, v{D(mt)+2*i}, v{D(mt)+2*i+1}")
            A(f"buffer_store_dwordx4 {vr(ob)}, v{vT1}, {srd(S_WS)}, s{sTmp} offen offset:{mt*2048} sc1")


acc16 = lambda t, a, kw: vACC + 32 * a + 16 * kw + 4 * t


def k1_epi_g16(A, acc):
    c = vBUF
    cs = vBUF + 16
    t = vBUF + 40
    A(f"v_lshrrev_b32 v{vT0}, 4, v{vLane}")
    A(f"v_lshlrev_b32 v{vT0}, 4, v{vT0}")
    A(f"s_mul_i32 s{sTmp}, s{sNW}, 384")
    A(f"s_add_u32 s{sTmp}, s{sTmp}, {MISC_LDS}")
    A(f"v_add_u32 v{vT0}, s{sTmp}, v{vT0}")
    A(f"v_and_b32 v{vT1}, 15, v{vLane}")
    A(f"s_lshl_b32 s{sTmp}, s{sMW}, 9")
    A(f"s_add_u32 s{sTmp}, s{sTmp}, {MISC_LDS+2048}")
    A(f"v_lshl_add_u32 v{vT1}, v{vT1}, 3, s{sTmp}")
    for m in range(4):
        A(f"ds_read_b64 {vr(c+4*m, 2)}, v{vT1} offset:{m*128}")
    for p in range(6):
        A(f"ds_read_b128 {vr(cs+4*p)}, v{vT0} offset:{p*64}")
    A("s_waitcnt lgkmcnt(6)")
    for m in range(4):
        A(f"v_rsq_f32 v{t+m}, v{c+4*m+1}")
    for m in range(4):
        A(f"v_mul_f32 v{c+4*m+2}, {f32(GC1)}, v{t+m}")
        A(f"v_mul_f32 v{t+4+m}, v{t+m}, v{t+m}")
    for m in range(4):
        A(f"v_mul_f32 v{t+4+m}, v{t+4+m}, v{t+m}")
    for m in range(4):
        A(f"v_mul_f32 v{c+4*m+3}, {f32(GC2)}, v{t+4+m}")
    A(f"v_bfe_u32 v{vT1}, v{vLane}, 4, 1")
    A(f"v_lshlrev_b32 v{vT1}, 10, v{vT1}")
    A(f"v_lshrrev_b32 v{vT2}, 5, v{vLane}")
    A(f"v_lshl_add_u32 v{vT1}, v{vT2}, 8, v{vT1}")
    A(f"v_and_b32 v{vT2}, 15, v{vLane}")
    A(f"v_lshl_add_u32 v{vT1}, v{vT2}, 4, v{vT1}")
    A("s_waitcnt lgkmcnt(0)")
    for a in range(3):
        A(f"s_mul_i32 s{sTmp}, s{sCG}, 12")
        A(f"s_mul_i32 s{sTmp2}, s{sNW}, 3")
        A(f"s_add_u32 s{sTmp}, s{sTmp}, s{sTmp2}")
        A(f"s_add_u32 s{sTmp}, s{sTmp}, {a}")
        A(f"s_lshl_b32 s{sTmp2}, s{sRB}, 1")
        A(f"s_add_u32 s{sTmp2}, s{sTmp2}, s{sMW}")
        A(f"s_mul_i32 s{sTmp2}, s{sTmp2}, 54")
        A(f"s_lshr_b32 s{sTmp3}, s{sTmp}, 1")
        A(f"s_add_u32 s{sTmp2}, s{sTmp2}, s{sTmp3}")
        A(f"s_lshl_b32 s{sTmp2}, s{sTmp2}, 12")
        A(f"s_and_b32 s{sTmp}, s{sTmp}, 1")
        A(f"s_lshl_b32 s{sTmp}, s{sTmp}, 9")
        A(f"s_add_u32 s{sTmp}, s{sTmp}, s{sTmp2}")
        C = lambda m, k: c + 4 * m + k
        MP = [(m, i) for m in range(4) for i in (0, 2)]
        Gt = lambda m: acc16(m, a, 0)
        Up = lambda m: acc16(m, a, 1)
        Tm = lambda m: t + 4 * m
        cg_, cu_ = cs + 8 * a, cs + 8 * a + 4
        for m, i in MP:
            pk_fma(A, Gt(m) + i, ("b", C(m, 0)), ("p", cg_ + i), ("p", Gt(m) + i), neg_a=True)
        for m, i in MP:
            pk_mul(A, Tm(m) + i, ("p", Gt(m) + i), ("p", Gt(m) + i))
        for m, i in MP:
            pk_fma(A, Tm(m) + i, ("p", Tm(m) + i), ("b", C(m, 3)), ("b", C(m, 2)))
        for m, i in MP:
            pk_mul(A, Tm(m) + i, ("p", Tm(m) + i), ("p", Gt(m) + i))
        for m, i in MP:
            A(f"v_exp_f32 v{Tm(m)+i}, v{Tm(m)+i}")
            A(f"v_exp_f32 v{Tm(m)+i+1}, v{Tm(m)+i+1}")
            pk_fma(A, Up(m) + i, ("b", C(m, 0)), ("p", cu_ + i), ("p", Up(m) + i), neg_a=True)
        for m, i in MP:
            pk_fma(A, Tm(m) + i, ("p", Tm(m) + i), ("b", C(m, 1)), ("b", C(m, 1)))
        for m, i in MP:
            A(f"v_rcp_f32 v{Tm(m)+i}, v{Tm(m)+i}")
            A(f"v_rcp_f32 v{Tm(m)+i+1}, v{Tm(m)+i+1}")
            pk_mul(A, Gt(m) + i, ("p", Gt(m) + i), ("p", Up(m) + i))
        for m, i in MP:
            pk_mul(A, Gt(m) + i, ("p", Gt(m) + i), ("p", Tm(m) + i))
        for pr in range(2):
            ob = Up(2 * pr)
            for h in range(2):
                A(f"v_cvt_pk_bf16_f32 v{ob+2*h}, v{Gt(2*pr+h)}, v{Gt(2*pr+h)+1}")
                A(f"v_cvt_pk_bf16_f32 v{ob+2*h+1}, v{Gt(2*pr+h)+2}, v{Gt(2*pr+h)+3}")
        for pr in range(2):
            ob = Up(2 * pr)
            A(f"v_permlane16_swap_b32 v{ob}, v{ob+2}")
            A(f"v_permlane16_swap_b32 v{ob+1}, v{ob+3}")
        for pr in range(2):
            A(f"buffer_store_dwordx4 {vr(Up(2*pr))}, v{vT1}, {srd(S_WS)}, s{sTmp} offen offset:{pr*2048} sc1")


def pk(r, bc=False):
    return f"v[{r}:{r+1}]"


def pko(*bc):
    lo = ",".join("1" if b == 1 else "0" for b in bc)
    hi = ",".join("0" if b == 0 else "1" for b in bc)
    return f"op_sel:[{lo}] op_sel_hi:[{hi}]"


def opnd(x):
    k, r = x
    if k == "p":
        return pk(r), None
    return pk(r & ~1), r & 1


def pk_fma(A, d, a, b, c, neg_a=False):
    (ta, fa), (tb_, fb), (tc, fc) = opnd(a), opnd(b), opnd(c)
    n = " neg_lo:[1,0,0] neg_hi:[1,0,0]" if neg_a else ""
    A(f"v_pk_fma_f32 {pk(d)}, {ta}, {tb_}, {tc} {pko(fa, fb, fc)}{n}")


def pk_mul(A, d, a, b, op="mul"):
    (ta, fa), (tb_, fb) = opnd(a), opnd(b)
    A(f"v_pk_{op}_f32 {pk(d)}, {ta}, {tb_} {pko(fa, fb)}")


def phi_block(A, d, n, t, mu, cs, r, rl, eps, mixed=None):
    P = range(0, n, 2)
    ea, em, eb = mixed if mixed else (eps, eps, None)
    for i in P:
        pk_fma(A, d + i, mu(i), cs(i), ("p", d + i), neg_a=True)
    for i in P:
        if mixed:
            pk_fma(A, t + i, ("p", d + i), rl(i), ("b", eb))
        else:
            pk_mul(A, t + i, ("p", d + i), rl(i))
    for i in P:
        A(f"v_exp_f32 v{t+i}, v{t+i} clamp")
        A(f"v_exp_f32 v{t+i+1}, v{t+i+1} clamp")
        pk_fma(A, d + i, ("p", d + i), r(i), ("b", ea))
    for i in range(n):
        A(f"v_max_f32 v{d+i}, v{d+i}, v{em}")
    for i in P:
        pk_mul(A, d + i, ("p", d + i), ("p", t + i), op="add")


def k1_epi_q(A, acc):
    c = vBUF
    cs = vBUF + 8
    t = vBUF + 40
    o = vBUF + 56
    mu, r, rl, eps = c, c + 1, c + 2, c + 3
    A(f"v_lshrrev_b32 v{vT0}, 5, v{vLane}")
    A(f"v_lshlrev_b32 v{vT0}, 4, v{vT0}")
    A(f"s_mul_i32 s{sTmp}, s{sNW}, 640")
    A(f"s_add_u32 s{sTmp}, s{sTmp}, {MISC_LDS}")
    A(f"v_add_u32 v{vT0}, s{sTmp}, v{vT0}")
    A(f"v_and_b32 v{vT1}, 31, v{vLane}")
    A(f"s_lshl_b32 s{sTmp}, s{sMW}, 8")
    A(f"s_add_u32 s{sTmp}, s{sTmp}, {MISC_LDS+2048}")
    A(f"v_lshl_add_u32 v{vT1}, v{vT1}, 3, s{sTmp}")
    A(f"ds_read_b64 {vr(mu, 2)}, v{vT1}")
    for q in range(4):
        A(f"ds_read_b128 {vr(cs+4*q)}, v{vT0} offset:{q*32}")
    A("s_waitcnt lgkmcnt(4)")
    A(f"v_rsq_f32 v{r}, v{r}")
    A(f"v_mov_b32 v{eps}, {f32(1e-6)}")
    A(f"v_mul_f32 v{rl}, {f32(LOG2E)}, v{r}")
    A(f"v_bfe_u32 v{vT1}, v{vLane}, 4, 1")
    A(f"v_lshlrev_b32 v{vT1}, 10, v{vT1}")
    A(f"v_lshrrev_b32 v{vT2}, 5, v{vLane}")
    A(f"v_lshl_add_u32 v{vT1}, v{vT2}, 8, v{vT1}")
    A(f"v_and_b32 v{vT2}, 15, v{vLane}")
    A(f"v_lshl_add_u32 v{vT1}, v{vT2}, 4, v{vT1}")
    A(f"s_lshl_b32 s{sTmp}, s{sRB}, 1")
    A(f"s_lshr_b32 s{sTmp2}, s{sMW}, 1")
    A(f"s_add_u32 s{sTmp}, s{sTmp}, s{sTmp2}")
    A(f"s_mul_i32 s{sTmp}, s{sTmp}, 20")
    A(f"s_sub_u32 s{sTmp2}, s{sCG}, 13")
    A(f"s_mul_i32 s{sTmp2}, s{sTmp2}, 10")
    A(f"s_add_u32 s{sTmp}, s{sTmp}, s{sTmp2}")
    A(f"s_mul_i32 s{sTmp2}, s{sNW}, 5")
    A(f"s_add_u32 s{sTmp}, s{sTmp}, s{sTmp2}")
    A(f"s_lshl_b32 s{sTmp}, s{sTmp}, 12")
    A(f"s_and_b32 s{sTmp2}, s{sMW}, 1")
    A(f"s_lshl_b32 s{sTmp2}, s{sTmp2}, 11")
    A(f"s_add_u32 s{sTmp}, s{sTmp}, s{sTmp2}")
    A(f"s_add_u32 s{sTmp}, s{sTmp}, {WS_PQ}")
    for a in range(5):
        csa = cs + 16 * (a % 2)
        if a < 4:
            for q in range(4):
                A(f"ds_read_b128 {vr(cs+16*((a+1)%2)+4*q)}, v{vT0} offset:{(a+1)*128+q*32}")
            A("s_waitcnt lgkmcnt(4)")
        else:
            A("s_waitcnt lgkmcnt(0)")
        d = acc(0, a)
        phi_block(A, d, 16, t, lambda i: ("b", mu), lambda i: ("p", csa + i), lambda i: ("b", r), lambda i: ("b", rl), eps)
        ob = o + 8 * (a % 2)
        for i in range(8):
            A(f"v_cvt_pk_bf16_f32 v{ob+i}, v{d+2*i}, v{d+2*i+1}")
        A(f"buffer_store_dwordx4 {vr(ob)}, v{vT1}, {srd(S_WS)}, s{sTmp} offen sc1")
        A(f"buffer_store_dwordx4 {vr(ob+4)}, v{vT1}, {srd(S_WS)}, s{sTmp} offen offset:512 sc1")
        A(f"s_add_u32 s{sTmp}, s{sTmp}, 4096")


KV_PAIRS = [(0, 2), (0, 3), (1, 3), (1, 4), (2, 4)]
KV_Q = [[0, 1, 2], [0, 1, 2, 3], [0, 1, 2, 3], [1, 2, 3], [0, 1]]
KV_AD = 232
KV_SLAB = [0, 14336, 135168, 149504]
KV_DUMMY = 28688


def kv_addr_setup(A):
    e, he, d0, dm = vT0, vT1, vT2, vT3
    t = vBUF + 24
    A(f"s_mul_i32 s{sTmp3}, s{sMW}, 14336")
    A(f"s_cmp_ge_u32 s{sMW}, 2")
    A(f"s_cselect_b32 s{sTmp}, {135168 - 2*14336}, 0")
    A(f"s_add_u32 s{sTmp3}, s{sTmp3}, s{sTmp}")
    A(f"s_mul_i32 s{sTmp}, s{sNW}, 6720")
    A(f"s_add_u32 s{sTmp3}, s{sTmp3}, s{sTmp}")
    A(f"v_lshlrev_b32 v{dm}, 4, v{vLane}")
    A(f"v_add_u32 v{dm}, {KV_DUMMY}, v{dm}")
    A(f"v_lshrrev_b32 v{d0}, 5, v{vLane}")
    A(f"v_lshlrev_b32 v{d0}, 2, v{d0}")
    for n, (a, b) in enumerate(KV_PAIRS):
        A(f"v_and_b32 v{e}, 31, v{vLane}")
        A(f"v_add_u32 v{e}, {32*b - 80 + 100}, v{e}")
        A(f"v_mul_u32_u24 v{he}, 205, v{e}")
        A(f"v_lshrrev_b32 v{he}, 12, v{he}")
        A(f"v_mul_u32_u24 v{e}, 80, v{e}")
        A(f"v_add_u32 v{e}, s{sTmp3}, v{e}")
        for q in KV_Q[n]:
            a0 = KV_AD + 4 * n + q
            A(f"v_add_u32 v{a0}, {32*a + 8*q + 100}, v{d0}")
            A(f"v_mul_u32_u24 v{t}, 205, v{a0}")
            A(f"v_lshrrev_b32 v{t}, 12, v{t}")
            A(f"v_cmp_eq_u32 vcc, v{t}, v{he}")
            A(f"v_lshl_add_u32 v{a0}, v{a0}, 2, v{e}")
            A(f"v_subrev_u32 v{a0}, {80*100 + 4*100}, v{a0}")
            A(f"v_cndmask_b32 v{a0}, v{dm}, v{a0}, vcc")
    A(f"v_and_b32 v{e}, 15, v{vLane}")
    A(f"v_lshrrev_b32 v{d0}, 4, v{vLane}")
    A(f"v_lshlrev_b32 v{d0}, 2, v{d0}")
    A(f"v_lshl_add_u32 v{d0}, v{e}, 4, v{d0}")
    for a in range(3):
        az = KV_AD + 20 + a
        A(f"v_add_u32 v{az}, {32*a}, v{d0}")
        A(f"v_mul_u32_u24 v{t}, 205, v{az}")
        A(f"v_lshrrev_b32 v{t}, 12, v{t}")
        A(f"v_mul_u32_u24 v{t}, 1600, v{t}")
        A(f"v_lshl_add_u32 v{az}, v{az}, 2, v{t}")
        A(f"v_add_u32 v{az}, s{sTmp3}, v{az}")
        A(f"v_add_u32 v{az}, 1600, v{az}")
        A(f"v_cmp_gt_u32 vcc, {2 if a < 2 else 1}, v{e}")
        A(f"v_cndmask_b32 v{az}, v{dm}, v{az}, vcc")


def k1_epi_kv(A, acc):
    mu = vBUF
    rr = vBUF + 16
    rl = vBUF + 32
    t = vBUF + 48
    cs = vBUF + 80
    eps = vBUF + 86
    ea, em, eb = vBUF + 87, vBUF + 88, vBUF + 89
    A(f"v_and_b32 v{vT0}, 31, v{vLane}")
    A(f"v_cmp_gt_u32 vcc, 16, v{vT0}")
    A(f"v_lshlrev_b32 v{vT0}, 2, v{vT0}")
    A(f"s_mul_i32 s{sTmp}, s{sNW}, 640")
    A(f"s_add_u32 s{sTmp}, s{sTmp}, {KV_CS}")
    A(f"v_add_u32 v{vT1}, s{sTmp}, v{vT0}")
    A(f"v_lshrrev_b32 v{vT2}, 5, v{vLane}")
    A(f"s_lshl_b32 s{sTmp}, s{sMW}, 7")
    A(f"s_add_u32 s{sTmp}, s{sTmp}, {KV_ST}")
    A(f"v_lshl_add_u32 v{vT2}, v{vT2}, 4, s{sTmp}")
    for a in range(5):
        A(f"ds_read_b32 v{cs+a}, v{vT1} offset:{a*128}")
    for reg, off in ((mu, 0), (rr, 512), (rl, 1536)):
        for q in range(4):
            A(f"ds_read_b128 {vr(reg+4*q)}, v{vT2} offset:{off+q*32}")
    A(f"v_mov_b32 v{eps}, {f32(1e-6)}")
    A(f"v_mov_b32 v{em}, 0xff800000")
    A(f"v_cndmask_b32 v{ea}, 0, v{eps}, vcc")
    A(f"v_cndmask_b32 v{eb}, v{em}, v{ea}, vcc")
    A(f"v_cndmask_b32 v{em}, v{em}, v{eps}, vcc")
    A(f"v_min_f32 v{eb}, 0, v{eb}")
    A("s_waitcnt lgkmcnt(4)")
    cstamp(A, 1)
    op = lambda a, h: acc(0, a) + 4 * h

    def pack(a):
        d = acc(0, a)
        for i in range(8):
            A(f"v_cvt_pk_bf16_f32 v{d+i}, v{d+2*i}, v{d+2*i+1}")

    def plain(a, dst):
        d = acc(0, a)
        for i in range(0, 16, 2):
            pk_fma(A, dst + i, ("p", mu + i), ("b", cs + a), ("p", d + i), neg_a=True)
        for i in range(0, 16, 2):
            pk_mul(A, dst + i, ("p", dst + i), ("p", rr + i))

    def phi(a, mixed=None):
        phi_block(A, acc(0, a), 16, t, lambda i: ("p", mu + i), lambda i: ("b", cs + a), lambda i: ("p", rr + i), lambda i: ("p", rl + i), eps, mixed)
    for a in (3, 4):
        plain(a, acc(0, a))
        pack(a)
    A("s_waitcnt lgkmcnt(0)")
    phi(2, (ea, em, eb))
    pack(2)
    for a in (0, 1):
        phi(a)
        pack(a)
    cstamp(A, 2)
    D = lambda n: vBUF + 16 * n
    Z = lambda a: vBUF + 80 + 4 * a
    for h in range(2):
        for n, (a, b) in enumerate(KV_PAIRS):
            A(f"v_mfma_f32_32x32x16_bf16 {vr(D(n),16)}, {vr(op(a,h))}, {vr(op(b,h))}, {vr(D(n),16) if h else 0}")
        for a in range(3):
            A(f"v_mfma_f32_16x16x32_bf16 {vr(Z(a))}, {vr(op(a,h))}, {vr(vSel)}, {vr(Z(a)) if h else 0}")
    cstamp(A, 3)
    A(f"s_cmp_lt_u32 s{sWave}, 4\ns_cbranch_scc1 L_K_nb1\ns_barrier\nL_K_nb1:")
    cstamp(A, 4)
    for n in range(5):
        for q in KV_Q[n]:
            A(f"ds_write_b128 v{KV_AD+4*n+q}, {vr(D(n)+4*q)}")
    for a in range(3):
        A(f"ds_write_b128 v{KV_AD+20+a}, {vr(Z(a))}")
    sSlab = 4
    A(f"s_sub_u32 s{sSlab}, s{sCG}, 9")
    A(f"s_mul_i32 s{sSlab}, s{sSlab}, 13440")
    A(f"s_add_u32 s{sSlab}, s{sSlab}, {WS_KVA}")
    A(f"v_lshlrev_b32 v{vT0}, 2, v0")
    A(f"v_add_u32 v{vT1}, {KV_SLAB[2]}, v{vT0}")
    A(f"v_cmp_gt_u32 vcc, {3360-6*512}, v0")
    A(f"v_mov_b32 v{vT2}, {OOB}")
    A(f"v_cndmask_b32 v{vT2}, v{vT2}, v{vT0}, vcc")
    A("s_waitcnt lgkmcnt(0)")
    cstamp(A, 5)
    A(f"s_cmp_ge_u32 s{sWave}, 4\ns_cbranch_scc1 L_K_nb2\ns_barrier\nL_K_nb2:")
    A("s_barrier")
    cstamp(A, 6)
    R = vACC
    for j in range(7):
        for m in range(4):
            A(f"ds_read_b32 v{R+4*j+m}, v{vT0 if m < 2 else vT1} offset:{j*2048 + (m%2)*14336}")
        if j >= 2:
            k = j - 2
            A("s_waitcnt lgkmcnt(8)")
            kv_atomic(A, R, k, sSlab)
    for k in (5, 6):
        A(f"s_waitcnt lgkmcnt({4*(6-k)})")
        kv_atomic(A, R, k, sSlab)


def kv_atomic(A, R, k, sSlab):
    A(f"v_add_f32 v{R+4*k}, v{R+4*k}, v{R+4*k+1}")
    A(f"v_add_f32 v{R+4*k+2}, v{R+4*k+2}, v{R+4*k+3}")
    A(f"v_add_f32 v{R+4*k}, v{R+4*k}, v{R+4*k+2}")
    A(f"buffer_atomic_add_f32 v{R+4*k}, v{vT0 if k < 6 else vT2}, {srd(S_WS)}, s{sSlab} offen offset:{(k%2)*2048}")
    if k % 2 == 1:
        A(f"s_add_u32 s{sSlab}, s{sSlab}, 4096")


def k1_aux(A):
    if OPT["CODEWARM"] == 1:
        A("s_getpc_b64 s[10:11]")
        A.label("L_pc")
        A(f"s_sub_u32 s10, s10, L_pc-{NAME}_kernel")
        A("s_subb_u32 s11, s11, 0")
        A(f"v_lshlrev_b32 v{vT0}, 7, v0")
        A(f"v_min_u32 v{vT0}, L_code_end-{NAME}_kernel-4, v{vT0}")
        A(f"global_load_dword v{vACC+8}, v{vT0}, s[10:11]")
    if OPT["TLBWARM"]:
        g = OPT["TLBWARM"]
        mk_srd(A, S_T, P_OUT, 2048 * 1280)
        A(f"v_lshlrev_b32 v{vT0}, {g}, v0")
        A(f"buffer_load_dword v{vACC+9}, v{vT0}, {srd(S_WS)}, 0 offen sc1")
        A(f"buffer_load_dword v{vACC+10}, v{vT0}, {srd(S_T)}, 0 offen sc1")
    for i in range(4):
        A(f"v_mov_b32 v{vACC+i}, 0")
    A(f"v_lshlrev_b32 v{vT0}, 4, v0")
    A(f"s_mul_i32 s{sTmp}, s{sRB}, 3360")
    A(f"s_add_u32 s{sTmp}, s{sTmp}, {WS_KVA}")
    A(f"v_add_u32 v{vT0}, s{sTmp}, v{vT0}")
    A(f"v_mov_b32 v{vT2}, {OOB}")
    A(f"v_cmp_gt_u32 vcc, 210, v0")
    A(f"v_cndmask_b32 v{vT0}, v{vT2}, v{vT0}, vcc")
    A(f"s_cmp_lg_u32 s{sWave}, 7")
    A("s_cbranch_scc1 L_A_z")
    A(f"s_lshl_b32 s{sTmp}, s{sRB}, 8")
    A(f"s_add_u32 s{sTmp}, s{sTmp}, {WS_FL}")
    A(f"v_writelane_b32 v{vT0}, s{sTmp}, 0")
    A(f"s_add_u32 s{sTmp}, s{sTmp}, {FL_ROW}")
    A(f"v_writelane_b32 v{vT0}, s{sTmp}, 3")
    A(f"s_lshl_b32 s{sTmp}, s{sRB}, 9")
    A(f"s_add_u32 s{sTmp}, s{sTmp}, {WS_FL + FL_KV}")
    A(f"v_writelane_b32 v{vT0}, s{sTmp}, 1")
    A(f"s_add_u32 s{sTmp}, s{sTmp}, 256")
    A(f"v_writelane_b32 v{vT0}, s{sTmp}, 2")
    A.label("L_A_z")
    A(f"buffer_store_dwordx4 {vr(vACC)}, v{vT0}, {srd(S_WS)}, 0 offen sc1")
    A(f"s_cmp_lg_u32 s{sWave}, 7")
    A("s_cbranch_scc1 L_A_z2")
    A("s_waitcnt vmcnt(0)")
    A(f"v_mov_b32 v{vT0}, {OOB}")
    A(f"v_writelane_b32 v{vT0}, 0, 0")
    A(f"v_mov_b32 v{vT1}, 1")
    A(f"buffer_atomic_add v{vT1}, v{vT0}, {srd(S_DBG)}, 0 offen sc1")
    A.label("L_A_z2")
    A(f"s_lshl_b32 s{sUw}, s{sRB}, 3")
    A(f"s_add_u32 s{sUw}, s{sUw}, s{sWave}")
    A(f"s_add_u32 s{sUw}, s{sUw}, 480")
    A(f"s_mul_i32 s{sUl}, s{sWave}, 12288")
    for i in range(3):
        A(f"s_add_u32 s{sU}, s{sUw}, {128*i}")
        A(f"s_add_u32 s9, s{sUl}, {4096*i}")
        w2_unit_dma(A, "s9")
    A("s_waitcnt vmcnt(12)")
    k1_stats(A, "X")
    for i in range(3):
        A("s_waitcnt vmcnt(9)")
        A(f"s_add_u32 s{sU}, s{sUw}, {128*i}")
        A(f"s_add_u32 s9, s{sUl}, {4096*i}")
        w2_unit_out(A, "s9", lambda t: vACC + 16 + 16 * i + 4 * t)
    A("s_waitcnt vmcnt(0)")
    A("s_barrier")
    stamp(A, 9, 0)
    A(f"s_cmp_lg_u32 s{sWave}, 0")
    A("s_cbranch_scc1 L_A_w")
    k1_publish(A)
    A(f"s_mov_b32 s{sSpin}, 0")
    wait_zeroed(A, "L_A_wz", False)
    poll_addr(A)
    A.label("L_A_poll")
    A("s_sleep 32")
    A(f"buffer_load_dword v{vPoll}, v{vPa}, {srd(S_WS)}, 0 offen sc1")
    A("s_waitcnt vmcnt(0)")
    poll_cmp(A)
    A(f"s_add_u32 s{sSpin}, s{sSpin}, 1")
    A(f"s_cmp_gt_u32 s{sSpin}, {SPIN_MAX}")
    A("s_cbranch_scc1 L_A_w")
    A(f"s_cmp_lg_u64 vcc, 0")
    A("s_cbranch_scc1 L_A_poll")
    A.label("L_A_w")
    A("s_barrier")
    stamp(A, 3, 0)
    p2_ids(A)
    A(f"s_mov_b32 s{sWoDone}, 0")
    A(f"v_mov_b32 v{vSigA}, {OOB}")
    A(f"v_mov_b32 v{vSigV}, 0")
    A("s_branch L_p2")


def kernel1(A):
    A(".p2align 8")
    A.label(NAME + "_kernel")
    A("s_cmp_ge_u32 s2, 256")
    A("s_cbranch_scc1 L_k1_exit")
    if OPT["XMAP"]:
        A("s_lshr_b32 s3, s2, 5")
        A("s_and_b32 s2, s2, 31")
        A("s_lshl_b32 s2, s2, 3")
        A("s_or_b32 s2, s2, s3")
    load_ptrs(A)
    if OPT["CODEWARM"] == 2:
        A("s_getpc_b64 s[10:11]")
        A.label("L_pc")
        A(f"s_sub_u32 s10, s10, L_pc-{NAME}_kernel")
        A("s_subb_u32 s11, s11, 0")
        A("s_lshr_b32 s4, s2, 3")
        A("s_lshl_b32 s4, s4, 7")
        A(f"v_lshl_add_u32 v{vT0}, v0, 12, s4")
        A(f"v_min_u32 v{vT0}, L_code_end-{NAME}_kernel-4, v{vT0}")
        A("v_cmp_gt_u32 vcc, 16, v0")
        A("s_and_saveexec_b64 s[12:13], vcc")
        A("s_cbranch_execz L_nocw")
        A(f"global_load_dword v255, v{vT0}, s[10:11]")
        A.label("L_nocw")
        A("s_mov_b64 exec, s[12:13]")
    A(f"v_and_b32 v{vLane}, 63, v0")
    A(f"v_lshrrev_b32 v{vT0}, 6, v0")
    A(f"v_readfirstlane_b32 s{sWave}, v{vT0}")
    A("s_and_b32 s3, s2, 7")
    A("s_lshr_b32 s4, s2, 3")
    A("s_lshr_b32 s5, s3, 2")
    A("s_and_b32 s6, s3, 3")
    A("s_mul_i32 s7, s6, 30")
    A("s_add_u32 s7, s7, s4")
    A(f"s_lshr_b32 s{sCG}, s7, 3")
    if OPT["CGPERM"]:
        perm = [0, 9, 1, 13, 2, 10, 3, 4, 5, 11, 6, 14, 7, 12, 8, 15]
        tab = sum(p << (4 * i) for i, p in enumerate(perm))
        A(f"s_mov_b32 s10, {tab & 0xffffffff}")
        A(f"s_mov_b32 s11, {tab >> 32}")
        A(f"s_lshl_b32 s{sCG}, s{sCG}, 2")
        A(f"s_lshr_b64 s[10:11], s[10:11], s{sCG}")
        A(f"s_and_b32 s{sCG}, s10, 15")
    A(f"s_and_b32 s{sRB}, s7, 7")
    A("s_lshl_b32 s8, s6, 1")
    A("s_add_u32 s8, s8, s4")
    A("s_sub_u32 s8, s8, 30")
    A("s_cmp_lt_u32 s4, 30")
    A(f"s_cselect_b32 s{sCG}, s{sCG}, 15")
    A(f"s_cselect_b32 s{sRB}, s{sRB}, s8")
    A("s_lshl_b32 s5, s5, 3")
    A(f"s_add_u32 s{sRB}, s{sRB}, s5")
    A(f"s_and_b32 s3, s{sRB}, 7")
    A("s_lshr_b32 s4, s3, 2")
    A(f"s_add_u32 s{sC0}, s3, s4")
    A(f"s_lshr_b32 s4, s{sRB}, 3")
    A(f"s_add_u32 s{sC0}, s{sC0}, s4")
    A("s_waitcnt lgkmcnt(0)")
    mk_srd(A, S_X, P_X, 2048 * 1280)
    mk_srd(A, S_WS, P_WS, WS_SIZE)
    mk_srd(A, S_DBG, P_DBG, 256)
    stamp(A, 0, 0)
    if OPT["P2ONLY"]:
        p2_ids(A)
        A(f"s_mov_b32 s{sWoDone}, 0")
        A(f"v_mov_b32 v{vSigA}, {OOB}")
        A(f"v_mov_b32 v{vSigV}, 0")
        A("s_branch L_p2")
    if OPT["DLY"] == 4:
        A("s_sleep 34")
    k1_stats_issue(A)
    A(f"s_cmp_eq_u32 s{sCG}, 15")
    A("s_cbranch_scc1 L_aux")
    A(f"v_lshrrev_b32 v{vT0}, 3, v{vLane}")
    A(f"v_lshrrev_b32 v{vT1}, 4, v{vLane}")
    A(f"v_and_b32 v{vT2}, 7, v{vLane}")
    A(f"v_xor_b32 v{vT1}, v{vT1}, v{vT2}")
    if OPT["NOSWZ"]: A(f"v_and_b32 v{vT1}, 7, v{vLane}")
    A(f"s_lshl_b32 s3, s{sRB}, 7")
    if OPT["SAME"]: A("s_mov_b32 s3, 0")
    A(f"s_and_b32 s4, s{sWave}, 3")
    A(f"s_lshl_b32 s{sXslot}, s4, 12")
    A(f"s_lshl_b32 s4, s4, 5")
    A("s_add_u32 s3, s3, s4")
    A(f"v_add_u32 v{vT0}, s3, v{vT0}")
    A(f"v_mul_u32_u24 v{vT0}, 1280, v{vT0}")
    A(f"v_lshl_add_u32 v{vXo}, v{vT1}, 4, v{vT0}")
    A(f"v_xor_b32 v{vT1}, 4, v{vT1}")
    A(f"v_lshl_add_u32 v{vXo+1}, v{vT1}, 4, v{vT0}")
    A(f"v_add_u32 v{vXo+1}, {8*1280}, v{vXo+1}")
    A(f"s_lshl_b32 s{sKX}, s{sC0}, 7")
    A(f"s_mov_b32 s{sKXn}, 0")
    A(f"s_cmp_ge_u32 s{sCG}, 13")
    A("s_cbranch_scc1 L_typeQ")
    A(f"s_cmp_ge_u32 s{sCG}, 9")
    A("s_cbranch_scc1 L_typeK")
    k1_gemm(A, "G")
    A.label("L_typeQ")
    k1_gemm(A, "Q")
    A.label("L_typeK")
    k1_gemm(A, "K")
    A.label("L_aux")
    k1_aux(A)
    phase2(A)
    A.label("L_k1_exit")
    A("s_endpgm")
    A.label("L_code_end")


sRB64, sC, sHo, sWo, sHb, sHe, sWb, sWe, sLast = 16, 17, 18, 19, 22, 23, 24, 25, 26
sFl, sWoDone, sWoL, sWoG, sWoI = sWslot, sRslot, sXslot, sStepW, sCSit
vL16 = 5


def p2_ids(A, vec=True):
    A("s_and_b32 s3, s2, 7")
    A("s_lshr_b32 s4, s2, 3")
    A(f"s_and_b32 s{sC}, s4, 7")
    A("s_lshr_b32 s4, s4, 3")
    A("s_lshl_b32 s3, s3, 2")
    A(f"s_add_u32 s{sRB64}, s3, s4")
    if OPT["P2SAME"] == 1:
        A(f"s_and_b32 s{sRB64}, s{sRB64}, 1")
        A(f"s_and_b32 s{sC}, s{sC}, 1")
    if OPT["P2SAME"] == 2:
        A(f"s_and_b32 s{sC}, s{sC}, 3")
    if vec:
        A(f"v_lshlrev_b32 v{vL16}, 4, v{vLane}")


WO_LDS = 32768


def wo_early(A, first, per_wave):
    A("s_lshr_b32 s4, s2, 3")
    A("s_and_b32 s4, s4, 7")
    A(f"s_mul_i32 s4, s4, {74*5120}")
    A(f"s_and_b32 s5, s{sWave}, 3")
    A(f"s_mul_i32 s5, s5, {per_wave*1024}")
    A("s_add_u32 s4, s4, s5")
    A(f"s_add_u32 s4, s4, {WS_W2 + 54*5120 + first*1024}")
    A(f"s_add_u32 s5, s5, {WO_LDS + first*1024}")
    A(f"v_lshlrev_b32 v{vT0}, 4, v{vLane}")
    for i in range(per_wave):
        if i % 4 == 0:
            A(f"s_add_u32 m0, s5, {i*1024}")
            A(f"s_add_u32 s6, s4, {i*1024}")
        A(f"buffer_load_dwordx4 v{vT0}, {srd(S_WS)}, s6 offen offset:{(i%4)*1024} sc1 lds")


def wo_setup(A):
    A(f"s_mul_i32 s{sWoL}, s{sWave}, 25600")
    A(f"s_add_u32 s{sWoL}, s{sWoL}, {WO_LDS}")
    A(f"s_mul_i32 s6, s{sC}, 74")
    A(f"s_mul_i32 s7, s{sWave}, 5")
    A("s_add_u32 s6, s6, s7")
    A("s_add_u32 s6, s6, 54")
    A("s_mul_i32 s6, s6, 5120")
    A(f"s_add_u32 s{sWoG}, s6, {WS_W2}")
    A(f"s_and_b32 s{sWoI}, s{sRB64}, 3")
    A(f"s_mul_i32 s{sWoI}, s{sWoI}, {6*1024}")


def wo_dmas():
    return [f"s_add_u32 m0, s{sWoL}, s{sWoI}\n"
            f"s_add_u32 s9, s{sWoG}, s{sWoI}\n"
            f"buffer_load_dwordx4 v{vL16}, {srd(S_WS)}, s9 offen sc1 lds\n"
            f"s_add_u32 s{sWoI}, s{sWoI}, 1024\n"
            f"s_cmp_eq_u32 s{sWoI}, {25*1024}\n"
            f"s_cselect_b32 s{sWoI}, 0, s{sWoI}" for _ in range(25)]


NK, WD, HD = 14, 6, 3
q4 = lambda a, b: list(range(a, b, 4))
WQ = q4(8, 56) + q4(128, 152) + q4(248, 256) + q4(112, 128) + q4(152, 168) + q4(200, 208)
AQ = q4(88, 112) + q4(168, 192) + q4(56, 88)
HQ = q4(192, 200) + q4(208, 248)
assert len(WQ) == 30 and len(AQ) == 20 and len(HQ) == 12 and len(set(WQ + AQ + HQ)) == 62


def ffn_setup(A):
    A(f"s_sub_u32 s3, s{sWave}, 4")
    A("s_mul_i32 s4, s3, 14")
    A("s_cmp_eq_u32 s3, 3")
    A("s_cselect_b32 s5, 1, 0")
    A("s_sub_u32 s4, s4, s5")
    A("s_cmp_ge_u32 s3, 2")
    A("s_cselect_b32 s5, 13, 14")
    A(f"s_cselect_b32 s{sLast}, {OOB}, 0")
    A(f"s_and_b32 s6, s{sRB64}, 3")
    A("s_lshl_b32 s6, s6, 1")
    A(f"s_add_u32 s6, s6, s{sC}")
    A("s_mul_i32 s6, s6, 7")
    A("s_lshr_b32 s6, s6, 2")
    A("s_sub_u32 s7, s6, s5")
    A("s_cmp_ge_u32 s6, s5")
    A("s_cselect_b32 s6, s7, s6")
    if not OPT["P2ROT"]:
        A("s_mov_b32 s6, 0")
    A(f"s_mul_i32 s{sHb}, s{sRB64}, 54")
    A(f"s_add_u32 s{sHb}, s{sHb}, s4")
    A(f"s_lshl_b32 s{sHb}, s{sHb}, 12")
    A("s_lshl_b32 s7, s5, 12")
    A(f"s_add_u32 s{sHe}, s{sHb}, s7")
    A("s_lshl_b32 s7, s6, 12")
    A(f"s_add_u32 s{sHo}, s{sHb}, s7")
    A(f"s_mul_i32 s{sWb}, s{sC}, 74")
    A(f"s_add_u32 s{sWb}, s{sWb}, s4")
    A(f"s_mul_i32 s{sWb}, s{sWb}, 5120")
    A(f"s_add_u32 s{sWb}, s{sWb}, {WS_W2}")
    A("s_mul_i32 s7, s5, 5120")
    A(f"s_add_u32 s{sWe}, s{sWb}, s7")
    A("s_mul_i32 s7, s6, 5120")
    A(f"s_add_u32 s{sWo}, s{sWb}, s7")


def ldW_groups(j):
    out = []
    pre = f"s_add_u32 s{sWo}, s{sWo}, s{sLast}\n" if j == NK - 1 else ""
    for nt in range(4):
        out.append((pre if nt == 0 else "") +
                   f"buffer_load_dwordx4 {vr(WQ[5*(j%WD)+nt])}, v{vL16}, {srd(S_WS)}, s{sWo} offen offset:{nt*1024}{HSC}")
    out.append(f"s_add_u32 s3, s{sWo}, 4096\n"
               f"buffer_load_dwordx4 {vr(WQ[5*(j%WD)+4])}, v{vL16}, {srd(S_WS)}, s3 offen{HSC}\n"
               f"s_add_u32 s{sWo}, s{sWo}, 5120\n"
               f"s_cmp_eq_u32 s{sWo}, s{sWe}\n"
               f"s_cselect_b32 s{sWo}, s{sWb}, s{sWo}")
    return out


def poll_flag(A, lab, addr_s, mask, target, vtmp):
    A(f"s_mov_b32 s{sSpin}, 0")
    A(f"v_mov_b32 v{vtmp+1}, 0")
    A.label(lab)
    A(f"buffer_load_dword v{vtmp}, v{vtmp+1}, {srd(S_WS)}, s{addr_s} offen sc1")
    A("s_waitcnt vmcnt(0)")
    A(f"v_readfirstlane_b32 s{sTmp3}, v{vtmp}")
    A(f"s_add_u32 s{sSpin}, s{sSpin}, 1")
    A(f"s_and_b32 s{sTmp3}, s{sTmp3}, {mask}")
    A(f"s_cmp_ge_u32 s{sTmp3}, {0 if OPT['P2ONLY'] else target}")
    A(f"s_cbranch_scc1 {lab}_ok")
    A(f"s_cmp_gt_u32 s{sSpin}, {SPIN_MAX}")
    A(f"s_cbranch_scc1 {lab}_ok")
    A(f"s_sleep {OPT['PSLEEP']}")
    A(f"s_branch {lab}")
    A.label(lab + "_ok")


def phase2(A):
    S_OUT = S_T
    ACC = 8
    acc = lambda nt, mt: ACC + 4 * (nt * 4 + mt)
    A.label("L_p2")
    mk_srd(A, S_OUT, P_OUT, 2048 * 1280)
    A(f"s_lshr_b32 s{sFl}, s{sRB64}, 1")
    A(f"s_lshl_b32 s{sFl}, s{sFl}, 8")
    A(f"s_add_u32 s{sFl}, s{sFl}, {WS_FL + FL_HC}")
    A.fence()
    A(f"s_cmp_ge_u32 s{sWave}, 4")
    A("s_cbranch_scc1 L2_ffn")

    def signal(n_younger):
        A(f"s_waitcnt vmcnt({n_younger}) lgkmcnt(0)")
        A("s_barrier")

    XR, OA, RA = 232, 238, 241

    def red_setup(A, ta, tb):
        for j in range(3):
            A(f"s_add_u32 s11, s{sWave}, {8*j}")
            A(f"s_lshr_b32 s12, s11, 2")
            A(f"s_and_b32 s13, s11, 3")
            A(f"s_lshl_b32 s14, s{sRB64}, 6")
            A(f"s_lshl_b32 s13, s13, 4")
            A("s_add_u32 s14, s14, s13")
            A("s_mul_i32 s14, s14, 1280")
            A(f"s_mul_i32 s15, s{sC}, 160")
            A("s_add_u32 s14, s14, s15")
            A("s_lshl_b32 s12, s12, 5")
            A("s_add_u32 s14, s14, s12")
            A("s_cmp_lt_u32 s11, 20")
            A(f"s_cselect_b32 s14, s14, {OOB}")
            A(f"v_and_b32 v{ta}, 15, v{vLane}")
            A(f"v_mul_u32_u24 v{ta}, 1280, v{ta}")
            A(f"v_lshrrev_b32 v{tb}, 4, v{vLane}")
            A(f"v_lshl_add_u32 v{ta}, v{tb}, 3, v{ta}")
            A(f"v_add_u32 v{OA+j}, s14, v{ta}")
            A(f"buffer_load_dwordx2 {vr(XR+2*j, 2)}, v{OA+j}, {srd(S_X)}, 0 offen")
            A("s_lshl_b32 s12, s11, 10")
            A(f"s_add_u32 s13, s12, {WO_LDS+5120}")
            A(f"v_add_u32 v{RA+5*j}, s13, v{vL16}")
            for f in range(4):
                A(f"s_add_u32 s13, s12, {KV_SLAB[f]}")
                A(f"s_add_u32 s14, s12, {WO_LDS + f*25600 - 14*1024}")
                A("s_cmp_lt_u32 s11, 14")
                A("s_cselect_b32 s13, s13, s14")
                A("s_cmp_lt_u32 s11, 19")
                A(f"s_cselect_b32 s13, s13, {28672 + f*1024}")
                A(f"v_add_u32 v{RA+5*j+1+f}, s13, v{vL16}")

    AD = 8
    RAW, NRAW = 56, 6
    FR = 80
    OSP = 96
    PQ = lambda mt, blk: 112 + 16 * blk + 4 * mt
    O = lambda u, mt: (OSP + 4 * mt) if u == 0 else PQ(mt, u - 1)
    DEN = 192
    NM = 224
    T = 192
    A(f"s_mul_i32 s8, s{sWave}, 14336")
    A(f"s_cmp_ge_u32 s{sWave}, 2")
    A(f"s_cselect_b32 s9, {135168 - 2*14336}, 0")
    A("s_add_u32 s8, s8, s9")
    for i in range(4):
        A(f"v_mov_b32 v{T+i}, 0")
    A(f"s_add_u32 s9, s8, 13440")
    A(f"v_mov_b32 v{vT2}, s9")
    A(f"ds_write_b128 v{vT2}, {vr(T)}")
    A(f"ds_write_b32 v{vT2}, v{T} offset:16")
    signal(0)
    A(f"s_cmp_lg_u32 s{sWave}, 0")
    A("s_cbranch_scc1 L2_nosig")
    A(f"buffer_atomic_add v{vSigV}, v{vSigA}, {srd(S_WS)}, 0 offen sc1")
    A.label("L2_nosig")
    stamp(A, 0, 1)
    if OPT["NOATT"]:
        A("s_branch L2_reduce")
    A(f"s_cmp_lg_u32 s{sWoDone}, 0")
    A("s_cbranch_scc1 L2_wodone")
    wo_setup(A)
    for g in wo_dmas():
        A(g)
    A.label("L2_wodone")
    A(f"s_mul_i32 s4, s{sWave}, 25600")
    A(f"s_add_u32 s4, s4, {WO_LDS}")
    iL, gL = T + 4, T + 5
    he = T + 12
    hd = T + 22
    ab, zb, hz = T + 6, T + 7, T + 8
    A(f"v_and_b32 v{iL}, 15, v{vLane}")
    A(f"v_lshrrev_b32 v{gL}, 4, v{vLane}")
    for Tt in range(10):
        A(f"v_add_u32 v{he+Tt}, {16*Tt}, v{iL}")
        A(f"v_mul_u32_u24 v{he+Tt}, 205, v{he+Tt}")
        A(f"v_lshrrev_b32 v{he+Tt}, 12, v{he+Tt}")
    for blk in range(5):
        for h in range(2):
            r = hd + 2 * blk + h
            A(f"v_lshlrev_b32 v{r}, 3, v{gL}")
            A(f"v_add_u32 v{r}, {32*blk+4*h}, v{r}")
            A(f"v_mul_u32_u24 v{r}, 205, v{r}")
            A(f"v_lshrrev_b32 v{r}, 12, v{r}")
    A(f"v_mul_u32_u24 v{ab}, 80, v{iL}")
    A(f"v_lshl_add_u32 v{ab}, v{gL}, 5, v{ab}")
    A(f"v_add_u32 v{ab}, s8, v{ab}")
    A(f"v_and_b32 v{hz}, 3, v{iL}")
    A(f"v_mul_u32_u24 v{zb}, 1600, v{hz}")
    A(f"v_lshl_add_u32 v{zb}, v{gL}, 5, v{zb}")
    A(f"v_add_u32 v{zb}, s8, v{zb}")
    NUM = {0: [0], 1: [0, 1], 2: [0, 1], 3: [1, 2], 4: [1, 2], 5: [2, 3], 6: [2, 3], 7: [3, 4], 8: [3, 4], 9: [4]}
    frs = []
    for ch in range(2):
        A(f"v_add_u32 v{T+9}, {4*ch}, v{hz}")
        bl = [0, 1, 2] if ch == 0 else [2, 3, 4]
        for blk in bl:
            n = len(frs)
            frs.append(("z", ch, blk, blk == bl[0], blk == bl[-1]))
            for h in range(2):
                a = AD + 2 * n + h
                A(f"v_cmp_eq_u32 vcc, v{T+9}, v{hd+2*blk+h}")
                A(f"v_add_u32 v{a}, {6400*ch+1600+128*blk+16*h}, v{zb}")
                A(f"v_cndmask_b32 v{a}, v{vT2}, v{a}, vcc")
        for Tt in range(5 * ch, 5 * ch + 5):
            for blk in NUM[Tt]:
                n = len(frs)
                frs.append(("n", Tt, blk, blk == NUM[Tt][0], blk == NUM[Tt][-1]))
                for h in range(2):
                    a = AD + 2 * n + h
                    A(f"v_cmp_eq_u32 vcc, v{he+Tt}, v{hd+2*blk+h}")
                    A(f"v_add_u32 v{a}, {1280*Tt+128*blk+16*h}, v{ab}")
                    A(f"v_cndmask_b32 v{a}, v{vT2}, v{a}, vcc")
    assert len(frs) == 24
    sM = 84
    for k in range(3):
        A(f"v_cmp_lt_u32 s[{sM+2*k}:{sM+2*k+1}], {k}, v{gL}")
    stamp(A, 7, 1, vt=vT0)
    A("s_setprio 3")
    A(f"s_lshr_b32 s10, s{sWave}, 1")
    A("s_lshl_b32 s10, 0x2000, s10")
    poll_flag(A, "L2_pq", sFl, "s10", "s10", vT0)
    stamp(A, 8, 1, vt=vT0)
    A(f"s_mul_i32 s6, s{sRB64}, 20")
    A(f"s_mul_i32 s7, s{sWave}, 5")
    A("s_add_u32 s6, s6, s7")
    A("s_lshl_b32 s6, s6, 12")
    A(f"s_add_u32 s6, s6, {WS_PQ}")
    for blk in range(5):
        for mt in range(4):
            A(f"buffer_load_dwordx4 {vr(PQ(mt, blk))}, v{vL16}, {srd(S_WS)}, s6 offen offset:{mt*1024} sc1")
        A(f"s_add_u32 s6, s6, 4096")
    A(f"s_lshl_b32 s6, s{sWave}, 3")
    A("s_and_b32 s7, s2, 7")
    A("s_add_u32 s6, s6, s7")
    A("s_lshl_b32 s6, s6, 8")
    A(f"s_add_u32 s6, s6, {WS_FL + FL_KV}")
    poll_flag(A, "L2_kv", 6, 0xff, 16, vT0)
    stamp(A, 3, 1, vt=vT0)
    A(f"s_mul_i32 s3, s{sWave}, 13440")
    A(f"s_add_u32 s3, s3, {WS_KVA}")
    for i in range(14):
        if i % 4 == 0:
            A(f"s_add_u32 m0, s8, {i*1024}")
            A(f"s_add_u32 s5, s3, {i*1024}")
        if i == 13:
            A("s_mov_b64 exec, 0xff")
        A(f"buffer_load_dwordx4 v{vL16}, {srd(S_WS)}, s5 offen offset:{(i%4)*1024} sc1 lds")
    A("s_mov_b64 exec, -1")
    A(f"s_setprio {OPT['APRIO']}")
    A("s_waitcnt vmcnt(7) lgkmcnt(0)")
    stamp(A, 9, 1, vt=vT0)
    raw = lambda k: RAW + 4 * (k % NRAW)
    fr = lambda n: FR + 4 * (n % 4)
    dst = lambda f, mt: (DEN + 8 * mt + 4 * f[1]) if f[0] == "z" else (NM + 16 * (f[1] % 2) + 4 * mt)

    def rd(n):
        if n == 12:
            A("s_waitcnt vmcnt(0)")
        for h in range(2):
            A(f"ds_read_b128 {vr(raw(2*n+h))}, v{AD+2*n+h}")

    def post(f):
        out = []
        if f[0] == "z":
            for mt in range(4):
                for i in range(4):
                    r = DEN + 8 * mt + 4 * f[1] + i
                    out.append(f"v_add_f32 v{r}, {f32(1e-6)}, v{r}")
            for mt in range(4):
                for i in range(4):
                    r = DEN + 8 * mt + 4 * f[1] + i
                    out.append(f"v_rcp_f32 v{r}, v{r}")
            return out
        Tt = f[1]
        lo, hi = (4 * Tt) // 5, (4 * Tt + 3) // 5
        sl = {}
        for mt in range(4):
            if lo == hi:
                sl[mt] = DEN + 8 * mt + lo
            else:
                thr = 5 * hi - 4 * Tt
                sl[mt] = AD + mt
                out.append(f"v_cndmask_b32 v{sl[mt]}, v{DEN+8*mt+lo}, v{DEN+8*mt+hi}, s[{sM+2*(thr-1)}:{sM+2*(thr-1)+1}]")
        for mt in range(4):
            d = dst(f, mt)
            for i in range(4):
                out.append(f"v_mul_f32 v{d+i}, v{d+i}, v{sl[mt]}")
        for mt in range(4):
            d = dst(f, mt)
            ob = O(Tt // 2, mt) + 2 * (Tt % 2)
            out.append(f"v_cvt_pk_bf16_f32 v{ob}, v{d}, v{d+1}")
            out.append(f"v_cvt_pk_bf16_f32 v{ob+1}, v{d+2}, v{d+3}")
        return out
    rd(0)
    rd(1)
    pend = []
    nxt = []
    for n in range(26):
        if n + 2 < 24:
            rd(n + 2)
        cv = []
        if n < 24:
            A(f"s_waitcnt lgkmcnt({2*min(2, 23-n)})")
            for h in range(2):
                cv.append(f"v_cvt_pk_bf16_f32 v{fr(n)+2*h}, v{raw(2*n+h)}, v{raw(2*n+h)+1}")
                cv.append(f"v_cvt_pk_bf16_f32 v{fr(n)+2*h+1}, v{raw(2*n+h)+2}, v{raw(2*n+h)+3}")
        mf = []
        if 1 <= n <= 24:
            f = frs[n - 1]
            if f[3] and f[0] == "n":
                need = [x for x in pend if x[0] <= f[1] - 2]
                for x in need:
                    A(x[1])
                pend = [x for x in pend if x[0] > f[1] - 2]
            for mt in range(4):
                d = vr(dst(f, mt))
                mf.append(f"v_mfma_f32_16x16x32_bf16 {d}, {vr(fr(n-1))}, {vr(PQ(mt, f[2]))}, {0 if f[3] else d}")
        take = pend[:14]
        pend = pend[14:]
        work = cv + [x[1] for x in take]
        for g in (interleave(mf, work) if mf else work):
            A(g)
        pend += nxt
        nxt = []
        if 1 <= n <= 24 and frs[n - 1][4]:
            f = frs[n - 1]
            nxt = [((f[1] if f[0] == "n" else 5 * f[1] - 0.5), x) for x in post(f)]
    for x in pend + nxt:
        A(x[1])
    stamp(A, 11, 1, vt=vT0)
    A(f"s_setprio {OPT['APRIO2']}")
    WF = 192
    A(f"v_add_u32 v{vT0}, s4, v{vL16}")
    A.fence()

    def rd_wo(u):
        for nt in range(5):
            A(f"ds_read_b128 {vr(WF+20*(u%2)+4*nt)}, v{vT0} offset:{(u*5+nt)*1024}")
    E = Asm()
    red_setup(E, vSigA, vSigV)
    rs = [t for _, t in E.lines]
    rd_wo(0)
    for u in range(5):
        if u + 1 < 5:
            rd_wo(u + 1)
        A(f"s_waitcnt lgkmcnt({5 if u < 4 else 0})")
        if u == 0:
            A(f"v_mov_b32 v{vT1}, 1")
            A(f"ds_write_b32 v{vT2}, v{vT1} offset:16")
        mf = []
        for nt in range(5):
            for mt in range(4):
                d = vr(acc(nt, mt))
                mf.append(f"v_mfma_f32_16x16x32_bf16 {d}, {vr(WF+20*(u%2)+4*nt)}, {vr(O(u, mt))}, {d if u else 0}")
        k = (len(rs) + 3) // 4
        for g in interleave(mf, rs[u*k:(u+1)*k]):
            A(g)
    stamp(A, 1, 1, vt=vSigA)
    A.fence()
    for t in range(20):
        A(f"ds_write_b128 v{vT0}, {vr(ACC+4*t)} offset:{5120+t*1024}")
    A("s_branch L2_reduce")

    A.label("L2_ffn")
    q = []

    def ldW(j):
        for g in ldW_groups(j):
            A(g)
        q.extend([("W", j)] * 5)

    def ldH1(j, mt):
        if j == NK - 1 and mt == 0:
            A(f"s_add_u32 s{sHo}, s{sHo}, s{sLast}")
        A(f"buffer_load_dwordx4 {vr(HQ[4*(j%HD)+mt])}, v{vL16}, {srd(S_WS)}, s{sHo} offen offset:{mt*1024}{HSC}")
        if mt == 3:
            A(f"s_add_u32 s{sHo}, s{sHo}, 4096")
            A(f"s_cmp_eq_u32 s{sHo}, s{sHe}")
            A(f"s_cselect_b32 s{sHo}, s{sHb}, s{sHo}")
        q.append(("H", j, mt))

    def ldH(j):
        for mt in range(4):
            ldH1(j, mt)
    signal(0)
    A(f"s_cmp_lg_u32 s{sWoDone}, 0")
    A("s_cbranch_scc1 L2_ws")
    ffn_setup(A)
    A.label("L2_ws")
    A(f"s_sub_u32 s10, s{sWave}, 4")
    A("s_lshl_b32 s10, s10, 1")
    A("s_lshl_b32 s10, 7, s10")
    A(f"v_mov_b32 v{vT1}, 0")
    A(f"s_cmp_gt_u32 s{sWoDone}, 1")
    A("s_cbranch_scc1 L2_w0")
    ldW(0)
    ldW(1)
    A.label("L2_w0")
    assert OPT["NPRE"] == 2
    for j in range(2, WD):
        if j == OPT["EPOLL"]:
            A(f"buffer_load_dword v{vT2}, v{vT1}, {srd(S_WS)}, s{sFl} offen sc1")
        ldW(j)
    if OPT["EPOLL"]:
        A(f"s_waitcnt vmcnt({5*(WD-OPT['EPOLL'])})")
        A(f"v_readfirstlane_b32 s{sTmp3}, v{vT2}")
        A(f"s_and_b32 s{sTmp3}, s{sTmp3}, s10")
        A(f"s_cmp_eq_u32 s{sTmp3}, s10")
        A(f"s_cbranch_scc1 L2_h_ok")
    stamp(A, 4, 1, wave=4, vt=vT0)
    poll_flag(A, "L2_h", sFl, "s10", "s10", vT0)
    stamp(A, 5, 1, wave=4, vt=vT0)
    stamp(A, 14, 1, wave=4, vt=vT0, clk=True)
    q.clear()
    for j in range(HD):
        ldH(j)
    A(f"s_setprio {OPT['FPRIO']}")
    for j in range(NK):
        for mt in range(4):
            last = max(i for i, e in enumerate(q) if e[1] == j and (e[0] == "W" or e[2] <= mt))
            A(f"s_waitcnt vmcnt({len(q)-1-last})")
            for nt in range(5):
                d = vr(AQ[nt*4+mt])
                if not OPT["NOMF"]: A(f"v_mfma_f32_16x16x32_bf16 {d}, {vr(WQ[5*(j%WD)+nt])}, {vr(HQ[4*(j%HD)+mt])}, {d if j else 0}")
            if j + HD < NK:
                ldH1(j + HD, mt)
        if j + WD < NK:
            ldW(j + WD)
    A("s_setprio 0")
    stamp(A, 6, 1, wave=4, vt=vT0)
    stamp(A, 15, 1, wave=4, vt=vT0, clk=True)
    A("s_waitcnt vmcnt(0)")
    red_setup(A, vSigA, vSigV)
    A(f"s_sub_u32 s3, s{sWave}, 4")
    A("s_mul_i32 s8, s3, 14336")
    A("s_cmp_ge_u32 s3, 2")
    A(f"s_cselect_b32 s9, {135168 - 2*14336}, 0")
    A("s_add_u32 s8, s8, s9")
    A(f"v_add_u32 v{vT0}, s8, v{vL16}")
    A("s_add_u32 s9, s8, 13456")
    A(f"v_mov_b32 v{vT2}, s9")
    A(f"s_mov_b32 s{sSpin}, 0")
    A.label("L2_wfree")
    A(f"ds_read_b32 v{vT1}, v{vT2}")
    A("s_waitcnt lgkmcnt(0)")
    A(f"v_readfirstlane_b32 s9, v{vT1}")
    A(f"s_add_u32 s{sSpin}, s{sSpin}, 1")
    A("s_cmp_eq_u32 s9, 1")
    A("s_cbranch_scc1 L2_wfree_ok")
    A(f"s_cmp_gt_u32 s{sSpin}, {SPIN_MAX*16}")
    A("s_cbranch_scc1 L2_wfree_ok")
    A("s_sleep 2")
    A("s_branch L2_wfree")
    A.label("L2_wfree_ok")
    A("s_mul_i32 s8, s3, 25600")
    A(f"s_add_u32 s8, s8, {WO_LDS}")
    A(f"v_add_u32 v{vT1}, s8, v{vL16}")
    A("s_lshl_b32 s8, s3, 10")
    A(f"v_add_u32 v{vT2}, s8, v{vL16}")
    for t in range(20):
        if t < 14:
            A(f"ds_write_b128 v{vT0}, {vr(AQ[t])} offset:{t*1024}")
        elif t < 19:
            A(f"ds_write_b128 v{vT1}, {vr(AQ[t])} offset:{(t-14)*1024}")
        else:
            A(f"ds_write_b128 v{vT2}, {vr(AQ[t])} offset:28672")

    A.label("L2_reduce")
    if OPT["DLY"] == 5:
        A("s_sleep 30")
    A("s_setprio 0")
    A("s_waitcnt lgkmcnt(0)")
    stamp(A, 12, 1, vt=vSigA)
    A("s_barrier")
    stamp(A, 13, 1, vt=vSigA)
    R = lambda j: 8 + 32 * j

    def rds(j):
        A(f"v_add_u32 v{vT0}, {2*25600}, v{RA+5*j}")
        for w in range(4):
            A(f"ds_read_b128 {vr(R(j)+4*w)}, v{RA+5*j if w < 2 else vT0} offset:{(w%2)*25600}")
        for f in range(4):
            A(f"ds_read_b128 {vr(R(j)+16+4*f)}, v{RA+5*j+1+f}")

    def fin(j):
        r = R(j)
        for st in (16, 8, 4):
            for i in range(0, st, 2):
                pk_mul(A, r + i, ("p", r + i), ("p", r + st + i), op="add")
        x0, x1 = XR + 2 * j, XR + 2 * j + 1
        A(f"v_lshlrev_b32 v{r+4}, 16, v{x0}")
        A(f"v_and_b32 v{r+5}, 0xffff0000, v{x0}")
        A(f"v_lshlrev_b32 v{r+6}, 16, v{x1}")
        A(f"v_and_b32 v{r+7}, 0xffff0000, v{x1}")
        for i in range(0, 4, 2):
            pk_mul(A, r + i, ("p", r + i), ("p", r + 4 + i), op="add")
        A(f"v_cvt_pk_bf16_f32 v{x0}, v{r}, v{r+1}")
        A(f"v_cvt_pk_bf16_f32 v{x1}, v{r+2}, v{r+3}")
        A(f"buffer_store_dwordx2 {vr(x0, 2)}, v{OA+j}, {srd(S_OUT)}, 0 offen" + ["", " sc1", " nt"][OPT["OUTSC"]])
    rds(0)
    rds(1)
    A("s_waitcnt vmcnt(0) lgkmcnt(8)")
    fin(0)
    A(f"s_cmp_ge_u32 s{sWave}, 4")
    A("s_cbranch_scc1 L2_last")
    rds(2)
    A("s_waitcnt lgkmcnt(0)")
    fin(2)
    A.label("L2_last")
    A("s_waitcnt lgkmcnt(0)")
    fin(1)
    A.label("L2_done")
    stamp(A, 2, 1, vt=vSigA)


def descriptor(name, vgpr=256):
    return f""".amdhsa_kernel {name}
  .amdhsa_next_free_vgpr {vgpr}
  .amdhsa_next_free_sgpr 102
  .amdhsa_accum_offset {vgpr}
  .amdhsa_group_segment_fixed_size 0
  .amdhsa_kernarg_size 80
  .amdhsa_user_sgpr_count 2
  .amdhsa_user_sgpr_kernarg_segment_ptr 1
  .amdhsa_system_sgpr_workgroup_id_x 1
.end_amdhsa_kernel
"""


def probe(A):
    A(".p2align 8")
    A.label("pre_kernel")
    if OPT["PROBE"] in (4, 5):
        A("s_cmp_ge_u32 s2, 64")
        A("s_cbranch_scc1 L_pre_exit")
        load_ptrs(A)
        A("s_lshr_b32 s3, s2, 3")
        A("s_lshl_b32 s3, s3, 9")
        A("v_add_u32 v1, s3, v0")
        A("v_lshlrev_b32 v1, 12, v1")
        A("s_waitcnt lgkmcnt(0)")
        lst = ((P_WS, WS_SIZE), (P_OUT, 2048*1280))
        if OPT["PROBE"] == 5:
            lst += ((P_X, 2048*1280), (P_WQKV, 640*3840), (P_WO, 640*1280), (P_G, 640*3456), (P_U, 640*3456), (P_D, 1728*1280))
        for k, (p, n) in enumerate(lst):
            mk_srd(A, 36 + 4*k, p, n)
            A(f"buffer_load_dword v{2+k}, v1, {srd(36+4*k)}, 0 offen")
        A("s_waitcnt vmcnt(0)")
        A.label("L_pre_exit")
    if OPT["PROBE"] == 2:
        A("s_cmp_ge_u32 s2, 256")
        A("s_cbranch_scc1 L_pre_exit")
        load_ptrs(A)
        A("s_lshl_b32 s3, s2, 9")
        A("v_add_u32 v1, s3, v0")
        A("v_lshlrev_b32 v1, 5, v1")
        A("s_waitcnt lgkmcnt(0)")
        for k, (p, n) in enumerate(((P_X, 2048*1280), (P_WQKV, 640*3840), (P_WO, 640*1280), (P_G, 640*3456), (P_U, 640*3456), (P_D, 1728*1280))):
            mk_srd(A, 36 + 4*k, p, n)
            A(f"buffer_load_dword v{2+k}, v1, {srd(36+4*k)}, 0 offen")
        A("s_waitcnt vmcnt(0)")
        A.label("L_pre_exit")
    A("s_endpgm")


def main():
    A = Asm()
    kernel1(A)
    K = NAME + "_kernel"
    launch = f"; @launch grid=(256,1,1) block=(512,1,1) lds={LDS_TOTAL}"
    extra = ""
    if OPT["PROBE"]:
        probe(A)
        launch = f"; @launch kernel=pre_kernel grid=(256,1,1) block=(512,1,1) lds=0\n; @launch kernel={K} grid=(256,1,1) block=(512,1,1) lds={LDS_TOTAL}"
        if OPT["PROBE"] == 3:
            launch = f"; @launch kernel={K} grid=(256,1,1) block=(512,1,1) lds={LDS_TOTAL}\n; @launch kernel={K} grid=(256,1,1) block=(512,1,1) lds={LDS_TOTAL}"
        extra = ".p2align 6\n" + descriptor("pre_kernel", 16)
    head = f"""; LN + linear attention + GEGLU FFN, one persistent launch (generated by dev/gen.py)
{launch}
.amdgcn_target "amdgcn-amd-amdhsa--gfx950"
.text
.globl {K}
.type {K},@function
"""
    tail = '.section .rodata,"a"\n.p2align 6\n' + descriptor(K) + extra
    open(sys.argv[1], "w").write(head + A.render() + tail)


main()
```

```python
import sys, struct, math
from asmlib import Asm, interleave

NAME = "parallel_sum__linear_attn_block__geglu_ffn__prompt"

OPT = dict(ROTQ=1, STAMP=0, NODMA=0, SAME=0, NOSWZ=0, NORD=0, P2ROT=1, WARM=1, PLAIN=0, BYTEFLAG=0, NBUP=6, SW=0, P2ONLY=0, P2SAME=0, NOATT=0, NOMF=0, FPRIO=1, NPRE=2, CGPERM=0, OUTSC=0, CODEWARM=2, TLBWARM=0, PUBST=0, GPK=1, APRIO=2, APRIO2=0, FINEH=1, XMAP=0, FAKE16=0, PSLEEP=2, EPOLL=0, PROBE=0, WOEPI=0, NXA=0, XPOS=1, G16=1, DLY=0, KV1=0)
for a in sys.argv[2:]:
    k, v = a.split("=")
    OPT[k] = int(v)

OPT_WOEPI = ['', 'K', 'KQ', 'KQG'][OPT['WOEPI']]
HSC = '' if OPT['PLAIN'] else ' sc1'
WS_H = 0x000000
WS_PQ = 0x700000
WS_W2 = 0xA00000
WS_ST = 0xD00000
WS_CS = 0xD10000
WS_KVA = 0xD80000
WS_FL = 0xD90000
FL_HC = 0
FL_KV = 16 * 256
FL_ROW = 128
WS_STAMP = 0xF00000
WS_SIZE = 0x1000000
OOB = 0x40000000


def f32(x):
    return "0x%08x" % struct.unpack("<I", struct.pack("<f", x))[0]


LOG2E = 1.4426950408889634
GC1 = -2.0 * math.sqrt(2.0 / math.pi) * LOG2E
GC2 = GC1 * 0.044715

P_X, P_WQKV, P_WO, P_BX, P_G, P_U, P_D, P_OUT, P_DBG, P_WS = 16, 18, 20, 22, 24, 26, 28, 30, 32, 34
S_X, S_W, S_WS, S_DBG, S_T = 36, 40, 44, 48, 52


def srd(b):
    return f"s[{b}:{b+3}]"


def vr(b, n=4):
    return f"v[{b}:{b+n-1}]"


def mk_srd(A, s, p, nbytes):
    A(f"s_mov_b32 s{s}, s{p}")
    A(f"s_and_b32 s{s+1}, s{p+1}, 0xffff")
    A(f"s_mov_b32 s{s+2}, {nbytes}")
    A(f"s_mov_b32 s{s+3}, 0x20000")


def load_ptrs(A):
    A("s_load_dwordx16 s[16:31], s[0:1], 0")
    A("s_load_dwordx4 s[32:35], s[0:1], 64")


def wave_allreduce_add(A, v, t, s0):
    A(f"v_add_f32_dpp v{v}, v{v}, v{v} quad_perm:[1,0,3,2] row_mask:0xf bank_mask:0xf")
    A(f"v_add_f32_dpp v{v}, v{v}, v{v} quad_perm:[2,3,0,1] row_mask:0xf bank_mask:0xf")
    A(f"v_add_f32_dpp v{v}, v{v}, v{v} row_half_mirror row_mask:0xf bank_mask:0xf")
    A(f"v_add_f32_dpp v{v}, v{v}, v{v} row_mirror row_mask:0xf bank_mask:0xf")
    for i in range(4):
        A(f"v_readlane_b32 s{s0+i}, v{v}, {16*i}")
    A(f"v_mov_b32 v{v}, s{s0}")
    A(f"v_mov_b32 v{t}, s{s0+2}")
    A(f"v_add_f32 v{v}, s{s0+1}, v{v}")
    A(f"v_add_f32 v{t}, s{s0+3}, v{t}")
    A(f"v_add_f32 v{v}, v{v}, v{t}")


def lstamp(A, k):
    if OPT["STAMP"] != 4:
        return
    A("s_memrealtime s[96:97]")
    A("s_waitcnt lgkmcnt(0)")
    A(f"v_writelane_b32 v28, s96, {k}")


def cstamp(A, k):
    if OPT["STAMP"] != 7:
        return
    A("s_memtime s[96:97]\ns_waitcnt lgkmcnt(0)\n" + f"v_writelane_b32 v48, s96, {k}")


def stamp(A, idx, kern, dyn=None, clk=False, wave=0, vt=None):
    if vt is None:
        vt = (26 if idx != 3 else 50) if kern == 0 else 254
    if not OPT["STAMP"]:
        return
    if OPT["STAMP"] == 8:
        slot = {(0, 0): 2, (0, 1): 4, (0, 2): 6, (0, 3): 8, (1, 3): 10, (1, 1): 12, (1, 2): 14}.get((kern, idx))
        if slot is None or clk or wave != 0:
            return
        lab = f"L_st_{kern}_{idx}_{len(A.lines)}"
        A(f"s_or_b32 s98, s{sWave}, s2")
        A("s_cmp_lg_u32 s98, 0")
        A(f"s_cbranch_scc1 {lab}")
        A("s_memrealtime s[96:97]")
        A("s_memtime s[98:99]")
        A("s_waitcnt lgkmcnt(0)")
        A(f"v_mov_b32 v{vt}, s96")
        A(f"buffer_store_dword v{vt}, off, {srd(S_DBG)}, 0 offset:{slot*4}")
        A(f"v_mov_b32 v{vt+1}, s98")
        A(f"buffer_store_dword v{vt+1}, off, {srd(S_DBG)}, 0 offset:{slot*4+4}")
        A.label(lab)
        return
    if OPT["STAMP"] == 9:
        slot = {(0, 0): (1, True), (0, 1): (2, False), (0, 2): (3, False), (0, 3): (5, False), (1, 0): (6, False), (1, 5): (7, False),
                (1, 3): (9, False), (1, 1): (10, False), (1, 2): (11, False), (1, 6): (13, False)}.get((kern, idx))
        if slot is None or clk:
            return
        lab = f"L_st_{kern}_{idx}_{len(A.lines)}"
        A(f"s_cmp_lg_u32 s{sWave}, {wave}")
        A(f"s_cbranch_scc1 {lab}")
        A("s_memrealtime s[96:97]")
        A("s_waitcnt lgkmcnt(0)")
        if slot[1]:
            A("s_not_b32 s96, s96")
        A(f"v_mov_b32 v{vt}, s96")
        A(f"v_mov_b32 v{vt+1}, {OOB}")
        A(f"v_writelane_b32 v{vt+1}, {slot[0]*4}, 0")
        A(f"buffer_atomic_umax v{vt}, v{vt+1}, {srd(S_DBG)}, 0 offen sc1")
        A.label(lab)
        return
    lab = f"L_st_{kern}_{idx}_{len(A.lines)}"
    A(f"s_cmp_lg_u32 s{sWave}, {wave}")
    A(f"s_cbranch_scc1 {lab}")
    A("s_memtime s[96:97]" if clk else "s_memrealtime s[96:97]")
    A("s_waitcnt lgkmcnt(0)")
    A(f"s_lshl_b32 s98, s2, 6")
    A(f"s_add_u32 s98, s98, {WS_STAMP + kern*0x8000 + idx*4}")
    if dyn is not None:
        A(f"s_lshl_b32 s99, s{dyn}, 2")
        A("s_add_u32 s98, s98, s99")
    A(f"v_mov_b32 v{vt}, s96")
    A(f"v_mov_b32 v{vt+1}, 0")
    A(f"buffer_store_dword v{vt}, v{vt+1}, {srd(S_WS)}, s98 offen")
    A.label(lab)


sWave, sRB, sCG, sIt, sKW, sKWn, sKX, sKXn, sWslot, sRslot, sXslot, sStepW, sCSit, sSpec, sTmp, sTmp2, sMW, sNW, sWrapW, sTmp3, sC0, sRow, sSpin, sOdd, sPub, sUw, sUl = range(56, 83)
X_LDS = 0
W_LDS = 32768
W_SLOT = 24576
MISC_LDS = W_LDS + 5 * W_SLOT
LDS_TOTAL = 163840
KV_CS = MISC_LDS
KV_ST = MISC_LDS + 2048

vLane, vT0, vT1, vT2, vT3 = 1, 2, 3, 4, 5
vSigA, vSigV = 6, 7
vXo = 6
vWo = 8
vXa = 11
vWb = 15
vWa = 20
vPa = 25
SPIN_MAX = 0x100000
vSel = 52
vPoll = 30
vCSA = 32
vCSP = 32
vSt = 31
KST = lambda j: (44 + 4 * j) if j < 3 else (232 + 4 * (j - 3))
vBUF = 56
vACC = 152


KVT = [[(0, 0), (0, 1), (0, 2), (1, 0), (1, 1)], [(0, 3), (0, 4), (1, 2), (1, 3), (1, 4)]]


def k1_gemm(A, typ):
    G = typ == "G"
    MT = 2 if G else 1
    NT = 3 if G else 5
    NW_ = 6 if G else 5
    pitch = 3456 if G else 3840
    XB = lambda P, mt, kk: vBUF + 48 * P + 4 * (mt * 2 + kk)
    WBf = lambda P, a, kk: vBUF + 48 * P + 4 * MT * 2 + 4 * (a * 2 + kk)
    acc = lambda mt, a: vACC + 16 * (mt * NT + a)
    L = lambda s: f"L_{typ}_{s}"
    S16 = G and OPT["G16"]
    sel = 248 if S16 else vSel
    NCS = 6 if S16 else NT

    if G:
        A(f"s_lshr_b32 s{sMW}, s{sWave}, 2")
        A(f"s_and_b32 s{sNW}, s{sWave}, 3")
        mk_srd(A, S_W, P_G, 640 * 3456)
        mk_srd(A, S_T, P_U, 640 * 3456)
    else:
        A(f"s_lshr_b32 s{sMW}, s{sWave}, 1")
        A(f"s_and_b32 s{sNW}, s{sWave}, 1")
        mk_srd(A, S_W, P_WQKV, 640 * 3840)
    A(f"s_and_b32 s{sTmp2}, s{sWave}, 3")
    A(f"v_lshrrev_b32 v{vT0}, 3, v{vLane}")
    A(f"s_lshl_b32 s{sTmp3}, s{sTmp2}, 3")
    A(f"v_add_u32 v{vT0}, s{sTmp3}, v{vT0}")
    A(f"v_mul_u32_u24 v{vT0}, {pitch}, v{vT0}")
    A(f"v_and_b32 v{vT1}, 7, v{vLane}")
    A(f"v_lshrrev_b32 v{vT2}, 2, v{vLane}")
    A(f"v_and_b32 v{vT2}, 4, v{vT2}")
    A(f"v_xor_b32 v{vT1}, v{vT1}, v{vT2}")
    if G:
        A(f"s_mul_i32 s{sTmp3}, s{sCG}, {0 if OPT['SAME'] else 384}")
        A(f"v_add_u32 v{vT0}, s{sTmp3}, v{vT0}")
        if S16:
            A(f"s_and_b32 s{sTmp3}, s{sWave}, 1")
            A(f"s_lshl_b32 s{sTmp3}, s{sTmp3}, 1")
            A(f"v_xor_b32 v{vT1}, s{sTmp3}, v{vT1}")
        A(f"v_lshl_add_u32 v{vWo}, v{vT1}, 4, v{vT0}")
        if not S16:
            A(f"v_xor_b32 v{vT1}, 2, v{vT1}")
        A(f"v_lshl_add_u32 v{vWo+1}, v{vT1}, 4, v{vT0}")
        chunks = [(S_W, vWo, 0), (S_W, vWo, 128), (S_W, vWo, 256), (S_T, vWo + 1, 0), (S_T, vWo + 1, 128), (S_T, vWo + 1, 256)]
    elif typ == "Q":
        A(f"s_sub_u32 s{sTmp3}, s{sCG}, 13")
        A(f"s_mul_i32 s{sTmp3}, s{sTmp3}, 640")
        A(f"v_add_u32 v{vT0}, s{sTmp3}, v{vT0}")
        A(f"v_lshl_add_u32 v{vWo}, v{vT1}, 4, v{vT0}")
        chunks = [(S_W, vWo, 128 * i) for i in range(5)]
    else:
        A(f"s_sub_u32 s4, s{sCG}, 9")
        A(f"s_and_b32 s{sOdd}, s4, 1")
        A(f"s_mul_i32 s6, s4, 320")
        A(f"s_add_u32 s6, s6, 1280")
        A(f"s_lshl_b32 s7, s{sOdd}, 6")
        A(f"s_add_u32 s7, s7, s6")
        A(f"s_cmp_eq_u32 s{sOdd}, 0")
        A(f"s_cselect_b32 s8, 256, 0")
        A(f"s_add_u32 s8, s8, s6")
        A(f"v_lshl_add_u32 v{vT2}, v{vT1}, 4, v{vT0}")
        A(f"v_add_u32 v{vWo}, s7, v{vT2}")
        A(f"v_xor_b32 v{vT3}, 2, v{vT1}")
        A(f"v_lshl_add_u32 v{vT2}, v{vT3}, 4, v{vT0}")
        A(f"v_add_u32 v{vWo+2}, s7, v{vT2}")
        A(f"v_lshrrev_b32 v{vT2}, 2, v{vT1}")
        A(f"v_lshlrev_b32 v{vT3}, 1, v{vT2}")
        A(f"v_xor_b32 v{vT3}, v{vT3}, v{vT1}")
        A(f"v_and_b32 v{vT3}, 3, v{vT3}")
        A(f"v_lshl_add_u32 v{vT3}, v{vT3}, 4, v{vT0}")
        A(f"v_mul_u32_u24 v{vT2}, 1280, v{vT2}")
        A(f"v_add3_u32 v{vWo+1}, v{vT3}, v{vT2}, s8")
        chunks = [(S_W, vWo, 0), (S_W, vWo, 128), (S_W, vWo + 2, 1280), (S_W, vWo + 2, 1408), (S_W, vWo + 1, 0)]
    A(f"s_lshr_b32 s{sTmp}, s{sWave}, 2")
    A(f"s_lshl_b32 s{sTmp2}, s{sTmp2}, 10")
    A(f"s_add_u32 s{sWrapW}, s{sTmp2}, {W_LDS + 5*W_SLOT}")
    A(f"s_mul_i32 s{sWslot}, s{sTmp}, {W_SLOT}")
    A(f"s_add_u32 s{sWslot}, s{sWslot}, s{sTmp2}")
    A(f"s_add_u32 s{sWslot}, s{sWslot}, {W_LDS}")
    A(f"s_mul_i32 s{sKW}, s{sC0}, {64*pitch}")
    A(f"s_mul_i32 s{sTmp}, s{sTmp}, {32*pitch}")
    A(f"s_add_u32 s{sKW}, s{sKW}, s{sTmp}")
    A(f"s_mov_b32 s{sKWn}, 0")

    def dmaW():
        out = []
        for i, (sr, vo, imm) in enumerate(chunks):
            out.append(f"s_add_u32 m0, s{sWslot}, {i*4096 - imm}\n" +
                       "s_nop 0\n" +
                       f"buffer_load_dwordx4 v{vo}, {srd(sr)}, s{sKW} offen offset:{imm} lds")
        out.append(f"s_add_u32 s{sWslot}, s{sWslot}, {2*W_SLOT}\n"
                   f"s_cmp_ge_u32 s{sWslot}, s{sWrapW}\n"
                   f"s_cselect_b32 s{sTmp}, {5*W_SLOT}, 0\n"
                   f"s_sub_u32 s{sWslot}, s{sWslot}, s{sTmp}\n"
                   f"s_add_u32 s{sKW}, s{sKW}, {64*pitch}\n"
                   f"s_cmp_ge_u32 s{sKW}, {640*pitch}\n"
                   f"s_cselect_b32 s{sTmp}, {640*pitch}, 0\n"
                   f"s_sub_u32 s{sKW}, s{sKW}, s{sTmp}")
        return out

    def dmaX():
        out = []
        for i in range(4):
            out.append(f"s_add_u32 m0, s{sXslot}, {i*1024}\n" +
                       f"s_add_u32 s{sTmp}, s{sKX}, {16*1280}\n" +
                       f"buffer_load_dwordx4 v{vXo+i%2}, {srd(S_X)}, s{sKX if i < 2 else sTmp} offen lds")
        out.append(f"s_xor_b32 s{sXslot}, s{sXslot}, 16384\n"
                   f"s_add_u32 s{sKX}, s{sKX}, 128\n"
                   f"s_cmp_eq_u32 s{sKX}, 1280\n"
                   f"s_cselect_b32 s{sKX}, 0, s{sKX}")
        return out

    A(f"s_cmp_lt_u32 s{sWave}, 4")
    A(f"s_cbranch_scc1 {L('p1')}")
    for g in dmaX():
        A(g)
    A(f"s_branch {L('p2')}")
    A.label(L("p1"))
    for g in dmaW():
        A(g)
    A.label(L("p2"))
    lstamp(A, 16)

    if OPT["STAMP"] == 3:
        stamp(A, 4, 0, wave=OPT["SW"])
    if S16:
        A(f"v_and_b32 v{vT0}, 15, v{vLane}")
        A(f"v_lshrrev_b32 v{vT1}, 4, v{vLane}")
        A(f"v_bfe_u32 v{vT2}, v{vLane}, 1, 3")
        A(f"v_xor_b32 v{vT1}, v{vT1}, v{vT2}")
        A(f"s_lshl_b32 s{sTmp}, s{sMW}, 13")
        A(f"v_lshl_add_u32 v{vT0}, v{vT0}, 7, s{sTmp}")
        for kap in range(2):
            A(f"v_xor_b32 v{vT2}, {4*kap}, v{vT1}")
            A(f"v_lshl_add_u32 v{vXa+2*kap}, v{vT2}, 4, v{vT0}")
            A(f"v_add_u32 v{vXa+2*kap+1}, 2048, v{vXa+2*kap}")
    else:
        A(f"v_and_b32 v{vT0}, 31, v{vLane}")
        A(f"v_lshrrev_b32 v{vT1}, 5, v{vLane}")
        A(f"v_bfe_u32 v{vT2}, v{vLane}, 1, 3")
        A(f"v_xor_b32 v{vT1}, v{vT1}, v{vT2}")
        A(f"s_lshl_b32 s{sTmp}, s{sMW}, {13 if G else 12}")
        A(f"v_lshl_add_u32 v{vT0}, v{vT0}, 7, s{sTmp}")
        for kap in range(2):
            for kk in range(2):
                A(f"v_xor_b32 v{vT2}, {4*kap+2*kk}, v{vT1}")
                A(f"v_lshl_add_u32 v{vXa+2*kap+kk}, v{vT2}, 4, v{vT0}")
    A(f"v_lshrrev_b32 v{vT0}, {4 if S16 else 5}, v{vLane}")
    A(f"v_lshlrev_b32 v{vT0}, 10, v{vT0}")
    A(f"v_bfe_u32 v{vT1}, v{vLane}, 2, 2")
    A(f"v_lshl_add_u32 v{vT0}, v{vT1}, 7, v{vT0}")
    A(f"v_and_b32 v{vT2}, 3, v{vLane}")
    if typ != "K" and not S16:
        A(f"v_lshlrev_b32 v{vT3}, 1, v{vT2}")
        A(f"v_lshrrev_b32 v{vT2}, 1, v{vT2}")
        A(f"v_and_b32 v{vT3}, 2, v{vT3}")
        A(f"v_or_b32 v{vT2}, v{vT2}, v{vT3}")
    A(f"v_lshl_add_u32 v{vT0}, v{vT2}, 3, v{vT0}")
    A(f"v_and_b32 v{vT1}, 2, v{vT1}")
    A(f"v_bfe_u32 v{vT2}, v{vLane}, 4, 1")
    A(f"v_xor_b32 v{vT1}, v{vT1}, v{vT2}")
    if G:
        if not S16:
            A(f"v_mul_u32_u24 v{vT2}, {3*4096}, v{vT2}")
            A(f"v_add_u32 v{vT0}, v{vT0}, v{vT2}")
        for a in range(3):
            A(f"s_mul_i32 s{sTmp}, s{sNW}, 3")
            A(f"s_add_u32 s{sTmp}, s{sTmp}, {a}")
            A(f"s_lshr_b32 s{sTmp2}, s{sTmp}, 2")
            A(f"s_lshl_b32 s{sTmp2}, s{sTmp2}, 12")
            A(f"s_and_b32 s{sTmp}, s{sTmp}, 3")
            A(f"v_xor_b32 v{vT2}, s{sTmp}, v{vT1}")
            A(f"v_lshl_add_u32 v{vT2}, v{vT2}, 5, v{vT0}")
            A(f"v_add_u32 v{vWb+a}, s{sTmp2}, v{vT2}")
    else:
        for a in range(5):
            if typ == "Q":
                A(f"s_mul_i32 s{sTmp}, s{sNW}, 5")
                A(f"s_add_u32 s{sTmp}, s{sTmp}, {a}")
                A(f"s_lshr_b32 s{sTmp2}, s{sTmp}, 1")
                A(f"s_lshl_b32 s{sTmp2}, s{sTmp2}, 12")
                A(f"s_and_b32 s{sTmp}, s{sTmp}, 1")
                A(f"s_lshl_b32 s{sTmp}, s{sTmp}, 1")
                A(f"v_xor_b32 v{vT2}, s{sTmp}, v{vT1}")
                A(f"v_lshl_add_u32 v{vT2}, v{vT2}, 5, v{vT0}")
                A(f"v_add_u32 v{vWb+a}, s{sTmp2}, v{vT2}")
            else:
                def loc(pi, nw, odd):
                    m, p = pi // 5, 5 * nw + pi % 5
                    if odd:
                        L_, tau = (4, p + 2 * m) if p < 2 else (2 * m + ((p - 2) >> 2), (p - 2) & 3)
                    else:
                        L_, tau = (4, p - 8 + 2 * m) if p >= 8 else (2 * m + (p >> 2), p & 3)
                    return L_ * 4 + (tau ^ m)
                if a == 0:
                    A(f"s_lshl_b32 s9, s{sNW}, 1")
                    A(f"s_add_u32 s9, s9, s{sOdd}")
                    A("s_lshl_b32 s9, s9, 3")
                    A(f"v_bfe_u32 v{vT2}, v{vLane}, 4, 1")
                    A(f"v_cmp_eq_u32 vcc, 1, v{vT2}")
                    A(f"v_and_b32 v{vT1}, 2, v{vT1}")
                for sub, sr in ((0, sTmp), (1, sTmp2)):
                    tab = sum(loc(2 * a + sub, nw, odd) << (8 * (2 * nw + odd)) for nw in range(2) for odd in range(2))
                    A(f"s_lshr_b32 s{sr}, {tab}, s9")
                    A(f"s_and_b32 s{sr}, s{sr}, 0xff")
                A(f"v_mov_b32 v{vT2}, s{sTmp}")
                A(f"v_mov_b32 v{vT3}, s{sTmp2}")
                A(f"v_cndmask_b32 v{vT2}, v{vT2}, v{vT3}, vcc")
                A(f"v_lshrrev_b32 v{vT3}, 2, v{vT2}")
                A(f"v_lshl_add_u32 v{vT3}, v{vT3}, 12, v{vT0}")
                A(f"v_and_b32 v{vT2}, 3, v{vT2}")
                A(f"v_xor_b32 v{vT2}, v{vT2}, v{vT1}")
                A(f"v_lshl_add_u32 v{vWb+a}, v{vT2}, 5, v{vT3}")
        if typ == "K":
            kv_addr_setup(A)
    A(f"s_mov_b32 s{sRslot}, {W_LDS}")
    poll_addr(A)
    A(f"v_and_b32 v{vT0}, 15, v{vLane}")
    A(f"v_bfe_u32 v{vT1}, v{vLane}, 4, 1")
    A(f"v_cmp_eq_u32 vcc, v{vT0}, v{vT1}")
    A(f"v_mov_b32 v{vT2}, 0x3f803f80")
    A(f"v_cndmask_b32 v{vSel}, 0, v{vT2}, vcc")
    for i in range(1, 4):
        A(f"v_mov_b32 v{vSel+i}, v{vSel}")
    if S16:
        for i in range(4):
            A(f"v_mov_b32 v{sel+i}, 0x3f803f80")
    for i in range(4 * NCS):
        A(f"v_mov_b32 v{vCSA+i}, 0")
    for i in range(16 * MT * NT):
        A(f"v_mov_b32 v{vACC+i}, 0")
    A(f"s_mov_b32 s{sPub}, 2")
    A(f"s_bitcmp1_b32 0x88ff, s{sRB}")
    A(f"s_cselect_b32 s{sCSit}, 0, 99")
    A(f"s_cmp_eq_u32 s{sMW}, 0")
    A(f"s_cselect_b32 s{sCSit}, s{sCSit}, 99")
    A(f"s_mov_b32 s{sTmp}, 0xe")
    A(f"s_cmp_eq_u32 s{sWave}, 0")
    A(f"s_cselect_b32 s{sSpec}, s{sTmp}, 0")
    A(f"s_cmp_eq_u32 s{sWave}, 3")
    A(f"s_cselect_b32 s{sTmp}, 0xc0, 0")
    A(f"s_or_b32 s{sSpec}, s{sSpec}, s{sTmp}")
    A(f"s_or_b32 s{sSpec}, s{sSpec}, 0x300")
    A(f"s_mov_b32 s{sIt}, 0")
    A(f"s_mov_b32 s{sSpin}, 0")
    p2_ids(A, vec=False)
    ffn_setup(A)
    A(f"s_cmp_lt_u32 s{sWave}, 4")
    A(f"s_cselect_b32 s{sWo}, {OOB}, s{sWo}")

    def reads(P, kap):
        pre = [f"v_add_u32 v{vWa+a}, s{sRslot}, v{vWb+a}" for a in range(NT)]
        post = [f"s_add_u32 s{sRslot}, s{sRslot}, {W_SLOT}\n"
                f"s_cmp_eq_u32 s{sRslot}, {W_LDS+5*W_SLOT}\n"
                f"s_cselect_b32 s{sRslot}, {W_LDS}, s{sRslot}"]
        rx = lambda mt, kk: [f"ds_read_b128 {vr(XB(P, mt, kk))}, v{vXa+2*kap+kk} offset:{mt*4096}"]
        rw = lambda a, kk: [f"ds_read_b64_tr_b16 {vr(WBf(P, a, kk)+2*rho, 2)}, v{vWa+a} offset:{kk*(12288 if S16 else 2048)+rho*512}" for rho in range(2)]
        if S16:
            out = rw(0, 0) + rw(1, 0) + rw(2, 0) + rw(0, 1) + rw(1, 1) + rx(0, 0) + rx(1, 0) + rx(0, 1) + rx(1, 1) + rw(2, 1)
        else:
            out = []
            for kk in range(2):
                for a in range(NT):
                    out += rw(a, kk)
                for mt in range(MT):
                    out += rx(mt, kk)
        if OPT["NORD"]:
            out = []
        return pre, out, post

    def mfmas(P):
        out = []
        if S16:
            for kw in range(2):
                for a in range(3):
                    for t in (0, 2, 1, 3):
                        d = vr(acc16(t, a, kw))
                        out.append(f"v_mfma_f32_16x16x32_bf16 {d}, {vr(WBf(P, a, kw))}, {vr(XB(P, t // 2, t % 2))}, {d}")
            return out
        for kk in range(2):
            for a in range(NT):
                for mt in range(MT):
                    x, w, d = vr(XB(P, mt, kk)), vr(WBf(P, a, kk)), vr(acc(mt, a), 16)
                    if OPT["FAKE16"]:
                        for h in range(2):
                            dq = vr(acc(mt, a) + 8 * kk + 4 * h)
                            x2 = vr(XB(P, mt, h))
                            out.append(f"v_mfma_f32_16x16x32_bf16 {dq}, {w}, {x2}, {dq}")
                    elif typ == "K":
                        out.append(f"v_mfma_f32_32x32x16_bf16 {d}, {x}, {w}, {d}")
                    else:
                        out.append(f"v_mfma_f32_32x32x16_bf16 {d}, {w}, {x}, {d}")
        return out

    def cs_mfmas(P):
        if S16:
            return [f"v_mfma_f32_16x16x32_bf16 {vr(vCSA+4*(2*a+kk))}, {vr(WBf(P, a, kk))}, {vr(sel)}, {vr(vCSA+4*(2*a+kk))}"
                    for kk in range(2) for a in range(3)]
        return [f"v_mfma_f32_16x16x32_bf16 {vr(vCSA+4*a)}, {vr(WBf(P, a, kk))}, {vr(vSel)}, {vr(vCSA+4*a)}"
                for kk in range(2) for a in range(NT)]

    if OPT["STAMP"] == 3:
        stamp(A, 5, 0, wave=OPT["SW"])
    n = len(mfmas(0))
    f = lambda k: k / n
    nod = OPT["NODMA"]

    def loop(R):
        LL = lambda s: f"L_{typ}{R}_{s}"
        lstamp(A, 17)
        if R == "B":
            for g in dmaW():
                A(g)
        A(f"s_waitcnt vmcnt({NW_ + (4 if R == 'B' else 0)})")
        k1_stats(A, typ)
        lstamp(A, 18)
        A(f"s_waitcnt vmcnt({1 if R == 'A' else NW_ + 1})")
        lstamp(A, 19)
        A("s_barrier")
        pre, rd, post = reads(0, 0)
        for g in pre + rd + post:
            A(g)
        if R == "A":
            A("s_setprio 1")
            stamp(A, 1, 0)
            stamp(A, 14, 0, clk=True)
        else:
            for g in dmaX():
                A(g)
        A("s_waitcnt lgkmcnt(0)")
        lstamp(A, 20)
        for g in mfmas(0):
            A(g)
        if R == "A":
            A(f"s_cmp_lg_u32 s{sCSit}, 0")
            A(f"s_cbranch_scc1 {LL('pc0')}")
            for g in cs_mfmas(0):
                A(g)
            A.label(LL("pc0"))
            for g in dmaW():
                A(g)
            A(f"s_sub_u32 s{sUw}, s{sWave}, 1")
            A(f"s_cmp_gt_u32 s{sUw}, 1")
            A(f"s_cbranch_scc1 {LL('nou')}")
            A(f"s_lshl_b32 s{sU}, s{sCG}, 4")
            A(f"s_add_u32 s{sU}, s{sU}, s{sRB}")
            A(f"s_lshl_b32 s{sU}, s{sU}, 1")
            A(f"s_add_u32 s{sU}, s{sU}, s{sUw}")
            A(f"s_lshl_b32 s{sUl}, s{sUw}, 12")
            A(f"s_add_u32 s{sUl}, s{sUl}, {MISC_LDS}")
            w2_unit_dma(A, f"s{sUl}")
            A.label(LL("nou"))
        else:
            A("s_waitcnt vmcnt(5)")
        lstamp(A, 21)
        A("s_barrier")
        pre, rd, post = reads(1, 1)
        for g in pre + rd + post:
            A(g)
        if R == "B":
            for g in dmaW():
                A(g)
        A("s_waitcnt lgkmcnt(0)")
        lstamp(A, 22)
        for g in mfmas(1):
            A(g)
        if R == "A":
            for g in dmaW():
                A(g)
            A(f"s_cmp_eq_u32 s{sCSit}, 0")
            A(f"s_cbranch_scc1 {LL('cs1')}")
            A(f"s_waitcnt vmcnt({NW_})")
            A.label(LL("pc1"))
            A(f"s_cmp_gt_u32 s{sUw}, 1")
            A(f"s_cbranch_scc1 {LL('pc2')}")
            w2_unit_out(A, f"s{sUl}", (lambda t: (96, 100, 144, 148)[t]) if G else (lambda t: 232 + 4 * t) if typ == 'Q' else (lambda t: vBUF + 4 * t))
            A.label(LL("pc2"))
        else:
            A("s_waitcnt vmcnt(0)")
        lstamp(A, 23)
        A("s_barrier")
        if R == "B":
            for g in dmaX() + dmaW():
                A(g)
        for i in range(4):
            A(f"v_xor_b32 v{vXa+i}, 16384, v{vXa+i}")
        pre, rd, post = reads(0, 0)
        for g in pre + rd + post:
            A(g)
        A(f"s_mov_b32 s{sIt}, 1")
        if R == "A" and OPT["NXA"]:
            for _ in range(3):
                A(dmaX()[4])
        A("s_waitcnt lgkmcnt(0)")
        lstamp(A, 0)
        A(".p2align 6")
        A.label(LL("loop"))
        pre, rd, post = reads(1, 1)
        for g in interleave(mfmas(0), (pre, 0.0, f(1)), (rd, f(1), 0.7), (post, 0.75, 0.85)):
            A(g)
        if R == "A":
            A(f"s_bitcmp1_b32 s{sSpec}, s{sIt}")
            A(f"s_cbranch_scc1 {LL('spec')}")
            A.label(LL("specr"))
            for g in dmaW():
                A(g)
            A(f"s_waitcnt vmcnt({NW_}) lgkmcnt(0)")
            A.label(LL("bar"))
        else:
            A("s_waitcnt vmcnt(0) lgkmcnt(0)")
        A("s_barrier")
        if OPT["DLY"] == 1 and G:
            A("s_sleep 3")
        pre, rd, post = reads(0, 0)
        pre = [f"v_xor_b32 v{vXa+i}, 16384, v{vXa+i}" for i in range(2)] + pre
        post = post + [f"v_xor_b32 v{vXa+i}, 16384, v{vXa+i}" for i in range(2, 4)]
        tail = [f"s_add_u32 s{sIt}, s{sIt}, 1\ns_cmp_lt_u32 s{sIt}, 10"]
        nxa = OPT["NXA"]
        if R == "B":
            dw = dmaW()
            nb = OPT["NBUP"]
            A(f"s_cmp_ge_u32 s{sIt}, 8")
            A(f"s_cbranch_scc1 {LL('nod')}")
            for g in dmaX()[nxa:] + dw[:nb]:
                A(g)
            for g in interleave(mfmas(1), (pre, 0.0, f(1)), (dw[nb:], 0.0, 0.4), (rd, f(1), 0.7), (post, 0.7, 0.8), (tail, f(n-2), f(n-1))):
                A(g)
            A.label(LL("end"))
        else:
            chk1 = tail
            xa = []
            if nxa:
                dx = dmaX()
                xa = [f"s_cmp_ge_u32 s{sIt}, 8\ns_cbranch_scc1 {LL('nox')}\n" + "\n".join(dx[:nxa] + dx[4:]) + f"\n{LL('nox')}:"]
            for g in interleave(mfmas(1), (pre, 0.0, f(1)), (xa, f(OPT["XPOS"]), f(OPT["XPOS"]+1)), (rd, f(1), 0.7), (post, 0.7, 0.8), (chk1, f(n-2), f(n-1))):
                A(g)
        if OPT["STAMP"] == 4:
            A("s_memrealtime s[96:97]")
            A(f"s_mov_b32 m0, s{sIt}")
        A("s_waitcnt lgkmcnt(0)")
        if OPT["STAMP"] == 4:
            A("v_writelane_b32 v28, s96, m0")
        A(f"s_cbranch_scc1 {LL('loop')}")
        A(f"s_branch {L('epi')}")

        if R == "B":
            A.label(LL("nod"))
            if typ not in OPT_WOEPI:
                A(f"s_cmp_eq_u32 s{sIt}, 9")
                A(f"s_cbranch_scc1 {LL('nod9')}")
                wo_early(A, 24, 7)
                A(f"s_branch {LL('nod2')}")
                A.label(LL("nod9"))
                wo_early(A, 72, 7)
                A.label(LL("nod2"))
            for g in interleave(mfmas(1), (pre, 0.0, f(1)), (rd, f(1), 0.7), (post, 0.7, 0.8), (tail, f(n-2), f(n-1))):
                A(g)
            A(f"s_branch {LL('end')}")
            return
        A.label(LL("cs1"))
        for g in cs_mfmas(1):
            A(g)
        A(f"v_and_b32 v{vT0}, 15, v{vLane}")
        A(f"v_lshrrev_b32 v{vT1}, 4, v{vLane}")
        A(f"v_lshlrev_b32 v{vT1}, 4, v{vT1}")
        A(f"v_lshl_add_u32 v{vT1}, v{vT0}, 6, v{vT1}")
        A(f"v_cmp_gt_u32 vcc, {1 if S16 else 2}, v{vT0}")
        A(f"v_mov_b32 v{vT2}, {OOB}")
        A(f"v_cndmask_b32 v{vT1}, v{vT2}, v{vT1}, vcc")
        A(f"s_mul_i32 s{sTmp}, s{sCG}, 10")
        A(f"s_add_u32 s{sTmp}, s{sTmp}, s{sC0}")
        A(f"s_mul_i32 s{sTmp}, s{sTmp}, 1536")
        A(f"s_mul_i32 s{sTmp2}, s{sNW}, {NT*128}")
        A(f"s_add_u32 s{sTmp}, s{sTmp}, s{sTmp2}")
        A(f"s_add_u32 s{sTmp}, s{sTmp}, {WS_CS}")
        for a in range(NCS):
            A(f"buffer_store_dwordx4 {vr(vCSA+4*a)}, v{vT1}, {srd(S_WS)}, s{sTmp} offen offset:{a*(64 if S16 else 128)} sc1")
        A(f"s_waitcnt vmcnt({NW_+NCS})")
        A(f"s_branch {LL('pc1')}")

        def with_dma(nops, body):
            for g in dmaW():
                A(g)
            body()
            A(f"s_waitcnt vmcnt({NW_+nops}) lgkmcnt(0)")
            A(f"s_branch {LL('bar')}")
        A.label(LL("spec"))
        A(f"s_cmp_eq_u32 s{sIt}, 9")
        A(f"s_cbranch_scc1 {LL('sum')}")
        A(f"s_cmp_eq_u32 s{sIt}, 8")
        A(f"s_cbranch_scc1 {LL('go')}")
        A(f"s_cmp_eq_u32 s{sIt}, 7")
        A(f"s_cbranch_scc1 {LL('chk')}")
        A(f"s_cmp_eq_u32 s{sIt}, 6")
        A(f"s_cbranch_scc1 {LL('poll0')}")
        A.label(LL("pub"))

        A(f"s_cmp_lg_u32 s{sIt}, 2")
        A(f"s_cbranch_scc1 {LL('pub1')}")
        wait_zeroed(A, LL("wz"), True)
        A.label(LL("pub1"))

        def pub():
            A(f"s_cmp_eq_u32 s{sIt}, 3")
            A(f"s_cbranch_scc1 {LL('pub3')}")
            A(f"s_cmp_eq_u32 s{sIt}, 2")
            A(f"s_cbranch_scc1 {LL('pub2')}")
            A(f"buffer_load_dword v{vPoll}, off, {srd(S_DBG)}, 0 sc1")
            A(f"s_branch {LL('pub3')}")
            A.label(LL("pub2"))
            k1_publish(A)
            A.label(LL("pub3"))
        with_dma(1, pub)
        A.label(LL("poll0"))
        with_dma(1, lambda: A(f"buffer_load_dword v{vPoll}, v{vPa}, {srd(S_WS)}, 0 offen sc1"))
        A.label(LL("poll"))
        A("s_sleep 8")
        A(f"buffer_load_dword v{vPoll}, v{vPa}, {srd(S_WS)}, 0 offen sc1")
        A.label(LL("chk"))
        A("s_waitcnt vmcnt(0)")
        poll_cmp(A)
        A(f"s_add_u32 s{sSpin}, s{sSpin}, 1")
        A(f"s_cmp_gt_u32 s{sSpin}, {SPIN_MAX}")
        A(f"s_cbranch_scc1 {LL('specr')}")
        A(f"s_cmp_lg_u64 vcc, 0")
        A(f"s_cbranch_scc1 {LL('poll')}")
        A(f"s_branch {LL('specr')}")
        A.label(LL("go"))

        def go():
            A(f"v_lshlrev_b32 v{vT0}, 3, v0")
            A(f"v_cmp_gt_u32 vcc, {NT*(4 if G else 2)*16}, v0")
            A(f"v_mov_b32 v{vT2}, {OOB}")
            A(f"v_cndmask_b32 v{vT0}, v{vT2}, v{vT0}, vcc")
            A(f"s_mul_i32 s{sTmp}, s{sCG}, 15360")
            A(f"s_add_u32 s{sTmp}, s{sTmp}, {WS_CS}")
            for ch in range(10):
                if ch % 2 == 0 and ch:
                    A(f"s_add_u32 s{sTmp}, s{sTmp}, 3072")
                A(f"buffer_load_dwordx2 {vr(vCSP+2*ch, 2)}, v{vT0}, {srd(S_WS)}, s{sTmp} offen offset:{(ch%2)*1536} sc1")
            A(f"s_lshl_b32 s{sTmp}, s{sRB}, 10")
            A(f"s_add_u32 s{sTmp}, s{sTmp}, {WS_ST}")
            A(f"v_lshlrev_b32 v{vT1}, 2, v0")
            A(f"buffer_load_dword v{vSt}, v{vT1}, {srd(S_WS)}, s{sTmp} offen sc1")
        go()
        if typ not in OPT_WOEPI:
            wo_early(A, 0, 6)
        A(f"s_waitcnt vmcnt({11 if typ in OPT_WOEPI else 17}) lgkmcnt(0)")
        A(f"s_branch {LL('bar')}")
        A.label(LL("sum"))
        A(f"s_waitcnt vmcnt({0 if typ in OPT_WOEPI else 6})")
        for ch in range(1, 10):
            A(f"v_add_f32 v{vCSP}, v{vCSP}, v{vCSP+2*ch}")
            A(f"v_add_f32 v{vCSP+1}, v{vCSP+1}, v{vCSP+2*ch+1}")
        A(f"v_lshlrev_b32 v{vT0}, 3, v0")
        A(f"v_add_u32 v{vT0}, {KV_CS if typ == 'K' else MISC_LDS}, v{vT0}")
        A(f"ds_write_b64 v{vT0}, {vr(vCSP, 2)}")
        if typ == "K":
            A(f"v_rsq_f32 v{vT2}, v{vSt}")
            A(f"v_and_b32 v{vT1}, 1, v0")
            A(f"v_cmp_eq_u32 vcc, 1, v{vT1}")
            A(f"v_lshlrev_b32 v{vT1}, 9, v{vT1}")
            A(f"v_lshrrev_b32 v{vT0}, 1, v0")
            A(f"v_lshl_add_u32 v{vT1}, v{vT0}, 2, v{vT1}")
            A(f"v_add_u32 v{vT1}, {KV_ST}, v{vT1}")
            A(f"v_cndmask_b32 v{vT0}, v{vSt}, v{vT2}, vcc")
            A(f"ds_write_b32 v{vT1}, v{vT0}")
            A(f"v_mul_f32 v{vT2}, {f32(LOG2E)}, v{vT2}")
            A(f"ds_write_b32 v{vT1}, v{vT2} offset:1024")
        else:
            A(f"v_lshlrev_b32 v{vT1}, 2, v0")
            A(f"v_add_u32 v{vT1}, {MISC_LDS+2048}, v{vT1}")
            A(f"ds_write_b32 v{vT1}, v{vSt}")
        if typ not in OPT_WOEPI:
            wo_early(A, 52, 5)
        A("s_waitcnt lgkmcnt(0)")
        A(f"s_branch {LL('bar')}")

    A(f"s_cmp_ge_u32 s{sWave}, 4")
    A(f"s_cbranch_scc1 {L('roleB')}")
    loop("A")
    A.label(L("roleB"))
    loop("B")

    A.label(L("epi"))
    if (OPT["DLY"] == 2 and typ == "G") or (OPT["DLY"] == 3 and typ == "K"):
        A("s_sleep 30")
    A("s_setprio 0")
    cstamp(A, 0)
    stamp(A, 2, 0)
    stamp(A, 4, 0, wave=4, vt=50)
    stamp(A, 7, 0, wave=4, vt=50, clk=True)
    stamp(A, 15, 0, clk=True)
    if OPT["STAMP"] == 4:
        A(f"v_lshlrev_b32 v29, 2, v0")
        A(f"s_lshl_b32 s98, s2, 11")
        A(f"s_add_u32 s98, s98, {WS_STAMP + 0x10000}")
        A(f"buffer_store_dword v28, v29, {srd(S_WS)}, s98 offen")
    A(f"v_lshlrev_b32 v{vL16}, 4, v{vLane}")
    if True:
        epi = {"G": k1_epi_g16 if S16 else k1_epi_g, "Q": k1_epi_q, "K": k1_epi_kv}[typ]
        body = []
        epi(body.append, acc)
        npre = min(OPT["NPRE"], {"G": 6, "Q": 4, "K": 2}[typ])
        early = [g for j in range(min(4, npre)) for g in ldW_groups(j)]
        late = [g for j in range(4, npre) for g in ldW_groups(j)]
        wod = []
        if typ in OPT_WOEPI:
            A(f"s_mul_i32 s12, s{sWave}, 13")
            A("s_min_u32 s12, s12, 87")
            A("s_lshl_b32 s12, s12, 10")
            A(f"s_mul_i32 s13, s{sC}, {74*5120}")
            A("s_add_u32 s13, s13, s12")
            A(f"s_add_u32 s13, s13, {WS_W2 + 54*5120}")
            A(f"s_add_u32 s12, s12, {WO_LDS}")
            wod = [f"s_add_u32 m0, s12, {i*1024}\ns_add_u32 s14, s13, {i*1024}\n"
                   f"buffer_load_dwordx4 v{vL16}, {srd(S_WS)}, s14 offen sc1 lds" for i in range(13)]
        for g in interleave(body, (wod, 0.02, 0.6), (early, 0.02, 0.5 if npre > 4 else 0.7), (late, 0.5, 0.8)):
            A(g)
        A(f"s_mov_b32 s{sWoDone}, {npre + 1}")
    cstamp(A, 7)
    if OPT["STAMP"] == 7:
        A(f"v_lshlrev_b32 v49, 2, v0")
        A(f"s_lshl_b32 s98, s2, 11")
        A(f"s_add_u32 s98, s98, {WS_STAMP + 0x10000}")
        A(f"buffer_store_dword v48, v49, {srd(S_WS)}, s98 offen")
    stamp(A, 3, 0)
    stamp(A, 5, 0, wave=4, vt=50)
    stamp(A, 8, 0, wave=4, vt=50, clk=True)
    A(f"v_mov_b32 v{vSigA}, {OOB}")
    if typ == "K":
        A(f"s_sub_u32 s{sTmp}, s{sCG}, 9")
        A(f"s_lshl_b32 s{sTmp}, s{sTmp}, 11")
        A(f"s_add_u32 s{sTmp}, s{sTmp}, {WS_FL + FL_KV}")
        A(f"v_lshl_add_u32 v{vT0}, v{vLane}, 8, s{sTmp}")
        A(f"v_cmp_gt_u32 vcc, 8, v{vLane}")
        A(f"v_cndmask_b32 v{vSigA}, v{vSigA}, v{vT0}, vcc")
        A(f"v_mov_b32 v{vSigV}, 1")
    else:
        A(f"s_lshl_b32 s{sTmp}, s{sRB}, 8")
        A(f"s_add_u32 s{sTmp}, s{sTmp}, {WS_FL + FL_HC}")
        A(f"v_writelane_b32 v{vSigA}, s{sTmp}, 0")
        A(f"s_lshl_b32 s{sTmp}, 1, s{sCG}")
        A(f"v_mov_b32 v{vSigV}, s{sTmp}")
    A("s_branch L_p2")


def k1_stats_issue(A):
    b = vBUF
    A(f"s_lshl_b32 s{sRow}, s{sRB}, 7")
    A(f"s_lshl_b32 s{sTmp2}, s{sCG}, 3")
    A(f"s_add_u32 s{sRow}, s{sRow}, s{sTmp2}")
    A(f"s_add_u32 s{sRow}, s{sRow}, s{sWave}")
    A(f"s_mul_i32 s{sTmp2}, s{sRow}, 1280")
    A(f"v_lshlrev_b32 v{vT0}, 3, v{vLane}")
    A(f"v_lshlrev_b32 v{vT1}, 2, v{vLane}")
    A(f"buffer_load_dwordx2 {vr(b, 2)}, v{vT0}, {srd(S_X)}, s{sTmp2} offen")
    A(f"buffer_load_dwordx2 {vr(b+2, 2)}, v{vT0}, {srd(S_X)}, s{sTmp2} offen offset:512")
    A(f"buffer_load_dword v{b+4}, v{vT1}, {srd(S_X)}, s{sTmp2} offen offset:1024")


def k1_stats(A, typ):
    b = vBUF
    if typ == "A":
        A("s_waitcnt vmcnt(0)")
    for i in range(5):
        A(f"v_lshlrev_b32 v{b+8+2*i}, 16, v{b+i}")
        A(f"v_and_b32 v{b+9+2*i}, 0xffff0000, v{b+i}")
    s = b + 20
    A(f"v_add_f32 v{s}, v{b+8}, v{b+9}")
    for i in range(2, 10):
        A(f"v_add_f32 v{s}, v{s}, v{b+8+i}")
    wave_allreduce_add(A, s, s + 1, 4)
    A(f"v_mul_f32 v{s}, {f32(1.0/640)}, v{s}")
    for i in range(10):
        A(f"v_sub_f32 v{b+8+i}, v{b+8+i}, v{s}")
    A(f"v_mul_f32 v{s+1}, v{b+8}, v{b+8}")
    for i in range(1, 10):
        A(f"v_fmac_f32 v{s+1}, v{b+8+i}, v{b+8+i}")
    wave_allreduce_add(A, s + 1, s + 2, 4)
    A(f"v_mov_b32 v{s+2}, {f32(1e-5)}")
    A(f"v_fmac_f32 v{s+2}, {f32(1.0/640)}, v{s+1}")
    A(f"v_mov_b32 v{s+1}, v{s+2}")
    A(f"v_cmp_eq_u32 vcc, 0, v{vLane}")
    A(f"v_mov_b32 v{vT2}, {OOB}")
    A(f"v_cndmask_b32 v{vT0}, v{vT2}, v{vLane}, vcc")
    A(f"s_lshl_b32 s{sTmp}, s{sRow}, 3")
    A(f"s_add_u32 s{sTmp}, s{sTmp}, {WS_ST}")
    A(f"buffer_store_dwordx2 {vr(s, 2)}, v{vT0}, {srd(S_WS)}, s{sTmp} offen sc1")


def k1_publish(A):
    A(f"s_lshl_b32 s{sTmp}, s{sRB}, 8")
    A(f"s_add_u32 s{sTmp}, s{sTmp}, {WS_FL + FL_ROW}")
    A(f"v_mov_b32 v{vT0}, {OOB}")
    A(f"v_writelane_b32 v{vT0}, s{sTmp}, 0")
    A(f"v_mov_b32 v{vT1}, 1")
    A(f"buffer_atomic_add v{vT1}, v{vT0}, {srd(S_WS)}, 0 offen sc1")


def poll_addr(A):
    A(f"v_and_b32 v{vPa}, 15, v{vLane}")
    A(f"v_lshlrev_b32 v{vPa}, 8, v{vPa}")
    A(f"v_add_u32 v{vPa}, {WS_FL + FL_ROW}, v{vPa}")


def poll_cmp(A):
    A(f"v_cmp_gt_u32 vcc, 16, v{vPoll}")


def wait_zeroed(A, lab, first_issued):
    if first_issued:
        A(f"s_branch {lab}_c")
    A.label(lab)
    A("s_sleep 4")
    A(f"buffer_load_dword v{vPoll}, off, {srd(S_DBG)}, 0 sc1")
    A.label(lab + "_c")
    A("s_waitcnt vmcnt(0)")
    A(f"v_readfirstlane_b32 s{sTmp}, v{vPoll}")
    A(f"s_add_u32 s{sSpin}, s{sSpin}, 1")
    A(f"s_cmp_gt_u32 s{sSpin}, {SPIN_MAX}")
    A(f"s_cbranch_scc1 {lab}_ok")
    A(f"s_cmp_lt_u32 s{sTmp}, 16")
    A(f"s_cbranch_scc1 {lab}")
    A.label(lab + "_ok")


S_R = 88
sU, sUks, sUL = 92, 93, 94


def w2_unit_decode(A):
    A(f"s_mul_i32 s{sUks}, s{sU}, 205")
    A(f"s_lshr_b32 s{sUks}, s{sUks}, 11")
    A(f"s_mul_i32 s{sUL}, s{sUks}, 10")
    A(f"s_sub_u32 s{sUL}, s{sU}, s{sUL}")


def w2_unit_dma(A, lds):
    w2_unit_decode(A)
    A(f"s_cmp_lt_u32 s{sUks}, 54")
    A(f"s_cselect_b32 s{S_R}, s{P_D}, s{P_WO}")
    A(f"s_cselect_b32 s{S_R+1}, s{P_D+1}, s{P_WO+1}")
    A(f"s_mov_b32 s{S_R+2}, {640*1280}")
    A(f"s_cselect_b32 s{S_R+2}, {1728*1280}, s{S_R+2}")
    A(f"s_cselect_b32 s{sTmp}, 0, 54")
    A(f"s_and_b32 s{S_R+1}, s{S_R+1}, 0xffff")
    A(f"s_mov_b32 s{S_R+3}, 0x20000")
    A(f"s_sub_u32 s{sTmp}, s{sUks}, s{sTmp}")
    A(f"s_mul_i32 s{sTmp}, s{sTmp}, {32*1280}")
    A(f"s_lshl_b32 s{sTmp2}, s{sUL}, 7")
    A(f"s_add_u32 s{sTmp}, s{sTmp}, s{sTmp2}")
    A(f"v_lshrrev_b32 v{vT0}, 3, v{vLane}")
    A(f"v_mul_u32_u24 v{vT0}, 1280, v{vT0}")
    A(f"v_and_b32 v{vT1}, 7, v{vLane}")
    A(f"v_lshl_add_u32 v{vT0}, v{vT1}, 4, v{vT0}")
    for i in range(4):
        A(f"s_add_u32 m0, {lds}, {i*1024}")
        A("s_nop 0")
        A(f"buffer_load_dwordx4 v{vT0}, {srd(S_R)}, s{sTmp} offen lds")
        A(f"s_add_u32 s{sTmp}, s{sTmp}, {8*1280}")


def w2_unit_out(A, lds, F):
    w2_unit_decode(A)
    A(f"v_bfe_u32 v{vT0}, v{vLane}, 2, 2")
    A(f"v_lshlrev_b32 v{vT0}, 7, v{vT0}")
    A(f"v_and_b32 v{vT1}, 3, v{vLane}")
    A(f"v_lshl_add_u32 v{vT0}, v{vT1}, 3, v{vT0}")
    A(f"v_lshrrev_b32 v{vT1}, 4, v{vLane}")
    A(f"s_cmp_lt_u32 s{sUks}, 54")
    A(f"s_cselect_b32 s{sTmp}, 10, 9")
    A(f"s_movk_i32 s{sTmp2}, 512")
    A(f"s_cselect_b32 s{sTmp2}, s{sTmp2}, 2048")
    A(f"v_lshlrev_b32 v{vT1}, s{sTmp}, v{vT1}")
    A(f"v_add3_u32 v{vT0}, v{vT0}, v{vT1}, {lds}")
    A(f"v_add_u32 v{vT1}, s{sTmp2}, v{vT0}")
    for tau in range(4):
        A(f"ds_read_b64_tr_b16 {vr(F(tau), 2)}, v{vT0} offset:{tau*32}")
        A(f"ds_read_b64_tr_b16 {vr(F(tau)+2, 2)}, v{vT1} offset:{tau*32}")
    A(f"v_lshlrev_b32 v{vT2}, 4, v{vLane}")
    A("s_waitcnt lgkmcnt(0)")
    for tau in range(4):
        A(f"s_lshl_b32 s{sTmp}, s{sUL}, 2")
        A(f"s_add_u32 s{sTmp}, s{sTmp}, {tau}")
        A(f"s_mul_i32 s{sTmp2}, s{sTmp}, 205")
        A(f"s_lshr_b32 s{sTmp2}, s{sTmp2}, 10")
        A(f"s_mul_i32 s{sTmp3}, s{sTmp2}, {74*5-5}")
        A(f"s_add_u32 s{sTmp}, s{sTmp}, s{sTmp3}")
        A(f"s_mul_i32 s{sTmp3}, s{sUks}, 5")
        A(f"s_add_u32 s{sTmp}, s{sTmp}, s{sTmp3}")
        A(f"s_lshl_b32 s{sTmp}, s{sTmp}, 10")
        A(f"s_add_u32 s{sTmp}, s{sTmp}, {WS_W2}")
        A(f"s_cmp_lt_u32 s{sU}, 740")
        A(f"s_cselect_b32 s{sTmp}, s{sTmp}, {OOB}")
        A(f"buffer_store_dwordx4 {vr(F(tau))}, v{vT2}, {srd(S_WS)}, s{sTmp} offen sc1")


def k1_epi_g(A, acc):
    c = vBUF + 56
    cs = vBUF + 8
    t = vBUF + 40
    o = vBUF + 48
    A(f"v_lshrrev_b32 v{vT0}, 5, v{vLane}")
    A(f"v_lshlrev_b32 v{vT0}, 4, v{vT0}")
    A(f"s_mul_i32 s{sTmp}, s{sNW}, 384")
    A(f"s_add_u32 s{sTmp}, s{sTmp}, {MISC_LDS}")
    A(f"v_add_u32 v{vT0}, s{sTmp}, v{vT0}")
    A(f"v_and_b32 v{vT1}, 31, v{vLane}")
    A(f"s_lshl_b32 s{sTmp}, s{sMW}, 9")
    A(f"s_add_u32 s{sTmp}, s{sTmp}, {MISC_LDS+2048}")
    A(f"v_lshl_add_u32 v{vT1}, v{vT1}, 3, s{sTmp}")
    for mt in range(2):
        A(f"ds_read_b64 {vr(c+8*mt, 2)}, v{vT1} offset:{mt*256}")
    for q in range(4):
        A(f"ds_read_b128 {vr(cs+4*q)}, v{vT0} offset:{q*32}")
    A("s_waitcnt lgkmcnt(4)")
    for mt in range(2):
        mu, v, k1, k3 = c + 8 * mt, c + 8 * mt + 2, c + 8 * mt + 4, c + 8 * mt + 6
        A(f"v_mov_b32 v{v}, v{mu+1}")
        A(f"v_rsq_f32 v{t}, v{v}")
        A(f"v_mul_f32 v{k1}, {f32(GC1)}, v{t}")
        A(f"v_mul_f32 v{t+1}, v{t}, v{t}")
        A(f"v_mul_f32 v{t+1}, v{t+1}, v{t}")
        A(f"v_mul_f32 v{k3}, {f32(GC2)}, v{t+1}")
    A(f"v_bfe_u32 v{vT1}, v{vLane}, 4, 1")
    A(f"v_lshlrev_b32 v{vT1}, 10, v{vT1}")
    A(f"v_lshrrev_b32 v{vT2}, 5, v{vLane}")
    A(f"v_lshl_add_u32 v{vT1}, v{vT2}, 8, v{vT1}")
    A(f"v_and_b32 v{vT2}, 15, v{vLane}")
    A(f"v_lshl_add_u32 v{vT1}, v{vT2}, 4, v{vT1}")
    n = 0
    for a in range(3):
        csa = cs + 16 * (a % 2)
        if a < 2:
            for q in range(4):
                A(f"ds_read_b128 {vr(cs+16*((a+1)%2)+4*q)}, v{vT0} offset:{(a+1)*128+q*32}")
            A("s_waitcnt lgkmcnt(4)")
        else:
            A("s_waitcnt lgkmcnt(0)")
        A(f"s_mul_i32 s{sTmp}, s{sCG}, 12")
        A(f"s_mul_i32 s{sTmp2}, s{sNW}, 3")
        A(f"s_add_u32 s{sTmp}, s{sTmp}, s{sTmp2}")
        A(f"s_add_u32 s{sTmp}, s{sTmp}, {a}")
        A(f"s_lshl_b32 s{sTmp2}, s{sRB}, 1")
        A(f"s_add_u32 s{sTmp2}, s{sTmp2}, s{sMW}")
        A(f"s_mul_i32 s{sTmp2}, s{sTmp2}, 54")
        A(f"s_lshr_b32 s{sTmp3}, s{sTmp}, 1")
        A(f"s_add_u32 s{sTmp2}, s{sTmp2}, s{sTmp3}")
        A(f"s_lshl_b32 s{sTmp2}, s{sTmp2}, 12")
        A(f"s_and_b32 s{sTmp}, s{sTmp}, 1")
        A(f"s_lshl_b32 s{sTmp}, s{sTmp}, 9")
        A(f"s_add_u32 s{sTmp}, s{sTmp}, s{sTmp2}")
        C = lambda mt, k: c + 8 * mt + 2 * k
        MP = [(mt, i) for mt in range(2) for i in range(0, 8, 2)]
        D = lambda mt: acc(mt, a)
        Tm = lambda mt: t + 8 * mt
        for mt, i in MP:
            pk_fma(A, D(mt) + i, ("b", C(mt, 0)), ("p", csa + i), ("p", D(mt) + i), neg_a=True)
        for mt, i in MP:
            pk_mul(A, Tm(mt) + i, ("p", D(mt) + i), ("p", D(mt) + i))
        for mt, i in MP:
            pk_fma(A, Tm(mt) + i, ("p", Tm(mt) + i), ("b", C(mt, 3)), ("b", C(mt, 2)))
        for mt, i in MP:
            pk_mul(A, Tm(mt) + i, ("p", Tm(mt) + i), ("p", D(mt) + i))
        for mt, i in MP:
            A(f"v_exp_f32 v{Tm(mt)+i}, v{Tm(mt)+i}")
            A(f"v_exp_f32 v{Tm(mt)+i+1}, v{Tm(mt)+i+1}")
            pk_fma(A, D(mt) + 8 + i, ("b", C(mt, 0)), ("p", csa + 8 + i), ("p", D(mt) + 8 + i), neg_a=True)
        for mt, i in MP:
            pk_fma(A, Tm(mt) + i, ("p", Tm(mt) + i), ("b", C(mt, 1)), ("b", C(mt, 1)))
        for mt, i in MP:
            A(f"v_rcp_f32 v{Tm(mt)+i}, v{Tm(mt)+i}")
            A(f"v_rcp_f32 v{Tm(mt)+i+1}, v{Tm(mt)+i+1}")
            pk_mul(A, D(mt) + i, ("p", D(mt) + i), ("p", D(mt) + 8 + i))
        for mt, i in MP:
            pk_mul(A, D(mt) + i, ("p", D(mt) + i), ("p", Tm(mt) + i))
        for mt in range(2):
            ob = D(mt) + 8
            for i in range(4):
                A(f"v_cvt_pk_bf16_f32 v{ob+i}, v{D(mt)+2*i}, v{D(mt)+2*i+1}")
            A(f"buffer_store_dwordx4 {vr(ob)}, v{vT1}, {srd(S_WS)}, s{sTmp} offen offset:{mt*2048} sc1")


acc16 = lambda t, a, kw: vACC + 32 * a + 16 * kw + 4 * t


def k1_epi_g16(A, acc):
    c = vBUF
    csq = lambda p: (vBUF + 32 + 4 * p) if p < 4 else (48 + 4 * (p - 4))
    t = vBUF + 48
    A(f"v_lshrrev_b32 v{vT0}, 4, v{vLane}")
    A(f"v_lshlrev_b32 v{vT0}, 4, v{vT0}")
    A(f"s_mul_i32 s{sTmp}, s{sNW}, 384")
    A(f"s_add_u32 s{sTmp}, s{sTmp}, {MISC_LDS}")
    A(f"v_add_u32 v{vT0}, s{sTmp}, v{vT0}")
    A(f"v_and_b32 v{vT1}, 15, v{vLane}")
    A(f"s_lshl_b32 s{sTmp}, s{sMW}, 9")
    A(f"s_add_u32 s{sTmp}, s{sTmp}, {MISC_LDS+2048}")
    A(f"v_lshl_add_u32 v{vT1}, v{vT1}, 3, s{sTmp}")
    for m in range(4):
        A(f"ds_read_b64 {vr(c+8*m, 2)}, v{vT1} offset:{m*128}")
    for p in range(6):
        A(f"ds_read_b128 {vr(csq(p))}, v{vT0} offset:{p*64}")
    A("s_waitcnt lgkmcnt(6)")
    for m in range(4):
        A(f"v_rsq_f32 v{t+m}, v{c+8*m+1}")
        A(f"v_mov_b32 v{c+8*m+2}, v{c+8*m+1}")
    for m in range(4):
        A(f"v_mul_f32 v{c+8*m+4}, {f32(GC1)}, v{t+m}")
        A(f"v_mul_f32 v{t+4+m}, v{t+m}, v{t+m}")
    for m in range(4):
        A(f"v_mul_f32 v{t+4+m}, v{t+4+m}, v{t+m}")
    for m in range(4):
        A(f"v_mul_f32 v{c+8*m+6}, {f32(GC2)}, v{t+4+m}")
    A(f"v_bfe_u32 v{vT1}, v{vLane}, 4, 1")
    A(f"v_lshlrev_b32 v{vT1}, 10, v{vT1}")
    A(f"v_lshrrev_b32 v{vT2}, 5, v{vLane}")
    A(f"v_lshl_add_u32 v{vT1}, v{vT2}, 8, v{vT1}")
    A(f"v_and_b32 v{vT2}, 15, v{vLane}")
    A(f"v_lshl_add_u32 v{vT1}, v{vT2}, 4, v{vT1}")
    A("s_waitcnt lgkmcnt(0)")
    for a in range(3):
        A(f"s_mul_i32 s{sTmp}, s{sCG}, 12")
        A(f"s_mul_i32 s{sTmp2}, s{sNW}, 3")
        A(f"s_add_u32 s{sTmp}, s{sTmp}, s{sTmp2}")
        A(f"s_add_u32 s{sTmp}, s{sTmp}, {a}")
        A(f"s_lshl_b32 s{sTmp2}, s{sRB}, 1")
        A(f"s_add_u32 s{sTmp2}, s{sTmp2}, s{sMW}")
        A(f"s_mul_i32 s{sTmp2}, s{sTmp2}, 54")
        A(f"s_lshr_b32 s{sTmp3}, s{sTmp}, 1")
        A(f"s_add_u32 s{sTmp2}, s{sTmp2}, s{sTmp3}")
        A(f"s_lshl_b32 s{sTmp2}, s{sTmp2}, 12")
        A(f"s_and_b32 s{sTmp}, s{sTmp}, 1")
        A(f"s_lshl_b32 s{sTmp}, s{sTmp}, 9")
        A(f"s_add_u32 s{sTmp}, s{sTmp}, s{sTmp2}")
        C = lambda m, k: c + 8 * m + 2 * k
        MP = [(m, i) for m in range(4) for i in (0, 2)]
        Gt = lambda m: acc16(m, a, 0)
        Up = lambda m: acc16(m, a, 1)
        Tm = lambda m: t + 4 * m
        cg_, cu_ = csq(2 * a), csq(2 * a + 1)
        for m, i in MP:
            pk_fma(A, Gt(m) + i, ("b", C(m, 0)), ("p", cg_ + i), ("p", Gt(m) + i), neg_a=True)
        for m, i in MP:
            pk_mul(A, Tm(m) + i, ("p", Gt(m) + i), ("p", Gt(m) + i))
        for m, i in MP:
            pk_fma(A, Tm(m) + i, ("p", Tm(m) + i), ("b", C(m, 3)), ("b", C(m, 2)))
        for m, i in MP:
            pk_mul(A, Tm(m) + i, ("p", Tm(m) + i), ("p", Gt(m) + i))
        for m, i in MP:
            A(f"v_exp_f32 v{Tm(m)+i}, v{Tm(m)+i}")
            A(f"v_exp_f32 v{Tm(m)+i+1}, v{Tm(m)+i+1}")
            pk_fma(A, Up(m) + i, ("b", C(m, 0)), ("p", cu_ + i), ("p", Up(m) + i), neg_a=True)
        for m, i in MP:
            pk_fma(A, Tm(m) + i, ("p", Tm(m) + i), ("b", C(m, 1)), ("b", C(m, 1)))
        for m, i in MP:
            A(f"v_rcp_f32 v{Tm(m)+i}, v{Tm(m)+i}")
            A(f"v_rcp_f32 v{Tm(m)+i+1}, v{Tm(m)+i+1}")
            pk_mul(A, Gt(m) + i, ("p", Gt(m) + i), ("p", Up(m) + i))
        for m, i in MP:
            pk_mul(A, Gt(m) + i, ("p", Gt(m) + i), ("p", Tm(m) + i))
        for pr in range(2):
            ob = Up(2 * pr)
            for h in range(2):
                A(f"v_cvt_pk_bf16_f32 v{ob+2*h}, v{Gt(2*pr+h)}, v{Gt(2*pr+h)+1}")
                A(f"v_cvt_pk_bf16_f32 v{ob+2*h+1}, v{Gt(2*pr+h)+2}, v{Gt(2*pr+h)+3}")
        for pr in range(2):
            ob = Up(2 * pr)
            A(f"v_permlane16_swap_b32 v{ob}, v{ob+2}")
            A(f"v_permlane16_swap_b32 v{ob+1}, v{ob+3}")
        for pr in range(2):
            A(f"buffer_store_dwordx4 {vr(Up(2*pr))}, v{vT1}, {srd(S_WS)}, s{sTmp} offen offset:{pr*2048} sc1")


def pk(r, bc=False):
    return f"v[{r}:{r+1}]"


def pko(*bc):
    lo = ",".join("1" if b == 1 else "0" for b in bc)
    hi = ",".join("0" if b == 0 else "1" for b in bc)
    return f"op_sel:[{lo}] op_sel_hi:[{hi}]"


def opnd(x):
    k, r = x
    if k == "p":
        return pk(r), None
    assert r % 2 == 0
    return pk(r), 0


def pk_fma(A, d, a, b, c, neg_a=False):
    (ta, fa), (tb_, fb), (tc, fc) = opnd(a), opnd(b), opnd(c)
    n = " neg_lo:[1,0,0] neg_hi:[1,0,0]" if neg_a else ""
    A(f"v_pk_fma_f32 {pk(d)}, {ta}, {tb_}, {tc} {pko(fa, fb, fc)}{n}")


def pk_mul(A, d, a, b, op="mul"):
    (ta, fa), (tb_, fb) = opnd(a), opnd(b)
    A(f"v_pk_{op}_f32 {pk(d)}, {ta}, {tb_} {pko(fa, fb)}")


def phi_block(A, d, n, t, mu, cs, r, rl, eps, mixed=None):
    P = range(0, n, 2)
    ea, em, eb = mixed if mixed else (eps, eps, None)
    for i in P:
        pk_fma(A, d + i, mu(i), cs(i), ("p", d + i), neg_a=True)
    for i in P:
        if mixed:
            pk_fma(A, t + i, ("p", d + i), rl(i), ("b", eb))
        else:
            pk_mul(A, t + i, ("p", d + i), rl(i))
    for i in P:
        A(f"v_exp_f32 v{t+i}, v{t+i} clamp")
        A(f"v_exp_f32 v{t+i+1}, v{t+i+1} clamp")
        pk_fma(A, d + i, ("p", d + i), r(i), ("b", ea))
    for i in range(n):
        A(f"v_max_f32 v{d+i}, v{d+i}, v{em}")
    for i in P:
        pk_mul(A, d + i, ("p", d + i), ("p", t + i), op="add")


def k1_epi_q(A, acc):
    c = vBUF
    cs = vBUF + 8
    t = vBUF + 40
    o = vBUF + 56
    mu, r, rl, eps = c, c + 2, c + 4, c + 6
    A(f"v_lshrrev_b32 v{vT0}, 5, v{vLane}")
    A(f"v_lshlrev_b32 v{vT0}, 4, v{vT0}")
    A(f"s_mul_i32 s{sTmp}, s{sNW}, 640")
    A(f"s_add_u32 s{sTmp}, s{sTmp}, {MISC_LDS}")
    A(f"v_add_u32 v{vT0}, s{sTmp}, v{vT0}")
    A(f"v_and_b32 v{vT1}, 31, v{vLane}")
    A(f"s_lshl_b32 s{sTmp}, s{sMW}, 8")
    A(f"s_add_u32 s{sTmp}, s{sTmp}, {MISC_LDS+2048}")
    A(f"v_lshl_add_u32 v{vT1}, v{vT1}, 3, s{sTmp}")
    A(f"ds_read_b64 {vr(mu, 2)}, v{vT1}")
    for q in range(4):
        A(f"ds_read_b128 {vr(cs+4*q)}, v{vT0} offset:{q*32}")
    A("s_waitcnt lgkmcnt(4)")
    A(f"v_rsq_f32 v{r}, v{mu+1}")
    A(f"v_mov_b32 v{eps}, {f32(1e-6)}")
    A(f"v_mul_f32 v{rl}, {f32(LOG2E)}, v{r}")
    A(f"v_bfe_u32 v{vT1}, v{vLane}, 4, 1")
    A(f"v_lshlrev_b32 v{vT1}, 10, v{vT1}")
    A(f"v_lshrrev_b32 v{vT2}, 5, v{vLane}")
    A(f"v_lshl_add_u32 v{vT1}, v{vT2}, 8, v{vT1}")
    A(f"v_and_b32 v{vT2}, 15, v{vLane}")
    A(f"v_lshl_add_u32 v{vT1}, v{vT2}, 4, v{vT1}")
    A(f"s_lshl_b32 s{sTmp}, s{sRB}, 1")
    A(f"s_lshr_b32 s{sTmp2}, s{sMW}, 1")
    A(f"s_add_u32 s{sTmp}, s{sTmp}, s{sTmp2}")
    A(f"s_mul_i32 s{sTmp}, s{sTmp}, 20")
    A(f"s_sub_u32 s{sTmp2}, s{sCG}, 13")
    A(f"s_mul_i32 s{sTmp2}, s{sTmp2}, 10")
    A(f"s_add_u32 s{sTmp}, s{sTmp}, s{sTmp2}")
    A(f"s_mul_i32 s{sTmp2}, s{sNW}, 5")
    A(f"s_add_u32 s{sTmp}, s{sTmp}, s{sTmp2}")
    A(f"s_lshl_b32 s{sTmp}, s{sTmp}, 12")
    A(f"s_and_b32 s{sTmp2}, s{sMW}, 1")
    A(f"s_lshl_b32 s{sTmp2}, s{sTmp2}, 11")
    A(f"s_add_u32 s{sTmp}, s{sTmp}, s{sTmp2}")
    A(f"s_add_u32 s{sTmp}, s{sTmp}, {WS_PQ}")
    for a in range(5):
        csa = cs + 16 * (a % 2)
        if a < 4:
            for q in range(4):
                A(f"ds_read_b128 {vr(cs+16*((a+1)%2)+4*q)}, v{vT0} offset:{(a+1)*128+q*32}")
            A("s_waitcnt lgkmcnt(4)")
        else:
            A("s_waitcnt lgkmcnt(0)")
        d = acc(0, a)
        phi_block(A, d, 16, t, lambda i: ("b", mu), lambda i: ("p", csa + i), lambda i: ("b", r), lambda i: ("b", rl), eps)
        ob = o + 8 * (a % 2)
        for i in range(8):
            A(f"v_cvt_pk_bf16_f32 v{ob+i}, v{d+2*i}, v{d+2*i+1}")
        A(f"buffer_store_dwordx4 {vr(ob)}, v{vT1}, {srd(S_WS)}, s{sTmp} offen sc1")
        A(f"buffer_store_dwordx4 {vr(ob+4)}, v{vT1}, {srd(S_WS)}, s{sTmp} offen offset:512 sc1")
        A(f"s_add_u32 s{sTmp}, s{sTmp}, 4096")


KV_PAIRS = [(0, 2), (0, 3), (1, 3), (1, 4), (2, 4)]
KV_Q = [[0, 1, 2], [0, 1, 2, 3], [0, 1, 2, 3], [1, 2, 3], [0, 1]]
KV_AD = 232
KV_SLAB = [0, 14336, 135168, 149504]
KV_DUMMY = 28688


def kv_addr_setup(A):
    e, he, d0, dm = vT0, vT1, vT2, vT3
    t = vBUF + 24
    A(f"s_mul_i32 s{sTmp3}, s{sMW}, 14336")
    A(f"s_cmp_ge_u32 s{sMW}, 2")
    A(f"s_cselect_b32 s{sTmp}, {135168 - 2*14336}, 0")
    A(f"s_add_u32 s{sTmp3}, s{sTmp3}, s{sTmp}")
    A(f"s_mul_i32 s{sTmp}, s{sNW}, 6720")
    A(f"s_add_u32 s{sTmp3}, s{sTmp3}, s{sTmp}")
    A(f"v_lshlrev_b32 v{dm}, 4, v{vLane}")
    A(f"v_add_u32 v{dm}, {KV_DUMMY}, v{dm}")
    A(f"v_lshrrev_b32 v{d0}, 5, v{vLane}")
    A(f"v_lshlrev_b32 v{d0}, 2, v{d0}")
    for n, (a, b) in enumerate(KV_PAIRS):
        A(f"v_and_b32 v{e}, 31, v{vLane}")
        A(f"v_add_u32 v{e}, {32*b - 80 + 100}, v{e}")
        A(f"v_mul_u32_u24 v{he}, 205, v{e}")
        A(f"v_lshrrev_b32 v{he}, 12, v{he}")
        A(f"v_mul_u32_u24 v{e}, 80, v{e}")
        A(f"v_add_u32 v{e}, s{sTmp3}, v{e}")
        for q in KV_Q[n]:
            a0 = KV_AD + 4 * n + q
            A(f"v_add_u32 v{a0}, {32*a + 8*q + 100}, v{d0}")
            A(f"v_mul_u32_u24 v{t}, 205, v{a0}")
            A(f"v_lshrrev_b32 v{t}, 12, v{t}")
            A(f"v_cmp_eq_u32 vcc, v{t}, v{he}")
            A(f"v_lshl_add_u32 v{a0}, v{a0}, 2, v{e}")
            A(f"v_subrev_u32 v{a0}, {80*100 + 4*100}, v{a0}")
            A(f"v_cndmask_b32 v{a0}, v{dm}, v{a0}, vcc")
    A(f"v_and_b32 v{e}, 15, v{vLane}")
    A(f"v_lshrrev_b32 v{d0}, 4, v{vLane}")
    A(f"v_lshlrev_b32 v{d0}, 2, v{d0}")
    A(f"v_lshl_add_u32 v{d0}, v{e}, 4, v{d0}")
    for a in range(3):
        az = KV_AD + 20 + a
        A(f"v_add_u32 v{az}, {32*a}, v{d0}")
        A(f"v_mul_u32_u24 v{t}, 205, v{az}")
        A(f"v_lshrrev_b32 v{t}, 12, v{t}")
        A(f"v_mul_u32_u24 v{t}, 1600, v{t}")
        A(f"v_lshl_add_u32 v{az}, v{az}, 2, v{t}")
        A(f"v_add_u32 v{az}, s{sTmp3}, v{az}")
        A(f"v_add_u32 v{az}, 1600, v{az}")
        A(f"v_cmp_gt_u32 vcc, {2 if a < 2 else 1}, v{e}")
        A(f"v_cndmask_b32 v{az}, v{dm}, v{az}, vcc")


def k1_epi_kv(A, acc):
    mu = vBUF
    rr = vBUF + 16
    rl = vBUF + 32
    t = vBUF + 48
    csr = [48, 50, 244, 250, vBUF + 64]
    eps, ea, em, eb = vBUF + 66, vBUF + 68, vBUF + 69, vBUF + 70
    A(f"v_and_b32 v{vT0}, 31, v{vLane}")
    A(f"v_cmp_gt_u32 vcc, 16, v{vT0}")
    A(f"v_lshlrev_b32 v{vT0}, 2, v{vT0}")
    A(f"s_mul_i32 s{sTmp}, s{sNW}, 640")
    A(f"s_add_u32 s{sTmp}, s{sTmp}, {KV_CS}")
    A(f"v_add_u32 v{vT1}, s{sTmp}, v{vT0}")
    A(f"v_lshrrev_b32 v{vT2}, 5, v{vLane}")
    A(f"s_lshl_b32 s{sTmp}, s{sMW}, 7")
    A(f"s_add_u32 s{sTmp}, s{sTmp}, {KV_ST}")
    A(f"v_lshl_add_u32 v{vT2}, v{vT2}, 4, s{sTmp}")
    for a in range(5):
        A(f"ds_read_b32 v{csr[a]}, v{vT1} offset:{a*128}")
    for reg, off in ((mu, 0), (rr, 512), (rl, 1536)):
        for q in range(4):
            A(f"ds_read_b128 {vr(reg+4*q)}, v{vT2} offset:{off+q*32}")
    A(f"v_mov_b32 v{eps}, {f32(1e-6)}")
    A(f"v_mov_b32 v{em}, 0xff800000")
    A(f"v_cndmask_b32 v{ea}, 0, v{eps}, vcc")
    A(f"v_cndmask_b32 v{eb}, v{em}, v{ea}, vcc")
    A(f"v_cndmask_b32 v{em}, v{em}, v{eps}, vcc")
    A(f"v_min_f32 v{eb}, 0, v{eb}")
    A("s_waitcnt lgkmcnt(4)")
    cstamp(A, 1)
    op = lambda a, h: acc(0, a) + 4 * h

    def pack(a):
        d = acc(0, a)
        for i in range(8):
            A(f"v_cvt_pk_bf16_f32 v{d+i}, v{d+2*i}, v{d+2*i+1}")

    def plain(a, dst):
        d = acc(0, a)
        for i in range(0, 16, 2):
            pk_fma(A, dst + i, ("p", mu + i), ("b", csr[a]), ("p", d + i), neg_a=True)
        for i in range(0, 16, 2):
            pk_mul(A, dst + i, ("p", dst + i), ("p", rr + i))

    def phi(a, mixed=None):
        phi_block(A, acc(0, a), 16, t, lambda i: ("p", mu + i), lambda i: ("b", csr[a]), lambda i: ("p", rr + i), lambda i: ("p", rl + i), eps, mixed)
    for a in ((4, 3) if OPT['KV1'] == 1 else (3, 4)):
        plain(a, acc(0, a))
        pack(a)
    A("s_waitcnt lgkmcnt(0)")
    phi(2, (ea, em, eb))
    pack(2)
    for a in (0, 1):
        phi(a)
        pack(a)
    cstamp(A, 2)
    D = lambda n: vBUF + 16 * n
    Z = lambda a: vBUF + 80 + 4 * a
    for h in range(2):
        for n, (a, b) in enumerate(KV_PAIRS):
            A(f"v_mfma_f32_32x32x16_bf16 {vr(D(n),16)}, {vr(op(a,h))}, {vr(op(b,h))}, {vr(D(n),16) if h else 0}")
        for a in range(3):
            A(f"v_mfma_f32_16x16x32_bf16 {vr(Z(a))}, {vr(op(a,h))}, {vr(vSel)}, {vr(Z(a)) if h else 0}")
    cstamp(A, 3)
    A(f"s_cmp_lt_u32 s{sWave}, 4\ns_cbranch_scc1 L_K_nb1\ns_barrier\nL_K_nb1:\ns_nop 3")
    cstamp(A, 4)
    for n in range(5):
        for q in KV_Q[n]:
            A(f"ds_write_b128 v{KV_AD+4*n+q}, {vr(D(n)+4*q)}")
    for a in range(3):
        A(f"ds_write_b128 v{KV_AD+20+a}, {vr(Z(a))}")
    sSlab = 4
    A(f"s_sub_u32 s{sSlab}, s{sCG}, 9")
    A(f"s_mul_i32 s{sSlab}, s{sSlab}, 13440")
    A(f"s_add_u32 s{sSlab}, s{sSlab}, {WS_KVA}")
    A(f"v_lshlrev_b32 v{vT0}, 2, v0")
    A(f"v_add_u32 v{vT1}, {KV_SLAB[2]}, v{vT0}")
    A(f"v_cmp_gt_u32 vcc, {3360-6*512}, v0")
    A(f"v_mov_b32 v{vT2}, {OOB}")
    A(f"v_cndmask_b32 v{vT2}, v{vT2}, v{vT0}, vcc")
    A("s_waitcnt lgkmcnt(0)")
    cstamp(A, 5)
    A(f"s_cmp_ge_u32 s{sWave}, 4\ns_cbranch_scc1 L_K_nb2\ns_barrier\nL_K_nb2:")
    A("s_barrier")
    cstamp(A, 6)
    R = vACC
    for j in range(7):
        for m in range(4):
            A(f"ds_read_b32 v{R+4*j+m}, v{vT0 if m < 2 else vT1} offset:{j*2048 + (m%2)*14336}")
        if j >= 2:
            k = j - 2
            A("s_waitcnt lgkmcnt(8)")
            kv_atomic(A, R, k, sSlab)
    for k in (5, 6):
        A(f"s_waitcnt lgkmcnt({4*(6-k)})")
        kv_atomic(A, R, k, sSlab)


def kv_atomic(A, R, k, sSlab):
    A(f"v_add_f32 v{R+4*k}, v{R+4*k}, v{R+4*k+1}")
    A(f"v_add_f32 v{R+4*k+2}, v{R+4*k+2}, v{R+4*k+3}")
    A(f"v_add_f32 v{R+4*k}, v{R+4*k}, v{R+4*k+2}")
    A(f"buffer_atomic_add_f32 v{R+4*k}, v{vT0 if k < 6 else vT2}, {srd(S_WS)}, s{sSlab} offen offset:{(k%2)*2048}")
    if k % 2 == 1:
        A(f"s_add_u32 s{sSlab}, s{sSlab}, 4096")


def k1_aux(A):
    if OPT["CODEWARM"] == 1:
        A("s_getpc_b64 s[10:11]")
        A.label("L_pc")
        A(f"s_sub_u32 s10, s10, L_pc-{NAME}_kernel")
        A("s_subb_u32 s11, s11, 0")
        A(f"v_lshlrev_b32 v{vT0}, 7, v0")
        A(f"v_min_u32 v{vT0}, L_code_end-{NAME}_kernel-4, v{vT0}")
        A(f"global_load_dword v{vACC+8}, v{vT0}, s[10:11]")
    if OPT["TLBWARM"]:
        g = OPT["TLBWARM"]
        mk_srd(A, S_T, P_OUT, 2048 * 1280)
        A(f"v_lshlrev_b32 v{vT0}, {g}, v0")
        A(f"buffer_load_dword v{vACC+9}, v{vT0}, {srd(S_WS)}, 0 offen sc1")
        A(f"buffer_load_dword v{vACC+10}, v{vT0}, {srd(S_T)}, 0 offen sc1")
    for i in range(4):
        A(f"v_mov_b32 v{vACC+i}, 0")
    A(f"v_lshlrev_b32 v{vT0}, 4, v0")
    A(f"s_mul_i32 s{sTmp}, s{sRB}, 3360")
    A(f"s_add_u32 s{sTmp}, s{sTmp}, {WS_KVA}")
    A(f"v_add_u32 v{vT0}, s{sTmp}, v{vT0}")
    A(f"v_mov_b32 v{vT2}, {OOB}")
    A(f"v_cmp_gt_u32 vcc, 210, v0")
    A(f"v_cndmask_b32 v{vT0}, v{vT2}, v{vT0}, vcc")
    A(f"s_cmp_lg_u32 s{sWave}, 7")
    A("s_cbranch_scc1 L_A_z")
    A(f"s_lshl_b32 s{sTmp}, s{sRB}, 8")
    A(f"s_add_u32 s{sTmp}, s{sTmp}, {WS_FL}")
    A(f"v_writelane_b32 v{vT0}, s{sTmp}, 0")
    A(f"s_add_u32 s{sTmp}, s{sTmp}, {FL_ROW}")
    A(f"v_writelane_b32 v{vT0}, s{sTmp}, 3")
    A(f"s_lshl_b32 s{sTmp}, s{sRB}, 9")
    A(f"s_add_u32 s{sTmp}, s{sTmp}, {WS_FL + FL_KV}")
    A(f"v_writelane_b32 v{vT0}, s{sTmp}, 1")
    A(f"s_add_u32 s{sTmp}, s{sTmp}, 256")
    A(f"v_writelane_b32 v{vT0}, s{sTmp}, 2")
    A.label("L_A_z")
    A(f"buffer_store_dwordx4 {vr(vACC)}, v{vT0}, {srd(S_WS)}, 0 offen sc1")
    A(f"s_cmp_lg_u32 s{sWave}, 7")
    A("s_cbranch_scc1 L_A_z2")
    A("s_waitcnt vmcnt(0)")
    A(f"v_mov_b32 v{vT0}, {OOB}")
    A(f"v_writelane_b32 v{vT0}, 0, 0")
    A(f"v_mov_b32 v{vT1}, 1")
    A(f"buffer_atomic_add v{vT1}, v{vT0}, {srd(S_DBG)}, 0 offen sc1")
    A.label("L_A_z2")
    A(f"s_lshl_b32 s{sUw}, s{sRB}, 3")
    A(f"s_add_u32 s{sUw}, s{sUw}, s{sWave}")
    A(f"s_add_u32 s{sUw}, s{sUw}, 480")
    A(f"s_mul_i32 s{sUl}, s{sWave}, 12288")
    for i in range(3):
        A(f"s_add_u32 s{sU}, s{sUw}, {128*i}")
        A(f"s_add_u32 s9, s{sUl}, {4096*i}")
        w2_unit_dma(A, "s9")
    A("s_waitcnt vmcnt(12)")
    k1_stats(A, "X")
    for i in range(3):
        A("s_waitcnt vmcnt(9)")
        A(f"s_add_u32 s{sU}, s{sUw}, {128*i}")
        A(f"s_add_u32 s9, s{sUl}, {4096*i}")
        w2_unit_out(A, "s9", lambda t: vACC + 16 + 16 * i + 4 * t)
    A("s_waitcnt vmcnt(0)")
    A("s_barrier")
    stamp(A, 9, 0)
    A(f"s_cmp_lg_u32 s{sWave}, 0")
    A("s_cbranch_scc1 L_A_w")
    k1_publish(A)
    A(f"s_mov_b32 s{sSpin}, 0")
    wait_zeroed(A, "L_A_wz", False)
    poll_addr(A)
    A.label("L_A_poll")
    A("s_sleep 32")
    A(f"buffer_load_dword v{vPoll}, v{vPa}, {srd(S_WS)}, 0 offen sc1")
    A("s_waitcnt vmcnt(0)")
    poll_cmp(A)
    A(f"s_add_u32 s{sSpin}, s{sSpin}, 1")
    A(f"s_cmp_gt_u32 s{sSpin}, {SPIN_MAX}")
    A("s_cbranch_scc1 L_A_w")
    A(f"s_cmp_lg_u64 vcc, 0")
    A("s_cbranch_scc1 L_A_poll")
    A.label("L_A_w")
    A("s_barrier")
    stamp(A, 3, 0)
    p2_ids(A)
    A(f"s_mov_b32 s{sWoDone}, 0")
    A(f"v_mov_b32 v{vSigA}, {OOB}")
    A(f"v_mov_b32 v{vSigV}, 0")
    A("s_branch L_p2")


def kernel1(A):
    A(".p2align 8")
    A.label(NAME + "_kernel")
    A("s_cmp_ge_u32 s2, 256")
    A("s_cbranch_scc1 L_k1_exit")
    if OPT["XMAP"]:
        A("s_lshr_b32 s3, s2, 5")
        A("s_and_b32 s2, s2, 31")
        A("s_lshl_b32 s2, s2, 3")
        A("s_or_b32 s2, s2, s3")
    load_ptrs(A)
    if OPT["CODEWARM"] == 2:
        A("s_getpc_b64 s[10:11]")
        A.label("L_pc")
        A(f"s_sub_u32 s10, s10, L_pc-{NAME}_kernel")
        A("s_subb_u32 s11, s11, 0")
        A("s_lshr_b32 s4, s2, 3")
        A("s_lshl_b32 s4, s4, 7")
        A(f"v_lshl_add_u32 v{vT0}, v0, 12, s4")
        A(f"v_min_u32 v{vT0}, L_code_end-{NAME}_kernel-4, v{vT0}")
        A("v_cmp_gt_u32 vcc, 16, v0")
        A("s_and_saveexec_b64 s[12:13], vcc")
        A("s_cbranch_execz L_nocw")
        A(f"global_load_dword v255, v{vT0}, s[10:11]")
        A.label("L_nocw")
        A("s_mov_b64 exec, s[12:13]")
    A(f"v_and_b32 v{vLane}, 63, v0")
    A(f"v_lshrrev_b32 v{vT0}, 6, v0")
    A(f"v_readfirstlane_b32 s{sWave}, v{vT0}")
    A("s_and_b32 s3, s2, 7")
    A("s_lshr_b32 s4, s2, 3")
    A("s_lshr_b32 s5, s3, 2")
    A("s_and_b32 s6, s3, 3")
    A("s_mul_i32 s7, s6, 30")
    A("s_add_u32 s7, s7, s4")
    A(f"s_lshr_b32 s{sCG}, s7, 3")
    if OPT["CGPERM"]:
        perm = [0, 9, 1, 13, 2, 10, 3, 4, 5, 11, 6, 14, 7, 12, 8, 15]
        tab = sum(p << (4 * i) for i, p in enumerate(perm))
        A(f"s_mov_b32 s10, {tab & 0xffffffff}")
        A(f"s_mov_b32 s11, {tab >> 32}")
        A(f"s_lshl_b32 s{sCG}, s{sCG}, 2")
        A(f"s_lshr_b64 s[10:11], s[10:11], s{sCG}")
        A(f"s_and_b32 s{sCG}, s10, 15")
    A(f"s_and_b32 s{sRB}, s7, 7")
    A("s_lshl_b32 s8, s6, 1")
    A("s_add_u32 s8, s8, s4")
    A("s_sub_u32 s8, s8, 30")
    A("s_cmp_lt_u32 s4, 30")
    A(f"s_cselect_b32 s{sCG}, s{sCG}, 15")
    A(f"s_cselect_b32 s{sRB}, s{sRB}, s8")
    A("s_lshl_b32 s5, s5, 3")
    A(f"s_add_u32 s{sRB}, s{sRB}, s5")
    A(f"s_and_b32 s3, s{sRB}, 7")
    A("s_lshr_b32 s4, s3, 2")
    A(f"s_add_u32 s{sC0}, s3, s4")
    A(f"s_lshr_b32 s4, s{sRB}, 3")
    A(f"s_add_u32 s{sC0}, s{sC0}, s4")
    A("s_waitcnt lgkmcnt(0)")
    mk_srd(A, S_X, P_X, 2048 * 1280)
    mk_srd(A, S_WS, P_WS, WS_SIZE)
    mk_srd(A, S_DBG, P_DBG, 256)
    stamp(A, 0, 0)
    if OPT["P2ONLY"]:
        p2_ids(A)
        A(f"s_mov_b32 s{sWoDone}, 0")
        A(f"v_mov_b32 v{vSigA}, {OOB}")
        A(f"v_mov_b32 v{vSigV}, 0")
        A("s_branch L_p2")
    if OPT["DLY"] == 4:
        A("s_sleep 34")
    k1_stats_issue(A)
    A(f"s_cmp_eq_u32 s{sCG}, 15")
    A("s_cbranch_scc1 L_aux")
    A(f"v_lshrrev_b32 v{vT0}, 3, v{vLane}")
    A(f"v_lshrrev_b32 v{vT1}, 4, v{vLane}")
    A(f"v_and_b32 v{vT2}, 7, v{vLane}")
    A(f"v_xor_b32 v{vT1}, v{vT1}, v{vT2}")
    if OPT["NOSWZ"]: A(f"v_and_b32 v{vT1}, 7, v{vLane}")
    A(f"s_lshl_b32 s3, s{sRB}, 7")
    if OPT["SAME"]: A("s_mov_b32 s3, 0")
    A(f"s_and_b32 s4, s{sWave}, 3")
    A(f"s_lshl_b32 s{sXslot}, s4, 12")
    A(f"s_lshl_b32 s4, s4, 5")
    A("s_add_u32 s3, s3, s4")
    A(f"v_add_u32 v{vT0}, s3, v{vT0}")
    A(f"v_mul_u32_u24 v{vT0}, 1280, v{vT0}")
    A(f"v_lshl_add_u32 v{vXo}, v{vT1}, 4, v{vT0}")
    A(f"v_xor_b32 v{vT1}, 4, v{vT1}")
    A(f"v_lshl_add_u32 v{vXo+1}, v{vT1}, 4, v{vT0}")
    A(f"v_add_u32 v{vXo+1}, {8*1280}, v{vXo+1}")
    A(f"s_lshl_b32 s{sKX}, s{sC0}, 7")
    A(f"s_mov_b32 s{sKXn}, 0")
    A(f"s_cmp_ge_u32 s{sCG}, 13")
    A("s_cbranch_scc1 L_typeQ")
    A(f"s_cmp_ge_u32 s{sCG}, 9")
    A("s_cbranch_scc1 L_typeK")
    k1_gemm(A, "G")
    A.label("L_typeQ")
    k1_gemm(A, "Q")
    A.label("L_typeK")
    k1_gemm(A, "K")
    A.label("L_aux")
    k1_aux(A)
    phase2(A)
    A.label("L_k1_exit")
    A("s_endpgm")
    A.label("L_code_end")


sRB64, sC, sHo, sWo, sHb, sHe, sWb, sWe, sLast = 16, 17, 18, 19, 22, 23, 24, 25, 26
sFl, sWoDone, sWoL, sWoG, sWoI = sWslot, sRslot, sXslot, sStepW, sCSit
vL16 = 5


def p2_ids(A, vec=True):
    A("s_and_b32 s3, s2, 7")
    A("s_lshr_b32 s4, s2, 3")
    A(f"s_and_b32 s{sC}, s4, 7")
    A("s_lshr_b32 s4, s4, 3")
    A("s_lshl_b32 s3, s3, 2")
    A(f"s_add_u32 s{sRB64}, s3, s4")
    if OPT["P2SAME"] == 1:
        A(f"s_and_b32 s{sRB64}, s{sRB64}, 1")
        A(f"s_and_b32 s{sC}, s{sC}, 1")
    if OPT["P2SAME"] == 2:
        A(f"s_and_b32 s{sC}, s{sC}, 3")
    if vec:
        A(f"v_lshlrev_b32 v{vL16}, 4, v{vLane}")


WO_LDS = 32768


def wo_early(A, first, per_wave):
    A("s_lshr_b32 s4, s2, 3")
    A("s_and_b32 s4, s4, 7")
    A(f"s_mul_i32 s4, s4, {74*5120}")
    A(f"s_and_b32 s5, s{sWave}, 3")
    A(f"s_mul_i32 s5, s5, {per_wave*1024}")
    A("s_add_u32 s4, s4, s5")
    A(f"s_add_u32 s4, s4, {WS_W2 + 54*5120 + first*1024}")
    A(f"s_add_u32 s5, s5, {WO_LDS + first*1024}")
    A(f"v_lshlrev_b32 v{vT0}, 4, v{vLane}")
    for i in range(per_wave):
        if i % 4 == 0:
            A(f"s_add_u32 m0, s5, {i*1024}")
            A(f"s_add_u32 s6, s4, {i*1024}")
        A(f"buffer_load_dwordx4 v{vT0}, {srd(S_WS)}, s6 offen offset:{(i%4)*1024} sc1 lds")


def wo_setup(A):
    A(f"s_mul_i32 s{sWoL}, s{sWave}, 25600")
    A(f"s_add_u32 s{sWoL}, s{sWoL}, {WO_LDS}")
    A(f"s_mul_i32 s6, s{sC}, 74")
    A(f"s_mul_i32 s7, s{sWave}, 5")
    A("s_add_u32 s6, s6, s7")
    A("s_add_u32 s6, s6, 54")
    A("s_mul_i32 s6, s6, 5120")
    A(f"s_add_u32 s{sWoG}, s6, {WS_W2}")
    A(f"s_and_b32 s{sWoI}, s{sRB64}, 3")
    A(f"s_mul_i32 s{sWoI}, s{sWoI}, {6*1024}")


def wo_dmas():
    return [f"s_add_u32 m0, s{sWoL}, s{sWoI}\n"
            f"s_add_u32 s9, s{sWoG}, s{sWoI}\n"
            f"buffer_load_dwordx4 v{vL16}, {srd(S_WS)}, s9 offen sc1 lds\n"
            f"s_add_u32 s{sWoI}, s{sWoI}, 1024\n"
            f"s_cmp_eq_u32 s{sWoI}, {25*1024}\n"
            f"s_cselect_b32 s{sWoI}, 0, s{sWoI}" for _ in range(25)]


NK, WD, HD = 14, 6, 3
q4 = lambda a, b: list(range(a, b, 4))
WQ = q4(8, 56) + q4(128, 152) + q4(248, 256) + q4(112, 128) + q4(152, 168) + q4(200, 208)
AQ = q4(88, 112) + q4(168, 192) + q4(56, 88)
HQ = q4(192, 200) + q4(208, 248)
assert len(WQ) == 30 and len(AQ) == 20 and len(HQ) == 12 and len(set(WQ + AQ + HQ)) == 62


def ffn_setup(A):
    A(f"s_sub_u32 s3, s{sWave}, 4")
    A("s_mul_i32 s4, s3, 14")
    A("s_cmp_eq_u32 s3, 3")
    A("s_cselect_b32 s5, 1, 0")
    A("s_sub_u32 s4, s4, s5")
    A("s_cmp_ge_u32 s3, 2")
    A("s_cselect_b32 s5, 13, 14")
    A(f"s_cselect_b32 s{sLast}, {OOB}, 0")
    A(f"s_and_b32 s6, s{sRB64}, 3")
    A("s_lshl_b32 s6, s6, 1")
    A(f"s_add_u32 s6, s6, s{sC}")
    A("s_mul_i32 s6, s6, 7")
    A("s_lshr_b32 s6, s6, 2")
    A("s_sub_u32 s7, s6, s5")
    A("s_cmp_ge_u32 s6, s5")
    A("s_cselect_b32 s6, s7, s6")
    if not OPT["P2ROT"]:
        A("s_mov_b32 s6, 0")
    A(f"s_mul_i32 s{sHb}, s{sRB64}, 54")
    A(f"s_add_u32 s{sHb}, s{sHb}, s4")
    A(f"s_lshl_b32 s{sHb}, s{sHb}, 12")
    A("s_lshl_b32 s7, s5, 12")
    A(f"s_add_u32 s{sHe}, s{sHb}, s7")
    A("s_lshl_b32 s7, s6, 12")
    A(f"s_add_u32 s{sHo}, s{sHb}, s7")
    A(f"s_mul_i32 s{sWb}, s{sC}, 74")
    A(f"s_add_u32 s{sWb}, s{sWb}, s4")
    A(f"s_mul_i32 s{sWb}, s{sWb}, 5120")
    A(f"s_add_u32 s{sWb}, s{sWb}, {WS_W2}")
    A("s_mul_i32 s7, s5, 5120")
    A(f"s_add_u32 s{sWe}, s{sWb}, s7")
    A("s_mul_i32 s7, s6, 5120")
    A(f"s_add_u32 s{sWo}, s{sWb}, s7")


def ldW_groups(j):
    out = []
    pre = f"s_add_u32 s{sWo}, s{sWo}, s{sLast}\n" if j == NK - 1 else ""
    for nt in range(4):
        out.append((pre if nt == 0 else "") +
                   f"buffer_load_dwordx4 {vr(WQ[5*(j%WD)+nt])}, v{vL16}, {srd(S_WS)}, s{sWo} offen offset:{nt*1024}{HSC}")
    out.append(f"s_add_u32 s3, s{sWo}, 4096\n"
               f"buffer_load_dwordx4 {vr(WQ[5*(j%WD)+4])}, v{vL16}, {srd(S_WS)}, s3 offen{HSC}\n"
               f"s_add_u32 s{sWo}, s{sWo}, 5120\n"
               f"s_cmp_eq_u32 s{sWo}, s{sWe}\n"
               f"s_cselect_b32 s{sWo}, s{sWb}, s{sWo}")
    return out


def poll_flag(A, lab, addr_s, mask, target, vtmp):
    A(f"s_mov_b32 s{sSpin}, 0")
    A(f"v_mov_b32 v{vtmp+1}, 0")
    A.label(lab)
    A(f"buffer_load_dword v{vtmp}, v{vtmp+1}, {srd(S_WS)}, s{addr_s} offen sc1")
    A("s_waitcnt vmcnt(0)")
    A(f"v_readfirstlane_b32 s{sTmp3}, v{vtmp}")
    A(f"s_add_u32 s{sSpin}, s{sSpin}, 1")
    A(f"s_and_b32 s{sTmp3}, s{sTmp3}, {mask}")
    A(f"s_cmp_ge_u32 s{sTmp3}, {0 if OPT['P2ONLY'] else target}")
    A(f"s_cbranch_scc1 {lab}_ok")
    A(f"s_cmp_gt_u32 s{sSpin}, {SPIN_MAX}")
    A(f"s_cbranch_scc1 {lab}_ok")
    A(f"s_sleep {OPT['PSLEEP']}")
    A(f"s_branch {lab}")
    A.label(lab + "_ok")


def phase2(A):
    S_OUT = S_T
    ACC = 8
    acc = lambda nt, mt: ACC + 4 * (nt * 4 + mt)
    A.label("L_p2")
    mk_srd(A, S_OUT, P_OUT, 2048 * 1280)
    A(f"s_lshr_b32 s{sFl}, s{sRB64}, 1")
    A(f"s_lshl_b32 s{sFl}, s{sFl}, 8")
    A(f"s_add_u32 s{sFl}, s{sFl}, {WS_FL + FL_HC}")
    A.fence()
    A(f"s_cmp_ge_u32 s{sWave}, 4")
    A("s_cbranch_scc1 L2_ffn")

    def signal(n_younger):
        A(f"s_waitcnt vmcnt({n_younger}) lgkmcnt(0)")
        A("s_barrier")

    XR, OA, RA = 232, 238, 241

    def red_setup(A, ta, tb):
        for j in range(3):
            A(f"s_add_u32 s11, s{sWave}, {8*j}")
            A(f"s_lshr_b32 s12, s11, 2")
            A(f"s_and_b32 s13, s11, 3")
            A(f"s_lshl_b32 s14, s{sRB64}, 6")
            A(f"s_lshl_b32 s13, s13, 4")
            A("s_add_u32 s14, s14, s13")
            A("s_mul_i32 s14, s14, 1280")
            A(f"s_mul_i32 s15, s{sC}, 160")
            A("s_add_u32 s14, s14, s15")
            A("s_lshl_b32 s12, s12, 5")
            A("s_add_u32 s14, s14, s12")
            A("s_cmp_lt_u32 s11, 20")
            A(f"s_cselect_b32 s14, s14, {OOB}")
            A(f"v_and_b32 v{ta}, 15, v{vLane}")
            A(f"v_mul_u32_u24 v{ta}, 1280, v{ta}")
            A(f"v_lshrrev_b32 v{tb}, 4, v{vLane}")
            A(f"v_lshl_add_u32 v{ta}, v{tb}, 3, v{ta}")
            A(f"v_add_u32 v{OA+j}, s14, v{ta}")
            A(f"buffer_load_dwordx2 {vr(XR+2*j, 2)}, v{OA+j}, {srd(S_X)}, 0 offen")
            A("s_lshl_b32 s12, s11, 10")
            A(f"s_add_u32 s13, s12, {WO_LDS+5120}")
            A(f"v_add_u32 v{RA+5*j}, s13, v{vL16}")
            for f in range(4):
                A(f"s_add_u32 s13, s12, {KV_SLAB[f]}")
                A(f"s_add_u32 s14, s12, {WO_LDS + f*25600 - 14*1024}")
                A("s_cmp_lt_u32 s11, 14")
                A("s_cselect_b32 s13, s13, s14")
                A("s_cmp_lt_u32 s11, 19")
                A(f"s_cselect_b32 s13, s13, {28672 + f*1024}")
                A(f"v_add_u32 v{RA+5*j+1+f}, s13, v{vL16}")

    AD = 8
    RAW, NRAW = 56, 6
    FR = 80
    OSP = 96
    PQ = lambda mt, blk: 112 + 16 * blk + 4 * mt
    O = lambda u, mt: (OSP + 4 * mt) if u == 0 else PQ(mt, u - 1)
    DEN = 192
    NM = 224
    T = 192
    A(f"s_mul_i32 s8, s{sWave}, 14336")
    A(f"s_cmp_ge_u32 s{sWave}, 2")
    A(f"s_cselect_b32 s9, {135168 - 2*14336}, 0")
    A("s_add_u32 s8, s8, s9")
    for i in range(4):
        A(f"v_mov_b32 v{T+i}, 0")
    A(f"s_add_u32 s9, s8, 13440")
    A(f"v_mov_b32 v{vT2}, s9")
    A(f"ds_write_b128 v{vT2}, {vr(T)}")
    A(f"ds_write_b32 v{vT2}, v{T} offset:16")
    signal(0)
    A(f"s_cmp_lg_u32 s{sWave}, 0")
    A("s_cbranch_scc1 L2_nosig")
    A(f"buffer_atomic_add v{vSigV}, v{vSigA}, {srd(S_WS)}, 0 offen sc1")
    A.label("L2_nosig")
    stamp(A, 0, 1)
    if OPT["NOATT"]:
        A("s_branch L2_reduce")
    A(f"s_cmp_lg_u32 s{sWoDone}, 0")
    A("s_cbranch_scc1 L2_wodone")
    wo_setup(A)
    for g in wo_dmas():
        A(g)
    A.label("L2_wodone")
    A(f"s_mul_i32 s4, s{sWave}, 25600")
    A(f"s_add_u32 s4, s4, {WO_LDS}")
    iL, gL = T + 4, T + 5
    he = T + 12
    hd = T + 22
    ab, zb, hz = T + 6, T + 7, T + 8
    A(f"v_and_b32 v{iL}, 15, v{vLane}")
    A(f"v_lshrrev_b32 v{gL}, 4, v{vLane}")
    for Tt in range(10):
        A(f"v_add_u32 v{he+Tt}, {16*Tt}, v{iL}")
        A(f"v_mul_u32_u24 v{he+Tt}, 205, v{he+Tt}")
        A(f"v_lshrrev_b32 v{he+Tt}, 12, v{he+Tt}")
    for blk in range(5):
        for h in range(2):
            r = hd + 2 * blk + h
            A(f"v_lshlrev_b32 v{r}, 3, v{gL}")
            A(f"v_add_u32 v{r}, {32*blk+4*h}, v{r}")
            A(f"v_mul_u32_u24 v{r}, 205, v{r}")
            A(f"v_lshrrev_b32 v{r}, 12, v{r}")
    A(f"v_mul_u32_u24 v{ab}, 80, v{iL}")
    A(f"v_lshl_add_u32 v{ab}, v{gL}, 5, v{ab}")
    A(f"v_add_u32 v{ab}, s8, v{ab}")
    A(f"v_and_b32 v{hz}, 3, v{iL}")
    A(f"v_mul_u32_u24 v{zb}, 1600, v{hz}")
    A(f"v_lshl_add_u32 v{zb}, v{gL}, 5, v{zb}")
    A(f"v_add_u32 v{zb}, s8, v{zb}")
    NUM = {0: [0], 1: [0, 1], 2: [0, 1], 3: [1, 2], 4: [1, 2], 5: [2, 3], 6: [2, 3], 7: [3, 4], 8: [3, 4], 9: [4]}
    frs = []
    for ch in range(2):
        A(f"v_add_u32 v{T+9}, {4*ch}, v{hz}")
        bl = [0, 1, 2] if ch == 0 else [2, 3, 4]
        for blk in bl:
            n = len(frs)
            frs.append(("z", ch, blk, blk == bl[0], blk == bl[-1]))
            for h in range(2):
                a = AD + 2 * n + h
                A(f"v_cmp_eq_u32 vcc, v{T+9}, v{hd+2*blk+h}")
                A(f"v_add_u32 v{a}, {6400*ch+1600+128*blk+16*h}, v{zb}")
                A(f"v_cndmask_b32 v{a}, v{vT2}, v{a}, vcc")
        for Tt in range(5 * ch, 5 * ch + 5):
            for blk in NUM[Tt]:
                n = len(frs)
                frs.append(("n", Tt, blk, blk == NUM[Tt][0], blk == NUM[Tt][-1]))
                for h in range(2):
                    a = AD + 2 * n + h
                    A(f"v_cmp_eq_u32 vcc, v{he+Tt}, v{hd+2*blk+h}")
                    A(f"v_add_u32 v{a}, {1280*Tt+128*blk+16*h}, v{ab}")
                    A(f"v_cndmask_b32 v{a}, v{vT2}, v{a}, vcc")
    assert len(frs) == 24
    sM = 84
    for k in range(3):
        A(f"v_cmp_lt_u32 s[{sM+2*k}:{sM+2*k+1}], {k}, v{gL}")
    stamp(A, 7, 1, vt=vT0)
    A("s_setprio 3")
    A(f"s_lshr_b32 s10, s{sWave}, 1")
    A("s_lshl_b32 s10, 0x2000, s10")
    poll_flag(A, "L2_pq", sFl, "s10", "s10", vT0)
    stamp(A, 8, 1, vt=vT0)
    A(f"s_mul_i32 s6, s{sRB64}, 20")
    A(f"s_mul_i32 s7, s{sWave}, 5")
    A("s_add_u32 s6, s6, s7")
    A("s_lshl_b32 s6, s6, 12")
    A(f"s_add_u32 s6, s6, {WS_PQ}")
    for blk in range(5):
        for mt in range(4):
            A(f"buffer_load_dwordx4 {vr(PQ(mt, blk))}, v{vL16}, {srd(S_WS)}, s6 offen offset:{mt*1024} sc1")
        A(f"s_add_u32 s6, s6, 4096")
    A(f"s_lshl_b32 s6, s{sWave}, 3")
    A("s_and_b32 s7, s2, 7")
    A("s_add_u32 s6, s6, s7")
    A("s_lshl_b32 s6, s6, 8")
    A(f"s_add_u32 s6, s6, {WS_FL + FL_KV}")
    poll_flag(A, "L2_kv", 6, 0xff, 16, vT0)
    stamp(A, 3, 1, vt=vT0)
    A(f"s_mul_i32 s3, s{sWave}, 13440")
    A(f"s_add_u32 s3, s3, {WS_KVA}")
    for i in range(14):
        if i % 4 == 0:
            A(f"s_add_u32 m0, s8, {i*1024}")
            A(f"s_add_u32 s5, s3, {i*1024}")
        if i == 13:
            A("s_mov_b64 exec, 0xff")
        A(f"buffer_load_dwordx4 v{vL16}, {srd(S_WS)}, s5 offen offset:{(i%4)*1024} sc1 lds")
    A("s_mov_b64 exec, -1")
    A(f"s_setprio {OPT['APRIO']}")
    A("s_waitcnt vmcnt(7) lgkmcnt(0)")
    stamp(A, 9, 1, vt=vT0)
    raw = lambda k: RAW + 4 * (k % NRAW)
    fr = lambda n: FR + 4 * (n % 4)
    dst = lambda f, mt: (DEN + 8 * mt + 4 * f[1]) if f[0] == "z" else (NM + 16 * (f[1] % 2) + 4 * mt)

    def rd(n):
        if n == 12:
            A("s_waitcnt vmcnt(0)")
        for h in range(2):
            A(f"ds_read_b128 {vr(raw(2*n+h))}, v{AD+2*n+h}")

    def post(f):
        out = []
        if f[0] == "z":
            for mt in range(4):
                for i in range(4):
                    r = DEN + 8 * mt + 4 * f[1] + i
                    out.append(f"v_add_f32 v{r}, {f32(1e-6)}, v{r}")
            for mt in range(4):
                for i in range(4):
                    r = DEN + 8 * mt + 4 * f[1] + i
                    out.append(f"v_rcp_f32 v{r}, v{r}")
            return out
        Tt = f[1]
        lo, hi = (4 * Tt) // 5, (4 * Tt + 3) // 5
        sl = {}
        for mt in range(4):
            if lo == hi:
                sl[mt] = DEN + 8 * mt + lo
            else:
                thr = 5 * hi - 4 * Tt
                sl[mt] = AD + mt
                out.append(f"v_cndmask_b32 v{sl[mt]}, v{DEN+8*mt+lo}, v{DEN+8*mt+hi}, s[{sM+2*(thr-1)}:{sM+2*(thr-1)+1}]")
        for mt in range(4):
            d = dst(f, mt)
            for i in range(4):
                out.append(f"v_mul_f32 v{d+i}, v{d+i}, v{sl[mt]}")
        for mt in range(4):
            d = dst(f, mt)
            ob = O(Tt // 2, mt) + 2 * (Tt % 2)
            out.append(f"v_cvt_pk_bf16_f32 v{ob}, v{d}, v{d+1}")
            out.append(f"v_cvt_pk_bf16_f32 v{ob+1}, v{d+2}, v{d+3}")
        return out
    rd(0)
    rd(1)
    pend = []
    nxt = []
    for n in range(26):
        if n + 2 < 24:
            rd(n + 2)
        cv = []
        if n < 24:
            A(f"s_waitcnt lgkmcnt({2*min(2, 23-n)})")
            for h in range(2):
                cv.append(f"v_cvt_pk_bf16_f32 v{fr(n)+2*h}, v{raw(2*n+h)}, v{raw(2*n+h)+1}")
                cv.append(f"v_cvt_pk_bf16_f32 v{fr(n)+2*h+1}, v{raw(2*n+h)+2}, v{raw(2*n+h)+3}")
        mf = []
        if 1 <= n <= 24:
            f = frs[n - 1]
            if f[3] and f[0] == "n":
                need = [x for x in pend if x[0] <= f[1] - 2]
                for x in need:
                    A(x[1])
                pend = [x for x in pend if x[0] > f[1] - 2]
            for mt in range(4):
                d = vr(dst(f, mt))
                mf.append(f"v_mfma_f32_16x16x32_bf16 {d}, {vr(fr(n-1))}, {vr(PQ(mt, f[2]))}, {0 if f[3] else d}")
        take = pend[:14]
        pend = pend[14:]
        work = cv + [x[1] for x in take]
        for g in (interleave(mf, work) if mf else work):
            A(g)
        pend += nxt
        nxt = []
        if 1 <= n <= 24 and frs[n - 1][4]:
            f = frs[n - 1]
            nxt = [((f[1] if f[0] == "n" else 5 * f[1] - 0.5), x) for x in post(f)]
    for x in pend + nxt:
        A(x[1])
    stamp(A, 11, 1, vt=vT0)
    A(f"s_setprio {OPT['APRIO2']}")
    WF = 192
    A(f"v_add_u32 v{vT0}, s4, v{vL16}")
    A.fence()

    rd_wo = lambda u: [f"ds_read_b128 {vr(WF+20*(u%2)+4*nt)}, v{vT0} offset:{(u*5+nt)*1024}" for nt in range(5)]
    E = Asm()
    red_setup(E, vSigA, vSigV)
    rs = [t for _, t in E.lines]
    for g in rd_wo(0):
        A(g)
    for u in range(5):
        A("s_waitcnt lgkmcnt(0)")
        if u == 0:
            A(f"v_mov_b32 v{vT1}, 1")
            A(f"ds_write_b32 v{vT2}, v{vT1} offset:16")
        mf = []
        for nt in range(5):
            for mt in range(4):
                d = vr(acc(nt, mt))
                mf.append(f"v_mfma_f32_16x16x32_bf16 {d}, {vr(WF+20*(u%2)+4*nt)}, {vr(O(u, mt))}, {d if u else 0}")
        k = (len(rs) + 3) // 4
        for g in interleave(mf, (rd_wo(u + 1) if u < 4 else [], 0.2, 0.6), rs[u*k:(u+1)*k]):
            A(g)
    stamp(A, 1, 1, vt=vSigA)
    A.fence()
    for t in range(20):
        A(f"ds_write_b128 v{vT0}, {vr(ACC+4*t)} offset:{5120+t*1024}")
    A("s_branch L2_reduce")

    A.label("L2_ffn")
    q = []

    def ldW(j):
        for g in ldW_groups(j):
            A(g)
        q.extend([("W", j)] * 5)

    def ldH1(j, mt):
        if j == NK - 1 and mt == 0:
            A(f"s_add_u32 s{sHo}, s{sHo}, s{sLast}")
        A(f"buffer_load_dwordx4 {vr(HQ[4*(j%HD)+mt])}, v{vL16}, {srd(S_WS)}, s{sHo} offen offset:{mt*1024}{HSC}")
        if mt == 3:
            A(f"s_add_u32 s{sHo}, s{sHo}, 4096")
            A(f"s_cmp_eq_u32 s{sHo}, s{sHe}")
            A(f"s_cselect_b32 s{sHo}, s{sHb}, s{sHo}")
        q.append(("H", j, mt))

    def ldH(j):
        for mt in range(4):
            ldH1(j, mt)
    signal(0)
    A(f"s_cmp_lg_u32 s{sWoDone}, 0")
    A("s_cbranch_scc1 L2_ws")
    ffn_setup(A)
    A.label("L2_ws")
    A(f"s_sub_u32 s10, s{sWave}, 4")
    A("s_lshl_b32 s10, s10, 1")
    A("s_lshl_b32 s10, 7, s10")
    A(f"v_mov_b32 v{vT1}, 0")
    A(f"s_cmp_gt_u32 s{sWoDone}, 1")
    A("s_cbranch_scc1 L2_w0")
    ldW(0)
    ldW(1)
    A.label("L2_w0")
    assert OPT["NPRE"] == 2
    for j in range(2, WD):
        if j == OPT["EPOLL"]:
            A(f"buffer_load_dword v{vT2}, v{vT1}, {srd(S_WS)}, s{sFl} offen sc1")
        ldW(j)
    if OPT["EPOLL"]:
        A(f"s_waitcnt vmcnt({5*(WD-OPT['EPOLL'])})")
        A(f"v_readfirstlane_b32 s{sTmp3}, v{vT2}")
        A(f"s_and_b32 s{sTmp3}, s{sTmp3}, s10")
        A(f"s_cmp_eq_u32 s{sTmp3}, s10")
        A(f"s_cbranch_scc1 L2_h_ok")
    stamp(A, 4, 1, wave=4, vt=vT0)
    poll_flag(A, "L2_h", sFl, "s10", "s10", vT0)
    stamp(A, 5, 1, wave=4, vt=vT0)
    stamp(A, 14, 1, wave=4, vt=vT0, clk=True)
    q.clear()
    for j in range(HD):
        ldH(j)
    A(f"s_setprio {OPT['FPRIO']}")
    later = []
    for j in range(NK):
        for mt in range(4):
            last = max(i for i, e in enumerate(q) if e[1] == j and (e[0] == "W" or e[2] <= mt))
            A(f"s_waitcnt vmcnt({len(q)-1-last})")
            for nt in range(5):
                d = vr(AQ[nt*4+mt])
                if not OPT["NOMF"]: A(f"v_mfma_f32_16x16x32_bf16 {d}, {vr(WQ[5*(j%WD)+nt])}, {vr(HQ[4*(j%HD)+mt])}, {d if j else 0}")
            for fn in later:
                fn()
            later = []
            if j + HD < NK:
                later.append(lambda j=j, mt=mt: ldH1(j + HD, mt))
        if j + WD < NK:
            later.append(lambda j=j: ldW(j + WD))
    A("s_setprio 0")
    stamp(A, 6, 1, wave=4, vt=vT0)
    stamp(A, 15, 1, wave=4, vt=vT0, clk=True)
    A("s_waitcnt vmcnt(0)")
    red_setup(A, vSigA, vSigV)
    A(f"s_sub_u32 s3, s{sWave}, 4")
    A("s_mul_i32 s8, s3, 14336")
    A("s_cmp_ge_u32 s3, 2")
    A(f"s_cselect_b32 s9, {135168 - 2*14336}, 0")
    A("s_add_u32 s8, s8, s9")
    A(f"v_add_u32 v{vT0}, s8, v{vL16}")
    A("s_add_u32 s9, s8, 13456")
    A(f"v_mov_b32 v{vT2}, s9")
    A(f"s_mov_b32 s{sSpin}, 0")
    A.label("L2_wfree")
    A(f"ds_read_b32 v{vT1}, v{vT2}")
    A("s_waitcnt lgkmcnt(0)")
    A(f"v_readfirstlane_b32 s9, v{vT1}")
    A(f"s_add_u32 s{sSpin}, s{sSpin}, 1")
    A("s_cmp_eq_u32 s9, 1")
    A("s_cbranch_scc1 L2_wfree_ok")
    A(f"s_cmp_gt_u32 s{sSpin}, {SPIN_MAX*16}")
    A("s_cbranch_scc1 L2_wfree_ok")
    A("s_sleep 2")
    A("s_branch L2_wfree")
    A.label("L2_wfree_ok")
    A("s_mul_i32 s8, s3, 25600")
    A(f"s_add_u32 s8, s8, {WO_LDS}")
    A(f"v_add_u32 v{vT1}, s8, v{vL16}")
    A("s_lshl_b32 s8, s3, 10")
    A(f"v_add_u32 v{vT2}, s8, v{vL16}")
    for t in range(20):
        if t < 14:
            A(f"ds_write_b128 v{vT0}, {vr(AQ[t])} offset:{t*1024}")
        elif t < 19:
            A(f"ds_write_b128 v{vT1}, {vr(AQ[t])} offset:{(t-14)*1024}")
        else:
            A(f"ds_write_b128 v{vT2}, {vr(AQ[t])} offset:28672")

    A.label("L2_reduce")
    if OPT["DLY"] == 5:
        A("s_sleep 30")
    A("s_setprio 0")
    A("s_waitcnt lgkmcnt(0)")
    stamp(A, 12, 1, vt=vSigA)
    A("s_barrier")
    stamp(A, 13, 1, vt=vSigA)
    R = lambda j: 8 + 32 * j

    def rds(j):
        A(f"v_add_u32 v{vT0}, {2*25600}, v{RA+5*j}")
        for w in range(4):
            A(f"ds_read_b128 {vr(R(j)+4*w)}, v{RA+5*j if w < 2 else vT0} offset:{(w%2)*25600}")
        for f in range(4):
            A(f"ds_read_b128 {vr(R(j)+16+4*f)}, v{RA+5*j+1+f}")

    def fin(j):
        r = R(j)
        for st in (16, 8, 4):
            for i in range(0, st, 2):
                pk_mul(A, r + i, ("p", r + i), ("p", r + st + i), op="add")
        x0, x1 = XR + 2 * j, XR + 2 * j + 1
        A(f"v_lshlrev_b32 v{r+4}, 16, v{x0}")
        A(f"v_and_b32 v{r+5}, 0xffff0000, v{x0}")
        A(f"v_lshlrev_b32 v{r+6}, 16, v{x1}")
        A(f"v_and_b32 v{r+7}, 0xffff0000, v{x1}")
        for i in range(0, 4, 2):
            pk_mul(A, r + i, ("p", r + i), ("p", r + 4 + i), op="add")
        A(f"v_cvt_pk_bf16_f32 v{x0}, v{r}, v{r+1}")
        A(f"v_cvt_pk_bf16_f32 v{x1}, v{r+2}, v{r+3}")
        A(f"buffer_store_dwordx2 {vr(x0, 2)}, v{OA+j}, {srd(S_OUT)}, 0 offen" + ["", " sc1", " nt"][OPT["OUTSC"]])
    rds(0)
    rds(1)
    A("s_waitcnt vmcnt(0) lgkmcnt(8)")
    fin(0)
    A(f"s_cmp_ge_u32 s{sWave}, 4")
    A("s_cbranch_scc1 L2_last")
    rds(2)
    A("s_waitcnt lgkmcnt(0)")
    fin(2)
    A.label("L2_last")
    A("s_waitcnt lgkmcnt(0)")
    fin(1)
    A.label("L2_done")
    stamp(A, 2, 1, vt=vSigA)


def descriptor(name, vgpr=256):
    return f""".amdhsa_kernel {name}
  .amdhsa_next_free_vgpr {vgpr}
  .amdhsa_next_free_sgpr 102
  .amdhsa_accum_offset {vgpr}
  .amdhsa_group_segment_fixed_size 0
  .amdhsa_kernarg_size 80
  .amdhsa_user_sgpr_count 2
  .amdhsa_user_sgpr_kernarg_segment_ptr 1
  .amdhsa_system_sgpr_workgroup_id_x 1
.end_amdhsa_kernel
"""


def probe(A):
    A(".p2align 8")
    A.label("pre_kernel")
    if OPT["PROBE"] in (4, 5):
        A("s_cmp_ge_u32 s2, 64")
        A("s_cbranch_scc1 L_pre_exit")
        load_ptrs(A)
        A("s_lshr_b32 s3, s2, 3")
        A("s_lshl_b32 s3, s3, 9")
        A("v_add_u32 v1, s3, v0")
        A("v_lshlrev_b32 v1, 12, v1")
        A("s_waitcnt lgkmcnt(0)")
        lst = ((P_WS, WS_SIZE), (P_OUT, 2048*1280))
        if OPT["PROBE"] == 5:
            lst += ((P_X, 2048*1280), (P_WQKV, 640*3840), (P_WO, 640*1280), (P_G, 640*3456), (P_U, 640*3456), (P_D, 1728*1280))
        for k, (p, n) in enumerate(lst):
            mk_srd(A, 36 + 4*k, p, n)
            A(f"buffer_load_dword v{2+k}, v1, {srd(36+4*k)}, 0 offen")
        A("s_waitcnt vmcnt(0)")
        A.label("L_pre_exit")
    if OPT["PROBE"] == 2:
        A("s_cmp_ge_u32 s2, 256")
        A("s_cbranch_scc1 L_pre_exit")
        load_ptrs(A)
        A("s_lshl_b32 s3, s2, 9")
        A("v_add_u32 v1, s3, v0")
        A("v_lshlrev_b32 v1, 5, v1")
        A("s_waitcnt lgkmcnt(0)")
        for k, (p, n) in enumerate(((P_X, 2048*1280), (P_WQKV, 640*3840), (P_WO, 640*1280), (P_G, 640*3456), (P_U, 640*3456), (P_D, 1728*1280))):
            mk_srd(A, 36 + 4*k, p, n)
            A(f"buffer_load_dword v{2+k}, v1, {srd(36+4*k)}, 0 offen")
        A("s_waitcnt vmcnt(0)")
        A.label("L_pre_exit")
    A("s_endpgm")


def main():
    A = Asm()
    kernel1(A)
    K = NAME + "_kernel"
    launch = f"; @launch grid=(256,1,1) block=(512,1,1) lds={LDS_TOTAL}"
    extra = ""
    if OPT["PROBE"]:
        probe(A)
        launch = f"; @launch kernel=pre_kernel grid=(256,1,1) block=(512,1,1) lds=0\n; @launch kernel={K} grid=(256,1,1) block=(512,1,1) lds={LDS_TOTAL}"
        if OPT["PROBE"] == 3:
            launch = f"; @launch kernel={K} grid=(256,1,1) block=(512,1,1) lds={LDS_TOTAL}\n; @launch kernel={K} grid=(256,1,1) block=(512,1,1) lds={LDS_TOTAL}"
        extra = ".p2align 6\n" + descriptor("pre_kernel", 16)
    head = f"""; LN + linear attention + GEGLU FFN, one persistent launch (generated by dev/gen.py)
{launch}
.amdgcn_target "amdgcn-amd-amdhsa--gfx950"
.text
.globl {K}
.type {K},@function
"""
    tail = '.section .rodata,"a"\n.p2align 6\n' + descriptor(K) + extra
    open(sys.argv[1], "w").write(head + A.render() + tail)


main()
```

```python
import sys, struct, math
from asmlib import Asm, interleave

NAME = "parallel_sum__linear_attn_block__geglu_ffn__prompt"

OPT = dict(ROTQ=1, STAMP=0, NODMA=0, SAME=0, NOSWZ=0, NORD=0, P2ROT=1, WARM=1, PLAIN=0, BYTEFLAG=0, NBUP=6, SW=0, P2ONLY=0, P2SAME=0, NOATT=0, NOMF=0, FPRIO=1, NPRE=2, CGPERM=0, OUTSC=0, CODEWARM=2, TLBWARM=0, PUBST=0, GPK=1, APRIO=2, APRIO2=0, FINEH=1, XMAP=0, FAKE16=0, PSLEEP=2, EPOLL=0, PROBE=0, WOEPI=0, NXA=0, XPOS=1, G16=1, DLY=0, KV1=0, AUXWARM=7)
for a in sys.argv[2:]:
    k, v = a.split("=")
    OPT[k] = int(v)

OPT_WOEPI = ['', 'K', 'KQ', 'KQG'][OPT['WOEPI']]
HSC = '' if OPT['PLAIN'] else ' sc1'
WS_H = 0x000000
WS_PQ = 0x700000
WS_W2 = 0xA00000
WS_ST = 0xD00000
WS_CS = 0xD10000
WS_KVA = 0xD80000
WS_FL = 0xD90000
FL_HC = 0
FL_KV = 16 * 256
FL_ROW = 128
WS_STAMP = 0xF00000
WS_SIZE = 0x1000000
OOB = 0x40000000


def f32(x):
    return "0x%08x" % struct.unpack("<I", struct.pack("<f", x))[0]


LOG2E = 1.4426950408889634
GC1 = -2.0 * math.sqrt(2.0 / math.pi) * LOG2E
GC2 = GC1 * 0.044715

P_X, P_WQKV, P_WO, P_BX, P_G, P_U, P_D, P_OUT, P_DBG, P_WS = 16, 18, 20, 22, 24, 26, 28, 30, 32, 34
S_X, S_W, S_WS, S_DBG, S_T = 36, 40, 44, 48, 52


def srd(b):
    return f"s[{b}:{b+3}]"


def vr(b, n=4):
    return f"v[{b}:{b+n-1}]"


def mk_srd(A, s, p, nbytes):
    A(f"s_mov_b32 s{s}, s{p}")
    A(f"s_and_b32 s{s+1}, s{p+1}, 0xffff")
    A(f"s_mov_b32 s{s+2}, {nbytes}")
    A(f"s_mov_b32 s{s+3}, 0x20000")


def load_ptrs(A):
    A("s_load_dwordx16 s[16:31], s[0:1], 0")
    A("s_load_dwordx4 s[32:35], s[0:1], 64")


def wave_allreduce_add(A, v, t, s0):
    A(f"v_add_f32_dpp v{v}, v{v}, v{v} quad_perm:[1,0,3,2] row_mask:0xf bank_mask:0xf")
    A(f"v_add_f32_dpp v{v}, v{v}, v{v} quad_perm:[2,3,0,1] row_mask:0xf bank_mask:0xf")
    A(f"v_add_f32_dpp v{v}, v{v}, v{v} row_half_mirror row_mask:0xf bank_mask:0xf")
    A(f"v_add_f32_dpp v{v}, v{v}, v{v} row_mirror row_mask:0xf bank_mask:0xf")
    for i in range(4):
        A(f"v_readlane_b32 s{s0+i}, v{v}, {16*i}")
    A(f"v_mov_b32 v{v}, s{s0}")
    A(f"v_mov_b32 v{t}, s{s0+2}")
    A(f"v_add_f32 v{v}, s{s0+1}, v{v}")
    A(f"v_add_f32 v{t}, s{s0+3}, v{t}")
    A(f"v_add_f32 v{v}, v{v}, v{t}")


def lstamp(A, k):
    if OPT["STAMP"] != 4:
        return
    A("s_memrealtime s[96:97]")
    A("s_waitcnt lgkmcnt(0)")
    A(f"v_writelane_b32 v28, s96, {k}")


def cstamp(A, k):
    if OPT["STAMP"] != 7:
        return
    A("s_memtime s[96:97]\ns_waitcnt lgkmcnt(0)\n" + f"v_writelane_b32 v48, s96, {k}")


def stamp(A, idx, kern, dyn=None, clk=False, wave=0, vt=None):
    if vt is None:
        vt = (26 if idx != 3 else 50) if kern == 0 else 254
    if not OPT["STAMP"]:
        return
    if OPT["STAMP"] == 8:
        slot = {(0, 0): 2, (0, 1): 4, (0, 2): 6, (0, 3): 8, (1, 3): 10, (1, 1): 12, (1, 2): 14}.get((kern, idx))
        if slot is None or clk or wave != 0:
            return
        lab = f"L_st_{kern}_{idx}_{len(A.lines)}"
        A(f"s_or_b32 s98, s{sWave}, s2")
        A("s_cmp_lg_u32 s98, 0")
        A(f"s_cbranch_scc1 {lab}")
        A("s_memrealtime s[96:97]")
        A("s_memtime s[98:99]")
        A("s_waitcnt lgkmcnt(0)")
        A(f"v_mov_b32 v{vt}, s96")
        A(f"buffer_store_dword v{vt}, off, {srd(S_DBG)}, 0 offset:{slot*4}")
        A(f"v_mov_b32 v{vt+1}, s98")
        A(f"buffer_store_dword v{vt+1}, off, {srd(S_DBG)}, 0 offset:{slot*4+4}")
        A.label(lab)
        return
    if OPT["STAMP"] == 9:
        slot = {(0, 0): (1, True), (0, 1): (2, False), (0, 2): (3, False), (0, 3): (5, False), (1, 0): (6, False), (1, 5): (7, False),
                (1, 3): (9, False), (1, 1): (10, False), (1, 2): (11, False), (1, 6): (13, False)}.get((kern, idx))
        if slot is None or clk:
            return
        lab = f"L_st_{kern}_{idx}_{len(A.lines)}"
        A(f"s_cmp_lg_u32 s{sWave}, {wave}")
        A(f"s_cbranch_scc1 {lab}")
        A("s_memrealtime s[96:97]")
        A("s_waitcnt lgkmcnt(0)")
        if slot[1]:
            A("s_not_b32 s96, s96")
        A(f"v_mov_b32 v{vt}, s96")
        A(f"v_mov_b32 v{vt+1}, {OOB}")
        A(f"v_writelane_b32 v{vt+1}, {slot[0]*4}, 0")
        A(f"buffer_atomic_umax v{vt}, v{vt+1}, {srd(S_DBG)}, 0 offen sc1")
        A.label(lab)
        return
    lab = f"L_st_{kern}_{idx}_{len(A.lines)}"
    A(f"s_cmp_lg_u32 s{sWave}, {wave}")
    A(f"s_cbranch_scc1 {lab}")
    A("s_memtime s[96:97]" if clk else "s_memrealtime s[96:97]")
    A("s_waitcnt lgkmcnt(0)")
    A(f"s_lshl_b32 s98, s2, 6")
    A(f"s_add_u32 s98, s98, {WS_STAMP + kern*0x8000 + idx*4}")
    if dyn is not None:
        A(f"s_lshl_b32 s99, s{dyn}, 2")
        A("s_add_u32 s98, s98, s99")
    A(f"v_mov_b32 v{vt}, s96")
    A(f"v_mov_b32 v{vt+1}, 0")
    A(f"buffer_store_dword v{vt}, v{vt+1}, {srd(S_WS)}, s98 offen")
    A.label(lab)


sWave, sRB, sCG, sIt, sKW, sKWn, sKX, sKXn, sWslot, sRslot, sXslot, sStepW, sCSit, sSpec, sTmp, sTmp2, sMW, sNW, sWrapW, sTmp3, sC0, sRow, sSpin, sOdd, sPub, sUw, sUl = range(56, 83)
X_LDS = 0
W_LDS = 32768
W_SLOT = 24576
MISC_LDS = W_LDS + 5 * W_SLOT
LDS_TOTAL = 163840
KV_CS = MISC_LDS
KV_ST = MISC_LDS + 2048

vLane, vT0, vT1, vT2, vT3 = 1, 2, 3, 4, 5
vSigA, vSigV = 6, 7
vXo = 6
vWo = 8
vXa = 11
vWb = 15
vWa = 20
vPa = 25
SPIN_MAX = 0x100000
vSel = 52
vPoll = 30
vCSA = 32
vCSP = 32
vSt = 31
KST = lambda j: (44 + 4 * j) if j < 3 else (232 + 4 * (j - 3))
vBUF = 56
vACC = 152


KVT = [[(0, 0), (0, 1), (0, 2), (1, 0), (1, 1)], [(0, 3), (0, 4), (1, 2), (1, 3), (1, 4)]]


def k1_gemm(A, typ):
    G = typ == "G"
    MT = 2 if G else 1
    NT = 3 if G else 5
    NW_ = 6 if G else 5
    pitch = 3456 if G else 3840
    XB = lambda P, mt, kk: vBUF + 48 * P + 4 * (mt * 2 + kk)
    WBf = lambda P, a, kk: vBUF + 48 * P + 4 * MT * 2 + 4 * (a * 2 + kk)
    acc = lambda mt, a: vACC + 16 * (mt * NT + a)
    L = lambda s: f"L_{typ}_{s}"
    S16 = G and OPT["G16"]
    sel = 248 if S16 else vSel
    NCS = 6 if S16 else NT

    if G:
        A(f"s_lshr_b32 s{sMW}, s{sWave}, 2")
        A(f"s_and_b32 s{sNW}, s{sWave}, 3")
        mk_srd(A, S_W, P_G, 640 * 3456)
        mk_srd(A, S_T, P_U, 640 * 3456)
    else:
        A(f"s_lshr_b32 s{sMW}, s{sWave}, 1")
        A(f"s_and_b32 s{sNW}, s{sWave}, 1")
        mk_srd(A, S_W, P_WQKV, 640 * 3840)
    A(f"s_and_b32 s{sTmp2}, s{sWave}, 3")
    A(f"v_lshrrev_b32 v{vT0}, 3, v{vLane}")
    A(f"s_lshl_b32 s{sTmp3}, s{sTmp2}, 3")
    A(f"v_add_u32 v{vT0}, s{sTmp3}, v{vT0}")
    A(f"v_mul_u32_u24 v{vT0}, {pitch}, v{vT0}")
    A(f"v_and_b32 v{vT1}, 7, v{vLane}")
    A(f"v_lshrrev_b32 v{vT2}, 2, v{vLane}")
    A(f"v_and_b32 v{vT2}, 4, v{vT2}")
    A(f"v_xor_b32 v{vT1}, v{vT1}, v{vT2}")
    if G:
        A(f"s_mul_i32 s{sTmp3}, s{sCG}, {0 if OPT['SAME'] else 384}")
        A(f"v_add_u32 v{vT0}, s{sTmp3}, v{vT0}")
        if S16:
            A(f"s_and_b32 s{sTmp3}, s{sWave}, 1")
            A(f"s_lshl_b32 s{sTmp3}, s{sTmp3}, 1")
            A(f"v_xor_b32 v{vT1}, s{sTmp3}, v{vT1}")
        A(f"v_lshl_add_u32 v{vWo}, v{vT1}, 4, v{vT0}")
        if not S16:
            A(f"v_xor_b32 v{vT1}, 2, v{vT1}")
        A(f"v_lshl_add_u32 v{vWo+1}, v{vT1}, 4, v{vT0}")
        chunks = [(S_W, vWo, 0), (S_W, vWo, 128), (S_W, vWo, 256), (S_T, vWo + 1, 0), (S_T, vWo + 1, 128), (S_T, vWo + 1, 256)]
    elif typ == "Q":
        A(f"s_sub_u32 s{sTmp3}, s{sCG}, 13")
        A(f"s_mul_i32 s{sTmp3}, s{sTmp3}, 640")
        A(f"v_add_u32 v{vT0}, s{sTmp3}, v{vT0}")
        A(f"v_lshl_add_u32 v{vWo}, v{vT1}, 4, v{vT0}")
        chunks = [(S_W, vWo, 128 * i) for i in range(5)]
    else:
        A(f"s_sub_u32 s4, s{sCG}, 9")
        A(f"s_and_b32 s{sOdd}, s4, 1")
        A(f"s_mul_i32 s6, s4, 320")
        A(f"s_add_u32 s6, s6, 1280")
        A(f"s_lshl_b32 s7, s{sOdd}, 6")
        A(f"s_add_u32 s7, s7, s6")
        A(f"s_cmp_eq_u32 s{sOdd}, 0")
        A(f"s_cselect_b32 s8, 256, 0")
        A(f"s_add_u32 s8, s8, s6")
        A(f"v_lshl_add_u32 v{vT2}, v{vT1}, 4, v{vT0}")
        A(f"v_add_u32 v{vWo}, s7, v{vT2}")
        A(f"v_xor_b32 v{vT3}, 2, v{vT1}")
        A(f"v_lshl_add_u32 v{vT2}, v{vT3}, 4, v{vT0}")
        A(f"v_add_u32 v{vWo+2}, s7, v{vT2}")
        A(f"v_lshrrev_b32 v{vT2}, 2, v{vT1}")
        A(f"v_lshlrev_b32 v{vT3}, 1, v{vT2}")
        A(f"v_xor_b32 v{vT3}, v{vT3}, v{vT1}")
        A(f"v_and_b32 v{vT3}, 3, v{vT3}")
        A(f"v_lshl_add_u32 v{vT3}, v{vT3}, 4, v{vT0}")
        A(f"v_mul_u32_u24 v{vT2}, 1280, v{vT2}")
        A(f"v_add3_u32 v{vWo+1}, v{vT3}, v{vT2}, s8")
        chunks = [(S_W, vWo, 0), (S_W, vWo, 128), (S_W, vWo + 2, 1280), (S_W, vWo + 2, 1408), (S_W, vWo + 1, 0)]
    A(f"s_lshr_b32 s{sTmp}, s{sWave}, 2")
    A(f"s_lshl_b32 s{sTmp2}, s{sTmp2}, 10")
    A(f"s_add_u32 s{sWrapW}, s{sTmp2}, {W_LDS + 5*W_SLOT}")
    A(f"s_mul_i32 s{sWslot}, s{sTmp}, {W_SLOT}")
    A(f"s_add_u32 s{sWslot}, s{sWslot}, s{sTmp2}")
    A(f"s_add_u32 s{sWslot}, s{sWslot}, {W_LDS}")
    A(f"s_mul_i32 s{sKW}, s{sC0}, {64*pitch}")
    A(f"s_mul_i32 s{sTmp}, s{sTmp}, {32*pitch}")
    A(f"s_add_u32 s{sKW}, s{sKW}, s{sTmp}")
    A(f"s_mov_b32 s{sKWn}, 0")

    def dmaW():
        out = []
        for i, (sr, vo, imm) in enumerate(chunks):
            out.append(f"s_add_u32 m0, s{sWslot}, {i*4096 - imm}\n" +
                       "s_nop 0\n" +
                       f"buffer_load_dwordx4 v{vo}, {srd(sr)}, s{sKW} offen offset:{imm} lds")
        out.append(f"s_add_u32 s{sWslot}, s{sWslot}, {2*W_SLOT}\n"
                   f"s_cmp_ge_u32 s{sWslot}, s{sWrapW}\n"
                   f"s_cselect_b32 s{sTmp}, {5*W_SLOT}, 0\n"
                   f"s_sub_u32 s{sWslot}, s{sWslot}, s{sTmp}\n"
                   f"s_add_u32 s{sKW}, s{sKW}, {64*pitch}\n"
                   f"s_cmp_ge_u32 s{sKW}, {640*pitch}\n"
                   f"s_cselect_b32 s{sTmp}, {640*pitch}, 0\n"
                   f"s_sub_u32 s{sKW}, s{sKW}, s{sTmp}")
        return out

    def dmaX():
        out = []
        for i in range(4):
            out.append(f"s_add_u32 m0, s{sXslot}, {i*1024}\n" +
                       f"s_add_u32 s{sTmp}, s{sKX}, {16*1280}\n" +
                       f"buffer_load_dwordx4 v{vXo+i%2}, {srd(S_X)}, s{sKX if i < 2 else sTmp} offen lds")
        out.append(f"s_xor_b32 s{sXslot}, s{sXslot}, 16384\n"
                   f"s_add_u32 s{sKX}, s{sKX}, 128\n"
                   f"s_cmp_eq_u32 s{sKX}, 1280\n"
                   f"s_cselect_b32 s{sKX}, 0, s{sKX}")
        return out

    A(f"s_cmp_lt_u32 s{sWave}, 4")
    A(f"s_cbranch_scc1 {L('p1')}")
    for g in dmaX():
        A(g)
    A(f"s_branch {L('p2')}")
    A.label(L("p1"))
    for g in dmaW():
        A(g)
    A.label(L("p2"))
    lstamp(A, 16)

    if OPT["STAMP"] == 3:
        stamp(A, 4, 0, wave=OPT["SW"])
    if S16:
        A(f"v_and_b32 v{vT0}, 15, v{vLane}")
        A(f"v_lshrrev_b32 v{vT1}, 4, v{vLane}")
        A(f"v_bfe_u32 v{vT2}, v{vLane}, 1, 3")
        A(f"v_xor_b32 v{vT1}, v{vT1}, v{vT2}")
        A(f"s_lshl_b32 s{sTmp}, s{sMW}, 13")
        A(f"v_lshl_add_u32 v{vT0}, v{vT0}, 7, s{sTmp}")
        for kap in range(2):
            A(f"v_xor_b32 v{vT2}, {4*kap}, v{vT1}")
            A(f"v_lshl_add_u32 v{vXa+2*kap}, v{vT2}, 4, v{vT0}")
            A(f"v_add_u32 v{vXa+2*kap+1}, 2048, v{vXa+2*kap}")
    else:
        A(f"v_and_b32 v{vT0}, 31, v{vLane}")
        A(f"v_lshrrev_b32 v{vT1}, 5, v{vLane}")
        A(f"v_bfe_u32 v{vT2}, v{vLane}, 1, 3")
        A(f"v_xor_b32 v{vT1}, v{vT1}, v{vT2}")
        A(f"s_lshl_b32 s{sTmp}, s{sMW}, {13 if G else 12}")
        A(f"v_lshl_add_u32 v{vT0}, v{vT0}, 7, s{sTmp}")
        for kap in range(2):
            for kk in range(2):
                A(f"v_xor_b32 v{vT2}, {4*kap+2*kk}, v{vT1}")
                A(f"v_lshl_add_u32 v{vXa+2*kap+kk}, v{vT2}, 4, v{vT0}")
    A(f"v_lshrrev_b32 v{vT0}, {4 if S16 else 5}, v{vLane}")
    A(f"v_lshlrev_b32 v{vT0}, 10, v{vT0}")
    A(f"v_bfe_u32 v{vT1}, v{vLane}, 2, 2")
    A(f"v_lshl_add_u32 v{vT0}, v{vT1}, 7, v{vT0}")
    A(f"v_and_b32 v{vT2}, 3, v{vLane}")
    if typ != "K" and not S16:
        A(f"v_lshlrev_b32 v{vT3}, 1, v{vT2}")
        A(f"v_lshrrev_b32 v{vT2}, 1, v{vT2}")
        A(f"v_and_b32 v{vT3}, 2, v{vT3}")
        A(f"v_or_b32 v{vT2}, v{vT2}, v{vT3}")
    A(f"v_lshl_add_u32 v{vT0}, v{vT2}, 3, v{vT0}")
    A(f"v_and_b32 v{vT1}, 2, v{vT1}")
    A(f"v_bfe_u32 v{vT2}, v{vLane}, 4, 1")
    A(f"v_xor_b32 v{vT1}, v{vT1}, v{vT2}")
    if G:
        if not S16:
            A(f"v_mul_u32_u24 v{vT2}, {3*4096}, v{vT2}")
            A(f"v_add_u32 v{vT0}, v{vT0}, v{vT2}")
        for a in range(3):
            A(f"s_mul_i32 s{sTmp}, s{sNW}, 3")
            A(f"s_add_u32 s{sTmp}, s{sTmp}, {a}")
            A(f"s_lshr_b32 s{sTmp2}, s{sTmp}, 2")
            A(f"s_lshl_b32 s{sTmp2}, s{sTmp2}, 12")
            A(f"s_and_b32 s{sTmp}, s{sTmp}, 3")
            A(f"v_xor_b32 v{vT2}, s{sTmp}, v{vT1}")
            A(f"v_lshl_add_u32 v{vT2}, v{vT2}, 5, v{vT0}")
            A(f"v_add_u32 v{vWb+a}, s{sTmp2}, v{vT2}")
    else:
        for a in range(5):
            if typ == "Q":
                A(f"s_mul_i32 s{sTmp}, s{sNW}, 5")
                A(f"s_add_u32 s{sTmp}, s{sTmp}, {a}")
                A(f"s_lshr_b32 s{sTmp2}, s{sTmp}, 1")
                A(f"s_lshl_b32 s{sTmp2}, s{sTmp2}, 12")
                A(f"s_and_b32 s{sTmp}, s{sTmp}, 1")
                A(f"s_lshl_b32 s{sTmp}, s{sTmp}, 1")
                A(f"v_xor_b32 v{vT2}, s{sTmp}, v{vT1}")
                A(f"v_lshl_add_u32 v{vT2}, v{vT2}, 5, v{vT0}")
                A(f"v_add_u32 v{vWb+a}, s{sTmp2}, v{vT2}")
            else:
                def loc(pi, nw, odd):
                    m, p = pi // 5, 5 * nw + pi % 5
                    if odd:
                        L_, tau = (4, p + 2 * m) if p < 2 else (2 * m + ((p - 2) >> 2), (p - 2) & 3)
                    else:
                        L_, tau = (4, p - 8 + 2 * m) if p >= 8 else (2 * m + (p >> 2), p & 3)
                    return L_ * 4 + (tau ^ m)
                if a == 0:
                    A(f"s_lshl_b32 s9, s{sNW}, 1")
                    A(f"s_add_u32 s9, s9, s{sOdd}")
                    A("s_lshl_b32 s9, s9, 3")
                    A(f"v_bfe_u32 v{vT2}, v{vLane}, 4, 1")
                    A(f"v_cmp_eq_u32 vcc, 1, v{vT2}")
                    A(f"v_and_b32 v{vT1}, 2, v{vT1}")
                for sub, sr in ((0, sTmp), (1, sTmp2)):
                    tab = sum(loc(2 * a + sub, nw, odd) << (8 * (2 * nw + odd)) for nw in range(2) for odd in range(2))
                    A(f"s_lshr_b32 s{sr}, {tab}, s9")
                    A(f"s_and_b32 s{sr}, s{sr}, 0xff")
                A(f"v_mov_b32 v{vT2}, s{sTmp}")
                A(f"v_mov_b32 v{vT3}, s{sTmp2}")
                A(f"v_cndmask_b32 v{vT2}, v{vT2}, v{vT3}, vcc")
                A(f"v_lshrrev_b32 v{vT3}, 2, v{vT2}")
                A(f"v_lshl_add_u32 v{vT3}, v{vT3}, 12, v{vT0}")
                A(f"v_and_b32 v{vT2}, 3, v{vT2}")
                A(f"v_xor_b32 v{vT2}, v{vT2}, v{vT1}")
                A(f"v_lshl_add_u32 v{vWb+a}, v{vT2}, 5, v{vT3}")
        if typ == "K":
            kv_addr_setup(A)
    A(f"s_mov_b32 s{sRslot}, {W_LDS}")
    poll_addr(A)
    A(f"v_and_b32 v{vT0}, 15, v{vLane}")
    A(f"v_bfe_u32 v{vT1}, v{vLane}, 4, 1")
    A(f"v_cmp_eq_u32 vcc, v{vT0}, v{vT1}")
    A(f"v_mov_b32 v{vT2}, 0x3f803f80")
    A(f"v_cndmask_b32 v{vSel}, 0, v{vT2}, vcc")
    for i in range(1, 4):
        A(f"v_mov_b32 v{vSel+i}, v{vSel}")
    if S16:
        for i in range(4):
            A(f"v_mov_b32 v{sel+i}, 0x3f803f80")
    for i in range(4 * NCS):
        A(f"v_mov_b32 v{vCSA+i}, 0")
    for i in range(16 * MT * NT):
        A(f"v_mov_b32 v{vACC+i}, 0")
    A(f"s_mov_b32 s{sPub}, 2")
    A(f"s_bitcmp1_b32 0x88ff, s{sRB}")
    A(f"s_cselect_b32 s{sCSit}, 0, 99")
    A(f"s_cmp_eq_u32 s{sMW}, 0")
    A(f"s_cselect_b32 s{sCSit}, s{sCSit}, 99")
    A(f"s_mov_b32 s{sTmp}, 0xe")
    A(f"s_cmp_eq_u32 s{sWave}, 0")
    A(f"s_cselect_b32 s{sSpec}, s{sTmp}, 0")
    A(f"s_cmp_eq_u32 s{sWave}, 3")
    A(f"s_cselect_b32 s{sTmp}, 0xc0, 0")
    A(f"s_or_b32 s{sSpec}, s{sSpec}, s{sTmp}")
    A(f"s_or_b32 s{sSpec}, s{sSpec}, 0x300")
    A(f"s_mov_b32 s{sIt}, 0")
    A(f"s_mov_b32 s{sSpin}, 0")
    p2_ids(A, vec=False)
    ffn_setup(A)
    A(f"s_cmp_lt_u32 s{sWave}, 4")
    A(f"s_cselect_b32 s{sWo}, {OOB}, s{sWo}")

    def reads(P, kap):
        pre = [f"v_add_u32 v{vWa+a}, s{sRslot}, v{vWb+a}" for a in range(NT)]
        post = [f"s_add_u32 s{sRslot}, s{sRslot}, {W_SLOT}\n"
                f"s_cmp_eq_u32 s{sRslot}, {W_LDS+5*W_SLOT}\n"
                f"s_cselect_b32 s{sRslot}, {W_LDS}, s{sRslot}"]
        rx = lambda mt, kk: [f"ds_read_b128 {vr(XB(P, mt, kk))}, v{vXa+2*kap+kk} offset:{mt*4096}"]
        rw = lambda a, kk: [f"ds_read_b64_tr_b16 {vr(WBf(P, a, kk)+2*rho, 2)}, v{vWa+a} offset:{kk*(12288 if S16 else 2048)+rho*512}" for rho in range(2)]
        if S16:
            out = rw(0, 0) + rw(1, 0) + rw(2, 0) + rw(0, 1) + rw(1, 1) + rx(0, 0) + rx(1, 0) + rx(0, 1) + rx(1, 1) + rw(2, 1)
        else:
            out = []
            for kk in range(2):
                for a in range(NT):
                    out += rw(a, kk)
                for mt in range(MT):
                    out += rx(mt, kk)
        if OPT["NORD"]:
            out = []
        return pre, out, post

    def mfmas(P):
        out = []
        if S16:
            for kw in range(2):
                for a in range(3):
                    for t in (0, 2, 1, 3):
                        d = vr(acc16(t, a, kw))
                        out.append(f"v_mfma_f32_16x16x32_bf16 {d}, {vr(WBf(P, a, kw))}, {vr(XB(P, t // 2, t % 2))}, {d}")
            return out
        for kk in range(2):
            for a in range(NT):
                for mt in range(MT):
                    x, w, d = vr(XB(P, mt, kk)), vr(WBf(P, a, kk)), vr(acc(mt, a), 16)
                    if OPT["FAKE16"]:
                        for h in range(2):
                            dq = vr(acc(mt, a) + 8 * kk + 4 * h)
                            x2 = vr(XB(P, mt, h))
                            out.append(f"v_mfma_f32_16x16x32_bf16 {dq}, {w}, {x2}, {dq}")
                    elif typ == "K":
                        out.append(f"v_mfma_f32_32x32x16_bf16 {d}, {x}, {w}, {d}")
                    else:
                        out.append(f"v_mfma_f32_32x32x16_bf16 {d}, {w}, {x}, {d}")
        return out

    def cs_mfmas(P):
        if S16:
            return [f"v_mfma_f32_16x16x32_bf16 {vr(vCSA+4*(2*a+kk))}, {vr(WBf(P, a, kk))}, {vr(sel)}, {vr(vCSA+4*(2*a+kk))}"
                    for kk in range(2) for a in range(3)]
        return [f"v_mfma_f32_16x16x32_bf16 {vr(vCSA+4*a)}, {vr(WBf(P, a, kk))}, {vr(vSel)}, {vr(vCSA+4*a)}"
                for kk in range(2) for a in range(NT)]

    if OPT["STAMP"] == 3:
        stamp(A, 5, 0, wave=OPT["SW"])
    n = len(mfmas(0))
    f = lambda k: k / n
    nod = OPT["NODMA"]

    def loop(R):
        LL = lambda s: f"L_{typ}{R}_{s}"
        lstamp(A, 17)
        if R == "B":
            for g in dmaW():
                A(g)
        A(f"s_waitcnt vmcnt({NW_ + (4 if R == 'B' else 0)})")
        k1_stats(A, typ)
        lstamp(A, 18)
        A(f"s_waitcnt vmcnt({1 if R == 'A' else NW_ + 1})")
        lstamp(A, 19)
        A("s_barrier")
        pre, rd, post = reads(0, 0)
        for g in pre + rd + post:
            A(g)
        if R == "A":
            A("s_setprio 1")
            stamp(A, 1, 0)
            stamp(A, 14, 0, clk=True)
        else:
            for g in dmaX():
                A(g)
        A("s_waitcnt lgkmcnt(0)")
        lstamp(A, 20)
        for g in mfmas(0):
            A(g)
        if R == "A":
            A(f"s_cmp_lg_u32 s{sCSit}, 0")
            A(f"s_cbranch_scc1 {LL('pc0')}")
            for g in cs_mfmas(0):
                A(g)
            A.label(LL("pc0"))
            for g in dmaW():
                A(g)
            A(f"s_sub_u32 s{sUw}, s{sWave}, 1")
            A(f"s_cmp_gt_u32 s{sUw}, 1")
            A(f"s_cbranch_scc1 {LL('nou')}")
            A(f"s_lshl_b32 s{sU}, s{sCG}, 4")
            A(f"s_add_u32 s{sU}, s{sU}, s{sRB}")
            A(f"s_lshl_b32 s{sU}, s{sU}, 1")
            A(f"s_add_u32 s{sU}, s{sU}, s{sUw}")
            A(f"s_lshl_b32 s{sUl}, s{sUw}, 12")
            A(f"s_add_u32 s{sUl}, s{sUl}, {MISC_LDS}")
            w2_unit_dma(A, f"s{sUl}")
            A.label(LL("nou"))
        else:
            A("s_waitcnt vmcnt(5)")
        lstamp(A, 21)
        A("s_barrier")
        pre, rd, post = reads(1, 1)
        for g in pre + rd + post:
            A(g)
        if R == "B":
            for g in dmaW():
                A(g)
        A("s_waitcnt lgkmcnt(0)")
        lstamp(A, 22)
        for g in mfmas(1):
            A(g)
        if R == "A":
            for g in dmaW():
                A(g)
            A(f"s_cmp_eq_u32 s{sCSit}, 0")
            A(f"s_cbranch_scc1 {LL('cs1')}")
            A(f"s_waitcnt vmcnt({NW_})")
            A.label(LL("pc1"))
            A(f"s_cmp_gt_u32 s{sUw}, 1")
            A(f"s_cbranch_scc1 {LL('pc2')}")
            w2_unit_out(A, f"s{sUl}", (lambda t: (96, 100, 144, 148)[t]) if G else (lambda t: 232 + 4 * t) if typ == 'Q' else (lambda t: vBUF + 4 * t))
            A.label(LL("pc2"))
        else:
            A("s_waitcnt vmcnt(0)")
        lstamp(A, 23)
        A("s_barrier")
        if R == "B":
            for g in dmaX() + dmaW():
                A(g)
        for i in range(4):
            A(f"v_xor_b32 v{vXa+i}, 16384, v{vXa+i}")
        pre, rd, post = reads(0, 0)
        for g in pre + rd + post:
            A(g)
        A(f"s_mov_b32 s{sIt}, 1")
        if R == "A" and OPT["NXA"]:
            for _ in range(3):
                A(dmaX()[4])
        A("s_waitcnt lgkmcnt(0)")
        lstamp(A, 0)
        A(".p2align 6")
        A.label(LL("loop"))
        pre, rd, post = reads(1, 1)
        for g in interleave(mfmas(0), (pre, 0.0, f(1)), (rd, f(1), 0.7), (post, 0.75, 0.85)):
            A(g)
        if R == "A":
            A(f"s_bitcmp1_b32 s{sSpec}, s{sIt}")
            A(f"s_cbranch_scc1 {LL('spec')}")
            A.label(LL("specr"))
            for g in dmaW():
                A(g)
            A(f"s_waitcnt vmcnt({NW_}) lgkmcnt(0)")
            A.label(LL("bar"))
        else:
            A("s_waitcnt vmcnt(0) lgkmcnt(0)")
        A("s_barrier")
        if OPT["DLY"] == 1 and G:
            A("s_sleep 3")
        pre, rd, post = reads(0, 0)
        pre = [f"v_xor_b32 v{vXa+i}, 16384, v{vXa+i}" for i in range(2)] + pre
        post = post + [f"v_xor_b32 v{vXa+i}, 16384, v{vXa+i}" for i in range(2, 4)]
        tail = [f"s_add_u32 s{sIt}, s{sIt}, 1\ns_cmp_lt_u32 s{sIt}, 10"]
        nxa = OPT["NXA"]
        if R == "B":
            dw = dmaW()
            nb = OPT["NBUP"]
            A(f"s_cmp_ge_u32 s{sIt}, 8")
            A(f"s_cbranch_scc1 {LL('nod')}")
            for g in dmaX()[nxa:] + dw[:nb]:
                A(g)
            for g in interleave(mfmas(1), (pre, 0.0, f(1)), (dw[nb:], 0.0, 0.4), (rd, f(1), 0.7), (post, 0.7, 0.8), (tail, f(n-2), f(n-1))):
                A(g)
            A.label(LL("end"))
        else:
            chk1 = tail
            xa = []
            if nxa:
                dx = dmaX()
                xa = [f"s_cmp_ge_u32 s{sIt}, 8\ns_cbranch_scc1 {LL('nox')}\n" + "\n".join(dx[:nxa] + dx[4:]) + f"\n{LL('nox')}:"]
            for g in interleave(mfmas(1), (pre, 0.0, f(1)), (xa, f(OPT["XPOS"]), f(OPT["XPOS"]+1)), (rd, f(1), 0.7), (post, 0.7, 0.8), (chk1, f(n-2), f(n-1))):
                A(g)
        if OPT["STAMP"] == 4:
            A("s_memrealtime s[96:97]")
            A(f"s_mov_b32 m0, s{sIt}")
        A("s_waitcnt lgkmcnt(0)")
        if OPT["STAMP"] == 4:
            A("v_writelane_b32 v28, s96, m0")
        A(f"s_cbranch_scc1 {LL('loop')}")
        A(f"s_branch {L('epi')}")

        if R == "B":
            A.label(LL("nod"))
            if typ not in OPT_WOEPI:
                A(f"s_cmp_eq_u32 s{sIt}, 9")
                A(f"s_cbranch_scc1 {LL('nod9')}")
                wo_early(A, 24, 7)
                A(f"s_branch {LL('nod2')}")
                A.label(LL("nod9"))
                wo_early(A, 72, 7)
                A.label(LL("nod2"))
            for g in interleave(mfmas(1), (pre, 0.0, f(1)), (rd, f(1), 0.7), (post, 0.7, 0.8), (tail, f(n-2), f(n-1))):
                A(g)
            A(f"s_branch {LL('end')}")
            return
        A.label(LL("cs1"))
        for g in cs_mfmas(1):
            A(g)
        A(f"v_and_b32 v{vT0}, 15, v{vLane}")
        A(f"v_lshrrev_b32 v{vT1}, 4, v{vLane}")
        A(f"v_lshlrev_b32 v{vT1}, 4, v{vT1}")
        A(f"v_lshl_add_u32 v{vT1}, v{vT0}, 6, v{vT1}")
        A(f"v_cmp_gt_u32 vcc, {1 if S16 else 2}, v{vT0}")
        A(f"v_mov_b32 v{vT2}, {OOB}")
        A(f"v_cndmask_b32 v{vT1}, v{vT2}, v{vT1}, vcc")
        A(f"s_mul_i32 s{sTmp}, s{sCG}, 10")
        A(f"s_add_u32 s{sTmp}, s{sTmp}, s{sC0}")
        A(f"s_mul_i32 s{sTmp}, s{sTmp}, 1536")
        A(f"s_mul_i32 s{sTmp2}, s{sNW}, {NT*128}")
        A(f"s_add_u32 s{sTmp}, s{sTmp}, s{sTmp2}")
        A(f"s_add_u32 s{sTmp}, s{sTmp}, {WS_CS}")
        for a in range(NCS):
            A(f"buffer_store_dwordx4 {vr(vCSA+4*a)}, v{vT1}, {srd(S_WS)}, s{sTmp} offen offset:{a*(64 if S16 else 128)} sc1")
        A(f"s_waitcnt vmcnt({NW_+NCS})")
        A(f"s_branch {LL('pc1')}")

        def with_dma(nops, body):
            for g in dmaW():
                A(g)
            body()
            A(f"s_waitcnt vmcnt({NW_+nops}) lgkmcnt(0)")
            A(f"s_branch {LL('bar')}")
        A.label(LL("spec"))
        A(f"s_cmp_eq_u32 s{sIt}, 9")
        A(f"s_cbranch_scc1 {LL('sum')}")
        A(f"s_cmp_eq_u32 s{sIt}, 8")
        A(f"s_cbranch_scc1 {LL('go')}")
        A(f"s_cmp_eq_u32 s{sIt}, 7")
        A(f"s_cbranch_scc1 {LL('chk')}")
        A(f"s_cmp_eq_u32 s{sIt}, 6")
        A(f"s_cbranch_scc1 {LL('poll0')}")
        A.label(LL("pub"))

        A(f"s_cmp_lg_u32 s{sIt}, 2")
        A(f"s_cbranch_scc1 {LL('pub1')}")
        wait_zeroed(A, LL("wz"), True)
        A.label(LL("pub1"))

        def pub():
            A(f"s_cmp_eq_u32 s{sIt}, 3")
            A(f"s_cbranch_scc1 {LL('pub3')}")
            A(f"s_cmp_eq_u32 s{sIt}, 2")
            A(f"s_cbranch_scc1 {LL('pub2')}")
            A(f"buffer_load_dword v{vPoll}, off, {srd(S_DBG)}, 0 sc1")
            A(f"s_branch {LL('pub3')}")
            A.label(LL("pub2"))
            k1_publish(A)
            A.label(LL("pub3"))
        with_dma(1, pub)
        A.label(LL("poll0"))
        with_dma(1, lambda: A(f"buffer_load_dword v{vPoll}, v{vPa}, {srd(S_WS)}, 0 offen sc1"))
        A.label(LL("poll"))
        A("s_sleep 8")
        A(f"buffer_load_dword v{vPoll}, v{vPa}, {srd(S_WS)}, 0 offen sc1")
        A.label(LL("chk"))
        A("s_waitcnt vmcnt(0)")
        poll_cmp(A)
        A(f"s_add_u32 s{sSpin}, s{sSpin}, 1")
        A(f"s_cmp_gt_u32 s{sSpin}, {SPIN_MAX}")
        A(f"s_cbranch_scc1 {LL('specr')}")
        A(f"s_cmp_lg_u64 vcc, 0")
        A(f"s_cbranch_scc1 {LL('poll')}")
        A(f"s_branch {LL('specr')}")
        A.label(LL("go"))

        def go():
            A(f"v_lshlrev_b32 v{vT0}, 3, v0")
            A(f"v_cmp_gt_u32 vcc, {NT*(4 if G else 2)*16}, v0")
            A(f"v_mov_b32 v{vT2}, {OOB}")
            A(f"v_cndmask_b32 v{vT0}, v{vT2}, v{vT0}, vcc")
            A(f"s_mul_i32 s{sTmp}, s{sCG}, 15360")
            A(f"s_add_u32 s{sTmp}, s{sTmp}, {WS_CS}")
            for ch in range(10):
                if ch % 2 == 0 and ch:
                    A(f"s_add_u32 s{sTmp}, s{sTmp}, 3072")
                A(f"buffer_load_dwordx2 {vr(vCSP+2*ch, 2)}, v{vT0}, {srd(S_WS)}, s{sTmp} offen offset:{(ch%2)*1536} sc1")
            A(f"s_lshl_b32 s{sTmp}, s{sRB}, 10")
            A(f"s_add_u32 s{sTmp}, s{sTmp}, {WS_ST}")
            A(f"v_lshlrev_b32 v{vT1}, 2, v0")
            A(f"buffer_load_dword v{vSt}, v{vT1}, {srd(S_WS)}, s{sTmp} offen sc1")
        go()
        if typ not in OPT_WOEPI:
            wo_early(A, 0, 6)
        A(f"s_waitcnt vmcnt({11 if typ in OPT_WOEPI else 17}) lgkmcnt(0)")
        A(f"s_branch {LL('bar')}")
        A.label(LL("sum"))
        A(f"s_waitcnt vmcnt({0 if typ in OPT_WOEPI else 6})")
        for ch in range(1, 10):
            A(f"v_add_f32 v{vCSP}, v{vCSP}, v{vCSP+2*ch}")
            A(f"v_add_f32 v{vCSP+1}, v{vCSP+1}, v{vCSP+2*ch+1}")
        A(f"v_lshlrev_b32 v{vT0}, 3, v0")
        A(f"v_add_u32 v{vT0}, {KV_CS if typ == 'K' else MISC_LDS}, v{vT0}")
        A(f"ds_write_b64 v{vT0}, {vr(vCSP, 2)}")
        if typ == "K":
            A(f"v_rsq_f32 v{vT2}, v{vSt}")
            A(f"v_and_b32 v{vT1}, 1, v0")
            A(f"v_cmp_eq_u32 vcc, 1, v{vT1}")
            A(f"v_lshlrev_b32 v{vT1}, 9, v{vT1}")
            A(f"v_lshrrev_b32 v{vT0}, 1, v0")
            A(f"v_lshl_add_u32 v{vT1}, v{vT0}, 2, v{vT1}")
            A(f"v_add_u32 v{vT1}, {KV_ST}, v{vT1}")
            A(f"v_cndmask_b32 v{vT0}, v{vSt}, v{vT2}, vcc")
            A(f"ds_write_b32 v{vT1}, v{vT0}")
            A(f"v_mul_f32 v{vT2}, {f32(LOG2E)}, v{vT2}")
            A(f"ds_write_b32 v{vT1}, v{vT2} offset:1024")
        else:
            A(f"v_lshlrev_b32 v{vT1}, 2, v0")
            A(f"v_add_u32 v{vT1}, {MISC_LDS+2048}, v{vT1}")
            A(f"ds_write_b32 v{vT1}, v{vSt}")
        if typ not in OPT_WOEPI:
            wo_early(A, 52, 5)
        A("s_waitcnt lgkmcnt(0)")
        A(f"s_branch {LL('bar')}")

    A(f"s_cmp_ge_u32 s{sWave}, 4")
    A(f"s_cbranch_scc1 {L('roleB')}")
    loop("A")
    A.label(L("roleB"))
    loop("B")

    A.label(L("epi"))
    if (OPT["DLY"] == 2 and typ == "G") or (OPT["DLY"] == 3 and typ == "K"):
        A("s_sleep 30")
    A("s_setprio 0")
    cstamp(A, 0)
    stamp(A, 2, 0)
    stamp(A, 4, 0, wave=4, vt=50)
    stamp(A, 7, 0, wave=4, vt=50, clk=True)
    stamp(A, 15, 0, clk=True)
    if OPT["STAMP"] == 4:
        A(f"v_lshlrev_b32 v29, 2, v0")
        A(f"s_lshl_b32 s98, s2, 11")
        A(f"s_add_u32 s98, s98, {WS_STAMP + 0x10000}")
        A(f"buffer_store_dword v28, v29, {srd(S_WS)}, s98 offen")
    A(f"v_lshlrev_b32 v{vL16}, 4, v{vLane}")
    if True:
        epi = {"G": k1_epi_g16 if S16 else k1_epi_g, "Q": k1_epi_q, "K": k1_epi_kv}[typ]
        body = []
        epi(body.append, acc)
        npre = min(OPT["NPRE"], {"G": 6, "Q": 4, "K": 2}[typ])
        early = [g for j in range(min(4, npre)) for g in ldW_groups(j)]
        late = [g for j in range(4, npre) for g in ldW_groups(j)]
        wod = []
        if typ in OPT_WOEPI:
            A(f"s_mul_i32 s12, s{sWave}, 13")
            A("s_min_u32 s12, s12, 87")
            A("s_lshl_b32 s12, s12, 10")
            A(f"s_mul_i32 s13, s{sC}, {74*5120}")
            A("s_add_u32 s13, s13, s12")
            A(f"s_add_u32 s13, s13, {WS_W2 + 54*5120}")
            A(f"s_add_u32 s12, s12, {WO_LDS}")
            wod = [f"s_add_u32 m0, s12, {i*1024}\ns_add_u32 s14, s13, {i*1024}\n"
                   f"buffer_load_dwordx4 v{vL16}, {srd(S_WS)}, s14 offen sc1 lds" for i in range(13)]
        for g in interleave(body, (wod, 0.02, 0.6), (early, 0.02, 0.5 if npre > 4 else 0.7), (late, 0.5, 0.8)):
            A(g)
        A(f"s_mov_b32 s{sWoDone}, {npre + 1}")
    cstamp(A, 7)
    if OPT["STAMP"] == 7:
        A(f"v_lshlrev_b32 v49, 2, v0")
        A(f"s_lshl_b32 s98, s2, 11")
        A(f"s_add_u32 s98, s98, {WS_STAMP + 0x10000}")
        A(f"buffer_store_dword v48, v49, {srd(S_WS)}, s98 offen")
    stamp(A, 3, 0)
    stamp(A, 5, 0, wave=4, vt=50)
    stamp(A, 8, 0, wave=4, vt=50, clk=True)
    A(f"v_mov_b32 v{vSigA}, {OOB}")
    if typ == "K":
        A(f"s_sub_u32 s{sTmp}, s{sCG}, 9")
        A(f"s_lshl_b32 s{sTmp}, s{sTmp}, 11")
        A(f"s_add_u32 s{sTmp}, s{sTmp}, {WS_FL + FL_KV}")
        A(f"v_lshl_add_u32 v{vT0}, v{vLane}, 8, s{sTmp}")
        A(f"v_cmp_gt_u32 vcc, 8, v{vLane}")
        A(f"v_cndmask_b32 v{vSigA}, v{vSigA}, v{vT0}, vcc")
        A(f"v_mov_b32 v{vSigV}, 1")
    else:
        A(f"s_lshl_b32 s{sTmp}, s{sRB}, 8")
        A(f"s_add_u32 s{sTmp}, s{sTmp}, {WS_FL + FL_HC}")
        A(f"v_writelane_b32 v{vSigA}, s{sTmp}, 0")
        A(f"s_lshl_b32 s{sTmp}, 1, s{sCG}")
        A(f"v_mov_b32 v{vSigV}, s{sTmp}")
    A("s_branch L_p2")


def k1_stats_issue(A):
    b = vBUF
    A(f"s_lshl_b32 s{sRow}, s{sRB}, 7")
    A(f"s_lshl_b32 s{sTmp2}, s{sCG}, 3")
    A(f"s_add_u32 s{sRow}, s{sRow}, s{sTmp2}")
    A(f"s_add_u32 s{sRow}, s{sRow}, s{sWave}")
    A(f"s_mul_i32 s{sTmp2}, s{sRow}, 1280")
    A(f"v_lshlrev_b32 v{vT0}, 3, v{vLane}")
    A(f"v_lshlrev_b32 v{vT1}, 2, v{vLane}")
    A(f"buffer_load_dwordx2 {vr(b, 2)}, v{vT0}, {srd(S_X)}, s{sTmp2} offen")
    A(f"buffer_load_dwordx2 {vr(b+2, 2)}, v{vT0}, {srd(S_X)}, s{sTmp2} offen offset:512")
    A(f"buffer_load_dword v{b+4}, v{vT1}, {srd(S_X)}, s{sTmp2} offen offset:1024")


def k1_stats(A, typ):
    b = vBUF
    if typ == "A":
        A("s_waitcnt vmcnt(0)")
    for i in range(5):
        A(f"v_lshlrev_b32 v{b+8+2*i}, 16, v{b+i}")
        A(f"v_and_b32 v{b+9+2*i}, 0xffff0000, v{b+i}")
    s = b + 20
    A(f"v_add_f32 v{s}, v{b+8}, v{b+9}")
    for i in range(2, 10):
        A(f"v_add_f32 v{s}, v{s}, v{b+8+i}")
    wave_allreduce_add(A, s, s + 1, 4)
    A(f"v_mul_f32 v{s}, {f32(1.0/640)}, v{s}")
    for i in range(10):
        A(f"v_sub_f32 v{b+8+i}, v{b+8+i}, v{s}")
    A(f"v_mul_f32 v{s+1}, v{b+8}, v{b+8}")
    for i in range(1, 10):
        A(f"v_fmac_f32 v{s+1}, v{b+8+i}, v{b+8+i}")
    wave_allreduce_add(A, s + 1, s + 2, 4)
    A(f"v_mov_b32 v{s+2}, {f32(1e-5)}")
    A(f"v_fmac_f32 v{s+2}, {f32(1.0/640)}, v{s+1}")
    A(f"v_mov_b32 v{s+1}, v{s+2}")
    A(f"v_cmp_eq_u32 vcc, 0, v{vLane}")
    A(f"v_mov_b32 v{vT2}, {OOB}")
    A(f"v_cndmask_b32 v{vT0}, v{vT2}, v{vLane}, vcc")
    A(f"s_lshl_b32 s{sTmp}, s{sRow}, 3")
    A(f"s_add_u32 s{sTmp}, s{sTmp}, {WS_ST}")
    A(f"buffer_store_dwordx2 {vr(s, 2)}, v{vT0}, {srd(S_WS)}, s{sTmp} offen sc1")


def k1_publish(A):
    A(f"s_lshl_b32 s{sTmp}, s{sRB}, 8")
    A(f"s_add_u32 s{sTmp}, s{sTmp}, {WS_FL + FL_ROW}")
    A(f"v_mov_b32 v{vT0}, {OOB}")
    A(f"v_writelane_b32 v{vT0}, s{sTmp}, 0")
    A(f"v_mov_b32 v{vT1}, 1")
    A(f"buffer_atomic_add v{vT1}, v{vT0}, {srd(S_WS)}, 0 offen sc1")


def poll_addr(A):
    A(f"v_and_b32 v{vPa}, 15, v{vLane}")
    A(f"v_lshlrev_b32 v{vPa}, 8, v{vPa}")
    A(f"v_add_u32 v{vPa}, {WS_FL + FL_ROW}, v{vPa}")


def poll_cmp(A):
    A(f"v_cmp_gt_u32 vcc, 16, v{vPoll}")


def wait_zeroed(A, lab, first_issued):
    if first_issued:
        A(f"s_branch {lab}_c")
    A.label(lab)
    A("s_sleep 4")
    A(f"buffer_load_dword v{vPoll}, off, {srd(S_DBG)}, 0 sc1")
    A.label(lab + "_c")
    A("s_waitcnt vmcnt(0)")
    A(f"v_readfirstlane_b32 s{sTmp}, v{vPoll}")
    A(f"s_add_u32 s{sSpin}, s{sSpin}, 1")
    A(f"s_cmp_gt_u32 s{sSpin}, {SPIN_MAX}")
    A(f"s_cbranch_scc1 {lab}_ok")
    A(f"s_cmp_lt_u32 s{sTmp}, 16")
    A(f"s_cbranch_scc1 {lab}")
    A.label(lab + "_ok")


S_R = 88
sU, sUks, sUL = 92, 93, 94


def w2_unit_decode(A):
    A(f"s_mul_i32 s{sUks}, s{sU}, 205")
    A(f"s_lshr_b32 s{sUks}, s{sUks}, 11")
    A(f"s_mul_i32 s{sUL}, s{sUks}, 10")
    A(f"s_sub_u32 s{sUL}, s{sU}, s{sUL}")


def w2_unit_dma(A, lds):
    w2_unit_decode(A)
    A(f"s_cmp_lt_u32 s{sUks}, 54")
    A(f"s_cselect_b32 s{S_R}, s{P_D}, s{P_WO}")
    A(f"s_cselect_b32 s{S_R+1}, s{P_D+1}, s{P_WO+1}")
    A(f"s_mov_b32 s{S_R+2}, {640*1280}")
    A(f"s_cselect_b32 s{S_R+2}, {1728*1280}, s{S_R+2}")
    A(f"s_cselect_b32 s{sTmp}, 0, 54")
    A(f"s_and_b32 s{S_R+1}, s{S_R+1}, 0xffff")
    A(f"s_mov_b32 s{S_R+3}, 0x20000")
    A(f"s_sub_u32 s{sTmp}, s{sUks}, s{sTmp}")
    A(f"s_mul_i32 s{sTmp}, s{sTmp}, {32*1280}")
    A(f"s_lshl_b32 s{sTmp2}, s{sUL}, 7")
    A(f"s_add_u32 s{sTmp}, s{sTmp}, s{sTmp2}")
    A(f"v_lshrrev_b32 v{vT0}, 3, v{vLane}")
    A(f"v_mul_u32_u24 v{vT0}, 1280, v{vT0}")
    A(f"v_and_b32 v{vT1}, 7, v{vLane}")
    A(f"v_lshl_add_u32 v{vT0}, v{vT1}, 4, v{vT0}")
    for i in range(4):
        A(f"s_add_u32 m0, {lds}, {i*1024}")
        A("s_nop 0")
        A(f"buffer_load_dwordx4 v{vT0}, {srd(S_R)}, s{sTmp} offen lds")
        A(f"s_add_u32 s{sTmp}, s{sTmp}, {8*1280}")


def w2_unit_out(A, lds, F):
    w2_unit_decode(A)
    A(f"v_bfe_u32 v{vT0}, v{vLane}, 2, 2")
    A(f"v_lshlrev_b32 v{vT0}, 7, v{vT0}")
    A(f"v_and_b32 v{vT1}, 3, v{vLane}")
    A(f"v_lshl_add_u32 v{vT0}, v{vT1}, 3, v{vT0}")
    A(f"v_lshrrev_b32 v{vT1}, 4, v{vLane}")
    A(f"s_cmp_lt_u32 s{sUks}, 54")
    A(f"s_cselect_b32 s{sTmp}, 10, 9")
    A(f"s_movk_i32 s{sTmp2}, 512")
    A(f"s_cselect_b32 s{sTmp2}, s{sTmp2}, 2048")
    A(f"v_lshlrev_b32 v{vT1}, s{sTmp}, v{vT1}")
    A(f"v_add3_u32 v{vT0}, v{vT0}, v{vT1}, {lds}")
    A(f"v_add_u32 v{vT1}, s{sTmp2}, v{vT0}")
    for tau in range(4):
        A(f"ds_read_b64_tr_b16 {vr(F(tau), 2)}, v{vT0} offset:{tau*32}")
        A(f"ds_read_b64_tr_b16 {vr(F(tau)+2, 2)}, v{vT1} offset:{tau*32}")
    A(f"v_lshlrev_b32 v{vT2}, 4, v{vLane}")
    A("s_waitcnt lgkmcnt(0)")
    for tau in range(4):
        A(f"s_lshl_b32 s{sTmp}, s{sUL}, 2")
        A(f"s_add_u32 s{sTmp}, s{sTmp}, {tau}")
        A(f"s_mul_i32 s{sTmp2}, s{sTmp}, 205")
        A(f"s_lshr_b32 s{sTmp2}, s{sTmp2}, 10")
        A(f"s_mul_i32 s{sTmp3}, s{sTmp2}, {74*5-5}")
        A(f"s_add_u32 s{sTmp}, s{sTmp}, s{sTmp3}")
        A(f"s_mul_i32 s{sTmp3}, s{sUks}, 5")
        A(f"s_add_u32 s{sTmp}, s{sTmp}, s{sTmp3}")
        A(f"s_lshl_b32 s{sTmp}, s{sTmp}, 10")
        A(f"s_add_u32 s{sTmp}, s{sTmp}, {WS_W2}")
        A(f"s_cmp_lt_u32 s{sU}, 740")
        A(f"s_cselect_b32 s{sTmp}, s{sTmp}, {OOB}")
        A(f"buffer_store_dwordx4 {vr(F(tau))}, v{vT2}, {srd(S_WS)}, s{sTmp} offen sc1")


def k1_epi_g(A, acc):
    c = vBUF + 56
    cs = vBUF + 8
    t = vBUF + 40
    o = vBUF + 48
    A(f"v_lshrrev_b32 v{vT0}, 5, v{vLane}")
    A(f"v_lshlrev_b32 v{vT0}, 4, v{vT0}")
    A(f"s_mul_i32 s{sTmp}, s{sNW}, 384")
    A(f"s_add_u32 s{sTmp}, s{sTmp}, {MISC_LDS}")
    A(f"v_add_u32 v{vT0}, s{sTmp}, v{vT0}")
    A(f"v_and_b32 v{vT1}, 31, v{vLane}")
    A(f"s_lshl_b32 s{sTmp}, s{sMW}, 9")
    A(f"s_add_u32 s{sTmp}, s{sTmp}, {MISC_LDS+2048}")
    A(f"v_lshl_add_u32 v{vT1}, v{vT1}, 3, s{sTmp}")
    for mt in range(2):
        A(f"ds_read_b64 {vr(c+8*mt, 2)}, v{vT1} offset:{mt*256}")
    for q in range(4):
        A(f"ds_read_b128 {vr(cs+4*q)}, v{vT0} offset:{q*32}")
    A("s_waitcnt lgkmcnt(4)")
    for mt in range(2):
        mu, v, k1, k3 = c + 8 * mt, c + 8 * mt + 2, c + 8 * mt + 4, c + 8 * mt + 6
        A(f"v_mov_b32 v{v}, v{mu+1}")
        A(f"v_rsq_f32 v{t}, v{v}")
        A(f"v_mul_f32 v{k1}, {f32(GC1)}, v{t}")
        A(f"v_mul_f32 v{t+1}, v{t}, v{t}")
        A(f"v_mul_f32 v{t+1}, v{t+1}, v{t}")
        A(f"v_mul_f32 v{k3}, {f32(GC2)}, v{t+1}")
    A(f"v_bfe_u32 v{vT1}, v{vLane}, 4, 1")
    A(f"v_lshlrev_b32 v{vT1}, 10, v{vT1}")
    A(f"v_lshrrev_b32 v{vT2}, 5, v{vLane}")
    A(f"v_lshl_add_u32 v{vT1}, v{vT2}, 8, v{vT1}")
    A(f"v_and_b32 v{vT2}, 15, v{vLane}")
    A(f"v_lshl_add_u32 v{vT1}, v{vT2}, 4, v{vT1}")
    n = 0
    for a in range(3):
        csa = cs + 16 * (a % 2)
        if a < 2:
            for q in range(4):
                A(f"ds_read_b128 {vr(cs+16*((a+1)%2)+4*q)}, v{vT0} offset:{(a+1)*128+q*32}")
            A("s_waitcnt lgkmcnt(4)")
        else:
            A("s_waitcnt lgkmcnt(0)")
        A(f"s_mul_i32 s{sTmp}, s{sCG}, 12")
        A(f"s_mul_i32 s{sTmp2}, s{sNW}, 3")
        A(f"s_add_u32 s{sTmp}, s{sTmp}, s{sTmp2}")
        A(f"s_add_u32 s{sTmp}, s{sTmp}, {a}")
        A(f"s_lshl_b32 s{sTmp2}, s{sRB}, 1")
        A(f"s_add_u32 s{sTmp2}, s{sTmp2}, s{sMW}")
        A(f"s_mul_i32 s{sTmp2}, s{sTmp2}, 54")
        A(f"s_lshr_b32 s{sTmp3}, s{sTmp}, 1")
        A(f"s_add_u32 s{sTmp2}, s{sTmp2}, s{sTmp3}")
        A(f"s_lshl_b32 s{sTmp2}, s{sTmp2}, 12")
        A(f"s_and_b32 s{sTmp}, s{sTmp}, 1")
        A(f"s_lshl_b32 s{sTmp}, s{sTmp}, 9")
        A(f"s_add_u32 s{sTmp}, s{sTmp}, s{sTmp2}")
        C = lambda mt, k: c + 8 * mt + 2 * k
        MP = [(mt, i) for mt in range(2) for i in range(0, 8, 2)]
        D = lambda mt: acc(mt, a)
        Tm = lambda mt: t + 8 * mt
        for mt, i in MP:
            pk_fma(A, D(mt) + i, ("b", C(mt, 0)), ("p", csa + i), ("p", D(mt) + i), neg_a=True)
        for mt, i in MP:
            pk_mul(A, Tm(mt) + i, ("p", D(mt) + i), ("p", D(mt) + i))
        for mt, i in MP:
            pk_fma(A, Tm(mt) + i, ("p", Tm(mt) + i), ("b", C(mt, 3)), ("b", C(mt, 2)))
        for mt, i in MP:
            pk_mul(A, Tm(mt) + i, ("p", Tm(mt) + i), ("p", D(mt) + i))
        for mt, i in MP:
            A(f"v_exp_f32 v{Tm(mt)+i}, v{Tm(mt)+i}")
            A(f"v_exp_f32 v{Tm(mt)+i+1}, v{Tm(mt)+i+1}")
            pk_fma(A, D(mt) + 8 + i, ("b", C(mt, 0)), ("p", csa + 8 + i), ("p", D(mt) + 8 + i), neg_a=True)
        for mt, i in MP:
            pk_fma(A, Tm(mt) + i, ("p", Tm(mt) + i), ("b", C(mt, 1)), ("b", C(mt, 1)))
        for mt, i in MP:
            A(f"v_rcp_f32 v{Tm(mt)+i}, v{Tm(mt)+i}")
            A(f"v_rcp_f32 v{Tm(mt)+i+1}, v{Tm(mt)+i+1}")
            pk_mul(A, D(mt) + i, ("p", D(mt) + i), ("p", D(mt) + 8 + i))
        for mt, i in MP:
            pk_mul(A, D(mt) + i, ("p", D(mt) + i), ("p", Tm(mt) + i))
        for mt in range(2):
            ob = D(mt) + 8
            for i in range(4):
                A(f"v_cvt_pk_bf16_f32 v{ob+i}, v{D(mt)+2*i}, v{D(mt)+2*i+1}")
            A(f"buffer_store_dwordx4 {vr(ob)}, v{vT1}, {srd(S_WS)}, s{sTmp} offen offset:{mt*2048} sc1")


acc16 = lambda t, a, kw: vACC + 32 * a + 16 * kw + 4 * t


def k1_epi_g16(A, acc):
    c = vBUF
    csq = lambda p: (vBUF + 32 + 4 * p) if p < 4 else (48 + 4 * (p - 4))
    t = vBUF + 48
    A(f"v_lshrrev_b32 v{vT0}, 4, v{vLane}")
    A(f"v_lshlrev_b32 v{vT0}, 4, v{vT0}")
    A(f"s_mul_i32 s{sTmp}, s{sNW}, 384")
    A(f"s_add_u32 s{sTmp}, s{sTmp}, {MISC_LDS}")
    A(f"v_add_u32 v{vT0}, s{sTmp}, v{vT0}")
    A(f"v_and_b32 v{vT1}, 15, v{vLane}")
    A(f"s_lshl_b32 s{sTmp}, s{sMW}, 9")
    A(f"s_add_u32 s{sTmp}, s{sTmp}, {MISC_LDS+2048}")
    A(f"v_lshl_add_u32 v{vT1}, v{vT1}, 3, s{sTmp}")
    for m in range(4):
        A(f"ds_read_b64 {vr(c+8*m, 2)}, v{vT1} offset:{m*128}")
    for p in range(6):
        A(f"ds_read_b128 {vr(csq(p))}, v{vT0} offset:{p*64}")
    A("s_waitcnt lgkmcnt(6)")
    for m in range(4):
        A(f"v_rsq_f32 v{t+m}, v{c+8*m+1}")
        A(f"v_mov_b32 v{c+8*m+2}, v{c+8*m+1}")
    for m in range(4):
        A(f"v_mul_f32 v{c+8*m+4}, {f32(GC1)}, v{t+m}")
        A(f"v_mul_f32 v{t+4+m}, v{t+m}, v{t+m}")
    for m in range(4):
        A(f"v_mul_f32 v{t+4+m}, v{t+4+m}, v{t+m}")
    for m in range(4):
        A(f"v_mul_f32 v{c+8*m+6}, {f32(GC2)}, v{t+4+m}")
    A(f"v_bfe_u32 v{vT1}, v{vLane}, 4, 1")
    A(f"v_lshlrev_b32 v{vT1}, 10, v{vT1}")
    A(f"v_lshrrev_b32 v{vT2}, 5, v{vLane}")
    A(f"v_lshl_add_u32 v{vT1}, v{vT2}, 8, v{vT1}")
    A(f"v_and_b32 v{vT2}, 15, v{vLane}")
    A(f"v_lshl_add_u32 v{vT1}, v{vT2}, 4, v{vT1}")
    A("s_waitcnt lgkmcnt(0)")
    for a in range(3):
        A(f"s_mul_i32 s{sTmp}, s{sCG}, 12")
        A(f"s_mul_i32 s{sTmp2}, s{sNW}, 3")
        A(f"s_add_u32 s{sTmp}, s{sTmp}, s{sTmp2}")
        A(f"s_add_u32 s{sTmp}, s{sTmp}, {a}")
        A(f"s_lshl_b32 s{sTmp2}, s{sRB}, 1")
        A(f"s_add_u32 s{sTmp2}, s{sTmp2}, s{sMW}")
        A(f"s_mul_i32 s{sTmp2}, s{sTmp2}, 54")
        A(f"s_lshr_b32 s{sTmp3}, s{sTmp}, 1")
        A(f"s_add_u32 s{sTmp2}, s{sTmp2}, s{sTmp3}")
        A(f"s_lshl_b32 s{sTmp2}, s{sTmp2}, 12")
        A(f"s_and_b32 s{sTmp}, s{sTmp}, 1")
        A(f"s_lshl_b32 s{sTmp}, s{sTmp}, 9")
        A(f"s_add_u32 s{sTmp}, s{sTmp}, s{sTmp2}")
        C = lambda m, k: c + 8 * m + 2 * k
        MP = [(m, i) for m in range(4) for i in (0, 2)]
        Gt = lambda m: acc16(m, a, 0)
        Up = lambda m: acc16(m, a, 1)
        Tm = lambda m: t + 4 * m
        cg_, cu_ = csq(2 * a), csq(2 * a + 1)
        for m, i in MP:
            pk_fma(A, Gt(m) + i, ("b", C(m, 0)), ("p", cg_ + i), ("p", Gt(m) + i), neg_a=True)
        for m, i in MP:
            pk_mul(A, Tm(m) + i, ("p", Gt(m) + i), ("p", Gt(m) + i))
        for m, i in MP:
            pk_fma(A, Tm(m) + i, ("p", Tm(m) + i), ("b", C(m, 3)), ("b", C(m, 2)))
        for m, i in MP:
            pk_mul(A, Tm(m) + i, ("p", Tm(m) + i), ("p", Gt(m) + i))
        for m, i in MP:
            A(f"v_exp_f32 v{Tm(m)+i}, v{Tm(m)+i}")
            A(f"v_exp_f32 v{Tm(m)+i+1}, v{Tm(m)+i+1}")
            pk_fma(A, Up(m) + i, ("b", C(m, 0)), ("p", cu_ + i), ("p", Up(m) + i), neg_a=True)
        for m, i in MP:
            pk_fma(A, Tm(m) + i, ("p", Tm(m) + i), ("b", C(m, 1)), ("b", C(m, 1)))
        for m, i in MP:
            A(f"v_rcp_f32 v{Tm(m)+i}, v{Tm(m)+i}")
            A(f"v_rcp_f32 v{Tm(m)+i+1}, v{Tm(m)+i+1}")
            pk_mul(A, Gt(m) + i, ("p", Gt(m) + i), ("p", Up(m) + i))
        for m, i in MP:
            pk_mul(A, Gt(m) + i, ("p", Gt(m) + i), ("p", Tm(m) + i))
        for pr in range(2):
            ob = Up(2 * pr)
            for h in range(2):
                A(f"v_cvt_pk_bf16_f32 v{ob+2*h}, v{Gt(2*pr+h)}, v{Gt(2*pr+h)+1}")
                A(f"v_cvt_pk_bf16_f32 v{ob+2*h+1}, v{Gt(2*pr+h)+2}, v{Gt(2*pr+h)+3}")
        for pr in range(2):
            ob = Up(2 * pr)
            A(f"v_permlane16_swap_b32 v{ob}, v{ob+2}")
            A(f"v_permlane16_swap_b32 v{ob+1}, v{ob+3}")
        for pr in range(2):
            A(f"buffer_store_dwordx4 {vr(Up(2*pr))}, v{vT1}, {srd(S_WS)}, s{sTmp} offen offset:{pr*2048} sc1")


def pk(r, bc=False):
    return f"v[{r}:{r+1}]"


def pko(*bc):
    lo = ",".join("1" if b == 1 else "0" for b in bc)
    hi = ",".join("0" if b == 0 else "1" for b in bc)
    return f"op_sel:[{lo}] op_sel_hi:[{hi}]"


def opnd(x):
    k, r = x
    if k == "p":
        return pk(r), None
    assert r % 2 == 0
    return pk(r), 0


def pk_fma(A, d, a, b, c, neg_a=False):
    (ta, fa), (tb_, fb), (tc, fc) = opnd(a), opnd(b), opnd(c)
    n = " neg_lo:[1,0,0] neg_hi:[1,0,0]" if neg_a else ""
    A(f"v_pk_fma_f32 {pk(d)}, {ta}, {tb_}, {tc} {pko(fa, fb, fc)}{n}")


def pk_mul(A, d, a, b, op="mul"):
    (ta, fa), (tb_, fb) = opnd(a), opnd(b)
    A(f"v_pk_{op}_f32 {pk(d)}, {ta}, {tb_} {pko(fa, fb)}")


def phi_block(A, d, n, t, mu, cs, r, rl, eps, mixed=None):
    P = range(0, n, 2)
    ea, em, eb = mixed if mixed else (eps, eps, None)
    for i in P:
        pk_fma(A, d + i, mu(i), cs(i), ("p", d + i), neg_a=True)
    for i in P:
        if mixed:
            pk_fma(A, t + i, ("p", d + i), rl(i), ("b", eb))
        else:
            pk_mul(A, t + i, ("p", d + i), rl(i))
    for i in P:
        A(f"v_exp_f32 v{t+i}, v{t+i} clamp")
        A(f"v_exp_f32 v{t+i+1}, v{t+i+1} clamp")
        pk_fma(A, d + i, ("p", d + i), r(i), ("b", ea))
    for i in range(n):
        A(f"v_max_f32 v{d+i}, v{d+i}, v{em}")
    for i in P:
        pk_mul(A, d + i, ("p", d + i), ("p", t + i), op="add")


def k1_epi_q(A, acc):
    c = vBUF
    cs = vBUF + 8
    t = vBUF + 40
    o = vBUF + 56
    mu, r, rl, eps = c, c + 2, c + 4, c + 6
    A(f"v_lshrrev_b32 v{vT0}, 5, v{vLane}")
    A(f"v_lshlrev_b32 v{vT0}, 4, v{vT0}")
    A(f"s_mul_i32 s{sTmp}, s{sNW}, 640")
    A(f"s_add_u32 s{sTmp}, s{sTmp}, {MISC_LDS}")
    A(f"v_add_u32 v{vT0}, s{sTmp}, v{vT0}")
    A(f"v_and_b32 v{vT1}, 31, v{vLane}")
    A(f"s_lshl_b32 s{sTmp}, s{sMW}, 8")
    A(f"s_add_u32 s{sTmp}, s{sTmp}, {MISC_LDS+2048}")
    A(f"v_lshl_add_u32 v{vT1}, v{vT1}, 3, s{sTmp}")
    A(f"ds_read_b64 {vr(mu, 2)}, v{vT1}")
    for q in range(4):
        A(f"ds_read_b128 {vr(cs+4*q)}, v{vT0} offset:{q*32}")
    A("s_waitcnt lgkmcnt(4)")
    A(f"v_rsq_f32 v{r}, v{mu+1}")
    A(f"v_mov_b32 v{eps}, {f32(1e-6)}")
    A(f"v_mul_f32 v{rl}, {f32(LOG2E)}, v{r}")
    A(f"v_bfe_u32 v{vT1}, v{vLane}, 4, 1")
    A(f"v_lshlrev_b32 v{vT1}, 10, v{vT1}")
    A(f"v_lshrrev_b32 v{vT2}, 5, v{vLane}")
    A(f"v_lshl_add_u32 v{vT1}, v{vT2}, 8, v{vT1}")
    A(f"v_and_b32 v{vT2}, 15, v{vLane}")
    A(f"v_lshl_add_u32 v{vT1}, v{vT2}, 4, v{vT1}")
    A(f"s_lshl_b32 s{sTmp}, s{sRB}, 1")
    A(f"s_lshr_b32 s{sTmp2}, s{sMW}, 1")
    A(f"s_add_u32 s{sTmp}, s{sTmp}, s{sTmp2}")
    A(f"s_mul_i32 s{sTmp}, s{sTmp}, 20")
    A(f"s_sub_u32 s{sTmp2}, s{sCG}, 13")
    A(f"s_mul_i32 s{sTmp2}, s{sTmp2}, 10")
    A(f"s_add_u32 s{sTmp}, s{sTmp}, s{sTmp2}")
    A(f"s_mul_i32 s{sTmp2}, s{sNW}, 5")
    A(f"s_add_u32 s{sTmp}, s{sTmp}, s{sTmp2}")
    A(f"s_lshl_b32 s{sTmp}, s{sTmp}, 12")
    A(f"s_and_b32 s{sTmp2}, s{sMW}, 1")
    A(f"s_lshl_b32 s{sTmp2}, s{sTmp2}, 11")
    A(f"s_add_u32 s{sTmp}, s{sTmp}, s{sTmp2}")
    A(f"s_add_u32 s{sTmp}, s{sTmp}, {WS_PQ}")
    for a in range(5):
        csa = cs + 16 * (a % 2)
        if a < 4:
            for q in range(4):
                A(f"ds_read_b128 {vr(cs+16*((a+1)%2)+4*q)}, v{vT0} offset:{(a+1)*128+q*32}")
            A("s_waitcnt lgkmcnt(4)")
        else:
            A("s_waitcnt lgkmcnt(0)")
        d = acc(0, a)
        phi_block(A, d, 16, t, lambda i: ("b", mu), lambda i: ("p", csa + i), lambda i: ("b", r), lambda i: ("b", rl), eps)
        ob = o + 8 * (a % 2)
        for i in range(8):
            A(f"v_cvt_pk_bf16_f32 v{ob+i}, v{d+2*i}, v{d+2*i+1}")
        A(f"buffer_store_dwordx4 {vr(ob)}, v{vT1}, {srd(S_WS)}, s{sTmp} offen sc1")
        A(f"buffer_store_dwordx4 {vr(ob+4)}, v{vT1}, {srd(S_WS)}, s{sTmp} offen offset:512 sc1")
        A(f"s_add_u32 s{sTmp}, s{sTmp}, 4096")


KV_PAIRS = [(0, 2), (0, 3), (1, 3), (1, 4), (2, 4)]
KV_Q = [[0, 1, 2], [0, 1, 2, 3], [0, 1, 2, 3], [1, 2, 3], [0, 1]]
KV_AD = 232
KV_SLAB = [0, 14336, 135168, 149504]
KV_DUMMY = 28688


def kv_addr_setup(A):
    e, he, d0, dm = vT0, vT1, vT2, vT3
    t = vBUF + 24
    A(f"s_mul_i32 s{sTmp3}, s{sMW}, 14336")
    A(f"s_cmp_ge_u32 s{sMW}, 2")
    A(f"s_cselect_b32 s{sTmp}, {135168 - 2*14336}, 0")
    A(f"s_add_u32 s{sTmp3}, s{sTmp3}, s{sTmp}")
    A(f"s_mul_i32 s{sTmp}, s{sNW}, 6720")
    A(f"s_add_u32 s{sTmp3}, s{sTmp3}, s{sTmp}")
    A(f"v_lshlrev_b32 v{dm}, 4, v{vLane}")
    A(f"v_add_u32 v{dm}, {KV_DUMMY}, v{dm}")
    A(f"v_lshrrev_b32 v{d0}, 5, v{vLane}")
    A(f"v_lshlrev_b32 v{d0}, 2, v{d0}")
    for n, (a, b) in enumerate(KV_PAIRS):
        A(f"v_and_b32 v{e}, 31, v{vLane}")
        A(f"v_add_u32 v{e}, {32*b - 80 + 100}, v{e}")
        A(f"v_mul_u32_u24 v{he}, 205, v{e}")
        A(f"v_lshrrev_b32 v{he}, 12, v{he}")
        A(f"v_mul_u32_u24 v{e}, 80, v{e}")
        A(f"v_add_u32 v{e}, s{sTmp3}, v{e}")
        for q in KV_Q[n]:
            a0 = KV_AD + 4 * n + q
            A(f"v_add_u32 v{a0}, {32*a + 8*q + 100}, v{d0}")
            A(f"v_mul_u32_u24 v{t}, 205, v{a0}")
            A(f"v_lshrrev_b32 v{t}, 12, v{t}")
            A(f"v_cmp_eq_u32 vcc, v{t}, v{he}")
            A(f"v_lshl_add_u32 v{a0}, v{a0}, 2, v{e}")
            A(f"v_subrev_u32 v{a0}, {80*100 + 4*100}, v{a0}")
            A(f"v_cndmask_b32 v{a0}, v{dm}, v{a0}, vcc")
    A(f"v_and_b32 v{e}, 15, v{vLane}")
    A(f"v_lshrrev_b32 v{d0}, 4, v{vLane}")
    A(f"v_lshlrev_b32 v{d0}, 2, v{d0}")
    A(f"v_lshl_add_u32 v{d0}, v{e}, 4, v{d0}")
    for a in range(3):
        az = KV_AD + 20 + a
        A(f"v_add_u32 v{az}, {32*a}, v{d0}")
        A(f"v_mul_u32_u24 v{t}, 205, v{az}")
        A(f"v_lshrrev_b32 v{t}, 12, v{t}")
        A(f"v_mul_u32_u24 v{t}, 1600, v{t}")
        A(f"v_lshl_add_u32 v{az}, v{az}, 2, v{t}")
        A(f"v_add_u32 v{az}, s{sTmp3}, v{az}")
        A(f"v_add_u32 v{az}, 1600, v{az}")
        A(f"v_cmp_gt_u32 vcc, {2 if a < 2 else 1}, v{e}")
        A(f"v_cndmask_b32 v{az}, v{dm}, v{az}, vcc")


def k1_epi_kv(A, acc):
    mu = vBUF
    rr = vBUF + 16
    rl = vBUF + 32
    t = vBUF + 48
    csr = [48, 50, 244, 250, vBUF + 64]
    eps, ea, em, eb = vBUF + 66, vBUF + 68, vBUF + 69, vBUF + 70
    A(f"v_and_b32 v{vT0}, 31, v{vLane}")
    A(f"v_cmp_gt_u32 vcc, 16, v{vT0}")
    A(f"v_lshlrev_b32 v{vT0}, 2, v{vT0}")
    A(f"s_mul_i32 s{sTmp}, s{sNW}, 640")
    A(f"s_add_u32 s{sTmp}, s{sTmp}, {KV_CS}")
    A(f"v_add_u32 v{vT1}, s{sTmp}, v{vT0}")
    A(f"v_lshrrev_b32 v{vT2}, 5, v{vLane}")
    A(f"s_lshl_b32 s{sTmp}, s{sMW}, 7")
    A(f"s_add_u32 s{sTmp}, s{sTmp}, {KV_ST}")
    A(f"v_lshl_add_u32 v{vT2}, v{vT2}, 4, s{sTmp}")
    for a in range(5):
        A(f"ds_read_b32 v{csr[a]}, v{vT1} offset:{a*128}")
    for reg, off in ((mu, 0), (rr, 512), (rl, 1536)):
        for q in range(4):
            A(f"ds_read_b128 {vr(reg+4*q)}, v{vT2} offset:{off+q*32}")
    A(f"v_mov_b32 v{eps}, {f32(1e-6)}")
    A(f"v_mov_b32 v{em}, 0xff800000")
    A(f"v_cndmask_b32 v{ea}, 0, v{eps}, vcc")
    A(f"v_cndmask_b32 v{eb}, v{em}, v{ea}, vcc")
    A(f"v_cndmask_b32 v{em}, v{em}, v{eps}, vcc")
    A(f"v_min_f32 v{eb}, 0, v{eb}")
    A("s_waitcnt lgkmcnt(4)")
    cstamp(A, 1)
    op = lambda a, h: acc(0, a) + 4 * h

    def pack(a):
        d = acc(0, a)
        for i in range(8):
            A(f"v_cvt_pk_bf16_f32 v{d+i}, v{d+2*i}, v{d+2*i+1}")

    def plain(a, dst):
        d = acc(0, a)
        for i in range(0, 16, 2):
            pk_fma(A, dst + i, ("p", mu + i), ("b", csr[a]), ("p", d + i), neg_a=True)
        for i in range(0, 16, 2):
            pk_mul(A, dst + i, ("p", dst + i), ("p", rr + i))

    def phi(a, mixed=None):
        phi_block(A, acc(0, a), 16, t, lambda i: ("p", mu + i), lambda i: ("b", csr[a]), lambda i: ("p", rr + i), lambda i: ("p", rl + i), eps, mixed)
    for a in ((4, 3) if OPT['KV1'] == 1 else (3, 4)):
        plain(a, acc(0, a))
        pack(a)
    A("s_waitcnt lgkmcnt(0)")
    phi(2, (ea, em, eb))
    pack(2)
    for a in (0, 1):
        phi(a)
        pack(a)
    cstamp(A, 2)
    D = lambda n: vBUF + 16 * n
    Z = lambda a: vBUF + 80 + 4 * a
    for h in range(2):
        for n, (a, b) in enumerate(KV_PAIRS):
            A(f"v_mfma_f32_32x32x16_bf16 {vr(D(n),16)}, {vr(op(a,h))}, {vr(op(b,h))}, {vr(D(n),16) if h else 0}")
        for a in range(3):
            A(f"v_mfma_f32_16x16x32_bf16 {vr(Z(a))}, {vr(op(a,h))}, {vr(vSel)}, {vr(Z(a)) if h else 0}")
    cstamp(A, 3)
    A(f"s_cmp_lt_u32 s{sWave}, 4\ns_cbranch_scc1 L_K_nb1\ns_barrier\nL_K_nb1:\ns_nop 3")
    cstamp(A, 4)
    for n in range(5):
        for q in KV_Q[n]:
            A(f"ds_write_b128 v{KV_AD+4*n+q}, {vr(D(n)+4*q)}")
    for a in range(3):
        A(f"ds_write_b128 v{KV_AD+20+a}, {vr(Z(a))}")
    sSlab = 4
    A(f"s_sub_u32 s{sSlab}, s{sCG}, 9")
    A(f"s_mul_i32 s{sSlab}, s{sSlab}, 13440")
    A(f"s_add_u32 s{sSlab}, s{sSlab}, {WS_KVA}")
    A(f"v_lshlrev_b32 v{vT0}, 2, v0")
    A(f"v_add_u32 v{vT1}, {KV_SLAB[2]}, v{vT0}")
    A(f"v_cmp_gt_u32 vcc, {3360-6*512}, v0")
    A(f"v_mov_b32 v{vT2}, {OOB}")
    A(f"v_cndmask_b32 v{vT2}, v{vT2}, v{vT0}, vcc")
    A("s_waitcnt lgkmcnt(0)")
    cstamp(A, 5)
    A(f"s_cmp_ge_u32 s{sWave}, 4\ns_cbranch_scc1 L_K_nb2\ns_barrier\nL_K_nb2:")
    A("s_barrier")
    cstamp(A, 6)
    R = vACC
    for j in range(7):
        for m in range(4):
            A(f"ds_read_b32 v{R+4*j+m}, v{vT0 if m < 2 else vT1} offset:{j*2048 + (m%2)*14336}")
        if j >= 2:
            k = j - 2
            A("s_waitcnt lgkmcnt(8)")
            kv_atomic(A, R, k, sSlab)
    for k in (5, 6):
        A(f"s_waitcnt lgkmcnt({4*(6-k)})")
        kv_atomic(A, R, k, sSlab)


def kv_atomic(A, R, k, sSlab):
    A(f"v_add_f32 v{R+4*k}, v{R+4*k}, v{R+4*k+1}")
    A(f"v_add_f32 v{R+4*k+2}, v{R+4*k+2}, v{R+4*k+3}")
    A(f"v_add_f32 v{R+4*k}, v{R+4*k}, v{R+4*k+2}")
    A(f"buffer_atomic_add_f32 v{R+4*k}, v{vT0 if k < 6 else vT2}, {srd(S_WS)}, s{sSlab} offen offset:{(k%2)*2048}")
    if k % 2 == 1:
        A(f"s_add_u32 s{sSlab}, s{sSlab}, 4096")


def k1_aux(A):
    if OPT["CODEWARM"] == 1:
        A("s_getpc_b64 s[10:11]")
        A.label("L_pc")
        A(f"s_sub_u32 s10, s10, L_pc-{NAME}_kernel")
        A("s_subb_u32 s11, s11, 0")
        A(f"v_lshlrev_b32 v{vT0}, 7, v0")
        A(f"v_min_u32 v{vT0}, L_code_end-{NAME}_kernel-4, v{vT0}")
        A(f"global_load_dword v{vACC+8}, v{vT0}, s[10:11]")
    if OPT["TLBWARM"]:
        g = OPT["TLBWARM"]
        mk_srd(A, S_T, P_OUT, 2048 * 1280)
        A(f"v_lshlrev_b32 v{vT0}, {g}, v0")
        A(f"buffer_load_dword v{vACC+9}, v{vT0}, {srd(S_WS)}, 0 offen sc1")
        A(f"buffer_load_dword v{vACC+10}, v{vT0}, {srd(S_T)}, 0 offen sc1")
    for i in range(4):
        A(f"v_mov_b32 v{vACC+i}, 0")
    A(f"v_lshlrev_b32 v{vT0}, 4, v0")
    A(f"s_mul_i32 s{sTmp}, s{sRB}, 3360")
    A(f"s_add_u32 s{sTmp}, s{sTmp}, {WS_KVA}")
    A(f"v_add_u32 v{vT0}, s{sTmp}, v{vT0}")
    A(f"v_mov_b32 v{vT2}, {OOB}")
    A(f"v_cmp_gt_u32 vcc, 210, v0")
    A(f"v_cndmask_b32 v{vT0}, v{vT2}, v{vT0}, vcc")
    A(f"s_cmp_lg_u32 s{sWave}, 7")
    A("s_cbranch_scc1 L_A_z")
    A(f"s_lshl_b32 s{sTmp}, s{sRB}, 8")
    A(f"s_add_u32 s{sTmp}, s{sTmp}, {WS_FL}")
    A(f"v_writelane_b32 v{vT0}, s{sTmp}, 0")
    A(f"s_add_u32 s{sTmp}, s{sTmp}, {FL_ROW}")
    A(f"v_writelane_b32 v{vT0}, s{sTmp}, 3")
    A(f"s_lshl_b32 s{sTmp}, s{sRB}, 9")
    A(f"s_add_u32 s{sTmp}, s{sTmp}, {WS_FL + FL_KV}")
    A(f"v_writelane_b32 v{vT0}, s{sTmp}, 1")
    A(f"s_add_u32 s{sTmp}, s{sTmp}, 256")
    A(f"v_writelane_b32 v{vT0}, s{sTmp}, 2")
    A.label("L_A_z")
    A(f"buffer_store_dwordx4 {vr(vACC)}, v{vT0}, {srd(S_WS)}, 0 offen sc1")
    A(f"s_cmp_lg_u32 s{sWave}, 7")
    A("s_cbranch_scc1 L_A_z2")
    A("s_waitcnt vmcnt(0)")
    A(f"v_mov_b32 v{vT0}, {OOB}")
    A(f"v_writelane_b32 v{vT0}, 0, 0")
    A(f"v_mov_b32 v{vT1}, 1")
    A(f"buffer_atomic_add v{vT1}, v{vT0}, {srd(S_DBG)}, 0 offen sc1")
    A.label("L_A_z2")
    A(f"s_lshl_b32 s{sUw}, s{sRB}, 3")
    A(f"s_add_u32 s{sUw}, s{sUw}, s{sWave}")
    A(f"s_add_u32 s{sUw}, s{sUw}, 480")
    A(f"s_mul_i32 s{sUl}, s{sWave}, 12288")
    for i in range(3):
        A(f"s_add_u32 s{sU}, s{sUw}, {128*i}")
        A(f"s_add_u32 s9, s{sUl}, {4096*i}")
        w2_unit_dma(A, "s9")
    A("s_waitcnt vmcnt(12)")
    k1_stats(A, "X")
    for i in range(3):
        A("s_waitcnt vmcnt(9)")
        A(f"s_add_u32 s{sU}, s{sUw}, {128*i}")
        A(f"s_add_u32 s9, s{sUl}, {4096*i}")
        w2_unit_out(A, "s9", lambda t: vACC + 16 + 16 * i + 4 * t)
    A("s_waitcnt vmcnt(0)")
    A("s_barrier")
    stamp(A, 9, 0)
    A(f"s_cmp_lg_u32 s{sWave}, 0")
    A("s_cbranch_scc1 L_A_w")
    k1_publish(A)
    A(f"s_mov_b32 s{sSpin}, 0")
    wait_zeroed(A, "L_A_wz", False)
    poll_addr(A)
    A.label("L_A_poll")
    A("s_sleep 10")
    A(f"buffer_load_dword v{vPoll}, v{vPa}, {srd(S_WS)}, 0 offen sc1")
    A("s_waitcnt vmcnt(0)")
    poll_cmp(A)
    A(f"s_add_u32 s{sSpin}, s{sSpin}, 1")
    A(f"s_cmp_gt_u32 s{sSpin}, {SPIN_MAX}")
    A("s_cbranch_scc1 L_A_w")
    A(f"s_cmp_lg_u64 vcc, 0")
    A("s_cbranch_scc1 L_A_poll")
    A.label("L_A_w")
    A("s_barrier")
    if OPT["AUXWARM"]:
        A("s_bfe_u32 s3, s2, 0x10003")
        A("s_lshl_b32 s3, s3, 2")
        A(f"s_lshr_b32 s4, s{sWave}, 1")
        A("s_add_u32 s3, s3, s4")
        A(f"s_mul_i32 s3, s3, {74*5120}")
        A(f"s_and_b32 s4, s{sWave}, 1")
        A("s_lshl_b32 s4, s4, 13")
        A("s_add_u32 s3, s3, s4")
        A(f"s_add_u32 s3, s3, {WS_W2 + (54*5120 if OPT['AUXWARM'] < 3 else 0)}")
        A(f"v_lshlrev_b32 v{vT0}, 7, v{vLane}")
        for i in range(OPT["AUXWARM"] if OPT["AUXWARM"] > 3 else 7):
            A(f"buffer_load_dword v{vACC+i}, v{vT0}, {srd(S_WS)}, s3 offen sc1")
            A("s_add_u32 s3, s3, 16384")
    stamp(A, 3, 0)
    p2_ids(A)
    A(f"s_mov_b32 s{sWoDone}, 0")
    A(f"v_mov_b32 v{vSigA}, {OOB}")
    A(f"v_mov_b32 v{vSigV}, 0")
    A("s_branch L_p2")


def kernel1(A):
    A(".p2align 8")
    A.label(NAME + "_kernel")
    A("s_cmp_ge_u32 s2, 256")
    A("s_cbranch_scc1 L_k1_exit")
    if OPT["XMAP"]:
        A("s_lshr_b32 s3, s2, 5")
        A("s_and_b32 s2, s2, 31")
        A("s_lshl_b32 s2, s2, 3")
        A("s_or_b32 s2, s2, s3")
    load_ptrs(A)
    if OPT["CODEWARM"] == 2:
        A("s_getpc_b64 s[10:11]")
        A.label("L_pc")
        A(f"s_sub_u32 s10, s10, L_pc-{NAME}_kernel")
        A("s_subb_u32 s11, s11, 0")
        A("s_lshr_b32 s4, s2, 3")
        A("s_lshl_b32 s4, s4, 7")
        A(f"v_lshl_add_u32 v{vT0}, v0, 12, s4")
        A(f"v_min_u32 v{vT0}, L_code_end-{NAME}_kernel-4, v{vT0}")
        A("v_cmp_gt_u32 vcc, 16, v0")
        A("s_and_saveexec_b64 s[12:13], vcc")
        A("s_cbranch_execz L_nocw")
        A(f"global_load_dword v255, v{vT0}, s[10:11]")
        A.label("L_nocw")
        A("s_mov_b64 exec, s[12:13]")
    A(f"v_and_b32 v{vLane}, 63, v0")
    A(f"v_lshrrev_b32 v{vT0}, 6, v0")
    A(f"v_readfirstlane_b32 s{sWave}, v{vT0}")
    A("s_and_b32 s3, s2, 7")
    A("s_lshr_b32 s4, s2, 3")
    A("s_lshr_b32 s5, s3, 2")
    A("s_and_b32 s6, s3, 3")
    A("s_mul_i32 s7, s6, 30")
    A("s_add_u32 s7, s7, s4")
    A(f"s_lshr_b32 s{sCG}, s7, 3")
    if OPT["CGPERM"]:
        perm = [0, 9, 1, 13, 2, 10, 3, 4, 5, 11, 6, 14, 7, 12, 8, 15]
        tab = sum(p << (4 * i) for i, p in enumerate(perm))
        A(f"s_mov_b32 s10, {tab & 0xffffffff}")
        A(f"s_mov_b32 s11, {tab >> 32}")
        A(f"s_lshl_b32 s{sCG}, s{sCG}, 2")
        A(f"s_lshr_b64 s[10:11], s[10:11], s{sCG}")
        A(f"s_and_b32 s{sCG}, s10, 15")
    A(f"s_and_b32 s{sRB}, s7, 7")
    A("s_lshl_b32 s8, s6, 1")
    A("s_add_u32 s8, s8, s4")
    A("s_sub_u32 s8, s8, 30")
    A("s_cmp_lt_u32 s4, 30")
    A(f"s_cselect_b32 s{sCG}, s{sCG}, 15")
    A(f"s_cselect_b32 s{sRB}, s{sRB}, s8")
    A("s_lshl_b32 s5, s5, 3")
    A(f"s_add_u32 s{sRB}, s{sRB}, s5")
    A(f"s_and_b32 s3, s{sRB}, 7")
    A("s_lshr_b32 s4, s3, 2")
    A(f"s_add_u32 s{sC0}, s3, s4")
    A(f"s_lshr_b32 s4, s{sRB}, 3")
    A(f"s_add_u32 s{sC0}, s{sC0}, s4")
    A("s_waitcnt lgkmcnt(0)")
    mk_srd(A, S_X, P_X, 2048 * 1280)
    mk_srd(A, S_WS, P_WS, WS_SIZE)
    mk_srd(A, S_DBG, P_DBG, 256)
    stamp(A, 0, 0)
    if OPT["P2ONLY"]:
        p2_ids(A)
        A(f"s_mov_b32 s{sWoDone}, 0")
        A(f"v_mov_b32 v{vSigA}, {OOB}")
        A(f"v_mov_b32 v{vSigV}, 0")
        A("s_branch L_p2")
    if OPT["DLY"] == 4:
        A("s_sleep 34")
    k1_stats_issue(A)
    A(f"s_cmp_eq_u32 s{sCG}, 15")
    A("s_cbranch_scc1 L_aux")
    A(f"v_lshrrev_b32 v{vT0}, 3, v{vLane}")
    A(f"v_lshrrev_b32 v{vT1}, 4, v{vLane}")
    A(f"v_and_b32 v{vT2}, 7, v{vLane}")
    A(f"v_xor_b32 v{vT1}, v{vT1}, v{vT2}")
    if OPT["NOSWZ"]: A(f"v_and_b32 v{vT1}, 7, v{vLane}")
    A(f"s_lshl_b32 s3, s{sRB}, 7")
    if OPT["SAME"]: A("s_mov_b32 s3, 0")
    A(f"s_and_b32 s4, s{sWave}, 3")
    A(f"s_lshl_b32 s{sXslot}, s4, 12")
    A(f"s_lshl_b32 s4, s4, 5")
    A("s_add_u32 s3, s3, s4")
    A(f"v_add_u32 v{vT0}, s3, v{vT0}")
    A(f"v_mul_u32_u24 v{vT0}, 1280, v{vT0}")
    A(f"v_lshl_add_u32 v{vXo}, v{vT1}, 4, v{vT0}")
    A(f"v_xor_b32 v{vT1}, 4, v{vT1}")
    A(f"v_lshl_add_u32 v{vXo+1}, v{vT1}, 4, v{vT0}")
    A(f"v_add_u32 v{vXo+1}, {8*1280}, v{vXo+1}")
    A(f"s_lshl_b32 s{sKX}, s{sC0}, 7")
    A(f"s_mov_b32 s{sKXn}, 0")
    A(f"s_cmp_ge_u32 s{sCG}, 13")
    A("s_cbranch_scc1 L_typeQ")
    A(f"s_cmp_ge_u32 s{sCG}, 9")
    A("s_cbranch_scc1 L_typeK")
    k1_gemm(A, "G")
    A.label("L_typeQ")
    k1_gemm(A, "Q")
    A.label("L_typeK")
    k1_gemm(A, "K")
    A.label("L_aux")
    k1_aux(A)
    phase2(A)
    A.label("L_k1_exit")
    A("s_endpgm")
    A.label("L_code_end")


sRB64, sC, sHo, sWo, sHb, sHe, sWb, sWe, sLast = 16, 17, 18, 19, 22, 23, 24, 25, 26
sFl, sWoDone, sWoL, sWoG, sWoI = sWslot, sRslot, sXslot, sStepW, sCSit
vL16 = 5


def p2_ids(A, vec=True):
    A("s_and_b32 s3, s2, 7")
    A("s_lshr_b32 s4, s2, 3")
    A(f"s_and_b32 s{sC}, s4, 7")
    A("s_lshr_b32 s4, s4, 3")
    A("s_lshl_b32 s3, s3, 2")
    A(f"s_add_u32 s{sRB64}, s3, s4")
    if OPT["P2SAME"] == 1:
        A(f"s_and_b32 s{sRB64}, s{sRB64}, 1")
        A(f"s_and_b32 s{sC}, s{sC}, 1")
    if OPT["P2SAME"] == 2:
        A(f"s_and_b32 s{sC}, s{sC}, 3")
    if vec:
        A(f"v_lshlrev_b32 v{vL16}, 4, v{vLane}")


WO_LDS = 32768


def wo_early(A, first, per_wave):
    A("s_lshr_b32 s4, s2, 3")
    A("s_and_b32 s4, s4, 7")
    A(f"s_mul_i32 s4, s4, {74*5120}")
    A(f"s_and_b32 s5, s{sWave}, 3")
    A(f"s_mul_i32 s5, s5, {per_wave*1024}")
    A("s_add_u32 s4, s4, s5")
    A(f"s_add_u32 s4, s4, {WS_W2 + 54*5120 + first*1024}")
    A(f"s_add_u32 s5, s5, {WO_LDS + first*1024}")
    A(f"v_lshlrev_b32 v{vT0}, 4, v{vLane}")
    for i in range(per_wave):
        if i % 4 == 0:
            A(f"s_add_u32 m0, s5, {i*1024}")
            A(f"s_add_u32 s6, s4, {i*1024}")
        A(f"buffer_load_dwordx4 v{vT0}, {srd(S_WS)}, s6 offen offset:{(i%4)*1024} sc1 lds")


def wo_setup(A):
    A(f"s_mul_i32 s{sWoL}, s{sWave}, 25600")
    A(f"s_add_u32 s{sWoL}, s{sWoL}, {WO_LDS}")
    A(f"s_mul_i32 s6, s{sC}, 74")
    A(f"s_mul_i32 s7, s{sWave}, 5")
    A("s_add_u32 s6, s6, s7")
    A("s_add_u32 s6, s6, 54")
    A("s_mul_i32 s6, s6, 5120")
    A(f"s_add_u32 s{sWoG}, s6, {WS_W2}")
    A(f"s_and_b32 s{sWoI}, s{sRB64}, 3")
    A(f"s_mul_i32 s{sWoI}, s{sWoI}, {6*1024}")


def wo_dmas():
    return [f"s_add_u32 m0, s{sWoL}, s{sWoI}\n"
            f"s_add_u32 s9, s{sWoG}, s{sWoI}\n"
            f"buffer_load_dwordx4 v{vL16}, {srd(S_WS)}, s9 offen sc1 lds\n"
            f"s_add_u32 s{sWoI}, s{sWoI}, 1024\n"
            f"s_cmp_eq_u32 s{sWoI}, {25*1024}\n"
            f"s_cselect_b32 s{sWoI}, 0, s{sWoI}" for _ in range(25)]


NK, WD, HD = 14, 6, 3
q4 = lambda a, b: list(range(a, b, 4))
WQ = q4(8, 56) + q4(128, 152) + q4(248, 256) + q4(112, 128) + q4(152, 168) + q4(200, 208)
AQ = q4(88, 112) + q4(168, 192) + q4(56, 88)
HQ = q4(192, 200) + q4(208, 248)
assert len(WQ) == 30 and len(AQ) == 20 and len(HQ) == 12 and len(set(WQ + AQ + HQ)) == 62


def ffn_setup(A):
    A(f"s_sub_u32 s3, s{sWave}, 4")
    A("s_mul_i32 s4, s3, 14")
    A("s_cmp_eq_u32 s3, 3")
    A("s_cselect_b32 s5, 1, 0")
    A("s_sub_u32 s4, s4, s5")
    A("s_cmp_ge_u32 s3, 2")
    A("s_cselect_b32 s5, 13, 14")
    A(f"s_cselect_b32 s{sLast}, {OOB}, 0")
    A(f"s_and_b32 s6, s{sRB64}, 3")
    A("s_lshl_b32 s6, s6, 1")
    A(f"s_add_u32 s6, s6, s{sC}")
    A("s_mul_i32 s6, s6, 7")
    A("s_lshr_b32 s6, s6, 2")
    A("s_sub_u32 s7, s6, s5")
    A("s_cmp_ge_u32 s6, s5")
    A("s_cselect_b32 s6, s7, s6")
    if not OPT["P2ROT"]:
        A("s_mov_b32 s6, 0")
    A(f"s_mul_i32 s{sHb}, s{sRB64}, 54")
    A(f"s_add_u32 s{sHb}, s{sHb}, s4")
    A(f"s_lshl_b32 s{sHb}, s{sHb}, 12")
    A("s_lshl_b32 s7, s5, 12")
    A(f"s_add_u32 s{sHe}, s{sHb}, s7")
    A("s_lshl_b32 s7, s6, 12")
    A(f"s_add_u32 s{sHo}, s{sHb}, s7")
    A(f"s_mul_i32 s{sWb}, s{sC}, 74")
    A(f"s_add_u32 s{sWb}, s{sWb}, s4")
    A(f"s_mul_i32 s{sWb}, s{sWb}, 5120")
    A(f"s_add_u32 s{sWb}, s{sWb}, {WS_W2}")
    A("s_mul_i32 s7, s5, 5120")
    A(f"s_add_u32 s{sWe}, s{sWb}, s7")
    A("s_mul_i32 s7, s6, 5120")
    A(f"s_add_u32 s{sWo}, s{sWb}, s7")


def ldW_groups(j):
    out = []
    pre = f"s_add_u32 s{sWo}, s{sWo}, s{sLast}\n" if j == NK - 1 else ""
    for nt in range(4):
        out.append((pre if nt == 0 else "") +
                   f"buffer_load_dwordx4 {vr(WQ[5*(j%WD)+nt])}, v{vL16}, {srd(S_WS)}, s{sWo} offen offset:{nt*1024}{HSC}")
    out.append(f"s_add_u32 s3, s{sWo}, 4096\n"
               f"buffer_load_dwordx4 {vr(WQ[5*(j%WD)+4])}, v{vL16}, {srd(S_WS)}, s3 offen{HSC}\n"
               f"s_add_u32 s{sWo}, s{sWo}, 5120\n"
               f"s_cmp_eq_u32 s{sWo}, s{sWe}\n"
               f"s_cselect_b32 s{sWo}, s{sWb}, s{sWo}")
    return out


def poll_flag(A, lab, addr_s, mask, target, vtmp):
    A(f"s_mov_b32 s{sSpin}, 0")
    A(f"v_mov_b32 v{vtmp+1}, 0")
    A.label(lab)
    A(f"buffer_load_dword v{vtmp}, v{vtmp+1}, {srd(S_WS)}, s{addr_s} offen sc1")
    A("s_waitcnt vmcnt(0)")
    A(f"v_readfirstlane_b32 s{sTmp3}, v{vtmp}")
    A(f"s_add_u32 s{sSpin}, s{sSpin}, 1")
    A(f"s_and_b32 s{sTmp3}, s{sTmp3}, {mask}")
    A(f"s_cmp_ge_u32 s{sTmp3}, {0 if OPT['P2ONLY'] else target}")
    A(f"s_cbranch_scc1 {lab}_ok")
    A(f"s_cmp_gt_u32 s{sSpin}, {SPIN_MAX}")
    A(f"s_cbranch_scc1 {lab}_ok")
    A(f"s_sleep {OPT['PSLEEP']}")
    A(f"s_branch {lab}")
    A.label(lab + "_ok")


def phase2(A):
    S_OUT = S_T
    ACC = 8
    acc = lambda nt, mt: ACC + 4 * (nt * 4 + mt)
    A.label("L_p2")
    mk_srd(A, S_OUT, P_OUT, 2048 * 1280)
    A(f"s_lshr_b32 s{sFl}, s{sRB64}, 1")
    A(f"s_lshl_b32 s{sFl}, s{sFl}, 8")
    A(f"s_add_u32 s{sFl}, s{sFl}, {WS_FL + FL_HC}")
    A.fence()
    A(f"s_cmp_ge_u32 s{sWave}, 4")
    A("s_cbranch_scc1 L2_ffn")

    def signal(n_younger):
        A(f"s_waitcnt vmcnt({n_younger}) lgkmcnt(0)")
        A("s_barrier")

    XR, OA, RA = 232, 238, 241

    def red_setup(A, ta, tb):
        for j in range(3):
            A(f"s_add_u32 s11, s{sWave}, {8*j}")
            A(f"s_lshr_b32 s12, s11, 2")
            A(f"s_and_b32 s13, s11, 3")
            A(f"s_lshl_b32 s14, s{sRB64}, 6")
            A(f"s_lshl_b32 s13, s13, 4")
            A("s_add_u32 s14, s14, s13")
            A("s_mul_i32 s14, s14, 1280")
            A(f"s_mul_i32 s15, s{sC}, 160")
            A("s_add_u32 s14, s14, s15")
            A("s_lshl_b32 s12, s12, 5")
            A("s_add_u32 s14, s14, s12")
            A("s_cmp_lt_u32 s11, 20")
            A(f"s_cselect_b32 s14, s14, {OOB}")
            A(f"v_and_b32 v{ta}, 15, v{vLane}")
            A(f"v_mul_u32_u24 v{ta}, 1280, v{ta}")
            A(f"v_lshrrev_b32 v{tb}, 4, v{vLane}")
            A(f"v_lshl_add_u32 v{ta}, v{tb}, 3, v{ta}")
            A(f"v_add_u32 v{OA+j}, s14, v{ta}")
            A(f"buffer_load_dwordx2 {vr(XR+2*j, 2)}, v{OA+j}, {srd(S_X)}, 0 offen")
            A("s_lshl_b32 s12, s11, 10")
            A(f"s_add_u32 s13, s12, {WO_LDS+5120}")
            A(f"v_add_u32 v{RA+5*j}, s13, v{vL16}")
            for f in range(4):
                A(f"s_add_u32 s13, s12, {KV_SLAB[f]}")
                A(f"s_add_u32 s14, s12, {WO_LDS + f*25600 - 14*1024}")
                A("s_cmp_lt_u32 s11, 14")
                A("s_cselect_b32 s13, s13, s14")
                A("s_cmp_lt_u32 s11, 19")
                A(f"s_cselect_b32 s13, s13, {28672 + f*1024}")
                A(f"v_add_u32 v{RA+5*j+1+f}, s13, v{vL16}")

    AD = 8
    RAW, NRAW = 56, 6
    FR = 80
    OSP = 96
    PQ = lambda mt, blk: 112 + 16 * blk + 4 * mt
    O = lambda u, mt: (OSP + 4 * mt) if u == 0 else PQ(mt, u - 1)
    DEN = 192
    NM = 224
    T = 192
    A(f"s_mul_i32 s8, s{sWave}, 14336")
    A(f"s_cmp_ge_u32 s{sWave}, 2")
    A(f"s_cselect_b32 s9, {135168 - 2*14336}, 0")
    A("s_add_u32 s8, s8, s9")
    for i in range(4):
        A(f"v_mov_b32 v{T+i}, 0")
    A(f"s_add_u32 s9, s8, 13440")
    A(f"v_mov_b32 v{vT2}, s9")
    A(f"ds_write_b128 v{vT2}, {vr(T)}")
    A(f"ds_write_b32 v{vT2}, v{T} offset:16")
    signal(0)
    A(f"s_cmp_lg_u32 s{sWave}, 0")
    A("s_cbranch_scc1 L2_nosig")
    A(f"buffer_atomic_add v{vSigV}, v{vSigA}, {srd(S_WS)}, 0 offen sc1")
    A.label("L2_nosig")
    stamp(A, 0, 1)
    if OPT["NOATT"]:
        A("s_branch L2_reduce")
    A(f"s_cmp_lg_u32 s{sWoDone}, 0")
    A("s_cbranch_scc1 L2_wodone")
    wo_setup(A)
    for g in wo_dmas():
        A(g)
    A.label("L2_wodone")
    A(f"s_mul_i32 s4, s{sWave}, 25600")
    A(f"s_add_u32 s4, s4, {WO_LDS}")
    iL, gL = T + 4, T + 5
    he = T + 12
    hd = T + 22
    ab, zb, hz = T + 6, T + 7, T + 8
    A(f"v_and_b32 v{iL}, 15, v{vLane}")
    A(f"v_lshrrev_b32 v{gL}, 4, v{vLane}")
    for Tt in range(10):
        A(f"v_add_u32 v{he+Tt}, {16*Tt}, v{iL}")
        A(f"v_mul_u32_u24 v{he+Tt}, 205, v{he+Tt}")
        A(f"v_lshrrev_b32 v{he+Tt}, 12, v{he+Tt}")
    for blk in range(5):
        for h in range(2):
            r = hd + 2 * blk + h
            A(f"v_lshlrev_b32 v{r}, 3, v{gL}")
            A(f"v_add_u32 v{r}, {32*blk+4*h}, v{r}")
            A(f"v_mul_u32_u24 v{r}, 205, v{r}")
            A(f"v_lshrrev_b32 v{r}, 12, v{r}")
    A(f"v_mul_u32_u24 v{ab}, 80, v{iL}")
    A(f"v_lshl_add_u32 v{ab}, v{gL}, 5, v{ab}")
    A(f"v_add_u32 v{ab}, s8, v{ab}")
    A(f"v_and_b32 v{hz}, 3, v{iL}")
    A(f"v_mul_u32_u24 v{zb}, 1600, v{hz}")
    A(f"v_lshl_add_u32 v{zb}, v{gL}, 5, v{zb}")
    A(f"v_add_u32 v{zb}, s8, v{zb}")
    NUM = {0: [0], 1: [0, 1], 2: [0, 1], 3: [1, 2], 4: [1, 2], 5: [2, 3], 6: [2, 3], 7: [3, 4], 8: [3, 4], 9: [4]}
    frs = []
    for ch in range(2):
        A(f"v_add_u32 v{T+9}, {4*ch}, v{hz}")
        bl = [0, 1, 2] if ch == 0 else [2, 3, 4]
        for blk in bl:
            n = len(frs)
            frs.append(("z", ch, blk, blk == bl[0], blk == bl[-1]))
            for h in range(2):
                a = AD + 2 * n + h
                A(f"v_cmp_eq_u32 vcc, v{T+9}, v{hd+2*blk+h}")
                A(f"v_add_u32 v{a}, {6400*ch+1600+128*blk+16*h}, v{zb}")
                A(f"v_cndmask_b32 v{a}, v{vT2}, v{a}, vcc")
        for Tt in range(5 * ch, 5 * ch + 5):
            for blk in NUM[Tt]:
                n = len(frs)
                frs.append(("n", Tt, blk, blk == NUM[Tt][0], blk == NUM[Tt][-1]))
                for h in range(2):
                    a = AD + 2 * n + h
                    A(f"v_cmp_eq_u32 vcc, v{he+Tt}, v{hd+2*blk+h}")
                    A(f"v_add_u32 v{a}, {1280*Tt+128*blk+16*h}, v{ab}")
                    A(f"v_cndmask_b32 v{a}, v{vT2}, v{a}, vcc")
    assert len(frs) == 24
    sM = 84
    for k in range(3):
        A(f"v_cmp_lt_u32 s[{sM+2*k}:{sM+2*k+1}], {k}, v{gL}")
    stamp(A, 7, 1, vt=vT0)
    A("s_setprio 3")
    A(f"s_lshr_b32 s10, s{sWave}, 1")
    A("s_lshl_b32 s10, 0x2000, s10")
    poll_flag(A, "L2_pq", sFl, "s10", "s10", vT0)
    stamp(A, 8, 1, vt=vT0)
    A(f"s_mul_i32 s6, s{sRB64}, 20")
    A(f"s_mul_i32 s7, s{sWave}, 5")
    A("s_add_u32 s6, s6, s7")
    A("s_lshl_b32 s6, s6, 12")
    A(f"s_add_u32 s6, s6, {WS_PQ}")
    for blk in range(5):
        for mt in range(4):
            A(f"buffer_load_dwordx4 {vr(PQ(mt, blk))}, v{vL16}, {srd(S_WS)}, s6 offen offset:{mt*1024} sc1")
        A(f"s_add_u32 s6, s6, 4096")
    A(f"s_lshl_b32 s6, s{sWave}, 3")
    A("s_and_b32 s7, s2, 7")
    A("s_add_u32 s6, s6, s7")
    A("s_lshl_b32 s6, s6, 8")
    A(f"s_add_u32 s6, s6, {WS_FL + FL_KV}")
    poll_flag(A, "L2_kv", 6, 0xff, 16, vT0)
    stamp(A, 3, 1, vt=vT0)
    A(f"s_mul_i32 s3, s{sWave}, 13440")
    A(f"s_add_u32 s3, s3, {WS_KVA}")
    for i in range(14):
        if i % 4 == 0:
            A(f"s_add_u32 m0, s8, {i*1024}")
            A(f"s_add_u32 s5, s3, {i*1024}")
        if i == 13:
            A("s_mov_b64 exec, 0xff")
        A(f"buffer_load_dwordx4 v{vL16}, {srd(S_WS)}, s5 offen offset:{(i%4)*1024} sc1 lds")
    A("s_mov_b64 exec, -1")
    A(f"s_setprio {OPT['APRIO']}")
    A("s_waitcnt vmcnt(7) lgkmcnt(0)")
    stamp(A, 9, 1, vt=vT0)
    raw = lambda k: RAW + 4 * (k % NRAW)
    fr = lambda n: FR + 4 * (n % 4)
    dst = lambda f, mt: (DEN + 8 * mt + 4 * f[1]) if f[0] == "z" else (NM + 16 * (f[1] % 2) + 4 * mt)

    def rd(n):
        if n == 12:
            A("s_waitcnt vmcnt(0)")
        for h in range(2):
            A(f"ds_read_b128 {vr(raw(2*n+h))}, v{AD+2*n+h}")

    def post(f):
        out = []
        if f[0] == "z":
            for mt in range(4):
                for i in range(4):
                    r = DEN + 8 * mt + 4 * f[1] + i
                    out.append(f"v_add_f32 v{r}, {f32(1e-6)}, v{r}")
            for mt in range(4):
                for i in range(4):
                    r = DEN + 8 * mt + 4 * f[1] + i
                    out.append(f"v_rcp_f32 v{r}, v{r}")
            return out
        Tt = f[1]
        lo, hi = (4 * Tt) // 5, (4 * Tt + 3) // 5
        sl = {}
        for mt in range(4):
            if lo == hi:
                sl[mt] = DEN + 8 * mt + lo
            else:
                thr = 5 * hi - 4 * Tt
                sl[mt] = AD + mt
                out.append(f"v_cndmask_b32 v{sl[mt]}, v{DEN+8*mt+lo}, v{DEN+8*mt+hi}, s[{sM+2*(thr-1)}:{sM+2*(thr-1)+1}]")
        for mt in range(4):
            d = dst(f, mt)
            for i in range(4):
                out.append(f"v_mul_f32 v{d+i}, v{d+i}, v{sl[mt]}")
        for mt in range(4):
            d = dst(f, mt)
            ob = O(Tt // 2, mt) + 2 * (Tt % 2)
            out.append(f"v_cvt_pk_bf16_f32 v{ob}, v{d}, v{d+1}")
            out.append(f"v_cvt_pk_bf16_f32 v{ob+1}, v{d+2}, v{d+3}")
        return out
    rd(0)
    rd(1)
    pend = []
    nxt = []
    for n in range(26):
        if n + 2 < 24:
            rd(n + 2)
        cv = []
        if n < 24:
            A(f"s_waitcnt lgkmcnt({2*min(2, 23-n)})")
            for h in range(2):
                cv.append(f"v_cvt_pk_bf16_f32 v{fr(n)+2*h}, v{raw(2*n+h)}, v{raw(2*n+h)+1}")
                cv.append(f"v_cvt_pk_bf16_f32 v{fr(n)+2*h+1}, v{raw(2*n+h)+2}, v{raw(2*n+h)+3}")
        mf = []
        if 1 <= n <= 24:
            f = frs[n - 1]
            if f[3] and f[0] == "n":
                need = [x for x in pend if x[0] <= f[1] - 2]
                for x in need:
                    A(x[1])
                pend = [x for x in pend if x[0] > f[1] - 2]
            for mt in range(4):
                d = vr(dst(f, mt))
                mf.append(f"v_mfma_f32_16x16x32_bf16 {d}, {vr(fr(n-1))}, {vr(PQ(mt, f[2]))}, {0 if f[3] else d}")
        take = pend[:14]
        pend = pend[14:]
        work = cv + [x[1] for x in take]
        for g in (interleave(mf, work) if mf else work):
            A(g)
        pend += nxt
        nxt = []
        if 1 <= n <= 24 and frs[n - 1][4]:
            f = frs[n - 1]
            nxt = [((f[1] if f[0] == "n" else 5 * f[1] - 0.5), x) for x in post(f)]
    for x in pend + nxt:
        A(x[1])
    stamp(A, 11, 1, vt=vT0)
    A(f"s_setprio {OPT['APRIO2']}")
    WF = 192
    A(f"v_add_u32 v{vT0}, s4, v{vL16}")
    A.fence()

    rd_wo = lambda u: [f"ds_read_b128 {vr(WF+20*(u%2)+4*nt)}, v{vT0} offset:{(u*5+nt)*1024}" for nt in range(5)]
    E = Asm()
    red_setup(E, vSigA, vSigV)
    rs = [t for _, t in E.lines]
    for g in rd_wo(0):
        A(g)
    for u in range(5):
        A("s_waitcnt lgkmcnt(0)")
        if u == 0:
            A(f"v_mov_b32 v{vT1}, 1")
            A(f"ds_write_b32 v{vT2}, v{vT1} offset:16")
        mf = []
        for nt in range(5):
            for mt in range(4):
                d = vr(acc(nt, mt))
                mf.append(f"v_mfma_f32_16x16x32_bf16 {d}, {vr(WF+20*(u%2)+4*nt)}, {vr(O(u, mt))}, {d if u else 0}")
        k = (len(rs) + 3) // 4
        for g in interleave(mf, (rd_wo(u + 1) if u < 4 else [], 0.2, 0.6), rs[u*k:(u+1)*k]):
            A(g)
    stamp(A, 1, 1, vt=vSigA)
    A.fence()
    for t in range(20):
        A(f"ds_write_b128 v{vT0}, {vr(ACC+4*t)} offset:{5120+t*1024}")
    A("s_branch L2_reduce")

    A.label("L2_ffn")
    q = []

    def ldW(j):
        for g in ldW_groups(j):
            A(g)
        q.extend([("W", j)] * 5)

    def ldH1(j, mt):
        if j == NK - 1 and mt == 0:
            A(f"s_add_u32 s{sHo}, s{sHo}, s{sLast}")
        A(f"buffer_load_dwordx4 {vr(HQ[4*(j%HD)+mt])}, v{vL16}, {srd(S_WS)}, s{sHo} offen offset:{mt*1024}{HSC}")
        if mt == 3:
            A(f"s_add_u32 s{sHo}, s{sHo}, 4096")
            A(f"s_cmp_eq_u32 s{sHo}, s{sHe}")
            A(f"s_cselect_b32 s{sHo}, s{sHb}, s{sHo}")
        q.append(("H", j, mt))

    def ldH(j):
        for mt in range(4):
            ldH1(j, mt)
    signal(0)
    A(f"s_cmp_lg_u32 s{sWoDone}, 0")
    A("s_cbranch_scc1 L2_ws")
    ffn_setup(A)
    A.label("L2_ws")
    A(f"s_sub_u32 s10, s{sWave}, 4")
    A("s_lshl_b32 s10, s10, 1")
    A("s_lshl_b32 s10, 7, s10")
    A(f"v_mov_b32 v{vT1}, 0")
    A(f"s_cmp_gt_u32 s{sWoDone}, 1")
    A("s_cbranch_scc1 L2_w0")
    ldW(0)
    ldW(1)
    A.label("L2_w0")
    assert OPT["NPRE"] == 2
    for j in range(2, WD):
        if j == OPT["EPOLL"]:
            A(f"buffer_load_dword v{vT2}, v{vT1}, {srd(S_WS)}, s{sFl} offen sc1")
        ldW(j)
    if OPT["EPOLL"]:
        A(f"s_waitcnt vmcnt({5*(WD-OPT['EPOLL'])})")
        A(f"v_readfirstlane_b32 s{sTmp3}, v{vT2}")
        A(f"s_and_b32 s{sTmp3}, s{sTmp3}, s10")
        A(f"s_cmp_eq_u32 s{sTmp3}, s10")
        A(f"s_cbranch_scc1 L2_h_ok")
    stamp(A, 4, 1, wave=4, vt=vT0)
    poll_flag(A, "L2_h", sFl, "s10", "s10", vT0)
    stamp(A, 5, 1, wave=4, vt=vT0)
    stamp(A, 14, 1, wave=4, vt=vT0, clk=True)
    q.clear()
    for j in range(HD):
        ldH(j)
    A(f"s_setprio {OPT['FPRIO']}")
    later = []
    for j in range(NK):
        for mt in range(4):
            last = max(i for i, e in enumerate(q) if e[1] == j and (e[0] == "W" or e[2] <= mt))
            A(f"s_waitcnt vmcnt({len(q)-1-last})")
            for nt in range(5):
                d = vr(AQ[nt*4+mt])
                if not OPT["NOMF"]: A(f"v_mfma_f32_16x16x32_bf16 {d}, {vr(WQ[5*(j%WD)+nt])}, {vr(HQ[4*(j%HD)+mt])}, {d if j else 0}")
            for fn in later:
                fn()
            later = []
            if j + HD < NK:
                later.append(lambda j=j, mt=mt: ldH1(j + HD, mt))
        if j + WD < NK:
            later.append(lambda j=j: ldW(j + WD))
    A("s_setprio 0")
    stamp(A, 6, 1, wave=4, vt=vT0)
    stamp(A, 15, 1, wave=4, vt=vT0, clk=True)
    A("s_waitcnt vmcnt(0)")
    red_setup(A, vSigA, vSigV)
    A(f"s_sub_u32 s3, s{sWave}, 4")
    A("s_mul_i32 s8, s3, 14336")
    A("s_cmp_ge_u32 s3, 2")
    A(f"s_cselect_b32 s9, {135168 - 2*14336}, 0")
    A("s_add_u32 s8, s8, s9")
    A(f"v_add_u32 v{vT0}, s8, v{vL16}")
    A("s_add_u32 s9, s8, 13456")
    A(f"v_mov_b32 v{vT2}, s9")
    A(f"s_mov_b32 s{sSpin}, 0")
    A.label("L2_wfree")
    A(f"ds_read_b32 v{vT1}, v{vT2}")
    A("s_waitcnt lgkmcnt(0)")
    A(f"v_readfirstlane_b32 s9, v{vT1}")
    A(f"s_add_u32 s{sSpin}, s{sSpin}, 1")
    A("s_cmp_eq_u32 s9, 1")
    A("s_cbranch_scc1 L2_wfree_ok")
    A(f"s_cmp_gt_u32 s{sSpin}, {SPIN_MAX*16}")
    A("s_cbranch_scc1 L2_wfree_ok")
    A("s_sleep 2")
    A("s_branch L2_wfree")
    A.label("L2_wfree_ok")
    A("s_mul_i32 s8, s3, 25600")
    A(f"s_add_u32 s8, s8, {WO_LDS}")
    A(f"v_add_u32 v{vT1}, s8, v{vL16}")
    A("s_lshl_b32 s8, s3, 10")
    A(f"v_add_u32 v{vT2}, s8, v{vL16}")
    for t in range(20):
        if t < 14:
            A(f"ds_write_b128 v{vT0}, {vr(AQ[t])} offset:{t*1024}")
        elif t < 19:
            A(f"ds_write_b128 v{vT1}, {vr(AQ[t])} offset:{(t-14)*1024}")
        else:
            A(f"ds_write_b128 v{vT2}, {vr(AQ[t])} offset:28672")

    A.label("L2_reduce")
    if OPT["DLY"] == 5:
        A("s_sleep 30")
    A("s_setprio 0")
    A("s_waitcnt lgkmcnt(0)")
    stamp(A, 12, 1, vt=vSigA)
    A("s_barrier")
    stamp(A, 13, 1, vt=vSigA)
    R = lambda j: 8 + 32 * j

    def rds(j):
        A(f"v_add_u32 v{vT0}, {2*25600}, v{RA+5*j}")
        for w in range(4):
            A(f"ds_read_b128 {vr(R(j)+4*w)}, v{RA+5*j if w < 2 else vT0} offset:{(w%2)*25600}")
        for f in range(4):
            A(f"ds_read_b128 {vr(R(j)+16+4*f)}, v{RA+5*j+1+f}")

    def fin(j):
        r = R(j)
        for st in (16, 8, 4):
            for i in range(0, st, 2):
                pk_mul(A, r + i, ("p", r + i), ("p", r + st + i), op="add")
        x0, x1 = XR + 2 * j, XR + 2 * j + 1
        A(f"v_lshlrev_b32 v{r+4}, 16, v{x0}")
        A(f"v_and_b32 v{r+5}, 0xffff0000, v{x0}")
        A(f"v_lshlrev_b32 v{r+6}, 16, v{x1}")
        A(f"v_and_b32 v{r+7}, 0xffff0000, v{x1}")
        for i in range(0, 4, 2):
            pk_mul(A, r + i, ("p", r + i), ("p", r + 4 + i), op="add")
        A(f"v_cvt_pk_bf16_f32 v{x0}, v{r}, v{r+1}")
        A(f"v_cvt_pk_bf16_f32 v{x1}, v{r+2}, v{r+3}")
        A(f"buffer_store_dwordx2 {vr(x0, 2)}, v{OA+j}, {srd(S_OUT)}, 0 offen" + ["", " sc1", " nt"][OPT["OUTSC"]])
    rds(0)
    rds(1)
    A("s_waitcnt vmcnt(0) lgkmcnt(8)")
    fin(0)
    A(f"s_cmp_ge_u32 s{sWave}, 4")
    A("s_cbranch_scc1 L2_last")
    rds(2)
    A("s_waitcnt lgkmcnt(0)")
    fin(2)
    A.label("L2_last")
    A("s_waitcnt lgkmcnt(0)")
    fin(1)
    A.label("L2_done")
    stamp(A, 2, 1, vt=vSigA)


def descriptor(name, vgpr=256):
    return f""".amdhsa_kernel {name}
  .amdhsa_next_free_vgpr {vgpr}
  .amdhsa_next_free_sgpr 102
  .amdhsa_accum_offset {vgpr}
  .amdhsa_group_segment_fixed_size 0
  .amdhsa_kernarg_size 80
  .amdhsa_user_sgpr_count 2
  .amdhsa_user_sgpr_kernarg_segment_ptr 1
  .amdhsa_system_sgpr_workgroup_id_x 1
.end_amdhsa_kernel
"""


def probe(A):
    A(".p2align 8")
    A.label("pre_kernel")
    if OPT["PROBE"] in (4, 5):
        A("s_cmp_ge_u32 s2, 64")
        A("s_cbranch_scc1 L_pre_exit")
        load_ptrs(A)
        A("s_lshr_b32 s3, s2, 3")
        A("s_lshl_b32 s3, s3, 9")
        A("v_add_u32 v1, s3, v0")
        A("v_lshlrev_b32 v1, 12, v1")
        A("s_waitcnt lgkmcnt(0)")
        lst = ((P_WS, WS_SIZE), (P_OUT, 2048*1280))
        if OPT["PROBE"] == 5:
            lst += ((P_X, 2048*1280), (P_WQKV, 640*3840), (P_WO, 640*1280), (P_G, 640*3456), (P_U, 640*3456), (P_D, 1728*1280))
        for k, (p, n) in enumerate(lst):
            mk_srd(A, 36 + 4*k, p, n)
            A(f"buffer_load_dword v{2+k}, v1, {srd(36+4*k)}, 0 offen")
        A("s_waitcnt vmcnt(0)")
        A.label("L_pre_exit")
    if OPT["PROBE"] == 2:
        A("s_cmp_ge_u32 s2, 256")
        A("s_cbranch_scc1 L_pre_exit")
        load_ptrs(A)
        A("s_lshl_b32 s3, s2, 9")
        A("v_add_u32 v1, s3, v0")
        A("v_lshlrev_b32 v1, 5, v1")
        A("s_waitcnt lgkmcnt(0)")
        for k, (p, n) in enumerate(((P_X, 2048*1280), (P_WQKV, 640*3840), (P_WO, 640*1280), (P_G, 640*3456), (P_U, 640*3456), (P_D, 1728*1280))):
            mk_srd(A, 36 + 4*k, p, n)
            A(f"buffer_load_dword v{2+k}, v1, {srd(36+4*k)}, 0 offen")
        A("s_waitcnt vmcnt(0)")
        A.label("L_pre_exit")
    A("s_endpgm")


def main():
    A = Asm()
    kernel1(A)
    K = NAME + "_kernel"
    launch = f"; @launch grid=(256,1,1) block=(512,1,1) lds={LDS_TOTAL}"
    extra = ""
    if OPT["PROBE"]:
        probe(A)
        launch = f"; @launch kernel=pre_kernel grid=(256,1,1) block=(512,1,1) lds=0\n; @launch kernel={K} grid=(256,1,1) block=(512,1,1) lds={LDS_TOTAL}"
        if OPT["PROBE"] == 3:
            launch = f"; @launch kernel={K} grid=(256,1,1) block=(512,1,1) lds={LDS_TOTAL}\n; @launch kernel={K} grid=(256,1,1) block=(512,1,1) lds={LDS_TOTAL}"
        extra = ".p2align 6\n" + descriptor("pre_kernel", 16)
    head = f"""; LN + linear attention + GEGLU FFN, one persistent launch (generated by dev/gen.py)
{launch}
.amdgcn_target "amdgcn-amd-amdhsa--gfx950"
.text
.globl {K}
.type {K},@function
"""
    tail = '.section .rodata,"a"\n.p2align 6\n' + descriptor(K) + extra
    open(sys.argv[1], "w").write(head + A.render() + tail)


main()
```

```python
import sys, struct, math
from asmlib import Asm, interleave

NAME = "parallel_sum__linear_attn_block__geglu_ffn__prompt"

OPT = dict(ROTQ=1, STAMP=0, NODMA=0, SAME=0, NOSWZ=0, NORD=0, P2ROT=1, WARM=1, PLAIN=0, BYTEFLAG=0, NBUP=6, SW=0, P2ONLY=0, P2SAME=0, NOATT=0, NOMF=0, FPRIO=1, NPRE=2, CGPERM=0, OUTSC=0, CODEWARM=2, TLBWARM=0, PUBST=0, GPK=1, APRIO=2, APRIO2=0, FINEH=1, XMAP=0, FAKE16=0, PSLEEP=2, EPOLL=0, PROBE=0, WOEPI=0, NXA=0, XPOS=1, G16=1, DLY=0, KV1=0, AUXWARM=5, AUXFIRST=1)
for a in sys.argv[2:]:
    k, v = a.split("=")
    OPT[k] = int(v)

OPT_WOEPI = ['', 'K', 'KQ', 'KQG'][OPT['WOEPI']]
HSC = '' if OPT['PLAIN'] else ' sc1'
WS_H = 0x000000
WS_PQ = 0x700000
WS_W2 = 0xA00000
WS_ST = 0xD00000
WS_CS = 0xD10000
WS_KVA = 0xD80000
WS_FL = 0xD90000
FL_HC = 0
FL_KV = 16 * 256
FL_ROW = 128
WS_STAMP = 0xF00000
WS_SIZE = 0x1000000
OOB = 0x40000000


def f32(x):
    return "0x%08x" % struct.unpack("<I", struct.pack("<f", x))[0]


LOG2E = 1.4426950408889634
GC1 = -2.0 * math.sqrt(2.0 / math.pi) * LOG2E
GC2 = GC1 * 0.044715

P_X, P_WQKV, P_WO, P_BX, P_G, P_U, P_D, P_OUT, P_DBG, P_WS = 16, 18, 20, 22, 24, 26, 28, 30, 32, 34
S_X, S_W, S_WS, S_DBG, S_T = 36, 40, 44, 48, 52


def srd(b):
    return f"s[{b}:{b+3}]"


def vr(b, n=4):
    return f"v[{b}:{b+n-1}]"


def mk_srd(A, s, p, nbytes):
    A(f"s_mov_b32 s{s}, s{p}")
    A(f"s_and_b32 s{s+1}, s{p+1}, 0xffff")
    A(f"s_mov_b32 s{s+2}, {nbytes}")
    A(f"s_mov_b32 s{s+3}, 0x20000")


def load_ptrs(A):
    A("s_load_dwordx16 s[16:31], s[0:1], 0")
    A("s_load_dwordx4 s[32:35], s[0:1], 64")


def wave_allreduce_add(A, v, t, s0):
    A(f"v_add_f32_dpp v{v}, v{v}, v{v} quad_perm:[1,0,3,2] row_mask:0xf bank_mask:0xf")
    A(f"v_add_f32_dpp v{v}, v{v}, v{v} quad_perm:[2,3,0,1] row_mask:0xf bank_mask:0xf")
    A(f"v_add_f32_dpp v{v}, v{v}, v{v} row_half_mirror row_mask:0xf bank_mask:0xf")
    A(f"v_add_f32_dpp v{v}, v{v}, v{v} row_mirror row_mask:0xf bank_mask:0xf")
    for i in range(4):
        A(f"v_readlane_b32 s{s0+i}, v{v}, {16*i}")
    A(f"v_mov_b32 v{v}, s{s0}")
    A(f"v_mov_b32 v{t}, s{s0+2}")
    A(f"v_add_f32 v{v}, s{s0+1}, v{v}")
    A(f"v_add_f32 v{t}, s{s0+3}, v{t}")
    A(f"v_add_f32 v{v}, v{v}, v{t}")


def lstamp(A, k):
    if OPT["STAMP"] != 4:
        return
    A("s_memrealtime s[96:97]")
    A("s_waitcnt lgkmcnt(0)")
    A(f"v_writelane_b32 v28, s96, {k}")


def cstamp(A, k):
    if OPT["STAMP"] != 7:
        return
    A("s_memtime s[96:97]\ns_waitcnt lgkmcnt(0)\n" + f"v_writelane_b32 v48, s96, {k}")


def stamp(A, idx, kern, dyn=None, clk=False, wave=0, vt=None):
    if vt is None:
        vt = (26 if idx != 3 else 50) if kern == 0 else 254
    if not OPT["STAMP"]:
        return
    if OPT["STAMP"] == 8:
        slot = {(0, 0): 2, (0, 1): 4, (0, 2): 6, (0, 3): 8, (1, 3): 10, (1, 1): 12, (1, 2): 14}.get((kern, idx))
        if slot is None or clk or wave != 0:
            return
        lab = f"L_st_{kern}_{idx}_{len(A.lines)}"
        A(f"s_or_b32 s98, s{sWave}, s2")
        A("s_cmp_lg_u32 s98, 0")
        A(f"s_cbranch_scc1 {lab}")
        A("s_memrealtime s[96:97]")
        A("s_memtime s[98:99]")
        A("s_waitcnt lgkmcnt(0)")
        A(f"v_mov_b32 v{vt}, s96")
        A(f"buffer_store_dword v{vt}, off, {srd(S_DBG)}, 0 offset:{slot*4}")
        A(f"v_mov_b32 v{vt+1}, s98")
        A(f"buffer_store_dword v{vt+1}, off, {srd(S_DBG)}, 0 offset:{slot*4+4}")
        A.label(lab)
        return
    if OPT["STAMP"] == 9:
        slot = {(0, 0): (1, True), (0, 1): (2, False), (0, 2): (3, False), (0, 3): (5, False), (1, 0): (6, False), (1, 5): (7, False),
                (1, 3): (9, False), (1, 1): (10, False), (1, 2): (11, False), (1, 6): (13, False)}.get((kern, idx))
        if slot is None or clk:
            return
        lab = f"L_st_{kern}_{idx}_{len(A.lines)}"
        A(f"s_cmp_lg_u32 s{sWave}, {wave}")
        A(f"s_cbranch_scc1 {lab}")
        A("s_memrealtime s[96:97]")
        A("s_waitcnt lgkmcnt(0)")
        if slot[1]:
            A("s_not_b32 s96, s96")
        A(f"v_mov_b32 v{vt}, s96")
        A(f"v_mov_b32 v{vt+1}, {OOB}")
        A(f"v_writelane_b32 v{vt+1}, {slot[0]*4}, 0")
        A(f"buffer_atomic_umax v{vt}, v{vt+1}, {srd(S_DBG)}, 0 offen sc1")
        A.label(lab)
        return
    lab = f"L_st_{kern}_{idx}_{len(A.lines)}"
    A(f"s_cmp_lg_u32 s{sWave}, {wave}")
    A(f"s_cbranch_scc1 {lab}")
    A("s_memtime s[96:97]" if clk else "s_memrealtime s[96:97]")
    A("s_waitcnt lgkmcnt(0)")
    A(f"s_lshl_b32 s98, s2, 6")
    A(f"s_add_u32 s98, s98, {WS_STAMP + kern*0x8000 + idx*4}")
    if dyn is not None:
        A(f"s_lshl_b32 s99, s{dyn}, 2")
        A("s_add_u32 s98, s98, s99")
    A(f"v_mov_b32 v{vt}, s96")
    A(f"v_mov_b32 v{vt+1}, 0")
    A(f"buffer_store_dword v{vt}, v{vt+1}, {srd(S_WS)}, s98 offen")
    A.label(lab)


sWave, sRB, sCG, sIt, sKW, sKWn, sKX, sKXn, sWslot, sRslot, sXslot, sStepW, sCSit, sSpec, sTmp, sTmp2, sMW, sNW, sWrapW, sTmp3, sC0, sRow, sSpin, sOdd, sPub, sUw, sUl = range(56, 83)
X_LDS = 0
W_LDS = 32768
W_SLOT = 24576
MISC_LDS = W_LDS + 5 * W_SLOT
LDS_TOTAL = 163840
KV_CS = MISC_LDS
KV_ST = MISC_LDS + 2048

vLane, vT0, vT1, vT2, vT3 = 1, 2, 3, 4, 5
vSigA, vSigV = 6, 7
vXo = 6
vWo = 8
vXa = 11
vWb = 15
vWa = 20
vPa = 25
SPIN_MAX = 0x100000
vSel = 52
vPoll = 30
vCSA = 32
vCSP = 32
vSt = 31
KST = lambda j: (44 + 4 * j) if j < 3 else (232 + 4 * (j - 3))
vBUF = 56
vACC = 152


KVT = [[(0, 0), (0, 1), (0, 2), (1, 0), (1, 1)], [(0, 3), (0, 4), (1, 2), (1, 3), (1, 4)]]


def k1_gemm(A, typ):
    G = typ == "G"
    MT = 2 if G else 1
    NT = 3 if G else 5
    NW_ = 6 if G else 5
    pitch = 3456 if G else 3840
    XB = lambda P, mt, kk: vBUF + 48 * P + 4 * (mt * 2 + kk)
    WBf = lambda P, a, kk: vBUF + 48 * P + 4 * MT * 2 + 4 * (a * 2 + kk)
    acc = lambda mt, a: vACC + 16 * (mt * NT + a)
    L = lambda s: f"L_{typ}_{s}"
    S16 = G and OPT["G16"]
    sel = 248 if S16 else vSel
    NCS = 6 if S16 else NT

    if G:
        A(f"s_lshr_b32 s{sMW}, s{sWave}, 2")
        A(f"s_and_b32 s{sNW}, s{sWave}, 3")
        mk_srd(A, S_W, P_G, 640 * 3456)
        mk_srd(A, S_T, P_U, 640 * 3456)
    else:
        A(f"s_lshr_b32 s{sMW}, s{sWave}, 1")
        A(f"s_and_b32 s{sNW}, s{sWave}, 1")
        mk_srd(A, S_W, P_WQKV, 640 * 3840)
    A(f"s_and_b32 s{sTmp2}, s{sWave}, 3")
    A(f"v_lshrrev_b32 v{vT0}, 3, v{vLane}")
    A(f"s_lshl_b32 s{sTmp3}, s{sTmp2}, 3")
    A(f"v_add_u32 v{vT0}, s{sTmp3}, v{vT0}")
    A(f"v_mul_u32_u24 v{vT0}, {pitch}, v{vT0}")
    A(f"v_and_b32 v{vT1}, 7, v{vLane}")
    A(f"v_lshrrev_b32 v{vT2}, 2, v{vLane}")
    A(f"v_and_b32 v{vT2}, 4, v{vT2}")
    A(f"v_xor_b32 v{vT1}, v{vT1}, v{vT2}")
    if G:
        A(f"s_mul_i32 s{sTmp3}, s{sCG}, {0 if OPT['SAME'] else 384}")
        A(f"v_add_u32 v{vT0}, s{sTmp3}, v{vT0}")
        if S16:
            A(f"s_and_b32 s{sTmp3}, s{sWave}, 1")
            A(f"s_lshl_b32 s{sTmp3}, s{sTmp3}, 1")
            A(f"v_xor_b32 v{vT1}, s{sTmp3}, v{vT1}")
        A(f"v_lshl_add_u32 v{vWo}, v{vT1}, 4, v{vT0}")
        if not S16:
            A(f"v_xor_b32 v{vT1}, 2, v{vT1}")
        A(f"v_lshl_add_u32 v{vWo+1}, v{vT1}, 4, v{vT0}")
        chunks = [(S_W, vWo, 0), (S_W, vWo, 128), (S_W, vWo, 256), (S_T, vWo + 1, 0), (S_T, vWo + 1, 128), (S_T, vWo + 1, 256)]
    elif typ == "Q":
        A(f"s_sub_u32 s{sTmp3}, s{sCG}, 13")
        A(f"s_mul_i32 s{sTmp3}, s{sTmp3}, 640")
        A(f"v_add_u32 v{vT0}, s{sTmp3}, v{vT0}")
        A(f"v_lshl_add_u32 v{vWo}, v{vT1}, 4, v{vT0}")
        chunks = [(S_W, vWo, 128 * i) for i in range(5)]
    else:
        A(f"s_sub_u32 s4, s{sCG}, 9")
        A(f"s_and_b32 s{sOdd}, s4, 1")
        A(f"s_mul_i32 s6, s4, 320")
        A(f"s_add_u32 s6, s6, 1280")
        A(f"s_lshl_b32 s7, s{sOdd}, 6")
        A(f"s_add_u32 s7, s7, s6")
        A(f"s_cmp_eq_u32 s{sOdd}, 0")
        A(f"s_cselect_b32 s8, 256, 0")
        A(f"s_add_u32 s8, s8, s6")
        A(f"v_lshl_add_u32 v{vT2}, v{vT1}, 4, v{vT0}")
        A(f"v_add_u32 v{vWo}, s7, v{vT2}")
        A(f"v_xor_b32 v{vT3}, 2, v{vT1}")
        A(f"v_lshl_add_u32 v{vT2}, v{vT3}, 4, v{vT0}")
        A(f"v_add_u32 v{vWo+2}, s7, v{vT2}")
        A(f"v_lshrrev_b32 v{vT2}, 2, v{vT1}")
        A(f"v_lshlrev_b32 v{vT3}, 1, v{vT2}")
        A(f"v_xor_b32 v{vT3}, v{vT3}, v{vT1}")
        A(f"v_and_b32 v{vT3}, 3, v{vT3}")
        A(f"v_lshl_add_u32 v{vT3}, v{vT3}, 4, v{vT0}")
        A(f"v_mul_u32_u24 v{vT2}, 1280, v{vT2}")
        A(f"v_add3_u32 v{vWo+1}, v{vT3}, v{vT2}, s8")
        chunks = [(S_W, vWo, 0), (S_W, vWo, 128), (S_W, vWo + 2, 1280), (S_W, vWo + 2, 1408), (S_W, vWo + 1, 0)]
    A(f"s_lshr_b32 s{sTmp}, s{sWave}, 2")
    A(f"s_lshl_b32 s{sTmp2}, s{sTmp2}, 10")
    A(f"s_add_u32 s{sWrapW}, s{sTmp2}, {W_LDS + 5*W_SLOT}")
    A(f"s_mul_i32 s{sWslot}, s{sTmp}, {W_SLOT}")
    A(f"s_add_u32 s{sWslot}, s{sWslot}, s{sTmp2}")
    A(f"s_add_u32 s{sWslot}, s{sWslot}, {W_LDS}")
    A(f"s_mul_i32 s{sKW}, s{sC0}, {64*pitch}")
    A(f"s_mul_i32 s{sTmp}, s{sTmp}, {32*pitch}")
    A(f"s_add_u32 s{sKW}, s{sKW}, s{sTmp}")
    A(f"s_mov_b32 s{sKWn}, 0")

    def dmaW():
        out = []
        for i, (sr, vo, imm) in enumerate(chunks):
            out.append(f"s_add_u32 m0, s{sWslot}, {i*4096 - imm}\n" +
                       "s_nop 0\n" +
                       f"buffer_load_dwordx4 v{vo}, {srd(sr)}, s{sKW} offen offset:{imm} lds")
        out.append(f"s_add_u32 s{sWslot}, s{sWslot}, {2*W_SLOT}\n"
                   f"s_cmp_ge_u32 s{sWslot}, s{sWrapW}\n"
                   f"s_cselect_b32 s{sTmp}, {5*W_SLOT}, 0\n"
                   f"s_sub_u32 s{sWslot}, s{sWslot}, s{sTmp}\n"
                   f"s_add_u32 s{sKW}, s{sKW}, {64*pitch}\n"
                   f"s_cmp_ge_u32 s{sKW}, {640*pitch}\n"
                   f"s_cselect_b32 s{sTmp}, {640*pitch}, 0\n"
                   f"s_sub_u32 s{sKW}, s{sKW}, s{sTmp}")
        return out

    def dmaX():
        out = []
        for i in range(4):
            out.append(f"s_add_u32 m0, s{sXslot}, {i*1024}\n" +
                       f"s_add_u32 s{sTmp}, s{sKX}, {16*1280}\n" +
                       f"buffer_load_dwordx4 v{vXo+i%2}, {srd(S_X)}, s{sKX if i < 2 else sTmp} offen lds")
        out.append(f"s_xor_b32 s{sXslot}, s{sXslot}, 16384\n"
                   f"s_add_u32 s{sKX}, s{sKX}, 128\n"
                   f"s_cmp_eq_u32 s{sKX}, 1280\n"
                   f"s_cselect_b32 s{sKX}, 0, s{sKX}")
        return out

    A(f"s_cmp_lt_u32 s{sWave}, 4")
    A(f"s_cbranch_scc1 {L('p1')}")
    for g in dmaX():
        A(g)
    A(f"s_branch {L('p2')}")
    A.label(L("p1"))
    for g in dmaW():
        A(g)
    A.label(L("p2"))
    lstamp(A, 16)

    if OPT["STAMP"] == 3:
        stamp(A, 4, 0, wave=OPT["SW"])
    if S16:
        A(f"v_and_b32 v{vT0}, 15, v{vLane}")
        A(f"v_lshrrev_b32 v{vT1}, 4, v{vLane}")
        A(f"v_bfe_u32 v{vT2}, v{vLane}, 1, 3")
        A(f"v_xor_b32 v{vT1}, v{vT1}, v{vT2}")
        A(f"s_lshl_b32 s{sTmp}, s{sMW}, 13")
        A(f"v_lshl_add_u32 v{vT0}, v{vT0}, 7, s{sTmp}")
        for kap in range(2):
            A(f"v_xor_b32 v{vT2}, {4*kap}, v{vT1}")
            A(f"v_lshl_add_u32 v{vXa+2*kap}, v{vT2}, 4, v{vT0}")
            A(f"v_add_u32 v{vXa+2*kap+1}, 2048, v{vXa+2*kap}")
    else:
        A(f"v_and_b32 v{vT0}, 31, v{vLane}")
        A(f"v_lshrrev_b32 v{vT1}, 5, v{vLane}")
        A(f"v_bfe_u32 v{vT2}, v{vLane}, 1, 3")
        A(f"v_xor_b32 v{vT1}, v{vT1}, v{vT2}")
        A(f"s_lshl_b32 s{sTmp}, s{sMW}, {13 if G else 12}")
        A(f"v_lshl_add_u32 v{vT0}, v{vT0}, 7, s{sTmp}")
        for kap in range(2):
            for kk in range(2):
                A(f"v_xor_b32 v{vT2}, {4*kap+2*kk}, v{vT1}")
                A(f"v_lshl_add_u32 v{vXa+2*kap+kk}, v{vT2}, 4, v{vT0}")
    A(f"v_lshrrev_b32 v{vT0}, {4 if S16 else 5}, v{vLane}")
    A(f"v_lshlrev_b32 v{vT0}, 10, v{vT0}")
    A(f"v_bfe_u32 v{vT1}, v{vLane}, 2, 2")
    A(f"v_lshl_add_u32 v{vT0}, v{vT1}, 7, v{vT0}")
    A(f"v_and_b32 v{vT2}, 3, v{vLane}")
    if typ != "K" and not S16:
        A(f"v_lshlrev_b32 v{vT3}, 1, v{vT2}")
        A(f"v_lshrrev_b32 v{vT2}, 1, v{vT2}")
        A(f"v_and_b32 v{vT3}, 2, v{vT3}")
        A(f"v_or_b32 v{vT2}, v{vT2}, v{vT3}")
    A(f"v_lshl_add_u32 v{vT0}, v{vT2}, 3, v{vT0}")
    A(f"v_and_b32 v{vT1}, 2, v{vT1}")
    A(f"v_bfe_u32 v{vT2}, v{vLane}, 4, 1")
    A(f"v_xor_b32 v{vT1}, v{vT1}, v{vT2}")
    if G:
        if not S16:
            A(f"v_mul_u32_u24 v{vT2}, {3*4096}, v{vT2}")
            A(f"v_add_u32 v{vT0}, v{vT0}, v{vT2}")
        for a in range(3):
            A(f"s_mul_i32 s{sTmp}, s{sNW}, 3")
            A(f"s_add_u32 s{sTmp}, s{sTmp}, {a}")
            A(f"s_lshr_b32 s{sTmp2}, s{sTmp}, 2")
            A(f"s_lshl_b32 s{sTmp2}, s{sTmp2}, 12")
            A(f"s_and_b32 s{sTmp}, s{sTmp}, 3")
            A(f"v_xor_b32 v{vT2}, s{sTmp}, v{vT1}")
            A(f"v_lshl_add_u32 v{vT2}, v{vT2}, 5, v{vT0}")
            A(f"v_add_u32 v{vWb+a}, s{sTmp2}, v{vT2}")
    else:
        for a in range(5):
            if typ == "Q":
                A(f"s_mul_i32 s{sTmp}, s{sNW}, 5")
                A(f"s_add_u32 s{sTmp}, s{sTmp}, {a}")
                A(f"s_lshr_b32 s{sTmp2}, s{sTmp}, 1")
                A(f"s_lshl_b32 s{sTmp2}, s{sTmp2}, 12")
                A(f"s_and_b32 s{sTmp}, s{sTmp}, 1")
                A(f"s_lshl_b32 s{sTmp}, s{sTmp}, 1")
                A(f"v_xor_b32 v{vT2}, s{sTmp}, v{vT1}")
                A(f"v_lshl_add_u32 v{vT2}, v{vT2}, 5, v{vT0}")
                A(f"v_add_u32 v{vWb+a}, s{sTmp2}, v{vT2}")
            else:
                def loc(pi, nw, odd):
                    m, p = pi // 5, 5 * nw + pi % 5
                    if odd:
                        L_, tau = (4, p + 2 * m) if p < 2 else (2 * m + ((p - 2) >> 2), (p - 2) & 3)
                    else:
                        L_, tau = (4, p - 8 + 2 * m) if p >= 8 else (2 * m + (p >> 2), p & 3)
                    return L_ * 4 + (tau ^ m)
                if a == 0:
                    A(f"s_lshl_b32 s9, s{sNW}, 1")
                    A(f"s_add_u32 s9, s9, s{sOdd}")
                    A("s_lshl_b32 s9, s9, 3")
                    A(f"v_bfe_u32 v{vT2}, v{vLane}, 4, 1")
                    A(f"v_cmp_eq_u32 vcc, 1, v{vT2}")
                    A(f"v_and_b32 v{vT1}, 2, v{vT1}")
                for sub, sr in ((0, sTmp), (1, sTmp2)):
                    tab = sum(loc(2 * a + sub, nw, odd) << (8 * (2 * nw + odd)) for nw in range(2) for odd in range(2))
                    A(f"s_lshr_b32 s{sr}, {tab}, s9")
                    A(f"s_and_b32 s{sr}, s{sr}, 0xff")
                A(f"v_mov_b32 v{vT2}, s{sTmp}")
                A(f"v_mov_b32 v{vT3}, s{sTmp2}")
                A(f"v_cndmask_b32 v{vT2}, v{vT2}, v{vT3}, vcc")
                A(f"v_lshrrev_b32 v{vT3}, 2, v{vT2}")
                A(f"v_lshl_add_u32 v{vT3}, v{vT3}, 12, v{vT0}")
                A(f"v_and_b32 v{vT2}, 3, v{vT2}")
                A(f"v_xor_b32 v{vT2}, v{vT2}, v{vT1}")
                A(f"v_lshl_add_u32 v{vWb+a}, v{vT2}, 5, v{vT3}")
        if typ == "K":
            kv_addr_setup(A)
    A(f"s_mov_b32 s{sRslot}, {W_LDS}")
    poll_addr(A)
    A(f"v_and_b32 v{vT0}, 15, v{vLane}")
    A(f"v_bfe_u32 v{vT1}, v{vLane}, 4, 1")
    A(f"v_cmp_eq_u32 vcc, v{vT0}, v{vT1}")
    A(f"v_mov_b32 v{vT2}, 0x3f803f80")
    A(f"v_cndmask_b32 v{vSel}, 0, v{vT2}, vcc")
    for i in range(1, 4):
        A(f"v_mov_b32 v{vSel+i}, v{vSel}")
    if S16:
        for i in range(4):
            A(f"v_mov_b32 v{sel+i}, 0x3f803f80")
    for i in range(4 * NCS):
        A(f"v_mov_b32 v{vCSA+i}, 0")
    for i in range(16 * MT * NT):
        A(f"v_mov_b32 v{vACC+i}, 0")
    A(f"s_mov_b32 s{sPub}, 2")
    A(f"s_bitcmp1_b32 0x88ff, s{sRB}")
    A(f"s_cselect_b32 s{sCSit}, 0, 99")
    A(f"s_cmp_eq_u32 s{sMW}, 0")
    A(f"s_cselect_b32 s{sCSit}, s{sCSit}, 99")
    A(f"s_mov_b32 s{sTmp}, 0xe")
    A(f"s_cmp_eq_u32 s{sWave}, 0")
    A(f"s_cselect_b32 s{sSpec}, s{sTmp}, 0")
    A(f"s_cmp_eq_u32 s{sWave}, 3")
    A(f"s_cselect_b32 s{sTmp}, 0xc0, 0")
    A(f"s_or_b32 s{sSpec}, s{sSpec}, s{sTmp}")
    A(f"s_or_b32 s{sSpec}, s{sSpec}, 0x300")
    A(f"s_mov_b32 s{sIt}, 0")
    A(f"s_mov_b32 s{sSpin}, 0")
    p2_ids(A, vec=False)
    ffn_setup(A)
    A(f"s_cmp_lt_u32 s{sWave}, 4")
    A(f"s_cselect_b32 s{sWo}, {OOB}, s{sWo}")

    def reads(P, kap):
        pre = [f"v_add_u32 v{vWa+a}, s{sRslot}, v{vWb+a}" for a in range(NT)]
        post = [f"s_add_u32 s{sRslot}, s{sRslot}, {W_SLOT}\n"
                f"s_cmp_eq_u32 s{sRslot}, {W_LDS+5*W_SLOT}\n"
                f"s_cselect_b32 s{sRslot}, {W_LDS}, s{sRslot}"]
        rx = lambda mt, kk: [f"ds_read_b128 {vr(XB(P, mt, kk))}, v{vXa+2*kap+kk} offset:{mt*4096}"]
        rw = lambda a, kk: [f"ds_read_b64_tr_b16 {vr(WBf(P, a, kk)+2*rho, 2)}, v{vWa+a} offset:{kk*(12288 if S16 else 2048)+rho*512}" for rho in range(2)]
        if S16:
            out = rw(0, 0) + rw(1, 0) + rw(2, 0) + rw(0, 1) + rw(1, 1) + rx(0, 0) + rx(1, 0) + rx(0, 1) + rx(1, 1) + rw(2, 1)
        else:
            out = []
            for kk in range(2):
                for a in range(NT):
                    out += rw(a, kk)
                for mt in range(MT):
                    out += rx(mt, kk)
        if OPT["NORD"]:
            out = []
        return pre, out, post

    def mfmas(P):
        out = []
        if S16:
            for kw in range(2):
                for a in range(3):
                    for t in (0, 2, 1, 3):
                        d = vr(acc16(t, a, kw))
                        out.append(f"v_mfma_f32_16x16x32_bf16 {d}, {vr(WBf(P, a, kw))}, {vr(XB(P, t // 2, t % 2))}, {d}")
            return out
        for kk in range(2):
            for a in range(NT):
                for mt in range(MT):
                    x, w, d = vr(XB(P, mt, kk)), vr(WBf(P, a, kk)), vr(acc(mt, a), 16)
                    if OPT["FAKE16"]:
                        for h in range(2):
                            dq = vr(acc(mt, a) + 8 * kk + 4 * h)
                            x2 = vr(XB(P, mt, h))
                            out.append(f"v_mfma_f32_16x16x32_bf16 {dq}, {w}, {x2}, {dq}")
                    elif typ == "K":
                        out.append(f"v_mfma_f32_32x32x16_bf16 {d}, {x}, {w}, {d}")
                    else:
                        out.append(f"v_mfma_f32_32x32x16_bf16 {d}, {w}, {x}, {d}")
        return out

    def cs_mfmas(P):
        if S16:
            return [f"v_mfma_f32_16x16x32_bf16 {vr(vCSA+4*(2*a+kk))}, {vr(WBf(P, a, kk))}, {vr(sel)}, {vr(vCSA+4*(2*a+kk))}"
                    for kk in range(2) for a in range(3)]
        return [f"v_mfma_f32_16x16x32_bf16 {vr(vCSA+4*a)}, {vr(WBf(P, a, kk))}, {vr(vSel)}, {vr(vCSA+4*a)}"
                for kk in range(2) for a in range(NT)]

    if OPT["STAMP"] == 3:
        stamp(A, 5, 0, wave=OPT["SW"])
    n = len(mfmas(0))
    f = lambda k: k / n
    nod = OPT["NODMA"]

    def loop(R):
        LL = lambda s: f"L_{typ}{R}_{s}"
        lstamp(A, 17)
        if R == "B":
            for g in dmaW():
                A(g)
        A(f"s_waitcnt vmcnt({NW_ + (4 if R == 'B' else 0)})")
        k1_stats(A, typ)
        lstamp(A, 18)
        A(f"s_waitcnt vmcnt({1 if R == 'A' else NW_ + 1})")
        lstamp(A, 19)
        A("s_barrier")
        pre, rd, post = reads(0, 0)
        for g in pre + rd + post:
            A(g)
        if R == "A":
            A("s_setprio 1")
            stamp(A, 1, 0)
            stamp(A, 14, 0, clk=True)
        else:
            for g in dmaX():
                A(g)
        A("s_waitcnt lgkmcnt(0)")
        lstamp(A, 20)
        for g in mfmas(0):
            A(g)
        if R == "A":
            A(f"s_cmp_lg_u32 s{sCSit}, 0")
            A(f"s_cbranch_scc1 {LL('pc0')}")
            for g in cs_mfmas(0):
                A(g)
            A.label(LL("pc0"))
            for g in dmaW():
                A(g)
            A(f"s_sub_u32 s{sUw}, s{sWave}, 1")
            A(f"s_cmp_gt_u32 s{sUw}, 1")
            A(f"s_cbranch_scc1 {LL('nou')}")
            A(f"s_lshl_b32 s{sU}, s{sCG}, 4")
            A(f"s_add_u32 s{sU}, s{sU}, s{sRB}")
            A(f"s_lshl_b32 s{sU}, s{sU}, 1")
            A(f"s_add_u32 s{sU}, s{sU}, s{sUw}")
            A(f"s_lshl_b32 s{sUl}, s{sUw}, 12")
            A(f"s_add_u32 s{sUl}, s{sUl}, {MISC_LDS}")
            w2_unit_dma(A, f"s{sUl}")
            A.label(LL("nou"))
        else:
            A("s_waitcnt vmcnt(5)")
        lstamp(A, 21)
        A("s_barrier")
        pre, rd, post = reads(1, 1)
        for g in pre + rd + post:
            A(g)
        if R == "B":
            for g in dmaW():
                A(g)
        A("s_waitcnt lgkmcnt(0)")
        lstamp(A, 22)
        for g in mfmas(1):
            A(g)
        if R == "A":
            for g in dmaW():
                A(g)
            A(f"s_cmp_eq_u32 s{sCSit}, 0")
            A(f"s_cbranch_scc1 {LL('cs1')}")
            A(f"s_waitcnt vmcnt({NW_})")
            A.label(LL("pc1"))
            A(f"s_cmp_gt_u32 s{sUw}, 1")
            A(f"s_cbranch_scc1 {LL('pc2')}")
            w2_unit_out(A, f"s{sUl}", (lambda t: (96, 100, 144, 148)[t]) if G else (lambda t: 232 + 4 * t) if typ == 'Q' else (lambda t: vBUF + 4 * t))
            A.label(LL("pc2"))
        else:
            A("s_waitcnt vmcnt(0)")
        lstamp(A, 23)
        A("s_barrier")
        if R == "B":
            for g in dmaX() + dmaW():
                A(g)
        for i in range(4):
            A(f"v_xor_b32 v{vXa+i}, 16384, v{vXa+i}")
        pre, rd, post = reads(0, 0)
        for g in pre + rd + post:
            A(g)
        A(f"s_mov_b32 s{sIt}, 1")
        if R == "A" and OPT["NXA"]:
            for _ in range(3):
                A(dmaX()[4])
        A("s_waitcnt lgkmcnt(0)")
        lstamp(A, 0)
        A(".p2align 6")
        A.label(LL("loop"))
        pre, rd, post = reads(1, 1)
        for g in interleave(mfmas(0), (pre, 0.0, f(1)), (rd, f(1), 0.7), (post, 0.75, 0.85)):
            A(g)
        if R == "A":
            A(f"s_bitcmp1_b32 s{sSpec}, s{sIt}")
            A(f"s_cbranch_scc1 {LL('spec')}")
            A.label(LL("specr"))
            for g in dmaW():
                A(g)
            A(f"s_waitcnt vmcnt({NW_}) lgkmcnt(0)")
            A.label(LL("bar"))
        else:
            A("s_waitcnt vmcnt(0) lgkmcnt(0)")
        A("s_barrier")
        if OPT["DLY"] == 1 and G:
            A("s_sleep 3")
        pre, rd, post = reads(0, 0)
        pre = [f"v_xor_b32 v{vXa+i}, 16384, v{vXa+i}" for i in range(2)] + pre
        post = post + [f"v_xor_b32 v{vXa+i}, 16384, v{vXa+i}" for i in range(2, 4)]
        tail = [f"s_add_u32 s{sIt}, s{sIt}, 1\ns_cmp_lt_u32 s{sIt}, 10"]
        nxa = OPT["NXA"]
        if R == "B":
            dw = dmaW()
            nb = OPT["NBUP"]
            A(f"s_cmp_ge_u32 s{sIt}, 8")
            A(f"s_cbranch_scc1 {LL('nod')}")
            for g in dmaX()[nxa:] + dw[:nb]:
                A(g)
            for g in interleave(mfmas(1), (pre, 0.0, f(1)), (dw[nb:], 0.0, 0.4), (rd, f(1), 0.7), (post, 0.7, 0.8), (tail, f(n-2), f(n-1))):
                A(g)
            A.label(LL("end"))
        else:
            chk1 = tail
            xa = []
            if nxa:
                dx = dmaX()
                xa = [f"s_cmp_ge_u32 s{sIt}, 8\ns_cbranch_scc1 {LL('nox')}\n" + "\n".join(dx[:nxa] + dx[4:]) + f"\n{LL('nox')}:"]
            for g in interleave(mfmas(1), (pre, 0.0, f(1)), (xa, f(OPT["XPOS"]), f(OPT["XPOS"]+1)), (rd, f(1), 0.7), (post, 0.7, 0.8), (chk1, f(n-2), f(n-1))):
                A(g)
        if OPT["STAMP"] == 4:
            A("s_memrealtime s[96:97]")
            A(f"s_mov_b32 m0, s{sIt}")
        A("s_waitcnt lgkmcnt(0)")
        if OPT["STAMP"] == 4:
            A("v_writelane_b32 v28, s96, m0")
        A(f"s_cbranch_scc1 {LL('loop')}")
        A(f"s_branch {L('epi')}")

        if R == "B":
            A.label(LL("nod"))
            if typ not in OPT_WOEPI:
                A(f"s_cmp_eq_u32 s{sIt}, 9")
                A(f"s_cbranch_scc1 {LL('nod9')}")
                wo_early(A, 24, 7)
                A(f"s_branch {LL('nod2')}")
                A.label(LL("nod9"))
                wo_early(A, 72, 7)
                A.label(LL("nod2"))
            for g in interleave(mfmas(1), (pre, 0.0, f(1)), (rd, f(1), 0.7), (post, 0.7, 0.8), (tail, f(n-2), f(n-1))):
                A(g)
            A(f"s_branch {LL('end')}")
            return
        A.label(LL("cs1"))
        for g in cs_mfmas(1):
            A(g)
        A(f"v_and_b32 v{vT0}, 15, v{vLane}")
        A(f"v_lshrrev_b32 v{vT1}, 4, v{vLane}")
        A(f"v_lshlrev_b32 v{vT1}, 4, v{vT1}")
        A(f"v_lshl_add_u32 v{vT1}, v{vT0}, 6, v{vT1}")
        A(f"v_cmp_gt_u32 vcc, {1 if S16 else 2}, v{vT0}")
        A(f"v_mov_b32 v{vT2}, {OOB}")
        A(f"v_cndmask_b32 v{vT1}, v{vT2}, v{vT1}, vcc")
        A(f"s_mul_i32 s{sTmp}, s{sCG}, 10")
        A(f"s_add_u32 s{sTmp}, s{sTmp}, s{sC0}")
        A(f"s_mul_i32 s{sTmp}, s{sTmp}, 1536")
        A(f"s_mul_i32 s{sTmp2}, s{sNW}, {NT*128}")
        A(f"s_add_u32 s{sTmp}, s{sTmp}, s{sTmp2}")
        A(f"s_add_u32 s{sTmp}, s{sTmp}, {WS_CS}")
        for a in range(NCS):
            A(f"buffer_store_dwordx4 {vr(vCSA+4*a)}, v{vT1}, {srd(S_WS)}, s{sTmp} offen offset:{a*(64 if S16 else 128)} sc1")
        A(f"s_waitcnt vmcnt({NW_+NCS})")
        A(f"s_branch {LL('pc1')}")

        def with_dma(nops, body):
            for g in dmaW():
                A(g)
            body()
            A(f"s_waitcnt vmcnt({NW_+nops}) lgkmcnt(0)")
            A(f"s_branch {LL('bar')}")
        A.label(LL("spec"))
        A(f"s_cmp_eq_u32 s{sIt}, 9")
        A(f"s_cbranch_scc1 {LL('sum')}")
        A(f"s_cmp_eq_u32 s{sIt}, 8")
        A(f"s_cbranch_scc1 {LL('go')}")
        A(f"s_cmp_eq_u32 s{sIt}, 7")
        A(f"s_cbranch_scc1 {LL('chk')}")
        A(f"s_cmp_eq_u32 s{sIt}, 6")
        A(f"s_cbranch_scc1 {LL('poll0')}")
        A.label(LL("pub"))

        A(f"s_cmp_lg_u32 s{sIt}, 2")
        A(f"s_cbranch_scc1 {LL('pub1')}")
        wait_zeroed(A, LL("wz"), True)
        A.label(LL("pub1"))

        def pub():
            A(f"s_cmp_eq_u32 s{sIt}, 3")
            A(f"s_cbranch_scc1 {LL('pub3')}")
            A(f"s_cmp_eq_u32 s{sIt}, 2")
            A(f"s_cbranch_scc1 {LL('pub2')}")
            A(f"buffer_load_dword v{vPoll}, off, {srd(S_DBG)}, 0 sc1")
            A(f"s_branch {LL('pub3')}")
            A.label(LL("pub2"))
            k1_publish(A)
            A.label(LL("pub3"))
        with_dma(1, pub)
        A.label(LL("poll0"))
        with_dma(1, lambda: A(f"buffer_load_dword v{vPoll}, v{vPa}, {srd(S_WS)}, 0 offen sc1"))
        A.label(LL("poll"))
        A("s_sleep 8")
        A(f"buffer_load_dword v{vPoll}, v{vPa}, {srd(S_WS)}, 0 offen sc1")
        A.label(LL("chk"))
        A("s_waitcnt vmcnt(0)")
        poll_cmp(A)
        A(f"s_add_u32 s{sSpin}, s{sSpin}, 1")
        A(f"s_cmp_gt_u32 s{sSpin}, {SPIN_MAX}")
        A(f"s_cbranch_scc1 {LL('specr')}")
        A(f"s_cmp_lg_u64 vcc, 0")
        A(f"s_cbranch_scc1 {LL('poll')}")
        A(f"s_branch {LL('specr')}")
        A.label(LL("go"))

        def go():
            A(f"v_lshlrev_b32 v{vT0}, 3, v0")
            A(f"v_cmp_gt_u32 vcc, {NT*(4 if G else 2)*16}, v0")
            A(f"v_mov_b32 v{vT2}, {OOB}")
            A(f"v_cndmask_b32 v{vT0}, v{vT2}, v{vT0}, vcc")
            A(f"s_mul_i32 s{sTmp}, s{sCG}, 15360")
            A(f"s_add_u32 s{sTmp}, s{sTmp}, {WS_CS}")
            for ch in range(10):
                if ch % 2 == 0 and ch:
                    A(f"s_add_u32 s{sTmp}, s{sTmp}, 3072")
                A(f"buffer_load_dwordx2 {vr(vCSP+2*ch, 2)}, v{vT0}, {srd(S_WS)}, s{sTmp} offen offset:{(ch%2)*1536} sc1")
            A(f"s_lshl_b32 s{sTmp}, s{sRB}, 10")
            A(f"s_add_u32 s{sTmp}, s{sTmp}, {WS_ST}")
            A(f"v_lshlrev_b32 v{vT1}, 2, v0")
            A(f"buffer_load_dword v{vSt}, v{vT1}, {srd(S_WS)}, s{sTmp} offen sc1")
        go()
        if typ not in OPT_WOEPI:
            wo_early(A, 0, 6)
        A(f"s_waitcnt vmcnt({11 if typ in OPT_WOEPI else 17}) lgkmcnt(0)")
        A(f"s_branch {LL('bar')}")
        A.label(LL("sum"))
        A(f"s_waitcnt vmcnt({0 if typ in OPT_WOEPI else 6})")
        for ch in range(1, 10):
            A(f"v_add_f32 v{vCSP}, v{vCSP}, v{vCSP+2*ch}")
            A(f"v_add_f32 v{vCSP+1}, v{vCSP+1}, v{vCSP+2*ch+1}")
        A(f"v_lshlrev_b32 v{vT0}, 3, v0")
        A(f"v_add_u32 v{vT0}, {KV_CS if typ == 'K' else MISC_LDS}, v{vT0}")
        A(f"ds_write_b64 v{vT0}, {vr(vCSP, 2)}")
        if typ == "K":
            A(f"v_rsq_f32 v{vT2}, v{vSt}")
            A(f"v_and_b32 v{vT1}, 1, v0")
            A(f"v_cmp_eq_u32 vcc, 1, v{vT1}")
            A(f"v_lshlrev_b32 v{vT1}, 9, v{vT1}")
            A(f"v_lshrrev_b32 v{vT0}, 1, v0")
            A(f"v_lshl_add_u32 v{vT1}, v{vT0}, 2, v{vT1}")
            A(f"v_add_u32 v{vT1}, {KV_ST}, v{vT1}")
            A(f"v_cndmask_b32 v{vT0}, v{vSt}, v{vT2}, vcc")
            A(f"ds_write_b32 v{vT1}, v{vT0}")
            A(f"v_mul_f32 v{vT2}, {f32(LOG2E)}, v{vT2}")
            A(f"ds_write_b32 v{vT1}, v{vT2} offset:1024")
        else:
            A(f"v_lshlrev_b32 v{vT1}, 2, v0")
            A(f"v_add_u32 v{vT1}, {MISC_LDS+2048}, v{vT1}")
            A(f"ds_write_b32 v{vT1}, v{vSt}")
        if typ not in OPT_WOEPI:
            wo_early(A, 52, 5)
        A("s_waitcnt lgkmcnt(0)")
        A(f"s_branch {LL('bar')}")

    A(f"s_cmp_ge_u32 s{sWave}, 4")
    A(f"s_cbranch_scc1 {L('roleB')}")
    loop("A")
    A.label(L("roleB"))
    loop("B")

    A.label(L("epi"))
    if (OPT["DLY"] == 2 and typ == "G") or (OPT["DLY"] == 3 and typ == "K"):
        A("s_sleep 30")
    A("s_setprio 0")
    cstamp(A, 0)
    stamp(A, 2, 0)
    stamp(A, 4, 0, wave=4, vt=50)
    stamp(A, 7, 0, wave=4, vt=50, clk=True)
    stamp(A, 15, 0, clk=True)
    if OPT["STAMP"] == 4:
        A(f"v_lshlrev_b32 v29, 2, v0")
        A(f"s_lshl_b32 s98, s2, 11")
        A(f"s_add_u32 s98, s98, {WS_STAMP + 0x10000}")
        A(f"buffer_store_dword v28, v29, {srd(S_WS)}, s98 offen")
    A(f"v_lshlrev_b32 v{vL16}, 4, v{vLane}")
    if True:
        epi = {"G": k1_epi_g16 if S16 else k1_epi_g, "Q": k1_epi_q, "K": k1_epi_kv}[typ]
        body = []
        epi(body.append, acc)
        npre = min(OPT["NPRE"], {"G": 6, "Q": 4, "K": 2}[typ])
        early = [g for j in range(min(4, npre)) for g in ldW_groups(j)]
        late = [g for j in range(4, npre) for g in ldW_groups(j)]
        wod = []
        if typ in OPT_WOEPI:
            A(f"s_mul_i32 s12, s{sWave}, 13")
            A("s_min_u32 s12, s12, 87")
            A("s_lshl_b32 s12, s12, 10")
            A(f"s_mul_i32 s13, s{sC}, {74*5120}")
            A("s_add_u32 s13, s13, s12")
            A(f"s_add_u32 s13, s13, {WS_W2 + 54*5120}")
            A(f"s_add_u32 s12, s12, {WO_LDS}")
            wod = [f"s_add_u32 m0, s12, {i*1024}\ns_add_u32 s14, s13, {i*1024}\n"
                   f"buffer_load_dwordx4 v{vL16}, {srd(S_WS)}, s14 offen sc1 lds" for i in range(13)]
        for g in interleave(body, (wod, 0.02, 0.6), (early, 0.02, 0.5 if npre > 4 else 0.7), (late, 0.5, 0.8)):
            A(g)
        A(f"s_mov_b32 s{sWoDone}, {npre + 1}")
    cstamp(A, 7)
    if OPT["STAMP"] == 7:
        A(f"v_lshlrev_b32 v49, 2, v0")
        A(f"s_lshl_b32 s98, s2, 11")
        A(f"s_add_u32 s98, s98, {WS_STAMP + 0x10000}")
        A(f"buffer_store_dword v48, v49, {srd(S_WS)}, s98 offen")
    stamp(A, 3, 0)
    stamp(A, 5, 0, wave=4, vt=50)
    stamp(A, 8, 0, wave=4, vt=50, clk=True)
    A(f"v_mov_b32 v{vSigA}, {OOB}")
    if typ == "K":
        A(f"s_sub_u32 s{sTmp}, s{sCG}, 9")
        A(f"s_lshl_b32 s{sTmp}, s{sTmp}, 11")
        A(f"s_add_u32 s{sTmp}, s{sTmp}, {WS_FL + FL_KV}")
        A(f"v_lshl_add_u32 v{vT0}, v{vLane}, 8, s{sTmp}")
        A(f"v_cmp_gt_u32 vcc, 8, v{vLane}")
        A(f"v_cndmask_b32 v{vSigA}, v{vSigA}, v{vT0}, vcc")
        A(f"v_mov_b32 v{vSigV}, 1")
    else:
        A(f"s_lshl_b32 s{sTmp}, s{sRB}, 8")
        A(f"s_add_u32 s{sTmp}, s{sTmp}, {WS_FL + FL_HC}")
        A(f"v_writelane_b32 v{vSigA}, s{sTmp}, 0")
        A(f"s_lshl_b32 s{sTmp}, 1, s{sCG}")
        A(f"v_mov_b32 v{vSigV}, s{sTmp}")
    A("s_branch L_p2")


def k1_stats_issue(A):
    b = vBUF
    A(f"s_lshl_b32 s{sRow}, s{sRB}, 7")
    A(f"s_lshl_b32 s{sTmp2}, s{sCG}, 3")
    A(f"s_add_u32 s{sRow}, s{sRow}, s{sTmp2}")
    A(f"s_add_u32 s{sRow}, s{sRow}, s{sWave}")
    A(f"s_mul_i32 s{sTmp2}, s{sRow}, 1280")
    A(f"v_lshlrev_b32 v{vT0}, 3, v{vLane}")
    A(f"v_lshlrev_b32 v{vT1}, 2, v{vLane}")
    A(f"buffer_load_dwordx2 {vr(b, 2)}, v{vT0}, {srd(S_X)}, s{sTmp2} offen")
    A(f"buffer_load_dwordx2 {vr(b+2, 2)}, v{vT0}, {srd(S_X)}, s{sTmp2} offen offset:512")
    A(f"buffer_load_dword v{b+4}, v{vT1}, {srd(S_X)}, s{sTmp2} offen offset:1024")


def k1_stats(A, typ):
    b = vBUF
    if typ == "A":
        A("s_waitcnt vmcnt(0)")
    for i in range(5):
        A(f"v_lshlrev_b32 v{b+8+2*i}, 16, v{b+i}")
        A(f"v_and_b32 v{b+9+2*i}, 0xffff0000, v{b+i}")
    s = b + 20
    A(f"v_add_f32 v{s}, v{b+8}, v{b+9}")
    for i in range(2, 10):
        A(f"v_add_f32 v{s}, v{s}, v{b+8+i}")
    wave_allreduce_add(A, s, s + 1, 4)
    A(f"v_mul_f32 v{s}, {f32(1.0/640)}, v{s}")
    for i in range(10):
        A(f"v_sub_f32 v{b+8+i}, v{b+8+i}, v{s}")
    A(f"v_mul_f32 v{s+1}, v{b+8}, v{b+8}")
    for i in range(1, 10):
        A(f"v_fmac_f32 v{s+1}, v{b+8+i}, v{b+8+i}")
    wave_allreduce_add(A, s + 1, s + 2, 4)
    A(f"v_mov_b32 v{s+2}, {f32(1e-5)}")
    A(f"v_fmac_f32 v{s+2}, {f32(1.0/640)}, v{s+1}")
    A(f"v_mov_b32 v{s+1}, v{s+2}")
    A(f"v_cmp_eq_u32 vcc, 0, v{vLane}")
    A(f"v_mov_b32 v{vT2}, {OOB}")
    A(f"v_cndmask_b32 v{vT0}, v{vT2}, v{vLane}, vcc")
    A(f"s_lshl_b32 s{sTmp}, s{sRow}, 3")
    A(f"s_add_u32 s{sTmp}, s{sTmp}, {WS_ST}")
    A(f"buffer_store_dwordx2 {vr(s, 2)}, v{vT0}, {srd(S_WS)}, s{sTmp} offen sc1")


def k1_publish(A):
    A(f"s_lshl_b32 s{sTmp}, s{sRB}, 8")
    A(f"s_add_u32 s{sTmp}, s{sTmp}, {WS_FL + FL_ROW}")
    A(f"v_mov_b32 v{vT0}, {OOB}")
    A(f"v_writelane_b32 v{vT0}, s{sTmp}, 0")
    A(f"v_mov_b32 v{vT1}, 1")
    A(f"buffer_atomic_add v{vT1}, v{vT0}, {srd(S_WS)}, 0 offen sc1")


def poll_addr(A):
    A(f"v_and_b32 v{vPa}, 15, v{vLane}")
    A(f"v_lshlrev_b32 v{vPa}, 8, v{vPa}")
    A(f"v_add_u32 v{vPa}, {WS_FL + FL_ROW}, v{vPa}")


def poll_cmp(A):
    A(f"v_cmp_gt_u32 vcc, 16, v{vPoll}")


def wait_zeroed(A, lab, first_issued):
    if first_issued:
        A(f"s_branch {lab}_c")
    A.label(lab)
    A("s_sleep 4")
    A(f"buffer_load_dword v{vPoll}, off, {srd(S_DBG)}, 0 sc1")
    A.label(lab + "_c")
    A("s_waitcnt vmcnt(0)")
    A(f"v_readfirstlane_b32 s{sTmp}, v{vPoll}")
    A(f"s_add_u32 s{sSpin}, s{sSpin}, 1")
    A(f"s_cmp_gt_u32 s{sSpin}, {SPIN_MAX}")
    A(f"s_cbranch_scc1 {lab}_ok")
    A(f"s_cmp_lt_u32 s{sTmp}, 16")
    A(f"s_cbranch_scc1 {lab}")
    A.label(lab + "_ok")


S_R = 88
sU, sUks, sUL = 92, 93, 94


def w2_unit_decode(A):
    A(f"s_mul_i32 s{sUks}, s{sU}, 205")
    A(f"s_lshr_b32 s{sUks}, s{sUks}, 11")
    A(f"s_mul_i32 s{sUL}, s{sUks}, 10")
    A(f"s_sub_u32 s{sUL}, s{sU}, s{sUL}")


def w2_unit_dma(A, lds):
    w2_unit_decode(A)
    A(f"s_cmp_lt_u32 s{sUks}, 54")
    A(f"s_cselect_b32 s{S_R}, s{P_D}, s{P_WO}")
    A(f"s_cselect_b32 s{S_R+1}, s{P_D+1}, s{P_WO+1}")
    A(f"s_mov_b32 s{S_R+2}, {640*1280}")
    A(f"s_cselect_b32 s{S_R+2}, {1728*1280}, s{S_R+2}")
    A(f"s_cselect_b32 s{sTmp}, 0, 54")
    A(f"s_and_b32 s{S_R+1}, s{S_R+1}, 0xffff")
    A(f"s_mov_b32 s{S_R+3}, 0x20000")
    A(f"s_sub_u32 s{sTmp}, s{sUks}, s{sTmp}")
    A(f"s_mul_i32 s{sTmp}, s{sTmp}, {32*1280}")
    A(f"s_lshl_b32 s{sTmp2}, s{sUL}, 7")
    A(f"s_add_u32 s{sTmp}, s{sTmp}, s{sTmp2}")
    A(f"v_lshrrev_b32 v{vT0}, 3, v{vLane}")
    A(f"v_mul_u32_u24 v{vT0}, 1280, v{vT0}")
    A(f"v_and_b32 v{vT1}, 7, v{vLane}")
    A(f"v_lshl_add_u32 v{vT0}, v{vT1}, 4, v{vT0}")
    for i in range(4):
        A(f"s_add_u32 m0, {lds}, {i*1024}")
        A("s_nop 0")
        A(f"buffer_load_dwordx4 v{vT0}, {srd(S_R)}, s{sTmp} offen lds")
        A(f"s_add_u32 s{sTmp}, s{sTmp}, {8*1280}")


def w2_unit_out(A, lds, F):
    w2_unit_decode(A)
    A(f"v_bfe_u32 v{vT0}, v{vLane}, 2, 2")
    A(f"v_lshlrev_b32 v{vT0}, 7, v{vT0}")
    A(f"v_and_b32 v{vT1}, 3, v{vLane}")
    A(f"v_lshl_add_u32 v{vT0}, v{vT1}, 3, v{vT0}")
    A(f"v_lshrrev_b32 v{vT1}, 4, v{vLane}")
    A(f"s_cmp_lt_u32 s{sUks}, 54")
    A(f"s_cselect_b32 s{sTmp}, 10, 9")
    A(f"s_movk_i32 s{sTmp2}, 512")
    A(f"s_cselect_b32 s{sTmp2}, s{sTmp2}, 2048")
    A(f"v_lshlrev_b32 v{vT1}, s{sTmp}, v{vT1}")
    A(f"v_add3_u32 v{vT0}, v{vT0}, v{vT1}, {lds}")
    A(f"v_add_u32 v{vT1}, s{sTmp2}, v{vT0}")
    for tau in range(4):
        A(f"ds_read_b64_tr_b16 {vr(F(tau), 2)}, v{vT0} offset:{tau*32}")
        A(f"ds_read_b64_tr_b16 {vr(F(tau)+2, 2)}, v{vT1} offset:{tau*32}")
    A(f"v_lshlrev_b32 v{vT2}, 4, v{vLane}")
    A("s_waitcnt lgkmcnt(0)")
    for tau in range(4):
        A(f"s_lshl_b32 s{sTmp}, s{sUL}, 2")
        A(f"s_add_u32 s{sTmp}, s{sTmp}, {tau}")
        A(f"s_mul_i32 s{sTmp2}, s{sTmp}, 205")
        A(f"s_lshr_b32 s{sTmp2}, s{sTmp2}, 10")
        A(f"s_mul_i32 s{sTmp3}, s{sTmp2}, {74*5-5}")
        A(f"s_add_u32 s{sTmp}, s{sTmp}, s{sTmp3}")
        A(f"s_mul_i32 s{sTmp3}, s{sUks}, 5")
        A(f"s_add_u32 s{sTmp}, s{sTmp}, s{sTmp3}")
        A(f"s_lshl_b32 s{sTmp}, s{sTmp}, 10")
        A(f"s_add_u32 s{sTmp}, s{sTmp}, {WS_W2}")
        A(f"s_cmp_lt_u32 s{sU}, 740")
        A(f"s_cselect_b32 s{sTmp}, s{sTmp}, {OOB}")
        A(f"buffer_store_dwordx4 {vr(F(tau))}, v{vT2}, {srd(S_WS)}, s{sTmp} offen sc1")


def k1_epi_g(A, acc):
    c = vBUF + 56
    cs = vBUF + 8
    t = vBUF + 40
    o = vBUF + 48
    A(f"v_lshrrev_b32 v{vT0}, 5, v{vLane}")
    A(f"v_lshlrev_b32 v{vT0}, 4, v{vT0}")
    A(f"s_mul_i32 s{sTmp}, s{sNW}, 384")
    A(f"s_add_u32 s{sTmp}, s{sTmp}, {MISC_LDS}")
    A(f"v_add_u32 v{vT0}, s{sTmp}, v{vT0}")
    A(f"v_and_b32 v{vT1}, 31, v{vLane}")
    A(f"s_lshl_b32 s{sTmp}, s{sMW}, 9")
    A(f"s_add_u32 s{sTmp}, s{sTmp}, {MISC_LDS+2048}")
    A(f"v_lshl_add_u32 v{vT1}, v{vT1}, 3, s{sTmp}")
    for mt in range(2):
        A(f"ds_read_b64 {vr(c+8*mt, 2)}, v{vT1} offset:{mt*256}")
    for q in range(4):
        A(f"ds_read_b128 {vr(cs+4*q)}, v{vT0} offset:{q*32}")
    A("s_waitcnt lgkmcnt(4)")
    for mt in range(2):
        mu, v, k1, k3 = c + 8 * mt, c + 8 * mt + 2, c + 8 * mt + 4, c + 8 * mt + 6
        A(f"v_mov_b32 v{v}, v{mu+1}")
        A(f"v_rsq_f32 v{t}, v{v}")
        A(f"v_mul_f32 v{k1}, {f32(GC1)}, v{t}")
        A(f"v_mul_f32 v{t+1}, v{t}, v{t}")
        A(f"v_mul_f32 v{t+1}, v{t+1}, v{t}")
        A(f"v_mul_f32 v{k3}, {f32(GC2)}, v{t+1}")
    A(f"v_bfe_u32 v{vT1}, v{vLane}, 4, 1")
    A(f"v_lshlrev_b32 v{vT1}, 10, v{vT1}")
    A(f"v_lshrrev_b32 v{vT2}, 5, v{vLane}")
    A(f"v_lshl_add_u32 v{vT1}, v{vT2}, 8, v{vT1}")
    A(f"v_and_b32 v{vT2}, 15, v{vLane}")
    A(f"v_lshl_add_u32 v{vT1}, v{vT2}, 4, v{vT1}")
    n = 0
    for a in range(3):
        csa = cs + 16 * (a % 2)
        if a < 2:
            for q in range(4):
                A(f"ds_read_b128 {vr(cs+16*((a+1)%2)+4*q)}, v{vT0} offset:{(a+1)*128+q*32}")
            A("s_waitcnt lgkmcnt(4)")
        else:
            A("s_waitcnt lgkmcnt(0)")
        A(f"s_mul_i32 s{sTmp}, s{sCG}, 12")
        A(f"s_mul_i32 s{sTmp2}, s{sNW}, 3")
        A(f"s_add_u32 s{sTmp}, s{sTmp}, s{sTmp2}")
        A(f"s_add_u32 s{sTmp}, s{sTmp}, {a}")
        A(f"s_lshl_b32 s{sTmp2}, s{sRB}, 1")
        A(f"s_add_u32 s{sTmp2}, s{sTmp2}, s{sMW}")
        A(f"s_mul_i32 s{sTmp2}, s{sTmp2}, 54")
        A(f"s_lshr_b32 s{sTmp3}, s{sTmp}, 1")
        A(f"s_add_u32 s{sTmp2}, s{sTmp2}, s{sTmp3}")
        A(f"s_lshl_b32 s{sTmp2}, s{sTmp2}, 12")
        A(f"s_and_b32 s{sTmp}, s{sTmp}, 1")
        A(f"s_lshl_b32 s{sTmp}, s{sTmp}, 9")
        A(f"s_add_u32 s{sTmp}, s{sTmp}, s{sTmp2}")
        C = lambda mt, k: c + 8 * mt + 2 * k
        MP = [(mt, i) for mt in range(2) for i in range(0, 8, 2)]
        D = lambda mt: acc(mt, a)
        Tm = lambda mt: t + 8 * mt
        for mt, i in MP:
            pk_fma(A, D(mt) + i, ("b", C(mt, 0)), ("p", csa + i), ("p", D(mt) + i), neg_a=True)
        for mt, i in MP:
            pk_mul(A, Tm(mt) + i, ("p", D(mt) + i), ("p", D(mt) + i))
        for mt, i in MP:
            pk_fma(A, Tm(mt) + i, ("p", Tm(mt) + i), ("b", C(mt, 3)), ("b", C(mt, 2)))
        for mt, i in MP:
            pk_mul(A, Tm(mt) + i, ("p", Tm(mt) + i), ("p", D(mt) + i))
        for mt, i in MP:
            A(f"v_exp_f32 v{Tm(mt)+i}, v{Tm(mt)+i}")
            A(f"v_exp_f32 v{Tm(mt)+i+1}, v{Tm(mt)+i+1}")
            pk_fma(A, D(mt) + 8 + i, ("b", C(mt, 0)), ("p", csa + 8 + i), ("p", D(mt) + 8 + i), neg_a=True)
        for mt, i in MP:
            pk_fma(A, Tm(mt) + i, ("p", Tm(mt) + i), ("b", C(mt, 1)), ("b", C(mt, 1)))
        for mt, i in MP:
            A(f"v_rcp_f32 v{Tm(mt)+i}, v{Tm(mt)+i}")
            A(f"v_rcp_f32 v{Tm(mt)+i+1}, v{Tm(mt)+i+1}")
            pk_mul(A, D(mt) + i, ("p", D(mt) + i), ("p", D(mt) + 8 + i))
        for mt, i in MP:
            pk_mul(A, D(mt) + i, ("p", D(mt) + i), ("p", Tm(mt) + i))
        for mt in range(2):
            ob = D(mt) + 8
            for i in range(4):
                A(f"v_cvt_pk_bf16_f32 v{ob+i}, v{D(mt)+2*i}, v{D(mt)+2*i+1}")
            A(f"buffer_store_dwordx4 {vr(ob)}, v{vT1}, {srd(S_WS)}, s{sTmp} offen offset:{mt*2048} sc1")


acc16 = lambda t, a, kw: vACC + 32 * a + 16 * kw + 4 * t


def k1_epi_g16(A, acc):
    c = vBUF
    csq = lambda p: (vBUF + 32 + 4 * p) if p < 4 else (48 + 4 * (p - 4))
    t = vBUF + 48
    A(f"v_lshrrev_b32 v{vT0}, 4, v{vLane}")
    A(f"v_lshlrev_b32 v{vT0}, 4, v{vT0}")
    A(f"s_mul_i32 s{sTmp}, s{sNW}, 384")
    A(f"s_add_u32 s{sTmp}, s{sTmp}, {MISC_LDS}")
    A(f"v_add_u32 v{vT0}, s{sTmp}, v{vT0}")
    A(f"v_and_b32 v{vT1}, 15, v{vLane}")
    A(f"s_lshl_b32 s{sTmp}, s{sMW}, 9")
    A(f"s_add_u32 s{sTmp}, s{sTmp}, {MISC_LDS+2048}")
    A(f"v_lshl_add_u32 v{vT1}, v{vT1}, 3, s{sTmp}")
    for m in range(4):
        A(f"ds_read_b64 {vr(c+8*m, 2)}, v{vT1} offset:{m*128}")
    for p in range(6):
        A(f"ds_read_b128 {vr(csq(p))}, v{vT0} offset:{p*64}")
    A("s_waitcnt lgkmcnt(6)")
    for m in range(4):
        A(f"v_rsq_f32 v{t+m}, v{c+8*m+1}")
        A(f"v_mov_b32 v{c+8*m+2}, v{c+8*m+1}")
    for m in range(4):
        A(f"v_mul_f32 v{c+8*m+4}, {f32(GC1)}, v{t+m}")
        A(f"v_mul_f32 v{t+4+m}, v{t+m}, v{t+m}")
    for m in range(4):
        A(f"v_mul_f32 v{t+4+m}, v{t+4+m}, v{t+m}")
    for m in range(4):
        A(f"v_mul_f32 v{c+8*m+6}, {f32(GC2)}, v{t+4+m}")
    A(f"v_bfe_u32 v{vT1}, v{vLane}, 4, 1")
    A(f"v_lshlrev_b32 v{vT1}, 10, v{vT1}")
    A(f"v_lshrrev_b32 v{vT2}, 5, v{vLane}")
    A(f"v_lshl_add_u32 v{vT1}, v{vT2}, 8, v{vT1}")
    A(f"v_and_b32 v{vT2}, 15, v{vLane}")
    A(f"v_lshl_add_u32 v{vT1}, v{vT2}, 4, v{vT1}")
    A("s_waitcnt lgkmcnt(0)")
    for a in range(3):
        A(f"s_mul_i32 s{sTmp}, s{sCG}, 12")
        A(f"s_mul_i32 s{sTmp2}, s{sNW}, 3")
        A(f"s_add_u32 s{sTmp}, s{sTmp}, s{sTmp2}")
        A(f"s_add_u32 s{sTmp}, s{sTmp}, {a}")
        A(f"s_lshl_b32 s{sTmp2}, s{sRB}, 1")
        A(f"s_add_u32 s{sTmp2}, s{sTmp2}, s{sMW}")
        A(f"s_mul_i32 s{sTmp2}, s{sTmp2}, 54")
        A(f"s_lshr_b32 s{sTmp3}, s{sTmp}, 1")
        A(f"s_add_u32 s{sTmp2}, s{sTmp2}, s{sTmp3}")
        A(f"s_lshl_b32 s{sTmp2}, s{sTmp2}, 12")
        A(f"s_and_b32 s{sTmp}, s{sTmp}, 1")
        A(f"s_lshl_b32 s{sTmp}, s{sTmp}, 9")
        A(f"s_add_u32 s{sTmp}, s{sTmp}, s{sTmp2}")
        C = lambda m, k: c + 8 * m + 2 * k
        MP = [(m, i) for m in range(4) for i in (0, 2)]
        Gt = lambda m: acc16(m, a, 0)
        Up = lambda m: acc16(m, a, 1)
        Tm = lambda m: t + 4 * m
        cg_, cu_ = csq(2 * a), csq(2 * a + 1)
        for m, i in MP:
            pk_fma(A, Gt(m) + i, ("b", C(m, 0)), ("p", cg_ + i), ("p", Gt(m) + i), neg_a=True)
        for m, i in MP:
            pk_mul(A, Tm(m) + i, ("p", Gt(m) + i), ("p", Gt(m) + i))
        for m, i in MP:
            pk_fma(A, Tm(m) + i, ("p", Tm(m) + i), ("b", C(m, 3)), ("b", C(m, 2)))
        for m, i in MP:
            pk_mul(A, Tm(m) + i, ("p", Tm(m) + i), ("p", Gt(m) + i))
        for m, i in MP:
            A(f"v_exp_f32 v{Tm(m)+i}, v{Tm(m)+i}")
            A(f"v_exp_f32 v{Tm(m)+i+1}, v{Tm(m)+i+1}")
            pk_fma(A, Up(m) + i, ("b", C(m, 0)), ("p", cu_ + i), ("p", Up(m) + i), neg_a=True)
        for m, i in MP:
            pk_fma(A, Tm(m) + i, ("p", Tm(m) + i), ("b", C(m, 1)), ("b", C(m, 1)))
        for m, i in MP:
            A(f"v_rcp_f32 v{Tm(m)+i}, v{Tm(m)+i}")
            A(f"v_rcp_f32 v{Tm(m)+i+1}, v{Tm(m)+i+1}")
            pk_mul(A, Gt(m) + i, ("p", Gt(m) + i), ("p", Up(m) + i))
        for m, i in MP:
            pk_mul(A, Gt(m) + i, ("p", Gt(m) + i), ("p", Tm(m) + i))
        for pr in range(2):
            ob = Up(2 * pr)
            for h in range(2):
                A(f"v_cvt_pk_bf16_f32 v{ob+2*h}, v{Gt(2*pr+h)}, v{Gt(2*pr+h)+1}")
                A(f"v_cvt_pk_bf16_f32 v{ob+2*h+1}, v{Gt(2*pr+h)+2}, v{Gt(2*pr+h)+3}")
        for pr in range(2):
            ob = Up(2 * pr)
            A(f"v_permlane16_swap_b32 v{ob}, v{ob+2}")
            A(f"v_permlane16_swap_b32 v{ob+1}, v{ob+3}")
        for pr in range(2):
            A(f"buffer_store_dwordx4 {vr(Up(2*pr))}, v{vT1}, {srd(S_WS)}, s{sTmp} offen offset:{pr*2048} sc1")


def pk(r, bc=False):
    return f"v[{r}:{r+1}]"


def pko(*bc):
    lo = ",".join("1" if b == 1 else "0" for b in bc)
    hi = ",".join("0" if b == 0 else "1" for b in bc)
    return f"op_sel:[{lo}] op_sel_hi:[{hi}]"


def opnd(x):
    k, r = x
    if k == "p":
        return pk(r), None
    assert r % 2 == 0
    return pk(r), 0


def pk_fma(A, d, a, b, c, neg_a=False):
    (ta, fa), (tb_, fb), (tc, fc) = opnd(a), opnd(b), opnd(c)
    n = " neg_lo:[1,0,0] neg_hi:[1,0,0]" if neg_a else ""
    A(f"v_pk_fma_f32 {pk(d)}, {ta}, {tb_}, {tc} {pko(fa, fb, fc)}{n}")


def pk_mul(A, d, a, b, op="mul"):
    (ta, fa), (tb_, fb) = opnd(a), opnd(b)
    A(f"v_pk_{op}_f32 {pk(d)}, {ta}, {tb_} {pko(fa, fb)}")


def phi_block(A, d, n, t, mu, cs, r, rl, eps, mixed=None):
    P = range(0, n, 2)
    ea, em, eb = mixed if mixed else (eps, eps, None)
    for i in P:
        pk_fma(A, d + i, mu(i), cs(i), ("p", d + i), neg_a=True)
    for i in P:
        if mixed:
            pk_fma(A, t + i, ("p", d + i), rl(i), ("b", eb))
        else:
            pk_mul(A, t + i, ("p", d + i), rl(i))
    for i in P:
        A(f"v_exp_f32 v{t+i}, v{t+i} clamp")
        A(f"v_exp_f32 v{t+i+1}, v{t+i+1} clamp")
        pk_fma(A, d + i, ("p", d + i), r(i), ("b", ea))
    for i in range(n):
        A(f"v_max_f32 v{d+i}, v{d+i}, v{em}")
    for i in P:
        pk_mul(A, d + i, ("p", d + i), ("p", t + i), op="add")


def k1_epi_q(A, acc):
    c = vBUF
    cs = vBUF + 8
    t = vBUF + 40
    o = vBUF + 56
    mu, r, rl, eps = c, c + 2, c + 4, c + 6
    A(f"v_lshrrev_b32 v{vT0}, 5, v{vLane}")
    A(f"v_lshlrev_b32 v{vT0}, 4, v{vT0}")
    A(f"s_mul_i32 s{sTmp}, s{sNW}, 640")
    A(f"s_add_u32 s{sTmp}, s{sTmp}, {MISC_LDS}")
    A(f"v_add_u32 v{vT0}, s{sTmp}, v{vT0}")
    A(f"v_and_b32 v{vT1}, 31, v{vLane}")
    A(f"s_lshl_b32 s{sTmp}, s{sMW}, 8")
    A(f"s_add_u32 s{sTmp}, s{sTmp}, {MISC_LDS+2048}")
    A(f"v_lshl_add_u32 v{vT1}, v{vT1}, 3, s{sTmp}")
    A(f"ds_read_b64 {vr(mu, 2)}, v{vT1}")
    for q in range(4):
        A(f"ds_read_b128 {vr(cs+4*q)}, v{vT0} offset:{q*32}")
    A("s_waitcnt lgkmcnt(4)")
    A(f"v_rsq_f32 v{r}, v{mu+1}")
    A(f"v_mov_b32 v{eps}, {f32(1e-6)}")
    A(f"v_mul_f32 v{rl}, {f32(LOG2E)}, v{r}")
    A(f"v_bfe_u32 v{vT1}, v{vLane}, 4, 1")
    A(f"v_lshlrev_b32 v{vT1}, 10, v{vT1}")
    A(f"v_lshrrev_b32 v{vT2}, 5, v{vLane}")
    A(f"v_lshl_add_u32 v{vT1}, v{vT2}, 8, v{vT1}")
    A(f"v_and_b32 v{vT2}, 15, v{vLane}")
    A(f"v_lshl_add_u32 v{vT1}, v{vT2}, 4, v{vT1}")
    A(f"s_lshl_b32 s{sTmp}, s{sRB}, 1")
    A(f"s_lshr_b32 s{sTmp2}, s{sMW}, 1")
    A(f"s_add_u32 s{sTmp}, s{sTmp}, s{sTmp2}")
    A(f"s_mul_i32 s{sTmp}, s{sTmp}, 20")
    A(f"s_sub_u32 s{sTmp2}, s{sCG}, 13")
    A(f"s_mul_i32 s{sTmp2}, s{sTmp2}, 10")
    A(f"s_add_u32 s{sTmp}, s{sTmp}, s{sTmp2}")
    A(f"s_mul_i32 s{sTmp2}, s{sNW}, 5")
    A(f"s_add_u32 s{sTmp}, s{sTmp}, s{sTmp2}")
    A(f"s_lshl_b32 s{sTmp}, s{sTmp}, 12")
    A(f"s_and_b32 s{sTmp2}, s{sMW}, 1")
    A(f"s_lshl_b32 s{sTmp2}, s{sTmp2}, 11")
    A(f"s_add_u32 s{sTmp}, s{sTmp}, s{sTmp2}")
    A(f"s_add_u32 s{sTmp}, s{sTmp}, {WS_PQ}")
    for a in range(5):
        csa = cs + 16 * (a % 2)
        if a < 4:
            for q in range(4):
                A(f"ds_read_b128 {vr(cs+16*((a+1)%2)+4*q)}, v{vT0} offset:{(a+1)*128+q*32}")
            A("s_waitcnt lgkmcnt(4)")
        else:
            A("s_waitcnt lgkmcnt(0)")
        d = acc(0, a)
        phi_block(A, d, 16, t, lambda i: ("b", mu), lambda i: ("p", csa + i), lambda i: ("b", r), lambda i: ("b", rl), eps)
        ob = o + 8 * (a % 2)
        for i in range(8):
            A(f"v_cvt_pk_bf16_f32 v{ob+i}, v{d+2*i}, v{d+2*i+1}")
        A(f"buffer_store_dwordx4 {vr(ob)}, v{vT1}, {srd(S_WS)}, s{sTmp} offen sc1")
        A(f"buffer_store_dwordx4 {vr(ob+4)}, v{vT1}, {srd(S_WS)}, s{sTmp} offen offset:512 sc1")
        A(f"s_add_u32 s{sTmp}, s{sTmp}, 4096")


KV_PAIRS = [(0, 2), (0, 3), (1, 3), (1, 4), (2, 4)]
KV_Q = [[0, 1, 2], [0, 1, 2, 3], [0, 1, 2, 3], [1, 2, 3], [0, 1]]
KV_AD = 232
KV_SLAB = [0, 14336, 135168, 149504]
KV_DUMMY = 28688


def kv_addr_setup(A):
    e, he, d0, dm = vT0, vT1, vT2, vT3
    t = vBUF + 24
    A(f"s_mul_i32 s{sTmp3}, s{sMW}, 14336")
    A(f"s_cmp_ge_u32 s{sMW}, 2")
    A(f"s_cselect_b32 s{sTmp}, {135168 - 2*14336}, 0")
    A(f"s_add_u32 s{sTmp3}, s{sTmp3}, s{sTmp}")
    A(f"s_mul_i32 s{sTmp}, s{sNW}, 6720")
    A(f"s_add_u32 s{sTmp3}, s{sTmp3}, s{sTmp}")
    A(f"v_lshlrev_b32 v{dm}, 4, v{vLane}")
    A(f"v_add_u32 v{dm}, {KV_DUMMY}, v{dm}")
    A(f"v_lshrrev_b32 v{d0}, 5, v{vLane}")
    A(f"v_lshlrev_b32 v{d0}, 2, v{d0}")
    for n, (a, b) in enumerate(KV_PAIRS):
        A(f"v_and_b32 v{e}, 31, v{vLane}")
        A(f"v_add_u32 v{e}, {32*b - 80 + 100}, v{e}")
        A(f"v_mul_u32_u24 v{he}, 205, v{e}")
        A(f"v_lshrrev_b32 v{he}, 12, v{he}")
        A(f"v_mul_u32_u24 v{e}, 80, v{e}")
        A(f"v_add_u32 v{e}, s{sTmp3}, v{e}")
        for q in KV_Q[n]:
            a0 = KV_AD + 4 * n + q
            A(f"v_add_u32 v{a0}, {32*a + 8*q + 100}, v{d0}")
            A(f"v_mul_u32_u24 v{t}, 205, v{a0}")
            A(f"v_lshrrev_b32 v{t}, 12, v{t}")
            A(f"v_cmp_eq_u32 vcc, v{t}, v{he}")
            A(f"v_lshl_add_u32 v{a0}, v{a0}, 2, v{e}")
            A(f"v_subrev_u32 v{a0}, {80*100 + 4*100}, v{a0}")
            A(f"v_cndmask_b32 v{a0}, v{dm}, v{a0}, vcc")
    A(f"v_and_b32 v{e}, 15, v{vLane}")
    A(f"v_lshrrev_b32 v{d0}, 4, v{vLane}")
    A(f"v_lshlrev_b32 v{d0}, 2, v{d0}")
    A(f"v_lshl_add_u32 v{d0}, v{e}, 4, v{d0}")
    for a in range(3):
        az = KV_AD + 20 + a
        A(f"v_add_u32 v{az}, {32*a}, v{d0}")
        A(f"v_mul_u32_u24 v{t}, 205, v{az}")
        A(f"v_lshrrev_b32 v{t}, 12, v{t}")
        A(f"v_mul_u32_u24 v{t}, 1600, v{t}")
        A(f"v_lshl_add_u32 v{az}, v{az}, 2, v{t}")
        A(f"v_add_u32 v{az}, s{sTmp3}, v{az}")
        A(f"v_add_u32 v{az}, 1600, v{az}")
        A(f"v_cmp_gt_u32 vcc, {2 if a < 2 else 1}, v{e}")
        A(f"v_cndmask_b32 v{az}, v{dm}, v{az}, vcc")


def k1_epi_kv(A, acc):
    mu = vBUF
    rr = vBUF + 16
    rl = vBUF + 32
    t = vBUF + 48
    csr = [48, 50, 244, 250, vBUF + 64]
    eps, ea, em, eb = vBUF + 66, vBUF + 68, vBUF + 69, vBUF + 70
    A(f"v_and_b32 v{vT0}, 31, v{vLane}")
    A(f"v_cmp_gt_u32 vcc, 16, v{vT0}")
    A(f"v_lshlrev_b32 v{vT0}, 2, v{vT0}")
    A(f"s_mul_i32 s{sTmp}, s{sNW}, 640")
    A(f"s_add_u32 s{sTmp}, s{sTmp}, {KV_CS}")
    A(f"v_add_u32 v{vT1}, s{sTmp}, v{vT0}")
    A(f"v_lshrrev_b32 v{vT2}, 5, v{vLane}")
    A(f"s_lshl_b32 s{sTmp}, s{sMW}, 7")
    A(f"s_add_u32 s{sTmp}, s{sTmp}, {KV_ST}")
    A(f"v_lshl_add_u32 v{vT2}, v{vT2}, 4, s{sTmp}")
    for a in range(5):
        A(f"ds_read_b32 v{csr[a]}, v{vT1} offset:{a*128}")
    for reg, off in ((mu, 0), (rr, 512), (rl, 1536)):
        for q in range(4):
            A(f"ds_read_b128 {vr(reg+4*q)}, v{vT2} offset:{off+q*32}")
    A(f"v_mov_b32 v{eps}, {f32(1e-6)}")
    A(f"v_mov_b32 v{em}, 0xff800000")
    A(f"v_cndmask_b32 v{ea}, 0, v{eps}, vcc")
    A(f"v_cndmask_b32 v{eb}, v{em}, v{ea}, vcc")
    A(f"v_cndmask_b32 v{em}, v{em}, v{eps}, vcc")
    A(f"v_min_f32 v{eb}, 0, v{eb}")
    A("s_waitcnt lgkmcnt(4)")
    cstamp(A, 1)
    op = lambda a, h: acc(0, a) + 4 * h

    def pack(a):
        d = acc(0, a)
        for i in range(8):
            A(f"v_cvt_pk_bf16_f32 v{d+i}, v{d+2*i}, v{d+2*i+1}")

    def plain(a, dst):
        d = acc(0, a)
        for i in range(0, 16, 2):
            pk_fma(A, dst + i, ("p", mu + i), ("b", csr[a]), ("p", d + i), neg_a=True)
        for i in range(0, 16, 2):
            pk_mul(A, dst + i, ("p", dst + i), ("p", rr + i))

    def phi(a, mixed=None):
        phi_block(A, acc(0, a), 16, t, lambda i: ("p", mu + i), lambda i: ("b", csr[a]), lambda i: ("p", rr + i), lambda i: ("p", rl + i), eps, mixed)
    for a in ((4, 3) if OPT['KV1'] == 1 else (3, 4)):
        plain(a, acc(0, a))
        pack(a)
    A("s_waitcnt lgkmcnt(0)")
    phi(2, (ea, em, eb))
    pack(2)
    for a in (0, 1):
        phi(a)
        pack(a)
    cstamp(A, 2)
    D = lambda n: vBUF + 16 * n
    Z = lambda a: vBUF + 80 + 4 * a
    for h in range(2):
        for n, (a, b) in enumerate(KV_PAIRS):
            A(f"v_mfma_f32_32x32x16_bf16 {vr(D(n),16)}, {vr(op(a,h))}, {vr(op(b,h))}, {vr(D(n),16) if h else 0}")
        for a in range(3):
            A(f"v_mfma_f32_16x16x32_bf16 {vr(Z(a))}, {vr(op(a,h))}, {vr(vSel)}, {vr(Z(a)) if h else 0}")
    cstamp(A, 3)
    A(f"s_cmp_lt_u32 s{sWave}, 4\ns_cbranch_scc1 L_K_nb1\ns_barrier\nL_K_nb1:\ns_nop 3")
    cstamp(A, 4)
    for n in range(5):
        for q in KV_Q[n]:
            A(f"ds_write_b128 v{KV_AD+4*n+q}, {vr(D(n)+4*q)}")
    for a in range(3):
        A(f"ds_write_b128 v{KV_AD+20+a}, {vr(Z(a))}")
    sSlab = 4
    A(f"s_sub_u32 s{sSlab}, s{sCG}, 9")
    A(f"s_mul_i32 s{sSlab}, s{sSlab}, 13440")
    A(f"s_add_u32 s{sSlab}, s{sSlab}, {WS_KVA}")
    A(f"v_lshlrev_b32 v{vT0}, 2, v0")
    A(f"v_add_u32 v{vT1}, {KV_SLAB[2]}, v{vT0}")
    A(f"v_cmp_gt_u32 vcc, {3360-6*512}, v0")
    A(f"v_mov_b32 v{vT2}, {OOB}")
    A(f"v_cndmask_b32 v{vT2}, v{vT2}, v{vT0}, vcc")
    A("s_waitcnt lgkmcnt(0)")
    cstamp(A, 5)
    A(f"s_cmp_ge_u32 s{sWave}, 4\ns_cbranch_scc1 L_K_nb2\ns_barrier\nL_K_nb2:")
    A("s_barrier")
    cstamp(A, 6)
    R = vACC
    for j in range(7):
        for m in range(4):
            A(f"ds_read_b32 v{R+4*j+m}, v{vT0 if m < 2 else vT1} offset:{j*2048 + (m%2)*14336}")
        if j >= 2:
            k = j - 2
            A("s_waitcnt lgkmcnt(8)")
            kv_atomic(A, R, k, sSlab)
    for k in (5, 6):
        A(f"s_waitcnt lgkmcnt({4*(6-k)})")
        kv_atomic(A, R, k, sSlab)


def kv_atomic(A, R, k, sSlab):
    A(f"v_add_f32 v{R+4*k}, v{R+4*k}, v{R+4*k+1}")
    A(f"v_add_f32 v{R+4*k+2}, v{R+4*k+2}, v{R+4*k+3}")
    A(f"v_add_f32 v{R+4*k}, v{R+4*k}, v{R+4*k+2}")
    A(f"buffer_atomic_add_f32 v{R+4*k}, v{vT0 if k < 6 else vT2}, {srd(S_WS)}, s{sSlab} offen offset:{(k%2)*2048}")
    if k % 2 == 1:
        A(f"s_add_u32 s{sSlab}, s{sSlab}, 4096")


def k1_aux(A):
    if OPT["CODEWARM"] == 1:
        A("s_getpc_b64 s[10:11]")
        A.label("L_pc")
        A(f"s_sub_u32 s10, s10, L_pc-{NAME}_kernel")
        A("s_subb_u32 s11, s11, 0")
        A(f"v_lshlrev_b32 v{vT0}, 7, v0")
        A(f"v_min_u32 v{vT0}, L_code_end-{NAME}_kernel-4, v{vT0}")
        A(f"global_load_dword v{vACC+8}, v{vT0}, s[10:11]")
    if OPT["TLBWARM"]:
        g = OPT["TLBWARM"]
        mk_srd(A, S_T, P_OUT, 2048 * 1280)
        A(f"v_lshlrev_b32 v{vT0}, {g}, v0")
        A(f"buffer_load_dword v{vACC+9}, v{vT0}, {srd(S_WS)}, 0 offen sc1")
        A(f"buffer_load_dword v{vACC+10}, v{vT0}, {srd(S_T)}, 0 offen sc1")
    for i in range(4):
        A(f"v_mov_b32 v{vACC+i}, 0")
    A(f"v_lshlrev_b32 v{vT0}, 4, v0")
    A(f"s_mul_i32 s{sTmp}, s{sRB}, 3360")
    A(f"s_add_u32 s{sTmp}, s{sTmp}, {WS_KVA}")
    A(f"v_add_u32 v{vT0}, s{sTmp}, v{vT0}")
    A(f"v_mov_b32 v{vT2}, {OOB}")
    A(f"v_cmp_gt_u32 vcc, 210, v0")
    A(f"v_cndmask_b32 v{vT0}, v{vT2}, v{vT0}, vcc")
    A(f"s_cmp_lg_u32 s{sWave}, 7")
    A("s_cbranch_scc1 L_A_z")
    A(f"s_lshl_b32 s{sTmp}, s{sRB}, 8")
    A(f"s_add_u32 s{sTmp}, s{sTmp}, {WS_FL}")
    A(f"v_writelane_b32 v{vT0}, s{sTmp}, 0")
    A(f"s_add_u32 s{sTmp}, s{sTmp}, {FL_ROW}")
    A(f"v_writelane_b32 v{vT0}, s{sTmp}, 3")
    A(f"s_lshl_b32 s{sTmp}, s{sRB}, 9")
    A(f"s_add_u32 s{sTmp}, s{sTmp}, {WS_FL + FL_KV}")
    A(f"v_writelane_b32 v{vT0}, s{sTmp}, 1")
    A(f"s_add_u32 s{sTmp}, s{sTmp}, 256")
    A(f"v_writelane_b32 v{vT0}, s{sTmp}, 2")
    A.label("L_A_z")
    A(f"buffer_store_dwordx4 {vr(vACC)}, v{vT0}, {srd(S_WS)}, 0 offen sc1")
    A(f"s_cmp_lg_u32 s{sWave}, 7")
    A("s_cbranch_scc1 L_A_z2")
    A("s_waitcnt vmcnt(0)")
    A(f"v_mov_b32 v{vT0}, {OOB}")
    A(f"v_writelane_b32 v{vT0}, 0, 0")
    A(f"v_mov_b32 v{vT1}, 1")
    A(f"buffer_atomic_add v{vT1}, v{vT0}, {srd(S_DBG)}, 0 offen sc1")
    A.label("L_A_z2")
    A(f"s_lshl_b32 s{sUw}, s{sRB}, 3")
    A(f"s_add_u32 s{sUw}, s{sUw}, s{sWave}")
    A(f"s_add_u32 s{sUw}, s{sUw}, 480")
    A(f"s_mul_i32 s{sUl}, s{sWave}, 12288")
    for i in range(3):
        A(f"s_add_u32 s{sU}, s{sUw}, {128*i}")
        A(f"s_add_u32 s9, s{sUl}, {4096*i}")
        w2_unit_dma(A, "s9")
    A("s_waitcnt vmcnt(12)")
    k1_stats(A, "X")
    for i in range(3):
        A("s_waitcnt vmcnt(9)")
        A(f"s_add_u32 s{sU}, s{sUw}, {128*i}")
        A(f"s_add_u32 s9, s{sUl}, {4096*i}")
        w2_unit_out(A, "s9", lambda t: vACC + 16 + 16 * i + 4 * t)
    A("s_waitcnt vmcnt(0)")
    A("s_barrier")
    stamp(A, 9, 0)
    A(f"s_cmp_lg_u32 s{sWave}, 0")
    A("s_cbranch_scc1 L_A_w")
    k1_publish(A)
    A(f"s_mov_b32 s{sSpin}, 0")
    wait_zeroed(A, "L_A_wz", False)
    poll_addr(A)
    A.label("L_A_poll")
    A("s_sleep 10")
    A(f"buffer_load_dword v{vPoll}, v{vPa}, {srd(S_WS)}, 0 offen sc1")
    A("s_waitcnt vmcnt(0)")
    poll_cmp(A)
    A(f"s_add_u32 s{sSpin}, s{sSpin}, 1")
    A(f"s_cmp_gt_u32 s{sSpin}, {SPIN_MAX}")
    A("s_cbranch_scc1 L_A_w")
    A(f"s_cmp_lg_u64 vcc, 0")
    A("s_cbranch_scc1 L_A_poll")
    A.label("L_A_w")
    A("s_barrier")
    if OPT["AUXWARM"]:
        A("s_bfe_u32 s3, s2, 0x10003")
        A("s_lshl_b32 s3, s3, 2")
        A(f"s_lshr_b32 s4, s{sWave}, 1")
        A("s_add_u32 s3, s3, s4")
        A(f"s_mul_i32 s3, s3, {74*5120}")
        A(f"s_and_b32 s4, s{sWave}, 1")
        A("s_lshl_b32 s4, s4, 13")
        A("s_add_u32 s3, s3, s4")
        A(f"s_add_u32 s3, s3, {WS_W2 + (54*5120 if OPT['AUXWARM'] < 3 else 0)}")
        A(f"v_lshlrev_b32 v{vT0}, 7, v{vLane}")
        for i in range(OPT["AUXWARM"] if OPT["AUXWARM"] > 3 else 7):
            A(f"buffer_load_dword v{vACC+i}, v{vT0}, {srd(S_WS)}, s3 offen sc1")
            A("s_add_u32 s3, s3, 16384")
    stamp(A, 3, 0)
    p2_ids(A)
    A(f"s_mov_b32 s{sWoDone}, 0")
    A(f"v_mov_b32 v{vSigA}, {OOB}")
    A(f"v_mov_b32 v{vSigV}, 0")
    A("s_branch L_p2")


def kernel1(A):
    A(".p2align 8")
    A.label(NAME + "_kernel")
    A("s_cmp_ge_u32 s2, 256")
    A("s_cbranch_scc1 L_k1_exit")
    if OPT["XMAP"]:
        A("s_lshr_b32 s3, s2, 5")
        A("s_and_b32 s2, s2, 31")
        A("s_lshl_b32 s2, s2, 3")
        A("s_or_b32 s2, s2, s3")
    load_ptrs(A)
    if OPT["CODEWARM"] == 2:
        A("s_getpc_b64 s[10:11]")
        A.label("L_pc")
        A(f"s_sub_u32 s10, s10, L_pc-{NAME}_kernel")
        A("s_subb_u32 s11, s11, 0")
        A("s_lshr_b32 s4, s2, 3")
        A("s_lshl_b32 s4, s4, 7")
        A(f"v_lshl_add_u32 v{vT0}, v0, 12, s4")
        A(f"v_min_u32 v{vT0}, L_code_end-{NAME}_kernel-4, v{vT0}")
        A("v_cmp_gt_u32 vcc, 16, v0")
        A("s_and_saveexec_b64 s[12:13], vcc")
        A("s_cbranch_execz L_nocw")
        A(f"global_load_dword v255, v{vT0}, s[10:11]")
        A.label("L_nocw")
        A("s_mov_b64 exec, s[12:13]")
    A(f"v_and_b32 v{vLane}, 63, v0")
    A(f"v_lshrrev_b32 v{vT0}, 6, v0")
    A(f"v_readfirstlane_b32 s{sWave}, v{vT0}")
    A("s_and_b32 s3, s2, 7")
    A("s_lshr_b32 s4, s2, 3")
    if OPT["AUXFIRST"] == 1:
        A("s_add_u32 s4, s4, 30")
        A("s_and_b32 s4, s4, 31")
    if OPT["AUXFIRST"] == 2:
        A("s_sub_u32 s4, 31, s4")
    A("s_lshr_b32 s5, s3, 2")
    A("s_and_b32 s6, s3, 3")
    A("s_mul_i32 s7, s6, 30")
    A("s_add_u32 s7, s7, s4")
    A(f"s_lshr_b32 s{sCG}, s7, 3")
    if OPT["CGPERM"]:
        perm = [0, 9, 1, 13, 2, 10, 3, 4, 5, 11, 6, 14, 7, 12, 8, 15]
        tab = sum(p << (4 * i) for i, p in enumerate(perm))
        A(f"s_mov_b32 s10, {tab & 0xffffffff}")
        A(f"s_mov_b32 s11, {tab >> 32}")
        A(f"s_lshl_b32 s{sCG}, s{sCG}, 2")
        A(f"s_lshr_b64 s[10:11], s[10:11], s{sCG}")
        A(f"s_and_b32 s{sCG}, s10, 15")
    A(f"s_and_b32 s{sRB}, s7, 7")
    A("s_lshl_b32 s8, s6, 1")
    A("s_add_u32 s8, s8, s4")
    A("s_sub_u32 s8, s8, 30")
    A("s_cmp_lt_u32 s4, 30")
    A(f"s_cselect_b32 s{sCG}, s{sCG}, 15")
    A(f"s_cselect_b32 s{sRB}, s{sRB}, s8")
    A("s_lshl_b32 s5, s5, 3")
    A(f"s_add_u32 s{sRB}, s{sRB}, s5")
    A(f"s_and_b32 s3, s{sRB}, 7")
    A("s_lshr_b32 s4, s3, 2")
    A(f"s_add_u32 s{sC0}, s3, s4")
    A(f"s_lshr_b32 s4, s{sRB}, 3")
    A(f"s_add_u32 s{sC0}, s{sC0}, s4")
    A("s_waitcnt lgkmcnt(0)")
    mk_srd(A, S_X, P_X, 2048 * 1280)
    mk_srd(A, S_WS, P_WS, WS_SIZE)
    mk_srd(A, S_DBG, P_DBG, 256)
    stamp(A, 0, 0)
    if OPT["P2ONLY"]:
        p2_ids(A)
        A(f"s_mov_b32 s{sWoDone}, 0")
        A(f"v_mov_b32 v{vSigA}, {OOB}")
        A(f"v_mov_b32 v{vSigV}, 0")
        A("s_branch L_p2")
    if OPT["DLY"] == 4:
        A("s_sleep 34")
    k1_stats_issue(A)
    A(f"s_cmp_eq_u32 s{sCG}, 15")
    A("s_cbranch_scc1 L_aux")
    A(f"v_lshrrev_b32 v{vT0}, 3, v{vLane}")
    A(f"v_lshrrev_b32 v{vT1}, 4, v{vLane}")
    A(f"v_and_b32 v{vT2}, 7, v{vLane}")
    A(f"v_xor_b32 v{vT1}, v{vT1}, v{vT2}")
    if OPT["NOSWZ"]: A(f"v_and_b32 v{vT1}, 7, v{vLane}")
    A(f"s_lshl_b32 s3, s{sRB}, 7")
    if OPT["SAME"]: A("s_mov_b32 s3, 0")
    A(f"s_and_b32 s4, s{sWave}, 3")
    A(f"s_lshl_b32 s{sXslot}, s4, 12")
    A(f"s_lshl_b32 s4, s4, 5")
    A("s_add_u32 s3, s3, s4")
    A(f"v_add_u32 v{vT0}, s3, v{vT0}")
    A(f"v_mul_u32_u24 v{vT0}, 1280, v{vT0}")
    A(f"v_lshl_add_u32 v{vXo}, v{vT1}, 4, v{vT0}")
    A(f"v_xor_b32 v{vT1}, 4, v{vT1}")
    A(f"v_lshl_add_u32 v{vXo+1}, v{vT1}, 4, v{vT0}")
    A(f"v_add_u32 v{vXo+1}, {8*1280}, v{vXo+1}")
    A(f"s_lshl_b32 s{sKX}, s{sC0}, 7")
    A(f"s_mov_b32 s{sKXn}, 0")
    A(f"s_cmp_ge_u32 s{sCG}, 13")
    A("s_cbranch_scc1 L_typeQ")
    A(f"s_cmp_ge_u32 s{sCG}, 9")
    A("s_cbranch_scc1 L_typeK")
    k1_gemm(A, "G")
    A.label("L_typeQ")
    k1_gemm(A, "Q")
    A.label("L_typeK")
    k1_gemm(A, "K")
    A.label("L_aux")
    k1_aux(A)
    phase2(A)
    A.label("L_k1_exit")
    A("s_endpgm")
    A.label("L_code_end")


sRB64, sC, sHo, sWo, sHb, sHe, sWb, sWe, sLast = 16, 17, 18, 19, 22, 23, 24, 25, 26
sFl, sWoDone, sWoL, sWoG, sWoI = sWslot, sRslot, sXslot, sStepW, sCSit
vL16 = 5


def p2_ids(A, vec=True):
    A("s_and_b32 s3, s2, 7")
    A("s_lshr_b32 s4, s2, 3")
    A(f"s_and_b32 s{sC}, s4, 7")
    A("s_lshr_b32 s4, s4, 3")
    A("s_lshl_b32 s3, s3, 2")
    A(f"s_add_u32 s{sRB64}, s3, s4")
    if OPT["P2SAME"] == 1:
        A(f"s_and_b32 s{sRB64}, s{sRB64}, 1")
        A(f"s_and_b32 s{sC}, s{sC}, 1")
    if OPT["P2SAME"] == 2:
        A(f"s_and_b32 s{sC}, s{sC}, 3")
    if vec:
        A(f"v_lshlrev_b32 v{vL16}, 4, v{vLane}")


WO_LDS = 32768


def wo_early(A, first, per_wave):
    A("s_lshr_b32 s4, s2, 3")
    A("s_and_b32 s4, s4, 7")
    A(f"s_mul_i32 s4, s4, {74*5120}")
    A(f"s_and_b32 s5, s{sWave}, 3")
    A(f"s_mul_i32 s5, s5, {per_wave*1024}")
    A("s_add_u32 s4, s4, s5")
    A(f"s_add_u32 s4, s4, {WS_W2 + 54*5120 + first*1024}")
    A(f"s_add_u32 s5, s5, {WO_LDS + first*1024}")
    A(f"v_lshlrev_b32 v{vT0}, 4, v{vLane}")
    for i in range(per_wave):
        if i % 4 == 0:
            A(f"s_add_u32 m0, s5, {i*1024}")
            A(f"s_add_u32 s6, s4, {i*1024}")
        A(f"buffer_load_dwordx4 v{vT0}, {srd(S_WS)}, s6 offen offset:{(i%4)*1024} sc1 lds")


def wo_setup(A):
    A(f"s_mul_i32 s{sWoL}, s{sWave}, 25600")
    A(f"s_add_u32 s{sWoL}, s{sWoL}, {WO_LDS}")
    A(f"s_mul_i32 s6, s{sC}, 74")
    A(f"s_mul_i32 s7, s{sWave}, 5")
    A("s_add_u32 s6, s6, s7")
    A("s_add_u32 s6, s6, 54")
    A("s_mul_i32 s6, s6, 5120")
    A(f"s_add_u32 s{sWoG}, s6, {WS_W2}")
    A(f"s_and_b32 s{sWoI}, s{sRB64}, 3")
    A(f"s_mul_i32 s{sWoI}, s{sWoI}, {6*1024}")


def wo_dmas():
    return [f"s_add_u32 m0, s{sWoL}, s{sWoI}\n"
            f"s_add_u32 s9, s{sWoG}, s{sWoI}\n"
            f"buffer_load_dwordx4 v{vL16}, {srd(S_WS)}, s9 offen sc1 lds\n"
            f"s_add_u32 s{sWoI}, s{sWoI}, 1024\n"
            f"s_cmp_eq_u32 s{sWoI}, {25*1024}\n"
            f"s_cselect_b32 s{sWoI}, 0, s{sWoI}" for _ in range(25)]


NK, WD, HD = 14, 6, 3
q4 = lambda a, b: list(range(a, b, 4))
WQ = q4(8, 56) + q4(128, 152) + q4(248, 256) + q4(112, 128) + q4(152, 168) + q4(200, 208)
AQ = q4(88, 112) + q4(168, 192) + q4(56, 88)
HQ = q4(192, 200) + q4(208, 248)
assert len(WQ) == 30 and len(AQ) == 20 and len(HQ) == 12 and len(set(WQ + AQ + HQ)) == 62


def ffn_setup(A):
    A(f"s_sub_u32 s3, s{sWave}, 4")
    A("s_mul_i32 s4, s3, 14")
    A("s_cmp_eq_u32 s3, 3")
    A("s_cselect_b32 s5, 1, 0")
    A("s_sub_u32 s4, s4, s5")
    A("s_cmp_ge_u32 s3, 2")
    A("s_cselect_b32 s5, 13, 14")
    A(f"s_cselect_b32 s{sLast}, {OOB}, 0")
    A(f"s_and_b32 s6, s{sRB64}, 3")
    A("s_lshl_b32 s6, s6, 1")
    A(f"s_add_u32 s6, s6, s{sC}")
    A("s_mul_i32 s6, s6, 7")
    A("s_lshr_b32 s6, s6, 2")
    A("s_sub_u32 s7, s6, s5")
    A("s_cmp_ge_u32 s6, s5")
    A("s_cselect_b32 s6, s7, s6")
    if not OPT["P2ROT"]:
        A("s_mov_b32 s6, 0")
    A(f"s_mul_i32 s{sHb}, s{sRB64}, 54")
    A(f"s_add_u32 s{sHb}, s{sHb}, s4")
    A(f"s_lshl_b32 s{sHb}, s{sHb}, 12")
    A("s_lshl_b32 s7, s5, 12")
    A(f"s_add_u32 s{sHe}, s{sHb}, s7")
    A("s_lshl_b32 s7, s6, 12")
    A(f"s_add_u32 s{sHo}, s{sHb}, s7")
    A(f"s_mul_i32 s{sWb}, s{sC}, 74")
    A(f"s_add_u32 s{sWb}, s{sWb}, s4")
    A(f"s_mul_i32 s{sWb}, s{sWb}, 5120")
    A(f"s_add_u32 s{sWb}, s{sWb}, {WS_W2}")
    A("s_mul_i32 s7, s5, 5120")
    A(f"s_add_u32 s{sWe}, s{sWb}, s7")
    A("s_mul_i32 s7, s6, 5120")
    A(f"s_add_u32 s{sWo}, s{sWb}, s7")


def ldW_groups(j):
    out = []
    pre = f"s_add_u32 s{sWo}, s{sWo}, s{sLast}\n" if j == NK - 1 else ""
    for nt in range(4):
        out.append((pre if nt == 0 else "") +
                   f"buffer_load_dwordx4 {vr(WQ[5*(j%WD)+nt])}, v{vL16}, {srd(S_WS)}, s{sWo} offen offset:{nt*1024}{HSC}")
    out.append(f"s_add_u32 s3, s{sWo}, 4096\n"
               f"buffer_load_dwordx4 {vr(WQ[5*(j%WD)+4])}, v{vL16}, {srd(S_WS)}, s3 offen{HSC}\n"
               f"s_add_u32 s{sWo}, s{sWo}, 5120\n"
               f"s_cmp_eq_u32 s{sWo}, s{sWe}\n"
               f"s_cselect_b32 s{sWo}, s{sWb}, s{sWo}")
    return out


def poll_flag(A, lab, addr_s, mask, target, vtmp):
    A(f"s_mov_b32 s{sSpin}, 0")
    A(f"v_mov_b32 v{vtmp+1}, 0")
    A.label(lab)
    A(f"buffer_load_dword v{vtmp}, v{vtmp+1}, {srd(S_WS)}, s{addr_s} offen sc1")
    A("s_waitcnt vmcnt(0)")
    A(f"v_readfirstlane_b32 s{sTmp3}, v{vtmp}")
    A(f"s_add_u32 s{sSpin}, s{sSpin}, 1")
    A(f"s_and_b32 s{sTmp3}, s{sTmp3}, {mask}")
    A(f"s_cmp_ge_u32 s{sTmp3}, {0 if OPT['P2ONLY'] else target}")
    A(f"s_cbranch_scc1 {lab}_ok")
    A(f"s_cmp_gt_u32 s{sSpin}, {SPIN_MAX}")
    A(f"s_cbranch_scc1 {lab}_ok")
    A(f"s_sleep {OPT['PSLEEP']}")
    A(f"s_branch {lab}")
    A.label(lab + "_ok")


def phase2(A):
    S_OUT = S_T
    ACC = 8
    acc = lambda nt, mt: ACC + 4 * (nt * 4 + mt)
    A.label("L_p2")
    mk_srd(A, S_OUT, P_OUT, 2048 * 1280)
    A(f"s_lshr_b32 s{sFl}, s{sRB64}, 1")
    A(f"s_lshl_b32 s{sFl}, s{sFl}, 8")
    A(f"s_add_u32 s{sFl}, s{sFl}, {WS_FL + FL_HC}")
    A.fence()
    A(f"s_cmp_ge_u32 s{sWave}, 4")
    A("s_cbranch_scc1 L2_ffn")

    def signal(n_younger):
        A(f"s_waitcnt vmcnt({n_younger}) lgkmcnt(0)")
        A("s_barrier")

    XR, OA, RA = 232, 238, 241

    def red_setup(A, ta, tb):
        for j in range(3):
            A(f"s_add_u32 s11, s{sWave}, {8*j}")
            A(f"s_lshr_b32 s12, s11, 2")
            A(f"s_and_b32 s13, s11, 3")
            A(f"s_lshl_b32 s14, s{sRB64}, 6")
            A(f"s_lshl_b32 s13, s13, 4")
            A("s_add_u32 s14, s14, s13")
            A("s_mul_i32 s14, s14, 1280")
            A(f"s_mul_i32 s15, s{sC}, 160")
            A("s_add_u32 s14, s14, s15")
            A("s_lshl_b32 s12, s12, 5")
            A("s_add_u32 s14, s14, s12")
            A("s_cmp_lt_u32 s11, 20")
            A(f"s_cselect_b32 s14, s14, {OOB}")
            A(f"v_and_b32 v{ta}, 15, v{vLane}")
            A(f"v_mul_u32_u24 v{ta}, 1280, v{ta}")
            A(f"v_lshrrev_b32 v{tb}, 4, v{vLane}")
            A(f"v_lshl_add_u32 v{ta}, v{tb}, 3, v{ta}")
            A(f"v_add_u32 v{OA+j}, s14, v{ta}")
            A(f"buffer_load_dwordx2 {vr(XR+2*j, 2)}, v{OA+j}, {srd(S_X)}, 0 offen")
            A("s_lshl_b32 s12, s11, 10")
            A(f"s_add_u32 s13, s12, {WO_LDS+5120}")
            A(f"v_add_u32 v{RA+5*j}, s13, v{vL16}")
            for f in range(4):
                A(f"s_add_u32 s13, s12, {KV_SLAB[f]}")
                A(f"s_add_u32 s14, s12, {WO_LDS + f*25600 - 14*1024}")
                A("s_cmp_lt_u32 s11, 14")
                A("s_cselect_b32 s13, s13, s14")
                A("s_cmp_lt_u32 s11, 19")
                A(f"s_cselect_b32 s13, s13, {28672 + f*1024}")
                A(f"v_add_u32 v{RA+5*j+1+f}, s13, v{vL16}")

    AD = 8
    RAW, NRAW = 56, 6
    FR = 80
    OSP = 96
    PQ = lambda mt, blk: 112 + 16 * blk + 4 * mt
    O = lambda u, mt: (OSP + 4 * mt) if u == 0 else PQ(mt, u - 1)
    DEN = 192
    NM = 224
    T = 192
    A(f"s_mul_i32 s8, s{sWave}, 14336")
    A(f"s_cmp_ge_u32 s{sWave}, 2")
    A(f"s_cselect_b32 s9, {135168 - 2*14336}, 0")
    A("s_add_u32 s8, s8, s9")
    for i in range(4):
        A(f"v_mov_b32 v{T+i}, 0")
    A(f"s_add_u32 s9, s8, 13440")
    A(f"v_mov_b32 v{vT2}, s9")
    A(f"ds_write_b128 v{vT2}, {vr(T)}")
    A(f"ds_write_b32 v{vT2}, v{T} offset:16")
    signal(0)
    A(f"s_cmp_lg_u32 s{sWave}, 0")
    A("s_cbranch_scc1 L2_nosig")
    A(f"buffer_atomic_add v{vSigV}, v{vSigA}, {srd(S_WS)}, 0 offen sc1")
    A.label("L2_nosig")
    stamp(A, 0, 1)
    if OPT["NOATT"]:
        A("s_branch L2_reduce")
    A(f"s_cmp_lg_u32 s{sWoDone}, 0")
    A("s_cbranch_scc1 L2_wodone")
    wo_setup(A)
    for g in wo_dmas():
        A(g)
    A.label("L2_wodone")
    A(f"s_mul_i32 s4, s{sWave}, 25600")
    A(f"s_add_u32 s4, s4, {WO_LDS}")
    iL, gL = T + 4, T + 5
    he = T + 12
    hd = T + 22
    ab, zb, hz = T + 6, T + 7, T + 8
    A(f"v_and_b32 v{iL}, 15, v{vLane}")
    A(f"v_lshrrev_b32 v{gL}, 4, v{vLane}")
    for Tt in range(10):
        A(f"v_add_u32 v{he+Tt}, {16*Tt}, v{iL}")
        A(f"v_mul_u32_u24 v{he+Tt}, 205, v{he+Tt}")
        A(f"v_lshrrev_b32 v{he+Tt}, 12, v{he+Tt}")
    for blk in range(5):
        for h in range(2):
            r = hd + 2 * blk + h
            A(f"v_lshlrev_b32 v{r}, 3, v{gL}")
            A(f"v_add_u32 v{r}, {32*blk+4*h}, v{r}")
            A(f"v_mul_u32_u24 v{r}, 205, v{r}")
            A(f"v_lshrrev_b32 v{r}, 12, v{r}")
    A(f"v_mul_u32_u24 v{ab}, 80, v{iL}")
    A(f"v_lshl_add_u32 v{ab}, v{gL}, 5, v{ab}")
    A(f"v_add_u32 v{ab}, s8, v{ab}")
    A(f"v_and_b32 v{hz}, 3, v{iL}")
    A(f"v_mul_u32_u24 v{zb}, 1600, v{hz}")
    A(f"v_lshl_add_u32 v{zb}, v{gL}, 5, v{zb}")
    A(f"v_add_u32 v{zb}, s8, v{zb}")
    NUM = {0: [0], 1: [0, 1], 2: [0, 1], 3: [1, 2], 4: [1, 2], 5: [2, 3], 6: [2, 3], 7: [3, 4], 8: [3, 4], 9: [4]}
    frs = []
    for ch in range(2):
        A(f"v_add_u32 v{T+9}, {4*ch}, v{hz}")
        bl = [0, 1, 2] if ch == 0 else [2, 3, 4]
        for blk in bl:
            n = len(frs)
            frs.append(("z", ch, blk, blk == bl[0], blk == bl[-1]))
            for h in range(2):
                a = AD + 2 * n + h
                A(f"v_cmp_eq_u32 vcc, v{T+9}, v{hd+2*blk+h}")
                A(f"v_add_u32 v{a}, {6400*ch+1600+128*blk+16*h}, v{zb}")
                A(f"v_cndmask_b32 v{a}, v{vT2}, v{a}, vcc")
        for Tt in range(5 * ch, 5 * ch + 5):
            for blk in NUM[Tt]:
                n = len(frs)
                frs.append(("n", Tt, blk, blk == NUM[Tt][0], blk == NUM[Tt][-1]))
                for h in range(2):
                    a = AD + 2 * n + h
                    A(f"v_cmp_eq_u32 vcc, v{he+Tt}, v{hd+2*blk+h}")
                    A(f"v_add_u32 v{a}, {1280*Tt+128*blk+16*h}, v{ab}")
                    A(f"v_cndmask_b32 v{a}, v{vT2}, v{a}, vcc")
    assert len(frs) == 24
    sM = 84
    for k in range(3):
        A(f"v_cmp_lt_u32 s[{sM+2*k}:{sM+2*k+1}], {k}, v{gL}")
    stamp(A, 7, 1, vt=vT0)
    A("s_setprio 3")
    A(f"s_lshr_b32 s10, s{sWave}, 1")
    A("s_lshl_b32 s10, 0x2000, s10")
    poll_flag(A, "L2_pq", sFl, "s10", "s10", vT0)
    stamp(A, 8, 1, vt=vT0)
    A(f"s_mul_i32 s6, s{sRB64}, 20")
    A(f"s_mul_i32 s7, s{sWave}, 5")
    A("s_add_u32 s6, s6, s7")
    A("s_lshl_b32 s6, s6, 12")
    A(f"s_add_u32 s6, s6, {WS_PQ}")
    for blk in range(5):
        for mt in range(4):
            A(f"buffer_load_dwordx4 {vr(PQ(mt, blk))}, v{vL16}, {srd(S_WS)}, s6 offen offset:{mt*1024} sc1")
        A(f"s_add_u32 s6, s6, 4096")
    A(f"s_lshl_b32 s6, s{sWave}, 3")
    A("s_and_b32 s7, s2, 7")
    A("s_add_u32 s6, s6, s7")
    A("s_lshl_b32 s6, s6, 8")
    A(f"s_add_u32 s6, s6, {WS_FL + FL_KV}")
    poll_flag(A, "L2_kv", 6, 0xff, 16, vT0)
    stamp(A, 3, 1, vt=vT0)
    A(f"s_mul_i32 s3, s{sWave}, 13440")
    A(f"s_add_u32 s3, s3, {WS_KVA}")
    for i in range(14):
        if i % 4 == 0:
            A(f"s_add_u32 m0, s8, {i*1024}")
            A(f"s_add_u32 s5, s3, {i*1024}")
        if i == 13:
            A("s_mov_b64 exec, 0xff")
        A(f"buffer_load_dwordx4 v{vL16}, {srd(S_WS)}, s5 offen offset:{(i%4)*1024} sc1 lds")
    A("s_mov_b64 exec, -1")
    A(f"s_setprio {OPT['APRIO']}")
    A("s_waitcnt vmcnt(7) lgkmcnt(0)")
    stamp(A, 9, 1, vt=vT0)
    raw = lambda k: RAW + 4 * (k % NRAW)
    fr = lambda n: FR + 4 * (n % 4)
    dst = lambda f, mt: (DEN + 8 * mt + 4 * f[1]) if f[0] == "z" else (NM + 16 * (f[1] % 2) + 4 * mt)

    def rd(n):
        if n == 12:
            A("s_waitcnt vmcnt(0)")
        for h in range(2):
            A(f"ds_read_b128 {vr(raw(2*n+h))}, v{AD+2*n+h}")

    def post(f):
        out = []
        if f[0] == "z":
            for mt in range(4):
                for i in range(4):
                    r = DEN + 8 * mt + 4 * f[1] + i
                    out.append(f"v_add_f32 v{r}, {f32(1e-6)}, v{r}")
            for mt in range(4):
                for i in range(4):
                    r = DEN + 8 * mt + 4 * f[1] + i
                    out.append(f"v_rcp_f32 v{r}, v{r}")
            return out
        Tt = f[1]
        lo, hi = (4 * Tt) // 5, (4 * Tt + 3) // 5
        sl = {}
        for mt in range(4):
            if lo == hi:
                sl[mt] = DEN + 8 * mt + lo
            else:
                thr = 5 * hi - 4 * Tt
                sl[mt] = AD + mt
                out.append(f"v_cndmask_b32 v{sl[mt]}, v{DEN+8*mt+lo}, v{DEN+8*mt+hi}, s[{sM+2*(thr-1)}:{sM+2*(thr-1)+1}]")
        for mt in range(4):
            d = dst(f, mt)
            for i in range(4):
                out.append(f"v_mul_f32 v{d+i}, v{d+i}, v{sl[mt]}")
        for mt in range(4):
            d = dst(f, mt)
            ob = O(Tt // 2, mt) + 2 * (Tt % 2)
            out.append(f"v_cvt_pk_bf16_f32 v{ob}, v{d}, v{d+1}")
            out.append(f"v_cvt_pk_bf16_f32 v{ob+1}, v{d+2}, v{d+3}")
        return out
    rd(0)
    rd(1)
    pend = []
    nxt = []
    for n in range(26):
        if n + 2 < 24:
            rd(n + 2)
        cv = []
        if n < 24:
            A(f"s_waitcnt lgkmcnt({2*min(2, 23-n)})")
            for h in range(2):
                cv.append(f"v_cvt_pk_bf16_f32 v{fr(n)+2*h}, v{raw(2*n+h)}, v{raw(2*n+h)+1}")
                cv.append(f"v_cvt_pk_bf16_f32 v{fr(n)+2*h+1}, v{raw(2*n+h)+2}, v{raw(2*n+h)+3}")
        mf = []
        if 1 <= n <= 24:
            f = frs[n - 1]
            if f[3] and f[0] == "n":
                need = [x for x in pend if x[0] <= f[1] - 2]
                for x in need:
                    A(x[1])
                pend = [x for x in pend if x[0] > f[1] - 2]
            for mt in range(4):
                d = vr(dst(f, mt))
                mf.append(f"v_mfma_f32_16x16x32_bf16 {d}, {vr(fr(n-1))}, {vr(PQ(mt, f[2]))}, {0 if f[3] else d}")
        take = pend[:14]
        pend = pend[14:]
        work = cv + [x[1] for x in take]
        for g in (interleave(mf, work) if mf else work):
            A(g)
        pend += nxt
        nxt = []
        if 1 <= n <= 24 and frs[n - 1][4]:
            f = frs[n - 1]
            nxt = [((f[1] if f[0] == "n" else 5 * f[1] - 0.5), x) for x in post(f)]
    for x in pend + nxt:
        A(x[1])
    stamp(A, 11, 1, vt=vT0)
    A(f"s_setprio {OPT['APRIO2']}")
    WF = 192
    A(f"v_add_u32 v{vT0}, s4, v{vL16}")
    A.fence()

    rd_wo = lambda u: [f"ds_read_b128 {vr(WF+20*(u%2)+4*nt)}, v{vT0} offset:{(u*5+nt)*1024}" for nt in range(5)]
    E = Asm()
    red_setup(E, vSigA, vSigV)
    rs = [t for _, t in E.lines]
    for g in rd_wo(0):
        A(g)
    for u in range(5):
        A("s_waitcnt lgkmcnt(0)")
        if u == 0:
            A(f"v_mov_b32 v{vT1}, 1")
            A(f"ds_write_b32 v{vT2}, v{vT1} offset:16")
        mf = []
        for nt in range(5):
            for mt in range(4):
                d = vr(acc(nt, mt))
                mf.append(f"v_mfma_f32_16x16x32_bf16 {d}, {vr(WF+20*(u%2)+4*nt)}, {vr(O(u, mt))}, {d if u else 0}")
        k = (len(rs) + 3) // 4
        for g in interleave(mf, (rd_wo(u + 1) if u < 4 else [], 0.2, 0.6), rs[u*k:(u+1)*k]):
            A(g)
    stamp(A, 1, 1, vt=vSigA)
    A.fence()
    for t in range(20):
        A(f"ds_write_b128 v{vT0}, {vr(ACC+4*t)} offset:{5120+t*1024}")
    A("s_branch L2_reduce")

    A.label("L2_ffn")
    q = []

    def ldW(j):
        for g in ldW_groups(j):
            A(g)
        q.extend([("W", j)] * 5)

    def ldH1(j, mt):
        if j == NK - 1 and mt == 0:
            A(f"s_add_u32 s{sHo}, s{sHo}, s{sLast}")
        A(f"buffer_load_dwordx4 {vr(HQ[4*(j%HD)+mt])}, v{vL16}, {srd(S_WS)}, s{sHo} offen offset:{mt*1024}{HSC}")
        if mt == 3:
            A(f"s_add_u32 s{sHo}, s{sHo}, 4096")
            A(f"s_cmp_eq_u32 s{sHo}, s{sHe}")
            A(f"s_cselect_b32 s{sHo}, s{sHb}, s{sHo}")
        q.append(("H", j, mt))

    def ldH(j):
        for mt in range(4):
            ldH1(j, mt)
    signal(0)
    A(f"s_cmp_lg_u32 s{sWoDone}, 0")
    A("s_cbranch_scc1 L2_ws")
    ffn_setup(A)
    A.label("L2_ws")
    A(f"s_sub_u32 s10, s{sWave}, 4")
    A("s_lshl_b32 s10, s10, 1")
    A("s_lshl_b32 s10, 7, s10")
    A(f"v_mov_b32 v{vT1}, 0")
    A(f"s_cmp_gt_u32 s{sWoDone}, 1")
    A("s_cbranch_scc1 L2_w0")
    ldW(0)
    ldW(1)
    A.label("L2_w0")
    assert OPT["NPRE"] == 2
    for j in range(2, WD):
        if j == OPT["EPOLL"]:
            A(f"buffer_load_dword v{vT2}, v{vT1}, {srd(S_WS)}, s{sFl} offen sc1")
        ldW(j)
    if OPT["EPOLL"]:
        A(f"s_waitcnt vmcnt({5*(WD-OPT['EPOLL'])})")
        A(f"v_readfirstlane_b32 s{sTmp3}, v{vT2}")
        A(f"s_and_b32 s{sTmp3}, s{sTmp3}, s10")
        A(f"s_cmp_eq_u32 s{sTmp3}, s10")
        A(f"s_cbranch_scc1 L2_h_ok")
    stamp(A, 4, 1, wave=4, vt=vT0)
    poll_flag(A, "L2_h", sFl, "s10", "s10", vT0)
    stamp(A, 5, 1, wave=4, vt=vT0)
    stamp(A, 14, 1, wave=4, vt=vT0, clk=True)
    q.clear()
    for j in range(HD):
        ldH(j)
    A(f"s_setprio {OPT['FPRIO']}")
    later = []
    for j in range(NK):
        for mt in range(4):
            last = max(i for i, e in enumerate(q) if e[1] == j and (e[0] == "W" or e[2] <= mt))
            A(f"s_waitcnt vmcnt({len(q)-1-last})")
            for nt in range(5):
                d = vr(AQ[nt*4+mt])
                if not OPT["NOMF"]: A(f"v_mfma_f32_16x16x32_bf16 {d}, {vr(WQ[5*(j%WD)+nt])}, {vr(HQ[4*(j%HD)+mt])}, {d if j else 0}")
            for fn in later:
                fn()
            later = []
            if j + HD < NK:
                later.append(lambda j=j, mt=mt: ldH1(j + HD, mt))
        if j + WD < NK:
            later.append(lambda j=j: ldW(j + WD))
    A("s_setprio 0")
    stamp(A, 6, 1, wave=4, vt=vT0)
    stamp(A, 15, 1, wave=4, vt=vT0, clk=True)
    A("s_waitcnt vmcnt(0)")
    red_setup(A, vSigA, vSigV)
    A(f"s_sub_u32 s3, s{sWave}, 4")
    A("s_mul_i32 s8, s3, 14336")
    A("s_cmp_ge_u32 s3, 2")
    A(f"s_cselect_b32 s9, {135168 - 2*14336}, 0")
    A("s_add_u32 s8, s8, s9")
    A(f"v_add_u32 v{vT0}, s8, v{vL16}")
    A("s_add_u32 s9, s8, 13456")
    A(f"v_mov_b32 v{vT2}, s9")
    A(f"s_mov_b32 s{sSpin}, 0")
    A.label("L2_wfree")
    A(f"ds_read_b32 v{vT1}, v{vT2}")
    A("s_waitcnt lgkmcnt(0)")
    A(f"v_readfirstlane_b32 s9, v{vT1}")
    A(f"s_add_u32 s{sSpin}, s{sSpin}, 1")
    A("s_cmp_eq_u32 s9, 1")
    A("s_cbranch_scc1 L2_wfree_ok")
    A(f"s_cmp_gt_u32 s{sSpin}, {SPIN_MAX*16}")
    A("s_cbranch_scc1 L2_wfree_ok")
    A("s_sleep 2")
    A("s_branch L2_wfree")
    A.label("L2_wfree_ok")
    A("s_mul_i32 s8, s3, 25600")
    A(f"s_add_u32 s8, s8, {WO_LDS}")
    A(f"v_add_u32 v{vT1}, s8, v{vL16}")
    A("s_lshl_b32 s8, s3, 10")
    A(f"v_add_u32 v{vT2}, s8, v{vL16}")
    for t in range(20):
        if t < 14:
            A(f"ds_write_b128 v{vT0}, {vr(AQ[t])} offset:{t*1024}")
        elif t < 19:
            A(f"ds_write_b128 v{vT1}, {vr(AQ[t])} offset:{(t-14)*1024}")
        else:
            A(f"ds_write_b128 v{vT2}, {vr(AQ[t])} offset:28672")

    A.label("L2_reduce")
    if OPT["DLY"] == 5:
        A("s_sleep 30")
    A("s_setprio 0")
    A("s_waitcnt lgkmcnt(0)")
    stamp(A, 12, 1, vt=vSigA)
    A("s_barrier")
    stamp(A, 13, 1, vt=vSigA)
    R = lambda j: 8 + 32 * j

    def rds(j):
        A(f"v_add_u32 v{vT0}, {2*25600}, v{RA+5*j}")
        for w in range(4):
            A(f"ds_read_b128 {vr(R(j)+4*w)}, v{RA+5*j if w < 2 else vT0} offset:{(w%2)*25600}")
        for f in range(4):
            A(f"ds_read_b128 {vr(R(j)+16+4*f)}, v{RA+5*j+1+f}")

    def fin(j):
        r = R(j)
        for st in (16, 8, 4):
            for i in range(0, st, 2):
                pk_mul(A, r + i, ("p", r + i), ("p", r + st + i), op="add")
        x0, x1 = XR + 2 * j, XR + 2 * j + 1
        A(f"v_lshlrev_b32 v{r+4}, 16, v{x0}")
        A(f"v_and_b32 v{r+5}, 0xffff0000, v{x0}")
        A(f"v_lshlrev_b32 v{r+6}, 16, v{x1}")
        A(f"v_and_b32 v{r+7}, 0xffff0000, v{x1}")
        for i in range(0, 4, 2):
            pk_mul(A, r + i, ("p", r + i), ("p", r + 4 + i), op="add")
        A(f"v_cvt_pk_bf16_f32 v{x0}, v{r}, v{r+1}")
        A(f"v_cvt_pk_bf16_f32 v{x1}, v{r+2}, v{r+3}")
        A(f"buffer_store_dwordx2 {vr(x0, 2)}, v{OA+j}, {srd(S_OUT)}, 0 offen" + ["", " sc1", " nt"][OPT["OUTSC"]])
    rds(0)
    rds(1)
    A("s_waitcnt vmcnt(0) lgkmcnt(8)")
    fin(0)
    A(f"s_cmp_ge_u32 s{sWave}, 4")
    A("s_cbranch_scc1 L2_last")
    rds(2)
    A("s_waitcnt lgkmcnt(0)")
    fin(2)
    A.label("L2_last")
    A("s_waitcnt lgkmcnt(0)")
    fin(1)
    A.label("L2_done")
    stamp(A, 2, 1, vt=vSigA)


def descriptor(name, vgpr=256):
    return f""".amdhsa_kernel {name}
  .amdhsa_next_free_vgpr {vgpr}
  .amdhsa_next_free_sgpr 102
  .amdhsa_accum_offset {vgpr}
  .amdhsa_group_segment_fixed_size 0
  .amdhsa_kernarg_size 80
  .amdhsa_user_sgpr_count 2
  .amdhsa_user_sgpr_kernarg_segment_ptr 1
  .amdhsa_system_sgpr_workgroup_id_x 1
.end_amdhsa_kernel
"""


def probe(A):
    A(".p2align 8")
    A.label("pre_kernel")
    if OPT["PROBE"] in (4, 5):
        A("s_cmp_ge_u32 s2, 64")
        A("s_cbranch_scc1 L_pre_exit")
        load_ptrs(A)
        A("s_lshr_b32 s3, s2, 3")
        A("s_lshl_b32 s3, s3, 9")
        A("v_add_u32 v1, s3, v0")
        A("v_lshlrev_b32 v1, 12, v1")
        A("s_waitcnt lgkmcnt(0)")
        lst = ((P_WS, WS_SIZE), (P_OUT, 2048*1280))
        if OPT["PROBE"] == 5:
            lst += ((P_X, 2048*1280), (P_WQKV, 640*3840), (P_WO, 640*1280), (P_G, 640*3456), (P_U, 640*3456), (P_D, 1728*1280))
        for k, (p, n) in enumerate(lst):
            mk_srd(A, 36 + 4*k, p, n)
            A(f"buffer_load_dword v{2+k}, v1, {srd(36+4*k)}, 0 offen")
        A("s_waitcnt vmcnt(0)")
        A.label("L_pre_exit")
    if OPT["PROBE"] == 2:
        A("s_cmp_ge_u32 s2, 256")
        A("s_cbranch_scc1 L_pre_exit")
        load_ptrs(A)
        A("s_lshl_b32 s3, s2, 9")
        A("v_add_u32 v1, s3, v0")
        A("v_lshlrev_b32 v1, 5, v1")
        A("s_waitcnt lgkmcnt(0)")
        for k, (p, n) in enumerate(((P_X, 2048*1280), (P_WQKV, 640*3840), (P_WO, 640*1280), (P_G, 640*3456), (P_U, 640*3456), (P_D, 1728*1280))):
            mk_srd(A, 36 + 4*k, p, n)
            A(f"buffer_load_dword v{2+k}, v1, {srd(36+4*k)}, 0 offen")
        A("s_waitcnt vmcnt(0)")
        A.label("L_pre_exit")
    A("s_endpgm")


def main():
    A = Asm()
    kernel1(A)
    K = NAME + "_kernel"
    launch = f"; @launch grid=(256,1,1) block=(512,1,1) lds={LDS_TOTAL}"
    extra = ""
    if OPT["PROBE"]:
        probe(A)
        launch = f"; @launch kernel=pre_kernel grid=(256,1,1) block=(512,1,1) lds=0\n; @launch kernel={K} grid=(256,1,1) block=(512,1,1) lds={LDS_TOTAL}"
        if OPT["PROBE"] == 3:
            launch = f"; @launch kernel={K} grid=(256,1,1) block=(512,1,1) lds={LDS_TOTAL}\n; @launch kernel={K} grid=(256,1,1) block=(512,1,1) lds={LDS_TOTAL}"
        extra = ".p2align 6\n" + descriptor("pre_kernel", 16)
    head = f"""; LN + linear attention + GEGLU FFN, one persistent launch (generated by dev/gen.py)
{launch}
.amdgcn_target "amdgcn-amd-amdhsa--gfx950"
.text
.globl {K}
.type {K},@function
"""
    tail = '.section .rodata,"a"\n.p2align 6\n' + descriptor(K) + extra
    open(sys.argv[1], "w").write(head + A.render() + tail)


main()
```

```python
import sys, struct, math
from asmlib import Asm, interleave

NAME = "parallel_sum__linear_attn_block__geglu_ffn__prompt"

OPT = dict(ROTQ=1, STAMP=0, NODMA=0, SAME=0, NOSWZ=0, NORD=0, P2ROT=1, WARM=1, PLAIN=0, BYTEFLAG=0, NBUP=6, SW=0, P2ONLY=0, P2SAME=0, NOATT=0, NOMF=0, FPRIO=1, NPRE=2, CGPERM=0, OUTSC=0, CODEWARM=2, TLBWARM=0, PUBST=0, GPK=1, APRIO=2, APRIO2=0, FINEH=1, XMAP=0, FAKE16=0, PSLEEP=2, EPOLL=0, PROBE=0, WOEPI=0, NXA=0, XPOS=1, G16=1, DLY=0, KV1=0, AUXWARM=5, AUXFIRST=1, NOHWAIT=0, WEARLY=6)
for a in sys.argv[2:]:
    k, v = a.split("=")
    OPT[k] = int(v)

OPT_WOEPI = ['', 'K', 'KQ', 'KQG'][OPT['WOEPI']]
HSC = '' if OPT['PLAIN'] else ' sc1'
WS_H = 0x000000
WS_PQ = 0x700000
WS_W2 = 0xA00000
WS_ST = 0xD00000
WS_CS = 0xD10000
WS_KVA = 0xD80000
WS_FL = 0xD90000
FL_HC = 0
FL_KV = 16 * 256
FL_ROW = 128
WS_STAMP = 0xF00000
WS_SIZE = 0x1000000
OOB = 0x40000000


def f32(x):
    return "0x%08x" % struct.unpack("<I", struct.pack("<f", x))[0]


LOG2E = 1.4426950408889634
GC1 = -2.0 * math.sqrt(2.0 / math.pi) * LOG2E
GC2 = GC1 * 0.044715

P_X, P_WQKV, P_WO, P_BX, P_G, P_U, P_D, P_OUT, P_DBG, P_WS = 16, 18, 20, 22, 24, 26, 28, 30, 32, 34
S_X, S_W, S_WS, S_DBG, S_T = 36, 40, 44, 48, 52


def srd(b):
    return f"s[{b}:{b+3}]"


def vr(b, n=4):
    return f"v[{b}:{b+n-1}]"


def mk_srd(A, s, p, nbytes):
    A(f"s_mov_b32 s{s}, s{p}")
    A(f"s_and_b32 s{s+1}, s{p+1}, 0xffff")
    A(f"s_mov_b32 s{s+2}, {nbytes}")
    A(f"s_mov_b32 s{s+3}, 0x20000")


def load_ptrs(A):
    A("s_load_dwordx16 s[16:31], s[0:1], 0")
    A("s_load_dwordx4 s[32:35], s[0:1], 64")


def wave_allreduce_add(A, v, t, s0):
    A(f"v_add_f32_dpp v{v}, v{v}, v{v} quad_perm:[1,0,3,2] row_mask:0xf bank_mask:0xf")
    A(f"v_add_f32_dpp v{v}, v{v}, v{v} quad_perm:[2,3,0,1] row_mask:0xf bank_mask:0xf")
    A(f"v_add_f32_dpp v{v}, v{v}, v{v} row_half_mirror row_mask:0xf bank_mask:0xf")
    A(f"v_add_f32_dpp v{v}, v{v}, v{v} row_mirror row_mask:0xf bank_mask:0xf")
    for i in range(4):
        A(f"v_readlane_b32 s{s0+i}, v{v}, {16*i}")
    A(f"v_mov_b32 v{v}, s{s0}")
    A(f"v_mov_b32 v{t}, s{s0+2}")
    A(f"v_add_f32 v{v}, s{s0+1}, v{v}")
    A(f"v_add_f32 v{t}, s{s0+3}, v{t}")
    A(f"v_add_f32 v{v}, v{v}, v{t}")


def lstamp(A, k):
    if OPT["STAMP"] != 4:
        return
    A("s_memrealtime s[96:97]")
    A("s_waitcnt lgkmcnt(0)")
    A(f"v_writelane_b32 v28, s96, {k}")


def cstamp(A, k):
    if OPT["STAMP"] != 7:
        return
    A("s_memtime s[96:97]\ns_waitcnt lgkmcnt(0)\n" + f"v_writelane_b32 v48, s96, {k}")


def stamp(A, idx, kern, dyn=None, clk=False, wave=0, vt=None):
    if vt is None:
        vt = (26 if idx != 3 else 50) if kern == 0 else 254
    if not OPT["STAMP"]:
        return
    if OPT["STAMP"] == 8:
        slot = {(0, 0): 2, (0, 1): 4, (0, 2): 6, (0, 3): 8, (1, 3): 10, (1, 1): 12, (1, 2): 14}.get((kern, idx))
        if slot is None or clk or wave != 0:
            return
        lab = f"L_st_{kern}_{idx}_{len(A.lines)}"
        A(f"s_or_b32 s98, s{sWave}, s2")
        A("s_cmp_lg_u32 s98, 0")
        A(f"s_cbranch_scc1 {lab}")
        A("s_memrealtime s[96:97]")
        A("s_memtime s[98:99]")
        A("s_waitcnt lgkmcnt(0)")
        A(f"v_mov_b32 v{vt}, s96")
        A(f"buffer_store_dword v{vt}, off, {srd(S_DBG)}, 0 offset:{slot*4}")
        A(f"v_mov_b32 v{vt+1}, s98")
        A(f"buffer_store_dword v{vt+1}, off, {srd(S_DBG)}, 0 offset:{slot*4+4}")
        A.label(lab)
        return
    if OPT["STAMP"] == 9:
        slot = {(0, 0): (1, True), (0, 1): (2, False), (0, 2): (3, False), (0, 3): (5, False), (1, 0): (6, False), (1, 5): (7, False),
                (1, 3): (9, False), (1, 1): (10, False), (1, 2): (11, False), (1, 6): (13, False)}.get((kern, idx))
        if slot is None or clk:
            return
        lab = f"L_st_{kern}_{idx}_{len(A.lines)}"
        A(f"s_cmp_lg_u32 s{sWave}, {wave}")
        A(f"s_cbranch_scc1 {lab}")
        A("s_memrealtime s[96:97]")
        A("s_waitcnt lgkmcnt(0)")
        if slot[1]:
            A("s_not_b32 s96, s96")
        A(f"v_mov_b32 v{vt}, s96")
        A(f"v_mov_b32 v{vt+1}, {OOB}")
        A(f"v_writelane_b32 v{vt+1}, {slot[0]*4}, 0")
        A(f"buffer_atomic_umax v{vt}, v{vt+1}, {srd(S_DBG)}, 0 offen sc1")
        A.label(lab)
        return
    lab = f"L_st_{kern}_{idx}_{len(A.lines)}"
    A(f"s_cmp_lg_u32 s{sWave}, {wave}")
    A(f"s_cbranch_scc1 {lab}")
    A("s_memtime s[96:97]" if clk else "s_memrealtime s[96:97]")
    A("s_waitcnt lgkmcnt(0)")
    A(f"s_lshl_b32 s98, s2, 6")
    A(f"s_add_u32 s98, s98, {WS_STAMP + kern*0x8000 + idx*4}")
    if dyn is not None:
        A(f"s_lshl_b32 s99, s{dyn}, 2")
        A("s_add_u32 s98, s98, s99")
    A(f"v_mov_b32 v{vt}, s96")
    A(f"v_mov_b32 v{vt+1}, 0")
    A(f"buffer_store_dword v{vt}, v{vt+1}, {srd(S_WS)}, s98 offen")
    A.label(lab)


sWave, sRB, sCG, sIt, sKW, sKWn, sKX, sKXn, sWslot, sRslot, sXslot, sStepW, sCSit, sSpec, sTmp, sTmp2, sMW, sNW, sWrapW, sTmp3, sC0, sRow, sSpin, sOdd, sPub, sUw, sUl = range(56, 83)
X_LDS = 0
W_LDS = 32768
W_SLOT = 24576
MISC_LDS = W_LDS + 5 * W_SLOT
LDS_TOTAL = 163840
KV_CS = MISC_LDS
KV_ST = MISC_LDS + 2048

vLane, vT0, vT1, vT2, vT3 = 1, 2, 3, 4, 5
vSigA, vSigV = 6, 7
vXo = 6
vWo = 8
vXa = 11
vWb = 15
vWa = 20
vPa = 25
SPIN_MAX = 0x100000
vSel = 52
vPoll = 30
vCSA = 32
vCSP = 32
vSt = 31
KST = lambda j: (44 + 4 * j) if j < 3 else (232 + 4 * (j - 3))
vBUF = 56
vACC = 152


KVT = [[(0, 0), (0, 1), (0, 2), (1, 0), (1, 1)], [(0, 3), (0, 4), (1, 2), (1, 3), (1, 4)]]


def k1_gemm(A, typ):
    G = typ == "G"
    MT = 2 if G else 1
    NT = 3 if G else 5
    NW_ = 6 if G else 5
    pitch = 3456 if G else 3840
    XB = lambda P, mt, kk: vBUF + 48 * P + 4 * (mt * 2 + kk)
    WBf = lambda P, a, kk: vBUF + 48 * P + 4 * MT * 2 + 4 * (a * 2 + kk)
    acc = lambda mt, a: vACC + 16 * (mt * NT + a)
    L = lambda s: f"L_{typ}_{s}"
    S16 = G and OPT["G16"]
    sel = 248 if S16 else vSel
    NCS = 6 if S16 else NT

    if G:
        A(f"s_lshr_b32 s{sMW}, s{sWave}, 2")
        A(f"s_and_b32 s{sNW}, s{sWave}, 3")
        mk_srd(A, S_W, P_G, 640 * 3456)
        mk_srd(A, S_T, P_U, 640 * 3456)
    else:
        A(f"s_lshr_b32 s{sMW}, s{sWave}, 1")
        A(f"s_and_b32 s{sNW}, s{sWave}, 1")
        mk_srd(A, S_W, P_WQKV, 640 * 3840)
    A(f"s_and_b32 s{sTmp2}, s{sWave}, 3")
    A(f"v_lshrrev_b32 v{vT0}, 3, v{vLane}")
    A(f"s_lshl_b32 s{sTmp3}, s{sTmp2}, 3")
    A(f"v_add_u32 v{vT0}, s{sTmp3}, v{vT0}")
    A(f"v_mul_u32_u24 v{vT0}, {pitch}, v{vT0}")
    A(f"v_and_b32 v{vT1}, 7, v{vLane}")
    A(f"v_lshrrev_b32 v{vT2}, 2, v{vLane}")
    A(f"v_and_b32 v{vT2}, 4, v{vT2}")
    A(f"v_xor_b32 v{vT1}, v{vT1}, v{vT2}")
    if G:
        A(f"s_mul_i32 s{sTmp3}, s{sCG}, {0 if OPT['SAME'] else 384}")
        A(f"v_add_u32 v{vT0}, s{sTmp3}, v{vT0}")
        if S16:
            A(f"s_and_b32 s{sTmp3}, s{sWave}, 1")
            A(f"s_lshl_b32 s{sTmp3}, s{sTmp3}, 1")
            A(f"v_xor_b32 v{vT1}, s{sTmp3}, v{vT1}")
        A(f"v_lshl_add_u32 v{vWo}, v{vT1}, 4, v{vT0}")
        if not S16:
            A(f"v_xor_b32 v{vT1}, 2, v{vT1}")
        A(f"v_lshl_add_u32 v{vWo+1}, v{vT1}, 4, v{vT0}")
        chunks = [(S_W, vWo, 0), (S_W, vWo, 128), (S_W, vWo, 256), (S_T, vWo + 1, 0), (S_T, vWo + 1, 128), (S_T, vWo + 1, 256)]
    elif typ == "Q":
        A(f"s_sub_u32 s{sTmp3}, s{sCG}, 13")
        A(f"s_mul_i32 s{sTmp3}, s{sTmp3}, 640")
        A(f"v_add_u32 v{vT0}, s{sTmp3}, v{vT0}")
        A(f"v_lshl_add_u32 v{vWo}, v{vT1}, 4, v{vT0}")
        chunks = [(S_W, vWo, 128 * i) for i in range(5)]
    else:
        A(f"s_sub_u32 s4, s{sCG}, 9")
        A(f"s_and_b32 s{sOdd}, s4, 1")
        A(f"s_mul_i32 s6, s4, 320")
        A(f"s_add_u32 s6, s6, 1280")
        A(f"s_lshl_b32 s7, s{sOdd}, 6")
        A(f"s_add_u32 s7, s7, s6")
        A(f"s_cmp_eq_u32 s{sOdd}, 0")
        A(f"s_cselect_b32 s8, 256, 0")
        A(f"s_add_u32 s8, s8, s6")
        A(f"v_lshl_add_u32 v{vT2}, v{vT1}, 4, v{vT0}")
        A(f"v_add_u32 v{vWo}, s7, v{vT2}")
        A(f"v_xor_b32 v{vT3}, 2, v{vT1}")
        A(f"v_lshl_add_u32 v{vT2}, v{vT3}, 4, v{vT0}")
        A(f"v_add_u32 v{vWo+2}, s7, v{vT2}")
        A(f"v_lshrrev_b32 v{vT2}, 2, v{vT1}")
        A(f"v_lshlrev_b32 v{vT3}, 1, v{vT2}")
        A(f"v_xor_b32 v{vT3}, v{vT3}, v{vT1}")
        A(f"v_and_b32 v{vT3}, 3, v{vT3}")
        A(f"v_lshl_add_u32 v{vT3}, v{vT3}, 4, v{vT0}")
        A(f"v_mul_u32_u24 v{vT2}, 1280, v{vT2}")
        A(f"v_add3_u32 v{vWo+1}, v{vT3}, v{vT2}, s8")
        chunks = [(S_W, vWo, 0), (S_W, vWo, 128), (S_W, vWo + 2, 1280), (S_W, vWo + 2, 1408), (S_W, vWo + 1, 0)]
    A(f"s_lshr_b32 s{sTmp}, s{sWave}, 2")
    A(f"s_lshl_b32 s{sTmp2}, s{sTmp2}, 10")
    A(f"s_add_u32 s{sWrapW}, s{sTmp2}, {W_LDS + 5*W_SLOT}")
    A(f"s_mul_i32 s{sWslot}, s{sTmp}, {W_SLOT}")
    A(f"s_add_u32 s{sWslot}, s{sWslot}, s{sTmp2}")
    A(f"s_add_u32 s{sWslot}, s{sWslot}, {W_LDS}")
    A(f"s_mul_i32 s{sKW}, s{sC0}, {64*pitch}")
    A(f"s_mul_i32 s{sTmp}, s{sTmp}, {32*pitch}")
    A(f"s_add_u32 s{sKW}, s{sKW}, s{sTmp}")
    A(f"s_mov_b32 s{sKWn}, 0")

    def dmaW():
        out = []
        for i, (sr, vo, imm) in enumerate(chunks):
            out.append(f"s_add_u32 m0, s{sWslot}, {i*4096 - imm}\n" +
                       "s_nop 0\n" +
                       f"buffer_load_dwordx4 v{vo}, {srd(sr)}, s{sKW} offen offset:{imm} lds")
        out.append(f"s_add_u32 s{sWslot}, s{sWslot}, {2*W_SLOT}\n"
                   f"s_cmp_ge_u32 s{sWslot}, s{sWrapW}\n"
                   f"s_cselect_b32 s{sTmp}, {5*W_SLOT}, 0\n"
                   f"s_sub_u32 s{sWslot}, s{sWslot}, s{sTmp}\n"
                   f"s_add_u32 s{sKW}, s{sKW}, {64*pitch}\n"
                   f"s_cmp_ge_u32 s{sKW}, {640*pitch}\n"
                   f"s_cselect_b32 s{sTmp}, {640*pitch}, 0\n"
                   f"s_sub_u32 s{sKW}, s{sKW}, s{sTmp}")
        return out

    def dmaX():
        out = []
        for i in range(4):
            out.append(f"s_add_u32 m0, s{sXslot}, {i*1024}\n" +
                       f"s_add_u32 s{sTmp}, s{sKX}, {16*1280}\n" +
                       f"buffer_load_dwordx4 v{vXo+i%2}, {srd(S_X)}, s{sKX if i < 2 else sTmp} offen lds")
        out.append(f"s_xor_b32 s{sXslot}, s{sXslot}, 16384\n"
                   f"s_add_u32 s{sKX}, s{sKX}, 128\n"
                   f"s_cmp_eq_u32 s{sKX}, 1280\n"
                   f"s_cselect_b32 s{sKX}, 0, s{sKX}")
        return out

    A(f"s_cmp_lt_u32 s{sWave}, 4")
    A(f"s_cbranch_scc1 {L('p1')}")
    for g in dmaX():
        A(g)
    A(f"s_branch {L('p2')}")
    A.label(L("p1"))
    for g in dmaW():
        A(g)
    A.label(L("p2"))
    lstamp(A, 16)

    if OPT["STAMP"] == 3:
        stamp(A, 4, 0, wave=OPT["SW"])
    if S16:
        A(f"v_and_b32 v{vT0}, 15, v{vLane}")
        A(f"v_lshrrev_b32 v{vT1}, 4, v{vLane}")
        A(f"v_bfe_u32 v{vT2}, v{vLane}, 1, 3")
        A(f"v_xor_b32 v{vT1}, v{vT1}, v{vT2}")
        A(f"s_lshl_b32 s{sTmp}, s{sMW}, 13")
        A(f"v_lshl_add_u32 v{vT0}, v{vT0}, 7, s{sTmp}")
        for kap in range(2):
            A(f"v_xor_b32 v{vT2}, {4*kap}, v{vT1}")
            A(f"v_lshl_add_u32 v{vXa+2*kap}, v{vT2}, 4, v{vT0}")
            A(f"v_add_u32 v{vXa+2*kap+1}, 2048, v{vXa+2*kap}")
    else:
        A(f"v_and_b32 v{vT0}, 31, v{vLane}")
        A(f"v_lshrrev_b32 v{vT1}, 5, v{vLane}")
        A(f"v_bfe_u32 v{vT2}, v{vLane}, 1, 3")
        A(f"v_xor_b32 v{vT1}, v{vT1}, v{vT2}")
        A(f"s_lshl_b32 s{sTmp}, s{sMW}, {13 if G else 12}")
        A(f"v_lshl_add_u32 v{vT0}, v{vT0}, 7, s{sTmp}")
        for kap in range(2):
            for kk in range(2):
                A(f"v_xor_b32 v{vT2}, {4*kap+2*kk}, v{vT1}")
                A(f"v_lshl_add_u32 v{vXa+2*kap+kk}, v{vT2}, 4, v{vT0}")
    A(f"v_lshrrev_b32 v{vT0}, {4 if S16 else 5}, v{vLane}")
    A(f"v_lshlrev_b32 v{vT0}, 10, v{vT0}")
    A(f"v_bfe_u32 v{vT1}, v{vLane}, 2, 2")
    A(f"v_lshl_add_u32 v{vT0}, v{vT1}, 7, v{vT0}")
    A(f"v_and_b32 v{vT2}, 3, v{vLane}")
    if typ != "K" and not S16:
        A(f"v_lshlrev_b32 v{vT3}, 1, v{vT2}")
        A(f"v_lshrrev_b32 v{vT2}, 1, v{vT2}")
        A(f"v_and_b32 v{vT3}, 2, v{vT3}")
        A(f"v_or_b32 v{vT2}, v{vT2}, v{vT3}")
    A(f"v_lshl_add_u32 v{vT0}, v{vT2}, 3, v{vT0}")
    A(f"v_and_b32 v{vT1}, 2, v{vT1}")
    A(f"v_bfe_u32 v{vT2}, v{vLane}, 4, 1")
    A(f"v_xor_b32 v{vT1}, v{vT1}, v{vT2}")
    if G:
        if not S16:
            A(f"v_mul_u32_u24 v{vT2}, {3*4096}, v{vT2}")
            A(f"v_add_u32 v{vT0}, v{vT0}, v{vT2}")
        for a in range(3):
            A(f"s_mul_i32 s{sTmp}, s{sNW}, 3")
            A(f"s_add_u32 s{sTmp}, s{sTmp}, {a}")
            A(f"s_lshr_b32 s{sTmp2}, s{sTmp}, 2")
            A(f"s_lshl_b32 s{sTmp2}, s{sTmp2}, 12")
            A(f"s_and_b32 s{sTmp}, s{sTmp}, 3")
            A(f"v_xor_b32 v{vT2}, s{sTmp}, v{vT1}")
            A(f"v_lshl_add_u32 v{vT2}, v{vT2}, 5, v{vT0}")
            A(f"v_add_u32 v{vWb+a}, s{sTmp2}, v{vT2}")
    else:
        for a in range(5):
            if typ == "Q":
                A(f"s_mul_i32 s{sTmp}, s{sNW}, 5")
                A(f"s_add_u32 s{sTmp}, s{sTmp}, {a}")
                A(f"s_lshr_b32 s{sTmp2}, s{sTmp}, 1")
                A(f"s_lshl_b32 s{sTmp2}, s{sTmp2}, 12")
                A(f"s_and_b32 s{sTmp}, s{sTmp}, 1")
                A(f"s_lshl_b32 s{sTmp}, s{sTmp}, 1")
                A(f"v_xor_b32 v{vT2}, s{sTmp}, v{vT1}")
                A(f"v_lshl_add_u32 v{vT2}, v{vT2}, 5, v{vT0}")
                A(f"v_add_u32 v{vWb+a}, s{sTmp2}, v{vT2}")
            else:
                def loc(pi, nw, odd):
                    m, p = pi // 5, 5 * nw + pi % 5
                    if odd:
                        L_, tau = (4, p + 2 * m) if p < 2 else (2 * m + ((p - 2) >> 2), (p - 2) & 3)
                    else:
                        L_, tau = (4, p - 8 + 2 * m) if p >= 8 else (2 * m + (p >> 2), p & 3)
                    return L_ * 4 + (tau ^ m)
                if a == 0:
                    A(f"s_lshl_b32 s9, s{sNW}, 1")
                    A(f"s_add_u32 s9, s9, s{sOdd}")
                    A("s_lshl_b32 s9, s9, 3")
                    A(f"v_bfe_u32 v{vT2}, v{vLane}, 4, 1")
                    A(f"v_cmp_eq_u32 vcc, 1, v{vT2}")
                    A(f"v_and_b32 v{vT1}, 2, v{vT1}")
                for sub, sr in ((0, sTmp), (1, sTmp2)):
                    tab = sum(loc(2 * a + sub, nw, odd) << (8 * (2 * nw + odd)) for nw in range(2) for odd in range(2))
                    A(f"s_lshr_b32 s{sr}, {tab}, s9")
                    A(f"s_and_b32 s{sr}, s{sr}, 0xff")
                A(f"v_mov_b32 v{vT2}, s{sTmp}")
                A(f"v_mov_b32 v{vT3}, s{sTmp2}")
                A(f"v_cndmask_b32 v{vT2}, v{vT2}, v{vT3}, vcc")
                A(f"v_lshrrev_b32 v{vT3}, 2, v{vT2}")
                A(f"v_lshl_add_u32 v{vT3}, v{vT3}, 12, v{vT0}")
                A(f"v_and_b32 v{vT2}, 3, v{vT2}")
                A(f"v_xor_b32 v{vT2}, v{vT2}, v{vT1}")
                A(f"v_lshl_add_u32 v{vWb+a}, v{vT2}, 5, v{vT3}")
        if typ == "K":
            kv_addr_setup(A)
    A(f"s_mov_b32 s{sRslot}, {W_LDS}")
    poll_addr(A)
    A(f"v_and_b32 v{vT0}, 15, v{vLane}")
    A(f"v_bfe_u32 v{vT1}, v{vLane}, 4, 1")
    A(f"v_cmp_eq_u32 vcc, v{vT0}, v{vT1}")
    A(f"v_mov_b32 v{vT2}, 0x3f803f80")
    A(f"v_cndmask_b32 v{vSel}, 0, v{vT2}, vcc")
    for i in range(1, 4):
        A(f"v_mov_b32 v{vSel+i}, v{vSel}")
    if S16:
        for i in range(4):
            A(f"v_mov_b32 v{sel+i}, 0x3f803f80")
    for i in range(4 * NCS):
        A(f"v_mov_b32 v{vCSA+i}, 0")
    for i in range(16 * MT * NT):
        A(f"v_mov_b32 v{vACC+i}, 0")
    A(f"s_mov_b32 s{sPub}, 2")
    A(f"s_bitcmp1_b32 0x88ff, s{sRB}")
    A(f"s_cselect_b32 s{sCSit}, 0, 99")
    A(f"s_cmp_eq_u32 s{sMW}, 0")
    A(f"s_cselect_b32 s{sCSit}, s{sCSit}, 99")
    A(f"s_mov_b32 s{sTmp}, 0xe")
    A(f"s_cmp_eq_u32 s{sWave}, 0")
    A(f"s_cselect_b32 s{sSpec}, s{sTmp}, 0")
    A(f"s_cmp_eq_u32 s{sWave}, 3")
    A(f"s_cselect_b32 s{sTmp}, 0xc0, 0")
    A(f"s_or_b32 s{sSpec}, s{sSpec}, s{sTmp}")
    A(f"s_or_b32 s{sSpec}, s{sSpec}, 0x300")
    A(f"s_mov_b32 s{sIt}, 0")
    A(f"s_mov_b32 s{sSpin}, 0")
    p2_ids(A, vec=False)
    ffn_setup(A)
    A(f"s_cmp_lt_u32 s{sWave}, 4")
    A(f"s_cselect_b32 s{sWo}, {OOB}, s{sWo}")

    def reads(P, kap):
        pre = [f"v_add_u32 v{vWa+a}, s{sRslot}, v{vWb+a}" for a in range(NT)]
        post = [f"s_add_u32 s{sRslot}, s{sRslot}, {W_SLOT}\n"
                f"s_cmp_eq_u32 s{sRslot}, {W_LDS+5*W_SLOT}\n"
                f"s_cselect_b32 s{sRslot}, {W_LDS}, s{sRslot}"]
        rx = lambda mt, kk: [f"ds_read_b128 {vr(XB(P, mt, kk))}, v{vXa+2*kap+kk} offset:{mt*4096}"]
        rw = lambda a, kk: [f"ds_read_b64_tr_b16 {vr(WBf(P, a, kk)+2*rho, 2)}, v{vWa+a} offset:{kk*(12288 if S16 else 2048)+rho*512}" for rho in range(2)]
        if S16:
            out = rw(0, 0) + rw(1, 0) + rw(2, 0) + rw(0, 1) + rw(1, 1) + rx(0, 0) + rx(1, 0) + rx(0, 1) + rx(1, 1) + rw(2, 1)
        else:
            out = []
            for kk in range(2):
                for a in range(NT):
                    out += rw(a, kk)
                for mt in range(MT):
                    out += rx(mt, kk)
        if OPT["NORD"]:
            out = []
        return pre, out, post

    def mfmas(P):
        out = []
        if S16:
            for kw in range(2):
                for a in range(3):
                    for t in (0, 2, 1, 3):
                        d = vr(acc16(t, a, kw))
                        out.append(f"v_mfma_f32_16x16x32_bf16 {d}, {vr(WBf(P, a, kw))}, {vr(XB(P, t // 2, t % 2))}, {d}")
            return out
        for kk in range(2):
            for a in range(NT):
                for mt in range(MT):
                    x, w, d = vr(XB(P, mt, kk)), vr(WBf(P, a, kk)), vr(acc(mt, a), 16)
                    if OPT["FAKE16"]:
                        for h in range(2):
                            dq = vr(acc(mt, a) + 8 * kk + 4 * h)
                            x2 = vr(XB(P, mt, h))
                            out.append(f"v_mfma_f32_16x16x32_bf16 {dq}, {w}, {x2}, {dq}")
                    elif typ == "K":
                        out.append(f"v_mfma_f32_32x32x16_bf16 {d}, {x}, {w}, {d}")
                    else:
                        out.append(f"v_mfma_f32_32x32x16_bf16 {d}, {w}, {x}, {d}")
        return out

    def cs_mfmas(P):
        if S16:
            return [f"v_mfma_f32_16x16x32_bf16 {vr(vCSA+4*(2*a+kk))}, {vr(WBf(P, a, kk))}, {vr(sel)}, {vr(vCSA+4*(2*a+kk))}"
                    for kk in range(2) for a in range(3)]
        return [f"v_mfma_f32_16x16x32_bf16 {vr(vCSA+4*a)}, {vr(WBf(P, a, kk))}, {vr(vSel)}, {vr(vCSA+4*a)}"
                for kk in range(2) for a in range(NT)]

    if OPT["STAMP"] == 3:
        stamp(A, 5, 0, wave=OPT["SW"])
    n = len(mfmas(0))
    f = lambda k: k / n
    nod = OPT["NODMA"]

    def loop(R):
        LL = lambda s: f"L_{typ}{R}_{s}"
        lstamp(A, 17)
        if R == "B":
            for g in dmaW():
                A(g)
        A(f"s_waitcnt vmcnt({NW_ + (4 if R == 'B' else 0)})")
        k1_stats(A, typ)
        lstamp(A, 18)
        A(f"s_waitcnt vmcnt({1 if R == 'A' else NW_ + 1})")
        lstamp(A, 19)
        A("s_barrier")
        pre, rd, post = reads(0, 0)
        for g in pre + rd + post:
            A(g)
        if R == "A":
            A("s_setprio 1")
            stamp(A, 1, 0)
            stamp(A, 14, 0, clk=True)
        else:
            for g in dmaX():
                A(g)
        A("s_waitcnt lgkmcnt(0)")
        lstamp(A, 20)
        for g in mfmas(0):
            A(g)
        if R == "A":
            A(f"s_cmp_lg_u32 s{sCSit}, 0")
            A(f"s_cbranch_scc1 {LL('pc0')}")
            for g in cs_mfmas(0):
                A(g)
            A.label(LL("pc0"))
            for g in dmaW():
                A(g)
            A(f"s_sub_u32 s{sUw}, s{sWave}, 1")
            A(f"s_cmp_gt_u32 s{sUw}, 1")
            A(f"s_cbranch_scc1 {LL('nou')}")
            A(f"s_lshl_b32 s{sU}, s{sCG}, 4")
            A(f"s_add_u32 s{sU}, s{sU}, s{sRB}")
            A(f"s_lshl_b32 s{sU}, s{sU}, 1")
            A(f"s_add_u32 s{sU}, s{sU}, s{sUw}")
            A(f"s_lshl_b32 s{sUl}, s{sUw}, 12")
            A(f"s_add_u32 s{sUl}, s{sUl}, {MISC_LDS}")
            w2_unit_dma(A, f"s{sUl}")
            A.label(LL("nou"))
        else:
            A("s_waitcnt vmcnt(5)")
        lstamp(A, 21)
        A("s_barrier")
        pre, rd, post = reads(1, 1)
        for g in pre + rd + post:
            A(g)
        if R == "B":
            for g in dmaW():
                A(g)
        A("s_waitcnt lgkmcnt(0)")
        lstamp(A, 22)
        for g in mfmas(1):
            A(g)
        if R == "A":
            for g in dmaW():
                A(g)
            A(f"s_cmp_eq_u32 s{sCSit}, 0")
            A(f"s_cbranch_scc1 {LL('cs1')}")
            A(f"s_waitcnt vmcnt({NW_})")
            A.label(LL("pc1"))
            A(f"s_cmp_gt_u32 s{sUw}, 1")
            A(f"s_cbranch_scc1 {LL('pc2')}")
            w2_unit_out(A, f"s{sUl}", (lambda t: (96, 100, 144, 148)[t]) if G else (lambda t: 232 + 4 * t) if typ == 'Q' else (lambda t: vBUF + 4 * t))
            A.label(LL("pc2"))
        else:
            A("s_waitcnt vmcnt(0)")
        lstamp(A, 23)
        A("s_barrier")
        if R == "B":
            for g in dmaX() + dmaW():
                A(g)
        for i in range(4):
            A(f"v_xor_b32 v{vXa+i}, 16384, v{vXa+i}")
        pre, rd, post = reads(0, 0)
        for g in pre + rd + post:
            A(g)
        A(f"s_mov_b32 s{sIt}, 1")
        if R == "A" and OPT["NXA"]:
            for _ in range(3):
                A(dmaX()[4])
        A("s_waitcnt lgkmcnt(0)")
        lstamp(A, 0)
        A(".p2align 6")
        A.label(LL("loop"))
        pre, rd, post = reads(1, 1)
        for g in interleave(mfmas(0), (pre, 0.0, f(1)), (rd, f(1), 0.7), (post, 0.75, 0.85)):
            A(g)
        if R == "A":
            A(f"s_bitcmp1_b32 s{sSpec}, s{sIt}")
            A(f"s_cbranch_scc1 {LL('spec')}")
            A.label(LL("specr"))
            for g in dmaW():
                A(g)
            A(f"s_waitcnt vmcnt({NW_}) lgkmcnt(0)")
            A.label(LL("bar"))
        else:
            A("s_waitcnt vmcnt(0) lgkmcnt(0)")
        A("s_barrier")
        if OPT["DLY"] == 1 and G:
            A("s_sleep 3")
        pre, rd, post = reads(0, 0)
        pre = [f"v_xor_b32 v{vXa+i}, 16384, v{vXa+i}" for i in range(2)] + pre
        post = post + [f"v_xor_b32 v{vXa+i}, 16384, v{vXa+i}" for i in range(2, 4)]
        tail = [f"s_add_u32 s{sIt}, s{sIt}, 1\ns_cmp_lt_u32 s{sIt}, 10"]
        nxa = OPT["NXA"]
        if R == "B":
            dw = dmaW()
            nb = OPT["NBUP"]
            A(f"s_cmp_ge_u32 s{sIt}, 8")
            A(f"s_cbranch_scc1 {LL('nod')}")
            for g in dmaX()[nxa:] + dw[:nb]:
                A(g)
            for g in interleave(mfmas(1), (pre, 0.0, f(1)), (dw[nb:], 0.0, 0.4), (rd, f(1), 0.7), (post, 0.7, 0.8), (tail, f(n-2), f(n-1))):
                A(g)
            A.label(LL("end"))
        else:
            chk1 = tail
            xa = []
            if nxa:
                dx = dmaX()
                xa = [f"s_cmp_ge_u32 s{sIt}, 8\ns_cbranch_scc1 {LL('nox')}\n" + "\n".join(dx[:nxa] + dx[4:]) + f"\n{LL('nox')}:"]
            for g in interleave(mfmas(1), (pre, 0.0, f(1)), (xa, f(OPT["XPOS"]), f(OPT["XPOS"]+1)), (rd, f(1), 0.7), (post, 0.7, 0.8), (chk1, f(n-2), f(n-1))):
                A(g)
        if OPT["STAMP"] == 4:
            A("s_memrealtime s[96:97]")
            A(f"s_mov_b32 m0, s{sIt}")
        A("s_waitcnt lgkmcnt(0)")
        if OPT["STAMP"] == 4:
            A("v_writelane_b32 v28, s96, m0")
        A(f"s_cbranch_scc1 {LL('loop')}")
        A(f"s_branch {L('epi')}")

        if R == "B":
            A.label(LL("nod"))
            if typ not in OPT_WOEPI:
                A(f"s_cmp_eq_u32 s{sIt}, 9")
                A(f"s_cbranch_scc1 {LL('nod9')}")
                wo_early(A, 24, 7)
                A(f"s_branch {LL('nod2')}")
                A.label(LL("nod9"))
                wo_early(A, 72, 7)
                A.label(LL("nod2"))
            for g in interleave(mfmas(1), (pre, 0.0, f(1)), (rd, f(1), 0.7), (post, 0.7, 0.8), (tail, f(n-2), f(n-1))):
                A(g)
            A(f"s_branch {LL('end')}")
            return
        A.label(LL("cs1"))
        for g in cs_mfmas(1):
            A(g)
        A(f"v_and_b32 v{vT0}, 15, v{vLane}")
        A(f"v_lshrrev_b32 v{vT1}, 4, v{vLane}")
        A(f"v_lshlrev_b32 v{vT1}, 4, v{vT1}")
        A(f"v_lshl_add_u32 v{vT1}, v{vT0}, 6, v{vT1}")
        A(f"v_cmp_gt_u32 vcc, {1 if S16 else 2}, v{vT0}")
        A(f"v_mov_b32 v{vT2}, {OOB}")
        A(f"v_cndmask_b32 v{vT1}, v{vT2}, v{vT1}, vcc")
        A(f"s_mul_i32 s{sTmp}, s{sCG}, 10")
        A(f"s_add_u32 s{sTmp}, s{sTmp}, s{sC0}")
        A(f"s_mul_i32 s{sTmp}, s{sTmp}, 1536")
        A(f"s_mul_i32 s{sTmp2}, s{sNW}, {NT*128}")
        A(f"s_add_u32 s{sTmp}, s{sTmp}, s{sTmp2}")
        A(f"s_add_u32 s{sTmp}, s{sTmp}, {WS_CS}")
        for a in range(NCS):
            A(f"buffer_store_dwordx4 {vr(vCSA+4*a)}, v{vT1}, {srd(S_WS)}, s{sTmp} offen offset:{a*(64 if S16 else 128)} sc1")
        A(f"s_waitcnt vmcnt({NW_+NCS})")
        A(f"s_branch {LL('pc1')}")

        def with_dma(nops, body):
            for g in dmaW():
                A(g)
            body()
            A(f"s_waitcnt vmcnt({NW_+nops}) lgkmcnt(0)")
            A(f"s_branch {LL('bar')}")
        A.label(LL("spec"))
        A(f"s_cmp_eq_u32 s{sIt}, 9")
        A(f"s_cbranch_scc1 {LL('sum')}")
        A(f"s_cmp_eq_u32 s{sIt}, 8")
        A(f"s_cbranch_scc1 {LL('go')}")
        A(f"s_cmp_eq_u32 s{sIt}, 7")
        A(f"s_cbranch_scc1 {LL('chk')}")
        A(f"s_cmp_eq_u32 s{sIt}, 6")
        A(f"s_cbranch_scc1 {LL('poll0')}")
        A.label(LL("pub"))

        A(f"s_cmp_lg_u32 s{sIt}, 2")
        A(f"s_cbranch_scc1 {LL('pub1')}")
        wait_zeroed(A, LL("wz"), True)
        A.label(LL("pub1"))

        def pub():
            A(f"s_cmp_eq_u32 s{sIt}, 3")
            A(f"s_cbranch_scc1 {LL('pub3')}")
            A(f"s_cmp_eq_u32 s{sIt}, 2")
            A(f"s_cbranch_scc1 {LL('pub2')}")
            A(f"buffer_load_dword v{vPoll}, off, {srd(S_DBG)}, 0 sc1")
            A(f"s_branch {LL('pub3')}")
            A.label(LL("pub2"))
            k1_publish(A)
            A.label(LL("pub3"))
        with_dma(1, pub)
        A.label(LL("poll0"))
        with_dma(1, lambda: A(f"buffer_load_dword v{vPoll}, v{vPa}, {srd(S_WS)}, 0 offen sc1"))
        A.label(LL("poll"))
        A("s_sleep 8")
        A(f"buffer_load_dword v{vPoll}, v{vPa}, {srd(S_WS)}, 0 offen sc1")
        A.label(LL("chk"))
        A("s_waitcnt vmcnt(0)")
        poll_cmp(A)
        A(f"s_add_u32 s{sSpin}, s{sSpin}, 1")
        A(f"s_cmp_gt_u32 s{sSpin}, {SPIN_MAX}")
        A(f"s_cbranch_scc1 {LL('specr')}")
        A(f"s_cmp_lg_u64 vcc, 0")
        A(f"s_cbranch_scc1 {LL('poll')}")
        A(f"s_branch {LL('specr')}")
        A.label(LL("go"))

        def go():
            A(f"v_lshlrev_b32 v{vT0}, 3, v0")
            A(f"v_cmp_gt_u32 vcc, {NT*(4 if G else 2)*16}, v0")
            A(f"v_mov_b32 v{vT2}, {OOB}")
            A(f"v_cndmask_b32 v{vT0}, v{vT2}, v{vT0}, vcc")
            A(f"s_mul_i32 s{sTmp}, s{sCG}, 15360")
            A(f"s_add_u32 s{sTmp}, s{sTmp}, {WS_CS}")
            for ch in range(10):
                if ch % 2 == 0 and ch:
                    A(f"s_add_u32 s{sTmp}, s{sTmp}, 3072")
                A(f"buffer_load_dwordx2 {vr(vCSP+2*ch, 2)}, v{vT0}, {srd(S_WS)}, s{sTmp} offen offset:{(ch%2)*1536} sc1")
            A(f"s_lshl_b32 s{sTmp}, s{sRB}, 10")
            A(f"s_add_u32 s{sTmp}, s{sTmp}, {WS_ST}")
            A(f"v_lshlrev_b32 v{vT1}, 2, v0")
            A(f"buffer_load_dword v{vSt}, v{vT1}, {srd(S_WS)}, s{sTmp} offen sc1")
        go()
        if typ not in OPT_WOEPI:
            wo_early(A, 0, 6)
        A(f"s_waitcnt vmcnt({11 if typ in OPT_WOEPI else 17}) lgkmcnt(0)")
        A(f"s_branch {LL('bar')}")
        A.label(LL("sum"))
        A(f"s_waitcnt vmcnt({0 if typ in OPT_WOEPI else 6})")
        for ch in range(1, 10):
            A(f"v_add_f32 v{vCSP}, v{vCSP}, v{vCSP+2*ch}")
            A(f"v_add_f32 v{vCSP+1}, v{vCSP+1}, v{vCSP+2*ch+1}")
        A(f"v_lshlrev_b32 v{vT0}, 3, v0")
        A(f"v_add_u32 v{vT0}, {KV_CS if typ == 'K' else MISC_LDS}, v{vT0}")
        A(f"ds_write_b64 v{vT0}, {vr(vCSP, 2)}")
        if typ == "K":
            A(f"v_rsq_f32 v{vT2}, v{vSt}")
            A(f"v_and_b32 v{vT1}, 1, v0")
            A(f"v_cmp_eq_u32 vcc, 1, v{vT1}")
            A(f"v_lshlrev_b32 v{vT1}, 9, v{vT1}")
            A(f"v_lshrrev_b32 v{vT0}, 1, v0")
            A(f"v_lshl_add_u32 v{vT1}, v{vT0}, 2, v{vT1}")
            A(f"v_add_u32 v{vT1}, {KV_ST}, v{vT1}")
            A(f"v_cndmask_b32 v{vT0}, v{vSt}, v{vT2}, vcc")
            A(f"ds_write_b32 v{vT1}, v{vT0}")
            A(f"v_mul_f32 v{vT2}, {f32(LOG2E)}, v{vT2}")
            A(f"ds_write_b32 v{vT1}, v{vT2} offset:1024")
        else:
            A(f"v_lshlrev_b32 v{vT1}, 2, v0")
            A(f"v_add_u32 v{vT1}, {MISC_LDS+2048}, v{vT1}")
            A(f"ds_write_b32 v{vT1}, v{vSt}")
        if typ not in OPT_WOEPI:
            wo_early(A, 52, 5)
        A("s_waitcnt lgkmcnt(0)")
        A(f"s_branch {LL('bar')}")

    A(f"s_cmp_ge_u32 s{sWave}, 4")
    A(f"s_cbranch_scc1 {L('roleB')}")
    loop("A")
    A.label(L("roleB"))
    loop("B")

    A.label(L("epi"))
    if (OPT["DLY"] == 2 and typ == "G") or (OPT["DLY"] == 3 and typ == "K"):
        A("s_sleep 30")
    A("s_setprio 0")
    cstamp(A, 0)
    stamp(A, 2, 0)
    stamp(A, 4, 0, wave=4, vt=50)
    stamp(A, 7, 0, wave=4, vt=50, clk=True)
    stamp(A, 15, 0, clk=True)
    if OPT["STAMP"] == 4:
        A(f"v_lshlrev_b32 v29, 2, v0")
        A(f"s_lshl_b32 s98, s2, 11")
        A(f"s_add_u32 s98, s98, {WS_STAMP + 0x10000}")
        A(f"buffer_store_dword v28, v29, {srd(S_WS)}, s98 offen")
    A(f"v_lshlrev_b32 v{vL16}, 4, v{vLane}")
    if True:
        epi = {"G": k1_epi_g16 if S16 else k1_epi_g, "Q": k1_epi_q, "K": k1_epi_kv}[typ]
        body = []
        epi(body.append, acc)
        npre = min(OPT["NPRE"], {"G": 6, "Q": 4, "K": 2}[typ])
        early = [g for j in range(min(4, npre)) for g in ldW_groups(j)]
        late = [g for j in range(4, npre) for g in ldW_groups(j)]
        wod = []
        if typ in OPT_WOEPI:
            A(f"s_mul_i32 s12, s{sWave}, 13")
            A("s_min_u32 s12, s12, 87")
            A("s_lshl_b32 s12, s12, 10")
            A(f"s_mul_i32 s13, s{sC}, {74*5120}")
            A("s_add_u32 s13, s13, s12")
            A(f"s_add_u32 s13, s13, {WS_W2 + 54*5120}")
            A(f"s_add_u32 s12, s12, {WO_LDS}")
            wod = [f"s_add_u32 m0, s12, {i*1024}\ns_add_u32 s14, s13, {i*1024}\n"
                   f"buffer_load_dwordx4 v{vL16}, {srd(S_WS)}, s14 offen sc1 lds" for i in range(13)]
        for g in interleave(body, (wod, 0.02, 0.6), (early, 0.02, 0.5 if npre > 4 else 0.7), (late, 0.5, 0.8)):
            A(g)
        A(f"s_mov_b32 s{sWoDone}, {npre + 1}")
    cstamp(A, 7)
    if OPT["STAMP"] == 7:
        A(f"v_lshlrev_b32 v49, 2, v0")
        A(f"s_lshl_b32 s98, s2, 11")
        A(f"s_add_u32 s98, s98, {WS_STAMP + 0x10000}")
        A(f"buffer_store_dword v48, v49, {srd(S_WS)}, s98 offen")
    stamp(A, 3, 0)
    stamp(A, 5, 0, wave=4, vt=50)
    stamp(A, 8, 0, wave=4, vt=50, clk=True)
    A(f"v_mov_b32 v{vSigA}, {OOB}")
    if typ == "K":
        A(f"s_sub_u32 s{sTmp}, s{sCG}, 9")
        A(f"s_lshl_b32 s{sTmp}, s{sTmp}, 11")
        A(f"s_add_u32 s{sTmp}, s{sTmp}, {WS_FL + FL_KV}")
        A(f"v_lshl_add_u32 v{vT0}, v{vLane}, 8, s{sTmp}")
        A(f"v_cmp_gt_u32 vcc, 8, v{vLane}")
        A(f"v_cndmask_b32 v{vSigA}, v{vSigA}, v{vT0}, vcc")
        A(f"v_mov_b32 v{vSigV}, 1")
    else:
        A(f"s_lshl_b32 s{sTmp}, s{sRB}, 8")
        A(f"s_add_u32 s{sTmp}, s{sTmp}, {WS_FL + FL_HC}")
        A(f"v_writelane_b32 v{vSigA}, s{sTmp}, 0")
        A(f"s_lshl_b32 s{sTmp}, 1, s{sCG}")
        A(f"v_mov_b32 v{vSigV}, s{sTmp}")
    A("s_branch L_p2")


def k1_stats_issue(A):
    b = vBUF
    A(f"s_lshl_b32 s{sRow}, s{sRB}, 7")
    A(f"s_lshl_b32 s{sTmp2}, s{sCG}, 3")
    A(f"s_add_u32 s{sRow}, s{sRow}, s{sTmp2}")
    A(f"s_add_u32 s{sRow}, s{sRow}, s{sWave}")
    A(f"s_mul_i32 s{sTmp2}, s{sRow}, 1280")
    A(f"v_lshlrev_b32 v{vT0}, 3, v{vLane}")
    A(f"v_lshlrev_b32 v{vT1}, 2, v{vLane}")
    A(f"buffer_load_dwordx2 {vr(b, 2)}, v{vT0}, {srd(S_X)}, s{sTmp2} offen")
    A(f"buffer_load_dwordx2 {vr(b+2, 2)}, v{vT0}, {srd(S_X)}, s{sTmp2} offen offset:512")
    A(f"buffer_load_dword v{b+4}, v{vT1}, {srd(S_X)}, s{sTmp2} offen offset:1024")


def k1_stats(A, typ):
    b = vBUF
    if typ == "A":
        A("s_waitcnt vmcnt(0)")
    for i in range(5):
        A(f"v_lshlrev_b32 v{b+8+2*i}, 16, v{b+i}")
        A(f"v_and_b32 v{b+9+2*i}, 0xffff0000, v{b+i}")
    s = b + 20
    A(f"v_add_f32 v{s}, v{b+8}, v{b+9}")
    for i in range(2, 10):
        A(f"v_add_f32 v{s}, v{s}, v{b+8+i}")
    wave_allreduce_add(A, s, s + 1, 4)
    A(f"v_mul_f32 v{s}, {f32(1.0/640)}, v{s}")
    for i in range(10):
        A(f"v_sub_f32 v{b+8+i}, v{b+8+i}, v{s}")
    A(f"v_mul_f32 v{s+1}, v{b+8}, v{b+8}")
    for i in range(1, 10):
        A(f"v_fmac_f32 v{s+1}, v{b+8+i}, v{b+8+i}")
    wave_allreduce_add(A, s + 1, s + 2, 4)
    A(f"v_mov_b32 v{s+2}, {f32(1e-5)}")
    A(f"v_fmac_f32 v{s+2}, {f32(1.0/640)}, v{s+1}")
    A(f"v_mov_b32 v{s+1}, v{s+2}")
    A(f"v_cmp_eq_u32 vcc, 0, v{vLane}")
    A(f"v_mov_b32 v{vT2}, {OOB}")
    A(f"v_cndmask_b32 v{vT0}, v{vT2}, v{vLane}, vcc")
    A(f"s_lshl_b32 s{sTmp}, s{sRow}, 3")
    A(f"s_add_u32 s{sTmp}, s{sTmp}, {WS_ST}")
    A(f"buffer_store_dwordx2 {vr(s, 2)}, v{vT0}, {srd(S_WS)}, s{sTmp} offen sc1")


def k1_publish(A):
    A(f"s_lshl_b32 s{sTmp}, s{sRB}, 8")
    A(f"s_add_u32 s{sTmp}, s{sTmp}, {WS_FL + FL_ROW}")
    A(f"v_mov_b32 v{vT0}, {OOB}")
    A(f"v_writelane_b32 v{vT0}, s{sTmp}, 0")
    A(f"v_mov_b32 v{vT1}, 1")
    A(f"buffer_atomic_add v{vT1}, v{vT0}, {srd(S_WS)}, 0 offen sc1")


def poll_addr(A):
    A(f"v_and_b32 v{vPa}, 15, v{vLane}")
    A(f"v_lshlrev_b32 v{vPa}, 8, v{vPa}")
    A(f"v_add_u32 v{vPa}, {WS_FL + FL_ROW}, v{vPa}")


def poll_cmp(A):
    A(f"v_cmp_gt_u32 vcc, 16, v{vPoll}")


def wait_zeroed(A, lab, first_issued):
    if first_issued:
        A(f"s_branch {lab}_c")
    A.label(lab)
    A("s_sleep 4")
    A(f"buffer_load_dword v{vPoll}, off, {srd(S_DBG)}, 0 sc1")
    A.label(lab + "_c")
    A("s_waitcnt vmcnt(0)")
    A(f"v_readfirstlane_b32 s{sTmp}, v{vPoll}")
    A(f"s_add_u32 s{sSpin}, s{sSpin}, 1")
    A(f"s_cmp_gt_u32 s{sSpin}, {SPIN_MAX}")
    A(f"s_cbranch_scc1 {lab}_ok")
    A(f"s_cmp_lt_u32 s{sTmp}, 16")
    A(f"s_cbranch_scc1 {lab}")
    A.label(lab + "_ok")


S_R = 88
sU, sUks, sUL = 92, 93, 94


def w2_unit_decode(A):
    A(f"s_mul_i32 s{sUks}, s{sU}, 205")
    A(f"s_lshr_b32 s{sUks}, s{sUks}, 11")
    A(f"s_mul_i32 s{sUL}, s{sUks}, 10")
    A(f"s_sub_u32 s{sUL}, s{sU}, s{sUL}")


def w2_unit_dma(A, lds):
    w2_unit_decode(A)
    A(f"s_cmp_lt_u32 s{sUks}, 54")
    A(f"s_cselect_b32 s{S_R}, s{P_D}, s{P_WO}")
    A(f"s_cselect_b32 s{S_R+1}, s{P_D+1}, s{P_WO+1}")
    A(f"s_mov_b32 s{S_R+2}, {640*1280}")
    A(f"s_cselect_b32 s{S_R+2}, {1728*1280}, s{S_R+2}")
    A(f"s_cselect_b32 s{sTmp}, 0, 54")
    A(f"s_and_b32 s{S_R+1}, s{S_R+1}, 0xffff")
    A(f"s_mov_b32 s{S_R+3}, 0x20000")
    A(f"s_sub_u32 s{sTmp}, s{sUks}, s{sTmp}")
    A(f"s_mul_i32 s{sTmp}, s{sTmp}, {32*1280}")
    A(f"s_lshl_b32 s{sTmp2}, s{sUL}, 7")
    A(f"s_add_u32 s{sTmp}, s{sTmp}, s{sTmp2}")
    A(f"v_lshrrev_b32 v{vT0}, 3, v{vLane}")
    A(f"v_mul_u32_u24 v{vT0}, 1280, v{vT0}")
    A(f"v_and_b32 v{vT1}, 7, v{vLane}")
    A(f"v_lshl_add_u32 v{vT0}, v{vT1}, 4, v{vT0}")
    for i in range(4):
        A(f"s_add_u32 m0, {lds}, {i*1024}")
        A("s_nop 0")
        A(f"buffer_load_dwordx4 v{vT0}, {srd(S_R)}, s{sTmp} offen lds")
        A(f"s_add_u32 s{sTmp}, s{sTmp}, {8*1280}")


def w2_unit_out(A, lds, F):
    w2_unit_decode(A)
    A(f"v_bfe_u32 v{vT0}, v{vLane}, 2, 2")
    A(f"v_lshlrev_b32 v{vT0}, 7, v{vT0}")
    A(f"v_and_b32 v{vT1}, 3, v{vLane}")
    A(f"v_lshl_add_u32 v{vT0}, v{vT1}, 3, v{vT0}")
    A(f"v_lshrrev_b32 v{vT1}, 4, v{vLane}")
    A(f"s_cmp_lt_u32 s{sUks}, 54")
    A(f"s_cselect_b32 s{sTmp}, 10, 9")
    A(f"s_movk_i32 s{sTmp2}, 512")
    A(f"s_cselect_b32 s{sTmp2}, s{sTmp2}, 2048")
    A(f"v_lshlrev_b32 v{vT1}, s{sTmp}, v{vT1}")
    A(f"v_add3_u32 v{vT0}, v{vT0}, v{vT1}, {lds}")
    A(f"v_add_u32 v{vT1}, s{sTmp2}, v{vT0}")
    for tau in range(4):
        A(f"ds_read_b64_tr_b16 {vr(F(tau), 2)}, v{vT0} offset:{tau*32}")
        A(f"ds_read_b64_tr_b16 {vr(F(tau)+2, 2)}, v{vT1} offset:{tau*32}")
    A(f"v_lshlrev_b32 v{vT2}, 4, v{vLane}")
    A("s_waitcnt lgkmcnt(0)")
    for tau in range(4):
        A(f"s_lshl_b32 s{sTmp}, s{sUL}, 2")
        A(f"s_add_u32 s{sTmp}, s{sTmp}, {tau}")
        A(f"s_mul_i32 s{sTmp2}, s{sTmp}, 205")
        A(f"s_lshr_b32 s{sTmp2}, s{sTmp2}, 10")
        A(f"s_mul_i32 s{sTmp3}, s{sTmp2}, {74*5-5}")
        A(f"s_add_u32 s{sTmp}, s{sTmp}, s{sTmp3}")
        A(f"s_mul_i32 s{sTmp3}, s{sUks}, 5")
        A(f"s_add_u32 s{sTmp}, s{sTmp}, s{sTmp3}")
        A(f"s_lshl_b32 s{sTmp}, s{sTmp}, 10")
        A(f"s_add_u32 s{sTmp}, s{sTmp}, {WS_W2}")
        A(f"s_cmp_lt_u32 s{sU}, 740")
        A(f"s_cselect_b32 s{sTmp}, s{sTmp}, {OOB}")
        A(f"buffer_store_dwordx4 {vr(F(tau))}, v{vT2}, {srd(S_WS)}, s{sTmp} offen sc1")


def k1_epi_g(A, acc):
    c = vBUF + 56
    cs = vBUF + 8
    t = vBUF + 40
    o = vBUF + 48
    A(f"v_lshrrev_b32 v{vT0}, 5, v{vLane}")
    A(f"v_lshlrev_b32 v{vT0}, 4, v{vT0}")
    A(f"s_mul_i32 s{sTmp}, s{sNW}, 384")
    A(f"s_add_u32 s{sTmp}, s{sTmp}, {MISC_LDS}")
    A(f"v_add_u32 v{vT0}, s{sTmp}, v{vT0}")
    A(f"v_and_b32 v{vT1}, 31, v{vLane}")
    A(f"s_lshl_b32 s{sTmp}, s{sMW}, 9")
    A(f"s_add_u32 s{sTmp}, s{sTmp}, {MISC_LDS+2048}")
    A(f"v_lshl_add_u32 v{vT1}, v{vT1}, 3, s{sTmp}")
    for mt in range(2):
        A(f"ds_read_b64 {vr(c+8*mt, 2)}, v{vT1} offset:{mt*256}")
    for q in range(4):
        A(f"ds_read_b128 {vr(cs+4*q)}, v{vT0} offset:{q*32}")
    A("s_waitcnt lgkmcnt(4)")
    for mt in range(2):
        mu, v, k1, k3 = c + 8 * mt, c + 8 * mt + 2, c + 8 * mt + 4, c + 8 * mt + 6
        A(f"v_mov_b32 v{v}, v{mu+1}")
        A(f"v_rsq_f32 v{t}, v{v}")
        A(f"v_mul_f32 v{k1}, {f32(GC1)}, v{t}")
        A(f"v_mul_f32 v{t+1}, v{t}, v{t}")
        A(f"v_mul_f32 v{t+1}, v{t+1}, v{t}")
        A(f"v_mul_f32 v{k3}, {f32(GC2)}, v{t+1}")
    A(f"v_bfe_u32 v{vT1}, v{vLane}, 4, 1")
    A(f"v_lshlrev_b32 v{vT1}, 10, v{vT1}")
    A(f"v_lshrrev_b32 v{vT2}, 5, v{vLane}")
    A(f"v_lshl_add_u32 v{vT1}, v{vT2}, 8, v{vT1}")
    A(f"v_and_b32 v{vT2}, 15, v{vLane}")
    A(f"v_lshl_add_u32 v{vT1}, v{vT2}, 4, v{vT1}")
    n = 0
    for a in range(3):
        csa = cs + 16 * (a % 2)
        if a < 2:
            for q in range(4):
                A(f"ds_read_b128 {vr(cs+16*((a+1)%2)+4*q)}, v{vT0} offset:{(a+1)*128+q*32}")
            A("s_waitcnt lgkmcnt(4)")
        else:
            A("s_waitcnt lgkmcnt(0)")
        A(f"s_mul_i32 s{sTmp}, s{sCG}, 12")
        A(f"s_mul_i32 s{sTmp2}, s{sNW}, 3")
        A(f"s_add_u32 s{sTmp}, s{sTmp}, s{sTmp2}")
        A(f"s_add_u32 s{sTmp}, s{sTmp}, {a}")
        A(f"s_lshl_b32 s{sTmp2}, s{sRB}, 1")
        A(f"s_add_u32 s{sTmp2}, s{sTmp2}, s{sMW}")
        A(f"s_mul_i32 s{sTmp2}, s{sTmp2}, 54")
        A(f"s_lshr_b32 s{sTmp3}, s{sTmp}, 1")
        A(f"s_add_u32 s{sTmp2}, s{sTmp2}, s{sTmp3}")
        A(f"s_lshl_b32 s{sTmp2}, s{sTmp2}, 12")
        A(f"s_and_b32 s{sTmp}, s{sTmp}, 1")
        A(f"s_lshl_b32 s{sTmp}, s{sTmp}, 9")
        A(f"s_add_u32 s{sTmp}, s{sTmp}, s{sTmp2}")
        C = lambda mt, k: c + 8 * mt + 2 * k
        MP = [(mt, i) for mt in range(2) for i in range(0, 8, 2)]
        D = lambda mt: acc(mt, a)
        Tm = lambda mt: t + 8 * mt
        for mt, i in MP:
            pk_fma(A, D(mt) + i, ("b", C(mt, 0)), ("p", csa + i), ("p", D(mt) + i), neg_a=True)
        for mt, i in MP:
            pk_mul(A, Tm(mt) + i, ("p", D(mt) + i), ("p", D(mt) + i))
        for mt, i in MP:
            pk_fma(A, Tm(mt) + i, ("p", Tm(mt) + i), ("b", C(mt, 3)), ("b", C(mt, 2)))
        for mt, i in MP:
            pk_mul(A, Tm(mt) + i, ("p", Tm(mt) + i), ("p", D(mt) + i))
        for mt, i in MP:
            A(f"v_exp_f32 v{Tm(mt)+i}, v{Tm(mt)+i}")
            A(f"v_exp_f32 v{Tm(mt)+i+1}, v{Tm(mt)+i+1}")
            pk_fma(A, D(mt) + 8 + i, ("b", C(mt, 0)), ("p", csa + 8 + i), ("p", D(mt) + 8 + i), neg_a=True)
        for mt, i in MP:
            pk_fma(A, Tm(mt) + i, ("p", Tm(mt) + i), ("b", C(mt, 1)), ("b", C(mt, 1)))
        for mt, i in MP:
            A(f"v_rcp_f32 v{Tm(mt)+i}, v{Tm(mt)+i}")
            A(f"v_rcp_f32 v{Tm(mt)+i+1}, v{Tm(mt)+i+1}")
            pk_mul(A, D(mt) + i, ("p", D(mt) + i), ("p", D(mt) + 8 + i))
        for mt, i in MP:
            pk_mul(A, D(mt) + i, ("p", D(mt) + i), ("p", Tm(mt) + i))
        for mt in range(2):
            ob = D(mt) + 8
            for i in range(4):
                A(f"v_cvt_pk_bf16_f32 v{ob+i}, v{D(mt)+2*i}, v{D(mt)+2*i+1}")
            A(f"buffer_store_dwordx4 {vr(ob)}, v{vT1}, {srd(S_WS)}, s{sTmp} offen offset:{mt*2048} sc1")


acc16 = lambda t, a, kw: vACC + 32 * a + 16 * kw + 4 * t


def k1_epi_g16(A, acc):
    c = vBUF
    csq = lambda p: (vBUF + 32 + 4 * p) if p < 4 else (48 + 4 * (p - 4))
    t = vBUF + 48
    A(f"v_lshrrev_b32 v{vT0}, 4, v{vLane}")
    A(f"v_lshlrev_b32 v{vT0}, 4, v{vT0}")
    A(f"s_mul_i32 s{sTmp}, s{sNW}, 384")
    A(f"s_add_u32 s{sTmp}, s{sTmp}, {MISC_LDS}")
    A(f"v_add_u32 v{vT0}, s{sTmp}, v{vT0}")
    A(f"v_and_b32 v{vT1}, 15, v{vLane}")
    A(f"s_lshl_b32 s{sTmp}, s{sMW}, 9")
    A(f"s_add_u32 s{sTmp}, s{sTmp}, {MISC_LDS+2048}")
    A(f"v_lshl_add_u32 v{vT1}, v{vT1}, 3, s{sTmp}")
    for m in range(4):
        A(f"ds_read_b64 {vr(c+8*m, 2)}, v{vT1} offset:{m*128}")
    for p in range(6):
        A(f"ds_read_b128 {vr(csq(p))}, v{vT0} offset:{p*64}")
    A("s_waitcnt lgkmcnt(6)")
    for m in range(4):
        A(f"v_rsq_f32 v{t+m}, v{c+8*m+1}")
        A(f"v_mov_b32 v{c+8*m+2}, v{c+8*m+1}")
    for m in range(4):
        A(f"v_mul_f32 v{c+8*m+4}, {f32(GC1)}, v{t+m}")
        A(f"v_mul_f32 v{t+4+m}, v{t+m}, v{t+m}")
    for m in range(4):
        A(f"v_mul_f32 v{t+4+m}, v{t+4+m}, v{t+m}")
    for m in range(4):
        A(f"v_mul_f32 v{c+8*m+6}, {f32(GC2)}, v{t+4+m}")
    A(f"v_bfe_u32 v{vT1}, v{vLane}, 4, 1")
    A(f"v_lshlrev_b32 v{vT1}, 10, v{vT1}")
    A(f"v_lshrrev_b32 v{vT2}, 5, v{vLane}")
    A(f"v_lshl_add_u32 v{vT1}, v{vT2}, 8, v{vT1}")
    A(f"v_and_b32 v{vT2}, 15, v{vLane}")
    A(f"v_lshl_add_u32 v{vT1}, v{vT2}, 4, v{vT1}")
    A("s_waitcnt lgkmcnt(0)")
    for a in range(3):
        A(f"s_mul_i32 s{sTmp}, s{sCG}, 12")
        A(f"s_mul_i32 s{sTmp2}, s{sNW}, 3")
        A(f"s_add_u32 s{sTmp}, s{sTmp}, s{sTmp2}")
        A(f"s_add_u32 s{sTmp}, s{sTmp}, {a}")
        A(f"s_lshl_b32 s{sTmp2}, s{sRB}, 1")
        A(f"s_add_u32 s{sTmp2}, s{sTmp2}, s{sMW}")
        A(f"s_mul_i32 s{sTmp2}, s{sTmp2}, 54")
        A(f"s_lshr_b32 s{sTmp3}, s{sTmp}, 1")
        A(f"s_add_u32 s{sTmp2}, s{sTmp2}, s{sTmp3}")
        A(f"s_lshl_b32 s{sTmp2}, s{sTmp2}, 12")
        A(f"s_and_b32 s{sTmp}, s{sTmp}, 1")
        A(f"s_lshl_b32 s{sTmp}, s{sTmp}, 9")
        A(f"s_add_u32 s{sTmp}, s{sTmp}, s{sTmp2}")
        C = lambda m, k: c + 8 * m + 2 * k
        MP = [(m, i) for m in range(4) for i in (0, 2)]
        Gt = lambda m: acc16(m, a, 0)
        Up = lambda m: acc16(m, a, 1)
        Tm = lambda m: t + 4 * m
        cg_, cu_ = csq(2 * a), csq(2 * a + 1)
        for m, i in MP:
            pk_fma(A, Gt(m) + i, ("b", C(m, 0)), ("p", cg_ + i), ("p", Gt(m) + i), neg_a=True)
        for m, i in MP:
            pk_mul(A, Tm(m) + i, ("p", Gt(m) + i), ("p", Gt(m) + i))
        for m, i in MP:
            pk_fma(A, Tm(m) + i, ("p", Tm(m) + i), ("b", C(m, 3)), ("b", C(m, 2)))
        for m, i in MP:
            pk_mul(A, Tm(m) + i, ("p", Tm(m) + i), ("p", Gt(m) + i))
        for m, i in MP:
            A(f"v_exp_f32 v{Tm(m)+i}, v{Tm(m)+i}")
            A(f"v_exp_f32 v{Tm(m)+i+1}, v{Tm(m)+i+1}")
            pk_fma(A, Up(m) + i, ("b", C(m, 0)), ("p", cu_ + i), ("p", Up(m) + i), neg_a=True)
        for m, i in MP:
            pk_fma(A, Tm(m) + i, ("p", Tm(m) + i), ("b", C(m, 1)), ("b", C(m, 1)))
        for m, i in MP:
            A(f"v_rcp_f32 v{Tm(m)+i}, v{Tm(m)+i}")
            A(f"v_rcp_f32 v{Tm(m)+i+1}, v{Tm(m)+i+1}")
            pk_mul(A, Gt(m) + i, ("p", Gt(m) + i), ("p", Up(m) + i))
        for m, i in MP:
            pk_mul(A, Gt(m) + i, ("p", Gt(m) + i), ("p", Tm(m) + i))
        for pr in range(2):
            ob = Up(2 * pr)
            for h in range(2):
                A(f"v_cvt_pk_bf16_f32 v{ob+2*h}, v{Gt(2*pr+h)}, v{Gt(2*pr+h)+1}")
                A(f"v_cvt_pk_bf16_f32 v{ob+2*h+1}, v{Gt(2*pr+h)+2}, v{Gt(2*pr+h)+3}")
        for pr in range(2):
            ob = Up(2 * pr)
            A(f"v_permlane16_swap_b32 v{ob}, v{ob+2}")
            A(f"v_permlane16_swap_b32 v{ob+1}, v{ob+3}")
        for pr in range(2):
            A(f"buffer_store_dwordx4 {vr(Up(2*pr))}, v{vT1}, {srd(S_WS)}, s{sTmp} offen offset:{pr*2048} sc1")


def pk(r, bc=False):
    return f"v[{r}:{r+1}]"


def pko(*bc):
    lo = ",".join("1" if b == 1 else "0" for b in bc)
    hi = ",".join("0" if b == 0 else "1" for b in bc)
    return f"op_sel:[{lo}] op_sel_hi:[{hi}]"


def opnd(x):
    k, r = x
    if k == "p":
        return pk(r), None
    assert r % 2 == 0
    return pk(r), 0


def pk_fma(A, d, a, b, c, neg_a=False):
    (ta, fa), (tb_, fb), (tc, fc) = opnd(a), opnd(b), opnd(c)
    n = " neg_lo:[1,0,0] neg_hi:[1,0,0]" if neg_a else ""
    A(f"v_pk_fma_f32 {pk(d)}, {ta}, {tb_}, {tc} {pko(fa, fb, fc)}{n}")


def pk_mul(A, d, a, b, op="mul"):
    (ta, fa), (tb_, fb) = opnd(a), opnd(b)
    A(f"v_pk_{op}_f32 {pk(d)}, {ta}, {tb_} {pko(fa, fb)}")


def phi_block(A, d, n, t, mu, cs, r, rl, eps, mixed=None):
    P = range(0, n, 2)
    ea, em, eb = mixed if mixed else (eps, eps, None)
    for i in P:
        pk_fma(A, d + i, mu(i), cs(i), ("p", d + i), neg_a=True)
    for i in P:
        if mixed:
            pk_fma(A, t + i, ("p", d + i), rl(i), ("b", eb))
        else:
            pk_mul(A, t + i, ("p", d + i), rl(i))
    for i in P:
        A(f"v_exp_f32 v{t+i}, v{t+i} clamp")
        A(f"v_exp_f32 v{t+i+1}, v{t+i+1} clamp")
        pk_fma(A, d + i, ("p", d + i), r(i), ("b", ea))
    for i in range(n):
        A(f"v_max_f32 v{d+i}, v{d+i}, v{em}")
    for i in P:
        pk_mul(A, d + i, ("p", d + i), ("p", t + i), op="add")


def k1_epi_q(A, acc):
    c = vBUF
    cs = vBUF + 8
    t = vBUF + 40
    o = vBUF + 56
    mu, r, rl, eps = c, c + 2, c + 4, c + 6
    A(f"v_lshrrev_b32 v{vT0}, 5, v{vLane}")
    A(f"v_lshlrev_b32 v{vT0}, 4, v{vT0}")
    A(f"s_mul_i32 s{sTmp}, s{sNW}, 640")
    A(f"s_add_u32 s{sTmp}, s{sTmp}, {MISC_LDS}")
    A(f"v_add_u32 v{vT0}, s{sTmp}, v{vT0}")
    A(f"v_and_b32 v{vT1}, 31, v{vLane}")
    A(f"s_lshl_b32 s{sTmp}, s{sMW}, 8")
    A(f"s_add_u32 s{sTmp}, s{sTmp}, {MISC_LDS+2048}")
    A(f"v_lshl_add_u32 v{vT1}, v{vT1}, 3, s{sTmp}")
    A(f"ds_read_b64 {vr(mu, 2)}, v{vT1}")
    for q in range(4):
        A(f"ds_read_b128 {vr(cs+4*q)}, v{vT0} offset:{q*32}")
    A("s_waitcnt lgkmcnt(4)")
    A(f"v_rsq_f32 v{r}, v{mu+1}")
    A(f"v_mov_b32 v{eps}, {f32(1e-6)}")
    A(f"v_mul_f32 v{rl}, {f32(LOG2E)}, v{r}")
    A(f"v_bfe_u32 v{vT1}, v{vLane}, 4, 1")
    A(f"v_lshlrev_b32 v{vT1}, 10, v{vT1}")
    A(f"v_lshrrev_b32 v{vT2}, 5, v{vLane}")
    A(f"v_lshl_add_u32 v{vT1}, v{vT2}, 8, v{vT1}")
    A(f"v_and_b32 v{vT2}, 15, v{vLane}")
    A(f"v_lshl_add_u32 v{vT1}, v{vT2}, 4, v{vT1}")
    A(f"s_lshl_b32 s{sTmp}, s{sRB}, 1")
    A(f"s_lshr_b32 s{sTmp2}, s{sMW}, 1")
    A(f"s_add_u32 s{sTmp}, s{sTmp}, s{sTmp2}")
    A(f"s_mul_i32 s{sTmp}, s{sTmp}, 20")
    A(f"s_sub_u32 s{sTmp2}, s{sCG}, 13")
    A(f"s_mul_i32 s{sTmp2}, s{sTmp2}, 10")
    A(f"s_add_u32 s{sTmp}, s{sTmp}, s{sTmp2}")
    A(f"s_mul_i32 s{sTmp2}, s{sNW}, 5")
    A(f"s_add_u32 s{sTmp}, s{sTmp}, s{sTmp2}")
    A(f"s_lshl_b32 s{sTmp}, s{sTmp}, 12")
    A(f"s_and_b32 s{sTmp2}, s{sMW}, 1")
    A(f"s_lshl_b32 s{sTmp2}, s{sTmp2}, 11")
    A(f"s_add_u32 s{sTmp}, s{sTmp}, s{sTmp2}")
    A(f"s_add_u32 s{sTmp}, s{sTmp}, {WS_PQ}")
    for a in range(5):
        csa = cs + 16 * (a % 2)
        if a < 4:
            for q in range(4):
                A(f"ds_read_b128 {vr(cs+16*((a+1)%2)+4*q)}, v{vT0} offset:{(a+1)*128+q*32}")
            A("s_waitcnt lgkmcnt(4)")
        else:
            A("s_waitcnt lgkmcnt(0)")
        d = acc(0, a)
        phi_block(A, d, 16, t, lambda i: ("b", mu), lambda i: ("p", csa + i), lambda i: ("b", r), lambda i: ("b", rl), eps)
        ob = o + 8 * (a % 2)
        for i in range(8):
            A(f"v_cvt_pk_bf16_f32 v{ob+i}, v{d+2*i}, v{d+2*i+1}")
        A(f"buffer_store_dwordx4 {vr(ob)}, v{vT1}, {srd(S_WS)}, s{sTmp} offen sc1")
        A(f"buffer_store_dwordx4 {vr(ob+4)}, v{vT1}, {srd(S_WS)}, s{sTmp} offen offset:512 sc1")
        A(f"s_add_u32 s{sTmp}, s{sTmp}, 4096")


KV_PAIRS = [(0, 2), (0, 3), (1, 3), (1, 4), (2, 4)]
KV_Q = [[0, 1, 2], [0, 1, 2, 3], [0, 1, 2, 3], [1, 2, 3], [0, 1]]
KV_AD = 232
KV_SLAB = [0, 14336, 135168, 149504]
KV_DUMMY = 28688


def kv_addr_setup(A):
    e, he, d0, dm = vT0, vT1, vT2, vT3
    t = vBUF + 24
    A(f"s_mul_i32 s{sTmp3}, s{sMW}, 14336")
    A(f"s_cmp_ge_u32 s{sMW}, 2")
    A(f"s_cselect_b32 s{sTmp}, {135168 - 2*14336}, 0")
    A(f"s_add_u32 s{sTmp3}, s{sTmp3}, s{sTmp}")
    A(f"s_mul_i32 s{sTmp}, s{sNW}, 6720")
    A(f"s_add_u32 s{sTmp3}, s{sTmp3}, s{sTmp}")
    A(f"v_lshlrev_b32 v{dm}, 4, v{vLane}")
    A(f"v_add_u32 v{dm}, {KV_DUMMY}, v{dm}")
    A(f"v_lshrrev_b32 v{d0}, 5, v{vLane}")
    A(f"v_lshlrev_b32 v{d0}, 2, v{d0}")
    for n, (a, b) in enumerate(KV_PAIRS):
        A(f"v_and_b32 v{e}, 31, v{vLane}")
        A(f"v_add_u32 v{e}, {32*b - 80 + 100}, v{e}")
        A(f"v_mul_u32_u24 v{he}, 205, v{e}")
        A(f"v_lshrrev_b32 v{he}, 12, v{he}")
        A(f"v_mul_u32_u24 v{e}, 80, v{e}")
        A(f"v_add_u32 v{e}, s{sTmp3}, v{e}")
        for q in KV_Q[n]:
            a0 = KV_AD + 4 * n + q
            A(f"v_add_u32 v{a0}, {32*a + 8*q + 100}, v{d0}")
            A(f"v_mul_u32_u24 v{t}, 205, v{a0}")
            A(f"v_lshrrev_b32 v{t}, 12, v{t}")
            A(f"v_cmp_eq_u32 vcc, v{t}, v{he}")
            A(f"v_lshl_add_u32 v{a0}, v{a0}, 2, v{e}")
            A(f"v_subrev_u32 v{a0}, {80*100 + 4*100}, v{a0}")
            A(f"v_cndmask_b32 v{a0}, v{dm}, v{a0}, vcc")
    A(f"v_and_b32 v{e}, 15, v{vLane}")
    A(f"v_lshrrev_b32 v{d0}, 4, v{vLane}")
    A(f"v_lshlrev_b32 v{d0}, 2, v{d0}")
    A(f"v_lshl_add_u32 v{d0}, v{e}, 4, v{d0}")
    for a in range(3):
        az = KV_AD + 20 + a
        A(f"v_add_u32 v{az}, {32*a}, v{d0}")
        A(f"v_mul_u32_u24 v{t}, 205, v{az}")
        A(f"v_lshrrev_b32 v{t}, 12, v{t}")
        A(f"v_mul_u32_u24 v{t}, 1600, v{t}")
        A(f"v_lshl_add_u32 v{az}, v{az}, 2, v{t}")
        A(f"v_add_u32 v{az}, s{sTmp3}, v{az}")
        A(f"v_add_u32 v{az}, 1600, v{az}")
        A(f"v_cmp_gt_u32 vcc, {2 if a < 2 else 1}, v{e}")
        A(f"v_cndmask_b32 v{az}, v{dm}, v{az}, vcc")


def k1_epi_kv(A, acc):
    mu = vBUF
    rr = vBUF + 16
    rl = vBUF + 32
    t = vBUF + 48
    csr = [48, 50, 244, 250, vBUF + 64]
    eps, ea, em, eb = vBUF + 66, vBUF + 68, vBUF + 69, vBUF + 70
    A(f"v_and_b32 v{vT0}, 31, v{vLane}")
    A(f"v_cmp_gt_u32 vcc, 16, v{vT0}")
    A(f"v_lshlrev_b32 v{vT0}, 2, v{vT0}")
    A(f"s_mul_i32 s{sTmp}, s{sNW}, 640")
    A(f"s_add_u32 s{sTmp}, s{sTmp}, {KV_CS}")
    A(f"v_add_u32 v{vT1}, s{sTmp}, v{vT0}")
    A(f"v_lshrrev_b32 v{vT2}, 5, v{vLane}")
    A(f"s_lshl_b32 s{sTmp}, s{sMW}, 7")
    A(f"s_add_u32 s{sTmp}, s{sTmp}, {KV_ST}")
    A(f"v_lshl_add_u32 v{vT2}, v{vT2}, 4, s{sTmp}")
    for a in range(5):
        A(f"ds_read_b32 v{csr[a]}, v{vT1} offset:{a*128}")
    for reg, off in ((mu, 0), (rr, 512), (rl, 1536)):
        for q in range(4):
            A(f"ds_read_b128 {vr(reg+4*q)}, v{vT2} offset:{off+q*32}")
    A(f"v_mov_b32 v{eps}, {f32(1e-6)}")
    A(f"v_mov_b32 v{em}, 0xff800000")
    A(f"v_cndmask_b32 v{ea}, 0, v{eps}, vcc")
    A(f"v_cndmask_b32 v{eb}, v{em}, v{ea}, vcc")
    A(f"v_cndmask_b32 v{em}, v{em}, v{eps}, vcc")
    A(f"v_min_f32 v{eb}, 0, v{eb}")
    A("s_waitcnt lgkmcnt(4)")
    cstamp(A, 1)
    op = lambda a, h: acc(0, a) + 4 * h

    def pack(a):
        d = acc(0, a)
        for i in range(8):
            A(f"v_cvt_pk_bf16_f32 v{d+i}, v{d+2*i}, v{d+2*i+1}")

    def plain(a, dst):
        d = acc(0, a)
        for i in range(0, 16, 2):
            pk_fma(A, dst + i, ("p", mu + i), ("b", csr[a]), ("p", d + i), neg_a=True)
        for i in range(0, 16, 2):
            pk_mul(A, dst + i, ("p", dst + i), ("p", rr + i))

    def phi(a, mixed=None):
        phi_block(A, acc(0, a), 16, t, lambda i: ("p", mu + i), lambda i: ("b", csr[a]), lambda i: ("p", rr + i), lambda i: ("p", rl + i), eps, mixed)
    for a in ((4, 3) if OPT['KV1'] == 1 else (3, 4)):
        plain(a, acc(0, a))
        pack(a)
    A("s_waitcnt lgkmcnt(0)")
    phi(2, (ea, em, eb))
    pack(2)
    for a in (0, 1):
        phi(a)
        pack(a)
    cstamp(A, 2)
    D = lambda n: vBUF + 16 * n
    Z = lambda a: vBUF + 80 + 4 * a
    for h in range(2):
        for n, (a, b) in enumerate(KV_PAIRS):
            A(f"v_mfma_f32_32x32x16_bf16 {vr(D(n),16)}, {vr(op(a,h))}, {vr(op(b,h))}, {vr(D(n),16) if h else 0}")
        for a in range(3):
            A(f"v_mfma_f32_16x16x32_bf16 {vr(Z(a))}, {vr(op(a,h))}, {vr(vSel)}, {vr(Z(a)) if h else 0}")
    cstamp(A, 3)
    A(f"s_cmp_lt_u32 s{sWave}, 4\ns_cbranch_scc1 L_K_nb1\ns_barrier\nL_K_nb1:\ns_nop 3")
    cstamp(A, 4)
    for n in range(5):
        for q in KV_Q[n]:
            A(f"ds_write_b128 v{KV_AD+4*n+q}, {vr(D(n)+4*q)}")
    for a in range(3):
        A(f"ds_write_b128 v{KV_AD+20+a}, {vr(Z(a))}")
    sSlab = 4
    A(f"s_sub_u32 s{sSlab}, s{sCG}, 9")
    A(f"s_mul_i32 s{sSlab}, s{sSlab}, 13440")
    A(f"s_add_u32 s{sSlab}, s{sSlab}, {WS_KVA}")
    A(f"v_lshlrev_b32 v{vT0}, 2, v0")
    A(f"v_add_u32 v{vT1}, {KV_SLAB[2]}, v{vT0}")
    A(f"v_cmp_gt_u32 vcc, {3360-6*512}, v0")
    A(f"v_mov_b32 v{vT2}, {OOB}")
    A(f"v_cndmask_b32 v{vT2}, v{vT2}, v{vT0}, vcc")
    A("s_waitcnt lgkmcnt(0)")
    cstamp(A, 5)
    A(f"s_cmp_ge_u32 s{sWave}, 4\ns_cbranch_scc1 L_K_nb2\ns_barrier\nL_K_nb2:")
    A("s_barrier")
    cstamp(A, 6)
    R = vACC
    for j in range(7):
        for m in range(4):
            A(f"ds_read_b32 v{R+4*j+m}, v{vT0 if m < 2 else vT1} offset:{j*2048 + (m%2)*14336}")
        if j >= 2:
            k = j - 2
            A("s_waitcnt lgkmcnt(8)")
            kv_atomic(A, R, k, sSlab)
    for k in (5, 6):
        A(f"s_waitcnt lgkmcnt({4*(6-k)})")
        kv_atomic(A, R, k, sSlab)


def kv_atomic(A, R, k, sSlab):
    A(f"v_add_f32 v{R+4*k}, v{R+4*k}, v{R+4*k+1}")
    A(f"v_add_f32 v{R+4*k+2}, v{R+4*k+2}, v{R+4*k+3}")
    A(f"v_add_f32 v{R+4*k}, v{R+4*k}, v{R+4*k+2}")
    A(f"buffer_atomic_add_f32 v{R+4*k}, v{vT0 if k < 6 else vT2}, {srd(S_WS)}, s{sSlab} offen offset:{(k%2)*2048}")
    if k % 2 == 1:
        A(f"s_add_u32 s{sSlab}, s{sSlab}, 4096")


def k1_aux(A):
    if OPT["CODEWARM"] == 1:
        A("s_getpc_b64 s[10:11]")
        A.label("L_pc")
        A(f"s_sub_u32 s10, s10, L_pc-{NAME}_kernel")
        A("s_subb_u32 s11, s11, 0")
        A(f"v_lshlrev_b32 v{vT0}, 7, v0")
        A(f"v_min_u32 v{vT0}, L_code_end-{NAME}_kernel-4, v{vT0}")
        A(f"global_load_dword v{vACC+8}, v{vT0}, s[10:11]")
    if OPT["TLBWARM"]:
        g = OPT["TLBWARM"]
        mk_srd(A, S_T, P_OUT, 2048 * 1280)
        A(f"v_lshlrev_b32 v{vT0}, {g}, v0")
        A(f"buffer_load_dword v{vACC+9}, v{vT0}, {srd(S_WS)}, 0 offen sc1")
        A(f"buffer_load_dword v{vACC+10}, v{vT0}, {srd(S_T)}, 0 offen sc1")
    for i in range(4):
        A(f"v_mov_b32 v{vACC+i}, 0")
    A(f"v_lshlrev_b32 v{vT0}, 4, v0")
    A(f"s_mul_i32 s{sTmp}, s{sRB}, 3360")
    A(f"s_add_u32 s{sTmp}, s{sTmp}, {WS_KVA}")
    A(f"v_add_u32 v{vT0}, s{sTmp}, v{vT0}")
    A(f"v_mov_b32 v{vT2}, {OOB}")
    A(f"v_cmp_gt_u32 vcc, 210, v0")
    A(f"v_cndmask_b32 v{vT0}, v{vT2}, v{vT0}, vcc")
    A(f"s_cmp_lg_u32 s{sWave}, 7")
    A("s_cbranch_scc1 L_A_z")
    A(f"s_lshl_b32 s{sTmp}, s{sRB}, 8")
    A(f"s_add_u32 s{sTmp}, s{sTmp}, {WS_FL}")
    A(f"v_writelane_b32 v{vT0}, s{sTmp}, 0")
    A(f"s_add_u32 s{sTmp}, s{sTmp}, {FL_ROW}")
    A(f"v_writelane_b32 v{vT0}, s{sTmp}, 3")
    A(f"s_lshl_b32 s{sTmp}, s{sRB}, 9")
    A(f"s_add_u32 s{sTmp}, s{sTmp}, {WS_FL + FL_KV}")
    A(f"v_writelane_b32 v{vT0}, s{sTmp}, 1")
    A(f"s_add_u32 s{sTmp}, s{sTmp}, 256")
    A(f"v_writelane_b32 v{vT0}, s{sTmp}, 2")
    A.label("L_A_z")
    A(f"buffer_store_dwordx4 {vr(vACC)}, v{vT0}, {srd(S_WS)}, 0 offen sc1")
    A(f"s_cmp_lg_u32 s{sWave}, 7")
    A("s_cbranch_scc1 L_A_z2")
    A("s_waitcnt vmcnt(0)")
    A(f"v_mov_b32 v{vT0}, {OOB}")
    A(f"v_writelane_b32 v{vT0}, 0, 0")
    A(f"v_mov_b32 v{vT1}, 1")
    A(f"buffer_atomic_add v{vT1}, v{vT0}, {srd(S_DBG)}, 0 offen sc1")
    A.label("L_A_z2")
    A(f"s_lshl_b32 s{sUw}, s{sRB}, 3")
    A(f"s_add_u32 s{sUw}, s{sUw}, s{sWave}")
    A(f"s_add_u32 s{sUw}, s{sUw}, 480")
    A(f"s_mul_i32 s{sUl}, s{sWave}, 12288")
    for i in range(3):
        A(f"s_add_u32 s{sU}, s{sUw}, {128*i}")
        A(f"s_add_u32 s9, s{sUl}, {4096*i}")
        w2_unit_dma(A, "s9")
    A("s_waitcnt vmcnt(12)")
    k1_stats(A, "X")
    for i in range(3):
        A("s_waitcnt vmcnt(9)")
        A(f"s_add_u32 s{sU}, s{sUw}, {128*i}")
        A(f"s_add_u32 s9, s{sUl}, {4096*i}")
        w2_unit_out(A, "s9", lambda t: vACC + 16 + 16 * i + 4 * t)
    A("s_waitcnt vmcnt(0)")
    A("s_barrier")
    stamp(A, 9, 0)
    A(f"s_cmp_lg_u32 s{sWave}, 0")
    A("s_cbranch_scc1 L_A_w")
    k1_publish(A)
    A(f"s_mov_b32 s{sSpin}, 0")
    wait_zeroed(A, "L_A_wz", False)
    poll_addr(A)
    A.label("L_A_poll")
    A("s_sleep 10")
    A(f"buffer_load_dword v{vPoll}, v{vPa}, {srd(S_WS)}, 0 offen sc1")
    A("s_waitcnt vmcnt(0)")
    poll_cmp(A)
    A(f"s_add_u32 s{sSpin}, s{sSpin}, 1")
    A(f"s_cmp_gt_u32 s{sSpin}, {SPIN_MAX}")
    A("s_cbranch_scc1 L_A_w")
    A(f"s_cmp_lg_u64 vcc, 0")
    A("s_cbranch_scc1 L_A_poll")
    A.label("L_A_w")
    A("s_barrier")
    if OPT["AUXWARM"]:
        A("s_bfe_u32 s3, s2, 0x10003")
        A("s_lshl_b32 s3, s3, 2")
        A(f"s_lshr_b32 s4, s{sWave}, 1")
        A("s_add_u32 s3, s3, s4")
        A(f"s_mul_i32 s3, s3, {74*5120}")
        A(f"s_and_b32 s4, s{sWave}, 1")
        A("s_lshl_b32 s4, s4, 13")
        A("s_add_u32 s3, s3, s4")
        A(f"s_add_u32 s3, s3, {WS_W2 + (54*5120 if OPT['AUXWARM'] < 3 else 0)}")
        A(f"v_lshlrev_b32 v{vT0}, 7, v{vLane}")
        for i in range(OPT["AUXWARM"] if OPT["AUXWARM"] > 3 else 7):
            A(f"buffer_load_dword v{vACC+i}, v{vT0}, {srd(S_WS)}, s3 offen sc1")
            A("s_add_u32 s3, s3, 16384")
    stamp(A, 3, 0)
    p2_ids(A)
    A(f"s_mov_b32 s{sWoDone}, 0")
    A(f"v_mov_b32 v{vSigA}, {OOB}")
    A(f"v_mov_b32 v{vSigV}, 0")
    A("s_branch L_p2")


def kernel1(A):
    A(".p2align 8")
    A.label(NAME + "_kernel")
    A("s_cmp_ge_u32 s2, 256")
    A("s_cbranch_scc1 L_k1_exit")
    if OPT["XMAP"]:
        A("s_lshr_b32 s3, s2, 5")
        A("s_and_b32 s2, s2, 31")
        A("s_lshl_b32 s2, s2, 3")
        A("s_or_b32 s2, s2, s3")
    load_ptrs(A)
    if OPT["CODEWARM"] == 2:
        A("s_getpc_b64 s[10:11]")
        A.label("L_pc")
        A(f"s_sub_u32 s10, s10, L_pc-{NAME}_kernel")
        A("s_subb_u32 s11, s11, 0")
        A("s_lshr_b32 s4, s2, 3")
        A("s_lshl_b32 s4, s4, 7")
        A(f"v_lshl_add_u32 v{vT0}, v0, 12, s4")
        A(f"v_min_u32 v{vT0}, L_code_end-{NAME}_kernel-4, v{vT0}")
        A("v_cmp_gt_u32 vcc, 16, v0")
        A("s_and_saveexec_b64 s[12:13], vcc")
        A("s_cbranch_execz L_nocw")
        A(f"global_load_dword v255, v{vT0}, s[10:11]")
        A.label("L_nocw")
        A("s_mov_b64 exec, s[12:13]")
    A(f"v_and_b32 v{vLane}, 63, v0")
    A(f"v_lshrrev_b32 v{vT0}, 6, v0")
    A(f"v_readfirstlane_b32 s{sWave}, v{vT0}")
    A("s_and_b32 s3, s2, 7")
    A("s_lshr_b32 s4, s2, 3")
    if OPT["AUXFIRST"] == 1:
        A("s_add_u32 s4, s4, 30")
        A("s_and_b32 s4, s4, 31")
    if OPT["AUXFIRST"] == 2:
        A("s_sub_u32 s4, 31, s4")
    A("s_lshr_b32 s5, s3, 2")
    A("s_and_b32 s6, s3, 3")
    A("s_mul_i32 s7, s6, 30")
    A("s_add_u32 s7, s7, s4")
    A(f"s_lshr_b32 s{sCG}, s7, 3")
    if OPT["CGPERM"]:
        perm = [0, 9, 1, 13, 2, 10, 3, 4, 5, 11, 6, 14, 7, 12, 8, 15]
        tab = sum(p << (4 * i) for i, p in enumerate(perm))
        A(f"s_mov_b32 s10, {tab & 0xffffffff}")
        A(f"s_mov_b32 s11, {tab >> 32}")
        A(f"s_lshl_b32 s{sCG}, s{sCG}, 2")
        A(f"s_lshr_b64 s[10:11], s[10:11], s{sCG}")
        A(f"s_and_b32 s{sCG}, s10, 15")
    A(f"s_and_b32 s{sRB}, s7, 7")
    A("s_lshl_b32 s8, s6, 1")
    A("s_add_u32 s8, s8, s4")
    A("s_sub_u32 s8, s8, 30")
    A("s_cmp_lt_u32 s4, 30")
    A(f"s_cselect_b32 s{sCG}, s{sCG}, 15")
    A(f"s_cselect_b32 s{sRB}, s{sRB}, s8")
    A("s_lshl_b32 s5, s5, 3")
    A(f"s_add_u32 s{sRB}, s{sRB}, s5")
    A(f"s_and_b32 s3, s{sRB}, 7")
    A("s_lshr_b32 s4, s3, 2")
    A(f"s_add_u32 s{sC0}, s3, s4")
    A(f"s_lshr_b32 s4, s{sRB}, 3")
    A(f"s_add_u32 s{sC0}, s{sC0}, s4")
    A("s_waitcnt lgkmcnt(0)")
    mk_srd(A, S_X, P_X, 2048 * 1280)
    mk_srd(A, S_WS, P_WS, WS_SIZE)
    mk_srd(A, S_DBG, P_DBG, 256)
    stamp(A, 0, 0)
    if OPT["P2ONLY"]:
        p2_ids(A)
        A(f"s_mov_b32 s{sWoDone}, 0")
        A(f"v_mov_b32 v{vSigA}, {OOB}")
        A(f"v_mov_b32 v{vSigV}, 0")
        A("s_branch L_p2")
    if OPT["DLY"] == 4:
        A("s_sleep 34")
    k1_stats_issue(A)
    A(f"s_cmp_eq_u32 s{sCG}, 15")
    A("s_cbranch_scc1 L_aux")
    A(f"v_lshrrev_b32 v{vT0}, 3, v{vLane}")
    A(f"v_lshrrev_b32 v{vT1}, 4, v{vLane}")
    A(f"v_and_b32 v{vT2}, 7, v{vLane}")
    A(f"v_xor_b32 v{vT1}, v{vT1}, v{vT2}")
    if OPT["NOSWZ"]: A(f"v_and_b32 v{vT1}, 7, v{vLane}")
    A(f"s_lshl_b32 s3, s{sRB}, 7")
    if OPT["SAME"]: A("s_mov_b32 s3, 0")
    A(f"s_and_b32 s4, s{sWave}, 3")
    A(f"s_lshl_b32 s{sXslot}, s4, 12")
    A(f"s_lshl_b32 s4, s4, 5")
    A("s_add_u32 s3, s3, s4")
    A(f"v_add_u32 v{vT0}, s3, v{vT0}")
    A(f"v_mul_u32_u24 v{vT0}, 1280, v{vT0}")
    A(f"v_lshl_add_u32 v{vXo}, v{vT1}, 4, v{vT0}")
    A(f"v_xor_b32 v{vT1}, 4, v{vT1}")
    A(f"v_lshl_add_u32 v{vXo+1}, v{vT1}, 4, v{vT0}")
    A(f"v_add_u32 v{vXo+1}, {8*1280}, v{vXo+1}")
    A(f"s_lshl_b32 s{sKX}, s{sC0}, 7")
    A(f"s_mov_b32 s{sKXn}, 0")
    A(f"s_cmp_ge_u32 s{sCG}, 13")
    A("s_cbranch_scc1 L_typeQ")
    A(f"s_cmp_ge_u32 s{sCG}, 9")
    A("s_cbranch_scc1 L_typeK")
    k1_gemm(A, "G")
    A.label("L_typeQ")
    k1_gemm(A, "Q")
    A.label("L_typeK")
    k1_gemm(A, "K")
    A.label("L_aux")
    k1_aux(A)
    phase2(A)
    A.label("L_k1_exit")
    A("s_endpgm")
    A.label("L_code_end")


sRB64, sC, sHo, sWo, sHb, sHe, sWb, sWe, sLast = 16, 17, 18, 19, 22, 23, 24, 25, 26
sFl, sWoDone, sWoL, sWoG, sWoI = sWslot, sRslot, sXslot, sStepW, sCSit
vL16 = 5


def p2_ids(A, vec=True):
    A("s_and_b32 s3, s2, 7")
    A("s_lshr_b32 s4, s2, 3")
    A(f"s_and_b32 s{sC}, s4, 7")
    A("s_lshr_b32 s4, s4, 3")
    A("s_lshl_b32 s3, s3, 2")
    A(f"s_add_u32 s{sRB64}, s3, s4")
    if OPT["P2SAME"] == 1:
        A(f"s_and_b32 s{sRB64}, s{sRB64}, 1")
        A(f"s_and_b32 s{sC}, s{sC}, 1")
    if OPT["P2SAME"] == 2:
        A(f"s_and_b32 s{sC}, s{sC}, 3")
    if vec:
        A(f"v_lshlrev_b32 v{vL16}, 4, v{vLane}")


WO_LDS = 32768


def wo_early(A, first, per_wave):
    A("s_lshr_b32 s4, s2, 3")
    A("s_and_b32 s4, s4, 7")
    A(f"s_mul_i32 s4, s4, {74*5120}")
    A(f"s_and_b32 s5, s{sWave}, 3")
    A(f"s_mul_i32 s5, s5, {per_wave*1024}")
    A("s_add_u32 s4, s4, s5")
    A(f"s_add_u32 s4, s4, {WS_W2 + 54*5120 + first*1024}")
    A(f"s_add_u32 s5, s5, {WO_LDS + first*1024}")
    A(f"v_lshlrev_b32 v{vT0}, 4, v{vLane}")
    for i in range(per_wave):
        if i % 4 == 0:
            A(f"s_add_u32 m0, s5, {i*1024}")
            A(f"s_add_u32 s6, s4, {i*1024}")
        A(f"buffer_load_dwordx4 v{vT0}, {srd(S_WS)}, s6 offen offset:{(i%4)*1024} sc1 lds")


def wo_setup(A):
    A(f"s_mul_i32 s{sWoL}, s{sWave}, 25600")
    A(f"s_add_u32 s{sWoL}, s{sWoL}, {WO_LDS}")
    A(f"s_mul_i32 s6, s{sC}, 74")
    A(f"s_mul_i32 s7, s{sWave}, 5")
    A("s_add_u32 s6, s6, s7")
    A("s_add_u32 s6, s6, 54")
    A("s_mul_i32 s6, s6, 5120")
    A(f"s_add_u32 s{sWoG}, s6, {WS_W2}")
    A(f"s_and_b32 s{sWoI}, s{sRB64}, 3")
    A(f"s_mul_i32 s{sWoI}, s{sWoI}, {6*1024}")


def wo_dmas():
    return [f"s_add_u32 m0, s{sWoL}, s{sWoI}\n"
            f"s_add_u32 s9, s{sWoG}, s{sWoI}\n"
            f"buffer_load_dwordx4 v{vL16}, {srd(S_WS)}, s9 offen sc1 lds\n"
            f"s_add_u32 s{sWoI}, s{sWoI}, 1024\n"
            f"s_cmp_eq_u32 s{sWoI}, {25*1024}\n"
            f"s_cselect_b32 s{sWoI}, 0, s{sWoI}" for _ in range(25)]


NK, WD, HD = 14, 6, 3
q4 = lambda a, b: list(range(a, b, 4))
WQ = q4(8, 56) + q4(128, 152) + q4(248, 256) + q4(112, 128) + q4(152, 168) + q4(200, 208)
AQ = q4(88, 112) + q4(168, 192) + q4(56, 88)
HQ = q4(192, 200) + q4(208, 248)
assert len(WQ) == 30 and len(AQ) == 20 and len(HQ) == 12 and len(set(WQ + AQ + HQ)) == 62


def ffn_setup(A):
    A(f"s_sub_u32 s3, s{sWave}, 4")
    A("s_mul_i32 s4, s3, 14")
    A("s_cmp_eq_u32 s3, 3")
    A("s_cselect_b32 s5, 1, 0")
    A("s_sub_u32 s4, s4, s5")
    A("s_cmp_ge_u32 s3, 2")
    A("s_cselect_b32 s5, 13, 14")
    A(f"s_cselect_b32 s{sLast}, {OOB}, 0")
    A(f"s_and_b32 s6, s{sRB64}, 3")
    A("s_lshl_b32 s6, s6, 1")
    A(f"s_add_u32 s6, s6, s{sC}")
    A("s_mul_i32 s6, s6, 7")
    A("s_lshr_b32 s6, s6, 2")
    A("s_sub_u32 s7, s6, s5")
    A("s_cmp_ge_u32 s6, s5")
    A("s_cselect_b32 s6, s7, s6")
    if not OPT["P2ROT"]:
        A("s_mov_b32 s6, 0")
    A(f"s_mul_i32 s{sHb}, s{sRB64}, 54")
    A(f"s_add_u32 s{sHb}, s{sHb}, s4")
    A(f"s_lshl_b32 s{sHb}, s{sHb}, 12")
    A("s_lshl_b32 s7, s5, 12")
    A(f"s_add_u32 s{sHe}, s{sHb}, s7")
    A("s_lshl_b32 s7, s6, 12")
    A(f"s_add_u32 s{sHo}, s{sHb}, s7")
    A(f"s_mul_i32 s{sWb}, s{sC}, 74")
    A(f"s_add_u32 s{sWb}, s{sWb}, s4")
    A(f"s_mul_i32 s{sWb}, s{sWb}, 5120")
    A(f"s_add_u32 s{sWb}, s{sWb}, {WS_W2}")
    A("s_mul_i32 s7, s5, 5120")
    A(f"s_add_u32 s{sWe}, s{sWb}, s7")
    A("s_mul_i32 s7, s6, 5120")
    A(f"s_add_u32 s{sWo}, s{sWb}, s7")


def ldW_groups(j):
    out = []
    pre = f"s_add_u32 s{sWo}, s{sWo}, s{sLast}\n" if j == NK - 1 else ""
    for nt in range(4):
        out.append((pre if nt == 0 else "") +
                   f"buffer_load_dwordx4 {vr(WQ[5*(j%WD)+nt])}, v{vL16}, {srd(S_WS)}, s{sWo} offen offset:{nt*1024}{HSC}")
    out.append(f"s_add_u32 s3, s{sWo}, 4096\n"
               f"buffer_load_dwordx4 {vr(WQ[5*(j%WD)+4])}, v{vL16}, {srd(S_WS)}, s3 offen{HSC}\n"
               f"s_add_u32 s{sWo}, s{sWo}, 5120\n"
               f"s_cmp_eq_u32 s{sWo}, s{sWe}\n"
               f"s_cselect_b32 s{sWo}, s{sWb}, s{sWo}")
    return out


def poll_flag(A, lab, addr_s, mask, target, vtmp):
    A(f"s_mov_b32 s{sSpin}, 0")
    A(f"v_mov_b32 v{vtmp+1}, 0")
    A.label(lab)
    A(f"buffer_load_dword v{vtmp}, v{vtmp+1}, {srd(S_WS)}, s{addr_s} offen sc1")
    A("s_waitcnt vmcnt(0)")
    A(f"v_readfirstlane_b32 s{sTmp3}, v{vtmp}")
    A(f"s_add_u32 s{sSpin}, s{sSpin}, 1")
    A(f"s_and_b32 s{sTmp3}, s{sTmp3}, {mask}")
    A(f"s_cmp_ge_u32 s{sTmp3}, {0 if OPT['P2ONLY'] else target}")
    A(f"s_cbranch_scc1 {lab}_ok")
    A(f"s_cmp_gt_u32 s{sSpin}, {SPIN_MAX}")
    A(f"s_cbranch_scc1 {lab}_ok")
    A(f"s_sleep {OPT['PSLEEP']}")
    A(f"s_branch {lab}")
    A.label(lab + "_ok")


def phase2(A):
    S_OUT = S_T
    ACC = 8
    acc = lambda nt, mt: ACC + 4 * (nt * 4 + mt)
    A.label("L_p2")
    mk_srd(A, S_OUT, P_OUT, 2048 * 1280)
    A(f"s_lshr_b32 s{sFl}, s{sRB64}, 1")
    A(f"s_lshl_b32 s{sFl}, s{sFl}, 8")
    A(f"s_add_u32 s{sFl}, s{sFl}, {WS_FL + FL_HC}")
    A.fence()
    A(f"s_cmp_ge_u32 s{sWave}, 4")
    A("s_cbranch_scc1 L2_ffn")

    def signal(n_younger):
        A(f"s_waitcnt vmcnt({n_younger}) lgkmcnt(0)")
        A("s_barrier")

    XR, OA, RA = 232, 238, 241

    def red_setup(A, ta, tb):
        for j in range(3):
            A(f"s_add_u32 s11, s{sWave}, {8*j}")
            A(f"s_lshr_b32 s12, s11, 2")
            A(f"s_and_b32 s13, s11, 3")
            A(f"s_lshl_b32 s14, s{sRB64}, 6")
            A(f"s_lshl_b32 s13, s13, 4")
            A("s_add_u32 s14, s14, s13")
            A("s_mul_i32 s14, s14, 1280")
            A(f"s_mul_i32 s15, s{sC}, 160")
            A("s_add_u32 s14, s14, s15")
            A("s_lshl_b32 s12, s12, 5")
            A("s_add_u32 s14, s14, s12")
            A("s_cmp_lt_u32 s11, 20")
            A(f"s_cselect_b32 s14, s14, {OOB}")
            A(f"v_and_b32 v{ta}, 15, v{vLane}")
            A(f"v_mul_u32_u24 v{ta}, 1280, v{ta}")
            A(f"v_lshrrev_b32 v{tb}, 4, v{vLane}")
            A(f"v_lshl_add_u32 v{ta}, v{tb}, 3, v{ta}")
            A(f"v_add_u32 v{OA+j}, s14, v{ta}")
            A(f"buffer_load_dwordx2 {vr(XR+2*j, 2)}, v{OA+j}, {srd(S_X)}, 0 offen")
            A("s_lshl_b32 s12, s11, 10")
            A(f"s_add_u32 s13, s12, {WO_LDS+5120}")
            A(f"v_add_u32 v{RA+5*j}, s13, v{vL16}")
            for f in range(4):
                A(f"s_add_u32 s13, s12, {KV_SLAB[f]}")
                A(f"s_add_u32 s14, s12, {WO_LDS + f*25600 - 14*1024}")
                A("s_cmp_lt_u32 s11, 14")
                A("s_cselect_b32 s13, s13, s14")
                A("s_cmp_lt_u32 s11, 19")
                A(f"s_cselect_b32 s13, s13, {28672 + f*1024}")
                A(f"v_add_u32 v{RA+5*j+1+f}, s13, v{vL16}")

    AD = 8
    RAW, NRAW = 56, 6
    FR = 80
    OSP = 96
    PQ = lambda mt, blk: 112 + 16 * blk + 4 * mt
    O = lambda u, mt: (OSP + 4 * mt) if u == 0 else PQ(mt, u - 1)
    DEN = 192
    NM = 224
    T = 192
    A(f"s_mul_i32 s8, s{sWave}, 14336")
    A(f"s_cmp_ge_u32 s{sWave}, 2")
    A(f"s_cselect_b32 s9, {135168 - 2*14336}, 0")
    A("s_add_u32 s8, s8, s9")
    for i in range(4):
        A(f"v_mov_b32 v{T+i}, 0")
    A(f"s_add_u32 s9, s8, 13440")
    A(f"v_mov_b32 v{vT2}, s9")
    A(f"ds_write_b128 v{vT2}, {vr(T)}")
    A(f"ds_write_b32 v{vT2}, v{T} offset:16")
    signal(0)
    A(f"s_cmp_lg_u32 s{sWave}, 0")
    A("s_cbranch_scc1 L2_nosig")
    A(f"buffer_atomic_add v{vSigV}, v{vSigA}, {srd(S_WS)}, 0 offen sc1")
    A.label("L2_nosig")
    stamp(A, 0, 1)
    if OPT["NOATT"]:
        A("s_branch L2_reduce")
    A(f"s_cmp_lg_u32 s{sWoDone}, 0")
    A("s_cbranch_scc1 L2_wodone")
    wo_setup(A)
    for g in wo_dmas():
        A(g)
    A.label("L2_wodone")
    A(f"s_mul_i32 s4, s{sWave}, 25600")
    A(f"s_add_u32 s4, s4, {WO_LDS}")
    iL, gL = T + 4, T + 5
    he = T + 12
    hd = T + 22
    ab, zb, hz = T + 6, T + 7, T + 8
    A(f"v_and_b32 v{iL}, 15, v{vLane}")
    A(f"v_lshrrev_b32 v{gL}, 4, v{vLane}")
    for Tt in range(10):
        A(f"v_add_u32 v{he+Tt}, {16*Tt}, v{iL}")
        A(f"v_mul_u32_u24 v{he+Tt}, 205, v{he+Tt}")
        A(f"v_lshrrev_b32 v{he+Tt}, 12, v{he+Tt}")
    for blk in range(5):
        for h in range(2):
            r = hd + 2 * blk + h
            A(f"v_lshlrev_b32 v{r}, 3, v{gL}")
            A(f"v_add_u32 v{r}, {32*blk+4*h}, v{r}")
            A(f"v_mul_u32_u24 v{r}, 205, v{r}")
            A(f"v_lshrrev_b32 v{r}, 12, v{r}")
    A(f"v_mul_u32_u24 v{ab}, 80, v{iL}")
    A(f"v_lshl_add_u32 v{ab}, v{gL}, 5, v{ab}")
    A(f"v_add_u32 v{ab}, s8, v{ab}")
    A(f"v_and_b32 v{hz}, 3, v{iL}")
    A(f"v_mul_u32_u24 v{zb}, 1600, v{hz}")
    A(f"v_lshl_add_u32 v{zb}, v{gL}, 5, v{zb}")
    A(f"v_add_u32 v{zb}, s8, v{zb}")
    NUM = {0: [0], 1: [0, 1], 2: [0, 1], 3: [1, 2], 4: [1, 2], 5: [2, 3], 6: [2, 3], 7: [3, 4], 8: [3, 4], 9: [4]}
    frs = []
    for ch in range(2):
        A(f"v_add_u32 v{T+9}, {4*ch}, v{hz}")
        bl = [0, 1, 2] if ch == 0 else [2, 3, 4]
        for blk in bl:
            n = len(frs)
            frs.append(("z", ch, blk, blk == bl[0], blk == bl[-1]))
            for h in range(2):
                a = AD + 2 * n + h
                A(f"v_cmp_eq_u32 vcc, v{T+9}, v{hd+2*blk+h}")
                A(f"v_add_u32 v{a}, {6400*ch+1600+128*blk+16*h}, v{zb}")
                A(f"v_cndmask_b32 v{a}, v{vT2}, v{a}, vcc")
        for Tt in range(5 * ch, 5 * ch + 5):
            for blk in NUM[Tt]:
                n = len(frs)
                frs.append(("n", Tt, blk, blk == NUM[Tt][0], blk == NUM[Tt][-1]))
                for h in range(2):
                    a = AD + 2 * n + h
                    A(f"v_cmp_eq_u32 vcc, v{he+Tt}, v{hd+2*blk+h}")
                    A(f"v_add_u32 v{a}, {1280*Tt+128*blk+16*h}, v{ab}")
                    A(f"v_cndmask_b32 v{a}, v{vT2}, v{a}, vcc")
    assert len(frs) == 24
    sM = 84
    for k in range(3):
        A(f"v_cmp_lt_u32 s[{sM+2*k}:{sM+2*k+1}], {k}, v{gL}")
    stamp(A, 7, 1, vt=vT0)
    A("s_setprio 3")
    A(f"s_lshr_b32 s10, s{sWave}, 1")
    A("s_lshl_b32 s10, 0x2000, s10")
    poll_flag(A, "L2_pq", sFl, "s10", "s10", vT0)
    stamp(A, 8, 1, vt=vT0)
    A(f"s_mul_i32 s6, s{sRB64}, 20")
    A(f"s_mul_i32 s7, s{sWave}, 5")
    A("s_add_u32 s6, s6, s7")
    A("s_lshl_b32 s6, s6, 12")
    A(f"s_add_u32 s6, s6, {WS_PQ}")
    for blk in range(5):
        for mt in range(4):
            A(f"buffer_load_dwordx4 {vr(PQ(mt, blk))}, v{vL16}, {srd(S_WS)}, s6 offen offset:{mt*1024} sc1")
        A(f"s_add_u32 s6, s6, 4096")
    A(f"s_lshl_b32 s6, s{sWave}, 3")
    A("s_and_b32 s7, s2, 7")
    A("s_add_u32 s6, s6, s7")
    A("s_lshl_b32 s6, s6, 8")
    A(f"s_add_u32 s6, s6, {WS_FL + FL_KV}")
    poll_flag(A, "L2_kv", 6, 0xff, 16, vT0)
    stamp(A, 3, 1, vt=vT0)
    A(f"s_mul_i32 s3, s{sWave}, 13440")
    A(f"s_add_u32 s3, s3, {WS_KVA}")
    for i in range(14):
        if i % 4 == 0:
            A(f"s_add_u32 m0, s8, {i*1024}")
            A(f"s_add_u32 s5, s3, {i*1024}")
        if i == 13:
            A("s_mov_b64 exec, 0xff")
        A(f"buffer_load_dwordx4 v{vL16}, {srd(S_WS)}, s5 offen offset:{(i%4)*1024} sc1 lds")
    A("s_mov_b64 exec, -1")
    A(f"s_setprio {OPT['APRIO']}")
    A("s_waitcnt vmcnt(7) lgkmcnt(0)")
    stamp(A, 9, 1, vt=vT0)
    raw = lambda k: RAW + 4 * (k % NRAW)
    fr = lambda n: FR + 4 * (n % 4)
    dst = lambda f, mt: (DEN + 8 * mt + 4 * f[1]) if f[0] == "z" else (NM + 16 * (f[1] % 2) + 4 * mt)

    def rd(n):
        if n == 12:
            A("s_waitcnt vmcnt(0)")
        for h in range(2):
            A(f"ds_read_b128 {vr(raw(2*n+h))}, v{AD+2*n+h}")

    def post(f):
        out = []
        if f[0] == "z":
            for mt in range(4):
                for i in range(4):
                    r = DEN + 8 * mt + 4 * f[1] + i
                    out.append(f"v_add_f32 v{r}, {f32(1e-6)}, v{r}")
            for mt in range(4):
                for i in range(4):
                    r = DEN + 8 * mt + 4 * f[1] + i
                    out.append(f"v_rcp_f32 v{r}, v{r}")
            return out
        Tt = f[1]
        lo, hi = (4 * Tt) // 5, (4 * Tt + 3) // 5
        sl = {}
        for mt in range(4):
            if lo == hi:
                sl[mt] = DEN + 8 * mt + lo
            else:
                thr = 5 * hi - 4 * Tt
                sl[mt] = AD + mt
                out.append(f"v_cndmask_b32 v{sl[mt]}, v{DEN+8*mt+lo}, v{DEN+8*mt+hi}, s[{sM+2*(thr-1)}:{sM+2*(thr-1)+1}]")
        for mt in range(4):
            d = dst(f, mt)
            for i in range(4):
                out.append(f"v_mul_f32 v{d+i}, v{d+i}, v{sl[mt]}")
        for mt in range(4):
            d = dst(f, mt)
            ob = O(Tt // 2, mt) + 2 * (Tt % 2)
            out.append(f"v_cvt_pk_bf16_f32 v{ob}, v{d}, v{d+1}")
            out.append(f"v_cvt_pk_bf16_f32 v{ob+1}, v{d+2}, v{d+3}")
        return out
    rd(0)
    rd(1)
    pend = []
    nxt = []
    for n in range(26):
        if n + 2 < 24:
            rd(n + 2)
        cv = []
        if n < 24:
            A(f"s_waitcnt lgkmcnt({2*min(2, 23-n)})")
            for h in range(2):
                cv.append(f"v_cvt_pk_bf16_f32 v{fr(n)+2*h}, v{raw(2*n+h)}, v{raw(2*n+h)+1}")
                cv.append(f"v_cvt_pk_bf16_f32 v{fr(n)+2*h+1}, v{raw(2*n+h)+2}, v{raw(2*n+h)+3}")
        mf = []
        if 1 <= n <= 24:
            f = frs[n - 1]
            if f[3] and f[0] == "n":
                need = [x for x in pend if x[0] <= f[1] - 2]
                for x in need:
                    A(x[1])
                pend = [x for x in pend if x[0] > f[1] - 2]
            for mt in range(4):
                d = vr(dst(f, mt))
                mf.append(f"v_mfma_f32_16x16x32_bf16 {d}, {vr(fr(n-1))}, {vr(PQ(mt, f[2]))}, {0 if f[3] else d}")
        take = pend[:14]
        pend = pend[14:]
        work = cv + [x[1] for x in take]
        for g in (interleave(mf, work) if mf else work):
            A(g)
        pend += nxt
        nxt = []
        if 1 <= n <= 24 and frs[n - 1][4]:
            f = frs[n - 1]
            nxt = [((f[1] if f[0] == "n" else 5 * f[1] - 0.5), x) for x in post(f)]
    for x in pend + nxt:
        A(x[1])
    stamp(A, 11, 1, vt=vT0)
    A(f"s_setprio {OPT['APRIO2']}")
    WF = 192
    A(f"v_add_u32 v{vT0}, s4, v{vL16}")
    A.fence()

    rd_wo = lambda u: [f"ds_read_b128 {vr(WF+20*(u%2)+4*nt)}, v{vT0} offset:{(u*5+nt)*1024}" for nt in range(5)]
    E = Asm()
    red_setup(E, vSigA, vSigV)
    rs = [t for _, t in E.lines]
    for g in rd_wo(0):
        A(g)
    for u in range(5):
        A("s_waitcnt lgkmcnt(0)")
        if u == 0:
            A(f"v_mov_b32 v{vT1}, 1")
            A(f"ds_write_b32 v{vT2}, v{vT1} offset:16")
        mf = []
        for nt in range(5):
            for mt in range(4):
                d = vr(acc(nt, mt))
                mf.append(f"v_mfma_f32_16x16x32_bf16 {d}, {vr(WF+20*(u%2)+4*nt)}, {vr(O(u, mt))}, {d if u else 0}")
        k = (len(rs) + 3) // 4
        if u == 4 and OPT["WEARLY"]:
            lag = OPT["WEARLY"]
            for t in range(20 - lag):
                mf[t + lag] += f"\nds_write_b128 v{vT0}, {vr(ACC+4*t)} offset:{5120+t*1024}"
        for g in interleave(mf, (rd_wo(u + 1) if u < 4 else [], 0.2, 0.6), rs[u*k:(u+1)*k]):
            A(g)
    stamp(A, 1, 1, vt=vSigA)
    A.fence()
    for t in range(20 - OPT["WEARLY"] if OPT["WEARLY"] else 0, 20):
        A(f"ds_write_b128 v{vT0}, {vr(ACC+4*t)} offset:{5120+t*1024}")
    A("s_branch L2_reduce")

    A.label("L2_ffn")
    q = []

    def ldW(j):
        for g in ldW_groups(j):
            A(g)
        q.extend([("W", j)] * 5)

    def ldH1(j, mt):
        if j == NK - 1 and mt == 0:
            A(f"s_add_u32 s{sHo}, s{sHo}, s{sLast}")
        A(f"buffer_load_dwordx4 {vr(HQ[4*(j%HD)+mt])}, v{vL16}, {srd(S_WS)}, s{sHo} offen offset:{mt*1024}{HSC}")
        if mt == 3:
            A(f"s_add_u32 s{sHo}, s{sHo}, 4096")
            A(f"s_cmp_eq_u32 s{sHo}, s{sHe}")
            A(f"s_cselect_b32 s{sHo}, s{sHb}, s{sHo}")
        q.append(("H", j, mt))

    def ldH(j):
        for mt in range(4):
            ldH1(j, mt)
    signal(0)
    A(f"s_cmp_lg_u32 s{sWoDone}, 0")
    A("s_cbranch_scc1 L2_ws")
    ffn_setup(A)
    A.label("L2_ws")
    A(f"s_sub_u32 s10, s{sWave}, 4")
    A("s_lshl_b32 s10, s10, 1")
    A("s_lshl_b32 s10, 7, s10")
    A(f"v_mov_b32 v{vT1}, 0")
    A(f"s_cmp_gt_u32 s{sWoDone}, 1")
    A("s_cbranch_scc1 L2_w0")
    ldW(0)
    ldW(1)
    A.label("L2_w0")
    assert OPT["NPRE"] == 2
    for j in range(2, WD):
        if j == OPT["EPOLL"]:
            A(f"buffer_load_dword v{vT2}, v{vT1}, {srd(S_WS)}, s{sFl} offen sc1")
        ldW(j)
    if OPT["EPOLL"]:
        A(f"s_waitcnt vmcnt({5*(WD-OPT['EPOLL'])})")
        A(f"v_readfirstlane_b32 s{sTmp3}, v{vT2}")
        A(f"s_and_b32 s{sTmp3}, s{sTmp3}, s10")
        A(f"s_cmp_eq_u32 s{sTmp3}, s10")
        A(f"s_cbranch_scc1 L2_h_ok")
    stamp(A, 4, 1, wave=4, vt=vT0)
    if not OPT["NOHWAIT"]:
        poll_flag(A, "L2_h", sFl, "s10", "s10", vT0)
    stamp(A, 5, 1, wave=4, vt=vT0)
    stamp(A, 14, 1, wave=4, vt=vT0, clk=True)
    q.clear()
    for j in range(HD):
        ldH(j)
    A(f"s_setprio {OPT['FPRIO']}")
    later = []
    for j in range(NK):
        for mt in range(4):
            last = max(i for i, e in enumerate(q) if e[1] == j and (e[0] == "W" or e[2] <= mt))
            A(f"s_waitcnt vmcnt({len(q)-1-last})")
            for nt in range(5):
                d = vr(AQ[nt*4+mt])
                if not OPT["NOMF"]: A(f"v_mfma_f32_16x16x32_bf16 {d}, {vr(WQ[5*(j%WD)+nt])}, {vr(HQ[4*(j%HD)+mt])}, {d if j else 0}")
            for fn in later:
                fn()
            later = []
            if j + HD < NK:
                later.append(lambda j=j, mt=mt: ldH1(j + HD, mt))
        if j + WD < NK:
            later.append(lambda j=j: ldW(j + WD))
    A("s_setprio 0")
    stamp(A, 6, 1, wave=4, vt=vT0)
    stamp(A, 15, 1, wave=4, vt=vT0, clk=True)
    A("s_waitcnt vmcnt(0)")
    red_setup(A, vSigA, vSigV)
    A(f"s_sub_u32 s3, s{sWave}, 4")
    A("s_mul_i32 s8, s3, 14336")
    A("s_cmp_ge_u32 s3, 2")
    A(f"s_cselect_b32 s9, {135168 - 2*14336}, 0")
    A("s_add_u32 s8, s8, s9")
    A(f"v_add_u32 v{vT0}, s8, v{vL16}")
    A("s_add_u32 s9, s8, 13456")
    A(f"v_mov_b32 v{vT2}, s9")
    A(f"s_mov_b32 s{sSpin}, 0")
    A.label("L2_wfree")
    A(f"ds_read_b32 v{vT1}, v{vT2}")
    A("s_waitcnt lgkmcnt(0)")
    A(f"v_readfirstlane_b32 s9, v{vT1}")
    A(f"s_add_u32 s{sSpin}, s{sSpin}, 1")
    A("s_cmp_eq_u32 s9, 1")
    A("s_cbranch_scc1 L2_wfree_ok")
    A(f"s_cmp_gt_u32 s{sSpin}, {SPIN_MAX*16}")
    A("s_cbranch_scc1 L2_wfree_ok")
    A("s_sleep 2")
    A("s_branch L2_wfree")
    A.label("L2_wfree_ok")
    A("s_mul_i32 s8, s3, 25600")
    A(f"s_add_u32 s8, s8, {WO_LDS}")
    A(f"v_add_u32 v{vT1}, s8, v{vL16}")
    A("s_lshl_b32 s8, s3, 10")
    A(f"v_add_u32 v{vT2}, s8, v{vL16}")
    for t in range(20):
        if t < 14:
            A(f"ds_write_b128 v{vT0}, {vr(AQ[t])} offset:{t*1024}")
        elif t < 19:
            A(f"ds_write_b128 v{vT1}, {vr(AQ[t])} offset:{(t-14)*1024}")
        else:
            A(f"ds_write_b128 v{vT2}, {vr(AQ[t])} offset:28672")

    A.label("L2_reduce")
    if OPT["DLY"] == 5:
        A("s_sleep 30")
    A("s_setprio 0")
    A("s_waitcnt lgkmcnt(0)")
    stamp(A, 12, 1, vt=vSigA)
    A("s_barrier")
    stamp(A, 13, 1, vt=vSigA)
    R = lambda j: 8 + 32 * j

    def rds(j):
        A(f"v_add_u32 v{vT0}, {2*25600}, v{RA+5*j}")
        for w in range(4):
            A(f"ds_read_b128 {vr(R(j)+4*w)}, v{RA+5*j if w < 2 else vT0} offset:{(w%2)*25600}")
        for f in range(4):
            A(f"ds_read_b128 {vr(R(j)+16+4*f)}, v{RA+5*j+1+f}")

    def fin(j):
        r = R(j)
        for st in (16, 8, 4):
            for i in range(0, st, 2):
                pk_mul(A, r + i, ("p", r + i), ("p", r + st + i), op="add")
        x0, x1 = XR + 2 * j, XR + 2 * j + 1
        A(f"v_lshlrev_b32 v{r+4}, 16, v{x0}")
        A(f"v_and_b32 v{r+5}, 0xffff0000, v{x0}")
        A(f"v_lshlrev_b32 v{r+6}, 16, v{x1}")
        A(f"v_and_b32 v{r+7}, 0xffff0000, v{x1}")
        for i in range(0, 4, 2):
            pk_mul(A, r + i, ("p", r + i), ("p", r + 4 + i), op="add")
        A(f"v_cvt_pk_bf16_f32 v{x0}, v{r}, v{r+1}")
        A(f"v_cvt_pk_bf16_f32 v{x1}, v{r+2}, v{r+3}")
        A(f"buffer_store_dwordx2 {vr(x0, 2)}, v{OA+j}, {srd(S_OUT)}, 0 offen" + ["", " sc1", " nt"][OPT["OUTSC"]])
    rds(0)
    rds(1)
    A("s_waitcnt vmcnt(0) lgkmcnt(8)")
    fin(0)
    A(f"s_cmp_ge_u32 s{sWave}, 4")
    A("s_cbranch_scc1 L2_last")
    rds(2)
    A("s_waitcnt lgkmcnt(0)")
    fin(2)
    A.label("L2_last")
    A("s_waitcnt lgkmcnt(0)")
    fin(1)
    A.label("L2_done")
    stamp(A, 2, 1, vt=vSigA)


def descriptor(name, vgpr=256):
    return f""".amdhsa_kernel {name}
  .amdhsa_next_free_vgpr {vgpr}
  .amdhsa_next_free_sgpr 102
  .amdhsa_accum_offset {vgpr}
  .amdhsa_group_segment_fixed_size 0
  .amdhsa_kernarg_size 80
  .amdhsa_user_sgpr_count 2
  .amdhsa_user_sgpr_kernarg_segment_ptr 1
  .amdhsa_system_sgpr_workgroup_id_x 1
.end_amdhsa_kernel
"""


def probe(A):
    A(".p2align 8")
    A.label("pre_kernel")
    if OPT["PROBE"] in (4, 5):
        A("s_cmp_ge_u32 s2, 64")
        A("s_cbranch_scc1 L_pre_exit")
        load_ptrs(A)
        A("s_lshr_b32 s3, s2, 3")
        A("s_lshl_b32 s3, s3, 9")
        A("v_add_u32 v1, s3, v0")
        A("v_lshlrev_b32 v1, 12, v1")
        A("s_waitcnt lgkmcnt(0)")
        lst = ((P_WS, WS_SIZE), (P_OUT, 2048*1280))
        if OPT["PROBE"] == 5:
            lst += ((P_X, 2048*1280), (P_WQKV, 640*3840), (P_WO, 640*1280), (P_G, 640*3456), (P_U, 640*3456), (P_D, 1728*1280))
        for k, (p, n) in enumerate(lst):
            mk_srd(A, 36 + 4*k, p, n)
            A(f"buffer_load_dword v{2+k}, v1, {srd(36+4*k)}, 0 offen")
        A("s_waitcnt vmcnt(0)")
        A.label("L_pre_exit")
    if OPT["PROBE"] == 2:
        A("s_cmp_ge_u32 s2, 256")
        A("s_cbranch_scc1 L_pre_exit")
        load_ptrs(A)
        A("s_lshl_b32 s3, s2, 9")
        A("v_add_u32 v1, s3, v0")
        A("v_lshlrev_b32 v1, 5, v1")
        A("s_waitcnt lgkmcnt(0)")
        for k, (p, n) in enumerate(((P_X, 2048*1280), (P_WQKV, 640*3840), (P_WO, 640*1280), (P_G, 640*3456), (P_U, 640*3456), (P_D, 1728*1280))):
            mk_srd(A, 36 + 4*k, p, n)
            A(f"buffer_load_dword v{2+k}, v1, {srd(36+4*k)}, 0 offen")
        A("s_waitcnt vmcnt(0)")
        A.label("L_pre_exit")
    A("s_endpgm")


def main():
    A = Asm()
    kernel1(A)
    K = NAME + "_kernel"
    launch = f"; @launch grid=(256,1,1) block=(512,1,1) lds={LDS_TOTAL}"
    extra = ""
    if OPT["PROBE"]:
        probe(A)
        launch = f"; @launch kernel=pre_kernel grid=(256,1,1) block=(512,1,1) lds=0\n; @launch kernel={K} grid=(256,1,1) block=(512,1,1) lds={LDS_TOTAL}"
        if OPT["PROBE"] == 3:
            launch = f"; @launch kernel={K} grid=(256,1,1) block=(512,1,1) lds={LDS_TOTAL}\n; @launch kernel={K} grid=(256,1,1) block=(512,1,1) lds={LDS_TOTAL}"
        extra = ".p2align 6\n" + descriptor("pre_kernel", 16)
    head = f"""; LN + linear attention + GEGLU FFN, one persistent launch (generated by dev/gen.py)
{launch}
.amdgcn_target "amdgcn-amd-amdhsa--gfx950"
.text
.globl {K}
.type {K},@function
"""
    tail = '.section .rodata,"a"\n.p2align 6\n' + descriptor(K) + extra
    open(sys.argv[1], "w").write(head + A.render() + tail)


main()
```
